```python
import torch

def _softmax(x, axis=-1):
    return torch.softmax(x, dim=axis)
def _gelu(x):
    return torch.nn.functional.gelu(x, approximate="tanh")
def _silu(x):
    return torch.nn.functional.silu(x)
def _sigmoid(x):
    return torch.sigmoid(x)
def _layernorm(x, axis=-1, eps=1e-5):
    m = x.mean(dim=axis, keepdim=True)
    v = x.var(dim=axis, keepdim=True, unbiased=False)
    return (x - m) / torch.sqrt(v + eps)
def _scatter_add(tgt, idx, src, axis=0):
    return tgt.clone().index_add_(axis, idx, src)
def _segment_sum(src, seg, n):
    out = torch.zeros((n,) + src.shape[1:], dtype=src.dtype)
    return out.index_add_(0, seg, src)
def _pad(x, pw):
    flat = tuple(v for pair in reversed(pw) for v in pair)
    return torch.nn.functional.pad(x, flat)

kernel_name = 'interleave_layers__linear_attn_block__dense_activation_relu__prompt'

def setup_inputs():

    _w = (lambda a: (lambda t: t.to(torch.bfloat16) if t.is_floating_point() else t)(torch.as_tensor(a)))
    def _A_setup():
        B, S, D = 1, 2048, 512
        return {
            "x": _w((lambda *s: torch.randn(*s, dtype=torch.bfloat16) * 0.05)(B, S, D)),
            "wqkv": _w((lambda *s: torch.randn(*s, dtype=torch.bfloat16) * 0.1)(D, 3 * D)),
            "wo": _w((lambda *s: torch.randn(*s, dtype=torch.bfloat16) * 0.05)(D, D)),
        }
    _A_in = _A_setup()

    def _B_setup():
        B, S, D, Dff = 1, 2048, 512, 1376
        return {
            "x": _w((lambda *s: torch.randn(*s, dtype=torch.bfloat16) * 0.05)(B, S, D)),
            "w1": _w((lambda *s: torch.randn(*s, dtype=torch.bfloat16) * 0.05)(D, Dff)),
            "w2": _w((lambda *s: torch.randn(*s, dtype=torch.bfloat16) * 0.05)(Dff, D)),
        }
    _B_in = _B_setup()

    return {
        "A_x": _A_in["x"],
        "A_wqkv": _A_in["wqkv"],
        "A_wo": _A_in["wo"],
        "B_x": _B_in["x"],
        "B_w1": _B_in["w1"],
        "B_w2": _B_in["w2"],
    }

def reference(A_x, A_wqkv, A_wo, B_x, B_w1, B_w2):
    def _A_ref(x, wqkv, wo):
        B, S, D = x.shape
        H = 32; Dh = D // H
        qkv = (lambda x, *d: x.permute(*d))((x @ wqkv).reshape(B, S, 3, H, Dh), 2, 0, 3, 1, 4)
        q, k, v = qkv[0], qkv[1], qkv[2]
        phi = lambda t: torch.where(t > 0, t + 1, torch.exp(t)) + 1e-6
        pq, pk = phi(q), phi(k)
        kv = torch.einsum("bhsd,bhse->bhde", pk, v)
        z = torch.einsum("bhsd->bhd", pk)
        num = torch.einsum("bhqd,bhde->bhqe", pq, kv)
        den = torch.einsum("bhqd,bhd->bhq", pq, z)[..., None] + 1e-6
        o = num / den
        return (lambda x, *d: x.permute(*d))(o, 0, 2, 1, 3).reshape(B, S, D) @ wo

    def _B_ref(x, w1, w2):
        h = torch.einsum("bsd,df->bsf", x, w1)
        zero = torch.zeros_like(h)
        h = torch.maximum(h, zero)
        return torch.einsum("bsf,fd->bsd", h, w2)

    x = A_x
    x = x + _A_ref(_layernorm(x, axis=-1), A_wqkv, A_wo)
    x = x + _B_ref(_layernorm(x, axis=-1), B_w1, B_w2)
    x = x + _A_ref(_layernorm(x, axis=-1), A_wqkv, A_wo)
    x = x + _B_ref(_layernorm(x, axis=-1), B_w1, B_w2)
    return x
```

```python
import re

REG_RE = re.compile(r'^(-?)(?:abs\()?([vas])(?:(\d+)|\[(\d+):(\d+)\])\)?$')

def regs_of(tok):
    tok = tok.strip()
    if tok in ('vcc', 'vcc_lo', 'vcc_hi'): return {('s', 'vcc')}
    if tok in ('exec', 'exec_lo', 'exec_hi'): return {('s', 'exec')}
    if tok == 'm0': return {('s', 'm0')}
    m = REG_RE.match(tok)
    if not m: return set()
    k = m.group(2)
    if m.group(3) is not None: return {(k, int(m.group(3)))}
    return {(k, i) for i in range(int(m.group(4)), int(m.group(5)) + 1)}

TRANS = ('v_exp_f32', 'v_log_f32', 'v_rcp_f32', 'v_rsq_f32', 'v_sqrt_f32', 'v_sin_f32', 'v_cos_f32')
NODST_S = ('s_cmp', 's_waitcnt', 's_barrier', 's_branch', 's_cbranch', 's_nop', 's_setprio', 's_sleep', 's_endpgm', 's_setpc')

class Ins:
    __slots__ = ('text', 'mn', 'ops', 'mods', 'rd', 'wr', 'kind', 'ws', 'srcC', 'srcAB', 'tag', 'wide', 'dpp')
    def __init__(self, text, tag=None):
        self.text = text; self.tag = tag
        t = text.split(';')[0].strip()
        parts = t.split(None, 1)
        self.mn = mn = parts[0]
        rest = parts[1] if len(parts) > 1 else ''
        ops = [o.strip() for o in re.split(r',(?![^\[]*\])', rest)] if rest else []
        mods = []
        if ops:
            last = ops[-1].split()
            ops[-1] = last[0] if last else ''
            mods = last[1:]
        self.ops = ops; self.mods = mods
        rd = set(); wr = set(); self.srcC = set(); self.srcAB = set(); self.wide = False
        self.dpp = any(m.startswith(('row_', 'quad_perm', 'wave_')) for m in mods)
        R = [regs_of(o) for o in ops]
        self.ws = 1
        if mn.startswith('v_mfma'):
            kind = 'mfma'; wr |= R[0]; rd |= R[1] | R[2] | R[3]; self.srcC = R[3]; self.srcAB = R[1] | R[2]
        elif mn.startswith('ds_'):
            kind = 'ds'
            if mn.startswith(('ds_read', 'ds_bpermute', 'ds_permute', 'ds_swizzle')):
                wr |= R[0]
                for r in R[1:]: rd |= r
            else:
                for r in R: rd |= r
        elif mn.startswith(('buffer_', 'global_')):
            kind = 'vm'
            if 'lds' in mods or '_lds_' in mn:
                for r in R: rd |= r
                rd.add(('s', 'm0'))
            elif '_load' in mn:
                wr |= R[0]
                for r in R[1:]: rd |= r
            else:
                for r in R: rd |= r
                self.wide = mn.endswith(('x3', 'x4'))
        elif mn.startswith('s_load') or mn in ('s_memtime', 's_memrealtime'):
            kind = 'smem'; wr |= R[0]
            for r in R[1:]: rd |= r
        elif mn.startswith('v_'):
            kind = 'valu'
            if mn.startswith(TRANS): kind = 'trans'
            if 'permlane' in mn:
                kind = 'perm'; wr |= R[0] | R[1]; rd |= R[0] | R[1]
            else:
                wr |= R[0]
                for r in R[1:]: rd |= r
                if mn.startswith(('v_fmac', 'v_dot2c')) or self.dpp: rd |= R[0]
                if mn.startswith('v_cndmask') and len(ops) == 3: rd.add(('s', 'vcc'))
                if mn.startswith('v_dot'): kind = 'dot'
        elif mn.startswith('s_'):
            kind = 'salu'
            if mn == 's_nop': self.ws = int(ops[0], 0) + 1
            if not mn.startswith(NODST_S):
                if R: wr |= R[0]
                for r in R[1:]: rd |= r
                if 'saveexec' in mn: wr.add(('s', 'exec')); rd.add(('s', 'exec'))
                if mn.startswith(('s_addk', 's_mulk', 's_cmov')): rd |= R[0]
            else:
                for r in R: rd |= r
                if mn.startswith('s_cbranch_vcc'): rd.add(('s', 'vcc'))
        else:
            raise ValueError('unknown instr ' + text)
        self.kind = kind; self.rd = rd; self.wr = wr

ISV = lambda k: k in ('valu', 'trans', 'perm', 'dot')

def need_ws(p, c):
    n = 0
    pv = ISV(p.kind); cv = ISV(c.kind)
    pw_v = {r for r in p.wr if r[0] != 's'}; pw_s = {r for r in p.wr if r[0] == 's'}
    if p.kind == 'mfma':
        if c.kind == 'mfma':
            if p.wr & c.srcAB: n = max(n, 12)
            if p.wr & c.srcC and p.wr != c.srcC: n = max(n, 10)
            if p.wr & c.wr and p.wr != c.srcC: n = max(n, 10)
        elif c.kind != 'salu' and c.kind != 'smem':
            if p.wr & (c.rd | c.wr): n = max(n, 12)
            if cv and p.srcC & c.wr: n = max(n, 7)
            if c.kind in ('ds', 'vm') and p.srcC & c.wr: n = max(n, 7)
    if pv:
        if c.kind == 'mfma' and pw_v & c.rd: n = max(n, 2)
        if c.kind == 'mfma' and ('s', 'exec') in p.wr: n = max(n, 4)
        if c.kind == 'perm' and pw_v & c.rd: n = max(n, 2)
        if c.dpp and pw_v & c.rd: n = max(n, 2)
        if c.mn.startswith(('v_readfirstlane', 'v_readlane')) and pw_v & c.rd: n = max(n, 1)
        if c.kind == 'vm' and pw_s & c.rd: n = max(n, 5)
        if cv and pw_s & c.rd: n = max(n, 2)
        if p.kind == 'trans' and cv and pw_v & c.rd: n = max(n, 1)
        if p.kind == 'dot' and pw_v & (c.rd | c.wr):
            same_c = c.mn == p.mn and len(c.ops) == 4 and regs_of(c.ops[3]) == pw_v and not (pw_v & (regs_of(c.ops[1]) | regs_of(c.ops[2])))
            if not same_c and c.kind != 'salu': n = max(n, 3)
        if c.kind == 'salu' and pw_s & c.rd and not c.mn.startswith('s_cbranch'): n = max(n, 1)
    if p.kind == 'salu' and ('s', 'm0') in p.wr and ('s', 'm0') in c.rd: n = max(n, 1)
    if p.kind == 'salu' and ('s', 'exec') in p.wr and c.dpp: n = max(n, 1)
    if p.kind == 'vm' and p.wide and (p.rd & c.wr) and any(r[0] != 's' for r in (p.rd & c.wr)):
        n = max(n, 2 if cv else 1)
    return n

class Em:
    def __init__(self):
        self.out = []
        self.vmq = []
        self.lgq = []
        self.hist = []
        self.nlabel = 0
        self.stack = []
        self.nops = 0
        self.ninstr = 0
    def label(self, name): self.out.append(name + ':')
    def newlabel(self, p='L'):
        self.nlabel += 1; return f'{p}_{self.nlabel}'
    def comment(self, s): self.out.append('; ' + s)
    def _push(self, ins):
        need = 0; dist = 0
        for p in reversed(self.hist):
            n = need_ws(p, ins)
            if n > dist: need = max(need, n - dist)
            dist += p.ws
            if dist >= 20: break
        while need > 0:
            k = min(need, 16)
            nop = Ins(f's_nop {k-1}')
            self.out.append(nop); self.hist.append(nop); self.nops += k; need -= k; self.ninstr += 1
        self.out.append(ins); self.hist.append(ins); self.ninstr += 1
        if len(self.hist) > 40: del self.hist[:20]
    def _wait(self, vm=None, lg=None):
        s = []
        if vm is not None:
            vm = min(vm, 63); s.append(f'vmcnt({vm})')
            if len(self.vmq) > vm: del self.vmq[:len(self.vmq) - vm]
        if lg is not None:
            lg = min(lg, 15); s.append(f'lgkmcnt({lg})')
            if len(self.lgq) > lg: del self.lgq[:len(self.lgq) - lg]
        if s: self._push(Ins('s_waitcnt ' + ' '.join(s)))
    def __call__(self, text, tag=None):
        ins = Ins(text, tag)
        touch = ins.rd | ins.wr
        vm = lg = None
        for i, p in enumerate(self.vmq):
            if p.wr & touch: vm = len(self.vmq) - 1 - i
        for i, p in enumerate(self.lgq):
            if p.wr & touch: lg = len(self.lgq) - 1 - i
        if vm is not None or lg is not None: self._wait(vm, lg)
        self._push(ins)
        if ins.kind == 'vm':
            self.vmq.append(ins); assert len(self.vmq) <= 63, 'too many vm ops in flight'
        if ins.kind == 'ds': self.lgq.append(ins)
        return ins
    def wait_vm_tag(self, tag):
        tags = tag if isinstance(tag, (set, list, tuple)) else (tag,)
        idx = [i for i, p in enumerate(self.vmq) if p.tag in tags]
        if idx: self._wait(vm=len(self.vmq) - 1 - max(idx))
    def wait_vm(self, n=0):
        if len(self.vmq) > n: self._wait(vm=n)
    def wait_lg(self, n=0):
        if len(self.lgq) > n: self._wait(lg=n)
    def force_wait(self, vm=None, lg=None): self._wait(vm, lg)
    def cond_begin(self):
        self.stack.append((list(self.vmq), list(self.lgq), len(self.out)))
    def cond_end(self):
        vq, lq, start = self.stack.pop()
        for p in self.vmq: assert p in vq or not p.wr, 'load left in flight at end of conditional block: ' + p.text
        for p in self.lgq: assert p in lq or not p.wr, 'ds read left in flight at end of conditional block'
        self.vmq = vq; self.lgq = lq
        for o in self.out[start:]:
            if isinstance(o, Ins): o.ws = 0
    def text(self):
        L = []
        for o in self.out:
            if isinstance(o, str): L.append(o)
            else: L.append('    ' + o.text)
        return '\n'.join(L) + '\n'
```

```python
import sys, struct, argparse
from emit import Em

NAME = "interleave_layers__linear_attn_block__dense_activation_relu__prompt"
def f2u(x): return struct.unpack('<I', struct.pack('<f', x))[0]

WS_EPOCH = 0
WS_HELLO = 1024
WS_FLAG = 4096
WS_KVF = 20480
WS_MSG = 0x10000
WS_KT = 0x120000
WS_ST1 = 0x1B0000
WS_ST2 = 0x1F0000
WS_Q = 0x400000
WS_X1 = 0x800000
WS_X2 = 0xC00000
WS_H = 0x1000000
WS_DBG = 0x2000000
WS_SIZE = 0x4000000
MSG_B = 2176; KT_B = 17408; ACT_B = 131072; H_T = 86 * 1024; H_B = 4 * H_T
NONCE_K = 0x9E3779B1

sW, sG, sJ, sNonce = 's4', 's5', 's6', 's7'
SX, SQKV, SWO, SW1, SW2, SOUT, SWS = 's[8:11]', 's[12:15]', 's[16:19]', 's[20:23]', 's[24:27]', 's[28:31]', 's[32:35]'
sT, sT2, sWl, sSpin = 's52', 's53', 's54', 's55'
sGact, sGH, sG8K, sGKT, sG128 = 's56', 's57', 's58', 's59', 's60'
sQcol, sW1c0, sW1c2, sHks, sHas3 = 's61', 's62', 's63', 's64', 's65'
sC128, sActR, sHR, sStR, sAdj = 's66', 's67', 's68', 's69', 's70'
sDelta, sLn2, sLog2e, sInv, sEps, s1em6 = 's71', 's72', 's73', 's74', 's75', 's76'
sXrow, sJmsg, sJkvf, sOutRow = 's77', 's78', 's79', 's80'
sEx = 's[82:83]'; sMaskSt = 's[84:85]'
sTS = 86

vLane, vL16, vAT, vAW = 'v0', 'v1', 'v2', 'v3'
vTr = ['v4', 'v5', 'v6']
vDq, vD1, vDs, vS0, vS1, vS0w, vS1w = 'v7', 'v8', 'v9', 'v10', 'v11', 'v12', 'v14'
vStT, vPoll, vCsk, vCsv, vBp, vM, vRl, vOnes = 'v13', 'v15', 'v16', 'v17', 'v18', 'v19', 'v20', 'v21'
vHi = 'v22'; vTid = 'v23'
TMP = 24
BB = 40
MR = 56
ACC = 88
AF = 136
def v(i, n=1): return f'v{i}' if n == 1 else f'v[{i}:{i+n-1}]'
def a(i, n=1): return f'a{i}' if n == 1 else f'a[{i}:{i+n-1}]'
def Afrag(ks): return v(AF + 4 * ks, 4) if ks < 30 else a(248 + 4 * (ks - 30), 4)
RES = 240
W2A = 0; WOA = 176
vRedW, vRedR, vOut, vStSt, vStM, vKT, vRedR2 = 248, 249, 250, 251, 252, 253, 254

QS = 32
QP = 31
S_ADDR = QS * 4096
P_ADDR = QP * 4096
CSP = {'q': 0, 'w1': 1536}; CSF = {'q': 3072, 'w1': 3456}

class Side:
    def __init__(self, em): self.q = []; self.em = em
    def add(self, *items): self.q.extend(items)
    def run(self, k):
        while k > 0 and self.q:
            it = self.q.pop(0)
            if callable(it): it()
            else: self.em(it)
            k -= 1
    def flush(self): self.run(1 << 30)
    def __len__(self): return len(self.q)

class Gen:
    def __init__(self, opt):
        self.o = opt; self.em = Em(); self.nts = 0
        self.swin = None

    def ts(self, name):
        if not self.o.ts: return
        em = self.em
        i = self.nts; self.nts += 1
        assert i < 32
        em.force_wait(lg=0)
        em(f's_memtime s[{sTS}:{sTS+1}]'); em.force_wait(lg=0)
        em(f'v_writelane_b32 {self.vts}, s{sTS}, {i}')
        self.tsnames[i] = name
    def dma(self, srd, voff, sbase, imm, quad, tag, nt=False):
        em = self.em
        em(f's_add_u32 m0, {sWl}, {quad*4096}')
        em(f's_add_u32 {sT}, {sbase}, {imm}')
        em(f'buffer_load_dwordx4 {voff}, {srd}, {sT} offen lds' + (' nt' if nt else ''), tag=tag)
    def tr(self, dst, quad, slot):
        addr = quad * 4096 + slot * 1024
        b = vTr[addr >> 16]; off = addr & 0xFFFF
        return [f'ds_read_b64_tr_b16 {v(dst,2)}, {b} offset:{off}', f'ds_read_b64_tr_b16 {v(dst+2,2)}, {b} offset:{off+512}']
    def wsload(self, dst, voff, sbase, imm, width=4, tag=None, off=0):
        em = self.em
        em(f's_add_u32 {sT}, {sbase}, {imm}')
        sfx = {1: 'dword', 2: 'dwordx2', 4: 'dwordx4'}[width]
        em(f'buffer_load_{sfx} {dst}, {voff}, {SWS}, {sT} offen' + (f' offset:{off}' if off else '') + ' sc1', tag=tag)
    def wsstore(self, src, voff, sbase, imm, width=4, tag='st', off=0, sc=None):
        em = self.em
        em(f's_add_u32 {sT}, {sbase}, {imm}')
        sfx = {1: 'dword', 2: 'dwordx2', 4: 'dwordx4'}[width]
        sc = self.sc if sc is None else sc
        em(f'buffer_store_{sfx} {src}, {voff}, {SWS}, {sT} offen' + (f' offset:{off}' if off else '') + sc, tag=tag)
    def barrier(self):
        self.em.wait_lg(0); self.em('s_barrier')
    def poll(self, sbase, imm, vt, cmpval=sNonce):
        em = self.em
        L = em.newlabel('Lpoll'); D = em.newlabel('Lpd')
        em(f's_add_u32 {sT2}, {sbase}, {imm}')
        em.label(L)
        em(f'buffer_load_dword {vt}, {vPoll}, {SWS}, {sT2} offen sc1')
        em.force_wait(vm=0)
        em(f'v_cmp_ne_u32 vcc, {cmpval}, {vt}')
        em(f's_cbranch_vccz {D}')
        em(f's_sub_u32 {sSpin}, {sSpin}, 1')
        em(f's_cbranch_scc0 {L}')
        em(f's_mov_b32 {sSpin}, 0')
        em.label(D)
    def flag_store(self, sbase, imm, voff_times4_s, vt, sc):
        em = self.em
        em(f's_mov_b64 {sEx}, exec'); em('s_mov_b64 exec, 1')
        em(f'v_mov_b32 {vt}, {sNonce}')
        em(f's_lshl_b32 {sT2}, {voff_times4_s}, 2')
        em(f's_add_u32 {sT2}, {sT2}, {sbase}')
        em(f's_add_u32 {sT2}, {sT2}, {imm}')
        em(f'buffer_store_dword {vt}, off, {SWS}, {sT2}' + sc, tag='flag')
        em(f's_mov_b64 exec, {sEx}')
    def group_sync(self, p, pre=None, mid=None):
        em = self.em
        em.wait_vm_tag(('st',))
        self.ts(f'drain{p}')
        self.barrier()
        L = em.newlabel('Lnw0'); E = em.newlabel('Lsy')
        em(f's_cmp_lg_u32 {sW}, 0'); em(f's_cbranch_scc1 {L}')
        em.cond_begin()
        self.flag_store(sG128, WS_FLAG + p * 2048, sJ, v(TMP), self.sc)
        em.cond_end()
        em.label(L)
        if mid: mid()
        em(f's_cmp_lg_u32 {sW}, 0'); em(f's_cbranch_scc1 {E}')
        em.cond_begin()
        self.poll(sG128, WS_FLAG + p * 2048, v(TMP))
        em.cond_end()
        em.label(E)
        self.barrier()
        self.ts(f'sync{p}')

    def prologue(self):
        em = self.em; o = self.o
        em('s_cmp_ge_u32 s2, 256'); em('s_cbranch_scc1 L_end')
        em('s_load_dwordx4 s[36:39], s[0:1], 0'); em('s_load_dwordx2 s[40:41], s[0:1], 16')
        em('s_load_dwordx4 s[44:47], s[0:1], 32'); em('s_load_dwordx2 s[48:49], s[0:1], 48'); em('s_load_dwordx2 s[50:51], s[0:1], 64')
        em(f'v_mov_b32 {vTid}, v0')
        em(f'v_lshrrev_b32 v24, 6, v0'); em(f'v_and_b32 {vLane}, 63, v0')
        em(f'v_readfirstlane_b32 {sW}, v24')
        em(f's_and_b32 {sG}, s2, 7'); em(f's_lshl_b32 {sG}, {sG}, 1'); em(f's_lshr_b32 {sT}, s2, 7'); em(f's_add_u32 {sG}, {sG}, {sT}')
        em(f's_lshr_b32 {sJ}, s2, 3'); em(f's_and_b32 {sJ}, {sJ}, 15')
        em(f's_lshl_b32 {sWl}, {sW}, 10')
        em(f's_lshl_b32 {sXrow}, {sG}, 17')
        em(f's_lshl_b32 {sQcol}, {sJ}, 6')
        em(f'v_lshlrev_b32 {vL16}, 4, {vLane}')
        em(f'v_lshrrev_b32 v27, 3, {vLane}')
        em(f'v_and_b32 v28, 7, {vLane}')
        em(f'v_lshrrev_b32 v29, 1, v27'); em('v_xor_b32 v28, v28, v29'); em('v_lshlrev_b32 v28, 4, v28')
        em(f's_lshl_b32 {sT}, {sW}, 5'); em(f'v_add_u32 v27, {sT}, v27'); em('v_lshlrev_b32 v27, 10, v27')
        em('v_add_u32 v25, v27, v28'); em('v_xor_b32 v26, 64, v25')
        em(f'v_lshrrev_b32 v27, 2, {vLane}'); em(f's_lshl_b32 {sT}, {sW}, 4'); em(f'v_add_u32 v27, {sT}, v27')
        em(f'v_and_b32 v28, 3, {vLane}'); em('v_lshlrev_b32 v28, 4, v28')
        em(f'v_mul_u32_u24 {vDq}, 3072, v27'); em(f'v_add_u32 {vDq}, {vDq}, v28')
        em(f'v_mul_u32_u24 {vD1}, 2752, v27'); em(f'v_add_u32 {vD1}, {vD1}, v28')
        em.force_wait(lg=0)
        for srd, lo, nb in ((8, 36, 2048 * 1024), (12, 38, 512 * 3072), (16, 40, 512 * 1024), (20, 44, 512 * 2752), (24, 46, 1376 * 1024), (28, 48, 2048 * 1024), (32, 50, WS_SIZE)):
            em(f's_mov_b32 s{srd}, s{lo}'); em(f's_mov_b32 s{srd+1}, s{lo+1}'); em(f's_mov_b32 s{srd+2}, {nb}'); em(f's_mov_b32 s{srd+3}, 0x00020000')
        em(f'buffer_load_dword v24, off, {SWS}, 0 sc1', tag='epoch')
        self.xdma(range(0, 4), 2)
        for m in range(4):
            self.dma(SQKV, vDq, sQcol, 1024 + m * 64 * 3072, 0 + m, 'kvlo'); self.dma(SQKV, vDq, sQcol, 2048 + m * 64 * 3072, 4 + m, 'kvlo')
        self.xdma(range(4, 8), 2)
        em(f's_mov_b32 {sSpin}, {o.spin}')
        em(f's_lshl_b32 {sGact}, {sG}, 17'); em(f's_mul_i32 {sGH}, {sG}, {H_B}'); em(f's_lshl_b32 {sG8K}, {sG}, 13')
        em(f's_mul_i32 {sGKT}, {sG}, {KT_B}'); em(f's_lshl_b32 {sG128}, {sG}, 7')
        em(f's_mul_i32 {sT}, {sJ}, 3'); em(f's_lshl_b32 {sT2}, {sJ}, 1'); em(f's_add_u32 {sT2}, {sT2}, 11')
        em(f's_cmp_lt_u32 {sJ}, 11'); em(f's_cselect_b32 {sT}, {sT}, {sT2}'); em(f's_cselect_b32 {sHas3}, 1, 0')
        em(f's_cselect_b32 {sT2}, 128, 64')
        em(f's_lshl_b32 {sW1c0}, {sT}, 6'); em(f's_add_u32 {sW1c2}, {sW1c0}, {sT2}')
        em(f's_lshl_b32 {sHks}, {sT}, 11'); em(f's_add_u32 {sHks}, {sHks}, {sGH}')
        em(f's_and_b32 {sC128}, {sJ}, 7'); em(f's_lshl_b32 {sC128}, {sC128}, 7')
        em(f's_lshr_b32 {sT}, {sJ}, 3')
        em(f's_lshl_b32 {sActR}, {sT}, 16'); em(f's_add_u32 {sActR}, {sActR}, {sGact}')
        em(f's_mul_i32 {sHR}, {sT}, {2*H_T}'); em(f's_add_u32 {sHR}, {sHR}, {sGH}')
        em(f's_lshl_b32 {sStR}, {sT}, 12'); em(f's_add_u32 {sStR}, {sStR}, {sG8K}')
        em(f's_lshl_b32 {sOutRow}, {sT}, 16'); em(f's_add_u32 {sOutRow}, {sOutRow}, {sXrow}'); em(f's_add_u32 {sOutRow}, {sOutRow}, {sC128}')
        em(f's_cmp_ge_u32 {sW}, 2'); em(f's_cselect_b32 {sAdj}, 4096, 0')
        em(f's_mul_i32 {sJmsg}, {sJ}, {16*MSG_B}')
        em(f's_lshl_b32 {sJkvf}, {sJ}, 2'); em(f's_add_u32 {sJkvf}, {sJkvf}, {sW}'); em(f's_lshl_b32 {sJkvf}, {sJkvf}, 7')
        em(f's_mov_b32 {sDelta}, {f2u(1e-6*1.4426950408889634):#x}'); em(f's_mov_b32 {sLn2}, {f2u(0.6931471805599453):#x}')
        em(f's_mov_b32 {sLog2e}, {f2u(1.4426950408889634):#x}'); em(f's_mov_b32 {sInv}, {f2u(1/512):#x}')
        em(f's_mov_b32 {sEps}, {f2u(1e-5):#x}'); em(f's_mov_b32 {s1em6}, {f2u(1e-6):#x}')
        em('s_mov_b32 s84, 0x00ff00ff'); em('s_mov_b32 s85, 0')
        em(f'v_lshrrev_b32 {vHi}, 5, {vLane}')
        em(f's_lshl_b32 {sT}, {sW}, 15'); em(f'v_add_u32 {vAT}, {sT}, {vL16}')
        em(f'v_add_u32 {vAW}, {sWl}, {vL16}')
        em(f'v_bfe_u32 v27, {vLane}, 2, 2'); em(f'v_lshl_add_u32 v27, {vHi}, 2, v27')
        em(f'v_bfe_u32 v28, {vLane}, 4, 1'); em('v_lshlrev_b32 v28, 5, v28')
        em(f'v_and_b32 v29, 3, {vLane}'); em('v_lshl_add_u32 v28, v29, 3, v28')
        em(f'v_lshl_add_u32 {vTr[0]}, v27, 6, v28')
        em(f'v_add_u32 {vTr[1]}, 0x10000, {vTr[0]}'); em(f'v_add_u32 {vTr[2]}, 0x20000, {vTr[0]}')
        em(f'v_bfe_u32 v29, {vLane}, 3, 1'); em('v_lshl_add_u32 v28, v29, 6, v28')
        em(f'v_lshl_add_u32 {vS0}, v27, 7, v28'); em(f'v_add_u32 {vS0}, {sWl}, {vS0}'); em(f'v_xor_b32 {vS1}, 64, {vS0}')
        em(f'v_lshrrev_b32 v27, 3, {vLane}'); em(f'v_and_b32 v28, 7, {vLane}')
        em(f'v_bfe_u32 v29, {vLane}, 4, 1'); em('v_lshlrev_b32 v29, 2, v29'); em('v_xor_b32 v28, v28, v29'); em('v_lshlrev_b32 v28, 4, v28')
        em(f'v_lshl_add_u32 {vDs}, v27, 10, v28'); em(f's_lshl_b32 {sT}, {sW}, 14'); em(f'v_add_u32 {vDs}, {sT}, {vDs}')
        em(f'v_and_b32 v27, 31, {vLane}'); em('v_lshlrev_b32 v27, 5, v27'); em(f'v_lshl_add_u32 v27, {vHi}, 10, v27')
        em(f's_lshl_b32 {sT}, {sW}, 11'); em(f'v_add_u32 {vStT}, {sT}, v27')
        em(f'v_and_b32 {vPoll}, 15, {vLane}'); em(f'v_lshlrev_b32 {vPoll}, 2, {vPoll}')
        em(f'v_lshlrev_b32 {vBp}, 4, {vHi}')
        em(f'v_mov_b32 {vOnes}, 0x3f803f80')
        if o.ts:
            self.vts = 'v39'; self.tsnames = {}
            em('v_mov_b32 v39, 0')
        em(f'v_readfirstlane_b32 {sNonce}, v24')
        em(f's_add_u32 {sNonce}, {sNonce}, {NONCE_K:#x}')
        em(f's_getreg_b32 s81, hwreg(HW_REG_XCC_ID)'); em('s_and_b32 s81, s81, 15')
        em(f's_add_u32 s81, s81, {sNonce}'); em('s_add_u32 s81, s81, 1')
        L = em.newlabel('Lh')
        em(f's_cmp_lg_u32 {sW}, 0'); em(f's_cbranch_scc1 {L}')
        em.cond_begin()
        em(f's_mov_b64 {sEx}, exec'); em('s_mov_b64 exec, 1')
        em('v_mov_b32 v24, s81')
        em(f's_lshl_b32 {sT2}, {sJ}, 2'); em(f's_add_u32 {sT2}, {sT2}, {sG128}'); em(f's_add_u32 {sT2}, {sT2}, {WS_HELLO}')
        em(f'buffer_store_dword v24, off, {SWS}, {sT2} sc1')
        em(f's_mov_b64 exec, {sEx}')
        em.cond_end()
        em.label(L)

    def xdma(self, lines, blk0):
        for c in lines:
            for rb8 in range(4):
                q = (blk0 + c) * 4 + rb8
                self.dma(SX, 'v25' if rb8 % 2 == 0 else 'v26', sXrow, rb8 * 8192 + c * 128, q, 'xlo' if c < 4 else 'xhi')

    def colsum_items(self, quads, acc, tmp, first):
        items = []
        for n, q in enumerate(quads):
            addr = q * 4096
            def rd(addr=addr):
                b = vTr[addr >> 16]; off = addr & 0xFFFF
                self.em(f'v_add_u32 {v(tmp+4)}, {sWl}, {b}')
                self.em(f'ds_read_b64_tr_b16 {v(tmp,2)}, {v(tmp+4)} offset:{off}')
                self.em(f'ds_read_b64_tr_b16 {v(tmp+2,2)}, {v(tmp+4)} offset:{off+512}')
            items.append(rd)
            for r in range(4):
                c = '0' if (first and n == 0 and r == 0) else acc
                items.append(f'v_dot2_f32_bf16 {acc}, {v(tmp+r)}, {vOnes}, {c}')
        return items
    def colsum_publish(self, which, accs):
        em = self.em
        t = v(TMP + 8); ad = v(TMP + 9)
        em(f'v_lshlrev_b32 {ad}, 2, {vLane}'); em(f's_lshl_b32 {sT}, {sW}, 7'); em(f's_add_u32 {sT}, {sT}, {P_ADDR + CSP[which]}')
        em(f'v_add_u32 {ad}, {sT}, {ad}')
        for acc in accs:
            em(f'v_mov_b32 {t}, {acc}'); em(f'v_permlane32_swap_b32 {t}, {acc}'); em(f'v_add_f32 {acc}, {acc}, {t}')
        em(f's_mov_b64 {sEx}, exec'); em('s_mov_b32 exec_hi, 0')
        for p, acc in enumerate(accs): em(f'ds_write_b32 {ad}, {acc} offset:{p*512}')
        em(f's_mov_b64 exec, {sEx}')
    def colsum_final(self, which):
        em = self.em
        L = em.newlabel('Lcf')
        em(f's_cmp_eq_u32 {sW}, 0'); em(f's_cbranch_scc1 {L}')
        em.cond_begin()
        ad = v(TMP + 9); ad2 = v(TMP + 8)
        em(f'v_and_b32 {ad}, 31, {vLane}'); em(f'v_lshlrev_b32 {ad}, 2, {ad}')
        em(f's_lshl_b32 {sT}, {sW}, 7'); em(f's_add_u32 {sT}, {sT}, {P_ADDR + CSF[which] - 128}'); em(f'v_add_u32 {ad2}, {sT}, {ad}')
        em(f's_lshl_b32 {sT}, {sW}, 9'); em(f's_add_u32 {sT}, {sT}, {P_ADDR + CSP[which] - 512}'); em(f'v_add_u32 {ad}, {sT}, {ad}')
        for i in range(4): em(f'ds_read_b32 {v(TMP+10+i)}, {ad} offset:{i*128}')
        em(f'v_add_f32 {v(TMP+10)}, {v(TMP+10)}, {v(TMP+11)}'); em(f'v_add_f32 {v(TMP+12)}, {v(TMP+12)}, {v(TMP+13)}')
        em(f'v_add_f32 {v(TMP+10)}, {v(TMP+10)}, {v(TMP+12)}')
        em(f'ds_write_b32 {ad2}, {v(TMP+10)}')
        em.wait_lg(0)
        em.cond_end()
        em.label(L)
    def cs_dlayout_items(self, which, plane, dst, vad):
        return [f'ds_read_b128 {v(dst+4*i,4)}, {vad} offset:{(P_ADDR & 0xFFFF) + CSF[which] + plane*128 + i*32}' for i in range(4)]

    def stage_dma(self, srd, m, qa, qb, tag):
        self.dma(srd, vDs, sC128, m * 65536, qa, tag, nt=self.o.nt_stage); self.dma(srd, vDs, sC128, m * 65536 + 8192, qb, tag, nt=self.o.nt_stage)
    def stage_read_items(self, abase, m, qa, qb):
        items = []
        for h, q in enumerate((qa, qb)):
            addr = q * 4096; win = addr >> 16; off = addr & 0xFFFF
            def f(win=win, off=off, h=h):
                if win == 0: b0, b1 = vS0, vS1
                else:
                    if self.swin != win:
                        self.em(f'v_add_u32 {vS0w}, {win*65536:#x}, {vS0}'); self.em(f'v_add_u32 {vS1w}, {win*65536:#x}, {vS1}'); self.swin = win
                    b0, b1 = vS0w, vS1w
                self.em(f'ds_read_b64_tr_b16 {a(abase + m*8 + 2*h, 2)}, {b0} offset:{off}')
                self.em(f'ds_read_b64_tr_b16 {a(abase + m*8 + 4 + 2*h, 2)}, {b1} offset:{off}')
            items.append(f)
        return items

    def stats_finish(self, S, Q, mdst, rdst, scale):
        it = [f'v_mul_f32 {mdst}, {sInv}, {S}', f'v_mul_f32 {Q}, {sInv}, {Q}', f'v_fma_f32 {Q}, -{mdst}, {mdst}, {Q}',
              f'v_max_f32 {Q}, 0, {Q}', f'v_add_f32 {Q}, {sEps}, {Q}', f'v_rsq_f32 {rdst}, {Q}']
        if scale: it.append(f'v_mul_f32 {rdst}, {scale}, {rdst}')
        return it
    def stats_T_loads(self, base):
        self.wsload(v(TMP, 4), vStT, sG8K, base, tag='stat'); self.wsload(v(TMP + 4, 4), vStT, sG8K, base, tag='stat', off=16)
    def stats_T_items(self):
        t = TMP
        it = [f'v_add_f32 {v(t)}, {v(t)}, {v(t+1)}', f'v_add_f32 {v(t+2)}, {v(t+2)}, {v(t+3)}', f'v_add_f32 {v(t+4)}, {v(t+4)}, {v(t+5)}',
              f'v_add_f32 {v(t+6)}, {v(t+6)}, {v(t+7)}', f'v_add_f32 {v(t)}, {v(t)}, {v(t+2)}', f'v_add_f32 {v(t+4)}, {v(t+4)}, {v(t+6)}',
              f'v_add_f32 {v(t)}, {v(t)}, {v(t+4)}', f'v_mov_b32 {v(t+1)}, {v(t)}', f'v_permlane32_swap_b32 {v(t)}, {v(t+1)}']
        return it + self.stats_finish(v(t), v(t + 1), vM, vRl, sLog2e)

    def pass2(self, steps, planes, accs, swapAB, side, fill, loader=None, first=True):
        em = self.em
        steps = list(steps)
        def rd(i):
            ks = steps[i]
            for p in range(2):
                for t in self.tr(BB + (i % 2) * 8 + 4 * p, planes[p][ks >> 2], ks & 3): em(t)
        rd(0)
        if len(steps) > 1: rd(1)
        for i, ks in enumerate(steps):
            for p in range(2):
                w = v(BB + (i % 2) * 8 + 4 * p, 4); x = Afrag(ks); c = v(accs[p], 16)
                src = '0' if (first and i == 0) else c
                if swapAB: em(f'v_mfma_f32_32x32x16_bf16 {c}, {x}, {w}, {src}')
                else: em(f'v_mfma_f32_32x32x16_bf16 {c}, {w}, {x}, {src}')
                if i + 2 < len(steps):
                    ks2 = steps[i + 2]
                    for t in self.tr(BB + (i % 2) * 8 + 4 * p, planes[p][ks2 >> 2], ks2 & 3): em(t)
                if p == 0 and loader: loader(i)
                side.run(fill)
    def pass1(self, plane, acc, side, fill):
        em = self.em
        NB = 4
        def rd(ks):
            for t in self.tr(BB + (ks % NB) * 4, plane[ks >> 2], ks & 3): em(t)
        for ks in range(NB - 1): rd(ks)
        for ks in range(32):
            w = v(BB + (ks % NB) * 4, 4); c = v(acc, 16)
            if ks + NB - 1 < 32: rd(ks + NB - 1)
            em(f'v_mfma_f32_32x32x16_bf16 {c}, {w}, {Afrag(ks)}, ' + ('0' if ks == 0 else c))
            side.run(fill(ks) if callable(fill) else fill)

    def a_loader(self, base, pre):
        def ld(ks):
            self.wsload(Afrag(ks), vAT, sGact, base + (ks & ~3) * 1024, tag='A', off=(ks & 3) * 1024)
        for ks in range(pre): ld(ks)
        def step(i):
            if i + pre < 32: ld(i + pre)
        return step

    def phi_items(self, acc, mean, cs, rl, lanes_t):
        it = []
        for r in range(16):
            x = v(acc + r); e = v(TMP + 8 + (r % 4))
            mm = mean if lanes_t else v(mean + r); cc = v(cs + r) if lanes_t else cs; rr = rl if lanes_t else v(rl + r)
            it += [f'v_fma_f32 {x}, -{mm}, {cc}, {x}', f'v_fma_f32 {x}, {x}, {rr}, {sDelta}', f'v_exp_f32_e64 {e}, {x} clamp',
                   f'v_max_f32 {x}, {sDelta}, {x}', f'v_fma_f32 {x}, {x}, {sLn2}, {e}']
        out = []
        for g in range(4):
            grp = [it[(4 * g + k) * 5:(4 * g + k) * 5 + 5] for k in range(4)]
            for s in range(5):
                for k in range(4): out.append(grp[k][s])
            out += [f'v_cvt_pk_bf16_f32 {v(acc+2*g)}, {v(acc+4*g)}, {v(acc+4*g+1)}', f'v_cvt_pk_bf16_f32 {v(acc+2*g+1)}, {v(acc+4*g+2)}, {v(acc+4*g+3)}']
        return out

    def p1_start(self):
        em = self.em
        self.pl = {'k': [0, 1, 2, 3, 8, 9, 10, 11], 'v': [4, 5, 6, 7, 12, 13, 14, 15], 'q': list(range(16, 24))}
        X = MR
        em(f'v_and_b32 v27, 7, {vLane}'); em('v_lshlrev_b32 v27, 7, v27')
        em(f'v_bfe_u32 v28, {vLane}, 3, 2'); em('v_lshl_add_u32 v27, v28, 12, v27')
        em(f's_add_u32 {sT}, {sWl}, 32768'); em(f'v_add_u32 v27, {sT}, v27')
        em(f'v_bfe_u32 v28, {vLane}, 1, 3'); em(f'v_xor_b32 v28, v28, {vHi}')
        for kk in range(4):
            em(f'v_xor_b32 v29, {2*kk}, v28'); em(f'v_lshl_add_u32 {v(X+kk)}, v29, 4, v27')
        S0, S1, Q0, Q1 = v(MR + 8), v(MR + 9), v(MR + 10), v(MR + 11)
        def xreads(half):
            for ks in range(16 * half, 16 * half + 16):
                dst = v(AF + 4 * ks, 4) if ks < 30 else v(MR + 16 + 4 * (ks - 30), 4)
                em(f'ds_read_b128 {dst}, {v(X + (ks & 3))} offset:{((ks >> 2) & 3) * 16384}')
        def xfix(half):
            for ks in range(16 * half, 16 * half + 16):
                b = AF + 4 * ks if ks < 30 else MR + 16 + 4 * (ks - 30)
                em(f'v_permlane32_swap_b32 {v(b)}, {v(b+2)}'); em(f'v_permlane32_swap_b32 {v(b+1)}, {v(b+3)}')
                for r in range(4):
                    f = ks == 0 and r < 2
                    S = S0 if r % 2 == 0 else S1; Q = Q0 if r % 2 == 0 else Q1
                    em(f'v_dot2_f32_bf16 {S}, {v(b+r)}, {vOnes}, ' + ('0' if f else S))
                    em(f'v_dot2_f32_bf16 {Q}, {v(b+r)}, {v(b+r)}, ' + ('0' if f else Q))
                if ks >= 30:
                    for r in range(4): em(f'v_accvgpr_write_b32 {a(248 + 4*(ks-30) + r)}, {v(b+r)}')
        self.ts('start')
        em.wait_vm_tag('xlo'); self.ts('xlo')
        xreads(0); em.wait_lg(0)
        for m in range(4, 8):
            self.dma(SQKV, vDq, sQcol, 1024 + m * 64 * 3072, self.pl['k'][m], 'kvhi'); self.dma(SQKV, vDq, sQcol, 2048 + m * 64 * 3072, self.pl['v'][m], 'kvhi')
        for m in range(8): self.dma(SQKV, vDq, sQcol, m * 64 * 3072, self.pl['q'][m], 'q')
        for kk in range(4): em(f'v_add_u32 {v(X+kk)}, 0x10000, {v(X+kk)}')
        xfix(0)
        em.wait_vm_tag('kvlo'); self.barrier(); self.ts('kvlo')
        side = Side(em)
        CK, CV = v(MR + 12), v(MR + 13)
        side.add(*self.colsum_items(self.pl['k'][:4], CK, TMP, True)); side.add(*self.colsum_items(self.pl['v'][:4], CV, TMP, True))
        self.pass2(range(16), [self.pl['k'], self.pl['v']], [ACC, ACC + 16], True, side, 2)
        side.flush()
        em.wait_vm_tag('xhi'); self.ts('xhi')
        xreads(1); em.wait_lg(0)
        em(f'v_lshrrev_b32 v27, 3, {vLane}'); em(f's_lshl_b32 {sT}, {sW}, 3'); em(f'v_add_u32 v27, {sT}, v27'); em('v_lshlrev_b32 v27, 10, v27')
        em(f'v_and_b32 v28, 7, {vLane}'); em('v_lshl_add_u32 v27, v28, 4, v27')
        em(f'buffer_load_dwordx4 {a(RES,4)}, v27, {SX}, {sOutRow} offen', tag='res')
        em(f's_add_u32 {sT}, {sOutRow}, 32768'); em(f'buffer_load_dwordx4 {a(RES+4,4)}, v27, {SX}, {sT} offen', tag='res')
        em(f's_add_u32 {sT2}, {sG128}, {WS_HELLO}')
        em(f'buffer_load_dword {v(MR+14)}, {vPoll}, {SWS}, {sT2} offen sc1', tag='hello')
        self.stq = [24, 25, 26, 27, 36, 37, 38, 39]
        for i in range(4): self.stage_dma(SWO, i, self.stq[2 * i], self.stq[2 * i + 1], 'wo1')
        xfix(1)
        em(f'v_add_f32 {S0}, {S0}, {S1}'); em(f'v_add_f32 {Q0}, {Q0}, {Q1}')
        em(f'v_mov_b32 {S1}, {S0}'); em(f'v_mov_b32 {Q1}, {Q0}')
        em(f'v_permlane32_swap_b32 {S0}, {S1}'); em(f'v_permlane32_swap_b32 {Q0}, {Q1}')
        em(f'v_add_f32 {S0}, {S0}, {S1}'); em(f'v_add_f32 {Q0}, {Q0}, {Q1}')
        for t in self.stats_finish(S0, Q0, vM, vRl, sLog2e): em(t)
        em.wait_vm_tag('kvhi'); self.barrier(); self.ts('kvhi')
        side.add(*self.colsum_items(self.pl['k'][4:], CK, TMP, False)); side.add(*self.colsum_items(self.pl['v'][4:], CV, TMP, False))
        self.pass2(range(16, 32), [self.pl['k'], self.pl['v']], [ACC, ACC + 16], True, side, 2, first=False)
        side.flush()
        em.wait_vm_tag('q'); self.barrier()
        CQ = v(MR + 15)
        side.add(*self.colsum_items(self.pl['q'], CQ, TMP, True)); side.flush()
        self.colsum_publish('q', [CQ, CK, CV])
        self.barrier()
        self.colsum_final('q')
        self.barrier()
        em(f'v_and_b32 v27, 31, {vLane}'); em('v_lshlrev_b32 v27, 2, v27'); em(f'v_add_u32 v27, 0x10000, v27')
        em(f'ds_read_b32 {vCsk}, v27 offset:{(P_ADDR & 0xFFFF) + CSF["q"] + 128}'); em(f'ds_read_b32 {vCsv}, v27 offset:{(P_ADDR & 0xFFFF) + CSF["q"] + 256}')
        H = v(MR + 14)
        L = em.newlabel('Lhp'); D = em.newlabel('Lhd')
        em.wait_vm_tag('hello')
        em.label(L)
        em(f'v_subrev_u32 v27, {sNonce}, {H}'); em('v_add_u32 v27, -1, v27')
        em('v_cmp_le_u32 vcc, 16, v27')
        em(f's_cbranch_vccz {D}')
        em.cond_begin()
        em(f's_add_u32 {sT2}, {sG128}, {WS_HELLO}')
        em(f'buffer_load_dword {H}, {vPoll}, {SWS}, {sT2} offen sc1'); em.force_wait(vm=0)
        em.cond_end()
        em(f's_sub_u32 {sSpin}, {sSpin}, 1'); em(f's_cbranch_scc0 {L}'); em(f's_mov_b32 {sSpin}, 0')
        em.label(D)
        em.wait_lg(0)
        em(f'v_cmp_ne_u32 vcc, s81, {H}')
        self.ts('decide')

    def p1_rest(self, l):
        em = self.em; o = self.o
        K, V, Q = ACC, ACC + 16, ACC + 32
        side = Side(em)
        for i in range(16):
            t = 8 * (i >> 2) + (i & 3)
            em(f'ds_bpermute_b32 {v(MR+i)}, {vBp}, {vM} offset:{t*4}'); em(f'ds_bpermute_b32 {v(MR+16+i)}, {vBp}, {vRl} offset:{t*4}')
        side.add(*self.phi_items(K, MR, vCsk, MR + 16, False))
        for r in range(16): side.add(f'v_fma_f32 {v(V+r)}, -{v(MR+r)}, {vCsv}, {v(V+r)}')
        for r in range(16): side.add(f'v_mul_f32 {v(V+r)}, {v(V+r)}, {v(MR+16+r)}')
        for r in range(8): side.add(f'v_cvt_pk_bf16_f32 {v(V+r)}, {v(V+2*r)}, {v(V+2*r+1)}')
        for r in range(8): side.add(f'v_mov_b32 {v(V+8+r)}, {vOnes}')
        for r in range(8): side.add(f'v_permlane16_swap_b32 {v(V+r)}, {v(V+8+r)}')
        D0, D1 = MR, MR + 16
        side.add(f'v_mfma_f32_32x32x16_bf16 {v(D0,16)}, {v(K,4)}, {v(V,4)}, 0', f'v_mfma_f32_32x32x16_bf16 {v(D1,16)}, {v(K,4)}, {v(V+8,4)}, 0',
                 f'v_mfma_f32_32x32x16_bf16 {v(D0,16)}, {v(K+4,4)}, {v(V+4,4)}, {v(D0,16)}', f'v_mfma_f32_32x32x16_bf16 {v(D1,16)}, {v(K+4,4)}, {v(V+12,4)}, {v(D1,16)}')
        mw, mr, fac, t16, t8 = v(K + 8), v(K + 9), v(K + 10), v(K + 11), v(K + 12)
        u, x1, x2 = v(K + 13), v(K + 14), v(K + 15)
        side.add(f's_lshl_b32 {sT2}, {sW}, 12', f's_add_u32 {sT2}, {sT2}, {S_ADDR}', f'v_add_u32 {mw}, {sT2}, {vL16}',
                 f'v_cmp_le_u32 vcc, 68, {vTid}', f'v_cndmask_b32 {x1}, 0, 1, vcc',
                 f'v_mul_u32_u24 {x2}, 68, {x1}', f'v_sub_u32 {u}, {vTid}, {x2}',
                 f'v_lshlrev_b32 {mr}, 11, {x1}',
                 f'v_and_b32 {x1}, 1, {u}', f'v_lshl_add_u32 {mr}, {x1}, 10, {mr}',
                 f'v_bfe_u32 {x1}, {u}, 1, 4', f'v_bfe_u32 {x2}, {u}, 5, 1', f'v_lshl_add_u32 {x1}, {x2}, 5, {x1}',
                 f'v_bfe_u32 {x2}, {u}, 1, 1', f'v_lshlrev_b32 {x2}, 5, {x2}', f'v_add_u32 {x2}, 16, {x2}',
                 f'v_cmp_le_u32 vcc, 64, {u}', f'v_cndmask_b32 {x1}, {x1}, {x2}, vcc',
                 f'v_mov_b32 {x2}, {sLn2}', f'v_cndmask_b32 {fac}, {x2}, 1.0, vcc',
                 f'v_lshl_add_u32 {mr}, {x1}, 4, {mr}', f'v_add_u32 {mr}, {S_ADDR:#x}, {mr}',
                 f'v_lshlrev_b32 {t16}, 4, {vTid}', f'v_lshlrev_b32 {t8}, 3, {vTid}')
        for i, r in enumerate((D0, D0 + 4, D1 + 8, D1 + 12)): side.add(f'ds_write_b128 {mw}, {v(r,4)} offset:{i*1024}')
        side.add(self.barrier)
        M = MR
        def msg_out():
            L = em.newlabel('Lm')
            em(f's_cmp_eq_u32 {sW}, 3'); em(f's_cbranch_scc1 {L}')
            em.cond_begin()
            em(f'v_cmp_gt_u32 vcc, 136, {vTid}'); em(f's_and_saveexec_b64 {sEx}, vcc')
            for i in range(4): em(f'ds_read_b128 {v(M+4*i,4)}, {mr} offset:{i*4096}')
            for r in range(4): em(f'v_add_f32 {v(M+r)}, {v(M+r)}, {v(M+4+r)}')
            for r in range(4): em(f'v_add_f32 {v(M+8+r)}, {v(M+8+r)}, {v(M+12+r)}')
            for r in range(4): em(f'v_add_f32 {v(M+r)}, {v(M+r)}, {v(M+8+r)}')
            em(f's_mul_i32 {sT2}, {sG}, {MSG_B}'); em(f's_add_u32 {sT2}, {sT2}, {sJmsg}')
            self.wsstore(v(M, 4), t16, sT2, WS_MSG + l * 256 * MSG_B, sc=' sc1', tag='msg')
            em(f's_mov_b64 exec, {sEx}')
            em.cond_end()
            em.label(L)
            self.msg_mark = set(id(p) for p in em.vmq)
        side.add(msg_out)
        vad = v(TMP + 12)
        side.add(f'v_add_u32 {vad}, 0x10000, {vBp}')
        side.add(*self.cs_dlayout_items('q', 0, MR + 16, vad))
        self.p1_bg(l, side)
        self.pass1(self.pl['q'], Q, side, o.fill_p1)
        side.flush()
        self.ts('qpass')
        L = em.newlabel('Lf')
        em(f's_cmp_eq_u32 {sW}, 3'); em(f's_cbranch_scc1 {L}')
        em.cond_begin()
        em.force_wait(vm=len([p for p in em.vmq if id(p) not in self.msg_mark]))
        self.flag_store(sJkvf, WS_KVF + l * 8192, sG, v(TMP), ' sc1')
        em.cond_end()
        em.label(L)
        for t in self.phi_items(Q, vM, MR + 16, vRl, True): em(t)
        em(f's_lshl_b32 {sT2}, {sJ}, 11'); em(f's_add_u32 {sT2}, {sT2}, {sGact}')
        self.wsstore(v(Q, 4), vAT, sT2, WS_Q + l * 16 * ACT_B); self.wsstore(v(Q + 4, 4), vAT, sT2, WS_Q + l * 16 * ACT_B, off=1024)
        self.ts('qst')
        self.p1_gap(l)
        L = em.newlabel('Lg')
        em(f's_cmp_eq_u32 {sW}, 3'); em(f's_cbranch_scc1 {L}')
        em.cond_begin()
        self.poll(sJkvf, WS_KVF + l * 8192, v(TMP))
        self.ts('kvpoll')
        em(f'v_cmp_gt_u32 vcc, 136, {vTid}'); em(f's_and_saveexec_b64 {sEx}, vcc')
        G = AF
        for g in range(16): self.wsload(v(G + 4 * g, 4), t16, sJmsg, WS_MSG + l * 256 * MSG_B + g * MSG_B)
        for st in (1, 2, 4, 8):
            for g in range(0, 16, 2 * st):
                for r in range(4): em(f'v_add_f32 {v(G+4*g+r)}, {v(G+4*g+r)}, {v(G+4*(g+st)+r)}')
        for r in range(4): em(f'v_mul_f32 {v(G+r)}, {v(G+r)}, {fac}')
        em(f'v_cvt_pk_bf16_f32 {v(G)}, {v(G)}, {v(G+1)}'); em(f'v_cvt_pk_bf16_f32 {v(G+1)}, {v(G+2)}, {v(G+3)}')
        em(f's_mul_i32 {sT2}, {sJ}, 1088'); em(f's_add_u32 {sT2}, {sT2}, {sGKT}')
        self.wsstore(v(G, 2), t8, sT2, WS_KT + l * 16 * KT_B, width=2)
        em(f's_mov_b64 exec, {sEx}')
        em.force_wait(vm=0)
        em.cond_end()
        em.label(L)
        self.group_sync(4 * l + 0, mid=self.setup_local)

    def p1_bg(self, l, side):
        em = self.em
        w1q = self.pl['k'], self.pl['v']
        self.w1pl = [list(self.pl['k']), list(self.pl['v']), list(self.pl['q'])]
        if l == 0:
            side.add(lambda: em.wait_vm_tag('wo1'))
            for i in range(4): side.add(*self.stage_read_items(WOA, i, self.stq[2 * i], self.stq[2 * i + 1]))
            side.add(lambda: em.wait_lg(0))
            for i in range(4): side.add(lambda i=i: self.stage_dma(SWO, 4 + i, self.stq[2 * i], self.stq[2 * i + 1], 'wo2'))
        for m in range(8):
            side.add(lambda m=m: self.dma(SW1, vD1, sW1c0, m * 64 * 2752, self.w1pl[0][m], 'late'))
            side.add(lambda m=m: self.dma(SW1, vD1, sW1c0, m * 64 * 2752 + 64, self.w1pl[1][m], 'late'))

    def p1_gap(self, l):
        em = self.em
        if l == 0:
            self.res_convert(to_m1=True)
            em.wait_vm_tag('wo2')
            for i in range(4):
                for f in self.stage_read_items(WOA, 4 + i, self.stq[2 * i], self.stq[2 * i + 1]): f()
        self.barrier()
        for m in range(8): self.dma(SW1, vD1, sW1c2, m * 64 * 2752, self.w1pl[2][m], 'w1c')

    def res_convert(self, to_m1):
        em = self.em
        t0, t1, t2 = v(TMP), v(TMP + 1), v(TMP + 2); D = TMP + 4
        base = 28 * 4096
        em(f's_add_u32 {sT2}, {sWl}, {base}')
        em(f'v_add_u32 {t0}, {sT2}, {vL16}')
        em(f'v_and_b32 {t1}, 7, {vLane}'); em(f'v_lshlrev_b32 {t1}, 7, {t1}'); em(f'v_lshrrev_b32 {t2}, 4, {vLane}'); em(f'v_lshl_add_u32 {t1}, {t2}, 5, {t1}')
        em(f'v_bfe_u32 {t2}, {vLane}, 3, 1'); em(f'v_lshl_add_u32 {t1}, {t2}, 3, {t1}'); em(f'v_add_u32 {t1}, {sT2}, {t1}')
        for h in range(2):
            if to_m1:
                em(f'ds_write_b128 {t0}, {a(RES+4*h,4)}'); em.wait_lg(0)
                em(f'ds_read_b64 {a(RES+4*h,2)}, {t1}'); em(f'ds_read_b64 {a(RES+4*h+2,2)}, {t1} offset:16'); em.wait_lg(0)
            else:
                em(f'ds_write_b64 {t1}, {a(RES+4*h,2)}'); em(f'ds_write_b64 {t1}, {a(RES+4*h+2,2)} offset:16'); em.wait_lg(0)
                em(f'ds_read_b128 {a(RES+4*h,4)}, {t0}'); em.wait_lg(0)

    def setup_local(self, final=False):
        em = self.em
        t0, t1, t2 = v(TMP + 1), v(TMP + 2), v(TMP + 3)
        em(f's_lshl_b32 {sT2}, {sW}, 13'); em(f's_add_u32 {sT2}, {sT2}, {S_ADDR}')
        if not final:
            em(f'v_lshlrev_b32 {t0}, 7, {vHi}'); em(f'v_xor_b32 {t0}, {t0}, {vL16}'); em(f'v_add_u32 {v(vRedW)}, {sT2}, {t0}')
            em(f'v_and_b32 {t0}, 7, {vLane}'); em(f's_lshl_b32 {sT2}, {sW}, 3'); em(f'v_add_u32 {t0}, {sT2}, {t0}')
            em(f'v_bfe_u32 {t1}, {vLane}, 3, 1')
            em(f'v_lshrrev_b32 {t2}, 4, {vLane}')
            em(f'v_lshlrev_b32 {v(vOut)}, 4, {t0}'); em(f'v_lshl_add_u32 {v(vOut)}, {t1}, 9, {v(vOut)}'); em(f'v_lshl_add_u32 {v(vOut)}, {t2}, 10, {v(vOut)}')
            em(f'v_lshlrev_b32 {v(vRedR)}, 3, {t1}'); em(f'v_xor_b32 {v(vRedR)}, {v(vRedR)}, {t0}'); em(f'v_lshlrev_b32 {v(vRedR)}, 4, {v(vRedR)}')
            em(f'v_lshl_add_u32 {v(vRedR)}, {t1}, 9, {v(vRedR)}'); em(f'v_lshl_add_u32 {v(vRedR)}, {t2}, 11, {v(vRedR)}'); em(f'v_add_u32 {v(vRedR)}, {S_ADDR:#x}, {v(vRedR)}')
            em(f'v_lshlrev_b32 {t0}, 5, {t0}'); em(f'v_lshrrev_b32 {t1}, 3, {vLane}'); em(f'v_lshl_add_u32 {v(vStM)}, {t1}, 2, {t0}')
            em(f'v_lshl_add_u32 {v(vStSt)}, {t2}, 10, {t0}')
            em(f'v_and_b32 {t0}, 15, {vLane}'); em(f'v_lshlrev_b32 {t0}, 4, {t0}'); em(f'v_lshl_add_u32 {t0}, {vHi}, 8, {t0}')
            em(f'v_add_u32 {t1}, 512, {vBp}'); em(f'v_and_b32 {t2}, 16, {vLane}'); em(f'v_cmp_ne_u32 vcc, 0, {t2}')
            em(f'v_cndmask_b32 {t0}, {t0}, {t1}, vcc'); em(f's_mul_i32 {sT2}, {sW}, 544'); em(f'v_add_u32 {v(vKT)}, {sT2}, {t0}')
        else:
            for i in range(4):
                em(f'v_xor_b32 {t0}, {64*i}, {vL16}'); em(f'v_add_u32 {v(BB+i)}, {sT2}, {t0}')
            em(f'v_lshrrev_b32 {t0}, 3, {vLane}'); em(f's_lshl_b32 {sT2}, {sW}, 3'); em(f'v_add_u32 {t0}, {sT2}, {t0}')
            em(f'v_and_b32 {t1}, 7, {vLane}')
            em(f'v_lshlrev_b32 {v(vOut)}, 10, {t0}'); em(f'v_lshl_add_u32 {v(vOut)}, {t1}, 4, {v(vOut)}')
            em(f'v_and_b32 {t2}, 3, {vLane}'); em(f'v_lshlrev_b32 {t2}, 2, {t2}'); em(f'v_xor_b32 {t2}, {t2}, {t0}'); em(f'v_lshlrev_b32 {t2}, 4, {t2}')
            em(f'v_lshl_add_u32 {v(vRedR)}, {t1}, 10, {t2}'); em(f'v_add_u32 {v(vRedR)}, {S_ADDR:#x}, {v(vRedR)}')
            em(f's_lshl_b32 {sT2}, {sW}, 8'); em(f'v_lshlrev_b32 {t0}, 2, {vLane}'); em(f'v_add_u32 {v(vStM)}, {sT2}, {t0}')

    def reduce_items(self, half, acc0, acc1, R, rs, xbuf, stbuf, final):
        em = self.em
        it = []
        for c in range(8):
            src = v((acc0 if c < 4 else acc1) + 4 * (c & 3), 4)
            ad = v(BB + (c & 3)) if final else v(vRedW)
            it.append(f'ds_write_b128 {ad}, {src} offset:{c*1024}')
        it.append(self.barrier)
        o2 = 512 if final else 1024
        for w in range(4):
            it.append(f'ds_read_b128 {v(R+8*w,4)}, {v(vRedR)} offset:{w*8192}'); it.append(f'ds_read_b128 {v(R+8*w+4,4)}, {v(vRedR)} offset:{w*8192+o2}')
        U = acc0
        for r in range(4): it.append(f'v_accvgpr_read_b32 {v(U+8+r)}, {a(RES+4*half+r)}')
        for r in range(4):
            it.append(f'v_lshlrev_b32 {v(U+2*r)}, 16, {v(U+8+r)}'); it.append(f'v_and_b32 {v(U+2*r+1)}, 0xffff0000, {v(U+8+r)}')
        for r in range(8): it.append(f'v_add_f32 {v(R+r)}, {v(R+r)}, {v(R+8+r)}')
        for r in range(8): it.append(f'v_add_f32 {v(R+16+r)}, {v(R+16+r)}, {v(R+24+r)}')
        for r in range(8): it.append(f'v_add_f32 {v(R+r)}, {v(R+r)}, {v(R+16+r)}')
        for r in range(8):
            it.append(f'v_fma_f32 {v(R+r)}, {v(R+r)}, {rs}, {v(U+r)}' if rs else f'v_add_f32 {v(R+r)}, {v(R+r)}, {v(U+r)}')
        P = R + 8
        for r in range(4): it.append(f'v_cvt_pk_bf16_f32 {v(P+r)}, {v(R+2*r)}, {v(R+2*r+1)}')
        if final:
            def st():
                em(f's_add_u32 {sT}, {sOutRow}, {half*32768}')
                em(f'buffer_store_dwordx4 {v(P,4)}, {v(vOut)}, {SOUT}, {sT} offen', tag='st')
            it.append(st)
            return it
        def st():
            em(f's_lshl_b32 {sT2}, {sC128}, 5'); em(f's_add_u32 {sT2}, {sT2}, {sActR}')
            self.wsstore(v(P, 4), v(vOut), sT2, xbuf + half * 32768)
        it.append(st)
        S, Q, T = v(R + 16), v(R + 17), v(R + 18)
        it += [f'v_add_f32 {S}, {v(R)}, {v(R+1)}', f'v_mul_f32 {Q}, {v(R)}, {v(R)}', f'v_fmac_f32 {Q}, {v(R+1)}, {v(R+1)}']
        for r in range(2, 8): it += [f'v_add_f32 {S}, {S}, {v(R+r)}', f'v_fmac_f32 {Q}, {v(R+r)}, {v(R+r)}']
        for r in range(4): it.append(f'v_accvgpr_write_b32 {a(RES+4*half+r)}, {v(P+r)}')
        it += [f'v_add_f32_dpp {S}, {S}, {S} row_ror:8 row_mask:0xf bank_mask:0xf', f'v_add_f32_dpp {Q}, {Q}, {Q} row_ror:8 row_mask:0xf bank_mask:0xf',
               f'v_permlane16_swap_b32 {S}, {Q}', f'v_add_f32 {S}, {S}, {Q}', f'v_mov_b32 {T}, {S}', f'v_permlane32_swap_b32 {S}, {T}', f'v_add_f32 {S}, {S}, {T}']
        def st2():
            em(f's_lshr_b32 {sT2}, {sC128}, 5'); em(f's_add_u32 {sT2}, {sT2}, {sStR}')
            em(f's_mov_b64 {sEx}, exec'); em(f's_mov_b64 exec, {sMaskSt}')
            self.wsstore(S, v(vStSt), sT2, stbuf + half * 2048, width=1)
            em(f's_mov_b64 exec, {sEx}')
        it.append(st2)
        return it

    def p2(self, l):
        em = self.em; o = self.o
        KT, QF = AF, AF + 32
        accs = [[ACC, ACC + 16], [ACC + 32, 232]]
        DB = [MR, MR + 16, BB]
        def ldq(n):
            h, i = divmod(n, 8)
            self.wsload(v(QF + 4 * n, 4), vAW, sActR, WS_Q + l * 16 * ACT_B + h * 32768 + i * 4096, tag='A')
        for i in range(8):
            self.wsload(v(KT + 4 * i, 4), v(vKT), sGKT, WS_KT + l * 16 * KT_B + i * 2176, tag='A'); ldq(i)
        for n in range(8, 16): ldq(n)
        side = Side(em)
        self.p2_bg(l, side)
        def attn(n): em(f'v_mfma_f32_32x32x16_bf16 {v(DB[n%3],16)}, {v(KT+4*(n%8),4)}, {v(QF+4*n,4)}, 0')
        def post(n):
            D = DB[n % 3]; O = TMP + 4 * (n % 2); rc = v(TMP + 8 + (n % 2))
            it = [f'v_add_f32 {rc}, {s1em6}, {v(D+8)}', f'v_rcp_f32 {rc}, {rc}']
            it += [f'v_mul_f32 {v(D+r)}, {v(D+r)}, {rc}' for r in range(8)]
            it += [f'v_cvt_pk_bf16_f32 {v(O+r)}, {v(D+2*r)}, {v(D+2*r+1)}' for r in range(4)]
            return it
        attn(0); attn(1)
        for t in post(0): em(t)
        for n in range(16):
            h, i = divmod(n, 8)
            nxt = post(n + 1) if n + 1 < 16 else []
            O = v(TMP + 4 * (n % 2), 4)
            if n + 2 < 16: attn(n + 2)
            for t in nxt[:5]: em(t)
            for nt in range(2):
                c = v(accs[h][nt], 16)
                em(f'v_mfma_f32_32x32x16_bf16 {c}, {a(WOA + i*8 + nt*4, 4)}, {O}, ' + ('0' if i == 0 else c))
                for t in (nxt[5:10] if nt == 0 else nxt[10:]): em(t)
                side.run(o.fill_p2)
            if n == 8: side.q = self.reduce_items(0, accs[0][0], accs[0][1], QF, None, WS_X1 + l * 16 * ACT_B, WS_ST1 + l * 16 * 8192, False) + [self.barrier] + side.q
        side.flush()
        self.ts('p2main')
        for t in self.reduce_items(1, accs[1][0], accs[1][1], QF + 32, None, WS_X1 + l * 16 * ACT_B, WS_ST1 + l * 16 * 8192, False):
            t() if callable(t) else em(t)
        self.p2_tail(l)

    def p2_bg(self, l, side):
        if l == 0:
            self.s2q = [24, 25, 26, 27, 29, 30]
            for i in range(3): side.add(lambda i=i: self.stage_dma(SW2, i, self.s2q[2 * i], self.s2q[2 * i + 1], 'w2s'))
            self.w2next = 3; self.w2rd = 0

    def p2_tail(self, l):
        em = self.em
        if l == 0:
            def mid():
                em.wait_vm_tag(('late', 'w1c'))
                side = Side(em)
                C = [v(MR), v(MR + 1), v(MR + 2)]
                for p in range(3): side.add(*self.colsum_items(self.w1pl[p], C[p], TMP + 2, True))
                side.flush()
                self.colsum_publish('w1', C)
                self.barrier()
                self.colsum_final('w1')
            self.group_sync(1, mid=mid)
        else:
            def mid():
                em.wait_vm_tag(('late', 'w1c'))
                self.res_convert(to_m1=False)
            self.group_sync(5, mid=mid)

    def w2_round(self, quads):
        em = self.em
        items = []
        n = len(quads) // 2
        pend = list(range(self.w2rd, self.w2next))
        items.append(lambda: em.wait_vm_tag('w2s'))
        for k, m in enumerate(pend): items += self.stage_read_items(W2A, m, self.pendq[2 * k], self.pendq[2 * k + 1])
        self.w2rd = self.w2next
        new = list(range(self.w2next, min(22, self.w2next + n)))
        if new:
            items.append(lambda: em.wait_lg(0))
            for k, m in enumerate(new): items.append(lambda k=k, m=m: self.stage_dma(SW2, m, quads[2 * k], quads[2 * k + 1], 'w2s'))
        self.w2next += len(new); self.pendq = list(quads)
        return items

    def p3(self, l):
        em = self.em; o = self.o
        self.stats_T_loads(WS_ST1 + l * 16 * 8192)
        ld = self.a_loader(WS_X1 + l * 16 * ACT_B, o.pre)
        side = Side(em)
        vad = v(TMP + 12)
        side.add(f'v_add_u32 {vad}, 0x10000, {vBp}')
        side.add(*self.cs_dlayout_items('w1', 0, MR, vad)); side.add(*self.cs_dlayout_items('w1', 1, MR + 16, vad))
        side.add(*self.stats_T_items())
        self.pass2(range(32), self.w1pl[:2], [ACC, ACC + 16], False, side, 1, loader=ld)
        side.flush()
        self.ts('p3a')
        hb = WS_H + l * 16 * H_B
        def epi(p, cs):
            A = ACC + 16 * p
            it = [f'v_fma_f32 {v(A+r)}, -{vM}, {v(cs+r)}, {v(A+r)}' for r in range(16)]
            it += [f'v_cvt_pk_bf16_f32 {v(A+r)}, {v(A+2*r)}, {v(A+2*r+1)}' for r in range(8)]
            it += [f'v_pk_max_i16 {v(A+r)}, {v(A+r)}, 0' for r in range(8)]
            return it
        vH = v(TMP + 13)
        def st(p):
            A = ACC + 16 * p
            self.wsstore(v(A, 4), vH, sHks, hb + p * 2048); self.wsstore(v(A + 4, 4), vH, sHks, hb + p * 2048, off=1024)
        side.add(f's_mul_i32 {sT2}, {sW}, {H_T}', f'v_add_u32 {vH}, {sT2}, {vL16}')
        side.add(*epi(0, MR)); side.add(lambda: st(0)); side.add(*epi(1, MR + 16)); side.add(lambda: st(1))
        side.add(*self.cs_dlayout_items('w1', 2, MR, vad))
        self.p3_bg(l, side)
        self.pass1(self.w1pl[2], ACC + 32, side, o.fill_p3)
        side.flush()
        self.ts('p3b')
        for t in epi(2, MR): em(t)
        L = em.newlabel('Lh3')
        em(f's_cmp_eq_u32 {sHas3}, 0'); em(f's_cbranch_scc1 {L}')
        em.cond_begin(); st(2); em.cond_end()
        em.label(L)
        self.p3_tail(l)

    def p3_bg(self, l, side):
        if l == 0:
            em = self.em
            self.pendq = list(self.s2q)
            side.add(self.barrier)
            big = self.s2q + list(range(32, 40)) + self.w1pl[0] + self.w1pl[1]
            side.add(*self.w2_round(big[6:] + big[:6]))
    def p3_tail(self, l):
        em = self.em
        if l == 0:
            em.force_wait(vm=0)
            def mid():
                for t in self.w2_round(self.s2q + [32, 33]):
                    t() if callable(t) else em(t)
                self.setup_local()
                for t in self.w2_round([]):
                    t() if callable(t) else em(t)
            self.group_sync(2, mid=mid)
            assert self.w2rd == 22
        else:
            em.force_wait(vm=0)
            self.group_sync(6, mid=lambda: self.setup_local(final=True))

    def p4(self, l):
        em = self.em; o = self.o
        final = l == 1
        accs = [[ACC, ACC + 16], [ACC + 32, 232]]
        NR = 24
        hb = WS_H + l * 16 * H_B
        def ld(n):
            h, m = divmod(n, 22)
            dst = v(AF + 4 * (n % NR), 4)
            if m == 21:
                em(f's_sub_u32 {sT2}, {sHR}, {sAdj}'); self.wsload(dst, vAW, sT2, hb + h * H_T + m * 4096, tag='A')
            else: self.wsload(dst, vAW, sHR, hb + h * H_T + m * 4096, tag='A')
        st1 = WS_ST1 + l * 16 * 8192
        RS = [v(TMP), v(TMP + 2)]
        for h in range(2):
            self.wsload(v(TMP + 2 * h), v(vStM), sStR, st1 + h * 2048, width=1, tag='stat'); self.wsload(v(TMP + 2 * h + 1), v(vStM), sStR, st1 + h * 2048, width=1, tag='stat', off=1024)
        for n in range(o.pre): ld(n)
        side = Side(em)
        for h in range(2):
            S, Q, T = v(TMP + 2 * h), v(TMP + 2 * h + 1), v(TMP + 4)
            if not final:
                side.add(f'v_add_f32_dpp {S}, {S}, {S} row_ror:8 row_mask:0xf bank_mask:0xf', f'v_add_f32_dpp {Q}, {Q}, {Q} row_ror:8 row_mask:0xf bank_mask:0xf',
                         f'v_permlane16_swap_b32 {S}, {Q}', f'v_add_f32 {S}, {S}, {Q}', f'v_mov_b32 {T}, {S}', f'v_permlane32_swap_b32 {S}, {T}', f'v_add_f32 {S}, {S}, {T}',
                         f'v_mov_b32 {Q}, {S}', f'v_permlane16_swap_b32 {S}, {Q}')
            else:
                for ctl in ('quad_perm:[1,0,3,2]', 'quad_perm:[2,3,0,1]', 'row_half_mirror'):
                    side.add(f'v_add_f32_dpp {S}, {S}, {S} {ctl} row_mask:0xf bank_mask:0xf', f'v_add_f32_dpp {Q}, {Q}, {Q} {ctl} row_mask:0xf bank_mask:0xf')
            side.add(*self.stats_finish(S, Q, T, S, None))
        self.p4_bg(l, side)
        xb = WS_X2; sb = WS_ST2
        for n in range(44):
            h, m = divmod(n, 22)
            x = v(AF + 4 * (n % NR), 4)
            for nt in range(2):
                c = v(accs[h][nt], 16)
                em(f'v_mfma_f32_32x32x16_bf16 {c}, {a(W2A + m*8 + nt*4, 4)}, {x}, ' + ('0' if m == 0 else c))
                if nt == 0 and n + o.pre < 44: ld(n + o.pre)
                side.run(o.fill_p4)
            if n == 22: side.q = self.reduce_items(0, accs[0][0], accs[0][1], MR, RS[0], xb, sb, final) + [self.barrier] + side.q
        side.flush()
        self.ts('p4main')
        for t in self.reduce_items(1, accs[1][0], accs[1][1], MR, RS[1], xb, sb, final):
            t() if callable(t) else em(t)
        if not final:
            for m in range(8): self.dma(SQKV, vDq, sQcol, m * 64 * 3072, self.pl['q'][m], 'q')
            em.wait_vm_tag('kv')
            self.group_sync(3)

    def p4_bg(self, l, side):
        if l == 0:
            for m in range(8):
                side.add(lambda m=m: self.dma(SQKV, vDq, sQcol, 1024 + m * 64 * 3072, self.pl['k'][m], 'kv'))
                side.add(lambda m=m: self.dma(SQKV, vDq, sQcol, 2048 + m * 64 * 3072, self.pl['v'][m], 'kv'))

    def p5_start(self):
        em = self.em; o = self.o
        self.stats_T_loads(WS_ST2)
        ld = self.a_loader(WS_X2, o.pre)
        side = Side(em)
        side.add(*self.stats_T_items())
        self.pass2(range(32), [self.pl['k'], self.pl['v']], [ACC, ACC + 16], True, side, 1, loader=ld)
        side.flush()
        em.wait_vm_tag('q'); self.barrier()
        self.ts('p5a')

    def finish(self):
        em = self.em
        L = em.newlabel('Le')
        em(f's_or_b32 {sT}, s2, {sW}'); em(f's_cmp_lg_u32 {sT}, 0'); em(f's_cbranch_scc1 {L}')
        em.cond_begin()
        em('s_mov_b64 exec, 1'); em(f'v_mov_b32 v24, {sNonce}'); em(f'buffer_store_dword v24, off, {SWS}, 0 sc1'); em('s_mov_b64 exec, -1')
        em.cond_end()
        em.label(L)
        if self.o.ts:
            self.ts('end')
            em(f's_lshl_b32 {sT}, s2, 2'); em(f's_add_u32 {sT}, {sT}, {sW}'); em(f's_lshl_b32 {sT}, {sT}, 8'); em(f's_add_u32 {sT}, {sT}, {WS_DBG}')
            em(f'v_lshlrev_b32 v24, 2, {vLane}')
            em(f'buffer_store_dword {self.vts}, v24, {SWS}, {sT} offen')
        em('s_endpgm')

    def body(self, sc):
        self.sc = sc; self.swin = None
        stop = self.o.stop
        seq = [lambda: self.p1_rest(0), lambda: self.p2(0), lambda: self.p3(0), lambda: self.p4(0),
               lambda: (self.p5_start(), self.p1_rest(1)), lambda: self.p2(1), lambda: self.p3(1), lambda: self.p4(1)]
        for i, f in enumerate(seq):
            self.em.comment(f'---------------- phase {i+1} ({"slow" if sc else "fast"}) ----------------')
            f()
            if stop == i + 1: break
        self.finish()

    def build(self):
        em = self.em
        self.sc = ''
        self.prologue()
        self.p1_start()
        if self.o.force_slow: em('s_branch L_slow_tramp')
        em('s_cbranch_vccz L_fast')
        em.label('L_slow_tramp')
        em('s_getpc_b64 s[36:37]'); em.label('L_pc0')
        em('s_add_u32 s36, s36, L_slow-L_pc0'); em('s_addc_u32 s37, s37, 0'); em('s_setpc_b64 s[36:37]')
        em.label('L_end'); em('s_endpgm')
        em.label('L_fast')
        snap = (list(em.vmq), list(em.lgq), self.nts)
        self.body('')
        em.label('L_slow')
        em.vmq, em.lgq, self.nts = list(snap[0]), list(snap[1]), snap[2]
        self.body(' sc1')
        hdr = open('cdna_kernels/' + NAME + '.s.ref').read().split('; Override launch')[0]
        s = hdr + '; @launch grid=(256,1,1) block=(256,1,1) lds=163840\n'
        s += '.amdgcn_target "amdgcn-amd-amdhsa--gfx950"\n.text\n'
        s += f'.globl {NAME}_kernel\n.p2align 8\n.type {NAME}_kernel,@function\n{NAME}_kernel:\n'
        s += em.text()
        s += f'''.section .rodata,"a"
.p2align 6
.amdhsa_kernel {NAME}_kernel
  .amdhsa_next_free_vgpr 512
  .amdhsa_next_free_sgpr 102
  .amdhsa_accum_offset 256
  .amdhsa_group_segment_fixed_size 0
  .amdhsa_kernarg_size 72
  .amdhsa_user_sgpr_count 2
  .amdhsa_user_sgpr_kernarg_segment_ptr 1
  .amdhsa_system_sgpr_workgroup_id_x 1
  .amdhsa_float_denorm_mode_32 3
.end_amdhsa_kernel
'''
        return s

def main():
    ap = argparse.ArgumentParser()
    ap.add_argument('-o', default='k.s')
    ap.add_argument('--ts', action='store_true')
    ap.add_argument('--stop', type=int, default=0)
    ap.add_argument('--spin', type=int, default=200000)
    ap.add_argument('--pre', type=int, default=10)
    ap.add_argument('--fill_p1', type=int, default=6)
    ap.add_argument('--fill_p2', type=int, default=2)
    ap.add_argument('--fill_p3', type=int, default=4)
    ap.add_argument('--fill_p4', type=int, default=3)
    ap.add_argument('--nt_stage', action='store_true')
    ap.add_argument('--force_slow', action='store_true')
    o = ap.parse_args()
    g = Gen(o)
    s = g.build()
    open(o.o, 'w').write(s)
    if o.ts:
        import json; json.dump(g.tsnames, open(o.o + '.ts.json', 'w'))
    print(f'wrote {o.o}: {g.em.ninstr} instrs, {g.em.nops} nop states, {len(s)} bytes')
if __name__ == '__main__': main()
```

```python
import sys, struct, argparse
from emit import Em

NAME = "interleave_layers__linear_attn_block__dense_activation_relu__prompt"
def f2u(x): return struct.unpack('<I', struct.pack('<f', x))[0]

WS_EPOCH = 0
WS_HELLO = 1024
WS_FLAG = 4096
WS_MSG = 0x10000
WS_KT = 0x120000
WS_ST = 0x170000
WS_X = 0x200000
WS_H = 0x400000
WS_DBG = 0x2000000
WS_SIZE = 0x4000000
MSG_B = 2176; KT_B = 17408; ACT_B = 131072; H_T = 86 * 1024; H_B = 4 * H_T
NONCE_K = 0x9E3779B1

sW, sG, sJ, sNonce = 's4', 's5', 's6', 's7'
SX, SQKV, SWO, SW1, SW2, SOUT, SWS = 's[8:11]', 's[12:15]', 's[16:19]', 's[20:23]', 's[24:27]', 's[28:31]', 's[32:35]'
sT, sT2, sWl, sSpin = 's52', 's53', 's54', 's55'
sGX, sGH, sG8K, sGKT, sG128 = 's56', 's57', 's58', 's59', 's60'
sQcol, sW1c0, sW1c2, sHks, sHas3 = 's61', 's62', 's63', 's64', 's65'
sC128, sXR, sHR, sStR, sAdj = 's66', 's67', 's68', 's69', 's70'
sQR, sInv, sEps, s1em6, sLog2e = 's71', 's74', 's75', 's76', 's73'
sXrow, sJmsg, sMaskInv, sOutRow, sHello = 's77', 's78', 's79', 's80', 's81'
sEx = 's[82:83]'; sMaskSt = 's[84:85]'
sTS = 86
sDelta, sDelta2 = 's88', 's[88:89]'
sLn2, sLn22 = 's90', 's[90:91]'
sXst, sStst, sQst = 's92', 's93', 's94'
sRot, sR, sFlag, sG256 = 's95', 's96', 's97', 's98'

vLane, vL16, vAT, vAW = 'v0', 'v1', 'v2', 'v3'
vTr = ['v4', 'v5', 'v6']
vDq, vD1, vDs, vS0, vS1, vS0w, vS1w = 'v7', 'v8', 'v9', 'v10', 'v11', 'v12', 'v14'
vStT, vPoll, vRl, vHi, vTid = 'v13', 'v15', 'v16', 'v17', 'v18'
CS = {'q': 'v19', 'k': 'v20', 'v': 'v21', 0: 'v22', 1: 'v23', 2: 'v34'}
AUX = 24
CB = 28
TMP = 35
BB = 40
MR = 56
ACC = 88
AF = 136
def v(i, n=1): return f'v{i}' if n == 1 else f'v[{i}:{i+n-1}]'
def a(i, n=1): return f'a{i}' if n == 1 else f'a[{i}:{i+n-1}]'
def Afrag(ks): return v(AF + 4 * ks, 4) if ks < 30 else a(248 + 4 * (ks - 30), 4)
RES = 240
W2A = 0; WOA = 176
vRedW, vRedR, vOut, vStSt, vStM, vKT = 248, 249, 250, 251, 252, 253
MF = 'v_mfma_f32_32x32x16_bf16'
DPPM = 'row_mask:0xf bank_mask:0xf'

QS = 32
S_ADDR = QS * 4096

class Side:
    def __init__(self, em): self.q = []; self.em = em
    def add(self, *items): self.q.extend(items)
    def run(self, k):
        while k > 0 and self.q:
            it = self.q.pop(0)
            if callable(it): it()
            else: self.em(it)
            k -= 1
    def flush(self): self.run(1 << 30)

class Gen:
    def __init__(self, opt):
        self.o = opt; self.em = Em(); self.nts = 0; self.swin = None; self.lin = False
    def emit(self, items):
        for t in items: t() if callable(t) else self.em(t)

    def ts(self, name):
        if not self.o.ts: return
        em = self.em
        i = self.nts; self.nts += 1
        assert i < 64
        em.force_wait(lg=0)
        em(f's_memtime s[{sTS}:{sTS+1}]'); em.force_wait(lg=0)
        em(f'v_writelane_b32 v39, s{sTS}, {i}')
        self.tsnames[i] = name
    def dma(self, srd, voff, sbase, imm, quad, tag, nt=False, slot=None):
        em = self.em
        if slot is None: em(f's_add_u32 m0, {sWl}, {quad*4096}')
        else: em(f's_mov_b32 m0, {quad*4096 + slot*1024}')
        em(f's_add_u32 {sT}, {sbase}, {imm}')
        em(f'buffer_load_dwordx4 {voff}, {srd}, {sT} offen' + (' nt' if nt else '') + ' lds', tag=tag)
    def tr(self, dst, quad, slot, base=None):
        addr = quad * 4096 + slot * 1024
        b = (base or vTr)[addr >> 16]; off = addr & 0xFFFF
        return [f'ds_read_b64_tr_b16 {v(dst,2)}, {b} offset:{off}', f'ds_read_b64_tr_b16 {v(dst+2,2)}, {b} offset:{off+(256 if self.lin else 512)}']
    def wsload(self, dst, voff, sbase, imm, width=4, tag=None, off=0):
        em = self.em
        em(f's_add_u32 {sT}, {sbase}, {imm}')
        sfx = {1: 'dword', 2: 'dwordx2', 4: 'dwordx4'}[width]
        em(f'buffer_load_{sfx} {dst}, {voff}, {SWS}, {sT} offen' + (f' offset:{off}' if off else '') + ' sc1', tag=tag)
    def wsstore(self, src, voff, sbase, imm, width=4, tag='st', off=0, sc=None):
        em = self.em
        em(f's_add_u32 {sT}, {sbase}, {imm}')
        sfx = {1: 'dword', 2: 'dwordx2', 4: 'dwordx4'}[width]
        sc = self.sc if sc is None else sc
        em(f'buffer_store_{sfx} {src}, {voff}, {SWS}, {sT} offen' + (f' offset:{off}' if off else '') + sc, tag=tag)
    def barrier(self):
        self.em.wait_lg(0); self.em('s_barrier')
    def only_wave(self, w, f, invert=False):
        em = self.em
        L = em.newlabel('Lw')
        em(f's_cmp_{"eq" if invert else "lg"}_u32 {sW}, {w}'); em(f's_cbranch_scc1 {L}')
        em.cond_begin(); f(); em.cond_end()
        em.label(L)
    def spin_tail(self, L):
        em = self.em
        em(f's_sub_u32 {sSpin}, {sSpin}, 1'); em(f's_cbranch_scc0 {L}'); em(f's_mov_b32 {sSpin}, 0')
    def group_sync(self, p, pre=None, mid=None, tags=('st',), bar=True):
        em = self.em
        vt = v(TMP)
        if pre: pre()
        em(f'v_mov_b32 {vt}, {sNonce}')
        em(f's_add_u32 {sT2}, {sFlag}, {p*4096}')
        if tags is None: em.force_wait(vm=0)
        else: em.wait_vm_tag(tags)
        self.ts(f'drain{p}')
        em(f's_mov_b64 {sEx}, exec'); em('s_mov_b64 exec, 1')
        em(f'buffer_store_dword {vt}, off, {SWS}, {sT2}' + self.sc, tag='flag')
        em(f's_mov_b64 exec, {sEx}')
        if mid: mid()
        if bar: self.barrier()
        L = em.newlabel('Lpoll'); D = em.newlabel('Lpd')
        em(f's_add_u32 {sT2}, {sG256}, {WS_FLAG + p*4096}')
        em(f'v_lshlrev_b32 {v(TMP+1)}, 2, {vLane}')
        em.label(L)
        em(f'buffer_load_dword {vt}, {v(TMP+1)}, {SWS}, {sT2} offen sc1')
        em.force_wait(vm=0)
        em(f'v_cmp_ne_u32 vcc, {sNonce}, {vt}')
        em(f's_cbranch_vccz {D}')
        self.spin_tail(L)
        em.label(D)
        self.ts(f'sync{p}')
    def rot(self, m, stride, base):
        em = self.em
        em(f's_add_u32 {sR}, {sRot}, {m}'); em(f's_and_b32 {sR}, {sR}, 7'); em(f's_mul_i32 {sR}, {sR}, {stride}'); em(f's_add_u32 {sR}, {sR}, {base}')
    def qkv_dma(self, planes, m, tag):
        self.rot(m, 64 * 3072, sQcol)
        for p in planes: self.dma(SQKV, vDq, sR, {'q': 0, 'k': 1024, 'v': 2048}[p], self.pl[p][m], tag)

    def prologue(self):
        em = self.em; o = self.o
        em('s_cmp_ge_u32 s2, 256'); em('s_cbranch_scc1 L_end')
        em('s_load_dwordx4 s[36:39], s[0:1], 0'); em('s_load_dwordx2 s[40:41], s[0:1], 16')
        em('s_load_dwordx4 s[44:47], s[0:1], 32'); em('s_load_dwordx2 s[48:49], s[0:1], 48'); em('s_load_dwordx2 s[50:51], s[0:1], 64')
        if o.ts:
            self.tsnames = {}
            em('v_mov_b32 v39, 0')
        em(f'v_mov_b32 {vTid}, v0')
        em(f'v_lshrrev_b32 v24, 6, v0'); em(f'v_and_b32 {vLane}, 63, v0')
        em(f'v_readfirstlane_b32 {sW}, v24')
        em(f's_and_b32 {sG}, s2, 7'); em(f's_lshl_b32 {sG}, {sG}, 1'); em(f's_lshr_b32 {sT}, s2, 7'); em(f's_add_u32 {sG}, {sG}, {sT}')
        em(f's_lshr_b32 {sJ}, s2, 3'); em(f's_and_b32 {sJ}, {sJ}, 15')
        em(f's_lshl_b32 {sWl}, {sW}, 10')
        em(f's_lshl_b32 {sXrow}, {sG}, 17')
        em(f's_lshl_b32 {sQcol}, {sJ}, 6')
        em(f's_and_b32 {sRot}, {sG}, 1'); em(f's_lshl_b32 {sRot}, {sRot}, 2'); em(f's_add_u32 {sRot}, {sRot}, {sJ}'); em(f's_add_u32 {sRot}, {sRot}, s2')
        if not o.rot: em(f's_mov_b32 {sRot}, 0')
        self.pl = {'k': [0, 1, 2, 3, 8, 9, 10, 11], 'v': [4, 5, 6, 7, 12, 13, 14, 15], 'q': list(range(16, 24))}
        em(f'v_lshlrev_b32 {vL16}, 4, {vLane}')
        em(f'v_lshrrev_b32 v27, 3, {vLane}'); em(f'v_and_b32 v28, 7, {vLane}')
        em(f'v_lshrrev_b32 v29, 1, v27'); em('v_xor_b32 v28, v28, v29'); em('v_lshlrev_b32 v28, 4, v28')
        em(f's_lshl_b32 {sT}, {sW}, 5'); em(f'v_add_u32 v27, {sT}, v27'); em('v_lshlrev_b32 v27, 10, v27')
        em('v_add_u32 v25, v27, v28'); em('v_xor_b32 v26, 64, v25')
        em(f'v_lshrrev_b32 v27, 2, {vLane}'); em(f's_lshl_b32 {sT}, {sW}, 4'); em(f'v_add_u32 v27, {sT}, v27')
        em(f'v_and_b32 v28, 3, {vLane}'); em('v_lshlrev_b32 v28, 4, v28')
        em(f'v_mul_u32_u24 {vDq}, 3072, v27'); em(f'v_add_u32 {vDq}, {vDq}, v28')
        em(f'v_mul_u32_u24 {vD1}, 2752, v27'); em(f'v_add_u32 {vD1}, {vD1}, v28')
        em.force_wait(lg=0)
        self.ts('start')
        def srd(s, lo, nb):
            em(f's_mov_b32 s{s}, s{lo}'); em(f's_mov_b32 s{s+1}, s{lo+1}'); em(f's_mov_b32 s{s+2}, {nb}'); em(f's_mov_b32 s{s+3}, 0x00020000')
        srd(8, 36, 2048 * 1024); srd(32, 50, WS_SIZE); srd(12, 38, 512 * 3072)
        em(f'buffer_load_dword v24, off, {SWS}, 0 sc1', tag='epoch')
        self.xdma(range(0, 4))
        for m in range(4): self.qkv_dma('kv', m, 'kvlo')
        if o.codepf:
            em('s_getpc_b64 s[42:43]'); em.label('L_pcx')
            em(f's_lshr_b32 {sT}, s2, 3'); em(f's_lshl_b32 {sT}, {sT}, 2'); em(f's_add_u32 {sT}, {sT}, {sW}'); em(f's_lshl_b32 {sT}, {sT}, 10')
            em(f's_min_u32 {sT}, {sT}, L_slow-L_pcx-1024')
            em(f'v_add_u32 v30, {sT}, {vL16}')
            em(f'global_load_dwordx4 {v(MR+24,4)}, v30, s[42:43]', tag='codepf')
        self.xdma(range(4, 8))
        srd(16, 40, 512 * 1024); srd(20, 44, 512 * 2752); srd(24, 46, 1376 * 1024); srd(28, 48, 2048 * 1024)
        em(f's_mov_b32 {sSpin}, {o.spin}')
        em(f's_lshl_b32 {sGX}, {sG}, 17'); em(f's_add_u32 {sGX}, {sGX}, {WS_X}')
        em(f's_mul_i32 {sGH}, {sG}, {H_B}'); em(f's_add_u32 {sGH}, {sGH}, {WS_H}')
        em(f's_lshl_b32 {sG8K}, {sG}, 13'); em(f's_add_u32 {sG8K}, {sG8K}, {WS_ST}')
        em(f's_mul_i32 {sGKT}, {sG}, {KT_B}'); em(f's_add_u32 {sGKT}, {sGKT}, {WS_KT}'); em(f's_lshl_b32 {sG128}, {sG}, 7'); em(f's_lshl_b32 {sG256}, {sG}, 8')
        em(f's_lshl_b32 {sFlag}, {sJ}, 2'); em(f's_add_u32 {sFlag}, {sFlag}, {sW}'); em(f's_lshl_b32 {sFlag}, {sFlag}, 2'); em(f's_add_u32 {sFlag}, {sFlag}, {sG256}'); em(f's_add_u32 {sFlag}, {sFlag}, {WS_FLAG}')
        em(f's_mul_i32 {sT}, {sJ}, 3'); em(f's_lshl_b32 {sT2}, {sJ}, 1'); em(f's_add_u32 {sT2}, {sT2}, 11')
        em(f's_cmp_lt_u32 {sJ}, 11'); em(f's_cselect_b32 {sT}, {sT}, {sT2}'); em(f's_cselect_b32 {sHas3}, 1, 0')
        em(f's_cselect_b32 {sT2}, 128, 64')
        em(f's_lshl_b32 {sW1c0}, {sT}, 6'); em(f's_add_u32 {sW1c2}, {sW1c0}, {sT2}')
        em(f's_lshl_b32 {sHks}, {sT}, 11'); em(f's_add_u32 {sHks}, {sHks}, {sGH}')
        em(f's_mul_i32 {sT}, {sW}, {H_T}'); em(f's_add_u32 {sHks}, {sHks}, {sT}')
        em(f's_and_b32 {sC128}, {sJ}, 7'); em(f's_lshl_b32 {sC128}, {sC128}, 7')
        em(f's_lshr_b32 {sT}, {sJ}, 3')
        em(f's_lshl_b32 {sT2}, {sT}, 16'); em(f's_add_u32 {sXR}, {sT2}, {sGX}'); em(f's_add_u32 {sQR}, {sT2}, {sGH}')
        em(f's_add_u32 {sOutRow}, {sT2}, {sXrow}'); em(f's_add_u32 {sOutRow}, {sOutRow}, {sC128}')
        em(f's_mul_i32 {sHR}, {sT}, {2*H_T}'); em(f's_add_u32 {sHR}, {sHR}, {sGH}')
        em(f's_lshl_b32 {sStR}, {sT}, 12'); em(f's_add_u32 {sStR}, {sStR}, {sG8K}')
        em(f's_lshl_b32 {sXst}, {sC128}, 5'); em(f's_add_u32 {sXst}, {sXst}, {sXR}')
        em(f's_and_b32 {sT}, {sJ}, 4'); em(f's_lshl_b32 {sT}, {sT}, 7'); em(f's_and_b32 {sT2}, {sJ}, 3'); em(f's_lshl_b32 {sT2}, {sT2}, 2')
        em(f's_add_u32 {sStst}, {sT}, {sT2}'); em(f's_add_u32 {sStst}, {sStst}, {sStR}')
        em(f's_lshl_b32 {sQst}, {sJ}, 11'); em(f's_add_u32 {sQst}, {sQst}, {sGH}')
        em(f's_cmp_ge_u32 {sW}, 2'); em(f's_cselect_b32 {sAdj}, 4096, 0')
        em(f's_mul_i32 {sJmsg}, {sJ}, {16*MSG_B}'); em(f's_add_u32 {sJmsg}, {sJmsg}, {WS_MSG}')
        em(f's_mov_b32 {sDelta}, {f2u(1e-6*1.4426950408889634):#x}'); em(f's_mov_b32 {sLn2}, {f2u(0.6931471805599453):#x}')
        em('s_mov_b32 s89, s88'); em('s_mov_b32 s91, s90')
        em(f's_mov_b32 {sLog2e}, {f2u(1.4426950408889634):#x}'); em(f's_mov_b32 {sInv}, {f2u(1/512):#x}')
        em(f's_mov_b32 {sEps}, {f2u(1e-5):#x}'); em(f's_mov_b32 {s1em6}, {f2u(1e-6):#x}')
        em('s_mov_b32 s84, 0x00ff00ff'); em('s_mov_b32 s85, 0'); em(f's_mov_b32 {sMaskInv}, 0xffffff00')
        em(f'v_lshrrev_b32 {vHi}, 5, {vLane}')
        em(f's_lshl_b32 {sT}, {sW}, 15'); em(f'v_add_u32 {vAT}, {sT}, {vL16}')
        em(f'v_add_u32 {vAW}, {sWl}, {vL16}')
        em(f'v_bfe_u32 v27, {vLane}, 2, 2'); em(f'v_lshl_add_u32 v27, {vHi}, 2, v27')
        em(f'v_bfe_u32 v28, {vLane}, 4, 1'); em('v_lshlrev_b32 v28, 5, v28')
        em(f'v_and_b32 v29, 3, {vLane}'); em('v_lshl_add_u32 v28, v29, 3, v28')
        em(f'v_lshl_add_u32 {vTr[0]}, v27, 6, v28')
        em(f'v_lshl_add_u32 {vTr[0]}, {vHi}, 8, {vTr[0]}')
        em(f'v_add_u32 {vTr[1]}, 0x10000, {vTr[0]}'); em(f'v_add_u32 {vTr[2]}, 0x20000, {vTr[0]}')
        em(f'v_bfe_u32 v29, {vLane}, 3, 1'); em('v_lshl_add_u32 v28, v29, 6, v28')
        em(f'v_lshl_add_u32 {vS0}, v27, 7, v28'); em(f'v_add_u32 {vS0}, {sWl}, {vS0}'); em(f'v_xor_b32 {vS1}, 64, {vS0}')
        em(f'v_lshrrev_b32 v27, 3, {vLane}'); em(f'v_and_b32 v28, 7, {vLane}')
        em(f'v_bfe_u32 v29, {vLane}, 4, 1'); em('v_lshlrev_b32 v29, 2, v29'); em('v_xor_b32 v28, v28, v29'); em('v_lshlrev_b32 v28, 4, v28')
        em(f'v_lshl_add_u32 {vDs}, v27, 10, v28'); em(f's_lshl_b32 {sT}, {sW}, 14'); em(f'v_add_u32 {vDs}, {sT}, {vDs}')
        em(f'v_lshl_add_u32 v27, {vHi}, 9, {vL16}'); em(f's_lshl_b32 {sT}, {sW}, 11'); em(f'v_add_u32 {vStT}, {sT}, v27')
        em(f'v_and_b32 {vPoll}, 15, {vLane}'); em(f'v_lshlrev_b32 {vPoll}, 2, {vPoll}')
        em(f'v_readfirstlane_b32 {sNonce}, v24')
        em(f's_add_u32 {sNonce}, {sNonce}, {NONCE_K:#x}')
        em(f's_getreg_b32 {sHello}, hwreg(HW_REG_XCC_ID)'); em(f's_and_b32 {sHello}, {sHello}, 15')
        em(f's_add_u32 {sHello}, {sHello}, {sNonce}'); em(f's_add_u32 {sHello}, {sHello}, 1')
        def hello():
            em(f's_mov_b64 {sEx}, exec'); em('s_mov_b64 exec, 1')
            em(f'v_mov_b32 v24, {sHello}')
            em(f's_lshl_b32 {sT2}, {sJ}, 2'); em(f's_add_u32 {sT2}, {sT2}, {sG128}'); em(f's_add_u32 {sT2}, {sT2}, {WS_HELLO}')
            em(f'buffer_store_dword v24, off, {SWS}, {sT2} sc1')
            em(f's_mov_b64 exec, {sEx}')
        self.only_wave(0, hello)

    def xdma(self, lines):
        for c in lines:
            self.rot(c, 128, sXrow)
            for rb8 in range(4):
                self.dma(SX, 'v25' if rb8 % 2 == 0 else 'v26', sR, rb8 * 8192, (2 + c) * 4 + rb8, 'xlo' if c < 4 else 'xhi')

    def touch_q(self, vt, dst):
        em = self.em
        em(f'v_lshlrev_b32 {vt}, 7, {vLane}'); em(f's_lshl_b32 {sT2}, {sW}, 15'); em(f's_add_u32 {sT2}, {sT2}, {sQst}')
        em(f's_mov_b64 {sEx}, exec'); em('s_mov_b64 exec, 0xffff')
        em(f'buffer_load_dword {v(dst)}, {vt}, {SWS}, {sT2} offen sc1', tag='touch')
        em(f's_mul_i32 {sT2}, {sJ}, 1088'); em(f's_add_u32 {sT2}, {sT2}, {sGKT}')
        em('s_mov_b64 exec, 0x1ff')
        em(f'buffer_load_dword {v(dst+1)}, {vt}, {SWS}, {sT2} offen sc1', tag='touch')
        em(f'v_lshlrev_b32 {vt}, 12, {vLane}')
        em('s_mov_b64 exec, 0x7f')
        em(f'buffer_load_dword {v(dst+2)}, {vt}, {SWS}, {sFlag} offen sc1', tag='touch')
        em(f's_mov_b64 exec, {sEx}')
    def touch_x(self, vt, dst):
        em = self.em
        em(f'v_lshlrev_b32 {vt}, 7, {vLane}')
        em(f's_lshr_b32 {sT2}, {sW}, 1'); em(f's_lshl_b32 {sT2}, {sT2}, 15'); em(f's_add_u32 {sT2}, {sT2}, {sXst}')
        em(f's_and_b32 {sT}, {sW}, 1'); em(f's_lshl_b32 {sT}, {sT}, 11'); em(f's_add_u32 {sT2}, {sT2}, {sT}')
        em(f's_mov_b64 {sEx}, exec'); em('s_mov_b64 exec, 0xffff')
        em(f'buffer_load_dword {v(dst)}, {vt}, {SWS}, {sT2} offen sc1', tag='touch')
        em(f'v_lshlrev_b32 {vt}, 17, {vLane}')
        em(f's_lshl_b32 {sT2}, {sJ}, 2'); em(f's_add_u32 {sT2}, {sT2}, {sW}'); em(f's_lshl_b32 {sT2}, {sT2}, 7'); em(f's_add_u32 {sT2}, {sT2}, {sG8K}')
        em('s_mov_b64 exec, 3')
        em(f'buffer_load_dword {v(dst+1)}, {vt}, {SWS}, {sT2} offen sc1', tag='touch')
        em(f's_mov_b64 exec, {sEx}')
    def touch_h(self, vt, dst):
        em = self.em
        em(f'v_lshlrev_b32 {vt}, 7, {vLane}')
        em(f's_mov_b64 {sEx}, exec'); em('s_mov_b32 exec_hi, 0xffff')
        em(f'buffer_load_dword {dst}, {vt}, {SWS}, {sHks} offen sc1', tag='touch')
        em(f's_mov_b64 exec, {sEx}')

    def colsum_items(self, quads, acc, tmp, own, ones, first):
        items = []
        rds = [self.tr(tmp + 4 * (n % 2), q, 0, own) for n, q in enumerate(quads)]
        items += rds[0]
        for n in range(len(quads)):
            if n + 1 < len(quads): items += rds[n + 1]
            items.append(f'{MF} {acc}, {ones}, {v(tmp + 4*(n%2), 4)}, ' + ('0' if first and n == 0 else acc))
        return items
    def colsum_exchange(self, srcs, keys, lds, tmp):
        em = self.em
        ad = v(tmp); R = tmp + 2
        em(f'v_and_b32 {ad}, 31, {vLane}'); em(f'v_lshlrev_b32 {ad}, 4, {ad}'); em(f'v_add_u32 {ad}, {lds:#x}, {ad}')
        em(f's_lshl_b32 {sT}, {sW}, 2'); em(f'v_add_u32 {v(tmp+1)}, {sT}, {ad}')
        for p, s in enumerate(srcs): em(f'ds_write_b32 {v(tmp+1)}, {s} offset:{p*512}')
        self.barrier()
        for p in range(3): em(f'ds_read_b128 {v(R+4*p,4)}, {ad} offset:{p*512}')
        for p, k in enumerate(keys):
            r = R + 4 * p
            em(f'v_add_f32 {v(r)}, {v(r)}, {v(r+1)}'); em(f'v_add_f32 {v(r+2)}, {v(r+2)}, {v(r+3)}'); em(f'v_add_f32 {v(r)}, {v(r)}, {v(r+2)}')
            em(f'v_cvt_pk_bf16_f32 {v(r+1)}, {v(r)}, {v(r)}'); em(f'v_lshlrev_b32 {v(r+1)}, 16, {v(r+1)}'); em(f'v_sub_f32 {v(r+1)}, {v(r)}, {v(r+1)}')
            em(f'v_cvt_pk_bf16_f32 {CS[k]}, {v(r)}, {v(r+1)}')

    def stage_dma(self, srd, m, qa, qb, tag):
        self.dma(srd, vDs, sC128, m * 65536, qa, tag, nt=self.o.nt_stage); self.dma(srd, vDs, sC128, m * 65536 + 8192, qb, tag, nt=self.o.nt_stage)
    def stage_read_items(self, abase, m, qa, qb):
        items = []
        for h, q in enumerate((qa, qb)):
            addr = q * 4096; win = addr >> 16; off = addr & 0xFFFF
            def f(win=win, off=off, h=h):
                if win == 0: b0, b1 = vS0, vS1
                else:
                    if self.swin != win:
                        self.em(f'v_add_u32 {vS0w}, {win*65536:#x}, {vS0}'); self.em(f'v_add_u32 {vS1w}, {win*65536:#x}, {vS1}'); self.swin = win
                    b0, b1 = vS0w, vS1w
                self.em(f'ds_read_b64_tr_b16 {a(abase + m*8 + 2*h, 2)}, {b0} offset:{off}')
                self.em(f'ds_read_b64_tr_b16 {a(abase + m*8 + 4 + 2*h, 2)}, {b1} offset:{off}')
            items.append(f)
        return items

    def aux_items(self, S, Q, t0, need_r=True):
        it = [f'v_mul_f32 {S}, {sInv}, {S}']
        if need_r:
            it += [f'v_mul_f32 {Q}, {sInv}, {Q}', f'v_fma_f32 {Q}, -{S}, {S}, {Q}', f'v_max_f32 {Q}, 0, {Q}', f'v_add_f32 {Q}, {sEps}, {Q}',
                   f'v_rsq_f32 {Q}, {Q}', f'v_mul_f32 {vRl}, {sLog2e}, {Q}']
        it += [f'v_cmp_eq_u32 vcc, 0, {vHi}', f'v_cndmask_b32_e64 {S}, 0, -{S}, vcc',
               f'v_cvt_pk_bf16_f32 {v(AUX)}, {S}, {S}', f'v_lshlrev_b32 {t0}, 16, {v(AUX)}', f'v_sub_f32 {S}, {S}, {t0}', f'v_cvt_pk_bf16_f32 {v(AUX+1)}, {S}, {S}']
        if need_r:
            it += [f'v_cndmask_b32 {Q}, 0, {vRl}, vcc', f'v_cvt_pk_bf16_f32 {t0}, {Q}, {Q}', f'v_lshlrev_b32 {t0}, 16, {t0}', f'v_sub_f32 {t0}, {Q}, {t0}',
                   f'v_cvt_pk_bf16_f32 {v(AUX+2)}, {Q}, {t0}']
        else: it.append(f'v_mov_b32 {v(AUX+2)}, 0')
        it += [f'v_mov_b32 {v(AUX+3)}, 0', f'v_mov_b32 {v(CB+2)}, 0', f'v_mov_b32 {v(CB+3)}, 0', f'v_mov_b32 {v(CB+4)}, 0x3f803f80', f'v_mov_b32 {v(CB+5)}, 0x3f803f80']
        return it
    def corr_items(self, key, acc, swapAB):
        c = v(acc, 16)
        return [f'v_mov_b32 {v(CB)}, {CS[key]}', f'v_mov_b32 {v(CB+1)}, {CS[key]}',
                f'{MF} {c}, {v(AUX,4)}, {v(CB,4)}, {c}' if swapAB else f'{MF} {c}, {v(CB,4)}, {v(AUX,4)}, {c}']
    def stats_T_loads(self, i):
        t = MR + 16
        self.wsload(v(t, 4), vStT, sG8K, i * 16 * 8192, tag='stat'); self.wsload(v(t + 4, 4), vStT, sG8K, i * 16 * 8192, tag='stat', off=512)
    def stats_T_items(self, need_r):
        t = MR + 16
        it = [f'v_add_f32 {v(t)}, {v(t)}, {v(t+1)}', f'v_add_f32 {v(t+2)}, {v(t+2)}, {v(t+3)}', f'v_add_f32 {v(t+4)}, {v(t+4)}, {v(t+5)}',
              f'v_add_f32 {v(t+6)}, {v(t+6)}, {v(t+7)}', f'v_add_f32 {v(t)}, {v(t)}, {v(t+2)}', f'v_add_f32 {v(t+4)}, {v(t+4)}, {v(t+6)}',
              f'v_add_f32 {v(t)}, {v(t)}, {v(t+4)}', f'v_mov_b32 {v(t+1)}, {v(t)}', f'v_permlane32_swap_b32 {v(t)}, {v(t+1)}']
        return it + self.aux_items(v(t), v(t + 1), v(t + 2), need_r)

    def pass2(self, steps, planes, accs, swapAB, side, fill, loader=None, first=True, extra=None):
        em = self.em
        steps = list(steps)
        def rd(i, p):
            ks = steps[i]
            for t in self.tr(BB + (i % 2) * 8 + 4 * p, planes[p][ks >> 2], ks & 3): em(t)
        for i in range(2):
            for p in range(2): rd(i, p)
        for i, ks in enumerate(steps):
            for p in range(2):
                w = v(BB + (i % 2) * 8 + 4 * p, 4); x = Afrag(ks); c = v(accs[p], 16)
                src = '0' if (first and i == 0) else c
                em(f'{MF} {c}, {x}, {w}, {src}' if swapAB else f'{MF} {c}, {w}, {x}, {src}')
                if i + 2 < len(steps): rd(i + 2, p)
                if p == 0 and loader: loader(i)
                side.run(fill(i) if callable(fill) else fill)
            if extra: extra(ks)
    def pass1(self, plane, acc, side, fill):
        em = self.em
        NB = 4
        def rd(ks):
            for t in self.tr(BB + (ks % NB) * 4, plane[ks >> 2], ks & 3): em(t)
        for ks in range(NB - 1): rd(ks)
        for ks in range(32):
            w = v(BB + (ks % NB) * 4, 4); c = v(acc, 16)
            if ks + NB - 1 < 32: rd(ks + NB - 1)
            em(f'{MF} {c}, {w}, {Afrag(ks)}, ' + ('0' if ks == 0 else c))
            side.run(fill(ks) if callable(fill) else fill)
    def a_loader(self, pre, sti):
        def ld(ks):
            if ks & 3 == 0:
                self.rot(ks >> 2, 4096, sGX); self.em(f's_mov_b32 s99, {sR}')
            self.em(f'buffer_load_dwordx4 {Afrag(ks)}, {vAT}, {SWS}, s99 offen offset:{(ks & 3) * 1024} sc1', tag='A')
        for ks in range(pre): ld(ks)
        def step(i):
            if i == 0: self.stats_T_loads(sti)
            if i + pre < 32: ld(i + pre)
        return step

    def phi_items(self, acc, rl, lanes_t, E):
        out = []
        for g in range(2):
            b = acc + 8 * g
            for k in range(4):
                x = v(b + 2 * k, 2)
                if lanes_t:
                    out += [f'v_fma_f32 {v(b+2*k)}, {v(b+2*k)}, {rl}, {sDelta}', f'v_fma_f32 {v(b+2*k+1)}, {v(b+2*k+1)}, {rl}, {sDelta}']
                else: out.append(f'v_pk_fma_f32 {x}, {x}, {v(rl + 8*g + 2*k, 2)}, {sDelta2}')
            for k in range(8): out.append(f'v_exp_f32_e64 {v(E+k)}, {v(b+k)} clamp')
            for k in range(8): out.append(f'v_max_f32 {v(b+k)}, {sDelta}, {v(b+k)}')
            for k in range(4): out.append(f'v_pk_fma_f32 {v(b+2*k,2)}, {v(b+2*k,2)}, {sLn22}, {v(E+2*k,2)}')
            for k in range(4): out.append(f'v_cvt_pk_bf16_f32 {v(acc+4*g+k)}, {v(b+2*k)}, {v(b+2*k+1)}')
        return out

    def p1_start(self):
        em = self.em; o = self.o
        self.lin = True
        X = MR; OWN = [v(MR + 4), v(MR + 5), v(MR + 6)]; ONE = v(MR + 8, 4); CT = MR + 12; H = v(MR + 7)
        aS, aQ, aCk, aCv, aCq = a(0, 16), a(16, 16), a(32, 16), a(48, 16), a(64, 16)
        em(f'v_and_b32 v27, 7, {vLane}'); em('v_lshlrev_b32 v27, 7, v27')
        em(f'v_bfe_u32 v28, {vLane}, 3, 2'); em('v_lshl_add_u32 v27, v28, 12, v27')
        em(f's_add_u32 {sT}, {sWl}, 32768'); em(f'v_add_u32 v27, {sT}, v27')
        em(f'v_bfe_u32 v28, {vLane}, 1, 3'); em(f'v_xor_b32 v28, v28, {vHi}')
        for kk in range(4):
            em(f'v_xor_b32 v29, {2*kk}, v28'); em(f'v_lshl_add_u32 {v(X+kk)}, v29, 4, v27')
        for i in range(3): em(f'v_add_u32 {OWN[i]}, {sWl}, {vTr[i]}')
        for i in range(4): em(f'v_mov_b32 {v(MR+8+i)}, 0x3f803f80')
        def xreads(half):
            for ks in range(16 * half, 16 * half + 16):
                em(f'ds_read_b128 {Afrag(ks)}, {v(X + (ks & 3))} offset:{((ks >> 2) & 3) * 16384}')
        def stat(ks):
            em(f'{MF} {aS}, {ONE}, {Afrag(ks)}, ' + ('0' if ks == 0 else aS))
            em(f'{MF} {aQ}, {Afrag(ks)}, {Afrag(ks)}, ' + ('0' if ks == 0 else aQ))
        em.wait_vm_tag('xlo'); self.ts('xlo')
        xreads(0); em.wait_lg(0)
        for m in range(4, 8): self.qkv_dma('kv', m, 'kvhi')
        for kk in range(4): em(f'v_add_u32 {v(X+kk)}, 0x10000, {v(X+kk)}')
        for ks in range(16):
            stat(ks)
            if ks % 2 == 0: self.qkv_dma('q', ks // 2, 'q')
        self.touch_q('v27', MR + 28)
        em.wait_vm_tag('kvlo'); self.barrier(); self.ts('kvlo')
        side = Side(em)
        side.add(*self.colsum_items(self.pl['k'][:4], aCk, CT, OWN, ONE, True)); side.add(*self.colsum_items(self.pl['v'][:4], aCv, CT, OWN, ONE, True))
        self.pass2(range(16), [self.pl['k'], self.pl['v']], [ACC, ACC + 16], True, side, 1)
        side.flush()
        em.wait_vm_tag('xhi'); self.ts('xhi')
        xreads(1); em.wait_lg(0)
        em(f'v_lshrrev_b32 v27, 3, {vLane}'); em(f's_lshl_b32 {sT}, {sW}, 3'); em(f'v_add_u32 v27, {sT}, v27'); em('v_lshlrev_b32 v27, 10, v27')
        em(f'v_and_b32 v28, 7, {vLane}'); em('v_lshl_add_u32 v27, v28, 4, v27')
        em(f'buffer_load_dwordx4 {a(RES,4)}, v27, {SX}, {sOutRow} offen', tag='res')
        em(f's_add_u32 {sT}, {sOutRow}, 32768'); em(f'buffer_load_dwordx4 {a(RES+4,4)}, v27, {SX}, {sT} offen', tag='res')
        em(f's_add_u32 {sT2}, {sG128}, {WS_HELLO}')
        em(f'buffer_load_dword {H}, {vPoll}, {SWS}, {sT2} offen sc1', tag='hello')
        self.stq = list(range(24, 40))
        for ks in range(16, 32):
            stat(ks)
            if ks % 4 == 0: self.stage_dma(SWO, (ks - 16) // 4, self.stq[(ks - 16) // 2], self.stq[(ks - 16) // 2 + 1], 'wo')
        em.wait_vm_tag('kvhi'); self.barrier(); self.ts('kvhi')
        side.add(*self.colsum_items(self.pl['k'][4:], aCk, CT, OWN, ONE, False)); side.add(*self.colsum_items(self.pl['v'][4:], aCv, CT, OWN, ONE, False))
        S, Q = v(MR + 20), v(MR + 21)
        side.add(f'v_accvgpr_read_b32 {S}, a0', f'v_mov_b32 {Q}, 0')
        for r in range(16):
            t = 8 * (r >> 2) + (r & 3)
            side.add(f'v_accvgpr_read_b32 {v(MR+22)}, a{16+r}')
            side.add(lambda t=t: (em(f's_mov_b32 s86, {1 << t:#x}'), em(f's_mov_b32 s87, {1 << (t + 4):#x}'), em(f'v_cndmask_b32 {Q}, {Q}, {v(MR+22)}, s[86:87]')))
        side.add(f'v_mov_b32 {v(MR+22)}, {Q}', f'v_permlane32_swap_b32 {Q}, {v(MR+22)}', f'v_add_f32 {Q}, {Q}, {v(MR+22)}')
        side.add(*self.aux_items(S, Q, v(MR + 22)))
        for i in range(4, 8): side.add(lambda i=i: self.stage_dma(SWO, i, self.stq[2 * i], self.stq[2 * i + 1], 'wo'))
        self.pass2(range(16, 32), [self.pl['k'], self.pl['v']], [ACC, ACC + 16], True, side, 3, first=False)
        side.flush()
        self.ts('kvpass')
        em.wait_vm_tag('q')
        self.emit(self.colsum_items(self.pl['q'], aCq, CT, OWN, ONE, True))
        for i, r in enumerate((64, 32, 48)): em(f'v_accvgpr_read_b32 {v(MR+20+i)}, a{r}')
        self.barrier()
        self.colsum_exchange([v(MR + 20), v(MR + 21), v(MR + 22)], ['q', 'k', 'v'], self.pl['k'][0] * 4096, BB)
        L = em.newlabel('Lhp'); D = em.newlabel('Lhd')
        em.wait_vm_tag('hello')
        em.label(L)
        em(f'v_subrev_u32 {v(TMP)}, {sNonce}, {H}'); em(f'v_add_u32 {v(TMP)}, -1, {v(TMP)}')
        em(f'v_cmp_le_u32 vcc, 16, {v(TMP)}')
        em(f's_cbranch_vccz {D}')
        em.cond_begin()
        em(f's_add_u32 {sT2}, {sG128}, {WS_HELLO}')
        em(f'buffer_load_dword {H}, {vPoll}, {SWS}, {sT2} offen sc1'); em.force_wait(vm=0)
        em.cond_end()
        self.spin_tail(L)
        em.label(D)
        em(f'v_cmp_ne_u32 vcc, {sHello}, {H}')
        self.emit(self.corr_items('k', ACC, True)); self.emit(self.corr_items('v', ACC + 16, True))
        em(f'{MF} {v(MR,16)}, {v(AUX,4)}, {v(CB+2,4)}, 0')
        self.ts('decide')

    def p1_rest(self, l):
        em = self.em; o = self.o
        K, V, Q = ACC, ACC + 16, ACC + 32
        RL = MR; E = MR + 16
        sq = self.pl['k'][:4]
        sa = self.pl['v'][0] * 4096
        mw, mr, fac, t16, tg = v(K + 8), v(K + 9), v(K + 10), v(K + 11), v(K + 12)
        u, x1, x2 = v(K + 13), v(K + 14), v(K + 15)
        self.emit(self.phi_items(K, RL, False, E))
        for r in range(8): em(f'v_pk_mul_f32 {v(V+2*r,2)}, {v(V+2*r,2)}, {v(RL+2*r,2)}')
        for r in range(8): em(f'v_cvt_pk_bf16_f32 {v(V+r)}, {v(V+2*r)}, {v(V+2*r+1)}')
        for r in range(8): em(f'v_mov_b32 {v(V+8+r)}, {v(CB+4)}')
        for r in range(8): em(f'v_permlane16_swap_b32 {v(V+r)}, {v(V+8+r)}')
        D0, D1 = MR, MR + 16
        em(f'{MF} {v(D0,16)}, {v(K,4)}, {v(V,4)}, 0'); em(f'{MF} {v(D1,16)}, {v(K,4)}, {v(V+8,4)}, 0')
        em(f'{MF} {v(D0,16)}, {v(K+4,4)}, {v(V+4,4)}, {v(D0,16)}'); em(f'{MF} {v(D1,16)}, {v(K+4,4)}, {v(V+12,4)}, {v(D1,16)}')
        self.emit([f's_lshl_b32 {sT2}, {sW}, 12', f's_add_u32 {sT2}, {sT2}, {sa}', f'v_add_u32 {mw}, {sT2}, {vL16}',
                   f'v_cmp_le_u32 vcc, 68, {vTid}', f'v_cndmask_b32 {x1}, 0, 1, vcc',
                   f'v_mul_u32_u24 {x2}, 68, {x1}', f'v_sub_u32 {u}, {vTid}, {x2}',
                   f'v_lshlrev_b32 {mr}, 11, {x1}',
                   f'v_and_b32 {x1}, 1, {u}', f'v_lshl_add_u32 {mr}, {x1}, 10, {mr}',
                   f'v_bfe_u32 {x1}, {u}, 1, 4', f'v_bfe_u32 {x2}, {u}, 5, 1', f'v_lshl_add_u32 {x1}, {x2}, 5, {x1}',
                   f'v_bfe_u32 {x2}, {u}, 1, 1', f'v_lshlrev_b32 {x2}, 5, {x2}', f'v_add_u32 {x2}, 16, {x2}',
                   f'v_cmp_le_u32 vcc, 64, {u}', f'v_cndmask_b32 {x1}, {x1}, {x2}, vcc',
                   f'v_mov_b32 {x2}, {sLn2}', f'v_cndmask_b32 {fac}, {x2}, 1.0, vcc',
                   f'v_lshl_add_u32 {mr}, {x1}, 4, {mr}', f'v_add_u32 {mr}, {sa:#x}, {mr}',
                   f'v_lshlrev_b32 {t16}, 4, {vTid}', f's_and_b32 {sT2}, {sNonce}, 0xff', f'v_mov_b32 {tg}, {sT2}'])
        for i, r in enumerate((D0, D0 + 4, D1 + 8, D1 + 12)): em(f'ds_write_b128 {mw}, {v(r,4)} offset:{i*1024}')
        em.wait_vm_tag('q')
        self.barrier()
        self.ts('kvbar')
        M = MR
        def msg_out():
            em(f'v_cmp_gt_u32 vcc, 136, {vTid}'); em(f's_and_saveexec_b64 {sEx}, vcc')
            for i in range(4): em(f'ds_read_b128 {v(M+4*i,4)}, {mr} offset:{i*4096}')
            for r in (0, 2): em(f'v_pk_add_f32 {v(M+r,2)}, {v(M+r,2)}, {v(M+4+r,2)}')
            for r in (0, 2): em(f'v_pk_add_f32 {v(M+8+r,2)}, {v(M+8+r,2)}, {v(M+12+r,2)}')
            for r in (0, 2): em(f'v_pk_add_f32 {v(M+r,2)}, {v(M+r,2)}, {v(M+8+r,2)}')
            for r in range(4): em(f'v_and_or_b32 {v(M+r)}, {v(M+r)}, {sMaskInv}, {tg}')
            em(f's_mul_i32 {sT2}, {sG}, {MSG_B}'); em(f's_add_u32 {sT2}, {sT2}, {sJmsg}')
            self.wsstore(v(M, 4), t16, sT2, l * 256 * MSG_B, sc=' sc1', tag='msg')
            em(f's_mov_b64 exec, {sEx}')
        self.only_wave(3, msg_out, invert=True)
        self.ts('msg')
        side = Side(em)
        self.p1_bg(l, side)
        self.pass1(self.pl['q'], Q, side, o.fill_p1)
        self.emit(self.corr_items('q', Q, False))
        side.flush()
        if self.lin:
            self.lin = False
            em(f'v_lshlrev_b32 {v(TMP)}, 8, {vHi}')
            for i in range(3): em(f'v_sub_u32 {vTr[i]}, {vTr[i]}, {v(TMP)}')
        self.ts('qpass')
        self.emit(self.phi_items(Q, vRl, True, E))
        self.wsstore(v(Q, 4), vAT, sQst, 0); self.wsstore(v(Q + 4, 4), vAT, sQst, 0, off=1024)
        self.p1_gap(l)
        self.barrier()
        self.ts('qst')
        def gather():
            em(f'v_cmp_gt_u32 vcc, 136, {vTid}'); em(f's_and_saveexec_b64 {sEx}, vcc')
            G = AF; A0, A1 = v(TMP), v(TMP + 1)
            L = em.newlabel('Lg'); D = em.newlabel('Lgd')
            em.label(L)
            for g in range(16): self.wsload(v(G + 4 * g, 4), t16, sJmsg, l * 256 * MSG_B + g * MSG_B)
            em(f'v_xor_b32 {A0}, {v(G)}, {tg}'); em(f'v_xor_b32 {A1}, {v(G+3)}, {tg}')
            for g in range(1, 16):
                em(f'v_bitop3_b32 {A0}, {v(G+4*g)}, {tg}, {A0} bitop3:0xbe'); em(f'v_bitop3_b32 {A1}, {v(G+4*g+3)}, {tg}, {A1} bitop3:0xbe')
            em(f'v_or_b32 {A0}, {A0}, {A1}'); em(f'v_and_b32 {A0}, 0xff, {A0}'); em(f'v_cmp_ne_u32 vcc, 0, {A0}')
            em(f's_cbranch_vccz {D}')
            self.spin_tail(L)
            em.label(D)
            self.ts('kvpoll')
            for st in (1, 2, 4, 8):
                for g in range(0, 16, 2 * st):
                    for r in (0, 2): em(f'v_pk_add_f32 {v(G+4*g+r,2)}, {v(G+4*g+r,2)}, {v(G+4*(g+st)+r,2)}')
            for r in range(4): em(f'v_mul_f32 {v(G+r)}, {v(G+r)}, {fac}')
            em(f'v_cvt_pk_bf16_f32 {v(G)}, {v(G)}, {v(G+1)}'); em(f'v_cvt_pk_bf16_f32 {v(G+1)}, {v(G+2)}, {v(G+3)}')
            em(f'v_lshrrev_b32 {t16}, 1, {t16}')
            em(f's_mul_i32 {sT2}, {sJ}, 1088'); em(f's_add_u32 {sT2}, {sT2}, {sGKT}')
            self.wsstore(v(G, 2), t16, sT2, 0, width=2)
            em(f's_mov_b64 exec, {sEx}')
            em.force_wait(vm=0)
        self.setup_local()
        self.only_wave(3, gather, invert=True)
        self.group_sync(4 * l + 0, mid=lambda: self.only_wave(3, lambda: self.p1_loader(l)), bar=False)

    def w1dma(self, p, m, tag, slot=None, voff=vD1):
        base = sW1c2 if p == 2 else sW1c0
        if p != 1 and not slot: self.rot(m, 64 * 2752, base)
        imm = (64 if p == 1 else 0) + (0 if slot is None else slot * 16 * 2752)
        self.dma(SW1, voff, sR, imm, self.w1pl[p][m], tag, nt=self.o.nt_w1, slot=slot)

    def p1_bg(self, l, side):
        em = self.em; o = self.o
        self.w1pl = [list(self.pl['k']), self.pl['v'][4:] + self.pl['q'][:4], self.pl['v'][:4] + self.pl['q'][4:]]
        if l == 0:
            side.add(lambda: self.touch_x(v(TMP), TMP + 1))
        assert o.w1_early <= 4
        for m in range(o.w1_early):
            side.add(lambda m=m: (self.w1dma(0, m, 'w1a'), self.w1dma(1, m, 'w1a')))
        if l == 0:
            side.add(lambda: em.wait_vm_tag('wo'))
            for i in range(8): side.add(*self.stage_read_items(WOA, i, self.stq[2 * i], self.stq[2 * i + 1]))

    def p1_gap(self, l):
        if l == 0: self.res_convert(to_m1=True)

    def p1_loader(self, l):
        em = self.em; o = self.o
        vo = v(TMP)
        em(f'v_subrev_u32 {vo}, {3*16*2752}, {vD1}')
        n = 0
        for m in range(o.w1_early, 8):
            for s in range(4):
                for p in range(2):
                    self.w1dma(p, m, 'solo', slot=s, voff=vo); n += 1

    def res_convert(self, to_m1):
        em = self.em
        t0, t1, t2 = v(TMP), v(TMP + 1), v(TMP + 2)
        em(f's_add_u32 {sT2}, {sWl}, {S_ADDR}')
        em(f'v_add_u32 {t0}, {sT2}, {vL16}')
        em(f'v_and_b32 {t1}, 7, {vLane}'); em(f'v_lshlrev_b32 {t1}, 7, {t1}'); em(f'v_lshrrev_b32 {t2}, 4, {vLane}'); em(f'v_lshl_add_u32 {t1}, {t2}, 5, {t1}')
        em(f'v_bfe_u32 {t2}, {vLane}, 3, 1'); em(f'v_lshl_add_u32 {t1}, {t2}, 3, {t1}'); em(f'v_add_u32 {t1}, {sT2}, {t1}')
        if to_m1:
            for h in range(2): em(f'ds_write_b128 {t0}, {a(RES+4*h,4)} offset:{h*4096}')
            em.wait_lg(0)
            for h in range(2):
                em(f'ds_read_b64 {a(RES+4*h,2)}, {t1} offset:{h*4096}'); em(f'ds_read_b64 {a(RES+4*h+2,2)}, {t1} offset:{h*4096+16}')
        else:
            for h in range(2):
                em(f'ds_write_b64 {t1}, {a(RES+4*h,2)} offset:{h*4096}'); em(f'ds_write_b64 {t1}, {a(RES+4*h+2,2)} offset:{h*4096+16}')
            em.wait_lg(0)
            for h in range(2): em(f'ds_read_b128 {a(RES+4*h,4)}, {t0} offset:{h*4096}')
        em.wait_lg(0)

    def setup_local(self, final=False):
        em = self.em
        t0, t1, t2 = v(TMP + 1), v(TMP + 2), v(TMP + 3)
        em(f'v_and_b32 {t0}, 7, {vLane}'); em(f's_lshl_b32 {sT2}, {sW}, 3'); em(f'v_add_u32 {t0}, {sT2}, {t0}')
        em(f'v_lshrrev_b32 {t1}, 3, {vLane}'); em(f'v_lshlrev_b32 {t1}, 9, {t1}'); em(f'v_lshl_add_u32 {v(vStM)}, {t0}, 4, {t1}')
        em(f's_lshl_b32 {sT2}, {sW}, 13'); em(f's_add_u32 {sT2}, {sT2}, {S_ADDR}')
        if not final:
            em(f'v_lshlrev_b32 {t1}, 7, {vHi}'); em(f'v_xor_b32 {t1}, {t1}, {vL16}'); em(f'v_add_u32 {v(vRedW)}, {sT2}, {t1}')
            em(f'v_bfe_u32 {t1}, {vLane}, 3, 1'); em(f'v_lshrrev_b32 {t2}, 4, {vLane}')
            em(f'v_lshlrev_b32 {v(vOut)}, 4, {t0}'); em(f'v_lshl_add_u32 {v(vStSt)}, {t2}, 10, {v(vOut)}')
            em(f'v_lshl_add_u32 {v(vOut)}, {t1}, 9, {v(vOut)}'); em(f'v_lshl_add_u32 {v(vOut)}, {t2}, 10, {v(vOut)}')
            em(f'v_lshlrev_b32 {v(vRedR)}, 3, {t1}'); em(f'v_xor_b32 {v(vRedR)}, {v(vRedR)}, {t0}'); em(f'v_lshlrev_b32 {v(vRedR)}, 4, {v(vRedR)}')
            em(f'v_lshl_add_u32 {v(vRedR)}, {t1}, 9, {v(vRedR)}'); em(f'v_lshl_add_u32 {v(vRedR)}, {t2}, 11, {v(vRedR)}'); em(f'v_add_u32 {v(vRedR)}, {S_ADDR:#x}, {v(vRedR)}')
            em(f'v_and_b32 {t0}, 15, {vLane}'); em(f'v_lshlrev_b32 {t0}, 4, {t0}'); em(f'v_lshl_add_u32 {t0}, {vHi}, 8, {t0}')
            em(f'v_lshlrev_b32 {t1}, 4, {vHi}'); em(f'v_add_u32 {t1}, 512, {t1}'); em(f'v_and_b32 {t2}, 16, {vLane}'); em(f'v_cmp_ne_u32 vcc, 0, {t2}')
            em(f'v_cndmask_b32 {t0}, {t0}, {t1}, vcc'); em(f's_mul_i32 {sT2}, {sW}, 544'); em(f'v_add_u32 {v(vKT)}, {sT2}, {t0}')
        else:
            for i in range(4):
                em(f'v_xor_b32 {t0}, {64*i}, {vL16}'); em(f'v_add_u32 {v(BB+i)}, {sT2}, {t0}')
            em(f'v_lshrrev_b32 {t0}, 3, {vLane}'); em(f'v_lshlrev_b32 {v(vKT)}, 2, {t0}')
            em(f's_lshl_b32 {sT2}, {sW}, 3'); em(f'v_add_u32 {t0}, {sT2}, {t0}')
            em(f'v_and_b32 {t1}, 7, {vLane}')
            em(f'v_lshlrev_b32 {v(vOut)}, 10, {t0}'); em(f'v_lshl_add_u32 {v(vOut)}, {t1}, 4, {v(vOut)}')
            em(f'v_and_b32 {t2}, 3, {vLane}'); em(f'v_lshlrev_b32 {t2}, 2, {t2}'); em(f'v_xor_b32 {t2}, {t2}, {t0}'); em(f'v_lshlrev_b32 {t2}, 4, {t2}')
            em(f'v_lshl_add_u32 {v(vRedR)}, {t1}, 10, {t2}'); em(f'v_add_u32 {v(vRedR)}, {S_ADDR:#x}, {v(vRedR)}')

    def unpack_items(self, half, U):
        it = [f'v_accvgpr_read_b32 {v(U+2*r+1)}, {a(RES+4*half+r)}' for r in range(4)]
        for r in range(4):
            it += [f'v_lshlrev_b32 {v(U+2*r)}, 16, {v(U+2*r+1)}', f'v_and_b32 {v(U+2*r+1)}, 0xffff0000, {v(U+2*r+1)}']
        return it
    def reduce_items(self, half, acc0, acc1, R, U, rs, sti, final, pk, unpack):
        em = self.em
        it = []
        for c in range(8):
            src = v((acc0 if c < 4 else acc1) + 4 * (c & 3), 4)
            ad = v(BB + (c & 3)) if final else v(vRedW)
            it.append(f'ds_write_b128 {ad}, {src} offset:{c*1024}')
        it.append(self.barrier)
        o2 = 512 if final else 1024
        for w in range(4):
            it.append(f'ds_read_b128 {v(R+8*w,4)}, {v(vRedR)} offset:{w*8192}'); it.append(f'ds_read_b128 {v(R+8*w+4,4)}, {v(vRedR)} offset:{w*8192+o2}')
        if unpack: it += self.unpack_items(half, U)
        def add(d, s):
            if pk: return [f'v_pk_add_f32 {v(d+r,2)}, {v(d+r,2)}, {v(s+r,2)}' for r in range(0, 8, 2)]
            return [f'v_add_f32 {v(d+r)}, {v(d+r)}, {v(s+r)}' for r in range(8)]
        if rs is None: it += add(R, U)
        it += add(R, R + 8) + add(R + 16, R + 24) + add(R, R + 16)
        if rs is not None: it += [f'v_fma_f32 {v(R+r)}, {v(R+r)}, {rs}, {v(U+r)}' for r in range(8)]
        P = R + 8
        for r in range(4): it.append(f'v_cvt_pk_bf16_f32 {v(P+r)}, {v(R+2*r)}, {v(R+2*r+1)}')
        if final:
            def st():
                em(f's_add_u32 {sT}, {sOutRow}, {half*32768}')
                em(f'buffer_store_dwordx4 {v(P,4)}, {v(vOut)}, {SOUT}, {sT} offen' + self.o.outsc, tag='st')
            it.append(st)
            return it
        it.append(lambda: self.wsstore(v(P, 4), v(vOut), sXst, half * 32768))
        S, Q, T = R + 16, R + 18, v(R + 20)
        if pk:
            it += [f'v_pk_add_f32 {v(S,2)}, {v(R,2)}, {v(R+2,2)}', f'v_pk_mul_f32 {v(Q,2)}, {v(R,2)}, {v(R,2)}']
            it += [f'v_pk_fma_f32 {v(Q,2)}, {v(R+2,2)}, {v(R+2,2)}, {v(Q,2)}']
            for r in (4, 6): it += [f'v_pk_add_f32 {v(S,2)}, {v(S,2)}, {v(R+r,2)}', f'v_pk_fma_f32 {v(Q,2)}, {v(R+r,2)}, {v(R+r,2)}, {v(Q,2)}']
            it += [f'v_add_f32 {v(S)}, {v(S)}, {v(S+1)}', f'v_add_f32 {v(Q)}, {v(Q)}, {v(Q+1)}']
        else:
            it += [f'v_add_f32 {v(S)}, {v(R)}, {v(R+1)}', f'v_mul_f32 {v(Q)}, {v(R)}, {v(R)}', f'v_fmac_f32 {v(Q)}, {v(R+1)}, {v(R+1)}']
            for r in range(2, 8): it += [f'v_add_f32 {v(S)}, {v(S)}, {v(R+r)}', f'v_fmac_f32 {v(Q)}, {v(R+r)}, {v(R+r)}']
        S, Q = v(S), v(Q)
        it += [f'v_accvgpr_write_b32 {a(RES+4*half)}, {v(P)}', f'v_accvgpr_write_b32 {a(RES+4*half+1)}, {v(P+1)}',
               f'v_add_f32_dpp {S}, {S}, {S} row_ror:8 {DPPM}', f'v_add_f32_dpp {Q}, {Q}, {Q} row_ror:8 {DPPM}',
               f'v_accvgpr_write_b32 {a(RES+4*half+2)}, {v(P+2)}', f'v_accvgpr_write_b32 {a(RES+4*half+3)}, {v(P+3)}',
               f'v_permlane16_swap_b32 {S}, {Q}', f'v_add_f32 {S}, {S}, {Q}', f'v_mov_b32 {T}, {S}', f'v_permlane32_swap_b32 {S}, {T}', f'v_add_f32 {S}, {S}, {T}']
        def st2():
            em(f's_mov_b64 {sEx}, exec'); em(f's_mov_b64 exec, {sMaskSt}')
            self.wsstore(S, v(vStSt), sStst, sti * 16 * 8192 + half * 2048, width=1)
            em(f's_mov_b64 exec, {sEx}')
        it.append(st2)
        return it

    def p2(self, l):
        em = self.em; o = self.o
        KT, QF = AF, AF + 32
        accs = [[ACC, ACC + 16], [ACC + 32, 232]]
        DB = [MR, MR + 16, BB]
        OB = [AUX, CB]; RC = [v(TMP), v(TMP + 1)]
        lds = []
        for n in range(16):
            h, i = divmod(n, 8)
            if n < 8: lds.append(lambda i=i: self.wsload(v(KT + 4 * i, 4), v(vKT), sGKT, i * 2176, tag='A'))
            lds.append(lambda n=n, h=h, i=i: self.wsload(v(QF + 4 * n, 4), vAW, sQR, h * 32768 + i * 4096, tag='A'))
        for f in lds[:o.pre2]: f()
        lds = lds[o.pre2:]
        side = Side(em)
        def attn(n): em(f'{MF} {v(DB[n%3],16)}, {v(KT+4*(n%8),4)}, {v(QF+4*n,4)}, 0')
        def post(n):
            D = DB[n % 3]; O = OB[n % 2]; rc = RC[n % 2]
            it = [f'v_add_f32 {rc}, {s1em6}, {v(D+8)}', f'v_rcp_f32 {rc}, {rc}']
            it += [f'v_mul_f32 {v(D+r)}, {v(D+r)}, {rc}' for r in range(8)]
            it += [f'v_cvt_pk_bf16_f32 {v(O+r)}, {v(D+2*r)}, {v(D+2*r+1)}' for r in range(4)]
            return it
        attn(0); attn(1)
        if lds: lds.pop(0)()
        self.emit(post(0))
        for n in range(16):
            h, i = divmod(n, 8)
            nxt = post(n + 1) if n + 1 < 16 else []
            O = v(OB[n % 2], 4)
            if n + 2 < 16: attn(n + 2)
            if lds: lds.pop(0)()
            for t in nxt[:5]: em(t)
            for nt in range(2):
                c = v(accs[h][nt], 16)
                em(f'{MF} {c}, {a(WOA + i*8 + nt*4, 4)}, {O}, ' + ('0' if i == 0 else c))
                if nt == 0 and lds: lds.pop(0)()
                for t in (nxt[5:10] if nt == 0 else nxt[10:]): em(t)
                if not lds: side.run(o.fill_p2)
            if n == 5: self.p2_bg(l, side)
            if n == 8:
                side.add(*self.reduce_items(0, accs[0][0], accs[0][1], QF, ACC, None, 0, False, False, True))
                side.add(*self.unpack_items(1, ACC + 16)); side.add(self.barrier)
        self.ts('p2mf')
        side.flush()
        self.ts('p2main')
        self.emit(self.reduce_items(1, accs[1][0], accs[1][1], QF + 32, ACC + 16, None, 0, False, True, False))
        self.p2_tail(l)

    def p2_bg(self, l, side):
        if l == 0:
            side.add(lambda: self.touch_h(v(TMP + 2), v(TMP + 3)))
        for m in range(8): side.add(lambda m=m: self.w1dma(2, m, 'w1c'))
        if l == 0:
            self.w2next = 0; self.w2rd = 0; self.pendq = []
            side.add(*self.w2_round(list(range(24, 32))))

    def p2_tail(self, l):
        em = self.em
        if l == 0:
            def mid():
                self.barrier()
                self.emit(self.w2_round(list(range(24, 32)) + list(range(32, 38))[:self.o.w2_g1]))
                em.wait_vm_tag(('w1a', 'w1c'))
                OWN = [v(MR + 4), v(MR + 5), v(MR + 6)]; ONE = v(MR + 8, 4)
                for i in range(3): em(f'v_add_u32 {OWN[i]}, {sWl}, {vTr[i]}')
                for i in range(4): em(f'v_mov_b32 {v(MR+8+i)}, 0x3f803f80')
                for p in range(3): self.emit(self.colsum_items(self.w1pl[p], v(ACC + 16 * p, 16), MR + 12, OWN, ONE, True))
                self.colsum_exchange([v(ACC), v(ACC + 16), v(ACC + 32)], [0, 1, 2], 39 * 4096, BB)
            self.group_sync(1, mid=mid, bar=False)
        else:
            def mid():
                em.wait_vm_tag(('w1a', 'w1c'))
                self.barrier()
                self.res_convert(to_m1=False)
            self.group_sync(5, mid=mid, bar=False)

    def w2_round(self, quads):
        em = self.em
        items = []
        pend = list(range(self.w2rd, self.w2next))
        if pend: items.append(lambda: em.wait_vm_tag('w2s'))
        for k, m in enumerate(pend): items += self.stage_read_items(W2A, m, self.pendq[2 * k], self.pendq[2 * k + 1])
        self.w2rd = self.w2next
        new = list(range(self.w2next, min(22, self.w2next + len(quads) // 2)))
        if new:
            if set(quads) & set(self.pendq): items.append(lambda: em.wait_lg(0))
            for k, m in enumerate(new): items.append(lambda k=k, m=m: self.stage_dma(SW2, m, quads[2 * k], quads[2 * k + 1], 'w2s'))
        self.w2next += len(new); self.pendq = list(quads)
        return items

    def p3(self, l):
        em = self.em; o = self.o
        ld = self.a_loader(o.pre, 0)
        side = Side(em)
        side.add(*self.stats_T_items(False))
        def ld2(i):
            ld(i)
            if i == 32 - o.pre and l == 0: side.add(*self.w2_round(list(range(24, 38))))
        self.pass2(range(32), self.w1pl[:2], [ACC, ACC + 16], False, side, lambda i: (2 if i < 32 - o.pre else 1) if i >= 10 else 0, loader=ld2)
        self.emit(self.corr_items(0, ACC, False)); self.emit(self.corr_items(1, ACC + 16, False))
        self.ts('p3a')
        def epi(p):
            A = ACC + 16 * p
            it = [f'v_cvt_pk_bf16_f32 {v(A+r)}, {v(A+2*r)}, {v(A+2*r+1)}' for r in range(8)]
            it += [f'v_pk_max_i16 {v(A+r)}, {v(A+r)}, 0' for r in range(8)]
            return it
        def st(p):
            A = ACC + 16 * p
            self.wsstore(v(A, 4), vL16, sHks, p * 2048); self.wsstore(v(A + 4, 4), vL16, sHks, p * 2048, off=1024)
        side.q = epi(0) + [lambda: st(0)] + epi(1) + [lambda: st(1)] + side.q
        self.p3_bg(l, side)
        self.pass1(self.w1pl[2], ACC + 32, side, lambda ks: o.fill_p3 if ks >= 2 else 0)
        self.emit(self.corr_items(2, ACC + 32, False))
        side.flush()
        self.ts('p3b')
        self.emit(epi(2))
        L = em.newlabel('Lh3')
        em(f's_cmp_eq_u32 {sHas3}, 0'); em(f's_cbranch_scc1 {L}')
        em.cond_begin(); st(2); em.cond_end()
        em.label(L)
        self.p3_tail(l)

    def p3_bg(self, l, side):
        if l == 0:
            side.add(self.barrier)
            rest = list(range(self.w2next, 22))
            quads = self.w1pl[0] + self.w1pl[1]
            for k, m in enumerate(rest): side.add(lambda k=k, m=m: self.stage_dma(SW2, m, quads[2 * k], quads[2 * k + 1], 'w2s'))
            self.pendq = self.pendq[:2 * (self.w2next - self.w2rd)] + quads[:2 * len(rest)]
            self.w2next = 22
    def p3_tail(self, l):
        em = self.em
        if l == 0:
            self.group_sync(2, pre=self.setup_local, mid=lambda: self.emit(self.w2_round([])), tags=None)
            assert self.w2rd == 22, self.w2rd
        else:
            self.group_sync(6, pre=lambda: self.setup_local(final=True), tags=None)

    def p4(self, l):
        em = self.em; o = self.o
        final = l == 1
        accs = [[ACC, ACC + 16], [ACC + 32, 232]]
        NR = 24
        def ld(n):
            h, m = divmod(n, 22)
            dst = v(AF + 4 * (n % NR), 4)
            if m == 21:
                em(f's_sub_u32 {sT2}, {sHR}, {sAdj}'); self.wsload(dst, vAW, sT2, h * H_T + m * 4096, tag='A')
            else: self.wsload(dst, vAW, sHR, h * H_T + m * 4096, tag='A')
        for n in range(o.pre): ld(n)
        self.wsload(v(AUX, 4), v(vStM), sStR, 0, tag='stat')
        side = Side(em)
        S, Q, M = v(AUX), v(AUX + 1), v(AUX + 2); RS = [v(TMP), v(TMP + 1)]
        side.add(f'v_add_f32 {S}, {S}, {v(AUX+1)}', f'v_add_f32 {v(AUX+2)}, {v(AUX+2)}, {v(AUX+3)}', f'v_add_f32 {S}, {S}, {v(AUX+2)}',
                 f'v_add_f32_dpp {S}, {S}, {S} row_ror:8 {DPPM}', f'v_mov_b32 {Q}, {S}', f'v_permlane16_swap_b32 {S}, {Q}',
                 f'v_mul_f32 {S}, {sInv}, {S}', f'v_mul_f32 {Q}, {sInv}, {Q}', f'v_fma_f32 {Q}, -{S}, {S}, {Q}', f'v_max_f32 {Q}, 0, {Q}',
                 f'v_add_f32 {Q}, {sEps}, {Q}', f'v_rsq_f32 {RS[0]}, {Q}', f'v_mov_b32 {RS[1]}, {RS[0]}', f'v_permlane32_swap_b32 {RS[0]}, {RS[1]}')
        if final: side.add(f'ds_bpermute_b32 {RS[0]}, {v(vKT)}, {RS[0]}', f'ds_bpermute_b32 {RS[1]}, {v(vKT)}, {RS[1]}')
        for n in range(44):
            h, m = divmod(n, 22)
            x = v(AF + 4 * (n % NR), 4)
            for nt in range(2):
                c = v(accs[h][nt], 16)
                em(f'{MF} {c}, {a(W2A + m*8 + nt*4, 4)}, {x}, ' + ('0' if m == 0 else c))
                if nt == 0 and n + o.pre < 44: ld(n + o.pre)
                if n >= 10: side.run(o.fill_p4)
            if n == 22:
                side.add(*self.reduce_items(0, accs[0][0], accs[0][1], MR, ACC, RS[0], 1, final, False, True))
                side.add(*self.unpack_items(1, ACC + 16)); side.add(self.barrier)
            if n == 43 - o.pre: self.p4_bg(l, side)
        self.ts('p4mf')
        side.flush()
        self.ts('p4main')
        self.emit(self.reduce_items(1, accs[1][0], accs[1][1], MR, ACC + 16, RS[1], 1, final, True, False))
        if not final:
            def mid():
                for m in range(self.o.kv_early, 8): self.qkv_dma('kv', m, 'kv')
                em.wait_vm_tag('kv')
            self.group_sync(3, mid=mid)

    def p4_bg(self, l, side):
        if l == 0:
            for m in range(self.o.kv_early):
                side.add(lambda m=m: self.qkv_dma('kv', m, 'kv'))

    def p5_start(self):
        em = self.em; o = self.o
        ld0 = self.a_loader(o.pre, 1)
        def ld(i):
            ld0(i)
            if i + o.pre >= 32 and i + o.pre < 40:
                m = i + o.pre - 32
                self.qkv_dma('q', m, 'q')
        side = Side(em)
        side.add(*self.stats_T_items(True))
        side.add(f'{MF} {v(MR,16)}, {v(AUX,4)}, {v(CB+2,4)}, 0')
        self.pass2(range(32), [self.pl['k'], self.pl['v']], [ACC, ACC + 16], True, side, lambda i: 2 if i >= 10 else 0, loader=ld)
        side.flush()
        self.emit(self.corr_items('k', ACC, True)); self.emit(self.corr_items('v', ACC + 16, True))
        self.barrier()
        self.ts('p5a')

    def finish(self):
        em = self.em
        L = em.newlabel('Le')
        em(f's_or_b32 {sT}, s2, {sW}'); em(f's_cmp_lg_u32 {sT}, 0'); em(f's_cbranch_scc1 {L}')
        em.cond_begin()
        em('s_mov_b64 exec, 1'); em(f'v_mov_b32 v24, {sNonce}'); em(f'buffer_store_dword v24, off, {SWS}, 0 sc1'); em('s_mov_b64 exec, -1')
        em.cond_end()
        em.label(L)
        if self.o.ts:
            self.ts('end')
            em(f's_lshl_b32 {sT}, s2, 2'); em(f's_add_u32 {sT}, {sT}, {sW}'); em(f's_lshl_b32 {sT}, {sT}, 8'); em(f's_add_u32 {sT}, {sT}, {WS_DBG}')
            em(f'v_lshlrev_b32 v24, 2, {vLane}')
            em(f'buffer_store_dword v39, v24, {SWS}, {sT} offen')
        em('s_endpgm')

    def body(self, sc):
        self.sc = sc; self.swin = None; self.lin = True
        seq = [lambda: self.p1_rest(0), lambda: self.p2(0), lambda: self.p3(0), lambda: self.p4(0),
               lambda: (self.p5_start(), self.p1_rest(1)), lambda: self.p2(1), lambda: self.p3(1), lambda: self.p4(1)]
        for i, f in enumerate(seq):
            self.em.comment(f'---------------- phase {i+1} ({"slow" if sc else "fast"}) ----------------')
            f()
            if self.o.stop == i + 1: break
        self.finish()

    def build(self):
        em = self.em
        self.sc = ''
        self.prologue()
        self.p1_start()
        if self.o.force_slow: em('s_branch L_slow_tramp')
        em('s_cbranch_vccz L_fast')
        em.label('L_slow_tramp')
        em('s_getpc_b64 s[36:37]'); em.label('L_pc0')
        em('s_add_u32 s36, s36, L_slow-L_pc0'); em('s_addc_u32 s37, s37, 0'); em('s_setpc_b64 s[36:37]')
        em.label('L_end'); em('s_endpgm')
        em.label('L_fast')
        snap = (list(em.vmq), list(em.lgq), self.nts, list(em.hist))
        self.body('')
        em.label('L_slow')
        em.vmq, em.lgq, self.nts, em.hist = list(snap[0]), list(snap[1]), snap[2], list(snap[3])
        self.body(' sc1')
        hdr = open('cdna_kernels/' + NAME + '.s.ref').read().split('; Override launch')[0]
        s = hdr + '; @launch grid=(256,1,1) block=(256,1,1) lds=163840\n'
        s += '.amdgcn_target "amdgcn-amd-amdhsa--gfx950"\n.text\n'
        s += f'.globl {NAME}_kernel\n.p2align 8\n.type {NAME}_kernel,@function\n{NAME}_kernel:\n'
        s += em.text()
        s += f""".section .rodata,"a"
.p2align 6
.amdhsa_kernel {NAME}_kernel
  .amdhsa_next_free_vgpr 512
  .amdhsa_next_free_sgpr 102
  .amdhsa_accum_offset 256
  .amdhsa_group_segment_fixed_size 0
  .amdhsa_kernarg_size 72
  .amdhsa_user_sgpr_count 2
  .amdhsa_user_sgpr_kernarg_segment_ptr 1
  .amdhsa_system_sgpr_workgroup_id_x 1
  .amdhsa_float_denorm_mode_32 3
.end_amdhsa_kernel
"""
        return s

def main():
    ap = argparse.ArgumentParser()
    ap.add_argument('-o', default='k.s')
    ap.add_argument('--ts', action='store_true')
    ap.add_argument('--stop', type=int, default=0)
    ap.add_argument('--spin', type=int, default=200000)
    ap.add_argument('--pre', type=int, default=10)
    ap.add_argument('--pre2', type=int, default=13)
    ap.add_argument('--fill_p1', type=int, default=2)
    ap.add_argument('--fill_p2', type=int, default=3)
    ap.add_argument('--fill_p3', type=int, default=3)
    ap.add_argument('--fill_p4', type=int, default=3)
    ap.add_argument('--w1_early', type=int, default=3)
    ap.add_argument('--w2_g1', type=int, default=6)
    ap.add_argument('--rot', type=int, default=1)
    ap.add_argument('--kv_early', type=int, default=4)
    ap.add_argument('--nt_stage', action='store_true')
    ap.add_argument('--nt_w1', action='store_true')
    ap.add_argument('--codepf', type=int, default=1)
    ap.add_argument('--outsc', default='')
    ap.add_argument('--force_slow', action='store_true')
    o = ap.parse_args()
    if o.outsc: o.outsc = ' ' + o.outsc
    g = Gen(o)
    s = g.build()
    open(o.o, 'w').write(s)
    if o.ts:
        import json; json.dump(g.tsnames, open(o.o + '.ts.json', 'w'))
    print(f'wrote {o.o}: {g.em.ninstr} instrs, {g.em.nops} nop states, {len(s)} bytes')
if __name__ == '__main__': main()
```

```python
import sys, struct, argparse
from emit import Em

NAME = "interleave_layers__linear_attn_block__dense_activation_relu__prompt"
def f2u(x): return struct.unpack('<I', struct.pack('<f', x))[0]

WS_EPOCH = 0
WS_HELLO = 1024
WS_FLAG = 4096
WS_MSG = 0x10000
WS_KT = 0x120000
WS_ST = 0x170000
WS_X = 0x200000
WS_H = 0x400000
WS_DBG = 0x2000000
WS_SIZE = 0x4000000
MSG_B = 2176; KT_B = 17408; ACT_B = 131072; H_T = 86 * 1024; H_B = 4 * H_T
NONCE_K = 0x9E3779B1

sW, sG, sJ, sNonce = 's4', 's5', 's6', 's7'
SX, SQKV, SWO, SW1, SW2, SOUT, SWS = 's[8:11]', 's[12:15]', 's[16:19]', 's[20:23]', 's[24:27]', 's[28:31]', 's[32:35]'
sT, sT2, sWl, sSpin = 's52', 's53', 's54', 's55'
sGX, sGH, sG8K, sGKT, sG128 = 's56', 's57', 's58', 's59', 's60'
sQcol, sW1c0, sW1c2, sHks, sHas3 = 's61', 's62', 's63', 's64', 's65'
sC128, sXR, sHR, sStR, sAdj = 's66', 's67', 's68', 's69', 's70'
sQR, sInv, sEps, s1em6, sLog2e = 's71', 's74', 's75', 's76', 's73'
sXrow, sJmsg, sMaskInv, sOutRow, sHello = 's77', 's78', 's79', 's80', 's81'
sEx = 's[82:83]'; sMaskSt = 's[84:85]'
sTS = 86
sDelta, sDelta2 = 's88', 's[88:89]'
sLn2, sLn22 = 's90', 's[90:91]'
sXst, sStst, sQst = 's92', 's93', 's94'
sRot, sR, sFlag, sG256 = 's95', 's96', 's97', 's98'

vLane, vL16, vAT, vAW = 'v0', 'v1', 'v2', 'v3'
vTr = ['v4', 'v5', 'v6']
vDq, vD1, vDs, vS0, vS1, vS0w, vS1w = 'v7', 'v8', 'v9', 'v10', 'v11', 'v12', 'v14'
vStT, vPoll, vRl, vHi, vTid = 'v13', 'v15', 'v16', 'v17', 'v18'
CS = {'q': 'v19', 'k': 'v20', 'v': 'v21', 0: 'v22', 1: 'v23', 2: 'v34'}
AUX = 24
CB = 28
TMP = 35
BB = 40
MR = 56
ACC = 88
AF = 136
def v(i, n=1): return f'v{i}' if n == 1 else f'v[{i}:{i+n-1}]'
def a(i, n=1): return f'a{i}' if n == 1 else f'a[{i}:{i+n-1}]'
def Afrag(ks): return v(AF + 4 * ks, 4) if ks < 30 else a(248 + 4 * (ks - 30), 4)
RES = 240
W2A = 0; WOA = 176
vRedW, vRedR, vOut, vStSt, vStM, vKT = 248, 249, 250, 251, 252, 253
MF = 'v_mfma_f32_32x32x16_bf16'
DPPM = 'row_mask:0xf bank_mask:0xf'

QS = 32
S_ADDR = QS * 4096

class Side:
    def __init__(self, em): self.q = []; self.em = em
    def add(self, *items): self.q.extend(items)
    def run(self, k):
        while k > 0 and self.q:
            it = self.q.pop(0)
            if callable(it): it()
            else: self.em(it)
            k -= 1
    def flush(self): self.run(1 << 30)

class Gen:
    def __init__(self, opt):
        self.o = opt; self.em = Em(); self.nts = 0; self.swin = None; self.lin = False
    def emit(self, items):
        for t in items: t() if callable(t) else self.em(t)

    def ts(self, name):
        if not self.o.ts: return
        em = self.em
        i = self.nts; self.nts += 1
        assert i < 64
        em.force_wait(lg=0)
        em(f's_memtime s[{sTS}:{sTS+1}]'); em.force_wait(lg=0)
        em(f'v_writelane_b32 v39, s{sTS}, {i}')
        self.tsnames[i] = name
    def dma(self, srd, voff, sbase, imm, quad, tag, nt=False, slot=None):
        em = self.em
        if slot is None: em(f's_add_u32 m0, {sWl}, {quad*4096}')
        else: em(f's_mov_b32 m0, {quad*4096 + slot*1024}')
        em(f's_add_u32 {sT}, {sbase}, {imm}')
        em(f'buffer_load_dwordx4 {voff}, {srd}, {sT} offen' + (' nt' if nt else '') + ' lds', tag=tag)
    def tr(self, dst, quad, slot, base=None):
        addr = quad * 4096 + slot * 1024
        b = (base or vTr)[addr >> 16]; off = addr & 0xFFFF
        return [f'ds_read_b64_tr_b16 {v(dst,2)}, {b} offset:{off}', f'ds_read_b64_tr_b16 {v(dst+2,2)}, {b} offset:{off+(256 if self.lin else 512)}']
    def wsload(self, dst, voff, sbase, imm, width=4, tag=None, off=0):
        em = self.em
        em(f's_add_u32 {sT}, {sbase}, {imm}')
        sfx = {1: 'dword', 2: 'dwordx2', 4: 'dwordx4'}[width]
        em(f'buffer_load_{sfx} {dst}, {voff}, {SWS}, {sT} offen' + (f' offset:{off}' if off else '') + ' sc1', tag=tag)
    def wsstore(self, src, voff, sbase, imm, width=4, tag='st', off=0, sc=None):
        em = self.em
        em(f's_add_u32 {sT}, {sbase}, {imm}')
        sfx = {1: 'dword', 2: 'dwordx2', 4: 'dwordx4'}[width]
        sc = self.sc if sc is None else sc
        em(f'buffer_store_{sfx} {src}, {voff}, {SWS}, {sT} offen' + (f' offset:{off}' if off else '') + sc, tag=tag)
    def barrier(self):
        self.em.wait_lg(0); self.em('s_barrier')
    def only_wave(self, w, f, invert=False):
        em = self.em
        L = em.newlabel('Lw')
        em(f's_cmp_{"eq" if invert else "lg"}_u32 {sW}, {w}'); em(f's_cbranch_scc1 {L}')
        em.cond_begin(); f(); em.cond_end()
        em.label(L)
    def spin_tail(self, L):
        em = self.em
        em(f's_sub_u32 {sSpin}, {sSpin}, 1'); em(f's_cbranch_scc0 {L}'); em(f's_mov_b32 {sSpin}, 0')
    def group_sync(self, p, pre=None, mid=None, tags=('st',), bar=True):
        em = self.em
        vt = v(TMP)
        if pre: pre()
        em(f'v_mov_b32 {vt}, {sNonce}')
        em(f's_add_u32 {sT2}, {sFlag}, {p*4096}')
        if tags is None: em.force_wait(vm=0)
        else: em.wait_vm_tag(tags)
        self.ts(f'drain{p}')
        em(f's_mov_b64 {sEx}, exec'); em('s_mov_b64 exec, 1')
        em(f'buffer_store_dword {vt}, off, {SWS}, {sT2}' + self.sc, tag='flag')
        em(f's_mov_b64 exec, {sEx}')
        if mid: mid()
        if bar: self.barrier()
        L = em.newlabel('Lpoll'); D = em.newlabel('Lpd')
        em(f's_add_u32 {sT2}, {sG256}, {WS_FLAG + p*4096}')
        em(f'v_lshlrev_b32 {v(TMP+1)}, 2, {vLane}')
        em.label(L)
        em(f'buffer_load_dword {vt}, {v(TMP+1)}, {SWS}, {sT2} offen sc1')
        em.force_wait(vm=0)
        em(f'v_cmp_ne_u32 vcc, {sNonce}, {vt}')
        em(f's_cbranch_vccz {D}')
        self.spin_tail(L)
        em.label(D)
        self.ts(f'sync{p}')
    def rot(self, m, stride, base):
        em = self.em
        em(f's_add_u32 {sR}, {sRot}, {m}'); em(f's_and_b32 {sR}, {sR}, 7'); em(f's_mul_i32 {sR}, {sR}, {stride}'); em(f's_add_u32 {sR}, {sR}, {base}')
    def qkv_dma(self, planes, m, tag):
        self.rot(m, 64 * 3072, sQcol)
        for p in planes: self.dma(SQKV, vDq, sR, {'q': 0, 'k': 1024, 'v': 2048}[p], self.pl[p][m], tag)

    def prologue(self):
        em = self.em; o = self.o
        em('s_cmp_ge_u32 s2, 256'); em('s_cbranch_scc1 L_end')
        em('s_load_dwordx4 s[36:39], s[0:1], 0'); em('s_load_dwordx2 s[40:41], s[0:1], 16')
        em('s_load_dwordx4 s[44:47], s[0:1], 32'); em('s_load_dwordx2 s[48:49], s[0:1], 48'); em('s_load_dwordx2 s[50:51], s[0:1], 64')
        if o.ts:
            self.tsnames = {}
            em('v_mov_b32 v39, 0')
        em(f'v_mov_b32 {vTid}, v0')
        em(f'v_lshrrev_b32 v24, 6, v0'); em(f'v_and_b32 {vLane}, 63, v0')
        em(f'v_readfirstlane_b32 {sW}, v24')
        em(f's_and_b32 {sG}, s2, 7'); em(f's_lshl_b32 {sG}, {sG}, 1'); em(f's_lshr_b32 {sT}, s2, 7'); em(f's_add_u32 {sG}, {sG}, {sT}')
        em(f's_lshr_b32 {sJ}, s2, 3'); em(f's_and_b32 {sJ}, {sJ}, 15')
        em(f's_lshl_b32 {sWl}, {sW}, 10')
        em(f's_lshl_b32 {sXrow}, {sG}, 17')
        em(f's_lshl_b32 {sQcol}, {sJ}, 6')
        em(f's_and_b32 {sRot}, {sG}, 1'); em(f's_lshl_b32 {sRot}, {sRot}, 2'); em(f's_add_u32 {sRot}, {sRot}, {sJ}'); em(f's_add_u32 {sRot}, {sRot}, s2')
        if not o.rot: em(f's_mov_b32 {sRot}, 0')
        self.pl = {'k': [0, 1, 2, 3, 8, 9, 10, 11], 'v': [4, 5, 6, 7, 12, 13, 14, 15], 'q': list(range(16, 24))}
        em(f'v_lshlrev_b32 {vL16}, 4, {vLane}')
        em(f'v_lshrrev_b32 v27, 3, {vLane}'); em(f'v_and_b32 v28, 7, {vLane}')
        em(f'v_lshrrev_b32 v29, 1, v27'); em('v_xor_b32 v28, v28, v29'); em('v_lshlrev_b32 v28, 4, v28')
        em(f's_lshl_b32 {sT}, {sW}, 5'); em(f'v_add_u32 v27, {sT}, v27'); em('v_lshlrev_b32 v27, 10, v27')
        em('v_add_u32 v25, v27, v28'); em('v_xor_b32 v26, 64, v25')
        em(f'v_lshrrev_b32 v27, 2, {vLane}'); em(f's_lshl_b32 {sT}, {sW}, 4'); em(f'v_add_u32 v27, {sT}, v27')
        em(f'v_and_b32 v28, 3, {vLane}'); em('v_lshlrev_b32 v28, 4, v28')
        em(f'v_mul_u32_u24 {vDq}, 3072, v27'); em(f'v_add_u32 {vDq}, {vDq}, v28')
        em(f'v_mul_u32_u24 {vD1}, 2752, v27'); em(f'v_add_u32 {vD1}, {vD1}, v28')
        em.force_wait(lg=0)
        if o.dbg:
            em('s_load_dwordx2 s[100:101], s[0:1], 56'); em('s_memrealtime s[0:1]'); em.force_wait(lg=0); em('s_mov_b32 s3, s0')
        self.ts('start')
        def srd(s, lo, nb):
            em(f's_mov_b32 s{s}, s{lo}'); em(f's_mov_b32 s{s+1}, s{lo+1}'); em(f's_mov_b32 s{s+2}, {nb}'); em(f's_mov_b32 s{s+3}, 0x00020000')
        srd(8, 36, 2048 * 1024); srd(32, 50, WS_SIZE); srd(12, 38, 512 * 3072)
        em(f'buffer_load_dword v24, off, {SWS}, 0 sc1', tag='epoch')
        self.xdma(range(0, 4))
        for m in range(4): self.qkv_dma('kv', m, 'kvlo')
        if o.codepf:
            em('s_getpc_b64 s[42:43]'); em.label('L_pcx')
            em(f's_lshr_b32 {sT}, s2, 3'); em(f's_lshl_b32 {sT}, {sT}, 2'); em(f's_add_u32 {sT}, {sT}, {sW}'); em(f's_lshl_b32 {sT}, {sT}, 10')
            em(f's_min_u32 {sT}, {sT}, L_slow-L_pcx-1024')
            em(f'v_add_u32 v30, {sT}, {vL16}')
            em(f'global_load_dwordx4 {v(MR+24,4)}, v30, s[42:43]', tag='codepf')
        self.xdma(range(4, 8))
        srd(16, 40, 512 * 1024); srd(20, 44, 512 * 2752); srd(24, 46, 1376 * 1024); srd(28, 48, 2048 * 1024)
        em(f's_mov_b32 {sSpin}, {o.spin}')
        em(f's_lshl_b32 {sGX}, {sG}, 17'); em(f's_add_u32 {sGX}, {sGX}, {WS_X}')
        em(f's_mul_i32 {sGH}, {sG}, {H_B}'); em(f's_add_u32 {sGH}, {sGH}, {WS_H}')
        em(f's_lshl_b32 {sG8K}, {sG}, 13'); em(f's_add_u32 {sG8K}, {sG8K}, {WS_ST}')
        em(f's_mul_i32 {sGKT}, {sG}, {KT_B}'); em(f's_add_u32 {sGKT}, {sGKT}, {WS_KT}'); em(f's_lshl_b32 {sG128}, {sG}, 7'); em(f's_lshl_b32 {sG256}, {sG}, 8')
        em(f's_lshl_b32 {sFlag}, {sJ}, 2'); em(f's_add_u32 {sFlag}, {sFlag}, {sW}'); em(f's_lshl_b32 {sFlag}, {sFlag}, 2'); em(f's_add_u32 {sFlag}, {sFlag}, {sG256}'); em(f's_add_u32 {sFlag}, {sFlag}, {WS_FLAG}')
        em(f's_mul_i32 {sT}, {sJ}, 3'); em(f's_lshl_b32 {sT2}, {sJ}, 1'); em(f's_add_u32 {sT2}, {sT2}, 11')
        em(f's_cmp_lt_u32 {sJ}, 11'); em(f's_cselect_b32 {sT}, {sT}, {sT2}'); em(f's_cselect_b32 {sHas3}, 1, 0')
        em(f's_cselect_b32 {sT2}, 128, 64')
        em(f's_lshl_b32 {sW1c0}, {sT}, 6'); em(f's_add_u32 {sW1c2}, {sW1c0}, {sT2}')
        em(f's_lshl_b32 {sHks}, {sT}, 11'); em(f's_add_u32 {sHks}, {sHks}, {sGH}')
        em(f's_mul_i32 {sT}, {sW}, {H_T}'); em(f's_add_u32 {sHks}, {sHks}, {sT}')
        em(f's_and_b32 {sC128}, {sJ}, 7'); em(f's_lshl_b32 {sC128}, {sC128}, 7')
        em(f's_lshr_b32 {sT}, {sJ}, 3')
        em(f's_lshl_b32 {sT2}, {sT}, 16'); em(f's_add_u32 {sXR}, {sT2}, {sGX}'); em(f's_add_u32 {sQR}, {sT2}, {sGH}')
        em(f's_add_u32 {sOutRow}, {sT2}, {sXrow}'); em(f's_add_u32 {sOutRow}, {sOutRow}, {sC128}')
        em(f's_mul_i32 {sHR}, {sT}, {2*H_T}'); em(f's_add_u32 {sHR}, {sHR}, {sGH}')
        em(f's_lshl_b32 {sStR}, {sT}, 12'); em(f's_add_u32 {sStR}, {sStR}, {sG8K}')
        em(f's_lshl_b32 {sXst}, {sC128}, 5'); em(f's_add_u32 {sXst}, {sXst}, {sXR}')
        em(f's_and_b32 {sT}, {sJ}, 4'); em(f's_lshl_b32 {sT}, {sT}, 7'); em(f's_and_b32 {sT2}, {sJ}, 3'); em(f's_lshl_b32 {sT2}, {sT2}, 2')
        em(f's_add_u32 {sStst}, {sT}, {sT2}'); em(f's_add_u32 {sStst}, {sStst}, {sStR}')
        em(f's_lshl_b32 {sQst}, {sJ}, 11'); em(f's_add_u32 {sQst}, {sQst}, {sGH}')
        em(f's_cmp_ge_u32 {sW}, 2'); em(f's_cselect_b32 {sAdj}, 4096, 0')
        em(f's_mul_i32 {sJmsg}, {sJ}, {16*MSG_B}'); em(f's_add_u32 {sJmsg}, {sJmsg}, {WS_MSG}')
        em(f's_mov_b32 {sDelta}, {f2u(1e-6*1.4426950408889634):#x}'); em(f's_mov_b32 {sLn2}, {f2u(0.6931471805599453):#x}')
        em('s_mov_b32 s89, s88'); em('s_mov_b32 s91, s90')
        em(f's_mov_b32 {sLog2e}, {f2u(1.4426950408889634):#x}'); em(f's_mov_b32 {sInv}, {f2u(1/512):#x}')
        em(f's_mov_b32 {sEps}, {f2u(1e-5):#x}'); em(f's_mov_b32 {s1em6}, {f2u(1e-6):#x}')
        em('s_mov_b32 s84, 0x00ff00ff'); em('s_mov_b32 s85, 0'); em(f's_mov_b32 {sMaskInv}, 0xffffff00')
        em(f'v_lshrrev_b32 {vHi}, 5, {vLane}')
        em(f's_lshl_b32 {sT}, {sW}, 15'); em(f'v_add_u32 {vAT}, {sT}, {vL16}')
        em(f'v_add_u32 {vAW}, {sWl}, {vL16}')
        em(f'v_bfe_u32 v27, {vLane}, 2, 2'); em(f'v_lshl_add_u32 v27, {vHi}, 2, v27')
        em(f'v_bfe_u32 v28, {vLane}, 4, 1'); em('v_lshlrev_b32 v28, 5, v28')
        em(f'v_and_b32 v29, 3, {vLane}'); em('v_lshl_add_u32 v28, v29, 3, v28')
        em(f'v_lshl_add_u32 {vTr[0]}, v27, 6, v28')
        em(f'v_lshl_add_u32 {vTr[0]}, {vHi}, 8, {vTr[0]}')
        em(f'v_add_u32 {vTr[1]}, 0x10000, {vTr[0]}'); em(f'v_add_u32 {vTr[2]}, 0x20000, {vTr[0]}')
        em(f'v_bfe_u32 v29, {vLane}, 3, 1'); em('v_lshl_add_u32 v28, v29, 6, v28')
        em(f'v_lshl_add_u32 {vS0}, v27, 7, v28'); em(f'v_add_u32 {vS0}, {sWl}, {vS0}'); em(f'v_xor_b32 {vS1}, 64, {vS0}')
        em(f'v_lshrrev_b32 v27, 3, {vLane}'); em(f'v_and_b32 v28, 7, {vLane}')
        em(f'v_bfe_u32 v29, {vLane}, 4, 1'); em('v_lshlrev_b32 v29, 2, v29'); em('v_xor_b32 v28, v28, v29'); em('v_lshlrev_b32 v28, 4, v28')
        em(f'v_lshl_add_u32 {vDs}, v27, 10, v28'); em(f's_lshl_b32 {sT}, {sW}, 14'); em(f'v_add_u32 {vDs}, {sT}, {vDs}')
        em(f'v_lshl_add_u32 v27, {vHi}, 9, {vL16}'); em(f's_lshl_b32 {sT}, {sW}, 11'); em(f'v_add_u32 {vStT}, {sT}, v27')
        em(f'v_and_b32 {vPoll}, 15, {vLane}'); em(f'v_lshlrev_b32 {vPoll}, 2, {vPoll}')
        em(f'v_readfirstlane_b32 {sNonce}, v24')
        em(f's_add_u32 {sNonce}, {sNonce}, {NONCE_K:#x}')
        em(f's_getreg_b32 {sHello}, hwreg(HW_REG_XCC_ID)'); em(f's_and_b32 {sHello}, {sHello}, 15')
        em(f's_add_u32 {sHello}, {sHello}, {sNonce}'); em(f's_add_u32 {sHello}, {sHello}, 1')
        def hello():
            em(f's_mov_b64 {sEx}, exec'); em('s_mov_b64 exec, 1')
            em(f'v_mov_b32 v24, {sHello}')
            em(f's_lshl_b32 {sT2}, {sJ}, 2'); em(f's_add_u32 {sT2}, {sT2}, {sG128}'); em(f's_add_u32 {sT2}, {sT2}, {WS_HELLO}')
            em(f'buffer_store_dword v24, off, {SWS}, {sT2} sc1')
            em(f's_mov_b64 exec, {sEx}')
        self.only_wave(0, hello)

    def xdma(self, lines):
        for c in lines:
            self.rot(c, 128, sXrow)
            for rb8 in range(4):
                self.dma(SX, 'v25' if rb8 % 2 == 0 else 'v26', sR, rb8 * 8192, (2 + c) * 4 + rb8, 'xlo' if c < 4 else 'xhi')

    def touch_q(self, vt, dst):
        em = self.em
        em(f'v_lshlrev_b32 {vt}, 7, {vLane}'); em(f's_lshl_b32 {sT2}, {sW}, 15'); em(f's_add_u32 {sT2}, {sT2}, {sQst}')
        em(f's_mov_b64 {sEx}, exec'); em('s_mov_b64 exec, 0xffff')
        em(f'buffer_load_dword {v(dst)}, {vt}, {SWS}, {sT2} offen sc1', tag='touch')
        em(f's_mul_i32 {sT2}, {sJ}, 1088'); em(f's_add_u32 {sT2}, {sT2}, {sGKT}')
        em('s_mov_b64 exec, 0x1ff')
        em(f'buffer_load_dword {v(dst+1)}, {vt}, {SWS}, {sT2} offen sc1', tag='touch')
        em(f'v_lshlrev_b32 {vt}, 12, {vLane}')
        em('s_mov_b64 exec, 0x7f')
        em(f'buffer_load_dword {v(dst+2)}, {vt}, {SWS}, {sFlag} offen sc1', tag='touch')
        em(f's_mov_b64 exec, {sEx}')
    def touch_x(self, vt, dst):
        em = self.em
        em(f'v_lshlrev_b32 {vt}, 7, {vLane}')
        em(f's_lshr_b32 {sT2}, {sW}, 1'); em(f's_lshl_b32 {sT2}, {sT2}, 15'); em(f's_add_u32 {sT2}, {sT2}, {sXst}')
        em(f's_and_b32 {sT}, {sW}, 1'); em(f's_lshl_b32 {sT}, {sT}, 11'); em(f's_add_u32 {sT2}, {sT2}, {sT}')
        em(f's_mov_b64 {sEx}, exec'); em('s_mov_b64 exec, 0xffff')
        em(f'buffer_load_dword {v(dst)}, {vt}, {SWS}, {sT2} offen sc1', tag='touch')
        em(f'v_lshlrev_b32 {vt}, 17, {vLane}')
        em(f's_lshl_b32 {sT2}, {sJ}, 2'); em(f's_add_u32 {sT2}, {sT2}, {sW}'); em(f's_lshl_b32 {sT2}, {sT2}, 7'); em(f's_add_u32 {sT2}, {sT2}, {sG8K}')
        em('s_mov_b64 exec, 3')
        em(f'buffer_load_dword {v(dst+1)}, {vt}, {SWS}, {sT2} offen sc1', tag='touch')
        em(f's_mov_b64 exec, {sEx}')
    def touch_h(self, vt, dst):
        em = self.em
        em(f'v_lshlrev_b32 {vt}, 7, {vLane}')
        em(f's_mov_b64 {sEx}, exec'); em('s_mov_b32 exec_hi, 0xffff')
        em(f'buffer_load_dword {dst}, {vt}, {SWS}, {sHks} offen sc1', tag='touch')
        em(f's_mov_b64 exec, {sEx}')

    def colsum_items(self, quads, acc, tmp, own, ones, first):
        items = []
        rds = [self.tr(tmp + 4 * (n % 2), q, 0, own) for n, q in enumerate(quads)]
        items += rds[0]
        for n in range(len(quads)):
            if n + 1 < len(quads): items += rds[n + 1]
            items.append(f'{MF} {acc}, {ones}, {v(tmp + 4*(n%2), 4)}, ' + ('0' if first and n == 0 else acc))
        return items
    def colsum_exchange(self, srcs, keys, lds, tmp):
        em = self.em
        ad = v(tmp); R = tmp + 2
        em(f'v_and_b32 {ad}, 31, {vLane}'); em(f'v_lshlrev_b32 {ad}, 4, {ad}'); em(f'v_add_u32 {ad}, {lds:#x}, {ad}')
        em(f's_lshl_b32 {sT}, {sW}, 2'); em(f'v_add_u32 {v(tmp+1)}, {sT}, {ad}')
        for p, s in enumerate(srcs): em(f'ds_write_b32 {v(tmp+1)}, {s} offset:{p*512}')
        self.barrier()
        for p in range(3): em(f'ds_read_b128 {v(R+4*p,4)}, {ad} offset:{p*512}')
        for p, k in enumerate(keys):
            r = R + 4 * p
            em(f'v_add_f32 {v(r)}, {v(r)}, {v(r+1)}'); em(f'v_add_f32 {v(r+2)}, {v(r+2)}, {v(r+3)}'); em(f'v_add_f32 {v(r)}, {v(r)}, {v(r+2)}')
            em(f'v_cvt_pk_bf16_f32 {v(r+1)}, {v(r)}, {v(r)}'); em(f'v_lshlrev_b32 {v(r+1)}, 16, {v(r+1)}'); em(f'v_sub_f32 {v(r+1)}, {v(r)}, {v(r+1)}')
            em(f'v_cvt_pk_bf16_f32 {CS[k]}, {v(r)}, {v(r+1)}')

    def stage_dma(self, srd, m, qa, qb, tag):
        self.dma(srd, vDs, sC128, m * 65536, qa, tag, nt=self.o.nt_stage); self.dma(srd, vDs, sC128, m * 65536 + 8192, qb, tag, nt=self.o.nt_stage)
    def stage_read_items(self, abase, m, qa, qb):
        items = []
        for h, q in enumerate((qa, qb)):
            addr = q * 4096; win = addr >> 16; off = addr & 0xFFFF
            def f(win=win, off=off, h=h):
                if win == 0: b0, b1 = vS0, vS1
                else:
                    if self.swin != win:
                        self.em(f'v_add_u32 {vS0w}, {win*65536:#x}, {vS0}'); self.em(f'v_add_u32 {vS1w}, {win*65536:#x}, {vS1}'); self.swin = win
                    b0, b1 = vS0w, vS1w
                self.em(f'ds_read_b64_tr_b16 {a(abase + m*8 + 2*h, 2)}, {b0} offset:{off}')
                self.em(f'ds_read_b64_tr_b16 {a(abase + m*8 + 4 + 2*h, 2)}, {b1} offset:{off}')
            items.append(f)
        return items

    def aux_items(self, S, Q, t0, need_r=True):
        it = [f'v_mul_f32 {S}, {sInv}, {S}']
        if need_r:
            it += [f'v_mul_f32 {Q}, {sInv}, {Q}', f'v_fma_f32 {Q}, -{S}, {S}, {Q}', f'v_max_f32 {Q}, 0, {Q}', f'v_add_f32 {Q}, {sEps}, {Q}',
                   f'v_rsq_f32 {Q}, {Q}', f'v_mul_f32 {vRl}, {sLog2e}, {Q}']
        it += [f'v_cmp_eq_u32 vcc, 0, {vHi}', f'v_cndmask_b32_e64 {S}, 0, -{S}, vcc',
               f'v_cvt_pk_bf16_f32 {v(AUX)}, {S}, {S}', f'v_lshlrev_b32 {t0}, 16, {v(AUX)}', f'v_sub_f32 {S}, {S}, {t0}', f'v_cvt_pk_bf16_f32 {v(AUX+1)}, {S}, {S}']
        if need_r:
            it += [f'v_cndmask_b32 {Q}, 0, {vRl}, vcc', f'v_cvt_pk_bf16_f32 {t0}, {Q}, {Q}', f'v_lshlrev_b32 {t0}, 16, {t0}', f'v_sub_f32 {t0}, {Q}, {t0}',
                   f'v_cvt_pk_bf16_f32 {v(AUX+2)}, {Q}, {t0}']
        else: it.append(f'v_mov_b32 {v(AUX+2)}, 0')
        it += [f'v_mov_b32 {v(AUX+3)}, 0', f'v_mov_b32 {v(CB+2)}, 0', f'v_mov_b32 {v(CB+3)}, 0', f'v_mov_b32 {v(CB+4)}, 0x3f803f80', f'v_mov_b32 {v(CB+5)}, 0x3f803f80']
        return it
    def corr_items(self, key, acc, swapAB):
        c = v(acc, 16)
        return [f'v_mov_b32 {v(CB)}, {CS[key]}', f'v_mov_b32 {v(CB+1)}, {CS[key]}',
                f'{MF} {c}, {v(AUX,4)}, {v(CB,4)}, {c}' if swapAB else f'{MF} {c}, {v(CB,4)}, {v(AUX,4)}, {c}']
    def stats_T_loads(self, i):
        t = MR + 16
        self.wsload(v(t, 4), vStT, sG8K, i * 16 * 8192, tag='stat'); self.wsload(v(t + 4, 4), vStT, sG8K, i * 16 * 8192, tag='stat', off=512)
    def stats_T_items(self, need_r):
        t = MR + 16
        it = [f'v_add_f32 {v(t)}, {v(t)}, {v(t+1)}', f'v_add_f32 {v(t+2)}, {v(t+2)}, {v(t+3)}', f'v_add_f32 {v(t+4)}, {v(t+4)}, {v(t+5)}',
              f'v_add_f32 {v(t+6)}, {v(t+6)}, {v(t+7)}', f'v_add_f32 {v(t)}, {v(t)}, {v(t+2)}', f'v_add_f32 {v(t+4)}, {v(t+4)}, {v(t+6)}',
              f'v_add_f32 {v(t)}, {v(t)}, {v(t+4)}', f'v_mov_b32 {v(t+1)}, {v(t)}', f'v_permlane32_swap_b32 {v(t)}, {v(t+1)}']
        return it + self.aux_items(v(t), v(t + 1), v(t + 2), need_r)

    def pass2(self, steps, planes, accs, swapAB, side, fill, loader=None, first=True, extra=None):
        em = self.em
        steps = list(steps)
        def rd(i, p):
            ks = steps[i]
            for t in self.tr(BB + (i % 2) * 8 + 4 * p, planes[p][ks >> 2], ks & 3): em(t)
        for i in range(2):
            for p in range(2): rd(i, p)
        for i, ks in enumerate(steps):
            for p in range(2):
                w = v(BB + (i % 2) * 8 + 4 * p, 4); x = Afrag(ks); c = v(accs[p], 16)
                src = '0' if (first and i == 0) else c
                em(f'{MF} {c}, {x}, {w}, {src}' if swapAB else f'{MF} {c}, {w}, {x}, {src}')
                if i + 2 < len(steps): rd(i + 2, p)
                if p == 0 and loader: loader(i)
                side.run(fill(i) if callable(fill) else fill)
            if extra: extra(ks)
    def pass1(self, plane, acc, side, fill):
        em = self.em
        NB = 4
        def rd(ks):
            for t in self.tr(BB + (ks % NB) * 4, plane[ks >> 2], ks & 3): em(t)
        for ks in range(NB - 1): rd(ks)
        for ks in range(32):
            w = v(BB + (ks % NB) * 4, 4); c = v(acc, 16)
            if ks + NB - 1 < 32: rd(ks + NB - 1)
            em(f'{MF} {c}, {w}, {Afrag(ks)}, ' + ('0' if ks == 0 else c))
            side.run(fill(ks) if callable(fill) else fill)
    def a_loader(self, pre, sti):
        def ld(ks):
            if ks & 3 == 0:
                self.rot(ks >> 2, 4096, sGX); self.em(f's_mov_b32 s99, {sR}')
            self.em(f'buffer_load_dwordx4 {Afrag(ks)}, {vAT}, {SWS}, s99 offen offset:{(ks & 3) * 1024} sc1', tag='A')
        for ks in range(pre): ld(ks)
        def step(i):
            if i == 0: self.stats_T_loads(sti)
            if i + pre < 32: ld(i + pre)
        return step

    def phi_items(self, acc, rl, lanes_t, E):
        out = []
        for g in range(2):
            b = acc + 8 * g
            for k in range(4):
                x = v(b + 2 * k, 2)
                if lanes_t:
                    out += [f'v_fma_f32 {v(b+2*k)}, {v(b+2*k)}, {rl}, {sDelta}', f'v_fma_f32 {v(b+2*k+1)}, {v(b+2*k+1)}, {rl}, {sDelta}']
                else: out.append(f'v_pk_fma_f32 {x}, {x}, {v(rl + 8*g + 2*k, 2)}, {sDelta2}')
            for k in range(8): out.append(f'v_exp_f32_e64 {v(E+k)}, {v(b+k)} clamp')
            for k in range(8): out.append(f'v_max_f32 {v(b+k)}, {sDelta}, {v(b+k)}')
            for k in range(4): out.append(f'v_pk_fma_f32 {v(b+2*k,2)}, {v(b+2*k,2)}, {sLn22}, {v(E+2*k,2)}')
            for k in range(4): out.append(f'v_cvt_pk_bf16_f32 {v(acc+4*g+k)}, {v(b+2*k)}, {v(b+2*k+1)}')
        return out

    def p1_start(self):
        em = self.em; o = self.o
        self.lin = True
        X = MR; OWN = [v(MR + 4), v(MR + 5), v(MR + 6)]; ONE = v(MR + 8, 4); CT = MR + 12; H = v(MR + 7)
        aS, aQ, aCk, aCv, aCq = a(0, 16), a(16, 16), a(32, 16), a(48, 16), a(64, 16)
        em(f'v_and_b32 v27, 7, {vLane}'); em('v_lshlrev_b32 v27, 7, v27')
        em(f'v_bfe_u32 v28, {vLane}, 3, 2'); em('v_lshl_add_u32 v27, v28, 12, v27')
        em(f's_add_u32 {sT}, {sWl}, 32768'); em(f'v_add_u32 v27, {sT}, v27')
        em(f'v_bfe_u32 v28, {vLane}, 1, 3'); em(f'v_xor_b32 v28, v28, {vHi}')
        for kk in range(4):
            em(f'v_xor_b32 v29, {2*kk}, v28'); em(f'v_lshl_add_u32 {v(X+kk)}, v29, 4, v27')
        for i in range(3): em(f'v_add_u32 {OWN[i]}, {sWl}, {vTr[i]}')
        for i in range(4): em(f'v_mov_b32 {v(MR+8+i)}, 0x3f803f80')
        def xreads(half):
            for ks in range(16 * half, 16 * half + 16):
                em(f'ds_read_b128 {Afrag(ks)}, {v(X + (ks & 3))} offset:{((ks >> 2) & 3) * 16384}')
        def stat(ks):
            em(f'{MF} {aS}, {ONE}, {Afrag(ks)}, ' + ('0' if ks == 0 else aS))
            em(f'{MF} {aQ}, {Afrag(ks)}, {Afrag(ks)}, ' + ('0' if ks == 0 else aQ))
        em.wait_vm_tag('xlo'); self.ts('xlo')
        xreads(0); em.wait_lg(0)
        for m in range(4, 8): self.qkv_dma('kv', m, 'kvhi')
        for kk in range(4): em(f'v_add_u32 {v(X+kk)}, 0x10000, {v(X+kk)}')
        for ks in range(16):
            stat(ks)
            if ks % 2 == 0: self.qkv_dma('q', ks // 2, 'q')
        self.touch_q('v27', MR + 28)
        em.wait_vm_tag('kvlo'); self.barrier(); self.ts('kvlo')
        side = Side(em)
        side.add(*self.colsum_items(self.pl['k'][:4], aCk, CT, OWN, ONE, True)); side.add(*self.colsum_items(self.pl['v'][:4], aCv, CT, OWN, ONE, True))
        self.pass2(range(16), [self.pl['k'], self.pl['v']], [ACC, ACC + 16], True, side, 1)
        side.flush()
        em.wait_vm_tag('xhi'); self.ts('xhi')
        xreads(1); em.wait_lg(0)
        em(f'v_lshrrev_b32 v27, 3, {vLane}'); em(f's_lshl_b32 {sT}, {sW}, 3'); em(f'v_add_u32 v27, {sT}, v27'); em('v_lshlrev_b32 v27, 10, v27')
        em(f'v_and_b32 v28, 7, {vLane}'); em('v_lshl_add_u32 v27, v28, 4, v27')
        em(f'buffer_load_dwordx4 {a(RES,4)}, v27, {SX}, {sOutRow} offen', tag='res')
        em(f's_add_u32 {sT}, {sOutRow}, 32768'); em(f'buffer_load_dwordx4 {a(RES+4,4)}, v27, {SX}, {sT} offen', tag='res')
        em(f's_add_u32 {sT2}, {sG128}, {WS_HELLO}')
        em(f'buffer_load_dword {H}, {vPoll}, {SWS}, {sT2} offen sc1', tag='hello')
        self.stq = list(range(24, 40))
        for ks in range(16, 32):
            stat(ks)
            if ks % 4 == 0: self.stage_dma(SWO, (ks - 16) // 4, self.stq[(ks - 16) // 2], self.stq[(ks - 16) // 2 + 1], 'wo')
        em.wait_vm_tag('kvhi'); self.barrier(); self.ts('kvhi')
        side.add(*self.colsum_items(self.pl['k'][4:], aCk, CT, OWN, ONE, False)); side.add(*self.colsum_items(self.pl['v'][4:], aCv, CT, OWN, ONE, False))
        S, Q = v(MR + 20), v(MR + 21)
        side.add(f'v_accvgpr_read_b32 {S}, a0', f'v_mov_b32 {Q}, 0')
        for r in range(16):
            t = 8 * (r >> 2) + (r & 3)
            side.add(f'v_accvgpr_read_b32 {v(MR+22)}, a{16+r}')
            side.add(lambda t=t: (em(f's_mov_b32 s86, {1 << t:#x}'), em(f's_mov_b32 s87, {1 << (t + 4):#x}'), em(f'v_cndmask_b32 {Q}, {Q}, {v(MR+22)}, s[86:87]')))
        side.add(f'v_mov_b32 {v(MR+22)}, {Q}', f'v_permlane32_swap_b32 {Q}, {v(MR+22)}', f'v_add_f32 {Q}, {Q}, {v(MR+22)}')
        side.add(*self.aux_items(S, Q, v(MR + 22)))
        for i in range(4, 8): side.add(lambda i=i: self.stage_dma(SWO, i, self.stq[2 * i], self.stq[2 * i + 1], 'wo'))
        self.pass2(range(16, 32), [self.pl['k'], self.pl['v']], [ACC, ACC + 16], True, side, 3, first=False)
        side.flush()
        self.ts('kvpass')
        em.wait_vm_tag('q')
        self.emit(self.colsum_items(self.pl['q'], aCq, CT, OWN, ONE, True))
        for i, r in enumerate((64, 32, 48)): em(f'v_accvgpr_read_b32 {v(MR+20+i)}, a{r}')
        self.barrier()
        self.colsum_exchange([v(MR + 20), v(MR + 21), v(MR + 22)], ['q', 'k', 'v'], self.pl['k'][0] * 4096, BB)
        L = em.newlabel('Lhp'); D = em.newlabel('Lhd')
        em.wait_vm_tag('hello')
        em.label(L)
        em(f'v_subrev_u32 {v(TMP)}, {sNonce}, {H}'); em(f'v_add_u32 {v(TMP)}, -1, {v(TMP)}')
        em(f'v_cmp_le_u32 vcc, 16, {v(TMP)}')
        em(f's_cbranch_vccz {D}')
        em.cond_begin()
        em(f's_add_u32 {sT2}, {sG128}, {WS_HELLO}')
        em(f'buffer_load_dword {H}, {vPoll}, {SWS}, {sT2} offen sc1'); em.force_wait(vm=0)
        em.cond_end()
        self.spin_tail(L)
        em.label(D)
        em(f'v_cmp_ne_u32 vcc, {sHello}, {H}')
        self.emit(self.corr_items('k', ACC, True)); self.emit(self.corr_items('v', ACC + 16, True))
        em(f'{MF} {v(MR,16)}, {v(AUX,4)}, {v(CB+2,4)}, 0')
        self.ts('decide')

    def p1_rest(self, l):
        em = self.em; o = self.o
        K, V, Q = ACC, ACC + 16, ACC + 32
        RL = MR; E = MR + 16
        sq = self.pl['k'][:4]
        sa = self.pl['v'][0] * 4096
        mw, mr, fac, t16, tg = v(K + 8), v(K + 9), v(K + 10), v(K + 11), v(K + 12)
        u, x1, x2 = v(K + 13), v(K + 14), v(K + 15)
        self.emit(self.phi_items(K, RL, False, E))
        for r in range(8): em(f'v_pk_mul_f32 {v(V+2*r,2)}, {v(V+2*r,2)}, {v(RL+2*r,2)}')
        for r in range(8): em(f'v_cvt_pk_bf16_f32 {v(V+r)}, {v(V+2*r)}, {v(V+2*r+1)}')
        for r in range(8): em(f'v_mov_b32 {v(V+8+r)}, {v(CB+4)}')
        for r in range(8): em(f'v_permlane16_swap_b32 {v(V+r)}, {v(V+8+r)}')
        D0, D1 = MR, MR + 16
        em(f'{MF} {v(D0,16)}, {v(K,4)}, {v(V,4)}, 0'); em(f'{MF} {v(D1,16)}, {v(K,4)}, {v(V+8,4)}, 0')
        em(f'{MF} {v(D0,16)}, {v(K+4,4)}, {v(V+4,4)}, {v(D0,16)}'); em(f'{MF} {v(D1,16)}, {v(K+4,4)}, {v(V+12,4)}, {v(D1,16)}')
        self.emit([f's_lshl_b32 {sT2}, {sW}, 12', f's_add_u32 {sT2}, {sT2}, {sa}', f'v_add_u32 {mw}, {sT2}, {vL16}',
                   f'v_cmp_le_u32 vcc, 68, {vTid}', f'v_cndmask_b32 {x1}, 0, 1, vcc',
                   f'v_mul_u32_u24 {x2}, 68, {x1}', f'v_sub_u32 {u}, {vTid}, {x2}',
                   f'v_lshlrev_b32 {mr}, 11, {x1}',
                   f'v_and_b32 {x1}, 1, {u}', f'v_lshl_add_u32 {mr}, {x1}, 10, {mr}',
                   f'v_bfe_u32 {x1}, {u}, 1, 4', f'v_bfe_u32 {x2}, {u}, 5, 1', f'v_lshl_add_u32 {x1}, {x2}, 5, {x1}',
                   f'v_bfe_u32 {x2}, {u}, 1, 1', f'v_lshlrev_b32 {x2}, 5, {x2}', f'v_add_u32 {x2}, 16, {x2}',
                   f'v_cmp_le_u32 vcc, 64, {u}', f'v_cndmask_b32 {x1}, {x1}, {x2}, vcc',
                   f'v_mov_b32 {x2}, {sLn2}', f'v_cndmask_b32 {fac}, {x2}, 1.0, vcc',
                   f'v_lshl_add_u32 {mr}, {x1}, 4, {mr}', f'v_add_u32 {mr}, {sa:#x}, {mr}',
                   f'v_lshlrev_b32 {t16}, 4, {vTid}', f's_and_b32 {sT2}, {sNonce}, 0xff', f'v_mov_b32 {tg}, {sT2}'])
        for i, r in enumerate((D0, D0 + 4, D1 + 8, D1 + 12)): em(f'ds_write_b128 {mw}, {v(r,4)} offset:{i*1024}')
        em.wait_vm_tag('q')
        self.barrier()
        self.ts('kvbar')
        M = MR
        def msg_out():
            em(f'v_cmp_gt_u32 vcc, 136, {vTid}'); em(f's_and_saveexec_b64 {sEx}, vcc')
            for i in range(4): em(f'ds_read_b128 {v(M+4*i,4)}, {mr} offset:{i*4096}')
            for r in (0, 2): em(f'v_pk_add_f32 {v(M+r,2)}, {v(M+r,2)}, {v(M+4+r,2)}')
            for r in (0, 2): em(f'v_pk_add_f32 {v(M+8+r,2)}, {v(M+8+r,2)}, {v(M+12+r,2)}')
            for r in (0, 2): em(f'v_pk_add_f32 {v(M+r,2)}, {v(M+r,2)}, {v(M+8+r,2)}')
            for r in range(4): em(f'v_and_or_b32 {v(M+r)}, {v(M+r)}, {sMaskInv}, {tg}')
            em(f's_mul_i32 {sT2}, {sG}, {MSG_B}'); em(f's_add_u32 {sT2}, {sT2}, {sJmsg}')
            self.wsstore(v(M, 4), t16, sT2, l * 256 * MSG_B, sc=' sc1', tag='msg')
            em(f's_mov_b64 exec, {sEx}')
        self.only_wave(3, msg_out, invert=True)
        self.ts('msg')
        side = Side(em)
        self.p1_bg(l, side)
        self.pass1(self.pl['q'], Q, side, o.fill_p1)
        self.emit(self.corr_items('q', Q, False))
        side.flush()
        if self.lin:
            self.lin = False
            em(f'v_lshlrev_b32 {v(TMP)}, 8, {vHi}')
            for i in range(3): em(f'v_sub_u32 {vTr[i]}, {vTr[i]}, {v(TMP)}')
        self.ts('qpass')
        self.emit(self.phi_items(Q, vRl, True, E))
        self.wsstore(v(Q, 4), vAT, sQst, 0); self.wsstore(v(Q + 4, 4), vAT, sQst, 0, off=1024)
        self.p1_gap(l)
        self.barrier()
        self.ts('qst')
        def gather():
            em(f'v_cmp_gt_u32 vcc, 136, {vTid}'); em(f's_and_saveexec_b64 {sEx}, vcc')
            G = AF; A0, A1 = v(TMP), v(TMP + 1)
            L = em.newlabel('Lg'); D = em.newlabel('Lgd')
            em.label(L)
            for g in range(16): self.wsload(v(G + 4 * g, 4), t16, sJmsg, l * 256 * MSG_B + g * MSG_B)
            em(f'v_xor_b32 {A0}, {v(G)}, {tg}'); em(f'v_xor_b32 {A1}, {v(G+3)}, {tg}')
            for g in range(1, 16):
                em(f'v_bitop3_b32 {A0}, {v(G+4*g)}, {tg}, {A0} bitop3:0xbe'); em(f'v_bitop3_b32 {A1}, {v(G+4*g+3)}, {tg}, {A1} bitop3:0xbe')
            em(f'v_or_b32 {A0}, {A0}, {A1}'); em(f'v_and_b32 {A0}, 0xff, {A0}'); em(f'v_cmp_ne_u32 vcc, 0, {A0}')
            em(f's_cbranch_vccz {D}')
            self.spin_tail(L)
            em.label(D)
            self.ts('kvpoll')
            for st in (1, 2, 4, 8):
                for g in range(0, 16, 2 * st):
                    for r in (0, 2): em(f'v_pk_add_f32 {v(G+4*g+r,2)}, {v(G+4*g+r,2)}, {v(G+4*(g+st)+r,2)}')
            for r in range(4): em(f'v_mul_f32 {v(G+r)}, {v(G+r)}, {fac}')
            em(f'v_cvt_pk_bf16_f32 {v(G)}, {v(G)}, {v(G+1)}'); em(f'v_cvt_pk_bf16_f32 {v(G+1)}, {v(G+2)}, {v(G+3)}')
            em(f'v_lshrrev_b32 {t16}, 1, {t16}')
            em(f's_mul_i32 {sT2}, {sJ}, 1088'); em(f's_add_u32 {sT2}, {sT2}, {sGKT}')
            self.wsstore(v(G, 2), t16, sT2, 0, width=2)
            em(f's_mov_b64 exec, {sEx}')
            em.force_wait(vm=0)
        self.setup_local()
        self.only_wave(3, gather, invert=True)
        self.group_sync(4 * l + 0, mid=lambda: self.only_wave(3, lambda: self.p1_loader(l)), bar=False)

    def w1dma(self, p, m, tag, slot=None, voff=vD1):
        base = sW1c2 if p == 2 else sW1c0
        if p != 1 and not slot: self.rot(m, 64 * 2752, base)
        imm = (64 if p == 1 else 0) + (0 if slot is None else slot * 16 * 2752)
        self.dma(SW1, voff, sR, imm, self.w1pl[p][m], tag, nt=self.o.nt_w1, slot=slot)

    def p1_bg(self, l, side):
        em = self.em; o = self.o
        self.w1pl = [list(self.pl['k']), self.pl['v'][4:] + self.pl['q'][:4], self.pl['v'][:4] + self.pl['q'][4:]]
        if l == 0:
            side.add(lambda: self.touch_x(v(TMP), TMP + 1))
        assert o.w1_early <= 4
        for m in range(o.w1_early):
            side.add(lambda m=m: (self.w1dma(0, m, 'w1a'), self.w1dma(1, m, 'w1a')))
        if l == 0:
            side.add(lambda: em.wait_vm_tag('wo'))
            for i in range(8): side.add(*self.stage_read_items(WOA, i, self.stq[2 * i], self.stq[2 * i + 1]))

    def p1_gap(self, l):
        if l == 0: self.res_convert(to_m1=True)

    def p1_loader(self, l):
        em = self.em; o = self.o
        vo = v(TMP)
        em(f'v_subrev_u32 {vo}, {3*16*2752}, {vD1}')
        n = 0
        for m in range(o.w1_early, 8):
            for s in range(4):
                for p in range(2):
                    self.w1dma(p, m, 'solo', slot=s, voff=vo); n += 1

    def res_convert(self, to_m1):
        em = self.em
        t0, t1, t2 = v(TMP), v(TMP + 1), v(TMP + 2)
        em(f's_add_u32 {sT2}, {sWl}, {S_ADDR}')
        em(f'v_add_u32 {t0}, {sT2}, {vL16}')
        em(f'v_and_b32 {t1}, 7, {vLane}'); em(f'v_lshlrev_b32 {t1}, 7, {t1}'); em(f'v_lshrrev_b32 {t2}, 4, {vLane}'); em(f'v_lshl_add_u32 {t1}, {t2}, 5, {t1}')
        em(f'v_bfe_u32 {t2}, {vLane}, 3, 1'); em(f'v_lshl_add_u32 {t1}, {t2}, 3, {t1}'); em(f'v_add_u32 {t1}, {sT2}, {t1}')
        if to_m1:
            for h in range(2): em(f'ds_write_b128 {t0}, {a(RES+4*h,4)} offset:{h*4096}')
            em.wait_lg(0)
            for h in range(2):
                em(f'ds_read_b64 {a(RES+4*h,2)}, {t1} offset:{h*4096}'); em(f'ds_read_b64 {a(RES+4*h+2,2)}, {t1} offset:{h*4096+16}')
        else:
            for h in range(2):
                em(f'ds_write_b64 {t1}, {a(RES+4*h,2)} offset:{h*4096}'); em(f'ds_write_b64 {t1}, {a(RES+4*h+2,2)} offset:{h*4096+16}')
            em.wait_lg(0)
            for h in range(2): em(f'ds_read_b128 {a(RES+4*h,4)}, {t0} offset:{h*4096}')
        em.wait_lg(0)

    def setup_local(self, final=False):
        em = self.em
        t0, t1, t2 = v(TMP + 1), v(TMP + 2), v(TMP + 3)
        em(f'v_and_b32 {t0}, 7, {vLane}'); em(f's_lshl_b32 {sT2}, {sW}, 3'); em(f'v_add_u32 {t0}, {sT2}, {t0}')
        em(f'v_lshrrev_b32 {t1}, 3, {vLane}'); em(f'v_lshlrev_b32 {t1}, 9, {t1}'); em(f'v_lshl_add_u32 {v(vStM)}, {t0}, 4, {t1}')
        em(f's_lshl_b32 {sT2}, {sW}, 13'); em(f's_add_u32 {sT2}, {sT2}, {S_ADDR}')
        if not final:
            em(f'v_lshlrev_b32 {t1}, 7, {vHi}'); em(f'v_xor_b32 {t1}, {t1}, {vL16}'); em(f'v_add_u32 {v(vRedW)}, {sT2}, {t1}')
            em(f'v_bfe_u32 {t1}, {vLane}, 3, 1'); em(f'v_lshrrev_b32 {t2}, 4, {vLane}')
            em(f'v_lshlrev_b32 {v(vOut)}, 4, {t0}'); em(f'v_lshl_add_u32 {v(vStSt)}, {t2}, 10, {v(vOut)}')
            em(f'v_lshl_add_u32 {v(vOut)}, {t1}, 9, {v(vOut)}'); em(f'v_lshl_add_u32 {v(vOut)}, {t2}, 10, {v(vOut)}')
            em(f'v_lshlrev_b32 {v(vRedR)}, 3, {t1}'); em(f'v_xor_b32 {v(vRedR)}, {v(vRedR)}, {t0}'); em(f'v_lshlrev_b32 {v(vRedR)}, 4, {v(vRedR)}')
            em(f'v_lshl_add_u32 {v(vRedR)}, {t1}, 9, {v(vRedR)}'); em(f'v_lshl_add_u32 {v(vRedR)}, {t2}, 11, {v(vRedR)}'); em(f'v_add_u32 {v(vRedR)}, {S_ADDR:#x}, {v(vRedR)}')
            em(f'v_and_b32 {t0}, 15, {vLane}'); em(f'v_lshlrev_b32 {t0}, 4, {t0}'); em(f'v_lshl_add_u32 {t0}, {vHi}, 8, {t0}')
            em(f'v_lshlrev_b32 {t1}, 4, {vHi}'); em(f'v_add_u32 {t1}, 512, {t1}'); em(f'v_and_b32 {t2}, 16, {vLane}'); em(f'v_cmp_ne_u32 vcc, 0, {t2}')
            em(f'v_cndmask_b32 {t0}, {t0}, {t1}, vcc'); em(f's_mul_i32 {sT2}, {sW}, 544'); em(f'v_add_u32 {v(vKT)}, {sT2}, {t0}')
        else:
            for i in range(4):
                em(f'v_xor_b32 {t0}, {64*i}, {vL16}'); em(f'v_add_u32 {v(BB+i)}, {sT2}, {t0}')
            em(f'v_lshrrev_b32 {t0}, 3, {vLane}'); em(f'v_lshlrev_b32 {v(vKT)}, 2, {t0}')
            em(f's_lshl_b32 {sT2}, {sW}, 3'); em(f'v_add_u32 {t0}, {sT2}, {t0}')
            em(f'v_and_b32 {t1}, 7, {vLane}')
            em(f'v_lshlrev_b32 {v(vOut)}, 10, {t0}'); em(f'v_lshl_add_u32 {v(vOut)}, {t1}, 4, {v(vOut)}')
            em(f'v_and_b32 {t2}, 3, {vLane}'); em(f'v_lshlrev_b32 {t2}, 2, {t2}'); em(f'v_xor_b32 {t2}, {t2}, {t0}'); em(f'v_lshlrev_b32 {t2}, 4, {t2}')
            em(f'v_lshl_add_u32 {v(vRedR)}, {t1}, 10, {t2}'); em(f'v_add_u32 {v(vRedR)}, {S_ADDR:#x}, {v(vRedR)}')

    def unpack_items(self, half, U):
        it = [f'v_accvgpr_read_b32 {v(U+2*r+1)}, {a(RES+4*half+r)}' for r in range(4)]
        for r in range(4):
            it += [f'v_lshlrev_b32 {v(U+2*r)}, 16, {v(U+2*r+1)}', f'v_and_b32 {v(U+2*r+1)}, 0xffff0000, {v(U+2*r+1)}']
        return it
    def reduce_items(self, half, acc0, acc1, R, U, rs, sti, final, pk, unpack):
        em = self.em
        it = []
        for c in range(8):
            src = v((acc0 if c < 4 else acc1) + 4 * (c & 3), 4)
            ad = v(BB + (c & 3)) if final else v(vRedW)
            it.append(f'ds_write_b128 {ad}, {src} offset:{c*1024}')
        it.append(self.barrier)
        o2 = 512 if final else 1024
        for w in range(4):
            it.append(f'ds_read_b128 {v(R+8*w,4)}, {v(vRedR)} offset:{w*8192}'); it.append(f'ds_read_b128 {v(R+8*w+4,4)}, {v(vRedR)} offset:{w*8192+o2}')
        if unpack: it += self.unpack_items(half, U)
        def add(d, s):
            if pk: return [f'v_pk_add_f32 {v(d+r,2)}, {v(d+r,2)}, {v(s+r,2)}' for r in range(0, 8, 2)]
            return [f'v_add_f32 {v(d+r)}, {v(d+r)}, {v(s+r)}' for r in range(8)]
        if rs is None: it += add(R, U)
        it += add(R, R + 8) + add(R + 16, R + 24) + add(R, R + 16)
        if rs is not None: it += [f'v_fma_f32 {v(R+r)}, {v(R+r)}, {rs}, {v(U+r)}' for r in range(8)]
        P = R + 8
        for r in range(4): it.append(f'v_cvt_pk_bf16_f32 {v(P+r)}, {v(R+2*r)}, {v(R+2*r+1)}')
        if final:
            def st():
                em(f's_add_u32 {sT}, {sOutRow}, {half*32768}')
                em(f'buffer_store_dwordx4 {v(P,4)}, {v(vOut)}, {SOUT}, {sT} offen' + self.o.outsc, tag='st')
            it.append(st)
            return it
        it.append(lambda: self.wsstore(v(P, 4), v(vOut), sXst, half * 32768))
        S, Q, T = R + 16, R + 18, v(R + 20)
        if pk:
            it += [f'v_pk_add_f32 {v(S,2)}, {v(R,2)}, {v(R+2,2)}', f'v_pk_mul_f32 {v(Q,2)}, {v(R,2)}, {v(R,2)}']
            it += [f'v_pk_fma_f32 {v(Q,2)}, {v(R+2,2)}, {v(R+2,2)}, {v(Q,2)}']
            for r in (4, 6): it += [f'v_pk_add_f32 {v(S,2)}, {v(S,2)}, {v(R+r,2)}', f'v_pk_fma_f32 {v(Q,2)}, {v(R+r,2)}, {v(R+r,2)}, {v(Q,2)}']
            it += [f'v_add_f32 {v(S)}, {v(S)}, {v(S+1)}', f'v_add_f32 {v(Q)}, {v(Q)}, {v(Q+1)}']
        else:
            it += [f'v_add_f32 {v(S)}, {v(R)}, {v(R+1)}', f'v_mul_f32 {v(Q)}, {v(R)}, {v(R)}', f'v_fmac_f32 {v(Q)}, {v(R+1)}, {v(R+1)}']
            for r in range(2, 8): it += [f'v_add_f32 {v(S)}, {v(S)}, {v(R+r)}', f'v_fmac_f32 {v(Q)}, {v(R+r)}, {v(R+r)}']
        S, Q = v(S), v(Q)
        it += [f'v_accvgpr_write_b32 {a(RES+4*half)}, {v(P)}', f'v_accvgpr_write_b32 {a(RES+4*half+1)}, {v(P+1)}',
               f'v_add_f32_dpp {S}, {S}, {S} row_ror:8 {DPPM}', f'v_add_f32_dpp {Q}, {Q}, {Q} row_ror:8 {DPPM}',
               f'v_accvgpr_write_b32 {a(RES+4*half+2)}, {v(P+2)}', f'v_accvgpr_write_b32 {a(RES+4*half+3)}, {v(P+3)}',
               f'v_permlane16_swap_b32 {S}, {Q}', f'v_add_f32 {S}, {S}, {Q}', f'v_mov_b32 {T}, {S}', f'v_permlane32_swap_b32 {S}, {T}', f'v_add_f32 {S}, {S}, {T}']
        def st2():
            em(f's_mov_b64 {sEx}, exec'); em(f's_mov_b64 exec, {sMaskSt}')
            self.wsstore(S, v(vStSt), sStst, sti * 16 * 8192 + half * 2048, width=1)
            em(f's_mov_b64 exec, {sEx}')
        it.append(st2)
        return it

    def p2(self, l):
        em = self.em; o = self.o
        KT, QF = AF, AF + 32
        accs = [[ACC, ACC + 16], [ACC + 32, 232]]
        DB = [MR, MR + 16, BB]
        OB = [AUX, CB]; RC = [v(TMP), v(TMP + 1)]
        lds = []
        for n in range(16):
            h, i = divmod(n, 8)
            if n < 8: lds.append(lambda i=i: self.wsload(v(KT + 4 * i, 4), v(vKT), sGKT, i * 2176, tag='A'))
            lds.append(lambda n=n, h=h, i=i: self.wsload(v(QF + 4 * n, 4), vAW, sQR, h * 32768 + i * 4096, tag='A'))
        for f in lds[:o.pre2]: f()
        lds = lds[o.pre2:]
        side = Side(em)
        def attn(n): em(f'{MF} {v(DB[n%3],16)}, {v(KT+4*(n%8),4)}, {v(QF+4*n,4)}, 0')
        def post(n):
            D = DB[n % 3]; O = OB[n % 2]; rc = RC[n % 2]
            it = [f'v_add_f32 {rc}, {s1em6}, {v(D+8)}', f'v_rcp_f32 {rc}, {rc}']
            it += [f'v_mul_f32 {v(D+r)}, {v(D+r)}, {rc}' for r in range(8)]
            it += [f'v_cvt_pk_bf16_f32 {v(O+r)}, {v(D+2*r)}, {v(D+2*r+1)}' for r in range(4)]
            return it
        attn(0); attn(1)
        if lds: lds.pop(0)()
        self.emit(post(0))
        for n in range(16):
            h, i = divmod(n, 8)
            nxt = post(n + 1) if n + 1 < 16 else []
            O = v(OB[n % 2], 4)
            if n + 2 < 16: attn(n + 2)
            if lds: lds.pop(0)()
            for t in nxt[:5]: em(t)
            for nt in range(2):
                c = v(accs[h][nt], 16)
                em(f'{MF} {c}, {a(WOA + i*8 + nt*4, 4)}, {O}, ' + ('0' if i == 0 else c))
                if nt == 0 and lds: lds.pop(0)()
                for t in (nxt[5:10] if nt == 0 else nxt[10:]): em(t)
                if not lds: side.run(o.fill_p2)
            if n == 5: self.p2_bg(l, side)
            if n == 8:
                side.add(*self.reduce_items(0, accs[0][0], accs[0][1], QF, ACC, None, 0, False, False, True))
                side.add(*self.unpack_items(1, ACC + 16)); side.add(self.barrier)
        self.ts('p2mf')
        side.flush()
        self.ts('p2main')
        self.emit(self.reduce_items(1, accs[1][0], accs[1][1], QF + 32, ACC + 16, None, 0, False, True, False))
        self.p2_tail(l)

    def p2_bg(self, l, side):
        if l == 0:
            side.add(lambda: self.touch_h(v(TMP + 2), v(TMP + 3)))
        for m in range(8): side.add(lambda m=m: self.w1dma(2, m, 'w1c'))
        if l == 0:
            self.w2next = 0; self.w2rd = 0; self.pendq = []
            side.add(*self.w2_round(list(range(24, 32))))

    def p2_tail(self, l):
        em = self.em
        if l == 0:
            def mid():
                self.barrier()
                self.emit(self.w2_round(list(range(24, 32)) + list(range(32, 38))[:self.o.w2_g1]))
                em.wait_vm_tag(('w1a', 'w1c'))
                OWN = [v(MR + 4), v(MR + 5), v(MR + 6)]; ONE = v(MR + 8, 4)
                for i in range(3): em(f'v_add_u32 {OWN[i]}, {sWl}, {vTr[i]}')
                for i in range(4): em(f'v_mov_b32 {v(MR+8+i)}, 0x3f803f80')
                for p in range(3): self.emit(self.colsum_items(self.w1pl[p], v(ACC + 16 * p, 16), MR + 12, OWN, ONE, True))
                self.colsum_exchange([v(ACC), v(ACC + 16), v(ACC + 32)], [0, 1, 2], 39 * 4096, BB)
            self.group_sync(1, mid=mid, bar=False)
        else:
            def mid():
                em.wait_vm_tag(('w1a', 'w1c'))
                self.barrier()
                self.res_convert(to_m1=False)
            self.group_sync(5, mid=mid, bar=False)

    def w2_round(self, quads):
        em = self.em
        items = []
        pend = list(range(self.w2rd, self.w2next))
        if pend: items.append(lambda: em.wait_vm_tag('w2s'))
        for k, m in enumerate(pend): items += self.stage_read_items(W2A, m, self.pendq[2 * k], self.pendq[2 * k + 1])
        self.w2rd = self.w2next
        new = list(range(self.w2next, min(22, self.w2next + len(quads) // 2)))
        if new:
            if set(quads) & set(self.pendq): items.append(lambda: em.wait_lg(0))
            for k, m in enumerate(new): items.append(lambda k=k, m=m: self.stage_dma(SW2, m, quads[2 * k], quads[2 * k + 1], 'w2s'))
        self.w2next += len(new); self.pendq = list(quads)
        return items

    def p3(self, l):
        em = self.em; o = self.o
        ld = self.a_loader(o.pre, 0)
        side = Side(em)
        side.add(*self.stats_T_items(False))
        def ld2(i):
            ld(i)
            if i == 32 - o.pre and l == 0: side.add(*self.w2_round(list(range(24, 38))))
        self.pass2(range(32), self.w1pl[:2], [ACC, ACC + 16], False, side, lambda i: (2 if i < 32 - o.pre else 1) if i >= 10 else 0, loader=ld2)
        self.emit(self.corr_items(0, ACC, False)); self.emit(self.corr_items(1, ACC + 16, False))
        self.ts('p3a')
        def epi(p):
            A = ACC + 16 * p
            it = [f'v_cvt_pk_bf16_f32 {v(A+r)}, {v(A+2*r)}, {v(A+2*r+1)}' for r in range(8)]
            it += [f'v_pk_max_i16 {v(A+r)}, {v(A+r)}, 0' for r in range(8)]
            return it
        def st(p):
            A = ACC + 16 * p
            self.wsstore(v(A, 4), vL16, sHks, p * 2048); self.wsstore(v(A + 4, 4), vL16, sHks, p * 2048, off=1024)
        side.q = epi(0) + [lambda: st(0)] + epi(1) + [lambda: st(1)] + side.q
        self.p3_bg(l, side)
        self.pass1(self.w1pl[2], ACC + 32, side, lambda ks: o.fill_p3 if ks >= 2 else 0)
        self.emit(self.corr_items(2, ACC + 32, False))
        side.flush()
        self.ts('p3b')
        self.emit(epi(2))
        L = em.newlabel('Lh3')
        em(f's_cmp_eq_u32 {sHas3}, 0'); em(f's_cbranch_scc1 {L}')
        em.cond_begin(); st(2); em.cond_end()
        em.label(L)
        self.p3_tail(l)

    def p3_bg(self, l, side):
        if l == 0:
            side.add(self.barrier)
            rest = list(range(self.w2next, 22))
            quads = self.w1pl[0] + self.w1pl[1]
            for k, m in enumerate(rest): side.add(lambda k=k, m=m: self.stage_dma(SW2, m, quads[2 * k], quads[2 * k + 1], 'w2s'))
            self.pendq = self.pendq[:2 * (self.w2next - self.w2rd)] + quads[:2 * len(rest)]
            self.w2next = 22
    def p3_tail(self, l):
        em = self.em
        if l == 0:
            self.group_sync(2, pre=self.setup_local, mid=lambda: self.emit(self.w2_round([])), tags=None)
            assert self.w2rd == 22, self.w2rd
        else:
            self.group_sync(6, pre=lambda: self.setup_local(final=True), tags=None)

    def p4(self, l):
        em = self.em; o = self.o
        final = l == 1
        accs = [[ACC, ACC + 16], [ACC + 32, 232]]
        NR = 24
        def ld(n):
            h, m = divmod(n, 22)
            dst = v(AF + 4 * (n % NR), 4)
            if m == 21:
                em(f's_sub_u32 {sT2}, {sHR}, {sAdj}'); self.wsload(dst, vAW, sT2, h * H_T + m * 4096, tag='A')
            else: self.wsload(dst, vAW, sHR, h * H_T + m * 4096, tag='A')
        for n in range(o.pre): ld(n)
        self.wsload(v(AUX, 4), v(vStM), sStR, 0, tag='stat')
        side = Side(em)
        S, Q, M = v(AUX), v(AUX + 1), v(AUX + 2); RS = [v(TMP), v(TMP + 1)]
        side.add(f'v_add_f32 {S}, {S}, {v(AUX+1)}', f'v_add_f32 {v(AUX+2)}, {v(AUX+2)}, {v(AUX+3)}', f'v_add_f32 {S}, {S}, {v(AUX+2)}',
                 f'v_add_f32_dpp {S}, {S}, {S} row_ror:8 {DPPM}', f'v_mov_b32 {Q}, {S}', f'v_permlane16_swap_b32 {S}, {Q}',
                 f'v_mul_f32 {S}, {sInv}, {S}', f'v_mul_f32 {Q}, {sInv}, {Q}', f'v_fma_f32 {Q}, -{S}, {S}, {Q}', f'v_max_f32 {Q}, 0, {Q}',
                 f'v_add_f32 {Q}, {sEps}, {Q}', f'v_rsq_f32 {RS[0]}, {Q}', f'v_mov_b32 {RS[1]}, {RS[0]}', f'v_permlane32_swap_b32 {RS[0]}, {RS[1]}')
        if final: side.add(f'ds_bpermute_b32 {RS[0]}, {v(vKT)}, {RS[0]}', f'ds_bpermute_b32 {RS[1]}, {v(vKT)}, {RS[1]}')
        for n in range(44):
            h, m = divmod(n, 22)
            x = v(AF + 4 * (n % NR), 4)
            for nt in range(2):
                c = v(accs[h][nt], 16)
                em(f'{MF} {c}, {a(W2A + m*8 + nt*4, 4)}, {x}, ' + ('0' if m == 0 else c))
                if nt == 0 and n + o.pre < 44: ld(n + o.pre)
                if n >= 10: side.run(o.fill_p4)
            if n == 22:
                side.add(*self.reduce_items(0, accs[0][0], accs[0][1], MR, ACC, RS[0], 1, final, False, True))
                side.add(*self.unpack_items(1, ACC + 16)); side.add(self.barrier)
            if n == 43 - o.pre: self.p4_bg(l, side)
        self.ts('p4mf')
        side.flush()
        self.ts('p4main')
        self.emit(self.reduce_items(1, accs[1][0], accs[1][1], MR, ACC + 16, RS[1], 1, final, True, False))
        if not final:
            def mid():
                for m in range(self.o.kv_early, 8): self.qkv_dma('kv', m, 'kv')
                em.wait_vm_tag('kv')
            self.group_sync(3, mid=mid)

    def p4_bg(self, l, side):
        if l == 0:
            for m in range(self.o.kv_early):
                side.add(lambda m=m: self.qkv_dma('kv', m, 'kv'))

    def p5_start(self):
        em = self.em; o = self.o
        ld0 = self.a_loader(o.pre, 1)
        def ld(i):
            ld0(i)
            if i + o.pre >= 32 and i + o.pre < 40:
                m = i + o.pre - 32
                self.qkv_dma('q', m, 'q')
        side = Side(em)
        side.add(*self.stats_T_items(True))
        side.add(f'{MF} {v(MR,16)}, {v(AUX,4)}, {v(CB+2,4)}, 0')
        self.pass2(range(32), [self.pl['k'], self.pl['v']], [ACC, ACC + 16], True, side, lambda i: 2 if i >= 10 else 0, loader=ld)
        side.flush()
        self.emit(self.corr_items('k', ACC, True)); self.emit(self.corr_items('v', ACC + 16, True))
        self.barrier()
        self.ts('p5a')

    def finish(self):
        em = self.em
        L = em.newlabel('Le')
        em(f's_or_b32 {sT}, s2, {sW}'); em(f's_cmp_lg_u32 {sT}, 0'); em(f's_cbranch_scc1 {L}')
        em.cond_begin()
        em('s_mov_b64 exec, 1'); em(f'v_mov_b32 v24, {sNonce}'); em(f'buffer_store_dword v24, off, {SWS}, 0 sc1'); em('s_mov_b64 exec, -1')
        em.cond_end()
        em.label(L)
        if self.o.ts:
            self.ts('end')
            em(f's_lshl_b32 {sT}, s2, 2'); em(f's_add_u32 {sT}, {sT}, {sW}'); em(f's_lshl_b32 {sT}, {sT}, 8'); em(f's_add_u32 {sT}, {sT}, {WS_DBG}')
            em(f'v_lshlrev_b32 v24, 2, {vLane}')
            em(f'buffer_store_dword v39, v24, {SWS}, {sT} offen')
            if self.o.dbg:
                L = em.newlabel('Ld')
                em(f's_or_b32 {sT}, s2, {sW}'); em(f's_cmp_lg_u32 {sT}, 0'); em(f's_cbranch_scc1 {L}')
                em('s_memrealtime s[0:1]'); em.force_wait(lg=0); em('s_sub_u32 s0, s0, s3')
                em('v_readlane_b32 s1, v39, 0'); em('s_nop 3'); em('v_subrev_u32 v39, s1, v39'); em('v_writelane_b32 v39, s0, 0')
                em('v_mul_u32_u24 v25, 3, v0'); em('v_lshlrev_b32 v25, 2, v25'); em('ds_bpermute_b32 v26, v25, v39'); em.force_wait(lg=0)
                em('s_mov_b64 exec, 0xffff')
                em('global_store_dword v24, v26, s[100:101]')
                em.label(L)
        em('s_endpgm')

    def body(self, sc):
        self.sc = sc; self.swin = None; self.lin = True
        seq = [lambda: self.p1_rest(0), lambda: self.p2(0), lambda: self.p3(0), lambda: self.p4(0),
               lambda: (self.p5_start(), self.p1_rest(1)), lambda: self.p2(1), lambda: self.p3(1), lambda: self.p4(1)]
        for i, f in enumerate(seq):
            self.em.comment(f'---------------- phase {i+1} ({"slow" if sc else "fast"}) ----------------')
            f()
            if self.o.stop == i + 1: break
        self.finish()

    def build(self):
        em = self.em
        self.sc = ''
        self.prologue()
        self.p1_start()
        if self.o.force_slow: em('s_branch L_slow_tramp')
        em('s_cbranch_vccz L_fast')
        em.label('L_slow_tramp')
        em('s_getpc_b64 s[36:37]'); em.label('L_pc0')
        em('s_add_u32 s36, s36, L_slow-L_pc0'); em('s_addc_u32 s37, s37, 0'); em('s_setpc_b64 s[36:37]')
        em.label('L_end'); em('s_endpgm')
        em.label('L_fast')
        snap = (list(em.vmq), list(em.lgq), self.nts, list(em.hist))
        self.body('')
        em.label('L_slow')
        em.vmq, em.lgq, self.nts, em.hist = list(snap[0]), list(snap[1]), snap[2], list(snap[3])
        self.body(' sc1')
        hdr = open('cdna_kernels/' + NAME + '.s.ref').read().split('; Override launch')[0]
        s = hdr + '; @launch grid=(256,1,1) block=(256,1,1) lds=163840\n'
        s += '.amdgcn_target "amdgcn-amd-amdhsa--gfx950"\n.text\n'
        s += f'.globl {NAME}_kernel\n.p2align 8\n.type {NAME}_kernel,@function\n{NAME}_kernel:\n'
        s += em.text()
        s += f""".section .rodata,"a"
.p2align 6
.amdhsa_kernel {NAME}_kernel
  .amdhsa_next_free_vgpr 512
  .amdhsa_next_free_sgpr 102
  .amdhsa_accum_offset 256
  .amdhsa_group_segment_fixed_size 0
  .amdhsa_kernarg_size 72
  .amdhsa_user_sgpr_count 2
  .amdhsa_user_sgpr_kernarg_segment_ptr 1
  .amdhsa_system_sgpr_workgroup_id_x 1
  .amdhsa_float_denorm_mode_32 3
.end_amdhsa_kernel
"""
        return s

def main():
    ap = argparse.ArgumentParser()
    ap.add_argument('-o', default='k.s')
    ap.add_argument('--ts', action='store_true')
    ap.add_argument('--dbg', action='store_true')
    ap.add_argument('--stop', type=int, default=0)
    ap.add_argument('--spin', type=int, default=200000)
    ap.add_argument('--pre', type=int, default=10)
    ap.add_argument('--pre2', type=int, default=13)
    ap.add_argument('--fill_p1', type=int, default=2)
    ap.add_argument('--fill_p2', type=int, default=3)
    ap.add_argument('--fill_p3', type=int, default=3)
    ap.add_argument('--fill_p4', type=int, default=3)
    ap.add_argument('--w1_early', type=int, default=3)
    ap.add_argument('--w2_g1', type=int, default=6)
    ap.add_argument('--rot', type=int, default=1)
    ap.add_argument('--kv_early', type=int, default=4)
    ap.add_argument('--nt_stage', action='store_true')
    ap.add_argument('--nt_w1', action='store_true')
    ap.add_argument('--codepf', type=int, default=1)
    ap.add_argument('--outsc', default='')
    ap.add_argument('--force_slow', action='store_true')
    o = ap.parse_args()
    if o.outsc: o.outsc = ' ' + o.outsc
    g = Gen(o)
    s = g.build()
    open(o.o, 'w').write(s)
    if o.ts:
        import json; json.dump(g.tsnames, open(o.o + '.ts.json', 'w'))
    print(f'wrote {o.o}: {g.em.ninstr} instrs, {g.em.nops} nop states, {len(s)} bytes')
if __name__ == '__main__': main()
```

```python
import sys, struct, argparse
from emit import Em

NAME = "interleave_layers__linear_attn_block__dense_activation_relu__prompt"
def f2u(x): return struct.unpack('<I', struct.pack('<f', x))[0]

WS_EPOCH = 0
WS_HELLO = 1024
WS_FLAG = 4096
WS_MSG = 0x10000
WS_KT = 0x120000
WS_ST = 0x170000
WS_X = 0x200000
WS_H = 0x400000
WS_DBG = 0x2000000
WS_SIZE = 0x4000000
MSG_B = 2176; KT_B = 17408; ACT_B = 131072; H_T = 86 * 1024; H_B = 4 * H_T
NONCE_K = 0x9E3779B1

sW, sG, sJ, sNonce = 's4', 's5', 's6', 's7'
SX, SQKV, SWO, SW1, SW2, SOUT, SWS = 's[8:11]', 's[12:15]', 's[16:19]', 's[20:23]', 's[24:27]', 's[28:31]', 's[32:35]'
sT, sT2, sWl, sSpin = 's52', 's53', 's54', 's55'
sGX, sGH, sG8K, sGKT, sG128 = 's56', 's57', 's58', 's59', 's60'
sQcol, sW1c0, sW1c2, sHks, sHas3 = 's61', 's62', 's63', 's64', 's65'
sC128, sXR, sHR, sStR, sAdj = 's66', 's67', 's68', 's69', 's70'
sQR, sInv, sEps, s1em6, sLog2e = 's71', 's74', 's75', 's76', 's73'
sXrow, sJmsg, sMaskInv, sOutRow, sHello = 's77', 's78', 's79', 's80', 's81'
sEx = 's[82:83]'; sMaskSt = 's[84:85]'
sTS = 86
sDelta, sDelta2 = 's88', 's[88:89]'
sLn2, sLn22 = 's90', 's[90:91]'
sXst, sStst, sQst = 's92', 's93', 's94'
sRot, sR, sFlag, sG256 = 's95', 's96', 's97', 's98'

vLane, vL16, vAT, vAW = 'v0', 'v1', 'v2', 'v3'
vTr = ['v4', 'v5', 'v6']
vDq, vD1, vDs, vS0, vS1, vS0w, vS1w = 'v7', 'v8', 'v9', 'v10', 'v11', 'v12', 'v14'
vStT, vPoll, vRl, vHi, vTid = 'v13', 'v15', 'v16', 'v17', 'v18'
CS = {'q': 'v19', 'k': 'v20', 'v': 'v21', 0: 'v22', 1: 'v23', 2: 'v34'}
AUX = 24
CB = 28
TMP = 35
BB = 40
MR = 56
ACC = 88
AF = 136
def v(i, n=1): return f'v{i}' if n == 1 else f'v[{i}:{i+n-1}]'
def a(i, n=1): return f'a{i}' if n == 1 else f'a[{i}:{i+n-1}]'
def Afrag(ks): return v(AF + 4 * ks, 4) if ks < 30 else a(248 + 4 * (ks - 30), 4)
RES = 240
W2A = 0; WOA = 176
vRedW, vRedR, vOut, vStSt, vStM, vKT = 248, 249, 250, 251, 252, 253
MF = 'v_mfma_f32_32x32x16_bf16'
DPPM = 'row_mask:0xf bank_mask:0xf'

QS = 32
S_ADDR = QS * 4096

class Side:
    def __init__(self, em): self.q = []; self.em = em
    def add(self, *items): self.q.extend(items)
    def run(self, k):
        while k > 0 and self.q:
            it = self.q.pop(0)
            if callable(it): it()
            else: self.em(it)
            k -= 1
    def flush(self): self.run(1 << 30)

class Gen:
    def __init__(self, opt):
        self.o = opt; self.em = Em(); self.nts = 0; self.swin = None; self.lin = False
    def emit(self, items):
        for t in items: t() if callable(t) else self.em(t)

    def ts(self, name):
        if not self.o.ts: return
        em = self.em
        i = self.nts; self.nts += 1
        assert i < 64
        em.force_wait(lg=0)
        em(f's_memtime s[{sTS}:{sTS+1}]'); em.force_wait(lg=0)
        em(f'v_writelane_b32 v39, s{sTS}, {i}')
        self.tsnames[i] = name
    def dma(self, srd, voff, sbase, imm, quad, tag, nt=False, slot=None):
        em = self.em
        if slot is None: em(f's_add_u32 m0, {sWl}, {quad*4096}')
        else: em(f's_mov_b32 m0, {quad*4096 + slot*1024}')
        em(f's_add_u32 {sT}, {sbase}, {imm}')
        em(f'buffer_load_dwordx4 {voff}, {srd}, {sT} offen' + (' nt' if nt else '') + ' lds', tag=tag)
    def tr(self, dst, quad, slot, base=None):
        addr = quad * 4096 + slot * 1024
        b = (base or vTr)[addr >> 16]; off = addr & 0xFFFF
        return [f'ds_read_b64_tr_b16 {v(dst,2)}, {b} offset:{off}', f'ds_read_b64_tr_b16 {v(dst+2,2)}, {b} offset:{off+(256 if self.lin else 512)}']
    def wsload(self, dst, voff, sbase, imm, width=4, tag=None, off=0):
        em = self.em
        em(f's_add_u32 {sT}, {sbase}, {imm}')
        sfx = {1: 'dword', 2: 'dwordx2', 4: 'dwordx4'}[width]
        em(f'buffer_load_{sfx} {dst}, {voff}, {SWS}, {sT} offen' + (f' offset:{off}' if off else '') + ' sc1', tag=tag)
    def wsstore(self, src, voff, sbase, imm, width=4, tag='st', off=0, sc=None):
        em = self.em
        em(f's_add_u32 {sT}, {sbase}, {imm}')
        sfx = {1: 'dword', 2: 'dwordx2', 4: 'dwordx4'}[width]
        sc = self.sc if sc is None else sc
        em(f'buffer_store_{sfx} {src}, {voff}, {SWS}, {sT} offen' + (f' offset:{off}' if off else '') + sc, tag=tag)
    def barrier(self):
        self.em.wait_lg(0); self.em('s_barrier')
    def only_wave(self, w, f, invert=False):
        em = self.em
        L = em.newlabel('Lw')
        em(f's_cmp_{"eq" if invert else "lg"}_u32 {sW}, {w}'); em(f's_cbranch_scc1 {L}')
        em.cond_begin(); f(); em.cond_end()
        em.label(L)
    def spin_tail(self, L):
        em = self.em
        em(f's_sub_u32 {sSpin}, {sSpin}, 1'); em(f's_cbranch_scc0 {L}'); em(f's_mov_b32 {sSpin}, 0')
    def group_sync(self, p, pre=None, mid=None, tags=('st',), bar=True):
        em = self.em
        vt = v(TMP)
        if pre: pre()
        em(f'v_mov_b32 {vt}, {sNonce}')
        em(f's_add_u32 {sT2}, {sFlag}, {p*4096}')
        if tags is None: em.force_wait(vm=0)
        else: em.wait_vm_tag(tags)
        self.ts(f'drain{p}')
        em(f's_mov_b64 {sEx}, exec'); em('s_mov_b64 exec, 1')
        em(f'buffer_store_dword {vt}, off, {SWS}, {sT2}' + self.sc, tag='flag')
        em(f's_mov_b64 exec, {sEx}')
        if mid: mid()
        if bar: self.barrier()
        L = em.newlabel('Lpoll'); D = em.newlabel('Lpd')
        em(f's_add_u32 {sT2}, {sG256}, {WS_FLAG + p*4096}')
        em(f'v_lshlrev_b32 {v(TMP+1)}, 2, {vLane}')
        em.label(L)
        em(f'buffer_load_dword {vt}, {v(TMP+1)}, {SWS}, {sT2} offen sc1')
        em.force_wait(vm=0)
        em(f'v_cmp_ne_u32 vcc, {sNonce}, {vt}')
        em(f's_cbranch_vccz {D}')
        self.spin_tail(L)
        em.label(D)
        self.ts(f'sync{p}')
    def rot(self, m, stride, base):
        em = self.em
        em(f's_add_u32 {sR}, {sRot}, {m}'); em(f's_and_b32 {sR}, {sR}, 7'); em(f's_mul_i32 {sR}, {sR}, {stride}'); em(f's_add_u32 {sR}, {sR}, {base}')
    def qkv_dma(self, planes, m, tag):
        self.rot(m, 64 * 3072, sQcol)
        for p in planes: self.dma(SQKV, vDq, sR, {'q': 0, 'k': 1024, 'v': 2048}[p], self.pl[p][m], tag)

    def prologue(self):
        em = self.em; o = self.o
        em('s_cmp_ge_u32 s2, 256'); em('s_cbranch_scc1 L_end')
        em('s_load_dwordx4 s[36:39], s[0:1], 0'); em('s_load_dwordx2 s[40:41], s[0:1], 16')
        em('s_load_dwordx4 s[44:47], s[0:1], 32'); em('s_load_dwordx2 s[48:49], s[0:1], 48'); em('s_load_dwordx2 s[50:51], s[0:1], 64')
        if o.ts:
            self.tsnames = {}
            em('v_mov_b32 v39, 0')
        em(f'v_mov_b32 {vTid}, v0')
        em(f'v_lshrrev_b32 v24, 6, v0'); em(f'v_and_b32 {vLane}, 63, v0')
        em(f'v_readfirstlane_b32 {sW}, v24')
        em(f's_and_b32 {sG}, s2, 7'); em(f's_lshl_b32 {sG}, {sG}, 1'); em(f's_lshr_b32 {sT}, s2, 7'); em(f's_add_u32 {sG}, {sG}, {sT}')
        em(f's_lshr_b32 {sJ}, s2, 3'); em(f's_and_b32 {sJ}, {sJ}, 15')
        em(f's_lshl_b32 {sWl}, {sW}, 10')
        em(f's_lshl_b32 {sXrow}, {sG}, 17')
        em(f's_lshl_b32 {sQcol}, {sJ}, 6')
        em(f's_and_b32 {sRot}, {sG}, 1'); em(f's_lshl_b32 {sRot}, {sRot}, 2'); em(f's_add_u32 {sRot}, {sRot}, {sJ}'); em(f's_add_u32 {sRot}, {sRot}, s2')
        if not o.rot: em(f's_mov_b32 {sRot}, 0')
        self.pl = {'k': [0, 1, 2, 3, 8, 9, 10, 11], 'v': [4, 5, 6, 7, 12, 13, 14, 15], 'q': list(range(16, 24))}
        em(f'v_lshlrev_b32 {vL16}, 4, {vLane}')
        em(f'v_lshrrev_b32 v27, 3, {vLane}'); em(f'v_and_b32 v28, 7, {vLane}')
        em(f'v_lshrrev_b32 v29, 1, v27'); em('v_xor_b32 v28, v28, v29'); em('v_lshlrev_b32 v28, 4, v28')
        em(f's_lshl_b32 {sT}, {sW}, 5'); em(f'v_add_u32 v27, {sT}, v27'); em('v_lshlrev_b32 v27, 10, v27')
        em('v_add_u32 v25, v27, v28'); em('v_xor_b32 v26, 64, v25')
        em(f'v_lshrrev_b32 v27, 2, {vLane}'); em(f's_lshl_b32 {sT}, {sW}, 4'); em(f'v_add_u32 v27, {sT}, v27')
        em(f'v_and_b32 v28, 3, {vLane}'); em('v_lshlrev_b32 v28, 4, v28')
        em(f'v_mul_u32_u24 {vDq}, 3072, v27'); em(f'v_add_u32 {vDq}, {vDq}, v28')
        em(f'v_mul_u32_u24 {vD1}, 2752, v27'); em(f'v_add_u32 {vD1}, {vD1}, v28')
        em.force_wait(lg=0)
        if o.dbg or o.pad:
            em('s_load_dwordx2 s[100:101], s[0:1], 56'); em('s_memrealtime s[0:1]'); em.force_wait(lg=0); em('s_mov_b32 s3, s0')
        self.ts('start')
        def srd(s, lo, nb):
            em(f's_mov_b32 s{s}, s{lo}'); em(f's_mov_b32 s{s+1}, s{lo+1}'); em(f's_mov_b32 s{s+2}, {nb}'); em(f's_mov_b32 s{s+3}, 0x00020000')
        srd(8, 36, 2048 * 1024); srd(32, 50, WS_SIZE); srd(12, 38, 512 * 3072)
        em(f'buffer_load_dword v24, off, {SWS}, 0 sc1', tag='epoch')
        self.xdma(range(0, 4))
        for m in range(4): self.qkv_dma('kv', m, 'kvlo')
        if o.codepf:
            em('s_getpc_b64 s[42:43]'); em.label('L_pcx')
            em(f's_lshr_b32 {sT}, s2, 3'); em(f's_lshl_b32 {sT}, {sT}, 2'); em(f's_add_u32 {sT}, {sT}, {sW}'); em(f's_lshl_b32 {sT}, {sT}, 10')
            em(f's_min_u32 {sT}, {sT}, L_slow-L_pcx-1024')
            em(f'v_add_u32 v30, {sT}, {vL16}')
            em(f'global_load_dwordx4 {v(MR+24,4)}, v30, s[42:43]', tag='codepf')
        self.xdma(range(4, 8))
        srd(16, 40, 512 * 1024); srd(20, 44, 512 * 2752); srd(24, 46, 1376 * 1024); srd(28, 48, 2048 * 1024)
        em(f's_mov_b32 {sSpin}, {o.spin}')
        em(f's_lshl_b32 {sGX}, {sG}, 17'); em(f's_add_u32 {sGX}, {sGX}, {WS_X}')
        em(f's_mul_i32 {sGH}, {sG}, {H_B}'); em(f's_add_u32 {sGH}, {sGH}, {WS_H}')
        em(f's_lshl_b32 {sG8K}, {sG}, 13'); em(f's_add_u32 {sG8K}, {sG8K}, {WS_ST}')
        em(f's_mul_i32 {sGKT}, {sG}, {KT_B}'); em(f's_add_u32 {sGKT}, {sGKT}, {WS_KT}'); em(f's_lshl_b32 {sG128}, {sG}, 7'); em(f's_lshl_b32 {sG256}, {sG}, 8')
        em(f's_lshl_b32 {sFlag}, {sJ}, 2'); em(f's_add_u32 {sFlag}, {sFlag}, {sW}'); em(f's_lshl_b32 {sFlag}, {sFlag}, 2'); em(f's_add_u32 {sFlag}, {sFlag}, {sG256}'); em(f's_add_u32 {sFlag}, {sFlag}, {WS_FLAG}')
        em(f's_mul_i32 {sT}, {sJ}, 3'); em(f's_lshl_b32 {sT2}, {sJ}, 1'); em(f's_add_u32 {sT2}, {sT2}, 11')
        em(f's_cmp_lt_u32 {sJ}, 11'); em(f's_cselect_b32 {sT}, {sT}, {sT2}'); em(f's_cselect_b32 {sHas3}, 1, 0')
        em(f's_cselect_b32 {sT2}, 128, 64')
        em(f's_lshl_b32 {sW1c0}, {sT}, 6'); em(f's_add_u32 {sW1c2}, {sW1c0}, {sT2}')
        em(f's_lshl_b32 {sHks}, {sT}, 11'); em(f's_add_u32 {sHks}, {sHks}, {sGH}')
        em(f's_mul_i32 {sT}, {sW}, {H_T}'); em(f's_add_u32 {sHks}, {sHks}, {sT}')
        em(f's_and_b32 {sC128}, {sJ}, 7'); em(f's_lshl_b32 {sC128}, {sC128}, 7')
        em(f's_lshr_b32 {sT}, {sJ}, 3')
        em(f's_lshl_b32 {sT2}, {sT}, 16'); em(f's_add_u32 {sXR}, {sT2}, {sGX}'); em(f's_add_u32 {sQR}, {sT2}, {sGH}')
        em(f's_add_u32 {sOutRow}, {sT2}, {sXrow}'); em(f's_add_u32 {sOutRow}, {sOutRow}, {sC128}')
        em(f's_mul_i32 {sHR}, {sT}, {2*H_T}'); em(f's_add_u32 {sHR}, {sHR}, {sGH}')
        em(f's_lshl_b32 {sStR}, {sT}, 12'); em(f's_add_u32 {sStR}, {sStR}, {sG8K}')
        em(f's_lshl_b32 {sXst}, {sC128}, 5'); em(f's_add_u32 {sXst}, {sXst}, {sXR}')
        em(f's_and_b32 {sT}, {sJ}, 4'); em(f's_lshl_b32 {sT}, {sT}, 7'); em(f's_and_b32 {sT2}, {sJ}, 3'); em(f's_lshl_b32 {sT2}, {sT2}, 2')
        em(f's_add_u32 {sStst}, {sT}, {sT2}'); em(f's_add_u32 {sStst}, {sStst}, {sStR}')
        em(f's_lshl_b32 {sQst}, {sJ}, 11'); em(f's_add_u32 {sQst}, {sQst}, {sGH}')
        em(f's_cmp_ge_u32 {sW}, 2'); em(f's_cselect_b32 {sAdj}, 4096, 0')
        em(f's_mul_i32 {sJmsg}, {sJ}, {16*MSG_B}'); em(f's_add_u32 {sJmsg}, {sJmsg}, {WS_MSG}')
        em(f's_mov_b32 {sDelta}, {f2u(1e-6*1.4426950408889634):#x}'); em(f's_mov_b32 {sLn2}, {f2u(0.6931471805599453):#x}')
        em('s_mov_b32 s89, s88'); em('s_mov_b32 s91, s90')
        em(f's_mov_b32 {sLog2e}, {f2u(1.4426950408889634):#x}'); em(f's_mov_b32 {sInv}, {f2u(1/512):#x}')
        em(f's_mov_b32 {sEps}, {f2u(1e-5):#x}'); em(f's_mov_b32 {s1em6}, {f2u(1e-6):#x}')
        em('s_mov_b32 s84, 0x00ff00ff'); em('s_mov_b32 s85, 0'); em(f's_mov_b32 {sMaskInv}, 0xffffff00')
        em(f'v_lshrrev_b32 {vHi}, 5, {vLane}')
        em(f's_lshl_b32 {sT}, {sW}, 15'); em(f'v_add_u32 {vAT}, {sT}, {vL16}')
        em(f'v_add_u32 {vAW}, {sWl}, {vL16}')
        em(f'v_bfe_u32 v27, {vLane}, 2, 2'); em(f'v_lshl_add_u32 v27, {vHi}, 2, v27')
        em(f'v_bfe_u32 v28, {vLane}, 4, 1'); em('v_lshlrev_b32 v28, 5, v28')
        em(f'v_and_b32 v29, 3, {vLane}'); em('v_lshl_add_u32 v28, v29, 3, v28')
        em(f'v_lshl_add_u32 {vTr[0]}, v27, 6, v28')
        em(f'v_lshl_add_u32 {vTr[0]}, {vHi}, 8, {vTr[0]}')
        em(f'v_add_u32 {vTr[1]}, 0x10000, {vTr[0]}'); em(f'v_add_u32 {vTr[2]}, 0x20000, {vTr[0]}')
        em(f'v_bfe_u32 v29, {vLane}, 3, 1'); em('v_lshl_add_u32 v28, v29, 6, v28')
        em(f'v_lshl_add_u32 {vS0}, v27, 7, v28'); em(f'v_add_u32 {vS0}, {sWl}, {vS0}'); em(f'v_xor_b32 {vS1}, 64, {vS0}')
        em(f'v_lshrrev_b32 v27, 3, {vLane}'); em(f'v_and_b32 v28, 7, {vLane}')
        em(f'v_bfe_u32 v29, {vLane}, 4, 1'); em('v_lshlrev_b32 v29, 2, v29'); em('v_xor_b32 v28, v28, v29'); em('v_lshlrev_b32 v28, 4, v28')
        em(f'v_lshl_add_u32 {vDs}, v27, 10, v28'); em(f's_lshl_b32 {sT}, {sW}, 14'); em(f'v_add_u32 {vDs}, {sT}, {vDs}')
        em(f'v_lshl_add_u32 v27, {vHi}, 9, {vL16}'); em(f's_lshl_b32 {sT}, {sW}, 11'); em(f'v_add_u32 {vStT}, {sT}, v27')
        em(f'v_and_b32 {vPoll}, 15, {vLane}'); em(f'v_lshlrev_b32 {vPoll}, 2, {vPoll}')
        em(f'v_readfirstlane_b32 {sNonce}, v24')
        em(f's_add_u32 {sNonce}, {sNonce}, {NONCE_K:#x}')
        em(f's_getreg_b32 {sHello}, hwreg(HW_REG_XCC_ID)'); em(f's_and_b32 {sHello}, {sHello}, 15')
        em(f's_add_u32 {sHello}, {sHello}, {sNonce}'); em(f's_add_u32 {sHello}, {sHello}, 1')
        def hello():
            em(f's_mov_b64 {sEx}, exec'); em('s_mov_b64 exec, 1')
            em(f'v_mov_b32 v24, {sHello}')
            em(f's_lshl_b32 {sT2}, {sJ}, 2'); em(f's_add_u32 {sT2}, {sT2}, {sG128}'); em(f's_add_u32 {sT2}, {sT2}, {WS_HELLO}')
            em(f'buffer_store_dword v24, off, {SWS}, {sT2} sc1')
            em(f's_mov_b64 exec, {sEx}')
        self.only_wave(0, hello)

    def xdma(self, lines):
        for c in lines:
            self.rot(c, 128, sXrow)
            for rb8 in range(4):
                self.dma(SX, 'v25' if rb8 % 2 == 0 else 'v26', sR, rb8 * 8192, (2 + c) * 4 + rb8, 'xlo' if c < 4 else 'xhi')

    def touch_q(self, vt, dst):
        em = self.em
        em(f'v_lshlrev_b32 {vt}, 7, {vLane}'); em(f's_lshl_b32 {sT2}, {sW}, 15'); em(f's_add_u32 {sT2}, {sT2}, {sQst}')
        em(f's_mov_b64 {sEx}, exec'); em('s_mov_b64 exec, 0xffff')
        em(f'buffer_load_dword {v(dst)}, {vt}, {SWS}, {sT2} offen sc1', tag='touch')
        em(f's_mul_i32 {sT2}, {sJ}, 1088'); em(f's_add_u32 {sT2}, {sT2}, {sGKT}')
        em('s_mov_b64 exec, 0x1ff')
        em(f'buffer_load_dword {v(dst+1)}, {vt}, {SWS}, {sT2} offen sc1', tag='touch')
        em(f'v_lshlrev_b32 {vt}, 12, {vLane}')
        em('s_mov_b64 exec, 0x7f')
        em(f'buffer_load_dword {v(dst+2)}, {vt}, {SWS}, {sFlag} offen sc1', tag='touch')
        em(f's_mov_b64 exec, {sEx}')
    def touch_x(self, vt, dst):
        em = self.em
        em(f'v_lshlrev_b32 {vt}, 7, {vLane}')
        em(f's_lshr_b32 {sT2}, {sW}, 1'); em(f's_lshl_b32 {sT2}, {sT2}, 15'); em(f's_add_u32 {sT2}, {sT2}, {sXst}')
        em(f's_and_b32 {sT}, {sW}, 1'); em(f's_lshl_b32 {sT}, {sT}, 11'); em(f's_add_u32 {sT2}, {sT2}, {sT}')
        em(f's_mov_b64 {sEx}, exec'); em('s_mov_b64 exec, 0xffff')
        em(f'buffer_load_dword {v(dst)}, {vt}, {SWS}, {sT2} offen sc1', tag='touch')
        em(f'v_lshlrev_b32 {vt}, 17, {vLane}')
        em(f's_lshl_b32 {sT2}, {sJ}, 2'); em(f's_add_u32 {sT2}, {sT2}, {sW}'); em(f's_lshl_b32 {sT2}, {sT2}, 7'); em(f's_add_u32 {sT2}, {sT2}, {sG8K}')
        em('s_mov_b64 exec, 3')
        em(f'buffer_load_dword {v(dst+1)}, {vt}, {SWS}, {sT2} offen sc1', tag='touch')
        em(f's_mov_b64 exec, {sEx}')
    def touch_h(self, vt, dst):
        em = self.em
        em(f'v_lshlrev_b32 {vt}, 7, {vLane}')
        em(f's_mov_b64 {sEx}, exec'); em('s_mov_b32 exec_hi, 0xffff')
        em(f'buffer_load_dword {dst}, {vt}, {SWS}, {sHks} offen sc1', tag='touch')
        em(f's_mov_b64 exec, {sEx}')

    def colsum_items(self, quads, acc, tmp, own, ones, first):
        items = []
        rds = [self.tr(tmp + 4 * (n % 2), q, 0, own) for n, q in enumerate(quads)]
        items += rds[0]
        for n in range(len(quads)):
            if n + 1 < len(quads): items += rds[n + 1]
            items.append(f'{MF} {acc}, {ones}, {v(tmp + 4*(n%2), 4)}, ' + ('0' if first and n == 0 else acc))
        return items
    def colsum_exchange(self, srcs, keys, lds, tmp):
        em = self.em
        ad = v(tmp); R = tmp + 2
        em(f'v_and_b32 {ad}, 31, {vLane}'); em(f'v_lshlrev_b32 {ad}, 4, {ad}'); em(f'v_add_u32 {ad}, {lds:#x}, {ad}')
        em(f's_lshl_b32 {sT}, {sW}, 2'); em(f'v_add_u32 {v(tmp+1)}, {sT}, {ad}')
        for p, s in enumerate(srcs): em(f'ds_write_b32 {v(tmp+1)}, {s} offset:{p*512}')
        self.barrier()
        for p in range(3): em(f'ds_read_b128 {v(R+4*p,4)}, {ad} offset:{p*512}')
        for p, k in enumerate(keys):
            r = R + 4 * p
            em(f'v_add_f32 {v(r)}, {v(r)}, {v(r+1)}'); em(f'v_add_f32 {v(r+2)}, {v(r+2)}, {v(r+3)}'); em(f'v_add_f32 {v(r)}, {v(r)}, {v(r+2)}')
            em(f'v_cvt_pk_bf16_f32 {v(r+1)}, {v(r)}, {v(r)}'); em(f'v_lshlrev_b32 {v(r+1)}, 16, {v(r+1)}'); em(f'v_sub_f32 {v(r+1)}, {v(r)}, {v(r+1)}')
            em(f'v_cvt_pk_bf16_f32 {CS[k]}, {v(r)}, {v(r+1)}')

    def stage_dma(self, srd, m, qa, qb, tag):
        self.dma(srd, vDs, sC128, m * 65536, qa, tag, nt=self.o.nt_stage); self.dma(srd, vDs, sC128, m * 65536 + 8192, qb, tag, nt=self.o.nt_stage)
    def stage_read_items(self, abase, m, qa, qb):
        items = []
        for h, q in enumerate((qa, qb)):
            addr = q * 4096; win = addr >> 16; off = addr & 0xFFFF
            def f(win=win, off=off, h=h):
                if win == 0: b0, b1 = vS0, vS1
                else:
                    if self.swin != win:
                        self.em(f'v_add_u32 {vS0w}, {win*65536:#x}, {vS0}'); self.em(f'v_add_u32 {vS1w}, {win*65536:#x}, {vS1}'); self.swin = win
                    b0, b1 = vS0w, vS1w
                self.em(f'ds_read_b64_tr_b16 {a(abase + m*8 + 2*h, 2)}, {b0} offset:{off}')
                self.em(f'ds_read_b64_tr_b16 {a(abase + m*8 + 4 + 2*h, 2)}, {b1} offset:{off}')
            items.append(f)
        return items

    def aux_items(self, S, Q, t0, need_r=True):
        it = [f'v_mul_f32 {S}, {sInv}, {S}']
        if need_r:
            it += [f'v_mul_f32 {Q}, {sInv}, {Q}', f'v_fma_f32 {Q}, -{S}, {S}, {Q}', f'v_max_f32 {Q}, 0, {Q}', f'v_add_f32 {Q}, {sEps}, {Q}',
                   f'v_rsq_f32 {Q}, {Q}', f'v_mul_f32 {vRl}, {sLog2e}, {Q}']
        it += [f'v_cmp_eq_u32 vcc, 0, {vHi}', f'v_cndmask_b32_e64 {S}, 0, -{S}, vcc',
               f'v_cvt_pk_bf16_f32 {v(AUX)}, {S}, {S}', f'v_lshlrev_b32 {t0}, 16, {v(AUX)}', f'v_sub_f32 {S}, {S}, {t0}', f'v_cvt_pk_bf16_f32 {v(AUX+1)}, {S}, {S}']
        if need_r:
            it += [f'v_cndmask_b32 {Q}, 0, {vRl}, vcc', f'v_cvt_pk_bf16_f32 {t0}, {Q}, {Q}', f'v_lshlrev_b32 {t0}, 16, {t0}', f'v_sub_f32 {t0}, {Q}, {t0}',
                   f'v_cvt_pk_bf16_f32 {v(AUX+2)}, {Q}, {t0}']
        else: it.append(f'v_mov_b32 {v(AUX+2)}, 0')
        it += [f'v_mov_b32 {v(AUX+3)}, 0', f'v_mov_b32 {v(CB+2)}, 0', f'v_mov_b32 {v(CB+3)}, 0', f'v_mov_b32 {v(CB+4)}, 0x3f803f80', f'v_mov_b32 {v(CB+5)}, 0x3f803f80']
        return it
    def corr_items(self, key, acc, swapAB):
        c = v(acc, 16)
        return [f'v_mov_b32 {v(CB)}, {CS[key]}', f'v_mov_b32 {v(CB+1)}, {CS[key]}',
                f'{MF} {c}, {v(AUX,4)}, {v(CB,4)}, {c}' if swapAB else f'{MF} {c}, {v(CB,4)}, {v(AUX,4)}, {c}']
    def stats_T_loads(self, i):
        t = MR + 16
        self.wsload(v(t, 4), vStT, sG8K, i * 16 * 8192, tag='stat'); self.wsload(v(t + 4, 4), vStT, sG8K, i * 16 * 8192, tag='stat', off=512)
    def stats_T_items(self, need_r):
        t = MR + 16
        it = [f'v_add_f32 {v(t)}, {v(t)}, {v(t+1)}', f'v_add_f32 {v(t+2)}, {v(t+2)}, {v(t+3)}', f'v_add_f32 {v(t+4)}, {v(t+4)}, {v(t+5)}',
              f'v_add_f32 {v(t+6)}, {v(t+6)}, {v(t+7)}', f'v_add_f32 {v(t)}, {v(t)}, {v(t+2)}', f'v_add_f32 {v(t+4)}, {v(t+4)}, {v(t+6)}',
              f'v_add_f32 {v(t)}, {v(t)}, {v(t+4)}', f'v_mov_b32 {v(t+1)}, {v(t)}', f'v_permlane32_swap_b32 {v(t)}, {v(t+1)}']
        return it + self.aux_items(v(t), v(t + 1), v(t + 2), need_r)

    def pass2(self, steps, planes, accs, swapAB, side, fill, loader=None, first=True, extra=None):
        em = self.em
        steps = list(steps)
        def rd(i, p):
            ks = steps[i]
            for t in self.tr(BB + (i % 2) * 8 + 4 * p, planes[p][ks >> 2], ks & 3): em(t)
        for i in range(2):
            for p in range(2): rd(i, p)
        for i, ks in enumerate(steps):
            for p in range(2):
                w = v(BB + (i % 2) * 8 + 4 * p, 4); x = Afrag(ks); c = v(accs[p], 16)
                src = '0' if (first and i == 0) else c
                em(f'{MF} {c}, {x}, {w}, {src}' if swapAB else f'{MF} {c}, {w}, {x}, {src}')
                if i + 2 < len(steps): rd(i + 2, p)
                if p == 0 and loader: loader(i)
                side.run(fill(i) if callable(fill) else fill)
            if extra: extra(ks)
    def pass1(self, plane, acc, side, fill):
        em = self.em
        NB = 4
        def rd(ks):
            for t in self.tr(BB + (ks % NB) * 4, plane[ks >> 2], ks & 3): em(t)
        for ks in range(NB - 1): rd(ks)
        for ks in range(32):
            w = v(BB + (ks % NB) * 4, 4); c = v(acc, 16)
            if ks + NB - 1 < 32: rd(ks + NB - 1)
            em(f'{MF} {c}, {w}, {Afrag(ks)}, ' + ('0' if ks == 0 else c))
            side.run(fill(ks) if callable(fill) else fill)
    def a_loader(self, pre, sti):
        def ld(ks):
            if ks & 3 == 0:
                self.rot(ks >> 2, 4096, sGX); self.em(f's_mov_b32 s99, {sR}')
            self.em(f'buffer_load_dwordx4 {Afrag(ks)}, {vAT}, {SWS}, s99 offen offset:{(ks & 3) * 1024} sc1', tag='A')
        for ks in range(pre): ld(ks)
        def step(i):
            if i == 0: self.stats_T_loads(sti)
            if i + pre < 32: ld(i + pre)
        return step

    def phi_items(self, acc, rl, lanes_t, E):
        out = []
        for g in range(2):
            b = acc + 8 * g
            for k in range(4):
                x = v(b + 2 * k, 2)
                if lanes_t:
                    out += [f'v_fma_f32 {v(b+2*k)}, {v(b+2*k)}, {rl}, {sDelta}', f'v_fma_f32 {v(b+2*k+1)}, {v(b+2*k+1)}, {rl}, {sDelta}']
                else: out.append(f'v_pk_fma_f32 {x}, {x}, {v(rl + 8*g + 2*k, 2)}, {sDelta2}')
            for k in range(8): out.append(f'v_exp_f32_e64 {v(E+k)}, {v(b+k)} clamp')
            for k in range(8): out.append(f'v_max_f32 {v(b+k)}, {sDelta}, {v(b+k)}')
            for k in range(4): out.append(f'v_pk_fma_f32 {v(b+2*k,2)}, {v(b+2*k,2)}, {sLn22}, {v(E+2*k,2)}')
            for k in range(4): out.append(f'v_cvt_pk_bf16_f32 {v(acc+4*g+k)}, {v(b+2*k)}, {v(b+2*k+1)}')
        return out

    def p1_start(self):
        em = self.em; o = self.o
        self.lin = True
        X = MR; OWN = [v(MR + 4), v(MR + 5), v(MR + 6)]; ONE = v(MR + 8, 4); CT = MR + 12; H = v(MR + 7)
        aS, aQ, aCk, aCv, aCq = a(0, 16), a(16, 16), a(32, 16), a(48, 16), a(64, 16)
        em(f'v_and_b32 v27, 7, {vLane}'); em('v_lshlrev_b32 v27, 7, v27')
        em(f'v_bfe_u32 v28, {vLane}, 3, 2'); em('v_lshl_add_u32 v27, v28, 12, v27')
        em(f's_add_u32 {sT}, {sWl}, 32768'); em(f'v_add_u32 v27, {sT}, v27')
        em(f'v_bfe_u32 v28, {vLane}, 1, 3'); em(f'v_xor_b32 v28, v28, {vHi}')
        for kk in range(4):
            em(f'v_xor_b32 v29, {2*kk}, v28'); em(f'v_lshl_add_u32 {v(X+kk)}, v29, 4, v27')
        for i in range(3): em(f'v_add_u32 {OWN[i]}, {sWl}, {vTr[i]}')
        for i in range(4): em(f'v_mov_b32 {v(MR+8+i)}, 0x3f803f80')
        def xreads(half):
            for ks in range(16 * half, 16 * half + 16):
                em(f'ds_read_b128 {Afrag(ks)}, {v(X + (ks & 3))} offset:{((ks >> 2) & 3) * 16384}')
        def stat(ks):
            em(f'{MF} {aS}, {ONE}, {Afrag(ks)}, ' + ('0' if ks == 0 else aS))
            em(f'{MF} {aQ}, {Afrag(ks)}, {Afrag(ks)}, ' + ('0' if ks == 0 else aQ))
        em.wait_vm_tag('xlo'); self.ts('xlo')
        xreads(0); em.wait_lg(0)
        for m in range(4, 8): self.qkv_dma('kv', m, 'kvhi')
        for kk in range(4): em(f'v_add_u32 {v(X+kk)}, 0x10000, {v(X+kk)}')
        for ks in range(16):
            stat(ks)
            if ks % 2 == 0: self.qkv_dma('q', ks // 2, 'q')
        self.touch_q('v27', MR + 28)
        em.wait_vm_tag('kvlo'); self.barrier(); self.ts('kvlo')
        side = Side(em)
        side.add(*self.colsum_items(self.pl['k'][:4], aCk, CT, OWN, ONE, True)); side.add(*self.colsum_items(self.pl['v'][:4], aCv, CT, OWN, ONE, True))
        self.pass2(range(16), [self.pl['k'], self.pl['v']], [ACC, ACC + 16], True, side, 1)
        side.flush()
        em.wait_vm_tag('xhi'); self.ts('xhi')
        xreads(1); em.wait_lg(0)
        em(f'v_lshrrev_b32 v27, 3, {vLane}'); em(f's_lshl_b32 {sT}, {sW}, 3'); em(f'v_add_u32 v27, {sT}, v27'); em('v_lshlrev_b32 v27, 10, v27')
        em(f'v_and_b32 v28, 7, {vLane}'); em('v_lshl_add_u32 v27, v28, 4, v27')
        em(f'buffer_load_dwordx4 {a(RES,4)}, v27, {SX}, {sOutRow} offen', tag='res')
        em(f's_add_u32 {sT}, {sOutRow}, 32768'); em(f'buffer_load_dwordx4 {a(RES+4,4)}, v27, {SX}, {sT} offen', tag='res')
        em(f's_add_u32 {sT2}, {sG128}, {WS_HELLO}')
        em(f'buffer_load_dword {H}, {vPoll}, {SWS}, {sT2} offen sc1', tag='hello')
        self.stq = list(range(24, 40))
        for ks in range(16, 32):
            stat(ks)
            if ks % 4 == 0: self.stage_dma(SWO, (ks - 16) // 4, self.stq[(ks - 16) // 2], self.stq[(ks - 16) // 2 + 1], 'wo')
        em.wait_vm_tag('kvhi'); self.barrier(); self.ts('kvhi')
        side.add(*self.colsum_items(self.pl['k'][4:], aCk, CT, OWN, ONE, False)); side.add(*self.colsum_items(self.pl['v'][4:], aCv, CT, OWN, ONE, False))
        S, Q = v(MR + 20), v(MR + 21)
        side.add(f'v_accvgpr_read_b32 {S}, a0', f'v_mov_b32 {Q}, 0')
        for r in range(16):
            t = 8 * (r >> 2) + (r & 3)
            side.add(f'v_accvgpr_read_b32 {v(MR+22)}, a{16+r}')
            side.add(lambda t=t: (em(f's_mov_b32 s86, {1 << t:#x}'), em(f's_mov_b32 s87, {1 << (t + 4):#x}'), em(f'v_cndmask_b32 {Q}, {Q}, {v(MR+22)}, s[86:87]')))
        side.add(f'v_mov_b32 {v(MR+22)}, {Q}', f'v_permlane32_swap_b32 {Q}, {v(MR+22)}', f'v_add_f32 {Q}, {Q}, {v(MR+22)}')
        side.add(*self.aux_items(S, Q, v(MR + 22)))
        for i in range(4, 8): side.add(lambda i=i: self.stage_dma(SWO, i, self.stq[2 * i], self.stq[2 * i + 1], 'wo'))
        self.pass2(range(16, 32), [self.pl['k'], self.pl['v']], [ACC, ACC + 16], True, side, 3, first=False)
        side.flush()
        self.ts('kvpass')
        em.wait_vm_tag('q')
        self.emit(self.colsum_items(self.pl['q'], aCq, CT, OWN, ONE, True))
        for i, r in enumerate((64, 32, 48)): em(f'v_accvgpr_read_b32 {v(MR+20+i)}, a{r}')
        self.barrier()
        self.colsum_exchange([v(MR + 20), v(MR + 21), v(MR + 22)], ['q', 'k', 'v'], self.pl['k'][0] * 4096, BB)
        L = em.newlabel('Lhp'); D = em.newlabel('Lhd')
        em.wait_vm_tag('hello')
        em.label(L)
        em(f'v_subrev_u32 {v(TMP)}, {sNonce}, {H}'); em(f'v_add_u32 {v(TMP)}, -1, {v(TMP)}')
        em(f'v_cmp_le_u32 vcc, 16, {v(TMP)}')
        em(f's_cbranch_vccz {D}')
        em.cond_begin()
        em(f's_add_u32 {sT2}, {sG128}, {WS_HELLO}')
        em(f'buffer_load_dword {H}, {vPoll}, {SWS}, {sT2} offen sc1'); em.force_wait(vm=0)
        em.cond_end()
        self.spin_tail(L)
        em.label(D)
        em(f'v_cmp_ne_u32 vcc, {sHello}, {H}')
        self.emit(self.corr_items('k', ACC, True)); self.emit(self.corr_items('v', ACC + 16, True))
        em(f'{MF} {v(MR,16)}, {v(AUX,4)}, {v(CB+2,4)}, 0')
        self.ts('decide')

    def p1_rest(self, l):
        em = self.em; o = self.o
        K, V, Q = ACC, ACC + 16, ACC + 32
        RL = MR; E = MR + 16
        sq = self.pl['k'][:4]
        sa = self.pl['v'][0] * 4096
        mw, mr, fac, t16, tg = v(K + 8), v(K + 9), v(K + 10), v(K + 11), v(K + 12)
        u, x1, x2 = v(K + 13), v(K + 14), v(K + 15)
        self.emit(self.phi_items(K, RL, False, E))
        for r in range(8): em(f'v_pk_mul_f32 {v(V+2*r,2)}, {v(V+2*r,2)}, {v(RL+2*r,2)}')
        for r in range(8): em(f'v_cvt_pk_bf16_f32 {v(V+r)}, {v(V+2*r)}, {v(V+2*r+1)}')
        for r in range(8): em(f'v_mov_b32 {v(V+8+r)}, {v(CB+4)}')
        for r in range(8): em(f'v_permlane16_swap_b32 {v(V+r)}, {v(V+8+r)}')
        D0, D1 = MR, MR + 16
        em(f'{MF} {v(D0,16)}, {v(K,4)}, {v(V,4)}, 0'); em(f'{MF} {v(D1,16)}, {v(K,4)}, {v(V+8,4)}, 0')
        em(f'{MF} {v(D0,16)}, {v(K+4,4)}, {v(V+4,4)}, {v(D0,16)}'); em(f'{MF} {v(D1,16)}, {v(K+4,4)}, {v(V+12,4)}, {v(D1,16)}')
        self.emit([f's_lshl_b32 {sT2}, {sW}, 12', f's_add_u32 {sT2}, {sT2}, {sa}', f'v_add_u32 {mw}, {sT2}, {vL16}',
                   f'v_cmp_le_u32 vcc, 68, {vTid}', f'v_cndmask_b32 {x1}, 0, 1, vcc',
                   f'v_mul_u32_u24 {x2}, 68, {x1}', f'v_sub_u32 {u}, {vTid}, {x2}',
                   f'v_lshlrev_b32 {mr}, 11, {x1}',
                   f'v_and_b32 {x1}, 1, {u}', f'v_lshl_add_u32 {mr}, {x1}, 10, {mr}',
                   f'v_bfe_u32 {x1}, {u}, 1, 4', f'v_bfe_u32 {x2}, {u}, 5, 1', f'v_lshl_add_u32 {x1}, {x2}, 5, {x1}',
                   f'v_bfe_u32 {x2}, {u}, 1, 1', f'v_lshlrev_b32 {x2}, 5, {x2}', f'v_add_u32 {x2}, 16, {x2}',
                   f'v_cmp_le_u32 vcc, 64, {u}', f'v_cndmask_b32 {x1}, {x1}, {x2}, vcc',
                   f'v_mov_b32 {x2}, {sLn2}', f'v_cndmask_b32 {fac}, {x2}, 1.0, vcc',
                   f'v_lshl_add_u32 {mr}, {x1}, 4, {mr}', f'v_add_u32 {mr}, {sa:#x}, {mr}',
                   f'v_lshlrev_b32 {t16}, 4, {vTid}', f's_and_b32 {sT2}, {sNonce}, 0xff', f'v_mov_b32 {tg}, {sT2}'])
        for i, r in enumerate((D0, D0 + 4, D1 + 8, D1 + 12)): em(f'ds_write_b128 {mw}, {v(r,4)} offset:{i*1024}')
        em.wait_vm_tag('q')
        self.barrier()
        self.ts('kvbar')
        M = MR
        def msg_out():
            em(f'v_cmp_gt_u32 vcc, 136, {vTid}'); em(f's_and_saveexec_b64 {sEx}, vcc')
            for i in range(4): em(f'ds_read_b128 {v(M+4*i,4)}, {mr} offset:{i*4096}')
            for r in (0, 2): em(f'v_pk_add_f32 {v(M+r,2)}, {v(M+r,2)}, {v(M+4+r,2)}')
            for r in (0, 2): em(f'v_pk_add_f32 {v(M+8+r,2)}, {v(M+8+r,2)}, {v(M+12+r,2)}')
            for r in (0, 2): em(f'v_pk_add_f32 {v(M+r,2)}, {v(M+r,2)}, {v(M+8+r,2)}')
            for r in range(4): em(f'v_and_or_b32 {v(M+r)}, {v(M+r)}, {sMaskInv}, {tg}')
            em(f's_mul_i32 {sT2}, {sG}, {MSG_B}'); em(f's_add_u32 {sT2}, {sT2}, {sJmsg}')
            self.wsstore(v(M, 4), t16, sT2, l * 256 * MSG_B, sc=' sc1', tag='msg')
            em(f's_mov_b64 exec, {sEx}')
        self.only_wave(3, msg_out, invert=True)
        self.ts('msg')
        side = Side(em)
        self.p1_bg(l, side)
        self.pass1(self.pl['q'], Q, side, o.fill_p1)
        self.emit(self.corr_items('q', Q, False))
        side.flush()
        if self.lin:
            self.lin = False
            em(f'v_lshlrev_b32 {v(TMP)}, 8, {vHi}')
            for i in range(3): em(f'v_sub_u32 {vTr[i]}, {vTr[i]}, {v(TMP)}')
        self.ts('qpass')
        self.emit(self.phi_items(Q, vRl, True, E))
        self.wsstore(v(Q, 4), vAT, sQst, 0); self.wsstore(v(Q + 4, 4), vAT, sQst, 0, off=1024)
        self.p1_gap(l)
        self.barrier()
        self.ts('qst')
        def gather():
            em(f'v_cmp_gt_u32 vcc, 136, {vTid}'); em(f's_and_saveexec_b64 {sEx}, vcc')
            G = AF; A0, A1 = v(TMP), v(TMP + 1)
            L = em.newlabel('Lg'); D = em.newlabel('Lgd')
            em.label(L)
            for g in range(16): self.wsload(v(G + 4 * g, 4), t16, sJmsg, l * 256 * MSG_B + g * MSG_B)
            em(f'v_xor_b32 {A0}, {v(G)}, {tg}'); em(f'v_xor_b32 {A1}, {v(G+3)}, {tg}')
            for g in range(1, 16):
                em(f'v_bitop3_b32 {A0}, {v(G+4*g)}, {tg}, {A0} bitop3:0xbe'); em(f'v_bitop3_b32 {A1}, {v(G+4*g+3)}, {tg}, {A1} bitop3:0xbe')
            em(f'v_or_b32 {A0}, {A0}, {A1}'); em(f'v_and_b32 {A0}, 0xff, {A0}'); em(f'v_cmp_ne_u32 vcc, 0, {A0}')
            em(f's_cbranch_vccz {D}')
            self.spin_tail(L)
            em.label(D)
            self.ts('kvpoll')
            for st in (1, 2, 4, 8):
                for g in range(0, 16, 2 * st):
                    for r in (0, 2): em(f'v_pk_add_f32 {v(G+4*g+r,2)}, {v(G+4*g+r,2)}, {v(G+4*(g+st)+r,2)}')
            for r in range(4): em(f'v_mul_f32 {v(G+r)}, {v(G+r)}, {fac}')
            em(f'v_cvt_pk_bf16_f32 {v(G)}, {v(G)}, {v(G+1)}'); em(f'v_cvt_pk_bf16_f32 {v(G+1)}, {v(G+2)}, {v(G+3)}')
            em(f'v_lshrrev_b32 {t16}, 1, {t16}')
            em(f's_mul_i32 {sT2}, {sJ}, 1088'); em(f's_add_u32 {sT2}, {sT2}, {sGKT}')
            self.wsstore(v(G, 2), t16, sT2, 0, width=2)
            em(f's_mov_b64 exec, {sEx}')
            em.force_wait(vm=0)
        self.setup_local()
        self.only_wave(3, gather, invert=True)
        self.group_sync(4 * l + 0, mid=lambda: self.only_wave(3, lambda: self.p1_loader(l)), bar=False)

    def w1dma(self, p, m, tag, slot=None, voff=vD1):
        base = sW1c2 if p == 2 else sW1c0
        if p != 1 and not slot: self.rot(m, 64 * 2752, base)
        imm = (64 if p == 1 else 0) + (0 if slot is None else slot * 16 * 2752)
        self.dma(SW1, voff, sR, imm, self.w1pl[p][m], tag, nt=self.o.nt_w1, slot=slot)

    def p1_bg(self, l, side):
        em = self.em; o = self.o
        self.w1pl = [list(self.pl['k']), self.pl['v'][4:] + self.pl['q'][:4], self.pl['v'][:4] + self.pl['q'][4:]]
        if l == 0:
            side.add(lambda: self.touch_x(v(TMP), TMP + 1))
        assert o.w1_early <= 4
        for m in range(o.w1_early):
            side.add(lambda m=m: (self.w1dma(0, m, 'w1a'), self.w1dma(1, m, 'w1a')))
        if l == 0:
            side.add(lambda: em.wait_vm_tag('wo'))
            for i in range(8): side.add(*self.stage_read_items(WOA, i, self.stq[2 * i], self.stq[2 * i + 1]))

    def p1_gap(self, l):
        if l == 0: self.res_convert(to_m1=True)

    def p1_loader(self, l):
        em = self.em; o = self.o
        vo = v(TMP)
        em(f'v_subrev_u32 {vo}, {3*16*2752}, {vD1}')
        n = 0
        for m in range(o.w1_early, 8):
            for s in range(4):
                for p in range(2):
                    self.w1dma(p, m, 'solo', slot=s, voff=vo); n += 1

    def res_convert(self, to_m1):
        em = self.em
        t0, t1, t2 = v(TMP), v(TMP + 1), v(TMP + 2)
        em(f's_add_u32 {sT2}, {sWl}, {S_ADDR}')
        em(f'v_add_u32 {t0}, {sT2}, {vL16}')
        em(f'v_and_b32 {t1}, 7, {vLane}'); em(f'v_lshlrev_b32 {t1}, 7, {t1}'); em(f'v_lshrrev_b32 {t2}, 4, {vLane}'); em(f'v_lshl_add_u32 {t1}, {t2}, 5, {t1}')
        em(f'v_bfe_u32 {t2}, {vLane}, 3, 1'); em(f'v_lshl_add_u32 {t1}, {t2}, 3, {t1}'); em(f'v_add_u32 {t1}, {sT2}, {t1}')
        if to_m1:
            for h in range(2): em(f'ds_write_b128 {t0}, {a(RES+4*h,4)} offset:{h*4096}')
            em.wait_lg(0)
            for h in range(2):
                em(f'ds_read_b64 {a(RES+4*h,2)}, {t1} offset:{h*4096}'); em(f'ds_read_b64 {a(RES+4*h+2,2)}, {t1} offset:{h*4096+16}')
        else:
            for h in range(2):
                em(f'ds_write_b64 {t1}, {a(RES+4*h,2)} offset:{h*4096}'); em(f'ds_write_b64 {t1}, {a(RES+4*h+2,2)} offset:{h*4096+16}')
            em.wait_lg(0)
            for h in range(2): em(f'ds_read_b128 {a(RES+4*h,4)}, {t0} offset:{h*4096}')
        em.wait_lg(0)

    def setup_local(self, final=False):
        em = self.em
        t0, t1, t2 = v(TMP + 1), v(TMP + 2), v(TMP + 3)
        em(f'v_and_b32 {t0}, 7, {vLane}'); em(f's_lshl_b32 {sT2}, {sW}, 3'); em(f'v_add_u32 {t0}, {sT2}, {t0}')
        em(f'v_lshrrev_b32 {t1}, 3, {vLane}'); em(f'v_lshlrev_b32 {t1}, 9, {t1}'); em(f'v_lshl_add_u32 {v(vStM)}, {t0}, 4, {t1}')
        em(f's_lshl_b32 {sT2}, {sW}, 13'); em(f's_add_u32 {sT2}, {sT2}, {S_ADDR}')
        if not final:
            em(f'v_lshlrev_b32 {t1}, 7, {vHi}'); em(f'v_xor_b32 {t1}, {t1}, {vL16}'); em(f'v_add_u32 {v(vRedW)}, {sT2}, {t1}')
            em(f'v_bfe_u32 {t1}, {vLane}, 3, 1'); em(f'v_lshrrev_b32 {t2}, 4, {vLane}')
            em(f'v_lshlrev_b32 {v(vOut)}, 4, {t0}'); em(f'v_lshl_add_u32 {v(vStSt)}, {t2}, 10, {v(vOut)}')
            em(f'v_lshl_add_u32 {v(vOut)}, {t1}, 9, {v(vOut)}'); em(f'v_lshl_add_u32 {v(vOut)}, {t2}, 10, {v(vOut)}')
            em(f'v_lshlrev_b32 {v(vRedR)}, 3, {t1}'); em(f'v_xor_b32 {v(vRedR)}, {v(vRedR)}, {t0}'); em(f'v_lshlrev_b32 {v(vRedR)}, 4, {v(vRedR)}')
            em(f'v_lshl_add_u32 {v(vRedR)}, {t1}, 9, {v(vRedR)}'); em(f'v_lshl_add_u32 {v(vRedR)}, {t2}, 11, {v(vRedR)}'); em(f'v_add_u32 {v(vRedR)}, {S_ADDR:#x}, {v(vRedR)}')
            em(f'v_and_b32 {t0}, 15, {vLane}'); em(f'v_lshlrev_b32 {t0}, 4, {t0}'); em(f'v_lshl_add_u32 {t0}, {vHi}, 8, {t0}')
            em(f'v_lshlrev_b32 {t1}, 4, {vHi}'); em(f'v_add_u32 {t1}, 512, {t1}'); em(f'v_and_b32 {t2}, 16, {vLane}'); em(f'v_cmp_ne_u32 vcc, 0, {t2}')
            em(f'v_cndmask_b32 {t0}, {t0}, {t1}, vcc'); em(f's_mul_i32 {sT2}, {sW}, 544'); em(f'v_add_u32 {v(vKT)}, {sT2}, {t0}')
        else:
            for i in range(4):
                em(f'v_xor_b32 {t0}, {64*i}, {vL16}'); em(f'v_add_u32 {v(BB+i)}, {sT2}, {t0}')
            em(f'v_lshrrev_b32 {t0}, 3, {vLane}'); em(f'v_lshlrev_b32 {v(vKT)}, 2, {t0}')
            em(f's_lshl_b32 {sT2}, {sW}, 3'); em(f'v_add_u32 {t0}, {sT2}, {t0}')
            em(f'v_and_b32 {t1}, 7, {vLane}')
            em(f'v_lshlrev_b32 {v(vOut)}, 10, {t0}'); em(f'v_lshl_add_u32 {v(vOut)}, {t1}, 4, {v(vOut)}')
            em(f'v_and_b32 {t2}, 3, {vLane}'); em(f'v_lshlrev_b32 {t2}, 2, {t2}'); em(f'v_xor_b32 {t2}, {t2}, {t0}'); em(f'v_lshlrev_b32 {t2}, 4, {t2}')
            em(f'v_lshl_add_u32 {v(vRedR)}, {t1}, 10, {t2}'); em(f'v_add_u32 {v(vRedR)}, {S_ADDR:#x}, {v(vRedR)}')

    def unpack_items(self, half, U):
        it = [f'v_accvgpr_read_b32 {v(U+2*r+1)}, {a(RES+4*half+r)}' for r in range(4)]
        for r in range(4):
            it += [f'v_lshlrev_b32 {v(U+2*r)}, 16, {v(U+2*r+1)}', f'v_and_b32 {v(U+2*r+1)}, 0xffff0000, {v(U+2*r+1)}']
        return it
    def reduce_items(self, half, acc0, acc1, R, U, rs, sti, final, pk, unpack):
        em = self.em
        it = []
        for c in range(8):
            src = v((acc0 if c < 4 else acc1) + 4 * (c & 3), 4)
            ad = v(BB + (c & 3)) if final else v(vRedW)
            it.append(f'ds_write_b128 {ad}, {src} offset:{c*1024}')
        it.append(self.barrier)
        o2 = 512 if final else 1024
        for w in range(4):
            it.append(f'ds_read_b128 {v(R+8*w,4)}, {v(vRedR)} offset:{w*8192}'); it.append(f'ds_read_b128 {v(R+8*w+4,4)}, {v(vRedR)} offset:{w*8192+o2}')
        if unpack: it += self.unpack_items(half, U)
        def add(d, s):
            if pk: return [f'v_pk_add_f32 {v(d+r,2)}, {v(d+r,2)}, {v(s+r,2)}' for r in range(0, 8, 2)]
            return [f'v_add_f32 {v(d+r)}, {v(d+r)}, {v(s+r)}' for r in range(8)]
        if rs is None: it += add(R, U)
        it += add(R, R + 8) + add(R + 16, R + 24) + add(R, R + 16)
        if rs is not None: it += [f'v_fma_f32 {v(R+r)}, {v(R+r)}, {rs}, {v(U+r)}' for r in range(8)]
        P = R + 8
        for r in range(4): it.append(f'v_cvt_pk_bf16_f32 {v(P+r)}, {v(R+2*r)}, {v(R+2*r+1)}')
        if final:
            def st():
                em(f's_add_u32 {sT}, {sOutRow}, {half*32768}')
                em(f'buffer_store_dwordx4 {v(P,4)}, {v(vOut)}, {SOUT}, {sT} offen' + self.o.outsc, tag='st')
            it.append(st)
            return it
        it.append(lambda: self.wsstore(v(P, 4), v(vOut), sXst, half * 32768))
        S, Q, T = R + 16, R + 18, v(R + 20)
        if pk:
            it += [f'v_pk_add_f32 {v(S,2)}, {v(R,2)}, {v(R+2,2)}', f'v_pk_mul_f32 {v(Q,2)}, {v(R,2)}, {v(R,2)}']
            it += [f'v_pk_fma_f32 {v(Q,2)}, {v(R+2,2)}, {v(R+2,2)}, {v(Q,2)}']
            for r in (4, 6): it += [f'v_pk_add_f32 {v(S,2)}, {v(S,2)}, {v(R+r,2)}', f'v_pk_fma_f32 {v(Q,2)}, {v(R+r,2)}, {v(R+r,2)}, {v(Q,2)}']
            it += [f'v_add_f32 {v(S)}, {v(S)}, {v(S+1)}', f'v_add_f32 {v(Q)}, {v(Q)}, {v(Q+1)}']
        else:
            it += [f'v_add_f32 {v(S)}, {v(R)}, {v(R+1)}', f'v_mul_f32 {v(Q)}, {v(R)}, {v(R)}', f'v_fmac_f32 {v(Q)}, {v(R+1)}, {v(R+1)}']
            for r in range(2, 8): it += [f'v_add_f32 {v(S)}, {v(S)}, {v(R+r)}', f'v_fmac_f32 {v(Q)}, {v(R+r)}, {v(R+r)}']
        S, Q = v(S), v(Q)
        it += [f'v_accvgpr_write_b32 {a(RES+4*half)}, {v(P)}', f'v_accvgpr_write_b32 {a(RES+4*half+1)}, {v(P+1)}',
               f'v_add_f32_dpp {S}, {S}, {S} row_ror:8 {DPPM}', f'v_add_f32_dpp {Q}, {Q}, {Q} row_ror:8 {DPPM}',
               f'v_accvgpr_write_b32 {a(RES+4*half+2)}, {v(P+2)}', f'v_accvgpr_write_b32 {a(RES+4*half+3)}, {v(P+3)}',
               f'v_permlane16_swap_b32 {S}, {Q}', f'v_add_f32 {S}, {S}, {Q}', f'v_mov_b32 {T}, {S}', f'v_permlane32_swap_b32 {S}, {T}', f'v_add_f32 {S}, {S}, {T}']
        def st2():
            em(f's_mov_b64 {sEx}, exec'); em(f's_mov_b64 exec, {sMaskSt}')
            self.wsstore(S, v(vStSt), sStst, sti * 16 * 8192 + half * 2048, width=1)
            em(f's_mov_b64 exec, {sEx}')
        it.append(st2)
        return it

    def p2(self, l):
        em = self.em; o = self.o
        KT, QF = AF, AF + 32
        accs = [[ACC, ACC + 16], [ACC + 32, 232]]
        DB = [MR, MR + 16, BB]
        OB = [AUX, CB]; RC = [v(TMP), v(TMP + 1)]
        lds = []
        for n in range(16):
            h, i = divmod(n, 8)
            if n < 8: lds.append(lambda i=i: self.wsload(v(KT + 4 * i, 4), v(vKT), sGKT, i * 2176, tag='A'))
            lds.append(lambda n=n, h=h, i=i: self.wsload(v(QF + 4 * n, 4), vAW, sQR, h * 32768 + i * 4096, tag='A'))
        for f in lds[:o.pre2]: f()
        lds = lds[o.pre2:]
        side = Side(em)
        def attn(n): em(f'{MF} {v(DB[n%3],16)}, {v(KT+4*(n%8),4)}, {v(QF+4*n,4)}, 0')
        def post(n):
            D = DB[n % 3]; O = OB[n % 2]; rc = RC[n % 2]
            it = [f'v_add_f32 {rc}, {s1em6}, {v(D+8)}', f'v_rcp_f32 {rc}, {rc}']
            it += [f'v_mul_f32 {v(D+r)}, {v(D+r)}, {rc}' for r in range(8)]
            it += [f'v_cvt_pk_bf16_f32 {v(O+r)}, {v(D+2*r)}, {v(D+2*r+1)}' for r in range(4)]
            return it
        attn(0); attn(1)
        if lds: lds.pop(0)()
        self.emit(post(0))
        for n in range(16):
            h, i = divmod(n, 8)
            nxt = post(n + 1) if n + 1 < 16 else []
            O = v(OB[n % 2], 4)
            if n + 2 < 16: attn(n + 2)
            if lds: lds.pop(0)()
            for t in nxt[:5]: em(t)
            for nt in range(2):
                c = v(accs[h][nt], 16)
                em(f'{MF} {c}, {a(WOA + i*8 + nt*4, 4)}, {O}, ' + ('0' if i == 0 else c))
                if nt == 0 and lds: lds.pop(0)()
                for t in (nxt[5:10] if nt == 0 else nxt[10:]): em(t)
                if not lds: side.run(o.fill_p2)
            if n == 5: self.p2_bg(l, side)
            if n == 8:
                side.add(*self.reduce_items(0, accs[0][0], accs[0][1], QF, ACC, None, 0, False, False, True))
                side.add(*self.unpack_items(1, ACC + 16)); side.add(self.barrier)
        self.ts('p2mf')
        side.flush()
        self.ts('p2main')
        self.emit(self.reduce_items(1, accs[1][0], accs[1][1], QF + 32, ACC + 16, None, 0, False, True, False))
        self.p2_tail(l)

    def p2_bg(self, l, side):
        if l == 0:
            side.add(lambda: self.touch_h(v(TMP + 2), v(TMP + 3)))
        for m in range(8): side.add(lambda m=m: self.w1dma(2, m, 'w1c'))
        if l == 0:
            self.w2next = 0; self.w2rd = 0; self.pendq = []
            side.add(*self.w2_round(list(range(24, 32))))

    def p2_tail(self, l):
        em = self.em
        if l == 0:
            def mid():
                self.barrier()
                self.emit(self.w2_round(list(range(24, 32)) + list(range(32, 38))[:self.o.w2_g1]))
                em.wait_vm_tag(('w1a', 'w1c'))
                OWN = [v(MR + 4), v(MR + 5), v(MR + 6)]; ONE = v(MR + 8, 4)
                for i in range(3): em(f'v_add_u32 {OWN[i]}, {sWl}, {vTr[i]}')
                for i in range(4): em(f'v_mov_b32 {v(MR+8+i)}, 0x3f803f80')
                for p in range(3): self.emit(self.colsum_items(self.w1pl[p], v(ACC + 16 * p, 16), MR + 12, OWN, ONE, True))
                self.colsum_exchange([v(ACC), v(ACC + 16), v(ACC + 32)], [0, 1, 2], 39 * 4096, BB)
            self.group_sync(1, mid=mid, bar=False)
        else:
            def mid():
                em.wait_vm_tag(('w1a', 'w1c'))
                self.barrier()
                self.res_convert(to_m1=False)
            self.group_sync(5, mid=mid, bar=False)

    def w2_round(self, quads):
        em = self.em
        items = []
        pend = list(range(self.w2rd, self.w2next))
        if pend: items.append(lambda: em.wait_vm_tag('w2s'))
        for k, m in enumerate(pend): items += self.stage_read_items(W2A, m, self.pendq[2 * k], self.pendq[2 * k + 1])
        self.w2rd = self.w2next
        new = list(range(self.w2next, min(22, self.w2next + len(quads) // 2)))
        if new:
            if set(quads) & set(self.pendq): items.append(lambda: em.wait_lg(0))
            for k, m in enumerate(new): items.append(lambda k=k, m=m: self.stage_dma(SW2, m, quads[2 * k], quads[2 * k + 1], 'w2s'))
        self.w2next += len(new); self.pendq = list(quads)
        return items

    def p3(self, l):
        em = self.em; o = self.o
        ld = self.a_loader(o.pre, 0)
        side = Side(em)
        side.add(*self.stats_T_items(False))
        def ld2(i):
            ld(i)
            if i == 32 - o.pre and l == 0: side.add(*self.w2_round(list(range(24, 38))))
        self.pass2(range(32), self.w1pl[:2], [ACC, ACC + 16], False, side, lambda i: (2 if i < 32 - o.pre else 1) if i >= 10 else 0, loader=ld2)
        self.emit(self.corr_items(0, ACC, False)); self.emit(self.corr_items(1, ACC + 16, False))
        self.ts('p3a')
        def epi(p):
            A = ACC + 16 * p
            it = [f'v_cvt_pk_bf16_f32 {v(A+r)}, {v(A+2*r)}, {v(A+2*r+1)}' for r in range(8)]
            it += [f'v_pk_max_i16 {v(A+r)}, {v(A+r)}, 0' for r in range(8)]
            return it
        def st(p):
            A = ACC + 16 * p
            self.wsstore(v(A, 4), vL16, sHks, p * 2048); self.wsstore(v(A + 4, 4), vL16, sHks, p * 2048, off=1024)
        side.q = epi(0) + [lambda: st(0)] + epi(1) + [lambda: st(1)] + side.q
        self.p3_bg(l, side)
        self.pass1(self.w1pl[2], ACC + 32, side, lambda ks: o.fill_p3 if ks >= 2 else 0)
        self.emit(self.corr_items(2, ACC + 32, False))
        side.flush()
        self.ts('p3b')
        self.emit(epi(2))
        L = em.newlabel('Lh3')
        em(f's_cmp_eq_u32 {sHas3}, 0'); em(f's_cbranch_scc1 {L}')
        em.cond_begin(); st(2); em.cond_end()
        em.label(L)
        self.p3_tail(l)

    def p3_bg(self, l, side):
        if l == 0:
            side.add(self.barrier)
            rest = list(range(self.w2next, 22))
            quads = self.w1pl[0] + self.w1pl[1]
            for k, m in enumerate(rest): side.add(lambda k=k, m=m: self.stage_dma(SW2, m, quads[2 * k], quads[2 * k + 1], 'w2s'))
            self.pendq = self.pendq[:2 * (self.w2next - self.w2rd)] + quads[:2 * len(rest)]
            self.w2next = 22
    def p3_tail(self, l):
        em = self.em
        if l == 0:
            self.group_sync(2, pre=self.setup_local, mid=lambda: self.emit(self.w2_round([])), tags=None)
            assert self.w2rd == 22, self.w2rd
        else:
            self.group_sync(6, pre=lambda: self.setup_local(final=True), tags=None)

    def p4(self, l):
        em = self.em; o = self.o
        final = l == 1
        accs = [[ACC, ACC + 16], [ACC + 32, 232]]
        NR = 24
        def ld(n):
            h, m = divmod(n, 22)
            dst = v(AF + 4 * (n % NR), 4)
            if m == 21:
                em(f's_sub_u32 {sT2}, {sHR}, {sAdj}'); self.wsload(dst, vAW, sT2, h * H_T + m * 4096, tag='A')
            else: self.wsload(dst, vAW, sHR, h * H_T + m * 4096, tag='A')
        for n in range(o.pre): ld(n)
        self.wsload(v(AUX, 4), v(vStM), sStR, 0, tag='stat')
        side = Side(em)
        S, Q, M = v(AUX), v(AUX + 1), v(AUX + 2); RS = [v(TMP), v(TMP + 1)]
        side.add(f'v_add_f32 {S}, {S}, {v(AUX+1)}', f'v_add_f32 {v(AUX+2)}, {v(AUX+2)}, {v(AUX+3)}', f'v_add_f32 {S}, {S}, {v(AUX+2)}',
                 f'v_add_f32_dpp {S}, {S}, {S} row_ror:8 {DPPM}', f'v_mov_b32 {Q}, {S}', f'v_permlane16_swap_b32 {S}, {Q}',
                 f'v_mul_f32 {S}, {sInv}, {S}', f'v_mul_f32 {Q}, {sInv}, {Q}', f'v_fma_f32 {Q}, -{S}, {S}, {Q}', f'v_max_f32 {Q}, 0, {Q}',
                 f'v_add_f32 {Q}, {sEps}, {Q}', f'v_rsq_f32 {RS[0]}, {Q}', f'v_mov_b32 {RS[1]}, {RS[0]}', f'v_permlane32_swap_b32 {RS[0]}, {RS[1]}')
        if final: side.add(f'ds_bpermute_b32 {RS[0]}, {v(vKT)}, {RS[0]}', f'ds_bpermute_b32 {RS[1]}, {v(vKT)}, {RS[1]}')
        for n in range(44):
            h, m = divmod(n, 22)
            x = v(AF + 4 * (n % NR), 4)
            for nt in range(2):
                c = v(accs[h][nt], 16)
                em(f'{MF} {c}, {a(W2A + m*8 + nt*4, 4)}, {x}, ' + ('0' if m == 0 else c))
                if nt == 0 and n + o.pre < 44: ld(n + o.pre)
                if n >= 10: side.run(o.fill_p4)
            if n == 22:
                side.add(*self.reduce_items(0, accs[0][0], accs[0][1], MR, ACC, RS[0], 1, final, False, True))
                side.add(*self.unpack_items(1, ACC + 16)); side.add(self.barrier)
            if n == 43 - o.pre: self.p4_bg(l, side)
        self.ts('p4mf')
        side.flush()
        self.ts('p4main')
        self.emit(self.reduce_items(1, accs[1][0], accs[1][1], MR, ACC + 16, RS[1], 1, final, True, False))
        if not final:
            def mid():
                for m in range(self.o.kv_early, 8): self.qkv_dma('kv', m, 'kv')
                em.wait_vm_tag('kv')
            self.group_sync(3, mid=mid)

    def p4_bg(self, l, side):
        if l == 0:
            for m in range(self.o.kv_early):
                side.add(lambda m=m: self.qkv_dma('kv', m, 'kv'))

    def p5_start(self):
        em = self.em; o = self.o
        ld0 = self.a_loader(o.pre, 1)
        def ld(i):
            ld0(i)
            if i + o.pre >= 32 and i + o.pre < 40:
                m = i + o.pre - 32
                self.qkv_dma('q', m, 'q')
        side = Side(em)
        side.add(*self.stats_T_items(True))
        side.add(f'{MF} {v(MR,16)}, {v(AUX,4)}, {v(CB+2,4)}, 0')
        self.pass2(range(32), [self.pl['k'], self.pl['v']], [ACC, ACC + 16], True, side, lambda i: 2 if i >= 10 else 0, loader=ld)
        side.flush()
        self.emit(self.corr_items('k', ACC, True)); self.emit(self.corr_items('v', ACC + 16, True))
        self.barrier()
        self.ts('p5a')

    def finish(self):
        em = self.em
        L = em.newlabel('Le')
        em(f's_or_b32 {sT}, s2, {sW}'); em(f's_cmp_lg_u32 {sT}, 0'); em(f's_cbranch_scc1 {L}')
        em.cond_begin()
        em('s_mov_b64 exec, 1'); em(f'v_mov_b32 v24, {sNonce}'); em(f'buffer_store_dword v24, off, {SWS}, 0 sc1'); em('s_mov_b64 exec, -1')
        em.cond_end()
        em.label(L)
        if self.o.pad:
            L = em.newlabel('Lpad')
            em.label(L)
            em('s_memrealtime s[0:1]'); em.force_wait(lg=0); em('s_sub_u32 s0, s0, s3'); em(f's_cmp_lt_u32 s0, {self.o.pad}'); em(f's_cbranch_scc1 {L}')
        if self.o.ts:
            self.ts('end')
            em(f's_lshl_b32 {sT}, s2, 2'); em(f's_add_u32 {sT}, {sT}, {sW}'); em(f's_lshl_b32 {sT}, {sT}, 8'); em(f's_add_u32 {sT}, {sT}, {WS_DBG}')
            em(f'v_lshlrev_b32 v24, 2, {vLane}')
            em(f'buffer_store_dword v39, v24, {SWS}, {sT} offen')
            if self.o.dbg:
                L = em.newlabel('Ld')
                em(f's_or_b32 {sT}, s2, {sW}'); em(f's_cmp_lg_u32 {sT}, 0'); em(f's_cbranch_scc1 {L}')
                em('s_memrealtime s[0:1]'); em.force_wait(lg=0); em('s_sub_u32 s0, s0, s3')
                em('v_readlane_b32 s1, v39, 0'); em('s_nop 3'); em('v_subrev_u32 v39, s1, v39'); em('v_writelane_b32 v39, s0, 0')
                em('v_mul_u32_u24 v25, 3, v0'); em('v_lshlrev_b32 v25, 2, v25'); em('ds_bpermute_b32 v26, v25, v39'); em.force_wait(lg=0)
                em('s_mov_b64 exec, 0xffff')
                em('global_store_dword v24, v26, s[100:101]')
                em.label(L)
        em('s_endpgm')

    def body(self, sc):
        self.sc = sc; self.swin = None; self.lin = True
        seq = [lambda: self.p1_rest(0), lambda: self.p2(0), lambda: self.p3(0), lambda: self.p4(0),
               lambda: (self.p5_start(), self.p1_rest(1)), lambda: self.p2(1), lambda: self.p3(1), lambda: self.p4(1)]
        for i, f in enumerate(seq):
            self.em.comment(f'---------------- phase {i+1} ({"slow" if sc else "fast"}) ----------------')
            f()
            if self.o.stop == i + 1: break
        self.finish()

    def build(self):
        em = self.em
        self.sc = ''
        self.prologue()
        self.p1_start()
        if self.o.force_slow: em('s_branch L_slow_tramp')
        em('s_cbranch_vccz L_fast')
        em.label('L_slow_tramp')
        em('s_getpc_b64 s[36:37]'); em.label('L_pc0')
        em('s_add_u32 s36, s36, L_slow-L_pc0'); em('s_addc_u32 s37, s37, 0'); em('s_setpc_b64 s[36:37]')
        em.label('L_end'); em('s_endpgm')
        em.label('L_fast')
        snap = (list(em.vmq), list(em.lgq), self.nts, list(em.hist))
        self.body('')
        em.label('L_slow')
        em.vmq, em.lgq, self.nts, em.hist = list(snap[0]), list(snap[1]), snap[2], list(snap[3])
        self.body(' sc1')
        hdr = open('cdna_kernels/' + NAME + '.s.ref').read().split('; Override launch')[0]
        s = hdr + '; @launch grid=(256,1,1) block=(256,1,1) lds=163840\n'
        s += '.amdgcn_target "amdgcn-amd-amdhsa--gfx950"\n.text\n'
        s += f'.globl {NAME}_kernel\n.p2align 8\n.type {NAME}_kernel,@function\n{NAME}_kernel:\n'
        s += em.text()
        s += f""".section .rodata,"a"
.p2align 6
.amdhsa_kernel {NAME}_kernel
  .amdhsa_next_free_vgpr 512
  .amdhsa_next_free_sgpr 102
  .amdhsa_accum_offset 256
  .amdhsa_group_segment_fixed_size 0
  .amdhsa_kernarg_size 72
  .amdhsa_user_sgpr_count 2
  .amdhsa_user_sgpr_kernarg_segment_ptr 1
  .amdhsa_system_sgpr_workgroup_id_x 1
  .amdhsa_float_denorm_mode_32 3
.end_amdhsa_kernel
"""
        return s

def main():
    ap = argparse.ArgumentParser()
    ap.add_argument('-o', default='k.s')
    ap.add_argument('--ts', action='store_true')
    ap.add_argument('--dbg', action='store_true')
    ap.add_argument('--pad', type=int, default=0)
    ap.add_argument('--stop', type=int, default=0)
    ap.add_argument('--spin', type=int, default=200000)
    ap.add_argument('--pre', type=int, default=10)
    ap.add_argument('--pre2', type=int, default=13)
    ap.add_argument('--fill_p1', type=int, default=2)
    ap.add_argument('--fill_p2', type=int, default=3)
    ap.add_argument('--fill_p3', type=int, default=3)
    ap.add_argument('--fill_p4', type=int, default=3)
    ap.add_argument('--w1_early', type=int, default=3)
    ap.add_argument('--w2_g1', type=int, default=6)
    ap.add_argument('--rot', type=int, default=1)
    ap.add_argument('--kv_early', type=int, default=4)
    ap.add_argument('--nt_stage', action='store_true')
    ap.add_argument('--nt_w1', action='store_true')
    ap.add_argument('--codepf', type=int, default=1)
    ap.add_argument('--outsc', default='')
    ap.add_argument('--force_slow', action='store_true')
    o = ap.parse_args()
    if o.outsc: o.outsc = ' ' + o.outsc
    g = Gen(o)
    s = g.build()
    open(o.o, 'w').write(s)
    if o.ts:
        import json; json.dump(g.tsnames, open(o.o + '.ts.json', 'w'))
    print(f'wrote {o.o}: {g.em.ninstr} instrs, {g.em.nops} nop states, {len(s)} bytes')
if __name__ == '__main__': main()
```

```python
import sys, struct, argparse
from emit import Em

NAME = "interleave_layers__linear_attn_block__dense_activation_relu__prompt"
def f2u(x): return struct.unpack('<I', struct.pack('<f', x))[0]

WS_EPOCH = 0
WS_HELLO = 1024
WS_FLAG = 4096
WS_MSG = 0x10000
WS_KT = 0x150000
WS_CS = 0x160000
WS_ST = 0x170000
WS_X = 0x200000
WS_H = 0x400000
WS_DBG = 0x2000000
WS_SIZE = 0x4000000
MSG_B = 2560; KT_B = 17408; ACT_B = 131072; H_T = 86 * 1024; H_B = 4 * H_T
NONCE_K = 0x9E3779B1

sW, sG, sJ, sNonce = 's4', 's5', 's6', 's7'
SX, SQKV, SWO, SW1, SW2, SOUT, SWS = 's[8:11]', 's[12:15]', 's[16:19]', 's[20:23]', 's[24:27]', 's[28:31]', 's[32:35]'
sT, sT2, sWl, sSpin = 's52', 's53', 's54', 's55'
sGX, sGH, sG8K, sGKT, sG128 = 's56', 's57', 's58', 's59', 's60'
sQcol, sW1c0, sW1c2, sHks = 's61', 's62', 's63', 's64'
sC128, sXR, sHR, sStR, sAdj = 's66', 's67', 's68', 's69', 's70'
sQR, sInv, sEps, s1em6, sLog2e = 's71', 's74', 's75', 's76', 's73'
sXrow, sJmsg, sMaskInv, sOutRow, sHello = 's77', 's78', 's79', 's80', 's81'
sEx = 's[82:83]'; sMaskSt = 's[84:85]'
sTS = 86
sDelta, sDelta2 = 's88', 's[88:89]'
sLn2, sLn22 = 's90', 's[90:91]'
sXst, sStst, sQst = 's92', 's93', 's94'
sRot, sR, sFlag, sG256 = 's95', 's96', 's97', 's98'
sRot2, sRot4, sLim4 = 's59', 's72', 's70'
sRed, sLine, sKTo, sFac = 's49', 's50', 's51', 's3'
sX0, sX1 = 's[100:101]', 's[0:1]'
sCsp = 's65'
sM0, sM1, sM3, sM4 = 's[36:37]', 's[38:39]', 's[40:41]', 's[44:45]'

vLane, vL16, vAT, vAW = 'v0', 'v1', 'v2', 'v3'
vTr = ['v4', 'v5', 'v6']
vDq, vD1, vDs, vS0, vS1, vS0w, vS1w = 'v7', 'v8', 'v9', 'v10', 'v11', 'v12', 'v14'
vStT, vPoll, vRl, vHi, vTid = 'v13', 'v15', 'v16', 'v17', 'v18'
CS = {'q': 'v19', 'k': 'v20', 'v': 'v21', 0: 'v22', 1: 'v23', 2: 'v34'}
AUX = 24
CB = 28
TMP = 35
BB = 40
MR = 56
ACC = 88
AF = 136
def v(i, n=1): return f'v{i}' if n == 1 else f'v[{i}:{i+n-1}]'
def a(i, n=1): return f'a{i}' if n == 1 else f'a[{i}:{i+n-1}]'
def Afrag(ks): return v(AF + 4 * ks, 4) if ks < 30 else a(248 + 4 * (ks - 30), 4)
RES = 240
W2A = 0; WOA = 176
vRedW, vRedR, vOut, vStSt, vStM, vKT = 248, 249, 250, 251, 252, 253
MF = 'v_mfma_f32_32x32x16_bf16'
DPPM = 'row_mask:0xf bank_mask:0xf'

QS = 32
S_ADDR = QS * 4096

class Side:
    def __init__(self, em): self.q = []; self.em = em
    def add(self, *items): self.q.extend(items)
    def run(self, k):
        while k > 0 and self.q:
            it = self.q.pop(0)
            if callable(it): it()
            else: self.em(it)
            k -= 1
    def flush(self): self.run(1 << 30); self.credit = 0
    credit = 0
    def clk(self, budget):
        self.credit = min(self.credit + budget, budget)
        while self.q and self.credit > 0:
            it = self.q.pop(0)
            if callable(it):
                it(); self.credit -= getattr(it, 'cost', 24)
            else:
                self.em(it)
                self.credit -= 56 if it.startswith('ds_write_b128') else 8 if it.startswith(('v_exp', 'v_rcp', 'v_rsq', 'v_mfma')) else 4

class Gen:
    def __init__(self, opt):
        self.o = opt; self.em = Em(); self.nts = 0; self.swin = None; self.lin = False
    def emit(self, items):
        for t in items: t() if callable(t) else self.em(t)

    def ts(self, name):
        if not self.o.ts: return
        em = self.em
        i = self.nts; self.nts += 1
        assert i < 62
        em.force_wait(lg=0)
        em(f's_memtime s[{sTS}:{sTS+1}]'); em.force_wait(lg=0)
        em(f'v_writelane_b32 v39, s{sTS}, {i}')
        self.tsnames[i] = name
    def dma(self, srd, voff, sbase, imm, quad, tag, nt=False, slot=None):
        em = self.em
        if slot is None: em(f's_add_u32 m0, {sWl}, {quad*4096}')
        else: em(f's_mov_b32 m0, {quad*4096 + slot*1024}')
        em(f's_add_u32 {sT}, {sbase}, {imm}')
        em(f'buffer_load_dwordx4 {voff}, {srd}, {sT} offen' + (' nt' if nt else '') + ' lds', tag=tag)
    def tr(self, dst, quad, slot, base=None):
        addr = quad * 4096 + slot * 1024
        b = (base or vTr)[addr >> 16]; off = addr & 0xFFFF
        return [f'ds_read_b64_tr_b16 {v(dst,2)}, {b} offset:{off}', f'ds_read_b64_tr_b16 {v(dst+2,2)}, {b} offset:{off+(256 if self.lin else 512)}']
    def wsload(self, dst, voff, sbase, imm, width=4, tag=None, off=0):
        em = self.em
        em(f's_add_u32 {sT}, {sbase}, {imm}')
        sfx = {1: 'dword', 2: 'dwordx2', 4: 'dwordx4'}[width]
        em(f'buffer_load_{sfx} {dst}, {voff}, {SWS}, {sT} offen' + (f' offset:{off}' if off else '') + ' sc1', tag=tag)
    def wsstore(self, src, voff, sbase, imm, width=4, tag='st', off=0, sc=None):
        em = self.em
        em(f's_add_u32 {sT}, {sbase}, {imm}')
        sfx = {1: 'dword', 2: 'dwordx2', 4: 'dwordx4'}[width]
        sc = self.sc if sc is None else sc
        em(f'buffer_store_{sfx} {src}, {voff}, {SWS}, {sT} offen' + (f' offset:{off}' if off else '') + sc, tag=tag)
    def barrier(self):
        self.em.wait_lg(0); self.em('s_barrier')
    def only_wave(self, w, f, invert=False):
        em = self.em
        L = em.newlabel('Lw')
        em(f's_cmp_{"eq" if invert else "lg"}_u32 {sW}, {w}'); em(f's_cbranch_scc1 {L}')
        em.cond_begin(); f(); em.cond_end()
        em.label(L)
    def spin_tail(self, L):
        em = self.em
        em(f's_sub_u32 {sSpin}, {sSpin}, 1'); em(f's_cbranch_scc0 {L}'); em(f's_mov_b32 {sSpin}, 0')
    def group_sync(self, p, pre=None, mid=None, tags=('st',), bar=True, skipif=None):
        em = self.em
        vt = v(TMP)
        mode = 'B' if skipif else self.o.sync
        if pre: pre()
        def drain():
            if tags is None: em.force_wait(vm=0)
            else: em.wait_vm_tag(tags)
            self.ts(f'drain{p}')
        def sig(wait=True):
            em(f'v_mov_b32 {vt}, {sNonce}')
            em(f's_add_u32 {sT2}, {sFlag}, {p*4096}')
            if wait: drain()
            em(f's_mov_b64 {sEx}, exec'); em('s_mov_b64 exec, 1')
            em(f'buffer_store_dword {vt}, off, {SWS}, {sT2}' + self.sc, tag='flag')
            em(f's_mov_b64 exec, {sEx}')
        def poll():
            L = em.newlabel('Lpoll'); D = em.newlabel('Lpd')
            em(f's_add_u32 {sT2}, {sG256}, {WS_FLAG + p*4096}')
            if mode == 'B': em(f'v_lshlrev_b32 {v(TMP+1)}, 2, {vLane}')
            else: em(f'v_lshlrev_b32 {v(TMP+1)}, 2, {vPoll}')
            em.label(L)
            em(f'buffer_load_dword {vt}, {v(TMP+1)}, {SWS}, {sT2} offen sc1')
            em.force_wait(vm=0)
            em(f'v_cmp_ne_u32 vcc, {sNonce}, {vt}')
            em(f's_cbranch_vccz {D}')
            self.spin_tail(L)
            em.label(D)
        if mode == 'B':
            if skipif:
                L = em.newlabel('Lsk')
                em(f's_cmp_eq_u32 {skipif}, 0'); em(f's_cbranch_scc1 {L}')
                em.cond_begin(); sig(); em.cond_end()
                em.label(L)
            else: sig()
            if mid: mid()
            if bar: self.barrier()
            poll()
        else:
            drain(); self.barrier()
            self.only_wave(0, lambda: sig(False))
            if mid: mid()
            if mode == 'A':
                self.only_wave(0, poll); self.barrier()
            else:
                if bar and mid: self.barrier()
                poll()
        self.ts(f'sync{p}')
    def rot(self, m, stride, base):
        em = self.em
        em(f's_add_u32 {sR}, {sRot}, {m}'); em(f's_and_b32 {sR}, {sR}, 7'); em(f's_mul_i32 {sR}, {sR}, {stride}'); em(f's_add_u32 {sR}, {sR}, {base}')
    def qkv_dma(self, planes, m, tag):
        self.rot(m, 64 * 3072, sQcol)
        for p in planes: self.dma(SQKV, vDq, sR, {'q': 0, 'k': 1024, 'v': 2048}[p], self.pl[p][m], tag)

    def prologue(self):
        em = self.em; o = self.o
        em('s_cmp_ge_u32 s2, 256'); em('s_cbranch_scc1 L_end')
        em('s_load_dwordx4 s[36:39], s[0:1], 0'); em('s_load_dwordx2 s[40:41], s[0:1], 16')
        em('s_load_dwordx4 s[44:47], s[0:1], 32'); em('s_load_dwordx2 s[48:49], s[0:1], 48'); em('s_load_dwordx2 s[50:51], s[0:1], 64')
        if o.ts:
            self.tsnames = {}
            em('v_mov_b32 v39, 0')
        em(f'v_mov_b32 {vTid}, v0')
        em(f'v_lshrrev_b32 v24, 6, v0'); em(f'v_and_b32 {vLane}, 63, v0')
        em(f'v_readfirstlane_b32 {sW}, v24')
        em(f's_and_b32 {sG}, s2, 7'); em(f's_lshl_b32 {sG}, {sG}, 1'); em(f's_lshr_b32 {sT}, s2, 7'); em(f's_add_u32 {sG}, {sG}, {sT}')
        em(f's_lshr_b32 {sJ}, s2, 3'); em(f's_and_b32 {sJ}, {sJ}, 15')
        em(f's_lshl_b32 {sWl}, {sW}, 10')
        em(f's_lshl_b32 {sXrow}, {sG}, 17')
        em(f's_lshl_b32 {sQcol}, {sJ}, 6')
        em(f's_and_b32 {sRot}, {sG}, 1'); em(f's_lshl_b32 {sRot}, {sRot}, 1'); em(f's_and_b32 {sT}, {sJ}, 1'); em(f's_add_u32 {sRot}, {sRot}, {sT}'); em(f's_lshl_b32 {sRot}, {sRot}, 1')
        em(f's_lshr_b32 {sT}, {sJ}, 1'); em(f's_add_u32 {sRot}, {sRot}, {sT}'); em(f's_add_u32 {sRot}, {sRot}, s2')
        if not o.rot: em(f's_mov_b32 {sRot}, 0')
        self.pl = {'k': list(range(0, 8)), 'v': list(range(8, 16)), 'q': list(range(16, 24))}
        em(f'v_lshlrev_b32 {vL16}, 4, {vLane}')
        em(f'v_lshrrev_b32 v27, 3, {vLane}'); em(f'v_and_b32 v28, 7, {vLane}')
        em(f'v_lshrrev_b32 v29, 1, v27'); em('v_xor_b32 v28, v28, v29'); em('v_lshlrev_b32 v28, 4, v28')
        em(f's_lshl_b32 {sT}, {sW}, 5'); em(f'v_add_u32 v27, {sT}, v27'); em('v_lshlrev_b32 v27, 10, v27')
        em('v_add_u32 v25, v27, v28'); em('v_xor_b32 v26, 64, v25')
        em(f'v_lshrrev_b32 v27, 2, {vLane}'); em(f's_lshl_b32 {sT}, {sW}, 4'); em(f'v_add_u32 v27, {sT}, v27')
        em(f'v_and_b32 v28, 3, {vLane}'); em('v_lshlrev_b32 v28, 4, v28')
        em(f'v_mul_u32_u24 {vDq}, 3072, v27'); em(f'v_add_u32 {vDq}, {vDq}, v28')
        em(f'v_mul_u32_u24 {vD1}, 2752, v27'); em(f'v_add_u32 {vD1}, {vD1}, v28')
        em.force_wait(lg=0)
        if o.ts:
            em('s_memrealtime s[86:87]'); em.force_wait(lg=0); em('v_writelane_b32 v39, s86, 62')
        if o.dbg or o.pad:
            em('s_load_dwordx2 s[100:101], s[0:1], 56'); em('s_memrealtime s[0:1]'); em.force_wait(lg=0); em('s_mov_b32 s3, s0')
        self.ts('start')
        def srd(s, lo, nb):
            em(f's_mov_b32 s{s}, s{lo}'); em(f's_mov_b32 s{s+1}, s{lo+1}'); em(f's_mov_b32 s{s+2}, {nb}'); em(f's_mov_b32 s{s+3}, 0x00020000')
        srd(8, 36, 2048 * 1024); srd(32, 50, WS_SIZE); srd(12, 38, 512 * 3072)
        if o.tlb:
            em(f's_lshr_b32 {sT}, s2, 3'); em(f's_lshl_b32 {sT}, {sT}, 2'); em(f's_add_u32 {sT}, {sT}, {sW}'); em(f's_and_b32 {sT}, {sT}, 15')
            em('s_mov_b64 s[86:87], s[50:51]'); em(f's_lshl_b32 {sT2}, {sT}, 21')
            for k, pr in ((8, 's[40:41]'), (9, 's[44:45]'), (10, 's[46:47]'), (11, 's[48:49]'), (12, 's[36:37]'), (13, 's[38:39]')):
                em(f's_cmp_eq_u32 {sT}, {k}'); em(f's_cselect_b64 s[86:87], {pr}, s[86:87]')
            em(f's_cmp_ge_u32 {sT}, 5'); em(f's_cselect_b32 {sT2}, 0, {sT2}')
            em(f's_load_dword s88, s[86:87], {sT2}')
        L0 = em.newlabel('Lo'); L1 = em.newlabel('Lo')
        if o.par:
            em(f's_bitcmp1_b32 {sJ}, 0'); em(f's_cbranch_scc1 {L0}')
            it = self.chunk_items(0)
            snap = list(em.vmq)
            self.emit(it); em(f's_branch {L1}')
            em.label(L0)
            em.vmq = snap
            it = self.chunk_items(0)
            self.emit(it[4:] + it[:4])
            em.label(L1)
        else: self.chunk_dma(0)
        em(f'buffer_load_dword v24, off, {SWS}, 0 sc1', tag='epoch')
        self.chunk_dma(1)
        if o.codepf:
            em('s_getpc_b64 s[42:43]'); em.label('L_pcx')
            em(f's_lshr_b32 {sT}, s2, 3'); em(f's_lshl_b32 {sT}, {sT}, 2'); em(f's_add_u32 {sT}, {sT}, {sW}'); em(f's_lshl_b32 {sT}, {sT}, 10')
            em(f's_min_u32 {sT}, {sT}, L_slow-L_pcx-1024')
            em(f'v_add_u32 v30, {sT}, {vL16}')
            em(f'global_load_dwordx4 a[96:99], v30, s[42:43]', tag='codepf')
        srd(16, 40, 512 * 1024); srd(20, 44, 512 * 2752); srd(24, 46, 1376 * 1024); srd(28, 48, 2048 * 1024)
        em(f's_mov_b32 {sSpin}, {o.spin}')
        em(f's_lshl_b32 {sGX}, {sG}, 17'); em(f's_add_u32 {sGX}, {sGX}, {WS_X}')
        em(f's_mul_i32 {sGH}, {sG}, {H_B}'); em(f's_add_u32 {sGH}, {sGH}, {WS_H}')
        em(f's_lshl_b32 {sG8K}, {sG}, 13'); em(f's_add_u32 {sG8K}, {sG8K}, {WS_ST}')
        em(f's_lshl_b32 {sG128}, {sG}, 7'); em(f's_lshl_b32 {sG256}, {sG}, 8')
        em(f's_lshl_b32 {sFlag}, {sJ}, 2'); em(f's_add_u32 {sFlag}, {sFlag}, {sW}'); em(f's_lshl_b32 {sFlag}, {sFlag}, 2'); em(f's_add_u32 {sFlag}, {sFlag}, {sG256}'); em(f's_add_u32 {sFlag}, {sFlag}, {WS_FLAG}')
        em(f's_mul_i32 {sT}, {sJ}, 3'); em(f's_lshl_b32 {sT2}, {sJ}, 1'); em(f's_add_u32 {sT2}, {sT2}, 11')
        em(f's_cmp_lt_u32 {sJ}, 11'); em(f's_cselect_b32 {sT}, {sT}, {sT2}');
        em(f's_cselect_b32 {sT2}, 128, 64')
        em(f's_lshl_b32 {sW1c0}, {sT}, 6'); em(f's_add_u32 {sW1c2}, {sW1c0}, {sT2}')
        em(f's_lshl_b32 {sHks}, {sT}, 11'); em(f's_add_u32 {sHks}, {sHks}, {sGH}')
        em(f's_mul_i32 {sT}, {sW}, {H_T}'); em(f's_add_u32 {sHks}, {sHks}, {sT}')
        em(f's_and_b32 {sC128}, {sJ}, 7'); em(f's_lshl_b32 {sC128}, {sC128}, 7')
        em(f's_lshr_b32 {sT}, {sJ}, 3')
        em(f's_lshl_b32 {sT2}, {sT}, 16'); em(f's_add_u32 {sXR}, {sT2}, {sGX}'); em(f's_add_u32 {sQR}, {sT2}, {sGH}')
        em(f's_add_u32 {sOutRow}, {sT2}, {sXrow}'); em(f's_add_u32 {sOutRow}, {sOutRow}, {sC128}')
        em(f's_mul_i32 {sHR}, {sT}, {2*H_T}'); em(f's_add_u32 {sHR}, {sHR}, {sGH}')
        em(f's_lshl_b32 {sStR}, {sT}, 12'); em(f's_add_u32 {sStR}, {sStR}, {sG8K}')
        em(f's_lshl_b32 {sXst}, {sC128}, 5'); em(f's_add_u32 {sXst}, {sXst}, {sXR}')
        em(f's_and_b32 {sT}, {sJ}, 4'); em(f's_lshl_b32 {sT}, {sT}, 7'); em(f's_and_b32 {sT2}, {sJ}, 3'); em(f's_lshl_b32 {sT2}, {sT2}, 2')
        em(f's_add_u32 {sStst}, {sT}, {sT2}'); em(f's_add_u32 {sStst}, {sStst}, {sStR}')
        em(f's_lshl_b32 {sQst}, {sJ}, 11'); em(f's_add_u32 {sQst}, {sQst}, {sGH}')
        em(f's_cmp_ge_u32 {sW}, 2'); em(f's_cselect_b32 {sLim4}, 20, 21'); em(f's_lshl_b32 {sLim4}, {sLim4}, 12')
        em(f's_lshr_b32 {sT}, {sJ}, 3'); em(f's_and_b32 {sT2}, {sG}, 1'); em(f's_lshl_b32 {sT2}, {sT2}, 1'); em(f's_add_u32 {sT}, {sT}, {sT2}')
        em(f's_and_b32 {sT2}, s2, 7')
        em(f's_lshl_b32 {sRot2}, {sT}, 1'); em(f's_add_u32 {sRot2}, {sRot2}, {sT2}')
        em(f's_mul_i32 {sRot4}, {sT}, 11'); em(f's_lshr_b32 {sRot4}, {sRot4}, 1'); em(f's_lshr_b32 {sT2}, {sT2}, 1'); em(f's_add_u32 {sRot4}, {sRot4}, {sT2}')
        em(f's_lshl_b32 {sRot4}, {sRot4}, 12')
        if not o.rot2: em(f's_mov_b32 {sRot2}, 0'); em(f's_mov_b32 {sRot4}, 0')
        em(f's_mul_i32 {sJmsg}, {sJ}, {16*MSG_B}'); em(f's_add_u32 {sJmsg}, {sJmsg}, {WS_MSG}')
        if o.tlb: em.force_wait(lg=0)
        em(f's_mov_b32 {sDelta}, {f2u(1e-6*1.4426950408889634):#x}'); em(f's_mov_b32 {sLn2}, {f2u(0.6931471805599453):#x}')
        em('s_mov_b32 s89, s88'); em('s_mov_b32 s91, s90')
        em(f's_mov_b32 {sLog2e}, {f2u(1.4426950408889634):#x}'); em(f's_mov_b32 {sInv}, {f2u(1/512):#x}')
        em(f's_mov_b32 {sEps}, {f2u(1e-5):#x}'); em(f's_mov_b32 {s1em6}, {f2u(1e-6):#x}')
        em('s_mov_b32 s84, 0x00ff00ff'); em('s_mov_b32 s85, 0'); em(f's_mov_b32 {sMaskInv}, 0xffffff00')
        em(f'v_lshrrev_b32 {vHi}, 5, {vLane}')
        em(f's_lshl_b32 {sT}, {sW}, 15'); em(f'v_add_u32 {vAT}, {sT}, {vL16}')
        em(f'v_add_u32 {vAW}, {sWl}, {vL16}')
        em(f'v_bfe_u32 v27, {vLane}, 2, 2'); em(f'v_lshl_add_u32 v27, {vHi}, 2, v27')
        em(f'v_bfe_u32 v28, {vLane}, 4, 1'); em('v_lshlrev_b32 v28, 5, v28')
        em(f'v_and_b32 v29, 3, {vLane}'); em('v_lshl_add_u32 v28, v29, 3, v28')
        em(f'v_lshl_add_u32 {vTr[0]}, v27, 6, v28')
        em(f'v_lshl_add_u32 {vTr[0]}, {vHi}, 8, {vTr[0]}')
        em(f'v_add_u32 {vTr[1]}, 0x10000, {vTr[0]}'); em(f'v_add_u32 {vTr[2]}, 0x20000, {vTr[0]}')
        em(f'v_bfe_u32 v29, {vLane}, 3, 1'); em('v_lshl_add_u32 v28, v29, 6, v28')
        em(f'v_lshl_add_u32 {vS0}, v27, 7, v28'); em(f'v_add_u32 {vS0}, {sWl}, {vS0}'); em(f'v_xor_b32 {vS1}, 64, {vS0}')
        em(f'v_lshrrev_b32 v27, 3, {vLane}'); em(f'v_and_b32 v28, 7, {vLane}')
        em(f'v_bfe_u32 v29, {vLane}, 4, 1'); em('v_lshlrev_b32 v29, 2, v29'); em('v_xor_b32 v28, v28, v29'); em('v_lshlrev_b32 v28, 4, v28')
        em(f'v_lshl_add_u32 {vDs}, v27, 10, v28'); em(f's_lshl_b32 {sT}, {sW}, 14'); em(f'v_add_u32 {vDs}, {sT}, {vDs}')
        em(f'v_lshl_add_u32 v27, {vHi}, 9, {vL16}'); em(f's_lshl_b32 {sT}, {sW}, 11'); em(f'v_add_u32 {vStT}, {sT}, v27')
        em(f'v_and_b32 {vPoll}, 15, {vLane}'); em(f'v_lshlrev_b32 {vPoll}, 2, {vPoll}')
        em(f'v_readfirstlane_b32 {sNonce}, v24')
        em(f's_add_u32 {sNonce}, {sNonce}, {NONCE_K:#x}')
        em(f's_getreg_b32 {sHello}, hwreg(HW_REG_XCC_ID)'); em(f's_and_b32 {sHello}, {sHello}, 15')
        em(f's_add_u32 {sHello}, {sHello}, {sNonce}'); em(f's_add_u32 {sHello}, {sHello}, 1')
        def hello():
            em(f's_mov_b64 {sEx}, exec'); em('s_mov_b64 exec, 1')
            em(f'v_mov_b32 v24, {sHello}')
            em(f's_lshl_b32 {sT2}, {sJ}, 2'); em(f's_add_u32 {sT2}, {sT2}, {sG128}'); em(f's_add_u32 {sT2}, {sT2}, {WS_HELLO}')
            em(f'buffer_store_dword v24, off, {SWS}, {sT2} sc1')
            em(f's_mov_b64 exec, {sEx}')
        self.only_wave(0, hello)

    def chunk_items(self, c):
        it = []
        def x(rb8):
            if rb8 == 0: self.rot(c, 128, sXrow); self.em(f's_mov_b32 s99, {sR}')
            self.dma(SX, 'v25' if rb8 % 2 == 0 else 'v26', 's99', rb8 * 8192, 24 + 4 * (c % 3) + rb8, f'c{c}')
        for rb8 in range(4): it.append(lambda rb8=rb8: x(rb8))
        it.append(lambda: self.qkv_dma('kv', c, f'c{c}'))
        return it
    def chunk_dma(self, c): self.emit(self.chunk_items(c))

    def touch_q(self, vt, dst):
        em = self.em
        em(f'v_lshlrev_b32 {vt}, 7, {vLane}'); em(f's_lshl_b32 {sT2}, {sW}, 15'); em(f's_add_u32 {sT2}, {sT2}, {sQst}')
        em(f's_mov_b64 {sEx}, exec'); em('s_mov_b64 exec, 0xffff')
        em(f'buffer_load_dword {v(dst)}, {vt}, {SWS}, {sT2} offen sc1', tag='touch')
        em(f'v_lshlrev_b32 {vt}, 12, {vLane}')
        em('s_mov_b64 exec, 0x7f')
        em(f'buffer_load_dword {v(dst+1)}, {vt}, {SWS}, {sFlag} offen sc1', tag='touch')
        em(f's_mov_b64 exec, {sEx}')
    def touch_w(self, vt, dst):
        em = self.em
        em(f'v_lshlrev_b32 {vt}, 7, {vLane}')
        em(f's_lshl_b32 {sT2}, s2, 2'); em(f's_add_u32 {sT2}, {sT2}, {sW}'); em(f's_mul_i32 {sT2}, {sT2}, {11*128}')
        em(f's_mov_b64 {sEx}, exec'); em('s_mov_b64 exec, 0x7ff')
        em(f'buffer_load_dword {v(dst)}, {vt}, {SW1}, {sT2} offen', tag='touch')
        em(f'buffer_load_dword {v(dst+1)}, {vt}, {SW2}, {sT2} offen', tag='touch')
        em(f's_lshl_b32 {sT2}, s2, 2'); em(f's_add_u32 {sT2}, {sT2}, {sW}'); em(f's_lshl_b32 {sT2}, {sT2}, 9')
        em('s_mov_b64 exec, 15')
        em(f'buffer_load_dword {v(dst+2)}, {vt}, {SWO}, {sT2} offen', tag='touch')
        em(f's_mov_b64 exec, {sEx}')
    def reducer_setup(self):
        em = self.em
        em(f's_lshr_b32 {sT}, {sG}, 3'); em(f's_cmp_eq_u32 {sT}, {sW}'); em(f's_cselect_b32 {sRed}, 1, 0')
        em(f's_lshl_b32 {sLine}, {sG}, 7')
        em(f's_mul_i32 {sKTo}, {sT}, 544'); em(f's_and_b32 {sT2}, {sG}, 7'); em(f's_lshl_b32 {sT2}, {sT2}, 6'); em(f's_add_u32 {sKTo}, {sKTo}, {sT2}')
        em(f's_mov_b32 {sFac}, {sLn2}')
        L = em.newlabel('Lz')
        em(f's_cmp_lg_u32 {sW}, 2'); em(f's_cbranch_scc1 {L}')
        em(f's_cmp_eq_u32 {sG}, {sJ}'); em(f's_cselect_b32 {sRed}, 1, 0')
        em(f's_mov_b32 {sLine}, 2048'); em(f's_mov_b32 {sKTo}, 512'); em(f's_mov_b32 {sFac}, 1.0')
        em.label(L)
        em(f's_sub_u32 {sCsp}, {sG}, {sJ}'); em(f's_sub_u32 {sCsp}, {sCsp}, 1'); em(f's_and_b32 {sCsp}, {sCsp}, 15')
        em(f's_cmp_eq_u32 {sW}, 3'); em(f's_cselect_b32 {sCsp}, {sCsp}, 15')
        em(f's_mul_i32 {sT2}, {sJ}, 1088'); em(f's_add_u32 {sKTo}, {sKTo}, {sT2}'); em(f's_add_u32 {sKTo}, {sKTo}, {WS_KT}')
        em(f's_add_u32 {sLine}, {sLine}, {sJmsg}')
        em(f's_and_b32 {sT2}, {sG}, 7'); em(f's_lshl_b32 {sT2}, {sT2}, 3'); em(f's_mov_b64 {sX0}, 0xff'); em(f's_lshl_b64 {sX0}, {sX0}, {sT2}'); em(f's_not_b64 {sX0}, {sX0}')
        em(f's_cmp_eq_u32 {sT}, 0'); em(f's_cselect_b64 {sX1}, -1, {sX0}'); em(f's_cselect_b64 {sX0}, {sX0}, -1')
    def kt_voff(self, d, t):
        em = self.em
        em(f'v_and_b32 {d}, 7, {vLane}'); em(f'v_lshlrev_b32 {d}, 3, {d}'); em(f'v_lshl_add_u32 {d}, {vHi}, 2, {d}')
        em(f's_cmp_eq_u32 {sW}, 2'); em(f's_cselect_b32 {sT2}, 128, 0'); em(f'v_and_b32 {t}, 4, {vLane}'); em(f'v_mad_u32_u24 {d}, {t}, {sT2}, {d}')
    def resets(self):
        em = self.em
        t0, D = v(MR + 24), MR + 28
        self.reducer_setup()
        L = em.newlabel('Lrs')
        em(f's_cmp_eq_u32 {sRed}, 0'); em(f's_cbranch_scc1 {L}')
        em.cond_begin()
        self.kt_voff(t0, v(D)); em(f'v_mov_b32 {v(D)}, -1')
        em('s_mov_b32 exec_lo, 0xff'); em('s_mov_b32 exec_hi, 0xff')
        for l in range(2): self.wsstore(v(D), t0, sKTo, l * 0x8000, width=1, sc=' sc1', tag='rst')
        em('s_mov_b64 exec, -1')
        em.cond_end()
        em.label(L)
        L = em.newlabel('Lrc')
        em(f's_cmp_ge_u32 {sCsp}, 3'); em(f's_cbranch_scc1 {L}')
        em.cond_begin()
        em(f'v_lshlrev_b32 {t0}, 2, {vLane}'); em(f'v_mov_b32 {v(D)}, -1')
        em(f's_mul_i32 {sT2}, {sJ}, 384'); em(f's_lshl_b32 {sR}, {sCsp}, 7'); em(f's_add_u32 {sT2}, {sT2}, {sR}')
        em('s_mov_b32 exec_hi, 0')
        self.wsstore(v(D), t0, sT2, WS_CS, width=1, sc=' sc1', tag='rst')
        em('s_mov_b64 exec, -1')
        em.cond_end()
        em.label(L)
        def msg():
            em(f'v_lshlrev_b32 {t0}, 4, {vTid}'); em(f's_not_b32 {sT2}, {sNonce}')
            for r in range(4): em(f'v_mov_b32 {v(D+r)}, {sT2}')
            em(f'v_cmp_gt_u32 vcc, 136, {vTid}'); em(f's_and_saveexec_b64 {sEx}, vcc')
            em(f's_mul_i32 {sT2}, {sG}, {MSG_B}'); em(f's_add_u32 {sT2}, {sT2}, {sJmsg}')
            for l in range(2): self.wsstore(v(D, 4), t0, sT2, l * 256 * MSG_B, sc=' sc1', tag='rst')
            em(f's_mov_b64 exec, {sEx}')
        if self.o.prewrite: self.only_wave(3, msg, invert=True)
    def touch_x(self, vt, dst):
        em = self.em
        em(f'v_lshlrev_b32 {vt}, 7, {vLane}')
        em(f's_lshr_b32 {sT2}, {sW}, 1'); em(f's_lshl_b32 {sT2}, {sT2}, 15'); em(f's_add_u32 {sT2}, {sT2}, {sXst}')
        em(f's_and_b32 {sT}, {sW}, 1'); em(f's_lshl_b32 {sT}, {sT}, 11'); em(f's_add_u32 {sT2}, {sT2}, {sT}')
        em(f's_mov_b64 {sEx}, exec'); em('s_mov_b64 exec, 0xffff')
        em(f'buffer_load_dword {v(dst)}, {vt}, {SWS}, {sT2} offen sc1', tag='touch')
        em(f'v_lshlrev_b32 {vt}, 17, {vLane}')
        em(f's_lshl_b32 {sT2}, {sJ}, 2'); em(f's_add_u32 {sT2}, {sT2}, {sW}'); em(f's_lshl_b32 {sT2}, {sT2}, 7'); em(f's_add_u32 {sT2}, {sT2}, {sG8K}')
        em('s_mov_b64 exec, 3')
        em(f'buffer_load_dword {v(dst+1)}, {vt}, {SWS}, {sT2} offen sc1', tag='touch')
        em(f's_mov_b64 exec, {sEx}')
    def touch_h(self, vt, dst):
        em = self.em
        em(f'v_lshlrev_b32 {vt}, 7, {vLane}')
        em(f's_mov_b64 {sEx}, exec'); em('s_mov_b32 exec_hi, 0xffff')
        em(f'buffer_load_dword {dst}, {vt}, {SWS}, {sHks} offen sc1', tag='touch')
        em(f's_mov_b64 exec, {sEx}')

    def colsum_items(self, quads, acc, tmp, own, ones, first):
        items = []
        rds = [self.tr(tmp + 4 * (n % 2), q, 0, own) for n, q in enumerate(quads)]
        items += rds[0]
        for n in range(len(quads)):
            if n + 1 < len(quads): items += rds[n + 1]
            items.append(f'{MF} {acc}, {ones}, {v(tmp + 4*(n%2), 4)}, ' + ('0' if first and n == 0 else acc))
        return items
    def cs_write_items(self, srcs, lds, tmp):
        ad = v(tmp)
        it = [f'v_and_b32 {ad}, 31, {vLane}', f'v_lshlrev_b32 {ad}, 4, {ad}', f'v_add_u32 {ad}, {lds:#x}, {ad}',
              f's_lshl_b32 {sT2}, {sW}, 2', f'v_add_u32 {v(tmp+1)}, {sT2}, {ad}']
        return it + [f'ds_write_b32 {v(tmp+1)}, {s} offset:{p*512}' for p, s in enumerate(srcs)]
    def cs_read_items(self, keys, tmp):
        ad = v(tmp); R = tmp + 2
        it = [f'ds_read_b128 {v(R+4*p,4)}, {ad} offset:{p*512}' for p in range(len(keys))]
        for p, k in enumerate(keys):
            r = R + 4 * p
            it += [f'v_add_f32 {v(r)}, {v(r)}, {v(r+1)}', f'v_add_f32 {v(r+2)}, {v(r+2)}, {v(r+3)}', f'v_add_f32 {v(r)}, {v(r)}, {v(r+2)}',
                   f'v_cvt_pk_bf16_f32 {v(r+1)}, {v(r)}, {v(r)}', f'v_lshlrev_b32 {v(r+1)}, 16, {v(r+1)}', f'v_sub_f32 {v(r+1)}, {v(r)}, {v(r+1)}',
                   f'v_cvt_pk_bf16_f32 {CS[k]}, {v(r)}, {v(r+1)}']
        return it
    def colsum_exchange(self, srcs, keys, lds, tmp):
        self.emit(self.cs_write_items(srcs, lds, tmp)); self.barrier(); self.emit(self.cs_read_items(keys, tmp))

    def stage_dma(self, srd, m, qa, qb, tag):
        em = self.em
        if srd == SWO:
            em(f's_add_u32 {sR}, {sRot2}, {m}'); em(f's_and_b32 {sR}, {sR}, 7'); em(f's_lshl_b32 {sR}, {sR}, 16')
        else:
            self.rot4(m); em(f's_lshl_b32 {sR}, {sR}, 4')
        em(f's_add_u32 {sR}, {sR}, {sC128}')
        self.dma(srd, vDs, sR, 0, qa, tag, nt=self.o.nt_stage); self.dma(srd, vDs, sR, 8192, qb, tag, nt=self.o.nt_stage)
    def rot4(self, m):
        em = self.em
        em(f's_add_u32 {sR}, {sRot4}, {m*4096}'); em(f's_sub_u32 {sT}, {sR}, {22*4096}'); em(f's_min_u32 {sR}, {sR}, {sT}')
    def stage_read_items(self, abase, m, qa, qb):
        items = []
        for h, q in enumerate((qa, qb)):
            addr = q * 4096; win = addr >> 16; off = addr & 0xFFFF
            def f(win=win, off=off, h=h):
                if win == 0: b0, b1 = vS0, vS1
                else:
                    if self.swin != win:
                        self.em(f'v_add_u32 {vS0w}, {win*65536:#x}, {vS0}'); self.em(f'v_add_u32 {vS1w}, {win*65536:#x}, {vS1}'); self.swin = win
                    b0, b1 = vS0w, vS1w
                self.em(f'ds_read_b64_tr_b16 {a(abase + m*8 + 2*h, 2)}, {b0} offset:{off}')
                self.em(f'ds_read_b64_tr_b16 {a(abase + m*8 + 4 + 2*h, 2)}, {b1} offset:{off}')
            items.append(f)
        return items

    def aux_items(self, S, Q, t0, need_r=True):
        it = [f'v_mul_f32 {S}, {sInv}, {S}']
        if need_r:
            it += [f'v_mul_f32 {Q}, {sInv}, {Q}', f'v_fma_f32 {Q}, -{S}, {S}, {Q}', f'v_max_f32 {Q}, 0, {Q}', f'v_add_f32 {Q}, {sEps}, {Q}',
                   f'v_rsq_f32 {Q}, {Q}', f'v_mul_f32 {vRl}, {sLog2e}, {Q}']
        it += [f'v_cmp_eq_u32 vcc, 0, {vHi}', f'v_cndmask_b32_e64 {S}, 0, -{S}, vcc',
               f'v_cvt_pk_bf16_f32 {v(AUX)}, {S}, {S}', f'v_lshlrev_b32 {t0}, 16, {v(AUX)}', f'v_sub_f32 {S}, {S}, {t0}', f'v_cvt_pk_bf16_f32 {v(AUX+1)}, {S}, {S}']
        if need_r:
            it += [f'v_cndmask_b32 {Q}, 0, {vRl}, vcc', f'v_cvt_pk_bf16_f32 {t0}, {Q}, {Q}', f'v_lshlrev_b32 {t0}, 16, {t0}', f'v_sub_f32 {t0}, {Q}, {t0}',
                   f'v_cvt_pk_bf16_f32 {v(AUX+2)}, {Q}, {t0}']
        else: it.append(f'v_mov_b32 {v(AUX+2)}, 0')
        it += [f'v_mov_b32 {v(AUX+3)}, 0', f'v_mov_b32 {v(CB+2)}, 0', f'v_mov_b32 {v(CB+3)}, 0', f'v_mov_b32 {v(CB+4)}, 0x3f803f80', f'v_mov_b32 {v(CB+5)}, 0x3f803f80']
        return it
    def corr_items(self, key, acc, swapAB):
        c = v(acc, 16)
        return [f'v_mov_b32 {v(CB)}, {CS[key]}', f'v_mov_b32 {v(CB+1)}, {CS[key]}',
                f'{MF} {c}, {v(AUX,4)}, {v(CB,4)}, {c}' if swapAB else f'{MF} {c}, {v(CB,4)}, {v(AUX,4)}, {c}']
    def stats_T_loads(self, i):
        t = MR + 16
        self.wsload(v(t, 4), vStT, sG8K, i * 16 * 8192, tag='stat'); self.wsload(v(t + 4, 4), vStT, sG8K, i * 16 * 8192, tag='stat', off=512)
    def stats_T_items(self, need_r):
        t = MR + 16
        it = [f'v_add_f32 {v(t)}, {v(t)}, {v(t+1)}', f'v_add_f32 {v(t+2)}, {v(t+2)}, {v(t+3)}', f'v_add_f32 {v(t+4)}, {v(t+4)}, {v(t+5)}',
              f'v_add_f32 {v(t+6)}, {v(t+6)}, {v(t+7)}', f'v_add_f32 {v(t)}, {v(t)}, {v(t+2)}', f'v_add_f32 {v(t+4)}, {v(t+4)}, {v(t+6)}',
              f'v_add_f32 {v(t)}, {v(t)}, {v(t+4)}', f'v_mov_b32 {v(t+1)}, {v(t)}', f'v_permlane32_swap_b32 {v(t)}, {v(t+1)}']
        return it + self.aux_items(v(t), v(t + 1), v(t + 2), need_r)

    def pass2(self, steps, planes, accs, swapAB, side, fill, loader=None, first=True, extra=None):
        em = self.em
        steps = list(steps)
        def rd(i, p):
            ks = steps[i]
            for t in self.tr(BB + (i % 2) * 8 + 4 * p, planes[p][ks >> 2], ks & 3): em(t)
        for i in range(2):
            for p in range(2): rd(i, p)
        for i, ks in enumerate(steps):
            for p in range(2):
                w = v(BB + (i % 2) * 8 + 4 * p, 4); x = Afrag(ks); c = v(accs[p], 16)
                src = '0' if (first and i == 0) else c
                em(f'{MF} {c}, {x}, {w}, {src}' if swapAB else f'{MF} {c}, {w}, {x}, {src}')
                if i + 2 < len(steps): rd(i + 2, p)
                if p == 0 and loader: loader(i)
                side.run(fill(i) if callable(fill) else fill)
            if extra: extra(ks)
    def pass1(self, plane, acc, side, fill):
        em = self.em
        NB = 4
        def rd(ks):
            for t in self.tr(BB + (ks % NB) * 4, plane[ks >> 2], ks & 3): em(t)
        for ks in range(NB - 1): rd(ks)
        for ks in range(32):
            w = v(BB + (ks % NB) * 4, 4); c = v(acc, 16)
            if ks + NB - 1 < 32: rd(ks + NB - 1)
            em(f'{MF} {c}, {w}, {Afrag(ks)}, ' + ('0' if ks == 0 else c))
            side.run(fill(ks) if callable(fill) else fill)
    def a_loader(self, pre, sti):
        def ld(ks):
            if ks & 3 == 0:
                self.rot(ks >> 2, 4096, sGX); self.em(f's_mov_b32 s99, {sR}')
            self.em(f'buffer_load_dwordx4 {Afrag(ks)}, {vAT}, {SWS}, s99 offen offset:{(ks & 3) * 1024} sc1', tag='A')
        for ks in range(pre): ld(ks)
        def step(i):
            if i == 0: self.stats_T_loads(sti)
            if i + pre < 32: ld(i + pre)
        return step

    def phi_items(self, acc, rl, lanes_t, E):
        out = []
        for g in range(2):
            b = acc + 8 * g
            for k in range(4):
                x = v(b + 2 * k, 2)
                if lanes_t:
                    out += [f'v_fma_f32 {v(b+2*k)}, {v(b+2*k)}, {rl}, {sDelta}', f'v_fma_f32 {v(b+2*k+1)}, {v(b+2*k+1)}, {rl}, {sDelta}']
                else: out.append(f'v_pk_fma_f32 {x}, {x}, {v(rl + 8*g + 2*k, 2)}, {sDelta2}')
            for k in range(8): out.append(f'v_exp_f32_e64 {v(E+k)}, {v(b+k)} clamp')
            for k in range(8): out.append(f'v_max_f32 {v(b+k)}, {sDelta}, {v(b+k)}')
            for k in range(4): out.append(f'v_pk_fma_f32 {v(b+2*k,2)}, {v(b+2*k,2)}, {sLn22}, {v(E+2*k,2)}')
            for k in range(4): out.append(f'v_cvt_pk_bf16_f32 {v(acc+4*g+k)}, {v(b+2*k)}, {v(b+2*k+1)}')
        return out

    def p1_start(self):
        em = self.em; o = self.o
        self.lin = True
        X = MR; OWN = [v(MR + 4), v(MR + 5), v(MR + 6)]; H = v(MR + 7); ONE = v(MR + 8, 4); CT = MR + 12
        self.OWN, self.ONE = OWN, ONE
        aS, aCk, aCv = a(0, 16), a(32, 16), a(48, 16); QA = ACC + 32
        em(f'v_and_b32 v27, 7, {vLane}'); em('v_lshlrev_b32 v27, 7, v27')
        em(f'v_bfe_u32 v28, {vLane}, 3, 2'); em('v_lshl_add_u32 v27, v28, 12, v27')
        em(f's_add_u32 {sT}, {sWl}, {24*4096}'); em(f'v_add_u32 v27, {sT}, v27')
        em(f'v_bfe_u32 v28, {vLane}, 1, 3'); em(f'v_xor_b32 v28, v28, {vHi}')
        for kk in range(4):
            em(f'v_xor_b32 v29, {2*kk}, v28'); em(f'v_lshl_add_u32 {v(X+kk)}, v29, 4, v27')
        for i in range(3): em(f'v_add_u32 {OWN[i]}, {sWl}, {vTr[i]}')
        for i in range(4): em(f'v_mov_b32 {v(MR+8+i)}, 0x3f803f80')
        for sm, bit in ((sM0, 1), (sM1, 2), (sM3, 8), (sM4, 16)):
            em(f'v_and_b32 v29, {bit}, {vLane}'); em(f'v_cmp_ne_u32 {sm}, 0, v29')
        em(f'v_bfe_u32 v29, {vLane}, 2, 1'); em(f'v_cmp_eq_u32 s[46:47], v29, {vHi}')
        if o.tw == 0: self.touch_w('v29', MR + 20)
        self.resets()
        def own_reads(c):
            em.wait_vm_tag(f'c{c}')
            for kk in range(4): em(f'ds_read_b128 {Afrag(4*c+kk)}, {v(X+kk)} offset:{(c % 3) * 16384}')
            for p, pl in enumerate('kv'): self.emit(self.tr(CT + 4 * p, self.pl[pl][c], 0, OWN))
        side = Side(em)
        self.stq = list(range(24, 32)) + [34, 35, 32, 33, 36, 37, 38, 39]
        own_reads(0)
        self.ts('c0')
        for c in range(8):
            em('s_barrier')
            if c + 2 < 8: side.add(*self.chunk_items(c + 2))
            if c == 2: side.add(lambda: self.touch_q('v27', MR + 24))
            if c == o.tw - 1: side.add(lambda: self.touch_w('v27', MR + 20))
            if c == 1:
                def w1p():
                    em(f's_lshl_b32 {sT2}, {sW}, 6'); em(f's_add_u32 {sT2}, {sT2}, {sW1c0}'); em(f's_cmp_lt_u32 {sW}, 2'); em(f's_cselect_b32 {sT2}, {sT2}, {sW1c2}')
                    em(f's_lshl_b32 {sR}, {sG}, 1'); em(f's_sub_u32 {sR}, {sR}, {sW}'); em(f's_mul_i32 {sR}, {sR}, {16*2752}')
                    em(f'v_add_u32 v28, {sR}, {vD1}')
                    self.dma(SW1, 'v28', sT2, 0, 36, 'w1p'); self.dma(SW1, 'v28', sT2, 16 * 2752, 37, 'w1p')
                side.add(w1p)
            if c == 5:
                aW = a(80, 16); W = MR + 24
                side.add(lambda: em.wait_vm_tag('w1p'))
                side.add(*self.tr(W, 36, 0, OWN)); side.add(*self.tr(W + 4, 37, 0, OWN))
                side.add(f'{MF} {aW}, {ONE}, {v(W,4)}, 0', f'{MF} {aW}, {ONE}, {v(W+4,4)}, {aW}')
            if c == 6:
                def w1s():
                    W = MR + 24
                    em(f'v_accvgpr_read_b32 {v(W)}, a80'); em(f's_and_b32 {sT2}, {sNonce}, 0xff'); em(f'v_mov_b32 {v(W+1)}, {sT2}')
                    em(f'v_and_or_b32 {v(W)}, {v(W)}, {sMaskInv}, {v(W+1)}'); em(f'v_lshlrev_b32 {v(W+1)}, 2, {vLane}')
                    em(f's_min_u32 {sR}, {sW}, 2'); em(f's_lshl_b32 {sR}, {sR}, 7')
                    em(f's_mul_i32 {sT2}, {sG}, {MSG_B}'); em(f's_add_u32 {sT2}, {sT2}, {sJmsg}'); em(f's_add_u32 {sT2}, {sT2}, {sR}')
                    em('s_mov_b32 exec_hi, 0')
                    self.wsstore(v(W), v(W + 1), sT2, 2176, width=1, sc=' sc1', tag='rst')
                    em('s_mov_b64 exec, -1')
                side.add(w1s)
            if c == 5:
                def hello():
                    em(f's_add_u32 {sT2}, {sG128}, {WS_HELLO}')
                    em(f'buffer_load_dword {H}, {vPoll}, {SWS}, {sT2} offen sc1', tag='hello')
                side.add(hello)
            if c == 6:
                for m in range(8): side.add(lambda m=m: self.qkv_dma('q', m, 'q'))
            def rd(kk, p):
                self.emit(self.tr(BB + (kk % 2) * 8 + 4 * p, self.pl['kv'[p]][c], kk))
            for kk in range(2):
                for p in range(2): rd(kk, p)
            for p, acc in enumerate((aCk, aCv)):
                em(f'{MF} {acc}, {ONE}, {v(CT+4*p,4)}, ' + ('0' if c == 0 else acc))
            for kk in range(4):
                ks = 4 * c + kk
                em(f'{MF} {aS}, {ONE}, {Afrag(ks)}, ' + ('0' if ks == 0 else aS)); side.run(1)
                em(f'{MF} {v(QA,16)}, {Afrag(ks)}, {Afrag(ks)}, ' + ('0' if ks == 0 else v(QA, 16))); side.run(1)
            if c == 7:
                S, Q, T = v(MR + 20), v(QA), v(MR + 22)
                tail = [f'v_accvgpr_read_b32 {v(MR+20)}, a32', f'v_accvgpr_read_b32 {v(MR+21)}, a48']
                tail += self.cs_write_items([v(MR + 20), v(MR + 21)], 32 * 4096, MR + 22) + [self.barrier] + self.cs_read_items(['k', 'v'], MR + 22)
                tail += [f'v_accvgpr_read_b32 {S}, a0']
                for r in range(8): tail.append(f'v_cndmask_b32 {v(QA+r)}, {v(QA+2*r)}, {v(QA+2*r+1)}, {sM0}')
                for r in range(4): tail.append(f'v_cndmask_b32 {v(QA+r)}, {v(QA+2*r)}, {v(QA+2*r+1)}, {sM1}')
                for r in range(2): tail.append(f'v_cndmask_b32 {v(QA+r)}, {v(QA+2*r)}, {v(QA+2*r+1)}, {sM3}')
                tail += [f'v_cndmask_b32 {Q}, {Q}, {v(QA+1)}, {sM4}', f'v_cndmask_b32 {Q}, 0, {Q}, s[46:47]',
                         f'v_mov_b32 {T}, {Q}', f'v_permlane32_swap_b32 {Q}, {T}', f'v_add_f32 {Q}, {Q}, {T}']
                tail += self.aux_items(S, Q, T)
                side.q = tail + side.q
            for kk in range(4):
                ks = 4 * c + kk
                for p in range(2):
                    cc = v(ACC + 16 * p, 16)
                    em(f'{MF} {cc}, {Afrag(ks)}, {v(BB + (kk % 2) * 8 + 4 * p, 4)}, ' + ('0' if ks == 0 else cc))
                    if kk + 2 < 4: rd(kk + 2, p)
                    side.run(1 if c < 7 else 7)
                if kk == 1 and c + 1 < 8:
                    side.flush()
                    own_reads(c + 1)
            em.wait_lg(0)
            if c in (1, 3, 5): self.ts(f'c{c}e')
        side.flush()
        self.ts('kvpass')
        self.emit(self.corr_items('k', ACC, True)); self.emit(self.corr_items('v', ACC + 16, True))
        L = em.newlabel('Lhp'); D = em.newlabel('Lhd')
        em.wait_vm_tag('hello')
        em.label(L)
        em(f'v_subrev_u32 {v(TMP)}, {sNonce}, {H}'); em(f'v_add_u32 {v(TMP)}, -1, {v(TMP)}')
        em(f'v_cmp_le_u32 vcc, 16, {v(TMP)}')
        em(f's_cbranch_vccz {D}')
        em.cond_begin()
        em(f's_add_u32 {sT2}, {sG128}, {WS_HELLO}')
        em(f'buffer_load_dword {H}, {vPoll}, {SWS}, {sT2} offen sc1'); em.force_wait(vm=0)
        em.cond_end()
        self.spin_tail(L)
        em.label(D)
        em(f'v_cmp_ne_u32 vcc, {sHello}, {H}')
        for i in range(3): em(f'v_mov_b32 {v(TMP+i)}, {OWN[i]}')
        self.OWN = [v(TMP), v(TMP + 1), v(TMP + 2)]
        em(f'{MF} {v(MR,16)}, {v(AUX,4)}, {v(CB+2,4)}, 0')
        self.ts('decide')

    def p1_rest(self, l):
        em = self.em; o = self.o
        K, V, Q = ACC, ACC + 16, ACC + 32
        RL = MR; E = MR + 16
        sq = self.pl['k'][:4]
        sa = 36 * 4096
        mw, mr, fac, t16, tg = v(K + 8), v(K + 9), v(K + 10), v(K + 11), v(K + 12)
        u, x1, x2 = v(K + 13), v(K + 14), v(K + 15)
        self.emit(self.phi_items(K, RL, False, E))
        D0, D1 = MR, MR + 16
        rest = [f'v_pk_mul_f32 {v(V+2*r,2)}, {v(V+2*r,2)}, {v(RL+2*r,2)}' for r in range(8)]
        rest += [f'v_cvt_pk_bf16_f32 {v(V+r)}, {v(V+2*r)}, {v(V+2*r+1)}' for r in range(8)]
        rest += [f'v_mov_b32 {v(V+8+r)}, {v(CB+4)}' for r in range(8)]
        rest += [f'v_permlane16_swap_b32 {v(V+r)}, {v(V+8+r)}' for r in range(8)]
        rest += [f'{MF} {v(D0,16)}, {v(K,4)}, {v(V,4)}, 0', f'{MF} {v(D1,16)}, {v(K,4)}, {v(V+8,4)}, 0',
                 f'{MF} {v(D0,16)}, {v(K+4,4)}, {v(V+4,4)}, {v(D0,16)}', f'{MF} {v(D1,16)}, {v(K+4,4)}, {v(V+12,4)}, {v(D1,16)}']
        if l == 0:
            for r in range(4): em(f'v_mov_b32 {v(BB+8+r)}, {v(CB+4)}')
            cs = [lambda: em.wait_vm_tag('q')] + self.colsum_items(self.pl['q'], v(Q, 16), BB, self.OWN, v(BB + 8, 4), True)
            mixed = []
            while rest or cs:
                mixed += rest[:1] + cs[:1]; rest = rest[1:]; cs = cs[1:]
            rest = mixed
        self.emit(rest)
        self.emit([f's_lshl_b32 {sT2}, {sW}, 12', f's_add_u32 {sT2}, {sT2}, {sa}', f'v_add_u32 {mw}, {sT2}, {vL16}',
                   f'v_bfe_u32 {x1}, {vLane}, 1, 4', f'v_lshl_add_u32 {x1}, {vHi}, 5, {x1}', f'v_lshlrev_b32 {x1}, 4, {x1}',
                   f's_lshl_b32 {sT2}, {sW}, 11', f'v_add_u32 {x1}, {sT2}, {x1}',
                   f'v_bfe_u32 {x2}, {vLane}, 1, 2', f'v_lshlrev_b32 {x2}, 9, {x2}', f'v_bfe_u32 {u}, {vLane}, 2, 1', f'v_lshl_add_u32 {x2}, {u}, 10, {x2}', f'v_add_u32 {x2}, 256, {x2}',
                   f's_cmp_eq_u32 {sW}, 2', f's_cselect_b64 vcc, -1, 0', f'v_cndmask_b32 {mr}, {x1}, {x2}, vcc',
                   f'v_and_b32 {x1}, 1, {vLane}', f'v_lshl_add_u32 {mr}, {x1}, 10, {mr}', f'v_add_u32 {mr}, {sa:#x}, {mr}',
                   f'v_lshlrev_b32 {t16}, 4, {vTid}', f's_and_b32 {sT2}, {sNonce}, 0xff', f'v_mov_b32 {tg}, {sT2}',
                   f'v_lshrrev_b32 {x1}, 3, {vLane}', f'v_mul_u32_u24 {x1}, {MSG_B}, {x1}', f'v_and_b32 {x2}, 7, {vLane}', f'v_lshl_add_u32 {fac}, {x2}, 4, {x1}'])
        self.kt_voff(u, x1)
        for i, r in enumerate((D0, D0 + 4, D1 + 8, D1 + 12)): em(f'ds_write_b128 {mw}, {v(r,4)} offset:{i*1024}')
        if l == 0: self.emit(self.cs_write_items([v(Q)], 33 * 4096, V))
        em.wait_vm_tag('q')
        self.barrier()
        self.ts('kvbar')
        M = MR
        ga = fac; G = MR + 4; A0 = x1; sOK = 's48'
        def msg_out():
            for i in range(4): em(f'ds_read_b128 {v(M+4*i,4)}, {mr} offset:{i*4096}')
            for r in (0, 2): em(f'v_pk_add_f32 {v(M+r,2)}, {v(M+r,2)}, {v(M+4+r,2)}')
            for r in (0, 2): em(f'v_pk_add_f32 {v(M+8+r,2)}, {v(M+8+r,2)}, {v(M+12+r,2)}')
            for r in (0, 2): em(f'v_pk_add_f32 {v(M+r,2)}, {v(M+r,2)}, {v(M+8+r,2)}')
            em(f'v_cmp_gt_u32 vcc, 136, {vTid}')
            for r in range(4): em(f'v_and_or_b32 {v(M+r)}, {v(M+r)}, {sMaskInv}, {tg}')
            em(f's_mul_i32 {sT2}, {sG}, {MSG_B}'); em(f's_add_u32 {sT2}, {sT2}, {sJmsg}')
            em('s_mov_b64 exec, vcc')
            self.wsstore(v(M, 4), t16, sT2, l * 256 * MSG_B, sc=' sc1', tag='msg')
            em('s_mov_b64 exec, -1')
        self.only_wave(3, msg_out, invert=True)
        def if_pending(f):
            L = em.newlabel('Lp')
            em(f's_cmp_lg_u32 {sOK}, 0'); em(f's_cbranch_scc1 {L}')
            em.cond_begin(); f(); em.vmq = [p for p in em.vmq if p.tag != 'g']; em.cond_end()
            em.label(L)
            self.gmark = set(id(p) for p in em.vmq)
        def g_loads():
            em(f's_mov_b64 exec, {sX0}'); self.wsload(v(G, 4), ga, sLine, l * 256 * MSG_B, tag='g')
            em(f's_mov_b64 exec, {sX1}'); self.wsload(v(G + 4, 4), ga, sLine, l * 256 * MSG_B + 8 * MSG_B, tag='g')
            em('s_mov_b64 exec, -1')
        def g_check():
            em(f'v_xor_b32 {A0}, {v(G)}, {tg}')
            for r in (3, 4, 7): em(f'v_bitop3_b32 {A0}, {v(G+r)}, {tg}, {A0} bitop3:0xbe')
            em(f'v_and_b32 {A0}, 0xff, {A0}'); em(f'v_cmp_ne_u32 vcc, 0, {A0}')
        def g_finish():
            for r in (0, 2): em(f'v_pk_add_f32 {v(G+r,2)}, {v(G+r,2)}, {v(G+4+r,2)}')
            for r in range(4): em(f'v_add_f32_dpp {v(G+r)}, {v(G+r)}, {v(G+r)} row_ror:8 {DPPM}')
            em(f'v_permlane16_swap_b32 {v(G)}, {v(G+1)}'); em(f'v_permlane16_swap_b32 {v(G+2)}, {v(G+3)}')
            em(f'v_add_f32 {v(G)}, {v(G)}, {v(G+1)}'); em(f'v_add_f32 {v(G+2)}, {v(G+2)}, {v(G+3)}')
            em(f'v_permlane32_swap_b32 {v(G)}, {v(G+2)}'); em(f'v_add_f32 {v(G)}, {v(G)}, {v(G+2)}')
            em(f'v_mul_f32 {v(G)}, {sFac}, {v(G)}'); em(f'v_mov_b32 {v(G+1)}, {v(G)}')
            em(f'v_permlane16_swap_b32 {v(G)}, {v(G+1)}'); em(f'v_cvt_pk_bf16_f32 {v(G)}, {v(G)}, {v(G+1)}')
            em('s_mov_b32 exec_lo, 0xff'); em('s_mov_b32 exec_hi, 0xff')
            self.wsstore(v(G), u, sKTo, l * 0x8000, width=1, sc=' sc1', tag='kt')
            em('s_mov_b64 exec, -1')
            em(f's_mov_b32 {sOK}, 1')
        def first():
            for r in range(4): em(f'v_mov_b32 {v(G+r)}, {v(M+r)}'); em(f'v_mov_b32 {v(G+4+r)}, {v(M+r)}')
            g_loads()
        def attempt():
            em.force_wait(vm=len([p for p in em.vmq if id(p) not in self.gmark]))
            g_check()
            L = em.newlabel('La'); E2 = em.newlabel('Lb')
            em(f's_cbranch_vccnz {L}')
            em.cond_begin(); g_finish(); em.cond_end()
            em(f's_branch {E2}')
            em.label(L)
            g_loads()
            em.label(E2)
        em(f's_xor_b32 {sOK}, {sRed}, 1')
        if_pending(first)
        self.ts('msg')
        side = Side(em)
        if l == 0: side.add(*self.cs_read_items(['q'], V))
        self.p1_bg(l, side)
        self.pass1(self.pl['q'], Q, side, o.fill_p1)
        self.emit(self.corr_items('q', Q, False))
        side.flush()
        if self.lin:
            self.lin = False
            em(f'v_lshlrev_b32 {v(TMP)}, 8, {vHi}')
            for i in range(3): em(f'v_sub_u32 {vTr[i]}, {vTr[i]}, {v(TMP)}')
        self.barrier()
        self.ts('qpass')
        if_pending(attempt)
        self.p1_after_q(l)
        self.emit(self.phi_items(Q, vRl, True, E))
        self.wsstore(v(Q, 4), vAT, sQst, 0); self.wsstore(v(Q + 4, 4), vAT, sQst, 0, off=1024)
        self.setup_local()
        self.ts('qst')
        def loop():
            L = em.newlabel('Lg'); D = em.newlabel('Lgd')
            em.force_wait(vm=len([p for p in em.vmq if id(p) not in self.gmark]))
            em.label(L)
            g_check()
            em(f's_cbranch_vccz {D}')
            em.cond_begin(); g_loads(); em.force_wait(vm=0); em.cond_end()
            self.spin_tail(L)
            em.label(D)
            g_finish()
            em.force_wait(vm=1)
            em('s_mov_b64 exec, 1')
            em(f'v_mov_b32 {A0}, {sNonce}'); em(f's_add_u32 {sT2}, {sFlag}, {4*l*4096}')
            em(f'buffer_store_dword {A0}, off, {SWS}, {sT2}' + self.sc)
            em('s_mov_b64 exec, -1')
            em(f's_mov_b32 {sOK}, 0')
        if_pending(loop)
        self.ts('kvpoll')
        def cs_reduce():
            L0 = em.newlabel('Lc'); L = em.newlabel('Lc'); D = em.newlabel('Lc')
            em(f's_cmp_ge_u32 {sCsp}, 3'); em(f's_cbranch_scc1 {L0}')
            em.cond_begin()
            em(f's_lshl_b32 {sR}, {sCsp}, 7'); em(f's_add_u32 {sR}, {sR}, {sJmsg}')
            em.label(L)
            self.wsload(v(G, 4), ga, sR, 2176); self.wsload(v(G + 4, 4), ga, sR, 2176 + 8 * MSG_B)
            em(f'v_xor_b32 {A0}, {v(G)}, {tg}')
            for r in range(1, 8): em(f'v_bitop3_b32 {A0}, {v(G+r)}, {tg}, {A0} bitop3:0xbe')
            em(f'v_and_b32 {A0}, 0xff, {A0}'); em(f'v_cmp_ne_u32 vcc, 0, {A0}')
            em(f's_cbranch_vccz {D}')
            self.spin_tail(L)
            em.label(D)
            for r in (0, 2): em(f'v_pk_add_f32 {v(G+r,2)}, {v(G+r,2)}, {v(G+4+r,2)}')
            for r in range(4): em(f'v_add_f32_dpp {v(G+r)}, {v(G+r)}, {v(G+r)} row_ror:8 {DPPM}')
            em(f'v_permlane16_swap_b32 {v(G)}, {v(G+1)}'); em(f'v_permlane16_swap_b32 {v(G+2)}, {v(G+3)}')
            em(f'v_add_f32 {v(G)}, {v(G)}, {v(G+1)}'); em(f'v_add_f32 {v(G+2)}, {v(G+2)}, {v(G+3)}')
            em(f'v_permlane32_swap_b32 {v(G)}, {v(G+2)}'); em(f'v_add_f32 {v(G)}, {v(G)}, {v(G+2)}')
            em(f'v_cvt_pk_bf16_f32 {v(G+1)}, {v(G)}, {v(G)}'); em(f'v_lshlrev_b32 {v(G+1)}, 16, {v(G+1)}'); em(f'v_sub_f32 {v(G+1)}, {v(G)}, {v(G+1)}')
            em(f'v_cvt_pk_bf16_f32 {v(G)}, {v(G)}, {v(G+1)}')
            em(f'v_and_b32 {v(G+1)}, 7, {vLane}'); em(f'v_lshlrev_b32 {v(G+1)}, 4, {v(G+1)}'); em(f'v_lshrrev_b32 {v(G+2)}, 4, {vLane}'); em(f'v_lshl_add_u32 {v(G+1)}, {v(G+2)}, 2, {v(G+1)}')
            em(f's_mul_i32 {sT2}, {sJ}, 384'); em(f's_lshl_b32 {sR}, {sCsp}, 7'); em(f's_add_u32 {sT2}, {sT2}, {sR}')
            em('s_mov_b32 exec_lo, 0x00ff00ff'); em('s_mov_b32 exec_hi, 0x00ff00ff')
            self.wsstore(v(G), v(G + 1), sT2, WS_CS, width=1, sc=' sc1', tag='kt')
            em('s_mov_b64 exec, -1')
            em.cond_end()
            em.label(L0)
        def mid():
            if l == 0: cs_reduce()
            self.p1_gap(l)
            self.only_wave(3, lambda: self.p1_loader(l, 3))
        self.group_sync(4 * l + 0, mid=mid, bar=False, skipif=sOK)

    def w1dma(self, p, m, tag, slot=None, voff=vD1):
        base = sW1c2 if p == 2 else sW1c0
        if p != 1 and not slot: self.rot(m, 64 * 2752, base)
        imm = (64 if p == 1 else 0) + (0 if slot is None else slot * 16 * 2752)
        self.dma(SW1, voff, sR, imm, self.w1pl[p][m], tag, nt=self.o.nt_w1, slot=slot)

    def p1_bg(self, l, side):
        em = self.em; o = self.o
        self.w1pl = [[16, 17, 18, 19, 24, 25, 26, 27], [20, 21, 22, 23, 28, 29, 30, 31], list(range(32, 40))]
        pad = ['s_nop 0'] * o.bgpad
        if l == 0:
            def res():
                t = v(MR + 16)
                em(f'v_lshrrev_b32 {t}, 3, {vLane}'); em(f's_lshl_b32 {sT2}, {sW}, 3'); em(f'v_add_u32 {t}, {sT2}, {t}'); em(f'v_lshlrev_b32 {t}, 10, {t}')
                em(f'v_and_b32 {v(MR+17)}, 7, {vLane}'); em(f'v_lshl_add_u32 {t}, {v(MR+17)}, 4, {t}')
                em(f'buffer_load_dwordx4 {a(RES,4)}, {t}, {SX}, {sOutRow} offen', tag='res')
                em(f's_add_u32 {sT}, {sOutRow}, 32768'); em(f'buffer_load_dwordx4 {a(RES+4,4)}, {t}, {SX}, {sT} offen', tag='res')
            side.add(res)
            for i in range(5): side.add(lambda i=i: self.stage_dma(SWO, i, self.stq[2 * i], self.stq[2 * i + 1], 'wo'), *pad)
            side.add(lambda: self.touch_x(v(MR + 16), ACC + 26))
            self.w1_todo = [4, 5, 6, 7]
        else:
            for m in range(4, 4 + o.w1_early): side.add(lambda m=m: (self.w1dma(0, m, 'w1a'), self.w1dma(1, m, 'w1a')), *pad)
            self.w1_todo = list(range(4 + o.w1_early, 8))

    def p1_after_q(self, l):
        if l == 0:
            for i in range(5, 8): self.stage_dma(SWO, i, self.stq[2 * i], self.stq[2 * i + 1], 'wo')

    def p1_gap(self, l):
        em = self.em; o = self.o
        if l == 0:
            em.wait_vm_tag('wo')
            for i in range(8): self.emit(self.stage_read_items(WOA, i, self.stq[2 * i], self.stq[2 * i + 1]))
            em.wait_lg(0)
            self.res_convert(to_m1=True)
            self.w2next = 0
            self.b1 = self.w2_batch(list(range(32, 40))[:2 * o.w2b1], 'w2a')
            for m in range(4, 4 + o.w1_gap): self.w1dma(0, m, 'w1a'); self.w1dma(1, m, 'w1a')
            self.w1_todo = list(range(4 + o.w1_gap, 8))
            if o.b1gap: self.emit(self.b1[0])

    def p1_loader(self, l, w):
        em = self.em; o = self.o
        vo = v(TMP)
        em(f'v_subrev_u32 {vo}, {w*16*2752}, {vD1}')
        for m in range(o.w1_solo):
            self.rot(m, 64 * 2752, sW1c0)
            for s in range(4):
                for p in range(2): self.dma(SW1, vo, sR, p * 64 + s * 16 * 2752, self.w1pl[p][m], 'solo', slot=s)
                if o.thr: em.force_wait(vm=o.thr)
        self.w1_todo = list(range(o.w1_solo, 4)) + [m for m in self.w1_todo if m >= 4]

    def w2_batch(self, quads, tag):
        steps = list(range(self.w2next, min(22, self.w2next + len(quads) // 2)))
        self.w2next += len(steps)
        issue = [lambda k=k, m=m: self.stage_dma(SW2, m, quads[2 * k], quads[2 * k + 1], tag) for k, m in enumerate(steps)]
        read = [lambda: self.em.wait_vm_tag(tag)] if steps else []
        for k, m in enumerate(steps): read += self.stage_read_items(W2A, m, quads[2 * k], quads[2 * k + 1])
        return issue, read

    def res_convert(self, to_m1):
        em = self.em
        t0, t1, t2 = v(TMP), v(TMP + 1), v(TMP + 2)
        em(f's_add_u32 {sT2}, {sWl}, {self.S}')
        em(f'v_add_u32 {t0}, {sT2}, {vL16}')
        em(f'v_and_b32 {t1}, 7, {vLane}'); em(f'v_lshlrev_b32 {t1}, 7, {t1}'); em(f'v_lshrrev_b32 {t2}, 4, {vLane}'); em(f'v_lshl_add_u32 {t1}, {t2}, 5, {t1}')
        em(f'v_bfe_u32 {t2}, {vLane}, 3, 1'); em(f'v_lshl_add_u32 {t1}, {t2}, 3, {t1}'); em(f'v_add_u32 {t1}, {sT2}, {t1}')
        if to_m1:
            for h in range(2): em(f'ds_write_b128 {t0}, {a(RES+4*h,4)} offset:{h*4096}')
            em.wait_lg(0)
            for h in range(2):
                em(f'ds_read_b64 {a(RES+4*h,2)}, {t1} offset:{h*4096}'); em(f'ds_read_b64 {a(RES+4*h+2,2)}, {t1} offset:{h*4096+16}')
        else:
            for h in range(2):
                em(f'ds_write_b64 {t1}, {a(RES+4*h,2)} offset:{h*4096}'); em(f'ds_write_b64 {t1}, {a(RES+4*h+2,2)} offset:{h*4096+16}')
            em.wait_lg(0)
            for h in range(2): em(f'ds_read_b128 {a(RES+4*h,4)}, {t0} offset:{h*4096}')
        em.wait_lg(0)

    def setup_local(self, final=False):
        em = self.em
        t0, t1, t2 = v(TMP + 1), v(TMP + 2), v(TMP + 3)
        em(f'v_and_b32 {t0}, 7, {vLane}'); em(f's_lshl_b32 {sT2}, {sW}, 3'); em(f'v_add_u32 {t0}, {sT2}, {t0}')
        em(f'v_lshrrev_b32 {t1}, 3, {vLane}'); em(f'v_lshlrev_b32 {t1}, 9, {t1}'); em(f'v_lshl_add_u32 {v(vStM)}, {t0}, 4, {t1}')
        em(f's_lshl_b32 {sT2}, {sW}, 13'); em(f's_add_u32 {sT2}, {sT2}, {self.S}')
        if not final:
            em(f'v_lshlrev_b32 {t1}, 7, {vHi}'); em(f'v_xor_b32 {t1}, {t1}, {vL16}'); em(f'v_add_u32 {v(vRedW)}, {sT2}, {t1}')
            em(f'v_bfe_u32 {t1}, {vLane}, 3, 1'); em(f'v_lshrrev_b32 {t2}, 4, {vLane}')
            em(f'v_lshlrev_b32 {v(vOut)}, 4, {t0}'); em(f'v_lshl_add_u32 {v(vStSt)}, {t2}, 10, {v(vOut)}')
            em(f'v_lshl_add_u32 {v(vOut)}, {t1}, 9, {v(vOut)}'); em(f'v_lshl_add_u32 {v(vOut)}, {t2}, 10, {v(vOut)}')
            em(f'v_lshlrev_b32 {v(vRedR)}, 3, {t1}'); em(f'v_xor_b32 {v(vRedR)}, {v(vRedR)}, {t0}'); em(f'v_lshlrev_b32 {v(vRedR)}, 4, {v(vRedR)}')
            em(f'v_lshl_add_u32 {v(vRedR)}, {t1}, 9, {v(vRedR)}'); em(f'v_lshl_add_u32 {v(vRedR)}, {t2}, 11, {v(vRedR)}'); em(f'v_add_u32 {v(vRedR)}, {self.S:#x}, {v(vRedR)}')
            em(f'v_and_b32 {t0}, 15, {vLane}'); em(f'v_lshlrev_b32 {t0}, 4, {t0}'); em(f'v_lshl_add_u32 {t0}, {vHi}, 8, {t0}')
            em(f'v_lshlrev_b32 {t1}, 4, {vHi}'); em(f'v_add_u32 {t1}, 512, {t1}'); em(f'v_and_b32 {t2}, 16, {vLane}'); em(f'v_cmp_ne_u32 vcc, 0, {t2}')
            em(f'v_cndmask_b32 {t0}, {t0}, {t1}, vcc'); em(f's_mul_i32 {sT2}, {sW}, 544'); em(f'v_add_u32 {v(vKT)}, {sT2}, {t0}')
        else:
            for i in range(4):
                em(f'v_xor_b32 {t0}, {64*i}, {vL16}'); em(f'v_add_u32 {v(BB+i)}, {sT2}, {t0}')
            em(f'v_lshrrev_b32 {t0}, 3, {vLane}'); em(f'v_lshlrev_b32 {v(vKT)}, 2, {t0}')
            em(f's_lshl_b32 {sT2}, {sW}, 3'); em(f'v_add_u32 {t0}, {sT2}, {t0}')
            em(f'v_and_b32 {t1}, 7, {vLane}')
            em(f'v_lshlrev_b32 {v(vOut)}, 10, {t0}'); em(f'v_lshl_add_u32 {v(vOut)}, {t1}, 4, {v(vOut)}')
            em(f'v_and_b32 {t2}, 3, {vLane}'); em(f'v_lshlrev_b32 {t2}, 2, {t2}'); em(f'v_xor_b32 {t2}, {t2}, {t0}'); em(f'v_lshlrev_b32 {t2}, 4, {t2}')
            em(f'v_lshl_add_u32 {v(vRedR)}, {t1}, 10, {t2}'); em(f'v_add_u32 {v(vRedR)}, {self.S:#x}, {v(vRedR)}')

    def unpack_items(self, half, U):
        it = [f'v_accvgpr_read_b32 {v(U+2*r+1)}, {a(RES+4*half+r)}' for r in range(4)]
        for r in range(4):
            it += [f'v_lshlrev_b32 {v(U+2*r)}, 16, {v(U+2*r+1)}', f'v_and_b32 {v(U+2*r+1)}, 0xffff0000, {v(U+2*r+1)}']
        return it
    def reduce_items(self, half, acc0, acc1, R, U, rs, sti, final, pk, unpack):
        em = self.em
        it = []
        for c in range(8):
            src = v((acc0 if c < 4 else acc1) + 4 * (c & 3), 4)
            ad = v(BB + (c & 3)) if final else v(vRedW)
            it.append(f'ds_write_b128 {ad}, {src} offset:{c*1024}')
        it.append(self.barrier)
        o2 = 512 if final else 1024
        for w in range(4):
            it.append(f'ds_read_b128 {v(R+8*w,4)}, {v(vRedR)} offset:{w*8192}'); it.append(f'ds_read_b128 {v(R+8*w+4,4)}, {v(vRedR)} offset:{w*8192+o2}')
        if unpack: it += self.unpack_items(half, U)
        def add(d, s):
            if pk: return [f'v_pk_add_f32 {v(d+r,2)}, {v(d+r,2)}, {v(s+r,2)}' for r in range(0, 8, 2)]
            return [f'v_add_f32 {v(d+r)}, {v(d+r)}, {v(s+r)}' for r in range(8)]
        if rs is None: it += add(R, U)
        it += add(R, R + 8) + add(R + 16, R + 24) + add(R, R + 16)
        if rs is not None: it += [f'v_fma_f32 {v(R+r)}, {v(R+r)}, {rs}, {v(U+r)}' for r in range(8)]
        P = R + 8
        for r in range(4): it.append(f'v_cvt_pk_bf16_f32 {v(P+r)}, {v(R+2*r)}, {v(R+2*r+1)}')
        if final:
            def st():
                em(f's_add_u32 {sT}, {sOutRow}, {half*32768}')
                em(f'buffer_store_dwordx4 {v(P,4)}, {v(vOut)}, {SOUT}, {sT} offen' + self.o.outsc, tag='st')
            it.append(st)
            return it
        it.append(lambda: self.wsstore(v(P, 4), v(vOut), sXst, half * 32768))
        S, Q, T = R + 16, R + 18, v(R + 20)
        if pk:
            it += [f'v_pk_add_f32 {v(S,2)}, {v(R,2)}, {v(R+2,2)}', f'v_pk_mul_f32 {v(Q,2)}, {v(R,2)}, {v(R,2)}']
            it += [f'v_pk_fma_f32 {v(Q,2)}, {v(R+2,2)}, {v(R+2,2)}, {v(Q,2)}']
            for r in (4, 6): it += [f'v_pk_add_f32 {v(S,2)}, {v(S,2)}, {v(R+r,2)}', f'v_pk_fma_f32 {v(Q,2)}, {v(R+r,2)}, {v(R+r,2)}, {v(Q,2)}']
            it += [f'v_add_f32 {v(S)}, {v(S)}, {v(S+1)}', f'v_add_f32 {v(Q)}, {v(Q)}, {v(Q+1)}']
        else:
            it += [f'v_add_f32 {v(S)}, {v(R)}, {v(R+1)}', f'v_mul_f32 {v(Q)}, {v(R)}, {v(R)}', f'v_fmac_f32 {v(Q)}, {v(R+1)}, {v(R+1)}']
            for r in range(2, 8): it += [f'v_add_f32 {v(S)}, {v(S)}, {v(R+r)}', f'v_fmac_f32 {v(Q)}, {v(R+r)}, {v(R+r)}']
        S, Q = v(S), v(Q)
        it += [f'v_accvgpr_write_b32 {a(RES+4*half)}, {v(P)}', f'v_accvgpr_write_b32 {a(RES+4*half+1)}, {v(P+1)}',
               f'v_add_f32_dpp {S}, {S}, {S} row_ror:8 {DPPM}', f'v_add_f32_dpp {Q}, {Q}, {Q} row_ror:8 {DPPM}',
               f'v_accvgpr_write_b32 {a(RES+4*half+2)}, {v(P+2)}', f'v_accvgpr_write_b32 {a(RES+4*half+3)}, {v(P+3)}',
               f'v_permlane16_swap_b32 {S}, {Q}', f'v_add_f32 {S}, {S}, {Q}', f'v_mov_b32 {T}, {S}', f'v_permlane32_swap_b32 {S}, {T}', f'v_add_f32 {S}, {S}, {T}']
        def st2():
            em(f's_mov_b64 {sEx}, exec'); em(f's_mov_b64 exec, {sMaskSt}')
            self.wsstore(S, v(vStSt), sStst, sti * 16 * 8192 + half * 2048, width=1)
            em(f's_mov_b64 exec, {sEx}')
        it.append(st2)
        return it

    def p2(self, l):
        em = self.em; o = self.o
        KT, QF = AF, AF + 32
        accs = [[ACC, ACC + 16], [ACC + 32, 232]]
        DB = [MR, MR + 16, BB]
        OB = [AUX, CB]; RC = [v(TMP), v(TMP + 1)]
        def rot2(i, stride, base):
            em(f's_add_u32 {sR}, {sRot2}, {i}'); em(f's_and_b32 {sR}, {sR}, 7'); em(f's_mul_i32 {sR}, {sR}, {stride}')
            if base: em(f's_add_u32 {sR}, {sR}, {base}')
        def ldk(i): rot2(i, 2176, None); self.wsload(v(KT + 4 * i, 4), v(vKT), sR, WS_KT + l * 0x8000, tag='K')
        def ldq(n): rot2(n % 8, 4096, sQR); self.wsload(v(QF + 4 * n, 4), vAW, sR, (n // 8) * 32768, tag='A')
        for i in range(8): ldk(i)
        lds = [lambda n=n: ldq(n) for n in range(16)]
        for f in lds[:o.pre2]: f()
        lds = lds[o.pre2:]
        L = em.newlabel('Lk'); D = em.newlabel('Lkd'); ck = v(TMP + 2)
        em.label(L)
        em(f'v_max_u32 {ck}, {v(KT)}, {v(KT+1)}')
        for i in range(1, 16): em(f'v_max3_u32 {ck}, {v(KT+2*i)}, {v(KT+2*i+1)}, {ck}')
        em(f'v_cmp_eq_u32 vcc, -1, {ck}')
        em(f's_cbranch_vccz {D}')
        em.cond_begin()
        for i in range(8): ldk(i)
        em.force_wait(vm=0)
        em.cond_end()
        self.spin_tail(L)
        em.label(D)
        self.ts('kt')
        side = Side(em)
        def attn(n): em(f'{MF} {v(DB[n%3],16)}, {v(KT+4*(n%8),4)}, {v(QF+4*n,4)}, 0')
        def post(n):
            D = DB[n % 3]; O = OB[n % 2]; rc = v(D + 8)
            it = [f'v_add_f32 {rc}, {s1em6}, {v(D+8)}', f'v_rcp_f32 {rc}, {rc}']
            if o.pk2: it += [f'v_pk_mul_f32 {v(D+r,2)}, {v(D+r,2)}, {v(D+8,2)} op_sel_hi:[1,0]' for r in range(0, 8, 2)]
            else: it += [f'v_mul_f32 {v(D+r)}, {v(D+r)}, {rc}' for r in range(8)]
            it += [f'v_cvt_pk_bf16_f32 {v(O+r)}, {v(D+2*r)}, {v(D+2*r+1)}' for r in range(4)]
            return it
        attn(0); attn(1)
        if lds: lds.pop(0)()
        self.emit(post(0))
        for n in range(16):
            h, i = divmod(n, 8)
            nxt = post(n + 1) if n + 1 < 16 else []
            k1, k2 = (4, 7) if o.pk2 else (4, 9)
            O = v(OB[n % 2], 4)
            if n + 2 < 16: attn(n + 2)
            if nxt: em(nxt[0]); em(nxt[1])
            if lds: lds.pop(0)()
            else: side.clk(o.gap2)
            for t in nxt[2:k1]: em(t)
            for nt in range(2):
                c = v(accs[h][nt], 16)
                em(f'{MF} {c}, {a(WOA + i*8 + nt*4, 4)}, {O}, ' + ('0' if i == 0 else c))
                for t in (nxt[k1:k2] if nt == 0 else nxt[k2:]): em(t)
                if not lds: side.clk(o.gap2)
            if o.ts2 and n in (3, 7, 11): self.ts(f'p2i{n}')
            if n == 0: self.p2_bg(l, side)
            if n == 8:
                pre = (self.b1[1] + [self.barrier]) if l == 0 else []
                side.q = pre + self.reduce_items(0, accs[0][0], accs[0][1], QF, ACC, None, 0, False, True, True) + self.unpack_items(1, ACC + 16) + [self.barrier] + side.q
        self.ts('p2mf')
        side.flush()
        self.ts('p2main')
        self.emit(self.reduce_items(1, accs[1][0], accs[1][1], QF + 32, ACC + 16, None, 0, False, True, False))
        self.p2_tail(l)

    def p2_bg(self, l, side):
        em = self.em
        if l == 0:
            def cs():
                em(f'v_and_b32 {v(255)}, 31, {vLane}'); em(f'v_lshlrev_b32 {v(255)}, 2, {v(255)}'); em(f's_mul_i32 {sT2}, {sJ}, 384')
                for p in range(3): self.wsload(CS[p], v(255), sT2, WS_CS, width=1, off=p * 128, tag='cs')
            side.add(cs)
            if not self.o.b1gap: side.add(*self.b1[0])
            side.add(lambda: self.touch_h(v(TMP + 2), v(TMP + 3)))
        for m in self.w1_todo: side.add(lambda m=m: (self.w1dma(0, m, 'w1a'), self.w1dma(1, m, 'w1a')))
        if l == 1:
            for m in range(8): side.add(lambda m=m: self.w1dma(2, m, 'w1a'))

    def p2_tail(self, l):
        em = self.em; o = self.o
        if l == 0:
            def pre():
                L = em.newlabel('Lcs'); D = em.newlabel('Lcs')
                em.label(L)
                em(f'v_max3_u32 {v(MR+1)}, {CS[0]}, {CS[1]}, {CS[2]}'); em(f'v_cmp_eq_u32 vcc, -1, {v(MR+1)}')
                em(f's_cbranch_vccz {D}')
                em.cond_begin()
                em(f's_mul_i32 {sT2}, {sJ}, 384')
                for p in range(3): self.wsload(CS[p], v(255), sT2, WS_CS, width=1, off=p * 128)
                em.force_wait(vm=0)
                em.cond_end()
                self.spin_tail(L)
                em.label(D)
            def mid():
                def solo(w):
                    vo = v(TMP + 2)
                    em(f'v_subrev_u32 {vo}, {w*16*2752}, {vD1}')
                    for m, s in [(m, s) for m in range(8) for s in range(4)][w - 1::3]:
                        self.rot(m, 64 * 2752, sW1c2)
                        self.dma(SW1, vo, sR, s * 16 * 2752, self.w1pl[2][m], 'solo', slot=s)
                for w in (1, 2, 3): self.only_wave(w, lambda w=w: solo(w))
            self.group_sync(1, pre=pre, mid=mid, tags=('st', 'w1a'))
        else:
            self.group_sync(5, mid=lambda: self.res_convert(to_m1=False), tags=('st', 'w1a'))

    def p3(self, l):
        em = self.em; o = self.o
        ld = self.a_loader(o.pre, 0)
        side = Side(em)
        side.add(*self.stats_T_items(False))
        def ld2(i):
            ld(i)
            if l == 0 and i == 20:
                side.add(self.barrier)
            if l == 0 and i == 32 - o.pre:
                self.b2 = self.w2_batch(list(range(16, 24))[:2 * o.w2b2], 'w2b')
                side.add(*self.b2[0])
        self.pass2(range(32), self.w1pl[:2], [ACC, ACC + 16], False, side, lambda i: (2 if i < 32 - o.pre else 1) if i >= 10 else 0, loader=ld2)
        side.flush()
        self.emit(self.corr_items(0, ACC, False)); self.emit(self.corr_items(1, ACC + 16, False))
        if l == 0: self.barrier()
        self.ts('p3a')
        def epi(p):
            A = ACC + 16 * p
            it = [f'v_cvt_pk_bf16_f32 {v(A+r)}, {v(A+2*r)}, {v(A+2*r+1)}' for r in range(8)]
            it += [f'v_pk_max_i16 {v(A+r)}, {v(A+r)}, 0' for r in range(8)]
            return it
        def st(p):
            A = ACC + 16 * p
            self.wsstore(v(A, 4), vL16, sHks, p * 2048); self.wsstore(v(A + 4, 4), vL16, sHks, p * 2048, off=1024)
        side.q = epi(0) + [lambda: st(0)] + epi(1) + [lambda: st(1)] + side.q
        self.p3_bg(l, side)
        self.pass1(self.w1pl[2], ACC + 32, side, lambda ks: o.fill_p3 if ks >= 2 else 0)
        self.emit(self.corr_items(2, ACC + 32, False))
        side.flush()
        self.ts('p3b')
        self.emit(epi(2))
        L = em.newlabel('Lh3')
        em(f's_cmp_ge_u32 {sJ}, 11'); em(f's_cbranch_scc1 {L}')
        em.cond_begin(); st(2); em.cond_end()
        em.label(L)
        self.p3_tail(l)

    def p3_bg(self, l, side):
        if l == 0:
            o = self.o
            self.b3 = self.w2_batch(list(range(24, 32))[:2 * o.w2b3], 'w2c')
            side.add(*self.b3[0])
            side.add(*self.b2[1]); side.add(lambda: self.em.wait_lg(0))
            self.b3b = self.w2_batch(list(range(16, 24))[:2 * o.w2b3b], 'w2e')
            side.add(*self.b3b[0])
    def p3_tail(self, l):
        em = self.em
        if l == 0:
            def mid():
                self.b4 = self.w2_batch(list(range(32, 40)) + list(range(24, 32)) + list(range(16, 24)), 'w2d')
                self.emit(self.b4[0][:4])
                self.emit(self.b3[1]); self.emit(self.b3b[1])
                if len(self.b4[0]) > 4: em.wait_lg(0); self.emit(self.b4[0][4:])
                assert self.w2next == 22
            self.group_sync(2, pre=self.setup_local, mid=mid, tags=None)
        else:
            self.group_sync(6, pre=lambda: self.setup_local(final=True), tags=None)

    def p4(self, l):
        em = self.em; o = self.o
        final = l == 1
        accs = [[ACC, ACC + 16], [ACC + 32, 232]]
        NR = 24
        def ld(n):
            h, m = divmod(n, 22)
            dst = v(AF + 4 * (n % NR), 4)
            if o.rot2: self.rot4(m); em(f's_min_u32 {sR}, {sR}, {sLim4}'); em(f's_add_u32 {sR}, {sR}, {sHR}')
            elif m == 21: em(f's_add_u32 {sR}, {sLim4}, {sHR}')
            else: em(f's_add_u32 {sR}, {sHR}, {m*4096}')
            em(f'buffer_load_dwordx4 {dst}, {vAWh if h else vAW}, {SWS}, {sR} offen sc1', tag='A')
        vAWh = v(254)
        em(f'v_add_u32 {vAWh}, {H_T}, {vAW}')
        for n in range(o.pre4): ld(n)
        self.wsload(v(AUX, 4), v(vStM), sStR, 0, tag='stat')
        side = Side(em)
        S, Q, M = v(AUX), v(AUX + 1), v(AUX + 2); RS = [v(TMP), v(TMP + 1)]
        side.add(f'v_add_f32 {S}, {S}, {v(AUX+1)}', f'v_add_f32 {v(AUX+2)}, {v(AUX+2)}, {v(AUX+3)}', f'v_add_f32 {S}, {S}, {v(AUX+2)}',
                 f'v_add_f32_dpp {S}, {S}, {S} row_ror:8 {DPPM}', f'v_mov_b32 {Q}, {S}', f'v_permlane16_swap_b32 {S}, {Q}',
                 f'v_mul_f32 {S}, {sInv}, {S}', f'v_mul_f32 {Q}, {sInv}, {Q}', f'v_fma_f32 {Q}, -{S}, {S}, {Q}', f'v_max_f32 {Q}, 0, {Q}',
                 f'v_add_f32 {Q}, {sEps}, {Q}', f'v_rsq_f32 {RS[0]}, {Q}', f'v_mov_b32 {RS[1]}, {RS[0]}', f'v_permlane32_swap_b32 {RS[0]}, {RS[1]}')
        b4 = list(self.b4[1]) if l == 0 else []
        first4 = 22 - (len(b4) - 1) // 2 if b4 else 99
        if l == 0: side.add(self.barrier)
        if final: side.add(f'ds_bpermute_b32 {RS[0]}, {v(vKT)}, {RS[0]}', f'ds_bpermute_b32 {RS[1]}, {v(vKT)}, {RS[1]}')
        def mf(n, nt):
            h, m = divmod(n, 22)
            c = v(accs[h][nt], 16)
            em(f'{MF} {c}, {a(W2A + m*8 + nt*4, 4)}, {v(AF + 4 * (n % NR), 4)}, ' + ('0' if m == 0 else c))
        T4 = o.tail4
        for n in range(44 - T4):
            assert n < first4 or not b4
            for nt in range(2):
                mf(n, nt)
                if b4 and n >= o.b4start: self.emit([b4.pop(0)])
                if nt == 0 and n + o.pre4 < 44:
                    ld(n + o.pre4)
                    if n >= 10 and not b4: side.clk(4)
                elif n >= 10 and not b4: side.clk(o.gap4)
            if n == 22:
                side.add(*self.reduce_items(0, accs[0][0], accs[0][1], MR, ACC, RS[0], 1, final, bool(o.pk4), True))
                side.add(*self.unpack_items(1, ACC + 16)); side.add(self.barrier)
            if n == 43 - o.pre4: self.p4_bg(l, side)
            if o.ts2 and n in (0, 10, 21, 32): self.ts(f'p4s{n}')
        for n in range(44 - T4, 44): mf(n, 0); side.clk(o.gap4)
        side.flush()
        tail = self.reduce_items(1, accs[1][0], accs[1][1], MR, ACC + 16, RS[1], 1, final, True, False)
        for k, n in enumerate(range(44 - T4, 44)):
            mf(n, 1)
            if k >= 1: em(tail.pop(0))
        self.ts('p4main')
        self.emit(tail)
        if not final: self.group_sync(3)

    def p4_bg(self, l, side): pass

    def p5_start(self):
        em = self.em; o = self.o
        self.S = 0
        ld0 = self.a_loader(o.pre, 1)
        def ld(i):
            ld0(i)
            if i + o.pre >= 32 and i + o.pre < 40:
                m = i + o.pre - 32
                self.qkv_dma('q', m, 'q')
        side = Side(em)
        side.add(*self.stats_T_items(True))
        side.add(f'{MF} {v(MR,16)}, {v(AUX,4)}, {v(CB+2,4)}, 0')
        self.pass2(range(32), [self.pl['k'], self.pl['v']], [ACC, ACC + 16], True, side, lambda i: 2 if i >= 10 else 0, loader=ld)
        side.flush()
        self.emit(self.corr_items('k', ACC, True)); self.emit(self.corr_items('v', ACC + 16, True))
        self.ts('p5a')

    def finish(self):
        em = self.em
        L = em.newlabel('Le')
        em(f's_or_b32 {sT}, s2, {sW}'); em(f's_cmp_lg_u32 {sT}, 0'); em(f's_cbranch_scc1 {L}')
        em.cond_begin()
        em('s_mov_b64 exec, 1'); em(f'v_mov_b32 v24, {sNonce}'); em(f'buffer_store_dword v24, off, {SWS}, 0 sc1'); em('s_mov_b64 exec, -1')
        em.cond_end()
        em.label(L)
        if self.o.pad:
            L = em.newlabel('Lpad')
            em.label(L)
            em('s_memrealtime s[0:1]'); em.force_wait(lg=0); em('s_sub_u32 s0, s0, s3'); em(f's_cmp_lt_u32 s0, {self.o.pad}'); em(f's_cbranch_scc1 {L}')
        if self.o.ts:
            self.ts('end')
            em('s_memrealtime s[86:87]'); em.force_wait(lg=0); em('v_writelane_b32 v39, s86, 63')
            em(f's_lshl_b32 {sT}, s2, 2'); em(f's_add_u32 {sT}, {sT}, {sW}'); em(f's_lshl_b32 {sT}, {sT}, 8'); em(f's_add_u32 {sT}, {sT}, {WS_DBG}')
            em(f'v_lshlrev_b32 v24, 2, {vLane}')
            em(f'buffer_store_dword v39, v24, {SWS}, {sT} offen')
            if self.o.dbg:
                L = em.newlabel('Ld')
                em(f's_or_b32 {sT}, s2, {sW}'); em(f's_cmp_lg_u32 {sT}, 0'); em(f's_cbranch_scc1 {L}')
                em('s_memrealtime s[0:1]'); em.force_wait(lg=0); em('s_sub_u32 s0, s0, s3')
                em('v_readlane_b32 s1, v39, 0'); em('s_nop 3'); em('v_subrev_u32 v39, s1, v39'); em('v_writelane_b32 v39, s0, 0')
                em('v_mul_u32_u24 v25, 3, v0'); em('v_lshlrev_b32 v25, 2, v25'); em('ds_bpermute_b32 v26, v25, v39'); em.force_wait(lg=0)
                em('s_mov_b64 exec, 0xffff')
                em('global_store_dword v24, v26, s[100:101]')
                em.label(L)
        em('s_endpgm')

    def body(self, sc):
        self.sc = sc; self.swin = None; self.lin = True; self.S = S_ADDR
        seq = [lambda: self.p1_rest(0), lambda: self.p2(0), lambda: self.p3(0), lambda: self.p4(0),
               lambda: (self.p5_start(), self.p1_rest(1)), lambda: self.p2(1), lambda: self.p3(1), lambda: self.p4(1)]
        for i, f in enumerate(seq):
            self.em.comment(f'---------------- phase {i+1} ({"slow" if sc else "fast"}) ----------------')
            f()
            if self.o.stop == i + 1: break
        self.finish()

    def build(self):
        em = self.em
        self.sc = ''
        self.prologue()
        self.p1_start()
        if self.o.force_slow: em('s_branch L_slow_tramp')
        em('s_cbranch_vccz L_fast')
        em.label('L_slow_tramp')
        em('s_getpc_b64 s[36:37]'); em.label('L_pc0')
        em('s_add_u32 s36, s36, L_slow-L_pc0'); em('s_addc_u32 s37, s37, 0'); em('s_setpc_b64 s[36:37]')
        em.label('L_end'); em('s_endpgm')
        em.label('L_fast')
        snap = (list(em.vmq), list(em.lgq), self.nts, list(em.hist))
        self.body('')
        em.label('L_slow')
        em.vmq, em.lgq, self.nts, em.hist = list(snap[0]), list(snap[1]), snap[2], list(snap[3])
        self.body(' sc1')
        hdr = open('cdna_kernels/' + NAME + '.s.ref').read().split('; Override launch')[0]
        s = hdr + '; @launch grid=(256,1,1) block=(256,1,1) lds=163840\n'
        s += '.amdgcn_target "amdgcn-amd-amdhsa--gfx950"\n.text\n'
        s += f'.globl {NAME}_kernel\n.p2align 8\n.type {NAME}_kernel,@function\n{NAME}_kernel:\n'
        s += em.text()
        s += f""".section .rodata,"a"
.p2align 6
.amdhsa_kernel {NAME}_kernel
  .amdhsa_next_free_vgpr 512
  .amdhsa_next_free_sgpr 102
  .amdhsa_accum_offset 256
  .amdhsa_group_segment_fixed_size 0
  .amdhsa_kernarg_size 72
  .amdhsa_user_sgpr_count 2
  .amdhsa_user_sgpr_kernarg_segment_ptr 1
  .amdhsa_system_sgpr_workgroup_id_x 1
  .amdhsa_float_denorm_mode_32 3
.end_amdhsa_kernel
"""
        return s

def main():
    ap = argparse.ArgumentParser()
    ap.add_argument('-o', default='k.s')
    ap.add_argument('--ts', action='store_true')
    ap.add_argument('--dbg', action='store_true')
    ap.add_argument('--pad', type=int, default=0)
    ap.add_argument('--ts2', action='store_true')
    ap.add_argument('--sync', default='A')
    ap.add_argument('--pk2', type=int, default=0)
    ap.add_argument('--tlb', type=int, default=1)
    ap.add_argument('--par', type=int, default=1)
    ap.add_argument('--pk4', type=int, default=0)
    ap.add_argument('--stop', type=int, default=0)
    ap.add_argument('--spin', type=int, default=200000)
    ap.add_argument('--pre', type=int, default=10)
    ap.add_argument('--pre4', type=int, default=10)
    ap.add_argument('--pre2', type=int, default=16)
    ap.add_argument('--gap2', type=int, default=20)
    ap.add_argument('--gap4', type=int, default=24)
    ap.add_argument('--tail4', type=int, default=4)
    ap.add_argument('--rot2', type=int, default=1)
    ap.add_argument('--prewrite', type=int, default=1)
    ap.add_argument('--tw', type=int, default=0)
    ap.add_argument('--gstep', type=int, default=22)
    ap.add_argument('--thr', type=int, default=6)
    ap.add_argument('--w1_solo', type=int, default=2)
    ap.add_argument('--fill_p1', type=int, default=2)
    ap.add_argument('--fill_p2', type=int, default=3)
    ap.add_argument('--fill_p3', type=int, default=3)
    ap.add_argument('--fill_p4', type=int, default=3)
    ap.add_argument('--w1_early', type=int, default=4)
    ap.add_argument('--b4start', type=int, default=2)
    ap.add_argument('--w2b1', type=int, default=4)
    ap.add_argument('--w2b2', type=int, default=4)
    ap.add_argument('--w2b3', type=int, default=4)
    ap.add_argument('--w2b3b', type=int, default=4)
    ap.add_argument('--w1_gap', type=int, default=4)
    ap.add_argument('--b1gap', type=int, default=1)
    ap.add_argument('--bgpad', type=int, default=3)
    ap.add_argument('--p2early', type=int, default=0)
    ap.add_argument('--rot', type=int, default=1)
    ap.add_argument('--kv_early', type=int, default=4)
    ap.add_argument('--nt_stage', action='store_true')
    ap.add_argument('--nt_w1', action='store_true')
    ap.add_argument('--codepf', type=int, default=1)
    ap.add_argument('--outsc', default='')
    ap.add_argument('--force_slow', action='store_true')
    o = ap.parse_args()
    if o.outsc: o.outsc = ' ' + o.outsc
    g = Gen(o)
    s = g.build()
    open(o.o, 'w').write(s)
    if o.ts:
        import json; json.dump(g.tsnames, open(o.o + '.ts.json', 'w'))
    print(f'wrote {o.o}: {g.em.ninstr} instrs, {g.em.nops} nop states, {len(s)} bytes')
if __name__ == '__main__': main()
```

```python
import sys, struct, argparse
from emit import Em

NAME = "interleave_layers__linear_attn_block__dense_activation_relu__prompt"
def f2u(x): return struct.unpack('<I', struct.pack('<f', x))[0]

WS_EPOCH = 0
WS_HELLO = 1024
WS_FLAG = 4096
WS_MSG = 0x10000
WS_KT = 0x150000
WS_CS = 0x160000
WS_ST = 0x170000
WS_X = 0x200000
X2OFF = 0
WS_Q = 0x400000
WS_H = 0x600000
WS_DBG = 0x2000000
WS_SIZE = 0x4000000
MSG_B = 2560; KT_B = 17408; ACT_B = 131072; H_T = 86 * 1024; H_B = 4 * H_T
NONCE_K = 0x9E3779B1

sW, sG, sJ, sNonce = 's4', 's5', 's6', 's7'
SX, SQKV, SWO, SW1, SW2, SOUT, SWS = 's[8:11]', 's[12:15]', 's[16:19]', 's[20:23]', 's[24:27]', 's[28:31]', 's[32:35]'
sT, sT2, sWl, sSpin = 's52', 's53', 's54', 's55'
sGX, sGH, sG8K, sGKT, sG128 = 's56', 's57', 's58', 's59', 's60'
sQcol, sW1c0, sW1c2, sHks = 's61', 's62', 's63', 's64'
sC128, sHR, sStR = 's66', 's68', 's69'
sQR, sInv, sEps, s1em6, sLog2e = 's71', 's74', 's75', 's76', 's73'
sXrow, sJmsg, sMaskInv, sOutRow, sHello = 's77', 's78', 's85', 's80', 's81'
sEx = 's[82:83]'; sFx = 's84'
sTS = 86
sDelta, sDelta2 = 's88', 's[88:89]'
sLn2, sLn22 = 's90', 's[90:91]'
sXst, sStst, sQst = 's67', 's79', 's94'
sStM, sGXw = 's72', 's56'
sRot, sR, sFlag, sG256 = 's95', 's96', 's97', 's98'
sRot2, sLim4 = 's59', 's70'
sRed, sLine, sKTo, sFac = 's49', 's50', 's51', 's3'
sX0, sX1 = 's[100:101]', 's[0:1]'
sCsp = 's65'
sXm = [f's{36+i}' for i in range(8)]
sXl = ['s8', 's9', 's10', 's11', 's57', 's77', 's81', 's99']
sTab = ['s44', 's45', 's46', 's47']
sLo = 's[92:93]'
sTx, sTxn, sTh, sThn = 0, 1, 0, 1
sM0, sM1, sM3, sM4 = 's[36:37]', 's[38:39]', 's[40:41]', 's[44:45]'

vLane, vL16, vAX, vP = 'v0', 'v1', 'v2', 'v3'
vRR, vRW = 'v15', 'v18'
vTr = ['v4', 'v5', 'v6']
vDq, vD1, vDs, vS0, vS1, vS0w, vS1w = 'v7', 'v8', 'v9', 'v10', 'v11', 'v12', 'v14'
vStT, vPoll, vRl, vHi, vTid = 'v13', 'v15', 'v16', 'v17', 'v18'
CS = {'q': 'v19', 'k': 'v20', 'v': 'v21', 0: 'v22', 1: 'v23', 2: 'v34'}
AUX = 24
CB = 28
TMP = 35
BB = 40
MR = 56
ACC = 88
AF = 136
def v(i, n=1): return f'v{i}' if n == 1 else f'v[{i}:{i+n-1}]'
def a(i, n=1): return f'a{i}' if n == 1 else f'a[{i}:{i+n-1}]'
def Afrag(ks): return v(AF + 4 * ks, 4) if ks < 30 else a(248 + 4 * (ks - 30), 4)
RES = 240
W2A = 0; WOA = 176
vKT = 253
FW, FR, FO, FS, FB = 7, 11, 12, 14, 19
MF = 'v_mfma_f32_32x32x16_bf16'
DPPM = 'row_mask:0xf bank_mask:0xf'

QS = 32
S_ADDR = QS * 4096

def _ord4(c):
    pl = lambda nt: nt % 3 if nt < 33 else (nt - 33) % 2
    ms = sorted(range(21), key=lambda m: pl(2 * m + c))
    return ms + [21]
ORD4 = [_ord4(0), _ord4(1)]
XORD = [4 * m + k for m in range(8) for k in (0, 1)] + [4 * m + k for m in range(8) for k in (2, 3)]

class Side:
    def __init__(self, em): self.q = []; self.em = em
    def add(self, *items): self.q.extend(items)
    def run(self, k):
        while k > 0 and self.q:
            it = self.q.pop(0)
            if callable(it): it()
            else: self.em(it)
            k -= 1
    def flush(self): self.run(1 << 30); self.credit = 0
    credit = 0
    def clk(self, budget):
        self.credit = min(self.credit + budget, budget)
        while self.q and self.credit > 0:
            it = self.q.pop(0)
            if callable(it):
                it(); self.credit -= getattr(it, 'cost', 24)
            else:
                self.em(it)
                self.credit -= 56 if it.startswith('ds_write_b128') else 8 if it.startswith(('v_exp', 'v_rcp', 'v_rsq', 'v_mfma')) else 4

class Gen:
    def __init__(self, opt):
        self.o = opt; self.em = Em(); self.nts = 0; self.ncnt = 0; self.swin = None; self.lin = False
    def emit(self, items):
        for t in items: t() if callable(t) else self.em(t)

    def ts(self, name):
        if not self.o.ts: return
        em = self.em
        i = self.nts; self.nts += 1
        assert i < 50
        em.force_wait(lg=0)
        em(f's_memtime s[{sTS}:{sTS+1}]'); em.force_wait(lg=0)
        em(f'v_writelane_b32 v39, s{sTS}, {i}')
        self.tsnames[i] = name
        if name in ('kt', 'p3a', 'p4loop', 'p5a'):
            if name == 'kt' and self.ncnt == 0: em('s_mov_b32 s60, 0')
            em(f'v_writelane_b32 v39, s60, {50 + self.ncnt}'); self.ncnt += 1
    def dma(self, srd, voff, sbase, imm, quad, tag, nt=False, slot=None):
        em = self.em
        if slot is None: em(f's_add_u32 m0, {sWl}, {quad*4096}')
        else: em(f's_mov_b32 m0, {quad*4096 + slot*1024}')
        em(f's_add_u32 {sT}, {sbase}, {imm}')
        em(f'buffer_load_dwordx4 {voff}, {srd}, {sT} offen' + (' nt' if nt else '') + ' lds', tag=tag)
    def tr(self, dst, quad, slot, base=None):
        addr = quad * 4096 + slot * 1024
        b = (base or vTr)[addr >> 16]; off = addr & 0xFFFF
        return [f'ds_read_b64_tr_b16 {v(dst,2)}, {b} offset:{off}', f'ds_read_b64_tr_b16 {v(dst+2,2)}, {b} offset:{off+(256 if self.lin else 512)}']
    def wsload(self, dst, voff, sbase, imm, width=4, tag=None, off=0):
        em = self.em
        em(f's_add_u32 {sT}, {sbase}, {imm}')
        sfx = {1: 'dword', 2: 'dwordx2', 4: 'dwordx4'}[width]
        em(f'buffer_load_{sfx} {dst}, {voff}, {SWS}, {sT} offen' + (f' offset:{off}' if off else '') + ' sc1', tag=tag)
    def wsstore(self, src, voff, sbase, imm, width=4, tag='st', off=0, sc=None):
        em = self.em
        em(f's_add_u32 {sT}, {sbase}, {imm}')
        sfx = {1: 'dword', 2: 'dwordx2', 4: 'dwordx4'}[width]
        sc = self.sc if sc is None else sc
        em(f'buffer_store_{sfx} {src}, {voff}, {SWS}, {sT} offen' + (f' offset:{off}' if off else '') + sc, tag=tag)
    def barrier(self):
        self.em.wait_lg(0); self.em('s_barrier')
    def only_wave(self, w, f, invert=False):
        em = self.em
        L = em.newlabel('Lw')
        em(f's_cmp_{"eq" if invert else "lg"}_u32 {sW}, {w}'); em(f's_cbranch_scc1 {L}')
        em.cond_begin(); f(); em.cond_end()
        em.label(L)
    def spin_tail(self, L):
        em = self.em
        em(f's_sub_u32 {sSpin}, {sSpin}, 1'); em(f's_cbranch_scc0 {L}'); em(f's_mov_b32 {sSpin}, 0')
    def group_sync(self, p, pre=None, mid=None, tags=('st',), bar=True, skipif=None):
        em = self.em
        vt = v(TMP)
        mode = 'B' if skipif else self.o.sync
        if pre: pre()
        def drain():
            if tags is None: em.force_wait(vm=0)
            else: em.wait_vm_tag(tags)
            self.ts(f'drain{p}')
        def sig(wait=True):
            em(f'v_mov_b32 {vt}, {sNonce}')
            em(f's_add_u32 {sT2}, {sFlag}, {p*4096}')
            if wait: drain()
            em(f's_mov_b64 {sEx}, exec'); em('s_mov_b64 exec, 1')
            em(f'buffer_store_dword {vt}, off, {SWS}, {sT2}' + self.sc, tag='flag')
            em(f's_mov_b64 exec, {sEx}')
        def poll():
            L = em.newlabel('Lpoll'); D = em.newlabel('Lpd')
            em(f's_add_u32 {sT2}, {sG256}, {WS_FLAG + p*4096}')
            if mode == 'B': em(f'v_lshlrev_b32 {v(TMP+1)}, 2, {vLane}')
            else: em(f'v_lshlrev_b32 {v(TMP+1)}, 2, {vPoll}')
            em.label(L)
            em(f'buffer_load_dword {vt}, {v(TMP+1)}, {SWS}, {sT2} offen sc1')
            em.force_wait(vm=0)
            em(f'v_cmp_ne_u32 vcc, {sNonce}, {vt}')
            em(f's_cbranch_vccz {D}')
            self.spin_tail(L)
            em.label(D)
        if mode == 'B':
            if skipif:
                L = em.newlabel('Lsk')
                em(f's_cmp_eq_u32 {skipif}, 0'); em(f's_cbranch_scc1 {L}')
                em.cond_begin(); sig(); em.cond_end()
                em.label(L)
            else: sig()
            if mid: mid()
            if bar: self.barrier()
            poll()
        else:
            drain(); self.barrier()
            self.only_wave(0, lambda: sig(False))
            if mid: mid()
            if mode == 'A':
                self.only_wave(0, poll); self.barrier()
            else:
                if bar and mid: self.barrier()
                poll()
        self.ts(f'sync{p}')
    def rot(self, m, stride, base):
        em = self.em
        em(f's_add_u32 {sR}, {sRot}, {m}'); em(f's_and_b32 {sR}, {sR}, 7'); em(f's_mul_i32 {sR}, {sR}, {stride}'); em(f's_add_u32 {sR}, {sR}, {base}')
    def qkv_dma(self, planes, m, tag):
        self.rot(m, 64 * 3072, sQcol)
        for p in planes: self.dma(SQKV, vDq, sR, {'q': 0, 'k': 1024, 'v': 2048}[p], self.pl[p][m], tag)

    def prologue(self):
        em = self.em; o = self.o
        em('s_cmp_ge_u32 s2, 256'); em('s_cbranch_scc1 L_end')
        em('s_load_dwordx4 s[36:39], s[0:1], 0'); em('s_load_dwordx2 s[40:41], s[0:1], 16')
        em('s_load_dwordx4 s[44:47], s[0:1], 32'); em('s_load_dwordx2 s[48:49], s[0:1], 48'); em('s_load_dwordx2 s[50:51], s[0:1], 64')
        if o.ts:
            self.tsnames = {}
            em('v_mov_b32 v39, 0')
        em(f'v_mov_b32 {vTid}, v0')
        em(f'v_lshrrev_b32 v24, 6, v0'); em(f'v_and_b32 {vLane}, 63, v0')
        em(f'v_readfirstlane_b32 {sW}, v24')
        em(f's_and_b32 {sG}, s2, 7'); em(f's_lshl_b32 {sG}, {sG}, 1'); em(f's_lshr_b32 {sT}, s2, 7'); em(f's_add_u32 {sG}, {sG}, {sT}')
        em(f's_lshr_b32 {sJ}, s2, 3'); em(f's_and_b32 {sJ}, {sJ}, 15')
        em(f's_lshl_b32 {sWl}, {sW}, 10')
        em(f's_lshl_b32 {sXrow}, {sG}, 17')
        em(f's_lshl_b32 {sQcol}, {sJ}, 6')
        em(f's_and_b32 {sRot}, {sG}, 1'); em(f's_lshl_b32 {sRot}, {sRot}, 1'); em(f's_and_b32 {sT}, {sJ}, 1'); em(f's_add_u32 {sRot}, {sRot}, {sT}'); em(f's_lshl_b32 {sRot}, {sRot}, 1')
        em(f's_lshr_b32 {sT}, {sJ}, 1'); em(f's_add_u32 {sRot}, {sRot}, {sT}'); em(f's_add_u32 {sRot}, {sRot}, s2')
        if not o.rot: em(f's_mov_b32 {sRot}, 0')
        self.pl = {'k': list(range(0, 8)), 'v': list(range(8, 16)), 'q': list(range(16, 24))}
        em(f'v_lshlrev_b32 {vL16}, 4, {vLane}')
        em(f'v_lshrrev_b32 v27, 3, {vLane}'); em(f'v_and_b32 v28, 7, {vLane}')
        em(f'v_lshrrev_b32 v29, 1, v27'); em('v_xor_b32 v28, v28, v29'); em('v_lshlrev_b32 v28, 4, v28')
        em(f's_lshl_b32 {sT}, {sW}, 5'); em(f'v_add_u32 v27, {sT}, v27'); em('v_lshlrev_b32 v27, 10, v27')
        em('v_add_u32 v25, v27, v28'); em('v_xor_b32 v26, 64, v25')
        em(f'v_lshrrev_b32 v27, 2, {vLane}'); em(f's_lshl_b32 {sT}, {sW}, 4'); em(f'v_add_u32 v27, {sT}, v27')
        em(f'v_and_b32 v28, 3, {vLane}'); em('v_lshlrev_b32 v28, 4, v28')
        em(f'v_mul_u32_u24 {vDq}, 3072, v27'); em(f'v_add_u32 {vDq}, {vDq}, v28')
        em(f'v_mul_u32_u24 {vD1}, 2752, v27'); em(f'v_add_u32 {vD1}, {vD1}, v28')
        em.force_wait(lg=0)
        if o.ts:
            em('s_memrealtime s[86:87]'); em.force_wait(lg=0); em('v_writelane_b32 v39, s86, 62')
        if o.dbg or o.pad:
            em('s_load_dwordx2 s[100:101], s[0:1], 56'); em('s_memrealtime s[0:1]'); em.force_wait(lg=0); em('s_mov_b32 s3, s0')
        self.ts('start')
        def srd(s, lo, nb):
            em(f's_mov_b32 s{s}, s{lo}'); em(f's_mov_b32 s{s+1}, s{lo+1}'); em(f's_mov_b32 s{s+2}, {nb}'); em(f's_mov_b32 s{s+3}, 0x00020000')
        srd(8, 36, 2048 * 1024); srd(32, 50, WS_SIZE); srd(12, 38, 512 * 3072)
        if o.tlb:
            em(f's_lshr_b32 {sT}, s2, 3'); em(f's_lshl_b32 {sT}, {sT}, 2'); em(f's_add_u32 {sT}, {sT}, {sW}'); em(f's_and_b32 {sT}, {sT}, 15')
            em('s_mov_b64 s[86:87], s[50:51]'); em(f's_lshl_b32 {sT2}, {sT}, 21')
            for k, pr in ((8, 's[40:41]'), (9, 's[44:45]'), (10, 's[46:47]'), (11, 's[48:49]'), (12, 's[36:37]'), (13, 's[38:39]')):
                em(f's_cmp_eq_u32 {sT}, {k}'); em(f's_cselect_b64 s[86:87], {pr}, s[86:87]')
            em(f's_cmp_ge_u32 {sT}, 5'); em(f's_cselect_b32 {sT2}, 0, {sT2}')
            em(f's_load_dword s88, s[86:87], {sT2}')
        L0 = em.newlabel('Lo'); L1 = em.newlabel('Lo')
        if o.par:
            em(f's_bitcmp1_b32 {sJ}, 0'); em(f's_cbranch_scc1 {L0}')
            it = self.chunk_items(0)
            snap = list(em.vmq)
            self.emit(it); em(f's_branch {L1}')
            em.label(L0)
            em.vmq = snap
            it = self.chunk_items(0)
            self.emit(it[4:] + it[:4])
            em.label(L1)
        else: self.chunk_dma(0)
        if o.tq:
            em(f'v_lshlrev_b32 v30, 7, {vLane}'); em(f's_lshl_b32 {sT2}, s2, 2'); em(f's_add_u32 {sT2}, {sT2}, {sW}'); em(f's_mul_i32 {sT2}, {sT2}, {12*128}')
            em('s_mov_b64 exec, 0xfff')
            em(f'buffer_load_dword a100, v30, {SQKV}, {sT2} offen', tag='touch')
            em('s_mov_b64 exec, -1')
        em(f'buffer_load_dword v24, off, {SWS}, 0 sc1', tag='epoch')
        self.chunk_dma(1)
        if o.codepf:
            em('s_getpc_b64 s[42:43]'); em.label('L_pcx')
            em(f's_lshr_b32 {sT}, s2, 3'); em(f's_lshl_b32 {sT}, {sT}, 2'); em(f's_add_u32 {sT}, {sT}, {sW}'); em(f's_lshl_b32 {sT}, {sT}, 10')
            em(f's_min_u32 {sT}, {sT}, L_slow-L_pcx-1024')
            em(f'v_add_u32 v30, {sT}, {vL16}')
            em(f'global_load_dwordx4 a[96:99], v30, s[42:43]', tag='codepf')
        srd(16, 40, 512 * 1024); srd(20, 44, 512 * 2752); srd(24, 46, 1376 * 1024); srd(28, 48, 2048 * 1024)
        em(f's_mov_b32 {sSpin}, {o.spin}')
        em(f's_mul_i32 {sGH}, {sG}, {H_B}'); em(f's_add_u32 {sGH}, {sGH}, {WS_H}')
        em(f's_lshl_b32 {sG8K}, {sG}, 13'); em(f's_add_u32 {sG8K}, {sG8K}, {WS_ST}')
        em(f's_lshl_b32 {sG128}, {sG}, 7'); em(f's_lshl_b32 {sG256}, {sG}, 8')
        em(f's_lshl_b32 {sFlag}, {sJ}, 2'); em(f's_add_u32 {sFlag}, {sFlag}, {sW}'); em(f's_lshl_b32 {sFlag}, {sFlag}, 2'); em(f's_add_u32 {sFlag}, {sFlag}, {sG256}'); em(f's_add_u32 {sFlag}, {sFlag}, {WS_FLAG}')
        em(f's_mul_i32 {sT}, {sJ}, 3'); em(f's_lshl_b32 {sT2}, {sJ}, 1'); em(f's_add_u32 {sT2}, {sT2}, 11')
        em(f's_cmp_lt_u32 {sJ}, 11'); em(f's_cselect_b32 {sT}, {sT}, {sT2}');
        em(f's_cselect_b32 {sT2}, 128, 64')
        em(f's_lshl_b32 {sW1c0}, {sT}, 6'); em(f's_add_u32 {sW1c2}, {sW1c0}, {sT2}')
        em(f's_lshl_b32 {sHks}, {sT}, 11'); em(f's_add_u32 {sHks}, {sHks}, {sGH}')
        em(f's_mul_i32 {sT}, {sW}, {H_T}'); em(f's_add_u32 {sHks}, {sHks}, {sT}')
        em(f's_and_b32 {sC128}, {sJ}, 7'); em(f's_lshl_b32 {sC128}, {sC128}, 7')
        em(f's_lshr_b32 {sT}, {sJ}, 3')
        em(f's_lshl_b32 {sT2}, {sT}, 16'); em(f's_add_u32 {sT2}, {sT2}, {sXrow}')
        em(f's_add_u32 {sOutRow}, {sT2}, {sC128}')
        em(f's_add_u32 {sQR}, {sT2}, {sWl}'); em(f's_add_u32 {sQR}, {sQR}, {WS_Q}')
        em(f's_lshl_b32 {sXst}, {sC128}, 5'); em(f's_add_u32 {sXst}, {sXst}, {sT2}'); em(f's_add_u32 {sXst}, {sXst}, {WS_X}')
        em(f's_mul_i32 {sHR}, {sT}, {2*H_T}'); em(f's_add_u32 {sHR}, {sHR}, {sGH}'); em(f's_add_u32 {sHR}, {sHR}, {sWl}')
        em(f's_lshl_b32 {sStR}, {sT}, 12'); em(f's_add_u32 {sStR}, {sStR}, {sG8K}')
        em(f's_lshr_b32 {sT}, {sW}, 1'); em(f's_and_b32 {sT2}, {sW}, 1'); em(f's_lshl_b32 {sT2}, {sT2}, 8')
        em(f's_lshl_b32 {sR}, {sT}, 15'); em(f's_add_u32 {sXst}, {sXst}, {sR}'); em(f's_add_u32 {sXst}, {sXst}, {sT2}')
        em(f's_lshl_b32 {sR}, {sT}, 11'); em(f's_add_u32 {sStM}, {sStR}, {sR}'); em(f's_add_u32 {sStM}, {sStM}, {sT2}')
        em(f's_and_b32 {sT}, {sJ}, 4'); em(f's_lshl_b32 {sT}, {sT}, 7'); em(f's_and_b32 {sT2}, {sJ}, 3'); em(f's_lshl_b32 {sT2}, {sT2}, 2')
        em(f's_add_u32 {sStst}, {sT}, {sT2}'); em(f's_add_u32 {sStst}, {sStst}, {sStM}')
        em(f's_lshl_b32 {sT}, {sW}, 15'); em(f's_add_u32 {sT}, {sT}, {sXrow}'); em(f's_add_u32 {sGXw}, {sT}, {WS_X}')
        em(f's_lshl_b32 {sQst}, {sJ}, 11'); em(f's_add_u32 {sQst}, {sQst}, {sT}'); em(f's_add_u32 {sQst}, {sQst}, {WS_Q}')
        em('s_mov_b32 s92, -1'); em('s_mov_b32 s93, 0')
        em(f's_cmp_ge_u32 {sW}, 2'); em(f's_cselect_b32 {sLim4}, 20, 21'); em(f's_lshl_b32 {sLim4}, {sLim4}, 12')
        em(f's_lshr_b32 {sT}, {sJ}, 3'); em(f's_and_b32 {sT2}, {sG}, 1'); em(f's_lshl_b32 {sT2}, {sT2}, 1'); em(f's_add_u32 {sT}, {sT}, {sT2}')
        em(f's_and_b32 {sT2}, s2, 7')
        em(f's_lshl_b32 {sRot2}, {sT}, 1'); em(f's_add_u32 {sRot2}, {sRot2}, {sT2}')
        if not o.rot2: em(f's_mov_b32 {sRot2}, 0')
        em(f's_mul_i32 {sJmsg}, {sJ}, {16*MSG_B}'); em(f's_add_u32 {sJmsg}, {sJmsg}, {WS_MSG}')
        if o.tlb: em.force_wait(lg=0)
        em(f's_mov_b32 {sDelta}, {f2u(1e-6*1.4426950408889634):#x}'); em(f's_mov_b32 {sLn2}, {f2u(0.6931471805599453):#x}')
        em('s_mov_b32 s89, s88'); em('s_mov_b32 s91, s90')
        em(f's_mov_b32 {sLog2e}, {f2u(1.4426950408889634):#x}'); em(f's_mov_b32 {sInv}, {f2u(1/512):#x}')
        em(f's_mov_b32 {sEps}, {f2u(1e-5):#x}'); em(f's_mov_b32 {s1em6}, {f2u(1e-6):#x}')
        em(f's_mov_b32 {sMaskInv}, 0xffffff00')
        em(f'v_lshrrev_b32 {vHi}, 5, {vLane}')
        em(f'v_lshrrev_b32 v27, 4, {vLane}'); em('v_lshlrev_b32 v27, 9, v27'); em(f'v_and_b32 v28, 15, {vLane}'); em(f'v_lshl_add_u32 {vP}, v28, 4, v27')
        em(f'v_bfe_u32 v27, {vLane}, 2, 2'); em(f'v_lshl_add_u32 v27, {vHi}, 2, v27')
        em(f'v_bfe_u32 v28, {vLane}, 4, 1'); em('v_lshlrev_b32 v28, 5, v28')
        em(f'v_and_b32 v29, 3, {vLane}'); em('v_lshl_add_u32 v28, v29, 3, v28')
        em(f'v_lshl_add_u32 {vTr[0]}, v27, 6, v28')
        em(f'v_lshl_add_u32 {vTr[0]}, {vHi}, 8, {vTr[0]}')
        em(f'v_add_u32 {vTr[1]}, 0x10000, {vTr[0]}'); em(f'v_add_u32 {vTr[2]}, 0x20000, {vTr[0]}')
        em(f'v_bfe_u32 v29, {vLane}, 3, 1'); em('v_lshl_add_u32 v28, v29, 6, v28')
        em(f'v_lshl_add_u32 {vS0}, v27, 7, v28'); em(f'v_add_u32 {vS0}, {sWl}, {vS0}'); em(f'v_xor_b32 {vS1}, 64, {vS0}')
        em(f'v_lshrrev_b32 v27, 3, {vLane}'); em(f'v_and_b32 v28, 7, {vLane}')
        em(f'v_bfe_u32 v29, {vLane}, 4, 1'); em('v_lshlrev_b32 v29, 2, v29'); em('v_xor_b32 v28, v28, v29'); em('v_lshlrev_b32 v28, 4, v28')
        em(f'v_lshl_add_u32 {vDs}, v27, 10, v28'); em(f's_lshl_b32 {sT}, {sW}, 14'); em(f'v_add_u32 {vDs}, {sT}, {vDs}')
        em(f'v_lshl_add_u32 v27, {vHi}, 9, {vL16}'); em(f's_lshl_b32 {sT}, {sW}, 11'); em(f'v_add_u32 {vStT}, {sT}, v27')
        em(f'v_and_b32 {vPoll}, 15, {vLane}'); em(f'v_lshlrev_b32 {vPoll}, 2, {vPoll}')
        em(f'v_readfirstlane_b32 {sNonce}, v24')
        em(f's_add_u32 {sNonce}, {sNonce}, {NONCE_K:#x}')
        em(f's_getreg_b32 {sHello}, hwreg(HW_REG_XCC_ID)'); em(f's_and_b32 {sHello}, {sHello}, 15')
        em(f's_add_u32 {sHello}, {sHello}, {sNonce}'); em(f's_add_u32 {sHello}, {sHello}, 1')
        def hello():
            em(f's_mov_b64 {sEx}, exec'); em('s_mov_b64 exec, 1')
            em(f'v_mov_b32 v24, {sHello}')
            em(f's_lshl_b32 {sT2}, {sJ}, 2'); em(f's_add_u32 {sT2}, {sT2}, {sG128}'); em(f's_add_u32 {sT2}, {sT2}, {WS_HELLO}')
            em(f'buffer_store_dword v24, off, {SWS}, {sT2} sc1')
            em(f's_mov_b64 exec, {sEx}')
        self.only_wave(0, hello)

    def chunk_items(self, c):
        it = []
        def x(rb8):
            if rb8 == 0: self.rot(c, 128, sXrow); self.em(f's_mov_b32 s99, {sR}')
            self.dma(SX, 'v25' if rb8 % 2 == 0 else 'v26', 's99', rb8 * 8192, 24 + 4 * (c % 3) + rb8, f'c{c}')
        for rb8 in range(4): it.append(lambda rb8=rb8: x(rb8))
        def w(p):
            if p == 'k': self.rot(c, 64 * 3072, sQcol); self.em(f's_mov_b32 s84, {sR}')
            self.dma(SQKV, vDq, 's84', {'k': 1024, 'v': 2048}[p], self.pl[p][c], f'c{c}')
        it += [lambda: w('k'), lambda: w('v')]
        return it
    def chunk_dma(self, c): self.emit(self.chunk_items(c))

    def touch_q(self, vt, dst):
        em = self.em
        em(f'v_lshlrev_b32 {vt}, 7, {vLane}')
        em(f's_mov_b64 {sEx}, exec'); em('s_mov_b64 exec, 0xffff')
        em(f'buffer_load_dword {v(dst)}, {vt}, {SWS}, {sQst} offen sc1', tag='touch')
        em(f'v_lshlrev_b32 {vt}, 12, {vLane}')
        em('s_mov_b64 exec, 0x7f')
        em(f'buffer_load_dword {v(dst+1)}, {vt}, {SWS}, {sFlag} offen sc1', tag='touch')
        em(f's_mov_b64 exec, {sEx}')
    def touch_w(self, vt, dst):
        em = self.em
        em(f'v_lshlrev_b32 {vt}, 7, {vLane}')
        em(f's_lshl_b32 {sT2}, s2, 2'); em(f's_add_u32 {sT2}, {sT2}, {sW}'); em(f's_mul_i32 {sT2}, {sT2}, {11*128}')
        em(f's_mov_b64 {sEx}, exec'); em('s_mov_b64 exec, 0x7ff')
        em(f'buffer_load_dword {v(dst)}, {vt}, {SW1}, {sT2} offen', tag='touch')
        em(f'buffer_load_dword {v(dst+1)}, {vt}, {SW2}, {sT2} offen', tag='touch')
        em(f's_lshl_b32 {sT2}, s2, 2'); em(f's_add_u32 {sT2}, {sT2}, {sW}'); em(f's_lshl_b32 {sT2}, {sT2}, 9')
        em('s_mov_b64 exec, 15')
        em(f'buffer_load_dword {v(dst+2)}, {vt}, {SWO}, {sT2} offen', tag='touch')
        em(f's_mov_b64 exec, {sEx}')
    def reducer_setup(self):
        em = self.em
        em(f's_lshr_b32 {sT}, {sG}, 3'); em(f's_cmp_eq_u32 {sT}, {sW}'); em(f's_cselect_b32 {sRed}, 1, 0')
        em(f's_lshl_b32 {sLine}, {sG}, 7')
        em(f's_mul_i32 {sKTo}, {sT}, 544'); em(f's_and_b32 {sT2}, {sG}, 7'); em(f's_lshl_b32 {sT2}, {sT2}, 6'); em(f's_add_u32 {sKTo}, {sKTo}, {sT2}')
        em(f's_mov_b32 {sFac}, {sLn2}')
        L = em.newlabel('Lz')
        em(f's_cmp_lg_u32 {sW}, 2'); em(f's_cbranch_scc1 {L}')
        em(f's_cmp_eq_u32 {sG}, {sJ}'); em(f's_cselect_b32 {sRed}, 1, 0')
        em(f's_mov_b32 {sLine}, 2048'); em(f's_mov_b32 {sKTo}, 512'); em(f's_mov_b32 {sFac}, 1.0')
        em.label(L)
        em(f's_sub_u32 {sCsp}, {sG}, {sJ}'); em(f's_sub_u32 {sCsp}, {sCsp}, 1'); em(f's_and_b32 {sCsp}, {sCsp}, 15')
        em(f's_cmp_eq_u32 {sW}, 3'); em(f's_cselect_b32 {sCsp}, {sCsp}, 15')
        em(f's_mul_i32 {sT2}, {sJ}, 1088'); em(f's_add_u32 {sKTo}, {sKTo}, {sT2}'); em(f's_add_u32 {sKTo}, {sKTo}, {WS_KT}')
        em(f's_add_u32 {sLine}, {sLine}, {sJmsg}')
        em(f's_and_b32 {sT2}, {sG}, 7'); em(f's_lshl_b32 {sT2}, {sT2}, 3'); em(f's_mov_b64 {sX0}, 0xff'); em(f's_lshl_b64 {sX0}, {sX0}, {sT2}'); em(f's_not_b64 {sX0}, {sX0}')
        em(f's_cmp_eq_u32 {sT}, 0'); em(f's_cselect_b64 {sX1}, -1, {sX0}'); em(f's_cselect_b64 {sX0}, {sX0}, -1')
    def kt_voff(self, d, t):
        em = self.em
        em(f'v_and_b32 {d}, 7, {vLane}'); em(f'v_lshlrev_b32 {d}, 3, {d}'); em(f'v_lshl_add_u32 {d}, {vHi}, 2, {d}')
        em(f's_cmp_eq_u32 {sW}, 2'); em(f's_cselect_b32 {sT2}, 128, 0'); em(f'v_and_b32 {t}, 4, {vLane}'); em(f'v_mad_u32_u24 {d}, {t}, {sT2}, {d}')
    def resets(self):
        em = self.em
        t0, D = v(MR + 24), MR + 28
        self.reducer_setup()
        L = em.newlabel('Lrs')
        em(f's_cmp_eq_u32 {sRed}, 0'); em(f's_cbranch_scc1 {L}')
        em.cond_begin()
        self.kt_voff(t0, v(D)); em(f'v_mov_b32 {v(D)}, -1')
        em('s_mov_b32 exec_lo, 0xff'); em('s_mov_b32 exec_hi, 0xff')
        for l in range(2): self.wsstore(v(D), t0, sKTo, l * 0x8000, width=1, sc=' sc1', tag='rst')
        em('s_mov_b64 exec, -1')
        em.cond_end()
        em.label(L)
        L = em.newlabel('Lrc')
        em(f's_cmp_ge_u32 {sCsp}, 3'); em(f's_cbranch_scc1 {L}')
        em.cond_begin()
        em(f'v_lshlrev_b32 {t0}, 2, {vLane}'); em(f'v_mov_b32 {v(D)}, -1')
        em(f's_mul_i32 {sT2}, {sJ}, 384'); em(f's_lshl_b32 {sR}, {sCsp}, 7'); em(f's_add_u32 {sT2}, {sT2}, {sR}')
        em('s_mov_b32 exec_hi, 0')
        self.wsstore(v(D), t0, sT2, WS_CS, width=1, sc=' sc1', tag='rst')
        em('s_mov_b64 exec, -1')
        em.cond_end()
        em.label(L)
        def msg():
            em(f'v_lshlrev_b32 {t0}, 4, {vTid}'); em(f's_not_b32 {sT2}, {sNonce}')
            for r in range(4): em(f'v_mov_b32 {v(D+r)}, {sT2}')
            em(f'v_cmp_gt_u32 vcc, 136, {vTid}'); em(f's_and_saveexec_b64 {sEx}, vcc')
            em(f's_mul_i32 {sT2}, {sG}, {MSG_B}'); em(f's_add_u32 {sT2}, {sT2}, {sJmsg}')
            for l in range(2): self.wsstore(v(D, 4), t0, sT2, l * 256 * MSG_B, sc=' sc1', tag='rst')
            em(f's_mov_b64 exec, {sEx}')
        if self.o.prewrite: self.only_wave(3, msg, invert=True)
    def reset_items(self, D, which):
        em = self.em
        it = [f'v_mov_b32 {v(D+r)}, 0' for r in range(4)]
        def x():
            em(f's_and_b32 {sT2}, {sW}, 1'); em(f's_mul_i32 {sT2}, {sT2}, 1792'); em(f's_add_u32 {sT2}, {sT2}, {sXst}')
            self.wsstore(v(D, 4), vL16, sT2, 0, tag='rst'); self.wsstore(v(D, 4), vL16, sT2, 0, tag='rst', off=1024)
        if 'x' in which: it.append(x)
        def h(p):
            self.wsstore(v(D, 4), vL16, sHks, p * 2048, tag='rst'); self.wsstore(v(D, 4), vL16, sHks, p * 2048, tag='rst', off=1024)
        if 'h' in which: it += [lambda: h(0), lambda: h(1)]
        def h2():
            L = em.newlabel('Lr3')
            em(f's_cmp_ge_u32 {sJ}, 11'); em(f's_cbranch_scc1 {L}')
            em.cond_begin(); h(2); em.cond_end()
            em.label(L)
        if 'h' in which: it.append(h2)
        def st():
            em(f'v_and_b32 {v(D+4)}, 512, {vP}'); em(f'v_add_u32 {v(D+4)}, {v(D+4)}, {vP}')
            em('s_mov_b32 exec_hi, 0')
            for i in range(3): self.wsstore(v(D), v(D + 4), sStst, i * 16 * 8192, width=1, tag='rst')
            em('s_mov_b64 exec, -1')
        if 'x' in which: it.append(st)
        return it

    def check(self, regs, reload, tmp=None, split=False, kind='sent', tag=None, again=None):
        em = self.em
        if self.o.nochk and split and kind != 'h': return lambda: None
        F = em.newlabel('Lfix'); R = em.newlabel('Lret'); G_ = em.newlabel('Lok')
        dst = 'vcc' if split else sEx
        def test(e):
            r = regs[0]
            if r.startswith('a'): e(f'v_accvgpr_read_b32 {tmp}, {r}'); r = tmp
            if kind == 'sent':
                rest = list(regs)
                e(f'v_max_u32 {tmp}, {rest[0]}, {rest[1]}'); rest = rest[2:]
                while rest:
                    e(f'v_max3_u32 {tmp}, {rest[0]}, {rest[1]}, {tmp}'); rest = rest[2:]
                e(f'v_cmp_eq_u32 {dst}, -1, {tmp}')
            elif kind == 'h':
                if tag:
                    for q in regs: e(f'v_xor_b32 {q}, 0x80000000, {q}')
                if len(regs) == 2: e(f'v_or_b32 {tmp}, {regs[0]}, {regs[1]}'); r = tmp
                e(f'v_cmp_gt_i32 {dst}, 0, {r}')
            elif len(regs) <= 2:
                r1 = regs[-1]
                if r1.startswith('a'):
                    e(f'v_lshlrev_b32 {tmp}, 31, {tmp}'); e(f'v_cmp_{"eq" if tag else "ne"}_u32 {sEx}, 0, {tmp}')
                    e(f'v_accvgpr_read_b32 {tmp}, {r1}'); e(f'v_lshlrev_b32 {tmp}, 31, {tmp}'); e(f'v_cmp_{"eq" if tag else "ne"}_u32 {dst}, 0, {tmp}')
                    e('s_nop 1'); e(f's_or_b64 vcc, vcc, {sEx}')
                else:
                    e(f'v_bitop3_b32 {tmp}, {r}, {r1}, 1 bitop3:{0x80 if tag else 0xa8:#x}'); e(f'v_cmp_{"eq" if tag else "ne"}_u32 {dst}, 0, {tmp}')
            else:
                assert tag == 1
                rest = list(regs)
                e(f'v_and_b32 {tmp}, {rest[0]}, {rest[1]}'); rest = rest[2:]
                while rest:
                    e(f'v_bitop3_b32 {tmp}, {rest[0]}, {rest[1]}, {tmp} bitop3:0x80'); rest = rest[2:]
                e(f'v_and_b32 {tmp}, 1, {tmp}'); e(f'v_cmp_eq_u32 {dst}, 0, {tmp}')
        test(em)
        def branch():
            if split: em(f's_cbranch_vccnz {F}')
            else: em(f's_cmp_lg_u64 {sEx}, 0'); em(f's_cbranch_scc1 {F}')
            em.label(R)
            out = [F + ':']
            e = lambda t, tag=None: out.append('    ' + t)
            if self.o.ts: e('s_add_u32 s60, s60, 1')
            def rep():
                for p in em.vmq:
                    if p.tag == 'A': again(e, p)
                    else: e(f's_mov_b32 {sFx}, {WS_DBG + 0x100000}'); e(f'buffer_store_dword {tmp}, off, {SWS}, {sFx}')
            reload(e)
            if again and self.o.fixmode: rep(); e(f's_waitcnt vmcnt({len(em.vmq)})')
            else: e('s_waitcnt vmcnt(0)')
            test(e)
            if split: e(f's_cbranch_vccz {G_}')
            else: e('s_nop 0'); e(f's_cmp_eq_u64 {sEx}, 0'); e(f's_cbranch_scc1 {G_}')
            e(f's_sub_u32 {sSpin}, {sSpin}, 1'); e(f's_cbranch_scc0 {F}'); e(f's_mov_b32 {sSpin}, 0')
            out.append(G_ + ':')
            if again and not self.o.fixmode: rep()
            e(f's_branch {R}')
            self.fixes += out
        if split: return branch
        branch()

    def colsum_items(self, quads, acc, tmp, own, ones, first):
        items = []
        rds = [self.tr(tmp + 4 * (n % 2), q, 0, own) for n, q in enumerate(quads)]
        items += rds[0]
        for n in range(len(quads)):
            if n + 1 < len(quads): items += rds[n + 1]
            items.append(f'{MF} {acc}, {ones}, {v(tmp + 4*(n%2), 4)}, ' + ('0' if first and n == 0 else acc))
        return items
    def cs_write_items(self, srcs, lds, tmp):
        ad = v(tmp)
        it = [f'v_and_b32 {ad}, 31, {vLane}', f'v_lshlrev_b32 {ad}, 4, {ad}', f'v_add_u32 {ad}, {lds:#x}, {ad}',
              f's_lshl_b32 {sT2}, {sW}, 2', f'v_add_u32 {v(tmp+1)}, {sT2}, {ad}']
        return it + [f'ds_write_b32 {v(tmp+1)}, {s} offset:{p*512}' for p, s in enumerate(srcs)]
    def cs_read_items(self, keys, tmp):
        ad = v(tmp); R = tmp + 2
        it = [f'ds_read_b128 {v(R+4*p,4)}, {ad} offset:{p*512}' for p in range(len(keys))]
        for p, k in enumerate(keys):
            r = R + 4 * p
            it += [f'v_add_f32 {v(r)}, {v(r)}, {v(r+1)}', f'v_add_f32 {v(r+2)}, {v(r+2)}, {v(r+3)}', f'v_add_f32 {v(r)}, {v(r)}, {v(r+2)}',
                   f'v_cvt_pk_bf16_f32 {v(r+1)}, {v(r)}, {v(r)}', f'v_lshlrev_b32 {v(r+1)}, 16, {v(r+1)}', f'v_sub_f32 {v(r+1)}, {v(r)}, {v(r+1)}',
                   f'v_cvt_pk_bf16_f32 {CS[k]}, {v(r)}, {v(r+1)}']
        return it
    def colsum_exchange(self, srcs, keys, lds, tmp):
        self.emit(self.cs_write_items(srcs, lds, tmp)); self.barrier(); self.emit(self.cs_read_items(keys, tmp))

    def stage_dma(self, srd, m, qa, qb, tag):
        em = self.em
        if srd == SWO:
            em(f's_add_u32 {sR}, {sRot2}, {m}'); em(f's_and_b32 {sR}, {sR}, 7'); em(f's_lshl_b32 {sR}, {sR}, 16')
        else:
            self.tab4(m, sR, 16)
        em(f's_add_u32 {sR}, {sR}, {sC128}')
        self.dma(srd, vDs, sR, 0, qa, tag, nt=self.o.nt_stage); self.dma(srd, vDs, sR, 8192, qb, tag, nt=self.o.nt_stage)
    def tab4(self, st, dst, sh, em=None):
        em = em or self.em
        em(f's_bfe_u32 {dst}, {sTab[st // 6]}, {(5 * (st % 6)) | (5 << 16):#x}'); em(f's_lshl_b32 {dst}, {dst}, {sh}')
    def stage_read_items(self, abase, m, qa, qb):
        items = []
        for h, q in enumerate((qa, qb)):
            addr = q * 4096; win = addr >> 16; off = addr & 0xFFFF
            def f(win=win, off=off, h=h):
                if win == 0: b0, b1 = vS0, vS1
                else:
                    if self.swin != win:
                        self.em(f'v_add_u32 {vS0w}, {win*65536:#x}, {vS0}'); self.em(f'v_add_u32 {vS1w}, {win*65536:#x}, {vS1}'); self.swin = win
                    b0, b1 = vS0w, vS1w
                self.em(f'ds_read_b64_tr_b16 {a(abase + m*8 + 2*h, 2)}, {b0} offset:{off}')
                self.em(f'ds_read_b64_tr_b16 {a(abase + m*8 + 4 + 2*h, 2)}, {b1} offset:{off}')
            items.append(f)
        return items

    def aux_items(self, S, Q, t0, need_r=True):
        it = [f'v_mul_f32 {S}, {sInv}, {S}']
        if need_r:
            it += [f'v_mul_f32 {Q}, {sInv}, {Q}', f'v_fma_f32 {Q}, -{S}, {S}, {Q}', f'v_max_f32 {Q}, 0, {Q}', f'v_add_f32 {Q}, {sEps}, {Q}',
                   f'v_rsq_f32 {Q}, {Q}', f'v_mul_f32 {vRl}, {sLog2e}, {Q}']
        it += [f'v_cndmask_b32_e64 {S}, 0, -{S}, {sLo}',
               f'v_cvt_pk_bf16_f32 {v(AUX)}, {S}, {S}', f'v_lshlrev_b32 {t0}, 16, {v(AUX)}', f'v_sub_f32 {S}, {S}, {t0}', f'v_cvt_pk_bf16_f32 {v(AUX+1)}, {S}, {S}']
        if need_r:
            it += [f'v_cndmask_b32 {Q}, 0, {vRl}, {sLo}', f'v_cvt_pk_bf16_f32 {t0}, {Q}, {Q}', f'v_lshlrev_b32 {t0}, 16, {t0}', f'v_sub_f32 {t0}, {Q}, {t0}',
                   f'v_cvt_pk_bf16_f32 {v(AUX+2)}, {Q}, {t0}']
        return it
    def aux_const_items(self):
        return [f'v_mov_b32 {v(AUX+2)}, 0', f'v_mov_b32 {v(AUX+3)}, 0', f'v_mov_b32 {v(CB+2)}, 0', f'v_mov_b32 {v(CB+3)}, 0', f'v_mov_b32 {v(CB+4)}, 0x3f803f80', f'v_mov_b32 {v(CB+5)}, 0x3f803f80']
    def corr_items(self, key, acc, swapAB):
        c = v(acc, 16)
        return [f'v_mov_b32 {v(CB)}, {CS[key]}', f'v_mov_b32 {v(CB+1)}, {CS[key]}',
                f'{MF} {c}, {v(AUX,4)}, {v(CB,4)}, {c}' if swapAB else f'{MF} {c}, {v(CB,4)}, {v(AUX,4)}, {c}']
    def stats_T_loads(self, i, e=None):
        e = e or self.em
        t = MR + 16
        e(f's_add_u32 {sFx}, {sG8K}, {i * 16 * 8192}')
        e(f'buffer_load_dwordx4 {v(t,4)}, {vStT}, {SWS}, {sFx} offen sc1', tag='stat'); e(f'buffer_load_dwordx4 {v(t+4,4)}, {vStT}, {SWS}, {sFx} offen offset:512 sc1', tag='stat')
    def stats_T_items(self, need_r, sti):
        t = MR + 16
        it = [lambda: self.check([v(t + r) for r in range(8)], lambda e: self.stats_T_loads(sti, e), v(t + 8), kind='x', tag=sTxn)]
        it += [f'v_add_f32 {v(t)}, {v(t)}, {v(t+1)}', f'v_add_f32 {v(t+2)}, {v(t+2)}, {v(t+3)}', f'v_add_f32 {v(t+4)}, {v(t+4)}, {v(t+5)}',
              f'v_add_f32 {v(t+6)}, {v(t+6)}, {v(t+7)}', f'v_add_f32 {v(t)}, {v(t)}, {v(t+2)}', f'v_add_f32 {v(t+4)}, {v(t+4)}, {v(t+6)}',
              f'v_add_f32 {v(t)}, {v(t)}, {v(t+4)}', f'v_mov_b32 {v(t+1)}, {v(t)}', f'v_permlane32_swap_b32 {v(t)}, {v(t+1)}']
        return it + self.aux_items(v(t), v(t + 1), v(t + 2), need_r)

    def pass2(self, steps, planes, accs, swapAB, side, fill, loader=None, first=True, extra=None):
        em = self.em
        steps = list(steps)
        def rd(i, p):
            ks = steps[i]
            for t in self.tr(BB + (i % 2) * 8 + 4 * p, planes[p][ks >> 2], ks & 3): em(t, tag=('B', i))
        for i in range(2):
            for p in range(2): rd(i, p)
        br = extra(0)
        for i, ks in enumerate(steps):
            if br: br(); br = None
            if self.o.ts2 and self.S == 0 and i == 0: self.ts('first')
            lg = [k for k, p in enumerate(em.lgq) if p.tag == ('B', i)]
            need = [XORD[k] for k in (i + 1, i + 2) if k < len(steps)] if i % 2 else []
            vm = [k for k, p in enumerate(em.vmq) if p.tag == 'A' and XORD[self.ldidx[id(p)]] in need]
            em.force_wait(vm=len(em.vmq) - 1 - max(vm) if vm else None, lg=len(em.lgq) - 1 - max(lg) if lg else None)
            for p in range(2):
                w = v(BB + (i % 2) * 8 + 4 * p, 4); x = Afrag(ks); c = v(accs[p], 16)
                src = '0' if (first and i == 0) else c
                em(f'{MF} {c}, {x}, {w}, {src}' if swapAB else f'{MF} {c}, {w}, {x}, {src}')
                if i + 2 < len(steps): rd(i + 2, p)
                if p == 0: loader(i)
                if p == 0 and i + 1 < len(steps): br = extra(i + 1)
                if not (p == 0 and br): side.run(fill(i) if callable(fill) else fill)
                if self.o.ts2 and self.S == 0 and p == 1 and i in (0, 3, 7, 15, 23): self.ts(f's{i}')
    def pass1(self, plane, acc, side, fill):
        em = self.em
        NB = 4
        def rd(ks):
            for t in self.tr(BB + (ks % NB) * 4, plane[ks >> 2], ks & 3): em(t)
        for ks in range(NB - 1): rd(ks)
        for ks in range(32):
            w = v(BB + (ks % NB) * 4, 4); c = v(acc, 16)
            if ks + NB - 1 < 32: rd(ks + NB - 1)
            em(f'{MF} {c}, {w}, {Afrag(ks)}, ' + ('0' if ks == 0 else c))
            side.run(fill(ks) if callable(fill) else fill)
    def xld(self, i, e=None):
        ks = XORD[i]
        r = (e or self.em)(f'buffer_load_dwordx4 {Afrag(ks)}, {vAX}, {SWS}, {(sXl if ks & 2 else sXm)[ks >> 2]} offen offset:{(ks & 1) * 1024} sc1', tag='A')
        if e is None: self.ldidx[id(r)] = i
    def x_prefetch(self, off, n0, n1):
        if n0 == 0:
            self.em(f's_add_u32 {sT}, {sGXw}, {off}'); self.em(f'v_add_u32 {vAX}, {sT}, {vL16}')
        for i in range(n0, n1): self.xld(i)
    def a_loader(self, pre, sti, xtag):
        def step(i):
            if i == self.o.statstep - 10: self.stats_T_loads(sti)
            if i + pre < 32: self.xld(i + pre)
        def chk(i):
            if i % 2: return None
            f0 = lambda k: (lambda r: r[0] + r[2:].split(':')[0])(Afrag(XORD[k]))
            return self.check([f0(i), f0(i + 1)], lambda e: (self.xld(i, e), self.xld(i + 1, e)), v(38), split=True, kind='x', tag=xtag,
                              again=lambda e, p: self.xld(self.ldidx[id(p)], e))
        return step, chk

    def phi_items(self, acc, rl, lanes_t, E):
        out = []
        for g in range(2):
            b = acc + 8 * g
            for k in range(4):
                x = v(b + 2 * k, 2)
                if lanes_t:
                    out += [f'v_fma_f32 {v(b+2*k)}, {v(b+2*k)}, {rl}, {sDelta}', f'v_fma_f32 {v(b+2*k+1)}, {v(b+2*k+1)}, {rl}, {sDelta}']
                else: out.append(f'v_pk_fma_f32 {x}, {x}, {v(rl + 8*g + 2*k, 2)}, {sDelta2}')
            for k in range(8): out.append(f'v_exp_f32_e64 {v(E+k)}, {v(b+k)} clamp')
            for k in range(8): out.append(f'v_max_f32 {v(b+k)}, {sDelta}, {v(b+k)}')
            for k in range(4): out.append(f'v_pk_fma_f32 {v(b+2*k,2)}, {v(b+2*k,2)}, {sLn22}, {v(E+2*k,2)}')
            for k in range(4): out.append(f'v_cvt_pk_bf16_f32 {v(acc+4*g+k)}, {v(b+2*k)}, {v(b+2*k+1)}')
        return out

    def p1_start(self):
        em = self.em; o = self.o
        self.lin = True
        X = MR; OWN = [v(MR + 4), v(MR + 5), v(MR + 6)]; H = v(MR + 7); ONE = v(MR + 8, 4); CT = MR + 12
        self.OWN, self.ONE = OWN, ONE
        aS, aCk, aCv = a(0, 16), a(32, 16), a(48, 16); QA = ACC + 32
        em(f'v_and_b32 v27, 7, {vLane}'); em('v_lshlrev_b32 v27, 7, v27')
        em(f'v_bfe_u32 v28, {vLane}, 3, 2'); em('v_lshl_add_u32 v27, v28, 12, v27')
        em(f's_add_u32 {sT}, {sWl}, {24*4096}'); em(f'v_add_u32 v27, {sT}, v27')
        em(f'v_bfe_u32 v28, {vLane}, 1, 3'); em(f'v_xor_b32 v28, v28, {vHi}')
        for kk in range(4):
            em(f'v_xor_b32 v29, {2*kk}, v28'); em(f'v_lshl_add_u32 {v(X+kk)}, v29, 4, v27')
        for i in range(3): em(f'v_add_u32 {OWN[i]}, {sWl}, {vTr[i]}')
        for i in range(4): em(f'v_mov_b32 {v(MR+8+i)}, 0x3f803f80')
        for sm, bit in ((sM0, 1), (sM1, 2), (sM3, 8), (sM4, 16)):
            em(f'v_and_b32 v29, {bit}, {vLane}'); em(f'v_cmp_ne_u32 {sm}, 0, v29')
        em(f'v_bfe_u32 v29, {vLane}, 2, 1'); em(f'v_cmp_eq_u32 s[46:47], v29, {vHi}')
        if o.tw == 0: self.touch_w('v29', MR + 20)
        self.resets()
        def own_reads(c):
            em.wait_vm_tag(f'c{c}')
            for kk in range(4): em(f'ds_read_b128 {Afrag(4*c+kk)}, {v(X+kk)} offset:{(c % 3) * 16384}')
            for p, pl in enumerate('kv'): self.emit(self.tr(CT + 4 * p, self.pl[pl][c], 0, OWN))
        side = Side(em)
        self.stq = list(range(24, 32)) + [34, 35, 32, 33, 36, 37, 38, 39]
        own_reads(0)
        self.ts('c0')
        for c in range(8):
            em('s_barrier')
            if c + 2 < 8: side.add(*self.chunk_items(c + 2))
            if c == 2: side.add(lambda: self.touch_q('v27', MR + 24))
            if c == o.tw - 1: side.add(lambda: self.touch_w('v27', MR + 20))
            if c == 1:
                def w1p():
                    em(f's_lshl_b32 {sT2}, {sW}, 6'); em(f's_add_u32 {sT2}, {sT2}, {sW1c0}'); em(f's_cmp_lt_u32 {sW}, 2'); em(f's_cselect_b32 {sT2}, {sT2}, {sW1c2}')
                    em(f's_lshl_b32 {sR}, {sG}, 1'); em(f's_sub_u32 {sR}, {sR}, {sW}'); em(f's_mul_i32 {sR}, {sR}, {16*2752}')
                    em(f'v_add_u32 v28, {sR}, {vD1}')
                    self.dma(SW1, 'v28', sT2, 0, 36, 'w1p'); self.dma(SW1, 'v28', sT2, 16 * 2752, 37, 'w1p')
                side.add(w1p)
            if c == 5:
                aW = a(80, 16); W = MR + 24
                side.add(lambda: em.wait_vm_tag('w1p'))
                side.add(*self.tr(W, 36, 0, OWN)); side.add(*self.tr(W + 4, 37, 0, OWN))
                side.add(f'{MF} {aW}, {ONE}, {v(W,4)}, 0', f'{MF} {aW}, {ONE}, {v(W+4,4)}, {aW}')
            if c == 6:
                def w1s():
                    W = MR + 24
                    em(f'v_accvgpr_read_b32 {v(W)}, a80'); em(f's_and_b32 {sT2}, {sNonce}, 0xff'); em(f'v_mov_b32 {v(W+1)}, {sT2}')
                    em(f'v_and_or_b32 {v(W)}, {v(W)}, {sMaskInv}, {v(W+1)}'); em(f'v_lshlrev_b32 {v(W+1)}, 2, {vLane}')
                    em(f's_min_u32 {sR}, {sW}, 2'); em(f's_lshl_b32 {sR}, {sR}, 7')
                    em(f's_mul_i32 {sT2}, {sG}, {MSG_B}'); em(f's_add_u32 {sT2}, {sT2}, {sJmsg}'); em(f's_add_u32 {sT2}, {sT2}, {sR}')
                    em('s_mov_b32 exec_hi, 0')
                    self.wsstore(v(W), v(W + 1), sT2, 2176, width=1, sc=' sc1', tag='rst')
                    em('s_mov_b64 exec, -1')
                side.add(w1s)
            if c == 5:
                def hello():
                    em(f's_add_u32 {sT2}, {sG128}, {WS_HELLO}')
                    em(f'buffer_load_dword {H}, {vPoll}, {SWS}, {sT2} offen sc1', tag='hello')
                side.add(hello)
            if c >= 5:
                for m in range(8):
                    if o.qsched[m] == str(c): side.add(lambda m=m: self.qkv_dma('q', m, 'q'))
            def rd(kk, p):
                self.emit(self.tr(BB + (kk % 2) * 8 + 4 * p, self.pl['kv'[p]][c], kk))
            for kk in range(2):
                for p in range(2): rd(kk, p)
            cnt = [0]
            def tick():
                cnt[0] += 1
                if c < 7 and cnt[0] % o.cgap == o.cgap - 1: side.run(1)
            for p, acc in enumerate((aCk, aCv)):
                em(f'{MF} {acc}, {ONE}, {v(CT+4*p,4)}, ' + ('0' if c == 0 else acc)); tick()
            for kk in range(4):
                ks = 4 * c + kk
                em(f'{MF} {aS}, {ONE}, {Afrag(ks)}, ' + ('0' if ks == 0 else aS)); tick()
                em(f'{MF} {v(QA,16)}, {Afrag(ks)}, {Afrag(ks)}, ' + ('0' if ks == 0 else v(QA, 16))); tick()
            if c == 7:
                S, Q, T = v(MR + 20), v(QA), v(MR + 22)
                tail = [f'v_accvgpr_read_b32 {v(MR+20)}, a32', f'v_accvgpr_read_b32 {v(MR+21)}, a48']
                tail += self.cs_write_items([v(MR + 20), v(MR + 21)], 32 * 4096, MR + 22) + [self.barrier] + self.cs_read_items(['k', 'v'], MR + 22)
                tail += [f'v_accvgpr_read_b32 {S}, a0']
                for r in range(8): tail.append(f'v_cndmask_b32 {v(QA+r)}, {v(QA+2*r)}, {v(QA+2*r+1)}, {sM0}')
                for r in range(4): tail.append(f'v_cndmask_b32 {v(QA+r)}, {v(QA+2*r)}, {v(QA+2*r+1)}, {sM1}')
                for r in range(2): tail.append(f'v_cndmask_b32 {v(QA+r)}, {v(QA+2*r)}, {v(QA+2*r+1)}, {sM3}')
                tail += [f'v_cndmask_b32 {Q}, {Q}, {v(QA+1)}, {sM4}', f'v_cndmask_b32 {Q}, 0, {Q}, s[46:47]',
                         f'v_mov_b32 {T}, {Q}', f'v_permlane32_swap_b32 {Q}, {T}', f'v_add_f32 {Q}, {Q}, {T}']
                tail += self.aux_const_items() + self.aux_items(S, Q, T)
                side.q = tail + side.q
            for kk in range(4):
                ks = 4 * c + kk
                for p in range(2):
                    cc = v(ACC + 16 * p, 16)
                    em(f'{MF} {cc}, {Afrag(ks)}, {v(BB + (kk % 2) * 8 + 4 * p, 4)}, ' + ('0' if ks == 0 else cc))
                    if kk + 2 < 4: rd(kk + 2, p)
                    if c < 7: tick()
                    else: side.run(7)
                if kk == o.ownpos and c + 1 < 8: own_reads(c + 1)
            if c < 7: side.flush()
            if c in (1, 3, 5) and not o.ts2: self.ts(f'c{c}e')
        side.flush()
        self.ts('kvpass')
        self.emit(self.corr_items('k', ACC, True)); self.emit(self.corr_items('v', ACC + 16, True))
        L = em.newlabel('Lhp'); D = em.newlabel('Lhd')
        em.wait_vm_tag('hello')
        em.label(L)
        em(f'v_subrev_u32 {v(TMP)}, {sNonce}, {H}'); em(f'v_add_u32 {v(TMP)}, -1, {v(TMP)}')
        em(f'v_cmp_le_u32 vcc, 16, {v(TMP)}')
        em(f's_cbranch_vccz {D}')
        em.cond_begin()
        em(f's_add_u32 {sT2}, {sG128}, {WS_HELLO}')
        em(f'buffer_load_dword {H}, {vPoll}, {SWS}, {sT2} offen sc1'); em.force_wait(vm=0)
        em.cond_end()
        self.spin_tail(L)
        em.label(D)
        em(f'v_cmp_ne_u32 vcc, {sHello}, {H}')
        for i in range(3): em(f'v_mov_b32 {v(TMP+i)}, {OWN[i]}')
        self.OWN = [v(TMP), v(TMP + 1), v(TMP + 2)]
        em(f'{MF} {v(MR,16)}, {v(AUX,4)}, {v(CB+2,4)}, 0')
        self.ts('decide')

    def p1_rest(self, l):
        em = self.em; o = self.o
        K, V, Q = ACC, ACC + 16, ACC + 32
        RL = MR; E = MR + 16
        sq = self.pl['k'][:4]
        sa = 36 * 4096
        mw, mr, fac, t16, tg = v(K + 8), v(K + 9), v(K + 10), v(K + 11), v(K + 12)
        u, x1, x2 = v(K + 13), v(K + 14), v(K + 15)
        self.emit(self.phi_items(K, RL, False, E))
        D0, D1 = MR, MR + 16
        rest = [f'v_pk_mul_f32 {v(V+2*r,2)}, {v(V+2*r,2)}, {v(RL+2*r,2)}' for r in range(8)]
        rest += [f'v_cvt_pk_bf16_f32 {v(V+r)}, {v(V+2*r)}, {v(V+2*r+1)}' for r in range(8)]
        rest += [f'v_mov_b32 {v(V+8+r)}, {v(CB+4)}' for r in range(8)]
        rest += [f'v_permlane16_swap_b32 {v(V+r)}, {v(V+8+r)}' for r in range(8)]
        rest += [f'{MF} {v(D0,16)}, {v(K,4)}, {v(V,4)}, 0', f'{MF} {v(D1,16)}, {v(K,4)}, {v(V+8,4)}, 0',
                 f'{MF} {v(D0,16)}, {v(K+4,4)}, {v(V+4,4)}, {v(D0,16)}', f'{MF} {v(D1,16)}, {v(K+4,4)}, {v(V+12,4)}, {v(D1,16)}']
        if l == 0:
            for r in range(4): em(f'v_mov_b32 {v(BB+8+r)}, {v(CB+4)}')
            cs = [lambda: em.wait_vm_tag('q')] + self.colsum_items(self.pl['q'], v(Q, 16), BB, self.OWN, v(BB + 8, 4), True)
            mixed = []
            while rest or cs:
                mixed += rest[:1] + cs[:1]; rest = rest[1:]; cs = cs[1:]
            rest = mixed
        self.emit(rest)
        self.emit([f's_lshl_b32 {sT2}, {sW}, 12', f's_add_u32 {sT2}, {sT2}, {sa}', f'v_add_u32 {mw}, {sT2}, {vL16}',
                   f'v_bfe_u32 {x1}, {vLane}, 1, 4', f'v_lshl_add_u32 {x1}, {vHi}, 5, {x1}', f'v_lshlrev_b32 {x1}, 4, {x1}',
                   f's_lshl_b32 {sT2}, {sW}, 11', f'v_add_u32 {x1}, {sT2}, {x1}',
                   f'v_bfe_u32 {x2}, {vLane}, 1, 2', f'v_lshlrev_b32 {x2}, 9, {x2}', f'v_bfe_u32 {u}, {vLane}, 2, 1', f'v_lshl_add_u32 {x2}, {u}, 10, {x2}', f'v_add_u32 {x2}, 256, {x2}',
                   f's_cmp_eq_u32 {sW}, 2', f's_cselect_b64 vcc, -1, 0', f'v_cndmask_b32 {mr}, {x1}, {x2}, vcc',
                   f'v_and_b32 {x1}, 1, {vLane}', f'v_lshl_add_u32 {mr}, {x1}, 10, {mr}', f'v_add_u32 {mr}, {sa:#x}, {mr}',
                   f'v_add_u32 {t16}, {sWl}, {vL16}', f's_and_b32 {sT2}, {sNonce}, 0xff', f'v_mov_b32 {tg}, {sT2}',
                   f'v_lshrrev_b32 {x1}, 3, {vLane}', f'v_mul_u32_u24 {x1}, {MSG_B}, {x1}', f'v_and_b32 {x2}, 7, {vLane}', f'v_lshl_add_u32 {fac}, {x2}, 4, {x1}'])
        self.kt_voff(u, x1)
        for i, r in enumerate((D0, D0 + 4, D1 + 8, D1 + 12)): em(f'ds_write_b128 {mw}, {v(r,4)} offset:{i*1024}')
        if l == 0: self.emit(self.cs_write_items([v(Q)], 33 * 4096, V))
        em.wait_vm_tag('q')
        self.barrier()
        if not o.ts2: self.ts('kvbar')
        M = MR
        ga = fac; G = MR + 4; A0 = x1; sOK = 's48'
        def msg_out():
            for i in range(4): em(f'ds_read_b128 {v(M+4*i,4)}, {mr} offset:{i*4096}')
            for r in (0, 2): em(f'v_pk_add_f32 {v(M+r,2)}, {v(M+r,2)}, {v(M+4+r,2)}')
            for r in (0, 2): em(f'v_pk_add_f32 {v(M+8+r,2)}, {v(M+8+r,2)}, {v(M+12+r,2)}')
            for r in (0, 2): em(f'v_pk_add_f32 {v(M+r,2)}, {v(M+r,2)}, {v(M+8+r,2)}')
            em(f'v_cmp_gt_u32 vcc, 2176, {t16}')
            for r in range(4): em(f'v_and_or_b32 {v(M+r)}, {v(M+r)}, {sMaskInv}, {tg}')
            em(f's_mul_i32 {sT2}, {sG}, {MSG_B}'); em(f's_add_u32 {sT2}, {sT2}, {sJmsg}')
            em('s_mov_b64 exec, vcc')
            self.wsstore(v(M, 4), t16, sT2, l * 256 * MSG_B, sc=' sc1', tag='msg')
            em('s_mov_b64 exec, -1')
        self.only_wave(3, msg_out, invert=True)
        def if_pending(f):
            L = em.newlabel('Lp')
            em(f's_cmp_lg_u32 {sOK}, 0'); em(f's_cbranch_scc1 {L}')
            em.cond_begin(); f(); em.vmq = [p for p in em.vmq if p.tag != 'g']; em.cond_end()
            em.label(L)
            self.gmark = set(id(p) for p in em.vmq)
        def g_loads():
            em(f's_mov_b64 exec, {sX0}'); self.wsload(v(G, 4), ga, sLine, l * 256 * MSG_B, tag='g')
            em(f's_mov_b64 exec, {sX1}'); self.wsload(v(G + 4, 4), ga, sLine, l * 256 * MSG_B + 8 * MSG_B, tag='g')
            em('s_mov_b64 exec, -1')
        def g_check():
            em(f'v_xor_b32 {A0}, {v(G)}, {tg}')
            for r in (3, 4, 7): em(f'v_bitop3_b32 {A0}, {v(G+r)}, {tg}, {A0} bitop3:0xbe')
            em(f'v_and_b32 {A0}, 0xff, {A0}'); em(f'v_cmp_ne_u32 vcc, 0, {A0}')
        def g_finish():
            for r in (0, 2): em(f'v_pk_add_f32 {v(G+r,2)}, {v(G+r,2)}, {v(G+4+r,2)}')
            for r in range(4): em(f'v_add_f32_dpp {v(G+r)}, {v(G+r)}, {v(G+r)} row_ror:8 {DPPM}')
            em(f'v_permlane16_swap_b32 {v(G)}, {v(G+1)}'); em(f'v_permlane16_swap_b32 {v(G+2)}, {v(G+3)}')
            em(f'v_add_f32 {v(G)}, {v(G)}, {v(G+1)}'); em(f'v_add_f32 {v(G+2)}, {v(G+2)}, {v(G+3)}')
            em(f'v_permlane32_swap_b32 {v(G)}, {v(G+2)}'); em(f'v_add_f32 {v(G)}, {v(G)}, {v(G+2)}')
            em(f'v_mul_f32 {v(G)}, {sFac}, {v(G)}'); em(f'v_mov_b32 {v(G+1)}, {v(G)}')
            em(f'v_permlane16_swap_b32 {v(G)}, {v(G+1)}'); em(f'v_cvt_pk_bf16_f32 {v(G)}, {v(G)}, {v(G+1)}')
            em('s_mov_b32 exec_lo, 0xff'); em('s_mov_b32 exec_hi, 0xff')
            self.wsstore(v(G), u, sKTo, l * 0x8000, width=1, sc=' sc1', tag='kt')
            em('s_mov_b64 exec, -1')
            em(f's_mov_b32 {sOK}, 1')
        def first():
            for r in range(4): em(f'v_mov_b32 {v(G+r)}, {v(M+r)}'); em(f'v_mov_b32 {v(G+4+r)}, {v(M+r)}')
            g_loads()
        def attempt():
            em.force_wait(vm=len([p for p in em.vmq if id(p) not in self.gmark]))
            g_check()
            L = em.newlabel('La'); E2 = em.newlabel('Lb')
            em(f's_cbranch_vccnz {L}')
            em.cond_begin(); g_finish(); em.cond_end()
            em(f's_branch {E2}')
            em.label(L)
            g_loads()
            em.label(E2)
        em(f's_xor_b32 {sOK}, {sRed}, 1')
        if_pending(first)
        self.ts('msg')
        side = Side(em)
        if l == 0: side.add(*self.cs_read_items(['q'], V))
        self.p1_bg(l, side)
        self.pass1(self.pl['q'], Q, side, o.fill_p1)
        self.emit(self.corr_items('q', Q, False))
        side.flush()
        if self.lin:
            self.lin = False
            em(f'v_lshlrev_b32 {v(TMP)}, 8, {vHi}')
            for i in range(3): em(f'v_sub_u32 {vTr[i]}, {vTr[i]}, {v(TMP)}')
        self.barrier()
        self.ts('qpass')
        if_pending(attempt)
        self.p1_after_q(l)
        self.emit(self.phi_items(Q, vRl, True, E))
        self.wsstore(v(Q, 4), vL16, sQst, 0); self.wsstore(v(Q + 4, 4), vL16, sQst, 0, off=1024)
        if o.rstpos == 1 and l == 0: self.emit(self.reset_items(ACC + 24, o.rst1))
        self.kt_addr()
        if not o.ts2: self.ts('qst')
        def loop():
            L = em.newlabel('Lg'); D = em.newlabel('Lgd')
            em.force_wait(vm=len([p for p in em.vmq if id(p) not in self.gmark]))
            em.label(L)
            g_check()
            em(f's_cbranch_vccz {D}')
            em.cond_begin(); g_loads(); em.force_wait(vm=0); em.cond_end()
            self.spin_tail(L)
            em.label(D)
            g_finish()
            em.force_wait(vm=1)
            em('s_mov_b64 exec, 1')
            em(f'v_mov_b32 {A0}, {sNonce}'); em(f's_add_u32 {sT2}, {sFlag}, {4*l*4096}')
            em(f'buffer_store_dword {A0}, off, {SWS}, {sT2}' + self.sc)
            em('s_mov_b64 exec, -1')
            em(f's_mov_b32 {sOK}, 0')
        if_pending(loop)
        if not o.ts2: self.ts('kvpoll')
        def cs_reduce():
            L0 = em.newlabel('Lc'); L = em.newlabel('Lc'); D = em.newlabel('Lc')
            em(f's_cmp_ge_u32 {sCsp}, 3'); em(f's_cbranch_scc1 {L0}')
            em.cond_begin()
            em(f's_lshl_b32 {sR}, {sCsp}, 7'); em(f's_add_u32 {sR}, {sR}, {sJmsg}')
            em.label(L)
            self.wsload(v(G, 4), ga, sR, 2176); self.wsload(v(G + 4, 4), ga, sR, 2176 + 8 * MSG_B)
            em(f'v_xor_b32 {A0}, {v(G)}, {tg}')
            for r in range(1, 8): em(f'v_bitop3_b32 {A0}, {v(G+r)}, {tg}, {A0} bitop3:0xbe')
            em(f'v_and_b32 {A0}, 0xff, {A0}'); em(f'v_cmp_ne_u32 vcc, 0, {A0}')
            em(f's_cbranch_vccz {D}')
            self.spin_tail(L)
            em.label(D)
            for r in (0, 2): em(f'v_pk_add_f32 {v(G+r,2)}, {v(G+r,2)}, {v(G+4+r,2)}')
            for r in range(4): em(f'v_add_f32_dpp {v(G+r)}, {v(G+r)}, {v(G+r)} row_ror:8 {DPPM}')
            em(f'v_permlane16_swap_b32 {v(G)}, {v(G+1)}'); em(f'v_permlane16_swap_b32 {v(G+2)}, {v(G+3)}')
            em(f'v_add_f32 {v(G)}, {v(G)}, {v(G+1)}'); em(f'v_add_f32 {v(G+2)}, {v(G+2)}, {v(G+3)}')
            em(f'v_permlane32_swap_b32 {v(G)}, {v(G+2)}'); em(f'v_add_f32 {v(G)}, {v(G)}, {v(G+2)}')
            em(f'v_cvt_pk_bf16_f32 {v(G+1)}, {v(G)}, {v(G)}'); em(f'v_lshlrev_b32 {v(G+1)}, 16, {v(G+1)}'); em(f'v_sub_f32 {v(G+1)}, {v(G)}, {v(G+1)}')
            em(f'v_cvt_pk_bf16_f32 {v(G)}, {v(G)}, {v(G+1)}')
            em(f'v_and_b32 {v(G+1)}, 7, {vLane}'); em(f'v_lshlrev_b32 {v(G+1)}, 4, {v(G+1)}'); em(f'v_lshrrev_b32 {v(G+2)}, 4, {vLane}'); em(f'v_lshl_add_u32 {v(G+1)}, {v(G+2)}, 2, {v(G+1)}')
            em(f's_mul_i32 {sT2}, {sJ}, 384'); em(f's_lshl_b32 {sR}, {sCsp}, 7'); em(f's_add_u32 {sT2}, {sT2}, {sR}')
            em('s_mov_b32 exec_lo, 0x00ff00ff'); em('s_mov_b32 exec_hi, 0x00ff00ff')
            self.wsstore(v(G), v(G + 1), sT2, WS_CS, width=1, sc=' sc1', tag='kt')
            em('s_mov_b64 exec, -1')
            em.cond_end()
            em.label(L0)
        def mid():
            if l == 0: cs_reduce()
            def l2w2():
                em(f'v_lshlrev_b32 {v(G)}, 7, {vLane}'); em(f's_lshr_b32 {sT2}, s2, 3'); em(f's_mul_i32 {sT2}, {sT2}, {344*128}')
                for k in range(6):
                    if k == 5: em('s_mov_b64 exec, 0xffffff')
                    em(f's_add_u32 {sT}, {sT2}, {k*8192}')
                    em(f'buffer_load_dword {v(G+1+k)}, {v(G)}, {SW2}, {sT} offen', tag='l2')
                    if o.thr2 and k >= o.thr2 - 1: em.force_wait(vm=o.thr2 - 1)
                em('s_mov_b64 exec, -1')
                em.vmq = [p for p in em.vmq if p.tag != 'l2']
            if l == 0 and o.tw2 == 1: self.only_wave(3, l2w2)
            self.p1_gap(l)
            self.only_wave(3, lambda: self.p1_loader(l, 3))
            if l == 0 and o.tw2 == 2: self.only_wave(3, l2w2)
        self.group_sync(4 * l + 0, mid=mid, bar=False, skipif=sOK, tags=None)

    def w1dma(self, p, m, tag, slot=None, voff=vD1):
        base = sW1c2 if p == 2 else sW1c0
        if p != 1 and not slot: self.rot(m, 64 * 2752, base)
        imm = (64 if p == 1 else 0) + (0 if slot is None else slot * 16 * 2752)
        self.dma(SW1, voff, sR, imm, self.w1pl[p][m], tag, nt=self.o.nt_w1, slot=slot)

    def p1_bg(self, l, side):
        em = self.em; o = self.o
        self.w1pl = [[16, 17, 18, 19, 24, 25, 26, 27], [20, 21, 22, 23, 28, 29, 30, 31], list(range(32, 40))]
        pad = ['s_nop 0'] * o.bgpad
        if l == 0:
            def res():
                t = v(MR + 16)
                em(f'v_lshrrev_b32 {t}, 2, {vLane}'); em(f's_lshl_b32 {sT2}, {sW}, 4'); em(f'v_add_u32 {t}, {sT2}, {t}'); em(f'v_lshlrev_b32 {t}, 10, {t}')
                em(f'v_and_b32 {v(MR+17)}, 3, {vLane}'); em(f'v_lshl_add_u32 {t}, {v(MR+17)}, 4, {t}')
                em(f'buffer_load_dwordx4 {a(RES,4)}, {t}, {SX}, {sOutRow} offen', tag='res')
                em(f'buffer_load_dwordx4 {a(RES+4,4)}, {t}, {SX}, {sOutRow} offen offset:64', tag='res')
            side.add(res)
            side.add(self.late_setup)
            for i in range(5): side.add(lambda i=i: self.stage_dma(SWO, i, self.stq[2 * i], self.stq[2 * i + 1], 'wo'), *pad)
            if o.rstpos == 0: side.add(*self.reset_items(ACC + 24, o.rst1))
            self.w1_todo = [4, 5, 6, 7]
        else:
            for m in range(4, 4 + o.w1_early): side.add(lambda m=m: (self.w1dma(0, m, 'w1a'), self.w1dma(1, m, 'w1a')), *pad)
            self.w1_todo = list(range(4 + o.w1_early, 8))

    def late_setup(self):
        em = self.em
        em(f's_lshl_b32 {sT2}, {sW}, 13'); em(f's_add_u32 {sT2}, {sT2}, {S_ADDR}'); em(f'v_add_u32 {vRW}, {sT2}, {vL16}')
        em(f's_lshr_b32 {sT}, {sW}, 1'); em(f's_lshl_b32 {sT2}, {sT}, 12'); em(f's_and_b32 {sR}, {sW}, 1'); em(f's_lshl_b32 {sR}, {sR}, 8')
        em(f's_add_u32 {sT2}, {sT2}, {sR}'); em(f's_add_u32 {sT2}, {sT2}, {S_ADDR}')
        em(f'v_lshl_add_u32 {vRR}, {vHi}, 10, {vP}'); em(f'v_add_u32 {vRR}, {sT2}, {vRR}')
        for m in range(8):
            em(f's_add_u32 {sXm[m]}, {sRot}, {m}'); em(f's_and_b32 {sXm[m]}, {sXm[m]}, 7'); em(f's_and_b32 {sR}, {sXm[m]}, 1')
            em(f's_lshl_b32 {sXm[m]}, {sXm[m]}, 1'); em(f's_add_u32 {sXm[m]}, {sXm[m]}, {sR}'); em(f's_lshl_b32 {sXm[m]}, {sXm[m]}, 11'); em(f's_xor_b32 {sXl[m]}, {sXm[m]}, 2048')
        for k in range(4):
            w0, w1_ = [sum(m << (5 * i) for i, m in enumerate(ORD4[c][6 * k:6 * k + 6])) for c in range(2)]
            em(f's_mov_b32 {sTab[k]}, {w0:#x}'); em(f's_cmp_eq_u32 {sT}, 0'); em(f's_cselect_b32 {sTab[k]}, {sTab[k]}, {w1_:#x}')

    def p1_after_q(self, l):
        if l == 0:
            for i in range(5, 8): self.stage_dma(SWO, i, self.stq[2 * i], self.stq[2 * i + 1], 'wo')

    def p1_gap(self, l):
        em = self.em; o = self.o
        if l == 0:
            em.wait_vm_tag('wo')
            for i in range(8): self.emit(self.stage_read_items(WOA, i, self.stq[2 * i], self.stq[2 * i + 1]))
            em.wait_lg(0)
            self.res_first()
            self.w2next = 0
            self.b1 = self.w2_batch(list(range(32, 40))[:2 * o.w2b1], 'w2a')
            for m in range(4, 4 + o.w1_gap): self.w1dma(0, m, 'w1a'); self.w1dma(1, m, 'w1a')
            self.w1_todo = list(range(4 + o.w1_gap, 8))
            if o.b1gap: self.emit(self.b1[0])

    def p1_loader(self, l, w):
        em = self.em; o = self.o
        vo = v(TMP)
        em(f'v_subrev_u32 {vo}, {w*16*2752}, {vD1}')
        for m in range(o.w1_solo):
            self.rot(m, 64 * 2752, sW1c0)
            for s in range(4):
                for p in range(2): self.dma(SW1, vo, sR, p * 64 + s * 16 * 2752, self.w1pl[p][m], 'solo', slot=s)
                if o.thr: em.force_wait(vm=o.thr)
        self.w1_todo = list(range(o.w1_solo, 4)) + [m for m in self.w1_todo if m >= 4]

    def w2_batch(self, quads, tag):
        steps = list(range(self.w2next, min(22, self.w2next + len(quads) // 2)))
        self.w2next += len(steps)
        issue = [lambda k=k, m=m: self.stage_dma(SW2, m, quads[2 * k], quads[2 * k + 1], tag) for k, m in enumerate(steps)]
        read = [lambda: self.em.wait_vm_tag(tag)] if steps else []
        for k, m in enumerate(steps): read += self.stage_read_items(W2A, m, quads[2 * k], quads[2 * k + 1])
        return issue, read

    def res_first(self):
        em = self.em
        t0, t1, t2 = v(TMP), v(TMP + 1), v(TMP + 2)
        em(f's_add_u32 {sT2}, {sWl}, {self.S}')
        em(f'v_add_u32 {t0}, {sT2}, {vL16}')
        em(f'v_and_b32 {t1}, 15, {vLane}'); em(f'v_lshlrev_b32 {t1}, 6, {t1}'); em(f'v_lshl_add_u32 {t1}, {vHi}, 5, {t1}')
        em(f'v_bfe_u32 {t2}, {vLane}, 4, 1'); em(f'v_lshl_add_u32 {t1}, {t2}, 3, {t1}'); em(f'v_add_u32 {t1}, {sT2}, {t1}')
        for h in range(2): em(f'ds_write_b128 {t0}, {a(RES+4*h,4)} offset:{h*4096}')
        em.wait_lg(0)
        for h in range(2):
            em(f'ds_read_b64 {a(RES+4*h,2)}, {t1} offset:{h*4096}'); em(f'ds_read_b64 {a(RES+4*h+2,2)}, {t1} offset:{h*4096+16}')
        em.wait_lg(0)
    def res_last_items(self, lds):
        t0, t1, t2 = v(TMP), v(TMP + 1), v(TMP + 2)
        it = [f'v_and_b32 {t0}, 15, {vLane}', f'v_mul_u32_u24 {t0}, 144, {t0}', f'v_lshl_add_u32 {t0}, {vHi}, 5, {t0}',
              f'v_bfe_u32 {t1}, {vLane}, 4, 1', f'v_lshl_add_u32 {t0}, {t1}, 3, {t0}',
              f's_mul_i32 {sT2}, {sW}, {16*144}', f's_add_u32 {sT2}, {sT2}, {lds}', f'v_add_u32 {t0}, {sT2}, {t0}',
              f'v_lshrrev_b32 {t1}, 3, {vLane}', f'v_mul_u32_u24 {t1}, 144, {t1}', f'v_and_b32 {t2}, 7, {vLane}', f'v_lshl_add_u32 {t1}, {t2}, 4, {t1}',
              f's_mul_i32 {sT2}, {sW}, {8*144}', f's_add_u32 {sT2}, {sT2}, {lds}', f'v_add_u32 {t1}, {sT2}, {t1}']
        for c in range(2):
            it += [f'ds_write_b64 {t0}, {a(RES+4*c,2)} offset:{c*64}', f'ds_write_b64 {t0}, {a(RES+4*c+2,2)} offset:{c*64+16}']
        it2 = [f'ds_read_b128 {a(RES+4*h,4)}, {t1} offset:{h*32*144}' for h in range(2)]
        return it, it2
    def kt_addr(self):
        em = self.em
        t0, t1, t2 = v(TMP + 1), v(TMP + 2), v(TMP + 3)
        em(f'v_and_b32 {t0}, 15, {vLane}'); em(f'v_lshlrev_b32 {t0}, 4, {t0}'); em(f'v_lshl_add_u32 {t0}, {vHi}, 8, {t0}')
        em(f'v_lshlrev_b32 {t1}, 4, {vHi}'); em(f'v_add_u32 {t1}, 512, {t1}'); em(f'v_and_b32 {t2}, 16, {vLane}'); em(f'v_cmp_ne_u32 vcc, 0, {t2}')
        em(f'v_cndmask_b32 {t0}, {t0}, {t1}, vcc'); em(f's_mul_i32 {sT2}, {sW}, 544'); em(f'v_add_u32 {v(vKT)}, {sT2}, {t0}')
    def final_addr_items(self):
        t0, t1, t2 = v(20), v(21), v(MR)
        it = [f's_lshl_b32 {sT2}, {sW}, 13', f's_add_u32 {sT2}, {sT2}, {self.S}', f'v_add_u32 {v(FW)}, {sT2}, {vL16}']
        it += [f'v_xor_b32 {v(FW+i)}, {64*i}, {v(FW)}' for i in range(1, 4)]
        it += [f'v_and_b32 {t1}, 7, {vLane}', f's_lshl_b32 {sT2}, {sW}, 3', f'v_add_u32 {t0}, {sT2}, {t1}',
               f'v_lshrrev_b32 {t2}, 3, {vLane}', f'v_lshlrev_b32 {v(FB)}, 2, {t2}', f'v_lshlrev_b32 {v(FS)}, 9, {t2}', f'v_lshl_add_u32 {v(FS)}, {t0}, 4, {v(FS)}',
               f's_lshl_b32 {sT2}, {sW}, 3', f'v_add_u32 {t0}, {sT2}, {t2}',
               f'v_lshlrev_b32 {v(FO)}, 10, {t0}', f'v_lshl_add_u32 {v(FO)}, {t1}, 4, {v(FO)}',
               f'v_and_b32 {t2}, 3, {vLane}', f'v_lshlrev_b32 {t2}, 2, {t2}', f'v_xor_b32 {t2}, {t2}, {t0}', f'v_lshlrev_b32 {t2}, 4, {t2}',
               f'v_lshl_add_u32 {v(FR)}, {t1}, 10, {t2}', f'v_add_u32 {v(FR)}, {self.S:#x}, {v(FR)}']
        return it

    def unpack_items(self, half, U):
        it = [f'v_accvgpr_read_b32 {v(U+2*r+1)}, {a(RES+4*half+r)}' for r in range(4)]
        for r in range(4):
            it += [f'v_lshlrev_b32 {v(U+2*r)}, 16, {v(U+2*r+1)}', f'v_and_b32 {v(U+2*r+1)}, 0xffff0000, {v(U+2*r+1)}']
        return it
    def reduce_items(self, half, acc0, acc1, R, U, rs, xoff, sti, final, unpack, after_store=()):
        em = self.em
        it = []
        for c in range(8):
            src = v((acc0 if c < 4 else acc1) + 4 * (c & 3), 4)
            it.append(f'ds_write_b128 {v(FW + (c & 3)) if final else vRW}, {src} offset:{c*1024}')
        it.append(self.barrier)
        o2 = 512 if final else 1024; rd = v(FR) if final else vRR
        for w in range(4):
            it.append(f'ds_read_b128 {v(R+8*w,4)}, {rd} offset:{w*8192}'); it.append(f'ds_read_b128 {v(R+8*w+4,4)}, {rd} offset:{w*8192+o2}')
        if unpack: it += self.unpack_items(half, U)
        add = lambda d, s_: [f'v_pk_add_f32 {v(d+r,2)}, {v(d+r,2)}, {v(s_+r,2)}' for r in range(0, 8, 2)]
        if rs is None: it += add(R, U)
        it += add(R, R + 8) + add(R + 16, R + 24) + add(R, R + 16)
        if rs is not None: it += [f'v_pk_fma_f32 {v(R+r,2)}, {v(R+r,2)}, {v(rs,2)}, {v(U+r,2)} op_sel_hi:[1,0,1]' for r in range(0, 8, 2)]
        P = R + 8
        for r in range(4): it.append(f'v_cvt_pk_bf16_f32 {v(P+r)}, {v(R+2*r)}, {v(R+2*r+1)}')
        if final:
            def st():
                em(f's_add_u32 {sT}, {sOutRow}, {half*32768}')
                em(f'buffer_store_dwordx4 {v(P,4)}, {v(FO)}, {SOUT}, {sT} offen' + self.o.outsc, tag='st')
            it.append(st)
            return it
        it += [f'v_accvgpr_write_b32 {a(RES+4*half)}, {v(P)}', f'v_and_b32 {v(P)}, -2, {v(P)}' if sti == 1 else f'v_or_b32 {v(P)}, 1, {v(P)}']
        def stx():
            em(f's_and_b32 {sT}, {sJ}, 1'); em(f's_xor_b32 {sT}, {sT}, {half}'); em(f's_lshl_b32 {sT}, {sT}, 11'); em(f's_add_u32 {sT}, {sT}, {sXst}')
            em(f'buffer_store_dwordx4 {v(P,4)}, {vP}, {SWS}, {sT} offen' + self.sc, tag='st')
        it.append(stx)
        it += list(after_store)
        S, Q = AUX, AUX + 2
        if half == 0:
            it += [f'v_pk_add_f32 {v(S,2)}, {v(R,2)}, {v(R+2,2)}', f'v_pk_mul_f32 {v(Q,2)}, {v(R,2)}, {v(R,2)}', f'v_pk_fma_f32 {v(Q,2)}, {v(R+2,2)}, {v(R+2,2)}, {v(Q,2)}']
        for r in ((4, 6) if half == 0 else (0, 2, 4, 6)):
            it += [f'v_pk_add_f32 {v(S,2)}, {v(S,2)}, {v(R+r,2)}', f'v_pk_fma_f32 {v(Q,2)}, {v(R+r,2)}, {v(R+r,2)}, {v(Q,2)}']
        it += [f'v_accvgpr_write_b32 {a(RES+4*half+r)}, {v(P+r)}' for r in range(1, 4)]
        if half == 1:
            T = v(S + 1)
            it += [f'v_add_f32 {v(S)}, {v(S)}, {v(S+1)}', f'v_add_f32 {v(Q)}, {v(Q)}, {v(Q+1)}', f'v_and_b32 {v(Q+1)}, 512, {vP}', f'v_add_u32 {v(Q+1)}, {v(Q+1)}, {vP}',
                   f'v_permlane16_swap_b32 {v(S)}, {v(Q)}', f'v_add_f32 {v(S)}, {v(S)}, {v(Q)}', f'v_mov_b32 {T}, {v(S)}', f'v_permlane32_swap_b32 {v(S)}, {T}', f'v_add_f32 {v(S)}, {v(S)}, {T}',
                   f'v_or_b32 {v(S)}, 1, {v(S)}']
            def st2():
                em('s_mov_b32 exec_hi, 0')
                self.wsstore(v(S), v(Q + 1), sStst, sti * 16 * 8192, width=1)
                em('s_mov_b64 exec, -1')
            it.append(st2)
        return it

    def two_halves(self, mfs, A, rs, xoff, sti, pre_wait=None):
        em = self.em; o = self.o
        r0 = self.reduce_items(0, A[0][0], A[1][0], MR, BB, rs, xoff, sti, False, False)
        r1 = self.reduce_items(1, A[0][1], A[1][1], MR, BB + 8, rs, xoff, sti, False, False)
        W0, RD0, V0 = r0[:8], r0[9:17], r0[17:]
        W1, RD1, V1 = r1[:8], r1[9:17], r1[17:]
        fill = self.unpack_items(0, BB) + self.unpack_items(1, BB + 8)
        mfs = list(mfs)
        nA = len(mfs) - o.mfB
        wq = list(W0)
        for k in range(nA):
            mfs.pop(0)()
            if wq and (k * 8 >= (8 - len(wq)) * nA - 4): em(wq.pop(0))
            for t in fill[:3]: em(t)
            fill = fill[3:]
        self.emit(wq + fill)
        self.barrier()
        for k, t in enumerate(RD0):
            em(t)
            if k % 3 == 1 and mfs: mfs.pop(0)()
        self.emit(mfs)
        na = 12 if rs is None else 8
        self.emit(V0[:na]); V0 = V0[na:]
        if pre_wait: pre_wait()
        self.barrier()
        self.ts('h0')
        pf = [lambda: self.x_prefetch(xoff, 0, 0)] + [lambda i=i: self.xld(i) for i in range(o.pre)]
        n0 = o.pf0
        for k, t in enumerate(W1):
            em(t)
            self.emit(V0[:4]); V0 = V0[4:]
            if k >= 8 - n0: self.emit(pf[:2 if len(pf) == o.pre + 1 else 1]); pf = pf[2 if len(pf) == o.pre + 1 else 1:]
        self.emit(V0)
        self.barrier()
        self.emit(RD1)
        self.emit(pf[:o.pf1 + (1 if len(pf) == o.pre + 1 else 0)]); pf = pf[o.pf1 + (1 if len(pf) == o.pre + 1 else 0):]
        ks = [k for k, t in enumerate(V1) if callable(t)][0]
        self.emit(V1[:ks + 1]); V1 = V1[ks + 1:]
        while pf or V1:
            self.emit(V1[:3]); V1 = V1[3:]
            self.emit(pf[:1]); pf = pf[1:]

    def p2(self, l):
        em = self.em; o = self.o
        KT, QF = AF, AF + 32
        A = [[ACC, ACC + 32], [ACC + 16, 232]]
        DB = [MR, MR + 16, BB]
        def rot2(i, stride, base):
            em(f's_add_u32 {sR}, {sRot2}, {i}'); em(f's_and_b32 {sR}, {sR}, 7'); em(f's_mul_i32 {sR}, {sR}, {stride}')
            if base: em(f's_add_u32 {sR}, {sR}, {base}')
        KB = lambda i: (ACC + 32 + 4 * i) if i < 4 else (232 + 4 * (i - 4))
        KA = lambda i: KT + 4 * i
        def ldk(i, B=KA): rot2(i, 2176, None); self.wsload(v(B(i), 4), v(vKT), sR, WS_KT + l * 0x8000, tag='K')
        def ldq(n): rot2(n % 8, 4096, sQR); self.wsload(v(QF + 4 * n, 4), vL16, sR, (n // 8) * 32768, tag='A')
        ck = v(TMP + 2)
        def kchk(B):
            em(f'v_max_u32 {ck}, {v(B(0))}, {v(B(0)+1)}')
            for i in range(1, 16): em(f'v_max3_u32 {ck}, {v(B(i//2)+2*(i%2))}, {v(B(i//2)+2*(i%2)+1)}, {ck}')
            em(f'v_cmp_eq_u32 vcc, -1, {ck}')
        L = em.newlabel('Lk'); D = em.newlabel('Lkd'); C = em.newlabel('Lkc')
        if o.kdual:
            for i in range(8): ldk(i)
            for n in range(16): ldq(n)
            for i in range(8): ldk(i, KB)
            em.wait_vm(8)
            em.vmq = []
            em.label(L)
            kchk(KA); em(f's_cbranch_vccz {D}')
            for i in range(8): ldk(i)
            em.force_wait(vm=8); em.vmq = []
            kchk(KB); em(f's_cbranch_vccz {C}')
            for i in range(8): ldk(i, KB)
            em.force_wait(vm=8); em.vmq = []
            self.spin_tail(L)
            em.label(C)
            for r in range(0, 32, 2): em(f'v_pk_mov_b32 {v(KT+r,2)}, {v(KB(r//4)+r%4,2)}, {v(KB(r//4)+r%4,2)} op_sel:[0,1]')
            em.label(D)
        else:
            if o.kfirst:
                for i in range(8): ldk(i)
            for n in range(16): ldq(n)
            if not o.kfirst:
                for i in range(8): ldk(i)
            em.label(L)
            kchk(KA)
            em(f's_cbranch_vccz {D}')
            em.cond_begin()
            for i in range(8): ldk(i)
            em.force_wait(vm=0)
            em.cond_end()
            self.spin_tail(L)
            em.label(D)
        self.ts('kt')
        side = Side(em)
        def attn(n): em(f'{MF} {v(DB[n%3],16)}, {v(KT+4*(n%8),4)}, {v(QF+4*n,4)}, 0')
        def post(n):
            D = DB[n % 3]; O = QF + 4 * n; rc = v(D + 8)
            it = [f'v_add_f32 {rc}, {s1em6}, {rc}', f'v_rcp_f32 {rc}, {rc}']
            it += [f'v_mul_f32 {v(D+r)}, {v(D+r)}, {rc}' for r in range(8)]
            it += [f'v_cvt_pk_bf16_f32 {v(O+r)}, {v(D+2*r)}, {v(D+2*r+1)}' for r in range(4)]
            return it
        def wo(n, c):
            h, i = divmod(n, 8)
            cc = v(A[h][c], 16)
            em(f'{MF} {cc}, {a(WOA + i*8 + c*4, 4)}, {v(QF+4*n,4)}, ' + ('0' if i == 0 else cc))
        attn(0); attn(1)
        self.p2_bg(l, side)
        side.run(2)
        self.emit(post(0))
        E1 = o.early1
        for n in range(16):
            nxt = post(n + 1) if n + 1 < 16 else []
            if n + 2 < 16: attn(n + 2)
            if nxt: em(nxt[0]); em(nxt[1])
            side.clk(o.gap2)
            for t in nxt[2:8]: em(t)
            wo(n, 0)
            for t in nxt[8:11]: em(t)
            if n < E1: wo(n, 1)
            for t in nxt[11:]: em(t)
        side.flush()
        if o.kdual:
            assert E1 == 0
            em.force_wait(vm=len(em.vmq))
        self.ts('p2loop')
        xoff = 0; sti = 2 * l
        pre = (self.b1[1] + [self.barrier]) if l == 0 else []
        self.emit(pre)
        pw = (lambda: em.force_wait(vm=0)) if (l == 0 and 'h' not in o.rst1) else None
        self.two_halves([lambda n=n: wo(n, 1) for n in range(E1, 16)], A, None, xoff, sti, pw)
        self.p2_tail(l)

    def p2_bg(self, l, side):
        em = self.em
        if self.o.retouch: side.add(lambda: self.retouch(0, v(254), v(254)))
        if l == 0:
            if 'h' not in self.o.rst1: side.add(*self.reset_items(248, 'h'))
            side.add(lambda: self.cs_loads(em))
            if not self.o.b1gap: side.add(*self.b1[0])
        for m in self.w1_todo: side.add(lambda m=m: (self.w1dma(0, m, 'w1a'), self.w1dma(1, m, 'w1a')))
        if l == 1:
            for m in range(8): side.add(lambda m=m: self.w1dma(2, m, 'w1a'))
    def retouch(self, off, vt, dst):
        em = self.em
        em(f'v_lshlrev_b32 {vt}, 7, {vLane}')
        em(f's_and_b32 {sT2}, {sW}, 1'); em(f's_mul_i32 {sT2}, {sT2}, 1792'); em(f's_add_u32 {sT2}, {sT2}, {sXst}'); em(f's_add_u32 {sT2}, {sT2}, {off}')
        em('s_mov_b64 exec, 0xffff')
        em(f'buffer_load_dword {dst}, {vt}, {SWS}, {sT2} offen sc1', tag='touch')
        em('s_mov_b64 exec, -1')
    def cs_loads(self, e):
        e(f'v_and_b32 {v(255)}, 31, {vLane}'); e(f'v_lshlrev_b32 {v(255)}, 2, {v(255)}'); e(f's_mul_i32 {sFx}, {sJ}, 384'); e(f's_add_u32 {sFx}, {sFx}, {WS_CS}')
        for p in range(3): e(f'buffer_load_dword {CS[p]}, {v(255)}, {SWS}, {sFx} offen offset:{p*128} sc1', tag='cs')

    def p2_tail(self, l):
        em = self.em; o = self.o
        if l == 0: self.check([CS[0], CS[1], CS[2], CS[2]], self.cs_loads, v(TMP))
        em.wait_vm_tag('w1a')
        self.barrier()
        if l == 0:
            for m in range(8): self.w1dma(2, m, 'w1c')
        self.ts(f'end{4*l+1}')

    def hld(self, n, final, e=None):
        e = e or self.em
        st, h = (n % 22, n // 22) if final else (n // 2, n % 2)
        if st == 21: so = sLim4
        else: self.tab4(st, sFx, 12, e); so = sFx
        r = e(f'buffer_load_dwordx4 {v(AF + 4 * (n % 24), 4)}, {v(32 + h)}, {SWS}, {so} offen sc1', tag='A')
        if r is not None: self.ldidx[id(r)] = n
    def p3(self, l):
        em = self.em; o = self.o
        ld, chk = self.a_loader(o.pre, 2 * l, sTxn)
        side = Side(em)
        side.add(*self.aux_const_items())
        if l == 1: rl_w, rl_r = self.res_last_items(8 * 4096); side.add(*rl_w)
        def ld2(i):
            ld(i)
            if i == o.statstep: side.add(*self.stats_T_items(False, 2 * l))
            if l == 0 and i == 26:
                side.add(self.barrier)
                self.b2 = self.w2_batch(list(range(16, 24))[:2 * o.w2b2], 'w2b')
                side.add(*self.b2[0])
        self.pass2(XORD, self.w1pl[:2], [ACC, ACC + 16], False, side, lambda i: 1 if i < o.statstep else o.fill2, loader=ld2, extra=chk)
        side.flush()
        self.emit(self.corr_items(0, ACC, False)); self.emit(self.corr_items(1, ACC + 16, False))
        if l == 0: em.wait_vm_tag('w1c')
        self.barrier()
        if l == 1: self.emit(rl_r)
        self.ts('p3a')
        def epi(p):
            A = ACC + 16 * p
            it = [f'v_cvt_pk_bf16_f32 {v(A+r)}, {v(A+2*r)}, {v(A+2*r+1)}' for r in range(8)]
            it += [f'v_pk_max_i16 {v(A+r)}, {v(A+r)}, 0' for r in range(8)]
            if l == 0: it += [f'v_or_b32 {v(A+r)}, 0x80000000, {v(A+r)}' for r in (0, 4)]
            return it
        def st(p):
            A = ACC + 16 * p
            self.wsstore(v(A, 4), vL16, sHks, p * 2048); self.wsstore(v(A + 4, 4), vL16, sHks, p * 2048, off=1024)
        side.add(*(epi(0) + [lambda: st(0)] + epi(1) + [lambda: st(1)]))
        side.add(f'v_add_u32 {v(32)}, {sHR}, {vL16}', f'v_add_u32 {v(33)}, {H_T}, {v(32)}')
        if l == 0:
            self.b3 = self.w2_batch(list(range(24, 32))[:2 * o.w2b3], 'w2c')
            side.add(*self.b3[0])
            side.add(*self.b2[1]); side.add(lambda: em.wait_lg(0))
            self.b3b = self.w2_batch(list(range(16, 24))[:2 * o.w2b3b], 'w2e')
            side.add(*self.b3b[0])
        else: side.add(*self.final_addr_items())
        def fill(ks):
            if ks == o.hpf: side.flush()
            if o.hpf <= ks < o.hpf + o.pre4: self.hld(ks - o.hpf, l == 1)
            return o.fill_p3 if ks >= 2 else 0
        assert o.hpf >= o.pre4 and o.hpf + o.pre4 <= 32
        self.pass1(self.w1pl[2], ACC + 32, side, fill)
        self.emit(self.corr_items(2, ACC + 32, False))
        side.flush()
        self.ts('p3b')
        if l == 0:
            self.barrier()
            self.b4 = self.w2_batch(list(range(32, 40)) + list(range(24, 32)) + list(range(16, 24)), 'w2d')
            self.emit(self.b4[0][:4])
        self.emit(epi(2))
        L = em.newlabel('Lh3')
        em(f's_cmp_ge_u32 {sJ}, 11'); em(f's_cbranch_scc1 {L}')
        em.cond_begin(); st(2); em.cond_end()
        em.label(L)
        if l == 0:
            self.emit(self.b3[1]); self.emit(self.b3b[1])
            if len(self.b4[0]) > 4: em.wait_lg(0); self.emit(self.b4[0][4:])
            assert self.w2next == 22
        self.ts(f'end{4*l+2}')

    def p4(self, l):
        em = self.em; o = self.o
        final = l == 1
        A = [[ACC, ACC + 16], [ACC + 32, 232]] if final else [[ACC, ACC + 32], [ACC + 16, 232]]
        side = Side(em)
        S, Q = v(AUX), v(AUX + 1); RS = [TMP, CB]
        def stl(e):
            e(f's_add_u32 {sFx}, {sStR if final else sStM}, {2 * l * 16 * 8192}')
            e(f'buffer_load_dwordx4 {v(AUX,4)}, {v(FS) if final else vP}, {SWS}, {sFx} offen sc1', tag='stat')
        stl(em)
        if o.retouch and not final: self.retouch(X2OFF, v(254), v(254))
        side.add(lambda: self.check([v(AUX + r) for r in range(4)], stl, v(CB + 2), kind='x', tag=sTxn))
        side.add(f'v_add_f32 {S}, {S}, {v(AUX+1)}', f'v_add_f32 {v(AUX+2)}, {v(AUX+2)}, {v(AUX+3)}', f'v_add_f32 {S}, {S}, {v(AUX+2)}')
        if final:
            side.add(f'v_add_f32_dpp {S}, {S}, {S} row_ror:8 {DPPM}', f'v_mov_b32 {Q}, {S}', f'v_permlane16_swap_b32 {S}, {Q}')
        else:
            side.add(f'v_mov_b32 {Q}, {S}', f'v_permlane16_swap_b32 {S}, {Q}', f'v_add_f32 {S}, {S}, {Q}', f'v_mov_b32 {Q}, {S}', f'v_permlane32_swap_b32 {S}, {Q}')
        side.add(f'v_mul_f32 {S}, {sInv}, {S}', f'v_mul_f32 {Q}, {sInv}, {Q}', f'v_fma_f32 {Q}, -{S}, {S}, {Q}', f'v_max_f32 {Q}, 0, {Q}',
                 f'v_add_f32 {Q}, {sEps}, {Q}', f'v_rsq_f32 {v(RS[1])}, {Q}')
        if final:
            side.add(f'v_mov_b32 {v(CB+2)}, {v(RS[1])}', f'v_permlane32_swap_b32 {v(CB+2)}, {v(RS[1])}',
                     f'ds_bpermute_b32 {v(CB+2)}, {v(FB)}, {v(CB+2)}', f'ds_bpermute_b32 {v(RS[1])}, {v(FB)}, {v(RS[1])}')
            RS = [CB + 2, CB]
        else: RS = [CB, CB]
        b4 = list(self.b4[1]) if l == 0 else []
        first4 = 2 * (22 - (len(b4) - 1) // 2) if b4 else 99
        if l == 0: side.add(self.barrier)
        dec = (lambda n: (n % 22, n // 22)) if final else (lambda n: (n // 2, n % 2))
        def mf(n, c):
            st, h = dec(n)
            cc = v(A[h][c], 16)
            em(f'{MF} {cc}, {a(W2A + st*8 + c*4, 4)}, {v(AF + 4 * (n % 24), 4)}, ' + ('0' if st == 0 else cc))
        def chk(n):
            if n % 2: return None
            return self.check([v(AF + 4 * (n % 24)), v(AF + 4 * ((n + 1) % 24))], lambda e: (self.hld(n, final, e), self.hld(n + 1, final, e)), v(38), split=True,
                              kind='h', tag=sTh if final else sThn, again=lambda e, p: self.hld(self.ldidx[id(p)], final, e))
        T4 = o.tail4 if final else o.tail4n
        br = chk(0)
        for n in range(44):
            assert n < first4 or not b4
            if br: br()
            both = n < 44 - T4
            mf(n, 0)
            if n + o.pre4 < 44: self.hld(n + o.pre4, final)
            if n + 1 < 44: br = chk(n + 1)
            if b4 and n >= o.b4start: self.emit([b4.pop(0)])
            elif n >= 8: side.clk(4 if both else o.gap4)
            if both:
                mf(n, 1)
                if n >= 8 and not b4: side.clk(o.gap4)
            if final and n == 22:
                side.add(*self.reduce_items(0, A[0][0], A[0][1], MR, ACC, RS[0], 0, 0, True, True))
                side.add(*self.unpack_items(1, ACC + 16)); side.add(self.barrier)
        side.flush()
        self.ts('p4loop')
        if final:
            tail = self.reduce_items(1, A[1][0], A[1][1], MR, ACC + 16, RS[1], 0, 0, True, False)
            for k, n in enumerate(range(44 - T4, 44)):
                mf(n, 1)
                if k >= 1: em(tail.pop(0))
            self.emit(tail)
            return
        self.two_halves([lambda n=n: mf(n, 1) for n in range(44 - T4, 44)], A, RS[0], X2OFF, 1)
        self.ts('end3')

    def p5_start(self):
        em = self.em; o = self.o
        ld0, chk = self.a_loader(o.pre, 1, sTx)
        side = Side(em)
        side.add(*self.aux_const_items())
        side.add(f'v_subrev_u32 {vRW}, {S_ADDR:#x}, {vRW}', f'v_subrev_u32 {vRR}, {S_ADDR:#x}, {vRR}')
        self.S = 0
        def ld(i):
            ld0(i)
            if i == 12: side.add(self.barrier)
            if i == o.statstep:
                side.add(*self.stats_T_items(True, 1))
                side.add(f'{MF} {v(MR,16)}, {v(AUX,4)}, {v(CB+2,4)}, 0')
            if i + o.pre >= 32 and i + o.pre < 40: self.qkv_dma('q', i + o.pre - 32, 'q')
        self.pass2(XORD, [self.pl['k'], self.pl['v']], [ACC, ACC + 16], True, side, lambda i: 1 if i < o.statstep else o.fill2, loader=ld, extra=chk)
        side.flush()
        self.emit(self.corr_items('k', ACC, True)); self.emit(self.corr_items('v', ACC + 16, True))
        self.ts('p5a')

    def finish(self):
        em = self.em
        L = em.newlabel('Le')
        em(f's_or_b32 {sT}, s2, {sW}'); em(f's_cmp_lg_u32 {sT}, 0'); em(f's_cbranch_scc1 {L}')
        em.cond_begin()
        em('s_mov_b64 exec, 1'); em(f'v_mov_b32 v24, {sNonce}'); em(f'buffer_store_dword v24, off, {SWS}, 0 sc1'); em('s_mov_b64 exec, -1')
        em.cond_end()
        em.label(L)
        if self.o.pad:
            L = em.newlabel('Lpad')
            em.label(L)
            em('s_memrealtime s[0:1]'); em.force_wait(lg=0); em('s_sub_u32 s0, s0, s3'); em(f's_cmp_lt_u32 s0, {self.o.pad}'); em(f's_cbranch_scc1 {L}')
        if self.o.ts:
            self.ts('end')
            em('s_memrealtime s[86:87]'); em.force_wait(lg=0); em('v_writelane_b32 v39, s86, 63')
            em(f's_lshl_b32 {sT}, s2, 2'); em(f's_add_u32 {sT}, {sT}, {sW}'); em(f's_lshl_b32 {sT}, {sT}, 8'); em(f's_add_u32 {sT}, {sT}, {WS_DBG}')
            em(f'v_lshlrev_b32 v24, 2, {vLane}')
            em(f'buffer_store_dword v39, v24, {SWS}, {sT} offen')
            if self.o.dbg:
                L = em.newlabel('Ld')
                em(f's_or_b32 {sT}, s2, {sW}'); em(f's_cmp_lg_u32 {sT}, 0'); em(f's_cbranch_scc1 {L}')
                em('s_memrealtime s[0:1]'); em.force_wait(lg=0); em('s_sub_u32 s0, s0, s3')
                em('v_readlane_b32 s1, v39, 0'); em('s_nop 3'); em('v_subrev_u32 v39, s1, v39'); em('v_writelane_b32 v39, s0, 0')
                em('v_mul_u32_u24 v25, 3, v0'); em('v_lshlrev_b32 v25, 2, v25'); em('ds_bpermute_b32 v26, v25, v39'); em.force_wait(lg=0)
                em('s_mov_b64 exec, 0xffff')
                em('global_store_dword v24, v26, s[100:101]')
                em.label(L)
        em('s_endpgm')
        em.out.extend(self.fixes); self.fixes = []

    def body(self, sc):
        self.ncnt = 0; self.ldidx = {}; self.fixes = []; self.sc = sc; self.swin = None; self.lin = True; self.S = S_ADDR
        seq = [lambda: self.p1_rest(0), lambda: self.p2(0), lambda: self.p3(0), lambda: self.p4(0),
               lambda: (self.p5_start(), self.p1_rest(1)), lambda: self.p2(1), lambda: self.p3(1), lambda: self.p4(1)]
        for i, f in enumerate(seq):
            self.em.comment(f'---------------- phase {i+1} ({"slow" if sc else "fast"}) ----------------')
            f()
            if self.o.stop == i + 1: break
        self.finish()

    def build(self):
        em = self.em
        self.sc = ''
        self.prologue()
        self.p1_start()
        if self.o.force_slow: em('s_branch L_slow_tramp')
        em('s_cbranch_vccz L_fast')
        em.label('L_slow_tramp')
        em('s_getpc_b64 s[86:87]'); em.label('L_pc0')
        em('s_add_u32 s86, s86, L_slow-L_pc0'); em('s_addc_u32 s87, s87, 0'); em('s_setpc_b64 s[86:87]')
        em.label('L_end'); em('s_endpgm')
        em.label('L_fast')
        snap = (list(em.vmq), list(em.lgq), self.nts, list(em.hist))
        self.body('')
        em.label('L_slow')
        em.vmq, em.lgq, self.nts, em.hist = list(snap[0]), list(snap[1]), snap[2], list(snap[3])
        self.body(' sc1')
        hdr = open('cdna_kernels/' + NAME + '.s.ref').read().split('; Override launch')[0]
        s = hdr + '; @launch grid=(256,1,1) block=(256,1,1) lds=163840\n'
        s += '.amdgcn_target "amdgcn-amd-amdhsa--gfx950"\n.text\n'
        s += f'.globl {NAME}_kernel\n.p2align 8\n.type {NAME}_kernel,@function\n{NAME}_kernel:\n'
        s += em.text().replace('    ', ' ').replace(' offset:0 ', ' ').replace(', ', ',')
        s += f""".section .rodata,"a"
.p2align 6
.amdhsa_kernel {NAME}_kernel
  .amdhsa_next_free_vgpr 512
  .amdhsa_next_free_sgpr 102
  .amdhsa_accum_offset 256
  .amdhsa_group_segment_fixed_size 0
  .amdhsa_kernarg_size 72
  .amdhsa_user_sgpr_count 2
  .amdhsa_user_sgpr_kernarg_segment_ptr 1
  .amdhsa_system_sgpr_workgroup_id_x 1
  .amdhsa_float_denorm_mode_32 3
.end_amdhsa_kernel
"""
        return s

def main():
    ap = argparse.ArgumentParser()
    ap.add_argument('-o', default='k.s')
    ap.add_argument('--ts', action='store_true')
    ap.add_argument('--dbg', action='store_true')
    ap.add_argument('--pad', type=int, default=0)
    ap.add_argument('--ts2', action='store_true')
    ap.add_argument('--sync', default='A')
    ap.add_argument('--pk2', type=int, default=0)
    ap.add_argument('--tlb', type=int, default=1)
    ap.add_argument('--par', type=int, default=1)
    ap.add_argument('--pk4', type=int, default=0)
    ap.add_argument('--chkpos', type=int, default=0)
    ap.add_argument('--rstpos', type=int, default=1)
    ap.add_argument('--nochk', type=int, default=0)
    ap.add_argument('--xord', type=int, default=1)
    ap.add_argument('--retouch', type=int, default=0)
    ap.add_argument('--statstep', type=int, default=19)
    ap.add_argument('--tw2', type=int, default=0)
    ap.add_argument('--thr2', type=int, default=2)
    ap.add_argument('--kdual', type=int, default=0)
    ap.add_argument('--fill2', type=int, default=2)
    ap.add_argument('--rst1', default='xh')
    ap.add_argument('--qsched', default='66667777')
    ap.add_argument('--tq', type=int, default=0)
    ap.add_argument('--cgap', type=int, default=2)
    ap.add_argument('--ownpos', type=int, default=2)
    ap.add_argument('--mfB', type=int, default=3)
    ap.add_argument('--pf0', type=int, default=0)
    ap.add_argument('--pf1', type=int, default=0)
    ap.add_argument('--fixmode', type=int, default=1)
    ap.add_argument('--stop', type=int, default=0)
    ap.add_argument('--spin', type=int, default=200000)
    ap.add_argument('--pre', type=int, default=11)
    ap.add_argument('--pre4', type=int, default=10)
    ap.add_argument('--pre2', type=int, default=16)
    ap.add_argument('--gap2', type=int, default=12)
    ap.add_argument('--gap4', type=int, default=24)
    ap.add_argument('--tail4', type=int, default=4)
    ap.add_argument('--rot2', type=int, default=1)
    ap.add_argument('--prewrite', type=int, default=1)
    ap.add_argument('--tw', type=int, default=5)
    ap.add_argument('--gstep', type=int, default=22)
    ap.add_argument('--thr', type=int, default=6)
    ap.add_argument('--w1_solo', type=int, default=2)
    ap.add_argument('--fill_p1', type=int, default=2)
    ap.add_argument('--fill_p2', type=int, default=3)
    ap.add_argument('--fill_p3', type=int, default=3)
    ap.add_argument('--fill_p4', type=int, default=3)
    ap.add_argument('--w1_early', type=int, default=4)
    ap.add_argument('--b4start', type=int, default=4)
    ap.add_argument('--w2b1', type=int, default=4)
    ap.add_argument('--w2b2', type=int, default=4)
    ap.add_argument('--w2b3', type=int, default=4)
    ap.add_argument('--w2b3b', type=int, default=4)
    ap.add_argument('--w1_gap', type=int, default=2)
    ap.add_argument('--b1gap', type=int, default=1)
    ap.add_argument('--bgpad', type=int, default=3)
    ap.add_argument('--p2early', type=int, default=0)
    ap.add_argument('--rot', type=int, default=1)
    ap.add_argument('--kv_early', type=int, default=4)
    ap.add_argument('--nt_stage', action='store_true')
    ap.add_argument('--nt_w1', action='store_true')
    ap.add_argument('--codepf', type=int, default=1)
    ap.add_argument('--outsc', default='sc1')
    ap.add_argument('--kfirst', type=int, default=1)
    ap.add_argument('--early1', type=int, default=0)
    ap.add_argument('--gap2b', type=int, default=40)
    ap.add_argument('--tail4n', type=int, default=16)
    ap.add_argument('--hpf', type=int, default=20)
    ap.add_argument('--force_slow', action='store_true')
    o = ap.parse_args()
    if o.outsc: o.outsc = ' ' + o.outsc
    if not o.xord: XORD[:] = list(range(32))
    g = Gen(o)
    s = g.build()
    open(o.o, 'w').write(s)
    if o.ts:
        import json; json.dump(g.tsnames, open(o.o + '.ts.json', 'w'))
    print(f'wrote {o.o}: {g.em.ninstr} instrs, {g.em.nops} nop states, {len(s)} bytes')
if __name__ == '__main__': main()
```

```python
import sys, struct, argparse
from emit import Em

NAME = "interleave_layers__linear_attn_block__dense_activation_relu__prompt"
def f2u(x): return struct.unpack('<I', struct.pack('<f', x))[0]

WS_EPOCH = 0
WS_HELLO = 1024
WS_FLAG = 4096
WS_MSG = 0x10000
WS_KT = 0x150000
WS_CS = 0x160000
WS_ST = 0x170000
WS_X = 0x200000
X2OFF = 0
WS_Q = 0x400000
WS_H = 0x600000
WS_DBG = 0x2000000
WS_SIZE = 0x4000000
MSG_B = 2560; KT_B = 17408; ACT_B = 131072; H_T = 86 * 1024; H_B = 4 * H_T
NONCE_K = 0x9E3779B1

sW, sG, sJ, sNonce = 's4', 's5', 's6', 's7'
SX, SQKV, SWO, SW1, SW2, SOUT, SWS = 's[8:11]', 's[12:15]', 's[16:19]', 's[20:23]', 's[24:27]', 's[28:31]', 's[32:35]'
sT, sT2, sWl, sSpin = 's52', 's53', 's54', 's55'
sGX, sGH, sG8K, sGKT, sG128 = 's56', 's57', 's58', 's59', 's60'
sQcol, sW1c0, sW1c2, sHks = 's61', 's62', 's63', 's64'
sC128, sHR, sStR = 's66', 's68', 's69'
sQR, sInv, sEps, s1em6, sLog2e = 's71', 's74', 's75', 's76', 's73'
sXrow, sJmsg, sMaskInv, sOutRow, sHello = 's77', 's78', 's85', 's80', 's81'
sEx = 's[82:83]'; sFx = 's84'
sTS = 86
sDelta, sDelta2 = 's88', 's[88:89]'
sLn2, sLn22 = 's90', 's[90:91]'
sXst, sStst, sQst = 's67', 's79', 's94'
sStM, sGXw = 's72', 's56'
sW1d = 's60'
sRot, sR, sFlag, sG256 = 's95', 's96', 's97', 's98'
sRot2, sLim4 = 's59', 's70'
sRed, sLine, sKTo, sFac = 's49', 's50', 's51', 's3'
sX0, sX1 = 's[100:101]', 's[0:1]'
sCsp = 's65'
sXm = [f's{36+i}' for i in range(8)]
sXl = ['s8', 's9', 's10', 's11', 's57', 's77', 's81', 's99']
sTab = ['s44', 's45', 's46', 's47']
sLo = 's[92:93]'
sTx, sTxn, sTh, sThn = 0, 1, 0, 1
sM0, sM1, sM3, sM4 = 's[36:37]', 's[38:39]', 's[40:41]', 's[44:45]'

vLane, vL16, vAX, vP = 'v0', 'v1', 'v2', 'v3'
vRR, vRW = 'v15', 'v18'
vTr = ['v4', 'v5', 'v6']
vDq, vD1, vDs, vS0, vS1, vS0w, vS1w = 'v7', 'v8', 'v9', 'v10', 'v11', 'v12', 'v14'
vStT, vPoll, vRl, vHi, vTid = 'v13', 'v15', 'v16', 'v17', 'v18'
CS = {'q': 'v19', 'k': 'v20', 'v': 'v21', 0: 'v22', 1: 'v23', 2: 'v34'}
AUX = 24
CB = 28
TMP = 35
BB = 40
MR = 56
ACC = 88
AF = 136
def v(i, n=1): return f'v{i}' if n == 1 else f'v[{i}:{i+n-1}]'
def a(i, n=1): return f'a{i}' if n == 1 else f'a[{i}:{i+n-1}]'
def Afrag(ks): return v(AF + 4 * ks, 4) if ks < 30 else a(248 + 4 * (ks - 30), 4)
RES = 240
W2A = 0; WOA = 176
vKT = 253
FW, FR, FO, FS, FB = 7, 11, 12, 14, 19
MF = 'v_mfma_f32_32x32x16_bf16'
DPPM = 'row_mask:0xf bank_mask:0xf'

QS = 32
S_ADDR = QS * 4096

def _ord4(c):
    pl = lambda nt: (0, 2, 1)[nt % 3] if nt < 33 else (nt - 33) % 2
    ms = sorted(range(21), key=lambda m: pl(2 * m + c))
    return ms + [21]
ORD4 = [_ord4(0), _ord4(1)]
XORD = [4 * m + k for m in range(8) for k in (0, 1)] + [4 * m + k for m in range(8) for k in (2, 3)]

class Side:
    def __init__(self, em): self.q = []; self.em = em
    def add(self, *items): self.q.extend(items)
    def run(self, k):
        while k > 0 and self.q:
            it = self.q.pop(0)
            if callable(it): it()
            else: self.em(it)
            k -= 1
    def flush(self): self.run(1 << 30); self.credit = 0
    credit = 0
    def clk(self, budget):
        self.credit = min(self.credit + budget, budget)
        while self.q and self.credit > 0:
            it = self.q.pop(0)
            if callable(it):
                it(); self.credit -= getattr(it, 'cost', 24)
            else:
                self.em(it)
                self.credit -= 56 if it.startswith('ds_write_b128') else 8 if it.startswith(('v_exp', 'v_rcp', 'v_rsq', 'v_mfma')) else 4

class Gen:
    def __init__(self, opt):
        self.o = opt; self.em = Em(); self.nts = 0; self.ncnt = 0; self.swin = None; self.lin = False
    def emit(self, items):
        for t in items: t() if callable(t) else self.em(t)

    def ts(self, name):
        if not self.o.ts or (self.o.span and name not in ('start', 'end')): return
        em = self.em
        i = self.nts; self.nts += 1
        assert i < 50
        em.force_wait(lg=0)
        em(f's_mov_b32 m0, s87'); em(f's_memtime s[{sTS}:{sTS+1}]'); em.force_wait(lg=0)
        em(f'v_writelane_b32 v39, s{sTS}, {i}'); em('s_mov_b32 s87, m0')
        self.tsnames[i] = name
        if name in ('kt', 'p3a', 'p4loop', 'p5a'):
            if name == 'kt' and self.ncnt == 0: em('s_mov_b32 s87, 0')
            em(f'v_writelane_b32 v39, s87, {50 + self.ncnt}'); self.ncnt += 1
    def dma(self, srd, voff, sbase, imm, quad, tag, nt=False, slot=None):
        em = self.em
        if slot is None: em(f's_add_u32 m0, {sWl}, {quad*4096}')
        else: em(f's_mov_b32 m0, {quad*4096 + slot*1024}')
        em(f's_add_u32 {sT}, {sbase}, {imm}')
        em(f'buffer_load_dwordx4 {voff}, {srd}, {sT} offen' + (' nt' if nt else '') + ' lds', tag=tag)
    def tr(self, dst, quad, slot, base=None):
        addr = quad * 4096 + slot * 1024
        b = (base or vTr)[addr >> 16]; off = addr & 0xFFFF
        return [f'ds_read_b64_tr_b16 {v(dst,2)}, {b} offset:{off}', f'ds_read_b64_tr_b16 {v(dst+2,2)}, {b} offset:{off+(256 if self.lin else 512)}']
    def wsload(self, dst, voff, sbase, imm, width=4, tag=None, off=0):
        em = self.em
        em(f's_add_u32 {sT}, {sbase}, {imm}')
        sfx = {1: 'dword', 2: 'dwordx2', 4: 'dwordx4'}[width]
        em(f'buffer_load_{sfx} {dst}, {voff}, {SWS}, {sT} offen' + (f' offset:{off}' if off else '') + ' sc1', tag=tag)
    def wsstore(self, src, voff, sbase, imm, width=4, tag='st', off=0, sc=None):
        em = self.em
        em(f's_add_u32 {sT}, {sbase}, {imm}')
        sfx = {1: 'dword', 2: 'dwordx2', 4: 'dwordx4'}[width]
        sc = self.sc if sc is None else sc
        em(f'buffer_store_{sfx} {src}, {voff}, {SWS}, {sT} offen' + (f' offset:{off}' if off else '') + sc, tag=tag)
    def barrier(self):
        self.em.wait_lg(0); self.em('s_barrier')
    def only_wave(self, w, f, invert=False):
        em = self.em
        L = em.newlabel('Lw')
        em(f's_cmp_{"eq" if invert else "lg"}_u32 {sW}, {w}'); em(f's_cbranch_scc1 {L}')
        em.cond_begin(); f(); em.cond_end()
        em.label(L)
    def spin_tail(self, L):
        em = self.em
        em(f's_sub_u32 {sSpin}, {sSpin}, 1'); em(f's_cbranch_scc0 {L}'); em(f's_mov_b32 {sSpin}, 0')
    def group_sync(self, p, pre=None, mid=None, tags=('st',), bar=True, skipif=None):
        em = self.em
        vt = v(TMP)
        mode = 'B' if skipif else self.o.sync
        if pre: pre()
        def drain():
            if tags is None: em.force_wait(vm=0)
            else: em.wait_vm_tag(tags)
            self.ts(f'drain{p}')
        def sig(wait=True):
            em(f'v_mov_b32 {vt}, {sNonce}')
            em(f's_add_u32 {sT2}, {sFlag}, {p*4096}')
            if wait: drain()
            em(f's_mov_b64 {sEx}, exec'); em('s_mov_b64 exec, 1')
            em(f'buffer_store_dword {vt}, off, {SWS}, {sT2}' + self.sc, tag='flag')
            em(f's_mov_b64 exec, {sEx}')
        def poll():
            L = em.newlabel('Lpoll'); D = em.newlabel('Lpd')
            em(f's_add_u32 {sT2}, {sG256}, {WS_FLAG + p*4096}')
            if mode == 'B': em(f'v_lshlrev_b32 {v(TMP+1)}, 2, {vLane}')
            else: em(f'v_lshlrev_b32 {v(TMP+1)}, 2, {vPoll}')
            em.label(L)
            em(f'buffer_load_dword {vt}, {v(TMP+1)}, {SWS}, {sT2} offen sc1')
            em.force_wait(vm=0)
            em(f'v_cmp_ne_u32 vcc, {sNonce}, {vt}')
            em(f's_cbranch_vccz {D}')
            self.spin_tail(L)
            em.label(D)
        if mode == 'B':
            if skipif:
                L = em.newlabel('Lsk')
                em(f's_cmp_eq_u32 {skipif}, 0'); em(f's_cbranch_scc1 {L}')
                em.cond_begin(); sig(); em.cond_end()
                em.label(L)
            else: sig()
            if mid: mid()
            if bar: self.barrier()
            poll()
        else:
            drain(); self.barrier()
            self.only_wave(0, lambda: sig(False))
            if mid: mid()
            if mode == 'A':
                self.only_wave(0, poll); self.barrier()
            else:
                if bar and mid: self.barrier()
                poll()
        self.ts(f'sync{p}')
    def rot(self, m, stride, base):
        em = self.em
        em(f's_add_u32 {sR}, {sRot}, {m}'); em(f's_and_b32 {sR}, {sR}, 7'); em(f's_mul_i32 {sR}, {sR}, {stride}'); em(f's_add_u32 {sR}, {sR}, {base}')
    def qkv_dma(self, planes, m, tag):
        self.rot(m, 64 * 3072, sQcol)
        for p in planes: self.dma(SQKV, vDq, sR, {'q': 0, 'k': 1024, 'v': 2048}[p], self.pl[p][m], tag)

    def prologue(self):
        em = self.em; o = self.o
        em('s_cmp_ge_u32 s2, 256'); em('s_cbranch_scc1 L_end')
        em('s_load_dwordx4 s[36:39], s[0:1], 0'); em('s_load_dwordx2 s[40:41], s[0:1], 16')
        em('s_load_dwordx4 s[44:47], s[0:1], 32'); em('s_load_dwordx2 s[48:49], s[0:1], 48'); em('s_load_dwordx2 s[50:51], s[0:1], 64')
        if o.ts:
            self.tsnames = {}
            em('v_mov_b32 v39, 0')
        em(f'v_mov_b32 {vTid}, v0')
        em(f'v_lshrrev_b32 v24, 6, v0'); em(f'v_and_b32 {vLane}, 63, v0')
        em(f'v_readfirstlane_b32 {sW}, v24')
        em(f's_and_b32 {sG}, s2, 7'); em(f's_lshl_b32 {sG}, {sG}, 1'); em(f's_lshr_b32 {sT}, s2, 7'); em(f's_add_u32 {sG}, {sG}, {sT}')
        em(f's_lshr_b32 {sJ}, s2, 3'); em(f's_and_b32 {sJ}, {sJ}, 15')
        em(f's_lshl_b32 {sWl}, {sW}, 10')
        em(f's_lshl_b32 {sXrow}, {sG}, 17')
        em(f's_lshl_b32 {sQcol}, {sJ}, 6')
        em(f's_and_b32 {sRot}, {sG}, 1'); em(f's_lshl_b32 {sRot}, {sRot}, 1'); em(f's_and_b32 {sT}, {sJ}, 1'); em(f's_add_u32 {sRot}, {sRot}, {sT}'); em(f's_lshl_b32 {sRot}, {sRot}, 1')
        em(f's_lshr_b32 {sT}, {sJ}, 1'); em(f's_add_u32 {sRot}, {sRot}, {sT}'); em(f's_add_u32 {sRot}, {sRot}, s2')
        if not o.rot: em(f's_mov_b32 {sRot}, 0')
        self.pl = {'k': list(range(0, 8)), 'v': list(range(8, 16)), 'q': list(range(16, 24))}
        em(f'v_lshlrev_b32 {vL16}, 4, {vLane}')
        em(f'v_lshrrev_b32 v27, 3, {vLane}'); em(f'v_and_b32 v28, 7, {vLane}')
        em(f'v_lshrrev_b32 v29, 1, v27'); em('v_xor_b32 v28, v28, v29'); em('v_lshlrev_b32 v28, 4, v28')
        em(f's_lshl_b32 {sT}, {sW}, 5'); em(f'v_add_u32 v27, {sT}, v27'); em('v_lshlrev_b32 v27, 10, v27')
        em('v_add_u32 v25, v27, v28'); em('v_xor_b32 v26, 64, v25')
        em(f'v_lshrrev_b32 v27, 2, {vLane}'); em(f's_lshl_b32 {sT}, {sW}, 4'); em(f'v_add_u32 v27, {sT}, v27')
        em(f'v_and_b32 v28, 3, {vLane}'); em('v_lshlrev_b32 v28, 4, v28')
        em(f'v_mul_u32_u24 {vDq}, 3072, v27'); em(f'v_add_u32 {vDq}, {vDq}, v28')
        em(f'v_mul_u32_u24 {vD1}, 2752, v27'); em(f'v_add_u32 {vD1}, {vD1}, v28')
        em.force_wait(lg=0)
        if o.ts:
            em('s_memrealtime s[86:87]'); em.force_wait(lg=0); em('v_writelane_b32 v39, s86, 62')
        if o.dbg or o.pad:
            em('s_load_dwordx2 s[100:101], s[0:1], 56'); em('s_memrealtime s[0:1]'); em.force_wait(lg=0); em('s_mov_b32 s3, s0')
        self.ts('start')
        def srd(s, lo, nb):
            em(f's_mov_b32 s{s}, s{lo}'); em(f's_mov_b32 s{s+1}, s{lo+1}'); em(f's_mov_b32 s{s+2}, {nb}'); em(f's_mov_b32 s{s+3}, 0x00020000')
        srd(8, 36, 2048 * 1024); srd(32, 50, WS_SIZE); srd(12, 38, 512 * 3072)
        if o.tlb:
            em(f's_lshr_b32 {sT}, s2, 3'); em(f's_lshl_b32 {sT}, {sT}, 2'); em(f's_add_u32 {sT}, {sT}, {sW}'); em(f's_and_b32 {sT}, {sT}, 15')
            em('s_mov_b64 s[86:87], s[50:51]'); em(f's_lshl_b32 {sT2}, {sT}, 21')
            for k, pr in ((8, 's[40:41]'), (9, 's[44:45]'), (10, 's[46:47]'), (11, 's[48:49]'), (12, 's[36:37]'), (13, 's[38:39]')):
                em(f's_cmp_eq_u32 {sT}, {k}'); em(f's_cselect_b64 s[86:87], {pr}, s[86:87]')
            em(f's_cmp_ge_u32 {sT}, 5'); em(f's_cselect_b32 {sT2}, 0, {sT2}')
            em(f's_load_dword s88, s[86:87], {sT2}')
        L0 = em.newlabel('Lo'); L1 = em.newlabel('Lo')
        if o.par:
            em(f's_bitcmp1_b32 {sJ}, 0'); em(f's_cbranch_scc1 {L0}')
            it = self.chunk_items(0)
            snap = list(em.vmq)
            self.emit(it); em(f's_branch {L1}')
            em.label(L0)
            em.vmq = snap
            it = self.chunk_items(0)
            self.emit(it[4:] + it[:4])
            em.label(L1)
        else: self.chunk_dma(0)
        if o.tq:
            em(f'v_lshlrev_b32 v30, 7, {vLane}'); em(f's_lshl_b32 {sT2}, s2, 2'); em(f's_add_u32 {sT2}, {sT2}, {sW}'); em(f's_mul_i32 {sT2}, {sT2}, {12*128}')
            em('s_mov_b64 exec, 0xfff')
            em(f'buffer_load_dword a100, v30, {SQKV}, {sT2} offen', tag='touch')
            em('s_mov_b64 exec, -1')
        em(f'buffer_load_dword v24, off, {SWS}, 0 sc1', tag='epoch')
        self.chunk_dma(1)
        if o.codepf:
            em('s_getpc_b64 s[42:43]'); em.label('L_pcx')
            em(f's_lshr_b32 {sT}, s2, 3'); em(f's_lshl_b32 {sT}, {sT}, 2'); em(f's_add_u32 {sT}, {sT}, {sW}'); em(f's_lshl_b32 {sT}, {sT}, 10')
            em(f's_min_u32 {sT}, {sT}, L_slow-L_pcx-1024')
            em(f'v_add_u32 v30, {sT}, {vL16}')
            em(f'global_load_dwordx4 a[96:99], v30, s[42:43]', tag='codepf')
        srd(16, 40, 512 * 1024); srd(20, 44, 512 * 2752); srd(24, 46, 1376 * 1024); srd(28, 48, 2048 * 1024)
        em(f's_mov_b32 {sSpin}, {o.spin}')
        em(f's_mul_i32 {sGH}, {sG}, {H_B}'); em(f's_add_u32 {sGH}, {sGH}, {WS_H}')
        em(f's_lshl_b32 {sG8K}, {sG}, 13'); em(f's_add_u32 {sG8K}, {sG8K}, {WS_ST}')
        em(f's_lshl_b32 {sG128}, {sG}, 7'); em(f's_lshl_b32 {sG256}, {sG}, 8')
        em(f's_lshl_b32 {sFlag}, {sJ}, 2'); em(f's_add_u32 {sFlag}, {sFlag}, {sW}'); em(f's_lshl_b32 {sFlag}, {sFlag}, 2'); em(f's_add_u32 {sFlag}, {sFlag}, {sG256}'); em(f's_add_u32 {sFlag}, {sFlag}, {WS_FLAG}')
        em(f's_mul_i32 {sT}, {sJ}, 3'); em(f's_lshl_b32 {sT2}, {sJ}, 1'); em(f's_add_u32 {sT2}, {sT2}, 11')
        em(f's_cmp_lt_u32 {sJ}, 11'); em(f's_cselect_b32 {sT}, {sT}, {sT2}');
        em(f's_cselect_b32 {sT2}, 128, 64')
        em(f's_lshl_b32 {sW1c0}, {sT}, 6'); em(f's_add_u32 {sW1c2}, {sW1c0}, {sT2}')
        em(f's_lshl_b32 {sHks}, {sT}, 11'); em(f's_add_u32 {sHks}, {sHks}, {sGH}')
        em(f's_mul_i32 {sT}, {sW}, {H_T}'); em(f's_add_u32 {sHks}, {sHks}, {sT}')
        em(f's_and_b32 {sC128}, {sJ}, 7'); em(f's_lshl_b32 {sC128}, {sC128}, 7')
        em(f's_lshr_b32 {sT}, {sJ}, 3')
        em(f's_lshl_b32 {sT2}, {sT}, 16'); em(f's_add_u32 {sT2}, {sT2}, {sXrow}')
        em(f's_add_u32 {sOutRow}, {sT2}, {sC128}')
        em(f's_add_u32 {sQR}, {sT2}, {sWl}'); em(f's_add_u32 {sQR}, {sQR}, {WS_Q}')
        em(f's_lshl_b32 {sXst}, {sC128}, 5'); em(f's_add_u32 {sXst}, {sXst}, {sT2}'); em(f's_add_u32 {sXst}, {sXst}, {WS_X}')
        em(f's_mul_i32 {sHR}, {sT}, {2*H_T}'); em(f's_add_u32 {sHR}, {sHR}, {sGH}'); em(f's_add_u32 {sHR}, {sHR}, {sWl}')
        em(f's_lshl_b32 {sStR}, {sT}, 12'); em(f's_add_u32 {sStR}, {sStR}, {sG8K}')
        em(f's_lshr_b32 {sT}, {sW}, 1'); em(f's_and_b32 {sT2}, {sW}, 1'); em(f's_lshl_b32 {sT2}, {sT2}, 8')
        em(f's_lshl_b32 {sR}, {sT}, 15'); em(f's_add_u32 {sXst}, {sXst}, {sR}'); em(f's_add_u32 {sXst}, {sXst}, {sT2}')
        em(f's_lshl_b32 {sR}, {sT}, 11'); em(f's_add_u32 {sStM}, {sStR}, {sR}'); em(f's_add_u32 {sStM}, {sStM}, {sT2}')
        em(f's_and_b32 {sT}, {sJ}, 4'); em(f's_lshl_b32 {sT}, {sT}, 7'); em(f's_and_b32 {sT2}, {sJ}, 3'); em(f's_lshl_b32 {sT2}, {sT2}, 2')
        em(f's_add_u32 {sStst}, {sT}, {sT2}'); em(f's_add_u32 {sStst}, {sStst}, {sStM}')
        em(f's_lshl_b32 {sT}, {sW}, 15'); em(f's_add_u32 {sT}, {sT}, {sXrow}'); em(f's_add_u32 {sGXw}, {sT}, {WS_X}')
        em(f's_lshl_b32 {sQst}, {sJ}, 11'); em(f's_add_u32 {sQst}, {sQst}, {sT}'); em(f's_add_u32 {sQst}, {sQst}, {WS_Q}')
        em('s_mov_b32 s92, -1'); em('s_mov_b32 s93, 0')
        em(f's_cmp_ge_u32 {sW}, 2'); em(f's_cselect_b32 {sLim4}, 20, 21'); em(f's_lshl_b32 {sLim4}, {sLim4}, 12')
        em(f's_lshr_b32 {sT}, {sJ}, 3'); em(f's_and_b32 {sT2}, {sG}, 1'); em(f's_lshl_b32 {sT2}, {sT2}, 1'); em(f's_add_u32 {sT}, {sT}, {sT2}')
        em(f's_and_b32 {sT2}, s2, 7')
        em(f's_lshl_b32 {sRot2}, {sT}, 1'); em(f's_add_u32 {sRot2}, {sRot2}, {sT2}')
        if not o.rot2: em(f's_mov_b32 {sRot2}, 0')
        em(f's_mul_i32 {sJmsg}, {sJ}, {16*MSG_B}'); em(f's_add_u32 {sJmsg}, {sJmsg}, {WS_MSG}')
        if o.tlb: em.force_wait(lg=0)
        em(f's_mov_b32 {sDelta}, {f2u(1e-6*1.4426950408889634):#x}'); em(f's_mov_b32 {sLn2}, {f2u(0.6931471805599453):#x}')
        em('s_mov_b32 s89, s88'); em('s_mov_b32 s91, s90')
        em(f's_mov_b32 {sLog2e}, {f2u(1.4426950408889634):#x}'); em(f's_mov_b32 {sInv}, {f2u(1/512):#x}')
        em(f's_mov_b32 {sEps}, {f2u(1e-5):#x}'); em(f's_mov_b32 {s1em6}, {f2u(1e-6):#x}')
        em(f's_mov_b32 {sMaskInv}, 0xffffff00')
        em(f'v_lshrrev_b32 {vHi}, 5, {vLane}')
        em(f'v_lshrrev_b32 v27, 4, {vLane}'); em('v_lshlrev_b32 v27, 9, v27'); em(f'v_and_b32 v28, 15, {vLane}'); em(f'v_lshl_add_u32 {vP}, v28, 4, v27')
        em(f'v_bfe_u32 v27, {vLane}, 2, 2'); em(f'v_lshl_add_u32 v27, {vHi}, 2, v27')
        em(f'v_bfe_u32 v28, {vLane}, 4, 1'); em('v_lshlrev_b32 v28, 5, v28')
        em(f'v_and_b32 v29, 3, {vLane}'); em('v_lshl_add_u32 v28, v29, 3, v28')
        em(f'v_lshl_add_u32 {vTr[0]}, v27, 6, v28')
        em(f'v_lshl_add_u32 {vTr[0]}, {vHi}, 8, {vTr[0]}')
        em(f'v_add_u32 {vTr[1]}, 0x10000, {vTr[0]}'); em(f'v_add_u32 {vTr[2]}, 0x20000, {vTr[0]}')
        em(f'v_bfe_u32 v29, {vLane}, 3, 1'); em('v_lshl_add_u32 v28, v29, 6, v28')
        em(f'v_lshl_add_u32 {vS0}, v27, 7, v28'); em(f'v_add_u32 {vS0}, {sWl}, {vS0}'); em(f'v_xor_b32 {vS1}, 64, {vS0}')
        em(f'v_lshrrev_b32 v27, 3, {vLane}'); em(f'v_and_b32 v28, 7, {vLane}')
        em(f'v_bfe_u32 v29, {vLane}, 4, 1'); em('v_lshlrev_b32 v29, 2, v29'); em('v_xor_b32 v28, v28, v29'); em('v_lshlrev_b32 v28, 4, v28')
        em(f'v_lshl_add_u32 {vDs}, v27, 10, v28'); em(f's_lshl_b32 {sT}, {sW}, 14'); em(f'v_add_u32 {vDs}, {sT}, {vDs}')
        em(f'v_lshl_add_u32 v27, {vHi}, 9, {vL16}'); em(f's_lshl_b32 {sT}, {sW}, 11'); em(f'v_add_u32 {vStT}, {sT}, v27')
        em(f'v_and_b32 {vPoll}, 15, {vLane}'); em(f'v_lshlrev_b32 {vPoll}, 2, {vPoll}')
        em(f'v_readfirstlane_b32 {sNonce}, v24')
        em(f's_add_u32 {sNonce}, {sNonce}, {NONCE_K:#x}')
        em(f's_getreg_b32 {sHello}, hwreg(HW_REG_XCC_ID)'); em(f's_and_b32 {sHello}, {sHello}, 15')
        em(f's_add_u32 {sHello}, {sHello}, {sNonce}'); em(f's_add_u32 {sHello}, {sHello}, 1')
        def hello():
            em(f's_mov_b64 {sEx}, exec'); em('s_mov_b64 exec, 1')
            em(f'v_mov_b32 v24, {sHello}')
            em(f's_lshl_b32 {sT2}, {sJ}, 2'); em(f's_add_u32 {sT2}, {sT2}, {sG128}'); em(f's_add_u32 {sT2}, {sT2}, {WS_HELLO}')
            em(f'buffer_store_dword v24, off, {SWS}, {sT2} sc1')
            em(f's_mov_b64 exec, {sEx}')
        self.only_wave(0, hello)

    def chunk_items(self, c):
        it = []
        def x(rb8):
            if rb8 == 0: self.rot(c, 128, sXrow); self.em(f's_mov_b32 s99, {sR}')
            self.dma(SX, 'v25' if rb8 % 2 == 0 else 'v26', 's99', rb8 * 8192, 24 + 4 * (c % 3) + rb8, f'c{c}')
        for rb8 in range(4): it.append(lambda rb8=rb8: x(rb8))
        def w(p):
            if p == 'k': self.rot(c, 64 * 3072, sQcol); self.em(f's_mov_b32 s84, {sR}')
            self.dma(SQKV, vDq, 's84', {'k': 1024, 'v': 2048}[p], self.pl[p][c], f'c{c}')
        it += [lambda: w('k'), lambda: w('v')]
        return it
    def chunk_dma(self, c): self.emit(self.chunk_items(c))

    def touch_q(self, vt, dst):
        em = self.em
        em(f'v_lshlrev_b32 {vt}, 7, {vLane}')
        em(f's_mov_b64 {sEx}, exec'); em('s_mov_b64 exec, 0xffff')
        em(f'buffer_load_dword {v(dst)}, {vt}, {SWS}, {sQst} offen sc1', tag='touch')
        em(f'v_lshlrev_b32 {vt}, 12, {vLane}')
        em('s_mov_b64 exec, 0x7f')
        em(f'buffer_load_dword {v(dst+1)}, {vt}, {SWS}, {sFlag} offen sc1', tag='touch')
        em(f's_mov_b64 exec, {sEx}')
    def touch_w(self, vt, dst):
        em = self.em
        em(f'v_lshlrev_b32 {vt}, 7, {vLane}')
        em(f's_lshl_b32 {sT2}, s2, 2'); em(f's_add_u32 {sT2}, {sT2}, {sW}'); em(f's_mul_i32 {sT2}, {sT2}, {11*128}')
        em(f's_mov_b64 {sEx}, exec'); em('s_mov_b64 exec, 0x7ff')
        em(f'buffer_load_dword {v(dst)}, {vt}, {SW1}, {sT2} offen', tag='touch')
        em(f'buffer_load_dword {v(dst+1)}, {vt}, {SW2}, {sT2} offen', tag='touch')
        em(f's_lshl_b32 {sT2}, s2, 2'); em(f's_add_u32 {sT2}, {sT2}, {sW}'); em(f's_lshl_b32 {sT2}, {sT2}, 9')
        em('s_mov_b64 exec, 15')
        em(f'buffer_load_dword {v(dst+2)}, {vt}, {SWO}, {sT2} offen', tag='touch')
        em(f's_mov_b64 exec, {sEx}')
    def reducer_setup(self):
        em = self.em
        em(f's_lshr_b32 {sT}, {sG}, 3'); em(f's_cmp_eq_u32 {sT}, {sW}'); em(f's_cselect_b32 {sRed}, 1, 0')
        em(f's_lshl_b32 {sLine}, {sG}, 7')
        em(f's_mul_i32 {sKTo}, {sT}, 544'); em(f's_and_b32 {sT2}, {sG}, 7'); em(f's_lshl_b32 {sT2}, {sT2}, 6'); em(f's_add_u32 {sKTo}, {sKTo}, {sT2}')
        em(f's_mov_b32 {sFac}, {sLn2}')
        L = em.newlabel('Lz')
        em(f's_cmp_lg_u32 {sW}, 2'); em(f's_cbranch_scc1 {L}')
        em(f's_cmp_eq_u32 {sG}, {sJ}'); em(f's_cselect_b32 {sRed}, 1, 0')
        em(f's_mov_b32 {sLine}, 2048'); em(f's_mov_b32 {sKTo}, 512'); em(f's_mov_b32 {sFac}, 1.0')
        em.label(L)
        em(f's_sub_u32 {sCsp}, {sG}, {sJ}'); em(f's_sub_u32 {sCsp}, {sCsp}, 1'); em(f's_and_b32 {sCsp}, {sCsp}, 15')
        em(f's_cmp_eq_u32 {sW}, 3'); em(f's_cselect_b32 {sCsp}, {sCsp}, 15')
        em(f's_mul_i32 {sT2}, {sJ}, 1088'); em(f's_add_u32 {sKTo}, {sKTo}, {sT2}'); em(f's_add_u32 {sKTo}, {sKTo}, {WS_KT}')
        em(f's_add_u32 {sLine}, {sLine}, {sJmsg}')
        em(f's_and_b32 {sT2}, {sG}, 7'); em(f's_lshl_b32 {sT2}, {sT2}, 3'); em(f's_mov_b64 {sX0}, 0xff'); em(f's_lshl_b64 {sX0}, {sX0}, {sT2}'); em(f's_not_b64 {sX0}, {sX0}')
        em(f's_cmp_eq_u32 {sT}, 0'); em(f's_cselect_b64 {sX1}, -1, {sX0}'); em(f's_cselect_b64 {sX0}, {sX0}, -1')
    def kt_voff(self, d, t):
        em = self.em
        em(f'v_and_b32 {d}, 7, {vLane}'); em(f'v_lshlrev_b32 {d}, 3, {d}'); em(f'v_lshl_add_u32 {d}, {vHi}, 2, {d}')
        em(f's_cmp_eq_u32 {sW}, 2'); em(f's_cselect_b32 {sT2}, 128, 0'); em(f'v_and_b32 {t}, 4, {vLane}'); em(f'v_mad_u32_u24 {d}, {t}, {sT2}, {d}')
    def resets(self):
        em = self.em
        t0, D = v(MR + 24), MR + 28
        self.reducer_setup()
        L = em.newlabel('Lrs')
        em(f's_cmp_eq_u32 {sRed}, 0'); em(f's_cbranch_scc1 {L}')
        em.cond_begin()
        self.kt_voff(t0, v(D)); em(f'v_mov_b32 {v(D)}, -1')
        em('s_mov_b32 exec_lo, 0xff'); em('s_mov_b32 exec_hi, 0xff')
        for l in range(2): self.wsstore(v(D), t0, sKTo, l * 0x8000, width=1, sc=' sc1', tag='rst')
        em('s_mov_b64 exec, -1')
        em.cond_end()
        em.label(L)
        L = em.newlabel('Lrc')
        em(f's_cmp_ge_u32 {sCsp}, 3'); em(f's_cbranch_scc1 {L}')
        em.cond_begin()
        em(f'v_lshlrev_b32 {t0}, 2, {vLane}'); em(f'v_mov_b32 {v(D)}, -1')
        em(f's_mul_i32 {sT2}, {sJ}, 384'); em(f's_lshl_b32 {sR}, {sCsp}, 7'); em(f's_add_u32 {sT2}, {sT2}, {sR}')
        em('s_mov_b32 exec_hi, 0')
        self.wsstore(v(D), t0, sT2, WS_CS, width=1, sc=' sc1', tag='rst')
        em('s_mov_b64 exec, -1')
        em.cond_end()
        em.label(L)
        def msg():
            em(f'v_lshlrev_b32 {t0}, 4, {vTid}'); em(f's_not_b32 {sT2}, {sNonce}')
            for r in range(4): em(f'v_mov_b32 {v(D+r)}, {sT2}')
            em(f'v_cmp_gt_u32 vcc, 136, {vTid}'); em(f's_and_saveexec_b64 {sEx}, vcc')
            em(f's_mul_i32 {sT2}, {sG}, {MSG_B}'); em(f's_add_u32 {sT2}, {sT2}, {sJmsg}')
            for l in range(2): self.wsstore(v(D, 4), t0, sT2, l * 256 * MSG_B, sc=' sc1', tag='rst')
            em(f's_mov_b64 exec, {sEx}')
        if self.o.prewrite: self.only_wave(3, msg, invert=True)
    def reset_items(self, D, which):
        em = self.em
        it = [f'v_mov_b32 {v(D+r)}, 0' for r in range(4)]
        def x():
            em(f's_and_b32 {sT2}, {sW}, 1'); em(f's_mul_i32 {sT2}, {sT2}, 1792'); em(f's_add_u32 {sT2}, {sT2}, {sXst}')
            self.wsstore(v(D, 4), vL16, sT2, 0, tag='rst'); self.wsstore(v(D, 4), vL16, sT2, 0, tag='rst', off=1024)
        if 'x' in which: it.append(x)
        def h(p):
            self.wsstore(v(D, 4), vL16, sHks, p * 2048, tag='rst'); self.wsstore(v(D, 4), vL16, sHks, p * 2048, tag='rst', off=1024)
        if 'h' in which: it += [lambda: h(0), lambda: h(1)]
        def h2():
            L = em.newlabel('Lr3')
            em(f's_cmp_ge_u32 {sJ}, 11'); em(f's_cbranch_scc1 {L}')
            em.cond_begin(); h(2); em.cond_end()
            em.label(L)
        if 'h' in which: it.append(h2)
        def st():
            em(f'v_and_b32 {v(D+4)}, 512, {vP}'); em(f'v_add_u32 {v(D+4)}, {v(D+4)}, {vP}')
            em('s_mov_b32 exec_hi, 0')
            for i in range(3): self.wsstore(v(D), v(D + 4), sStst, i * 16 * 8192, width=1, tag='rst')
            em('s_mov_b64 exec, -1')
        if 'x' in which: it.append(st)
        return it

    def check(self, regs, reload, tmp=None, split=False, kind='sent', tag=None, again=None):
        em = self.em
        if self.o.nochk and split and kind != 'h': return lambda: None
        F = em.newlabel('Lfix'); R = em.newlabel('Lret'); G_ = em.newlabel('Lok')
        dst = 'vcc' if split else sEx
        def test(e):
            r = regs[0]
            if r.startswith('a'): e(f'v_accvgpr_read_b32 {tmp}, {r}'); r = tmp
            if kind == 'sent':
                rest = list(regs)
                e(f'v_max_u32 {tmp}, {rest[0]}, {rest[1]}'); rest = rest[2:]
                while rest:
                    e(f'v_max3_u32 {tmp}, {rest[0]}, {rest[1]}, {tmp}'); rest = rest[2:]
                e(f'v_cmp_eq_u32 {dst}, -1, {tmp}')
            elif kind == 'h':
                if tag:
                    for q in regs: e(f'v_xor_b32 {q}, 0x80000000, {q}')
                if len(regs) == 2: e(f'v_or_b32 {tmp}, {regs[0]}, {regs[1]}'); r = tmp
                e(f'v_cmp_gt_i32 {dst}, 0, {r}')
            elif len(regs) <= 2:
                r1 = regs[-1]
                if r1.startswith('a'):
                    e(f'v_lshlrev_b32 {tmp}, 31, {tmp}'); e(f'v_cmp_{"eq" if tag else "ne"}_u32 {sEx}, 0, {tmp}')
                    e(f'v_accvgpr_read_b32 {tmp}, {r1}'); e(f'v_lshlrev_b32 {tmp}, 31, {tmp}'); e(f'v_cmp_{"eq" if tag else "ne"}_u32 {dst}, 0, {tmp}')
                    e('s_nop 1'); e(f's_or_b64 vcc, vcc, {sEx}')
                else:
                    e(f'v_bitop3_b32 {tmp}, {r}, {r1}, 1 bitop3:{0x80 if tag else 0xa8:#x}'); e(f'v_cmp_{"eq" if tag else "ne"}_u32 {dst}, 0, {tmp}')
            else:
                assert tag == 1
                rest = list(regs)
                e(f'v_and_b32 {tmp}, {rest[0]}, {rest[1]}'); rest = rest[2:]
                while rest:
                    e(f'v_bitop3_b32 {tmp}, {rest[0]}, {rest[1]}, {tmp} bitop3:0x80'); rest = rest[2:]
                e(f'v_and_b32 {tmp}, 1, {tmp}'); e(f'v_cmp_eq_u32 {dst}, 0, {tmp}')
        test(em)
        def branch():
            if split: em(f's_cbranch_vccnz {F}')
            else: em(f's_cmp_lg_u64 {sEx}, 0'); em(f's_cbranch_scc1 {F}')
            em.label(R)
            out = [F + ':']
            e = lambda t, tag=None: out.append('    ' + t)
            if self.o.ts and not self.o.span: e('s_add_u32 s87, s87, 1')
            def rep():
                for p in em.vmq:
                    if p.tag == 'A': again(e, p)
                    else: e(f's_mov_b32 {sFx}, {WS_DBG + 0x100000}'); e(f'buffer_store_dword {tmp}, off, {SWS}, {sFx}')
            reload(e)
            if again and self.o.fixmode: rep(); e(f's_waitcnt vmcnt({len(em.vmq)})')
            else: e('s_waitcnt vmcnt(0)')
            test(e)
            if split: e(f's_cbranch_vccz {G_}')
            else: e('s_nop 0'); e(f's_cmp_eq_u64 {sEx}, 0'); e(f's_cbranch_scc1 {G_}')
            e(f's_sub_u32 {sSpin}, {sSpin}, 1'); e(f's_cbranch_scc0 {F}'); e(f's_mov_b32 {sSpin}, 0')
            out.append(G_ + ':')
            if again and not self.o.fixmode: rep()
            e(f's_branch {R}')
            self.fixes += out
        if split: return branch
        branch()

    def colsum_items(self, quads, acc, tmp, own, ones, first):
        items = []
        rds = [self.tr(tmp + 4 * (n % 2), q, 0, own) for n, q in enumerate(quads)]
        items += rds[0]
        for n in range(len(quads)):
            if n + 1 < len(quads): items += rds[n + 1]
            items.append(f'{MF} {acc}, {ones}, {v(tmp + 4*(n%2), 4)}, ' + ('0' if first and n == 0 else acc))
        return items
    def cs_write_items(self, srcs, lds, tmp):
        ad = v(tmp)
        it = [f'v_and_b32 {ad}, 31, {vLane}', f'v_lshlrev_b32 {ad}, 4, {ad}', f'v_add_u32 {ad}, {lds:#x}, {ad}',
              f's_lshl_b32 {sT2}, {sW}, 2', f'v_add_u32 {v(tmp+1)}, {sT2}, {ad}']
        return it + [f'ds_write_b32 {v(tmp+1)}, {s} offset:{p*512}' for p, s in enumerate(srcs)]
    def cs_read_items(self, keys, tmp):
        ad = v(tmp); R = tmp + 2
        it = [f'ds_read_b128 {v(R+4*p,4)}, {ad} offset:{p*512}' for p in range(len(keys))]
        for p, k in enumerate(keys):
            r = R + 4 * p
            it += [f'v_add_f32 {v(r)}, {v(r)}, {v(r+1)}', f'v_add_f32 {v(r+2)}, {v(r+2)}, {v(r+3)}', f'v_add_f32 {v(r)}, {v(r)}, {v(r+2)}',
                   f'v_cvt_pk_bf16_f32 {v(r+1)}, {v(r)}, {v(r)}', f'v_lshlrev_b32 {v(r+1)}, 16, {v(r+1)}', f'v_sub_f32 {v(r+1)}, {v(r)}, {v(r+1)}',
                   f'v_cvt_pk_bf16_f32 {CS[k]}, {v(r)}, {v(r+1)}']
        return it
    def colsum_exchange(self, srcs, keys, lds, tmp):
        self.emit(self.cs_write_items(srcs, lds, tmp)); self.barrier(); self.emit(self.cs_read_items(keys, tmp))

    def stage_dma(self, srd, m, qa, qb, tag):
        em = self.em
        if srd == SWO:
            em(f's_add_u32 {sR}, {sRot2}, {m}'); em(f's_and_b32 {sR}, {sR}, 7'); em(f's_lshl_b32 {sR}, {sR}, 16')
        else:
            self.tab4(m, sR, 16)
        em(f's_add_u32 {sR}, {sR}, {sC128}')
        self.dma(srd, vDs, sR, 0, qa, tag, nt=self.o.nt_stage); self.dma(srd, vDs, sR, 8192, qb, tag, nt=self.o.nt_stage)
    def tab4(self, st, dst, sh, em=None):
        em = em or self.em
        em(f's_bfe_u32 {dst}, {sTab[st // 6]}, {(5 * (st % 6)) | (5 << 16):#x}'); em(f's_lshl_b32 {dst}, {dst}, {sh}')
    def stage_read_items(self, abase, m, qa, qb):
        items = []
        for h, q in enumerate((qa, qb)):
            addr = q * 4096; win = addr >> 16; off = addr & 0xFFFF
            def f(win=win, off=off, h=h):
                if win == 0: b0, b1 = vS0, vS1
                else:
                    if self.swin != win:
                        self.em(f'v_add_u32 {vS0w}, {win*65536:#x}, {vS0}'); self.em(f'v_add_u32 {vS1w}, {win*65536:#x}, {vS1}'); self.swin = win
                    b0, b1 = vS0w, vS1w
                self.em(f'ds_read_b64_tr_b16 {a(abase + m*8 + 2*h, 2)}, {b0} offset:{off}')
                self.em(f'ds_read_b64_tr_b16 {a(abase + m*8 + 4 + 2*h, 2)}, {b1} offset:{off}')
            items.append(f)
        return items

    def aux_items(self, S, Q, t0, need_r=True):
        it = [f'v_mul_f32 {S}, {sInv}, {S}']
        if need_r:
            it += [f'v_mul_f32 {Q}, {sInv}, {Q}', f'v_fma_f32 {Q}, -{S}, {S}, {Q}', f'v_max_f32 {Q}, 0, {Q}', f'v_add_f32 {Q}, {sEps}, {Q}',
                   f'v_rsq_f32 {Q}, {Q}', f'v_mul_f32 {vRl}, {sLog2e}, {Q}']
        it += [f'v_cndmask_b32_e64 {S}, 0, -{S}, {sLo}',
               f'v_cvt_pk_bf16_f32 {v(AUX)}, {S}, {S}', f'v_lshlrev_b32 {t0}, 16, {v(AUX)}', f'v_sub_f32 {S}, {S}, {t0}', f'v_cvt_pk_bf16_f32 {v(AUX+1)}, {S}, {S}']
        if need_r:
            it += [f'v_cndmask_b32 {Q}, 0, {vRl}, {sLo}', f'v_cvt_pk_bf16_f32 {t0}, {Q}, {Q}', f'v_lshlrev_b32 {t0}, 16, {t0}', f'v_sub_f32 {t0}, {Q}, {t0}',
                   f'v_cvt_pk_bf16_f32 {v(AUX+2)}, {Q}, {t0}']
        return it
    def aux_const_items(self):
        return [f'v_mov_b32 {v(AUX+2)}, 0', f'v_mov_b32 {v(AUX+3)}, 0', f'v_mov_b32 {v(CB+2)}, 0', f'v_mov_b32 {v(CB+3)}, 0', f'v_mov_b32 {v(CB+4)}, 0x3f803f80', f'v_mov_b32 {v(CB+5)}, 0x3f803f80']
    def corr_items(self, key, acc, swapAB):
        c = v(acc, 16)
        return [f'v_mov_b32 {v(CB)}, {CS[key]}', f'v_mov_b32 {v(CB+1)}, {CS[key]}',
                f'{MF} {c}, {v(AUX,4)}, {v(CB,4)}, {c}' if swapAB else f'{MF} {c}, {v(CB,4)}, {v(AUX,4)}, {c}']
    def stats_T_loads(self, i, e=None):
        e = e or self.em
        t = MR + 16
        e(f's_add_u32 {sFx}, {sG8K}, {i * 16 * 8192}')
        e(f'buffer_load_dwordx4 {v(t,4)}, {vStT}, {SWS}, {sFx} offen sc1', tag='stat'); e(f'buffer_load_dwordx4 {v(t+4,4)}, {vStT}, {SWS}, {sFx} offen offset:512 sc1', tag='stat')
    def stats_T_items(self, need_r, sti):
        t = MR + 16
        it = [lambda: self.check([v(t + r) for r in range(8)], lambda e: self.stats_T_loads(sti, e), v(t + 8), kind='x', tag=sTxn)]
        it += [f'v_add_f32 {v(t)}, {v(t)}, {v(t+1)}', f'v_add_f32 {v(t+2)}, {v(t+2)}, {v(t+3)}', f'v_add_f32 {v(t+4)}, {v(t+4)}, {v(t+5)}',
              f'v_add_f32 {v(t+6)}, {v(t+6)}, {v(t+7)}', f'v_add_f32 {v(t)}, {v(t)}, {v(t+2)}', f'v_add_f32 {v(t+4)}, {v(t+4)}, {v(t+6)}',
              f'v_add_f32 {v(t)}, {v(t)}, {v(t+4)}', f'v_mov_b32 {v(t+1)}, {v(t)}', f'v_permlane32_swap_b32 {v(t)}, {v(t+1)}']
        return it + self.aux_items(v(t), v(t + 1), v(t + 2), need_r)

    def pass2(self, steps, planes, accs, swapAB, side, fill, loader=None, first=True, extra=None):
        em = self.em
        steps = list(steps)
        def rd(i, p):
            ks = steps[i]
            for t in self.tr(BB + (i % 2) * 8 + 4 * p, planes[p][ks >> 2], ks & 3): em(t, tag=('B', i))
        for i in range(2):
            for p in range(2): rd(i, p)
        br = extra(0)
        for i, ks in enumerate(steps):
            if br: br(); br = None
            if self.o.ts2 and self.S == 0 and i == 0: self.ts('first')
            lg = [k for k, p in enumerate(em.lgq) if p.tag == ('B', i)]
            need = [XORD[k] for k in (i + 1, i + 2) if k < len(steps)] if i % 2 else []
            vm = [k for k, p in enumerate(em.vmq) if p.tag == 'A' and XORD[self.ldidx[id(p)]] in need]
            em.force_wait(vm=len(em.vmq) - 1 - max(vm) if vm else None, lg=len(em.lgq) - 1 - max(lg) if lg else None)
            for p in range(2):
                w = v(BB + (i % 2) * 8 + 4 * p, 4); x = Afrag(ks); c = v(accs[p], 16)
                src = '0' if (first and i == 0) else c
                em(f'{MF} {c}, {x}, {w}, {src}' if swapAB else f'{MF} {c}, {w}, {x}, {src}')
                if i + 2 < len(steps): rd(i + 2, p)
                if p == 0: loader(i)
                if p == 0 and i + 1 < len(steps): br = extra(i + 1)
                if not (p == 0 and br): side.run(fill(i) if callable(fill) else fill)
                if self.o.ts2 and self.S == 0 and p == 1 and i in (0, 3, 7, 15, 23): self.ts(f's{i}')
    def pass1(self, plane, acc, side, fill):
        em = self.em
        NB = 4
        def rd(ks):
            for t in self.tr(BB + (ks % NB) * 4, plane[ks >> 2], ks & 3): em(t)
        for ks in range(NB - 1): rd(ks)
        for ks in range(32):
            w = v(BB + (ks % NB) * 4, 4); c = v(acc, 16)
            if ks + NB - 1 < 32: rd(ks + NB - 1)
            em(f'{MF} {c}, {w}, {Afrag(ks)}, ' + ('0' if ks == 0 else c))
            side.run(fill(ks) if callable(fill) else fill)
    def xld(self, i, e=None):
        ks = XORD[i]
        r = (e or self.em)(f'buffer_load_dwordx4 {Afrag(ks)}, {vAX}, {SWS}, {(sXl if ks & 2 else sXm)[ks >> 2]} offen offset:{(ks & 1) * 1024} sc1', tag='A')
        if e is None: self.ldidx[id(r)] = i
    def x_prefetch(self, off, n0, n1):
        if n0 == 0:
            self.em(f's_add_u32 {sT}, {sGXw}, {off}'); self.em(f'v_add_u32 {vAX}, {sT}, {vL16}')
        for i in range(n0, n1): self.xld(i)
    def a_loader(self, pre, sti, xtag):
        nxt = [pre]
        def step(i):
            if i == self.o.statstep - 10: self.stats_T_loads(sti)
            for _ in range(2 if i < self.o.burst else 1):
                if nxt[0] < 32: self.xld(nxt[0]); nxt[0] += 1
            self.xdone = nxt[0] >= 32
        def chk(i):
            if i % 2: return None
            f0 = lambda k: (lambda r: r[0] + r[2:].split(':')[0])(Afrag(XORD[k]))
            return self.check([f0(i), f0(i + 1)], lambda e: (self.xld(i, e), self.xld(i + 1, e)), v(38), split=True, kind='x', tag=xtag,
                              again=lambda e, p: self.xld(self.ldidx[id(p)], e))
        return step, chk

    def phi_items(self, acc, rl, lanes_t, E):
        out = []
        for g in range(2):
            b = acc + 8 * g
            for k in range(4):
                x = v(b + 2 * k, 2)
                if lanes_t:
                    out += [f'v_fma_f32 {v(b+2*k)}, {v(b+2*k)}, {rl}, {sDelta}', f'v_fma_f32 {v(b+2*k+1)}, {v(b+2*k+1)}, {rl}, {sDelta}']
                else: out.append(f'v_pk_fma_f32 {x}, {x}, {v(rl + 8*g + 2*k, 2)}, {sDelta2}')
            for k in range(8): out.append(f'v_exp_f32_e64 {v(E+k)}, {v(b+k)} clamp')
            for k in range(8): out.append(f'v_max_f32 {v(b+k)}, {sDelta}, {v(b+k)}')
            for k in range(4): out.append(f'v_pk_fma_f32 {v(b+2*k,2)}, {v(b+2*k,2)}, {sLn22}, {v(E+2*k,2)}')
            for k in range(4): out.append(f'v_cvt_pk_bf16_f32 {v(acc+4*g+k)}, {v(b+2*k)}, {v(b+2*k+1)}')
        return out

    def p1_start(self):
        em = self.em; o = self.o
        self.lin = True
        X = MR; OWN = [v(MR + 4), v(MR + 5), v(MR + 6)]; H = v(MR + 7); ONE = v(MR + 8, 4); CT = MR + 12
        self.OWN, self.ONE = OWN, ONE
        aS, aCk, aCv = a(0, 16), a(32, 16), a(48, 16); QA = ACC + 32
        em(f'v_and_b32 v27, 7, {vLane}'); em('v_lshlrev_b32 v27, 7, v27')
        em(f'v_bfe_u32 v28, {vLane}, 3, 2'); em('v_lshl_add_u32 v27, v28, 12, v27')
        em(f's_add_u32 {sT}, {sWl}, {24*4096}'); em(f'v_add_u32 v27, {sT}, v27')
        em(f'v_bfe_u32 v28, {vLane}, 1, 3'); em(f'v_xor_b32 v28, v28, {vHi}')
        for kk in range(4):
            em(f'v_xor_b32 v29, {2*kk}, v28'); em(f'v_lshl_add_u32 {v(X+kk)}, v29, 4, v27')
        for i in range(3): em(f'v_add_u32 {OWN[i]}, {sWl}, {vTr[i]}')
        for i in range(4): em(f'v_mov_b32 {v(MR+8+i)}, 0x3f803f80')
        for sm, bit in ((sM0, 1), (sM1, 2), (sM3, 8), (sM4, 16)):
            em(f'v_and_b32 v29, {bit}, {vLane}'); em(f'v_cmp_ne_u32 {sm}, 0, v29')
        em(f'v_bfe_u32 v29, {vLane}, 2, 1'); em(f'v_cmp_eq_u32 s[46:47], v29, {vHi}')
        if o.tw == 0: self.touch_w('v29', MR + 20)
        self.resets()
        def own_reads(c):
            em.wait_vm_tag(f'c{c}')
            for kk in range(4): em(f'ds_read_b128 {Afrag(4*c+kk)}, {v(X+kk)} offset:{(c % 3) * 16384}')
            for p, pl in enumerate('kv'): self.emit(self.tr(CT + 4 * p, self.pl[pl][c], 0, OWN))
        side = Side(em)
        self.stq = list(range(24, 32)) + [34, 35, 32, 33, 36, 37, 38, 39]
        own_reads(0)
        self.ts('c0')
        for c in range(8):
            em('s_barrier')
            if c + 2 < 8: side.add(*self.chunk_items(c + 2))
            if c == 2: side.add(lambda: self.touch_q('v27', MR + 24))
            if c == o.tw - 1: side.add(lambda: self.touch_w('v27', MR + 20))
            if c == 1:
                def w1p():
                    em(f's_lshl_b32 {sT2}, {sW}, 6'); em(f's_add_u32 {sT2}, {sT2}, {sW1c0}'); em(f's_cmp_lt_u32 {sW}, 2'); em(f's_cselect_b32 {sT2}, {sT2}, {sW1c2}')
                    em(f's_lshl_b32 {sR}, {sG}, 1'); em(f's_sub_u32 {sR}, {sR}, {sW}'); em(f's_mul_i32 {sR}, {sR}, {16*2752}')
                    em(f'v_add_u32 v28, {sR}, {vD1}')
                    self.dma(SW1, 'v28', sT2, 0, 36, 'w1p'); self.dma(SW1, 'v28', sT2, 16 * 2752, 37, 'w1p')
                side.add(w1p)
            if c == 5:
                aW = a(80, 16); W = MR + 24
                side.add(lambda: em.wait_vm_tag('w1p'))
                side.add(*self.tr(W, 36, 0, OWN)); side.add(*self.tr(W + 4, 37, 0, OWN))
                side.add(f'{MF} {aW}, {ONE}, {v(W,4)}, 0', f'{MF} {aW}, {ONE}, {v(W+4,4)}, {aW}')
            if c == 6:
                def w1s():
                    W = MR + 24
                    em(f'v_accvgpr_read_b32 {v(W)}, a80'); em(f's_and_b32 {sT2}, {sNonce}, 0xff'); em(f'v_mov_b32 {v(W+1)}, {sT2}')
                    em(f'v_and_or_b32 {v(W)}, {v(W)}, {sMaskInv}, {v(W+1)}'); em(f'v_lshlrev_b32 {v(W+1)}, 2, {vLane}')
                    em(f's_min_u32 {sR}, {sW}, 2'); em(f's_lshl_b32 {sR}, {sR}, 7')
                    em(f's_mul_i32 {sT2}, {sG}, {MSG_B}'); em(f's_add_u32 {sT2}, {sT2}, {sJmsg}'); em(f's_add_u32 {sT2}, {sT2}, {sR}')
                    em('s_mov_b32 exec_hi, 0')
                    self.wsstore(v(W), v(W + 1), sT2, 2176, width=1, sc=' sc1', tag='rst')
                    em('s_mov_b64 exec, -1')
                side.add(w1s)
            if c == 5:
                def hello():
                    em(f's_add_u32 {sT2}, {sG128}, {WS_HELLO}')
                    em(f'buffer_load_dword {H}, {vPoll}, {SWS}, {sT2} offen sc1', tag='hello')
                side.add(hello)
            if c >= 5:
                for m in range(8):
                    if o.qsched[m] == str(c): side.add(lambda m=m: self.qkv_dma('q', m, 'q'))
            def rd(kk, p):
                self.emit(self.tr(BB + (kk % 2) * 8 + 4 * p, self.pl['kv'[p]][c], kk))
            for kk in range(2):
                for p in range(2): rd(kk, p)
            cnt = [0]
            def tick():
                cnt[0] += 1
                if c < 7 and cnt[0] % o.cgap == o.cgap - 1: side.run(1)
            for p, acc in enumerate((aCk, aCv)):
                em(f'{MF} {acc}, {ONE}, {v(CT+4*p,4)}, ' + ('0' if c == 0 else acc)); tick()
            for kk in range(4):
                ks = 4 * c + kk
                em(f'{MF} {aS}, {ONE}, {Afrag(ks)}, ' + ('0' if ks == 0 else aS)); tick()
                em(f'{MF} {v(QA,16)}, {Afrag(ks)}, {Afrag(ks)}, ' + ('0' if ks == 0 else v(QA, 16))); tick()
            if c == 7:
                S, Q, T = v(MR + 20), v(QA), v(MR + 22)
                tail = [f'v_accvgpr_read_b32 {v(MR+20)}, a32', f'v_accvgpr_read_b32 {v(MR+21)}, a48']
                tail += self.cs_write_items([v(MR + 20), v(MR + 21)], 32 * 4096, MR + 22) + [self.barrier] + self.cs_read_items(['k', 'v'], MR + 22)
                tail += [f'v_accvgpr_read_b32 {S}, a0']
                for r in range(8): tail.append(f'v_cndmask_b32 {v(QA+r)}, {v(QA+2*r)}, {v(QA+2*r+1)}, {sM0}')
                for r in range(4): tail.append(f'v_cndmask_b32 {v(QA+r)}, {v(QA+2*r)}, {v(QA+2*r+1)}, {sM1}')
                for r in range(2): tail.append(f'v_cndmask_b32 {v(QA+r)}, {v(QA+2*r)}, {v(QA+2*r+1)}, {sM3}')
                tail += [f'v_cndmask_b32 {Q}, {Q}, {v(QA+1)}, {sM4}', f'v_cndmask_b32 {Q}, 0, {Q}, s[46:47]',
                         f'v_mov_b32 {T}, {Q}', f'v_permlane32_swap_b32 {Q}, {T}', f'v_add_f32 {Q}, {Q}, {T}']
                tail += self.aux_const_items() + self.aux_items(S, Q, T)
                side.q = tail + side.q
            for kk in range(4):
                ks = 4 * c + kk
                for p in range(2):
                    cc = v(ACC + 16 * p, 16)
                    em(f'{MF} {cc}, {Afrag(ks)}, {v(BB + (kk % 2) * 8 + 4 * p, 4)}, ' + ('0' if ks == 0 else cc))
                    if kk + 2 < 4: rd(kk + 2, p)
                    if c < 7: tick()
                    else: side.run(7)
                if kk == o.ownpos and c + 1 < 8: own_reads(c + 1)
            if c < 7: side.flush()
            if c in (1, 3, 5) and not o.ts2: self.ts(f'c{c}e')
        side.flush()
        self.ts('kvpass')
        self.emit(self.corr_items('k', ACC, True)); self.emit(self.corr_items('v', ACC + 16, True))
        L = em.newlabel('Lhp'); D = em.newlabel('Lhd')
        em.wait_vm_tag('hello')
        em.label(L)
        em(f'v_subrev_u32 {v(TMP)}, {sNonce}, {H}'); em(f'v_add_u32 {v(TMP)}, -1, {v(TMP)}')
        em(f'v_cmp_le_u32 vcc, 16, {v(TMP)}')
        em(f's_cbranch_vccz {D}')
        em.cond_begin()
        em(f's_add_u32 {sT2}, {sG128}, {WS_HELLO}')
        em(f'buffer_load_dword {H}, {vPoll}, {SWS}, {sT2} offen sc1'); em.force_wait(vm=0)
        em.cond_end()
        self.spin_tail(L)
        em.label(D)
        em(f'v_cmp_ne_u32 vcc, {sHello}, {H}')
        for i in range(3): em(f'v_mov_b32 {v(TMP+i)}, {OWN[i]}')
        self.OWN = [v(TMP), v(TMP + 1), v(TMP + 2)]
        em(f'{MF} {v(MR,16)}, {v(AUX,4)}, {v(CB+2,4)}, 0')
        self.ts('decide')

    def p1_rest(self, l):
        em = self.em; o = self.o
        K, V, Q = ACC, ACC + 16, ACC + 32
        RL = MR; E = MR + 16
        sq = self.pl['k'][:4]
        sa = 36 * 4096
        mw, mr, fac, t16, tg = v(V + 8), v(V + 9), v(V + 10), v(V + 11), v(V + 12)
        u, x1, x2 = v(V + 13), v(V + 14), v(V + 15)
        self.emit(self.phi_items(K, RL, False, E))
        D0, D1 = MR, MR + 16
        rest = []
        for hh in range(2):
            rest += [f'v_pk_mul_f32 {v(V+2*r,2)}, {v(V+2*r,2)}, {v(RL+2*r,2)}' for r in range(4 * hh, 4 * hh + 4)]
            rest += [f'v_cvt_pk_bf16_f32 {v(V+r)}, {v(V+2*r)}, {v(V+2*r+1)}' for r in range(4 * hh, 4 * hh + 4)]
        W_ = E
        rest = rest[:8] + [f'v_mov_b32 {v(K+8+r)}, {v(CB+4)}' for r in range(8)] + [f'v_permlane16_swap_b32 {v(V+r)}, {v(K+8+r)}' for r in range(4)] + rest[8:]
        rest += [f'{MF} {v(D1,16)}, {v(K,4)}, {v(K+8,4)}, 0']
        rest += [f'v_permlane16_swap_b32 {v(V+r)}, {v(K+8+r)}' for r in range(4, 8)]
        rest += [f'{MF} {v(D0,16)}, {v(K,4)}, {v(V,4)}, 0', f'{MF} {v(D1,16)}, {v(K+4,4)}, {v(K+12,4)}, {v(D1,16)}',
                 f'{MF} {v(D0,16)}, {v(K+4,4)}, {v(V+4,4)}, {v(D0,16)}']
        if l == 0:
            for r in range(4): em(f'v_mov_b32 {v(BB+8+r)}, {v(CB+4)}')
            cs = [lambda: em.wait_vm_tag('q')] + self.colsum_items(self.pl['q'], v(Q, 16), BB, self.OWN, v(BB + 8, 4), True)
            mixed = []
            while rest or cs:
                mixed += rest[:1] + cs[:1]; rest = rest[1:]; cs = cs[1:]
            rest = mixed
        self.emit(rest)
        self.emit([f's_lshl_b32 {sT2}, {sW}, 12', f's_add_u32 {sT2}, {sT2}, {sa}', f'v_add_u32 {mw}, {sT2}, {vL16}',
                   f'v_bfe_u32 {x1}, {vLane}, 1, 4', f'v_lshl_add_u32 {x1}, {vHi}, 5, {x1}', f'v_lshlrev_b32 {x1}, 4, {x1}',
                   f's_lshl_b32 {sT2}, {sW}, 11', f'v_add_u32 {x1}, {sT2}, {x1}',
                   f'v_bfe_u32 {x2}, {vLane}, 1, 2', f'v_lshlrev_b32 {x2}, 9, {x2}', f'v_bfe_u32 {u}, {vLane}, 2, 1', f'v_lshl_add_u32 {x2}, {u}, 10, {x2}', f'v_add_u32 {x2}, 256, {x2}',
                   f's_cmp_eq_u32 {sW}, 2', f's_cselect_b64 vcc, -1, 0', f'v_cndmask_b32 {mr}, {x1}, {x2}, vcc',
                   f'v_and_b32 {x1}, 1, {vLane}', f'v_lshl_add_u32 {mr}, {x1}, 10, {mr}', f'v_add_u32 {mr}, {sa:#x}, {mr}',
                   f'v_add_u32 {t16}, {sWl}, {vL16}', f's_and_b32 {sT2}, {sNonce}, 0xff', f'v_mov_b32 {tg}, {sT2}',
                   f'v_lshrrev_b32 {x1}, 3, {vLane}', f'v_mul_u32_u24 {x1}, {MSG_B}, {x1}', f'v_and_b32 {x2}, 7, {vLane}', f'v_lshl_add_u32 {fac}, {x2}, 4, {x1}'])
        self.kt_voff(u, x1)
        for i, r in ((2, D1 + 8), (3, D1 + 12), (0, D0), (1, D0 + 4)): em(f'ds_write_b128 {mw}, {v(r,4)} offset:{i*1024}')
        if l == 0: self.emit(self.cs_write_items([v(Q)], 33 * 4096, V))
        em.wait_vm_tag('q')
        self.barrier()
        if not o.ts2: self.ts('kvbar')
        M = MR
        ga = fac; G = MR + 4; A0 = x1; sOK = 's48'
        def msg_out():
            for i in range(4): em(f'ds_read_b128 {v(M+4*i,4)}, {mr} offset:{i*4096}')
            for r in (0, 2): em(f'v_pk_add_f32 {v(M+r,2)}, {v(M+r,2)}, {v(M+4+r,2)}')
            for r in (0, 2): em(f'v_pk_add_f32 {v(M+8+r,2)}, {v(M+8+r,2)}, {v(M+12+r,2)}')
            for r in (0, 2): em(f'v_pk_add_f32 {v(M+r,2)}, {v(M+r,2)}, {v(M+8+r,2)}')
            em(f'v_cmp_gt_u32 vcc, 2176, {t16}')
            for r in range(4): em(f'v_and_or_b32 {v(M+r)}, {v(M+r)}, {sMaskInv}, {tg}')
            em(f's_mul_i32 {sT2}, {sG}, {MSG_B}'); em(f's_add_u32 {sT2}, {sT2}, {sJmsg}')
            em('s_mov_b64 exec, vcc')
            self.wsstore(v(M, 4), t16, sT2, l * 256 * MSG_B, sc=' sc1', tag='msg')
            em('s_mov_b64 exec, -1')
        self.only_wave(3, msg_out, invert=True)
        def if_pending(f):
            L = em.newlabel('Lp')
            em(f's_cmp_lg_u32 {sOK}, 0'); em(f's_cbranch_scc1 {L}')
            em.cond_begin(); f(); em.vmq = [p for p in em.vmq if p.tag != 'g']; em.cond_end()
            em.label(L)
            self.gmark = set(id(p) for p in em.vmq)
        def g_loads():
            em(f's_mov_b64 exec, {sX0}'); self.wsload(v(G, 4), ga, sLine, l * 256 * MSG_B, tag='g')
            em(f's_mov_b64 exec, {sX1}'); self.wsload(v(G + 4, 4), ga, sLine, l * 256 * MSG_B + 8 * MSG_B, tag='g')
            em('s_mov_b64 exec, -1')
        def g_check():
            em(f'v_xor_b32 {A0}, {v(G)}, {tg}')
            for r in (3, 4, 7): em(f'v_bitop3_b32 {A0}, {v(G+r)}, {tg}, {A0} bitop3:0xbe')
            em(f'v_and_b32 {A0}, 0xff, {A0}'); em(f'v_cmp_ne_u32 vcc, 0, {A0}')
        def g_finish():
            for r in (0, 2): em(f'v_pk_add_f32 {v(G+r,2)}, {v(G+r,2)}, {v(G+4+r,2)}')
            for r in range(4): em(f'v_add_f32_dpp {v(G+r)}, {v(G+r)}, {v(G+r)} row_ror:8 {DPPM}')
            em(f'v_permlane16_swap_b32 {v(G)}, {v(G+1)}'); em(f'v_permlane16_swap_b32 {v(G+2)}, {v(G+3)}')
            em(f'v_add_f32 {v(G)}, {v(G)}, {v(G+1)}'); em(f'v_add_f32 {v(G+2)}, {v(G+2)}, {v(G+3)}')
            em(f'v_permlane32_swap_b32 {v(G)}, {v(G+2)}'); em(f'v_add_f32 {v(G)}, {v(G)}, {v(G+2)}')
            em(f'v_mul_f32 {v(G)}, {sFac}, {v(G)}'); em(f'v_mov_b32 {v(G+1)}, {v(G)}')
            em(f'v_permlane16_swap_b32 {v(G)}, {v(G+1)}'); em(f'v_cvt_pk_bf16_f32 {v(G)}, {v(G)}, {v(G+1)}')
            em('s_mov_b32 exec_lo, 0xff'); em('s_mov_b32 exec_hi, 0xff')
            self.wsstore(v(G), u, sKTo, l * 0x8000, width=1, sc=' sc1', tag='kt')
            em('s_mov_b64 exec, -1')
            em(f's_mov_b32 {sOK}, 1')
        def first():
            for r in range(4): em(f'v_mov_b32 {v(G+r)}, {v(M+r)}'); em(f'v_mov_b32 {v(G+4+r)}, {v(M+r)}')
            g_loads()
        def attempt():
            em.force_wait(vm=len([p for p in em.vmq if id(p) not in self.gmark]))
            g_check()
            L = em.newlabel('La'); E2 = em.newlabel('Lb')
            em(f's_cbranch_vccnz {L}')
            em.cond_begin(); g_finish(); em.cond_end()
            em(f's_branch {E2}')
            em.label(L)
            g_loads()
            em.label(E2)
        em(f's_xor_b32 {sOK}, {sRed}, 1')
        if_pending(first)
        self.ts('msg')
        side = Side(em)
        if l == 0: side.add(*self.cs_read_items(['q'], V))
        self.p1_bg(l, side)
        def fillq(ks):
            if ks == o.gstep: if_pending(attempt)
            return o.fill_p1
        self.pass1(self.pl['q'], Q, side, fillq)
        self.emit(self.corr_items('q', Q, False))
        side.flush()
        if self.lin:
            self.lin = False
            em(f'v_lshlrev_b32 {v(TMP)}, 8, {vHi}')
            for i in range(3): em(f'v_sub_u32 {vTr[i]}, {vTr[i]}, {v(TMP)}')
        self.barrier()
        self.ts('qpass')
        if o.gstep >= 32 or o.att2: if_pending(attempt)
        self.p1_after_q(l)
        self.emit(self.phi_items(Q, vRl, True, E))
        self.wsstore(v(Q, 4), vL16, sQst, 0); self.wsstore(v(Q + 4, 4), vL16, sQst, 0, off=1024)
        if o.rstpos == 1 and l == 0: self.emit(self.reset_items(ACC + 8, o.rst1))
        self.kt_addr()
        if not o.ts2: self.ts('qst')
        def loop():
            L = em.newlabel('Lg'); D = em.newlabel('Lgd')
            em.force_wait(vm=len([p for p in em.vmq if id(p) not in self.gmark]))
            em.label(L)
            g_check()
            em(f's_cbranch_vccz {D}')
            em.cond_begin(); g_loads(); em.force_wait(vm=0); em.cond_end()
            self.spin_tail(L)
            em.label(D)
            g_finish()
            em.force_wait(vm=1)
            em('s_mov_b64 exec, 1')
            em(f'v_mov_b32 {A0}, {sNonce}'); em(f's_add_u32 {sT2}, {sFlag}, {4*l*4096}')
            em(f'buffer_store_dword {A0}, off, {SWS}, {sT2}' + self.sc)
            em('s_mov_b64 exec, -1')
            em(f's_mov_b32 {sOK}, 0')
        if_pending(loop)
        if not o.ts2: self.ts('kvpoll')
        def cs_reduce():
            L0 = em.newlabel('Lc'); L = em.newlabel('Lc'); D = em.newlabel('Lc')
            em(f's_cmp_ge_u32 {sCsp}, 3'); em(f's_cbranch_scc1 {L0}')
            em.cond_begin()
            em(f's_lshl_b32 {sR}, {sCsp}, 7'); em(f's_add_u32 {sR}, {sR}, {sJmsg}')
            em.label(L)
            self.wsload(v(G, 4), ga, sR, 2176); self.wsload(v(G + 4, 4), ga, sR, 2176 + 8 * MSG_B)
            em(f'v_xor_b32 {A0}, {v(G)}, {tg}')
            for r in range(1, 8): em(f'v_bitop3_b32 {A0}, {v(G+r)}, {tg}, {A0} bitop3:0xbe')
            em(f'v_and_b32 {A0}, 0xff, {A0}'); em(f'v_cmp_ne_u32 vcc, 0, {A0}')
            em(f's_cbranch_vccz {D}')
            self.spin_tail(L)
            em.label(D)
            for r in (0, 2): em(f'v_pk_add_f32 {v(G+r,2)}, {v(G+r,2)}, {v(G+4+r,2)}')
            for r in range(4): em(f'v_add_f32_dpp {v(G+r)}, {v(G+r)}, {v(G+r)} row_ror:8 {DPPM}')
            em(f'v_permlane16_swap_b32 {v(G)}, {v(G+1)}'); em(f'v_permlane16_swap_b32 {v(G+2)}, {v(G+3)}')
            em(f'v_add_f32 {v(G)}, {v(G)}, {v(G+1)}'); em(f'v_add_f32 {v(G+2)}, {v(G+2)}, {v(G+3)}')
            em(f'v_permlane32_swap_b32 {v(G)}, {v(G+2)}'); em(f'v_add_f32 {v(G)}, {v(G)}, {v(G+2)}')
            em(f'v_cvt_pk_bf16_f32 {v(G+1)}, {v(G)}, {v(G)}'); em(f'v_lshlrev_b32 {v(G+1)}, 16, {v(G+1)}'); em(f'v_sub_f32 {v(G+1)}, {v(G)}, {v(G+1)}')
            em(f'v_cvt_pk_bf16_f32 {v(G)}, {v(G)}, {v(G+1)}')
            em(f'v_and_b32 {v(G+1)}, 7, {vLane}'); em(f'v_lshlrev_b32 {v(G+1)}, 4, {v(G+1)}'); em(f'v_lshrrev_b32 {v(G+2)}, 4, {vLane}'); em(f'v_lshl_add_u32 {v(G+1)}, {v(G+2)}, 2, {v(G+1)}')
            em(f's_mul_i32 {sT2}, {sJ}, 384'); em(f's_lshl_b32 {sR}, {sCsp}, 7'); em(f's_add_u32 {sT2}, {sT2}, {sR}')
            em('s_mov_b32 exec_lo, 0x00ff00ff'); em('s_mov_b32 exec_hi, 0x00ff00ff')
            self.wsstore(v(G), v(G + 1), sT2, WS_CS, width=1, sc=' sc1', tag='kt')
            em('s_mov_b64 exec, -1')
            em.cond_end()
            em.label(L0)
        def mid():
            if l == 0: cs_reduce()
            def l2w2():
                em(f'v_lshlrev_b32 {v(G)}, 7, {vLane}'); em(f's_lshr_b32 {sT2}, s2, 3'); em(f's_mul_i32 {sT2}, {sT2}, {344*128}')
                for k in range(6):
                    if k == 5: em('s_mov_b64 exec, 0xffffff')
                    em(f's_add_u32 {sT}, {sT2}, {k*8192}')
                    em(f'buffer_load_dword {v(G+1+k)}, {v(G)}, {SW2}, {sT} offen', tag='l2')
                    if o.thr2 and k >= o.thr2 - 1: em.force_wait(vm=o.thr2 - 1)
                em('s_mov_b64 exec, -1')
                em.vmq = [p for p in em.vmq if p.tag != 'l2']
            if l == 0 and o.tw2 == 1: self.only_wave(3, l2w2)
            self.p1_gap(l)
            if o.share:
                n = o.share if l == 0 else o.share2
                for m in range(n): self.w1dma(0, m, 'w1a'); self.w1dma(1, m, 'w1a')
                self.w1_todo = list(range(n, 4)) + [m for m in self.w1_todo if m >= 4]
            else: self.only_wave(3, lambda: self.p1_loader(l, 3))
            if l == 0 and o.tw2 == 2: self.only_wave(3, l2w2)
        self.group_sync(4 * l + 0, mid=mid, bar=False, skipif=sOK, tags=None)

    def w1dma(self, p, m, tag):
        if p != 1: self.rot(m, 64 * 2752, sW1c0)
        if p == 1: self.em(f's_add_u32 {sR}, {sR}, {sW1d}')
        self.dma(SW1, vD1, sR, 64 if p == 2 else 0, self.w1pl[p][m], tag)

    def p1_bg(self, l, side):
        em = self.em; o = self.o
        self.w1pl = [[16, 17, 18, 19, 24, 25, 26, 27], [20, 21, 22, 23, 28, 29, 30, 31], list(range(32, 40))]
        pad = ['s_nop 0'] * o.bgpad
        if l == 0:
            def res():
                t = v(MR + 16)
                em(f'v_lshrrev_b32 {t}, 2, {vLane}'); em(f's_lshl_b32 {sT2}, {sW}, 4'); em(f'v_add_u32 {t}, {sT2}, {t}'); em(f'v_lshlrev_b32 {t}, 10, {t}')
                em(f'v_and_b32 {v(MR+17)}, 3, {vLane}'); em(f'v_lshl_add_u32 {t}, {v(MR+17)}, 4, {t}')
                em(f'buffer_load_dwordx4 {a(RES,4)}, {t}, {SX}, {sOutRow} offen', tag='res')
                em(f'buffer_load_dwordx4 {a(RES+4,4)}, {t}, {SX}, {sOutRow} offen offset:64', tag='res')
            side.add(res)
            side.add(self.late_setup)
            for i in range(5): side.add(lambda i=i: self.stage_dma(SWO, i, self.stq[2 * i], self.stq[2 * i + 1], 'wo'), *pad)
            if o.rstpos == 0: side.add(*self.reset_items(ACC + 8, o.rst1))
            self.w1_todo = [4, 5, 6, 7]
        else:
            for m in range(4, 4 + o.w1_early): side.add(lambda m=m: (self.w1dma(0, m, 'w1a'), self.w1dma(1, m, 'w1a')), *pad)
            self.w1_todo = list(range(4 + o.w1_early, 8))

    def late_setup(self):
        em = self.em
        em(f's_sub_u32 {sW1d}, {sW1c2}, {sW1c0}')
        em(f's_lshl_b32 {sT2}, {sW}, 13'); em(f's_add_u32 {sT2}, {sT2}, {S_ADDR}'); em(f'v_add_u32 {vRW}, {sT2}, {vL16}')
        em(f's_lshr_b32 {sT}, {sW}, 1'); em(f's_lshl_b32 {sT2}, {sT}, 12'); em(f's_and_b32 {sR}, {sW}, 1'); em(f's_lshl_b32 {sR}, {sR}, 8')
        em(f's_add_u32 {sT2}, {sT2}, {sR}'); em(f's_add_u32 {sT2}, {sT2}, {S_ADDR}')
        em(f'v_lshl_add_u32 {vRR}, {vHi}, 10, {vP}'); em(f'v_add_u32 {vRR}, {sT2}, {vRR}')
        for m in range(8):
            em(f's_add_u32 {sXm[m]}, {sRot}, {m}'); em(f's_and_b32 {sXm[m]}, {sXm[m]}, 7'); em(f's_and_b32 {sR}, {sXm[m]}, 1')
            em(f's_lshl_b32 {sXm[m]}, {sXm[m]}, 1'); em(f's_add_u32 {sXm[m]}, {sXm[m]}, {sR}'); em(f's_lshl_b32 {sXm[m]}, {sXm[m]}, 11'); em(f's_xor_b32 {sXl[m]}, {sXm[m]}, 2048')
        for k in range(4):
            w0, w1_ = [sum(m << (5 * i) for i, m in enumerate(ORD4[c][6 * k:6 * k + 6])) for c in range(2)]
            em(f's_mov_b32 {sTab[k]}, {w0:#x}'); em(f's_cmp_eq_u32 {sT}, 0'); em(f's_cselect_b32 {sTab[k]}, {sTab[k]}, {w1_:#x}')

    def p1_after_q(self, l):
        if l == 0:
            for i in range(5, 8): self.stage_dma(SWO, i, self.stq[2 * i], self.stq[2 * i + 1], 'wo')

    def p1_gap(self, l):
        em = self.em; o = self.o
        if l == 0:
            em.wait_vm_tag('wo')
            for i in range(8): self.emit(self.stage_read_items(WOA, i, self.stq[2 * i], self.stq[2 * i + 1]))
            em.wait_lg(0)
            self.res_first()
            self.w2next = 0
            self.b1 = self.w2_batch(list(range(32, 40))[:2 * o.w2b1], 'w2a')
            for m in range(4, 4 + o.w1_gap): self.w1dma(0, m, 'w1a'); self.w1dma(1, m, 'w1a')
            self.w1_todo = list(range(4 + o.w1_gap, 8))
            if o.b1gap: self.emit(self.b1[0])

    def p1_loader(self, l, w):
        em = self.em; o = self.o
        vo = v(TMP)
        em(f'v_subrev_u32 {vo}, {w*16*2752}, {vD1}')
        for m in range(o.w1_solo):
            self.rot(m, 64 * 2752, sW1c0)
            for s in range(4):
                if s == 0: em(f's_add_u32 {sFx}, {sR}, {sW1d}')
                for p in range(2): self.dma(SW1, vo, sFx if p else sR, s * 16 * 2752, self.w1pl[p][m], 'solo', slot=s)
                if o.thr: em.force_wait(vm=o.thr)
        self.w1_todo = list(range(o.w1_solo, 4)) + [m for m in self.w1_todo if m >= 4]

    def w2_batch(self, quads, tag):
        steps = list(range(self.w2next, min(22, self.w2next + len(quads) // 2)))
        self.w2next += len(steps)
        issue = [lambda k=k, m=m: self.stage_dma(SW2, m, quads[2 * k], quads[2 * k + 1], tag) for k, m in enumerate(steps)]
        read = [lambda: self.em.wait_vm_tag(tag)] if steps else []
        for k, m in enumerate(steps): read += self.stage_read_items(W2A, m, quads[2 * k], quads[2 * k + 1])
        return issue, read

    def res_first(self):
        em = self.em
        t0, t1, t2 = v(TMP), v(TMP + 1), v(TMP + 2)
        em(f's_add_u32 {sT2}, {sWl}, {self.S}')
        em(f'v_add_u32 {t0}, {sT2}, {vL16}')
        em(f'v_and_b32 {t1}, 15, {vLane}'); em(f'v_lshlrev_b32 {t1}, 6, {t1}'); em(f'v_lshl_add_u32 {t1}, {vHi}, 5, {t1}')
        em(f'v_bfe_u32 {t2}, {vLane}, 4, 1'); em(f'v_lshl_add_u32 {t1}, {t2}, 3, {t1}'); em(f'v_add_u32 {t1}, {sT2}, {t1}')
        for h in range(2): em(f'ds_write_b128 {t0}, {a(RES+4*h,4)} offset:{h*4096}')
        em.wait_lg(0)
        for h in range(2):
            em(f'ds_read_b64 {a(RES+4*h,2)}, {t1} offset:{h*4096}'); em(f'ds_read_b64 {a(RES+4*h+2,2)}, {t1} offset:{h*4096+16}')
        em.wait_lg(0)
    def res_last_items(self, lds):
        t0, t1, t2 = v(TMP), v(TMP + 1), v(TMP + 2)
        it = [f'v_and_b32 {t0}, 15, {vLane}', f'v_mul_u32_u24 {t0}, 144, {t0}', f'v_lshl_add_u32 {t0}, {vHi}, 5, {t0}',
              f'v_bfe_u32 {t1}, {vLane}, 4, 1', f'v_lshl_add_u32 {t0}, {t1}, 3, {t0}',
              f's_mul_i32 {sT2}, {sW}, {16*144}', f's_add_u32 {sT2}, {sT2}, {lds}', f'v_add_u32 {t0}, {sT2}, {t0}',
              f'v_lshrrev_b32 {t1}, 3, {vLane}', f'v_mul_u32_u24 {t1}, 144, {t1}', f'v_and_b32 {t2}, 7, {vLane}', f'v_lshl_add_u32 {t1}, {t2}, 4, {t1}',
              f's_mul_i32 {sT2}, {sW}, {8*144}', f's_add_u32 {sT2}, {sT2}, {lds}', f'v_add_u32 {t1}, {sT2}, {t1}']
        for c in range(2):
            it += [f'ds_write_b64 {t0}, {a(RES+4*c,2)} offset:{c*64}', f'ds_write_b64 {t0}, {a(RES+4*c+2,2)} offset:{c*64+16}']
        it2 = [f'ds_read_b128 {a(RES+4*h,4)}, {t1} offset:{h*32*144}' for h in range(2)]
        return it, it2
    def kt_addr(self):
        em = self.em
        t0, t1, t2 = v(TMP + 1), v(TMP + 2), v(TMP + 3)
        em(f'v_and_b32 {t0}, 15, {vLane}'); em(f'v_lshlrev_b32 {t0}, 4, {t0}'); em(f'v_lshl_add_u32 {t0}, {vHi}, 8, {t0}')
        em(f'v_lshlrev_b32 {t1}, 4, {vHi}'); em(f'v_add_u32 {t1}, 512, {t1}'); em(f'v_and_b32 {t2}, 16, {vLane}'); em(f'v_cmp_ne_u32 vcc, 0, {t2}')
        em(f'v_cndmask_b32 {t0}, {t0}, {t1}, vcc'); em(f's_mul_i32 {sT2}, {sW}, 544'); em(f'v_add_u32 {v(vKT)}, {sT2}, {t0}')
    def final_addr_items(self):
        t0, t1, t2 = v(20), v(21), v(MR)
        it = [f's_lshl_b32 {sT2}, {sW}, 13', f's_add_u32 {sT2}, {sT2}, {self.S}', f'v_add_u32 {v(FW)}, {sT2}, {vL16}']
        it += [f'v_xor_b32 {v(FW+i)}, {64*i}, {v(FW)}' for i in range(1, 4)]
        it += [f'v_and_b32 {t1}, 7, {vLane}', f's_lshl_b32 {sT2}, {sW}, 3', f'v_add_u32 {t0}, {sT2}, {t1}',
               f'v_lshrrev_b32 {t2}, 3, {vLane}', f'v_lshlrev_b32 {v(FB)}, 2, {t2}', f'v_lshlrev_b32 {v(FS)}, 9, {t2}', f'v_lshl_add_u32 {v(FS)}, {t0}, 4, {v(FS)}',
               f's_lshl_b32 {sT2}, {sW}, 3', f'v_add_u32 {t0}, {sT2}, {t2}',
               f'v_lshlrev_b32 {v(FO)}, 10, {t0}', f'v_lshl_add_u32 {v(FO)}, {t1}, 4, {v(FO)}',
               f'v_and_b32 {t2}, 3, {vLane}', f'v_lshlrev_b32 {t2}, 2, {t2}', f'v_xor_b32 {t2}, {t2}, {t0}', f'v_lshlrev_b32 {t2}, 4, {t2}',
               f'v_lshl_add_u32 {v(FR)}, {t1}, 10, {t2}', f'v_add_u32 {v(FR)}, {self.S:#x}, {v(FR)}']
        return it

    def unpack_items(self, half, U):
        it = [f'v_accvgpr_read_b32 {v(U+2*r+1)}, {a(RES+4*half+r)}' for r in range(4)]
        for r in range(4):
            it += [f'v_lshlrev_b32 {v(U+2*r)}, 16, {v(U+2*r+1)}', f'v_and_b32 {v(U+2*r+1)}, 0xffff0000, {v(U+2*r+1)}']
        return it
    def reduce_items(self, half, acc0, acc1, R, U, rs, xoff, sti, final, unpack, after_store=()):
        em = self.em
        it = []
        for c in range(8):
            src = v((acc0 if c < 4 else acc1) + 4 * (c & 3), 4)
            it.append(f'ds_write_b128 {v(FW + (c & 3)) if final else vRW}, {src} offset:{c*1024}')
        it.append(self.barrier)
        o2 = 512 if final else 1024; rd = v(FR) if final else vRR
        for w in range(4):
            it.append(f'ds_read_b128 {v(R+8*w,4)}, {rd} offset:{w*8192}'); it.append(f'ds_read_b128 {v(R+8*w+4,4)}, {rd} offset:{w*8192+o2}')
        if unpack: it += self.unpack_items(half, U)
        add = lambda d, s_: [f'v_pk_add_f32 {v(d+r,2)}, {v(d+r,2)}, {v(s_+r,2)}' for r in range(0, 8, 2)]
        if rs is None: it += add(R, U)
        it += add(R, R + 8) + add(R + 16, R + 24) + add(R, R + 16)
        if rs is not None: it += [f'v_pk_fma_f32 {v(R+r,2)}, {v(R+r,2)}, {v(rs,2)}, {v(U+r,2)} op_sel_hi:[1,0,1]' for r in range(0, 8, 2)]
        P = R + 8
        for r in range(4): it.append(f'v_cvt_pk_bf16_f32 {v(P+r)}, {v(R+2*r)}, {v(R+2*r+1)}')
        if final:
            def st():
                em(f's_add_u32 {sT}, {sOutRow}, {half*32768}')
                em(f'buffer_store_dwordx4 {v(P,4)}, {v(FO)}, {SOUT}, {sT} offen' + self.o.outsc, tag='st')
            it.append(st)
            return it
        it += [f'v_accvgpr_write_b32 {a(RES+4*half)}, {v(P)}', f'v_and_b32 {v(P)}, -2, {v(P)}' if sti == 1 else f'v_or_b32 {v(P)}, 1, {v(P)}']
        def stx():
            em(f's_and_b32 {sT}, {sJ}, 1'); em(f's_xor_b32 {sT}, {sT}, {half}'); em(f's_lshl_b32 {sT}, {sT}, 11'); em(f's_add_u32 {sT}, {sT}, {sXst}')
            em(f'buffer_store_dwordx4 {v(P,4)}, {vP}, {SWS}, {sT} offen' + self.sc, tag='st')
        it.append(stx)
        it += list(after_store)
        S, Q = AUX, AUX + 2
        if half == 0:
            it += [f'v_pk_add_f32 {v(S,2)}, {v(R,2)}, {v(R+2,2)}', f'v_pk_mul_f32 {v(Q,2)}, {v(R,2)}, {v(R,2)}', f'v_pk_fma_f32 {v(Q,2)}, {v(R+2,2)}, {v(R+2,2)}, {v(Q,2)}']
        for r in ((4, 6) if half == 0 else (0, 2, 4, 6)):
            it += [f'v_pk_add_f32 {v(S,2)}, {v(S,2)}, {v(R+r,2)}', f'v_pk_fma_f32 {v(Q,2)}, {v(R+r,2)}, {v(R+r,2)}, {v(Q,2)}']
        it += [f'v_accvgpr_write_b32 {a(RES+4*half+r)}, {v(P+r)}' for r in range(1, 4)]
        if half == 1:
            T = v(S + 1)
            it += [f'v_add_f32 {v(S)}, {v(S)}, {v(S+1)}', f'v_add_f32 {v(Q)}, {v(Q)}, {v(Q+1)}', f'v_and_b32 {v(Q+1)}, 512, {vP}', f'v_add_u32 {v(Q+1)}, {v(Q+1)}, {vP}',
                   f'v_permlane16_swap_b32 {v(S)}, {v(Q)}', f'v_add_f32 {v(S)}, {v(S)}, {v(Q)}', f'v_mov_b32 {T}, {v(S)}', f'v_permlane32_swap_b32 {v(S)}, {T}', f'v_add_f32 {v(S)}, {v(S)}, {T}',
                   f'v_or_b32 {v(S)}, 1, {v(S)}']
            def st2():
                em('s_mov_b32 exec_hi, 0')
                self.wsstore(v(S), v(Q + 1), sStst, sti * 16 * 8192, width=1)
                em('s_mov_b64 exec, -1')
            it.append(st2)
        return it

    def two_halves(self, mfs, A, rs, xoff, sti, pre_wait=None):
        em = self.em; o = self.o
        r0 = self.reduce_items(0, A[0][0], A[1][0], MR, BB, rs, xoff, sti, False, False)
        r1 = self.reduce_items(1, A[0][1], A[1][1], MR, BB + 8, rs, xoff, sti, False, False)
        W0, RD0, V0 = r0[:8], r0[9:17], r0[17:]
        W1, RD1, V1 = r1[:8], r1[9:17], r1[17:]
        fill = self.unpack_items(0, BB) + self.unpack_items(1, BB + 8)
        mfs = list(mfs)
        nA = len(mfs) - o.mfB
        wq = list(W0)
        for k in range(nA):
            mfs.pop(0)()
            if wq and (k * 8 >= (8 - len(wq)) * nA - 4): em(wq.pop(0))
            for t in fill[:3]: em(t)
            fill = fill[3:]
        self.emit(wq + fill)
        self.barrier()
        for k, t in enumerate(RD0):
            em(t)
            if k % 3 == 1 and mfs: mfs.pop(0)()
        self.emit(mfs)
        na = 12 if rs is None else 8
        self.emit(V0[:na]); V0 = V0[na:]
        if pre_wait: pre_wait()
        self.barrier()
        self.ts('h0')
        pf = [lambda: self.x_prefetch(xoff, 0, 0)] + [lambda i=i: self.xld(i) for i in range(o.pre)]
        n0 = o.pf0
        for k, t in enumerate(W1):
            em(t)
            self.emit(V0[:4]); V0 = V0[4:]
            if k >= 8 - n0: self.emit(pf[:2 if len(pf) == o.pre + 1 else 1]); pf = pf[2 if len(pf) == o.pre + 1 else 1:]
        self.emit(V0)
        self.barrier()
        self.emit(RD1)
        self.emit(pf[:o.pf1 + (1 if len(pf) == o.pre + 1 else 0)]); pf = pf[o.pf1 + (1 if len(pf) == o.pre + 1 else 0):]
        ks = [k for k, t in enumerate(V1) if callable(t)][0]
        self.emit(V1[:ks + 1]); V1 = V1[ks + 1:]
        while pf or V1:
            self.emit(V1[:3]); V1 = V1[3:]
            self.emit(pf[:1]); pf = pf[1:]

    def p2(self, l):
        em = self.em; o = self.o
        KT, QF = AF, AF + 32
        A = [[ACC, ACC + 32], [ACC + 16, 232]]
        DB = [MR, MR + 16, BB]
        def rot2(i, stride, base):
            em(f's_add_u32 {sR}, {sRot2}, {i}'); em(f's_and_b32 {sR}, {sR}, 7'); em(f's_mul_i32 {sR}, {sR}, {stride}')
            if base: em(f's_add_u32 {sR}, {sR}, {base}')
        KB = lambda i: (ACC + 32 + 4 * i) if i < 4 else (232 + 4 * (i - 4))
        KA = lambda i: KT + 4 * i
        def ldk(i, B=KA): rot2(i, 2176, None); self.wsload(v(B(i), 4), v(vKT), sR, WS_KT + l * 0x8000, tag='K')
        def ldq(n): rot2(n % 8, 4096, sQR); self.wsload(v(QF + 4 * n, 4), vL16, sR, (n // 8) * 32768, tag='A')
        ck = v(TMP + 2)
        def kchk(B):
            em(f'v_max_u32 {ck}, {v(B(0))}, {v(B(0)+1)}')
            for i in range(1, 16): em(f'v_max3_u32 {ck}, {v(B(i//2)+2*(i%2))}, {v(B(i//2)+2*(i%2)+1)}, {ck}')
            em(f'v_cmp_eq_u32 vcc, -1, {ck}')
        L = em.newlabel('Lk'); D = em.newlabel('Lkd'); C = em.newlabel('Lkc')
        if o.kdual:
            for i in range(8): ldk(i)
            for n in range(16): ldq(n)
            for i in range(8): ldk(i, KB)
            em.wait_vm(8)
            em.vmq = []
            em.label(L)
            kchk(KA); em(f's_cbranch_vccz {D}')
            for i in range(8): ldk(i)
            em.force_wait(vm=8); em.vmq = []
            kchk(KB); em(f's_cbranch_vccz {C}')
            for i in range(8): ldk(i, KB)
            em.force_wait(vm=8); em.vmq = []
            self.spin_tail(L)
            em.label(C)
            for r in range(0, 32, 2): em(f'v_pk_mov_b32 {v(KT+r,2)}, {v(KB(r//4)+r%4,2)}, {v(KB(r//4)+r%4,2)} op_sel:[0,1]')
            em.label(D)
        else:
            if o.kfirst:
                for i in range(8): ldk(i)
            for n in range(16): ldq(n)
            if not o.kfirst:
                for i in range(8): ldk(i)
            if l == 0 and o.w2b1b:
                self.emit(self.b1[1])
                self.b1 = self.w2_batch(list(range(32, 40))[:2 * o.w2b1b], 'w2f')
            em.label(L)
            kchk(KA)
            em(f's_cbranch_vccz {D}')
            em.cond_begin()
            for i in range(8): ldk(i)
            em.force_wait(vm=0)
            em.cond_end()
            self.spin_tail(L)
            em.label(D)
        self.ts('kt')
        side = Side(em)
        def attn(n): em(f'{MF} {v(DB[n%3],16)}, {v(KT+4*(n%8),4)}, {v(QF+4*n,4)}, 0')
        def post(n):
            D = DB[n % 3]; O = QF + 4 * n; rc = v(D + 8)
            it = [f'v_add_f32 {rc}, {s1em6}, {rc}', f'v_rcp_f32 {rc}, {rc}']
            it += [f'v_mul_f32 {v(D+r)}, {v(D+r)}, {rc}' for r in range(8)]
            it += [f'v_cvt_pk_bf16_f32 {v(O+r)}, {v(D+2*r)}, {v(D+2*r+1)}' for r in range(4)]
            return it
        def wo(n, c):
            h, i = divmod(n, 8)
            cc = v(A[h][c], 16)
            em(f'{MF} {cc}, {a(WOA + i*8 + c*4, 4)}, {v(QF+4*n,4)}, ' + ('0' if i == 0 else cc))
        attn(0); attn(1)
        self.p2_bg(l, side)
        side.run(2)
        self.emit(post(0))
        E1 = o.early1
        for n in range(16):
            nxt = post(n + 1) if n + 1 < 16 else []
            if n + 2 < 16: attn(n + 2)
            if nxt: em(nxt[0]); em(nxt[1])
            side.clk(o.gap2)
            for t in nxt[2:8]: em(t)
            wo(n, 0)
            for t in nxt[8:11]: em(t)
            if n < E1: wo(n, 1)
            for t in nxt[11:]: em(t)
        side.flush()
        if o.kdual:
            assert E1 == 0
            em.force_wait(vm=len(em.vmq))
        self.ts('p2loop')
        xoff = 0; sti = 2 * l
        pre = (self.b1[1] + [self.barrier]) if l == 0 else []
        self.emit(pre)
        pw = (lambda: em.force_wait(vm=0)) if (l == 0 and 'h' not in o.rst1) else None
        self.two_halves([lambda n=n: wo(n, 1) for n in range(E1, 16)], A, None, xoff, sti, pw)
        self.p2_tail(l)

    def p2_bg(self, l, side):
        em = self.em
        if self.o.cpf2 & (1 if l == 0 else 4): side.add(lambda: self.code_pf(v(248, 4), v(252)))
        if self.o.retouch: side.add(lambda: self.retouch(0, v(254), v(254)))
        if l == 0:
            if 'h' not in self.o.rst1: side.add(*self.reset_items(248, 'h'))
            side.add(lambda: self.cs_loads(em))
            if self.o.w2b1b: side.add(lambda: em.wait_lg(0)); side.add(*self.b1[0])
        for m in self.w1_todo: side.add(lambda m=m: (self.w1dma(0, m, 'w1a'), self.w1dma(1, m, 'w1a')))
        if l == 1:
            for m in range(8): side.add(lambda m=m: self.w1dma(2, m, 'w1a'))
    def retouch(self, off, vt, dst):
        em = self.em
        em(f'v_lshlrev_b32 {vt}, 7, {vLane}')
        em(f's_and_b32 {sT2}, {sW}, 1'); em(f's_mul_i32 {sT2}, {sT2}, 1792'); em(f's_add_u32 {sT2}, {sT2}, {sXst}'); em(f's_add_u32 {sT2}, {sT2}, {off}')
        em('s_mov_b64 exec, 0xffff')
        em(f'buffer_load_dword {dst}, {vt}, {SWS}, {sT2} offen sc1', tag='touch')
        em('s_mov_b64 exec, -1')
    def code_pf(self, dst, vt):
        em = self.em
        L = em.newlabel('Lpc')
        end = 'L_slow' if not self.sc else 'L_codeend'
        em(f's_getpc_b64 {sEx}'); em.label(L)
        em(f's_lshr_b32 {sT}, s2, 3'); em(f's_lshl_b32 {sT}, {sT}, 2'); em(f's_add_u32 {sT}, {sT}, {sW}'); em(f's_lshl_b32 {sT}, {sT}, 10')
        em(f's_min_u32 {sT}, {sT}, {end}-{L}-1024')
        em(f'v_add_u32 {vt}, {sT}, {vL16}')
        em(f'global_load_dwordx4 {dst}, {vt}, {sEx}', tag='touch')
    def cs_loads(self, e):
        e(f'v_and_b32 {v(255)}, 31, {vLane}'); e(f'v_lshlrev_b32 {v(255)}, 2, {v(255)}'); e(f's_mul_i32 {sFx}, {sJ}, 384'); e(f's_add_u32 {sFx}, {sFx}, {WS_CS}')
        for p in range(3): e(f'buffer_load_dword {CS[p]}, {v(255)}, {SWS}, {sFx} offen offset:{(0, 256, 128)[p]} sc1', tag='cs')

    def p2_tail(self, l):
        em = self.em; o = self.o
        if l == 0: self.check([CS[0], CS[1], CS[2], CS[2]], self.cs_loads, v(TMP))
        em.wait_vm_tag('w1a')
        self.barrier()
        if l == 0 and not o.p2late:
            for m in range(8): self.w1dma(2, m, 'w1c')
        self.ts(f'end{4*l+1}')

    def hld(self, n, final, e=None):
        e = e or self.em
        st, h = (n % 22, n // 22) if final else (n // 2, n % 2)
        if st == 21: so = sLim4
        else: self.tab4(st, sFx, 12, e); so = sFx
        r = e(f'buffer_load_dwordx4 {v(AF + 4 * (n % 24), 4)}, {v(32 + h)}, {SWS}, {so} offen sc1', tag='A')
        if r is not None: self.ldidx[id(r)] = n
    def p3(self, l):
        em = self.em; o = self.o
        ld, chk = self.a_loader(o.pre, 2 * l, sTxn)
        side = Side(em)
        side.add(*self.aux_const_items())
        if l == 1: rl_w, rl_r = self.res_last_items(8 * 4096); side.add(*rl_w)
        def ld2(i):
            ld(i)
            if i == o.statstep: side.add(*self.stats_T_items(False, 2 * l))
            if l == 0 and o.p2late and o.p2late <= i < o.p2late + 8: self.w1dma(2, i - o.p2late, 'w1c')
            if l == 0 and i == 26:
                side.add(self.barrier)
                self.b2 = self.w2_batch(list(range(16, 24))[:2 * o.w2b2], 'w2b')
                side.add(*self.b2[0])
        self.pass2(XORD, self.w1pl[:2], [ACC, ACC + 16], False, side, lambda i: 1 if i < o.statstep else o.fill2, loader=ld2, extra=chk)
        side.flush()
        self.emit(self.corr_items(0, ACC, False)); self.emit(self.corr_items(1, ACC + 16, False))
        if l == 0: em.wait_vm_tag('w1c')
        self.barrier()
        if l == 1: self.emit(rl_r)
        self.ts('p3a')
        def epi(p):
            A = ACC + 16 * p
            it = [f'v_cvt_pk_bf16_f32 {v(A+r)}, {v(A+2*r)}, {v(A+2*r+1)}' for r in range(8)]
            it += [f'v_pk_max_i16 {v(A+r)}, {v(A+r)}, 0' for r in range(8)]
            if l == 0: it += [f'v_or_b32 {v(A+r)}, 0x80000000, {v(A+r)}' for r in (0, 4)]
            return it
        def st(p):
            A = ACC + 16 * p
            if p == 1:
                em(f's_lshl_b32 {sT2}, {sW1d}, 5'); em(f's_add_u32 {sT2}, {sT2}, {sHks}')
                self.wsstore(v(A, 4), vL16, sT2, 0); self.wsstore(v(A + 4, 4), vL16, sT2, 0, off=1024)
            else: self.wsstore(v(A, 4), vL16, sHks, p * 1024); self.wsstore(v(A + 4, 4), vL16, sHks, p * 1024, off=1024)
        side.add(*(epi(0) + [lambda: st(0)] + epi(1) + [lambda: st(1)]))
        side.add(f'v_add_u32 {v(32)}, {sHR}, {vL16}', f'v_add_u32 {v(33)}, {H_T}, {v(32)}')
        if l == 0:
            self.b3 = self.w2_batch(list(range(24, 32))[:2 * o.w2b3], 'w2c')
            side.add(*self.b3[0])
            side.add(*self.b2[1]); side.add(lambda: em.wait_lg(0))
            self.b3b = self.w2_batch(list(range(16, 24))[:2 * o.w2b3b], 'w2e')
            side.add(*self.b3b[0])
        else: side.add(*self.final_addr_items())
        def fill(ks):
            if ks == o.hpf: side.flush()
            if ks >= o.hpf and (ks - o.hpf) % o.hstr == 0 and (ks - o.hpf) // o.hstr < o.pre4: self.hld((ks - o.hpf) // o.hstr, l == 1)
            return o.fill_p3 if ks >= 2 else 0
        assert o.hpf >= o.pre4 and o.hpf + (o.pre4 - 1) * o.hstr < 32
        self.pass1(self.w1pl[2], ACC + 32, side, fill)
        self.emit(self.corr_items(2, ACC + 32, False))
        side.flush()
        self.ts('p3b')
        if l == 0:
            self.barrier()
            self.b4 = self.w2_batch(list(range(32, 40)) + list(range(24, 32)) + list(range(16, 24)), 'w2d')
            self.emit(self.b4[0][:4])
        self.emit(epi(2))
        L = em.newlabel('Lh3')
        em(f's_cmp_ge_u32 {sJ}, 11'); em(f's_cbranch_scc1 {L}')
        em.cond_begin(); st(2); em.cond_end()
        em.label(L)
        if l == 0:
            self.emit(self.b3[1]); self.emit(self.b3b[1])
            if len(self.b4[0]) > 4: em.wait_lg(0); self.emit(self.b4[0][4:])
            assert self.w2next == 22
        self.ts(f'end{4*l+2}')

    def p4(self, l):
        em = self.em; o = self.o
        final = l == 1
        A = [[ACC, ACC + 16], [ACC + 32, 232]] if final else [[ACC, ACC + 32], [ACC + 16, 232]]
        side = Side(em)
        S, Q = v(AUX), v(AUX + 1); RS = [TMP, CB]
        def stl(e):
            e(f's_add_u32 {sFx}, {sStR if final else sStM}, {2 * l * 16 * 8192}')
            e(f'buffer_load_dwordx4 {v(AUX,4)}, {v(FS) if final else vP}, {SWS}, {sFx} offen sc1', tag='stat')
        stl(em)
        if o.cpf2 & 2 and not final: self.code_pf(v(248, 4), v(252))
        if o.retouch and not final: self.retouch(X2OFF, v(254), v(254))
        side.add(lambda: self.check([v(AUX + r) for r in range(4)], stl, v(CB + 2), kind='x', tag=sTxn))
        side.add(f'v_add_f32 {S}, {S}, {v(AUX+1)}', f'v_add_f32 {v(AUX+2)}, {v(AUX+2)}, {v(AUX+3)}', f'v_add_f32 {S}, {S}, {v(AUX+2)}')
        if final:
            side.add(f'v_add_f32_dpp {S}, {S}, {S} row_ror:8 {DPPM}', f'v_mov_b32 {Q}, {S}', f'v_permlane16_swap_b32 {S}, {Q}')
        else:
            side.add(f'v_mov_b32 {Q}, {S}', f'v_permlane16_swap_b32 {S}, {Q}', f'v_add_f32 {S}, {S}, {Q}', f'v_mov_b32 {Q}, {S}', f'v_permlane32_swap_b32 {S}, {Q}')
        side.add(f'v_mul_f32 {S}, {sInv}, {S}', f'v_mul_f32 {Q}, {sInv}, {Q}', f'v_fma_f32 {Q}, -{S}, {S}, {Q}', f'v_max_f32 {Q}, 0, {Q}',
                 f'v_add_f32 {Q}, {sEps}, {Q}', f'v_rsq_f32 {v(RS[1])}, {Q}')
        if final:
            side.add(f'v_mov_b32 {v(CB+2)}, {v(RS[1])}', f'v_permlane32_swap_b32 {v(CB+2)}, {v(RS[1])}',
                     f'ds_bpermute_b32 {v(CB+2)}, {v(FB)}, {v(CB+2)}', f'ds_bpermute_b32 {v(RS[1])}, {v(FB)}, {v(RS[1])}')
            RS = [CB + 2, CB]
        else: RS = [CB, CB]
        b4 = list(self.b4[1]) if l == 0 else []
        first4 = 2 * (22 - (len(b4) - 1) // 2) if b4 else 99
        if l == 0: side.add(self.barrier)
        dec = (lambda n: (n % 22, n // 22)) if final else (lambda n: (n // 2, n % 2))
        def mf(n, c):
            st, h = dec(n)
            cc = v(A[h][c], 16)
            em(f'{MF} {cc}, {a(W2A + st*8 + c*4, 4)}, {v(AF + 4 * (n % 24), 4)}, ' + ('0' if st == 0 else cc))
        def chk(n):
            if n % 2: return None
            return self.check([v(AF + 4 * (n % 24)), v(AF + 4 * ((n + 1) % 24))], lambda e: (self.hld(n, final, e), self.hld(n + 1, final, e)), v(38), split=True,
                              kind='h', tag=sTh if final else sThn, again=lambda e, p: self.hld(self.ldidx[id(p)], final, e))
        T4 = o.tail4 if final else o.tail4n
        br = chk(0)
        for n in range(44):
            assert n < first4 or not b4
            if br: br()
            both = n < 44 - T4
            mf(n, 0)
            if n + o.pre4 < 44: self.hld(n + o.pre4, final)
            if n + 1 < 44: br = chk(n + 1)
            if b4 and n >= o.b4start: self.emit([b4.pop(0)])
            elif n >= 8: side.clk(4 if both else o.gap4)
            if both:
                mf(n, 1)
                if n >= 8 and not b4: side.clk(o.gap4)
            if final and o.wb and n == o.wbstep:
                L = em.newlabel('Lwb')
                if o.wb == 1: em(f's_cmp_lg_u32 {sW}, 3')
                else: em(f's_lshr_b32 {sT}, s2, 3'); em(f's_or_b32 {sT}, {sT}, {sW}'); em(f's_cmp_lg_u32 {sT}, 0')
                em(f's_cbranch_scc1 {L}')
                em.out.append(' buffer_wbl2 sc1')
                em.label(L)
            if final and n == 22:
                side.add(*self.reduce_items(0, A[0][0], A[0][1], MR, ACC, RS[0], 0, 0, True, True))
                side.add(*self.unpack_items(1, ACC + 16)); side.add(self.barrier)
        side.flush()
        self.ts('p4loop')
        if final:
            tail = self.reduce_items(1, A[1][0], A[1][1], MR, ACC + 16, RS[1], 0, 0, True, False)
            for k, n in enumerate(range(44 - T4, 44)):
                mf(n, 1)
                if k >= 1: em(tail.pop(0))
            self.emit(tail)
            return
        self.two_halves([lambda n=n: mf(n, 1) for n in range(44 - T4, 44)], A, RS[0], X2OFF, 1)
        self.ts('end3')

    def p5_start(self):
        em = self.em; o = self.o
        ld0, chk = self.a_loader(o.pre, 1, sTx)
        side = Side(em)
        side.add(*self.aux_const_items())
        side.add(f'v_subrev_u32 {vRW}, {S_ADDR:#x}, {vRW}', f'v_subrev_u32 {vRR}, {S_ADDR:#x}, {vRR}')
        self.S = 0
        qn = [0]; was = [False]
        def ld(i):
            ld0(i)
            if i == 12: side.add(self.barrier)
            if i == o.statstep:
                side.add(*self.stats_T_items(True, 1))
                side.add(f'{MF} {v(MR,16)}, {v(AUX,4)}, {v(CB+2,4)}, 0')
            if self.xdone and was[0] and qn[0] < 8: self.qkv_dma('q', qn[0], 'q'); qn[0] += 1
            was[0] = self.xdone
        self.pass2(XORD, [self.pl['k'], self.pl['v']], [ACC, ACC + 16], True, side, lambda i: 1 if i < o.statstep else o.fill2, loader=ld, extra=chk)
        side.flush()
        self.emit(self.corr_items('k', ACC, True)); self.emit(self.corr_items('v', ACC + 16, True))
        self.ts('p5a')

    def finish(self):
        em = self.em
        L = em.newlabel('Le')
        em(f's_or_b32 {sT}, s2, {sW}'); em(f's_cmp_lg_u32 {sT}, 0'); em(f's_cbranch_scc1 {L}')
        em.cond_begin()
        em('s_mov_b64 exec, 1'); em(f'v_mov_b32 v24, {sNonce}'); em(f'buffer_store_dword v24, off, {SWS}, 0 sc1'); em('s_mov_b64 exec, -1')
        em.cond_end()
        em.label(L)
        if self.o.pad:
            L = em.newlabel('Lpad')
            em.label(L)
            em('s_memrealtime s[0:1]'); em.force_wait(lg=0); em('s_sub_u32 s0, s0, s3'); em(f's_cmp_lt_u32 s0, {self.o.pad}'); em(f's_cbranch_scc1 {L}')
        if self.o.ts:
            self.ts('end')
            em('s_memrealtime s[86:87]'); em.force_wait(lg=0); em('v_writelane_b32 v39, s86, 63')
            em(f's_lshl_b32 {sT}, s2, 2'); em(f's_add_u32 {sT}, {sT}, {sW}'); em(f's_lshl_b32 {sT}, {sT}, 8'); em(f's_add_u32 {sT}, {sT}, {WS_DBG}')
            em(f'v_lshlrev_b32 v24, 2, {vLane}')
            em(f'buffer_store_dword v39, v24, {SWS}, {sT} offen')
            if self.o.dbg:
                L = em.newlabel('Ld')
                em(f's_or_b32 {sT}, s2, {sW}'); em(f's_cmp_lg_u32 {sT}, 0'); em(f's_cbranch_scc1 {L}')
                em('s_memrealtime s[0:1]'); em.force_wait(lg=0); em('s_sub_u32 s0, s0, s3')
                em('v_readlane_b32 s1, v39, 0'); em('s_nop 3'); em('v_subrev_u32 v39, s1, v39'); em('v_writelane_b32 v39, s0, 0')
                em('v_mul_u32_u24 v25, 3, v0'); em('v_lshlrev_b32 v25, 2, v25'); em('ds_bpermute_b32 v26, v25, v39'); em.force_wait(lg=0)
                em('s_mov_b64 exec, 0xffff')
                em('global_store_dword v24, v26, s[100:101]')
                em.label(L)
        em('s_endpgm')
        em.out.extend(self.fixes); self.fixes = []

    def body(self, sc):
        self.ncnt = 0; self.ldidx = {}; self.fixes = []; self.sc = sc; self.swin = None; self.lin = True; self.S = S_ADDR
        seq = [lambda: self.p1_rest(0), lambda: self.p2(0), lambda: self.p3(0), lambda: self.p4(0),
               lambda: (self.p5_start(), self.p1_rest(1)), lambda: self.p2(1), lambda: self.p3(1), lambda: self.p4(1)]
        for i, f in enumerate(seq):
            self.em.comment(f'---------------- phase {i+1} ({"slow" if sc else "fast"}) ----------------')
            f()
            if self.o.stop == i + 1: break
        self.finish()

    def build(self):
        em = self.em
        self.sc = ''
        self.prologue()
        self.p1_start()
        if self.o.force_slow: em('s_branch L_slow_tramp')
        em('s_cbranch_vccz L_fast')
        em.label('L_slow_tramp')
        em('s_getpc_b64 s[86:87]'); em.label('L_pc0')
        em('s_add_u32 s86, s86, L_slow-L_pc0'); em('s_addc_u32 s87, s87, 0'); em('s_setpc_b64 s[86:87]')
        em.label('L_end'); em('s_endpgm')
        em.label('L_fast')
        snap = (list(em.vmq), list(em.lgq), self.nts, list(em.hist))
        self.body('')
        em.label('L_slow')
        em.vmq, em.lgq, self.nts, em.hist = list(snap[0]), list(snap[1]), snap[2], list(snap[3])
        self.body(' sc1')
        em.label('L_codeend')
        hdr = open('cdna_kernels/' + NAME + '.s.ref').read().split('; Override launch')[0]
        s = hdr + '; @launch grid=(256,1,1) block=(256,1,1) lds=163840\n'
        s += '.amdgcn_target "amdgcn-amd-amdhsa--gfx950"\n.text\n'
        s += f'.globl {NAME}_kernel\n.p2align 8\n.type {NAME}_kernel,@function\n{NAME}_kernel:\n'
        s += em.text().replace('    ', ' ').replace(' offset:0 ', ' ').replace(', ', ',')
        s += f""".section .rodata,"a"
.p2align 6
.amdhsa_kernel {NAME}_kernel
  .amdhsa_next_free_vgpr 512
  .amdhsa_next_free_sgpr 102
  .amdhsa_accum_offset 256
  .amdhsa_group_segment_fixed_size 0
  .amdhsa_kernarg_size 72
  .amdhsa_user_sgpr_count 2
  .amdhsa_user_sgpr_kernarg_segment_ptr 1
  .amdhsa_system_sgpr_workgroup_id_x 1
  .amdhsa_float_denorm_mode_32 3
.end_amdhsa_kernel
"""
        return s

def main():
    ap = argparse.ArgumentParser()
    ap.add_argument('-o', default='k.s')
    ap.add_argument('--ts', action='store_true')
    ap.add_argument('--dbg', action='store_true')
    ap.add_argument('--pad', type=int, default=0)
    ap.add_argument('--ts2', action='store_true')
    ap.add_argument('--sync', default='A')
    ap.add_argument('--pk2', type=int, default=0)
    ap.add_argument('--tlb', type=int, default=1)
    ap.add_argument('--par', type=int, default=1)
    ap.add_argument('--pk4', type=int, default=0)
    ap.add_argument('--chkpos', type=int, default=0)
    ap.add_argument('--rstpos', type=int, default=1)
    ap.add_argument('--nochk', type=int, default=0)
    ap.add_argument('--xord', type=int, default=1)
    ap.add_argument('--retouch', type=int, default=0)
    ap.add_argument('--statstep', type=int, default=19)
    ap.add_argument('--tw2', type=int, default=0)
    ap.add_argument('--thr2', type=int, default=2)
    ap.add_argument('--kdual', type=int, default=0)
    ap.add_argument('--fill2', type=int, default=2)
    ap.add_argument('--rst1', default='xh')
    ap.add_argument('--qsched', default='66667777')
    ap.add_argument('--tq', type=int, default=0)
    ap.add_argument('--cgap', type=int, default=2)
    ap.add_argument('--ownpos', type=int, default=2)
    ap.add_argument('--mfB', type=int, default=3)
    ap.add_argument('--pf0', type=int, default=0)
    ap.add_argument('--pf1', type=int, default=0)
    ap.add_argument('--fixmode', type=int, default=1)
    ap.add_argument('--w2b1b', type=int, default=4)
    ap.add_argument('--p2late', type=int, default=16)
    ap.add_argument('--share', type=int, default=2)
    ap.add_argument('--share2', type=int, default=3)
    ap.add_argument('--span', action='store_true')
    ap.add_argument('--cpf2', type=int, default=3)
    ap.add_argument('--wb', type=int, default=0)
    ap.add_argument('--wbstep', type=int, default=35)
    ap.add_argument('--stop', type=int, default=0)
    ap.add_argument('--spin', type=int, default=200000)
    ap.add_argument('--pre', type=int, default=11)
    ap.add_argument('--pre4', type=int, default=10)
    ap.add_argument('--pre2', type=int, default=16)
    ap.add_argument('--gap2', type=int, default=12)
    ap.add_argument('--gap4', type=int, default=24)
    ap.add_argument('--tail4', type=int, default=4)
    ap.add_argument('--rot2', type=int, default=1)
    ap.add_argument('--prewrite', type=int, default=1)
    ap.add_argument('--tw', type=int, default=5)
    ap.add_argument('--gstep', type=int, default=24)
    ap.add_argument('--att2', type=int, default=1)
    ap.add_argument('--burst', type=int, default=0)
    ap.add_argument('--hstr', type=int, default=1)
    ap.add_argument('--thr', type=int, default=6)
    ap.add_argument('--w1_solo', type=int, default=2)
    ap.add_argument('--fill_p1', type=int, default=2)
    ap.add_argument('--fill_p2', type=int, default=3)
    ap.add_argument('--fill_p3', type=int, default=3)
    ap.add_argument('--fill_p4', type=int, default=3)
    ap.add_argument('--w1_early', type=int, default=4)
    ap.add_argument('--b4start', type=int, default=4)
    ap.add_argument('--w2b1', type=int, default=4)
    ap.add_argument('--w2b2', type=int, default=4)
    ap.add_argument('--w2b3', type=int, default=4)
    ap.add_argument('--w2b3b', type=int, default=0)
    ap.add_argument('--w1_gap', type=int, default=0)
    ap.add_argument('--b1gap', type=int, default=1)
    ap.add_argument('--bgpad', type=int, default=3)
    ap.add_argument('--p2early', type=int, default=0)
    ap.add_argument('--rot', type=int, default=1)
    ap.add_argument('--kv_early', type=int, default=4)
    ap.add_argument('--nt_stage', action='store_true')
    ap.add_argument('--nt_w1', action='store_true')
    ap.add_argument('--codepf', type=int, default=1)
    ap.add_argument('--outsc', default='sc1')
    ap.add_argument('--kfirst', type=int, default=1)
    ap.add_argument('--early1', type=int, default=0)
    ap.add_argument('--gap2b', type=int, default=40)
    ap.add_argument('--tail4n', type=int, default=16)
    ap.add_argument('--hpf', type=int, default=20)
    ap.add_argument('--force_slow', action='store_true')
    o = ap.parse_args()
    if o.span: o.ts = True
    if o.outsc: o.outsc = ' ' + o.outsc
    if not o.xord: XORD[:] = list(range(32))
    g = Gen(o)
    s = g.build()
    open(o.o, 'w').write(s)
    if o.ts:
        import json; json.dump(g.tsnames, open(o.o + '.ts.json', 'w'))
    print(f'wrote {o.o}: {g.em.ninstr} instrs, {g.em.nops} nop states, {len(s)} bytes')
if __name__ == '__main__': main()
```

```python
import sys, struct, argparse
from emit import Em

NAME = "interleave_layers__linear_attn_block__dense_activation_relu__prompt"
def f2u(x): return struct.unpack('<I', struct.pack('<f', x))[0]

WS_EPOCH = 0
WS_HELLO = 1024
WS_FLAG = 4096
WS_MSG = 0x10000
WS_KT = 0x150000
WS_CS = 0x160000
WS_ST = 0x170000
WS_X = 0x200000
X2OFF = 0
WS_Q = 0x400000
WS_H = 0x600000
WS_DBG = 0x2000000
WS_SIZE = 0x4000000
MSG_B = 2560; KT_B = 17408; ACT_B = 131072; H_T = 86 * 1024; H_B = 4 * H_T
NONCE_K = 0x9E3779B1

sW, sG, sJ, sNonce = 's4', 's5', 's6', 's7'
SX, SQKV, SWO, SW1, SW2, SOUT, SWS = 's[8:11]', 's[12:15]', 's[16:19]', 's[20:23]', 's[24:27]', 's[28:31]', 's[32:35]'
sT, sT2, sWl, sSpin = 's52', 's53', 's54', 's55'
sGX, sGH, sG8K, sGKT, sG128 = 's56', 's57', 's58', 's59', 's60'
sQcol, sW1c0, sW1c2, sHks = 's61', 's62', 's63', 's64'
sC128, sHR, sStR = 's66', 's68', 's69'
sQR, sInv, sEps, s1em6, sLog2e = 's71', 's74', 's75', 's76', 's73'
sXrow, sJmsg, sMaskInv, sOutRow, sHello = 's77', 's78', 's85', 's80', 's81'
sEx = 's[82:83]'; sFx = 's84'
sTS = 86
sDelta, sDelta2 = 's88', 's[88:89]'
sLn2, sLn22 = 's90', 's[90:91]'
sXst, sStst, sQst = 's67', 's79', 's94'
sStM, sGXw = 's72', 's56'
sW1d = 's60'
sRot, sR, sFlag, sG256 = 's95', 's96', 's97', 's98'
sRot2, sLim4 = 's59', 's70'
sRed, sLine, sKTo, sFac = 's49', 's50', 's51', 's3'
sX0, sX1 = 's[100:101]', 's[0:1]'
sCsp = 's65'
sXm = [f's{36+i}' for i in range(8)]
sXl = ['s8', 's9', 's10', 's11', 's57', 's77', 's81', 's99']
sTab = ['s44', 's45', 's46', 's47']
sLo = 's[92:93]'
sTx, sTxn, sTh, sThn = 0, 1, 0, 1
sM0, sM1, sM3, sM4 = 's[36:37]', 's[38:39]', 's[40:41]', 's[44:45]'

vLane, vL16, vAX, vP = 'v0', 'v1', 'v2', 'v3'
vRR, vRW = 'v15', 'v18'
vTr = ['v4', 'v5', 'v6']
vDq, vD1, vDs, vS0, vS1, vS0w, vS1w = 'v7', 'v8', 'v9', 'v10', 'v11', 'v12', 'v14'
vStT, vPoll, vRl, vHi, vTid = 'v13', 'v15', 'v16', 'v17', 'v18'
CS = {'q': 'v19', 'k': 'v20', 'v': 'v21', 0: 'v22', 1: 'v23', 2: 'v34'}
AUX = 24
CB = 28
TMP = 35
BB = 40
MR = 56
ACC = 88
AF = 136
def v(i, n=1): return f'v{i}' if n == 1 else f'v[{i}:{i+n-1}]'
def a(i, n=1): return f'a{i}' if n == 1 else f'a[{i}:{i+n-1}]'
def Afrag(ks): return v(AF + 4 * ks, 4) if ks < 30 else a(248 + 4 * (ks - 30), 4)
RES = 240
W2A = 0; WOA = 176
vKT = 253
FW, FR, FO, FS, FB = 7, 11, 12, 14, 19
MF = 'v_mfma_f32_32x32x16_bf16'
DPPM = 'row_mask:0xf bank_mask:0xf'

QS = 32
S_ADDR = QS * 4096

def _ord4(c):
    pl = lambda nt: (0, 2, 1)[nt % 3] if nt < 33 else (nt - 33) % 2
    ms = sorted(range(21), key=lambda m: pl(2 * m + c))
    return ms + [21]
ORD4 = [_ord4(0), _ord4(1)]
XORD = [4 * m + k for m in range(8) for k in (0, 1)] + [4 * m + k for m in range(8) for k in (2, 3)]

class Side:
    def __init__(self, em): self.q = []; self.em = em
    def add(self, *items): self.q.extend(items)
    def run(self, k):
        while k > 0 and self.q:
            it = self.q.pop(0)
            if callable(it): it()
            else: self.em(it)
            k -= 1
    def flush(self): self.run(1 << 30); self.credit = 0
    credit = 0
    def clk(self, budget):
        self.credit = min(self.credit + budget, budget)
        while self.q and self.credit > 0:
            it = self.q.pop(0)
            if callable(it):
                it(); self.credit -= getattr(it, 'cost', 24)
            else:
                self.em(it)
                self.credit -= 56 if it.startswith('ds_write_b128') else 8 if it.startswith(('v_exp', 'v_rcp', 'v_rsq', 'v_mfma')) else 4

class Gen:
    def __init__(self, opt):
        self.o = opt; self.em = Em(); self.nts = 0; self.ncnt = 0; self.swin = None; self.lin = False
    def emit(self, items):
        for t in items: t() if callable(t) else self.em(t)

    def ts(self, name):
        if not self.o.ts or (self.o.span and name not in ('start', 'end')): return
        em = self.em
        i = self.nts; self.nts += 1
        assert i < 50
        em.force_wait(lg=0)
        em(f's_mov_b32 m0, s87'); em(f's_memtime s[{sTS}:{sTS+1}]'); em.force_wait(lg=0)
        em(f'v_writelane_b32 v39, s{sTS}, {i}'); em('s_mov_b32 s87, m0')
        self.tsnames[i] = name
        if name in ('kt', 'p3a', 'p4loop', 'p5a'):
            if name == 'kt' and self.ncnt == 0: em('s_mov_b32 s87, 0')
            em(f'v_writelane_b32 v39, s87, {50 + self.ncnt}'); self.ncnt += 1
    def dma(self, srd, voff, sbase, imm, quad, tag, nt=False, slot=None):
        em = self.em
        if slot is None: em(f's_add_u32 m0, {sWl}, {quad*4096}')
        else: em(f's_mov_b32 m0, {quad*4096 + slot*1024}')
        em(f's_add_u32 {sT}, {sbase}, {imm}')
        em(f'buffer_load_dwordx4 {voff}, {srd}, {sT} offen' + (' nt' if nt else '') + ' lds', tag=tag)
    def tr(self, dst, quad, slot, base=None):
        addr = quad * 4096 + slot * 1024
        b = (base or vTr)[addr >> 16]; off = addr & 0xFFFF
        return [f'ds_read_b64_tr_b16 {v(dst,2)}, {b} offset:{off}', f'ds_read_b64_tr_b16 {v(dst+2,2)}, {b} offset:{off+(256 if self.lin else 512)}']
    def wsload(self, dst, voff, sbase, imm, width=4, tag=None, off=0):
        em = self.em
        em(f's_add_u32 {sT}, {sbase}, {imm}')
        sfx = {1: 'dword', 2: 'dwordx2', 4: 'dwordx4'}[width]
        em(f'buffer_load_{sfx} {dst}, {voff}, {SWS}, {sT} offen' + (f' offset:{off}' if off else '') + ' sc1', tag=tag)
    def wsstore(self, src, voff, sbase, imm, width=4, tag='st', off=0, sc=None):
        em = self.em
        em(f's_add_u32 {sT}, {sbase}, {imm}')
        sfx = {1: 'dword', 2: 'dwordx2', 4: 'dwordx4'}[width]
        sc = self.sc if sc is None else sc
        em(f'buffer_store_{sfx} {src}, {voff}, {SWS}, {sT} offen' + (f' offset:{off}' if off else '') + sc, tag=tag)
    def barrier(self):
        self.em.wait_lg(0); self.em('s_barrier')
    def only_wave(self, w, f, invert=False):
        em = self.em
        L = em.newlabel('Lw')
        em(f's_cmp_{"eq" if invert else "lg"}_u32 {sW}, {w}'); em(f's_cbranch_scc1 {L}')
        em.cond_begin(); f(); em.cond_end()
        em.label(L)
    def spin_tail(self, L):
        em = self.em
        em(f's_sub_u32 {sSpin}, {sSpin}, 1'); em(f's_cbranch_scc0 {L}'); em(f's_mov_b32 {sSpin}, 0')
    def group_sync(self, p, pre=None, mid=None, tags=('st',), bar=True, skipif=None):
        em = self.em
        vt = v(TMP)
        mode = 'B' if skipif else self.o.sync
        if pre: pre()
        def drain():
            if tags is None: em.force_wait(vm=0)
            else: em.wait_vm_tag(tags)
            self.ts(f'drain{p}')
        def sig(wait=True):
            em(f'v_mov_b32 {vt}, {sNonce}')
            em(f's_add_u32 {sT2}, {sFlag}, {p*4096}')
            if wait: drain()
            em(f's_mov_b64 {sEx}, exec'); em('s_mov_b64 exec, 1')
            em(f'buffer_store_dword {vt}, off, {SWS}, {sT2}' + self.sc, tag='flag')
            em(f's_mov_b64 exec, {sEx}')
        def poll():
            L = em.newlabel('Lpoll'); D = em.newlabel('Lpd')
            em(f's_add_u32 {sT2}, {sG256}, {WS_FLAG + p*4096}')
            if mode == 'B': em(f'v_lshlrev_b32 {v(TMP+1)}, 2, {vLane}')
            else: em(f'v_lshlrev_b32 {v(TMP+1)}, 2, {vPoll}')
            em.label(L)
            em(f'buffer_load_dword {vt}, {v(TMP+1)}, {SWS}, {sT2} offen sc1')
            em.force_wait(vm=0)
            em(f'v_cmp_ne_u32 vcc, {sNonce}, {vt}')
            em(f's_cbranch_vccz {D}')
            self.spin_tail(L)
            em.label(D)
        if mode == 'B':
            if skipif:
                L = em.newlabel('Lsk')
                em(f's_cmp_eq_u32 {skipif}, 0'); em(f's_cbranch_scc1 {L}')
                em.cond_begin(); sig(); em.cond_end()
                em.label(L)
            else: sig()
            if mid: mid()
            if bar: self.barrier()
            poll()
        else:
            drain(); self.barrier()
            self.only_wave(0, lambda: sig(False))
            if mid: mid()
            if mode == 'A':
                self.only_wave(0, poll); self.barrier()
            else:
                if bar and mid: self.barrier()
                poll()
        self.ts(f'sync{p}')
    def rot(self, m, stride, base):
        em = self.em
        em(f's_add_u32 {sR}, {sRot}, {m}'); em(f's_and_b32 {sR}, {sR}, 7'); em(f's_mul_i32 {sR}, {sR}, {stride}'); em(f's_add_u32 {sR}, {sR}, {base}')
    def qkv_dma(self, planes, m, tag):
        self.rot(m, 64 * 3072, sQcol)
        for p in planes: self.dma(SQKV, vDq, sR, {'q': 0, 'k': 1024, 'v': 2048}[p], self.pl[p][m], tag)

    def prologue(self):
        em = self.em; o = self.o
        em('s_cmp_ge_u32 s2, 256'); em('s_cbranch_scc1 L_end')
        em('s_load_dwordx4 s[36:39], s[0:1], 0'); em('s_load_dwordx2 s[40:41], s[0:1], 16')
        em('s_load_dwordx4 s[44:47], s[0:1], 32'); em('s_load_dwordx2 s[48:49], s[0:1], 48'); em('s_load_dwordx2 s[50:51], s[0:1], 64')
        if o.ts:
            self.tsnames = {}
            em('v_mov_b32 v39, 0')
        em(f'v_mov_b32 {vTid}, v0')
        em(f'v_lshrrev_b32 v24, 6, v0'); em(f'v_and_b32 {vLane}, 63, v0')
        em(f'v_readfirstlane_b32 {sW}, v24')
        em(f's_and_b32 {sG}, s2, 7'); em(f's_lshl_b32 {sG}, {sG}, 1'); em(f's_lshr_b32 {sT}, s2, 7'); em(f's_add_u32 {sG}, {sG}, {sT}')
        em(f's_lshr_b32 {sJ}, s2, 3'); em(f's_and_b32 {sJ}, {sJ}, 15')
        em(f's_lshl_b32 {sWl}, {sW}, 10')
        em(f's_lshl_b32 {sXrow}, {sG}, 17')
        em(f's_lshl_b32 {sQcol}, {sJ}, 6')
        em(f's_and_b32 {sRot}, {sG}, 1'); em(f's_lshl_b32 {sRot}, {sRot}, 1'); em(f's_and_b32 {sT}, {sJ}, 1'); em(f's_add_u32 {sRot}, {sRot}, {sT}'); em(f's_lshl_b32 {sRot}, {sRot}, 1')
        if o.rot == 1: em(f's_lshr_b32 {sT}, {sJ}, 1'); em(f's_add_u32 {sRot}, {sRot}, {sT}')
        if o.rot in (1, 3): em(f's_add_u32 {sRot}, {sRot}, s2')
        if not o.rot: em(f's_mov_b32 {sRot}, 0')
        self.pl = {'k': list(range(0, 8)), 'v': list(range(8, 16)), 'q': list(range(16, 24))}
        em(f'v_lshlrev_b32 {vL16}, 4, {vLane}')
        em(f'v_lshrrev_b32 v27, 3, {vLane}'); em(f'v_and_b32 v28, 7, {vLane}')
        em(f'v_lshrrev_b32 v29, 1, v27'); em('v_xor_b32 v28, v28, v29'); em('v_lshlrev_b32 v28, 4, v28')
        em(f's_lshl_b32 {sT}, {sW}, 5'); em(f'v_add_u32 v27, {sT}, v27'); em('v_lshlrev_b32 v27, 10, v27')
        em('v_add_u32 v25, v27, v28'); em('v_xor_b32 v26, 64, v25')
        em(f'v_lshrrev_b32 v27, 2, {vLane}'); em(f's_lshl_b32 {sT}, {sW}, 4'); em(f'v_add_u32 v27, {sT}, v27')
        em(f'v_and_b32 v28, 3, {vLane}'); em('v_lshlrev_b32 v28, 4, v28')
        em(f'v_mul_u32_u24 {vDq}, 3072, v27'); em(f'v_add_u32 {vDq}, {vDq}, v28')
        em(f'v_mul_u32_u24 {vD1}, 2752, v27'); em(f'v_add_u32 {vD1}, {vD1}, v28')
        em.force_wait(lg=0)
        if o.ts:
            em('s_memrealtime s[86:87]'); em.force_wait(lg=0); em('v_writelane_b32 v39, s86, 62')
        if o.dbg or o.pad:
            em('s_load_dwordx2 s[100:101], s[0:1], 56'); em('s_memrealtime s[0:1]'); em.force_wait(lg=0); em('s_mov_b32 s3, s0')
        self.ts('start')
        def srd(s, lo, nb):
            em(f's_mov_b32 s{s}, s{lo}'); em(f's_mov_b32 s{s+1}, s{lo+1}'); em(f's_mov_b32 s{s+2}, {nb}'); em(f's_mov_b32 s{s+3}, 0x00020000')
        srd(8, 36, 2048 * 1024); srd(32, 50, WS_SIZE); srd(12, 38, 512 * 3072)
        if o.tlb:
            em(f's_lshr_b32 {sT}, s2, 3'); em(f's_lshl_b32 {sT}, {sT}, 2'); em(f's_add_u32 {sT}, {sT}, {sW}'); em(f's_and_b32 {sT}, {sT}, 15')
            em('s_mov_b64 s[86:87], s[50:51]'); em(f's_lshl_b32 {sT2}, {sT}, 21')
            for k, pr in ((8, 's[40:41]'), (9, 's[44:45]'), (10, 's[46:47]'), (11, 's[48:49]'), (12, 's[36:37]'), (13, 's[38:39]')):
                em(f's_cmp_eq_u32 {sT}, {k}'); em(f's_cselect_b64 s[86:87], {pr}, s[86:87]')
            em(f's_cmp_ge_u32 {sT}, 5'); em(f's_cselect_b32 {sT2}, 0, {sT2}')
            em(f's_load_dword s88, s[86:87], {sT2}')
        L0 = em.newlabel('Lo'); L1 = em.newlabel('Lo')
        if o.par:
            em(f's_bitcmp1_b32 {sJ}, 0'); em(f's_cbranch_scc1 {L0}')
            it = self.chunk_items(0)
            snap = list(em.vmq)
            self.emit(it); em(f's_branch {L1}')
            em.label(L0)
            em.vmq = snap
            it = self.chunk_items(0)
            self.emit(it[4:] + it[:4])
            em.label(L1)
        else: self.chunk_dma(0)
        if o.tq:
            em(f'v_lshlrev_b32 v30, 7, {vLane}'); em(f's_lshl_b32 {sT2}, s2, 2'); em(f's_add_u32 {sT2}, {sT2}, {sW}'); em(f's_mul_i32 {sT2}, {sT2}, {12*128}')
            em('s_mov_b64 exec, 0xfff')
            em(f'buffer_load_dword a100, v30, {SQKV}, {sT2} offen', tag='touch')
            if o.tq > 1:
                em(f's_lshl_b32 {sT2}, {sJ}, 2'); em(f's_add_u32 {sT2}, {sT2}, {sW}'); em(f's_lshl_b32 {sT2}, {sT2}, 11'); em(f's_add_u32 {sT2}, {sT2}, {sXrow}')
                em('s_mov_b64 exec, 0xffff')
                em(f'buffer_load_dword a101, v30, {SX}, {sT2} offen', tag='touch')
            em('s_mov_b64 exec, -1')
        em(f'buffer_load_dword v24, off, {SWS}, 0 sc1', tag='epoch')
        if o.ts2: self.ts('iss0')
        c1 = self.chunk_items(1)
        self.emit(c1[:o.c1a]); self.c1rest = c1[o.c1a:]
        if o.ts2: self.ts('iss1')
        if o.codepf:
            em('s_getpc_b64 s[42:43]'); em.label('L_pcx')
            em(f's_lshr_b32 {sT}, s2, 3'); em(f's_lshl_b32 {sT}, {sT}, 2'); em(f's_add_u32 {sT}, {sT}, {sW}'); em(f's_lshl_b32 {sT}, {sT}, 10')
            em(f's_min_u32 {sT}, {sT}, L_slow-L_pcx-1024')
            em(f'v_add_u32 v30, {sT}, {vL16}')
            em(f'global_load_dwordx4 a[96:99], v30, s[42:43]', tag='codepf')
        srd(16, 40, 512 * 1024); srd(20, 44, 512 * 2752); srd(24, 46, 1376 * 1024); srd(28, 48, 2048 * 1024)
        em(f's_mov_b32 {sSpin}, {o.spin}')
        em(f's_mul_i32 {sGH}, {sG}, {H_B}'); em(f's_add_u32 {sGH}, {sGH}, {WS_H}')
        em(f's_lshl_b32 {sG8K}, {sG}, 13'); em(f's_add_u32 {sG8K}, {sG8K}, {WS_ST}')
        em(f's_lshl_b32 {sG128}, {sG}, 7'); em(f's_lshl_b32 {sG256}, {sG}, 8')
        em(f's_lshl_b32 {sFlag}, {sJ}, 2'); em(f's_add_u32 {sFlag}, {sFlag}, {sW}'); em(f's_lshl_b32 {sFlag}, {sFlag}, 2'); em(f's_add_u32 {sFlag}, {sFlag}, {sG256}'); em(f's_add_u32 {sFlag}, {sFlag}, {WS_FLAG}')
        em(f's_mul_i32 {sT}, {sJ}, 3'); em(f's_lshl_b32 {sT2}, {sJ}, 1'); em(f's_add_u32 {sT2}, {sT2}, 11')
        em(f's_cmp_lt_u32 {sJ}, 11'); em(f's_cselect_b32 {sT}, {sT}, {sT2}');
        em(f's_cselect_b32 {sT2}, 128, 64')
        em(f's_lshl_b32 {sW1c0}, {sT}, 6'); em(f's_add_u32 {sW1c2}, {sW1c0}, {sT2}')
        em(f's_lshl_b32 {sHks}, {sT}, 11'); em(f's_add_u32 {sHks}, {sHks}, {sGH}')
        em(f's_mul_i32 {sT}, {sW}, {H_T}'); em(f's_add_u32 {sHks}, {sHks}, {sT}')
        em(f's_and_b32 {sC128}, {sJ}, 7'); em(f's_lshl_b32 {sC128}, {sC128}, 7')
        em(f's_lshr_b32 {sT}, {sJ}, 3')
        em(f's_lshl_b32 {sT2}, {sT}, 16'); em(f's_add_u32 {sT2}, {sT2}, {sXrow}')
        em(f's_add_u32 {sOutRow}, {sT2}, {sC128}')
        em(f's_add_u32 {sQR}, {sT2}, {sWl}'); em(f's_add_u32 {sQR}, {sQR}, {WS_Q}')
        em(f's_lshl_b32 {sXst}, {sC128}, 5'); em(f's_add_u32 {sXst}, {sXst}, {sT2}'); em(f's_add_u32 {sXst}, {sXst}, {WS_X}')
        em(f's_mul_i32 {sHR}, {sT}, {2*H_T}'); em(f's_add_u32 {sHR}, {sHR}, {sGH}'); em(f's_add_u32 {sHR}, {sHR}, {sWl}')
        em(f's_lshl_b32 {sStR}, {sT}, 12'); em(f's_add_u32 {sStR}, {sStR}, {sG8K}')
        em(f's_lshr_b32 {sT}, {sW}, 1'); em(f's_and_b32 {sT2}, {sW}, 1'); em(f's_lshl_b32 {sT2}, {sT2}, 8')
        em(f's_lshl_b32 {sR}, {sT}, 15'); em(f's_add_u32 {sXst}, {sXst}, {sR}'); em(f's_add_u32 {sXst}, {sXst}, {sT2}')
        em(f's_lshl_b32 {sR}, {sT}, 11'); em(f's_add_u32 {sStM}, {sStR}, {sR}'); em(f's_add_u32 {sStM}, {sStM}, {sT2}')
        em(f's_and_b32 {sT}, {sJ}, 4'); em(f's_lshl_b32 {sT}, {sT}, 7'); em(f's_and_b32 {sT2}, {sJ}, 3'); em(f's_lshl_b32 {sT2}, {sT2}, 2')
        em(f's_add_u32 {sStst}, {sT}, {sT2}'); em(f's_add_u32 {sStst}, {sStst}, {sStM}')
        em(f's_lshl_b32 {sT}, {sW}, 15'); em(f's_add_u32 {sT}, {sT}, {sXrow}'); em(f's_add_u32 {sGXw}, {sT}, {WS_X}')
        em(f's_lshl_b32 {sQst}, {sJ}, 11'); em(f's_add_u32 {sQst}, {sQst}, {sT}'); em(f's_add_u32 {sQst}, {sQst}, {WS_Q}')
        em('s_mov_b32 s92, -1'); em('s_mov_b32 s93, 0')
        em(f's_cmp_ge_u32 {sW}, 2'); em(f's_cselect_b32 {sLim4}, 20, 21'); em(f's_lshl_b32 {sLim4}, {sLim4}, 12')
        em(f's_lshr_b32 {sT}, {sJ}, 3'); em(f's_and_b32 {sT2}, {sG}, 1'); em(f's_lshl_b32 {sT2}, {sT2}, 1'); em(f's_add_u32 {sT}, {sT}, {sT2}')
        em(f's_and_b32 {sT2}, s2, 7')
        em(f's_lshl_b32 {sRot2}, {sT}, 1'); em(f's_add_u32 {sRot2}, {sRot2}, {sT2}')
        if not o.rot2: em(f's_mov_b32 {sRot2}, 0')
        em(f's_mul_i32 {sJmsg}, {sJ}, {16*MSG_B}'); em(f's_add_u32 {sJmsg}, {sJmsg}, {WS_MSG}')
        if o.tlb: em.force_wait(lg=0)
        em(f's_mov_b32 {sDelta}, {f2u(1e-6*1.4426950408889634):#x}'); em(f's_mov_b32 {sLn2}, {f2u(0.6931471805599453):#x}')
        em('s_mov_b32 s89, s88'); em('s_mov_b32 s91, s90')
        em(f's_mov_b32 {sLog2e}, {f2u(1.4426950408889634):#x}'); em(f's_mov_b32 {sInv}, {f2u(1/512):#x}')
        em(f's_mov_b32 {sEps}, {f2u(1e-5):#x}'); em(f's_mov_b32 {s1em6}, {f2u(1e-6):#x}')
        em(f's_mov_b32 {sMaskInv}, 0xffffff00')
        em(f'v_lshrrev_b32 {vHi}, 5, {vLane}')
        em(f'v_lshrrev_b32 v27, 4, {vLane}'); em('v_lshlrev_b32 v27, 9, v27'); em(f'v_and_b32 v28, 15, {vLane}'); em(f'v_lshl_add_u32 {vP}, v28, 4, v27')
        em(f'v_bfe_u32 v27, {vLane}, 2, 2'); em(f'v_lshl_add_u32 v27, {vHi}, 2, v27')
        em(f'v_bfe_u32 v28, {vLane}, 4, 1'); em('v_lshlrev_b32 v28, 5, v28')
        em(f'v_and_b32 v29, 3, {vLane}'); em('v_lshl_add_u32 v28, v29, 3, v28')
        em(f'v_lshl_add_u32 {vTr[0]}, v27, 6, v28')
        em(f'v_lshl_add_u32 {vTr[0]}, {vHi}, 8, {vTr[0]}')
        em(f'v_add_u32 {vTr[1]}, 0x10000, {vTr[0]}'); em(f'v_add_u32 {vTr[2]}, 0x20000, {vTr[0]}')
        em(f'v_bfe_u32 v29, {vLane}, 3, 1'); em('v_lshl_add_u32 v28, v29, 6, v28')
        em(f'v_lshl_add_u32 {vS0}, v27, 7, v28'); em(f'v_add_u32 {vS0}, {sWl}, {vS0}'); em(f'v_xor_b32 {vS1}, 64, {vS0}')
        em(f'v_lshrrev_b32 v27, 3, {vLane}'); em(f'v_and_b32 v28, 7, {vLane}')
        em(f'v_bfe_u32 v29, {vLane}, 4, 1'); em('v_lshlrev_b32 v29, 2, v29'); em('v_xor_b32 v28, v28, v29'); em('v_lshlrev_b32 v28, 4, v28')
        em(f'v_lshl_add_u32 {vDs}, v27, 10, v28'); em(f's_lshl_b32 {sT}, {sW}, 14'); em(f'v_add_u32 {vDs}, {sT}, {vDs}')
        em(f'v_lshl_add_u32 v27, {vHi}, 9, {vL16}'); em(f's_lshl_b32 {sT}, {sW}, 11'); em(f'v_add_u32 {vStT}, {sT}, v27')
        em(f'v_and_b32 {vPoll}, 15, {vLane}'); em(f'v_lshlrev_b32 {vPoll}, 2, {vPoll}')

    def nonce_hello(self):
        em = self.em; o = self.o
        if o.ts2: self.ts('setup')
        em(f'v_readfirstlane_b32 {sNonce}, v24')
        if o.ts2: self.ts('epoch')
        em(f's_add_u32 {sNonce}, {sNonce}, {NONCE_K:#x}')
        em(f's_getreg_b32 {sHello}, hwreg(HW_REG_XCC_ID)'); em(f's_and_b32 {sHello}, {sHello}, 15')
        em(f's_add_u32 {sHello}, {sHello}, {sNonce}'); em(f's_add_u32 {sHello}, {sHello}, 1')
        def hello():
            em(f's_mov_b64 {sEx}, exec'); em('s_mov_b64 exec, 1')
            em(f'v_mov_b32 v24, {sHello}')
            em(f's_lshl_b32 {sT2}, {sJ}, 2'); em(f's_add_u32 {sT2}, {sT2}, {sG128}'); em(f's_add_u32 {sT2}, {sT2}, {WS_HELLO}')
            em(f'buffer_store_dword v24, off, {SWS}, {sT2} sc1')
            em(f's_mov_b64 exec, {sEx}')
        self.only_wave(0, hello)

    def chunk_items(self, c):
        it = []
        def x(rb8):
            if rb8 == 0: self.rot(c, 128, sXrow); self.em(f's_mov_b32 s99, {sR}')
            self.dma(SX, 'v25' if rb8 % 2 == 0 else 'v26', 's99', rb8 * 8192, 24 + 4 * (c % 3) + rb8, f'c{c}')
        for rb8 in range(4): it.append(lambda rb8=rb8: x(rb8))
        def w(p):
            if p == 'k': self.rot(c, 64 * 3072, sQcol); self.em(f's_mov_b32 s84, {sR}')
            self.dma(SQKV, vDq, 's84', {'k': 1024, 'v': 2048}[p], self.pl[p][c], f'c{c}')
        it += [lambda: w('k'), lambda: w('v')]
        return it
    def chunk_dma(self, c): self.emit(self.chunk_items(c))

    def touch_q(self, vt, dst):
        em = self.em
        em(f'v_lshlrev_b32 {vt}, 7, {vLane}')
        em(f's_mov_b64 {sEx}, exec'); em('s_mov_b64 exec, 0xffff')
        em(f'buffer_load_dword {v(dst)}, {vt}, {SWS}, {sQst} offen sc1', tag='touch')
        em(f'v_lshlrev_b32 {vt}, 12, {vLane}')
        em('s_mov_b64 exec, 0x7f')
        em(f'buffer_load_dword {v(dst+1)}, {vt}, {SWS}, {sFlag} offen sc1', tag='touch')
        em(f's_mov_b64 exec, {sEx}')
    def touch_w(self, vt, dst):
        em = self.em
        em(f'v_lshlrev_b32 {vt}, 7, {vLane}')
        em(f's_lshl_b32 {sT2}, s2, 2'); em(f's_add_u32 {sT2}, {sT2}, {sW}'); em(f's_mul_i32 {sT2}, {sT2}, {11*128}')
        em(f's_mov_b64 {sEx}, exec'); em('s_mov_b64 exec, 0x7ff')
        em(f'buffer_load_dword {v(dst)}, {vt}, {SW1}, {sT2} offen', tag='touch')
        em(f'buffer_load_dword {v(dst+1)}, {vt}, {SW2}, {sT2} offen', tag='touch')
        em(f's_lshl_b32 {sT2}, s2, 2'); em(f's_add_u32 {sT2}, {sT2}, {sW}'); em(f's_lshl_b32 {sT2}, {sT2}, 9')
        em('s_mov_b64 exec, 15')
        em(f'buffer_load_dword {v(dst+2)}, {vt}, {SWO}, {sT2} offen', tag='touch')
        em(f's_mov_b64 exec, {sEx}')
    def reducer_setup(self):
        em = self.em
        em(f's_lshr_b32 {sT}, {sG}, 3'); em(f's_cmp_eq_u32 {sT}, {sW}'); em(f's_cselect_b32 {sRed}, 1, 0')
        em(f's_lshl_b32 {sLine}, {sG}, 7')
        em(f's_mul_i32 {sKTo}, {sT}, 544'); em(f's_and_b32 {sT2}, {sG}, 7'); em(f's_lshl_b32 {sT2}, {sT2}, 6'); em(f's_add_u32 {sKTo}, {sKTo}, {sT2}')
        em(f's_mov_b32 {sFac}, {sLn2}')
        L = em.newlabel('Lz')
        em(f's_cmp_lg_u32 {sW}, 2'); em(f's_cbranch_scc1 {L}')
        em(f's_cmp_eq_u32 {sG}, {sJ}'); em(f's_cselect_b32 {sRed}, 1, 0')
        em(f's_mov_b32 {sLine}, 2048'); em(f's_mov_b32 {sKTo}, 512'); em(f's_mov_b32 {sFac}, 1.0')
        em.label(L)
        em(f's_sub_u32 {sCsp}, {sG}, {sJ}'); em(f's_sub_u32 {sCsp}, {sCsp}, 1'); em(f's_and_b32 {sCsp}, {sCsp}, 15')
        em(f's_cmp_eq_u32 {sW}, 3'); em(f's_cselect_b32 {sCsp}, {sCsp}, 15')
        em(f's_mul_i32 {sT2}, {sJ}, 1088'); em(f's_add_u32 {sKTo}, {sKTo}, {sT2}'); em(f's_add_u32 {sKTo}, {sKTo}, {WS_KT}')
        em(f's_add_u32 {sLine}, {sLine}, {sJmsg}')
        em(f's_and_b32 {sT2}, {sG}, 7'); em(f's_lshl_b32 {sT2}, {sT2}, 3'); em(f's_mov_b64 {sX0}, 0xff'); em(f's_lshl_b64 {sX0}, {sX0}, {sT2}'); em(f's_not_b64 {sX0}, {sX0}')
        em(f's_cmp_eq_u32 {sT}, 0'); em(f's_cselect_b64 {sX1}, -1, {sX0}'); em(f's_cselect_b64 {sX0}, {sX0}, -1')
    def kt_voff(self, d, t):
        em = self.em
        em(f'v_and_b32 {d}, 7, {vLane}'); em(f'v_lshlrev_b32 {d}, 3, {d}'); em(f'v_lshl_add_u32 {d}, {vHi}, 2, {d}')
        em(f's_cmp_eq_u32 {sW}, 2'); em(f's_cselect_b32 {sT2}, 128, 0'); em(f'v_and_b32 {t}, 4, {vLane}'); em(f'v_mad_u32_u24 {d}, {t}, {sT2}, {d}')
    def resets(self):
        em = self.em
        t0, D = v(MR + 24), MR + 28
        L = em.newlabel('Lrs')
        em(f's_cmp_eq_u32 {sRed}, 0'); em(f's_cbranch_scc1 {L}')
        em.cond_begin()
        self.kt_voff(t0, v(D)); em(f'v_mov_b32 {v(D)}, -1')
        em('s_mov_b32 exec_lo, 0xff'); em('s_mov_b32 exec_hi, 0xff')
        for l in range(2): self.wsstore(v(D), t0, sKTo, l * 0x8000, width=1, sc=' sc1', tag='rst')
        em('s_mov_b64 exec, -1')
        em.cond_end()
        em.label(L)
        L = em.newlabel('Lrc')
        em(f's_cmp_ge_u32 {sCsp}, 3'); em(f's_cbranch_scc1 {L}')
        em.cond_begin()
        em(f'v_lshlrev_b32 {t0}, 2, {vLane}'); em(f'v_mov_b32 {v(D)}, -1')
        em(f's_mul_i32 {sT2}, {sJ}, 384'); em(f's_lshl_b32 {sR}, {sCsp}, 7'); em(f's_add_u32 {sT2}, {sT2}, {sR}')
        em('s_mov_b32 exec_hi, 0')
        self.wsstore(v(D), t0, sT2, WS_CS, width=1, sc=' sc1', tag='rst')
        em('s_mov_b64 exec, -1')
        em.cond_end()
        em.label(L)
        def msg():
            em(f'v_lshlrev_b32 {t0}, 4, {vTid}'); em(f's_not_b32 {sT2}, {sNonce}')
            for r in range(4): em(f'v_mov_b32 {v(D+r)}, {sT2}')
            em(f'v_cmp_gt_u32 vcc, 136, {vTid}'); em(f's_and_saveexec_b64 {sEx}, vcc')
            em(f's_mul_i32 {sT2}, {sG}, {MSG_B}'); em(f's_add_u32 {sT2}, {sT2}, {sJmsg}')
            for l in range(2): self.wsstore(v(D, 4), t0, sT2, l * 256 * MSG_B, sc=' sc1', tag='rst')
            em(f's_mov_b64 exec, {sEx}')
        if self.o.prewrite: self.only_wave(3, msg, invert=True)
    def reset_items(self, D, which):
        em = self.em
        it = [f'v_mov_b32 {v(D+r)}, 0' for r in range(4)]
        def x():
            em(f's_and_b32 {sT2}, {sW}, 1'); em(f's_mul_i32 {sT2}, {sT2}, 1792'); em(f's_add_u32 {sT2}, {sT2}, {sXst}')
            self.wsstore(v(D, 4), vL16, sT2, 0, tag='rst'); self.wsstore(v(D, 4), vL16, sT2, 0, tag='rst', off=1024)
        if 'x' in which: it.append(x)
        def h(p):
            self.wsstore(v(D, 4), vL16, sHks, p * 2048, tag='rst'); self.wsstore(v(D, 4), vL16, sHks, p * 2048, tag='rst', off=1024)
        if 'h' in which: it += [lambda: h(0), lambda: h(1)]
        def h2():
            L = em.newlabel('Lr3')
            em(f's_cmp_ge_u32 {sJ}, 11'); em(f's_cbranch_scc1 {L}')
            em.cond_begin(); h(2); em.cond_end()
            em.label(L)
        if 'h' in which: it.append(h2)
        def st():
            em(f'v_and_b32 {v(D+4)}, 512, {vP}'); em(f'v_add_u32 {v(D+4)}, {v(D+4)}, {vP}')
            em('s_mov_b32 exec_hi, 0')
            for i in range(3): self.wsstore(v(D), v(D + 4), sStst, i * 16 * 8192, width=1, tag='rst')
            em('s_mov_b64 exec, -1')
        if 'x' in which: it.append(st)
        return it

    def check(self, regs, reload, tmp=None, split=False, kind='sent', tag=None, again=None):
        em = self.em
        if self.o.nochk and split and kind != 'h': return lambda: None
        F = em.newlabel('Lfix'); R = em.newlabel('Lret'); G_ = em.newlabel('Lok')
        dst = 'vcc' if split else sEx
        def test(e):
            r = regs[0]
            if r.startswith('a'): e(f'v_accvgpr_read_b32 {tmp}, {r}'); r = tmp
            if kind == 'sent':
                rest = list(regs)
                e(f'v_max_u32 {tmp}, {rest[0]}, {rest[1]}'); rest = rest[2:]
                while rest:
                    e(f'v_max3_u32 {tmp}, {rest[0]}, {rest[1]}, {tmp}'); rest = rest[2:]
                e(f'v_cmp_eq_u32 {dst}, -1, {tmp}')
            elif kind == 'h':
                if tag:
                    for q in regs: e(f'v_xor_b32 {q}, 0x80000000, {q}')
                if len(regs) == 2: e(f'v_or_b32 {tmp}, {regs[0]}, {regs[1]}'); r = tmp
                e(f'v_cmp_gt_i32 {dst}, 0, {r}')
            elif len(regs) <= 2:
                r1 = regs[-1]
                if r1.startswith('a'):
                    e(f'v_lshlrev_b32 {tmp}, 31, {tmp}'); e(f'v_cmp_{"eq" if tag else "ne"}_u32 {sEx}, 0, {tmp}')
                    e(f'v_accvgpr_read_b32 {tmp}, {r1}'); e(f'v_lshlrev_b32 {tmp}, 31, {tmp}'); e(f'v_cmp_{"eq" if tag else "ne"}_u32 {dst}, 0, {tmp}')
                    e('s_nop 1'); e(f's_or_b64 vcc, vcc, {sEx}')
                else:
                    e(f'v_bitop3_b32 {tmp}, {r}, {r1}, 1 bitop3:{0x80 if tag else 0xa8:#x}'); e(f'v_cmp_{"eq" if tag else "ne"}_u32 {dst}, 0, {tmp}')
            else:
                assert tag == 1
                rest = list(regs)
                e(f'v_and_b32 {tmp}, {rest[0]}, {rest[1]}'); rest = rest[2:]
                while rest:
                    e(f'v_bitop3_b32 {tmp}, {rest[0]}, {rest[1]}, {tmp} bitop3:0x80'); rest = rest[2:]
                e(f'v_and_b32 {tmp}, 1, {tmp}'); e(f'v_cmp_eq_u32 {dst}, 0, {tmp}')
        test(em)
        def branch():
            if split: em(f's_cbranch_vccnz {F}')
            else: em(f's_cmp_lg_u64 {sEx}, 0'); em(f's_cbranch_scc1 {F}')
            em.label(R)
            out = [F + ':']
            e = lambda t, tag=None: out.append('    ' + t)
            if self.o.ts and not self.o.span: e('s_add_u32 s87, s87, 1')
            def rep():
                for p in em.vmq:
                    if p.tag == 'A': again(e, p)
                    else: e(f's_mov_b32 {sFx}, {WS_DBG + 0x100000}'); e(f'buffer_store_dword {tmp}, off, {SWS}, {sFx}')
            reload(e)
            if again and self.o.fixmode: rep(); e(f's_waitcnt vmcnt({len(em.vmq)})')
            else: e('s_waitcnt vmcnt(0)')
            test(e)
            if split: e(f's_cbranch_vccz {G_}')
            else: e('s_nop 0'); e(f's_cmp_eq_u64 {sEx}, 0'); e(f's_cbranch_scc1 {G_}')
            e(f's_sub_u32 {sSpin}, {sSpin}, 1'); e(f's_cbranch_scc0 {F}'); e(f's_mov_b32 {sSpin}, 0')
            out.append(G_ + ':')
            if again and not self.o.fixmode: rep()
            e(f's_branch {R}')
            self.fixes += out
        if split: return branch
        branch()

    def colsum_items(self, quads, acc, tmp, own, ones, first):
        items = []
        rds = [self.tr(tmp + 4 * (n % 2), q, 0, own) for n, q in enumerate(quads)]
        items += rds[0]
        for n in range(len(quads)):
            if n + 1 < len(quads): items += rds[n + 1]
            items.append(f'{MF} {acc}, {ones}, {v(tmp + 4*(n%2), 4)}, ' + ('0' if first and n == 0 else acc))
        return items
    def cs_write_items(self, srcs, lds, tmp):
        ad = v(tmp)
        it = [f'v_and_b32 {ad}, 31, {vLane}', f'v_lshlrev_b32 {ad}, 4, {ad}', f'v_add_u32 {ad}, {lds:#x}, {ad}',
              f's_lshl_b32 {sT2}, {sW}, 2', f'v_add_u32 {v(tmp+1)}, {sT2}, {ad}']
        return it + [f'ds_write_b32 {v(tmp+1)}, {s} offset:{p*512}' for p, s in enumerate(srcs)]
    def cs_read_items(self, keys, tmp):
        ad = v(tmp); R = tmp + 2
        it = [f'ds_read_b128 {v(R+4*p,4)}, {ad} offset:{p*512}' for p in range(len(keys))]
        for p, k in enumerate(keys):
            r = R + 4 * p
            it += [f'v_add_f32 {v(r)}, {v(r)}, {v(r+1)}', f'v_add_f32 {v(r+2)}, {v(r+2)}, {v(r+3)}', f'v_add_f32 {v(r)}, {v(r)}, {v(r+2)}',
                   f'v_cvt_pk_bf16_f32 {v(r+1)}, {v(r)}, {v(r)}', f'v_lshlrev_b32 {v(r+1)}, 16, {v(r+1)}', f'v_sub_f32 {v(r+1)}, {v(r)}, {v(r+1)}',
                   f'v_cvt_pk_bf16_f32 {CS[k]}, {v(r)}, {v(r+1)}']
        return it
    def colsum_exchange(self, srcs, keys, lds, tmp):
        self.emit(self.cs_write_items(srcs, lds, tmp)); self.barrier(); self.emit(self.cs_read_items(keys, tmp))

    def stage_dma(self, srd, m, qa, qb, tag):
        em = self.em
        if srd == SWO:
            em(f's_add_u32 {sR}, {sRot2}, {m}'); em(f's_and_b32 {sR}, {sR}, 7'); em(f's_lshl_b32 {sR}, {sR}, 16')
        else:
            self.tab4(m, sR, 16)
        em(f's_add_u32 {sR}, {sR}, {sC128}')
        self.dma(srd, vDs, sR, 0, qa, tag, nt=self.o.nt_stage); self.dma(srd, vDs, sR, 8192, qb, tag, nt=self.o.nt_stage)
    def tab4(self, st, dst, sh, em=None):
        em = em or self.em
        em(f's_bfe_u32 {dst}, {sTab[st // 6]}, {(5 * (st % 6)) | (5 << 16):#x}'); em(f's_lshl_b32 {dst}, {dst}, {sh}')
    def stage_read_items(self, abase, m, qa, qb):
        items = []
        for h, q in enumerate((qa, qb)):
            addr = q * 4096; win = addr >> 16; off = addr & 0xFFFF
            def f(win=win, off=off, h=h):
                if win == 0: b0, b1 = vS0, vS1
                else:
                    if self.swin != win:
                        self.em(f'v_add_u32 {vS0w}, {win*65536:#x}, {vS0}'); self.em(f'v_add_u32 {vS1w}, {win*65536:#x}, {vS1}'); self.swin = win
                    b0, b1 = vS0w, vS1w
                self.em(f'ds_read_b64_tr_b16 {a(abase + m*8 + 2*h, 2)}, {b0} offset:{off}')
                self.em(f'ds_read_b64_tr_b16 {a(abase + m*8 + 4 + 2*h, 2)}, {b1} offset:{off}')
            items.append(f)
        return items

    def aux_items(self, S, Q, t0, need_r=True):
        it = [f'v_mul_f32 {S}, {sInv}, {S}']
        if need_r:
            it += [f'v_mul_f32 {Q}, {sInv}, {Q}', f'v_fma_f32 {Q}, -{S}, {S}, {Q}', f'v_max_f32 {Q}, 0, {Q}', f'v_add_f32 {Q}, {sEps}, {Q}',
                   f'v_rsq_f32 {Q}, {Q}', f'v_mul_f32 {vRl}, {sLog2e}, {Q}']
        it += [f'v_cndmask_b32_e64 {S}, 0, -{S}, {sLo}',
               f'v_cvt_pk_bf16_f32 {v(AUX)}, {S}, {S}', f'v_lshlrev_b32 {t0}, 16, {v(AUX)}', f'v_sub_f32 {S}, {S}, {t0}', f'v_cvt_pk_bf16_f32 {v(AUX+1)}, {S}, {S}']
        if need_r:
            it += [f'v_cndmask_b32 {Q}, 0, {vRl}, {sLo}', f'v_cvt_pk_bf16_f32 {t0}, {Q}, {Q}', f'v_lshlrev_b32 {t0}, 16, {t0}', f'v_sub_f32 {t0}, {Q}, {t0}',
                   f'v_cvt_pk_bf16_f32 {v(AUX+2)}, {Q}, {t0}']
        return it
    def aux_const_items(self):
        return [f'v_mov_b32 {v(AUX+2)}, 0', f'v_mov_b32 {v(AUX+3)}, 0', f'v_mov_b32 {v(CB+2)}, 0', f'v_mov_b32 {v(CB+3)}, 0', f'v_mov_b32 {v(CB+4)}, 0x3f803f80', f'v_mov_b32 {v(CB+5)}, 0x3f803f80']
    def corr_items(self, key, acc, swapAB):
        c = v(acc, 16)
        return [f'v_mov_b32 {v(CB)}, {CS[key]}', f'v_mov_b32 {v(CB+1)}, {CS[key]}',
                f'{MF} {c}, {v(AUX,4)}, {v(CB,4)}, {c}' if swapAB else f'{MF} {c}, {v(CB,4)}, {v(AUX,4)}, {c}']
    def stats_T_loads(self, i, e=None):
        e = e or self.em
        t = MR + 16
        e(f's_add_u32 {sFx}, {sG8K}, {i * 16 * 8192}')
        e(f'buffer_load_dwordx4 {v(t,4)}, {vStT}, {SWS}, {sFx} offen sc1', tag='stat'); e(f'buffer_load_dwordx4 {v(t+4,4)}, {vStT}, {SWS}, {sFx} offen offset:512 sc1', tag='stat')
    def stats_T_items(self, need_r, sti):
        t = MR + 16
        it = [lambda: self.check([v(t + r) for r in range(8)], lambda e: self.stats_T_loads(sti, e), v(t + 8), kind='x', tag=sTxn)]
        it += [f'v_add_f32 {v(t)}, {v(t)}, {v(t+1)}', f'v_add_f32 {v(t+2)}, {v(t+2)}, {v(t+3)}', f'v_add_f32 {v(t+4)}, {v(t+4)}, {v(t+5)}',
              f'v_add_f32 {v(t+6)}, {v(t+6)}, {v(t+7)}', f'v_add_f32 {v(t)}, {v(t)}, {v(t+2)}', f'v_add_f32 {v(t+4)}, {v(t+4)}, {v(t+6)}',
              f'v_add_f32 {v(t)}, {v(t)}, {v(t+4)}', f'v_mov_b32 {v(t+1)}, {v(t)}', f'v_permlane32_swap_b32 {v(t)}, {v(t+1)}']
        return it + self.aux_items(v(t), v(t + 1), v(t + 2), need_r)

    def pass2(self, steps, planes, accs, swapAB, side, fill, loader=None, first=True, extra=None):
        em = self.em
        steps = list(steps)
        def rd(i, p):
            ks = steps[i]
            for t in self.tr(BB + (i % 2) * 8 + 4 * p, planes[p][ks >> 2], ks & 3): em(t, tag=('B', i))
        for i in range(2):
            for p in range(2): rd(i, p)
        br = extra(0)
        for i, ks in enumerate(steps):
            if br: br(); br = None
            if self.o.ts2 and self.S == 0 and i == 0: self.ts('first')
            lg = [k for k, p in enumerate(em.lgq) if p.tag == ('B', i)]
            need = [XORD[k] for k in (i + 1, i + 2) if k < len(steps)] if i % 2 else []
            vm = [k for k, p in enumerate(em.vmq) if p.tag == 'A' and XORD[self.ldidx[id(p)]] in need]
            em.force_wait(vm=len(em.vmq) - 1 - max(vm) if vm else None, lg=len(em.lgq) - 1 - max(lg) if lg else None)
            for p in range(2):
                w = v(BB + (i % 2) * 8 + 4 * p, 4); x = Afrag(ks); c = v(accs[p], 16)
                src = '0' if (first and i == 0) else c
                em(f'{MF} {c}, {x}, {w}, {src}' if swapAB else f'{MF} {c}, {w}, {x}, {src}')
                if i + 2 < len(steps): rd(i + 2, p)
                if p == 0: loader(i)
                if p == 0 and i + 1 < len(steps): br = extra(i + 1)
                if not (p == 0 and br): side.run(fill(i) if callable(fill) else fill)
                if self.o.ts2 and self.S == 0 and p == 1 and i in (0, 3, 7, 15, 23): self.ts(f's{i}')
    def pass1(self, plane, acc, side, fill):
        em = self.em
        NB = 4
        def rd(ks):
            for t in self.tr(BB + (ks % NB) * 4, plane[ks >> 2], ks & 3): em(t)
        for ks in range(NB - 1): rd(ks)
        for ks in range(32):
            w = v(BB + (ks % NB) * 4, 4); c = v(acc, 16)
            if ks + NB - 1 < 32: rd(ks + NB - 1)
            em(f'{MF} {c}, {w}, {Afrag(ks)}, ' + ('0' if ks == 0 else c))
            side.run(fill(ks) if callable(fill) else fill)
    def xld(self, i, e=None):
        ks = XORD[i]
        r = (e or self.em)(f'buffer_load_dwordx4 {Afrag(ks)}, {vAX}, {SWS}, {(sXl if ks & 2 else sXm)[ks >> 2]} offen offset:{(ks & 1) * 1024} sc1', tag='A')
        if e is None: self.ldidx[id(r)] = i
    def x_prefetch(self, off, n0, n1):
        if n0 == 0:
            self.em(f's_add_u32 {sT}, {sGXw}, {off}'); self.em(f'v_add_u32 {vAX}, {sT}, {vL16}')
        for i in range(n0, n1): self.xld(i)
    def a_loader(self, pre, sti, xtag):
        nxt = [pre]
        def step(i):
            if i == self.o.statstep - 10: self.stats_T_loads(sti)
            for _ in range(2 if i < self.o.burst else 1):
                if nxt[0] < 32: self.xld(nxt[0]); nxt[0] += 1
            self.xdone = nxt[0] >= 32
        def chk(i):
            if i % 2: return None
            f0 = lambda k: (lambda r: r[0] + r[2:].split(':')[0])(Afrag(XORD[k]))
            return self.check([f0(i), f0(i + 1)], lambda e: (self.xld(i, e), self.xld(i + 1, e)), v(38), split=True, kind='x', tag=xtag,
                              again=lambda e, p: self.xld(self.ldidx[id(p)], e))
        return step, chk

    def phi_items(self, acc, rl, lanes_t, E):
        out = []
        for g in range(2):
            b = acc + 8 * g
            for k in range(4):
                x = v(b + 2 * k, 2)
                if lanes_t:
                    out += [f'v_fma_f32 {v(b+2*k)}, {v(b+2*k)}, {rl}, {sDelta}', f'v_fma_f32 {v(b+2*k+1)}, {v(b+2*k+1)}, {rl}, {sDelta}']
                else: out.append(f'v_pk_fma_f32 {x}, {x}, {v(rl + 8*g + 2*k, 2)}, {sDelta2}')
            for k in range(8): out.append(f'v_exp_f32_e64 {v(E+k)}, {v(b+k)} clamp')
            for k in range(8): out.append(f'v_max_f32 {v(b+k)}, {sDelta}, {v(b+k)}')
            for k in range(4): out.append(f'v_pk_fma_f32 {v(b+2*k,2)}, {v(b+2*k,2)}, {sLn22}, {v(E+2*k,2)}')
            for k in range(4): out.append(f'v_cvt_pk_bf16_f32 {v(acc+4*g+k)}, {v(b+2*k)}, {v(b+2*k+1)}')
        return out

    def p1_start(self):
        em = self.em; o = self.o
        self.lin = True
        X = MR; OWN = [v(MR + 4), v(MR + 5), v(MR + 6)]; H = v(MR + 7); ONE = v(MR + 8, 4); CT = MR + 12
        self.OWN, self.ONE = OWN, ONE
        aS, aCk, aCv = a(0, 16), a(32, 16), a(48, 16); QA = ACC + 32
        em(f'v_and_b32 v27, 7, {vLane}'); em('v_lshlrev_b32 v27, 7, v27')
        em(f'v_bfe_u32 v28, {vLane}, 3, 2'); em('v_lshl_add_u32 v27, v28, 12, v27')
        em(f's_add_u32 {sT}, {sWl}, {24*4096}'); em(f'v_add_u32 v27, {sT}, v27')
        em(f'v_bfe_u32 v28, {vLane}, 1, 3'); em(f'v_xor_b32 v28, v28, {vHi}')
        for kk in range(4):
            em(f'v_xor_b32 v29, {2*kk}, v28'); em(f'v_lshl_add_u32 {v(X+kk)}, v29, 4, v27')
        for i in range(3): em(f'v_add_u32 {OWN[i]}, {sWl}, {vTr[i]}')
        for i in range(4): em(f'v_mov_b32 {v(MR+8+i)}, 0x3f803f80')
        for sm, bit in ((sM0, 1), (sM1, 2), (sM3, 8), (sM4, 16)):
            em(f'v_and_b32 v29, {bit}, {vLane}'); em(f'v_cmp_ne_u32 {sm}, 0, v29')
        em(f'v_bfe_u32 v29, {vLane}, 2, 1'); em(f'v_cmp_eq_u32 s[46:47], v29, {vHi}')
        if o.tw == 0: self.touch_w('v29', MR + 20)
        self.reducer_setup()
        self.emit(self.c1rest)
        def own_reads(c):
            em.wait_vm_tag(f'c{c}')
            for kk in range(4): em(f'ds_read_b128 {Afrag(4*c+kk)}, {v(X+kk)} offset:{(c % 3) * 16384}')
            for p, pl in enumerate('kv'): self.emit(self.tr(CT + 4 * p, self.pl[pl][c], 0, OWN))
        side = Side(em)
        self.stq = list(range(24, 32)) + [34, 35, 32, 33, 36, 37, 38, 39]
        if o.ts2: self.ts('pre0')
        own_reads(0)
        self.ts('c0')
        for c in range(8):
            em('s_barrier')
            if c + 2 < 8: side.add(*self.chunk_items(c + 2))
            if c == 0: side.add(self.nonce_hello)
            if c == 1: side.add(self.resets)
            if c == o.tqc: side.add(lambda: self.touch_q('v27', MR + 24))
            if c == o.tw - 1: side.add(lambda: self.touch_w('v27', MR + 20))
            if c == 1:
                def w1p():
                    em(f's_lshl_b32 {sT2}, {sW}, 6'); em(f's_add_u32 {sT2}, {sT2}, {sW1c0}'); em(f's_cmp_lt_u32 {sW}, 2'); em(f's_cselect_b32 {sT2}, {sT2}, {sW1c2}')
                    em(f's_lshl_b32 {sR}, {sG}, 1'); em(f's_sub_u32 {sR}, {sR}, {sW}'); em(f's_mul_i32 {sR}, {sR}, {16*2752}')
                    em(f'v_add_u32 v28, {sR}, {vD1}')
                    self.dma(SW1, 'v28', sT2, 0, 36, 'w1p'); self.dma(SW1, 'v28', sT2, 16 * 2752, 37, 'w1p')
                side.add(w1p)
            if c == 5:
                aW = a(80, 16); W = MR + 24
                side.add(lambda: em.wait_vm_tag('w1p'))
                side.add(*self.tr(W, 36, 0, OWN)); side.add(*self.tr(W + 4, 37, 0, OWN))
                side.add(f'{MF} {aW}, {ONE}, {v(W,4)}, 0', f'{MF} {aW}, {ONE}, {v(W+4,4)}, {aW}')
            if c == 6:
                def w1s():
                    W = MR + 24
                    em(f'v_accvgpr_read_b32 {v(W)}, a80'); em(f's_and_b32 {sT2}, {sNonce}, 0xff'); em(f'v_mov_b32 {v(W+1)}, {sT2}')
                    em(f'v_and_or_b32 {v(W)}, {v(W)}, {sMaskInv}, {v(W+1)}'); em(f'v_lshlrev_b32 {v(W+1)}, 2, {vLane}')
                    em(f's_min_u32 {sR}, {sW}, 2'); em(f's_lshl_b32 {sR}, {sR}, 7')
                    em(f's_mul_i32 {sT2}, {sG}, {MSG_B}'); em(f's_add_u32 {sT2}, {sT2}, {sJmsg}'); em(f's_add_u32 {sT2}, {sT2}, {sR}')
                    em('s_mov_b32 exec_hi, 0')
                    self.wsstore(v(W), v(W + 1), sT2, 2176, width=1, sc=' sc1', tag='rst')
                    em('s_mov_b64 exec, -1')
                side.add(w1s)
            if c == 5:
                def hello():
                    em(f's_add_u32 {sT2}, {sG128}, {WS_HELLO}')
                    em(f'buffer_load_dword {H}, {vPoll}, {SWS}, {sT2} offen sc1', tag='hello')
                side.add(hello)
            if c >= 5:
                for m in range(8):
                    if o.qsched[m] == str(c): side.add(lambda m=m: self.qkv_dma('q', m, 'q'))
            def rd(kk, p):
                self.emit(self.tr(BB + (kk % 2) * 8 + 4 * p, self.pl['kv'[p]][c], kk))
            for kk in range(2):
                for p in range(2): rd(kk, p)
            cnt = [0]
            def tick():
                cnt[0] += 1
                if c < 7 and cnt[0] % o.cgap == o.cgap - 1: side.run(1)
            for p, acc in enumerate((aCk, aCv)):
                em(f'{MF} {acc}, {ONE}, {v(CT+4*p,4)}, ' + ('0' if c == 0 else acc)); tick()
            for kk in range(4):
                ks = 4 * c + kk
                em(f'{MF} {aS}, {ONE}, {Afrag(ks)}, ' + ('0' if ks == 0 else aS)); tick()
                em(f'{MF} {v(QA,16)}, {Afrag(ks)}, {Afrag(ks)}, ' + ('0' if ks == 0 else v(QA, 16))); tick()
            if c == 7:
                S, Q, T = v(MR + 20), v(QA), v(MR + 22)
                tail = [f'v_accvgpr_read_b32 {v(MR+20)}, a32', f'v_accvgpr_read_b32 {v(MR+21)}, a48']
                tail += self.cs_write_items([v(MR + 20), v(MR + 21)], 32 * 4096, MR + 22) + [self.barrier] + self.cs_read_items(['k', 'v'], MR + 22)
                tail += [f'v_accvgpr_read_b32 {S}, a0']
                for r in range(8): tail.append(f'v_cndmask_b32 {v(QA+r)}, {v(QA+2*r)}, {v(QA+2*r+1)}, {sM0}')
                for r in range(4): tail.append(f'v_cndmask_b32 {v(QA+r)}, {v(QA+2*r)}, {v(QA+2*r+1)}, {sM1}')
                for r in range(2): tail.append(f'v_cndmask_b32 {v(QA+r)}, {v(QA+2*r)}, {v(QA+2*r+1)}, {sM3}')
                tail += [f'v_cndmask_b32 {Q}, {Q}, {v(QA+1)}, {sM4}', f'v_cndmask_b32 {Q}, 0, {Q}, s[46:47]',
                         f'v_mov_b32 {T}, {Q}', f'v_permlane32_swap_b32 {Q}, {T}', f'v_add_f32 {Q}, {Q}, {T}']
                tail += self.aux_const_items() + self.aux_items(S, Q, T)
                side.q = tail + side.q
            for kk in range(4):
                ks = 4 * c + kk
                for p in range(2):
                    cc = v(ACC + 16 * p, 16)
                    em(f'{MF} {cc}, {Afrag(ks)}, {v(BB + (kk % 2) * 8 + 4 * p, 4)}, ' + ('0' if ks == 0 else cc))
                    if kk + 2 < 4: rd(kk + 2, p)
                    if c < 7: tick()
                    else: side.run(7)
                if kk == o.ownpos and c + 1 < 8: own_reads(c + 1)
            if c < 7: side.flush()
            if c in (1, 3, 5) and not o.ts2: self.ts(f'c{c}e')
        side.flush()
        self.ts('kvpass')
        self.emit(self.corr_items('k', ACC, True)); self.emit(self.corr_items('v', ACC + 16, True))
        L = em.newlabel('Lhp'); D = em.newlabel('Lhd')
        em.wait_vm_tag('hello')
        em.label(L)
        em(f'v_subrev_u32 {v(TMP)}, {sNonce}, {H}'); em(f'v_add_u32 {v(TMP)}, -1, {v(TMP)}')
        em(f'v_cmp_le_u32 vcc, 16, {v(TMP)}')
        em(f's_cbranch_vccz {D}')
        em.cond_begin()
        em(f's_add_u32 {sT2}, {sG128}, {WS_HELLO}')
        em(f'buffer_load_dword {H}, {vPoll}, {SWS}, {sT2} offen sc1'); em.force_wait(vm=0)
        em.cond_end()
        self.spin_tail(L)
        em.label(D)
        em(f'v_cmp_ne_u32 vcc, {sHello}, {H}')
        for i in range(3): em(f'v_mov_b32 {v(TMP+i)}, {OWN[i]}')
        self.OWN = [v(TMP), v(TMP + 1), v(TMP + 2)]
        em(f'{MF} {v(MR,16)}, {v(AUX,4)}, {v(CB+2,4)}, 0')
        self.ts('decide')

    def p1_rest(self, l):
        em = self.em; o = self.o
        K, V, Q = ACC, ACC + 16, ACC + 32
        RL = MR; E = MR + 16
        sq = self.pl['k'][:4]
        sa = 36 * 4096
        mw, mr, fac, t16, tg = v(V + 8), v(V + 9), v(V + 10), v(V + 11), v(V + 12)
        u, x1, x2 = v(V + 13), v(V + 14), v(V + 15)
        self.emit(self.phi_items(K, RL, False, E))
        D0, D1 = MR, MR + 16
        rest = []
        for hh in range(2):
            rest += [f'v_pk_mul_f32 {v(V+2*r,2)}, {v(V+2*r,2)}, {v(RL+2*r,2)}' for r in range(4 * hh, 4 * hh + 4)]
            rest += [f'v_cvt_pk_bf16_f32 {v(V+r)}, {v(V+2*r)}, {v(V+2*r+1)}' for r in range(4 * hh, 4 * hh + 4)]
        W_ = E
        rest = rest[:8] + [f'v_mov_b32 {v(K+8+r)}, {v(CB+4)}' for r in range(8)] + [f'v_permlane16_swap_b32 {v(V+r)}, {v(K+8+r)}' for r in range(4)] + rest[8:]
        rest += [f'{MF} {v(D1,16)}, {v(K,4)}, {v(K+8,4)}, 0']
        rest += [f'v_permlane16_swap_b32 {v(V+r)}, {v(K+8+r)}' for r in range(4, 8)]
        rest += [f'{MF} {v(D0,16)}, {v(K,4)}, {v(V,4)}, 0', f'{MF} {v(D1,16)}, {v(K+4,4)}, {v(K+12,4)}, {v(D1,16)}',
                 f'{MF} {v(D0,16)}, {v(K+4,4)}, {v(V+4,4)}, {v(D0,16)}']
        if l == 0:
            for r in range(4): em(f'v_mov_b32 {v(BB+8+r)}, {v(CB+4)}')
            cs = [lambda: em.wait_vm_tag('q')] + self.colsum_items(self.pl['q'], v(Q, 16), BB, self.OWN, v(BB + 8, 4), True)
            mixed = []
            while rest or cs:
                mixed += rest[:1] + cs[:1]; rest = rest[1:]; cs = cs[1:]
            rest = mixed
        self.emit(rest)
        self.emit([f's_lshl_b32 {sT2}, {sW}, 12', f's_add_u32 {sT2}, {sT2}, {sa}', f'v_add_u32 {mw}, {sT2}, {vL16}',
                   f'v_bfe_u32 {x1}, {vLane}, 1, 4', f'v_lshl_add_u32 {x1}, {vHi}, 5, {x1}', f'v_lshlrev_b32 {x1}, 4, {x1}',
                   f's_lshl_b32 {sT2}, {sW}, 11', f'v_add_u32 {x1}, {sT2}, {x1}',
                   f'v_bfe_u32 {x2}, {vLane}, 1, 2', f'v_lshlrev_b32 {x2}, 9, {x2}', f'v_bfe_u32 {u}, {vLane}, 2, 1', f'v_lshl_add_u32 {x2}, {u}, 10, {x2}', f'v_add_u32 {x2}, 256, {x2}',
                   f's_cmp_eq_u32 {sW}, 2', f's_cselect_b64 vcc, -1, 0', f'v_cndmask_b32 {mr}, {x1}, {x2}, vcc',
                   f'v_and_b32 {x1}, 1, {vLane}', f'v_lshl_add_u32 {mr}, {x1}, 10, {mr}', f'v_add_u32 {mr}, {sa:#x}, {mr}',
                   f'v_add_u32 {t16}, {sWl}, {vL16}', f's_and_b32 {sT2}, {sNonce}, 0xff', f'v_mov_b32 {tg}, {sT2}',
                   f'v_lshrrev_b32 {x1}, 3, {vLane}', f'v_mul_u32_u24 {x1}, {MSG_B}, {x1}', f'v_and_b32 {x2}, 7, {vLane}', f'v_lshl_add_u32 {fac}, {x2}, 4, {x1}'])
        self.kt_voff(u, x1)
        for i, r in ((2, D1 + 8), (3, D1 + 12), (0, D0), (1, D0 + 4)): em(f'ds_write_b128 {mw}, {v(r,4)} offset:{i*1024}')
        if l == 0: self.emit(self.cs_write_items([v(Q)], 33 * 4096, V))
        em.wait_vm_tag('q')
        self.barrier()
        if not o.ts2: self.ts('kvbar')
        M = MR
        ga = fac; G = MR + 4; A0 = x1; sOK = 's48'
        def msg_out():
            for i in range(4): em(f'ds_read_b128 {v(M+4*i,4)}, {mr} offset:{i*4096}')
            for r in (0, 2): em(f'v_pk_add_f32 {v(M+r,2)}, {v(M+r,2)}, {v(M+4+r,2)}')
            for r in (0, 2): em(f'v_pk_add_f32 {v(M+8+r,2)}, {v(M+8+r,2)}, {v(M+12+r,2)}')
            for r in (0, 2): em(f'v_pk_add_f32 {v(M+r,2)}, {v(M+r,2)}, {v(M+8+r,2)}')
            em(f'v_cmp_gt_u32 vcc, 2176, {t16}')
            for r in range(4): em(f'v_and_or_b32 {v(M+r)}, {v(M+r)}, {sMaskInv}, {tg}')
            em(f's_mul_i32 {sT2}, {sG}, {MSG_B}'); em(f's_add_u32 {sT2}, {sT2}, {sJmsg}')
            em('s_mov_b64 exec, vcc')
            self.wsstore(v(M, 4), t16, sT2, l * 256 * MSG_B, sc=' sc1', tag='msg')
            em('s_mov_b64 exec, -1')
        self.only_wave(3, msg_out, invert=True)
        def if_pending(f):
            L = em.newlabel('Lp')
            em(f's_cmp_lg_u32 {sOK}, 0'); em(f's_cbranch_scc1 {L}')
            em.cond_begin(); f(); em.vmq = [p for p in em.vmq if p.tag != 'g']; em.cond_end()
            em.label(L)
            self.gmark = set(id(p) for p in em.vmq)
        def g_loads():
            em(f's_mov_b64 exec, {sX0}'); self.wsload(v(G, 4), ga, sLine, l * 256 * MSG_B, tag='g')
            em(f's_mov_b64 exec, {sX1}'); self.wsload(v(G + 4, 4), ga, sLine, l * 256 * MSG_B + 8 * MSG_B, tag='g')
            em('s_mov_b64 exec, -1')
        def g_check():
            em(f'v_xor_b32 {A0}, {v(G)}, {tg}')
            for r in (3, 4, 7): em(f'v_bitop3_b32 {A0}, {v(G+r)}, {tg}, {A0} bitop3:0xbe')
            em(f'v_and_b32 {A0}, 0xff, {A0}'); em(f'v_cmp_ne_u32 vcc, 0, {A0}')
        def g_finish():
            for r in (0, 2): em(f'v_pk_add_f32 {v(G+r,2)}, {v(G+r,2)}, {v(G+4+r,2)}')
            for r in range(4): em(f'v_add_f32_dpp {v(G+r)}, {v(G+r)}, {v(G+r)} row_ror:8 {DPPM}')
            em(f'v_permlane16_swap_b32 {v(G)}, {v(G+1)}'); em(f'v_permlane16_swap_b32 {v(G+2)}, {v(G+3)}')
            em(f'v_add_f32 {v(G)}, {v(G)}, {v(G+1)}'); em(f'v_add_f32 {v(G+2)}, {v(G+2)}, {v(G+3)}')
            em(f'v_permlane32_swap_b32 {v(G)}, {v(G+2)}'); em(f'v_add_f32 {v(G)}, {v(G)}, {v(G+2)}')
            em(f'v_mul_f32 {v(G)}, {sFac}, {v(G)}'); em(f'v_mov_b32 {v(G+1)}, {v(G)}')
            em(f'v_permlane16_swap_b32 {v(G)}, {v(G+1)}'); em(f'v_cvt_pk_bf16_f32 {v(G)}, {v(G)}, {v(G+1)}')
            em('s_mov_b32 exec_lo, 0xff'); em('s_mov_b32 exec_hi, 0xff')
            self.wsstore(v(G), u, sKTo, l * 0x8000, width=1, sc=' sc1', tag='kt')
            em('s_mov_b64 exec, -1')
            em(f's_mov_b32 {sOK}, 1')
        def first():
            for r in range(4): em(f'v_mov_b32 {v(G+r)}, {v(M+r)}'); em(f'v_mov_b32 {v(G+4+r)}, {v(M+r)}')
            g_loads()
        def attempt():
            em.force_wait(vm=len([p for p in em.vmq if id(p) not in self.gmark]))
            g_check()
            L = em.newlabel('La'); E2 = em.newlabel('Lb')
            em(f's_cbranch_vccnz {L}')
            em.cond_begin(); g_finish(); em.cond_end()
            em(f's_branch {E2}')
            em.label(L)
            g_loads()
            em.label(E2)
        em(f's_xor_b32 {sOK}, {sRed}, 1')
        if_pending(first)
        self.ts('msg')
        side = Side(em)
        if l == 0: side.add(*self.cs_read_items(['q'], V))
        self.p1_bg(l, side)
        def fillq(ks):
            if ks == o.gstep: if_pending(attempt)
            return o.fill_p1
        self.pass1(self.pl['q'], Q, side, fillq)
        self.emit(self.corr_items('q', Q, False))
        side.flush()
        if self.lin:
            self.lin = False
            em(f'v_lshlrev_b32 {v(TMP)}, 8, {vHi}')
            for i in range(3): em(f'v_sub_u32 {vTr[i]}, {vTr[i]}, {v(TMP)}')
        self.barrier()
        self.ts('qpass')
        if o.gstep >= 32 or o.att2: if_pending(attempt)
        self.p1_after_q(l)
        self.emit(self.phi_items(Q, vRl, True, E))
        self.wsstore(v(Q, 4), vL16, sQst, 0); self.wsstore(v(Q + 4, 4), vL16, sQst, 0, off=1024)
        if o.rstpos == 1 and l == 0: self.emit(self.reset_items(ACC + 8, o.rst1))
        self.kt_addr()
        if not o.ts2: self.ts('qst')
        def loop():
            L = em.newlabel('Lg'); D = em.newlabel('Lgd')
            em.force_wait(vm=len([p for p in em.vmq if id(p) not in self.gmark]))
            em.label(L)
            g_check()
            em(f's_cbranch_vccz {D}')
            em.cond_begin(); g_loads(); em.force_wait(vm=0); em.cond_end()
            self.spin_tail(L)
            em.label(D)
            g_finish()
            em.force_wait(vm=1)
            em('s_mov_b64 exec, 1')
            em(f'v_mov_b32 {A0}, {sNonce}'); em(f's_add_u32 {sT2}, {sFlag}, {4*l*4096}')
            em(f'buffer_store_dword {A0}, off, {SWS}, {sT2}' + self.sc)
            em('s_mov_b64 exec, -1')
            em(f's_mov_b32 {sOK}, 0')
        if_pending(loop)
        if not o.ts2: self.ts('kvpoll')
        def cs_reduce():
            L0 = em.newlabel('Lc'); L = em.newlabel('Lc'); D = em.newlabel('Lc')
            em(f's_cmp_ge_u32 {sCsp}, 3'); em(f's_cbranch_scc1 {L0}')
            em.cond_begin()
            em(f's_lshl_b32 {sR}, {sCsp}, 7'); em(f's_add_u32 {sR}, {sR}, {sJmsg}')
            em.label(L)
            self.wsload(v(G, 4), ga, sR, 2176); self.wsload(v(G + 4, 4), ga, sR, 2176 + 8 * MSG_B)
            em(f'v_xor_b32 {A0}, {v(G)}, {tg}')
            for r in range(1, 8): em(f'v_bitop3_b32 {A0}, {v(G+r)}, {tg}, {A0} bitop3:0xbe')
            em(f'v_and_b32 {A0}, 0xff, {A0}'); em(f'v_cmp_ne_u32 vcc, 0, {A0}')
            em(f's_cbranch_vccz {D}')
            self.spin_tail(L)
            em.label(D)
            for r in (0, 2): em(f'v_pk_add_f32 {v(G+r,2)}, {v(G+r,2)}, {v(G+4+r,2)}')
            for r in range(4): em(f'v_add_f32_dpp {v(G+r)}, {v(G+r)}, {v(G+r)} row_ror:8 {DPPM}')
            em(f'v_permlane16_swap_b32 {v(G)}, {v(G+1)}'); em(f'v_permlane16_swap_b32 {v(G+2)}, {v(G+3)}')
            em(f'v_add_f32 {v(G)}, {v(G)}, {v(G+1)}'); em(f'v_add_f32 {v(G+2)}, {v(G+2)}, {v(G+3)}')
            em(f'v_permlane32_swap_b32 {v(G)}, {v(G+2)}'); em(f'v_add_f32 {v(G)}, {v(G)}, {v(G+2)}')
            em(f'v_cvt_pk_bf16_f32 {v(G+1)}, {v(G)}, {v(G)}'); em(f'v_lshlrev_b32 {v(G+1)}, 16, {v(G+1)}'); em(f'v_sub_f32 {v(G+1)}, {v(G)}, {v(G+1)}')
            em(f'v_cvt_pk_bf16_f32 {v(G)}, {v(G)}, {v(G+1)}')
            em(f'v_and_b32 {v(G+1)}, 7, {vLane}'); em(f'v_lshlrev_b32 {v(G+1)}, 4, {v(G+1)}'); em(f'v_lshrrev_b32 {v(G+2)}, 4, {vLane}'); em(f'v_lshl_add_u32 {v(G+1)}, {v(G+2)}, 2, {v(G+1)}')
            em(f's_mul_i32 {sT2}, {sJ}, 384'); em(f's_lshl_b32 {sR}, {sCsp}, 7'); em(f's_add_u32 {sT2}, {sT2}, {sR}')
            em('s_mov_b32 exec_lo, 0x00ff00ff'); em('s_mov_b32 exec_hi, 0x00ff00ff')
            self.wsstore(v(G), v(G + 1), sT2, WS_CS, width=1, sc=' sc1', tag='kt')
            em('s_mov_b64 exec, -1')
            em.cond_end()
            em.label(L0)
        def mid():
            if l == 0: cs_reduce()
            def l2w2():
                em(f'v_lshlrev_b32 {v(G)}, 7, {vLane}'); em(f's_lshr_b32 {sT2}, s2, 3'); em(f's_mul_i32 {sT2}, {sT2}, {344*128}')
                for k in range(6):
                    if k == 5: em('s_mov_b64 exec, 0xffffff')
                    em(f's_add_u32 {sT}, {sT2}, {k*8192}')
                    em(f'buffer_load_dword {v(G+1+k)}, {v(G)}, {SW2}, {sT} offen', tag='l2')
                    if o.thr2 and k >= o.thr2 - 1: em.force_wait(vm=o.thr2 - 1)
                em('s_mov_b64 exec, -1')
                em.vmq = [p for p in em.vmq if p.tag != 'l2']
            if l == 0 and o.tw2 == 1: self.only_wave(3, l2w2)
            self.p1_gap(l)
            if o.share:
                n = o.share if l == 0 else o.share2
                for m in range(n): self.w1dma(0, m, 'w1a'); self.w1dma(1, m, 'w1a')
                self.w1_todo = list(range(n, 4)) + [m for m in self.w1_todo if m >= 4]
            else: self.only_wave(3, lambda: self.p1_loader(l, 3))
            if l == 0 and o.tw2 == 2: self.only_wave(3, l2w2)
        self.group_sync(4 * l + 0, mid=mid, bar=False, skipif=sOK, tags=None)

    def w1dma(self, p, m, tag):
        if p != 1: self.rot(m, 64 * 2752, sW1c0)
        if p == 1: self.em(f's_add_u32 {sR}, {sR}, {sW1d}')
        self.dma(SW1, vD1, sR, 64 if p == 2 else 0, self.w1pl[p][m], tag)

    def p1_bg(self, l, side):
        em = self.em; o = self.o
        self.w1pl = [[16, 17, 18, 19, 24, 25, 26, 27], [20, 21, 22, 23, 28, 29, 30, 31], list(range(32, 40))]
        pad = ['s_nop 0'] * o.bgpad
        if l == 0:
            def res():
                t = v(MR + 16)
                em(f'v_lshrrev_b32 {t}, 2, {vLane}'); em(f's_lshl_b32 {sT2}, {sW}, 4'); em(f'v_add_u32 {t}, {sT2}, {t}'); em(f'v_lshlrev_b32 {t}, 10, {t}')
                em(f'v_and_b32 {v(MR+17)}, 3, {vLane}'); em(f'v_lshl_add_u32 {t}, {v(MR+17)}, 4, {t}')
                em(f'buffer_load_dwordx4 {a(RES,4)}, {t}, {SX}, {sOutRow} offen', tag='res')
                em(f'buffer_load_dwordx4 {a(RES+4,4)}, {t}, {SX}, {sOutRow} offen offset:64', tag='res')
            side.add(res)
            side.add(self.late_setup)
            for i in range(5): side.add(lambda i=i: self.stage_dma(SWO, i, self.stq[2 * i], self.stq[2 * i + 1], 'wo'), *pad)
            if o.rstpos == 0: side.add(*self.reset_items(ACC + 8, o.rst1))
            self.w1_todo = [4, 5, 6, 7]
        else:
            for m in range(4, 4 + o.w1_early): side.add(lambda m=m: (self.w1dma(0, m, 'w1a'), self.w1dma(1, m, 'w1a')), *pad)
            self.w1_todo = list(range(4 + o.w1_early, 8))

    def late_setup(self):
        em = self.em
        em(f's_sub_u32 {sW1d}, {sW1c2}, {sW1c0}')
        em(f's_lshl_b32 {sT2}, {sW}, 13'); em(f's_add_u32 {sT2}, {sT2}, {S_ADDR}'); em(f'v_add_u32 {vRW}, {sT2}, {vL16}')
        em(f's_lshr_b32 {sT}, {sW}, 1'); em(f's_lshl_b32 {sT2}, {sT}, 12'); em(f's_and_b32 {sR}, {sW}, 1'); em(f's_lshl_b32 {sR}, {sR}, 8')
        em(f's_add_u32 {sT2}, {sT2}, {sR}'); em(f's_add_u32 {sT2}, {sT2}, {S_ADDR}')
        em(f'v_lshl_add_u32 {vRR}, {vHi}, 10, {vP}'); em(f'v_add_u32 {vRR}, {sT2}, {vRR}')
        for m in range(8):
            em(f's_add_u32 {sXm[m]}, {sRot}, {m}'); em(f's_and_b32 {sXm[m]}, {sXm[m]}, 7'); em(f's_and_b32 {sR}, {sXm[m]}, 1')
            em(f's_lshl_b32 {sXm[m]}, {sXm[m]}, 1'); em(f's_add_u32 {sXm[m]}, {sXm[m]}, {sR}'); em(f's_lshl_b32 {sXm[m]}, {sXm[m]}, 11'); em(f's_xor_b32 {sXl[m]}, {sXm[m]}, 2048')
        for k in range(4):
            w0, w1_ = [sum(m << (5 * i) for i, m in enumerate(ORD4[c][6 * k:6 * k + 6])) for c in range(2)]
            em(f's_mov_b32 {sTab[k]}, {w0:#x}'); em(f's_cmp_eq_u32 {sT}, 0'); em(f's_cselect_b32 {sTab[k]}, {sTab[k]}, {w1_:#x}')

    def p1_after_q(self, l):
        if l == 0:
            for i in range(5, 8): self.stage_dma(SWO, i, self.stq[2 * i], self.stq[2 * i + 1], 'wo')

    def p1_gap(self, l):
        em = self.em; o = self.o
        if l == 0:
            em.wait_vm_tag('wo')
            for i in range(8): self.emit(self.stage_read_items(WOA, i, self.stq[2 * i], self.stq[2 * i + 1]))
            em.wait_lg(0)
            self.res_first()
            self.w2next = 0
            self.b1 = self.w2_batch(list(range(32, 40))[:2 * o.w2b1], 'w2a')
            for m in range(4, 4 + o.w1_gap): self.w1dma(0, m, 'w1a'); self.w1dma(1, m, 'w1a')
            self.w1_todo = list(range(4 + o.w1_gap, 8))
            if o.b1gap: self.emit(self.b1[0])

    def p1_loader(self, l, w):
        em = self.em; o = self.o
        vo = v(TMP)
        em(f'v_subrev_u32 {vo}, {w*16*2752}, {vD1}')
        for m in range(o.w1_solo):
            self.rot(m, 64 * 2752, sW1c0)
            for s in range(4):
                if s == 0: em(f's_add_u32 {sFx}, {sR}, {sW1d}')
                for p in range(2): self.dma(SW1, vo, sFx if p else sR, s * 16 * 2752, self.w1pl[p][m], 'solo', slot=s)
                if o.thr: em.force_wait(vm=o.thr)
        self.w1_todo = list(range(o.w1_solo, 4)) + [m for m in self.w1_todo if m >= 4]

    def w2_batch(self, quads, tag):
        steps = list(range(self.w2next, min(22, self.w2next + len(quads) // 2)))
        self.w2next += len(steps)
        issue = [lambda k=k, m=m: self.stage_dma(SW2, m, quads[2 * k], quads[2 * k + 1], tag) for k, m in enumerate(steps)]
        read = [lambda: self.em.wait_vm_tag(tag)] if steps else []
        for k, m in enumerate(steps): read += self.stage_read_items(W2A, m, quads[2 * k], quads[2 * k + 1])
        return issue, read

    def res_first(self):
        em = self.em
        t0, t1, t2 = v(TMP), v(TMP + 1), v(TMP + 2)
        em(f's_add_u32 {sT2}, {sWl}, {self.S}')
        em(f'v_add_u32 {t0}, {sT2}, {vL16}')
        em(f'v_and_b32 {t1}, 15, {vLane}'); em(f'v_lshlrev_b32 {t1}, 6, {t1}'); em(f'v_lshl_add_u32 {t1}, {vHi}, 5, {t1}')
        em(f'v_bfe_u32 {t2}, {vLane}, 4, 1'); em(f'v_lshl_add_u32 {t1}, {t2}, 3, {t1}'); em(f'v_add_u32 {t1}, {sT2}, {t1}')
        for h in range(2): em(f'ds_write_b128 {t0}, {a(RES+4*h,4)} offset:{h*4096}')
        em.wait_lg(0)
        for h in range(2):
            em(f'ds_read_b64 {a(RES+4*h,2)}, {t1} offset:{h*4096}'); em(f'ds_read_b64 {a(RES+4*h+2,2)}, {t1} offset:{h*4096+16}')
        em.wait_lg(0)
    def res_last_items(self, lds):
        t0, t1, t2 = v(TMP), v(TMP + 1), v(TMP + 2)
        it = [f'v_and_b32 {t0}, 15, {vLane}', f'v_mul_u32_u24 {t0}, 144, {t0}', f'v_lshl_add_u32 {t0}, {vHi}, 5, {t0}',
              f'v_bfe_u32 {t1}, {vLane}, 4, 1', f'v_lshl_add_u32 {t0}, {t1}, 3, {t0}',
              f's_mul_i32 {sT2}, {sW}, {16*144}', f's_add_u32 {sT2}, {sT2}, {lds}', f'v_add_u32 {t0}, {sT2}, {t0}',
              f'v_lshrrev_b32 {t1}, 3, {vLane}', f'v_mul_u32_u24 {t1}, 144, {t1}', f'v_and_b32 {t2}, 7, {vLane}', f'v_lshl_add_u32 {t1}, {t2}, 4, {t1}',
              f's_mul_i32 {sT2}, {sW}, {8*144}', f's_add_u32 {sT2}, {sT2}, {lds}', f'v_add_u32 {t1}, {sT2}, {t1}']
        for c in range(2):
            it += [f'ds_write_b64 {t0}, {a(RES+4*c,2)} offset:{c*64}', f'ds_write_b64 {t0}, {a(RES+4*c+2,2)} offset:{c*64+16}']
        it2 = [f'ds_read_b128 {a(RES+4*h,4)}, {t1} offset:{h*32*144}' for h in range(2)]
        return it, it2
    def kt_addr(self):
        em = self.em
        t0, t1, t2 = v(TMP + 1), v(TMP + 2), v(TMP + 3)
        em(f'v_and_b32 {t0}, 15, {vLane}'); em(f'v_lshlrev_b32 {t0}, 4, {t0}'); em(f'v_lshl_add_u32 {t0}, {vHi}, 8, {t0}')
        em(f'v_lshlrev_b32 {t1}, 4, {vHi}'); em(f'v_add_u32 {t1}, 512, {t1}'); em(f'v_and_b32 {t2}, 16, {vLane}'); em(f'v_cmp_ne_u32 vcc, 0, {t2}')
        em(f'v_cndmask_b32 {t0}, {t0}, {t1}, vcc'); em(f's_mul_i32 {sT2}, {sW}, 544'); em(f'v_add_u32 {v(vKT)}, {sT2}, {t0}')
    def final_addr_items(self):
        t0, t1, t2 = v(20), v(21), v(MR)
        it = [f's_lshl_b32 {sT2}, {sW}, 13', f's_add_u32 {sT2}, {sT2}, {self.S}', f'v_add_u32 {v(FW)}, {sT2}, {vL16}']
        it += [f'v_xor_b32 {v(FW+i)}, {64*i}, {v(FW)}' for i in range(1, 4)]
        it += [f'v_and_b32 {t1}, 7, {vLane}', f's_lshl_b32 {sT2}, {sW}, 3', f'v_add_u32 {t0}, {sT2}, {t1}',
               f'v_lshrrev_b32 {t2}, 3, {vLane}', f'v_lshlrev_b32 {v(FB)}, 2, {t2}', f'v_lshlrev_b32 {v(FS)}, 9, {t2}', f'v_lshl_add_u32 {v(FS)}, {t0}, 4, {v(FS)}',
               f's_lshl_b32 {sT2}, {sW}, 3', f'v_add_u32 {t0}, {sT2}, {t2}',
               f'v_lshlrev_b32 {v(FO)}, 10, {t0}', f'v_lshl_add_u32 {v(FO)}, {t1}, 4, {v(FO)}',
               f'v_and_b32 {t2}, 3, {vLane}', f'v_lshlrev_b32 {t2}, 2, {t2}', f'v_xor_b32 {t2}, {t2}, {t0}', f'v_lshlrev_b32 {t2}, 4, {t2}',
               f'v_lshl_add_u32 {v(FR)}, {t1}, 10, {t2}', f'v_add_u32 {v(FR)}, {self.S:#x}, {v(FR)}']
        return it

    def unpack_items(self, half, U):
        it = [f'v_accvgpr_read_b32 {v(U+2*r+1)}, {a(RES+4*half+r)}' for r in range(4)]
        for r in range(4):
            it += [f'v_lshlrev_b32 {v(U+2*r)}, 16, {v(U+2*r+1)}', f'v_and_b32 {v(U+2*r+1)}, 0xffff0000, {v(U+2*r+1)}']
        return it
    def reduce_items(self, half, acc0, acc1, R, U, rs, xoff, sti, final, unpack, after_store=()):
        em = self.em
        it = []
        for c in range(8):
            src = v((acc0 if c < 4 else acc1) + 4 * (c & 3), 4)
            it.append(f'ds_write_b128 {v(FW + (c & 3)) if final else vRW}, {src} offset:{c*1024}')
        it.append(self.barrier)
        o2 = 512 if final else 1024; rd = v(FR) if final else vRR
        for w in range(4):
            it.append(f'ds_read_b128 {v(R+8*w,4)}, {rd} offset:{w*8192}'); it.append(f'ds_read_b128 {v(R+8*w+4,4)}, {rd} offset:{w*8192+o2}')
        if unpack: it += self.unpack_items(half, U)
        add = lambda d, s_: [f'v_pk_add_f32 {v(d+r,2)}, {v(d+r,2)}, {v(s_+r,2)}' for r in range(0, 8, 2)]
        if rs is None: it += add(R, U)
        it += add(R, R + 8) + add(R + 16, R + 24) + add(R, R + 16)
        if rs is not None: it += [f'v_pk_fma_f32 {v(R+r,2)}, {v(R+r,2)}, {v(rs,2)}, {v(U+r,2)} op_sel_hi:[1,0,1]' for r in range(0, 8, 2)]
        P = R + 8
        for r in range(4): it.append(f'v_cvt_pk_bf16_f32 {v(P+r)}, {v(R+2*r)}, {v(R+2*r+1)}')
        if final:
            def st():
                em(f's_add_u32 {sT}, {sOutRow}, {half*32768}')
                em(f'buffer_store_dwordx4 {v(P,4)}, {v(FO)}, {SOUT}, {sT} offen' + self.o.outsc, tag='st')
            it.append(st)
            return it
        it += [f'v_accvgpr_write_b32 {a(RES+4*half)}, {v(P)}', f'v_and_b32 {v(P)}, -2, {v(P)}' if sti == 1 else f'v_or_b32 {v(P)}, 1, {v(P)}']
        def stx():
            em(f's_and_b32 {sT}, {sJ}, 1'); em(f's_xor_b32 {sT}, {sT}, {half}'); em(f's_lshl_b32 {sT}, {sT}, 11'); em(f's_add_u32 {sT}, {sT}, {sXst}')
            em(f'buffer_store_dwordx4 {v(P,4)}, {vP}, {SWS}, {sT} offen' + self.sc, tag='st')
        it.append(stx)
        it += list(after_store)
        S, Q = AUX, AUX + 2
        if half == 0:
            it += [f'v_pk_add_f32 {v(S,2)}, {v(R,2)}, {v(R+2,2)}', f'v_pk_mul_f32 {v(Q,2)}, {v(R,2)}, {v(R,2)}', f'v_pk_fma_f32 {v(Q,2)}, {v(R+2,2)}, {v(R+2,2)}, {v(Q,2)}']
        for r in ((4, 6) if half == 0 else (0, 2, 4, 6)):
            it += [f'v_pk_add_f32 {v(S,2)}, {v(S,2)}, {v(R+r,2)}', f'v_pk_fma_f32 {v(Q,2)}, {v(R+r,2)}, {v(R+r,2)}, {v(Q,2)}']
        it += [f'v_accvgpr_write_b32 {a(RES+4*half+r)}, {v(P+r)}' for r in range(1, 4)]
        if half == 1:
            T = v(S + 1)
            it += [f'v_add_f32 {v(S)}, {v(S)}, {v(S+1)}', f'v_add_f32 {v(Q)}, {v(Q)}, {v(Q+1)}', f'v_and_b32 {v(Q+1)}, 512, {vP}', f'v_add_u32 {v(Q+1)}, {v(Q+1)}, {vP}',
                   f'v_permlane16_swap_b32 {v(S)}, {v(Q)}', f'v_add_f32 {v(S)}, {v(S)}, {v(Q)}', f'v_mov_b32 {T}, {v(S)}', f'v_permlane32_swap_b32 {v(S)}, {T}', f'v_add_f32 {v(S)}, {v(S)}, {T}',
                   f'v_or_b32 {v(S)}, 1, {v(S)}']
            def st2():
                em('s_mov_b32 exec_hi, 0')
                self.wsstore(v(S), v(Q + 1), sStst, sti * 16 * 8192, width=1)
                em('s_mov_b64 exec, -1')
            it.append(st2)
        return it

    def two_halves(self, mfs, A, rs, xoff, sti, pre_wait=None):
        em = self.em; o = self.o
        r0 = self.reduce_items(0, A[0][0], A[1][0], MR, BB, rs, xoff, sti, False, False)
        r1 = self.reduce_items(1, A[0][1], A[1][1], MR, BB + 8, rs, xoff, sti, False, False)
        W0, RD0, V0 = r0[:8], r0[9:17], r0[17:]
        W1, RD1, V1 = r1[:8], r1[9:17], r1[17:]
        fill = self.unpack_items(0, BB) + self.unpack_items(1, BB + 8)
        mfs = list(mfs)
        nA = len(mfs) - o.mfB
        wq = list(W0)
        for k in range(nA):
            mfs.pop(0)()
            if wq and (k * 8 >= (8 - len(wq)) * nA - 4): em(wq.pop(0))
            for t in fill[:3]: em(t)
            fill = fill[3:]
        self.emit(wq + fill)
        self.barrier()
        for k, t in enumerate(RD0):
            em(t)
            if k % 3 == 1 and mfs: mfs.pop(0)()
        self.emit(mfs)
        na = 12 if rs is None else 8
        self.emit(V0[:na]); V0 = V0[na:]
        if pre_wait: pre_wait()
        self.barrier()
        self.ts('h0')
        pf = [lambda: self.x_prefetch(xoff, 0, 0)] + [lambda i=i: self.xld(i) for i in range(o.pre)]
        n0 = o.pf0
        for k, t in enumerate(W1):
            em(t)
            self.emit(V0[:4]); V0 = V0[4:]
            if k >= 8 - n0: self.emit(pf[:2 if len(pf) == o.pre + 1 else 1]); pf = pf[2 if len(pf) == o.pre + 1 else 1:]
        self.emit(V0)
        self.barrier()
        self.emit(RD1)
        self.emit(pf[:o.pf1 + (1 if len(pf) == o.pre + 1 else 0)]); pf = pf[o.pf1 + (1 if len(pf) == o.pre + 1 else 0):]
        ks = [k for k, t in enumerate(V1) if callable(t)][0]
        self.emit(V1[:ks + 1]); V1 = V1[ks + 1:]
        while pf or V1:
            self.emit(V1[:3]); V1 = V1[3:]
            self.emit(pf[:1]); pf = pf[1:]

    def p2(self, l):
        em = self.em; o = self.o
        KT, QF = AF, AF + 32
        A = [[ACC, ACC + 32], [ACC + 16, 232]]
        DB = [MR, MR + 16, BB]
        def rot2(i, stride, base):
            em(f's_add_u32 {sR}, {sRot2}, {i}'); em(f's_and_b32 {sR}, {sR}, 7'); em(f's_mul_i32 {sR}, {sR}, {stride}')
            if base: em(f's_add_u32 {sR}, {sR}, {base}')
        KB = lambda i: (ACC + 32 + 4 * i) if i < 4 else (232 + 4 * (i - 4))
        KA = lambda i: KT + 4 * i
        def ldk(i, B=KA): rot2(i, 2176, None); self.wsload(v(B(i), 4), v(vKT), sR, WS_KT + l * 0x8000, tag='K')
        def ldq(n): rot2(n % 8, 4096, sQR); self.wsload(v(QF + 4 * n, 4), vL16, sR, (n // 8) * 32768, tag='A')
        ck = v(TMP + 2)
        def kchk(B):
            em(f'v_max_u32 {ck}, {v(B(0))}, {v(B(0)+1)}')
            for i in range(1, 16): em(f'v_max3_u32 {ck}, {v(B(i//2)+2*(i%2))}, {v(B(i//2)+2*(i%2)+1)}, {ck}')
            em(f'v_cmp_eq_u32 vcc, -1, {ck}')
        L = em.newlabel('Lk'); D = em.newlabel('Lkd'); C = em.newlabel('Lkc')
        if o.kdual:
            for i in range(8): ldk(i)
            for n in range(16): ldq(n)
            for i in range(8): ldk(i, KB)
            em.wait_vm(8)
            em.vmq = []
            em.label(L)
            kchk(KA); em(f's_cbranch_vccz {D}')
            for i in range(8): ldk(i)
            em.force_wait(vm=8); em.vmq = []
            kchk(KB); em(f's_cbranch_vccz {C}')
            for i in range(8): ldk(i, KB)
            em.force_wait(vm=8); em.vmq = []
            self.spin_tail(L)
            em.label(C)
            for r in range(0, 32, 2): em(f'v_pk_mov_b32 {v(KT+r,2)}, {v(KB(r//4)+r%4,2)}, {v(KB(r//4)+r%4,2)} op_sel:[0,1]')
            em.label(D)
        else:
            if o.kfirst:
                for i in range(8): ldk(i)
            for n in range(16): ldq(n)
            if not o.kfirst:
                for i in range(8): ldk(i)
            if l == 0 and o.w2b1b:
                self.emit(self.b1[1])
                self.b1 = self.w2_batch(list(range(32, 40))[:2 * o.w2b1b], 'w2f')
            em.label(L)
            kchk(KA)
            em(f's_cbranch_vccz {D}')
            em.cond_begin()
            for i in range(8): ldk(i)
            em.force_wait(vm=0)
            em.cond_end()
            self.spin_tail(L)
            em.label(D)
        self.ts('kt')
        side = Side(em)
        def attn(n): em(f'{MF} {v(DB[n%3],16)}, {v(KT+4*(n%8),4)}, {v(QF+4*n,4)}, 0')
        def post(n):
            D = DB[n % 3]; O = QF + 4 * n; rc = v(D + 8)
            it = [f'v_add_f32 {rc}, {s1em6}, {rc}', f'v_rcp_f32 {rc}, {rc}']
            it += [f'v_mul_f32 {v(D+r)}, {v(D+r)}, {rc}' for r in range(8)]
            it += [f'v_cvt_pk_bf16_f32 {v(O+r)}, {v(D+2*r)}, {v(D+2*r+1)}' for r in range(4)]
            return it
        def wo(n, c):
            h, i = divmod(n, 8)
            cc = v(A[h][c], 16)
            em(f'{MF} {cc}, {a(WOA + i*8 + c*4, 4)}, {v(QF+4*n,4)}, ' + ('0' if i == 0 else cc))
        attn(0); attn(1)
        self.p2_bg(l, side)
        side.run(2)
        self.emit(post(0))
        E1 = o.early1
        for n in range(16):
            nxt = post(n + 1) if n + 1 < 16 else []
            if n + 2 < 16: attn(n + 2)
            if nxt: em(nxt[0]); em(nxt[1])
            side.clk(o.gap2)
            for t in nxt[2:8]: em(t)
            wo(n, 0)
            for t in nxt[8:11]: em(t)
            if n < E1: wo(n, 1)
            for t in nxt[11:]: em(t)
        side.flush()
        if o.kdual:
            assert E1 == 0
            em.force_wait(vm=len(em.vmq))
        self.ts('p2loop')
        xoff = 0; sti = 2 * l
        pre = (self.b1[1] + [self.barrier]) if l == 0 else []
        self.emit(pre)
        pw = (lambda: em.force_wait(vm=0)) if (l == 0 and 'h' not in o.rst1) else None
        self.two_halves([lambda n=n: wo(n, 1) for n in range(E1, 16)], A, None, xoff, sti, pw)
        self.p2_tail(l)

    def p2_bg(self, l, side):
        em = self.em
        if self.o.cpf2 & (1 if l == 0 else 4): side.add(lambda: self.code_pf(v(248, 4), v(252)))
        if self.o.retouch: side.add(lambda: self.retouch(0, v(254), v(254)))
        if l == 0:
            if 'h' not in self.o.rst1: side.add(*self.reset_items(248, 'h'))
            side.add(lambda: self.cs_loads(em))
            if self.o.w2b1b: side.add(lambda: em.wait_lg(0)); side.add(*self.b1[0])
        for m in self.w1_todo: side.add(lambda m=m: (self.w1dma(0, m, 'w1a'), self.w1dma(1, m, 'w1a')))
        if l == 1:
            for m in range(8): side.add(lambda m=m: self.w1dma(2, m, 'w1a'))
    def retouch(self, off, vt, dst):
        em = self.em
        em(f'v_lshlrev_b32 {vt}, 7, {vLane}')
        em(f's_and_b32 {sT2}, {sW}, 1'); em(f's_mul_i32 {sT2}, {sT2}, 1792'); em(f's_add_u32 {sT2}, {sT2}, {sXst}'); em(f's_add_u32 {sT2}, {sT2}, {off}')
        em('s_mov_b64 exec, 0xffff')
        em(f'buffer_load_dword {dst}, {vt}, {SWS}, {sT2} offen sc1', tag='touch')
        em('s_mov_b64 exec, -1')
    def code_pf(self, dst, vt):
        em = self.em
        L = em.newlabel('Lpc')
        end = 'L_slow' if not self.sc else 'L_codeend'
        em(f's_getpc_b64 {sEx}'); em.label(L)
        em(f's_lshr_b32 {sT}, s2, 3'); em(f's_lshl_b32 {sT}, {sT}, 2'); em(f's_add_u32 {sT}, {sT}, {sW}'); em(f's_lshl_b32 {sT}, {sT}, 10')
        em(f's_min_u32 {sT}, {sT}, {end}-{L}-1024')
        em(f'v_add_u32 {vt}, {sT}, {vL16}')
        em(f'global_load_dwordx4 {dst}, {vt}, {sEx}', tag='touch')
    def cs_loads(self, e):
        e(f'v_and_b32 {v(255)}, 31, {vLane}'); e(f'v_lshlrev_b32 {v(255)}, 2, {v(255)}'); e(f's_mul_i32 {sFx}, {sJ}, 384'); e(f's_add_u32 {sFx}, {sFx}, {WS_CS}')
        for p in range(3): e(f'buffer_load_dword {CS[p]}, {v(255)}, {SWS}, {sFx} offen offset:{(0, 256, 128)[p]} sc1', tag='cs')

    def p2_tail(self, l):
        em = self.em; o = self.o
        if l == 0: self.check([CS[0], CS[1], CS[2], CS[2]], self.cs_loads, v(TMP))
        em.wait_vm_tag('w1a')
        self.barrier()
        if l == 0 and not o.p2late:
            for m in range(8): self.w1dma(2, m, 'w1c')
        self.ts(f'end{4*l+1}')

    def hld(self, n, final, e=None):
        e = e or self.em
        st, h = (n % 22, n // 22) if final else (n // 2, n % 2)
        if st == 21: so = sLim4
        else: self.tab4(st, sFx, 12, e); so = sFx
        r = e(f'buffer_load_dwordx4 {v(AF + 4 * (n % 24), 4)}, {v(32 + h)}, {SWS}, {so} offen sc1', tag='A')
        if r is not None: self.ldidx[id(r)] = n
    def p3(self, l):
        em = self.em; o = self.o
        ld, chk = self.a_loader(o.pre, 2 * l, sTxn)
        side = Side(em)
        side.add(*self.aux_const_items())
        if l == 1: rl_w, rl_r = self.res_last_items(8 * 4096); side.add(*rl_w)
        def ld2(i):
            ld(i)
            if i == o.statstep: side.add(*self.stats_T_items(False, 2 * l))
            if l == 0 and o.p2late and o.p2late <= i < o.p2late + 8: self.w1dma(2, i - o.p2late, 'w1c')
            if l == 0 and i == 26:
                side.add(self.barrier)
                self.b2 = self.w2_batch(list(range(16, 24))[:2 * o.w2b2], 'w2b')
                side.add(*self.b2[0])
        self.pass2(XORD, self.w1pl[:2], [ACC, ACC + 16], False, side, lambda i: 1 if i < o.statstep else o.fill2, loader=ld2, extra=chk)
        side.flush()
        self.emit(self.corr_items(0, ACC, False)); self.emit(self.corr_items(1, ACC + 16, False))
        if l == 0: em.wait_vm_tag('w1c')
        self.barrier()
        if l == 1: self.emit(rl_r)
        self.ts('p3a')
        def epi(p):
            A = ACC + 16 * p
            it = [f'v_cvt_pk_bf16_f32 {v(A+r)}, {v(A+2*r)}, {v(A+2*r+1)}' for r in range(8)]
            it += [f'v_pk_max_i16 {v(A+r)}, {v(A+r)}, 0' for r in range(8)]
            if l == 0: it += [f'v_or_b32 {v(A+r)}, 0x80000000, {v(A+r)}' for r in (0, 4)]
            return it
        def st(p):
            A = ACC + 16 * p
            if p == 1:
                em(f's_lshl_b32 {sT2}, {sW1d}, 5'); em(f's_add_u32 {sT2}, {sT2}, {sHks}')
                self.wsstore(v(A, 4), vL16, sT2, 0); self.wsstore(v(A + 4, 4), vL16, sT2, 0, off=1024)
            else: self.wsstore(v(A, 4), vL16, sHks, p * 1024); self.wsstore(v(A + 4, 4), vL16, sHks, p * 1024, off=1024)
        side.add(*(epi(0) + [lambda: st(0)] + epi(1) + [lambda: st(1)]))
        side.add(f'v_add_u32 {v(32)}, {sHR}, {vL16}', f'v_add_u32 {v(33)}, {H_T}, {v(32)}')
        if l == 0:
            self.b3 = self.w2_batch(list(range(24, 32))[:2 * o.w2b3], 'w2c')
            side.add(*self.b3[0])
            side.add(*self.b2[1]); side.add(lambda: em.wait_lg(0))
            self.b3b = self.w2_batch(list(range(16, 24))[:2 * o.w2b3b], 'w2e')
            side.add(*self.b3b[0])
        else: side.add(*self.final_addr_items())
        def fill(ks):
            if ks == o.hpf: side.flush()
            if ks >= o.hpf and (ks - o.hpf) % o.hstr == 0 and (ks - o.hpf) // o.hstr < o.pre4: self.hld((ks - o.hpf) // o.hstr, l == 1)
            return o.fill_p3 if ks >= 2 else 0
        assert o.hpf >= o.pre4 and o.hpf + (o.pre4 - 1) * o.hstr < 32
        self.pass1(self.w1pl[2], ACC + 32, side, fill)
        self.emit(self.corr_items(2, ACC + 32, False))
        side.flush()
        self.ts('p3b')
        if l == 0:
            self.barrier()
            self.b4 = self.w2_batch(list(range(32, 40)) + list(range(24, 32)) + list(range(16, 24)), 'w2d')
            self.emit(self.b4[0][:4])
        self.emit(epi(2))
        L = em.newlabel('Lh3')
        em(f's_cmp_ge_u32 {sJ}, 11'); em(f's_cbranch_scc1 {L}')
        em.cond_begin(); st(2); em.cond_end()
        em.label(L)
        if l == 0:
            self.emit(self.b3[1]); self.emit(self.b3b[1])
            if len(self.b4[0]) > 4: em.wait_lg(0); self.emit(self.b4[0][4:])
            assert self.w2next == 22
        self.ts(f'end{4*l+2}')

    def p4(self, l):
        em = self.em; o = self.o
        final = l == 1
        A = [[ACC, ACC + 16], [ACC + 32, 232]] if final else [[ACC, ACC + 32], [ACC + 16, 232]]
        side = Side(em)
        S, Q = v(AUX), v(AUX + 1); RS = [TMP, CB]
        def stl(e):
            e(f's_add_u32 {sFx}, {sStR if final else sStM}, {2 * l * 16 * 8192}')
            e(f'buffer_load_dwordx4 {v(AUX,4)}, {v(FS) if final else vP}, {SWS}, {sFx} offen sc1', tag='stat')
        stl(em)
        if o.cpf2 & 2 and not final: self.code_pf(v(248, 4), v(252))
        if o.retouch and not final: self.retouch(X2OFF, v(254), v(254))
        side.add(lambda: self.check([v(AUX + r) for r in range(4)], stl, v(CB + 2), kind='x', tag=sTxn))
        side.add(f'v_add_f32 {S}, {S}, {v(AUX+1)}', f'v_add_f32 {v(AUX+2)}, {v(AUX+2)}, {v(AUX+3)}', f'v_add_f32 {S}, {S}, {v(AUX+2)}')
        if final:
            side.add(f'v_add_f32_dpp {S}, {S}, {S} row_ror:8 {DPPM}', f'v_mov_b32 {Q}, {S}', f'v_permlane16_swap_b32 {S}, {Q}')
        else:
            side.add(f'v_mov_b32 {Q}, {S}', f'v_permlane16_swap_b32 {S}, {Q}', f'v_add_f32 {S}, {S}, {Q}', f'v_mov_b32 {Q}, {S}', f'v_permlane32_swap_b32 {S}, {Q}')
        side.add(f'v_mul_f32 {S}, {sInv}, {S}', f'v_mul_f32 {Q}, {sInv}, {Q}', f'v_fma_f32 {Q}, -{S}, {S}, {Q}', f'v_max_f32 {Q}, 0, {Q}',
                 f'v_add_f32 {Q}, {sEps}, {Q}', f'v_rsq_f32 {v(RS[1])}, {Q}')
        if final:
            side.add(f'v_mov_b32 {v(CB+2)}, {v(RS[1])}', f'v_permlane32_swap_b32 {v(CB+2)}, {v(RS[1])}',
                     f'ds_bpermute_b32 {v(CB+2)}, {v(FB)}, {v(CB+2)}', f'ds_bpermute_b32 {v(RS[1])}, {v(FB)}, {v(RS[1])}')
            RS = [CB + 2, CB]
        else: RS = [CB, CB]
        b4 = list(self.b4[1]) if l == 0 else []
        first4 = 2 * (22 - (len(b4) - 1) // 2) if b4 else 99
        if l == 0: side.add(self.barrier)
        dec = (lambda n: (n % 22, n // 22)) if final else (lambda n: (n // 2, n % 2))
        def mf(n, c):
            st, h = dec(n)
            cc = v(A[h][c], 16)
            em(f'{MF} {cc}, {a(W2A + st*8 + c*4, 4)}, {v(AF + 4 * (n % 24), 4)}, ' + ('0' if st == 0 else cc))
        def chk(n):
            if n % 2: return None
            return self.check([v(AF + 4 * (n % 24)), v(AF + 4 * ((n + 1) % 24))], lambda e: (self.hld(n, final, e), self.hld(n + 1, final, e)), v(38), split=True,
                              kind='h', tag=sTh if final else sThn, again=lambda e, p: self.hld(self.ldidx[id(p)], final, e))
        T4 = o.tail4 if final else o.tail4n
        br = chk(0)
        for n in range(44):
            assert n < first4 or not b4
            if br: br()
            both = n < 44 - T4
            mf(n, 0)
            if n + o.pre4 < 44: self.hld(n + o.pre4, final)
            if n + 1 < 44: br = chk(n + 1)
            if b4 and n >= o.b4start: self.emit([b4.pop(0)])
            elif n >= 8: side.clk(4 if both else o.gap4)
            if both:
                mf(n, 1)
                if n >= 8 and not b4: side.clk(o.gap4)
            if final and o.wb and n == o.wbstep:
                L = em.newlabel('Lwb')
                if o.wb == 1: em(f's_cmp_lg_u32 {sW}, 3')
                else: em(f's_lshr_b32 {sT}, s2, 3'); em(f's_or_b32 {sT}, {sT}, {sW}'); em(f's_cmp_lg_u32 {sT}, 0')
                em(f's_cbranch_scc1 {L}')
                em.out.append(' buffer_wbl2 sc1')
                em.label(L)
            if final and n == 22:
                side.add(*self.reduce_items(0, A[0][0], A[0][1], MR, ACC, RS[0], 0, 0, True, True))
                side.add(*self.unpack_items(1, ACC + 16)); side.add(self.barrier)
        side.flush()
        self.ts('p4loop')
        if final:
            tail = self.reduce_items(1, A[1][0], A[1][1], MR, ACC + 16, RS[1], 0, 0, True, False)
            for k, n in enumerate(range(44 - T4, 44)):
                mf(n, 1)
                if k >= 1: em(tail.pop(0))
            self.emit(tail)
            return
        self.two_halves([lambda n=n: mf(n, 1) for n in range(44 - T4, 44)], A, RS[0], X2OFF, 1)
        self.ts('end3')

    def p5_start(self):
        em = self.em; o = self.o
        ld0, chk = self.a_loader(o.pre, 1, sTx)
        side = Side(em)
        side.add(*self.aux_const_items())
        side.add(f'v_subrev_u32 {vRW}, {S_ADDR:#x}, {vRW}', f'v_subrev_u32 {vRR}, {S_ADDR:#x}, {vRR}')
        self.S = 0
        qn = [0]; was = [False]
        def ld(i):
            ld0(i)
            if i == 12: side.add(self.barrier)
            if i == o.statstep:
                side.add(*self.stats_T_items(True, 1))
                side.add(f'{MF} {v(MR,16)}, {v(AUX,4)}, {v(CB+2,4)}, 0')
            if self.xdone and was[0] and qn[0] < 8: self.qkv_dma('q', qn[0], 'q'); qn[0] += 1
            was[0] = self.xdone
        self.pass2(XORD, [self.pl['k'], self.pl['v']], [ACC, ACC + 16], True, side, lambda i: 1 if i < o.statstep else o.fill2, loader=ld, extra=chk)
        side.flush()
        self.emit(self.corr_items('k', ACC, True)); self.emit(self.corr_items('v', ACC + 16, True))
        self.ts('p5a')

    def finish(self):
        em = self.em
        L = em.newlabel('Le')
        em(f's_or_b32 {sT}, s2, {sW}'); em(f's_cmp_lg_u32 {sT}, 0'); em(f's_cbranch_scc1 {L}')
        em.cond_begin()
        em('s_mov_b64 exec, 1'); em(f'v_mov_b32 v24, {sNonce}'); em(f'buffer_store_dword v24, off, {SWS}, 0 sc1'); em('s_mov_b64 exec, -1')
        em.cond_end()
        em.label(L)
        if self.o.pad:
            L = em.newlabel('Lpad')
            em.label(L)
            em('s_memrealtime s[0:1]'); em.force_wait(lg=0); em('s_sub_u32 s0, s0, s3'); em(f's_cmp_lt_u32 s0, {self.o.pad}'); em(f's_cbranch_scc1 {L}')
        if self.o.ts:
            self.ts('end')
            em('s_memrealtime s[86:87]'); em.force_wait(lg=0); em('v_writelane_b32 v39, s86, 63')
            em(f's_lshl_b32 {sT}, s2, 2'); em(f's_add_u32 {sT}, {sT}, {sW}'); em(f's_lshl_b32 {sT}, {sT}, 8'); em(f's_add_u32 {sT}, {sT}, {WS_DBG}')
            em(f'v_lshlrev_b32 v24, 2, {vLane}')
            em(f'buffer_store_dword v39, v24, {SWS}, {sT} offen')
            if self.o.dbg:
                L = em.newlabel('Ld')
                em(f's_or_b32 {sT}, s2, {sW}'); em(f's_cmp_lg_u32 {sT}, 0'); em(f's_cbranch_scc1 {L}')
                em('s_memrealtime s[0:1]'); em.force_wait(lg=0); em('s_sub_u32 s0, s0, s3')
                em('v_readlane_b32 s1, v39, 0'); em('s_nop 3'); em('v_subrev_u32 v39, s1, v39'); em('v_writelane_b32 v39, s0, 0')
                em('v_mul_u32_u24 v25, 3, v0'); em('v_lshlrev_b32 v25, 2, v25'); em('ds_bpermute_b32 v26, v25, v39'); em.force_wait(lg=0)
                em('s_mov_b64 exec, 0xffff')
                em('global_store_dword v24, v26, s[100:101]')
                em.label(L)
        em('s_endpgm')
        em.out.extend(self.fixes); self.fixes = []

    def body(self, sc):
        self.ncnt = 0; self.ldidx = {}; self.fixes = []; self.sc = sc; self.swin = None; self.lin = True; self.S = S_ADDR
        seq = [lambda: self.p1_rest(0), lambda: self.p2(0), lambda: self.p3(0), lambda: self.p4(0),
               lambda: (self.p5_start(), self.p1_rest(1)), lambda: self.p2(1), lambda: self.p3(1), lambda: self.p4(1)]
        for i, f in enumerate(seq):
            self.em.comment(f'---------------- phase {i+1} ({"slow" if sc else "fast"}) ----------------')
            f()
            if self.o.stop == i + 1: break
        self.finish()

    def build(self):
        em = self.em
        self.sc = ''
        self.prologue()
        self.p1_start()
        if self.o.force_slow: em('s_branch L_slow_tramp')
        em('s_cbranch_vccz L_fast')
        em.label('L_slow_tramp')
        em('s_getpc_b64 s[86:87]'); em.label('L_pc0')
        em('s_add_u32 s86, s86, L_slow-L_pc0'); em('s_addc_u32 s87, s87, 0'); em('s_setpc_b64 s[86:87]')
        em.label('L_end'); em('s_endpgm')
        em.label('L_fast')
        snap = (list(em.vmq), list(em.lgq), self.nts, list(em.hist))
        self.body('')
        em.label('L_slow')
        em.vmq, em.lgq, self.nts, em.hist = list(snap[0]), list(snap[1]), snap[2], list(snap[3])
        self.body(' sc1')
        em.label('L_codeend')
        hdr = open('cdna_kernels/' + NAME + '.s.ref').read().split('; Override launch')[0]
        s = hdr + '; @launch grid=(256,1,1) block=(256,1,1) lds=163840\n'
        s += '.amdgcn_target "amdgcn-amd-amdhsa--gfx950"\n.text\n'
        s += f'.globl {NAME}_kernel\n.p2align 8\n.type {NAME}_kernel,@function\n{NAME}_kernel:\n'
        s += em.text().replace('    ', ' ').replace(' offset:0 ', ' ').replace(', ', ',')
        s += f""".section .rodata,"a"
.p2align 6
.amdhsa_kernel {NAME}_kernel
  .amdhsa_next_free_vgpr 512
  .amdhsa_next_free_sgpr 102
  .amdhsa_accum_offset 256
  .amdhsa_group_segment_fixed_size 0
  .amdhsa_kernarg_size 72
  .amdhsa_user_sgpr_count 2
  .amdhsa_user_sgpr_kernarg_segment_ptr 1
  .amdhsa_system_sgpr_workgroup_id_x 1
  .amdhsa_float_denorm_mode_32 3
.end_amdhsa_kernel
"""
        return s

def main():
    ap = argparse.ArgumentParser()
    ap.add_argument('-o', default='k.s')
    ap.add_argument('--ts', action='store_true')
    ap.add_argument('--dbg', action='store_true')
    ap.add_argument('--pad', type=int, default=0)
    ap.add_argument('--ts2', action='store_true')
    ap.add_argument('--sync', default='A')
    ap.add_argument('--pk2', type=int, default=0)
    ap.add_argument('--tlb', type=int, default=0)
    ap.add_argument('--par', type=int, default=1)
    ap.add_argument('--pk4', type=int, default=0)
    ap.add_argument('--chkpos', type=int, default=0)
    ap.add_argument('--rstpos', type=int, default=1)
    ap.add_argument('--nochk', type=int, default=0)
    ap.add_argument('--xord', type=int, default=1)
    ap.add_argument('--retouch', type=int, default=0)
    ap.add_argument('--statstep', type=int, default=19)
    ap.add_argument('--tw2', type=int, default=0)
    ap.add_argument('--thr2', type=int, default=2)
    ap.add_argument('--kdual', type=int, default=0)
    ap.add_argument('--fill2', type=int, default=2)
    ap.add_argument('--rst1', default='xh')
    ap.add_argument('--qsched', default='66667777')
    ap.add_argument('--tq', type=int, default=0)
    ap.add_argument('--cgap', type=int, default=2)
    ap.add_argument('--ownpos', type=int, default=2)
    ap.add_argument('--mfB', type=int, default=3)
    ap.add_argument('--pf0', type=int, default=0)
    ap.add_argument('--pf1', type=int, default=0)
    ap.add_argument('--fixmode', type=int, default=1)
    ap.add_argument('--w2b1b', type=int, default=4)
    ap.add_argument('--p2late', type=int, default=16)
    ap.add_argument('--share', type=int, default=2)
    ap.add_argument('--share2', type=int, default=3)
    ap.add_argument('--span', action='store_true')
    ap.add_argument('--cpf2', type=int, default=3)
    ap.add_argument('--wb', type=int, default=2)
    ap.add_argument('--wbstep', type=int, default=35)
    ap.add_argument('--c1a', type=int, default=3)
    ap.add_argument('--tqc', type=int, default=2)
    ap.add_argument('--stop', type=int, default=0)
    ap.add_argument('--spin', type=int, default=200000)
    ap.add_argument('--pre', type=int, default=11)
    ap.add_argument('--pre4', type=int, default=10)
    ap.add_argument('--pre2', type=int, default=16)
    ap.add_argument('--gap2', type=int, default=12)
    ap.add_argument('--gap4', type=int, default=24)
    ap.add_argument('--tail4', type=int, default=4)
    ap.add_argument('--rot2', type=int, default=1)
    ap.add_argument('--prewrite', type=int, default=1)
    ap.add_argument('--tw', type=int, default=5)
    ap.add_argument('--gstep', type=int, default=24)
    ap.add_argument('--att2', type=int, default=1)
    ap.add_argument('--burst', type=int, default=0)
    ap.add_argument('--hstr', type=int, default=1)
    ap.add_argument('--thr', type=int, default=6)
    ap.add_argument('--w1_solo', type=int, default=2)
    ap.add_argument('--fill_p1', type=int, default=2)
    ap.add_argument('--fill_p2', type=int, default=3)
    ap.add_argument('--fill_p3', type=int, default=3)
    ap.add_argument('--fill_p4', type=int, default=3)
    ap.add_argument('--w1_early', type=int, default=4)
    ap.add_argument('--b4start', type=int, default=4)
    ap.add_argument('--w2b1', type=int, default=4)
    ap.add_argument('--w2b2', type=int, default=4)
    ap.add_argument('--w2b3', type=int, default=4)
    ap.add_argument('--w2b3b', type=int, default=0)
    ap.add_argument('--w1_gap', type=int, default=0)
    ap.add_argument('--b1gap', type=int, default=1)
    ap.add_argument('--bgpad', type=int, default=3)
    ap.add_argument('--p2early', type=int, default=0)
    ap.add_argument('--rot', type=int, default=1)
    ap.add_argument('--kv_early', type=int, default=4)
    ap.add_argument('--nt_stage', action='store_true')
    ap.add_argument('--nt_w1', action='store_true')
    ap.add_argument('--codepf', type=int, default=1)
    ap.add_argument('--outsc', default='sc1')
    ap.add_argument('--kfirst', type=int, default=1)
    ap.add_argument('--early1', type=int, default=0)
    ap.add_argument('--gap2b', type=int, default=40)
    ap.add_argument('--tail4n', type=int, default=16)
    ap.add_argument('--hpf', type=int, default=20)
    ap.add_argument('--force_slow', action='store_true')
    o = ap.parse_args()
    if o.span: o.ts = True
    if o.outsc: o.outsc = ' ' + o.outsc
    if not o.xord: XORD[:] = list(range(32))
    g = Gen(o)
    s = g.build()
    open(o.o, 'w').write(s)
    if o.ts:
        import json; json.dump(g.tsnames, open(o.o + '.ts.json', 'w'))
    print(f'wrote {o.o}: {g.em.ninstr} instrs, {g.em.nops} nop states, {len(s)} bytes')
if __name__ == '__main__': main()
```

```python
import sys, struct, argparse
from emit import Em

NAME = "interleave_layers__linear_attn_block__dense_activation_relu__prompt"
def f2u(x): return struct.unpack('<I', struct.pack('<f', x))[0]

WS_EPOCH = 0
WS_HELLO = 1024
WS_FLAG = 4096
WS_MSG = 0x10000
WS_KT = 0x150000
WS_KTG = 0x1100000
WS_KT8 = 0x1000000
KC = 0x5000
WS_CS = 0x160000
WS_ST = 0x170000
WS_X = 0x200000
X2OFF = 0
WS_Q = 0x400000
WS_H = 0x600000
WS_DBG = 0x2000000
WS_SIZE = 0x4000000
MSG_B = 2560; KT_B = 17408; ACT_B = 131072; H_T = 86 * 1024; H_B = 4 * H_T
NONCE_K = 0x9E3779B1

sW, sG, sJ, sNonce = 's4', 's5', 's6', 's7'
SX, SQKV, SWO, SW1, SW2, SOUT, SWS = 's[8:11]', 's[12:15]', 's[16:19]', 's[20:23]', 's[24:27]', 's[28:31]', 's[32:35]'
sT, sT2, sWl, sSpin = 's52', 's53', 's54', 's55'
sGX, sGH, sG8K, sGKT, sG128 = 's56', 's57', 's58', 's59', 's60'
sQcol, sW1c0, sW1c2, sHks = 's61', 's62', 's63', 's64'
sC128, sHR, sStR = 's66', 's68', 's69'
sQR, sInv, sEps, s1em6, sLog2e = 's71', 's74', 's75', 's76', 's73'
sXrow, sJmsg, sMaskInv, sOutRow, sHello = 's77', 's78', 's85', 's80', 's81'
sEx = 's[82:83]'; sFx = 's84'
sTS = 86
sDelta, sDelta2 = 's88', 's[88:89]'
sLn2, sLn22 = 's90', 's[90:91]'
sXst, sStst, sQst = 's67', 's79', 's94'
sStM, sGXw = 's72', 's56'
sW1d = 's60'
sRot, sR, sFlag, sG256 = 's95', 's96', 's97', 's98'
sRot2, sLim4 = 's59', 's70'
sRed, sLine, sKTo, sFac = 's49', 's50', 's51', 's3'
sX0, sX1 = 's[100:101]', 's[0:1]'
sCsp = 's65'
sXm = [f's{36+i}' for i in range(8)]
sXl = ['s8', 's9', 's10', 's11', 's57', 's77', 's81', 's99']
sTab = ['s44', 's45', 's46', 's47']
sLo = 's[92:93]'
sTx, sTxn, sTh, sThn = 0, 1, 0, 1
sM0, sM1, sM3, sM4 = 's[36:37]', 's[38:39]', 's[40:41]', 's[44:45]'

vLane, vL16, vAX, vP = 'v0', 'v1', 'v2', 'v3'
vRR, vRW = 'v15', 'v18'
vTr = ['v4', 'v5', 'v6']
vDq, vD1, vDs, vS0, vS1, vS0w, vS1w = 'v7', 'v8', 'v9', 'v10', 'v11', 'v12', 'v14'
vStT, vPoll, vRl, vHi, vTid = 'v13', 'v15', 'v16', 'v17', 'v18'
CS = {'q': 'v19', 'k': 'v20', 'v': 'v21', 0: 'v22', 1: 'v23', 2: 'v34'}
AUX = 24
CB = 28
TMP = 35
BB = 40
MR = 56
ACC = 88
AF = 136
def v(i, n=1): return f'v{i}' if n == 1 else f'v[{i}:{i+n-1}]'
def a(i, n=1): return f'a{i}' if n == 1 else f'a[{i}:{i+n-1}]'
def Afrag(ks): return v(AF + 4 * ks, 4) if ks < 30 else a(248 + 4 * (ks - 30), 4)
RES = 240
W2A = 0; WOA = 176
vKT = 253
FW, FR, FO, FS, FB = 7, 11, 12, 14, 19
MF = 'v_mfma_f32_32x32x16_bf16'
DPPM = 'row_mask:0xf bank_mask:0xf'

QS = 32
S_ADDR = QS * 4096

def _ord4(c):
    pl = lambda nt: (0, 2, 1)[nt % 3] if nt < 33 else (nt - 33) % 2
    ms = sorted(range(21), key=lambda m: pl(2 * m + c))
    return ms + [21]
ORD4 = [_ord4(0), _ord4(1)]
XORD = [4 * m + k for m in range(8) for k in (0, 1)] + [4 * m + k for m in range(8) for k in (2, 3)]

class Side:
    def __init__(self, em): self.q = []; self.em = em
    def add(self, *items): self.q.extend(items)
    def run(self, k):
        while k > 0 and self.q:
            it = self.q.pop(0)
            if callable(it): it()
            else: self.em(it)
            k -= 1
    def flush(self): self.run(1 << 30); self.credit = 0
    credit = 0
    def clk(self, budget):
        self.credit = min(self.credit + budget, budget)
        while self.q and self.credit > 0:
            it = self.q.pop(0)
            if callable(it):
                it(); self.credit -= getattr(it, 'cost', 24)
            else:
                self.em(it)
                self.credit -= 56 if it.startswith('ds_write_b128') else 8 if it.startswith(('v_exp', 'v_rcp', 'v_rsq', 'v_mfma')) else 4

class Gen:
    def __init__(self, opt):
        self.o = opt; self.em = Em(); self.nts = 0; self.ncnt = 0; self.swin = None; self.lin = False
    def emit(self, items):
        for t in items: t() if callable(t) else self.em(t)

    def ts(self, name):
        if not self.o.ts or (self.o.span and name not in ('start', 'end')): return
        em = self.em
        i = self.nts; self.nts += 1
        assert i < 50
        em.force_wait(lg=0)
        em(f's_mov_b32 m0, s87'); em(f's_memtime s[{sTS}:{sTS+1}]'); em.force_wait(lg=0)
        em(f'v_writelane_b32 v39, s{sTS}, {i}'); em('s_mov_b32 s87, m0')
        self.tsnames[i] = name
        if name in ('kt', 'p3a', 'p4loop', 'p5a'):
            if name == 'kt' and self.ncnt == 0: em('s_mov_b32 s87, 0')
            em(f'v_writelane_b32 v39, s87, {50 + self.ncnt}'); self.ncnt += 1
    def dma(self, srd, voff, sbase, imm, quad, tag, nt=False, slot=None):
        em = self.em
        if slot is None: em(f's_add_u32 m0, {sWl}, {quad*4096}')
        else: em(f's_mov_b32 m0, {quad*4096 + slot*1024}')
        em(f's_add_u32 {sT}, {sbase}, {imm}')
        em(f'buffer_load_dwordx4 {voff}, {srd}, {sT} offen' + (' nt' if nt else '') + ' lds', tag=tag)
    def tr(self, dst, quad, slot, base=None):
        addr = quad * 4096 + slot * 1024
        b = (base or vTr)[addr >> 16]; off = addr & 0xFFFF
        return [f'ds_read_b64_tr_b16 {v(dst,2)}, {b} offset:{off}', f'ds_read_b64_tr_b16 {v(dst+2,2)}, {b} offset:{off+(256 if self.lin else 512)}']
    def wsload(self, dst, voff, sbase, imm, width=4, tag=None, off=0):
        em = self.em
        em(f's_add_u32 {sT}, {sbase}, {imm}')
        sfx = {1: 'dword', 2: 'dwordx2', 4: 'dwordx4'}[width]
        em(f'buffer_load_{sfx} {dst}, {voff}, {SWS}, {sT} offen' + (f' offset:{off}' if off else '') + ' sc1', tag=tag)
    def wsstore(self, src, voff, sbase, imm, width=4, tag='st', off=0, sc=None):
        em = self.em
        em(f's_add_u32 {sT}, {sbase}, {imm}')
        sfx = {1: 'dword', 2: 'dwordx2', 4: 'dwordx4'}[width]
        sc = self.sc if sc is None else sc
        em(f'buffer_store_{sfx} {src}, {voff}, {SWS}, {sT} offen' + (f' offset:{off}' if off else '') + sc, tag=tag)
    def barrier(self):
        self.em.wait_lg(0); self.em('s_barrier')
    def only_wave(self, w, f, invert=False):
        em = self.em
        L = em.newlabel('Lw')
        em(f's_cmp_{"eq" if invert else "lg"}_u32 {sW}, {w}'); em(f's_cbranch_scc1 {L}')
        em.cond_begin(); f(); em.cond_end()
        em.label(L)
    def spin_tail(self, L):
        em = self.em
        em(f's_sub_u32 {sSpin}, {sSpin}, 1'); em(f's_cbranch_scc0 {L}'); em(f's_mov_b32 {sSpin}, 0')
    def group_sync(self, p, pre=None, mid=None, tags=('st',), bar=True, skipif=None, modeB=False):
        em = self.em
        vt = v(TMP)
        mode = 'B' if (skipif or modeB) else self.o.sync
        if pre: pre()
        def drain():
            if tags is None: em.force_wait(vm=0)
            else: em.wait_vm_tag(tags)
            self.ts(f'drain{p}')
        def sig(wait=True):
            em(f'v_mov_b32 {vt}, {sNonce}')
            em(f's_add_u32 {sT2}, {sFlag}, {p*4096}')
            if wait: drain()
            em(f's_mov_b64 {sEx}, exec'); em('s_mov_b64 exec, 1')
            em(f'buffer_store_dword {vt}, off, {SWS}, {sT2}' + self.sc, tag='flag')
            em(f's_mov_b64 exec, {sEx}')
        def poll():
            L = em.newlabel('Lpoll'); D = em.newlabel('Lpd')
            em(f's_add_u32 {sT2}, {sG256}, {WS_FLAG + p*4096}')
            if mode == 'B': em(f'v_lshlrev_b32 {v(TMP+1)}, 2, {vLane}')
            else: em(f'v_lshlrev_b32 {v(TMP+1)}, 2, {vPoll}')
            em.label(L)
            em(f'buffer_load_dword {vt}, {v(TMP+1)}, {SWS}, {sT2} offen sc1')
            em.force_wait(vm=0)
            em(f'v_cmp_ne_u32 vcc, {sNonce}, {vt}')
            em(f's_cbranch_vccz {D}')
            self.spin_tail(L)
            em.label(D)
        if mode == 'B':
            if skipif:
                L = em.newlabel('Lsk')
                em(f's_cmp_eq_u32 {skipif}, 0'); em(f's_cbranch_scc1 {L}')
                em.cond_begin(); sig(); em.cond_end()
                em.label(L)
            else: sig()
            if mid: mid()
            if bar: self.barrier()
            poll()
        else:
            drain(); self.barrier()
            self.only_wave(0, lambda: sig(False))
            if mid: mid()
            if mode == 'A':
                self.only_wave(0, poll); self.barrier()
            else:
                if bar and mid: self.barrier()
                poll()
        self.ts(f'sync{p}')
    def rot(self, m, stride, base):
        em = self.em
        em(f's_add_u32 {sR}, {sRot}, {m}'); em(f's_and_b32 {sR}, {sR}, 7'); em(f's_mul_i32 {sR}, {sR}, {stride}'); em(f's_add_u32 {sR}, {sR}, {base}')
    def qkv_dma(self, planes, m, tag):
        self.rot(m, 64 * 3072, sQcol)
        for p in planes: self.dma(SQKV, vDq, sR, {'q': 0, 'k': 1024, 'v': 2048}[p], self.pl[p][m], tag)

    def prologue(self):
        em = self.em; o = self.o
        if o.pad and o.pad0: em('s_memrealtime s[86:87]')
        em('s_cmp_ge_u32 s2, 256'); em('s_cbranch_scc1 L_end')
        em('s_load_dwordx4 s[36:39], s[0:1], 0'); em('s_load_dwordx2 s[40:41], s[0:1], 16')
        em('s_load_dwordx4 s[44:47], s[0:1], 32'); em('s_load_dwordx2 s[48:49], s[0:1], 48'); em('s_load_dwordx2 s[50:51], s[0:1], 64')
        if o.ts:
            self.tsnames = {}
            em('v_mov_b32 v39, 0')
        em(f'v_mov_b32 {vTid}, v0')
        em(f'v_lshrrev_b32 v24, 6, v0'); em(f'v_and_b32 {vLane}, 63, v0')
        em(f'v_readfirstlane_b32 {sW}, v24')
        em(f's_and_b32 {sG}, s2, 7'); em(f's_lshl_b32 {sG}, {sG}, 1'); em(f's_lshr_b32 {sT}, s2, 7'); em(f's_add_u32 {sG}, {sG}, {sT}')
        em(f's_lshr_b32 {sJ}, s2, 3'); em(f's_and_b32 {sJ}, {sJ}, 15')
        em(f's_lshl_b32 {sWl}, {sW}, 10')
        em(f's_lshl_b32 {sXrow}, {sG}, 17')
        em(f's_lshl_b32 {sQcol}, {sJ}, 6')
        em(f's_and_b32 {sRot}, {sG}, 1'); em(f's_lshl_b32 {sRot}, {sRot}, 1'); em(f's_and_b32 {sT}, {sJ}, 1'); em(f's_add_u32 {sRot}, {sRot}, {sT}'); em(f's_lshl_b32 {sRot}, {sRot}, 1')
        if o.rot == 1: em(f's_lshr_b32 {sT}, {sJ}, 1'); em(f's_add_u32 {sRot}, {sRot}, {sT}')
        if o.rot in (1, 3): em(f's_add_u32 {sRot}, {sRot}, s2')
        if not o.rot: em(f's_mov_b32 {sRot}, 0')
        self.pl = {'k': list(range(0, 8)), 'v': list(range(8, 16)), 'q': list(range(16, 24))}
        em(f'v_lshlrev_b32 {vL16}, 4, {vLane}')
        em(f'v_lshrrev_b32 v27, 3, {vLane}'); em(f'v_and_b32 v28, 7, {vLane}')
        em(f'v_lshrrev_b32 v29, 1, v27'); em('v_xor_b32 v28, v28, v29'); em('v_lshlrev_b32 v28, 4, v28')
        em(f's_lshl_b32 {sT}, {sW}, 5'); em(f'v_add_u32 v27, {sT}, v27'); em('v_lshlrev_b32 v27, 10, v27')
        em('v_add_u32 v25, v27, v28'); em('v_xor_b32 v26, 64, v25')
        em(f'v_lshrrev_b32 v27, 2, {vLane}'); em(f's_lshl_b32 {sT}, {sW}, 4'); em(f'v_add_u32 v27, {sT}, v27')
        em(f'v_and_b32 v28, 3, {vLane}'); em('v_lshlrev_b32 v28, 4, v28')
        em(f'v_mul_u32_u24 {vDq}, 3072, v27'); em(f'v_add_u32 {vDq}, {vDq}, v28')
        em(f'v_mul_u32_u24 {vD1}, 2752, v27'); em(f'v_add_u32 {vD1}, {vD1}, v28')
        em.force_wait(lg=0)
        if o.pad and o.pad0: em('v_writelane_b32 v39, s86, 0')
        if o.ts:
            em('s_memrealtime s[86:87]'); em.force_wait(lg=0); em('v_writelane_b32 v39, s86, 62')
        if o.pad and not o.pad0:
            em('s_memrealtime s[86:87]'); em.force_wait(lg=0); em('v_writelane_b32 v39, s86, 0')
        self.ts('start')
        def srd(s, lo, nb):
            em(f's_mov_b32 s{s}, s{lo}'); em(f's_mov_b32 s{s+1}, s{lo+1}'); em(f's_mov_b32 s{s+2}, {nb}'); em(f's_mov_b32 s{s+3}, 0x00020000')
        srd(8, 36, 2048 * 1024); srd(32, 50, WS_SIZE); srd(12, 38, 512 * 3072)
        if o.tlb:
            em(f's_lshr_b32 {sT}, s2, 3'); em(f's_lshl_b32 {sT}, {sT}, 2'); em(f's_add_u32 {sT}, {sT}, {sW}'); em(f's_and_b32 {sT}, {sT}, 15')
            em('s_mov_b64 s[86:87], s[50:51]'); em(f's_lshl_b32 {sT2}, {sT}, 21')
            for k, pr in ((8, 's[40:41]'), (9, 's[44:45]'), (10, 's[46:47]'), (11, 's[48:49]'), (12, 's[36:37]'), (13, 's[38:39]')):
                em(f's_cmp_eq_u32 {sT}, {k}'); em(f's_cselect_b64 s[86:87], {pr}, s[86:87]')
            em(f's_cmp_ge_u32 {sT}, 5'); em(f's_cselect_b32 {sT2}, 0, {sT2}')
            em(f's_load_dword s88, s[86:87], {sT2}')
        L0 = em.newlabel('Lo'); L1 = em.newlabel('Lo')
        if o.par:
            em(f's_bitcmp1_b32 {sJ}, 0'); em(f's_cbranch_scc1 {L0}')
            it = self.chunk_items(0)
            snap = list(em.vmq)
            self.emit(it); em(f's_branch {L1}')
            em.label(L0)
            em.vmq = snap
            it = self.chunk_items(0)
            self.emit(it[4:] + it[:4])
            em.label(L1)
        else: self.chunk_dma(0)
        if o.tq:
            em(f'v_lshlrev_b32 v30, 7, {vLane}'); em(f's_lshl_b32 {sT2}, s2, 2'); em(f's_add_u32 {sT2}, {sT2}, {sW}'); em(f's_mul_i32 {sT2}, {sT2}, {12*128}')
            em('s_mov_b64 exec, 0xfff')
            em(f'buffer_load_dword a100, v30, {SQKV}, {sT2} offen', tag='touch')
            if o.tq > 1:
                em(f's_lshl_b32 {sT2}, {sJ}, 2'); em(f's_add_u32 {sT2}, {sT2}, {sW}'); em(f's_lshl_b32 {sT2}, {sT2}, 11'); em(f's_add_u32 {sT2}, {sT2}, {sXrow}')
                em('s_mov_b64 exec, 0xffff')
                em(f'buffer_load_dword a101, v30, {SX}, {sT2} offen', tag='touch')
            em('s_mov_b64 exec, -1')
        em(f'buffer_load_dword v24, off, {SWS}, 0 sc1', tag='epoch')
        if o.ts2: self.ts('iss0')
        c1 = self.chunk_items(1)
        self.emit(c1[:o.c1a]); self.c1rest = c1[o.c1a:]
        if o.ts2: self.ts('iss1')
        if o.codepf:
            em('s_getpc_b64 s[42:43]'); em.label('L_pcx')
            em(f's_lshr_b32 {sT}, s2, 3'); em(f's_lshl_b32 {sT}, {sT}, 2'); em(f's_add_u32 {sT}, {sT}, {sW}'); em(f's_lshl_b32 {sT}, {sT}, 10')
            em(f's_min_u32 {sT}, {sT}, L_slow-L_pcx-1024')
            em(f'v_add_u32 v30, {sT}, {vL16}')
            em(f'global_load_dwordx4 a[96:99], v30, s[42:43]', tag='codepf')
        srd(16, 40, 512 * 1024); srd(20, 44, 512 * 2752); srd(24, 46, 1376 * 1024); srd(28, 48, 2048 * 1024)
        em(f's_mov_b32 {sSpin}, {o.spin}')
        em(f's_mul_i32 {sGH}, {sG}, {H_B}'); em(f's_add_u32 {sGH}, {sGH}, {WS_H}')
        em(f's_lshl_b32 {sG8K}, {sG}, 13'); em(f's_add_u32 {sG8K}, {sG8K}, {WS_ST}')
        em(f's_lshl_b32 {sG128}, {sG}, 7'); em(f's_lshl_b32 {sG256}, {sG}, 8')
        em(f's_lshl_b32 {sFlag}, {sJ}, 2'); em(f's_add_u32 {sFlag}, {sFlag}, {sW}'); em(f's_lshl_b32 {sFlag}, {sFlag}, 2'); em(f's_add_u32 {sFlag}, {sFlag}, {sG256}'); em(f's_add_u32 {sFlag}, {sFlag}, {WS_FLAG}')
        em(f's_mul_i32 {sT}, {sJ}, 3'); em(f's_lshl_b32 {sT2}, {sJ}, 1'); em(f's_add_u32 {sT2}, {sT2}, 11')
        em(f's_cmp_lt_u32 {sJ}, 11'); em(f's_cselect_b32 {sT}, {sT}, {sT2}');
        em(f's_cselect_b32 {sT2}, 128, 64')
        em(f's_lshl_b32 {sW1c0}, {sT}, 6'); em(f's_add_u32 {sW1c2}, {sW1c0}, {sT2}')
        em(f's_lshl_b32 {sHks}, {sT}, 11'); em(f's_add_u32 {sHks}, {sHks}, {sGH}')
        em(f's_mul_i32 {sT}, {sW}, {H_T}'); em(f's_add_u32 {sHks}, {sHks}, {sT}')
        em(f's_and_b32 {sC128}, {sJ}, 7'); em(f's_lshl_b32 {sC128}, {sC128}, 7')
        em(f's_lshr_b32 {sT}, {sJ}, 3')
        em(f's_lshl_b32 {sT2}, {sT}, 16'); em(f's_add_u32 {sT2}, {sT2}, {sXrow}')
        em(f's_add_u32 {sOutRow}, {sT2}, {sC128}')
        em(f's_add_u32 {sQR}, {sT2}, {sWl}'); em(f's_add_u32 {sQR}, {sQR}, {WS_Q}')
        em(f's_lshl_b32 {sXst}, {sC128}, 5'); em(f's_add_u32 {sXst}, {sXst}, {sT2}'); em(f's_add_u32 {sXst}, {sXst}, {WS_X}')
        em(f's_mul_i32 {sHR}, {sT}, {2*H_T}'); em(f's_add_u32 {sHR}, {sHR}, {sGH}'); em(f's_add_u32 {sHR}, {sHR}, {sWl}')
        em(f's_lshl_b32 {sStR}, {sT}, 12'); em(f's_add_u32 {sStR}, {sStR}, {sG8K}')
        em(f's_lshr_b32 {sT}, {sW}, 1'); em(f's_and_b32 {sT2}, {sW}, 1'); em(f's_lshl_b32 {sT2}, {sT2}, 8')
        em(f's_lshl_b32 {sR}, {sT}, 15'); em(f's_add_u32 {sXst}, {sXst}, {sR}'); em(f's_add_u32 {sXst}, {sXst}, {sT2}')
        em(f's_lshl_b32 {sR}, {sT}, 11'); em(f's_add_u32 {sStM}, {sStR}, {sR}'); em(f's_add_u32 {sStM}, {sStM}, {sT2}')
        em(f's_and_b32 {sT}, {sJ}, 4'); em(f's_lshl_b32 {sT}, {sT}, 7'); em(f's_and_b32 {sT2}, {sJ}, 3'); em(f's_lshl_b32 {sT2}, {sT2}, 2')
        em(f's_add_u32 {sStst}, {sT}, {sT2}'); em(f's_add_u32 {sStst}, {sStst}, {sStM}')
        em(f's_lshl_b32 {sT}, {sW}, 15'); em(f's_add_u32 {sT}, {sT}, {sXrow}'); em(f's_add_u32 {sGXw}, {sT}, {WS_X}')
        em(f's_lshl_b32 {sQst}, {sJ}, 11'); em(f's_add_u32 {sQst}, {sQst}, {sT}'); em(f's_add_u32 {sQst}, {sQst}, {WS_Q}')
        em('s_mov_b32 s92, -1'); em('s_mov_b32 s93, 0')
        em(f's_cmp_ge_u32 {sW}, 2'); em(f's_cselect_b32 {sLim4}, 20, 21'); em(f's_lshl_b32 {sLim4}, {sLim4}, 12')
        em(f's_lshr_b32 {sT}, {sJ}, 3'); em(f's_and_b32 {sT2}, {sG}, 1'); em(f's_lshl_b32 {sT2}, {sT2}, 1'); em(f's_add_u32 {sT}, {sT}, {sT2}')
        em(f's_and_b32 {sT2}, s2, 7')
        em(f's_lshl_b32 {sRot2}, {sT}, 1'); em(f's_add_u32 {sRot2}, {sRot2}, {sT2}')
        if not o.rot2: em(f's_mov_b32 {sRot2}, 0')
        em(f's_mul_i32 {sJmsg}, {sJ}, {16*MSG_B}'); em(f's_add_u32 {sJmsg}, {sJmsg}, {WS_MSG}')
        if o.tlb: em.force_wait(lg=0)
        em(f's_mov_b32 {sDelta}, {f2u(1e-6*1.4426950408889634):#x}'); em(f's_mov_b32 {sLn2}, {f2u(0.6931471805599453):#x}')
        em('s_mov_b32 s89, s88'); em('s_mov_b32 s91, s90')
        em(f's_mov_b32 {sLog2e}, {f2u(1.4426950408889634):#x}'); em(f's_mov_b32 {sInv}, {f2u(1/512):#x}')
        em(f's_mov_b32 {sEps}, {f2u(1e-5):#x}'); em(f's_mov_b32 {s1em6}, {f2u(1e-6):#x}')
        em(f's_mov_b32 {sMaskInv}, 0xffffff00')
        em(f'v_lshrrev_b32 {vHi}, 5, {vLane}')
        em(f'v_lshrrev_b32 v27, 4, {vLane}'); em('v_lshlrev_b32 v27, 9, v27'); em(f'v_and_b32 v28, 15, {vLane}'); em(f'v_lshl_add_u32 {vP}, v28, 4, v27')
        em(f'v_bfe_u32 v27, {vLane}, 2, 2'); em(f'v_lshl_add_u32 v27, {vHi}, 2, v27')
        em(f'v_bfe_u32 v28, {vLane}, 4, 1'); em('v_lshlrev_b32 v28, 5, v28')
        em(f'v_and_b32 v29, 3, {vLane}'); em('v_lshl_add_u32 v28, v29, 3, v28')
        em(f'v_lshl_add_u32 {vTr[0]}, v27, 6, v28')
        em(f'v_lshl_add_u32 {vTr[0]}, {vHi}, 8, {vTr[0]}')
        em(f'v_add_u32 {vTr[1]}, 0x10000, {vTr[0]}'); em(f'v_add_u32 {vTr[2]}, 0x20000, {vTr[0]}')
        em(f'v_bfe_u32 v29, {vLane}, 3, 1'); em('v_lshl_add_u32 v28, v29, 6, v28')
        em(f'v_lshl_add_u32 {vS0}, v27, 7, v28'); em(f'v_add_u32 {vS0}, {sWl}, {vS0}'); em(f'v_xor_b32 {vS1}, 64, {vS0}')
        em(f'v_lshrrev_b32 v27, 3, {vLane}'); em(f'v_and_b32 v28, 7, {vLane}')
        em(f'v_bfe_u32 v29, {vLane}, 4, 1'); em('v_lshlrev_b32 v29, 2, v29'); em('v_xor_b32 v28, v28, v29'); em('v_lshlrev_b32 v28, 4, v28')
        em(f'v_lshl_add_u32 {vDs}, v27, 10, v28'); em(f's_lshl_b32 {sT}, {sW}, 14'); em(f'v_add_u32 {vDs}, {sT}, {vDs}')
        em(f'v_lshl_add_u32 v27, {vHi}, 9, {vL16}'); em(f's_lshl_b32 {sT}, {sW}, 11'); em(f'v_add_u32 {vStT}, {sT}, v27')
        em(f'v_and_b32 {vPoll}, 15, {vLane}'); em(f'v_lshlrev_b32 {vPoll}, 2, {vPoll}')

    def nonce_hello(self):
        em = self.em; o = self.o
        if o.ts2: self.ts('setup')
        em(f'v_readfirstlane_b32 {sNonce}, v24')
        if o.ts2: self.ts('epoch')
        em(f's_add_u32 {sNonce}, {sNonce}, {NONCE_K:#x}')
        em(f's_getreg_b32 {sHello}, hwreg(HW_REG_XCC_ID)'); em(f's_and_b32 {sHello}, {sHello}, 15')
        em(f's_add_u32 {sHello}, {sHello}, {sNonce}'); em(f's_add_u32 {sHello}, {sHello}, 1')
        def hello():
            em(f's_mov_b64 {sEx}, exec'); em('s_mov_b64 exec, 1')
            em(f'v_mov_b32 v24, {sHello}')
            em(f's_lshl_b32 {sT2}, {sJ}, 2'); em(f's_add_u32 {sT2}, {sT2}, {sG128}'); em(f's_add_u32 {sT2}, {sT2}, {WS_HELLO}')
            em(f'buffer_store_dword v24, off, {SWS}, {sT2} sc1')
            em(f's_mov_b64 exec, {sEx}')
        self.only_wave(0, hello)

    def chunk_items(self, c):
        it = []
        def x(rb8):
            if rb8 == 0: self.rot(c, 128, sXrow); self.em(f's_mov_b32 s99, {sR}')
            self.dma(SX, 'v25' if rb8 % 2 == 0 else 'v26', 's99', rb8 * 8192, 24 + 4 * (c % 3) + rb8, f'c{c}')
        for rb8 in range(4): it.append(lambda rb8=rb8: x(rb8))
        def w(p):
            if p == 'k': self.rot(c, 64 * 3072, sQcol); self.em(f's_mov_b32 s84, {sR}')
            self.dma(SQKV, vDq, 's84', {'k': 1024, 'v': 2048}[p], self.pl[p][c], f'c{c}')
        it += [lambda: w('k'), lambda: w('v')]
        return it
    def chunk_dma(self, c): self.emit(self.chunk_items(c))

    def touch_q(self, vt, dst):
        em = self.em
        em(f'v_lshlrev_b32 {vt}, 7, {vLane}')
        em(f's_mov_b64 {sEx}, exec')
        if self.o.qpw:
            for k in range(2): em(f'buffer_store_dwordx4 {v(MR+8,4)}, {vL16}, {SWS}, {sQst} offen offset:{k*1024}' + ('' if self.o.qpw == 2 else ' sc1'), tag='rst')
        else:
            em('s_mov_b64 exec, 0xffff')
            em(f'buffer_load_dword {v(dst)}, {vt}, {SWS}, {sQst} offen sc1', tag='touch')
        em(f'v_lshlrev_b32 {vt}, 12, {vLane}')
        em('s_mov_b64 exec, 0x7f')
        em(f'buffer_load_dword {v(dst+1)}, {vt}, {SWS}, {sFlag} offen sc1', tag='touch')
        em(f's_mov_b64 exec, {sEx}')
    def touch_w(self, vt, dst):
        em = self.em
        em(f'v_lshlrev_b32 {vt}, 7, {vLane}')
        em(f's_lshl_b32 {sT2}, s2, 2'); em(f's_add_u32 {sT2}, {sT2}, {sW}'); em(f's_mul_i32 {sT2}, {sT2}, {11*128}')
        em(f's_mov_b64 {sEx}, exec'); em('s_mov_b64 exec, 0x7ff')
        em(f'buffer_load_dword {v(dst)}, {vt}, {SW1}, {sT2} offen', tag='touch')
        em(f'buffer_load_dword {v(dst+1)}, {vt}, {SW2}, {sT2} offen', tag='touch')
        em(f's_lshl_b32 {sT2}, s2, 2'); em(f's_add_u32 {sT2}, {sT2}, {sW}'); em(f's_lshl_b32 {sT2}, {sT2}, 9')
        em('s_mov_b64 exec, 15')
        em(f'buffer_load_dword {v(dst+2)}, {vt}, {SWO}, {sT2} offen', tag='touch')
        em(f's_mov_b64 exec, {sEx}')
    def reducer_setup(self):
        em = self.em
        em(f's_lshr_b32 {sT}, {sG}, 3'); em(f's_cmp_eq_u32 {sT}, {sW}'); em(f's_cselect_b32 {sRed}, 1, 0')
        em(f's_lshl_b32 {sLine}, {sG}, 7')
        em(f's_mul_i32 {sKTo}, {sT}, 544'); em(f's_and_b32 {sT2}, {sG}, 7'); em(f's_lshl_b32 {sT2}, {sT2}, 6'); em(f's_add_u32 {sKTo}, {sKTo}, {sT2}')
        em(f's_mov_b32 {sFac}, {sLn2}')
        L = em.newlabel('Lz')
        em(f's_cmp_lg_u32 {sW}, 2'); em(f's_cbranch_scc1 {L}')
        em(f's_cmp_eq_u32 {sG}, {sJ}'); em(f's_cselect_b32 {sRed}, 1, 0')
        em(f's_mov_b32 {sLine}, 2048'); em(f's_mov_b32 {sKTo}, 512'); em(f's_mov_b32 {sFac}, 1.0')
        em.label(L)
        em(f's_sub_u32 {sCsp}, {sG}, {sJ}'); em(f's_sub_u32 {sCsp}, {sCsp}, 1'); em(f's_and_b32 {sCsp}, {sCsp}, 15')
        em(f's_cmp_eq_u32 {sW}, 3'); em(f's_cselect_b32 {sCsp}, {sCsp}, 15')
        em(f's_mul_i32 {sT2}, {sJ}, 1088'); em(f's_add_u32 {sKTo}, {sKTo}, {sT2}'); em(f's_add_u32 {sKTo}, {sKTo}, {WS_KT8 if self.o.rep8 else WS_KT}')
        em(f's_add_u32 {sLine}, {sLine}, {sJmsg}')
        em(f's_and_b32 {sT2}, {sG}, 7'); em(f's_lshl_b32 {sT2}, {sT2}, 3'); em(f's_mov_b64 {sX0}, 0xff'); em(f's_lshl_b64 {sX0}, {sX0}, {sT2}'); em(f's_not_b64 {sX0}, {sX0}')
        em(f's_cmp_eq_u32 {sT}, 0'); em(f's_cselect_b64 {sX1}, -1, {sX0}'); em(f's_cselect_b64 {sX0}, {sX0}, -1')
    def reducer_setup_c(self):
        em = self.em
        em(f's_mul_i32 {sRed}, {sG}, {KT_B}'); em(f's_add_u32 {sRed}, {sRed}, {WS_KTG}')
        em(f's_mul_i32 {sKTo}, {sJ}, 1088'); em(f's_add_u32 {sLine}, {sKTo}, {sRed}')
        em(f's_lshr_b32 {sT}, {sW}, 1'); em(f's_mul_i32 {sT}, {sT}, 544'); em(f's_and_b32 {sT2}, {sW}, 1'); em(f's_lshl_b32 {sT2}, {sT2}, 8')
        em(f's_add_u32 {sKTo}, {sLine}, {sT}'); em(f's_add_u32 {sKTo}, {sKTo}, {sT2}')
        em(f's_and_b32 {sT2}, {sG}, 3'); em(f's_lshl_b32 {sT2}, {sT2}, 4'); em(f's_mov_b64 {sX0}, 0xffff'); em(f's_lshl_b64 {sX0}, {sX0}, {sT2}'); em(f's_not_b64 {sX0}, {sX0}')
        em(f's_and_b32 {sT2}, {sG}, 7'); em(f's_lshl_b32 {sT2}, {sT2}, 3'); em(f's_mov_b64 {sX1}, 0xff'); em(f's_lshl_b64 {sX1}, {sX1}, {sT2}'); em(f's_not_b64 {sX1}, {sX1}')
        em(f's_sub_u32 {sCsp}, {sG}, {sJ}'); em(f's_sub_u32 {sCsp}, {sCsp}, 1'); em(f's_and_b32 {sCsp}, {sCsp}, 15')
        em(f's_cmp_eq_u32 {sW}, 2'); em(f's_cselect_b32 {sCsp}, {sCsp}, 15')
    def kt_voff(self, d, t):
        em = self.em
        em(f'v_and_b32 {d}, 7, {vLane}'); em(f'v_lshlrev_b32 {d}, 3, {d}'); em(f'v_lshl_add_u32 {d}, {vHi}, 2, {d}')
        em(f's_cmp_eq_u32 {sW}, {3 if self.o.xc else 2}'); em(f's_cselect_b32 {sT2}, 128, 0'); em(f'v_and_b32 {t}, 4, {vLane}'); em(f'v_mad_u32_u24 {d}, {t}, {sT2}, {d}')
        if self.o.rep8:
            em(f'v_bfe_u32 {t}, {vLane}, 3, 2'); em(f's_movk_i32 {sT2}, {KC:#x}'); em(f'v_mad_u32_u24 {d}, {t}, {sT2}, {d}')
    def resets(self):
        em = self.em
        t0, D = v(MR + 24), MR + 28
        L = em.newlabel('Lrs')
        if self.o.xc: em(f's_branch {L}')
        em(f's_cmp_eq_u32 {sRed}, 0'); em(f's_cbranch_scc1 {L}')
        em.cond_begin()
        self.kt_voff(t0, v(D)); em(f'v_mov_b32 {v(D)}, -1')
        if self.o.rep8:
            for k in range(4): self.wsstore(v(D), t0, sKTo, k * 4 * KC, width=1, sc=' sc1', tag='rst')
        else:
            em('s_mov_b32 exec_lo, 0xff'); em('s_mov_b32 exec_hi, 0xff')
            for l in range(2): self.wsstore(v(D), t0, sKTo, l * 0x8000, width=1, sc=' sc1', tag='rst')
        em('s_mov_b64 exec, -1')
        em.cond_end()
        em.label(L)
        L = em.newlabel('Lrc')
        em(f's_cmp_ge_u32 {sCsp}, 3'); em(f's_cbranch_scc1 {L}')
        em.cond_begin()
        em(f'v_lshlrev_b32 {t0}, 2, {vLane}'); em(f'v_mov_b32 {v(D)}, -1')
        em(f's_mul_i32 {sT2}, {sJ}, 384'); em(f's_lshl_b32 {sR}, {sCsp}, 7'); em(f's_add_u32 {sT2}, {sT2}, {sR}')
        em('s_mov_b32 exec_hi, 0')
        self.wsstore(v(D), t0, sT2, WS_CS, width=1, sc=' sc1', tag='rst')
        em('s_mov_b64 exec, -1')
        em.cond_end()
        em.label(L)
        def msg():
            em(f'v_lshlrev_b32 {t0}, 4, {vTid}'); em(f's_not_b32 {sT2}, {sNonce}')
            for r in range(4): em(f'v_mov_b32 {v(D+r)}, {sT2}')
            em(f'v_cmp_gt_u32 vcc, 136, {vTid}'); em(f's_and_saveexec_b64 {sEx}, vcc')
            em(f's_mul_i32 {sT2}, {sG}, {MSG_B}'); em(f's_add_u32 {sT2}, {sT2}, {sJmsg}')
            for l in range(2): self.wsstore(v(D, 4), t0, sT2, l * 256 * MSG_B, sc=' sc1', tag='rst')
            em(f's_mov_b64 exec, {sEx}')
        if self.o.prewrite: self.only_wave(3, msg, invert=True)
    def reset_items(self, D, which):
        em = self.em
        it = [f'v_mov_b32 {v(D+r)}, 0' for r in range(4)]
        def x():
            em(f's_and_b32 {sT2}, {sW}, 1'); em(f's_mul_i32 {sT2}, {sT2}, 1792'); em(f's_add_u32 {sT2}, {sT2}, {sXst}')
            self.wsstore(v(D, 4), vL16, sT2, 0, tag='rst'); self.wsstore(v(D, 4), vL16, sT2, 0, tag='rst', off=1024)
        if 'x' in which: it.append(x)
        def h(p):
            self.wsstore(v(D, 4), vL16, sHks, p * 2048, tag='rst'); self.wsstore(v(D, 4), vL16, sHks, p * 2048, tag='rst', off=1024)
        if 'h' in which: it += [lambda: h(0), lambda: h(1)]
        def h2():
            L = em.newlabel('Lr3')
            em(f's_cmp_ge_u32 {sJ}, 11'); em(f's_cbranch_scc1 {L}')
            em.cond_begin(); h(2); em.cond_end()
            em.label(L)
        if 'h' in which: it.append(h2)
        def st():
            em(f'v_and_b32 {v(D+4)}, 512, {vP}'); em(f'v_add_u32 {v(D+4)}, {v(D+4)}, {vP}')
            em('s_mov_b32 exec_hi, 0')
            for i in range(3): self.wsstore(v(D), v(D + 4), sStst, i * 16 * 8192, width=1, tag='rst')
            em('s_mov_b64 exec, -1')
        if 'x' in which: it.append(st)
        return it

    def check(self, regs, reload, tmp=None, split=False, kind='sent', tag=None, again=None):
        em = self.em
        if self.o.nochk and split and kind != 'h': return lambda: None
        F = em.newlabel('Lfix'); R = em.newlabel('Lret'); G_ = em.newlabel('Lok')
        dst = 'vcc' if split else sEx
        def test(e):
            r = regs[0]
            if r.startswith('a'): e(f'v_accvgpr_read_b32 {tmp}, {r}'); r = tmp
            if kind == 'sent':
                rest = list(regs)
                e(f'v_max_u32 {tmp}, {rest[0]}, {rest[1]}'); rest = rest[2:]
                while rest:
                    e(f'v_max3_u32 {tmp}, {rest[0]}, {rest[1]}, {tmp}'); rest = rest[2:]
                e(f'v_cmp_eq_u32 {dst}, -1, {tmp}')
            elif kind == 'h':
                if tag:
                    for q in regs: e(f'v_xor_b32 {q}, 0x80000000, {q}')
                if len(regs) == 2: e(f'v_or_b32 {tmp}, {regs[0]}, {regs[1]}'); r = tmp
                e(f'v_cmp_gt_i32 {dst}, 0, {r}')
            elif len(regs) <= 2:
                r1 = regs[-1]
                if r1.startswith('a'):
                    e(f'v_lshlrev_b32 {tmp}, 31, {tmp}'); e(f'v_cmp_{"eq" if tag else "ne"}_u32 {sEx}, 0, {tmp}')
                    e(f'v_accvgpr_read_b32 {tmp}, {r1}'); e(f'v_lshlrev_b32 {tmp}, 31, {tmp}'); e(f'v_cmp_{"eq" if tag else "ne"}_u32 {dst}, 0, {tmp}')
                    e('s_nop 1'); e(f's_or_b64 vcc, vcc, {sEx}')
                else:
                    e(f'v_bitop3_b32 {tmp}, {r}, {r1}, 1 bitop3:{0x80 if tag else 0xa8:#x}'); e(f'v_cmp_{"eq" if tag else "ne"}_u32 {dst}, 0, {tmp}')
            else:
                assert tag == 1
                rest = list(regs)
                e(f'v_and_b32 {tmp}, {rest[0]}, {rest[1]}'); rest = rest[2:]
                while rest:
                    e(f'v_bitop3_b32 {tmp}, {rest[0]}, {rest[1]}, {tmp} bitop3:0x80'); rest = rest[2:]
                e(f'v_and_b32 {tmp}, 1, {tmp}'); e(f'v_cmp_eq_u32 {dst}, 0, {tmp}')
        test(em)
        def branch():
            if split: em(f's_cbranch_vccnz {F}')
            else: em(f's_cmp_lg_u64 {sEx}, 0'); em(f's_cbranch_scc1 {F}')
            em.label(R)
            out = [F + ':']
            e = lambda t, tag=None: out.append('    ' + t)
            if self.o.ts and not self.o.span: e('s_add_u32 s87, s87, 1')
            def rep():
                for p in em.vmq:
                    if p.tag == 'A': again(e, p)
                    else: e(f's_mov_b32 {sFx}, {WS_DBG + 0x100000}'); e(f'buffer_store_dword {tmp}, off, {SWS}, {sFx}')
            reload(e)
            if again and self.o.fixmode: rep(); e(f's_waitcnt vmcnt({len(em.vmq)})')
            else: e('s_waitcnt vmcnt(0)')
            test(e)
            if split: e(f's_cbranch_vccz {G_}')
            else: e('s_nop 0'); e(f's_cmp_eq_u64 {sEx}, 0'); e(f's_cbranch_scc1 {G_}')
            e(f's_sub_u32 {sSpin}, {sSpin}, 1'); e(f's_cbranch_scc0 {F}'); e(f's_mov_b32 {sSpin}, 0')
            out.append(G_ + ':')
            if again and not self.o.fixmode: rep()
            e(f's_branch {R}')
            self.fixes += out
        if split: return branch
        branch()

    def colsum_items(self, quads, acc, tmp, own, ones, first):
        items = []
        rds = [self.tr(tmp + 4 * (n % 2), q, 0, own) for n, q in enumerate(quads)]
        items += rds[0]
        for n in range(len(quads)):
            if n + 1 < len(quads): items += rds[n + 1]
            items.append(f'{MF} {acc}, {ones}, {v(tmp + 4*(n%2), 4)}, ' + ('0' if first and n == 0 else acc))
        return items
    def cs_write_items(self, srcs, lds, tmp):
        ad = v(tmp)
        it = [f'v_and_b32 {ad}, 31, {vLane}', f'v_lshlrev_b32 {ad}, 4, {ad}', f'v_add_u32 {ad}, {lds:#x}, {ad}',
              f's_lshl_b32 {sT2}, {sW}, 2', f'v_add_u32 {v(tmp+1)}, {sT2}, {ad}']
        return it + [f'ds_write_b32 {v(tmp+1)}, {s} offset:{p*512}' for p, s in enumerate(srcs)]
    def cs_read_items(self, keys, tmp):
        ad = v(tmp); R = tmp + 2
        it = [f'ds_read_b128 {v(R+4*p,4)}, {ad} offset:{p*512}' for p in range(len(keys))]
        for p, k in enumerate(keys):
            r = R + 4 * p
            it += [f'v_add_f32 {v(r)}, {v(r)}, {v(r+1)}', f'v_add_f32 {v(r+2)}, {v(r+2)}, {v(r+3)}', f'v_add_f32 {v(r)}, {v(r)}, {v(r+2)}',
                   f'v_cvt_pk_bf16_f32 {v(r+1)}, {v(r)}, {v(r)}', f'v_lshlrev_b32 {v(r+1)}, 16, {v(r+1)}', f'v_sub_f32 {v(r+1)}, {v(r)}, {v(r+1)}',
                   f'v_cvt_pk_bf16_f32 {CS[k]}, {v(r)}, {v(r+1)}']
        return it
    def colsum_exchange(self, srcs, keys, lds, tmp):
        self.emit(self.cs_write_items(srcs, lds, tmp)); self.barrier(); self.emit(self.cs_read_items(keys, tmp))

    def stage_dma(self, srd, m, qa, qb, tag):
        em = self.em
        if srd == SWO:
            em(f's_add_u32 {sR}, {sRot2}, {m}'); em(f's_and_b32 {sR}, {sR}, 7'); em(f's_lshl_b32 {sR}, {sR}, 16')
        else:
            self.tab4(m, sR, 16)
        em(f's_add_u32 {sR}, {sR}, {sC128}')
        self.dma(srd, vDs, sR, 0, qa, tag, nt=self.o.nt_stage); self.dma(srd, vDs, sR, 8192, qb, tag, nt=self.o.nt_stage)
    def tab4(self, st, dst, sh, em=None):
        em = em or self.em
        em(f's_bfe_u32 {dst}, {sTab[st // 6]}, {(5 * (st % 6)) | (5 << 16):#x}'); em(f's_lshl_b32 {dst}, {dst}, {sh}')
    def stage_read_items(self, abase, m, qa, qb):
        items = []
        for h, q in enumerate((qa, qb)):
            addr = q * 4096; win = addr >> 16; off = addr & 0xFFFF
            def f(win=win, off=off, h=h):
                if win == 0: b0, b1 = vS0, vS1
                else:
                    if self.swin != win:
                        self.em(f'v_add_u32 {vS0w}, {win*65536:#x}, {vS0}'); self.em(f'v_add_u32 {vS1w}, {win*65536:#x}, {vS1}'); self.swin = win
                    b0, b1 = vS0w, vS1w
                self.em(f'ds_read_b64_tr_b16 {a(abase + m*8 + 2*h, 2)}, {b0} offset:{off}')
                self.em(f'ds_read_b64_tr_b16 {a(abase + m*8 + 4 + 2*h, 2)}, {b1} offset:{off}')
            items.append(f)
        return items

    def aux_items(self, S, Q, t0, need_r=True):
        it = [f'v_mul_f32 {S}, {sInv}, {S}']
        if need_r:
            it += [f'v_mul_f32 {Q}, {sInv}, {Q}', f'v_fma_f32 {Q}, -{S}, {S}, {Q}', f'v_max_f32 {Q}, 0, {Q}', f'v_add_f32 {Q}, {sEps}, {Q}',
                   f'v_rsq_f32 {Q}, {Q}', f'v_mul_f32 {vRl}, {sLog2e}, {Q}']
        it += [f'v_cndmask_b32_e64 {S}, 0, -{S}, {sLo}',
               f'v_cvt_pk_bf16_f32 {v(AUX)}, {S}, {S}', f'v_lshlrev_b32 {t0}, 16, {v(AUX)}', f'v_sub_f32 {S}, {S}, {t0}', f'v_cvt_pk_bf16_f32 {v(AUX+1)}, {S}, {S}']
        if need_r:
            it += [f'v_cndmask_b32 {Q}, 0, {vRl}, {sLo}', f'v_cvt_pk_bf16_f32 {t0}, {Q}, {Q}', f'v_lshlrev_b32 {t0}, 16, {t0}', f'v_sub_f32 {t0}, {Q}, {t0}',
                   f'v_cvt_pk_bf16_f32 {v(AUX+2)}, {Q}, {t0}']
        return it
    def aux_const_items(self):
        return [f'v_mov_b32 {v(AUX+2)}, 0', f'v_mov_b32 {v(AUX+3)}, 0', f'v_mov_b32 {v(CB+2)}, 0', f'v_mov_b32 {v(CB+3)}, 0', f'v_mov_b32 {v(CB+4)}, 0x3f803f80', f'v_mov_b32 {v(CB+5)}, 0x3f803f80']
    def corr_items(self, key, acc, swapAB):
        c = v(acc, 16)
        return [f'v_mov_b32 {v(CB)}, {CS[key]}', f'v_mov_b32 {v(CB+1)}, {CS[key]}',
                f'{MF} {c}, {v(AUX,4)}, {v(CB,4)}, {c}' if swapAB else f'{MF} {c}, {v(CB,4)}, {v(AUX,4)}, {c}']
    def stats_T_loads(self, i, e=None):
        e = e or self.em
        t = MR + 16
        e(f's_add_u32 {sFx}, {sG8K}, {i * 16 * 8192}')
        e(f'buffer_load_dwordx4 {v(t,4)}, {vStT}, {SWS}, {sFx} offen sc1', tag='stat'); e(f'buffer_load_dwordx4 {v(t+4,4)}, {vStT}, {SWS}, {sFx} offen offset:512 sc1', tag='stat')
    def stats_T_items(self, need_r, sti):
        t = MR + 16
        it = [lambda: self.check([v(t + r) for r in range(8)], lambda e: self.stats_T_loads(sti, e), v(38), kind='x', tag=sTxn)]
        it += [f'v_add_f32 {v(t)}, {v(t)}, {v(t+1)}', f'v_add_f32 {v(t+2)}, {v(t+2)}, {v(t+3)}', f'v_add_f32 {v(t+4)}, {v(t+4)}, {v(t+5)}',
              f'v_add_f32 {v(t+6)}, {v(t+6)}, {v(t+7)}', f'v_add_f32 {v(t)}, {v(t)}, {v(t+2)}', f'v_add_f32 {v(t+4)}, {v(t+4)}, {v(t+6)}',
              f'v_add_f32 {v(t)}, {v(t)}, {v(t+4)}', f'v_mov_b32 {v(t+1)}, {v(t)}', f'v_permlane32_swap_b32 {v(t)}, {v(t+1)}']
        return it + self.aux_items(v(t), v(t + 1), v(t + 2), need_r)

    def pass2(self, steps, planes, accs, swapAB, side, fill, loader=None, first=True, extra=None, third=None):
        em = self.em
        steps = list(steps)
        n3 = third[2] if third else 0
        def rd3(i):
            ks = steps[i]
            for t in self.tr(MR + 24 + (i % 2) * 4, third[0][ks >> 2], ks & 3): em(t, tag=('B', i))
        def rd(i, p):
            ks = steps[i]
            for t in self.tr(BB + (i % 2) * 8 + 4 * p, planes[p][ks >> 2], ks & 3): em(t, tag=('B', i))
        for i in range(2):
            for p in range(2): rd(i, p)
            if i < n3: rd3(i)
        br = extra(0)
        for i, ks in enumerate(steps):
            if br: br(); br = None
            if self.o.ts2 and (self.S == 0) != bool(self.o.ts2l1) and i == 0: self.ts('first')
            lg = [k for k, p in enumerate(em.lgq) if p.tag == ('B', i)]
            need = [XORD[k] for k in (i + 1, i + 2) if k < len(steps)] if i % 2 else []
            vm = [k for k, p in enumerate(em.vmq) if p.tag == 'A' and XORD[self.ldidx[id(p)]] in need]
            em.force_wait(vm=len(em.vmq) - 1 - max(vm) if vm else None, lg=len(em.lgq) - 1 - max(lg) if lg else None)
            for p in range(2):
                w = v(BB + (i % 2) * 8 + 4 * p, 4); x = Afrag(ks); c = v(accs[p], 16)
                src = '0' if (first and i == 0) else c
                em(f'{MF} {c}, {x}, {w}, {src}' if swapAB else f'{MF} {c}, {w}, {x}, {src}')
                if i + 2 < len(steps): rd(i + 2, p)
                if p == 0: loader(i)
                if p == 0 and i + 1 < len(steps): br = extra(i + 1)
                if not (p == 0 and br): side.run(fill(i) if callable(fill) else fill)
                if p == 1 and i < n3:
                    c3 = v(third[1], 16)
                    em(f'{MF} {c3}, {v(MR + 24 + (i % 2) * 4, 4)}, {x}, ' + ('0' if i == 0 else c3))
                    if i + 2 < n3: rd3(i + 2)
                    side.run(fill(i))
                if self.o.ts2 and (self.S == 0) != bool(self.o.ts2l1) and p == 1 and i in (0, 3, 7, 11, 15, 19, 23, 27, 31): self.ts(f's{i}')
    def pass1(self, plane, acc, side, fill, steps=None):
        em = self.em
        NB = 4
        first = steps is None
        steps = list(range(32)) if steps is None else list(steps)
        def rd(i):
            for t in self.tr(BB + (i % NB) * 4, plane[steps[i] >> 2], steps[i] & 3): em(t)
        for i in range(NB - 1): rd(i)
        for i, ks in enumerate(steps):
            w = v(BB + (i % NB) * 4, 4); c = v(acc, 16)
            if i + NB - 1 < len(steps): rd(i + NB - 1)
            em(f'{MF} {c}, {w}, {Afrag(ks)}, ' + ('0' if first and i == 0 else c))
            side.run(fill(i) if callable(fill) else fill)
    def xld(self, i, e=None):
        ks = XORD[i]
        r = (e or self.em)(f'buffer_load_dwordx4 {Afrag(ks)}, {vAX}, {SWS}, {(sXl if ks & 2 else sXm)[ks >> 2]} offen offset:{(ks & 1) * 1024} sc1', tag='A')
        if e is None: self.ldidx[id(r)] = i
    def x_prefetch(self, off, n0, n1):
        if n0 == 0:
            self.em(f's_add_u32 {sT}, {sGXw}, {off}'); self.em(f'v_add_u32 {vAX}, {sT}, {vL16}')
        for i in range(n0, n1): self.xld(i)
    def a_loader(self, pre, sti, xtag):
        nxt = [pre]
        def step(i):
            if i == self.o.statstep - 10: self.stats_T_loads(sti)
            for _ in range(2 if i < self.o.burst else 1):
                if nxt[0] < 32: self.xld(nxt[0]); nxt[0] += 1
            self.xdone = nxt[0] >= 32
        def chk(i):
            if i % 2: return None
            f0 = lambda k: (lambda r: r[0] + r[2:].split(':')[0])(Afrag(XORD[k]))
            return self.check([f0(i), f0(i + 1)], lambda e: (self.xld(i, e), self.xld(i + 1, e)), v(38), split=True, kind='x', tag=xtag,
                              again=lambda e, p: self.xld(self.ldidx[id(p)], e))
        return step, chk

    def phi_items(self, acc, rl, lanes_t, E):
        out = []
        for g in range(2):
            b = acc + 8 * g
            for k in range(4):
                x = v(b + 2 * k, 2)
                if lanes_t:
                    out += [f'v_fma_f32 {v(b+2*k)}, {v(b+2*k)}, {rl}, {sDelta}', f'v_fma_f32 {v(b+2*k+1)}, {v(b+2*k+1)}, {rl}, {sDelta}']
                else: out.append(f'v_pk_fma_f32 {x}, {x}, {v(rl + 8*g + 2*k, 2)}, {sDelta2}')
            for k in range(8): out.append(f'v_exp_f32_e64 {v(E+k)}, {v(b+k)} clamp')
            for k in range(8): out.append(f'v_max_f32 {v(b+k)}, {sDelta}, {v(b+k)}')
            for k in range(4): out.append(f'v_pk_fma_f32 {v(b+2*k,2)}, {v(b+2*k,2)}, {sLn22}, {v(E+2*k,2)}')
            for k in range(4): out.append(f'v_cvt_pk_bf16_f32 {v(acc+4*g+k)}, {v(b+2*k)}, {v(b+2*k+1)}')
        return out

    def p1_start(self):
        em = self.em; o = self.o
        self.lin = True
        X = MR; OWN = [v(MR + 4), v(MR + 5), v(MR + 6)]; H = v(MR + 7); ONE = v(MR + 8, 4); CT = MR + 12
        self.OWN, self.ONE = OWN, ONE
        aS, aCk, aCv = a(0, 16), a(32, 16), a(48, 16); QA = ACC + 32
        em(f'v_and_b32 v27, 7, {vLane}'); em('v_lshlrev_b32 v27, 7, v27')
        em(f'v_bfe_u32 v28, {vLane}, 3, 2'); em('v_lshl_add_u32 v27, v28, 12, v27')
        em(f's_add_u32 {sT}, {sWl}, {24*4096}'); em(f'v_add_u32 v27, {sT}, v27')
        em(f'v_bfe_u32 v28, {vLane}, 1, 3'); em(f'v_xor_b32 v28, v28, {vHi}')
        for kk in range(4):
            em(f'v_xor_b32 v29, {2*kk}, v28'); em(f'v_lshl_add_u32 {v(X+kk)}, v29, 4, v27')
        for i in range(3): em(f'v_add_u32 {OWN[i]}, {sWl}, {vTr[i]}')
        for i in range(4): em(f'v_mov_b32 {v(MR+8+i)}, 0x3f803f80')
        for sm, bit in ((sM0, 1), (sM1, 2), (sM3, 8), (sM4, 16)):
            em(f'v_and_b32 v29, {bit}, {vLane}'); em(f'v_cmp_ne_u32 {sm}, 0, v29')
        em(f'v_bfe_u32 v29, {vLane}, 2, 1'); em(f'v_cmp_eq_u32 s[46:47], v29, {vHi}')
        if o.tw == 0: self.touch_w('v29', MR + 20)
        self.reducer_setup_c() if o.xc else self.reducer_setup()
        self.emit(self.c1rest)
        def own_reads(c):
            em.wait_vm_tag(f'c{c}')
            for kk in range(4): em(f'ds_read_b128 {Afrag(4*c+kk)}, {v(X+kk)} offset:{(c % 3) * 16384}')
            for p, pl in enumerate('kv'): self.emit(self.tr(CT + 4 * p, self.pl[pl][c], 0, OWN))
        side = Side(em)
        self.stq = list(range(24, 32)) + [34, 35, 32, 33, 36, 37, 38, 39]
        if o.ts2: self.ts('pre0')
        own_reads(0)
        self.ts('c0')
        for c in range(8):
            em('s_barrier')
            if c + 2 < 8: side.add(*self.chunk_items(c + 2))
            if c == 0: side.add(self.nonce_hello)
            if c == 1: side.add(self.resets)
            self.touch_at(f'c{c}', side, 'v27')
            if o.rste and c == o.rste:
                def early_resets():
                    keep = self.sc; self.sc = ' sc1'
                    self.emit(self.reset_items(MR + 24, 'xh')); self.sc = keep
                side.add(early_resets)
            if c == o.tqc: side.add(lambda: self.touch_q('v27', MR + 24))
            if c == o.tw - 1: side.add(lambda: self.touch_w('v27', MR + 20))
            if c == 1:
                def w1p():
                    em(f's_lshl_b32 {sT2}, {sW}, 6'); em(f's_add_u32 {sT2}, {sT2}, {sW1c0}'); em(f's_cmp_lt_u32 {sW}, 2'); em(f's_cselect_b32 {sT2}, {sT2}, {sW1c2}')
                    em(f's_lshl_b32 {sR}, {sG}, 1'); em(f's_sub_u32 {sR}, {sR}, {sW}'); em(f's_mul_i32 {sR}, {sR}, {16*2752}')
                    em(f'v_add_u32 v28, {sR}, {vD1}')
                    self.dma(SW1, 'v28', sT2, 0, 36, 'w1p'); self.dma(SW1, 'v28', sT2, 16 * 2752, 37, 'w1p')
                side.add(w1p)
            if c == 5:
                aW = a(80, 16); W = MR + 24
                side.add(lambda: em.wait_vm_tag('w1p'))
                side.add(*self.tr(W, 36, 0, OWN)); side.add(*self.tr(W + 4, 37, 0, OWN))
                side.add(f'{MF} {aW}, {ONE}, {v(W,4)}, 0', f'{MF} {aW}, {ONE}, {v(W+4,4)}, {aW}')
            if c == 6:
                def w1s():
                    W = MR + 24
                    em(f'v_accvgpr_read_b32 {v(W)}, a80'); em(f's_and_b32 {sT2}, {sNonce}, 0xff'); em(f'v_mov_b32 {v(W+1)}, {sT2}')
                    em(f'v_and_or_b32 {v(W)}, {v(W)}, {sMaskInv}, {v(W+1)}'); em(f'v_lshlrev_b32 {v(W+1)}, 2, {vLane}')
                    em(f's_min_u32 {sR}, {sW}, 2'); em(f's_lshl_b32 {sR}, {sR}, 7')
                    em(f's_mul_i32 {sT2}, {sG}, {MSG_B}'); em(f's_add_u32 {sT2}, {sT2}, {sJmsg}'); em(f's_add_u32 {sT2}, {sT2}, {sR}')
                    em('s_mov_b32 exec_hi, 0')
                    self.wsstore(v(W), v(W + 1), sT2, 2176, width=1, sc=' sc1', tag='rst')
                    em('s_mov_b64 exec, -1')
                side.add(w1s)
            if c == 5:
                def hello():
                    em(f's_add_u32 {sT2}, {sG128}, {WS_HELLO}')
                    em(f'buffer_load_dword {H}, {vPoll}, {SWS}, {sT2} offen sc1', tag='hello')
                side.add(hello)
            if c >= 5:
                for m in range(8):
                    if o.qsched[m] == str(c): side.add(lambda m=m: self.qkv_dma('q', m, 'q'))
            def rd(kk, p):
                self.emit(self.tr(BB + (kk % 2) * 8 + 4 * p, self.pl['kv'[p]][c], kk))
            for kk in range(2):
                for p in range(2): rd(kk, p)
            cnt = [0]
            def tick():
                cnt[0] += 1
                if c < 7 and cnt[0] % o.cgap == o.cgap - 1: side.run(1)
            for p, acc in enumerate((aCk, aCv)):
                em(f'{MF} {acc}, {ONE}, {v(CT+4*p,4)}, ' + ('0' if c == 0 else acc)); tick()
            for kk in range(4):
                ks = 4 * c + kk
                em(f'{MF} {aS}, {ONE}, {Afrag(ks)}, ' + ('0' if ks == 0 else aS)); tick()
                em(f'{MF} {v(QA,16)}, {Afrag(ks)}, {Afrag(ks)}, ' + ('0' if ks == 0 else v(QA, 16))); tick()
            if c == 7:
                S, Q, T = v(MR + 20), v(QA), v(MR + 22)
                tail = [f'v_accvgpr_read_b32 {v(MR+20)}, a32', f'v_accvgpr_read_b32 {v(MR+21)}, a48']
                tail += self.cs_write_items([v(MR + 20), v(MR + 21)], 32 * 4096, MR + 22) + [self.barrier] + self.cs_read_items(['k', 'v'], MR + 22)
                tail += [f'v_accvgpr_read_b32 {S}, a0']
                for r in range(8): tail.append(f'v_cndmask_b32 {v(QA+r)}, {v(QA+2*r)}, {v(QA+2*r+1)}, {sM0}')
                for r in range(4): tail.append(f'v_cndmask_b32 {v(QA+r)}, {v(QA+2*r)}, {v(QA+2*r+1)}, {sM1}')
                for r in range(2): tail.append(f'v_cndmask_b32 {v(QA+r)}, {v(QA+2*r)}, {v(QA+2*r+1)}, {sM3}')
                tail += [f'v_cndmask_b32 {Q}, {Q}, {v(QA+1)}, {sM4}', f'v_cndmask_b32 {Q}, 0, {Q}, s[46:47]',
                         f'v_mov_b32 {T}, {Q}', f'v_permlane32_swap_b32 {Q}, {T}', f'v_add_f32 {Q}, {Q}, {T}']
                tail += self.aux_const_items() + self.aux_items(S, Q, T)
                side.q = tail + side.q
            for kk in range(4):
                ks = 4 * c + kk
                for p in range(2):
                    cc = v(ACC + 16 * p, 16)
                    em(f'{MF} {cc}, {Afrag(ks)}, {v(BB + (kk % 2) * 8 + 4 * p, 4)}, ' + ('0' if ks == 0 else cc))
                    if kk + 2 < 4: rd(kk + 2, p)
                    if c < 7: tick()
                    else: side.run(7)
                if kk == o.ownpos and c + 1 < 8: own_reads(c + 1)
            if c < 7: side.flush()
            if c in (1, 3, 5) and not o.ts2: self.ts(f'c{c}e')
        side.flush()
        self.ts('kvpass')
        self.emit(self.corr_items('k', ACC, True)); self.emit(self.corr_items('v', ACC + 16, True))
        L = em.newlabel('Lhp'); D = em.newlabel('Lhd')
        em.wait_vm_tag('hello')
        em.label(L)
        em(f'v_subrev_u32 {v(TMP)}, {sNonce}, {H}'); em(f'v_add_u32 {v(TMP)}, -1, {v(TMP)}')
        em(f'v_cmp_le_u32 vcc, 16, {v(TMP)}')
        em(f's_cbranch_vccz {D}')
        em.cond_begin()
        em(f's_add_u32 {sT2}, {sG128}, {WS_HELLO}')
        em(f'buffer_load_dword {H}, {vPoll}, {SWS}, {sT2} offen sc1'); em.force_wait(vm=0)
        em.cond_end()
        self.spin_tail(L)
        em.label(D)
        em(f'v_cmp_ne_u32 vcc, {sHello}, {H}')
        for i in range(3): em(f'v_mov_b32 {v(TMP+i)}, {OWN[i]}')
        self.OWN = [v(TMP), v(TMP + 1), v(TMP + 2)]
        em(f'{MF} {v(MR,16)}, {v(AUX,4)}, {v(CB+2,4)}, 0')
        self.ts('decide')

    def p1_rest(self, l):
        em = self.em; o = self.o
        K, V, Q = ACC, ACC + 16, ACC + 32
        RL = MR; E = MR + 16
        sq = self.pl['k'][:4]
        sa = 36 * 4096
        mw, mr, fac, t16, tg = v(V + 8), v(V + 9), v(V + 10), v(V + 11), v(V + 12)
        u, x1, x2 = v(V + 13), v(V + 14), v(V + 15)
        self.emit(self.phi_items(K, RL, False, E))
        D0, D1 = MR, MR + 16
        rest = []
        for hh in range(2):
            rest += [f'v_pk_mul_f32 {v(V+2*r,2)}, {v(V+2*r,2)}, {v(RL+2*r,2)}' for r in range(4 * hh, 4 * hh + 4)]
            rest += [f'v_cvt_pk_bf16_f32 {v(V+r)}, {v(V+2*r)}, {v(V+2*r+1)}' for r in range(4 * hh, 4 * hh + 4)]
        W_ = E
        rest = rest[:8] + [f'v_mov_b32 {v(K+8+r)}, {v(CB+4)}' for r in range(8)] + [f'v_permlane16_swap_b32 {v(V+r)}, {v(K+8+r)}' for r in range(4)] + rest[8:]
        rest += [f'{MF} {v(D1,16)}, {v(K,4)}, {v(K+8,4)}, 0']
        rest += [f'v_permlane16_swap_b32 {v(V+r)}, {v(K+8+r)}' for r in range(4, 8)]
        rest += [f'{MF} {v(D0,16)}, {v(K,4)}, {v(V,4)}, 0', f'{MF} {v(D1,16)}, {v(K+4,4)}, {v(K+12,4)}, {v(D1,16)}',
                 f'{MF} {v(D0,16)}, {v(K+4,4)}, {v(V+4,4)}, {v(D0,16)}']
        if l == 0:
            for r in range(4): em(f'v_mov_b32 {v(BB+8+r)}, {v(CB+4)}')
            cs = [lambda: em.wait_vm_tag('q')] + self.colsum_items(self.pl['q'], v(Q, 16), BB, self.OWN, v(BB + 8, 4), True)
            mixed = []
            while rest or cs:
                mixed += rest[:1] + cs[:1]; rest = rest[1:]; cs = cs[1:]
            rest = mixed
        self.emit(rest)
        self.emit([f's_lshl_b32 {sT2}, {sW}, 12', f's_add_u32 {sT2}, {sT2}, {sa}', f'v_add_u32 {mw}, {sT2}, {vL16}',
                   f'v_bfe_u32 {x1}, {vLane}, 1, 4', f'v_lshl_add_u32 {x1}, {vHi}, 5, {x1}', f'v_lshlrev_b32 {x1}, 4, {x1}',
                   f's_lshl_b32 {sT2}, {sW}, 11', f'v_add_u32 {x1}, {sT2}, {x1}',
                   f'v_bfe_u32 {x2}, {vLane}, 1, 2', f'v_lshlrev_b32 {x2}, 9, {x2}', f'v_bfe_u32 {u}, {vLane}, 2, 1', f'v_lshl_add_u32 {x2}, {u}, 10, {x2}', f'v_add_u32 {x2}, 256, {x2}',
                   f's_cmp_eq_u32 {sW}, 2', f's_cselect_b64 vcc, -1, 0', f'v_cndmask_b32 {mr}, {x1}, {x2}, vcc',
                   f'v_and_b32 {x1}, 1, {vLane}', f'v_lshl_add_u32 {mr}, {x1}, 10, {mr}', f'v_add_u32 {mr}, {sa:#x}, {mr}',
                   f'v_add_u32 {t16}, {sWl}, {vL16}', f's_and_b32 {sT2}, {sNonce}, 0xff', f'v_mov_b32 {tg}, {sT2}',
                   f'v_lshrrev_b32 {x1}, 3, {vLane}', f'v_mul_u32_u24 {x1}, {MSG_B}, {x1}', f'v_and_b32 {x2}, 7, {vLane}', f'v_lshl_add_u32 {fac}, {x2}, 4, {x1}'])
        self.kt_voff(u, x1)
        for i, r in ((2, D1 + 8), (3, D1 + 12), (0, D0), (1, D0 + 4)): em(f'ds_write_b128 {mw}, {v(r,4)} offset:{i*1024}')
        if l == 0: self.emit(self.cs_write_items([v(Q)], 33 * 4096, V))
        em.wait_vm_tag('q')
        self.barrier()
        if not o.ts2: self.ts('kvbar')
        M = MR
        if o.xc: return self.exchange_c(l, mw, mr, fac, t16, tg, u, x1, x2)
        ga = fac; G = MR + 4; A0 = x1; sOK = 's48'
        def msg_out():
            for i in range(4): em(f'ds_read_b128 {v(M+4*i,4)}, {mr} offset:{i*4096}')
            for r in (0, 2): em(f'v_pk_add_f32 {v(M+r,2)}, {v(M+r,2)}, {v(M+4+r,2)}')
            for r in (0, 2): em(f'v_pk_add_f32 {v(M+8+r,2)}, {v(M+8+r,2)}, {v(M+12+r,2)}')
            for r in (0, 2): em(f'v_pk_add_f32 {v(M+r,2)}, {v(M+r,2)}, {v(M+8+r,2)}')
            em(f'v_cmp_gt_u32 vcc, 2176, {t16}')
            for r in range(4): em(f'v_and_or_b32 {v(M+r)}, {v(M+r)}, {sMaskInv}, {tg}')
            em(f's_mul_i32 {sT2}, {sG}, {MSG_B}'); em(f's_add_u32 {sT2}, {sT2}, {sJmsg}')
            em('s_mov_b64 exec, vcc')
            self.wsstore(v(M, 4), t16, sT2, l * 256 * MSG_B, sc=' sc1', tag='msg')
            em('s_mov_b64 exec, -1')
        self.only_wave(3, msg_out, invert=True)
        def if_pending(f):
            L = em.newlabel('Lp')
            em(f's_cmp_lg_u32 {sOK}, 0'); em(f's_cbranch_scc1 {L}')
            em.cond_begin(); f(); em.vmq = [p for p in em.vmq if p.tag != 'g']; em.cond_end()
            em.label(L)
            self.gmark = set(id(p) for p in em.vmq)
        def g_loads():
            em(f's_mov_b64 exec, {sX0}'); self.wsload(v(G, 4), ga, sLine, l * 256 * MSG_B, tag='g')
            em(f's_mov_b64 exec, {sX1}'); self.wsload(v(G + 4, 4), ga, sLine, l * 256 * MSG_B + 8 * MSG_B, tag='g')
            em('s_mov_b64 exec, -1')
        def g_check():
            em(f'v_xor_b32 {A0}, {v(G)}, {tg}')
            for r in (3, 4, 7): em(f'v_bitop3_b32 {A0}, {v(G+r)}, {tg}, {A0} bitop3:0xbe')
            em(f'v_and_b32 {A0}, 0xff, {A0}'); em(f'v_cmp_ne_u32 vcc, 0, {A0}')
        def g_finish():
            for r in (0, 2): em(f'v_pk_add_f32 {v(G+r,2)}, {v(G+r,2)}, {v(G+4+r,2)}')
            for r in range(4): em(f'v_add_f32_dpp {v(G+r)}, {v(G+r)}, {v(G+r)} row_ror:8 {DPPM}')
            em(f'v_permlane16_swap_b32 {v(G)}, {v(G+1)}'); em(f'v_permlane16_swap_b32 {v(G+2)}, {v(G+3)}')
            em(f'v_add_f32 {v(G)}, {v(G)}, {v(G+1)}'); em(f'v_add_f32 {v(G+2)}, {v(G+2)}, {v(G+3)}')
            em(f'v_permlane32_swap_b32 {v(G)}, {v(G+2)}'); em(f'v_add_f32 {v(G)}, {v(G)}, {v(G+2)}')
            em(f'v_mul_f32 {v(G)}, {sFac}, {v(G)}'); em(f'v_mov_b32 {v(G+1)}, {v(G)}')
            em(f'v_permlane16_swap_b32 {v(G)}, {v(G+1)}'); em(f'v_cvt_pk_bf16_f32 {v(G)}, {v(G)}, {v(G+1)}')
            if o.rep8:
                for k in range(2): self.wsstore(v(G), u, sKTo, (l * 8 + k * 4) * KC, width=1, sc=' sc1', tag='kt')
            else:
                em('s_mov_b32 exec_lo, 0xff'); em('s_mov_b32 exec_hi, 0xff')
                self.wsstore(v(G), u, sKTo, l * 0x8000, width=1, sc=' sc1', tag='kt')
            em('s_mov_b64 exec, -1')
            em(f's_mov_b32 {sOK}, 1')
        def first():
            for r in range(4): em(f'v_mov_b32 {v(G+r)}, {v(M+r)}'); em(f'v_mov_b32 {v(G+4+r)}, {v(M+r)}')
            g_loads()
        def attempt():
            em.force_wait(vm=len([p for p in em.vmq if id(p) not in self.gmark]))
            g_check()
            L = em.newlabel('La'); E2 = em.newlabel('Lb')
            em(f's_cbranch_vccnz {L}')
            em.cond_begin(); g_finish(); em.cond_end()
            em(f's_branch {E2}')
            em.label(L)
            g_loads()
            em.label(E2)
        em(f's_xor_b32 {sOK}, {sRed}, 1')
        if_pending(first)
        self.ts('msg')
        side = Side(em)
        if l == 0: side.add(*self.cs_read_items(['q'], V))
        self.p1_bg(l, side)
        def fillq(ks):
            if ks == o.gstep: if_pending(attempt)
            return o.fill_p1
        self.pass1(self.pl['q'], Q, side, fillq)
        self.emit(self.corr_items('q', Q, False))
        side.flush()
        if self.lin:
            self.lin = False
            em(f'v_lshlrev_b32 {v(TMP)}, 8, {vHi}')
            for i in range(3): em(f'v_sub_u32 {vTr[i]}, {vTr[i]}, {v(TMP)}')
        self.barrier()
        self.ts('qpass')
        if o.gstep >= 32 or o.att2: if_pending(attempt)
        self.p1_after_q(l)
        self.emit(self.phi_items(Q, vRl, True, E))
        self.wsstore(v(Q, 4), vL16, sQst, 0); self.wsstore(v(Q + 4, 4), vL16, sQst, 0, off=1024)
        if o.rstpos == 1 and l == 0 and not o.rste: self.emit(self.reset_items(ACC + 8, o.rst1))
        self.kt_addr()
        if not o.ts2: self.ts('qst')
        def loop():
            L = em.newlabel('Lg'); D = em.newlabel('Lgd')
            em.force_wait(vm=len([p for p in em.vmq if id(p) not in self.gmark]))
            em.label(L)
            g_check()
            em(f's_cbranch_vccz {D}')
            em.cond_begin(); g_loads(); em.force_wait(vm=0); em.cond_end()
            self.spin_tail(L)
            em.label(D)
            g_finish()
            em.force_wait(vm=2 if o.rep8 else 1)
            em('s_mov_b64 exec, 1')
            em(f'v_mov_b32 {A0}, {sNonce}'); em(f's_add_u32 {sT2}, {sFlag}, {4*l*4096}')
            em(f'buffer_store_dword {A0}, off, {SWS}, {sT2}' + self.sc)
            em('s_mov_b64 exec, -1')
            em(f's_mov_b32 {sOK}, 0')
        if_pending(loop)
        if not o.ts2: self.ts('kvpoll')
        def cs_reduce():
            L0 = em.newlabel('Lc'); L = em.newlabel('Lc'); D = em.newlabel('Lc')
            em(f's_cmp_ge_u32 {sCsp}, 3'); em(f's_cbranch_scc1 {L0}')
            em.cond_begin()
            em(f's_lshl_b32 {sR}, {sCsp}, 7'); em(f's_add_u32 {sR}, {sR}, {sJmsg}')
            em.label(L)
            self.wsload(v(G, 4), ga, sR, 2176); self.wsload(v(G + 4, 4), ga, sR, 2176 + 8 * MSG_B)
            em(f'v_xor_b32 {A0}, {v(G)}, {tg}')
            for r in range(1, 8): em(f'v_bitop3_b32 {A0}, {v(G+r)}, {tg}, {A0} bitop3:0xbe')
            em(f'v_and_b32 {A0}, 0xff, {A0}'); em(f'v_cmp_ne_u32 vcc, 0, {A0}')
            em(f's_cbranch_vccz {D}')
            self.spin_tail(L)
            em.label(D)
            for r in (0, 2): em(f'v_pk_add_f32 {v(G+r,2)}, {v(G+r,2)}, {v(G+4+r,2)}')
            for r in range(4): em(f'v_add_f32_dpp {v(G+r)}, {v(G+r)}, {v(G+r)} row_ror:8 {DPPM}')
            em(f'v_permlane16_swap_b32 {v(G)}, {v(G+1)}'); em(f'v_permlane16_swap_b32 {v(G+2)}, {v(G+3)}')
            em(f'v_add_f32 {v(G)}, {v(G)}, {v(G+1)}'); em(f'v_add_f32 {v(G+2)}, {v(G+2)}, {v(G+3)}')
            em(f'v_permlane32_swap_b32 {v(G)}, {v(G+2)}'); em(f'v_add_f32 {v(G)}, {v(G)}, {v(G+2)}')
            em(f'v_cvt_pk_bf16_f32 {v(G+1)}, {v(G)}, {v(G)}'); em(f'v_lshlrev_b32 {v(G+1)}, 16, {v(G+1)}'); em(f'v_sub_f32 {v(G+1)}, {v(G)}, {v(G+1)}')
            em(f'v_cvt_pk_bf16_f32 {v(G)}, {v(G)}, {v(G+1)}')
            em(f'v_and_b32 {v(G+1)}, 7, {vLane}'); em(f'v_lshlrev_b32 {v(G+1)}, 4, {v(G+1)}'); em(f'v_lshrrev_b32 {v(G+2)}, 4, {vLane}'); em(f'v_lshl_add_u32 {v(G+1)}, {v(G+2)}, 2, {v(G+1)}')
            em(f's_mul_i32 {sT2}, {sJ}, 384'); em(f's_lshl_b32 {sR}, {sCsp}, 7'); em(f's_add_u32 {sT2}, {sT2}, {sR}')
            em('s_mov_b32 exec_lo, 0x00ff00ff'); em('s_mov_b32 exec_hi, 0x00ff00ff')
            self.wsstore(v(G), v(G + 1), sT2, WS_CS, width=1, sc=' sc1', tag='kt')
            em('s_mov_b64 exec, -1')
            em.cond_end()
            em.label(L0)
        def touches():
            t = v(ACC + 8)
            self.retouch(0, t, v(ACC + 9))
            em('s_mov_b32 exec_hi, 0xffff')
            em(f'buffer_load_dword {v(ACC+10)}, {t}, {SWS}, {sHks} offen sc1', tag='touch')
            em(f'v_lshlrev_b32 {t}, 17, {vLane}')
            em(f's_lshl_b32 {sT2}, {sJ}, 2'); em(f's_add_u32 {sT2}, {sT2}, {sW}'); em(f's_lshl_b32 {sT2}, {sT2}, 7'); em(f's_add_u32 {sT2}, {sT2}, {sG8K}')
            em('s_mov_b64 exec, 7')
            em(f'buffer_load_dword {v(ACC+11)}, {t}, {SWS}, {sT2} offen sc1', tag='touch')
            em('s_mov_b64 exec, -1')
        def streams():
            self.p1_gap(l)
            n = o.share if l == 0 else o.share2
            for m in range(n): self.w1dma(0, m, 'w1a'); self.w1dma(1, m, 'w1a')
            self.w1_todo = list(range(n, 4)) + [m for m in self.w1_todo if m >= 4]
            if l == 0 and o.rste and o.tpos == 1: touches()
        if o.xorder & (1 << l):
            self.p2_hook = streams
            def mid():
                if l == 0: cs_reduce()
                if l == 0 and o.rste and o.tpos == 0: touches()
            return self.group_sync(4 * l + 0, mid=mid, bar=False, skipif=sOK, tags=None)
        self.p2_hook = None
        def mid():
            if l == 0: self.touch_at('g', None, v(ACC + 8))
            if l == 0: cs_reduce()
            if l == 0 and o.rste: touches()
            def l2w2():
                em(f'v_lshlrev_b32 {v(G)}, 7, {vLane}'); em(f's_lshr_b32 {sT2}, s2, 3'); em(f's_mul_i32 {sT2}, {sT2}, {344*128}')
                for k in range(6):
                    if k == 5: em('s_mov_b64 exec, 0xffffff')
                    em(f's_add_u32 {sT}, {sT2}, {k*8192}')
                    em(f'buffer_load_dword {v(G+1+k)}, {v(G)}, {SW2}, {sT} offen', tag='l2')
                    if o.thr2 and k >= o.thr2 - 1: em.force_wait(vm=o.thr2 - 1)
                em('s_mov_b64 exec, -1')
                em.vmq = [p for p in em.vmq if p.tag != 'l2']
            if l == 0 and o.tw2 == 1: self.only_wave(3, l2w2)
            self.p1_gap(l)
            if o.share:
                n = o.share if l == 0 else o.share2
                for m in range(n): self.w1dma(0, m, 'w1a'); self.w1dma(1, m, 'w1a')
                self.w1_todo = list(range(n, 4)) + [m for m in self.w1_todo if m >= 4]
            else: self.only_wave(3, lambda: self.p1_loader(l, 3))
            if l == 0 and o.tw2 == 2: self.only_wave(3, l2w2)
        self.group_sync(4 * l + 0, mid=mid, bar=False, skipif=sOK, tags=None)

    def exchange_c(self, l, mw, mr, gz, t16, tg, uz, x1, x2):
        em = self.em; o = self.o
        K, V, Q = ACC, ACC + 16, ACC + 32
        M = MR; G = MR; Z = K + 8; A0 = x1; A1 = x2; sOK = 's48'; IMG = 32 * 4096
        ga, uk, im = mw, mr, v(TMP + 3)
        moff = l * 256 * MSG_B; koff = l * 16 * KT_B
        def msg_out():
            for i in range(4): em(f'ds_read_b128 {v(M+4*i,4)}, {mr} offset:{i*4096}')
            em(f'v_lshrrev_b32 {A0}, 9, {t16}'); em(f'v_and_b32 {A1}, 511, {t16}'); em(f'v_lshl_add_u32 {A0}, {A0}, 10, {A1}')
            em(f's_cmp_eq_u32 {sW}, 2'); em(f's_cselect_b32 {sT2}, 512, 0'); em(f's_sub_u32 {sT2}, {IMG}, {sT2}'); em(f'v_add_u32 {A0}, {sT2}, {A0}')
            for r in (0, 2): em(f'v_pk_add_f32 {v(M+r,2)}, {v(M+r,2)}, {v(M+4+r,2)}')
            for r in (0, 2): em(f'v_pk_add_f32 {v(M+8+r,2)}, {v(M+8+r,2)}, {v(M+12+r,2)}')
            for r in (0, 2): em(f'v_pk_add_f32 {v(M+r,2)}, {v(M+r,2)}, {v(M+8+r,2)}')
            em(f'v_cmp_gt_u32 vcc, 2176, {t16}')
            for r in range(4): em(f'v_and_or_b32 {v(M+r)}, {v(M+r)}, {sMaskInv}, {tg}')
            em(f's_mul_i32 {sT2}, {sG}, {MSG_B}'); em(f's_add_u32 {sT2}, {sT2}, {sJmsg}')
            em('s_mov_b64 exec, vcc')
            self.wsstore(v(M, 4), t16, sT2, moff, sc=' sc1', tag='msg')
            em(f'ds_write_b128 {A0}, {v(M,4)}')
            em('s_mov_b64 exec, -1')
            em.wait_lg(0)
        self.only_wave(3, msg_out, invert=True)
        em(f'v_lshrrev_b32 {A0}, 4, {vLane}'); em(f'v_mul_u32_u24 {A0}, {MSG_B}, {A0}'); em(f'v_and_b32 {A1}, 15, {vLane}')
        em(f'v_lshl_add_u32 {ga}, {A1}, 4, {A0}'); em(f's_lshl_b32 {sT2}, {sW}, 9'); em(f'v_add_u32 {ga}, {sT2}, {ga}')
        em(f'v_lshlrev_b32 {uk}, 3, {A1}'); em(f'v_lshl_add_u32 {uk}, {vHi}, 2, {uk}')
        em(f'v_lshlrev_b32 {im}, 4, {A1}'); em(f's_add_u32 {sT2}, {sWl}, {IMG}'); em(f'v_add_u32 {im}, {sT2}, {im}')
        def w3(f): self.only_wave(3, f)
        def drop(): em.vmq = [p for p in em.vmq if p.tag != 'g']
        def g_loads():
            for s_ in range(4):
                em(f's_lshr_b32 {sR}, {sG}, 2'); em(f's_add_u32 {sR}, {sR}, {s_}'); em(f's_and_b32 {sR}, {sR}, 3'); em(f's_mul_i32 {sR}, {sR}, {4*MSG_B}')
                em(f's_add_u32 {sR}, {sR}, {sJmsg}'); em(f's_add_u32 {sR}, {sR}, {moff}')
                if s_ == 0: em(f's_mov_b64 exec, {sX0}')
                for k in range(2): em(f'buffer_load_dwordx4 {v(G+16*k+4*s_,4)}, {ga}, {SWS}, {sR} offen offset:{k*256} sc1', tag='g')
                if s_ == 0: em('s_mov_b64 exec, -1')
            def z():
                for s_ in range(2):
                    em(f's_lshr_b32 {sR}, {sG}, 3'); em(f's_xor_b32 {sR}, {sR}, {s_}'); em(f's_mul_i32 {sR}, {sR}, {8*MSG_B}'); em(f's_add_u32 {sR}, {sR}, {sJmsg}')
                    if s_ == 0: em(f's_mov_b64 exec, {sX1}')
                    self.wsload(v(Z + 4 * s_, 4), gz, sR, moff + 2048, tag='g')
                    if s_ == 0: em('s_mov_b64 exec, -1')
                drop()
            drop(); w3(z)
            self.gmark = set(id(p) for p in em.vmq)
        def own_fill():
            em(f's_not_b64 exec, {sX0}')
            for k in range(2): em(f'ds_read_b128 {v(G+16*k,4)}, {im} offset:{k*256}')
            em('s_mov_b64 exec, -1')
            def z():
                em(f'v_and_b32 {A0}, 7, {vLane}'); em(f'v_lshlrev_b32 {A0}, 4, {A0}'); em(f'v_add_u32 {A0}, {IMG + 3584:#x}, {A0}')
                em(f's_not_b64 exec, {sX1}')
                em(f'ds_read_b128 {v(Z,4)}, {A0}')
                em('s_mov_b64 exec, -1')
                em.wait_lg(0)
            w3(z)
        def g_check():
            em(f'v_xor_b32 {A0}, {v(G)}, {tg}'); em(f'v_xor_b32 {A1}, {v(G+3)}, {tg}')
            for q in range(1, 8):
                em(f'v_bitop3_b32 {A0}, {v(G+4*q)}, {tg}, {A0} bitop3:0xbe'); em(f'v_bitop3_b32 {A1}, {v(G+4*q+3)}, {tg}, {A1} bitop3:0xbe')
            def z():
                for r in (0, 4): em(f'v_bitop3_b32 {A0}, {v(Z+r)}, {tg}, {A0} bitop3:0xbe'); em(f'v_bitop3_b32 {A1}, {v(Z+r+3)}, {tg}, {A1} bitop3:0xbe')
            w3(z)
            em(f'v_or_b32 {A0}, {A0}, {A1}'); em(f'v_and_b32 {A0}, 0xff, {A0}'); em(f'v_cmp_ne_u32 vcc, 0, {A0}')
        def rows(B, scale):
            em(f'v_permlane16_swap_b32 {v(B)}, {v(B+1)}'); em(f'v_permlane16_swap_b32 {v(B+2)}, {v(B+3)}')
            em(f'v_add_f32 {v(B)}, {v(B)}, {v(B+1)}'); em(f'v_add_f32 {v(B+2)}, {v(B+2)}, {v(B+3)}')
            em(f'v_permlane32_swap_b32 {v(B)}, {v(B+2)}'); em(f'v_add_f32 {v(B)}, {v(B)}, {v(B+2)}')
            if scale: em(f'v_mul_f32 {v(B)}, {sLn2}, {v(B)}')
            em(f'v_mov_b32 {v(B+1)}, {v(B)}')
            em(f'v_permlane16_swap_b32 {v(B)}, {v(B+1)}'); em(f'v_cvt_pk_bf16_f32 {v(B)}, {v(B)}, {v(B+1)}')
        def g_finish():
            for k in range(2):
                B = G + 16 * k
                for r in (0, 2): em(f'v_pk_add_f32 {v(B+r,2)}, {v(B+r,2)}, {v(B+4+r,2)}')
                for r in (0, 2): em(f'v_pk_add_f32 {v(B+8+r,2)}, {v(B+8+r,2)}, {v(B+12+r,2)}')
            for k in range(2):
                B = G + 16 * k
                for r in (0, 2): em(f'v_pk_add_f32 {v(B+r,2)}, {v(B+r,2)}, {v(B+8+r,2)}')
            rows(G, True); rows(G + 16, True)
            em('s_mov_b32 exec_lo, 0xffff'); em('s_mov_b32 exec_hi, 0xffff')
            for k in range(2): self.wsstore(v(G + 16 * k), uk, sKTo, koff, width=1, off=k * 128, tag='kt')
            em('s_mov_b64 exec, -1')
            def z():
                for r in (0, 2): em(f'v_pk_add_f32 {v(Z+r,2)}, {v(Z+r,2)}, {v(Z+4+r,2)}')
                for r in range(4): em(f'v_add_f32_dpp {v(Z+r)}, {v(Z+r)}, {v(Z+r)} row_ror:8 {DPPM}')
                rows(Z, False)
                em('s_mov_b32 exec_lo, 0xff'); em('s_mov_b32 exec_hi, 0xff')
                self.wsstore(v(Z), uz, sLine, koff + 512, width=1, tag='kt')
                em('s_mov_b64 exec, -1')
            w3(z)
            em(f's_mov_b32 {sOK}, 1')
        def if_pending(f):
            L = em.newlabel('Lp')
            em(f's_cmp_lg_u32 {sOK}, 0'); em(f's_cbranch_scc1 {L}')
            em.cond_begin(); f(); drop(); em.cond_end()
            em.label(L)
            self.gmark = set(id(p) for p in em.vmq)
        def attempt():
            em.force_wait(vm=len([p for p in em.vmq if id(p) not in self.gmark]), lg=0)
            g_check()
            L = em.newlabel('La'); E2 = em.newlabel('Lb')
            em(f's_cbranch_vccnz {L}')
            em.cond_begin(); g_finish(); em.cond_end()
            em(f's_branch {E2}')
            em.label(L)
            g_loads()
            em.label(E2)
        def loop():
            L = em.newlabel('Lg'); D = em.newlabel('Lgd')
            em.force_wait(vm=len([p for p in em.vmq if id(p) not in self.gmark]))
            em.label(L)
            g_check()
            em(f's_cbranch_vccz {D}')
            em.cond_begin(); g_loads(); em.force_wait(vm=0); em.cond_end()
            self.spin_tail(L)
            em.label(D)
            g_finish()
        def kt_resets():
            em(f'v_mov_b32 {A0}, -1')
            em('s_mov_b32 exec_lo, 0xffff'); em('s_mov_b32 exec_hi, 0xffff')
            for ll in range(2):
                for k in range(2): self.wsstore(A0, uk, sKTo, ll * 16 * KT_B, width=1, off=k * 128, tag='rst')
            em('s_mov_b64 exec, -1')
            def z():
                em('s_mov_b32 exec_lo, 0xff'); em('s_mov_b32 exec_hi, 0xff')
                for ll in range(2): self.wsstore(A0, uz, sLine, ll * 16 * KT_B + 512, width=1, tag='rst')
                em('s_mov_b64 exec, -1')
            w3(z)
        em(f's_mov_b32 {sOK}, 0')
        if l == 0: kt_resets()
        if o.gfirst < 0: g_loads()
        self.ts('msg')
        side = Side(em)
        if l == 0: side.add(*self.cs_read_items(['q'], V))
        side.add(self.barrier, own_fill)
        self.p1_bg(l, side)
        def fillq(ks):
            if ks == o.gfirst: g_loads()
            if ks == o.gstep: if_pending(attempt)
            return o.fill_p1
        self.pass1(self.pl['q'], Q, side, fillq)
        self.emit(self.corr_items('q', Q, False))
        side.flush()
        if self.lin:
            self.lin = False
            em(f'v_lshlrev_b32 {v(TMP)}, 8, {vHi}')
            for i in range(3): em(f'v_sub_u32 {vTr[i]}, {vTr[i]}, {v(TMP)}')
        self.barrier()
        self.ts('qpass')
        if o.gstep >= 32 or o.att2: if_pending(attempt)
        self.p1_after_q(l)
        self.emit(self.phi_items(Q, vRl, True, BB))
        self.wsstore(v(Q, 4), vL16, sQst, 0); self.wsstore(v(Q + 4, 4), vL16, sQst, 0, off=1024)
        if l == 0: self.emit(self.reset_items(V, o.rst1))
        self.kt_addr()
        if not o.ts2: self.ts('qst')
        def cs_reduce():
            C = BB
            L0 = em.newlabel('Lc'); L = em.newlabel('Lc'); D = em.newlabel('Lc')
            em(f's_cmp_ge_u32 {sCsp}, 3'); em(f's_cbranch_scc1 {L0}')
            em.cond_begin()
            em(f's_lshl_b32 {sR}, {sCsp}, 7'); em(f's_add_u32 {sR}, {sR}, {sJmsg}')
            em.label(L)
            self.wsload(v(C, 4), gz, sR, 2176); self.wsload(v(C + 4, 4), gz, sR, 2176 + 8 * MSG_B)
            em(f'v_xor_b32 {A0}, {v(C)}, {tg}')
            for r in range(1, 8): em(f'v_bitop3_b32 {A0}, {v(C+r)}, {tg}, {A0} bitop3:0xbe')
            em(f'v_and_b32 {A0}, 0xff, {A0}'); em(f'v_cmp_ne_u32 vcc, 0, {A0}')
            em(f's_cbranch_vccz {D}')
            self.spin_tail(L)
            em.label(D)
            for r in (0, 2): em(f'v_pk_add_f32 {v(C+r,2)}, {v(C+r,2)}, {v(C+4+r,2)}')
            for r in range(4): em(f'v_add_f32_dpp {v(C+r)}, {v(C+r)}, {v(C+r)} row_ror:8 {DPPM}')
            em(f'v_permlane16_swap_b32 {v(C)}, {v(C+1)}'); em(f'v_permlane16_swap_b32 {v(C+2)}, {v(C+3)}')
            em(f'v_add_f32 {v(C)}, {v(C)}, {v(C+1)}'); em(f'v_add_f32 {v(C+2)}, {v(C+2)}, {v(C+3)}')
            em(f'v_permlane32_swap_b32 {v(C)}, {v(C+2)}'); em(f'v_add_f32 {v(C)}, {v(C)}, {v(C+2)}')
            em(f'v_cvt_pk_bf16_f32 {v(C+1)}, {v(C)}, {v(C)}'); em(f'v_lshlrev_b32 {v(C+1)}, 16, {v(C+1)}'); em(f'v_sub_f32 {v(C+1)}, {v(C)}, {v(C+1)}')
            em(f'v_cvt_pk_bf16_f32 {v(C)}, {v(C)}, {v(C+1)}')
            em(f'v_and_b32 {v(C+1)}, 7, {vLane}'); em(f'v_lshlrev_b32 {v(C+1)}, 4, {v(C+1)}'); em(f'v_lshrrev_b32 {v(C+2)}, 4, {vLane}'); em(f'v_lshl_add_u32 {v(C+1)}, {v(C+2)}, 2, {v(C+1)}')
            em(f's_mul_i32 {sT2}, {sJ}, 384'); em(f's_lshl_b32 {sR}, {sCsp}, 7'); em(f's_add_u32 {sT2}, {sT2}, {sR}')
            em('s_mov_b32 exec_lo, 0x00ff00ff'); em('s_mov_b32 exec_hi, 0x00ff00ff')
            self.wsstore(v(C), v(C + 1), sT2, WS_CS, width=1, sc=' sc1', tag='kt')
            em('s_mov_b64 exec, -1')
            em.cond_end()
            em.label(L0)
        def streams():
            self.p1_gap(l)
            n = o.share if l == 0 else o.share2
            for m in range(n): self.w1dma(0, m, 'w1a'); self.w1dma(1, m, 'w1a')
            self.w1_todo = list(range(n, 4)) + [m for m in self.w1_todo if m >= 4]
        def mid():
            self.gmark = set()
            if_pending(attempt)
            if not o.ts2: self.ts('kvpoll')
            if l == 0: cs_reduce()
            if o.xorder == 0: streams()
        self.group_sync(4 * l + 0, mid=mid, bar=False, tags=None, modeB=True)
        def after_q_loads():
            if_pending(loop)
            self.ts('gdone')
            if o.xorder == 1: streams()
        self.p2_hook = after_q_loads

    def w1dma(self, p, m, tag):
        if p != 1: self.rot(m, 64 * 2752, sW1c2 if p == 2 else sW1c0)
        if p == 1: self.em(f's_add_u32 {sR}, {sR}, {sW1d}')
        self.dma(SW1, vD1, sR, 0, self.w1pl[p][m], tag)

    def p1_bg(self, l, side):
        em = self.em; o = self.o
        self.w1pl = [[16, 17, 18, 19, 24, 25, 26, 27], [20, 21, 22, 23, 28, 29, 30, 31], list(range(32, 40))]
        pad = ['s_nop 0'] * o.bgpad
        if l == 0:
            def res():
                t = v(ACC + 22)
                em(f'v_lshrrev_b32 {t}, 2, {vLane}'); em(f's_lshl_b32 {sT2}, {sW}, 4'); em(f'v_add_u32 {t}, {sT2}, {t}'); em(f'v_lshlrev_b32 {t}, 10, {t}')
                em(f'v_and_b32 {v(ACC+23)}, 3, {vLane}'); em(f'v_lshl_add_u32 {t}, {v(ACC+23)}, 4, {t}')
                em(f'buffer_load_dwordx4 {a(RES,4)}, {t}, {SX}, {sOutRow} offen', tag='res')
                em(f'buffer_load_dwordx4 {a(RES+4,4)}, {t}, {SX}, {sOutRow} offen offset:64', tag='res')
            side.add(res)
            self.touch_at('q', side, v(ACC + 22))
            side.add(self.late_setup)
            for i in range(5): side.add(lambda i=i: self.stage_dma(SWO, i, self.stq[2 * i], self.stq[2 * i + 1], 'wo'), *pad)
            if o.rstpos == 0: side.add(*self.reset_items(ACC + 8, o.rst1))
            self.w1_todo = [4, 5, 6, 7]
        else:
            for m in range(4, 4 + o.w1_early): side.add(lambda m=m: (self.w1dma(0, m, 'w1a'), self.w1dma(1, m, 'w1a')), *pad)
            self.w1_todo = list(range(4 + o.w1_early, 8))

    def late_setup(self):
        em = self.em
        em(f's_sub_u32 {sW1d}, {sW1c2}, {sW1c0}')
        em(f's_add_u32 {sW1c2}, {sW1c0}, 64')
        if self.o.zpl: em(f's_cmp_lt_u32 {sJ}, 11'); em(f's_cselect_b32 {sW1c2}, {sW1c2}, 0x10000000')
        em(f's_lshl_b32 {sT2}, {sW}, 13'); em(f's_add_u32 {sT2}, {sT2}, {S_ADDR}'); em(f'v_add_u32 {vRW}, {sT2}, {vL16}')
        em(f's_lshr_b32 {sT}, {sW}, 1'); em(f's_lshl_b32 {sT2}, {sT}, 12'); em(f's_and_b32 {sR}, {sW}, 1'); em(f's_lshl_b32 {sR}, {sR}, 8')
        em(f's_add_u32 {sT2}, {sT2}, {sR}'); em(f's_add_u32 {sT2}, {sT2}, {S_ADDR}')
        em(f'v_lshl_add_u32 {vRR}, {vHi}, 10, {vP}'); em(f'v_add_u32 {vRR}, {sT2}, {vRR}')
        for m in range(8):
            em(f's_add_u32 {sXm[m]}, {sRot}, {m}'); em(f's_and_b32 {sXm[m]}, {sXm[m]}, 7'); em(f's_and_b32 {sR}, {sXm[m]}, 1')
            em(f's_lshl_b32 {sXm[m]}, {sXm[m]}, 1'); em(f's_add_u32 {sXm[m]}, {sXm[m]}, {sR}'); em(f's_lshl_b32 {sXm[m]}, {sXm[m]}, 11'); em(f's_xor_b32 {sXl[m]}, {sXm[m]}, 2048')
        for k in range(4):
            w0, w1_ = [sum(m << (5 * i) for i, m in enumerate(ORD4[c][6 * k:6 * k + 6])) for c in range(2)]
            em(f's_mov_b32 {sTab[k]}, {w0:#x}'); em(f's_cmp_eq_u32 {sT}, 0'); em(f's_cselect_b32 {sTab[k]}, {sTab[k]}, {w1_:#x}')

    def p1_after_q(self, l):
        if l == 0:
            for i in range(5, 8): self.stage_dma(SWO, i, self.stq[2 * i], self.stq[2 * i + 1], 'wo')

    def p1_gap(self, l):
        em = self.em; o = self.o
        if l == 0:
            em.wait_vm_tag('wo')
            for i in range(8): self.emit(self.stage_read_items(WOA, i, self.stq[2 * i], self.stq[2 * i + 1]))
            em.wait_lg(0)
            self.res_first()
            self.w2next = 0
            self.b1 = self.w2_batch(list(range(32, 40))[:2 * o.w2b1], 'w2a')
            for m in range(4, 4 + o.w1_gap): self.w1dma(0, m, 'w1a'); self.w1dma(1, m, 'w1a')
            self.w1_todo = list(range(4 + o.w1_gap, 8))
            if o.b1gap: self.emit(self.b1[0])

    def p1_loader(self, l, w):
        em = self.em; o = self.o
        vo = v(TMP)
        em(f'v_subrev_u32 {vo}, {w*16*2752}, {vD1}')
        for m in range(o.w1_solo):
            self.rot(m, 64 * 2752, sW1c0)
            for s in range(4):
                if s == 0: em(f's_add_u32 {sFx}, {sR}, {sW1d}')
                for p in range(2): self.dma(SW1, vo, sFx if p else sR, s * 16 * 2752, self.w1pl[p][m], 'solo', slot=s)
                if o.thr: em.force_wait(vm=o.thr)
        self.w1_todo = list(range(o.w1_solo, 4)) + [m for m in self.w1_todo if m >= 4]

    def w2_batch(self, quads, tag):
        steps = list(range(self.w2next, min(22, self.w2next + len(quads) // 2)))
        self.w2next += len(steps)
        issue = [lambda k=k, m=m: self.stage_dma(SW2, m, quads[2 * k], quads[2 * k + 1], tag) for k, m in enumerate(steps)]
        read = [lambda: self.em.wait_vm_tag(tag)] if steps else []
        for k, m in enumerate(steps): read += self.stage_read_items(W2A, m, quads[2 * k], quads[2 * k + 1])
        return issue, read

    def res_first(self):
        em = self.em
        t0, t1, t2 = v(TMP), v(TMP + 1), v(TMP + 2)
        em(f's_add_u32 {sT2}, {sWl}, {self.S}')
        em(f'v_add_u32 {t0}, {sT2}, {vL16}')
        em(f'v_and_b32 {t1}, 15, {vLane}'); em(f'v_lshlrev_b32 {t1}, 6, {t1}'); em(f'v_lshl_add_u32 {t1}, {vHi}, 5, {t1}')
        em(f'v_bfe_u32 {t2}, {vLane}, 4, 1'); em(f'v_lshl_add_u32 {t1}, {t2}, 3, {t1}'); em(f'v_add_u32 {t1}, {sT2}, {t1}')
        for h in range(2): em(f'ds_write_b128 {t0}, {a(RES+4*h,4)} offset:{h*4096}')
        em.wait_lg(0)
        for h in range(2):
            em(f'ds_read_b64 {a(RES+4*h,2)}, {t1} offset:{h*4096}'); em(f'ds_read_b64 {a(RES+4*h+2,2)}, {t1} offset:{h*4096+16}')
        em.wait_lg(0)
    def res_last_items(self, lds):
        t0, t1, t2 = v(TMP), v(TMP + 1), v(TMP + 2)
        it = [f'v_and_b32 {t0}, 15, {vLane}', f'v_mul_u32_u24 {t0}, 144, {t0}', f'v_lshl_add_u32 {t0}, {vHi}, 5, {t0}',
              f'v_bfe_u32 {t1}, {vLane}, 4, 1', f'v_lshl_add_u32 {t0}, {t1}, 3, {t0}',
              f's_mul_i32 {sT2}, {sW}, {16*144}', f's_add_u32 {sT2}, {sT2}, {lds}', f'v_add_u32 {t0}, {sT2}, {t0}',
              f'v_lshrrev_b32 {t1}, 3, {vLane}', f'v_mul_u32_u24 {t1}, 144, {t1}', f'v_and_b32 {t2}, 7, {vLane}', f'v_lshl_add_u32 {t1}, {t2}, 4, {t1}',
              f's_mul_i32 {sT2}, {sW}, {8*144}', f's_add_u32 {sT2}, {sT2}, {lds}', f'v_add_u32 {t1}, {sT2}, {t1}']
        for c in range(2):
            it += [f'ds_write_b64 {t0}, {a(RES+4*c,2)} offset:{c*64}', f'ds_write_b64 {t0}, {a(RES+4*c+2,2)} offset:{c*64+16}']
        it2 = [f'ds_read_b128 {a(RES+4*h,4)}, {t1} offset:{h*32*144}' for h in range(2)]
        return it, it2
    def kt_addr(self):
        em = self.em
        t0, t1, t2 = v(TMP + 1), v(TMP + 2), v(TMP + 3)
        em(f'v_and_b32 {t0}, 15, {vLane}'); em(f'v_lshlrev_b32 {t0}, 4, {t0}'); em(f'v_lshl_add_u32 {t0}, {vHi}, 8, {t0}')
        em(f'v_lshlrev_b32 {t1}, 4, {vHi}'); em(f'v_add_u32 {t1}, 512, {t1}'); em(f'v_and_b32 {t2}, 16, {vLane}'); em(f'v_cmp_ne_u32 vcc, 0, {t2}')
        em(f'v_cndmask_b32 {t0}, {t0}, {t1}, vcc'); em(f's_mul_i32 {sT2}, {sW}, 544'); em(f'v_add_u32 {v(vKT)}, {sT2}, {t0}')
        if self.o.rep8: em(f's_and_b32 {sT2}, s2, 7'); em(f's_mul_i32 {sT2}, {sT2}, {KC}'); em(f'v_add_u32 {v(vKT)}, {sT2}, {v(vKT)}')
    def final_addr_items(self):
        t0, t1, t2 = v(20), v(21), v(MR)
        it = [f's_lshl_b32 {sT2}, {sW}, 13', f's_add_u32 {sT2}, {sT2}, {self.S}', f'v_add_u32 {v(FW)}, {sT2}, {vL16}']
        it += [f'v_xor_b32 {v(FW+i)}, {64*i}, {v(FW)}' for i in range(1, 4)]
        it += [f'v_and_b32 {t1}, 7, {vLane}', f's_lshl_b32 {sT2}, {sW}, 3', f'v_add_u32 {t0}, {sT2}, {t1}',
               f'v_lshrrev_b32 {t2}, 3, {vLane}', f'v_lshlrev_b32 {v(FB)}, 2, {t2}', f'v_lshlrev_b32 {v(FS)}, 9, {t2}', f'v_lshl_add_u32 {v(FS)}, {t0}, 4, {v(FS)}',
               f's_lshl_b32 {sT2}, {sW}, 3', f'v_add_u32 {t0}, {sT2}, {t2}',
               f'v_lshlrev_b32 {v(FO)}, 10, {t0}', f'v_lshl_add_u32 {v(FO)}, {t1}, 4, {v(FO)}',
               f'v_and_b32 {t2}, 3, {vLane}', f'v_lshlrev_b32 {t2}, 2, {t2}', f'v_xor_b32 {t2}, {t2}, {t0}', f'v_lshlrev_b32 {t2}, 4, {t2}',
               f'v_lshl_add_u32 {v(FR)}, {t1}, 10, {t2}', f'v_add_u32 {v(FR)}, {self.S:#x}, {v(FR)}']
        return it

    def unpack_items(self, half, U):
        it = [f'v_accvgpr_read_b32 {v(U+2*r+1)}, {a(RES+4*half+r)}' for r in range(4)]
        for r in range(4):
            it += [f'v_lshlrev_b32 {v(U+2*r)}, 16, {v(U+2*r+1)}', f'v_and_b32 {v(U+2*r+1)}, 0xffff0000, {v(U+2*r+1)}']
        return it
    def reduce_items(self, half, acc0, acc1, R, U, rs, xoff, sti, final, unpack, after_store=()):
        em = self.em
        it = []
        for c in range(8):
            src = v((acc0 if c < 4 else acc1) + 4 * (c & 3), 4)
            it.append(f'ds_write_b128 {v(FW + (c & 3)) if final else vRW}, {src} offset:{c*1024}')
        it.append(self.barrier)
        o2 = 512 if final else 1024; rd = v(FR) if final else vRR
        for w in range(4):
            it.append(f'ds_read_b128 {v(R+8*w,4)}, {rd} offset:{w*8192}'); it.append(f'ds_read_b128 {v(R+8*w+4,4)}, {rd} offset:{w*8192+o2}')
        if unpack: it += self.unpack_items(half, U)
        add = lambda d, s_: [f'v_pk_add_f32 {v(d+r,2)}, {v(d+r,2)}, {v(s_+r,2)}' for r in range(0, 8, 2)]
        if rs is None: it += add(R, U)
        it += add(R, R + 8) + add(R + 16, R + 24) + add(R, R + 16)
        if rs is not None: it += [f'v_pk_fma_f32 {v(R+r,2)}, {v(R+r,2)}, {v(rs,2)}, {v(U+r,2)} op_sel_hi:[1,0,1]' for r in range(0, 8, 2)]
        P = R + 8
        for r in range(4): it.append(f'v_cvt_pk_bf16_f32 {v(P+r)}, {v(R+2*r)}, {v(R+2*r+1)}')
        if final:
            def st():
                em(f's_add_u32 {sT}, {sOutRow}, {half*32768}')
                em(f'buffer_store_dwordx4 {v(P,4)}, {v(FO)}, {SOUT}, {sT} offen' + self.o.outsc, tag='st')
            it.append(st)
            return it
        it += [f'v_accvgpr_write_b32 {a(RES+4*half)}, {v(P)}', f'v_and_b32 {v(P)}, -2, {v(P)}' if sti == 1 else f'v_or_b32 {v(P)}, 1, {v(P)}']
        def stx():
            em(f's_and_b32 {sT}, {sJ}, 1'); em(f's_xor_b32 {sT}, {sT}, {half}'); em(f's_lshl_b32 {sT}, {sT}, 11'); em(f's_add_u32 {sT}, {sT}, {sXst}')
            em(f'buffer_store_dwordx4 {v(P,4)}, {vP}, {SWS}, {sT} offen' + self.sc, tag='st')
        it.append(stx)
        it += list(after_store)
        S, Q = AUX, AUX + 2
        if half == 0:
            it += [f'v_pk_add_f32 {v(S,2)}, {v(R,2)}, {v(R+2,2)}', f'v_pk_mul_f32 {v(Q,2)}, {v(R,2)}, {v(R,2)}', f'v_pk_fma_f32 {v(Q,2)}, {v(R+2,2)}, {v(R+2,2)}, {v(Q,2)}']
        for r in ((4, 6) if half == 0 else (0, 2, 4, 6)):
            it += [f'v_pk_add_f32 {v(S,2)}, {v(S,2)}, {v(R+r,2)}', f'v_pk_fma_f32 {v(Q,2)}, {v(R+r,2)}, {v(R+r,2)}, {v(Q,2)}']
        it += [f'v_accvgpr_write_b32 {a(RES+4*half+r)}, {v(P+r)}' for r in range(1, 4)]
        if half == 1:
            T = v(S + 1)
            it += [f'v_add_f32 {v(S)}, {v(S)}, {v(S+1)}', f'v_add_f32 {v(Q)}, {v(Q)}, {v(Q+1)}', f'v_and_b32 {v(Q+1)}, 512, {vP}', f'v_add_u32 {v(Q+1)}, {v(Q+1)}, {vP}',
                   f'v_permlane16_swap_b32 {v(S)}, {v(Q)}', f'v_add_f32 {v(S)}, {v(S)}, {v(Q)}', f'v_mov_b32 {T}, {v(S)}', f'v_permlane32_swap_b32 {v(S)}, {T}', f'v_add_f32 {v(S)}, {v(S)}, {T}',
                   f'v_or_b32 {v(S)}, 1, {v(S)}']
            def st2():
                em('s_mov_b32 exec_hi, 0')
                self.wsstore(v(S), v(Q + 1), sStst, sti * 16 * 8192, width=1)
                em('s_mov_b64 exec, -1')
            it.append(st2)
        return it

    def two_halves(self, mfs, A, rs, xoff, sti, pre_wait=None):
        em = self.em; o = self.o
        r0 = self.reduce_items(0, A[0][0], A[1][0], MR, BB, rs, xoff, sti, False, False)
        r1 = self.reduce_items(1, A[0][1], A[1][1], MR, BB + 8, rs, xoff, sti, False, False)
        W0, RD0, V0 = r0[:8], r0[9:17], r0[17:]
        W1, RD1, V1 = r1[:8], r1[9:17], r1[17:]
        fill = self.unpack_items(0, BB) + self.unpack_items(1, BB + 8)
        mfs = list(mfs)
        nA = len(mfs) - o.mfB
        wq = list(W0)
        for k in range(nA):
            mfs.pop(0)()
            if wq and (k * 8 >= (8 - len(wq)) * nA - 4): em(wq.pop(0))
            for t in fill[:3]: em(t)
            fill = fill[3:]
        self.emit(wq + fill)
        self.barrier()
        for k, t in enumerate(RD0):
            em(t)
            if k % 3 == 1 and mfs: mfs.pop(0)()
        self.emit(mfs)
        na = 12 if rs is None else 8
        self.emit(V0[:na]); V0 = V0[na:]
        if pre_wait: pre_wait()
        self.barrier()
        self.ts('h0')
        pf = [lambda: self.x_prefetch(xoff, 0, 0)] + [lambda i=i: self.xld(i) for i in range(o.pre)]
        n0 = o.pf0
        for k, t in enumerate(W1):
            em(t)
            self.emit(V0[:4]); V0 = V0[4:]
            if k >= 8 - n0: self.emit(pf[:2 if len(pf) == o.pre + 1 else 1]); pf = pf[2 if len(pf) == o.pre + 1 else 1:]
        self.emit(V0)
        self.barrier()
        self.emit(RD1)
        self.emit(pf[:o.pf1 + (1 if len(pf) == o.pre + 1 else 0)]); pf = pf[o.pf1 + (1 if len(pf) == o.pre + 1 else 0):]
        ks = [k for k, t in enumerate(V1) if callable(t)][0]
        self.emit(V1[:ks + 1]); V1 = V1[ks + 1:]
        while pf or V1:
            self.emit(V1[:3]); V1 = V1[3:]
            self.emit(pf[:1]); pf = pf[1:]

    def p2(self, l):
        em = self.em; o = self.o
        KT, QF = AF, AF + 32
        A = [[ACC, ACC + 32], [ACC + 16, 232]]
        DB = [MR, MR + 16, BB]
        def rot2(i, stride, base):
            em(f's_add_u32 {sR}, {sRot2}, {i}'); em(f's_and_b32 {sR}, {sR}, 7'); em(f's_mul_i32 {sR}, {sR}, {stride}')
            if base: em(f's_add_u32 {sR}, {sR}, {base}')
        KB = lambda i: (ACC + 32 + 4 * i) if i < 4 else (232 + 4 * (i - 4))
        KA = lambda i: KT + 4 * i
        def ldk(i, B=KA):
            rot2(i, 2176, sRed if o.xc else None)
            self.wsload(v(B(i), 4), v(vKT), sR, l * 16 * KT_B if o.xc else (WS_KT8 + l * 8 * KC if o.rep8 else WS_KT + l * 0x8000), tag='K')
        def ldq(n): rot2(n % 8, 4096, sQR); self.wsload(v(QF + 4 * n, 4), vL16, sR, (n // 8) * 32768, tag='A')
        ck = v(TMP + 2)
        def kchk(B):
            em(f'v_max_u32 {ck}, {v(B(0))}, {v(B(0)+1)}')
            for i in range(1, 16): em(f'v_max3_u32 {ck}, {v(B(i//2)+2*(i%2))}, {v(B(i//2)+2*(i%2)+1)}, {ck}')
            em(f'v_cmp_eq_u32 vcc, -1, {ck}')
        L = em.newlabel('Lk'); D = em.newlabel('Lkd'); C = em.newlabel('Lkc')
        if o.kdual:
            for i in range(8): ldk(i)
            for n in range(16): ldq(n)
            for i in range(8): ldk(i, KB)
            em.wait_vm(8)
            em.vmq = []
            em.label(L)
            kchk(KA); em(f's_cbranch_vccz {D}')
            for i in range(8): ldk(i)
            em.force_wait(vm=8); em.vmq = []
            kchk(KB); em(f's_cbranch_vccz {C}')
            for i in range(8): ldk(i, KB)
            em.force_wait(vm=8); em.vmq = []
            self.spin_tail(L)
            em.label(C)
            for r in range(0, 32, 2): em(f'v_pk_mov_b32 {v(KT+r,2)}, {v(KB(r//4)+r%4,2)}, {v(KB(r//4)+r%4,2)} op_sel:[0,1]')
            em.label(D)
        else:
            if o.kfirst and not o.xc:
                for i in range(8): ldk(i)
            for n in range(16): ldq(n)
            if self.p2_hook: self.p2_hook()
            if not o.kfirst or o.xc:
                for i in range(8): ldk(i)
            if l == 0: self.touch_at('p', None, v(254))
            if l == 0 and o.w2b1b:
                assert not (o.xorder & 1)
                self.emit(self.b1[1])
                self.b1 = self.w2_batch(list(range(32, 40))[:2 * o.w2b1b], 'w2f')
            em.label(L)
            kchk(KA)
            em(f's_cbranch_vccz {D}')
            em.cond_begin()
            for i in range(8): ldk(i)
            em.force_wait(vm=0)
            em.cond_end()
            self.spin_tail(L)
            em.label(D)
        self.ts('kt')
        side = Side(em)
        def attn(n): em(f'{MF} {v(DB[n%3],16)}, {v(KT+4*(n%8),4)}, {v(QF+4*n,4)}, 0')
        def post(n):
            D = DB[n % 3]; O = QF + 4 * n; rc = v(D + 8)
            it = [f'v_add_f32 {rc}, {s1em6}, {rc}', f'v_rcp_f32 {rc}, {rc}']
            it += [f'v_mul_f32 {v(D+r)}, {v(D+r)}, {rc}' for r in range(8)]
            it += [f'v_cvt_pk_bf16_f32 {v(O+r)}, {v(D+2*r)}, {v(D+2*r+1)}' for r in range(4)]
            return it
        def wo(n, c):
            h, i = divmod(n, 8)
            cc = v(A[h][c], 16)
            em(f'{MF} {cc}, {a(WOA + i*8 + c*4, 4)}, {v(QF+4*n,4)}, ' + ('0' if i == 0 else cc))
        attn(0); attn(1)
        self.p2_bg(l, side)
        side.run(2)
        E1 = o.early1
        if o.p2pipe:
            self.emit(post(0)[:2] + post(1)[:2] + post(0)[2:])
            for n in range(16):
                nxt = post(n + 1)[2:] if n + 1 < 16 else []
                if n + 2 < 16: attn(n + 2)
                for t in nxt[:o.p2a]: em(t)
                wo(n, 0)
                for t in nxt[o.p2a:]: em(t)
                side.clk(o.gap2)
                if n + 2 < 16: self.emit(post(n + 2)[:2])
        else:
            self.emit(post(0))
            for n in range(16):
                nxt = post(n + 1) if n + 1 < 16 else []
                if n + 2 < 16: attn(n + 2)
                if nxt: em(nxt[0]); em(nxt[1])
                side.clk(o.gap2)
                for t in nxt[2:8]: em(t)
                wo(n, 0)
                for t in nxt[8:11]: em(t)
                if n < E1: wo(n, 1)
                for t in nxt[11:]: em(t)
        side.flush()
        if o.kdual:
            assert E1 == 0
            em.force_wait(vm=len(em.vmq))
        self.ts('p2loop')
        xoff = 0; sti = 2 * l
        pre = (self.b1[1] + [self.barrier]) if l == 0 else []
        self.emit(pre)
        pw = (lambda: em.force_wait(vm=0)) if (l == 0 and 'h' not in o.rst1) else None
        self.two_halves([lambda n=n: wo(n, 1) for n in range(E1, 16)], A, None, xoff, sti, pw)
        self.p2_tail(l)

    def p2_bg(self, l, side):
        em = self.em
        if self.o.cpf2 & (1 if l == 0 else 4): side.add(lambda: self.code_pf(v(248, 4), v(252)))
        if self.o.retouch: side.add(lambda: self.retouch(0, v(254), v(254)))
        if l == 0:
            if 'h' not in self.o.rst1: side.add(*self.reset_items(248, 'h'))
            side.add(lambda: self.cs_loads(em))
            if self.o.w2b1b: side.add(lambda: em.wait_lg(0)); side.add(*self.b1[0])
        for m in self.w1_todo: side.add(lambda m=m: (self.w1dma(0, m, 'w1a'), self.w1dma(1, m, 'w1a')))
        if l == 0: self.touch_at('s', side, v(254))
        if l == 1:
            for m in range(8): side.add(lambda m=m: self.w1dma(2, m, 'w1a'))
    def retouch(self, off, vt, dst):
        em = self.em
        em(f'v_lshlrev_b32 {vt}, 7, {vLane}')
        em(f's_and_b32 {sT2}, {sW}, 1'); em(f's_mul_i32 {sT2}, {sT2}, 1792'); em(f's_add_u32 {sT2}, {sT2}, {sXst}'); em(f's_add_u32 {sT2}, {sT2}, {off}')
        em('s_mov_b64 exec, 0xffff')
        em(f'buffer_load_dword {dst}, {vt}, {SWS}, {sT2} offen sc1', tag='touch')
        em('s_mov_b64 exec, -1')
    def touch_xh(self, which, vt, dst):
        em = self.em
        if which == 'x':
            self.retouch(0, vt, dst[0])
            em(f'v_lshlrev_b32 {vt}, 17, {vLane}')
            em(f's_lshl_b32 {sT2}, {sJ}, 2'); em(f's_add_u32 {sT2}, {sT2}, {sW}'); em(f's_lshl_b32 {sT2}, {sT2}, 7'); em(f's_add_u32 {sT2}, {sT2}, {sG8K}')
            em('s_mov_b64 exec, 7')
            em(f'buffer_load_dword {dst[1]}, {vt}, {SWS}, {sT2} offen sc1', tag='touch')
        else:
            em(f'v_lshlrev_b32 {vt}, 7, {vLane}')
            em('s_mov_b64 exec, 0xffff')
            em(f's_add_u32 {sT2}, {sHks}, {int(which) * 2048}')
            em(f'buffer_load_dword {dst[0]}, {vt}, {SWS}, {sT2} offen sc1', tag='touch')
        em('s_mov_b64 exec, -1')
    def touch_at(self, pos, side, vt):
        for k, which in enumerate(('x', '0', '1', '2')):
            if self.o.tpl.split(',')[k] == pos:
                f = lambda which=which, k=k: self.touch_xh(which, vt, [a(104 + 2 * k), a(105 + 2 * k)])
                side.add(f) if side is not None else f()
    def code_pf(self, dst, vt):
        em = self.em
        L = em.newlabel('Lpc')
        end = 'L_slow' if not self.sc else 'L_codeend'
        em(f's_getpc_b64 {sEx}'); em.label(L)
        em(f's_lshr_b32 {sT}, s2, 3'); em(f's_lshl_b32 {sT}, {sT}, 2'); em(f's_add_u32 {sT}, {sT}, {sW}'); em(f's_lshl_b32 {sT}, {sT}, 10')
        em(f's_min_u32 {sT}, {sT}, {end}-{L}-1024')
        em(f'v_add_u32 {vt}, {sT}, {vL16}')
        em(f'global_load_dwordx4 {dst}, {vt}, {sEx}', tag='touch')
    def cs_loads(self, e):
        e(f'v_and_b32 {v(255)}, 31, {vLane}'); e(f'v_lshlrev_b32 {v(255)}, 2, {v(255)}'); e(f's_mul_i32 {sFx}, {sJ}, 384'); e(f's_add_u32 {sFx}, {sFx}, {WS_CS}')
        for p in range(3): e(f'buffer_load_dword {CS[p]}, {v(255)}, {SWS}, {sFx} offen offset:{(0, 256, 128)[p]} sc1', tag='cs')

    def p2_tail(self, l):
        em = self.em; o = self.o
        if l == 0: self.check([CS[0], CS[1], CS[2], CS[2]], self.cs_loads, v(TMP))
        em.wait_vm_tag('w1a')
        self.barrier()
        if l == 0 and not o.p2late:
            for m in range(8): self.w1dma(2, m, 'w1c')
        self.ts(f'end{4*l+1}')

    def hld(self, n, final, e=None):
        e = e or self.em
        st, h = (n % 22, n // 22) if final else (n // 2, n % 2)
        if st == 21: so = sLim4
        else: self.tab4(st, sFx, 12, e); so = sFx
        r = e(f'buffer_load_dwordx4 {v(AF + 4 * (n % 24), 4)}, {v(32 + h)}, {SWS}, {so} offen sc1', tag='A')
        if r is not None: self.ldidx[id(r)] = n
    def p3(self, l):
        em = self.em; o = self.o
        ld, chk = self.a_loader(o.pre, 2 * l, sTxn)
        side = Side(em)
        side.add(*self.aux_const_items())
        if l == 1: rl_w, rl_r = self.res_last_items(8 * 4096); side.add(*rl_w)
        def ld2(i):
            ld(i)
            if i == o.statstep: side.add(*self.stats_T_items(False, 2 * l))
            if l == 0 and o.p2late and o.p2late <= i < o.p2late + 8: self.w1dma(2, i - o.p2late, 'w1c')
            if l == 0 and i == 26:
                side.add(self.barrier)
                self.b2 = self.w2_batch(list(range(16, 24))[:2 * o.w2b2], 'w2b')
                side.add(*self.b2[0])
        self.pass2(XORD, self.w1pl[:2], [ACC, ACC + 16], False, side, lambda i: 1 if i < o.statstep else o.fill2, loader=ld2, extra=chk,
                   third=(self.w1pl[2], ACC + 32, o.n3) if (l == 1 and o.n3) else None)
        side.flush()
        self.emit(self.corr_items(0, ACC, False)); self.emit(self.corr_items(1, ACC + 16, False))
        if l == 0: em.wait_vm_tag('w1c')
        self.barrier()
        if l == 1: self.emit(rl_r)
        self.ts('p3a')
        def epi(p):
            A = ACC + 16 * p
            it = [f'v_cvt_pk_bf16_f32 {v(A+r)}, {v(A+2*r)}, {v(A+2*r+1)}' for r in range(8)]
            it += [f'v_pk_max_i16 {v(A+r)}, {v(A+r)}, 0' for r in range(8)]
            if l == 0: it += [f'v_or_b32 {v(A+r)}, 0x80000000, {v(A+r)}' for r in (0, 4)]
            return it
        def st(p):
            A = ACC + 16 * p
            if p == 1:
                em(f's_lshl_b32 {sT2}, {sW1d}, 5'); em(f's_add_u32 {sT2}, {sT2}, {sHks}')
                self.wsstore(v(A, 4), vL16, sT2, 0); self.wsstore(v(A + 4, 4), vL16, sT2, 0, off=1024)
            else: self.wsstore(v(A, 4), vL16, sHks, p * 1024); self.wsstore(v(A + 4, 4), vL16, sHks, p * 1024, off=1024)
        side.add(*(epi(0) + [lambda: st(0)] + epi(1) + [lambda: st(1)]))
        side.add(f'v_add_u32 {v(32)}, {sHR}, {vL16}', f'v_add_u32 {v(33)}, {H_T}, {v(32)}')
        if l == 0:
            self.b3 = self.w2_batch(list(range(24, 32))[:2 * o.w2b3], 'w2c')
            side.add(*self.b3[0])
            side.add(*self.b2[1]); side.add(lambda: em.wait_lg(0))
            self.b3b = self.w2_batch(list(range(16, 24))[:2 * o.w2b3b], 'w2e')
            side.add(*self.b3b[0])
        else: side.add(*self.final_addr_items())
        if l == 1 and o.n3:
            rest = XORD[o.n3:]
            hn = [0]
            def fill(i):
                if i >= o.hpf3:
                    if i == o.hpf3: side.flush()
                    while hn[0] < o.pre4 and hn[0] < (i - o.hpf3 + 1) * o.hper and (hn[0] not in rest[i + 1:]): self.hld(hn[0], True); hn[0] += 1
                return o.fill3 if i >= 1 else 0
            self.pass1(self.w1pl[2], ACC + 32, side, fill, rest)
            while hn[0] < o.pre4: self.hld(hn[0], True); hn[0] += 1
        else:
            def fill(ks):
                if ks == o.hpf: side.flush()
                if ks >= o.hpf and (ks - o.hpf) % o.hstr == 0 and (ks - o.hpf) // o.hstr < o.pre4: self.hld((ks - o.hpf) // o.hstr, l == 1)
                return o.fill_p3 if ks >= 2 else 0
            assert o.hpf >= o.pre4 and o.hpf + (o.pre4 - 1) * o.hstr < 32
            self.pass1(self.w1pl[2], ACC + 32, side, fill)
        self.emit(self.corr_items(2, ACC + 32, False))
        side.flush()
        self.ts('p3b')
        if l == 0:
            self.barrier()
            self.b4 = self.w2_batch(list(range(32, 40)) + list(range(24, 32)) + list(range(16, 24)), 'w2d')
            self.emit(self.b4[0][:4])
        self.emit(epi(2))
        L = em.newlabel('Lh3')
        em(f's_cmp_ge_u32 {sJ}, 11'); em(f's_cbranch_scc1 {L}')
        em.cond_begin(); st(2); em.cond_end()
        em.label(L)
        if l == 0:
            self.emit(self.b3[1]); self.emit(self.b3b[1])
            if len(self.b4[0]) > 4: em.wait_lg(0); self.emit(self.b4[0][4:])
            assert self.w2next == 22
        self.ts(f'end{4*l+2}')

    def p4(self, l):
        em = self.em; o = self.o
        final = l == 1
        A = [[ACC, ACC + 16], [ACC + 32, 232]] if final else [[ACC, ACC + 32], [ACC + 16, 232]]
        side = Side(em)
        S, Q = v(AUX), v(AUX + 1); RS = [TMP, CB]
        def stl(e):
            e(f's_add_u32 {sFx}, {sStR if final else sStM}, {2 * l * 16 * 8192}')
            e(f'buffer_load_dwordx4 {v(AUX,4)}, {v(FS) if final else vP}, {SWS}, {sFx} offen sc1', tag='stat')
        stl(em)
        if o.cpf2 & 2 and not final: self.code_pf(v(248, 4), v(252))
        if o.retouch and not final: self.retouch(X2OFF, v(254), v(254))
        side.add(lambda: self.check([v(AUX + r) for r in range(4)], stl, v(CB + 2), kind='x', tag=sTxn))
        side.add(f'v_add_f32 {S}, {S}, {v(AUX+1)}', f'v_add_f32 {v(AUX+2)}, {v(AUX+2)}, {v(AUX+3)}', f'v_add_f32 {S}, {S}, {v(AUX+2)}')
        if final:
            side.add(f'v_add_f32_dpp {S}, {S}, {S} row_ror:8 {DPPM}', f'v_mov_b32 {Q}, {S}', f'v_permlane16_swap_b32 {S}, {Q}')
        else:
            side.add(f'v_mov_b32 {Q}, {S}', f'v_permlane16_swap_b32 {S}, {Q}', f'v_add_f32 {S}, {S}, {Q}', f'v_mov_b32 {Q}, {S}', f'v_permlane32_swap_b32 {S}, {Q}')
        side.add(f'v_mul_f32 {S}, {sInv}, {S}', f'v_mul_f32 {Q}, {sInv}, {Q}', f'v_fma_f32 {Q}, -{S}, {S}, {Q}', f'v_max_f32 {Q}, 0, {Q}',
                 f'v_add_f32 {Q}, {sEps}, {Q}', f'v_rsq_f32 {v(RS[1])}, {Q}')
        if final:
            side.add(f'v_mov_b32 {v(CB+2)}, {v(RS[1])}', f'v_permlane32_swap_b32 {v(CB+2)}, {v(RS[1])}',
                     f'ds_bpermute_b32 {v(CB+2)}, {v(FB)}, {v(CB+2)}', f'ds_bpermute_b32 {v(RS[1])}, {v(FB)}, {v(RS[1])}')
            RS = [CB + 2, CB]
        else: RS = [CB, CB]
        b4 = list(self.b4[1]) if l == 0 else []
        first4 = 2 * (22 - (len(b4) - 1) // 2) if b4 else 99
        if l == 0: side.add(self.barrier)
        dec = (lambda n: (n % 22, n // 22)) if final else (lambda n: (n // 2, n % 2))
        def mf(n, c):
            st, h = dec(n)
            cc = v(A[h][c], 16)
            em(f'{MF} {cc}, {a(W2A + st*8 + c*4, 4)}, {v(AF + 4 * (n % 24), 4)}, ' + ('0' if st == 0 else cc))
        def chk(n):
            if n % 2: return None
            return self.check([v(AF + 4 * (n % 24)), v(AF + 4 * ((n + 1) % 24))], lambda e: (self.hld(n, final, e), self.hld(n + 1, final, e)), v(38), split=True,
                              kind='h', tag=sTh if final else sThn, again=lambda e, p: self.hld(self.ldidx[id(p)], final, e))
        T4 = o.tail4 if final else o.tail4n
        br = chk(0)
        for n in range(44):
            assert n < first4 or not b4
            if br: br()
            both = n < 44 - T4
            mf(n, 0)
            if n + o.pre4 < 44: self.hld(n + o.pre4, final)
            if n + 1 < 44: br = chk(n + 1)
            if b4 and n >= o.b4start: self.emit([b4.pop(0)])
            elif n >= 8: side.clk(4 if both else o.gap4)
            if both:
                mf(n, 1)
                if n >= 8 and not b4: side.clk(o.gap4)
            if final and o.wb and n == o.wbstep:
                L = em.newlabel('Lwb')
                if o.wb == 1: em(f's_cmp_lg_u32 {sW}, 3')
                else: em(f's_lshr_b32 {sT}, s2, 3'); em(f's_or_b32 {sT}, {sT}, {sW}'); em(f's_cmp_lg_u32 {sT}, 0')
                em(f's_cbranch_scc1 {L}')
                em.out.append(' buffer_wbl2 sc1')
                em.label(L)
            if o.ts3 and final and n in (0, 7, 15, 21, 29, 37): self.ts(f'q{n}')
            if final and n == 22:
                side.add(*self.reduce_items(0, A[0][0], A[0][1], MR, ACC, RS[0], 0, 0, True, True))
                side.add(*self.unpack_items(1, ACC + 16)); side.add(self.barrier)
        side.flush()
        self.ts('p4loop')
        if final:
            tail = self.reduce_items(1, A[1][0], A[1][1], MR, ACC + 16, RS[1], 0, 0, True, False)
            for k, n in enumerate(range(44 - T4, 44)):
                mf(n, 1)
                if k >= 1: em(tail.pop(0))
            self.emit(tail)
            return
        self.two_halves([lambda n=n: mf(n, 1) for n in range(44 - T4, 44)], A, RS[0], X2OFF, 1)
        self.ts('end3')

    def p5_start(self):
        em = self.em; o = self.o
        ld0, chk = self.a_loader(o.pre, 1, sTx)
        side = Side(em)
        side.add(*self.aux_const_items())
        side.add(f'v_subrev_u32 {vRW}, {S_ADDR:#x}, {vRW}', f'v_subrev_u32 {vRR}, {S_ADDR:#x}, {vRR}')
        self.S = 0
        qn = [0]; was = [False]
        def ld(i):
            ld0(i)
            if i == 12: side.add(self.barrier)
            if i == o.statstep:
                side.add(*self.stats_T_items(True, 1))
                side.add(f'{MF} {v(MR,16)}, {v(AUX,4)}, {v(CB+2,4)}, 0')
            if self.xdone and was[0] and qn[0] < 8: self.qkv_dma('q', qn[0], 'q'); qn[0] += 1
            was[0] = self.xdone
        self.pass2(XORD, [self.pl['k'], self.pl['v']], [ACC, ACC + 16], True, side, lambda i: 1 if i < o.statstep else o.fill2, loader=ld, extra=chk)
        side.flush()
        self.emit(self.corr_items('k', ACC, True)); self.emit(self.corr_items('v', ACC + 16, True))
        self.ts('p5a')

    def finish(self):
        em = self.em
        L = em.newlabel('Le')
        em(f's_or_b32 {sT}, s2, {sW}'); em(f's_cmp_lg_u32 {sT}, 0'); em(f's_cbranch_scc1 {L}')
        em.cond_begin()
        em('s_mov_b64 exec, 1'); em(f'v_mov_b32 v24, {sNonce}'); em(f'buffer_store_dword v24, off, {SWS}, 0 sc1'); em('s_mov_b64 exec, -1')
        em.cond_end()
        em.label(L)
        if self.o.pad:
            L = em.newlabel('Lpad')
            em('v_readlane_b32 s3, v39, 0')
            em.label(L)
            em('s_memrealtime s[0:1]'); em.force_wait(lg=0); em('s_sub_u32 s0, s0, s3'); em(f's_cmp_lt_u32 s0, {self.o.pad}'); em(f's_cbranch_scc1 {L}')
        if self.o.ts:
            self.ts('end')
            em('s_memrealtime s[86:87]'); em.force_wait(lg=0); em('v_writelane_b32 v39, s86, 63')
            em(f's_lshl_b32 {sT}, s2, 2'); em(f's_add_u32 {sT}, {sT}, {sW}'); em(f's_lshl_b32 {sT}, {sT}, 8'); em(f's_add_u32 {sT}, {sT}, {WS_DBG}')
            em(f'v_lshlrev_b32 v24, 2, {vLane}')
            em(f'buffer_store_dword v39, v24, {SWS}, {sT} offen')
            if self.o.dbg:
                L = em.newlabel('Ld')
                em(f's_or_b32 {sT}, s2, {sW}'); em(f's_cmp_lg_u32 {sT}, 0'); em(f's_cbranch_scc1 {L}')
                em('s_memrealtime s[0:1]'); em.force_wait(lg=0); em('s_sub_u32 s0, s0, s3')
                em('v_readlane_b32 s1, v39, 0'); em('s_nop 3'); em('v_subrev_u32 v39, s1, v39'); em('v_writelane_b32 v39, s0, 0')
                em('v_mul_u32_u24 v25, 3, v0'); em('v_lshlrev_b32 v25, 2, v25'); em('ds_bpermute_b32 v26, v25, v39'); em.force_wait(lg=0)
                em('s_mov_b64 exec, 0xffff')
                em('global_store_dword v24, v26, s[100:101]')
                em.label(L)
        em('s_endpgm')
        em.out.extend(self.fixes); self.fixes = []

    def body(self, sc):
        self.ncnt = 0; self.ldidx = {}; self.fixes = []; self.sc = sc; self.swin = None; self.lin = True; self.S = S_ADDR
        seq = [lambda: self.p1_rest(0), lambda: self.p2(0), lambda: self.p3(0), lambda: self.p4(0),
               lambda: (self.p5_start(), self.p1_rest(1)), lambda: self.p2(1), lambda: self.p3(1), lambda: self.p4(1)]
        for i, f in enumerate(seq):
            self.em.comment(f'---------------- phase {i+1} ({"slow" if sc else "fast"}) ----------------')
            f()
            if self.o.stop == i + 1: break
        self.finish()

    def build(self):
        em = self.em
        self.sc = ''
        self.prologue()
        self.p1_start()
        if self.o.force_slow: em('s_branch L_slow_tramp')
        em('s_cbranch_vccz L_fast')
        em.label('L_slow_tramp')
        em('s_getpc_b64 s[86:87]'); em.label('L_pc0')
        em('s_add_u32 s86, s86, L_slow-L_pc0'); em('s_addc_u32 s87, s87, 0'); em('s_setpc_b64 s[86:87]')
        em.label('L_end'); em('s_endpgm')
        em.label('L_fast')
        snap = (list(em.vmq), list(em.lgq), self.nts, list(em.hist))
        self.body('')
        em.label('L_slow')
        em.vmq, em.lgq, self.nts, em.hist = list(snap[0]), list(snap[1]), snap[2], list(snap[3])
        self.body(' sc1')
        em.label('L_codeend')
        hdr = open('cdna_kernels/' + NAME + '.s.ref').read().split('; Override launch')[0]
        s = hdr + '; @launch grid=(256,1,1) block=(256,1,1) lds=163840\n'
        s += '.amdgcn_target "amdgcn-amd-amdhsa--gfx950"\n.text\n'
        s += f'.globl {NAME}_kernel\n.p2align 8\n.type {NAME}_kernel,@function\n{NAME}_kernel:\n'
        s += em.text().replace('    ', ' ').replace(' offset:0 ', ' ').replace(', ', ',')
        s += f""".section .rodata,"a"
.p2align 6
.amdhsa_kernel {NAME}_kernel
  .amdhsa_next_free_vgpr 512
  .amdhsa_next_free_sgpr 102
  .amdhsa_accum_offset 256
  .amdhsa_group_segment_fixed_size 0
  .amdhsa_kernarg_size 72
  .amdhsa_user_sgpr_count 2
  .amdhsa_user_sgpr_kernarg_segment_ptr 1
  .amdhsa_system_sgpr_workgroup_id_x 1
  .amdhsa_float_denorm_mode_32 3
.end_amdhsa_kernel
"""
        return s

def main():
    ap = argparse.ArgumentParser()
    ap.add_argument('-o', default='k.s')
    ap.add_argument('--ts', action='store_true')
    ap.add_argument('--dbg', action='store_true')
    ap.add_argument('--pad', type=int, default=0)
    ap.add_argument('--ts2', action='store_true')
    ap.add_argument('--sync', default='A')
    ap.add_argument('--pk2', type=int, default=0)
    ap.add_argument('--tlb', type=int, default=0)
    ap.add_argument('--par', type=int, default=1)
    ap.add_argument('--pk4', type=int, default=0)
    ap.add_argument('--chkpos', type=int, default=0)
    ap.add_argument('--rstpos', type=int, default=1)
    ap.add_argument('--nochk', type=int, default=0)
    ap.add_argument('--xord', type=int, default=1)
    ap.add_argument('--retouch', type=int, default=0)
    ap.add_argument('--statstep', type=int, default=19)
    ap.add_argument('--tw2', type=int, default=0)
    ap.add_argument('--thr2', type=int, default=2)
    ap.add_argument('--kdual', type=int, default=0)
    ap.add_argument('--fill2', type=int, default=2)
    ap.add_argument('--rst1', default='xh')
    ap.add_argument('--qsched', default='66667777')
    ap.add_argument('--tq', type=int, default=0)
    ap.add_argument('--cgap', type=int, default=2)
    ap.add_argument('--ownpos', type=int, default=2)
    ap.add_argument('--mfB', type=int, default=3)
    ap.add_argument('--pf0', type=int, default=0)
    ap.add_argument('--pf1', type=int, default=0)
    ap.add_argument('--fixmode', type=int, default=1)
    ap.add_argument('--w2b1b', type=int, default=4)
    ap.add_argument('--p2late', type=int, default=16)
    ap.add_argument('--share', type=int, default=2)
    ap.add_argument('--share2', type=int, default=3)
    ap.add_argument('--span', action='store_true')
    ap.add_argument('--cpf2', type=int, default=3)
    ap.add_argument('--wb', type=int, default=2)
    ap.add_argument('--wbstep', type=int, default=40)
    ap.add_argument('--c1a', type=int, default=3)
    ap.add_argument('--tqc', type=int, default=2)
    ap.add_argument('--rep8', type=int, default=0)
    ap.add_argument('--xc', type=int, default=0)
    ap.add_argument('--gfirst', type=int, default=-1)
    ap.add_argument('--xorder', type=int, default=0)
    ap.add_argument('--ts3', action='store_true')
    ap.add_argument('--rste', type=int, default=0)
    ap.add_argument('--tpos', type=int, default=1)
    ap.add_argument('--tpl', default='n,n,n,n')
    ap.add_argument('--qpw', type=int, default=0)
    ap.add_argument('--ts2l1', type=int, default=0)
    ap.add_argument('--p2pipe', type=int, default=0)
    ap.add_argument('--p2a', type=int, default=6)
    ap.add_argument('--zpl', type=int, default=1)
    ap.add_argument('--n3', type=int, default=0)
    ap.add_argument('--hpf3', type=int, default=10)
    ap.add_argument('--hper', type=int, default=1)
    ap.add_argument('--fill3', type=int, default=6)
    ap.add_argument('--pad0', type=int, default=0)
    ap.add_argument('--stop', type=int, default=0)
    ap.add_argument('--spin', type=int, default=200000)
    ap.add_argument('--pre', type=int, default=11)
    ap.add_argument('--pre4', type=int, default=10)
    ap.add_argument('--pre2', type=int, default=16)
    ap.add_argument('--gap2', type=int, default=12)
    ap.add_argument('--gap4', type=int, default=24)
    ap.add_argument('--tail4', type=int, default=4)
    ap.add_argument('--rot2', type=int, default=1)
    ap.add_argument('--prewrite', type=int, default=1)
    ap.add_argument('--tw', type=int, default=5)
    ap.add_argument('--gstep', type=int, default=24)
    ap.add_argument('--att2', type=int, default=1)
    ap.add_argument('--burst', type=int, default=0)
    ap.add_argument('--hstr', type=int, default=1)
    ap.add_argument('--thr', type=int, default=6)
    ap.add_argument('--w1_solo', type=int, default=2)
    ap.add_argument('--fill_p1', type=int, default=2)
    ap.add_argument('--fill_p2', type=int, default=3)
    ap.add_argument('--fill_p3', type=int, default=3)
    ap.add_argument('--fill_p4', type=int, default=3)
    ap.add_argument('--w1_early', type=int, default=4)
    ap.add_argument('--b4start', type=int, default=4)
    ap.add_argument('--w2b1', type=int, default=4)
    ap.add_argument('--w2b2', type=int, default=4)
    ap.add_argument('--w2b3', type=int, default=4)
    ap.add_argument('--w2b3b', type=int, default=0)
    ap.add_argument('--w1_gap', type=int, default=0)
    ap.add_argument('--b1gap', type=int, default=1)
    ap.add_argument('--bgpad', type=int, default=3)
    ap.add_argument('--p2early', type=int, default=0)
    ap.add_argument('--rot', type=int, default=1)
    ap.add_argument('--kv_early', type=int, default=4)
    ap.add_argument('--nt_stage', action='store_true')
    ap.add_argument('--nt_w1', action='store_true')
    ap.add_argument('--codepf', type=int, default=1)
    ap.add_argument('--outsc', default='sc1')
    ap.add_argument('--kfirst', type=int, default=1)
    ap.add_argument('--early1', type=int, default=0)
    ap.add_argument('--gap2b', type=int, default=40)
    ap.add_argument('--tail4n', type=int, default=16)
    ap.add_argument('--hpf', type=int, default=20)
    ap.add_argument('--force_slow', action='store_true')
    o = ap.parse_args()
    if o.span: o.ts = True
    if o.outsc: o.outsc = ' ' + o.outsc
    if not o.xord: XORD[:] = list(range(32))
    g = Gen(o)
    s = g.build()
    open(o.o, 'w').write(s)
    if o.ts:
        import json; json.dump(g.tsnames, open(o.o + '.ts.json', 'w'))
    print(f'wrote {o.o}: {g.em.ninstr} instrs, {g.em.nops} nop states, {len(s)} bytes')
if __name__ == '__main__': main()
```

```python
import sys, struct, argparse
from emit import Em

NAME = "interleave_layers__linear_attn_block__dense_activation_relu__prompt"
def f2u(x): return struct.unpack('<I', struct.pack('<f', x))[0]

WS_EPOCH = 0
WS_HELLO = 1024
WS_FLAG = 4096
WS_MSG = 0x10000
WS_KT = 0x150000
WS_KTG = 0x1100000
WS_KT8 = 0x1000000
KC = 0x5000
WS_CS = 0x160000
WS_ST = 0x170000
WS_X = 0x200000
X2OFF = 0
WS_Q = 0x400000
WS_H = 0x600000
WS_DBG = 0x2000000
WS_SIZE = 0x4000000
MSG_B = 2560; KT_B = 17408; ACT_B = 131072; H_T = 86 * 1024; H_B = 4 * H_T
NONCE_K = 0x9E3779B1

sW, sG, sJ, sNonce = 's4', 's5', 's6', 's7'
SX, SQKV, SWO, SW1, SW2, SOUT, SWS = 's[8:11]', 's[12:15]', 's[16:19]', 's[20:23]', 's[24:27]', 's[28:31]', 's[32:35]'
sT, sT2, sWl, sSpin = 's52', 's53', 's54', 's55'
sGX, sGH, sG8K, sGKT, sG128 = 's56', 's57', 's58', 's59', 's60'
sQcol, sW1c0, sW1c2, sHks = 's61', 's62', 's63', 's64'
sC128, sHR, sStR = 's66', 's68', 's69'
sQR, sInv, sEps, s1em6, sLog2e = 's71', 's74', 's75', 's76', 's73'
sXrow, sJmsg, sMaskInv, sOutRow, sHello = 's77', 's78', 's85', 's80', 's81'
sEx = 's[82:83]'; sFx = 's84'
sTS = 86
sDelta, sDelta2 = 's88', 's[88:89]'
sLn2, sLn22 = 's90', 's[90:91]'
sXst, sStst, sQst = 's67', 's79', 's94'
sStM, sGXw = 's72', 's56'
sW1d = 's60'
sRot, sR, sFlag, sG256 = 's95', 's96', 's97', 's98'
sRot2, sLim4 = 's59', 's70'
sRed, sLine, sKTo, sFac = 's49', 's50', 's51', 's3'
sX0, sX1 = 's[100:101]', 's[0:1]'
sCsp = 's65'
sXm = [f's{36+i}' for i in range(8)]
sXl = ['s8', 's9', 's10', 's11', 's57', 's77', 's81', 's99']
sTab = ['s44', 's45', 's46', 's47']
sLo = 's[92:93]'
sTx, sTxn, sTh, sThn = 0, 1, 0, 1
sM0, sM1, sM3, sM4 = 's[36:37]', 's[38:39]', 's[40:41]', 's[44:45]'

vLane, vL16, vAX, vP = 'v0', 'v1', 'v2', 'v3'
vRR, vRW = 'v15', 'v18'
vTr = ['v4', 'v5', 'v6']
vDq, vD1, vDs, vS0, vS1, vS0w, vS1w = 'v7', 'v8', 'v9', 'v10', 'v11', 'v12', 'v14'
vStT, vPoll, vRl, vHi, vTid = 'v13', 'v15', 'v16', 'v17', 'v18'
CS = {'q': 'v19', 'k': 'v20', 'v': 'v21', 0: 'v22', 1: 'v23', 2: 'v34'}
AUX = 24
CB = 28
TMP = 35
BB = 40
MR = 56
ACC = 88
AF = 136
def v(i, n=1): return f'v{i}' if n == 1 else f'v[{i}:{i+n-1}]'
def a(i, n=1): return f'a{i}' if n == 1 else f'a[{i}:{i+n-1}]'
def Afrag(ks): return v(AF + 4 * ks, 4) if ks < 30 else a(248 + 4 * (ks - 30), 4)
RES = 240
W2A = 0; WOA = 176
vKT = 253
FW, FR, FO, FS, FB = 7, 11, 12, 14, 19
MF = 'v_mfma_f32_32x32x16_bf16'
DPPM = 'row_mask:0xf bank_mask:0xf'

QS = 32
S_ADDR = QS * 4096

def _ord4(c):
    pl = lambda nt: (0, 2, 1)[nt % 3] if nt < 33 else (nt - 33) % 2
    ms = sorted(range(21), key=lambda m: pl(2 * m + c))
    return ms + [21]
ORD4 = [_ord4(0), _ord4(1)]
XORD = [4 * m + k for m in range(8) for k in (0, 1)] + [4 * m + k for m in range(8) for k in (2, 3)]

class Side:
    def __init__(self, em): self.q = []; self.em = em
    def add(self, *items): self.q.extend(items)
    def run(self, k):
        while k > 0 and self.q:
            it = self.q.pop(0)
            if callable(it): it()
            else: self.em(it)
            k -= 1
    def flush(self): self.run(1 << 30); self.credit = 0
    credit = 0
    def clk(self, budget):
        self.credit = min(self.credit + budget, budget)
        while self.q and self.credit > 0:
            it = self.q.pop(0)
            if callable(it):
                it(); self.credit -= getattr(it, 'cost', 24)
            else:
                self.em(it)
                self.credit -= 56 if it.startswith('ds_write_b128') else 8 if it.startswith(('v_exp', 'v_rcp', 'v_rsq', 'v_mfma')) else 4

class Gen:
    def __init__(self, opt):
        self.o = opt; self.em = Em(); self.nts = 0; self.ncnt = 0; self.swin = None; self.lin = False
    def emit(self, items):
        for t in items: t() if callable(t) else self.em(t)

    def ts(self, name):
        if not self.o.ts or (self.o.span and name not in ('start', 'end')): return
        em = self.em
        i = self.nts; self.nts += 1
        assert i < 50
        em.force_wait(lg=0)
        em(f's_mov_b32 m0, s87'); em(f's_memtime s[{sTS}:{sTS+1}]'); em.force_wait(lg=0)
        em(f'v_writelane_b32 v39, s{sTS}, {i}'); em('s_mov_b32 s87, m0')
        self.tsnames[i] = name
        if name in ('kt', 'p3a', 'p4loop', 'p5a'):
            if name == 'kt' and self.ncnt == 0: em('s_mov_b32 s87, 0')
            em(f'v_writelane_b32 v39, s87, {50 + self.ncnt}'); self.ncnt += 1
    def dma(self, srd, voff, sbase, imm, quad, tag, nt=False, slot=None):
        em = self.em
        if slot is None: em(f's_add_u32 m0, {sWl}, {quad*4096}')
        else: em(f's_mov_b32 m0, {quad*4096 + slot*1024}')
        em(f's_add_u32 {sT}, {sbase}, {imm}')
        em(f'buffer_load_dwordx4 {voff}, {srd}, {sT} offen' + (' nt' if nt else '') + ' lds', tag=tag)
    def tr(self, dst, quad, slot, base=None):
        addr = quad * 4096 + slot * 1024
        b = (base or vTr)[addr >> 16]; off = addr & 0xFFFF
        return [f'ds_read_b64_tr_b16 {v(dst,2)}, {b} offset:{off}', f'ds_read_b64_tr_b16 {v(dst+2,2)}, {b} offset:{off+(256 if self.lin else 512)}']
    def wsload(self, dst, voff, sbase, imm, width=4, tag=None, off=0):
        em = self.em
        em(f's_add_u32 {sT}, {sbase}, {imm}')
        sfx = {1: 'dword', 2: 'dwordx2', 4: 'dwordx4'}[width]
        em(f'buffer_load_{sfx} {dst}, {voff}, {SWS}, {sT} offen' + (f' offset:{off}' if off else '') + ' sc1', tag=tag)
    def wsstore(self, src, voff, sbase, imm, width=4, tag='st', off=0, sc=None):
        em = self.em
        em(f's_add_u32 {sT}, {sbase}, {imm}')
        sfx = {1: 'dword', 2: 'dwordx2', 4: 'dwordx4'}[width]
        sc = self.sc if sc is None else sc
        em(f'buffer_store_{sfx} {src}, {voff}, {SWS}, {sT} offen' + (f' offset:{off}' if off else '') + sc, tag=tag)
    def barrier(self):
        self.em.wait_lg(0); self.em('s_barrier')
    def only_wave(self, w, f, invert=False):
        em = self.em
        L = em.newlabel('Lw')
        em(f's_cmp_{"eq" if invert else "lg"}_u32 {sW}, {w}'); em(f's_cbranch_scc1 {L}')
        em.cond_begin(); f(); em.cond_end()
        em.label(L)
    def spin_tail(self, L):
        em = self.em
        em(f's_sub_u32 {sSpin}, {sSpin}, 1'); em(f's_cbranch_scc0 {L}'); em(f's_mov_b32 {sSpin}, 0')
    def group_sync(self, p, pre=None, mid=None, tags=('st',), bar=True, skipif=None, modeB=False):
        em = self.em
        vt = v(TMP)
        mode = 'B' if (skipif or modeB) else self.o.sync
        if pre: pre()
        def drain():
            if tags is None: em.force_wait(vm=0)
            else: em.wait_vm_tag(tags)
            self.ts(f'drain{p}')
        def sig(wait=True):
            em(f'v_mov_b32 {vt}, {sNonce}')
            em(f's_add_u32 {sT2}, {sFlag}, {p*4096}')
            if wait: drain()
            em(f's_mov_b64 {sEx}, exec'); em('s_mov_b64 exec, 1')
            em(f'buffer_store_dword {vt}, off, {SWS}, {sT2}' + self.sc, tag='flag')
            em(f's_mov_b64 exec, {sEx}')
        def poll():
            L = em.newlabel('Lpoll'); D = em.newlabel('Lpd')
            em(f's_add_u32 {sT2}, {sG256}, {WS_FLAG + p*4096}')
            if mode == 'B': em(f'v_lshlrev_b32 {v(TMP+1)}, 2, {vLane}')
            else: em(f'v_lshlrev_b32 {v(TMP+1)}, 2, {vPoll}')
            em.label(L)
            em(f'buffer_load_dword {vt}, {v(TMP+1)}, {SWS}, {sT2} offen sc1')
            em.force_wait(vm=0)
            em(f'v_cmp_ne_u32 vcc, {sNonce}, {vt}')
            em(f's_cbranch_vccz {D}')
            self.spin_tail(L)
            em.label(D)
        if mode == 'B':
            if skipif:
                L = em.newlabel('Lsk')
                em(f's_cmp_eq_u32 {skipif}, 0'); em(f's_cbranch_scc1 {L}')
                em.cond_begin(); sig(); em.cond_end()
                em.label(L)
            else: sig()
            if mid: mid()
            if bar: self.barrier()
            poll()
        else:
            drain(); self.barrier()
            self.only_wave(0, lambda: sig(False))
            if mid: mid()
            if mode == 'A':
                self.only_wave(0, poll); self.barrier()
            else:
                if bar and mid: self.barrier()
                poll()
        self.ts(f'sync{p}')
    def rot(self, m, stride, base):
        em = self.em
        em(f's_add_u32 {sR}, {sRot}, {m}'); em(f's_and_b32 {sR}, {sR}, 7'); em(f's_mul_i32 {sR}, {sR}, {stride}'); em(f's_add_u32 {sR}, {sR}, {base}')
    def qkv_dma(self, planes, m, tag):
        self.rot(m, 64 * 3072, sQcol)
        for p in planes: self.dma(SQKV, vDq, sR, {'q': 0, 'k': 1024, 'v': 2048}[p], self.pl[p][m], tag)

    def prologue(self):
        em = self.em; o = self.o
        if o.pad and o.pad0: em('s_memrealtime s[86:87]')
        em('s_cmp_ge_u32 s2, 256'); em('s_cbranch_scc1 L_end')
        em('s_load_dwordx4 s[36:39], s[0:1], 0'); em('s_load_dwordx2 s[40:41], s[0:1], 16')
        em('s_load_dwordx4 s[44:47], s[0:1], 32'); em('s_load_dwordx2 s[48:49], s[0:1], 48'); em('s_load_dwordx2 s[50:51], s[0:1], 64')
        if o.ts:
            self.tsnames = {}
            em('v_mov_b32 v39, 0')
        em(f'v_mov_b32 {vTid}, v0')
        em(f'v_lshrrev_b32 v24, 6, v0'); em(f'v_and_b32 {vLane}, 63, v0')
        em(f'v_readfirstlane_b32 {sW}, v24')
        em(f's_and_b32 {sG}, s2, 7'); em(f's_lshl_b32 {sG}, {sG}, 1'); em(f's_lshr_b32 {sT}, s2, 7'); em(f's_add_u32 {sG}, {sG}, {sT}')
        em(f's_lshr_b32 {sJ}, s2, 3'); em(f's_and_b32 {sJ}, {sJ}, 15')
        em(f's_lshl_b32 {sWl}, {sW}, 10')
        em(f's_lshl_b32 {sXrow}, {sG}, 17')
        em(f's_lshl_b32 {sQcol}, {sJ}, 6')
        em(f's_and_b32 {sRot}, {sG}, 1'); em(f's_lshl_b32 {sRot}, {sRot}, 1'); em(f's_and_b32 {sT}, {sJ}, 1'); em(f's_add_u32 {sRot}, {sRot}, {sT}'); em(f's_lshl_b32 {sRot}, {sRot}, 1')
        if o.rot == 1: em(f's_lshr_b32 {sT}, {sJ}, 1'); em(f's_add_u32 {sRot}, {sRot}, {sT}')
        if o.rot in (1, 3): em(f's_add_u32 {sRot}, {sRot}, s2')
        if not o.rot: em(f's_mov_b32 {sRot}, 0')
        self.pl = {'k': list(range(0, 8)), 'v': list(range(8, 16)), 'q': list(range(16, 24))}
        em(f'v_lshlrev_b32 {vL16}, 4, {vLane}')
        em(f'v_lshrrev_b32 v27, 3, {vLane}'); em(f'v_and_b32 v28, 7, {vLane}')
        em(f'v_lshrrev_b32 v29, 1, v27'); em('v_xor_b32 v28, v28, v29'); em('v_lshlrev_b32 v28, 4, v28')
        em(f's_lshl_b32 {sT}, {sW}, 5'); em(f'v_add_u32 v27, {sT}, v27'); em('v_lshlrev_b32 v27, 10, v27')
        em('v_add_u32 v25, v27, v28'); em('v_xor_b32 v26, 64, v25')
        em(f'v_lshrrev_b32 v27, 2, {vLane}'); em(f's_lshl_b32 {sT}, {sW}, 4'); em(f'v_add_u32 v27, {sT}, v27')
        em(f'v_and_b32 v28, 3, {vLane}'); em('v_lshlrev_b32 v28, 4, v28')
        em(f'v_mul_u32_u24 {vDq}, 3072, v27'); em(f'v_add_u32 {vDq}, {vDq}, v28')
        em(f'v_mul_u32_u24 {vD1}, 2752, v27'); em(f'v_add_u32 {vD1}, {vD1}, v28')
        em.force_wait(lg=0)
        if o.pad and o.pad0: em('v_writelane_b32 v39, s86, 0')
        if o.ts:
            em('s_memrealtime s[86:87]'); em.force_wait(lg=0); em('v_writelane_b32 v39, s86, 62')
        if o.pad and not o.pad0:
            em('s_memrealtime s[86:87]'); em.force_wait(lg=0); em('v_writelane_b32 v39, s86, 0')
        self.ts('start')
        def srd(s, lo, nb):
            em(f's_mov_b32 s{s}, s{lo}'); em(f's_mov_b32 s{s+1}, s{lo+1}'); em(f's_mov_b32 s{s+2}, {nb}'); em(f's_mov_b32 s{s+3}, 0x00020000')
        srd(8, 36, 2048 * 1024); srd(32, 50, WS_SIZE); srd(12, 38, 512 * 3072)
        if o.tlb:
            em(f's_lshr_b32 {sT}, s2, 3'); em(f's_lshl_b32 {sT}, {sT}, 2'); em(f's_add_u32 {sT}, {sT}, {sW}'); em(f's_and_b32 {sT}, {sT}, 15')
            em('s_mov_b64 s[86:87], s[50:51]'); em(f's_lshl_b32 {sT2}, {sT}, 21')
            for k, pr in ((8, 's[40:41]'), (9, 's[44:45]'), (10, 's[46:47]'), (11, 's[48:49]'), (12, 's[36:37]'), (13, 's[38:39]')):
                em(f's_cmp_eq_u32 {sT}, {k}'); em(f's_cselect_b64 s[86:87], {pr}, s[86:87]')
            em(f's_cmp_ge_u32 {sT}, 5'); em(f's_cselect_b32 {sT2}, 0, {sT2}')
            em(f's_load_dword s88, s[86:87], {sT2}')
        L0 = em.newlabel('Lo'); L1 = em.newlabel('Lo')
        if o.par:
            em(f's_bitcmp1_b32 {sJ}, 0'); em(f's_cbranch_scc1 {L0}')
            it = self.chunk_items(0)
            snap = list(em.vmq)
            self.emit(it); em(f's_branch {L1}')
            em.label(L0)
            em.vmq = snap
            it = self.chunk_items(0)
            self.emit(it[4:] + it[:4])
            em.label(L1)
        else: self.chunk_dma(0)
        if o.tq:
            em(f'v_lshlrev_b32 v30, 7, {vLane}'); em(f's_lshl_b32 {sT2}, s2, 2'); em(f's_add_u32 {sT2}, {sT2}, {sW}'); em(f's_mul_i32 {sT2}, {sT2}, {12*128}')
            em('s_mov_b64 exec, 0xfff')
            em(f'buffer_load_dword a100, v30, {SQKV}, {sT2} offen', tag='touch')
            if o.tq > 1:
                em(f's_lshl_b32 {sT2}, {sJ}, 2'); em(f's_add_u32 {sT2}, {sT2}, {sW}'); em(f's_lshl_b32 {sT2}, {sT2}, 11'); em(f's_add_u32 {sT2}, {sT2}, {sXrow}')
                em('s_mov_b64 exec, 0xffff')
                em(f'buffer_load_dword a101, v30, {SX}, {sT2} offen', tag='touch')
            em('s_mov_b64 exec, -1')
        em(f'buffer_load_dword v24, off, {SWS}, 0 sc1', tag='epoch')
        if o.ts2: self.ts('iss0')
        c1 = self.chunk_items(1)
        self.emit(c1[:o.c1a]); self.c1rest = c1[o.c1a:]
        if o.ts2: self.ts('iss1')
        if o.codepf:
            em('s_getpc_b64 s[42:43]'); em.label('L_pcx')
            em(f's_lshr_b32 {sT}, s2, 3'); em(f's_lshl_b32 {sT}, {sT}, 2'); em(f's_add_u32 {sT}, {sT}, {sW}'); em(f's_lshl_b32 {sT}, {sT}, 10')
            em(f's_min_u32 {sT}, {sT}, L_slow-L_pcx-1024')
            em(f'v_add_u32 v30, {sT}, {vL16}')
            em(f'global_load_dwordx4 a[96:99], v30, s[42:43]', tag='codepf')
        srd(16, 40, 512 * 1024); srd(20, 44, 512 * 2752); srd(24, 46, 1376 * 1024); srd(28, 48, 2048 * 1024)
        em(f's_mov_b32 {sSpin}, {o.spin}')
        em(f's_mul_i32 {sGH}, {sG}, {H_B}'); em(f's_add_u32 {sGH}, {sGH}, {WS_H}')
        em(f's_lshl_b32 {sG8K}, {sG}, 13'); em(f's_add_u32 {sG8K}, {sG8K}, {WS_ST}')
        em(f's_lshl_b32 {sG128}, {sG}, 7'); em(f's_lshl_b32 {sG256}, {sG}, 8')
        em(f's_lshl_b32 {sFlag}, {sJ}, 2'); em(f's_add_u32 {sFlag}, {sFlag}, {sW}'); em(f's_lshl_b32 {sFlag}, {sFlag}, 2'); em(f's_add_u32 {sFlag}, {sFlag}, {sG256}'); em(f's_add_u32 {sFlag}, {sFlag}, {WS_FLAG}')
        em(f's_mul_i32 {sT}, {sJ}, 3'); em(f's_lshl_b32 {sT2}, {sJ}, 1'); em(f's_add_u32 {sT2}, {sT2}, 11')
        em(f's_cmp_lt_u32 {sJ}, 11'); em(f's_cselect_b32 {sT}, {sT}, {sT2}');
        em(f's_cselect_b32 {sT2}, 128, 64')
        em(f's_lshl_b32 {sW1c0}, {sT}, 6'); em(f's_add_u32 {sW1c2}, {sW1c0}, {sT2}')
        em(f's_lshl_b32 {sHks}, {sT}, 11'); em(f's_add_u32 {sHks}, {sHks}, {sGH}')
        em(f's_mul_i32 {sT}, {sW}, {H_T}'); em(f's_add_u32 {sHks}, {sHks}, {sT}')
        em(f's_and_b32 {sC128}, {sJ}, 7'); em(f's_lshl_b32 {sC128}, {sC128}, 7')
        em(f's_lshr_b32 {sT}, {sJ}, 3')
        em(f's_lshl_b32 {sT2}, {sT}, 16'); em(f's_add_u32 {sT2}, {sT2}, {sXrow}')
        em(f's_add_u32 {sOutRow}, {sT2}, {sC128}')
        em(f's_add_u32 {sQR}, {sT2}, {sWl}'); em(f's_add_u32 {sQR}, {sQR}, {WS_Q}')
        em(f's_lshl_b32 {sXst}, {sC128}, 5'); em(f's_add_u32 {sXst}, {sXst}, {sT2}'); em(f's_add_u32 {sXst}, {sXst}, {WS_X}')
        em(f's_mul_i32 {sHR}, {sT}, {2*H_T}'); em(f's_add_u32 {sHR}, {sHR}, {sGH}'); em(f's_add_u32 {sHR}, {sHR}, {sWl}')
        em(f's_lshl_b32 {sStR}, {sT}, 12'); em(f's_add_u32 {sStR}, {sStR}, {sG8K}')
        em(f's_lshr_b32 {sT}, {sW}, 1'); em(f's_and_b32 {sT2}, {sW}, 1'); em(f's_lshl_b32 {sT2}, {sT2}, 8')
        em(f's_lshl_b32 {sR}, {sT}, 15'); em(f's_add_u32 {sXst}, {sXst}, {sR}'); em(f's_add_u32 {sXst}, {sXst}, {sT2}')
        em(f's_lshl_b32 {sR}, {sT}, 11'); em(f's_add_u32 {sStM}, {sStR}, {sR}'); em(f's_add_u32 {sStM}, {sStM}, {sT2}')
        em(f's_and_b32 {sT}, {sJ}, 4'); em(f's_lshl_b32 {sT}, {sT}, 7'); em(f's_and_b32 {sT2}, {sJ}, 3'); em(f's_lshl_b32 {sT2}, {sT2}, 2')
        em(f's_add_u32 {sStst}, {sT}, {sT2}'); em(f's_add_u32 {sStst}, {sStst}, {sStM}')
        em(f's_lshl_b32 {sT}, {sW}, 15'); em(f's_add_u32 {sT}, {sT}, {sXrow}'); em(f's_add_u32 {sGXw}, {sT}, {WS_X}')
        em(f's_lshl_b32 {sQst}, {sJ}, 11'); em(f's_add_u32 {sQst}, {sQst}, {sT}'); em(f's_add_u32 {sQst}, {sQst}, {WS_Q}')
        em('s_mov_b32 s92, -1'); em('s_mov_b32 s93, 0')
        em(f's_cmp_ge_u32 {sW}, 2'); em(f's_cselect_b32 {sLim4}, 20, 21'); em(f's_lshl_b32 {sLim4}, {sLim4}, 12')
        em(f's_lshr_b32 {sT}, {sJ}, 3'); em(f's_and_b32 {sT2}, {sG}, 1'); em(f's_lshl_b32 {sT2}, {sT2}, 1'); em(f's_add_u32 {sT}, {sT}, {sT2}')
        em(f's_and_b32 {sT2}, s2, 7')
        em(f's_lshl_b32 {sRot2}, {sT}, 1'); em(f's_add_u32 {sRot2}, {sRot2}, {sT2}')
        if not o.rot2: em(f's_mov_b32 {sRot2}, 0')
        em(f's_mul_i32 {sJmsg}, {sJ}, {16*MSG_B}'); em(f's_add_u32 {sJmsg}, {sJmsg}, {WS_MSG}')
        if o.tlb: em.force_wait(lg=0)
        em(f's_mov_b32 {sDelta}, {f2u(1e-6*1.4426950408889634):#x}'); em(f's_mov_b32 {sLn2}, {f2u(0.6931471805599453):#x}')
        em('s_mov_b32 s89, s88'); em('s_mov_b32 s91, s90')
        em(f's_mov_b32 {sLog2e}, {f2u(1.4426950408889634):#x}'); em(f's_mov_b32 {sInv}, {f2u(1/512):#x}')
        em(f's_mov_b32 {sEps}, {f2u(1e-5):#x}'); em(f's_mov_b32 {s1em6}, {f2u(1e-6):#x}')
        em(f's_mov_b32 {sMaskInv}, 0xffffff00')
        em(f'v_lshrrev_b32 {vHi}, 5, {vLane}')
        em(f'v_lshrrev_b32 v27, 4, {vLane}'); em('v_lshlrev_b32 v27, 9, v27'); em(f'v_and_b32 v28, 15, {vLane}'); em(f'v_lshl_add_u32 {vP}, v28, 4, v27')
        em(f'v_bfe_u32 v27, {vLane}, 2, 2'); em(f'v_lshl_add_u32 v27, {vHi}, 2, v27')
        em(f'v_bfe_u32 v28, {vLane}, 4, 1'); em('v_lshlrev_b32 v28, 5, v28')
        em(f'v_and_b32 v29, 3, {vLane}'); em('v_lshl_add_u32 v28, v29, 3, v28')
        em(f'v_lshl_add_u32 {vTr[0]}, v27, 6, v28')
        em(f'v_lshl_add_u32 {vTr[0]}, {vHi}, 8, {vTr[0]}')
        em(f'v_add_u32 {vTr[1]}, 0x10000, {vTr[0]}'); em(f'v_add_u32 {vTr[2]}, 0x20000, {vTr[0]}')
        em(f'v_bfe_u32 v29, {vLane}, 3, 1'); em('v_lshl_add_u32 v28, v29, 6, v28')
        em(f'v_lshl_add_u32 {vS0}, v27, 7, v28'); em(f'v_add_u32 {vS0}, {sWl}, {vS0}'); em(f'v_xor_b32 {vS1}, 64, {vS0}')
        em(f'v_lshrrev_b32 v27, 3, {vLane}'); em(f'v_and_b32 v28, 7, {vLane}')
        em(f'v_bfe_u32 v29, {vLane}, 4, 1'); em('v_lshlrev_b32 v29, 2, v29'); em('v_xor_b32 v28, v28, v29'); em('v_lshlrev_b32 v28, 4, v28')
        em(f'v_lshl_add_u32 {vDs}, v27, 10, v28'); em(f's_lshl_b32 {sT}, {sW}, 14'); em(f'v_add_u32 {vDs}, {sT}, {vDs}')
        em(f'v_lshl_add_u32 v27, {vHi}, 9, {vL16}'); em(f's_lshl_b32 {sT}, {sW}, 11'); em(f'v_add_u32 {vStT}, {sT}, v27')
        em(f'v_and_b32 {vPoll}, 15, {vLane}'); em(f'v_lshlrev_b32 {vPoll}, 2, {vPoll}')

    def nonce_hello(self):
        em = self.em; o = self.o
        if o.ts2: self.ts('setup')
        em(f'v_readfirstlane_b32 {sNonce}, v24')
        if o.ts2: self.ts('epoch')
        em(f's_add_u32 {sNonce}, {sNonce}, {NONCE_K:#x}')
        em(f's_getreg_b32 {sHello}, hwreg(HW_REG_XCC_ID)'); em(f's_and_b32 {sHello}, {sHello}, 15')
        em(f's_add_u32 {sHello}, {sHello}, {sNonce}'); em(f's_add_u32 {sHello}, {sHello}, 1')
        def hello():
            em(f's_mov_b64 {sEx}, exec'); em('s_mov_b64 exec, 1')
            em(f'v_mov_b32 v24, {sHello}')
            em(f's_lshl_b32 {sT2}, {sJ}, 2'); em(f's_add_u32 {sT2}, {sT2}, {sG128}'); em(f's_add_u32 {sT2}, {sT2}, {WS_HELLO}')
            em(f'buffer_store_dword v24, off, {SWS}, {sT2} sc1')
            em(f's_mov_b64 exec, {sEx}')
        self.only_wave(0, hello)

    def chunk_items(self, c):
        it = []
        def x(rb8):
            if rb8 == 0: self.rot(c, 128, sXrow); self.em(f's_mov_b32 s99, {sR}')
            self.dma(SX, 'v25' if rb8 % 2 == 0 else 'v26', 's99', rb8 * 8192, 24 + 4 * (c % 3) + rb8, f'c{c}')
        for rb8 in range(4): it.append(lambda rb8=rb8: x(rb8))
        def w(p):
            if p == 'k': self.rot(c, 64 * 3072, sQcol); self.em(f's_mov_b32 s84, {sR}')
            self.dma(SQKV, vDq, 's84', {'k': 1024, 'v': 2048}[p], self.pl[p][c], f'c{c}')
        it += [lambda: w('k'), lambda: w('v')]
        return it
    def chunk_dma(self, c): self.emit(self.chunk_items(c))

    def touch_q(self, vt, dst):
        em = self.em
        em(f'v_lshlrev_b32 {vt}, 7, {vLane}')
        em(f's_mov_b64 {sEx}, exec')
        if self.o.qpw:
            for k in range(2): em(f'buffer_store_dwordx4 {v(MR+8,4)}, {vL16}, {SWS}, {sQst} offen offset:{k*1024}' + ('' if self.o.qpw == 2 else ' sc1'), tag='rst')
        else:
            em('s_mov_b64 exec, 0xffff')
            em(f'buffer_load_dword {v(dst)}, {vt}, {SWS}, {sQst} offen sc1', tag='touch')
        em(f'v_lshlrev_b32 {vt}, 12, {vLane}')
        em('s_mov_b64 exec, 0x7f')
        em(f'buffer_load_dword {v(dst+1)}, {vt}, {SWS}, {sFlag} offen sc1', tag='touch')
        em(f's_mov_b64 exec, {sEx}')
    def touch_w(self, vt, dst):
        em = self.em
        em(f'v_lshlrev_b32 {vt}, 7, {vLane}')
        em(f's_lshl_b32 {sT2}, s2, 2'); em(f's_add_u32 {sT2}, {sT2}, {sW}'); em(f's_mul_i32 {sT2}, {sT2}, {11*128}')
        em(f's_mov_b64 {sEx}, exec'); em('s_mov_b64 exec, 0x7ff')
        em(f'buffer_load_dword {v(dst)}, {vt}, {SW1}, {sT2} offen', tag='touch')
        em(f'buffer_load_dword {v(dst+1)}, {vt}, {SW2}, {sT2} offen', tag='touch')
        em(f's_lshl_b32 {sT2}, s2, 2'); em(f's_add_u32 {sT2}, {sT2}, {sW}'); em(f's_lshl_b32 {sT2}, {sT2}, 9')
        em('s_mov_b64 exec, 15')
        em(f'buffer_load_dword {v(dst+2)}, {vt}, {SWO}, {sT2} offen', tag='touch')
        em(f's_mov_b64 exec, {sEx}')
    def reducer_setup(self):
        em = self.em
        em(f's_lshr_b32 {sT}, {sG}, 3'); em(f's_cmp_eq_u32 {sT}, {sW}'); em(f's_cselect_b32 {sRed}, 1, 0')
        em(f's_lshl_b32 {sLine}, {sG}, 7')
        em(f's_mul_i32 {sKTo}, {sT}, 544'); em(f's_and_b32 {sT2}, {sG}, 7'); em(f's_lshl_b32 {sT2}, {sT2}, 6'); em(f's_add_u32 {sKTo}, {sKTo}, {sT2}')
        em(f's_mov_b32 {sFac}, {sLn2}')
        L = em.newlabel('Lz')
        em(f's_cmp_lg_u32 {sW}, 2'); em(f's_cbranch_scc1 {L}')
        em(f's_cmp_eq_u32 {sG}, {sJ}'); em(f's_cselect_b32 {sRed}, 1, 0')
        em(f's_mov_b32 {sLine}, 2048'); em(f's_mov_b32 {sKTo}, 512'); em(f's_mov_b32 {sFac}, 1.0')
        em.label(L)
        em(f's_sub_u32 {sCsp}, {sG}, {sJ}'); em(f's_sub_u32 {sCsp}, {sCsp}, 1'); em(f's_and_b32 {sCsp}, {sCsp}, 15')
        em(f's_cmp_eq_u32 {sW}, 3'); em(f's_cselect_b32 {sCsp}, {sCsp}, 15')
        em(f's_mul_i32 {sT2}, {sJ}, 1088'); em(f's_add_u32 {sKTo}, {sKTo}, {sT2}'); em(f's_add_u32 {sKTo}, {sKTo}, {WS_KT8 if self.o.rep8 else WS_KT}')
        em(f's_add_u32 {sLine}, {sLine}, {sJmsg}')
        em(f's_and_b32 {sT2}, {sG}, 7'); em(f's_lshl_b32 {sT2}, {sT2}, 3'); em(f's_mov_b64 {sX0}, 0xff'); em(f's_lshl_b64 {sX0}, {sX0}, {sT2}'); em(f's_not_b64 {sX0}, {sX0}')
        em(f's_cmp_eq_u32 {sT}, 0'); em(f's_cselect_b64 {sX1}, -1, {sX0}'); em(f's_cselect_b64 {sX0}, {sX0}, -1')
    def reducer_setup_c(self):
        em = self.em
        em(f's_mul_i32 {sRed}, {sG}, {KT_B}'); em(f's_add_u32 {sRed}, {sRed}, {WS_KTG}')
        em(f's_mul_i32 {sKTo}, {sJ}, 1088'); em(f's_add_u32 {sLine}, {sKTo}, {sRed}')
        em(f's_lshr_b32 {sT}, {sW}, 1'); em(f's_mul_i32 {sT}, {sT}, 544'); em(f's_and_b32 {sT2}, {sW}, 1'); em(f's_lshl_b32 {sT2}, {sT2}, 8')
        em(f's_add_u32 {sKTo}, {sLine}, {sT}'); em(f's_add_u32 {sKTo}, {sKTo}, {sT2}')
        em(f's_and_b32 {sT2}, {sG}, 3'); em(f's_lshl_b32 {sT2}, {sT2}, 4'); em(f's_mov_b64 {sX0}, 0xffff'); em(f's_lshl_b64 {sX0}, {sX0}, {sT2}'); em(f's_not_b64 {sX0}, {sX0}')
        em(f's_and_b32 {sT2}, {sG}, 7'); em(f's_lshl_b32 {sT2}, {sT2}, 3'); em(f's_mov_b64 {sX1}, 0xff'); em(f's_lshl_b64 {sX1}, {sX1}, {sT2}'); em(f's_not_b64 {sX1}, {sX1}')
        em(f's_sub_u32 {sCsp}, {sG}, {sJ}'); em(f's_sub_u32 {sCsp}, {sCsp}, 1'); em(f's_and_b32 {sCsp}, {sCsp}, 15')
        em(f's_cmp_eq_u32 {sW}, 2'); em(f's_cselect_b32 {sCsp}, {sCsp}, 15')
    def kt_voff(self, d, t):
        em = self.em
        em(f'v_and_b32 {d}, 7, {vLane}'); em(f'v_lshlrev_b32 {d}, 3, {d}'); em(f'v_lshl_add_u32 {d}, {vHi}, 2, {d}')
        em(f's_cmp_eq_u32 {sW}, {3 if self.o.xc else 2}'); em(f's_cselect_b32 {sT2}, 128, 0'); em(f'v_and_b32 {t}, 4, {vLane}'); em(f'v_mad_u32_u24 {d}, {t}, {sT2}, {d}')
        if self.o.rep8:
            em(f'v_bfe_u32 {t}, {vLane}, 3, 2'); em(f's_movk_i32 {sT2}, {KC:#x}'); em(f'v_mad_u32_u24 {d}, {t}, {sT2}, {d}')
    def resets(self):
        em = self.em
        t0, D = v(MR + 24), MR + 28
        L = em.newlabel('Lrs')
        if self.o.xc: em(f's_branch {L}')
        em(f's_cmp_eq_u32 {sRed}, 0'); em(f's_cbranch_scc1 {L}')
        em.cond_begin()
        self.kt_voff(t0, v(D)); em(f'v_mov_b32 {v(D)}, -1')
        if self.o.rep8:
            for k in range(4): self.wsstore(v(D), t0, sKTo, k * 4 * KC, width=1, sc=' sc1', tag='rst')
        else:
            em('s_mov_b32 exec_lo, 0xff'); em('s_mov_b32 exec_hi, 0xff')
            for l in range(2): self.wsstore(v(D), t0, sKTo, l * 0x8000, width=1, sc=' sc1', tag='rst')
        em('s_mov_b64 exec, -1')
        em.cond_end()
        em.label(L)
        L = em.newlabel('Lrc')
        em(f's_cmp_ge_u32 {sCsp}, 3'); em(f's_cbranch_scc1 {L}')
        em.cond_begin()
        em(f'v_lshlrev_b32 {t0}, 2, {vLane}'); em(f'v_mov_b32 {v(D)}, -1')
        em(f's_mul_i32 {sT2}, {sJ}, 384'); em(f's_lshl_b32 {sR}, {sCsp}, 7'); em(f's_add_u32 {sT2}, {sT2}, {sR}')
        em('s_mov_b32 exec_hi, 0')
        self.wsstore(v(D), t0, sT2, WS_CS, width=1, sc=' sc1', tag='rst')
        em('s_mov_b64 exec, -1')
        em.cond_end()
        em.label(L)
        def msg():
            em(f'v_lshlrev_b32 {t0}, 4, {vTid}'); em(f's_not_b32 {sT2}, {sNonce}')
            for r in range(4): em(f'v_mov_b32 {v(D+r)}, {sT2}')
            em(f'v_cmp_gt_u32 vcc, 136, {vTid}'); em(f's_and_saveexec_b64 {sEx}, vcc')
            em(f's_mul_i32 {sT2}, {sG}, {MSG_B}'); em(f's_add_u32 {sT2}, {sT2}, {sJmsg}')
            for l in range(2): self.wsstore(v(D, 4), t0, sT2, l * 256 * MSG_B, sc=' sc1', tag='rst')
            em(f's_mov_b64 exec, {sEx}')
        if self.o.prewrite: self.only_wave(3, msg, invert=True)
    def reset_items(self, D, which):
        em = self.em
        it = [f'v_mov_b32 {v(D+r)}, 0' for r in range(4)]
        if 'rst' in self.o.abl: which = 'x'
        rsc = {'x': ' sc1' if 'x' in self.o.rsc else None, 'h': ' sc1' if 'h' in self.o.rsc else None}
        def x():
            em(f's_and_b32 {sT2}, {sW}, 1'); em(f's_mul_i32 {sT2}, {sT2}, 1792'); em(f's_add_u32 {sT2}, {sT2}, {sXst}')
            self.wsstore(v(D, 4), vL16, sT2, 0, tag='rst', sc=rsc['x']); self.wsstore(v(D, 4), vL16, sT2, 0, tag='rst', off=1024, sc=rsc['x'])
        if 'x' in which: it.append(x)
        def h(p):
            self.wsstore(v(D, 4), vL16, sHks, p * 2048, tag='rst', sc=rsc['h']); self.wsstore(v(D, 4), vL16, sHks, p * 2048, tag='rst', off=1024, sc=rsc['h'])
        if 'h' in which: it += [lambda: h(0), lambda: h(1)]
        def h2():
            L = em.newlabel('Lr3')
            em(f's_cmp_ge_u32 {sJ}, 11'); em(f's_cbranch_scc1 {L}')
            em.cond_begin(); h(2); em.cond_end()
            em.label(L)
        if 'h' in which: it.append(h2)
        def st():
            em(f'v_and_b32 {v(D+4)}, 512, {vP}'); em(f'v_add_u32 {v(D+4)}, {v(D+4)}, {vP}')
            em('s_mov_b32 exec_hi, 0')
            for i in range(3): self.wsstore(v(D), v(D + 4), sStst, i * 16 * 8192, width=1, tag='rst')
            em('s_mov_b64 exec, -1')
        if 'x' in which: it.append(st)
        return it

    def check(self, regs, reload, tmp=None, split=False, kind='sent', tag=None, again=None):
        em = self.em
        if self.o.nochk and split and kind != 'h': return lambda: None
        F = em.newlabel('Lfix'); R = em.newlabel('Lret'); G_ = em.newlabel('Lok')
        dst = 'vcc' if split else sEx
        def test(e):
            r = regs[0]
            if r.startswith('a'): e(f'v_accvgpr_read_b32 {tmp}, {r}'); r = tmp
            if kind == 'sent':
                rest = list(regs)
                e(f'v_max_u32 {tmp}, {rest[0]}, {rest[1]}'); rest = rest[2:]
                while rest:
                    e(f'v_max3_u32 {tmp}, {rest[0]}, {rest[1]}, {tmp}'); rest = rest[2:]
                e(f'v_cmp_eq_u32 {dst}, -1, {tmp}')
            elif kind == 'h':
                if tag:
                    for q in regs: e(f'v_xor_b32 {q}, 0x80000000, {q}')
                if len(regs) == 2: e(f'v_or_b32 {tmp}, {regs[0]}, {regs[1]}'); r = tmp
                e(f'v_cmp_gt_i32 {dst}, 0, {r}')
            elif len(regs) <= 2:
                r1 = regs[-1]
                if r1.startswith('a'):
                    e(f'v_lshlrev_b32 {tmp}, 31, {tmp}'); e(f'v_cmp_{"eq" if tag else "ne"}_u32 {sEx}, 0, {tmp}')
                    e(f'v_accvgpr_read_b32 {tmp}, {r1}'); e(f'v_lshlrev_b32 {tmp}, 31, {tmp}'); e(f'v_cmp_{"eq" if tag else "ne"}_u32 {dst}, 0, {tmp}')
                    e('s_nop 1'); e(f's_or_b64 vcc, vcc, {sEx}')
                else:
                    e(f'v_bitop3_b32 {tmp}, {r}, {r1}, 1 bitop3:{0x80 if tag else 0xa8:#x}'); e(f'v_cmp_{"eq" if tag else "ne"}_u32 {dst}, 0, {tmp}')
            else:
                assert tag == 1
                rest = list(regs)
                e(f'v_and_b32 {tmp}, {rest[0]}, {rest[1]}'); rest = rest[2:]
                while rest:
                    e(f'v_bitop3_b32 {tmp}, {rest[0]}, {rest[1]}, {tmp} bitop3:0x80'); rest = rest[2:]
                e(f'v_and_b32 {tmp}, 1, {tmp}'); e(f'v_cmp_eq_u32 {dst}, 0, {tmp}')
        test(em)
        def branch():
            if split: em(f's_cbranch_vccnz {F}')
            else: em(f's_cmp_lg_u64 {sEx}, 0'); em(f's_cbranch_scc1 {F}')
            em.label(R)
            out = [F + ':']
            e = lambda t, tag=None: out.append('    ' + t)
            if self.o.ts and not self.o.span: e('s_add_u32 s87, s87, 1')
            def rep():
                for p in em.vmq:
                    if p.tag == 'A': again(e, p)
                    else: e(f's_mov_b32 {sFx}, {WS_DBG + 0x100000}'); e(f'buffer_store_dword {tmp}, off, {SWS}, {sFx}')
            reload(e)
            if again and self.o.fixmode: rep(); e(f's_waitcnt vmcnt({len(em.vmq)})')
            else: e('s_waitcnt vmcnt(0)')
            test(e)
            if split: e(f's_cbranch_vccz {G_}')
            else: e('s_nop 0'); e(f's_cmp_eq_u64 {sEx}, 0'); e(f's_cbranch_scc1 {G_}')
            e(f's_sub_u32 {sSpin}, {sSpin}, 1'); e(f's_cbranch_scc0 {F}'); e(f's_mov_b32 {sSpin}, 0')
            out.append(G_ + ':')
            if again and not self.o.fixmode: rep()
            e(f's_branch {R}')
            self.fixes += out
        if split: return branch
        branch()

    def colsum_items(self, quads, acc, tmp, own, ones, first):
        items = []
        rds = [self.tr(tmp + 4 * (n % 2), q, 0, own) for n, q in enumerate(quads)]
        items += rds[0]
        for n in range(len(quads)):
            if n + 1 < len(quads): items += rds[n + 1]
            items.append(f'{MF} {acc}, {ones}, {v(tmp + 4*(n%2), 4)}, ' + ('0' if first and n == 0 else acc))
        return items
    def cs_write_items(self, srcs, lds, tmp):
        ad = v(tmp)
        it = [f'v_and_b32 {ad}, 31, {vLane}', f'v_lshlrev_b32 {ad}, 4, {ad}', f'v_add_u32 {ad}, {lds:#x}, {ad}',
              f's_lshl_b32 {sT2}, {sW}, 2', f'v_add_u32 {v(tmp+1)}, {sT2}, {ad}']
        return it + [f'ds_write_b32 {v(tmp+1)}, {s} offset:{p*512}' for p, s in enumerate(srcs)]
    def cs_read_items(self, keys, tmp):
        ad = v(tmp); R = tmp + 2
        it = [f'ds_read_b128 {v(R+4*p,4)}, {ad} offset:{p*512}' for p in range(len(keys))]
        for p, k in enumerate(keys):
            r = R + 4 * p
            it += [f'v_add_f32 {v(r)}, {v(r)}, {v(r+1)}', f'v_add_f32 {v(r+2)}, {v(r+2)}, {v(r+3)}', f'v_add_f32 {v(r)}, {v(r)}, {v(r+2)}',
                   f'v_cvt_pk_bf16_f32 {v(r+1)}, {v(r)}, {v(r)}', f'v_lshlrev_b32 {v(r+1)}, 16, {v(r+1)}', f'v_sub_f32 {v(r+1)}, {v(r)}, {v(r+1)}',
                   f'v_cvt_pk_bf16_f32 {CS[k]}, {v(r)}, {v(r+1)}']
        return it
    def colsum_exchange(self, srcs, keys, lds, tmp):
        self.emit(self.cs_write_items(srcs, lds, tmp)); self.barrier(); self.emit(self.cs_read_items(keys, tmp))

    def stage_dma(self, srd, m, qa, qb, tag):
        if 'w2' in self.o.abl and srd == SW2: return
        if 'wo' in self.o.abl and srd == SWO: return
        em = self.em
        if srd == SWO:
            em(f's_add_u32 {sR}, {sRot2}, {m}'); em(f's_and_b32 {sR}, {sR}, 7'); em(f's_lshl_b32 {sR}, {sR}, 16')
        else:
            self.tab4(m, sR, 16)
        em(f's_add_u32 {sR}, {sR}, {sC128}')
        self.dma(srd, vDs, sR, 0, qa, tag, nt=self.o.nt_stage); self.dma(srd, vDs, sR, 8192, qb, tag, nt=self.o.nt_stage)
    def tab4(self, st, dst, sh, em=None):
        em = em or self.em
        em(f's_bfe_u32 {dst}, {sTab[st // 6]}, {(5 * (st % 6)) | (5 << 16):#x}'); em(f's_lshl_b32 {dst}, {dst}, {sh}')
    def stage_read_items(self, abase, m, qa, qb):
        items = []
        for h, q in enumerate((qa, qb)):
            addr = q * 4096; win = addr >> 16; off = addr & 0xFFFF
            def f(win=win, off=off, h=h):
                if win == 0: b0, b1 = vS0, vS1
                else:
                    if self.swin != win:
                        self.em(f'v_add_u32 {vS0w}, {win*65536:#x}, {vS0}'); self.em(f'v_add_u32 {vS1w}, {win*65536:#x}, {vS1}'); self.swin = win
                    b0, b1 = vS0w, vS1w
                self.em(f'ds_read_b64_tr_b16 {a(abase + m*8 + 2*h, 2)}, {b0} offset:{off}')
                self.em(f'ds_read_b64_tr_b16 {a(abase + m*8 + 4 + 2*h, 2)}, {b1} offset:{off}')
            items.append(f)
        return items

    def aux_items(self, S, Q, t0, need_r=True):
        it = [f'v_mul_f32 {S}, {sInv}, {S}']
        if need_r:
            it += [f'v_mul_f32 {Q}, {sInv}, {Q}', f'v_fma_f32 {Q}, -{S}, {S}, {Q}', f'v_max_f32 {Q}, 0, {Q}', f'v_add_f32 {Q}, {sEps}, {Q}',
                   f'v_rsq_f32 {Q}, {Q}', f'v_mul_f32 {vRl}, {sLog2e}, {Q}']
        it += [f'v_cndmask_b32_e64 {S}, 0, -{S}, {sLo}',
               f'v_cvt_pk_bf16_f32 {v(AUX)}, {S}, {S}', f'v_lshlrev_b32 {t0}, 16, {v(AUX)}', f'v_sub_f32 {S}, {S}, {t0}', f'v_cvt_pk_bf16_f32 {v(AUX+1)}, {S}, {S}']
        if need_r:
            it += [f'v_cndmask_b32 {Q}, 0, {vRl}, {sLo}', f'v_cvt_pk_bf16_f32 {t0}, {Q}, {Q}', f'v_lshlrev_b32 {t0}, 16, {t0}', f'v_sub_f32 {t0}, {Q}, {t0}',
                   f'v_cvt_pk_bf16_f32 {v(AUX+2)}, {Q}, {t0}']
        return it
    def aux_const_items(self):
        return [f'v_mov_b32 {v(AUX+2)}, 0', f'v_mov_b32 {v(AUX+3)}, 0', f'v_mov_b32 {v(CB+2)}, 0', f'v_mov_b32 {v(CB+3)}, 0', f'v_mov_b32 {v(CB+4)}, 0x3f803f80', f'v_mov_b32 {v(CB+5)}, 0x3f803f80']
    def corr_items(self, key, acc, swapAB):
        c = v(acc, 16)
        return [f'v_mov_b32 {v(CB)}, {CS[key]}', f'v_mov_b32 {v(CB+1)}, {CS[key]}',
                f'{MF} {c}, {v(AUX,4)}, {v(CB,4)}, {c}' if swapAB else f'{MF} {c}, {v(CB,4)}, {v(AUX,4)}, {c}']
    def stats_T_loads(self, i, e=None):
        e = e or self.em
        t = MR + 16
        e(f's_add_u32 {sFx}, {sG8K}, {i * 16 * 8192}')
        e(f'buffer_load_dwordx4 {v(t,4)}, {vStT}, {SWS}, {sFx} offen sc1', tag='stat'); e(f'buffer_load_dwordx4 {v(t+4,4)}, {vStT}, {SWS}, {sFx} offen offset:512 sc1', tag='stat')
    def stats_T_items(self, need_r, sti):
        t = MR + 16
        it = [lambda: self.check([v(t + r) for r in range(8)], lambda e: self.stats_T_loads(sti, e), v(38), kind='x', tag=sTxn)]
        it += [f'v_add_f32 {v(t)}, {v(t)}, {v(t+1)}', f'v_add_f32 {v(t+2)}, {v(t+2)}, {v(t+3)}', f'v_add_f32 {v(t+4)}, {v(t+4)}, {v(t+5)}',
              f'v_add_f32 {v(t+6)}, {v(t+6)}, {v(t+7)}', f'v_add_f32 {v(t)}, {v(t)}, {v(t+2)}', f'v_add_f32 {v(t+4)}, {v(t+4)}, {v(t+6)}',
              f'v_add_f32 {v(t)}, {v(t)}, {v(t+4)}', f'v_mov_b32 {v(t+1)}, {v(t)}', f'v_permlane32_swap_b32 {v(t)}, {v(t+1)}']
        return it + self.aux_items(v(t), v(t + 1), v(t + 2), need_r)

    def pass2(self, steps, planes, accs, swapAB, side, fill, loader=None, first=True, extra=None, third=None):
        em = self.em
        steps = list(steps)
        n3 = third[2] if third else 0
        def rd3(i):
            ks = steps[i]
            for t in self.tr(MR + 24 + (i % 2) * 4, third[0][ks >> 2], ks & 3): em(t, tag=('B', i))
        def rd(i, p):
            ks = steps[i]
            for t in self.tr(BB + (i % 2) * 8 + 4 * p, planes[p][ks >> 2], ks & 3): em(t, tag=('B', i))
        for i in range(2):
            for p in range(2): rd(i, p)
            if i < n3: rd3(i)
        br = extra(0)
        for i, ks in enumerate(steps):
            if br: br(); br = None
            if self.o.ts2 and (self.S == 0) != bool(self.o.ts2l1) and i == 0: self.ts('first')
            lg = [k for k, p in enumerate(em.lgq) if p.tag == ('B', i)]
            need = [XORD[k] for k in (i + 1, i + 2) if k < len(steps)] if i % 2 else []
            vm = [k for k, p in enumerate(em.vmq) if p.tag == 'A' and XORD[self.ldidx[id(p)]] in need]
            em.force_wait(vm=len(em.vmq) - 1 - max(vm) if vm else None, lg=len(em.lgq) - 1 - max(lg) if lg else None)
            for p in range(2):
                w = v(BB + (i % 2) * 8 + 4 * p, 4); x = Afrag(ks); c = v(accs[p], 16)
                src = '0' if (first and i == 0) else c
                em(f'{MF} {c}, {x}, {w}, {src}' if swapAB else f'{MF} {c}, {w}, {x}, {src}')
                if i + 2 < len(steps): rd(i + 2, p)
                if p == 0: loader(i)
                if p == 0 and i + 1 < len(steps): br = extra(i + 1)
                if not (p == 0 and br): side.run(fill(i) if callable(fill) else fill)
                if p == 1 and i < n3:
                    c3 = v(third[1], 16)
                    em(f'{MF} {c3}, {v(MR + 24 + (i % 2) * 4, 4)}, {x}, ' + ('0' if i == 0 else c3))
                    if i + 2 < n3: rd3(i + 2)
                    side.run(fill(i))
                if self.o.ts2 and (self.S == 0) != bool(self.o.ts2l1) and p == 1 and i in (0, 3, 7, 11, 15, 19, 23, 27, 31): self.ts(f's{i}')
    def pass1(self, plane, acc, side, fill, steps=None):
        em = self.em
        NB = 4
        first = steps is None
        steps = list(range(32)) if steps is None else list(steps)
        def rd(i):
            for t in self.tr(BB + (i % NB) * 4, plane[steps[i] >> 2], steps[i] & 3): em(t)
        for i in range(NB - 1): rd(i)
        for i, ks in enumerate(steps):
            w = v(BB + (i % NB) * 4, 4); c = v(acc, 16)
            if i + NB - 1 < len(steps): rd(i + NB - 1)
            em(f'{MF} {c}, {w}, {Afrag(ks)}, ' + ('0' if first and i == 0 else c))
            side.run(fill(i) if callable(fill) else fill)
    def xld(self, i, e=None):
        ks = XORD[i]
        r = (e or self.em)(f'buffer_load_dwordx4 {Afrag(ks)}, {vAX}, {SWS}, {(sXl if ks & 2 else sXm)[ks >> 2]} offen offset:{(ks & 1) * 1024} sc1', tag='A')
        if e is None: self.ldidx[id(r)] = i
    def x_prefetch(self, off, n0, n1):
        if n0 == 0:
            self.em(f's_add_u32 {sT}, {sGXw}, {off}'); self.em(f'v_add_u32 {vAX}, {sT}, {vL16}')
        for i in range(n0, n1): self.xld(i)
    def a_loader(self, pre, sti, xtag):
        nxt = [pre]
        def step(i):
            if i == self.o.statstep - 10: self.stats_T_loads(sti)
            for _ in range(2 if i < self.o.burst else 1):
                if nxt[0] < 32: self.xld(nxt[0]); nxt[0] += 1
            self.xdone = nxt[0] >= 32
        def chk(i):
            if i % 2: return None
            f0 = lambda k: (lambda r: r[0] + r[2:].split(':')[0])(Afrag(XORD[k]))
            return self.check([f0(i), f0(i + 1)], lambda e: (self.xld(i, e), self.xld(i + 1, e)), v(38), split=True, kind='x', tag=xtag,
                              again=lambda e, p: self.xld(self.ldidx[id(p)], e))
        return step, chk

    def phi_items(self, acc, rl, lanes_t, E):
        out = []
        for g in range(2):
            b = acc + 8 * g
            for k in range(4):
                x = v(b + 2 * k, 2)
                if lanes_t:
                    out += [f'v_fma_f32 {v(b+2*k)}, {v(b+2*k)}, {rl}, {sDelta}', f'v_fma_f32 {v(b+2*k+1)}, {v(b+2*k+1)}, {rl}, {sDelta}']
                else: out.append(f'v_pk_fma_f32 {x}, {x}, {v(rl + 8*g + 2*k, 2)}, {sDelta2}')
            for k in range(8): out.append(f'v_exp_f32_e64 {v(E+k)}, {v(b+k)} clamp')
            for k in range(8): out.append(f'v_max_f32 {v(b+k)}, {sDelta}, {v(b+k)}')
            for k in range(4): out.append(f'v_pk_fma_f32 {v(b+2*k,2)}, {v(b+2*k,2)}, {sLn22}, {v(E+2*k,2)}')
            for k in range(4): out.append(f'v_cvt_pk_bf16_f32 {v(acc+4*g+k)}, {v(b+2*k)}, {v(b+2*k+1)}')
        return out

    def p1_start(self):
        em = self.em; o = self.o
        self.lin = True
        X = MR; OWN = [v(MR + 4), v(MR + 5), v(MR + 6)]; H = v(MR + 7); ONE = v(MR + 8, 4); CT = MR + 12
        self.OWN, self.ONE = OWN, ONE
        aS, aCk, aCv = a(0, 16), a(32, 16), a(48, 16); QA = ACC + 32
        em(f'v_and_b32 v27, 7, {vLane}'); em('v_lshlrev_b32 v27, 7, v27')
        em(f'v_bfe_u32 v28, {vLane}, 3, 2'); em('v_lshl_add_u32 v27, v28, 12, v27')
        em(f's_add_u32 {sT}, {sWl}, {24*4096}'); em(f'v_add_u32 v27, {sT}, v27')
        em(f'v_bfe_u32 v28, {vLane}, 1, 3'); em(f'v_xor_b32 v28, v28, {vHi}')
        for kk in range(4):
            em(f'v_xor_b32 v29, {2*kk}, v28'); em(f'v_lshl_add_u32 {v(X+kk)}, v29, 4, v27')
        for i in range(3): em(f'v_add_u32 {OWN[i]}, {sWl}, {vTr[i]}')
        for i in range(4): em(f'v_mov_b32 {v(MR+8+i)}, 0x3f803f80')
        for sm, bit in ((sM0, 1), (sM1, 2), (sM3, 8), (sM4, 16)):
            em(f'v_and_b32 v29, {bit}, {vLane}'); em(f'v_cmp_ne_u32 {sm}, 0, v29')
        em(f'v_bfe_u32 v29, {vLane}, 2, 1'); em(f'v_cmp_eq_u32 s[46:47], v29, {vHi}')
        if o.tw == 0: self.touch_w('v29', MR + 20)
        self.reducer_setup_c() if o.xc else self.reducer_setup()
        self.emit(self.c1rest)
        def own_reads(c):
            em.wait_vm_tag(f'c{c}')
            for kk in range(4): em(f'ds_read_b128 {Afrag(4*c+kk)}, {v(X+kk)} offset:{(c % 3) * 16384}')
            for p, pl in enumerate('kv'): self.emit(self.tr(CT + 4 * p, self.pl[pl][c], 0, OWN))
        side = Side(em)
        self.stq = list(range(24, 32)) + [34, 35, 32, 33, 36, 37, 38, 39]
        if o.ts2: self.ts('pre0')
        own_reads(0)
        self.ts('c0')
        for c in range(8):
            em('s_barrier')
            if c + 2 < 8: side.add(*self.chunk_items(c + 2))
            if c == 0: side.add(self.nonce_hello)
            if c == 1: side.add(self.resets)
            self.touch_at(f'c{c}', side, 'v27')
            if o.rste and c == o.rste:
                def early_resets():
                    keep = self.sc; self.sc = ' sc1'
                    self.emit(self.reset_items(MR + 24, 'xh')); self.sc = keep
                side.add(early_resets)
            if c == o.tqc: side.add(lambda: self.touch_q('v27', MR + 24))
            if c == o.tw - 1: side.add(lambda: self.touch_w('v27', MR + 20))
            if c == 1:
                def w1p():
                    em(f's_lshl_b32 {sT2}, {sW}, 6'); em(f's_add_u32 {sT2}, {sT2}, {sW1c0}'); em(f's_cmp_lt_u32 {sW}, 2'); em(f's_cselect_b32 {sT2}, {sT2}, {sW1c2}')
                    em(f's_lshl_b32 {sR}, {sG}, 1'); em(f's_sub_u32 {sR}, {sR}, {sW}'); em(f's_mul_i32 {sR}, {sR}, {16*2752}')
                    em(f'v_add_u32 v28, {sR}, {vD1}')
                    self.dma(SW1, 'v28', sT2, 0, 36, 'w1p'); self.dma(SW1, 'v28', sT2, 16 * 2752, 37, 'w1p')
                side.add(w1p)
            if c == 5:
                aW = a(80, 16); W = MR + 24
                side.add(lambda: em.wait_vm_tag('w1p'))
                side.add(*self.tr(W, 36, 0, OWN)); side.add(*self.tr(W + 4, 37, 0, OWN))
                side.add(f'{MF} {aW}, {ONE}, {v(W,4)}, 0', f'{MF} {aW}, {ONE}, {v(W+4,4)}, {aW}')
            if c == 6:
                def w1s():
                    W = MR + 24
                    em(f'v_accvgpr_read_b32 {v(W)}, a80'); em(f's_and_b32 {sT2}, {sNonce}, 0xff'); em(f'v_mov_b32 {v(W+1)}, {sT2}')
                    em(f'v_and_or_b32 {v(W)}, {v(W)}, {sMaskInv}, {v(W+1)}'); em(f'v_lshlrev_b32 {v(W+1)}, 2, {vLane}')
                    em(f's_min_u32 {sR}, {sW}, 2'); em(f's_lshl_b32 {sR}, {sR}, 7')
                    em(f's_mul_i32 {sT2}, {sG}, {MSG_B}'); em(f's_add_u32 {sT2}, {sT2}, {sJmsg}'); em(f's_add_u32 {sT2}, {sT2}, {sR}')
                    em('s_mov_b32 exec_hi, 0')
                    self.wsstore(v(W), v(W + 1), sT2, 2176, width=1, sc=' sc1', tag='rst')
                    em('s_mov_b64 exec, -1')
                side.add(w1s)
            if c == 5:
                def hello():
                    em(f's_add_u32 {sT2}, {sG128}, {WS_HELLO}')
                    em(f'buffer_load_dword {H}, {vPoll}, {SWS}, {sT2} offen sc1', tag='hello')
                side.add(hello)
            if c >= 5:
                for m in range(8):
                    if o.qsched[m] == str(c): side.add(lambda m=m: self.qkv_dma('q', m, 'q'))
            def rd(kk, p):
                self.emit(self.tr(BB + (kk % 2) * 8 + 4 * p, self.pl['kv'[p]][c], kk))
            for kk in range(2):
                for p in range(2): rd(kk, p)
            cnt = [0]
            def tick():
                cnt[0] += 1
                if c < 7 and cnt[0] % o.cgap == o.cgap - 1: side.run(1)
            for p, acc in enumerate((aCk, aCv)):
                em(f'{MF} {acc}, {ONE}, {v(CT+4*p,4)}, ' + ('0' if c == 0 else acc)); tick()
            for kk in range(4):
                ks = 4 * c + kk
                em(f'{MF} {aS}, {ONE}, {Afrag(ks)}, ' + ('0' if ks == 0 else aS)); tick()
                em(f'{MF} {v(QA,16)}, {Afrag(ks)}, {Afrag(ks)}, ' + ('0' if ks == 0 else v(QA, 16))); tick()
            if c == 7:
                S, Q, T = v(MR + 20), v(QA), v(MR + 22)
                tail = [f'v_accvgpr_read_b32 {v(MR+20)}, a32', f'v_accvgpr_read_b32 {v(MR+21)}, a48']
                tail += self.cs_write_items([v(MR + 20), v(MR + 21)], 32 * 4096, MR + 22) + [self.barrier] + self.cs_read_items(['k', 'v'], MR + 22)
                tail += [f'v_accvgpr_read_b32 {S}, a0']
                for r in range(8): tail.append(f'v_cndmask_b32 {v(QA+r)}, {v(QA+2*r)}, {v(QA+2*r+1)}, {sM0}')
                for r in range(4): tail.append(f'v_cndmask_b32 {v(QA+r)}, {v(QA+2*r)}, {v(QA+2*r+1)}, {sM1}')
                for r in range(2): tail.append(f'v_cndmask_b32 {v(QA+r)}, {v(QA+2*r)}, {v(QA+2*r+1)}, {sM3}')
                tail += [f'v_cndmask_b32 {Q}, {Q}, {v(QA+1)}, {sM4}', f'v_cndmask_b32 {Q}, 0, {Q}, s[46:47]',
                         f'v_mov_b32 {T}, {Q}', f'v_permlane32_swap_b32 {Q}, {T}', f'v_add_f32 {Q}, {Q}, {T}']
                tail += self.aux_const_items() + self.aux_items(S, Q, T)
                side.q = tail + side.q
            for kk in range(4):
                ks = 4 * c + kk
                for p in range(2):
                    cc = v(ACC + 16 * p, 16)
                    em(f'{MF} {cc}, {Afrag(ks)}, {v(BB + (kk % 2) * 8 + 4 * p, 4)}, ' + ('0' if ks == 0 else cc))
                    if kk + 2 < 4: rd(kk + 2, p)
                    if c < 7: tick()
                    else: side.run(7)
                if kk == o.ownpos and c + 1 < 8: own_reads(c + 1)
            if c < 7: side.flush()
            if c in (1, 3, 5) and not o.ts2: self.ts(f'c{c}e')
        side.flush()
        self.ts('kvpass')
        self.emit(self.corr_items('k', ACC, True)); self.emit(self.corr_items('v', ACC + 16, True))
        L = em.newlabel('Lhp'); D = em.newlabel('Lhd')
        em.wait_vm_tag('hello')
        em.label(L)
        em(f'v_subrev_u32 {v(TMP)}, {sNonce}, {H}'); em(f'v_add_u32 {v(TMP)}, -1, {v(TMP)}')
        em(f'v_cmp_le_u32 vcc, 16, {v(TMP)}')
        em(f's_cbranch_vccz {D}')
        em.cond_begin()
        em(f's_add_u32 {sT2}, {sG128}, {WS_HELLO}')
        em(f'buffer_load_dword {H}, {vPoll}, {SWS}, {sT2} offen sc1'); em.force_wait(vm=0)
        em.cond_end()
        self.spin_tail(L)
        em.label(D)
        em(f'v_cmp_ne_u32 vcc, {sHello}, {H}')
        for i in range(3): em(f'v_mov_b32 {v(TMP+i)}, {OWN[i]}')
        self.OWN = [v(TMP), v(TMP + 1), v(TMP + 2)]
        em(f'{MF} {v(MR,16)}, {v(AUX,4)}, {v(CB+2,4)}, 0')
        self.ts('decide')

    def p1_rest(self, l):
        em = self.em; o = self.o
        K, V, Q = ACC, ACC + 16, ACC + 32
        RL = MR; E = MR + 16
        sq = self.pl['k'][:4]
        sa = 36 * 4096
        mw, mr, fac, t16, tg = v(V + 8), v(V + 9), v(V + 10), v(V + 11), v(V + 12)
        u, x1, x2 = v(V + 13), v(V + 14), v(V + 15)
        self.emit(self.phi_items(K, RL, False, E))
        D0, D1 = MR, MR + 16
        rest = []
        for hh in range(2):
            rest += [f'v_pk_mul_f32 {v(V+2*r,2)}, {v(V+2*r,2)}, {v(RL+2*r,2)}' for r in range(4 * hh, 4 * hh + 4)]
            rest += [f'v_cvt_pk_bf16_f32 {v(V+r)}, {v(V+2*r)}, {v(V+2*r+1)}' for r in range(4 * hh, 4 * hh + 4)]
        W_ = E
        rest = rest[:8] + [f'v_mov_b32 {v(K+8+r)}, {v(CB+4)}' for r in range(8)] + [f'v_permlane16_swap_b32 {v(V+r)}, {v(K+8+r)}' for r in range(4)] + rest[8:]
        rest += [f'{MF} {v(D1,16)}, {v(K,4)}, {v(K+8,4)}, 0']
        rest += [f'v_permlane16_swap_b32 {v(V+r)}, {v(K+8+r)}' for r in range(4, 8)]
        rest += [f'{MF} {v(D0,16)}, {v(K,4)}, {v(V,4)}, 0', f'{MF} {v(D1,16)}, {v(K+4,4)}, {v(K+12,4)}, {v(D1,16)}',
                 f'{MF} {v(D0,16)}, {v(K+4,4)}, {v(V+4,4)}, {v(D0,16)}']
        if l == 0 and not o.qlate:
            for r in range(4): em(f'v_mov_b32 {v(BB+8+r)}, {v(CB+4)}')
            cs = [lambda: em.wait_vm_tag('q')] + self.colsum_items(self.pl['q'], v(Q, 16), BB, self.OWN, v(BB + 8, 4), True)
            mixed = []
            while rest or cs:
                mixed += rest[:1] + cs[:1]; rest = rest[1:]; cs = cs[1:]
            rest = mixed
        self.emit(rest)
        self.emit([f's_lshl_b32 {sT2}, {sW}, 12', f's_add_u32 {sT2}, {sT2}, {sa}', f'v_add_u32 {mw}, {sT2}, {vL16}',
                   f'v_bfe_u32 {x1}, {vLane}, 1, 4', f'v_lshl_add_u32 {x1}, {vHi}, 5, {x1}', f'v_lshlrev_b32 {x1}, 4, {x1}',
                   f's_lshl_b32 {sT2}, {sW}, 11', f'v_add_u32 {x1}, {sT2}, {x1}',
                   f'v_bfe_u32 {x2}, {vLane}, 1, 2', f'v_lshlrev_b32 {x2}, 9, {x2}', f'v_bfe_u32 {u}, {vLane}, 2, 1', f'v_lshl_add_u32 {x2}, {u}, 10, {x2}', f'v_add_u32 {x2}, 256, {x2}',
                   f's_cmp_eq_u32 {sW}, 2', f's_cselect_b64 vcc, -1, 0', f'v_cndmask_b32 {mr}, {x1}, {x2}, vcc',
                   f'v_and_b32 {x1}, 1, {vLane}', f'v_lshl_add_u32 {mr}, {x1}, 10, {mr}', f'v_add_u32 {mr}, {sa:#x}, {mr}',
                   f'v_add_u32 {t16}, {sWl}, {vL16}', f's_and_b32 {sT2}, {sNonce}, 0xff', f'v_mov_b32 {tg}, {sT2}',
                   f'v_lshrrev_b32 {x1}, 3, {vLane}', f'v_mul_u32_u24 {x1}, {MSG_B}, {x1}', f'v_and_b32 {x2}, 7, {vLane}', f'v_lshl_add_u32 {fac}, {x2}, 4, {x1}'])
        self.kt_voff(u, x1)
        for i, r in ((2, D1 + 8), (3, D1 + 12), (0, D0), (1, D0 + 4)): em(f'ds_write_b128 {mw}, {v(r,4)} offset:{i*1024}')
        if l == 0 and not o.qlate: self.emit(self.cs_write_items([v(Q)], 33 * 4096, V))
        if not o.qlate: em.wait_vm_tag('q')
        self.barrier()
        if not o.ts2: self.ts('kvbar')
        M = MR
        if o.xc: return self.exchange_c(l, mw, mr, fac, t16, tg, u, x1, x2)
        ga = fac; G = MR + 4; A0 = x1; sOK = 's48'
        def msg_out():
            for i in range(4): em(f'ds_read_b128 {v(M+4*i,4)}, {mr} offset:{i*4096}')
            for r in (0, 2): em(f'v_pk_add_f32 {v(M+r,2)}, {v(M+r,2)}, {v(M+4+r,2)}')
            for r in (0, 2): em(f'v_pk_add_f32 {v(M+8+r,2)}, {v(M+8+r,2)}, {v(M+12+r,2)}')
            for r in (0, 2): em(f'v_pk_add_f32 {v(M+r,2)}, {v(M+r,2)}, {v(M+8+r,2)}')
            em(f'v_cmp_gt_u32 vcc, 2176, {t16}')
            for r in range(4): em(f'v_and_or_b32 {v(M+r)}, {v(M+r)}, {sMaskInv}, {tg}')
            em(f's_mul_i32 {sT2}, {sG}, {MSG_B}'); em(f's_add_u32 {sT2}, {sT2}, {sJmsg}')
            em('s_mov_b64 exec, vcc')
            self.wsstore(v(M, 4), t16, sT2, l * 256 * MSG_B, sc=' sc1', tag='msg')
            em('s_mov_b64 exec, -1')
        self.only_wave(3, msg_out, invert=True)
        def if_pending(f):
            L = em.newlabel('Lp')
            em(f's_cmp_lg_u32 {sOK}, 0'); em(f's_cbranch_scc1 {L}')
            em.cond_begin(); f(); em.vmq = [p for p in em.vmq if p.tag != 'g']; em.cond_end()
            em.label(L)
            self.gmark = set(id(p) for p in em.vmq)
        def g_loads():
            em(f's_mov_b64 exec, {sX0}'); self.wsload(v(G, 4), ga, sLine, l * 256 * MSG_B, tag='g')
            em(f's_mov_b64 exec, {sX1}'); self.wsload(v(G + 4, 4), ga, sLine, l * 256 * MSG_B + 8 * MSG_B, tag='g')
            em('s_mov_b64 exec, -1')
        def g_check():
            em(f'v_xor_b32 {A0}, {v(G)}, {tg}')
            for r in (3, 4, 7): em(f'v_bitop3_b32 {A0}, {v(G+r)}, {tg}, {A0} bitop3:0xbe')
            em(f'v_and_b32 {A0}, 0xff, {A0}'); em(f'v_cmp_ne_u32 vcc, 0, {A0}')
        def g_finish():
            for r in (0, 2): em(f'v_pk_add_f32 {v(G+r,2)}, {v(G+r,2)}, {v(G+4+r,2)}')
            for r in range(4): em(f'v_add_f32_dpp {v(G+r)}, {v(G+r)}, {v(G+r)} row_ror:8 {DPPM}')
            em(f'v_permlane16_swap_b32 {v(G)}, {v(G+1)}'); em(f'v_permlane16_swap_b32 {v(G+2)}, {v(G+3)}')
            em(f'v_add_f32 {v(G)}, {v(G)}, {v(G+1)}'); em(f'v_add_f32 {v(G+2)}, {v(G+2)}, {v(G+3)}')
            em(f'v_permlane32_swap_b32 {v(G)}, {v(G+2)}'); em(f'v_add_f32 {v(G)}, {v(G)}, {v(G+2)}')
            em(f'v_mul_f32 {v(G)}, {sFac}, {v(G)}'); em(f'v_mov_b32 {v(G+1)}, {v(G)}')
            em(f'v_permlane16_swap_b32 {v(G)}, {v(G+1)}'); em(f'v_cvt_pk_bf16_f32 {v(G)}, {v(G)}, {v(G+1)}')
            if o.rep8:
                for k in range(2): self.wsstore(v(G), u, sKTo, (l * 8 + k * 4) * KC, width=1, sc=' sc1', tag='kt')
            else:
                em('s_mov_b32 exec_lo, 0xff'); em('s_mov_b32 exec_hi, 0xff')
                self.wsstore(v(G), u, sKTo, l * 0x8000, width=1, sc=' sc1', tag='kt')
            em('s_mov_b64 exec, -1')
            em(f's_mov_b32 {sOK}, 1')
        def first():
            for r in range(4): em(f'v_mov_b32 {v(G+r)}, {v(M+r)}'); em(f'v_mov_b32 {v(G+4+r)}, {v(M+r)}')
            g_loads()
        def attempt():
            em.force_wait(vm=len([p for p in em.vmq if id(p) not in self.gmark]))
            g_check()
            L = em.newlabel('La'); E2 = em.newlabel('Lb')
            em(f's_cbranch_vccnz {L}')
            em.cond_begin(); g_finish(); em.cond_end()
            em(f's_branch {E2}')
            em.label(L)
            g_loads()
            em.label(E2)
        em(f's_xor_b32 {sOK}, {sRed}, 1')
        if_pending(first)
        self.ts('msg')
        side = Side(em)
        if o.qlate:
            base = len(em.vmq) - 1 - max(i_ for i_, p in enumerate(em.vmq) if p.tag == 'q')
            La = em.newlabel('Lq'); Lb = em.newlabel('Lq'); Lc = em.newlabel('Lq')
            em(f's_cmp_eq_u32 {sOK}, 0'); em(f's_cbranch_scc1 {La}')
            em(f's_cmp_eq_u32 {sW}, 3'); em(f's_cbranch_scc0 {Lb}')
            em(f's_waitcnt vmcnt({base})'); em(f's_branch {Lc}')
            em.label(La); em(f's_waitcnt vmcnt({base + 3})'); em(f's_branch {Lc}')
            em.label(Lb); em(f's_waitcnt vmcnt({base + 1})')
            em.label(Lc)
            del em.vmq[:len(em.vmq) - base]
            self.gmark = set(id(p) for p in em.vmq)
            self.barrier()
            if l == 0:
                side.add(*[f'v_mov_b32 {v(MR+12+r)}, {v(CB+4)}' for r in range(4)])
                side.add(*self.colsum_items(self.pl['q'], v(K, 16), V, self.OWN, v(MR + 12, 4), True))
                side.add('s_nop 7', 's_nop 3')
                side.add(*self.cs_write_items([v(K)], 33 * 4096, V)); side.add(self.barrier)
        if l == 0: side.add(*self.cs_read_items(['q'], V))
        self.p1_bg(l, side)
        def fillq(ks):
            if ks == o.gstep: if_pending(attempt)
            return o.fill_p1
        self.pass1(self.pl['q'], Q, side, fillq)
        self.emit(self.corr_items('q', Q, False))
        side.flush()
        if self.lin:
            self.lin = False
            em(f'v_lshlrev_b32 {v(TMP)}, 8, {vHi}')
            for i in range(3): em(f'v_sub_u32 {vTr[i]}, {vTr[i]}, {v(TMP)}')
        self.barrier()
        self.ts('qpass')
        if o.gstep >= 32 or o.att2: if_pending(attempt)
        self.p1_after_q(l)
        self.emit(self.phi_items(Q, vRl, True, E))
        self.wsstore(v(Q, 4), vL16, sQst, 0); self.wsstore(v(Q + 4, 4), vL16, sQst, 0, off=1024)
        if o.rstpos == 1 and l == 0 and not o.rste: self.emit(self.reset_items(ACC + 8, o.rst1))
        self.kt_addr()
        if not o.ts2: self.ts('qst')
        def loop():
            L = em.newlabel('Lg'); D = em.newlabel('Lgd')
            em.force_wait(vm=len([p for p in em.vmq if id(p) not in self.gmark]))
            em.label(L)
            g_check()
            em(f's_cbranch_vccz {D}')
            em.cond_begin(); g_loads(); em.force_wait(vm=0); em.cond_end()
            self.spin_tail(L)
            em.label(D)
            g_finish()
            em.force_wait(vm=2 if o.rep8 else 1)
            em('s_mov_b64 exec, 1')
            em(f'v_mov_b32 {A0}, {sNonce}'); em(f's_add_u32 {sT2}, {sFlag}, {4*l*4096}')
            em(f'buffer_store_dword {A0}, off, {SWS}, {sT2}' + self.sc)
            em('s_mov_b64 exec, -1')
            em(f's_mov_b32 {sOK}, 0')
        if_pending(loop)
        if not o.ts2: self.ts('kvpoll')
        def cs_reduce():
            L0 = em.newlabel('Lc'); L = em.newlabel('Lc'); D = em.newlabel('Lc')
            em(f's_cmp_ge_u32 {sCsp}, 3'); em(f's_cbranch_scc1 {L0}')
            em.cond_begin()
            em(f's_lshl_b32 {sR}, {sCsp}, 7'); em(f's_add_u32 {sR}, {sR}, {sJmsg}')
            em.label(L)
            self.wsload(v(G, 4), ga, sR, 2176); self.wsload(v(G + 4, 4), ga, sR, 2176 + 8 * MSG_B)
            em(f'v_xor_b32 {A0}, {v(G)}, {tg}')
            for r in range(1, 8): em(f'v_bitop3_b32 {A0}, {v(G+r)}, {tg}, {A0} bitop3:0xbe')
            em(f'v_and_b32 {A0}, 0xff, {A0}'); em(f'v_cmp_ne_u32 vcc, 0, {A0}')
            em(f's_cbranch_vccz {D}')
            self.spin_tail(L)
            em.label(D)
            for r in (0, 2): em(f'v_pk_add_f32 {v(G+r,2)}, {v(G+r,2)}, {v(G+4+r,2)}')
            for r in range(4): em(f'v_add_f32_dpp {v(G+r)}, {v(G+r)}, {v(G+r)} row_ror:8 {DPPM}')
            em(f'v_permlane16_swap_b32 {v(G)}, {v(G+1)}'); em(f'v_permlane16_swap_b32 {v(G+2)}, {v(G+3)}')
            em(f'v_add_f32 {v(G)}, {v(G)}, {v(G+1)}'); em(f'v_add_f32 {v(G+2)}, {v(G+2)}, {v(G+3)}')
            em(f'v_permlane32_swap_b32 {v(G)}, {v(G+2)}'); em(f'v_add_f32 {v(G)}, {v(G)}, {v(G+2)}')
            em(f'v_cvt_pk_bf16_f32 {v(G+1)}, {v(G)}, {v(G)}'); em(f'v_lshlrev_b32 {v(G+1)}, 16, {v(G+1)}'); em(f'v_sub_f32 {v(G+1)}, {v(G)}, {v(G+1)}')
            em(f'v_cvt_pk_bf16_f32 {v(G)}, {v(G)}, {v(G+1)}')
            em(f'v_and_b32 {v(G+1)}, 7, {vLane}'); em(f'v_lshlrev_b32 {v(G+1)}, 4, {v(G+1)}'); em(f'v_lshrrev_b32 {v(G+2)}, 4, {vLane}'); em(f'v_lshl_add_u32 {v(G+1)}, {v(G+2)}, 2, {v(G+1)}')
            em(f's_mul_i32 {sT2}, {sJ}, 384'); em(f's_lshl_b32 {sR}, {sCsp}, 7'); em(f's_add_u32 {sT2}, {sT2}, {sR}')
            em('s_mov_b32 exec_lo, 0x00ff00ff'); em('s_mov_b32 exec_hi, 0x00ff00ff')
            self.wsstore(v(G), v(G + 1), sT2, WS_CS, width=1, sc=' sc1', tag='kt')
            em('s_mov_b64 exec, -1')
            em.cond_end()
            em.label(L0)
        def touches():
            t = v(ACC + 8)
            self.retouch(0, t, v(ACC + 9))
            em('s_mov_b32 exec_hi, 0xffff')
            em(f'buffer_load_dword {v(ACC+10)}, {t}, {SWS}, {sHks} offen sc1', tag='touch')
            em(f'v_lshlrev_b32 {t}, 17, {vLane}')
            em(f's_lshl_b32 {sT2}, {sJ}, 2'); em(f's_add_u32 {sT2}, {sT2}, {sW}'); em(f's_lshl_b32 {sT2}, {sT2}, 7'); em(f's_add_u32 {sT2}, {sT2}, {sG8K}')
            em('s_mov_b64 exec, 7')
            em(f'buffer_load_dword {v(ACC+11)}, {t}, {SWS}, {sT2} offen sc1', tag='touch')
            em('s_mov_b64 exec, -1')
        def streams():
            self.p1_gap(l)
            n = o.share if l == 0 else o.share2
            for m in range(n): self.w1dma(0, m, 'w1a'); self.w1dma(1, m, 'w1a')
            self.w1_todo = list(range(n, 4)) + [m for m in self.w1_todo if m >= 4]
            if l == 0 and o.rste and o.tpos == 1: touches()
        if o.xorder & (1 << l):
            self.p2_hook = streams
            def mid():
                if l == 0: cs_reduce()
                if l == 0 and o.rste and o.tpos == 0: touches()
            return self.group_sync(4 * l + 0, mid=mid, bar=False, skipif=sOK, tags=None)
        self.p2_hook = None
        def mid():
            if l == 0: self.touch_at('g', None, v(ACC + 8))
            if l == 0: cs_reduce()
            if l == 0 and o.rste: touches()
            def l2w2():
                em(f'v_lshlrev_b32 {v(G)}, 7, {vLane}'); em(f's_lshr_b32 {sT2}, s2, 3'); em(f's_mul_i32 {sT2}, {sT2}, {344*128}')
                for k in range(6):
                    if k == 5: em('s_mov_b64 exec, 0xffffff')
                    em(f's_add_u32 {sT}, {sT2}, {k*8192}')
                    em(f'buffer_load_dword {v(G+1+k)}, {v(G)}, {SW2}, {sT} offen', tag='l2')
                    if o.thr2 and k >= o.thr2 - 1: em.force_wait(vm=o.thr2 - 1)
                em('s_mov_b64 exec, -1')
                em.vmq = [p for p in em.vmq if p.tag != 'l2']
            if l == 0 and o.tw2 == 1: self.only_wave(3, l2w2)
            self.p1_gap(l)
            if o.share >= 0:
                n = o.share if l == 0 else o.share2
                for m in range(n): self.w1dma(0, m, 'w1a'); self.w1dma(1, m, 'w1a')
                self.w1_todo = list(range(n, 4)) + [m for m in self.w1_todo if m >= 4]
            else: self.only_wave(3, lambda: self.p1_loader(l, 3))
            if l == 0 and o.tw2 == 2: self.only_wave(3, l2w2)
        self.group_sync(4 * l + 0, mid=mid, bar=False, skipif=sOK, tags=None)

    def exchange_c(self, l, mw, mr, gz, t16, tg, uz, x1, x2):
        em = self.em; o = self.o
        K, V, Q = ACC, ACC + 16, ACC + 32
        M = MR; G = MR; Z = K + 8; A0 = x1; A1 = x2; sOK = 's48'; IMG = 32 * 4096
        ga, uk, im = mw, mr, v(TMP + 3)
        moff = l * 256 * MSG_B; koff = l * 16 * KT_B
        def msg_out():
            for i in range(4): em(f'ds_read_b128 {v(M+4*i,4)}, {mr} offset:{i*4096}')
            em(f'v_lshrrev_b32 {A0}, 9, {t16}'); em(f'v_and_b32 {A1}, 511, {t16}'); em(f'v_lshl_add_u32 {A0}, {A0}, 10, {A1}')
            em(f's_cmp_eq_u32 {sW}, 2'); em(f's_cselect_b32 {sT2}, 512, 0'); em(f's_sub_u32 {sT2}, {IMG}, {sT2}'); em(f'v_add_u32 {A0}, {sT2}, {A0}')
            for r in (0, 2): em(f'v_pk_add_f32 {v(M+r,2)}, {v(M+r,2)}, {v(M+4+r,2)}')
            for r in (0, 2): em(f'v_pk_add_f32 {v(M+8+r,2)}, {v(M+8+r,2)}, {v(M+12+r,2)}')
            for r in (0, 2): em(f'v_pk_add_f32 {v(M+r,2)}, {v(M+r,2)}, {v(M+8+r,2)}')
            em(f'v_cmp_gt_u32 vcc, 2176, {t16}')
            for r in range(4): em(f'v_and_or_b32 {v(M+r)}, {v(M+r)}, {sMaskInv}, {tg}')
            em(f's_mul_i32 {sT2}, {sG}, {MSG_B}'); em(f's_add_u32 {sT2}, {sT2}, {sJmsg}')
            em('s_mov_b64 exec, vcc')
            self.wsstore(v(M, 4), t16, sT2, moff, sc=' sc1', tag='msg')
            em(f'ds_write_b128 {A0}, {v(M,4)}')
            em('s_mov_b64 exec, -1')
            em.wait_lg(0)
        self.only_wave(3, msg_out, invert=True)
        em(f'v_lshrrev_b32 {A0}, 4, {vLane}'); em(f'v_mul_u32_u24 {A0}, {MSG_B}, {A0}'); em(f'v_and_b32 {A1}, 15, {vLane}')
        em(f'v_lshl_add_u32 {ga}, {A1}, 4, {A0}'); em(f's_lshl_b32 {sT2}, {sW}, 9'); em(f'v_add_u32 {ga}, {sT2}, {ga}')
        em(f'v_lshlrev_b32 {uk}, 3, {A1}'); em(f'v_lshl_add_u32 {uk}, {vHi}, 2, {uk}')
        em(f'v_lshlrev_b32 {im}, 4, {A1}'); em(f's_add_u32 {sT2}, {sWl}, {IMG}'); em(f'v_add_u32 {im}, {sT2}, {im}')
        def w3(f): self.only_wave(3, f)
        def drop(): em.vmq = [p for p in em.vmq if p.tag != 'g']
        def g_loads():
            for s_ in range(4):
                em(f's_lshr_b32 {sR}, {sG}, 2'); em(f's_add_u32 {sR}, {sR}, {s_}'); em(f's_and_b32 {sR}, {sR}, 3'); em(f's_mul_i32 {sR}, {sR}, {4*MSG_B}')
                em(f's_add_u32 {sR}, {sR}, {sJmsg}'); em(f's_add_u32 {sR}, {sR}, {moff}')
                if s_ == 0: em(f's_mov_b64 exec, {sX0}')
                for k in range(2): em(f'buffer_load_dwordx4 {v(G+16*k+4*s_,4)}, {ga}, {SWS}, {sR} offen offset:{k*256} sc1', tag='g')
                if s_ == 0: em('s_mov_b64 exec, -1')
            def z():
                for s_ in range(2):
                    em(f's_lshr_b32 {sR}, {sG}, 3'); em(f's_xor_b32 {sR}, {sR}, {s_}'); em(f's_mul_i32 {sR}, {sR}, {8*MSG_B}'); em(f's_add_u32 {sR}, {sR}, {sJmsg}')
                    if s_ == 0: em(f's_mov_b64 exec, {sX1}')
                    self.wsload(v(Z + 4 * s_, 4), gz, sR, moff + 2048, tag='g')
                    if s_ == 0: em('s_mov_b64 exec, -1')
                drop()
            drop(); w3(z)
            self.gmark = set(id(p) for p in em.vmq)
        def own_fill():
            em(f's_not_b64 exec, {sX0}')
            for k in range(2): em(f'ds_read_b128 {v(G+16*k,4)}, {im} offset:{k*256}')
            em('s_mov_b64 exec, -1')
            def z():
                em(f'v_and_b32 {A0}, 7, {vLane}'); em(f'v_lshlrev_b32 {A0}, 4, {A0}'); em(f'v_add_u32 {A0}, {IMG + 3584:#x}, {A0}')
                em(f's_not_b64 exec, {sX1}')
                em(f'ds_read_b128 {v(Z,4)}, {A0}')
                em('s_mov_b64 exec, -1')
                em.wait_lg(0)
            w3(z)
        def g_check():
            em(f'v_xor_b32 {A0}, {v(G)}, {tg}'); em(f'v_xor_b32 {A1}, {v(G+3)}, {tg}')
            for q in range(1, 8):
                em(f'v_bitop3_b32 {A0}, {v(G+4*q)}, {tg}, {A0} bitop3:0xbe'); em(f'v_bitop3_b32 {A1}, {v(G+4*q+3)}, {tg}, {A1} bitop3:0xbe')
            def z():
                for r in (0, 4): em(f'v_bitop3_b32 {A0}, {v(Z+r)}, {tg}, {A0} bitop3:0xbe'); em(f'v_bitop3_b32 {A1}, {v(Z+r+3)}, {tg}, {A1} bitop3:0xbe')
            w3(z)
            em(f'v_or_b32 {A0}, {A0}, {A1}'); em(f'v_and_b32 {A0}, 0xff, {A0}'); em(f'v_cmp_ne_u32 vcc, 0, {A0}')
        def rows(B, scale):
            em(f'v_permlane16_swap_b32 {v(B)}, {v(B+1)}'); em(f'v_permlane16_swap_b32 {v(B+2)}, {v(B+3)}')
            em(f'v_add_f32 {v(B)}, {v(B)}, {v(B+1)}'); em(f'v_add_f32 {v(B+2)}, {v(B+2)}, {v(B+3)}')
            em(f'v_permlane32_swap_b32 {v(B)}, {v(B+2)}'); em(f'v_add_f32 {v(B)}, {v(B)}, {v(B+2)}')
            if scale: em(f'v_mul_f32 {v(B)}, {sLn2}, {v(B)}')
            em(f'v_mov_b32 {v(B+1)}, {v(B)}')
            em(f'v_permlane16_swap_b32 {v(B)}, {v(B+1)}'); em(f'v_cvt_pk_bf16_f32 {v(B)}, {v(B)}, {v(B+1)}')
        def g_finish():
            for k in range(2):
                B = G + 16 * k
                for r in (0, 2): em(f'v_pk_add_f32 {v(B+r,2)}, {v(B+r,2)}, {v(B+4+r,2)}')
                for r in (0, 2): em(f'v_pk_add_f32 {v(B+8+r,2)}, {v(B+8+r,2)}, {v(B+12+r,2)}')
            for k in range(2):
                B = G + 16 * k
                for r in (0, 2): em(f'v_pk_add_f32 {v(B+r,2)}, {v(B+r,2)}, {v(B+8+r,2)}')
            rows(G, True); rows(G + 16, True)
            em('s_mov_b32 exec_lo, 0xffff'); em('s_mov_b32 exec_hi, 0xffff')
            for k in range(2): self.wsstore(v(G + 16 * k), uk, sKTo, koff, width=1, off=k * 128, tag='kt')
            em('s_mov_b64 exec, -1')
            def z():
                for r in (0, 2): em(f'v_pk_add_f32 {v(Z+r,2)}, {v(Z+r,2)}, {v(Z+4+r,2)}')
                for r in range(4): em(f'v_add_f32_dpp {v(Z+r)}, {v(Z+r)}, {v(Z+r)} row_ror:8 {DPPM}')
                rows(Z, False)
                em('s_mov_b32 exec_lo, 0xff'); em('s_mov_b32 exec_hi, 0xff')
                self.wsstore(v(Z), uz, sLine, koff + 512, width=1, tag='kt')
                em('s_mov_b64 exec, -1')
            w3(z)
            em(f's_mov_b32 {sOK}, 1')
        def if_pending(f):
            L = em.newlabel('Lp')
            em(f's_cmp_lg_u32 {sOK}, 0'); em(f's_cbranch_scc1 {L}')
            em.cond_begin(); f(); drop(); em.cond_end()
            em.label(L)
            self.gmark = set(id(p) for p in em.vmq)
        def attempt():
            em.force_wait(vm=len([p for p in em.vmq if id(p) not in self.gmark]), lg=0)
            g_check()
            L = em.newlabel('La'); E2 = em.newlabel('Lb')
            em(f's_cbranch_vccnz {L}')
            em.cond_begin(); g_finish(); em.cond_end()
            em(f's_branch {E2}')
            em.label(L)
            g_loads()
            em.label(E2)
        def loop():
            L = em.newlabel('Lg'); D = em.newlabel('Lgd')
            em.force_wait(vm=len([p for p in em.vmq if id(p) not in self.gmark]))
            em.label(L)
            g_check()
            em(f's_cbranch_vccz {D}')
            em.cond_begin(); g_loads(); em.force_wait(vm=0); em.cond_end()
            self.spin_tail(L)
            em.label(D)
            g_finish()
        def kt_resets():
            em(f'v_mov_b32 {A0}, -1')
            em('s_mov_b32 exec_lo, 0xffff'); em('s_mov_b32 exec_hi, 0xffff')
            for ll in range(2):
                for k in range(2): self.wsstore(A0, uk, sKTo, ll * 16 * KT_B, width=1, off=k * 128, tag='rst')
            em('s_mov_b64 exec, -1')
            def z():
                em('s_mov_b32 exec_lo, 0xff'); em('s_mov_b32 exec_hi, 0xff')
                for ll in range(2): self.wsstore(A0, uz, sLine, ll * 16 * KT_B + 512, width=1, tag='rst')
                em('s_mov_b64 exec, -1')
            w3(z)
        em(f's_mov_b32 {sOK}, 0')
        if l == 0: kt_resets()
        if o.gfirst < 0: g_loads()
        self.ts('msg')
        side = Side(em)
        if l == 0: side.add(*self.cs_read_items(['q'], V))
        side.add(self.barrier, own_fill)
        self.p1_bg(l, side)
        def fillq(ks):
            if ks == o.gfirst: g_loads()
            if ks == o.gstep: if_pending(attempt)
            return o.fill_p1
        self.pass1(self.pl['q'], Q, side, fillq)
        self.emit(self.corr_items('q', Q, False))
        side.flush()
        if self.lin:
            self.lin = False
            em(f'v_lshlrev_b32 {v(TMP)}, 8, {vHi}')
            for i in range(3): em(f'v_sub_u32 {vTr[i]}, {vTr[i]}, {v(TMP)}')
        self.barrier()
        self.ts('qpass')
        if o.gstep >= 32 or o.att2: if_pending(attempt)
        self.p1_after_q(l)
        self.emit(self.phi_items(Q, vRl, True, BB))
        self.wsstore(v(Q, 4), vL16, sQst, 0); self.wsstore(v(Q + 4, 4), vL16, sQst, 0, off=1024)
        if l == 0: self.emit(self.reset_items(V, o.rst1))
        self.kt_addr()
        if not o.ts2: self.ts('qst')
        def cs_reduce():
            C = BB
            L0 = em.newlabel('Lc'); L = em.newlabel('Lc'); D = em.newlabel('Lc')
            em(f's_cmp_ge_u32 {sCsp}, 3'); em(f's_cbranch_scc1 {L0}')
            em.cond_begin()
            em(f's_lshl_b32 {sR}, {sCsp}, 7'); em(f's_add_u32 {sR}, {sR}, {sJmsg}')
            em.label(L)
            self.wsload(v(C, 4), gz, sR, 2176); self.wsload(v(C + 4, 4), gz, sR, 2176 + 8 * MSG_B)
            em(f'v_xor_b32 {A0}, {v(C)}, {tg}')
            for r in range(1, 8): em(f'v_bitop3_b32 {A0}, {v(C+r)}, {tg}, {A0} bitop3:0xbe')
            em(f'v_and_b32 {A0}, 0xff, {A0}'); em(f'v_cmp_ne_u32 vcc, 0, {A0}')
            em(f's_cbranch_vccz {D}')
            self.spin_tail(L)
            em.label(D)
            for r in (0, 2): em(f'v_pk_add_f32 {v(C+r,2)}, {v(C+r,2)}, {v(C+4+r,2)}')
            for r in range(4): em(f'v_add_f32_dpp {v(C+r)}, {v(C+r)}, {v(C+r)} row_ror:8 {DPPM}')
            em(f'v_permlane16_swap_b32 {v(C)}, {v(C+1)}'); em(f'v_permlane16_swap_b32 {v(C+2)}, {v(C+3)}')
            em(f'v_add_f32 {v(C)}, {v(C)}, {v(C+1)}'); em(f'v_add_f32 {v(C+2)}, {v(C+2)}, {v(C+3)}')
            em(f'v_permlane32_swap_b32 {v(C)}, {v(C+2)}'); em(f'v_add_f32 {v(C)}, {v(C)}, {v(C+2)}')
            em(f'v_cvt_pk_bf16_f32 {v(C+1)}, {v(C)}, {v(C)}'); em(f'v_lshlrev_b32 {v(C+1)}, 16, {v(C+1)}'); em(f'v_sub_f32 {v(C+1)}, {v(C)}, {v(C+1)}')
            em(f'v_cvt_pk_bf16_f32 {v(C)}, {v(C)}, {v(C+1)}')
            em(f'v_and_b32 {v(C+1)}, 7, {vLane}'); em(f'v_lshlrev_b32 {v(C+1)}, 4, {v(C+1)}'); em(f'v_lshrrev_b32 {v(C+2)}, 4, {vLane}'); em(f'v_lshl_add_u32 {v(C+1)}, {v(C+2)}, 2, {v(C+1)}')
            em(f's_mul_i32 {sT2}, {sJ}, 384'); em(f's_lshl_b32 {sR}, {sCsp}, 7'); em(f's_add_u32 {sT2}, {sT2}, {sR}')
            em('s_mov_b32 exec_lo, 0x00ff00ff'); em('s_mov_b32 exec_hi, 0x00ff00ff')
            self.wsstore(v(C), v(C + 1), sT2, WS_CS, width=1, sc=' sc1', tag='kt')
            em('s_mov_b64 exec, -1')
            em.cond_end()
            em.label(L0)
        def streams():
            self.p1_gap(l)
            n = o.share if l == 0 else o.share2
            for m in range(n): self.w1dma(0, m, 'w1a'); self.w1dma(1, m, 'w1a')
            self.w1_todo = list(range(n, 4)) + [m for m in self.w1_todo if m >= 4]
        def mid():
            self.gmark = set()
            if_pending(attempt)
            if not o.ts2: self.ts('kvpoll')
            if l == 0: cs_reduce()
            if o.xorder == 0: streams()
        self.group_sync(4 * l + 0, mid=mid, bar=False, tags=None, modeB=True)
        def after_q_loads():
            if_pending(loop)
            self.ts('gdone')
            if o.xorder == 1: streams()
        self.p2_hook = after_q_loads

    def w1dma(self, p, m, tag):
        if 'w1' in self.o.abl and self.S: return
        if p != 1: self.rot(m, 64 * 2752, sW1c2 if p == 2 else sW1c0)
        if p == 1: self.em(f's_add_u32 {sR}, {sR}, {sW1d}')
        self.dma(SW1, vD1, sR, 0, self.w1pl[p][m], tag)

    def p1_bg(self, l, side):
        em = self.em; o = self.o
        self.w1pl = [[16, 17, 18, 19, 24, 25, 26, 27], [20, 21, 22, 23, 28, 29, 30, 31], list(range(32, 40))]
        pad = ['s_nop 0'] * o.bgpad
        if l == 0:
            def res():
                t = v(ACC + 22)
                em(f'v_lshrrev_b32 {t}, 2, {vLane}'); em(f's_lshl_b32 {sT2}, {sW}, 4'); em(f'v_add_u32 {t}, {sT2}, {t}'); em(f'v_lshlrev_b32 {t}, 10, {t}')
                em(f'v_and_b32 {v(ACC+23)}, 3, {vLane}'); em(f'v_lshl_add_u32 {t}, {v(ACC+23)}, 4, {t}')
                em(f'buffer_load_dwordx4 {a(RES,4)}, {t}, {SX}, {sOutRow} offen', tag='res')
                em(f'buffer_load_dwordx4 {a(RES+4,4)}, {t}, {SX}, {sOutRow} offen offset:64', tag='res')
            side.add(res)
            self.touch_at('q', side, v(ACC + 22))
            side.add(self.late_setup)
            for i in range(5): side.add(lambda i=i: self.stage_dma(SWO, i, self.stq[2 * i], self.stq[2 * i + 1], 'wo'), *pad)
            if o.rstpos == 0: side.add(*self.reset_items(ACC + 8, o.rst1))
            self.w1_todo = [4, 5, 6, 7]
        else:
            m0 = 4 + self.w1_pre; m1 = max(m0, min(8, 4 + o.w1_early))
            for m in range(m0, m1): side.add(lambda m=m: (self.w1dma(0, m, 'w1a'), self.w1dma(1, m, 'w1a')), *pad)
            self.w1_todo = list(range(m1, 8))
            for m in range(o.cq): side.add(lambda m=m: self.w1dma(2, m, 'w1a'), *pad)

    def late_setup(self):
        em = self.em
        em(f's_sub_u32 {sW1d}, {sW1c2}, {sW1c0}')
        em(f's_add_u32 {sW1c2}, {sW1c0}, 64')
        if self.o.zpl: em(f's_cmp_lt_u32 {sJ}, 11'); em(f's_cselect_b32 {sW1c2}, {sW1c2}, 0x10000000')
        em(f's_lshl_b32 {sT2}, {sW}, 13'); em(f's_add_u32 {sT2}, {sT2}, {S_ADDR}'); em(f'v_add_u32 {vRW}, {sT2}, {vL16}')
        em(f's_lshr_b32 {sT}, {sW}, 1'); em(f's_lshl_b32 {sT2}, {sT}, 12'); em(f's_and_b32 {sR}, {sW}, 1'); em(f's_lshl_b32 {sR}, {sR}, 8')
        em(f's_add_u32 {sT2}, {sT2}, {sR}'); em(f's_add_u32 {sT2}, {sT2}, {S_ADDR}')
        em(f'v_lshl_add_u32 {vRR}, {vHi}, 10, {vP}'); em(f'v_add_u32 {vRR}, {sT2}, {vRR}')
        for m in range(8):
            em(f's_add_u32 {sXm[m]}, {sRot}, {m}'); em(f's_and_b32 {sXm[m]}, {sXm[m]}, 7'); em(f's_and_b32 {sR}, {sXm[m]}, 1')
            em(f's_lshl_b32 {sXm[m]}, {sXm[m]}, 1'); em(f's_add_u32 {sXm[m]}, {sXm[m]}, {sR}'); em(f's_lshl_b32 {sXm[m]}, {sXm[m]}, 11'); em(f's_xor_b32 {sXl[m]}, {sXm[m]}, 2048')
        for k in range(4):
            w0, w1_ = [sum(m << (5 * i) for i, m in enumerate(ORD4[c][6 * k:6 * k + 6])) for c in range(2)]
            em(f's_mov_b32 {sTab[k]}, {w0:#x}'); em(f's_cmp_eq_u32 {sT}, 0'); em(f's_cselect_b32 {sTab[k]}, {sTab[k]}, {w1_:#x}')

    def p1_after_q(self, l):
        if l == 0:
            for i in range(5, 8): self.stage_dma(SWO, i, self.stq[2 * i], self.stq[2 * i + 1], 'wo')

    def p1_gap(self, l):
        em = self.em; o = self.o
        if l == 0:
            em.wait_vm_tag('wo')
            for i in range(8): self.emit(self.stage_read_items(WOA, i, self.stq[2 * i], self.stq[2 * i + 1]))
            em.wait_lg(0)
            self.res_first()
            self.w2next = 0
            self.b1 = self.w2_batch(list(range(32, 40))[:2 * o.w2b1], 'w2a')
            for m in range(4, 4 + o.w1_gap): self.w1dma(0, m, 'w1a'); self.w1dma(1, m, 'w1a')
            self.w1_todo = list(range(4 + o.w1_gap, 8))
            if o.b1gap: self.emit(self.b1[0])

    def p1_loader(self, l, w):
        em = self.em; o = self.o
        vo = v(TMP)
        em(f'v_subrev_u32 {vo}, {w*16*2752}, {vD1}')
        for m in range(o.w1_solo):
            self.rot(m, 64 * 2752, sW1c0)
            for s in range(4):
                if s == 0: em(f's_add_u32 {sFx}, {sR}, {sW1d}')
                for p in range(2): self.dma(SW1, vo, sFx if p else sR, s * 16 * 2752, self.w1pl[p][m], 'solo', slot=s)
                if o.thr: em.force_wait(vm=o.thr)
        self.w1_todo = list(range(o.w1_solo, 4)) + [m for m in self.w1_todo if m >= 4]

    def w2_batch(self, quads, tag):
        steps = list(range(self.w2next, min(22, self.w2next + len(quads) // 2)))
        self.w2next += len(steps)
        issue = [lambda k=k, m=m: self.stage_dma(SW2, m, quads[2 * k], quads[2 * k + 1], tag) for k, m in enumerate(steps)]
        read = [lambda: self.em.wait_vm_tag(tag)] if steps else []
        for k, m in enumerate(steps): read += self.stage_read_items(W2A, m, quads[2 * k], quads[2 * k + 1])
        return issue, read

    def res_first(self):
        em = self.em
        t0, t1, t2 = v(TMP), v(TMP + 1), v(TMP + 2)
        em(f's_add_u32 {sT2}, {sWl}, {self.S}')
        em(f'v_add_u32 {t0}, {sT2}, {vL16}')
        em(f'v_and_b32 {t1}, 15, {vLane}'); em(f'v_lshlrev_b32 {t1}, 6, {t1}'); em(f'v_lshl_add_u32 {t1}, {vHi}, 5, {t1}')
        em(f'v_bfe_u32 {t2}, {vLane}, 4, 1'); em(f'v_lshl_add_u32 {t1}, {t2}, 3, {t1}'); em(f'v_add_u32 {t1}, {sT2}, {t1}')
        for h in range(2): em(f'ds_write_b128 {t0}, {a(RES+4*h,4)} offset:{h*4096}')
        em.wait_lg(0)
        for h in range(2):
            em(f'ds_read_b64 {a(RES+4*h,2)}, {t1} offset:{h*4096}'); em(f'ds_read_b64 {a(RES+4*h+2,2)}, {t1} offset:{h*4096+16}')
        em.wait_lg(0)
    def res_last_items(self, lds):
        t0, t1, t2 = v(TMP), v(TMP + 1), v(TMP + 2)
        it = [f'v_and_b32 {t0}, 15, {vLane}', f'v_mul_u32_u24 {t0}, 144, {t0}', f'v_lshl_add_u32 {t0}, {vHi}, 5, {t0}',
              f'v_bfe_u32 {t1}, {vLane}, 4, 1', f'v_lshl_add_u32 {t0}, {t1}, 3, {t0}',
              f's_mul_i32 {sT2}, {sW}, {16*144}', f's_add_u32 {sT2}, {sT2}, {lds}', f'v_add_u32 {t0}, {sT2}, {t0}',
              f'v_lshrrev_b32 {t1}, 3, {vLane}', f'v_mul_u32_u24 {t1}, 144, {t1}', f'v_and_b32 {t2}, 7, {vLane}', f'v_lshl_add_u32 {t1}, {t2}, 4, {t1}',
              f's_mul_i32 {sT2}, {sW}, {8*144}', f's_add_u32 {sT2}, {sT2}, {lds}', f'v_add_u32 {t1}, {sT2}, {t1}']
        for c in range(2):
            it += [f'ds_write_b64 {t0}, {a(RES+4*c,2)} offset:{c*64}', f'ds_write_b64 {t0}, {a(RES+4*c+2,2)} offset:{c*64+16}']
        it2 = [f'ds_read_b128 {a(RES+4*h,4)}, {t1} offset:{h*32*144}' for h in range(2)]
        return it, it2
    def kt_addr(self):
        em = self.em
        t0, t1, t2 = v(TMP + 1), v(TMP + 2), v(TMP + 3)
        em(f'v_and_b32 {t0}, 15, {vLane}'); em(f'v_lshlrev_b32 {t0}, 4, {t0}'); em(f'v_lshl_add_u32 {t0}, {vHi}, 8, {t0}')
        em(f'v_lshlrev_b32 {t1}, 4, {vHi}'); em(f'v_add_u32 {t1}, 512, {t1}'); em(f'v_and_b32 {t2}, 16, {vLane}'); em(f'v_cmp_ne_u32 vcc, 0, {t2}')
        em(f'v_cndmask_b32 {t0}, {t0}, {t1}, vcc'); em(f's_mul_i32 {sT2}, {sW}, 544'); em(f'v_add_u32 {v(vKT)}, {sT2}, {t0}')
        if self.o.rep8: em(f's_and_b32 {sT2}, s2, 7'); em(f's_mul_i32 {sT2}, {sT2}, {KC}'); em(f'v_add_u32 {v(vKT)}, {sT2}, {v(vKT)}')
    def final_addr_items(self):
        t0, t1, t2 = v(20), v(21), v(MR)
        it = [f's_lshl_b32 {sT2}, {sW}, 13', f's_add_u32 {sT2}, {sT2}, {self.S}', f'v_add_u32 {v(FW)}, {sT2}, {vL16}']
        it += [f'v_xor_b32 {v(FW+i)}, {64*i}, {v(FW)}' for i in range(1, 4)]
        it += [f'v_and_b32 {t1}, 7, {vLane}', f's_lshl_b32 {sT2}, {sW}, 3', f'v_add_u32 {t0}, {sT2}, {t1}',
               f'v_lshrrev_b32 {t2}, 3, {vLane}', f'v_lshlrev_b32 {v(FB)}, 2, {t2}', f'v_lshlrev_b32 {v(FS)}, 9, {t2}', f'v_lshl_add_u32 {v(FS)}, {t0}, 4, {v(FS)}',
               f's_lshl_b32 {sT2}, {sW}, 3', f'v_add_u32 {t0}, {sT2}, {t2}',
               f'v_lshlrev_b32 {v(FO)}, 10, {t0}', f'v_lshl_add_u32 {v(FO)}, {t1}, 4, {v(FO)}',
               f'v_and_b32 {t2}, 3, {vLane}', f'v_lshlrev_b32 {t2}, 2, {t2}', f'v_xor_b32 {t2}, {t2}, {t0}', f'v_lshlrev_b32 {t2}, 4, {t2}',
               f'v_lshl_add_u32 {v(FR)}, {t1}, 10, {t2}', f'v_add_u32 {v(FR)}, {self.S:#x}, {v(FR)}']
        return it

    def unpack_items(self, half, U):
        it = [f'v_accvgpr_read_b32 {v(U+2*r+1)}, {a(RES+4*half+r)}' for r in range(4)]
        for r in range(4):
            it += [f'v_lshlrev_b32 {v(U+2*r)}, 16, {v(U+2*r+1)}', f'v_and_b32 {v(U+2*r+1)}, 0xffff0000, {v(U+2*r+1)}']
        return it
    def reduce_items(self, half, acc0, acc1, R, U, rs, xoff, sti, final, unpack, after_store=()):
        em = self.em
        it = []
        for c in range(8):
            src = v((acc0 if c < 4 else acc1) + 4 * (c & 3), 4)
            it.append(f'ds_write_b128 {v(FW + (c & 3)) if final else vRW}, {src} offset:{c*1024}')
        it.append(self.barrier)
        o2 = 512 if final else 1024; rd = v(FR) if final else vRR
        for w in range(4):
            it.append(f'ds_read_b128 {v(R+8*w,4)}, {rd} offset:{w*8192}'); it.append(f'ds_read_b128 {v(R+8*w+4,4)}, {rd} offset:{w*8192+o2}')
        if unpack: it += self.unpack_items(half, U)
        add = lambda d, s_: [f'v_pk_add_f32 {v(d+r,2)}, {v(d+r,2)}, {v(s_+r,2)}' for r in range(0, 8, 2)]
        if rs is None: it += add(R, U)
        it += add(R, R + 8) + add(R + 16, R + 24) + add(R, R + 16)
        if rs is not None: it += [f'v_pk_fma_f32 {v(R+r,2)}, {v(R+r,2)}, {v(rs,2)}, {v(U+r,2)} op_sel_hi:[1,0,1]' for r in range(0, 8, 2)]
        P = R + 8
        for r in range(4): it.append(f'v_cvt_pk_bf16_f32 {v(P+r)}, {v(R+2*r)}, {v(R+2*r+1)}')
        if final:
            def st():
                em(f's_add_u32 {sT}, {sOutRow}, {half*32768}')
                em(f'buffer_store_dwordx4 {v(P,4)}, {v(FO)}, {SOUT}, {sT} offen' + self.o.outsc, tag='st')
            it.append(st)
            return it
        it += [f'v_accvgpr_write_b32 {a(RES+4*half)}, {v(P)}', f'v_and_b32 {v(P)}, -2, {v(P)}' if sti == 1 else f'v_or_b32 {v(P)}, 1, {v(P)}']
        def stx():
            em(f's_and_b32 {sT}, {sJ}, 1'); em(f's_xor_b32 {sT}, {sT}, {half}'); em(f's_lshl_b32 {sT}, {sT}, 11'); em(f's_add_u32 {sT}, {sT}, {sXst}')
            em(f'buffer_store_dwordx4 {v(P,4)}, {vP}, {SWS}, {sT} offen' + self.sc, tag='st')
        it.append(stx)
        it += list(after_store)
        S, Q = AUX, AUX + 2
        if half == 0:
            it += [f'v_pk_add_f32 {v(S,2)}, {v(R,2)}, {v(R+2,2)}', f'v_pk_mul_f32 {v(Q,2)}, {v(R,2)}, {v(R,2)}', f'v_pk_fma_f32 {v(Q,2)}, {v(R+2,2)}, {v(R+2,2)}, {v(Q,2)}']
        for r in ((4, 6) if half == 0 else (0, 2, 4, 6)):
            it += [f'v_pk_add_f32 {v(S,2)}, {v(S,2)}, {v(R+r,2)}', f'v_pk_fma_f32 {v(Q,2)}, {v(R+r,2)}, {v(R+r,2)}, {v(Q,2)}']
        it += [f'v_accvgpr_write_b32 {a(RES+4*half+r)}, {v(P+r)}' for r in range(1, 4)]
        if half == 1:
            T = v(S + 1)
            it += [f'v_add_f32 {v(S)}, {v(S)}, {v(S+1)}', f'v_add_f32 {v(Q)}, {v(Q)}, {v(Q+1)}', f'v_and_b32 {v(Q+1)}, 512, {vP}', f'v_add_u32 {v(Q+1)}, {v(Q+1)}, {vP}',
                   f'v_permlane16_swap_b32 {v(S)}, {v(Q)}', f'v_add_f32 {v(S)}, {v(S)}, {v(Q)}', f'v_mov_b32 {T}, {v(S)}', f'v_permlane32_swap_b32 {v(S)}, {T}', f'v_add_f32 {v(S)}, {v(S)}, {T}',
                   f'v_or_b32 {v(S)}, 1, {v(S)}']
            def st2():
                em('s_mov_b32 exec_hi, 0')
                self.wsstore(v(S), v(Q + 1), sStst, sti * 16 * 8192, width=1)
                em('s_mov_b64 exec, -1')
            it.append(st2)
        return it

    def two_halves(self, mfs, A, rs, xoff, sti, pre_wait=None, dmas=(), dmas2=()):
        em = self.em; o = self.o
        r0 = self.reduce_items(0, A[0][0], A[1][0], MR, BB, rs, xoff, sti, False, False)
        r1 = self.reduce_items(1, A[0][1], A[1][1], MR, BB + 8, rs, xoff, sti, False, False)
        W0, RD0, V0 = r0[:8], r0[9:17], r0[17:]
        W1, RD1, V1 = r1[:8], r1[9:17], r1[17:]
        fill = self.unpack_items(0, BB) + self.unpack_items(1, BB + 8)
        mfs = list(mfs)
        nA = len(mfs) - o.mfB
        wq = list(W0)
        for k in range(nA):
            mfs.pop(0)()
            if wq and (k * 8 >= (8 - len(wq)) * nA - 4): em(wq.pop(0))
            for t in fill[:3]: em(t)
            fill = fill[3:]
            if dmas and k % o.dgap == o.dgap - 1: dmas.pop(0)()
        self.emit(wq + fill + list(dmas))
        self.barrier()
        for k, t in enumerate(RD0):
            em(t)
            if k % 3 == 1 and mfs: mfs.pop(0)()
        self.emit(mfs)
        na = 12 if rs is None else 8
        self.emit(V0[:na]); V0 = V0[na:]
        if pre_wait: pre_wait()
        self.barrier()
        self.ts('h0')
        pf = [lambda: self.x_prefetch(xoff, 0, 0)] + [lambda i=i: self.xld(i) for i in range(o.pre)]
        n0 = o.pf0
        for k, t in enumerate(W1):
            em(t)
            self.emit(V0[:4]); V0 = V0[4:]
            if dmas2 and k % 3 == 0: dmas2.pop(0)()
            if k >= 8 - n0: self.emit(pf[:2 if len(pf) == o.pre + 1 else 1]); pf = pf[2 if len(pf) == o.pre + 1 else 1:]
        self.emit(V0)
        self.barrier()
        self.emit(RD1)
        self.emit(pf[:o.pf1 + (1 if len(pf) == o.pre + 1 else 0)]); pf = pf[o.pf1 + (1 if len(pf) == o.pre + 1 else 0):]
        ks = [k for k, t in enumerate(V1) if callable(t)][0]
        self.emit(V1[:ks + 1]); V1 = V1[ks + 1:]
        while pf or V1:
            self.emit(V1[:3]); V1 = V1[3:]
            self.emit(pf[:1]); pf = pf[1:]

    def p2(self, l):
        em = self.em; o = self.o
        KT, QF = AF, AF + 32
        A = [[ACC, ACC + 32], [ACC + 16, 232]]
        DB = [MR, MR + 16, BB]
        def rot2(i, stride, base):
            if not o.rot2:
                em(f's_add_u32 {sR}, {base}, {i * stride}' if base else f's_movk_i32 {sR}, {i * stride}'); return
            em(f's_add_u32 {sR}, {sRot2}, {i}'); em(f's_and_b32 {sR}, {sR}, 7'); em(f's_mul_i32 {sR}, {sR}, {stride}')
            if base: em(f's_add_u32 {sR}, {sR}, {base}')
        KB = lambda i: (ACC + 32 + 4 * i) if i < 4 else (232 + 4 * (i - 4))
        KA = lambda i: KT + 4 * i
        def ldk(i, B=KA):
            rot2(i, 2176, sRed if o.xc else None)
            self.wsload(v(B(i), 4), v(vKT), sR, l * 16 * KT_B if o.xc else (WS_KT8 + l * 8 * KC if o.rep8 else WS_KT + l * 0x8000), tag='K')
        def ldq(n): rot2(n % 8, 4096, sQR); self.wsload(v(QF + 4 * n, 4), vL16, sR, (n // 8) * 32768, tag='A')
        ck = v(TMP + 2)
        def kchk(B):
            em(f'v_max_u32 {ck}, {v(B(0))}, {v(B(0)+1)}')
            for i in range(1, 16): em(f'v_max3_u32 {ck}, {v(B(i//2)+2*(i%2))}, {v(B(i//2)+2*(i%2)+1)}, {ck}')
            em(f'v_cmp_eq_u32 vcc, -1, {ck}')
        L = em.newlabel('Lk'); D = em.newlabel('Lkd'); C = em.newlabel('Lkc')
        if o.kdual:
            for i in range(8): ldk(i)
            for n in range(16): ldq(n)
            for i in range(8): ldk(i, KB)
            em.wait_vm(8)
            em.vmq = []
            em.label(L)
            kchk(KA); em(f's_cbranch_vccz {D}')
            for i in range(8): ldk(i)
            em.force_wait(vm=8); em.vmq = []
            kchk(KB); em(f's_cbranch_vccz {C}')
            for i in range(8): ldk(i, KB)
            em.force_wait(vm=8); em.vmq = []
            self.spin_tail(L)
            em.label(C)
            for r in range(0, 32, 2): em(f'v_pk_mov_b32 {v(KT+r,2)}, {v(KB(r//4)+r%4,2)}, {v(KB(r//4)+r%4,2)} op_sel:[0,1]')
            em.label(D)
        else:
            kp = o.kpos if l else o.kpos0
            for n in range(kp): ldq(n)
            if o.kfirst and not o.xc:
                for i in range(8): ldk(i)
            for n in range(kp, 16): ldq(n)
            if self.p2_hook: self.p2_hook()
            if not o.kfirst or o.xc:
                for i in range(8): ldk(i)
            if l == 0: self.touch_at('p', None, v(254))
            if l == 0 and o.w2b1b:
                assert not (o.xorder & 1)
                self.emit(self.b1[1])
                self.b1 = self.w2_batch(list(range(32, 40))[:2 * o.w2b1b], 'w2f')
            em.label(L)
            kchk(KA)
            em(f's_cbranch_vccz {D}')
            em.cond_begin()
            for i in range(8): ldk(i)
            em.force_wait(vm=0)
            em.cond_end()
            self.spin_tail(L)
            em.label(D)
        self.ts('kt')
        if l == 0 and o.wb1:
            L = em.newlabel('Lwb')
            em(f's_lshr_b32 {sT}, s2, 3'); em(f's_or_b32 {sT}, {sT}, {sW}'); em(f's_cmp_lg_u32 {sT}, 0'); em(f's_cbranch_scc1 {L}')
            em.out.append(' buffer_wbl2 sc1')
            em.label(L)
        side = Side(em)
        def attn(n): em(f'{MF} {v(DB[n%3],16)}, {v(KT+4*(n%8),4)}, {v(QF+4*n,4)}, 0')
        def post(n):
            D = DB[n % 3]; O = QF + 4 * n; rc = v(D + 8)
            it = [f'v_add_f32 {rc}, {s1em6}, {rc}', f'v_rcp_f32 {rc}, {rc}']
            it += [f'v_mul_f32 {v(D+r)}, {v(D+r)}, {rc}' for r in range(8)]
            it += [f'v_cvt_pk_bf16_f32 {v(O+r)}, {v(D+2*r)}, {v(D+2*r+1)}' for r in range(4)]
            return it
        def wo(n, c):
            h, i = divmod(n, 8)
            cc = v(A[h][c], 16)
            em(f'{MF} {cc}, {a(WOA + i*8 + c*4, 4)}, {v(QF+4*n,4)}, ' + ('0' if i == 0 else cc))
        attn(0); attn(1)
        self.p2_bg(l, side)
        side.run(2)
        E1 = o.early1
        if o.p2pipe:
            self.emit(post(0)[:2] + post(1)[:2] + post(0)[2:])
            for n in range(16):
                nxt = post(n + 1)[2:] if n + 1 < 16 else []
                if n + 2 < 16: attn(n + 2)
                for t in nxt[:o.p2a]: em(t)
                wo(n, 0)
                for t in nxt[o.p2a:]: em(t)
                side.clk(o.gap2)
                if n + 2 < 16: self.emit(post(n + 2)[:2])
        else:
            self.emit(post(0))
            for n in range(16):
                nxt = post(n + 1) if n + 1 < 16 else []
                if n + 2 < 16: attn(n + 2)
                if nxt: em(nxt[0]); em(nxt[1])
                side.clk(o.gap2)
                for t in nxt[2:8]: em(t)
                wo(n, 0)
                for t in nxt[8:11]: em(t)
                if n < E1: wo(n, 1)
                for t in nxt[11:]: em(t)
        side.flush()
        if o.kdual:
            assert E1 == 0
            em.force_wait(vm=len(em.vmq))
        self.ts('p2loop')
        xoff = 0; sti = 2 * l
        pre = (self.b1[1] + [self.barrier]) if l == 0 else []
        self.emit(pre)
        pw = (lambda: em.force_wait(vm=0)) if (l == 0 and 'h' not in o.rst1) else None
        d0 = [lambda m=m: (self.w1dma(0, m, 'w1a'), self.w1dma(1, m, 'w1a')) for m in self.w1_tail]
        self.two_halves([lambda n=n: wo(n, 1) for n in range(E1, 16)], A, None, xoff, sti, pw, dmas=d0)
        self.p2_tail(l)

    def p2_bg(self, l, side):
        em = self.em
        if self.o.cpf2 & (1 if l == 0 else 4): side.add(lambda: self.code_pf(v(248, 4), v(252)))
        if self.o.retouch: side.add(lambda: self.retouch(0, v(254), v(254)))
        if l == 0:
            if 'h' not in self.o.rst1: side.add(*self.reset_items(248, 'h'))
            side.add(lambda: self.cs_loads(em))
            if self.o.w2b1b: side.add(lambda: em.wait_lg(0)); side.add(*self.b1[0])
        n0 = (self.o.sp0 if l == 0 else self.o.sp6)
        todo = self.w1_todo[:len(self.w1_todo) - n0]; self.w1_tail = self.w1_todo[len(self.w1_todo) - n0:]
        for m in todo: side.add(lambda m=m: (self.w1dma(0, m, 'w1a'), self.w1dma(1, m, 'w1a')))
        if l == 0: self.touch_at('s', side, v(254))
        if l == 1:
            for m in range(self.o.cq, 8): side.add(lambda m=m: self.w1dma(2, m, 'w1a'))
    def retouch(self, off, vt, dst):
        em = self.em
        em(f'v_lshlrev_b32 {vt}, 7, {vLane}')
        em(f's_and_b32 {sT2}, {sW}, 1'); em(f's_mul_i32 {sT2}, {sT2}, 1792'); em(f's_add_u32 {sT2}, {sT2}, {sXst}'); em(f's_add_u32 {sT2}, {sT2}, {off}')
        em('s_mov_b64 exec, 0xffff')
        em(f'buffer_load_dword {dst}, {vt}, {SWS}, {sT2} offen sc1', tag='touch')
        em('s_mov_b64 exec, -1')
    def touch_xh(self, which, vt, dst):
        em = self.em
        if which == 'x':
            self.retouch(0, vt, dst[0])
            em(f'v_lshlrev_b32 {vt}, 17, {vLane}')
            em(f's_lshl_b32 {sT2}, {sJ}, 2'); em(f's_add_u32 {sT2}, {sT2}, {sW}'); em(f's_lshl_b32 {sT2}, {sT2}, 7'); em(f's_add_u32 {sT2}, {sT2}, {sG8K}')
            em('s_mov_b64 exec, 7')
            em(f'buffer_load_dword {dst[1]}, {vt}, {SWS}, {sT2} offen sc1', tag='touch')
        else:
            em(f'v_lshlrev_b32 {vt}, 7, {vLane}')
            em('s_mov_b64 exec, 0xffff')
            em(f's_add_u32 {sT2}, {sHks}, {int(which) * 2048}')
            em(f'buffer_load_dword {dst[0]}, {vt}, {SWS}, {sT2} offen sc1', tag='touch')
        em('s_mov_b64 exec, -1')
    def touch_at(self, pos, side, vt):
        for k, which in enumerate(('x', '0', '1', '2')):
            if self.o.tpl.split(',')[k] == pos:
                f = lambda which=which, k=k: self.touch_xh(which, vt, [a(104 + 2 * k), a(105 + 2 * k)])
                side.add(f) if side is not None else f()
    def code_pf(self, dst, vt):
        em = self.em
        L = em.newlabel('Lpc')
        end = 'L_slow' if not self.sc else 'L_codeend'
        em(f's_getpc_b64 {sEx}'); em.label(L)
        em(f's_lshr_b32 {sT}, s2, 3'); em(f's_lshl_b32 {sT}, {sT}, 2'); em(f's_add_u32 {sT}, {sT}, {sW}'); em(f's_lshl_b32 {sT}, {sT}, 10')
        em(f's_min_u32 {sT}, {sT}, {end}-{L}-1024')
        em(f'v_add_u32 {vt}, {sT}, {vL16}')
        em(f'global_load_dwordx4 {dst}, {vt}, {sEx}', tag='touch')
    def cs_loads(self, e):
        e(f'v_and_b32 {v(255)}, 31, {vLane}'); e(f'v_lshlrev_b32 {v(255)}, 2, {v(255)}'); e(f's_mul_i32 {sFx}, {sJ}, 384'); e(f's_add_u32 {sFx}, {sFx}, {WS_CS}')
        for p in range(3): e(f'buffer_load_dword {CS[p]}, {v(255)}, {SWS}, {sFx} offen offset:{(0, 256, 128)[p]} sc1', tag='cs')

    def p2_tail(self, l):
        em = self.em; o = self.o
        if l == 0: self.check([CS[0], CS[1], CS[2], CS[2]], self.cs_loads, v(TMP))
        em.wait_vm_tag('w1a')
        self.barrier()
        if l == 0 and not o.p2late:
            for m in range(8): self.w1dma(2, m, 'w1c')
        self.ts(f'end{4*l+1}')

    def hld(self, n, final, e=None):
        e = e or self.em
        st, h = (n % 22, n // 22) if final else (n // 2, n % 2)
        if st == 21: so = sLim4
        else: self.tab4(st, sFx, 12, e); so = sFx
        r = e(f'buffer_load_dwordx4 {v(AF + 4 * (n % 24), 4)}, {v(32 + h)}, {SWS}, {so} offen sc1', tag='A')
        if r is not None: self.ldidx[id(r)] = n
    def p3(self, l):
        em = self.em; o = self.o
        ld, chk = self.a_loader(o.pre, 2 * l, sTxn)
        side = Side(em)
        side.add(*self.aux_const_items())
        if l == 1: rl_w, rl_r = self.res_last_items(8 * 4096); side.add(*rl_w)
        def ld2(i):
            ld(i)
            if i == o.statstep: side.add(*self.stats_T_items(False, 2 * l))
            if l == 0 and o.p2late and o.p2late <= i < o.p2late + 8: self.w1dma(2, i - o.p2late, 'w1c')
            if l == 0 and i == 26:
                side.add(self.barrier)
                self.b2 = self.w2_batch(list(range(16, 24))[:2 * o.w2b2], 'w2b')
                side.add(*self.b2[0])
        self.pass2(XORD, self.w1pl[:2], [ACC, ACC + 16], False, side, lambda i: 1 if i < o.statstep else o.fill2, loader=ld2, extra=chk,
                   third=(self.w1pl[2], ACC + 32, o.n3) if (l == 1 and o.n3) else None)
        side.flush()
        self.emit(self.corr_items(0, ACC, False)); self.emit(self.corr_items(1, ACC + 16, False))
        if l == 0: em.wait_vm_tag('w1c')
        self.barrier()
        if l == 1: self.emit(rl_r)
        self.ts('p3a')
        def epi(p):
            A = ACC + 16 * p
            it = [f'v_cvt_pk_bf16_f32 {v(A+r)}, {v(A+2*r)}, {v(A+2*r+1)}' for r in range(8)]
            it += [f'v_pk_max_i16 {v(A+r)}, {v(A+r)}, 0' for r in range(8)]
            if l == 0: it += [f'v_or_b32 {v(A+r)}, 0x80000000, {v(A+r)}' for r in (0, 4)]
            return it
        def st(p):
            A = ACC + 16 * p
            if p == 1:
                em(f's_lshl_b32 {sT2}, {sW1d}, 5'); em(f's_add_u32 {sT2}, {sT2}, {sHks}')
                self.wsstore(v(A, 4), vL16, sT2, 0); self.wsstore(v(A + 4, 4), vL16, sT2, 0, off=1024)
            else: self.wsstore(v(A, 4), vL16, sHks, p * 1024); self.wsstore(v(A + 4, 4), vL16, sHks, p * 1024, off=1024)
        side.add(*(epi(0) + [lambda: st(0)] + epi(1) + [lambda: st(1)]))
        side.add(f'v_add_u32 {v(32)}, {sHR}, {vL16}', f'v_add_u32 {v(33)}, {H_T}, {v(32)}')
        if l == 0:
            self.b3 = self.w2_batch(list(range(24, 32))[:2 * o.w2b3], 'w2c')
            side.add(*self.b3[0])
            side.add(*self.b2[1]); side.add(lambda: em.wait_lg(0))
            self.b3b = self.w2_batch(list(range(16, 24))[:2 * o.w2b3b], 'w2e')
            side.add(*self.b3b[0])
        else: side.add(*self.final_addr_items())
        if l == 1 and o.n3:
            rest = XORD[o.n3:]
            hn = [0]
            def fill(i):
                if i >= o.hpf3:
                    if i == o.hpf3: side.flush()
                    while hn[0] < o.pre4 and hn[0] < (i - o.hpf3 + 1) * o.hper and (hn[0] not in rest[i + 1:]): self.hld(hn[0], True); hn[0] += 1
                return o.fill3 if i >= 1 else 0
            self.pass1(self.w1pl[2], ACC + 32, side, fill, rest)
            while hn[0] < o.pre4: self.hld(hn[0], True); hn[0] += 1
        else:
            def fill(ks):
                if ks == o.hpf: side.flush()
                if ks >= o.hpf and (ks - o.hpf) % o.hstr == 0 and (ks - o.hpf) // o.hstr < o.pre4: self.hld((ks - o.hpf) // o.hstr, l == 1)
                return o.fill_p3 if ks >= 2 else 0
            assert o.hpf >= o.pre4 and o.hpf + (o.pre4 - 1) * o.hstr < 32
            self.pass1(self.w1pl[2], ACC + 32, side, fill)
        self.emit(self.corr_items(2, ACC + 32, False))
        side.flush()
        self.ts('p3b')
        if l == 0:
            self.barrier()
            self.b4 = self.w2_batch(list(range(32, 40)) + list(range(24, 32)) + list(range(16, 24)), 'w2d')
            self.emit(self.b4[0][:4])
        self.emit(epi(2))
        L = em.newlabel('Lh3')
        em(f's_cmp_ge_u32 {sJ}, 11'); em(f's_cbranch_scc1 {L}')
        em.cond_begin(); st(2); em.cond_end()
        em.label(L)
        if l == 0:
            self.emit(self.b3[1]); self.emit(self.b3b[1])
            if len(self.b4[0]) > 4: em.wait_lg(0); self.emit(self.b4[0][4:])
            assert self.w2next == 22
        self.ts(f'end{4*l+2}')

    def p4(self, l):
        em = self.em; o = self.o
        final = l == 1
        A = [[ACC, ACC + 16], [ACC + 32, 232]] if final else [[ACC, ACC + 32], [ACC + 16, 232]]
        side = Side(em)
        S, Q = v(AUX), v(AUX + 1); RS = [TMP, CB]
        def stl(e):
            e(f's_add_u32 {sFx}, {sStR if final else sStM}, {2 * l * 16 * 8192}')
            e(f'buffer_load_dwordx4 {v(AUX,4)}, {v(FS) if final else vP}, {SWS}, {sFx} offen sc1', tag='stat')
        stl(em)
        if o.cpf2 & 2 and not final: self.code_pf(v(248, 4), v(252))
        if o.retouch and not final: self.retouch(X2OFF, v(254), v(254))
        side.add(lambda: self.check([v(AUX + r) for r in range(4)], stl, v(CB + 2), kind='x', tag=sTxn))
        side.add(f'v_add_f32 {S}, {S}, {v(AUX+1)}', f'v_add_f32 {v(AUX+2)}, {v(AUX+2)}, {v(AUX+3)}', f'v_add_f32 {S}, {S}, {v(AUX+2)}')
        if final:
            side.add(f'v_add_f32_dpp {S}, {S}, {S} row_ror:8 {DPPM}', f'v_mov_b32 {Q}, {S}', f'v_permlane16_swap_b32 {S}, {Q}')
        else:
            side.add(f'v_mov_b32 {Q}, {S}', f'v_permlane16_swap_b32 {S}, {Q}', f'v_add_f32 {S}, {S}, {Q}', f'v_mov_b32 {Q}, {S}', f'v_permlane32_swap_b32 {S}, {Q}')
        side.add(f'v_mul_f32 {S}, {sInv}, {S}', f'v_mul_f32 {Q}, {sInv}, {Q}', f'v_fma_f32 {Q}, -{S}, {S}, {Q}', f'v_max_f32 {Q}, 0, {Q}',
                 f'v_add_f32 {Q}, {sEps}, {Q}', f'v_rsq_f32 {v(RS[1])}, {Q}')
        if final:
            side.add(f'v_mov_b32 {v(CB+2)}, {v(RS[1])}', f'v_permlane32_swap_b32 {v(CB+2)}, {v(RS[1])}',
                     f'ds_bpermute_b32 {v(CB+2)}, {v(FB)}, {v(CB+2)}', f'ds_bpermute_b32 {v(RS[1])}, {v(FB)}, {v(RS[1])}')
            RS = [CB + 2, CB]
        else: RS = [CB, CB]
        b4 = list(self.b4[1]) if l == 0 else []
        first4 = 2 * (22 - (len(b4) - 1) // 2) if b4 else 99
        if l == 0: side.add(self.barrier)
        dec = (lambda n: (n % 22, n // 22)) if final else (lambda n: (n // 2, n % 2))
        def mf(n, c):
            st, h = dec(n)
            cc = v(A[h][c], 16)
            em(f'{MF} {cc}, {a(W2A + st*8 + c*4, 4)}, {v(AF + 4 * (n % 24), 4)}, ' + ('0' if st == 0 else cc))
        def chk(n):
            if n % 2: return None
            return self.check([v(AF + 4 * (n % 24)), v(AF + 4 * ((n + 1) % 24))], lambda e: (self.hld(n, final, e), self.hld(n + 1, final, e)), v(38), split=True,
                              kind='h', tag=sTh if final else sThn, again=lambda e, p: self.hld(self.ldidx[id(p)], final, e))
        T4 = o.tail4 if final else o.tail4n
        br = chk(0)
        for n in range(44):
            assert n < first4 or not b4
            if br: br()
            both = n < 44 - T4
            mf(n, 0)
            if n + o.pre4 < 44: self.hld(n + o.pre4, final)
            if n + 1 < 44: br = chk(n + 1)
            if b4 and n >= o.b4start: self.emit([b4.pop(0)])
            elif n >= 8: side.clk(4 if both else o.gap4)
            if both:
                mf(n, 1)
                if n >= 8 and not b4: side.clk(o.gap4)
            if final and o.wb and n == o.wbstep:
                L = em.newlabel('Lwb')
                if o.wb == 1: em(f's_cmp_lg_u32 {sW}, 3')
                else: em(f's_lshr_b32 {sT}, s2, 3'); em(f's_or_b32 {sT}, {sT}, {sW}'); em(f's_cmp_lg_u32 {sT}, 0')
                em(f's_cbranch_scc1 {L}')
                em.out.append(' buffer_wbl2 sc1')
                em.label(L)
            if o.ts3 and final and n in (0, 7, 15, 21, 29, 37): self.ts(f'q{n}')
            if final and n == 22:
                side.add(*self.reduce_items(0, A[0][0], A[0][1], MR, ACC, RS[0], 0, 0, True, True))
                side.add(*self.unpack_items(1, ACC + 16)); side.add(self.barrier)
        side.flush()
        self.ts('p4loop')
        if final:
            tail = self.reduce_items(1, A[1][0], A[1][1], MR, ACC + 16, RS[1], 0, 0, True, False)
            for k, n in enumerate(range(44 - T4, 44)):
                mf(n, 1)
                if k >= 1: em(tail.pop(0))
            self.emit(tail)
            return
        qd = [lambda m=m: self.qkv_dma('q', m, 'q') for m in range(8)] if o.qearly else []
        pair = lambda m: (lambda: (self.w1dma(0, m, 'w1a'), self.w1dma(1, m, 'w1a')))
        d1 = [pair(m) for m in range(4, 4 + o.sp1)]; d2 = [pair(m) for m in range(4 + o.sp1, 4 + o.sp1 + o.sp2)]
        self.w1_pre = o.sp1 + o.sp2
        self.two_halves([lambda n=n: mf(n, 1) for n in range(44 - T4, 44)], A, RS[0], X2OFF, 1, dmas=qd + d1, dmas2=d2)
        self.ts('end3')

    def p5_start(self):
        em = self.em; o = self.o
        ld0, chk = self.a_loader(o.pre, 1, sTx)
        side = Side(em)
        side.add(*self.aux_const_items())
        side.add(f'v_subrev_u32 {vRW}, {S_ADDR:#x}, {vRW}', f'v_subrev_u32 {vRR}, {S_ADDR:#x}, {vRR}')
        self.S = 0
        qn = [8 if o.qearly else 0]; was = [False]
        def ld(i):
            ld0(i)
            if i == 12: side.add(self.barrier)
            if i == o.statstep:
                side.add(*self.stats_T_items(True, 1))
                side.add(f'{MF} {v(MR,16)}, {v(AUX,4)}, {v(CB+2,4)}, 0')
            if self.xdone and was[0] and qn[0] < 8: self.qkv_dma('q', qn[0], 'q'); qn[0] += 1
            was[0] = self.xdone
        self.pass2(XORD, [self.pl['k'], self.pl['v']], [ACC, ACC + 16], True, side, lambda i: 1 if i < o.statstep else o.fill2, loader=ld, extra=chk)
        side.flush()
        self.emit(self.corr_items('k', ACC, True)); self.emit(self.corr_items('v', ACC + 16, True))
        self.ts('p5a')

    def finish(self):
        em = self.em
        L = em.newlabel('Le')
        em(f's_or_b32 {sT}, s2, {sW}'); em(f's_cmp_lg_u32 {sT}, 0'); em(f's_cbranch_scc1 {L}')
        em.cond_begin()
        em('s_mov_b64 exec, 1'); em(f'v_mov_b32 v24, {sNonce}'); em(f'buffer_store_dword v24, off, {SWS}, 0 sc1'); em('s_mov_b64 exec, -1')
        em.cond_end()
        em.label(L)
        if self.o.pad:
            L = em.newlabel('Lpad')
            em('v_readlane_b32 s3, v39, 0')
            em.label(L)
            em('s_memrealtime s[0:1]'); em.force_wait(lg=0); em('s_sub_u32 s0, s0, s3'); em(f's_cmp_lt_u32 s0, {self.o.pad}'); em(f's_cbranch_scc1 {L}')
        if self.o.ts:
            self.ts('end')
            em('s_memrealtime s[86:87]'); em.force_wait(lg=0); em('v_writelane_b32 v39, s86, 63')
            em(f's_lshl_b32 {sT}, s2, 2'); em(f's_add_u32 {sT}, {sT}, {sW}'); em(f's_lshl_b32 {sT}, {sT}, 8'); em(f's_add_u32 {sT}, {sT}, {WS_DBG}')
            em(f'v_lshlrev_b32 v24, 2, {vLane}')
            em(f'buffer_store_dword v39, v24, {SWS}, {sT} offen')
            if self.o.dbg:
                L = em.newlabel('Ld')
                em(f's_or_b32 {sT}, s2, {sW}'); em(f's_cmp_lg_u32 {sT}, 0'); em(f's_cbranch_scc1 {L}')
                em('s_memrealtime s[0:1]'); em.force_wait(lg=0); em('s_sub_u32 s0, s0, s3')
                em('v_readlane_b32 s1, v39, 0'); em('s_nop 3'); em('v_subrev_u32 v39, s1, v39'); em('v_writelane_b32 v39, s0, 0')
                em('v_mul_u32_u24 v25, 3, v0'); em('v_lshlrev_b32 v25, 2, v25'); em('ds_bpermute_b32 v26, v25, v39'); em.force_wait(lg=0)
                em('s_mov_b64 exec, 0xffff')
                em('global_store_dword v24, v26, s[100:101]')
                em.label(L)
        em('s_endpgm')
        em.out.extend(self.fixes); self.fixes = []

    def body(self, sc):
        self.ncnt = 0; self.ldidx = {}; self.fixes = []; self.sc = sc; self.swin = None; self.lin = True; self.S = S_ADDR
        seq = [lambda: self.p1_rest(0), lambda: self.p2(0), lambda: self.p3(0), lambda: self.p4(0),
               lambda: (self.p5_start(), self.p1_rest(1)), lambda: self.p2(1), lambda: self.p3(1), lambda: self.p4(1)]
        for i, f in enumerate(seq):
            self.em.comment(f'---------------- phase {i+1} ({"slow" if sc else "fast"}) ----------------')
            f()
            if self.o.stop == i + 1: break
        self.finish()

    def build(self):
        em = self.em
        self.sc = ''
        self.prologue()
        self.p1_start()
        if self.o.force_slow: em('s_branch L_slow_tramp')
        em('s_cbranch_vccz L_fast')
        em.label('L_slow_tramp')
        em('s_getpc_b64 s[86:87]'); em.label('L_pc0')
        em('s_add_u32 s86, s86, L_slow-L_pc0'); em('s_addc_u32 s87, s87, 0'); em('s_setpc_b64 s[86:87]')
        em.label('L_end'); em('s_endpgm')
        em.label('L_fast')
        snap = (list(em.vmq), list(em.lgq), self.nts, list(em.hist))
        self.body('')
        em.label('L_slow')
        em.vmq, em.lgq, self.nts, em.hist = list(snap[0]), list(snap[1]), snap[2], list(snap[3])
        self.body(' sc1')
        em.label('L_codeend')
        hdr = open('cdna_kernels/' + NAME + '.s.ref').read().split('; Override launch')[0]
        s = hdr + '; @launch grid=(256,1,1) block=(256,1,1) lds=163840\n'
        s += '.amdgcn_target "amdgcn-amd-amdhsa--gfx950"\n.text\n'
        s += f'.globl {NAME}_kernel\n.p2align 8\n.type {NAME}_kernel,@function\n{NAME}_kernel:\n'
        s += em.text().replace('    ', ' ').replace(' offset:0 ', ' ').replace(', ', ',')
        s += f""".section .rodata,"a"
.p2align 6
.amdhsa_kernel {NAME}_kernel
  .amdhsa_next_free_vgpr 512
  .amdhsa_next_free_sgpr 102
  .amdhsa_accum_offset 256
  .amdhsa_group_segment_fixed_size 0
  .amdhsa_kernarg_size 72
  .amdhsa_user_sgpr_count 2
  .amdhsa_user_sgpr_kernarg_segment_ptr 1
  .amdhsa_system_sgpr_workgroup_id_x 1
  .amdhsa_float_denorm_mode_32 3
.end_amdhsa_kernel
"""
        return s

def main():
    ap = argparse.ArgumentParser()
    ap.add_argument('-o', default='k.s')
    ap.add_argument('--ts', action='store_true')
    ap.add_argument('--dbg', action='store_true')
    ap.add_argument('--pad', type=int, default=0)
    ap.add_argument('--ts2', action='store_true')
    ap.add_argument('--sync', default='A')
    ap.add_argument('--pk2', type=int, default=0)
    ap.add_argument('--tlb', type=int, default=0)
    ap.add_argument('--par', type=int, default=1)
    ap.add_argument('--pk4', type=int, default=0)
    ap.add_argument('--chkpos', type=int, default=0)
    ap.add_argument('--rstpos', type=int, default=1)
    ap.add_argument('--nochk', type=int, default=0)
    ap.add_argument('--xord', type=int, default=1)
    ap.add_argument('--retouch', type=int, default=0)
    ap.add_argument('--statstep', type=int, default=19)
    ap.add_argument('--tw2', type=int, default=0)
    ap.add_argument('--thr2', type=int, default=2)
    ap.add_argument('--kdual', type=int, default=0)
    ap.add_argument('--fill2', type=int, default=2)
    ap.add_argument('--rst1', default='xh')
    ap.add_argument('--qsched', default='66667777')
    ap.add_argument('--tq', type=int, default=0)
    ap.add_argument('--cgap', type=int, default=2)
    ap.add_argument('--ownpos', type=int, default=2)
    ap.add_argument('--mfB', type=int, default=3)
    ap.add_argument('--pf0', type=int, default=0)
    ap.add_argument('--pf1', type=int, default=0)
    ap.add_argument('--fixmode', type=int, default=1)
    ap.add_argument('--w2b1b', type=int, default=4)
    ap.add_argument('--p2late', type=int, default=16)
    ap.add_argument('--share', type=int, default=1)
    ap.add_argument('--share2', type=int, default=2)
    ap.add_argument('--span', action='store_true')
    ap.add_argument('--cpf2', type=int, default=3)
    ap.add_argument('--wb', type=int, default=2)
    ap.add_argument('--wbstep', type=int, default=40)
    ap.add_argument('--c1a', type=int, default=3)
    ap.add_argument('--tqc', type=int, default=2)
    ap.add_argument('--rep8', type=int, default=0)
    ap.add_argument('--xc', type=int, default=0)
    ap.add_argument('--gfirst', type=int, default=-1)
    ap.add_argument('--xorder', type=int, default=0)
    ap.add_argument('--ts3', action='store_true')
    ap.add_argument('--rste', type=int, default=0)
    ap.add_argument('--tpos', type=int, default=1)
    ap.add_argument('--tpl', default='n,n,n,n')
    ap.add_argument('--qpw', type=int, default=0)
    ap.add_argument('--ts2l1', type=int, default=0)
    ap.add_argument('--p2pipe', type=int, default=0)
    ap.add_argument('--p2a', type=int, default=6)
    ap.add_argument('--zpl', type=int, default=1)
    ap.add_argument('--n3', type=int, default=0)
    ap.add_argument('--hpf3', type=int, default=10)
    ap.add_argument('--hper', type=int, default=1)
    ap.add_argument('--fill3', type=int, default=6)
    ap.add_argument('--pad0', type=int, default=0)
    ap.add_argument('--abl', default='')
    ap.add_argument('--rsc', default='')
    ap.add_argument('--wb1', type=int, default=0)
    ap.add_argument('--kpos', type=int, default=0)
    ap.add_argument('--kpos0', type=int, default=0)
    ap.add_argument('--qlate', type=int, default=0)
    ap.add_argument('--qearly', type=int, default=0)
    ap.add_argument('--sp1', type=int, default=2)
    ap.add_argument('--sp2', type=int, default=2)
    ap.add_argument('--cq', type=int, default=0)
    ap.add_argument('--dgap', type=int, default=5)
    ap.add_argument('--sp0', type=int, default=2)
    ap.add_argument('--sp6', type=int, default=0)
    ap.add_argument('--stop', type=int, default=0)
    ap.add_argument('--spin', type=int, default=200000)
    ap.add_argument('--pre', type=int, default=11)
    ap.add_argument('--pre4', type=int, default=10)
    ap.add_argument('--pre2', type=int, default=16)
    ap.add_argument('--gap2', type=int, default=12)
    ap.add_argument('--gap4', type=int, default=24)
    ap.add_argument('--tail4', type=int, default=4)
    ap.add_argument('--rot2', type=int, default=1)
    ap.add_argument('--prewrite', type=int, default=1)
    ap.add_argument('--tw', type=int, default=5)
    ap.add_argument('--gstep', type=int, default=24)
    ap.add_argument('--att2', type=int, default=1)
    ap.add_argument('--burst', type=int, default=0)
    ap.add_argument('--hstr', type=int, default=1)
    ap.add_argument('--thr', type=int, default=6)
    ap.add_argument('--w1_solo', type=int, default=2)
    ap.add_argument('--fill_p1', type=int, default=2)
    ap.add_argument('--fill_p2', type=int, default=3)
    ap.add_argument('--fill_p3', type=int, default=3)
    ap.add_argument('--fill_p4', type=int, default=3)
    ap.add_argument('--w1_early', type=int, default=4)
    ap.add_argument('--b4start', type=int, default=4)
    ap.add_argument('--w2b1', type=int, default=4)
    ap.add_argument('--w2b2', type=int, default=4)
    ap.add_argument('--w2b3', type=int, default=4)
    ap.add_argument('--w2b3b', type=int, default=0)
    ap.add_argument('--w1_gap', type=int, default=0)
    ap.add_argument('--b1gap', type=int, default=1)
    ap.add_argument('--bgpad', type=int, default=3)
    ap.add_argument('--p2early', type=int, default=0)
    ap.add_argument('--rot', type=int, default=1)
    ap.add_argument('--kv_early', type=int, default=4)
    ap.add_argument('--nt_stage', action='store_true')
    ap.add_argument('--nt_w1', action='store_true')
    ap.add_argument('--codepf', type=int, default=1)
    ap.add_argument('--outsc', default='sc1')
    ap.add_argument('--kfirst', type=int, default=1)
    ap.add_argument('--early1', type=int, default=0)
    ap.add_argument('--gap2b', type=int, default=40)
    ap.add_argument('--tail4n', type=int, default=16)
    ap.add_argument('--hpf', type=int, default=20)
    ap.add_argument('--force_slow', action='store_true')
    o = ap.parse_args()
    if o.span: o.ts = True
    if o.outsc: o.outsc = ' ' + o.outsc
    if not o.xord: XORD[:] = list(range(32))
    g = Gen(o)
    s = g.build()
    open(o.o, 'w').write(s)
    if o.ts:
        import json; json.dump(g.tsnames, open(o.o + '.ts.json', 'w'))
    print(f'wrote {o.o}: {g.em.ninstr} instrs, {g.em.nops} nop states, {len(s)} bytes')
if __name__ == '__main__': main()
```

```python
import sys, struct, argparse
from emit import Em

NAME = "interleave_layers__linear_attn_block__dense_activation_relu__prompt"
def f2u(x): return struct.unpack('<I', struct.pack('<f', x))[0]

WS_EPOCH = 0
WS_HELLO = 1024
WS_FLAG = 4096
WS_MSG = 0x10000
WS_KT = 0x150000
WS_KTG = 0x1100000
WS_KT8 = 0x1000000
KC = 0x5000
WS_CS = 0x160000
WS_ST = 0x170000
WS_X = 0x200000
X2OFF = 0
WS_Q = 0x400000
WS_H = 0x600000
WS_DBG = 0x2000000
WS_SIZE = 0x4000000
MSG_B = 2560; KT_B = 17408; ACT_B = 131072; H_T = 86 * 1024; H_B = 4 * H_T
NONCE_K = 0x9E3779B1

sW, sG, sJ, sNonce = 's4', 's5', 's6', 's7'
SX, SQKV, SWO, SW1, SW2, SOUT, SWS = 's[8:11]', 's[12:15]', 's[16:19]', 's[20:23]', 's[24:27]', 's[28:31]', 's[32:35]'
sT, sT2, sWl, sSpin = 's52', 's53', 's54', 's55'
sGX, sGH, sG8K, sGKT, sG128 = 's56', 's57', 's58', 's59', 's60'
sQcol, sW1c0, sW1c2, sHks = 's61', 's62', 's63', 's64'
sC128, sHR, sStR = 's66', 's68', 's69'
sQR, sInv, sEps, s1em6, sLog2e = 's71', 's74', 's75', 's76', 's73'
sXrow, sJmsg, sMaskInv, sOutRow, sHello = 's77', 's78', 's85', 's80', 's81'
sEx = 's[82:83]'; sFx = 's84'
sTS = 86
sDelta, sDelta2 = 's88', 's[88:89]'
sLn2, sLn22 = 's90', 's[90:91]'
sXst, sStst, sQst = 's67', 's79', 's94'
sStM, sGXw = 's72', 's56'
sW1d = 's60'
sRot, sR, sFlag, sG256 = 's95', 's96', 's97', 's98'
sRot2, sLim4 = 's59', 's70'
sRed, sLine, sKTo, sFac = 's49', 's50', 's51', 's3'
sX0, sX1 = 's[100:101]', 's[0:1]'
sCsp = 's65'
sXm = [f's{36+i}' for i in range(8)]
sXl = ['s8', 's9', 's10', 's11', 's57', 's77', 's81', 's99']
sTab = ['s44', 's45', 's46', 's47']
sLo = 's[92:93]'
sTx, sTxn, sTh, sThn = 0, 1, 0, 1
sM0, sM1, sM3, sM4 = 's[36:37]', 's[38:39]', 's[40:41]', 's[44:45]'

vLane, vL16, vAX, vP = 'v0', 'v1', 'v2', 'v3'
vRR, vRW = 'v15', 'v18'
vTr = ['v4', 'v5', 'v6']
vDq, vD1, vDs, vS0, vS1, vS0w, vS1w = 'v7', 'v8', 'v9', 'v10', 'v11', 'v12', 'v14'
vStT, vPoll, vRl, vHi, vTid = 'v13', 'v15', 'v16', 'v17', 'v18'
CS = {'q': 'v19', 'k': 'v20', 'v': 'v21', 0: 'v22', 1: 'v23', 2: 'v34'}
AUX = 24
CB = 28
TMP = 35
BB = 40
MR = 56
ACC = 88
AF = 136
def v(i, n=1): return f'v{i}' if n == 1 else f'v[{i}:{i+n-1}]'
def a(i, n=1): return f'a{i}' if n == 1 else f'a[{i}:{i+n-1}]'
def Afrag(ks): return v(AF + 4 * ks, 4) if ks < 30 else a(248 + 4 * (ks - 30), 4)
RES = 240
W2A = 0; WOA = 176
vKT = 253
FW, FR, FO, FS, FB = 7, 11, 12, 14, 19
MF = 'v_mfma_f32_32x32x16_bf16'
DPPM = 'row_mask:0xf bank_mask:0xf'

QS = 32
S_ADDR = QS * 4096

def _ord4(c):
    pl = lambda nt: (0, 2, 1)[nt % 3] if nt < 33 else (nt - 33) % 2
    ms = sorted(range(21), key=lambda m: pl(2 * m + c))
    return ms + [21]
ORD4 = [_ord4(0), _ord4(1)]
XORD = [4 * m + k for m in range(8) for k in (0, 1)] + [4 * m + k for m in range(8) for k in (2, 3)]

class Side:
    def __init__(self, em): self.q = []; self.em = em
    def add(self, *items): self.q.extend(items)
    def run(self, k):
        while k > 0 and self.q:
            it = self.q.pop(0)
            if callable(it): it()
            else: self.em(it)
            k -= 1
    def flush(self): self.run(1 << 30); self.credit = 0
    credit = 0
    def clk(self, budget):
        self.credit = min(self.credit + budget, budget)
        while self.q and self.credit > 0:
            it = self.q.pop(0)
            if callable(it):
                it(); self.credit -= getattr(it, 'cost', 24)
            else:
                self.em(it)
                self.credit -= 56 if it.startswith('ds_write_b128') else 8 if it.startswith(('v_exp', 'v_rcp', 'v_rsq', 'v_mfma')) else 4

class Gen:
    def __init__(self, opt):
        self.o = opt; self.em = Em(); self.nts = 0; self.ncnt = 0; self.swin = None; self.lin = False
    def emit(self, items):
        for t in items: t() if callable(t) else self.em(t)

    def ts(self, name):
        if not self.o.ts or (self.o.span and name not in ('start', 'end')): return
        em = self.em
        i = self.nts; self.nts += 1
        assert i < 50
        em.force_wait(lg=0)
        em(f's_mov_b32 m0, s87'); em(f's_memtime s[{sTS}:{sTS+1}]'); em.force_wait(lg=0)
        em(f'v_writelane_b32 v39, s{sTS}, {i}'); em('s_mov_b32 s87, m0')
        self.tsnames[i] = name
        if name in ('kt', 'p3a', 'p4loop', 'p5a'):
            if name == 'kt' and self.ncnt == 0: em('s_mov_b32 s87, 0')
            em(f'v_writelane_b32 v39, s87, {50 + self.ncnt}'); self.ncnt += 1
    def dma(self, srd, voff, sbase, imm, quad, tag, nt=False, slot=None):
        em = self.em
        if slot is None: em(f's_add_u32 m0, {sWl}, {quad*4096}')
        else: em(f's_mov_b32 m0, {quad*4096 + slot*1024}')
        em(f's_add_u32 {sT}, {sbase}, {imm}')
        em(f'buffer_load_dwordx4 {voff}, {srd}, {sT} offen' + (' nt' if nt else '') + ' lds', tag=tag)
    def tr(self, dst, quad, slot, base=None):
        addr = quad * 4096 + slot * 1024
        b = (base or vTr)[addr >> 16]; off = addr & 0xFFFF
        return [f'ds_read_b64_tr_b16 {v(dst,2)}, {b} offset:{off}', f'ds_read_b64_tr_b16 {v(dst+2,2)}, {b} offset:{off+(256 if self.lin else 512)}']
    def wsload(self, dst, voff, sbase, imm, width=4, tag=None, off=0):
        em = self.em
        em(f's_add_u32 {sT}, {sbase}, {imm}')
        sfx = {1: 'dword', 2: 'dwordx2', 4: 'dwordx4'}[width]
        em(f'buffer_load_{sfx} {dst}, {voff}, {SWS}, {sT} offen' + (f' offset:{off}' if off else '') + ' sc1', tag=tag)
    def wsstore(self, src, voff, sbase, imm, width=4, tag='st', off=0, sc=None):
        em = self.em
        em(f's_add_u32 {sT}, {sbase}, {imm}')
        sfx = {1: 'dword', 2: 'dwordx2', 4: 'dwordx4'}[width]
        sc = self.sc if sc is None else sc
        em(f'buffer_store_{sfx} {src}, {voff}, {SWS}, {sT} offen' + (f' offset:{off}' if off else '') + sc, tag=tag)
    def barrier(self):
        self.em.wait_lg(0); self.em('s_barrier')
    def only_wave(self, w, f, invert=False):
        em = self.em
        L = em.newlabel('Lw')
        em(f's_cmp_{"eq" if invert else "lg"}_u32 {sW}, {w}'); em(f's_cbranch_scc1 {L}')
        em.cond_begin(); f(); em.cond_end()
        em.label(L)
    def spin_tail(self, L):
        em = self.em
        em(f's_sub_u32 {sSpin}, {sSpin}, 1'); em(f's_cbranch_scc0 {L}'); em(f's_mov_b32 {sSpin}, 0')
    def group_sync(self, p, pre=None, mid=None, tags=('st',), bar=True, skipif=None, modeB=False):
        em = self.em
        vt = v(TMP)
        mode = 'B' if (skipif or modeB) else self.o.sync
        if pre: pre()
        def drain():
            if tags is None: em.force_wait(vm=0)
            else: em.wait_vm_tag(tags)
            self.ts(f'drain{p}')
        def sig(wait=True):
            em(f'v_mov_b32 {vt}, {sNonce}')
            em(f's_add_u32 {sT2}, {sFlag}, {p*4096}')
            if wait: drain()
            em(f's_mov_b64 {sEx}, exec'); em('s_mov_b64 exec, 1')
            em(f'buffer_store_dword {vt}, off, {SWS}, {sT2}' + self.sc, tag='flag')
            em(f's_mov_b64 exec, {sEx}')
        def poll():
            L = em.newlabel('Lpoll'); D = em.newlabel('Lpd')
            em(f's_add_u32 {sT2}, {sG256}, {WS_FLAG + p*4096}')
            if mode == 'B': em(f'v_lshlrev_b32 {v(TMP+1)}, 2, {vLane}')
            else: em(f'v_lshlrev_b32 {v(TMP+1)}, 2, {vPoll}')
            em.label(L)
            em(f'buffer_load_dword {vt}, {v(TMP+1)}, {SWS}, {sT2} offen sc1')
            em.force_wait(vm=0)
            em(f'v_cmp_ne_u32 vcc, {sNonce}, {vt}')
            em(f's_cbranch_vccz {D}')
            self.spin_tail(L)
            em.label(D)
        if mode == 'B':
            if skipif:
                L = em.newlabel('Lsk')
                em(f's_cmp_eq_u32 {skipif}, 0'); em(f's_cbranch_scc1 {L}')
                em.cond_begin(); sig(); em.cond_end()
                em.label(L)
            else: sig()
            if mid: mid()
            if bar: self.barrier()
            poll()
        else:
            drain(); self.barrier()
            self.only_wave(0, lambda: sig(False))
            if mid: mid()
            if mode == 'A':
                self.only_wave(0, poll); self.barrier()
            else:
                if bar and mid: self.barrier()
                poll()
        self.ts(f'sync{p}')
    def rot(self, m, stride, base):
        em = self.em
        em(f's_add_u32 {sR}, {sRot}, {m}'); em(f's_and_b32 {sR}, {sR}, 7'); em(f's_mul_i32 {sR}, {sR}, {stride}'); em(f's_add_u32 {sR}, {sR}, {base}')
    def qkv_dma(self, planes, m, tag):
        self.rot(m, 64 * 3072, sQcol)
        for p in planes: self.dma(SQKV, vDq, sR, {'q': 0, 'k': 1024, 'v': 2048}[p], self.pl[p][m], tag)

    def prologue(self):
        em = self.em; o = self.o
        if o.pad and o.pad0: em('s_memrealtime s[86:87]')
        em('s_cmp_ge_u32 s2, 256'); em('s_cbranch_scc1 L_end')
        em('s_load_dwordx4 s[36:39], s[0:1], 0'); em('s_load_dwordx2 s[40:41], s[0:1], 16')
        em('s_load_dwordx4 s[44:47], s[0:1], 32'); em('s_load_dwordx2 s[48:49], s[0:1], 48'); em('s_load_dwordx2 s[50:51], s[0:1], 64')
        if o.ts:
            self.tsnames = {}
            em('v_mov_b32 v39, 0')
        em(f'v_mov_b32 {vTid}, v0')
        em(f'v_lshrrev_b32 v24, 6, v0'); em(f'v_and_b32 {vLane}, 63, v0')
        em(f'v_readfirstlane_b32 {sW}, v24')
        em(f's_and_b32 {sG}, s2, 7'); em(f's_lshl_b32 {sG}, {sG}, 1'); em(f's_lshr_b32 {sT}, s2, 7'); em(f's_add_u32 {sG}, {sG}, {sT}')
        em(f's_lshr_b32 {sJ}, s2, 3'); em(f's_and_b32 {sJ}, {sJ}, 15')
        em(f's_lshl_b32 {sWl}, {sW}, 10')
        em(f's_lshl_b32 {sXrow}, {sG}, 17')
        em(f's_lshl_b32 {sQcol}, {sJ}, 6')
        em(f's_and_b32 {sRot}, {sG}, 1'); em(f's_lshl_b32 {sRot}, {sRot}, 1'); em(f's_and_b32 {sT}, {sJ}, 1'); em(f's_add_u32 {sRot}, {sRot}, {sT}'); em(f's_lshl_b32 {sRot}, {sRot}, 1')
        if o.rot == 1: em(f's_lshr_b32 {sT}, {sJ}, 1'); em(f's_add_u32 {sRot}, {sRot}, {sT}')
        if o.rot in (1, 3): em(f's_add_u32 {sRot}, {sRot}, s2')
        if not o.rot: em(f's_mov_b32 {sRot}, 0')
        self.pl = {'k': list(range(0, 8)), 'v': list(range(8, 16)), 'q': list(range(16, 24))}
        em(f'v_lshlrev_b32 {vL16}, 4, {vLane}')
        em(f'v_lshrrev_b32 v27, 3, {vLane}'); em(f'v_and_b32 v28, 7, {vLane}')
        em(f'v_lshrrev_b32 v29, 1, v27'); em('v_xor_b32 v28, v28, v29'); em('v_lshlrev_b32 v28, 4, v28')
        em(f's_lshl_b32 {sT}, {sW}, 5'); em(f'v_add_u32 v27, {sT}, v27'); em('v_lshlrev_b32 v27, 10, v27')
        em('v_add_u32 v25, v27, v28'); em('v_xor_b32 v26, 64, v25')
        em(f'v_lshrrev_b32 v27, 2, {vLane}'); em(f's_lshl_b32 {sT}, {sW}, 4'); em(f'v_add_u32 v27, {sT}, v27')
        em(f'v_and_b32 v28, 3, {vLane}'); em('v_lshlrev_b32 v28, 4, v28')
        em(f'v_mul_u32_u24 {vDq}, 3072, v27'); em(f'v_add_u32 {vDq}, {vDq}, v28')
        em(f'v_mul_u32_u24 {vD1}, 2752, v27'); em(f'v_add_u32 {vD1}, {vD1}, v28')
        em.force_wait(lg=0)
        if o.pad and o.pad0: em('v_writelane_b32 v39, s86, 0')
        if o.ts:
            em('s_memrealtime s[86:87]'); em.force_wait(lg=0); em('v_writelane_b32 v39, s86, 62')
        if o.pad and not o.pad0:
            em('s_memrealtime s[86:87]'); em.force_wait(lg=0); em('v_writelane_b32 v39, s86, 0')
        self.ts('start')
        def srd(s, lo, nb):
            em(f's_mov_b32 s{s}, s{lo}'); em(f's_mov_b32 s{s+1}, s{lo+1}'); em(f's_mov_b32 s{s+2}, {nb}'); em(f's_mov_b32 s{s+3}, 0x00020000')
        srd(8, 36, 2048 * 1024); srd(32, 50, WS_SIZE); srd(12, 38, 512 * 3072)
        if o.tlb:
            em(f's_lshr_b32 {sT}, s2, 3'); em(f's_lshl_b32 {sT}, {sT}, 2'); em(f's_add_u32 {sT}, {sT}, {sW}'); em(f's_and_b32 {sT}, {sT}, 15')
            em('s_mov_b64 s[86:87], s[50:51]'); em(f's_lshl_b32 {sT2}, {sT}, 21')
            for k, pr in ((8, 's[40:41]'), (9, 's[44:45]'), (10, 's[46:47]'), (11, 's[48:49]'), (12, 's[36:37]'), (13, 's[38:39]')):
                em(f's_cmp_eq_u32 {sT}, {k}'); em(f's_cselect_b64 s[86:87], {pr}, s[86:87]')
            em(f's_cmp_ge_u32 {sT}, 5'); em(f's_cselect_b32 {sT2}, 0, {sT2}')
            em(f's_load_dword s88, s[86:87], {sT2}')
        L0 = em.newlabel('Lo'); L1 = em.newlabel('Lo')
        if o.par:
            em(f's_bitcmp1_b32 {sJ}, 0'); em(f's_cbranch_scc1 {L0}')
            it = self.chunk_items(0)
            snap = list(em.vmq)
            self.emit(it); em(f's_branch {L1}')
            em.label(L0)
            em.vmq = snap
            it = self.chunk_items(0)
            self.emit(it[4:] + it[:4])
            em.label(L1)
        else: self.chunk_dma(0)
        if o.tq:
            em(f'v_lshlrev_b32 v30, 7, {vLane}'); em(f's_lshl_b32 {sT2}, s2, 2'); em(f's_add_u32 {sT2}, {sT2}, {sW}'); em(f's_mul_i32 {sT2}, {sT2}, {12*128}')
            em('s_mov_b64 exec, 0xfff')
            em(f'buffer_load_dword a100, v30, {SQKV}, {sT2} offen', tag='touch')
            if o.tq > 1:
                em(f's_lshl_b32 {sT2}, {sJ}, 2'); em(f's_add_u32 {sT2}, {sT2}, {sW}'); em(f's_lshl_b32 {sT2}, {sT2}, 11'); em(f's_add_u32 {sT2}, {sT2}, {sXrow}')
                em('s_mov_b64 exec, 0xffff')
                em(f'buffer_load_dword a101, v30, {SX}, {sT2} offen', tag='touch')
            em('s_mov_b64 exec, -1')
        em(f'buffer_load_dword v24, off, {SWS}, 0 sc1', tag='epoch')
        if o.ts2: self.ts('iss0')
        c1 = self.chunk_items(1)
        self.emit(c1[:o.c1a]); self.c1rest = c1[o.c1a:]
        if o.ts2: self.ts('iss1')
        if o.codepf:
            em('s_getpc_b64 s[42:43]'); em.label('L_pcx')
            em(f's_lshr_b32 {sT}, s2, 3'); em(f's_lshl_b32 {sT}, {sT}, 2'); em(f's_add_u32 {sT}, {sT}, {sW}'); em(f's_lshl_b32 {sT}, {sT}, 10')
            em(f's_min_u32 {sT}, {sT}, L_slow-L_pcx-1024')
            em(f'v_add_u32 v30, {sT}, {vL16}')
            em(f'global_load_dwordx4 a[96:99], v30, s[42:43]', tag='codepf')
        srd(16, 40, 512 * 1024); srd(20, 44, 512 * 2752); srd(24, 46, 1376 * 1024); srd(28, 48, 2048 * 1024)
        em(f's_mov_b32 {sSpin}, {o.spin}')
        em(f's_mul_i32 {sGH}, {sG}, {H_B}'); em(f's_add_u32 {sGH}, {sGH}, {WS_H}')
        em(f's_lshl_b32 {sG8K}, {sG}, 13'); em(f's_add_u32 {sG8K}, {sG8K}, {WS_ST}')
        em(f's_lshl_b32 {sG128}, {sG}, 7'); em(f's_lshl_b32 {sG256}, {sG}, 8')
        em(f's_lshl_b32 {sFlag}, {sJ}, 2'); em(f's_add_u32 {sFlag}, {sFlag}, {sW}'); em(f's_lshl_b32 {sFlag}, {sFlag}, 2'); em(f's_add_u32 {sFlag}, {sFlag}, {sG256}'); em(f's_add_u32 {sFlag}, {sFlag}, {WS_FLAG}')
        em(f's_mul_i32 {sT}, {sJ}, 3'); em(f's_lshl_b32 {sT2}, {sJ}, 1'); em(f's_add_u32 {sT2}, {sT2}, 11')
        em(f's_cmp_lt_u32 {sJ}, 11'); em(f's_cselect_b32 {sT}, {sT}, {sT2}');
        em(f's_cselect_b32 {sT2}, 128, 64')
        em(f's_lshl_b32 {sW1c0}, {sT}, 6'); em(f's_add_u32 {sW1c2}, {sW1c0}, {sT2}')
        em(f's_lshl_b32 {sHks}, {sT}, 11'); em(f's_add_u32 {sHks}, {sHks}, {sGH}')
        em(f's_mul_i32 {sT}, {sW}, {H_T}'); em(f's_add_u32 {sHks}, {sHks}, {sT}')
        em(f's_and_b32 {sC128}, {sJ}, 7'); em(f's_lshl_b32 {sC128}, {sC128}, 7')
        em(f's_lshr_b32 {sT}, {sJ}, 3')
        em(f's_lshl_b32 {sT2}, {sT}, 16'); em(f's_add_u32 {sT2}, {sT2}, {sXrow}')
        em(f's_add_u32 {sOutRow}, {sT2}, {sC128}')
        em(f's_add_u32 {sQR}, {sT2}, {sWl}'); em(f's_add_u32 {sQR}, {sQR}, {WS_Q}')
        em(f's_lshl_b32 {sXst}, {sC128}, 5'); em(f's_add_u32 {sXst}, {sXst}, {sT2}'); em(f's_add_u32 {sXst}, {sXst}, {WS_X}')
        em(f's_mul_i32 {sHR}, {sT}, {2*H_T}'); em(f's_add_u32 {sHR}, {sHR}, {sGH}'); em(f's_add_u32 {sHR}, {sHR}, {sWl}')
        em(f's_lshl_b32 {sStR}, {sT}, 12'); em(f's_add_u32 {sStR}, {sStR}, {sG8K}')
        em(f's_lshr_b32 {sT}, {sW}, 1'); em(f's_and_b32 {sT2}, {sW}, 1'); em(f's_lshl_b32 {sT2}, {sT2}, 8')
        em(f's_lshl_b32 {sR}, {sT}, 15'); em(f's_add_u32 {sXst}, {sXst}, {sR}'); em(f's_add_u32 {sXst}, {sXst}, {sT2}')
        em(f's_lshl_b32 {sR}, {sT}, 11'); em(f's_add_u32 {sStM}, {sStR}, {sR}'); em(f's_add_u32 {sStM}, {sStM}, {sT2}')
        em(f's_and_b32 {sT}, {sJ}, 4'); em(f's_lshl_b32 {sT}, {sT}, 7'); em(f's_and_b32 {sT2}, {sJ}, 3'); em(f's_lshl_b32 {sT2}, {sT2}, 2')
        em(f's_add_u32 {sStst}, {sT}, {sT2}'); em(f's_add_u32 {sStst}, {sStst}, {sStM}')
        em(f's_lshl_b32 {sT}, {sW}, 15'); em(f's_add_u32 {sT}, {sT}, {sXrow}'); em(f's_add_u32 {sGXw}, {sT}, {WS_X}')
        em(f's_lshl_b32 {sQst}, {sJ}, 11'); em(f's_add_u32 {sQst}, {sQst}, {sT}'); em(f's_add_u32 {sQst}, {sQst}, {WS_Q}')
        em('s_mov_b32 s92, -1'); em('s_mov_b32 s93, 0')
        em(f's_cmp_ge_u32 {sW}, 2'); em(f's_cselect_b32 {sLim4}, 20, 21'); em(f's_lshl_b32 {sLim4}, {sLim4}, 12')
        em(f's_lshr_b32 {sT}, {sJ}, 3'); em(f's_and_b32 {sT2}, {sG}, 1'); em(f's_lshl_b32 {sT2}, {sT2}, 1'); em(f's_add_u32 {sT}, {sT}, {sT2}')
        em(f's_and_b32 {sT2}, s2, 7')
        em(f's_lshl_b32 {sRot2}, {sT}, 1'); em(f's_add_u32 {sRot2}, {sRot2}, {sT2}')
        if not o.rot2: em(f's_mov_b32 {sRot2}, 0')
        em(f's_mul_i32 {sJmsg}, {sJ}, {16*MSG_B}'); em(f's_add_u32 {sJmsg}, {sJmsg}, {WS_MSG}')
        if o.tlb: em.force_wait(lg=0)
        em(f's_mov_b32 {sDelta}, {f2u(1e-6*1.4426950408889634):#x}'); em(f's_mov_b32 {sLn2}, {f2u(0.6931471805599453):#x}')
        em('s_mov_b32 s89, s88'); em('s_mov_b32 s91, s90')
        em(f's_mov_b32 {sLog2e}, {f2u(1.4426950408889634):#x}'); em(f's_mov_b32 {sInv}, {f2u(1/512):#x}')
        em(f's_mov_b32 {sEps}, {f2u(1e-5):#x}'); em(f's_mov_b32 {s1em6}, {f2u(1e-6):#x}')
        em(f's_mov_b32 {sMaskInv}, 0xffffff00')
        em(f'v_lshrrev_b32 {vHi}, 5, {vLane}')
        em(f'v_lshrrev_b32 v27, 4, {vLane}'); em('v_lshlrev_b32 v27, 9, v27'); em(f'v_and_b32 v28, 15, {vLane}'); em(f'v_lshl_add_u32 {vP}, v28, 4, v27')
        em(f'v_bfe_u32 v27, {vLane}, 2, 2'); em(f'v_lshl_add_u32 v27, {vHi}, 2, v27')
        em(f'v_bfe_u32 v28, {vLane}, 4, 1'); em('v_lshlrev_b32 v28, 5, v28')
        em(f'v_and_b32 v29, 3, {vLane}'); em('v_lshl_add_u32 v28, v29, 3, v28')
        em(f'v_lshl_add_u32 {vTr[0]}, v27, 6, v28')
        em(f'v_lshl_add_u32 {vTr[0]}, {vHi}, 8, {vTr[0]}')
        em(f'v_add_u32 {vTr[1]}, 0x10000, {vTr[0]}'); em(f'v_add_u32 {vTr[2]}, 0x20000, {vTr[0]}')
        em(f'v_bfe_u32 v29, {vLane}, 3, 1'); em('v_lshl_add_u32 v28, v29, 6, v28')
        em(f'v_lshl_add_u32 {vS0}, v27, 7, v28'); em(f'v_add_u32 {vS0}, {sWl}, {vS0}'); em(f'v_xor_b32 {vS1}, 64, {vS0}')
        em(f'v_lshrrev_b32 v27, 3, {vLane}'); em(f'v_and_b32 v28, 7, {vLane}')
        em(f'v_bfe_u32 v29, {vLane}, 4, 1'); em('v_lshlrev_b32 v29, 2, v29'); em('v_xor_b32 v28, v28, v29'); em('v_lshlrev_b32 v28, 4, v28')
        em(f'v_lshl_add_u32 {vDs}, v27, 10, v28'); em(f's_lshl_b32 {sT}, {sW}, 14'); em(f'v_add_u32 {vDs}, {sT}, {vDs}')
        em(f'v_lshl_add_u32 v27, {vHi}, 9, {vL16}'); em(f's_lshl_b32 {sT}, {sW}, 11'); em(f'v_add_u32 {vStT}, {sT}, v27')
        em(f'v_and_b32 {vPoll}, 15, {vLane}'); em(f'v_lshlrev_b32 {vPoll}, 2, {vPoll}')

    def nonce_hello(self):
        em = self.em; o = self.o
        if o.ts2: self.ts('setup')
        em(f'v_readfirstlane_b32 {sNonce}, v24')
        if o.ts2: self.ts('epoch')
        em(f's_add_u32 {sNonce}, {sNonce}, {NONCE_K:#x}')
        em(f's_getreg_b32 {sHello}, hwreg(HW_REG_XCC_ID)'); em(f's_and_b32 {sHello}, {sHello}, 15')
        em(f's_add_u32 {sHello}, {sHello}, {sNonce}'); em(f's_add_u32 {sHello}, {sHello}, 1')
        def hello():
            em(f's_mov_b64 {sEx}, exec'); em('s_mov_b64 exec, 1')
            em(f'v_mov_b32 v24, {sHello}')
            em(f's_lshl_b32 {sT2}, {sJ}, 2'); em(f's_add_u32 {sT2}, {sT2}, {sG128}'); em(f's_add_u32 {sT2}, {sT2}, {WS_HELLO}')
            em(f'buffer_store_dword v24, off, {SWS}, {sT2} sc1')
            em(f's_mov_b64 exec, {sEx}')
        self.only_wave(0, hello)

    def chunk_items(self, c):
        it = []
        def x(rb8):
            if rb8 == 0: self.rot(c, 128, sXrow); self.em(f's_mov_b32 s99, {sR}')
            self.dma(SX, 'v25' if rb8 % 2 == 0 else 'v26', 's99', rb8 * 8192, 24 + 4 * (c % 3) + rb8, f'c{c}')
        for rb8 in range(4): it.append(lambda rb8=rb8: x(rb8))
        def w(p):
            if p == 'k': self.rot(c, 64 * 3072, sQcol); self.em(f's_mov_b32 s84, {sR}')
            self.dma(SQKV, vDq, 's84', {'k': 1024, 'v': 2048}[p], self.pl[p][c], f'c{c}')
        it += [lambda: w('k'), lambda: w('v')]
        return it
    def chunk_dma(self, c): self.emit(self.chunk_items(c))

    def touch_q(self, vt, dst):
        em = self.em
        em(f'v_lshlrev_b32 {vt}, 7, {vLane}')
        em(f's_mov_b64 {sEx}, exec')
        if self.o.qpw:
            for k in range(2): em(f'buffer_store_dwordx4 {v(MR+8,4)}, {vL16}, {SWS}, {sQst} offen offset:{k*1024}' + ('' if self.o.qpw == 2 else ' sc1'), tag='rst')
        else:
            em('s_mov_b64 exec, 0xffff')
            em(f'buffer_load_dword {v(dst)}, {vt}, {SWS}, {sQst} offen sc1', tag='touch')
        em(f'v_lshlrev_b32 {vt}, 12, {vLane}')
        em('s_mov_b64 exec, 0x7f')
        em(f'buffer_load_dword {v(dst+1)}, {vt}, {SWS}, {sFlag} offen sc1', tag='touch')
        em(f's_mov_b64 exec, {sEx}')
    def touch_w(self, vt, dst):
        em = self.em
        em(f'v_lshlrev_b32 {vt}, 7, {vLane}')
        em(f's_lshl_b32 {sT2}, s2, 2'); em(f's_add_u32 {sT2}, {sT2}, {sW}'); em(f's_mul_i32 {sT2}, {sT2}, {11*128}')
        em(f's_mov_b64 {sEx}, exec'); em('s_mov_b64 exec, 0x7ff')
        em(f'buffer_load_dword {v(dst)}, {vt}, {SW1}, {sT2} offen', tag='touch')
        em(f'buffer_load_dword {v(dst+1)}, {vt}, {SW2}, {sT2} offen', tag='touch')
        em(f's_lshl_b32 {sT2}, s2, 2'); em(f's_add_u32 {sT2}, {sT2}, {sW}'); em(f's_lshl_b32 {sT2}, {sT2}, 9')
        em('s_mov_b64 exec, 15')
        em(f'buffer_load_dword {v(dst+2)}, {vt}, {SWO}, {sT2} offen', tag='touch')
        em(f's_mov_b64 exec, {sEx}')
    def reducer_setup(self):
        em = self.em
        em(f's_lshr_b32 {sT}, {sG}, 3'); em(f's_cmp_eq_u32 {sT}, {sW}'); em(f's_cselect_b32 {sRed}, 1, 0')
        em(f's_lshl_b32 {sLine}, {sG}, 7')
        em(f's_mul_i32 {sKTo}, {sT}, 544'); em(f's_and_b32 {sT2}, {sG}, 7'); em(f's_lshl_b32 {sT2}, {sT2}, 6'); em(f's_add_u32 {sKTo}, {sKTo}, {sT2}')
        em(f's_mov_b32 {sFac}, {sLn2}')
        L = em.newlabel('Lz')
        em(f's_cmp_lg_u32 {sW}, 2'); em(f's_cbranch_scc1 {L}')
        em(f's_cmp_eq_u32 {sG}, {sJ}'); em(f's_cselect_b32 {sRed}, 1, 0')
        em(f's_mov_b32 {sLine}, 2048'); em(f's_mov_b32 {sKTo}, 512'); em(f's_mov_b32 {sFac}, 1.0')
        em.label(L)
        em(f's_sub_u32 {sCsp}, {sG}, {sJ}'); em(f's_sub_u32 {sCsp}, {sCsp}, 1'); em(f's_and_b32 {sCsp}, {sCsp}, 15')
        em(f's_cmp_eq_u32 {sW}, 3'); em(f's_cselect_b32 {sCsp}, {sCsp}, 15')
        em(f's_mul_i32 {sT2}, {sJ}, 1088'); em(f's_add_u32 {sKTo}, {sKTo}, {sT2}'); em(f's_add_u32 {sKTo}, {sKTo}, {WS_KT8 if self.o.rep8 else WS_KT}')
        em(f's_add_u32 {sLine}, {sLine}, {sJmsg}')
        em(f's_and_b32 {sT2}, {sG}, 7'); em(f's_lshl_b32 {sT2}, {sT2}, 3'); em(f's_mov_b64 {sX0}, 0xff'); em(f's_lshl_b64 {sX0}, {sX0}, {sT2}'); em(f's_not_b64 {sX0}, {sX0}')
        em(f's_cmp_eq_u32 {sT}, 0'); em(f's_cselect_b64 {sX1}, -1, {sX0}'); em(f's_cselect_b64 {sX0}, {sX0}, -1')
    def reducer_setup_c(self):
        em = self.em
        em(f's_mul_i32 {sRed}, {sG}, {KT_B}'); em(f's_add_u32 {sRed}, {sRed}, {WS_KTG}')
        em(f's_mul_i32 {sKTo}, {sJ}, 1088'); em(f's_add_u32 {sLine}, {sKTo}, {sRed}')
        em(f's_lshr_b32 {sT}, {sW}, 1'); em(f's_mul_i32 {sT}, {sT}, 544'); em(f's_and_b32 {sT2}, {sW}, 1'); em(f's_lshl_b32 {sT2}, {sT2}, 8')
        em(f's_add_u32 {sKTo}, {sLine}, {sT}'); em(f's_add_u32 {sKTo}, {sKTo}, {sT2}')
        em(f's_and_b32 {sT2}, {sG}, 3'); em(f's_lshl_b32 {sT2}, {sT2}, 4'); em(f's_mov_b64 {sX0}, 0xffff'); em(f's_lshl_b64 {sX0}, {sX0}, {sT2}'); em(f's_not_b64 {sX0}, {sX0}')
        em(f's_and_b32 {sT2}, {sG}, 7'); em(f's_lshl_b32 {sT2}, {sT2}, 3'); em(f's_mov_b64 {sX1}, 0xff'); em(f's_lshl_b64 {sX1}, {sX1}, {sT2}'); em(f's_not_b64 {sX1}, {sX1}')
        em(f's_sub_u32 {sCsp}, {sG}, {sJ}'); em(f's_sub_u32 {sCsp}, {sCsp}, 1'); em(f's_and_b32 {sCsp}, {sCsp}, 15')
        em(f's_cmp_eq_u32 {sW}, 2'); em(f's_cselect_b32 {sCsp}, {sCsp}, 15')
    def kt_voff(self, d, t):
        em = self.em
        em(f'v_and_b32 {d}, 7, {vLane}'); em(f'v_lshlrev_b32 {d}, 3, {d}'); em(f'v_lshl_add_u32 {d}, {vHi}, 2, {d}')
        em(f's_cmp_eq_u32 {sW}, {3 if self.o.xc else 2}'); em(f's_cselect_b32 {sT2}, 128, 0'); em(f'v_and_b32 {t}, 4, {vLane}'); em(f'v_mad_u32_u24 {d}, {t}, {sT2}, {d}')
        if self.o.rep8:
            em(f'v_bfe_u32 {t}, {vLane}, 3, 2'); em(f's_movk_i32 {sT2}, {KC:#x}'); em(f'v_mad_u32_u24 {d}, {t}, {sT2}, {d}')
    def resets(self):
        em = self.em
        t0, D = v(MR + 24), MR + 28
        L = em.newlabel('Lrs')
        if self.o.xc: em(f's_branch {L}')
        em(f's_cmp_eq_u32 {sRed}, 0'); em(f's_cbranch_scc1 {L}')
        em.cond_begin()
        self.kt_voff(t0, v(D)); em(f'v_mov_b32 {v(D)}, -1')
        if self.o.rep8:
            for k in range(4): self.wsstore(v(D), t0, sKTo, k * 4 * KC, width=1, sc=' sc1', tag='rst')
        else:
            em('s_mov_b32 exec_lo, 0xff'); em('s_mov_b32 exec_hi, 0xff')
            for l in range(2): self.wsstore(v(D), t0, sKTo, l * 0x8000, width=1, sc=' sc1', tag='rst')
        em('s_mov_b64 exec, -1')
        em.cond_end()
        em.label(L)
        L = em.newlabel('Lrc')
        em(f's_cmp_ge_u32 {sCsp}, 3'); em(f's_cbranch_scc1 {L}')
        em.cond_begin()
        em(f'v_lshlrev_b32 {t0}, 2, {vLane}'); em(f'v_mov_b32 {v(D)}, -1')
        em(f's_mul_i32 {sT2}, {sJ}, 384'); em(f's_lshl_b32 {sR}, {sCsp}, 7'); em(f's_add_u32 {sT2}, {sT2}, {sR}')
        em('s_mov_b32 exec_hi, 0')
        self.wsstore(v(D), t0, sT2, WS_CS, width=1, sc=' sc1', tag='rst')
        em('s_mov_b64 exec, -1')
        em.cond_end()
        em.label(L)
        def msg():
            em(f'v_lshlrev_b32 {t0}, 4, {vTid}'); em(f's_not_b32 {sT2}, {sNonce}')
            for r in range(4): em(f'v_mov_b32 {v(D+r)}, {sT2}')
            em(f'v_cmp_gt_u32 vcc, 136, {vTid}'); em(f's_and_saveexec_b64 {sEx}, vcc')
            em(f's_mul_i32 {sT2}, {sG}, {MSG_B}'); em(f's_add_u32 {sT2}, {sT2}, {sJmsg}')
            for l in range(2): self.wsstore(v(D, 4), t0, sT2, l * 256 * MSG_B, sc=' sc1', tag='rst')
            em(f's_mov_b64 exec, {sEx}')
        if self.o.prewrite: self.only_wave(3, msg, invert=True)
    def reset_items(self, D, which):
        em = self.em
        it = [f'v_mov_b32 {v(D+r)}, 0' for r in range(4)]
        if 'rst' in self.o.abl: which = 'x'
        rsc = {'x': ' sc1' if 'x' in self.o.rsc else None, 'h': ' sc1' if 'h' in self.o.rsc else None}
        def x():
            em(f's_and_b32 {sT2}, {sW}, 1'); em(f's_mul_i32 {sT2}, {sT2}, 1792'); em(f's_add_u32 {sT2}, {sT2}, {sXst}')
            self.wsstore(v(D, 4), vL16, sT2, 0, tag='rst', sc=rsc['x']); self.wsstore(v(D, 4), vL16, sT2, 0, tag='rst', off=1024, sc=rsc['x'])
        if 'x' in which: it.append(x)
        def h(p):
            self.wsstore(v(D, 4), vL16, sHks, p * 2048, tag='rst', sc=rsc['h']); self.wsstore(v(D, 4), vL16, sHks, p * 2048, tag='rst', off=1024, sc=rsc['h'])
        if 'h' in which: it += [lambda: h(0), lambda: h(1)]
        def h2():
            L = em.newlabel('Lr3')
            em(f's_cmp_ge_u32 {sJ}, 11'); em(f's_cbranch_scc1 {L}')
            em.cond_begin(); h(2); em.cond_end()
            em.label(L)
        if 'h' in which: it.append(h2)
        def st():
            em(f'v_and_b32 {v(D+4)}, 512, {vP}'); em(f'v_add_u32 {v(D+4)}, {v(D+4)}, {vP}')
            em('s_mov_b32 exec_hi, 0')
            for i in range(3): self.wsstore(v(D), v(D + 4), sStst, i * 16 * 8192, width=1, tag='rst')
            em('s_mov_b64 exec, -1')
        if 'x' in which: it.append(st)
        return it

    def check(self, regs, reload, tmp=None, split=False, kind='sent', tag=None, again=None):
        em = self.em
        if self.o.nochk and split and kind != 'h': return lambda: None
        F = em.newlabel('Lfix'); R = em.newlabel('Lret'); G_ = em.newlabel('Lok')
        dst = 'vcc' if split else sEx
        def test(e):
            r = regs[0]
            if r.startswith('a'): e(f'v_accvgpr_read_b32 {tmp}, {r}'); r = tmp
            if kind == 'sent':
                rest = list(regs)
                e(f'v_max_u32 {tmp}, {rest[0]}, {rest[1]}'); rest = rest[2:]
                while rest:
                    e(f'v_max3_u32 {tmp}, {rest[0]}, {rest[1]}, {tmp}'); rest = rest[2:]
                e(f'v_cmp_eq_u32 {dst}, -1, {tmp}')
            elif kind == 'h':
                if tag:
                    for q in regs: e(f'v_xor_b32 {q}, 0x80000000, {q}')
                if len(regs) == 2: e(f'v_or_b32 {tmp}, {regs[0]}, {regs[1]}'); r = tmp
                e(f'v_cmp_gt_i32 {dst}, 0, {r}')
            elif len(regs) <= 2:
                r1 = regs[-1]
                if r1.startswith('a'):
                    e(f'v_lshlrev_b32 {tmp}, 31, {tmp}'); e(f'v_cmp_{"eq" if tag else "ne"}_u32 {sEx}, 0, {tmp}')
                    e(f'v_accvgpr_read_b32 {tmp}, {r1}'); e(f'v_lshlrev_b32 {tmp}, 31, {tmp}'); e(f'v_cmp_{"eq" if tag else "ne"}_u32 {dst}, 0, {tmp}')
                    e('s_nop 1'); e(f's_or_b64 vcc, vcc, {sEx}')
                else:
                    e(f'v_bitop3_b32 {tmp}, {r}, {r1}, 1 bitop3:{0x80 if tag else 0xa8:#x}'); e(f'v_cmp_{"eq" if tag else "ne"}_u32 {dst}, 0, {tmp}')
            else:
                assert tag == 1
                rest = list(regs)
                e(f'v_and_b32 {tmp}, {rest[0]}, {rest[1]}'); rest = rest[2:]
                while rest:
                    e(f'v_bitop3_b32 {tmp}, {rest[0]}, {rest[1]}, {tmp} bitop3:0x80'); rest = rest[2:]
                e(f'v_and_b32 {tmp}, 1, {tmp}'); e(f'v_cmp_eq_u32 {dst}, 0, {tmp}')
        test(em)
        def branch():
            if split: em(f's_cbranch_vccnz {F}')
            else: em(f's_cmp_lg_u64 {sEx}, 0'); em(f's_cbranch_scc1 {F}')
            em.label(R)
            out = [F + ':']
            e = lambda t, tag=None: out.append('    ' + t)
            if self.o.ts and not self.o.span: e('s_add_u32 s87, s87, 1')
            def rep():
                for p in em.vmq:
                    if p.tag == 'A': again(e, p)
                    else: e(f's_mov_b32 {sFx}, {WS_DBG + 0x100000}'); e(f'buffer_store_dword {tmp}, off, {SWS}, {sFx}')
            reload(e)
            if again and self.o.fixmode: rep(); e(f's_waitcnt vmcnt({len(em.vmq)})')
            else: e('s_waitcnt vmcnt(0)')
            test(e)
            if split: e(f's_cbranch_vccz {G_}')
            else: e('s_nop 0'); e(f's_cmp_eq_u64 {sEx}, 0'); e(f's_cbranch_scc1 {G_}')
            e(f's_sub_u32 {sSpin}, {sSpin}, 1'); e(f's_cbranch_scc0 {F}'); e(f's_mov_b32 {sSpin}, 0')
            out.append(G_ + ':')
            if again and not self.o.fixmode: rep()
            e(f's_branch {R}')
            self.fixes += out
        if split: return branch
        branch()

    def colsum_items(self, quads, acc, tmp, own, ones, first):
        items = []
        rds = [self.tr(tmp + 4 * (n % 2), q, 0, own) for n, q in enumerate(quads)]
        items += rds[0]
        for n in range(len(quads)):
            if n + 1 < len(quads): items += rds[n + 1]
            items.append(f'{MF} {acc}, {ones}, {v(tmp + 4*(n%2), 4)}, ' + ('0' if first and n == 0 else acc))
        return items
    def cs_write_items(self, srcs, lds, tmp):
        ad = v(tmp)
        it = [f'v_and_b32 {ad}, 31, {vLane}', f'v_lshlrev_b32 {ad}, 4, {ad}', f'v_add_u32 {ad}, {lds:#x}, {ad}',
              f's_lshl_b32 {sT2}, {sW}, 2', f'v_add_u32 {v(tmp+1)}, {sT2}, {ad}']
        return it + [f'ds_write_b32 {v(tmp+1)}, {s} offset:{p*512}' for p, s in enumerate(srcs)]
    def cs_read_items(self, keys, tmp):
        ad = v(tmp); R = tmp + 2
        it = [f'ds_read_b128 {v(R+4*p,4)}, {ad} offset:{p*512}' for p in range(len(keys))]
        for p, k in enumerate(keys):
            r = R + 4 * p
            it += [f'v_add_f32 {v(r)}, {v(r)}, {v(r+1)}', f'v_add_f32 {v(r+2)}, {v(r+2)}, {v(r+3)}', f'v_add_f32 {v(r)}, {v(r)}, {v(r+2)}',
                   f'v_cvt_pk_bf16_f32 {v(r+1)}, {v(r)}, {v(r)}', f'v_lshlrev_b32 {v(r+1)}, 16, {v(r+1)}', f'v_sub_f32 {v(r+1)}, {v(r)}, {v(r+1)}',
                   f'v_cvt_pk_bf16_f32 {CS[k]}, {v(r)}, {v(r+1)}']
        return it
    def colsum_exchange(self, srcs, keys, lds, tmp):
        self.emit(self.cs_write_items(srcs, lds, tmp)); self.barrier(); self.emit(self.cs_read_items(keys, tmp))

    def stage_dma(self, srd, m, qa, qb, tag):
        if 'w2' in self.o.abl and srd == SW2: return
        if 'wo' in self.o.abl and srd == SWO: return
        em = self.em
        if srd == SWO:
            em(f's_add_u32 {sR}, {sRot2}, {m}'); em(f's_and_b32 {sR}, {sR}, 7'); em(f's_lshl_b32 {sR}, {sR}, 16')
        else:
            self.tab4(m, sR, 16)
        em(f's_add_u32 {sR}, {sR}, {sC128}')
        self.dma(srd, vDs, sR, 0, qa, tag, nt=self.o.nt_stage); self.dma(srd, vDs, sR, 8192, qb, tag, nt=self.o.nt_stage)
    def tab4(self, st, dst, sh, em=None):
        em = em or self.em
        em(f's_bfe_u32 {dst}, {sTab[st // 6]}, {(5 * (st % 6)) | (5 << 16):#x}'); em(f's_lshl_b32 {dst}, {dst}, {sh}')
    def stage_read_items(self, abase, m, qa, qb):
        items = []
        for h, q in enumerate((qa, qb)):
            addr = q * 4096; win = addr >> 16; off = addr & 0xFFFF
            def f(win=win, off=off, h=h):
                if win == 0: b0, b1 = vS0, vS1
                else:
                    if self.swin != win:
                        self.em(f'v_add_u32 {vS0w}, {win*65536:#x}, {vS0}'); self.em(f'v_add_u32 {vS1w}, {win*65536:#x}, {vS1}'); self.swin = win
                    b0, b1 = vS0w, vS1w
                self.em(f'ds_read_b64_tr_b16 {a(abase + m*8 + 2*h, 2)}, {b0} offset:{off}')
                self.em(f'ds_read_b64_tr_b16 {a(abase + m*8 + 4 + 2*h, 2)}, {b1} offset:{off}')
            items.append(f)
        return items

    def aux_items(self, S, Q, t0, need_r=True):
        it = [f'v_mul_f32 {S}, {sInv}, {S}']
        if need_r:
            it += [f'v_mul_f32 {Q}, {sInv}, {Q}', f'v_fma_f32 {Q}, -{S}, {S}, {Q}', f'v_max_f32 {Q}, 0, {Q}', f'v_add_f32 {Q}, {sEps}, {Q}',
                   f'v_rsq_f32 {Q}, {Q}', f'v_mul_f32 {vRl}, {sLog2e}, {Q}']
        it += [f'v_cndmask_b32_e64 {S}, 0, -{S}, {sLo}',
               f'v_cvt_pk_bf16_f32 {v(AUX)}, {S}, {S}', f'v_lshlrev_b32 {t0}, 16, {v(AUX)}', f'v_sub_f32 {S}, {S}, {t0}', f'v_cvt_pk_bf16_f32 {v(AUX+1)}, {S}, {S}']
        if need_r:
            it += [f'v_cndmask_b32 {Q}, 0, {vRl}, {sLo}', f'v_cvt_pk_bf16_f32 {t0}, {Q}, {Q}', f'v_lshlrev_b32 {t0}, 16, {t0}', f'v_sub_f32 {t0}, {Q}, {t0}',
                   f'v_cvt_pk_bf16_f32 {v(AUX+2)}, {Q}, {t0}']
        return it
    def aux_const_items(self):
        return [f'v_mov_b32 {v(AUX+2)}, 0', f'v_mov_b32 {v(AUX+3)}, 0', f'v_mov_b32 {v(CB+2)}, 0', f'v_mov_b32 {v(CB+3)}, 0', f'v_mov_b32 {v(CB+4)}, 0x3f803f80', f'v_mov_b32 {v(CB+5)}, 0x3f803f80']
    def corr_items(self, key, acc, swapAB):
        c = v(acc, 16)
        return [f'v_mov_b32 {v(CB)}, {CS[key]}', f'v_mov_b32 {v(CB+1)}, {CS[key]}',
                f'{MF} {c}, {v(AUX,4)}, {v(CB,4)}, {c}' if swapAB else f'{MF} {c}, {v(CB,4)}, {v(AUX,4)}, {c}']
    def stats_T_loads(self, i, e=None):
        e = e or self.em
        t = MR + 16
        e(f's_add_u32 {sFx}, {sG8K}, {i * 16 * 8192}')
        e(f'buffer_load_dwordx4 {v(t,4)}, {vStT}, {SWS}, {sFx} offen sc1', tag='stat'); e(f'buffer_load_dwordx4 {v(t+4,4)}, {vStT}, {SWS}, {sFx} offen offset:512 sc1', tag='stat')
    def stats_T_items(self, need_r, sti):
        t = MR + 16
        it = [lambda: self.check([v(t + r) for r in range(8)], lambda e: self.stats_T_loads(sti, e), v(38), kind='x', tag=sTxn)]
        it += [f'v_add_f32 {v(t)}, {v(t)}, {v(t+1)}', f'v_add_f32 {v(t+2)}, {v(t+2)}, {v(t+3)}', f'v_add_f32 {v(t+4)}, {v(t+4)}, {v(t+5)}',
              f'v_add_f32 {v(t+6)}, {v(t+6)}, {v(t+7)}', f'v_add_f32 {v(t)}, {v(t)}, {v(t+2)}', f'v_add_f32 {v(t+4)}, {v(t+4)}, {v(t+6)}',
              f'v_add_f32 {v(t)}, {v(t)}, {v(t+4)}', f'v_mov_b32 {v(t+1)}, {v(t)}', f'v_permlane32_swap_b32 {v(t)}, {v(t+1)}']
        return it + self.aux_items(v(t), v(t + 1), v(t + 2), need_r)

    def pass2(self, steps, planes, accs, swapAB, side, fill, loader=None, first=True, extra=None, third=None):
        em = self.em
        steps = list(steps)
        n3 = third[2] if third else 0
        def rd3(i):
            ks = steps[i]
            for t in self.tr(MR + 24 + (i % 2) * 4, third[0][ks >> 2], ks & 3): em(t, tag=('B', i))
        def rd(i, p):
            ks = steps[i]
            for t in self.tr(BB + (i % 2) * 8 + 4 * p, planes[p][ks >> 2], ks & 3): em(t, tag=('B', i))
        for i in range(2):
            for p in range(2): rd(i, p)
            if i < n3: rd3(i)
        br = extra(0)
        for i, ks in enumerate(steps):
            if br: br(); br = None
            if self.o.ts2 and (self.S == 0) != bool(self.o.ts2l1) and i == 0: self.ts('first')
            lg = [k for k, p in enumerate(em.lgq) if p.tag == ('B', i)]
            need = [XORD[k] for k in (i + 1, i + 2) if k < len(steps)] if i % 2 else []
            vm = [k for k, p in enumerate(em.vmq) if p.tag == 'A' and XORD[self.ldidx[id(p)]] in need]
            em.force_wait(vm=len(em.vmq) - 1 - max(vm) if vm else None, lg=len(em.lgq) - 1 - max(lg) if lg else None)
            for p in range(2):
                w = v(BB + (i % 2) * 8 + 4 * p, 4); x = Afrag(ks); c = v(accs[p], 16)
                src = '0' if (first and i == 0) else c
                em(f'{MF} {c}, {x}, {w}, {src}' if swapAB else f'{MF} {c}, {w}, {x}, {src}')
                if i + 2 < len(steps): rd(i + 2, p)
                if p == 0: loader(i)
                if p == 0 and i + 1 < len(steps): br = extra(i + 1)
                if not (p == 0 and br): side.run(fill(i) if callable(fill) else fill)
                if p == 1 and i < n3:
                    c3 = v(third[1], 16)
                    em(f'{MF} {c3}, {v(MR + 24 + (i % 2) * 4, 4)}, {x}, ' + ('0' if i == 0 else c3))
                    if i + 2 < n3: rd3(i + 2)
                    side.run(fill(i))
                if self.o.ts2 and (self.S == 0) != bool(self.o.ts2l1) and p == 1 and i in (0, 3, 7, 11, 15, 19, 23, 27, 31): self.ts(f's{i}')
    def pass1(self, plane, acc, side, fill, steps=None):
        em = self.em
        NB = 4
        first = steps is None
        steps = list(range(32)) if steps is None else list(steps)
        def rd(i):
            for t in self.tr(BB + (i % NB) * 4, plane[steps[i] >> 2], steps[i] & 3): em(t)
        for i in range(NB - 1): rd(i)
        for i, ks in enumerate(steps):
            w = v(BB + (i % NB) * 4, 4); c = v(acc, 16)
            if i + NB - 1 < len(steps): rd(i + NB - 1)
            em(f'{MF} {c}, {w}, {Afrag(ks)}, ' + ('0' if first and i == 0 else c))
            side.run(fill(i) if callable(fill) else fill)
    def xld(self, i, e=None):
        ks = XORD[i]
        r = (e or self.em)(f'buffer_load_dwordx4 {Afrag(ks)}, {vAX}, {SWS}, {(sXl if ks & 2 else sXm)[ks >> 2]} offen offset:{(ks & 1) * 1024} sc1', tag='A')
        if e is None: self.ldidx[id(r)] = i
    def x_prefetch(self, off, n0, n1):
        if n0 == 0:
            self.em(f's_add_u32 {sT}, {sGXw}, {off}'); self.em(f'v_add_u32 {vAX}, {sT}, {vL16}')
        for i in range(n0, n1): self.xld(i)
    def a_loader(self, pre, sti, xtag):
        nxt = [pre]
        def step(i):
            if i == self.o.statstep - 10: self.stats_T_loads(sti)
            for _ in range(2 if i < self.o.burst else 1):
                if nxt[0] < 32: self.xld(nxt[0]); nxt[0] += 1
            self.xdone = nxt[0] >= 32
        def chk(i):
            if i % 2: return None
            f0 = lambda k: (lambda r: r[0] + r[2:].split(':')[0])(Afrag(XORD[k]))
            return self.check([f0(i), f0(i + 1)], lambda e: (self.xld(i, e), self.xld(i + 1, e)), v(38), split=True, kind='x', tag=xtag,
                              again=lambda e, p: self.xld(self.ldidx[id(p)], e))
        return step, chk

    def phi_items(self, acc, rl, lanes_t, E):
        out = []
        for g in range(2):
            b = acc + 8 * g
            for k in range(4):
                x = v(b + 2 * k, 2)
                if lanes_t:
                    out += [f'v_fma_f32 {v(b+2*k)}, {v(b+2*k)}, {rl}, {sDelta}', f'v_fma_f32 {v(b+2*k+1)}, {v(b+2*k+1)}, {rl}, {sDelta}']
                else: out.append(f'v_pk_fma_f32 {x}, {x}, {v(rl + 8*g + 2*k, 2)}, {sDelta2}')
            for k in range(8): out.append(f'v_exp_f32_e64 {v(E+k)}, {v(b+k)} clamp')
            for k in range(8): out.append(f'v_max_f32 {v(b+k)}, {sDelta}, {v(b+k)}')
            for k in range(4): out.append(f'v_pk_fma_f32 {v(b+2*k,2)}, {v(b+2*k,2)}, {sLn22}, {v(E+2*k,2)}')
            for k in range(4): out.append(f'v_cvt_pk_bf16_f32 {v(acc+4*g+k)}, {v(b+2*k)}, {v(b+2*k+1)}')
        return out

    def p1_start(self):
        em = self.em; o = self.o
        self.lin = True
        X = MR; OWN = [v(MR + 4), v(MR + 5), v(MR + 6)]; H = v(MR + 7); ONE = v(MR + 8, 4); CT = MR + 12
        self.OWN, self.ONE = OWN, ONE
        aS, aCk, aCv = a(0, 16), a(32, 16), a(48, 16); QA = ACC + 32
        em(f'v_and_b32 v27, 7, {vLane}'); em('v_lshlrev_b32 v27, 7, v27')
        em(f'v_bfe_u32 v28, {vLane}, 3, 2'); em('v_lshl_add_u32 v27, v28, 12, v27')
        em(f's_add_u32 {sT}, {sWl}, {24*4096}'); em(f'v_add_u32 v27, {sT}, v27')
        em(f'v_bfe_u32 v28, {vLane}, 1, 3'); em(f'v_xor_b32 v28, v28, {vHi}')
        for kk in range(4):
            em(f'v_xor_b32 v29, {2*kk}, v28'); em(f'v_lshl_add_u32 {v(X+kk)}, v29, 4, v27')
        for i in range(3): em(f'v_add_u32 {OWN[i]}, {sWl}, {vTr[i]}')
        for i in range(4): em(f'v_mov_b32 {v(MR+8+i)}, 0x3f803f80')
        for sm, bit in ((sM0, 1), (sM1, 2), (sM3, 8), (sM4, 16)):
            em(f'v_and_b32 v29, {bit}, {vLane}'); em(f'v_cmp_ne_u32 {sm}, 0, v29')
        em(f'v_bfe_u32 v29, {vLane}, 2, 1'); em(f'v_cmp_eq_u32 s[46:47], v29, {vHi}')
        if o.tw == 0: self.touch_w('v29', MR + 20)
        self.reducer_setup_c() if o.xc else self.reducer_setup()
        self.emit(self.c1rest)
        def own_reads(c):
            em.wait_vm_tag(f'c{c}')
            for kk in range(4): em(f'ds_read_b128 {Afrag(4*c+kk)}, {v(X+kk)} offset:{(c % 3) * 16384}')
            for p, pl in enumerate('kv'): self.emit(self.tr(CT + 4 * p, self.pl[pl][c], 0, OWN))
        side = Side(em)
        self.stq = list(range(24, 32)) + [34, 35, 32, 33, 36, 37, 38, 39]
        if o.ts2: self.ts('pre0')
        own_reads(0)
        self.ts('c0')
        for c in range(8):
            em('s_barrier')
            if c + 2 < 8: side.add(*self.chunk_items(c + 2))
            if c == 0: side.add(self.nonce_hello)
            if c == 1: side.add(self.resets)
            self.touch_at(f'c{c}', side, 'v27')
            if o.rste and c == o.rste:
                def early_resets():
                    keep = self.sc; self.sc = ' sc1'
                    self.emit(self.reset_items(MR + 24, 'xh')); self.sc = keep
                side.add(early_resets)
            if c == o.tqc: side.add(lambda: self.touch_q('v27', MR + 24))
            if c == o.tw - 1: side.add(lambda: self.touch_w('v27', MR + 20))
            if c == 1:
                def w1p():
                    em(f's_lshl_b32 {sT2}, {sW}, 6'); em(f's_add_u32 {sT2}, {sT2}, {sW1c0}'); em(f's_cmp_lt_u32 {sW}, 2'); em(f's_cselect_b32 {sT2}, {sT2}, {sW1c2}')
                    em(f's_lshl_b32 {sR}, {sG}, 1'); em(f's_sub_u32 {sR}, {sR}, {sW}'); em(f's_mul_i32 {sR}, {sR}, {16*2752}')
                    em(f'v_add_u32 v28, {sR}, {vD1}')
                    self.dma(SW1, 'v28', sT2, 0, 36, 'w1p'); self.dma(SW1, 'v28', sT2, 16 * 2752, 37, 'w1p')
                side.add(w1p)
            if c == 5:
                aW = a(80, 16); W = MR + 24
                side.add(lambda: em.wait_vm_tag('w1p'))
                side.add(*self.tr(W, 36, 0, OWN)); side.add(*self.tr(W + 4, 37, 0, OWN))
                side.add(f'{MF} {aW}, {ONE}, {v(W,4)}, 0', f'{MF} {aW}, {ONE}, {v(W+4,4)}, {aW}')
            if c == 6:
                def w1s():
                    W = MR + 24
                    em(f'v_accvgpr_read_b32 {v(W)}, a80'); em(f's_and_b32 {sT2}, {sNonce}, 0xff'); em(f'v_mov_b32 {v(W+1)}, {sT2}')
                    em(f'v_and_or_b32 {v(W)}, {v(W)}, {sMaskInv}, {v(W+1)}'); em(f'v_lshlrev_b32 {v(W+1)}, 2, {vLane}')
                    em(f's_min_u32 {sR}, {sW}, 2'); em(f's_lshl_b32 {sR}, {sR}, 7')
                    em(f's_mul_i32 {sT2}, {sG}, {MSG_B}'); em(f's_add_u32 {sT2}, {sT2}, {sJmsg}'); em(f's_add_u32 {sT2}, {sT2}, {sR}')
                    em('s_mov_b32 exec_hi, 0')
                    self.wsstore(v(W), v(W + 1), sT2, 2176, width=1, sc=' sc1', tag='rst')
                    em('s_mov_b64 exec, -1')
                side.add(w1s)
            if c == 5:
                def hello():
                    em(f's_add_u32 {sT2}, {sG128}, {WS_HELLO}')
                    em(f'buffer_load_dword {H}, {vPoll}, {SWS}, {sT2} offen sc1', tag='hello')
                side.add(hello)
            if c >= 5:
                for m in range(8):
                    if o.qsched[m] == str(c): side.add(lambda m=m: self.qkv_dma('q', m, 'q'))
            def rd(kk, p):
                self.emit(self.tr(BB + (kk % 2) * 8 + 4 * p, self.pl['kv'[p]][c], kk))
            for kk in range(2):
                for p in range(2): rd(kk, p)
            cnt = [0]
            def tick():
                cnt[0] += 1
                if c < 7 and cnt[0] % o.cgap == o.cgap - 1: side.run(1)
            for p, acc in enumerate((aCk, aCv)):
                em(f'{MF} {acc}, {ONE}, {v(CT+4*p,4)}, ' + ('0' if c == 0 else acc)); tick()
            for kk in range(4):
                ks = 4 * c + kk
                em(f'{MF} {aS}, {ONE}, {Afrag(ks)}, ' + ('0' if ks == 0 else aS)); tick()
                em(f'{MF} {v(QA,16)}, {Afrag(ks)}, {Afrag(ks)}, ' + ('0' if ks == 0 else v(QA, 16))); tick()
            if c == 7:
                S, Q, T = v(MR + 20), v(QA), v(MR + 22)
                tail = [f'v_accvgpr_read_b32 {v(MR+20)}, a32', f'v_accvgpr_read_b32 {v(MR+21)}, a48']
                tail += self.cs_write_items([v(MR + 20), v(MR + 21)], 32 * 4096, MR + 22) + [self.barrier] + self.cs_read_items(['k', 'v'], MR + 22)
                tail += [f'v_accvgpr_read_b32 {S}, a0']
                for r in range(8): tail.append(f'v_cndmask_b32 {v(QA+r)}, {v(QA+2*r)}, {v(QA+2*r+1)}, {sM0}')
                for r in range(4): tail.append(f'v_cndmask_b32 {v(QA+r)}, {v(QA+2*r)}, {v(QA+2*r+1)}, {sM1}')
                for r in range(2): tail.append(f'v_cndmask_b32 {v(QA+r)}, {v(QA+2*r)}, {v(QA+2*r+1)}, {sM3}')
                tail += [f'v_cndmask_b32 {Q}, {Q}, {v(QA+1)}, {sM4}', f'v_cndmask_b32 {Q}, 0, {Q}, s[46:47]',
                         f'v_mov_b32 {T}, {Q}', f'v_permlane32_swap_b32 {Q}, {T}', f'v_add_f32 {Q}, {Q}, {T}']
                tail += self.aux_const_items() + self.aux_items(S, Q, T)
                side.q = tail + side.q
            for kk in range(4):
                ks = 4 * c + kk
                for p in range(2):
                    cc = v(ACC + 16 * p, 16)
                    em(f'{MF} {cc}, {Afrag(ks)}, {v(BB + (kk % 2) * 8 + 4 * p, 4)}, ' + ('0' if ks == 0 else cc))
                    if kk + 2 < 4: rd(kk + 2, p)
                    if c < 7: tick()
                    else: side.run(7)
                if kk == o.ownpos and c + 1 < 8: own_reads(c + 1)
            if c < 7: side.flush()
            if c in (1, 3, 5) and not o.ts2: self.ts(f'c{c}e')
        side.flush()
        self.ts('kvpass')
        self.emit(self.corr_items('k', ACC, True)); self.emit(self.corr_items('v', ACC + 16, True))
        L = em.newlabel('Lhp'); D = em.newlabel('Lhd')
        em.wait_vm_tag('hello')
        em.label(L)
        em(f'v_subrev_u32 {v(TMP)}, {sNonce}, {H}'); em(f'v_add_u32 {v(TMP)}, -1, {v(TMP)}')
        em(f'v_cmp_le_u32 vcc, 16, {v(TMP)}')
        em(f's_cbranch_vccz {D}')
        em.cond_begin()
        em(f's_add_u32 {sT2}, {sG128}, {WS_HELLO}')
        em(f'buffer_load_dword {H}, {vPoll}, {SWS}, {sT2} offen sc1'); em.force_wait(vm=0)
        em.cond_end()
        self.spin_tail(L)
        em.label(D)
        em(f'v_cmp_ne_u32 vcc, {sHello}, {H}')
        for i in range(3): em(f'v_mov_b32 {v(TMP+i)}, {OWN[i]}')
        self.OWN = [v(TMP), v(TMP + 1), v(TMP + 2)]
        em(f'{MF} {v(MR,16)}, {v(AUX,4)}, {v(CB+2,4)}, 0')
        self.ts('decide')

    def p1_rest(self, l):
        em = self.em; o = self.o
        K, V, Q = ACC, ACC + 16, ACC + 32
        RL = MR; E = MR + 16
        sq = self.pl['k'][:4]
        sa = 36 * 4096
        mw, mr, fac, t16, tg = v(V + 8), v(V + 9), v(V + 10), v(V + 11), v(V + 12)
        u, x1, x2 = v(V + 13), v(V + 14), v(V + 15)
        self.emit(self.phi_items(K, RL, False, E))
        D0, D1 = MR, MR + 16
        rest = []
        for hh in range(2):
            rest += [f'v_pk_mul_f32 {v(V+2*r,2)}, {v(V+2*r,2)}, {v(RL+2*r,2)}' for r in range(4 * hh, 4 * hh + 4)]
            rest += [f'v_cvt_pk_bf16_f32 {v(V+r)}, {v(V+2*r)}, {v(V+2*r+1)}' for r in range(4 * hh, 4 * hh + 4)]
        W_ = E
        rest = rest[:8] + [f'v_mov_b32 {v(K+8+r)}, {v(CB+4)}' for r in range(8)] + [f'v_permlane16_swap_b32 {v(V+r)}, {v(K+8+r)}' for r in range(4)] + rest[8:]
        rest += [f'{MF} {v(D1,16)}, {v(K,4)}, {v(K+8,4)}, 0']
        rest += [f'v_permlane16_swap_b32 {v(V+r)}, {v(K+8+r)}' for r in range(4, 8)]
        rest += [f'{MF} {v(D0,16)}, {v(K,4)}, {v(V,4)}, 0', f'{MF} {v(D1,16)}, {v(K+4,4)}, {v(K+12,4)}, {v(D1,16)}',
                 f'{MF} {v(D0,16)}, {v(K+4,4)}, {v(V+4,4)}, {v(D0,16)}']
        if l == 0 and not o.qlate:
            for r in range(4): em(f'v_mov_b32 {v(BB+8+r)}, {v(CB+4)}')
            cs = [lambda: em.wait_vm_tag('q')] + self.colsum_items(self.pl['q'], v(Q, 16), BB, self.OWN, v(BB + 8, 4), True)
            mixed = []
            while rest or cs:
                mixed += rest[:1] + cs[:1]; rest = rest[1:]; cs = cs[1:]
            rest = mixed
        self.emit(rest)
        self.emit([f's_lshl_b32 {sT2}, {sW}, 12', f's_add_u32 {sT2}, {sT2}, {sa}', f'v_add_u32 {mw}, {sT2}, {vL16}',
                   f'v_bfe_u32 {x1}, {vLane}, 1, 4', f'v_lshl_add_u32 {x1}, {vHi}, 5, {x1}', f'v_lshlrev_b32 {x1}, 4, {x1}',
                   f's_lshl_b32 {sT2}, {sW}, 11', f'v_add_u32 {x1}, {sT2}, {x1}',
                   f'v_bfe_u32 {x2}, {vLane}, 1, 2', f'v_lshlrev_b32 {x2}, 9, {x2}', f'v_bfe_u32 {u}, {vLane}, 2, 1', f'v_lshl_add_u32 {x2}, {u}, 10, {x2}', f'v_add_u32 {x2}, 256, {x2}',
                   f's_cmp_eq_u32 {sW}, 2', f's_cselect_b64 vcc, -1, 0', f'v_cndmask_b32 {mr}, {x1}, {x2}, vcc',
                   f'v_and_b32 {x1}, 1, {vLane}', f'v_lshl_add_u32 {mr}, {x1}, 10, {mr}', f'v_add_u32 {mr}, {sa:#x}, {mr}',
                   f'v_add_u32 {t16}, {sWl}, {vL16}', f's_and_b32 {sT2}, {sNonce}, 0xff', f'v_mov_b32 {tg}, {sT2}',
                   f'v_lshrrev_b32 {x1}, 3, {vLane}', f'v_mul_u32_u24 {x1}, {MSG_B}, {x1}', f'v_and_b32 {x2}, 7, {vLane}', f'v_lshl_add_u32 {fac}, {x2}, 4, {x1}'])
        self.kt_voff(u, x1)
        for i, r in ((2, D1 + 8), (3, D1 + 12), (0, D0), (1, D0 + 4)): em(f'ds_write_b128 {mw}, {v(r,4)} offset:{i*1024}')
        if l == 0 and not o.qlate: self.emit(self.cs_write_items([v(Q)], 33 * 4096, V))
        if not o.qlate: em.wait_vm_tag('q')
        self.barrier()
        if not o.ts2: self.ts('kvbar')
        M = MR
        if o.xc: return self.exchange_c(l, mw, mr, fac, t16, tg, u, x1, x2)
        ga = fac; G = MR + 4; A0 = x1; sOK = 's48'
        def msg_out():
            for i in range(4): em(f'ds_read_b128 {v(M+4*i,4)}, {mr} offset:{i*4096}')
            for r in (0, 2): em(f'v_pk_add_f32 {v(M+r,2)}, {v(M+r,2)}, {v(M+4+r,2)}')
            for r in (0, 2): em(f'v_pk_add_f32 {v(M+8+r,2)}, {v(M+8+r,2)}, {v(M+12+r,2)}')
            for r in (0, 2): em(f'v_pk_add_f32 {v(M+r,2)}, {v(M+r,2)}, {v(M+8+r,2)}')
            em(f'v_cmp_gt_u32 vcc, 2176, {t16}')
            for r in range(4): em(f'v_and_or_b32 {v(M+r)}, {v(M+r)}, {sMaskInv}, {tg}')
            em(f's_mul_i32 {sT2}, {sG}, {MSG_B}'); em(f's_add_u32 {sT2}, {sT2}, {sJmsg}')
            em('s_mov_b64 exec, vcc')
            self.wsstore(v(M, 4), t16, sT2, l * 256 * MSG_B, sc=' sc1', tag='msg')
            em('s_mov_b64 exec, -1')
        self.only_wave(3, msg_out, invert=True)
        def if_pending(f):
            L = em.newlabel('Lp')
            em(f's_cmp_lg_u32 {sOK}, 0'); em(f's_cbranch_scc1 {L}')
            em.cond_begin(); f(); em.vmq = [p for p in em.vmq if p.tag != 'g']; em.cond_end()
            em.label(L)
            self.gmark = set(id(p) for p in em.vmq)
        def g_loads():
            em(f's_mov_b64 exec, {sX0}'); self.wsload(v(G, 4), ga, sLine, l * 256 * MSG_B, tag='g')
            em(f's_mov_b64 exec, {sX1}'); self.wsload(v(G + 4, 4), ga, sLine, l * 256 * MSG_B + 8 * MSG_B, tag='g')
            em('s_mov_b64 exec, -1')
        def g_check():
            em(f'v_xor_b32 {A0}, {v(G)}, {tg}')
            for r in (3, 4, 7): em(f'v_bitop3_b32 {A0}, {v(G+r)}, {tg}, {A0} bitop3:0xbe')
            em(f'v_and_b32 {A0}, 0xff, {A0}'); em(f'v_cmp_ne_u32 vcc, 0, {A0}')
        def g_finish():
            for r in (0, 2): em(f'v_pk_add_f32 {v(G+r,2)}, {v(G+r,2)}, {v(G+4+r,2)}')
            for r in range(4): em(f'v_add_f32_dpp {v(G+r)}, {v(G+r)}, {v(G+r)} row_ror:8 {DPPM}')
            em(f'v_permlane16_swap_b32 {v(G)}, {v(G+1)}'); em(f'v_permlane16_swap_b32 {v(G+2)}, {v(G+3)}')
            em(f'v_add_f32 {v(G)}, {v(G)}, {v(G+1)}'); em(f'v_add_f32 {v(G+2)}, {v(G+2)}, {v(G+3)}')
            em(f'v_permlane32_swap_b32 {v(G)}, {v(G+2)}'); em(f'v_add_f32 {v(G)}, {v(G)}, {v(G+2)}')
            em(f'v_mul_f32 {v(G)}, {sFac}, {v(G)}'); em(f'v_mov_b32 {v(G+1)}, {v(G)}')
            em(f'v_permlane16_swap_b32 {v(G)}, {v(G+1)}'); em(f'v_cvt_pk_bf16_f32 {v(G)}, {v(G)}, {v(G+1)}')
            if o.rep8:
                for k in range(2): self.wsstore(v(G), u, sKTo, (l * 8 + k * 4) * KC, width=1, sc=' sc1', tag='kt')
            else:
                em('s_mov_b32 exec_lo, 0xff'); em('s_mov_b32 exec_hi, 0xff')
                self.wsstore(v(G), u, sKTo, l * 0x8000, width=1, sc=' sc1', tag='kt')
            em('s_mov_b64 exec, -1')
            em(f's_mov_b32 {sOK}, 1')
        def first():
            for r in range(4): em(f'v_mov_b32 {v(G+r)}, {v(M+r)}'); em(f'v_mov_b32 {v(G+4+r)}, {v(M+r)}')
            g_loads()
        def attempt():
            em.force_wait(vm=len([p for p in em.vmq if id(p) not in self.gmark]))
            g_check()
            L = em.newlabel('La'); E2 = em.newlabel('Lb')
            em(f's_cbranch_vccnz {L}')
            em.cond_begin(); g_finish(); em.cond_end()
            em(f's_branch {E2}')
            em.label(L)
            g_loads()
            em.label(E2)
        em(f's_xor_b32 {sOK}, {sRed}, 1')
        if_pending(first)
        self.ts('msg')
        side = Side(em)
        if o.qlate:
            base = len(em.vmq) - 1 - max(i_ for i_, p in enumerate(em.vmq) if p.tag == 'q')
            La = em.newlabel('Lq'); Lb = em.newlabel('Lq'); Lc = em.newlabel('Lq')
            em(f's_cmp_eq_u32 {sOK}, 0'); em(f's_cbranch_scc1 {La}')
            em(f's_cmp_eq_u32 {sW}, 3'); em(f's_cbranch_scc0 {Lb}')
            em(f's_waitcnt vmcnt({base})'); em(f's_branch {Lc}')
            em.label(La); em(f's_waitcnt vmcnt({base + 3})'); em(f's_branch {Lc}')
            em.label(Lb); em(f's_waitcnt vmcnt({base + 1})')
            em.label(Lc)
            del em.vmq[:len(em.vmq) - base]
            self.gmark = set(id(p) for p in em.vmq)
            self.barrier()
            if l == 0:
                side.add(*[f'v_mov_b32 {v(MR+12+r)}, {v(CB+4)}' for r in range(4)])
                side.add(*self.colsum_items(self.pl['q'], v(K, 16), V, self.OWN, v(MR + 12, 4), True))
                side.add('s_nop 7', 's_nop 3')
                side.add(*self.cs_write_items([v(K)], 33 * 4096, V)); side.add(self.barrier)
        if l == 0: side.add(*self.cs_read_items(['q'], V))
        self.p1_bg(l, side)
        def fillq(ks):
            if ks == o.gstep: if_pending(attempt)
            return o.fill_p1
        self.pass1(self.pl['q'], Q, side, fillq)
        self.emit(self.corr_items('q', Q, False))
        side.flush()
        if self.lin:
            self.lin = False
            em(f'v_lshlrev_b32 {v(TMP)}, 8, {vHi}')
            for i in range(3): em(f'v_sub_u32 {vTr[i]}, {vTr[i]}, {v(TMP)}')
        self.barrier()
        self.ts('qpass')
        if o.gstep >= 32 or o.att2: if_pending(attempt)
        self.p1_after_q(l)
        self.emit(self.phi_items(Q, vRl, True, E))
        self.wsstore(v(Q, 4), vL16, sQst, 0); self.wsstore(v(Q + 4, 4), vL16, sQst, 0, off=1024)
        if o.rstpos == 1 and l == 0 and not o.rste: self.emit(self.reset_items(ACC + 8, o.rst1))
        self.kt_addr()
        if not o.ts2: self.ts('qst')
        def loop():
            L = em.newlabel('Lg'); D = em.newlabel('Lgd')
            em.force_wait(vm=len([p for p in em.vmq if id(p) not in self.gmark]))
            em.label(L)
            g_check()
            em(f's_cbranch_vccz {D}')
            em.cond_begin(); g_loads(); em.force_wait(vm=0); em.cond_end()
            self.spin_tail(L)
            em.label(D)
            g_finish()
            em.force_wait(vm=2 if o.rep8 else 1)
            em('s_mov_b64 exec, 1')
            em(f'v_mov_b32 {A0}, {sNonce}'); em(f's_add_u32 {sT2}, {sFlag}, {4*l*4096}')
            em(f'buffer_store_dword {A0}, off, {SWS}, {sT2}' + self.sc)
            em('s_mov_b64 exec, -1')
            em(f's_mov_b32 {sOK}, 0')
        if_pending(loop)
        if not o.ts2: self.ts('kvpoll')
        def cs_reduce():
            L0 = em.newlabel('Lc'); L = em.newlabel('Lc'); D = em.newlabel('Lc')
            em(f's_cmp_ge_u32 {sCsp}, 3'); em(f's_cbranch_scc1 {L0}')
            em.cond_begin()
            em(f's_lshl_b32 {sR}, {sCsp}, 7'); em(f's_add_u32 {sR}, {sR}, {sJmsg}')
            em.label(L)
            self.wsload(v(G, 4), ga, sR, 2176); self.wsload(v(G + 4, 4), ga, sR, 2176 + 8 * MSG_B)
            em(f'v_xor_b32 {A0}, {v(G)}, {tg}')
            for r in range(1, 8): em(f'v_bitop3_b32 {A0}, {v(G+r)}, {tg}, {A0} bitop3:0xbe')
            em(f'v_and_b32 {A0}, 0xff, {A0}'); em(f'v_cmp_ne_u32 vcc, 0, {A0}')
            em(f's_cbranch_vccz {D}')
            self.spin_tail(L)
            em.label(D)
            for r in (0, 2): em(f'v_pk_add_f32 {v(G+r,2)}, {v(G+r,2)}, {v(G+4+r,2)}')
            for r in range(4): em(f'v_add_f32_dpp {v(G+r)}, {v(G+r)}, {v(G+r)} row_ror:8 {DPPM}')
            em(f'v_permlane16_swap_b32 {v(G)}, {v(G+1)}'); em(f'v_permlane16_swap_b32 {v(G+2)}, {v(G+3)}')
            em(f'v_add_f32 {v(G)}, {v(G)}, {v(G+1)}'); em(f'v_add_f32 {v(G+2)}, {v(G+2)}, {v(G+3)}')
            em(f'v_permlane32_swap_b32 {v(G)}, {v(G+2)}'); em(f'v_add_f32 {v(G)}, {v(G)}, {v(G+2)}')
            em(f'v_cvt_pk_bf16_f32 {v(G+1)}, {v(G)}, {v(G)}'); em(f'v_lshlrev_b32 {v(G+1)}, 16, {v(G+1)}'); em(f'v_sub_f32 {v(G+1)}, {v(G)}, {v(G+1)}')
            em(f'v_cvt_pk_bf16_f32 {v(G)}, {v(G)}, {v(G+1)}')
            em(f'v_and_b32 {v(G+1)}, 7, {vLane}'); em(f'v_lshlrev_b32 {v(G+1)}, 4, {v(G+1)}'); em(f'v_lshrrev_b32 {v(G+2)}, 4, {vLane}'); em(f'v_lshl_add_u32 {v(G+1)}, {v(G+2)}, 2, {v(G+1)}')
            em(f's_mul_i32 {sT2}, {sJ}, 384'); em(f's_lshl_b32 {sR}, {sCsp}, 7'); em(f's_add_u32 {sT2}, {sT2}, {sR}')
            em('s_mov_b32 exec_lo, 0x00ff00ff'); em('s_mov_b32 exec_hi, 0x00ff00ff')
            self.wsstore(v(G), v(G + 1), sT2, WS_CS, width=1, sc=' sc1', tag='kt')
            em('s_mov_b64 exec, -1')
            em.cond_end()
            em.label(L0)
        def touches():
            t = v(ACC + 8)
            self.retouch(0, t, v(ACC + 9))
            em('s_mov_b32 exec_hi, 0xffff')
            em(f'buffer_load_dword {v(ACC+10)}, {t}, {SWS}, {sHks} offen sc1', tag='touch')
            em(f'v_lshlrev_b32 {t}, 17, {vLane}')
            em(f's_lshl_b32 {sT2}, {sJ}, 2'); em(f's_add_u32 {sT2}, {sT2}, {sW}'); em(f's_lshl_b32 {sT2}, {sT2}, 7'); em(f's_add_u32 {sT2}, {sT2}, {sG8K}')
            em('s_mov_b64 exec, 7')
            em(f'buffer_load_dword {v(ACC+11)}, {t}, {SWS}, {sT2} offen sc1', tag='touch')
            em('s_mov_b64 exec, -1')
        def streams():
            self.p1_gap(l)
            n = o.share if l == 0 else o.share2
            for m in range(n): self.w1dma(0, m, 'w1a'); self.w1dma(1, m, 'w1a')
            self.w1_todo = list(range(n, 4)) + [m for m in self.w1_todo if m >= 4]
            if l == 0 and o.rste and o.tpos == 1: touches()
        if o.xorder & (1 << l):
            self.p2_hook = streams
            def mid():
                if l == 0: cs_reduce()
                if l == 0 and o.rste and o.tpos == 0: touches()
            return self.group_sync(4 * l + 0, mid=mid, bar=False, skipif=sOK, tags=None)
        self.p2_hook = None
        def mid():
            if l == 0: self.touch_at('g', None, v(ACC + 8))
            if l == 0: cs_reduce()
            if l == 0 and o.rste: touches()
            def l2w2():
                em(f'v_lshlrev_b32 {v(G)}, 7, {vLane}'); em(f's_lshr_b32 {sT2}, s2, 3'); em(f's_mul_i32 {sT2}, {sT2}, {344*128}')
                for k in range(6):
                    if k == 5: em('s_mov_b64 exec, 0xffffff')
                    em(f's_add_u32 {sT}, {sT2}, {k*8192}')
                    em(f'buffer_load_dword {v(G+1+k)}, {v(G)}, {SW2}, {sT} offen', tag='l2')
                    if o.thr2 and k >= o.thr2 - 1: em.force_wait(vm=o.thr2 - 1)
                em('s_mov_b64 exec, -1')
                em.vmq = [p for p in em.vmq if p.tag != 'l2']
            if l == 0 and o.tw2 == 1: self.only_wave(3, l2w2)
            self.p1_gap(l)
            if o.share >= 0:
                n = o.share if l == 0 else o.share2
                for m in range(n): self.w1dma(0, m, 'w1a'); self.w1dma(1, m, 'w1a')
                self.w1_todo = list(range(n, 4)) + [m for m in self.w1_todo if m >= 4]
            else: self.only_wave(3, lambda: self.p1_loader(l, 3))
            if l == 0 and o.tw2 == 2: self.only_wave(3, l2w2)
        self.group_sync(4 * l + 0, mid=mid, bar=False, skipif=sOK, tags=None)

    def exchange_c(self, l, mw, mr, gz, t16, tg, uz, x1, x2):
        em = self.em; o = self.o
        K, V, Q = ACC, ACC + 16, ACC + 32
        M = MR; G = MR; Z = K + 8; A0 = x1; A1 = x2; sOK = 's48'; IMG = 32 * 4096
        ga, uk, im = mw, mr, v(TMP + 3)
        moff = l * 256 * MSG_B; koff = l * 16 * KT_B
        def msg_out():
            for i in range(4): em(f'ds_read_b128 {v(M+4*i,4)}, {mr} offset:{i*4096}')
            em(f'v_lshrrev_b32 {A0}, 9, {t16}'); em(f'v_and_b32 {A1}, 511, {t16}'); em(f'v_lshl_add_u32 {A0}, {A0}, 10, {A1}')
            em(f's_cmp_eq_u32 {sW}, 2'); em(f's_cselect_b32 {sT2}, 512, 0'); em(f's_sub_u32 {sT2}, {IMG}, {sT2}'); em(f'v_add_u32 {A0}, {sT2}, {A0}')
            for r in (0, 2): em(f'v_pk_add_f32 {v(M+r,2)}, {v(M+r,2)}, {v(M+4+r,2)}')
            for r in (0, 2): em(f'v_pk_add_f32 {v(M+8+r,2)}, {v(M+8+r,2)}, {v(M+12+r,2)}')
            for r in (0, 2): em(f'v_pk_add_f32 {v(M+r,2)}, {v(M+r,2)}, {v(M+8+r,2)}')
            em(f'v_cmp_gt_u32 vcc, 2176, {t16}')
            for r in range(4): em(f'v_and_or_b32 {v(M+r)}, {v(M+r)}, {sMaskInv}, {tg}')
            em(f's_mul_i32 {sT2}, {sG}, {MSG_B}'); em(f's_add_u32 {sT2}, {sT2}, {sJmsg}')
            em('s_mov_b64 exec, vcc')
            self.wsstore(v(M, 4), t16, sT2, moff, sc=' sc1', tag='msg')
            em(f'ds_write_b128 {A0}, {v(M,4)}')
            em('s_mov_b64 exec, -1')
            em.wait_lg(0)
        self.only_wave(3, msg_out, invert=True)
        em(f'v_lshrrev_b32 {A0}, 4, {vLane}'); em(f'v_mul_u32_u24 {A0}, {MSG_B}, {A0}'); em(f'v_and_b32 {A1}, 15, {vLane}')
        em(f'v_lshl_add_u32 {ga}, {A1}, 4, {A0}'); em(f's_lshl_b32 {sT2}, {sW}, 9'); em(f'v_add_u32 {ga}, {sT2}, {ga}')
        em(f'v_lshlrev_b32 {uk}, 3, {A1}'); em(f'v_lshl_add_u32 {uk}, {vHi}, 2, {uk}')
        em(f'v_lshlrev_b32 {im}, 4, {A1}'); em(f's_add_u32 {sT2}, {sWl}, {IMG}'); em(f'v_add_u32 {im}, {sT2}, {im}')
        def w3(f): self.only_wave(3, f)
        def drop(): em.vmq = [p for p in em.vmq if p.tag != 'g']
        def g_loads():
            for s_ in range(4):
                em(f's_lshr_b32 {sR}, {sG}, 2'); em(f's_add_u32 {sR}, {sR}, {s_}'); em(f's_and_b32 {sR}, {sR}, 3'); em(f's_mul_i32 {sR}, {sR}, {4*MSG_B}')
                em(f's_add_u32 {sR}, {sR}, {sJmsg}'); em(f's_add_u32 {sR}, {sR}, {moff}')
                if s_ == 0: em(f's_mov_b64 exec, {sX0}')
                for k in range(2): em(f'buffer_load_dwordx4 {v(G+16*k+4*s_,4)}, {ga}, {SWS}, {sR} offen offset:{k*256} sc1', tag='g')
                if s_ == 0: em('s_mov_b64 exec, -1')
            def z():
                for s_ in range(2):
                    em(f's_lshr_b32 {sR}, {sG}, 3'); em(f's_xor_b32 {sR}, {sR}, {s_}'); em(f's_mul_i32 {sR}, {sR}, {8*MSG_B}'); em(f's_add_u32 {sR}, {sR}, {sJmsg}')
                    if s_ == 0: em(f's_mov_b64 exec, {sX1}')
                    self.wsload(v(Z + 4 * s_, 4), gz, sR, moff + 2048, tag='g')
                    if s_ == 0: em('s_mov_b64 exec, -1')
                drop()
            drop(); w3(z)
            self.gmark = set(id(p) for p in em.vmq)
        def own_fill():
            em(f's_not_b64 exec, {sX0}')
            for k in range(2): em(f'ds_read_b128 {v(G+16*k,4)}, {im} offset:{k*256}')
            em('s_mov_b64 exec, -1')
            def z():
                em(f'v_and_b32 {A0}, 7, {vLane}'); em(f'v_lshlrev_b32 {A0}, 4, {A0}'); em(f'v_add_u32 {A0}, {IMG + 3584:#x}, {A0}')
                em(f's_not_b64 exec, {sX1}')
                em(f'ds_read_b128 {v(Z,4)}, {A0}')
                em('s_mov_b64 exec, -1')
                em.wait_lg(0)
            w3(z)
        def g_check():
            em(f'v_xor_b32 {A0}, {v(G)}, {tg}'); em(f'v_xor_b32 {A1}, {v(G+3)}, {tg}')
            for q in range(1, 8):
                em(f'v_bitop3_b32 {A0}, {v(G+4*q)}, {tg}, {A0} bitop3:0xbe'); em(f'v_bitop3_b32 {A1}, {v(G+4*q+3)}, {tg}, {A1} bitop3:0xbe')
            def z():
                for r in (0, 4): em(f'v_bitop3_b32 {A0}, {v(Z+r)}, {tg}, {A0} bitop3:0xbe'); em(f'v_bitop3_b32 {A1}, {v(Z+r+3)}, {tg}, {A1} bitop3:0xbe')
            w3(z)
            em(f'v_or_b32 {A0}, {A0}, {A1}'); em(f'v_and_b32 {A0}, 0xff, {A0}'); em(f'v_cmp_ne_u32 vcc, 0, {A0}')
        def rows(B, scale):
            em(f'v_permlane16_swap_b32 {v(B)}, {v(B+1)}'); em(f'v_permlane16_swap_b32 {v(B+2)}, {v(B+3)}')
            em(f'v_add_f32 {v(B)}, {v(B)}, {v(B+1)}'); em(f'v_add_f32 {v(B+2)}, {v(B+2)}, {v(B+3)}')
            em(f'v_permlane32_swap_b32 {v(B)}, {v(B+2)}'); em(f'v_add_f32 {v(B)}, {v(B)}, {v(B+2)}')
            if scale: em(f'v_mul_f32 {v(B)}, {sLn2}, {v(B)}')
            em(f'v_mov_b32 {v(B+1)}, {v(B)}')
            em(f'v_permlane16_swap_b32 {v(B)}, {v(B+1)}'); em(f'v_cvt_pk_bf16_f32 {v(B)}, {v(B)}, {v(B+1)}')
        def g_finish():
            for k in range(2):
                B = G + 16 * k
                for r in (0, 2): em(f'v_pk_add_f32 {v(B+r,2)}, {v(B+r,2)}, {v(B+4+r,2)}')
                for r in (0, 2): em(f'v_pk_add_f32 {v(B+8+r,2)}, {v(B+8+r,2)}, {v(B+12+r,2)}')
            for k in range(2):
                B = G + 16 * k
                for r in (0, 2): em(f'v_pk_add_f32 {v(B+r,2)}, {v(B+r,2)}, {v(B+8+r,2)}')
            rows(G, True); rows(G + 16, True)
            em('s_mov_b32 exec_lo, 0xffff'); em('s_mov_b32 exec_hi, 0xffff')
            for k in range(2): self.wsstore(v(G + 16 * k), uk, sKTo, koff, width=1, off=k * 128, tag='kt')
            em('s_mov_b64 exec, -1')
            def z():
                for r in (0, 2): em(f'v_pk_add_f32 {v(Z+r,2)}, {v(Z+r,2)}, {v(Z+4+r,2)}')
                for r in range(4): em(f'v_add_f32_dpp {v(Z+r)}, {v(Z+r)}, {v(Z+r)} row_ror:8 {DPPM}')
                rows(Z, False)
                em('s_mov_b32 exec_lo, 0xff'); em('s_mov_b32 exec_hi, 0xff')
                self.wsstore(v(Z), uz, sLine, koff + 512, width=1, tag='kt')
                em('s_mov_b64 exec, -1')
            w3(z)
            em(f's_mov_b32 {sOK}, 1')
        def if_pending(f):
            L = em.newlabel('Lp')
            em(f's_cmp_lg_u32 {sOK}, 0'); em(f's_cbranch_scc1 {L}')
            em.cond_begin(); f(); drop(); em.cond_end()
            em.label(L)
            self.gmark = set(id(p) for p in em.vmq)
        def attempt():
            em.force_wait(vm=len([p for p in em.vmq if id(p) not in self.gmark]), lg=0)
            g_check()
            L = em.newlabel('La'); E2 = em.newlabel('Lb')
            em(f's_cbranch_vccnz {L}')
            em.cond_begin(); g_finish(); em.cond_end()
            em(f's_branch {E2}')
            em.label(L)
            g_loads()
            em.label(E2)
        def loop():
            L = em.newlabel('Lg'); D = em.newlabel('Lgd')
            em.force_wait(vm=len([p for p in em.vmq if id(p) not in self.gmark]))
            em.label(L)
            g_check()
            em(f's_cbranch_vccz {D}')
            em.cond_begin(); g_loads(); em.force_wait(vm=0); em.cond_end()
            self.spin_tail(L)
            em.label(D)
            g_finish()
        def kt_resets():
            em(f'v_mov_b32 {A0}, -1')
            em('s_mov_b32 exec_lo, 0xffff'); em('s_mov_b32 exec_hi, 0xffff')
            for ll in range(2):
                for k in range(2): self.wsstore(A0, uk, sKTo, ll * 16 * KT_B, width=1, off=k * 128, tag='rst')
            em('s_mov_b64 exec, -1')
            def z():
                em('s_mov_b32 exec_lo, 0xff'); em('s_mov_b32 exec_hi, 0xff')
                for ll in range(2): self.wsstore(A0, uz, sLine, ll * 16 * KT_B + 512, width=1, tag='rst')
                em('s_mov_b64 exec, -1')
            w3(z)
        em(f's_mov_b32 {sOK}, 0')
        if l == 0: kt_resets()
        if o.gfirst < 0: g_loads()
        self.ts('msg')
        side = Side(em)
        if l == 0: side.add(*self.cs_read_items(['q'], V))
        side.add(self.barrier, own_fill)
        self.p1_bg(l, side)
        def fillq(ks):
            if ks == o.gfirst: g_loads()
            if ks == o.gstep: if_pending(attempt)
            return o.fill_p1
        self.pass1(self.pl['q'], Q, side, fillq)
        self.emit(self.corr_items('q', Q, False))
        side.flush()
        if self.lin:
            self.lin = False
            em(f'v_lshlrev_b32 {v(TMP)}, 8, {vHi}')
            for i in range(3): em(f'v_sub_u32 {vTr[i]}, {vTr[i]}, {v(TMP)}')
        self.barrier()
        self.ts('qpass')
        if o.gstep >= 32 or o.att2: if_pending(attempt)
        self.p1_after_q(l)
        self.emit(self.phi_items(Q, vRl, True, BB))
        self.wsstore(v(Q, 4), vL16, sQst, 0); self.wsstore(v(Q + 4, 4), vL16, sQst, 0, off=1024)
        if l == 0: self.emit(self.reset_items(V, o.rst1))
        self.kt_addr()
        if not o.ts2: self.ts('qst')
        def cs_reduce():
            C = BB
            L0 = em.newlabel('Lc'); L = em.newlabel('Lc'); D = em.newlabel('Lc')
            em(f's_cmp_ge_u32 {sCsp}, 3'); em(f's_cbranch_scc1 {L0}')
            em.cond_begin()
            em(f's_lshl_b32 {sR}, {sCsp}, 7'); em(f's_add_u32 {sR}, {sR}, {sJmsg}')
            em.label(L)
            self.wsload(v(C, 4), gz, sR, 2176); self.wsload(v(C + 4, 4), gz, sR, 2176 + 8 * MSG_B)
            em(f'v_xor_b32 {A0}, {v(C)}, {tg}')
            for r in range(1, 8): em(f'v_bitop3_b32 {A0}, {v(C+r)}, {tg}, {A0} bitop3:0xbe')
            em(f'v_and_b32 {A0}, 0xff, {A0}'); em(f'v_cmp_ne_u32 vcc, 0, {A0}')
            em(f's_cbranch_vccz {D}')
            self.spin_tail(L)
            em.label(D)
            for r in (0, 2): em(f'v_pk_add_f32 {v(C+r,2)}, {v(C+r,2)}, {v(C+4+r,2)}')
            for r in range(4): em(f'v_add_f32_dpp {v(C+r)}, {v(C+r)}, {v(C+r)} row_ror:8 {DPPM}')
            em(f'v_permlane16_swap_b32 {v(C)}, {v(C+1)}'); em(f'v_permlane16_swap_b32 {v(C+2)}, {v(C+3)}')
            em(f'v_add_f32 {v(C)}, {v(C)}, {v(C+1)}'); em(f'v_add_f32 {v(C+2)}, {v(C+2)}, {v(C+3)}')
            em(f'v_permlane32_swap_b32 {v(C)}, {v(C+2)}'); em(f'v_add_f32 {v(C)}, {v(C)}, {v(C+2)}')
            em(f'v_cvt_pk_bf16_f32 {v(C+1)}, {v(C)}, {v(C)}'); em(f'v_lshlrev_b32 {v(C+1)}, 16, {v(C+1)}'); em(f'v_sub_f32 {v(C+1)}, {v(C)}, {v(C+1)}')
            em(f'v_cvt_pk_bf16_f32 {v(C)}, {v(C)}, {v(C+1)}')
            em(f'v_and_b32 {v(C+1)}, 7, {vLane}'); em(f'v_lshlrev_b32 {v(C+1)}, 4, {v(C+1)}'); em(f'v_lshrrev_b32 {v(C+2)}, 4, {vLane}'); em(f'v_lshl_add_u32 {v(C+1)}, {v(C+2)}, 2, {v(C+1)}')
            em(f's_mul_i32 {sT2}, {sJ}, 384'); em(f's_lshl_b32 {sR}, {sCsp}, 7'); em(f's_add_u32 {sT2}, {sT2}, {sR}')
            em('s_mov_b32 exec_lo, 0x00ff00ff'); em('s_mov_b32 exec_hi, 0x00ff00ff')
            self.wsstore(v(C), v(C + 1), sT2, WS_CS, width=1, sc=' sc1', tag='kt')
            em('s_mov_b64 exec, -1')
            em.cond_end()
            em.label(L0)
        def streams():
            self.p1_gap(l)
            n = o.share if l == 0 else o.share2
            for m in range(n): self.w1dma(0, m, 'w1a'); self.w1dma(1, m, 'w1a')
            self.w1_todo = list(range(n, 4)) + [m for m in self.w1_todo if m >= 4]
        def mid():
            self.gmark = set()
            if_pending(attempt)
            if not o.ts2: self.ts('kvpoll')
            if l == 0: cs_reduce()
            if o.xorder == 0: streams()
        self.group_sync(4 * l + 0, mid=mid, bar=False, tags=None, modeB=True)
        def after_q_loads():
            if_pending(loop)
            self.ts('gdone')
            if o.xorder == 1: streams()
        self.p2_hook = after_q_loads

    def w1dma(self, p, m, tag):
        if 'w1' in self.o.abl and self.S: return
        if p != 1: self.rot(m, 64 * 2752, sW1c2 if p == 2 else sW1c0)
        if p == 1: self.em(f's_add_u32 {sR}, {sR}, {sW1d}')
        self.dma(SW1, vD1, sR, 0, self.w1pl[p][m], tag)

    def p1_bg(self, l, side):
        em = self.em; o = self.o
        self.w1pl = [[16, 17, 18, 19, 24, 25, 26, 27], [20, 21, 22, 23, 28, 29, 30, 31], list(range(32, 40))]
        pad = ['s_nop 0'] * o.bgpad
        if l == 0:
            def res():
                t = v(ACC + 22)
                em(f'v_lshrrev_b32 {t}, 2, {vLane}'); em(f's_lshl_b32 {sT2}, {sW}, 4'); em(f'v_add_u32 {t}, {sT2}, {t}'); em(f'v_lshlrev_b32 {t}, 10, {t}')
                em(f'v_and_b32 {v(ACC+23)}, 3, {vLane}'); em(f'v_lshl_add_u32 {t}, {v(ACC+23)}, 4, {t}')
                em(f'buffer_load_dwordx4 {a(RES,4)}, {t}, {SX}, {sOutRow} offen', tag='res')
                em(f'buffer_load_dwordx4 {a(RES+4,4)}, {t}, {SX}, {sOutRow} offen offset:64', tag='res')
            side.add(res)
            self.touch_at('q', side, v(ACC + 22))
            side.add(self.late_setup)
            for i in range(5): side.add(lambda i=i: self.stage_dma(SWO, i, self.stq[2 * i], self.stq[2 * i + 1], 'wo'), *pad)
            if o.rstpos == 0: side.add(*self.reset_items(ACC + 8, o.rst1))
            self.w1_todo = [4, 5, 6, 7]
        else:
            m0 = 4 + self.w1_pre; m1 = max(m0, min(8, 4 + o.w1_early))
            for m in range(m0, m1): side.add(lambda m=m: (self.w1dma(0, m, 'w1a'), self.w1dma(1, m, 'w1a')), *pad)
            self.w1_todo = list(range(m1, 8))
            if o.t4: side.q = self.img_m3(S_ADDR, v(TMP), v(TMP + 1)) + self.img_io('r', v(TMP), 64) + side.q
            for m in range(o.cq): side.add(lambda m=m: self.w1dma(2, m, 'w1a'), *pad)

    def late_setup(self):
        em = self.em
        em(f's_sub_u32 {sW1d}, {sW1c2}, {sW1c0}')
        em(f's_add_u32 {sW1c2}, {sW1c0}, 64')
        if self.o.zpl: em(f's_cmp_lt_u32 {sJ}, 11'); em(f's_cselect_b32 {sW1c2}, {sW1c2}, 0x10000000')
        em(f's_lshl_b32 {sT2}, {sW}, 13'); em(f's_add_u32 {sT2}, {sT2}, {S_ADDR}'); em(f'v_add_u32 {vRW}, {sT2}, {vL16}')
        em(f's_lshr_b32 {sT}, {sW}, 1'); em(f's_lshl_b32 {sT2}, {sT}, 12'); em(f's_and_b32 {sR}, {sW}, 1'); em(f's_lshl_b32 {sR}, {sR}, 8')
        em(f's_add_u32 {sT2}, {sT2}, {sR}'); em(f's_add_u32 {sT2}, {sT2}, {S_ADDR}')
        em(f'v_lshl_add_u32 {vRR}, {vHi}, 10, {vP}'); em(f'v_add_u32 {vRR}, {sT2}, {vRR}')
        for m in range(8):
            em(f's_add_u32 {sXm[m]}, {sRot}, {m}'); em(f's_and_b32 {sXm[m]}, {sXm[m]}, 7'); em(f's_and_b32 {sR}, {sXm[m]}, 1')
            em(f's_lshl_b32 {sXm[m]}, {sXm[m]}, 1'); em(f's_add_u32 {sXm[m]}, {sXm[m]}, {sR}'); em(f's_lshl_b32 {sXm[m]}, {sXm[m]}, 11'); em(f's_xor_b32 {sXl[m]}, {sXm[m]}, 2048')
        for k in range(4):
            w0, w1_ = [sum(m << (5 * i) for i, m in enumerate(ORD4[c][6 * k:6 * k + 6])) for c in range(2)]
            em(f's_mov_b32 {sTab[k]}, {w0:#x}'); em(f's_cmp_eq_u32 {sT}, 0'); em(f's_cselect_b32 {sTab[k]}, {sTab[k]}, {w1_:#x}')

    def p1_after_q(self, l):
        if l == 0:
            for i in range(5, 8): self.stage_dma(SWO, i, self.stq[2 * i], self.stq[2 * i + 1], 'wo')

    def p1_gap(self, l):
        em = self.em; o = self.o
        if l == 0:
            em.wait_vm_tag('wo')
            for i in range(8): self.emit(self.stage_read_items(WOA, i, self.stq[2 * i], self.stq[2 * i + 1]))
            em.wait_lg(0)
            self.res_first()
            self.w2next = 0
            self.b1 = self.w2_batch(list(range(32, 40))[:2 * o.w2b1], 'w2a')
            for m in range(4, 4 + o.w1_gap): self.w1dma(0, m, 'w1a'); self.w1dma(1, m, 'w1a')
            self.w1_todo = list(range(4 + o.w1_gap, 8))
            if o.b1gap: self.emit(self.b1[0])

    def p1_loader(self, l, w):
        em = self.em; o = self.o
        vo = v(TMP)
        em(f'v_subrev_u32 {vo}, {w*16*2752}, {vD1}')
        for m in range(o.w1_solo):
            self.rot(m, 64 * 2752, sW1c0)
            for s in range(4):
                if s == 0: em(f's_add_u32 {sFx}, {sR}, {sW1d}')
                for p in range(2): self.dma(SW1, vo, sFx if p else sR, s * 16 * 2752, self.w1pl[p][m], 'solo', slot=s)
                if o.thr: em.force_wait(vm=o.thr)
        self.w1_todo = list(range(o.w1_solo, 4)) + [m for m in self.w1_todo if m >= 4]

    def w2_batch(self, quads, tag):
        steps = list(range(self.w2next, min(22, self.w2next + len(quads) // 2)))
        self.w2next += len(steps)
        issue = [lambda k=k, m=m: self.stage_dma(SW2, m, quads[2 * k], quads[2 * k + 1], tag) for k, m in enumerate(steps)]
        read = [lambda: self.em.wait_vm_tag(tag)] if steps else []
        for k, m in enumerate(steps): read += self.stage_read_items(W2A, m, quads[2 * k], quads[2 * k + 1])
        return issue, read

    def res_first(self):
        em = self.em
        t0, t1, t2 = v(TMP), v(TMP + 1), v(TMP + 2)
        em(f's_add_u32 {sT2}, {sWl}, {self.S}')
        em(f'v_add_u32 {t0}, {sT2}, {vL16}')
        em(f'v_and_b32 {t1}, 15, {vLane}'); em(f'v_lshlrev_b32 {t1}, 6, {t1}'); em(f'v_lshl_add_u32 {t1}, {vHi}, 5, {t1}')
        em(f'v_bfe_u32 {t2}, {vLane}, 4, 1'); em(f'v_lshl_add_u32 {t1}, {t2}, 3, {t1}'); em(f'v_add_u32 {t1}, {sT2}, {t1}')
        for h in range(2): em(f'ds_write_b128 {t0}, {a(RES+4*h,4)} offset:{h*4096}')
        em.wait_lg(0)
        for h in range(2):
            em(f'ds_read_b64 {a(RES+4*h,2)}, {t1} offset:{h*4096}'); em(f'ds_read_b64 {a(RES+4*h+2,2)}, {t1} offset:{h*4096+16}')
        em.wait_lg(0)
    def res_last_items(self, lds):
        t0, t1, t2 = v(TMP), v(TMP + 1), v(TMP + 2)
        it = [f'v_and_b32 {t0}, 15, {vLane}', f'v_mul_u32_u24 {t0}, 144, {t0}', f'v_lshl_add_u32 {t0}, {vHi}, 5, {t0}',
              f'v_bfe_u32 {t1}, {vLane}, 4, 1', f'v_lshl_add_u32 {t0}, {t1}, 3, {t0}',
              f's_mul_i32 {sT2}, {sW}, {16*144}', f's_add_u32 {sT2}, {sT2}, {lds}', f'v_add_u32 {t0}, {sT2}, {t0}',
              f'v_lshrrev_b32 {t1}, 3, {vLane}', f'v_mul_u32_u24 {t1}, 144, {t1}', f'v_and_b32 {t2}, 7, {vLane}', f'v_lshl_add_u32 {t1}, {t2}, 4, {t1}',
              f's_mul_i32 {sT2}, {sW}, {8*144}', f's_add_u32 {sT2}, {sT2}, {lds}', f'v_add_u32 {t1}, {sT2}, {t1}']
        for c in range(2):
            it += [f'ds_write_b64 {t0}, {a(RES+4*c,2)} offset:{c*64}', f'ds_write_b64 {t0}, {a(RES+4*c+2,2)} offset:{c*64+16}']
        it2 = [f'ds_read_b128 {a(RES+4*h,4)}, {t1} offset:{h*32*144}' for h in range(2)]
        return it, it2
    def img_m3(self, lds, t0, t1):
        return [f'v_and_b32 {t0}, 15, {vLane}', f'v_mul_u32_u24 {t0}, 144, {t0}', f'v_lshl_add_u32 {t0}, {vHi}, 5, {t0}',
                f'v_bfe_u32 {t1}, {vLane}, 4, 1', f'v_lshl_add_u32 {t0}, {t1}, 3, {t0}',
                f's_mul_i32 {sT2}, {sW}, {16*144}', f's_add_u32 {sT2}, {sT2}, {lds}', f'v_add_u32 {t0}, {sT2}, {t0}']
    def img_m1(self, lds, t0, t1):
        return [f'v_and_b32 {t0}, 7, {vLane}', f'v_mul_u32_u24 {t0}, 144, {t0}', f'v_lshrrev_b32 {t1}, 4, {vLane}', f'v_lshl_add_u32 {t0}, {t1}, 5, {t0}',
                f'v_bfe_u32 {t1}, {vLane}, 3, 1', f'v_lshl_add_u32 {t0}, {t1}, 3, {t0}',
                f's_mul_i32 {sT2}, {sW}, {8*144}', f's_add_u32 {sT2}, {sT2}, {lds}', f'v_add_u32 {t0}, {sT2}, {t0}']
    def img_io(self, op, t0, step):
        it = []
        for c in range(2):
            for k in range(2):
                r = a(RES + 4 * c + 2 * k, 2); off = c * step + k * 16
                it.append(f'ds_write_b64 {t0}, {r} offset:{off}' if op == 'w' else f'ds_read_b64 {r}, {t0} offset:{off}')
        return it
    def m1_addr_items(self):
        W_, R_, O_, SS, SM = (v(BB + i) for i in range(5)); t0, t1, t2 = v(BB + 5), v(BB + 6), v(BB + 7)
        return [f'v_lshlrev_b32 {t1}, 7, {vHi}', f'v_xor_b32 {W_}, {t1}, {vRW}',
                f'v_and_b32 {t0}, 7, {vLane}', f's_lshl_b32 {sT2}, {sW}, 3', f'v_add_u32 {t0}, {sT2}, {t0}',
                f'v_lshrrev_b32 {t1}, 3, {vLane}', f'v_lshlrev_b32 {t1}, 9, {t1}', f'v_lshl_add_u32 {SM}, {t0}, 4, {t1}',
                f's_and_b32 {sT2}, {sJ}, 1', f's_lshl_b32 {sT2}, {sT2}, 11', f'v_xor_b32 {O_}, {sT2}, {SM}',
                f'v_bfe_u32 {t1}, {vLane}, 3, 1', f'v_lshrrev_b32 {t2}, 4, {vLane}',
                f'v_lshlrev_b32 {SS}, 4, {t0}', f'v_lshl_add_u32 {SS}, {t2}, 10, {SS}',
                f'v_lshlrev_b32 {R_}, 3, {t1}', f'v_xor_b32 {R_}, {R_}, {t0}', f'v_lshlrev_b32 {R_}, 4, {R_}',
                f'v_lshl_add_u32 {R_}, {t1}, 9, {R_}', f'v_lshl_add_u32 {R_}, {t2}, 11, {R_}', f'v_add_u32 {R_}, {self.S:#x}, {R_}']
    def reduce_m1(self, half, acc0, acc1, R, U, rs, unpack):
        em = self.em
        it = [f'ds_write_b128 {v(BB)}, {v((acc0 if c < 4 else acc1) + 4 * (c & 3), 4)} offset:{c*1024}' for c in range(8)]
        it.append(self.barrier)
        for w in range(4):
            it.append(f'ds_read_b128 {v(R+8*w,4)}, {v(BB+1)} offset:{w*8192}'); it.append(f'ds_read_b128 {v(R+8*w+4,4)}, {v(BB+1)} offset:{w*8192+1024}')
        if unpack: it += self.unpack_items(half, U)
        add = lambda d, s_: [f'v_pk_add_f32 {v(d+r,2)}, {v(d+r,2)}, {v(s_+r,2)}' for r in range(0, 8, 2)]
        it += add(R, R + 8) + add(R + 16, R + 24) + add(R, R + 16)
        it += [f'v_pk_fma_f32 {v(R+r,2)}, {v(R+r,2)}, {v(rs,2)}, {v(U+r,2)} op_sel_hi:[1,0,1]' for r in range(0, 8, 2)]
        P = R + 8
        for r in range(4): it.append(f'v_cvt_pk_bf16_f32 {v(P+r)}, {v(R+2*r)}, {v(R+2*r+1)}')
        it += [f'v_accvgpr_write_b32 {a(RES+4*half)}, {v(P)}', f'v_and_b32 {v(P)}, -2, {v(P)}']
        def stx():
            em(f's_lshr_b32 {sT}, {sW}, 1'); em(f's_lshl_b32 {sT}, {sT}, 15'); em(f's_sub_u32 {sT}, {sXst}, {sT}')
            em(f's_and_b32 {sT2}, {sW}, 1'); em(f's_lshl_b32 {sT2}, {sT2}, 8'); em(f's_sub_u32 {sT}, {sT}, {sT2}')
            em(f's_add_u32 {sT}, {sT}, {half*32768}')
            em(f'buffer_store_dwordx4 {v(P,4)}, {v(BB+2)}, {SWS}, {sT} offen' + self.sc, tag='st')
        it.append(stx)
        S, Q, T = R + 16, R + 18, v(R + 20)
        it += [f'v_pk_add_f32 {v(S,2)}, {v(R,2)}, {v(R+2,2)}', f'v_pk_mul_f32 {v(Q,2)}, {v(R,2)}, {v(R,2)}', f'v_pk_fma_f32 {v(Q,2)}, {v(R+2,2)}, {v(R+2,2)}, {v(Q,2)}']
        for r in (4, 6): it += [f'v_pk_add_f32 {v(S,2)}, {v(S,2)}, {v(R+r,2)}', f'v_pk_fma_f32 {v(Q,2)}, {v(R+r,2)}, {v(R+r,2)}, {v(Q,2)}']
        it += [f'v_add_f32 {v(S)}, {v(S)}, {v(S+1)}', f'v_add_f32 {v(Q)}, {v(Q)}, {v(Q+1)}', f'v_accvgpr_write_b32 {a(RES+4*half+1)}, {v(P+1)}',
               f'v_add_f32_dpp {v(S)}, {v(S)}, {v(S)} row_ror:8 {DPPM}', f'v_add_f32_dpp {v(Q)}, {v(Q)}, {v(Q)} row_ror:8 {DPPM}',
               f'v_accvgpr_write_b32 {a(RES+4*half+2)}, {v(P+2)}', f'v_accvgpr_write_b32 {a(RES+4*half+3)}, {v(P+3)}',
               f'v_permlane16_swap_b32 {v(S)}, {v(Q)}', f'v_add_f32 {v(S)}, {v(S)}, {v(Q)}', f'v_mov_b32 {T}, {v(S)}', f'v_permlane32_swap_b32 {v(S)}, {T}',
               f'v_add_f32 {v(S)}, {v(S)}, {T}', f'v_or_b32 {v(S)}, 1, {v(S)}']
        def st2():
            em(f's_sub_u32 {sT}, {sStst}, {sStM}'); em(f's_add_u32 {sT}, {sT}, {sStR}'); em(f's_add_u32 {sT}, {sT}, {16*8192 + half*2048}')
            em('s_mov_b32 exec_lo, 0x00ff00ff'); em('s_mov_b32 exec_hi, 0')
            em(f'buffer_store_dword {v(S)}, {v(BB+3)}, {SWS}, {sT} offen' + self.sc, tag='st')
            em('s_mov_b64 exec, -1')
        it.append(st2)
        return it
    def kt_addr(self):
        em = self.em
        t0, t1, t2 = v(TMP + 1), v(TMP + 2), v(TMP + 3)
        em(f'v_and_b32 {t0}, 15, {vLane}'); em(f'v_lshlrev_b32 {t0}, 4, {t0}'); em(f'v_lshl_add_u32 {t0}, {vHi}, 8, {t0}')
        em(f'v_lshlrev_b32 {t1}, 4, {vHi}'); em(f'v_add_u32 {t1}, 512, {t1}'); em(f'v_and_b32 {t2}, 16, {vLane}'); em(f'v_cmp_ne_u32 vcc, 0, {t2}')
        em(f'v_cndmask_b32 {t0}, {t0}, {t1}, vcc'); em(f's_mul_i32 {sT2}, {sW}, 544'); em(f'v_add_u32 {v(vKT)}, {sT2}, {t0}')
        if self.o.rep8: em(f's_and_b32 {sT2}, s2, 7'); em(f's_mul_i32 {sT2}, {sT2}, {KC}'); em(f'v_add_u32 {v(vKT)}, {sT2}, {v(vKT)}')
    def final_addr_items(self):
        t0, t1, t2 = v(20), v(21), v(MR)
        it = [f's_lshl_b32 {sT2}, {sW}, 13', f's_add_u32 {sT2}, {sT2}, {self.S}', f'v_add_u32 {v(FW)}, {sT2}, {vL16}']
        it += [f'v_xor_b32 {v(FW+i)}, {64*i}, {v(FW)}' for i in range(1, 4)]
        it += [f'v_and_b32 {t1}, 7, {vLane}', f's_lshl_b32 {sT2}, {sW}, 3', f'v_add_u32 {t0}, {sT2}, {t1}',
               f'v_lshrrev_b32 {t2}, 3, {vLane}', f'v_lshlrev_b32 {v(FB)}, 2, {t2}', f'v_lshlrev_b32 {v(FS)}, 9, {t2}', f'v_lshl_add_u32 {v(FS)}, {t0}, 4, {v(FS)}',
               f's_lshl_b32 {sT2}, {sW}, 3', f'v_add_u32 {t0}, {sT2}, {t2}',
               f'v_lshlrev_b32 {v(FO)}, 10, {t0}', f'v_lshl_add_u32 {v(FO)}, {t1}, 4, {v(FO)}',
               f'v_and_b32 {t2}, 3, {vLane}', f'v_lshlrev_b32 {t2}, 2, {t2}', f'v_xor_b32 {t2}, {t2}, {t0}', f'v_lshlrev_b32 {t2}, 4, {t2}',
               f'v_lshl_add_u32 {v(FR)}, {t1}, 10, {t2}', f'v_add_u32 {v(FR)}, {self.S:#x}, {v(FR)}']
        return it

    def unpack_items(self, half, U):
        it = [f'v_accvgpr_read_b32 {v(U+2*r+1)}, {a(RES+4*half+r)}' for r in range(4)]
        for r in range(4):
            it += [f'v_lshlrev_b32 {v(U+2*r)}, 16, {v(U+2*r+1)}', f'v_and_b32 {v(U+2*r+1)}, 0xffff0000, {v(U+2*r+1)}']
        return it
    def reduce_items(self, half, acc0, acc1, R, U, rs, xoff, sti, final, unpack, after_store=()):
        em = self.em
        it = []
        for c in range(8):
            src = v((acc0 if c < 4 else acc1) + 4 * (c & 3), 4)
            it.append(f'ds_write_b128 {v(FW + (c & 3)) if final else vRW}, {src} offset:{c*1024}')
        it.append(self.barrier)
        o2 = 512 if final else 1024; rd = v(FR) if final else vRR
        for w in range(4):
            it.append(f'ds_read_b128 {v(R+8*w,4)}, {rd} offset:{w*8192}'); it.append(f'ds_read_b128 {v(R+8*w+4,4)}, {rd} offset:{w*8192+o2}')
        if unpack: it += self.unpack_items(half, U)
        add = lambda d, s_: [f'v_pk_add_f32 {v(d+r,2)}, {v(d+r,2)}, {v(s_+r,2)}' for r in range(0, 8, 2)]
        if rs is None: it += add(R, U)
        it += add(R, R + 8) + add(R + 16, R + 24) + add(R, R + 16)
        if rs is not None: it += [f'v_pk_fma_f32 {v(R+r,2)}, {v(R+r,2)}, {v(rs,2)}, {v(U+r,2)} op_sel_hi:[1,0,1]' for r in range(0, 8, 2)]
        P = R + 8
        for r in range(4): it.append(f'v_cvt_pk_bf16_f32 {v(P+r)}, {v(R+2*r)}, {v(R+2*r+1)}')
        if final:
            def st():
                em(f's_add_u32 {sT}, {sOutRow}, {half*32768}')
                em(f'buffer_store_dwordx4 {v(P,4)}, {v(FO)}, {SOUT}, {sT} offen' + self.o.outsc, tag='st')
            it.append(st)
            return it
        it += [f'v_accvgpr_write_b32 {a(RES+4*half)}, {v(P)}', f'v_and_b32 {v(P)}, -2, {v(P)}' if sti == 1 else f'v_or_b32 {v(P)}, 1, {v(P)}']
        def stx():
            em(f's_and_b32 {sT}, {sJ}, 1'); em(f's_xor_b32 {sT}, {sT}, {half}'); em(f's_lshl_b32 {sT}, {sT}, 11'); em(f's_add_u32 {sT}, {sT}, {sXst}')
            em(f'buffer_store_dwordx4 {v(P,4)}, {vP}, {SWS}, {sT} offen' + self.sc, tag='st')
        it.append(stx)
        it += list(after_store)
        S, Q = AUX, AUX + 2
        if half == 0:
            it += [f'v_pk_add_f32 {v(S,2)}, {v(R,2)}, {v(R+2,2)}', f'v_pk_mul_f32 {v(Q,2)}, {v(R,2)}, {v(R,2)}', f'v_pk_fma_f32 {v(Q,2)}, {v(R+2,2)}, {v(R+2,2)}, {v(Q,2)}']
        for r in ((4, 6) if half == 0 else (0, 2, 4, 6)):
            it += [f'v_pk_add_f32 {v(S,2)}, {v(S,2)}, {v(R+r,2)}', f'v_pk_fma_f32 {v(Q,2)}, {v(R+r,2)}, {v(R+r,2)}, {v(Q,2)}']
        it += [f'v_accvgpr_write_b32 {a(RES+4*half+r)}, {v(P+r)}' for r in range(1, 4)]
        if half == 1:
            T = v(S + 1)
            it += [f'v_add_f32 {v(S)}, {v(S)}, {v(S+1)}', f'v_add_f32 {v(Q)}, {v(Q)}, {v(Q+1)}', f'v_and_b32 {v(Q+1)}, 512, {vP}', f'v_add_u32 {v(Q+1)}, {v(Q+1)}, {vP}',
                   f'v_permlane16_swap_b32 {v(S)}, {v(Q)}', f'v_add_f32 {v(S)}, {v(S)}, {v(Q)}', f'v_mov_b32 {T}, {v(S)}', f'v_permlane32_swap_b32 {v(S)}, {T}', f'v_add_f32 {v(S)}, {v(S)}, {T}',
                   f'v_or_b32 {v(S)}, 1, {v(S)}']
            def st2():
                em('s_mov_b32 exec_hi, 0')
                self.wsstore(v(S), v(Q + 1), sStst, sti * 16 * 8192, width=1)
                em('s_mov_b64 exec, -1')
            it.append(st2)
        return it

    def two_halves(self, mfs, A, rs, xoff, sti, pre_wait=None, dmas=(), dmas2=()):
        em = self.em; o = self.o
        r0 = self.reduce_items(0, A[0][0], A[1][0], MR, BB, rs, xoff, sti, False, False)
        r1 = self.reduce_items(1, A[0][1], A[1][1], MR, BB + 8, rs, xoff, sti, False, False)
        W0, RD0, V0 = r0[:8], r0[9:17], r0[17:]
        W1, RD1, V1 = r1[:8], r1[9:17], r1[17:]
        fill = self.unpack_items(0, BB) + self.unpack_items(1, BB + 8)
        mfs = list(mfs)
        nA = len(mfs) - o.mfB
        wq = list(W0)
        for k in range(nA):
            mfs.pop(0)()
            if wq and (k * 8 >= (8 - len(wq)) * nA - 4): em(wq.pop(0))
            for t in fill[:3]: em(t)
            fill = fill[3:]
            if dmas and k % o.dgap == o.dgap - 1: dmas.pop(0)()
        self.emit(wq + fill + list(dmas))
        self.barrier()
        for k, t in enumerate(RD0):
            em(t)
            if k % 3 == 1 and mfs: mfs.pop(0)()
        self.emit(mfs)
        na = 12 if rs is None else 8
        self.emit(V0[:na]); V0 = V0[na:]
        if pre_wait: pre_wait()
        self.barrier()
        self.ts('h0')
        pf = [lambda: self.x_prefetch(xoff, 0, 0)] + [lambda i=i: self.xld(i) for i in range(o.pre)]
        n0 = o.pf0
        for k, t in enumerate(W1):
            em(t)
            self.emit(V0[:4]); V0 = V0[4:]
            if dmas2 and k % 3 == 0: dmas2.pop(0)()
            if k >= 8 - n0: self.emit(pf[:2 if len(pf) == o.pre + 1 else 1]); pf = pf[2 if len(pf) == o.pre + 1 else 1:]
        self.emit(V0)
        self.barrier()
        self.emit(RD1)
        self.emit(pf[:o.pf1 + (1 if len(pf) == o.pre + 1 else 0)]); pf = pf[o.pf1 + (1 if len(pf) == o.pre + 1 else 0):]
        ks = [k for k, t in enumerate(V1) if callable(t)][0]
        self.emit(V1[:ks + 1]); V1 = V1[ks + 1:]
        while pf or V1:
            self.emit(V1[:3]); V1 = V1[3:]
            self.emit(pf[:1]); pf = pf[1:]

    def p2(self, l):
        em = self.em; o = self.o
        KT, QF = AF, AF + 32
        A = [[ACC, ACC + 32], [ACC + 16, 232]]
        DB = [MR, MR + 16, BB]
        def rot2(i, stride, base):
            if not o.rot2:
                em(f's_add_u32 {sR}, {base}, {i * stride}' if base else f's_movk_i32 {sR}, {i * stride}'); return
            em(f's_add_u32 {sR}, {sRot2}, {i}'); em(f's_and_b32 {sR}, {sR}, 7'); em(f's_mul_i32 {sR}, {sR}, {stride}')
            if base: em(f's_add_u32 {sR}, {sR}, {base}')
        KB = lambda i: (ACC + 32 + 4 * i) if i < 4 else (232 + 4 * (i - 4))
        KA = lambda i: KT + 4 * i
        def ldk(i, B=KA):
            rot2(i, 2176, sRed if o.xc else None)
            self.wsload(v(B(i), 4), v(vKT), sR, l * 16 * KT_B if o.xc else (WS_KT8 + l * 8 * KC if o.rep8 else WS_KT + l * 0x8000), tag='K')
        def ldq(n): rot2(n % 8, 4096, sQR); self.wsload(v(QF + 4 * n, 4), vL16, sR, (n // 8) * 32768, tag='A')
        ck = v(TMP + 2)
        def kchk(B):
            em(f'v_max_u32 {ck}, {v(B(0))}, {v(B(0)+1)}')
            for i in range(1, 16): em(f'v_max3_u32 {ck}, {v(B(i//2)+2*(i%2))}, {v(B(i//2)+2*(i%2)+1)}, {ck}')
            em(f'v_cmp_eq_u32 vcc, -1, {ck}')
        L = em.newlabel('Lk'); D = em.newlabel('Lkd'); C = em.newlabel('Lkc')
        if o.kdual:
            for i in range(8): ldk(i)
            for n in range(16): ldq(n)
            for i in range(8): ldk(i, KB)
            em.wait_vm(8)
            em.vmq = []
            em.label(L)
            kchk(KA); em(f's_cbranch_vccz {D}')
            for i in range(8): ldk(i)
            em.force_wait(vm=8); em.vmq = []
            kchk(KB); em(f's_cbranch_vccz {C}')
            for i in range(8): ldk(i, KB)
            em.force_wait(vm=8); em.vmq = []
            self.spin_tail(L)
            em.label(C)
            for r in range(0, 32, 2): em(f'v_pk_mov_b32 {v(KT+r,2)}, {v(KB(r//4)+r%4,2)}, {v(KB(r//4)+r%4,2)} op_sel:[0,1]')
            em.label(D)
        else:
            kp = o.kpos if l else o.kpos0
            for n in range(kp): ldq(n)
            if o.kfirst and not o.xc:
                for i in range(8): ldk(i)
            for n in range(kp, 16): ldq(n)
            if self.p2_hook: self.p2_hook()
            if not o.kfirst or o.xc:
                for i in range(8): ldk(i)
            if l == 0: self.touch_at('p', None, v(254))
            if l == 0 and o.w2b1b:
                assert not (o.xorder & 1)
                self.emit(self.b1[1])
                self.b1 = self.w2_batch(list(range(32, 40))[:2 * o.w2b1b], 'w2f')
            em.label(L)
            kchk(KA)
            em(f's_cbranch_vccz {D}')
            em.cond_begin()
            for i in range(8): ldk(i)
            em.force_wait(vm=0)
            em.cond_end()
            self.spin_tail(L)
            em.label(D)
        self.ts('kt')
        if l == 0 and o.wb1:
            L = em.newlabel('Lwb')
            em(f's_lshr_b32 {sT}, s2, 3'); em(f's_or_b32 {sT}, {sT}, {sW}'); em(f's_cmp_lg_u32 {sT}, 0'); em(f's_cbranch_scc1 {L}')
            em.out.append(' buffer_wbl2 sc1')
            em.label(L)
        side = Side(em)
        def attn(n): em(f'{MF} {v(DB[n%3],16)}, {v(KT+4*(n%8),4)}, {v(QF+4*n,4)}, 0')
        def post(n):
            D = DB[n % 3]; O = QF + 4 * n; rc = v(D + 8)
            it = [f'v_add_f32 {rc}, {s1em6}, {rc}', f'v_rcp_f32 {rc}, {rc}']
            it += [f'v_mul_f32 {v(D+r)}, {v(D+r)}, {rc}' for r in range(8)]
            it += [f'v_cvt_pk_bf16_f32 {v(O+r)}, {v(D+2*r)}, {v(D+2*r+1)}' for r in range(4)]
            return it
        def wo(n, c):
            h, i = divmod(n, 8)
            cc = v(A[h][c], 16)
            em(f'{MF} {cc}, {a(WOA + i*8 + c*4, 4)}, {v(QF+4*n,4)}, ' + ('0' if i == 0 else cc))
        attn(0); attn(1)
        self.p2_bg(l, side)
        side.run(2)
        E1 = o.early1
        if o.p2pipe:
            self.emit(post(0)[:2] + post(1)[:2] + post(0)[2:])
            for n in range(16):
                nxt = post(n + 1)[2:] if n + 1 < 16 else []
                if n + 2 < 16: attn(n + 2)
                for t in nxt[:o.p2a]: em(t)
                wo(n, 0)
                for t in nxt[o.p2a:]: em(t)
                side.clk(o.gap2)
                if n + 2 < 16: self.emit(post(n + 2)[:2])
        else:
            self.emit(post(0))
            for n in range(16):
                nxt = post(n + 1) if n + 1 < 16 else []
                if n + 2 < 16: attn(n + 2)
                if nxt: em(nxt[0]); em(nxt[1])
                side.clk(o.gap2)
                for t in nxt[2:8]: em(t)
                wo(n, 0)
                for t in nxt[8:11]: em(t)
                if n < E1: wo(n, 1)
                for t in nxt[11:]: em(t)
        side.flush()
        if o.kdual:
            assert E1 == 0
            em.force_wait(vm=len(em.vmq))
        self.ts('p2loop')
        xoff = 0; sti = 2 * l
        pre = (self.b1[1] + [self.barrier]) if l == 0 else []
        self.emit(pre)
        pw = (lambda: em.force_wait(vm=0)) if (l == 0 and 'h' not in o.rst1) else None
        d0 = [lambda m=m: (self.w1dma(0, m, 'w1a'), self.w1dma(1, m, 'w1a')) for m in self.w1_tail]
        self.two_halves([lambda n=n: wo(n, 1) for n in range(E1, 16)], A, None, xoff, sti, pw, dmas=d0)
        self.p2_tail(l)

    def p2_bg(self, l, side):
        em = self.em
        if self.o.cpf2 & (1 if l == 0 else 4): side.add(lambda: self.code_pf(v(248, 4), v(252)))
        if self.o.retouch: side.add(lambda: self.retouch(0, v(254), v(254)))
        if l == 0:
            if 'h' not in self.o.rst1: side.add(*self.reset_items(248, 'h'))
            side.add(lambda: self.cs_loads(em))
            if self.o.w2b1b: side.add(lambda: em.wait_lg(0)); side.add(*self.b1[0])
        n0 = (self.o.sp0 if l == 0 else self.o.sp6)
        todo = self.w1_todo[:len(self.w1_todo) - n0]; self.w1_tail = self.w1_todo[len(self.w1_todo) - n0:]
        for m in todo: side.add(lambda m=m: (self.w1dma(0, m, 'w1a'), self.w1dma(1, m, 'w1a')))
        if l == 0: self.touch_at('s', side, v(254))
        if l == 1:
            for m in range(self.o.cq, 8): side.add(lambda m=m: self.w1dma(2, m, 'w1a'))
    def retouch(self, off, vt, dst):
        em = self.em
        em(f'v_lshlrev_b32 {vt}, 7, {vLane}')
        em(f's_and_b32 {sT2}, {sW}, 1'); em(f's_mul_i32 {sT2}, {sT2}, 1792'); em(f's_add_u32 {sT2}, {sT2}, {sXst}'); em(f's_add_u32 {sT2}, {sT2}, {off}')
        em('s_mov_b64 exec, 0xffff')
        em(f'buffer_load_dword {dst}, {vt}, {SWS}, {sT2} offen sc1', tag='touch')
        em('s_mov_b64 exec, -1')
    def touch_xh(self, which, vt, dst):
        em = self.em
        if which == 'x':
            self.retouch(0, vt, dst[0])
            em(f'v_lshlrev_b32 {vt}, 17, {vLane}')
            em(f's_lshl_b32 {sT2}, {sJ}, 2'); em(f's_add_u32 {sT2}, {sT2}, {sW}'); em(f's_lshl_b32 {sT2}, {sT2}, 7'); em(f's_add_u32 {sT2}, {sT2}, {sG8K}')
            em('s_mov_b64 exec, 7')
            em(f'buffer_load_dword {dst[1]}, {vt}, {SWS}, {sT2} offen sc1', tag='touch')
        else:
            em(f'v_lshlrev_b32 {vt}, 7, {vLane}')
            em('s_mov_b64 exec, 0xffff')
            em(f's_add_u32 {sT2}, {sHks}, {int(which) * 2048}')
            em(f'buffer_load_dword {dst[0]}, {vt}, {SWS}, {sT2} offen sc1', tag='touch')
        em('s_mov_b64 exec, -1')
    def touch_at(self, pos, side, vt):
        for k, which in enumerate(('x', '0', '1', '2')):
            if self.o.tpl.split(',')[k] == pos:
                f = lambda which=which, k=k: self.touch_xh(which, vt, [a(104 + 2 * k), a(105 + 2 * k)])
                side.add(f) if side is not None else f()
    def code_pf(self, dst, vt):
        em = self.em
        L = em.newlabel('Lpc')
        end = 'L_slow' if not self.sc else 'L_codeend'
        em(f's_getpc_b64 {sEx}'); em.label(L)
        em(f's_lshr_b32 {sT}, s2, 3'); em(f's_lshl_b32 {sT}, {sT}, 2'); em(f's_add_u32 {sT}, {sT}, {sW}'); em(f's_lshl_b32 {sT}, {sT}, 10')
        em(f's_min_u32 {sT}, {sT}, {end}-{L}-1024')
        em(f'v_add_u32 {vt}, {sT}, {vL16}')
        em(f'global_load_dwordx4 {dst}, {vt}, {sEx}', tag='touch')
    def cs_loads(self, e):
        e(f'v_and_b32 {v(255)}, 31, {vLane}'); e(f'v_lshlrev_b32 {v(255)}, 2, {v(255)}'); e(f's_mul_i32 {sFx}, {sJ}, 384'); e(f's_add_u32 {sFx}, {sFx}, {WS_CS}')
        for p in range(3): e(f'buffer_load_dword {CS[p]}, {v(255)}, {SWS}, {sFx} offen offset:{(0, 256, 128)[p]} sc1', tag='cs')

    def p2_tail(self, l):
        em = self.em; o = self.o
        if l == 0: self.check([CS[0], CS[1], CS[2], CS[2]], self.cs_loads, v(TMP))
        em.wait_vm_tag('w1a')
        self.barrier()
        if l == 0 and not o.p2late:
            for m in range(8): self.w1dma(2, m, 'w1c')
        self.ts(f'end{4*l+1}')

    def hld(self, n, final, e=None):
        e = e or self.em
        st, h = (n % 22, n // 22) if (final or self.o.t4) else (n // 2, n % 2)
        if st == 21: so = sLim4
        else: self.tab4(st, sFx, 12, e); so = sFx
        r = e(f'buffer_load_dwordx4 {v(AF + 4 * (n % 24), 4)}, {v(32 + h)}, {SWS}, {so} offen sc1', tag='A')
        if r is not None: self.ldidx[id(r)] = n
    def p3(self, l):
        em = self.em; o = self.o
        ld, chk = self.a_loader(o.pre, 2 * l, sTxn)
        side = Side(em)
        side.add(*self.aux_const_items())
        if l == 0 and o.t4:
            side.add(*(self.img_m3(S_ADDR, v(TMP), v(TMP + 1)) + self.img_io('w', v(TMP), 64) + self.img_m1(S_ADDR, v(TMP), v(TMP + 1))))
            side.add(self.barrier); side.add(*self.img_io('r', v(TMP), 32 * 144)); side.add(self.barrier)
        if l == 1: rl_w, rl_r = self.res_last_items(8 * 4096); side.add(*rl_w)
        def ld2(i):
            ld(i)
            if i == o.statstep: side.add(*self.stats_T_items(False, 2 * l))
            if l == 0 and o.t4 and i == o.p2late: side.flush()
            if l == 0 and o.p2late and o.p2late <= i < o.p2late + 8: self.w1dma(2, i - o.p2late, 'w1c')
            if l == 0 and i == 26:
                side.add(self.barrier)
                self.b2 = self.w2_batch(list(range(16, 24))[:2 * o.w2b2], 'w2b')
                side.add(*self.b2[0])
        self.pass2(XORD, self.w1pl[:2], [ACC, ACC + 16], False, side, lambda i: 1 if i < o.statstep else o.fill2, loader=ld2, extra=chk,
                   third=(self.w1pl[2], ACC + 32, o.n3) if (l == 1 and o.n3) else None)
        side.flush()
        self.emit(self.corr_items(0, ACC, False)); self.emit(self.corr_items(1, ACC + 16, False))
        if l == 0: em.wait_vm_tag('w1c')
        self.barrier()
        if l == 1: self.emit(rl_r)
        self.ts('p3a')
        def epi(p):
            A = ACC + 16 * p
            it = [f'v_cvt_pk_bf16_f32 {v(A+r)}, {v(A+2*r)}, {v(A+2*r+1)}' for r in range(8)]
            it += [f'v_pk_max_i16 {v(A+r)}, {v(A+r)}, 0' for r in range(8)]
            if l == 0: it += [f'v_or_b32 {v(A+r)}, 0x80000000, {v(A+r)}' for r in (0, 4)]
            return it
        def st(p):
            A = ACC + 16 * p
            if p == 1:
                em(f's_lshl_b32 {sT2}, {sW1d}, 5'); em(f's_add_u32 {sT2}, {sT2}, {sHks}')
                self.wsstore(v(A, 4), vL16, sT2, 0); self.wsstore(v(A + 4, 4), vL16, sT2, 0, off=1024)
            else: self.wsstore(v(A, 4), vL16, sHks, p * 1024); self.wsstore(v(A + 4, 4), vL16, sHks, p * 1024, off=1024)
        side.add(*(epi(0) + [lambda: st(0)] + epi(1) + [lambda: st(1)]))
        side.add(f'v_add_u32 {v(32)}, {sHR}, {vL16}', f'v_add_u32 {v(33)}, {H_T}, {v(32)}')
        if l == 0:
            self.b3 = self.w2_batch(list(range(24, 32))[:2 * o.w2b3], 'w2c')
            side.add(*self.b3[0])
            side.add(*self.b2[1]); side.add(lambda: em.wait_lg(0))
            self.b3b = self.w2_batch(list(range(16, 24))[:2 * o.w2b3b], 'w2e')
            side.add(*self.b3b[0])
        else: side.add(*self.final_addr_items())
        if l == 1 and o.n3:
            rest = XORD[o.n3:]
            hn = [0]
            def fill(i):
                if i >= o.hpf3:
                    if i == o.hpf3: side.flush()
                    while hn[0] < o.pre4 and hn[0] < (i - o.hpf3 + 1) * o.hper and (hn[0] not in rest[i + 1:]): self.hld(hn[0], True); hn[0] += 1
                return o.fill3 if i >= 1 else 0
            self.pass1(self.w1pl[2], ACC + 32, side, fill, rest)
            while hn[0] < o.pre4: self.hld(hn[0], True); hn[0] += 1
        else:
            def fill(ks):
                if ks == o.hpf: side.flush()
                if ks >= o.hpf and (ks - o.hpf) % o.hstr == 0 and (ks - o.hpf) // o.hstr < o.pre4: self.hld((ks - o.hpf) // o.hstr, l == 1)
                return o.fill_p3 if ks >= 2 else 0
            assert o.hpf >= o.pre4 and o.hpf + (o.pre4 - 1) * o.hstr < 32
            self.pass1(self.w1pl[2], ACC + 32, side, fill)
        self.emit(self.corr_items(2, ACC + 32, False))
        side.flush()
        self.ts('p3b')
        if l == 0:
            self.barrier()
            self.b4 = self.w2_batch(list(range(32, 40)) + list(range(24, 32)) + list(range(16, 24)), 'w2d')
            self.emit(self.b4[0][:4])
        self.emit(epi(2))
        L = em.newlabel('Lh3')
        em(f's_cmp_ge_u32 {sJ}, 11'); em(f's_cbranch_scc1 {L}')
        em.cond_begin(); st(2); em.cond_end()
        em.label(L)
        if l == 0:
            self.emit(self.b3[1]); self.emit(self.b3b[1])
            if len(self.b4[0]) > 4: em.wait_lg(0); self.emit(self.b4[0][4:])
            assert self.w2next == 22
        self.ts(f'end{4*l+2}')

    def p4(self, l):
        em = self.em; o = self.o
        final = l == 1
        ts_ = final or o.t4
        A = [[ACC, ACC + 16], [ACC + 32, 232]] if ts_ else [[ACC, ACC + 32], [ACC + 16, 232]]
        side = Side(em)
        S, Q = v(AUX), v(AUX + 1); RS = [TMP, CB]
        def stl(e):
            e(f's_add_u32 {sFx}, {sStR if ts_ else sStM}, {2 * l * 16 * 8192}')
            e(f'buffer_load_dwordx4 {v(AUX,4)}, {v(FS) if final else v(BB + 4) if ts_ else vP}, {SWS}, {sFx} offen sc1', tag='stat')
        if ts_ and not final:
            side.add(*self.m1_addr_items()); side.add(lambda: stl(em), *(['s_nop 0'] * 24))
        else: stl(em)
        if o.cpf2 & 2 and not final: self.code_pf(v(248, 4), v(252))
        if o.retouch and not final: self.retouch(X2OFF, v(254), v(254))
        side.add(lambda: self.check([v(AUX + r) for r in range(4)], stl, v(CB + 2), kind='x', tag=sTxn))
        side.add(f'v_add_f32 {S}, {S}, {v(AUX+1)}', f'v_add_f32 {v(AUX+2)}, {v(AUX+2)}, {v(AUX+3)}', f'v_add_f32 {S}, {S}, {v(AUX+2)}')
        if ts_:
            side.add(f'v_add_f32_dpp {S}, {S}, {S} row_ror:8 {DPPM}', f'v_mov_b32 {Q}, {S}', f'v_permlane16_swap_b32 {S}, {Q}')
        else:
            side.add(f'v_mov_b32 {Q}, {S}', f'v_permlane16_swap_b32 {S}, {Q}', f'v_add_f32 {S}, {S}, {Q}', f'v_mov_b32 {Q}, {S}', f'v_permlane32_swap_b32 {S}, {Q}')
        side.add(f'v_mul_f32 {S}, {sInv}, {S}', f'v_mul_f32 {Q}, {sInv}, {Q}', f'v_fma_f32 {Q}, -{S}, {S}, {Q}', f'v_max_f32 {Q}, 0, {Q}',
                 f'v_add_f32 {Q}, {sEps}, {Q}', f'v_rsq_f32 {v(RS[1])}, {Q}')
        if ts_:
            side.add(f'v_mov_b32 {v(CB+2)}, {v(RS[1])}', f'v_permlane32_swap_b32 {v(CB+2)}, {v(RS[1])}')
            if final: side.add(f'ds_bpermute_b32 {v(CB+2)}, {v(FB)}, {v(CB+2)}', f'ds_bpermute_b32 {v(RS[1])}, {v(FB)}, {v(RS[1])}')
            RS = [CB + 2, CB]
        else: RS = [CB, CB]
        b4 = list(self.b4[1]) if l == 0 else []
        first4 = ((1 if ts_ else 2) * (22 - (len(b4) - 1) // 2)) if b4 else 99
        if l == 0: side.add(self.barrier)
        dec = (lambda n: (n % 22, n // 22)) if ts_ else (lambda n: (n // 2, n % 2))
        def mf(n, c):
            st, h = dec(n)
            cc = v(A[h][c], 16)
            em(f'{MF} {cc}, {a(W2A + st*8 + c*4, 4)}, {v(AF + 4 * (n % 24), 4)}, ' + ('0' if st == 0 else cc))
        def chk(n):
            if n % 2: return None
            return self.check([v(AF + 4 * (n % 24)), v(AF + 4 * ((n + 1) % 24))], lambda e: (self.hld(n, final, e), self.hld(n + 1, final, e)), v(38), split=True,
                              kind='h', tag=sTh if final else sThn, again=lambda e, p: self.hld(self.ldidx[id(p)], final, e))
        T4 = o.tail4 if ts_ else o.tail4n
        br = chk(0)
        for n in range(44):
            assert n < first4 or not b4
            if br: br()
            both = n < 44 - T4
            mf(n, 0)
            if n + o.pre4 < 44: self.hld(n + o.pre4, final)
            if n + 1 < 44: br = chk(n + 1)
            if b4 and n >= o.b4start: self.emit([b4.pop(0)] + ([b4.pop(0)] if ts_ and len(b4) > 1 else []))
            elif n >= 8: side.clk(4 if both else o.gap4)
            if both:
                mf(n, 1)
                if n >= 8 and not b4: side.clk(o.gap4)
            if final and o.wb and n == o.wbstep:
                L = em.newlabel('Lwb')
                if o.wb == 1: em(f's_cmp_lg_u32 {sW}, 3')
                else: em(f's_lshr_b32 {sT}, s2, 3'); em(f's_or_b32 {sT}, {sT}, {sW}'); em(f's_cmp_lg_u32 {sT}, 0')
                em(f's_cbranch_scc1 {L}')
                em.out.append(' buffer_wbl2 sc1')
                em.label(L)
            if o.ts3 and final and n in (0, 7, 15, 21, 29, 37): self.ts(f'q{n}')
            if ts_ and n == 22:
                side.add(*(self.reduce_items(0, A[0][0], A[0][1], MR, ACC, RS[0], 0, 0, True, True) if final else self.reduce_m1(0, A[0][0], A[0][1], MR, ACC, RS[0], True)))
                side.add(*self.unpack_items(1, ACC + 16)); side.add(self.barrier)
        side.flush()
        self.ts('p4loop')
        if ts_:
            tail = self.reduce_items(1, A[1][0], A[1][1], MR, ACC + 16, RS[1], 0, 0, True, False) if final else self.reduce_m1(1, A[1][0], A[1][1], MR, ACC + 16, RS[1], False)
            for k, n in enumerate(range(44 - T4, 44)):
                mf(n, 1)
                if k >= 1: em(tail.pop(0))
            self.emit(tail)
            if final: return
            self.w1_pre = 0
            self.x_prefetch(0, 0, o.pre5)
            self.ts('end3')
            return
        qd = [lambda m=m: self.qkv_dma('q', m, 'q') for m in range(8)] if o.qearly else []
        pair = lambda m: (lambda: (self.w1dma(0, m, 'w1a'), self.w1dma(1, m, 'w1a')))
        d1 = [pair(m) for m in range(4, 4 + o.sp1)]; d2 = [pair(m) for m in range(4 + o.sp1, 4 + o.sp1 + o.sp2)]
        self.w1_pre = o.sp1 + o.sp2
        self.two_halves([lambda n=n: mf(n, 1) for n in range(44 - T4, 44)], A, RS[0], X2OFF, 1, dmas=qd + d1, dmas2=d2)
        self.ts('end3')

    def p5_start(self):
        em = self.em; o = self.o
        ld0, chk = self.a_loader(o.pre5 if o.t4 else o.pre, 1, sTx)
        side = Side(em)
        side.add(*self.aux_const_items())
        side.add(f'v_subrev_u32 {vRW}, {S_ADDR:#x}, {vRW}', f'v_subrev_u32 {vRR}, {S_ADDR:#x}, {vRR}')
        self.S = 0
        qn = [8 if o.qearly else 0]; was = [False]
        def ld(i):
            ld0(i)
            if i == 12:
                side.add(self.barrier)
                if o.t4: side.add(*(self.img_m1(S_ADDR, v(TMP), v(TMP + 1)) + self.img_io('w', v(TMP), 32 * 144)))
            if i == o.statstep:
                side.add(*self.stats_T_items(True, 1))
                side.add(f'{MF} {v(MR,16)}, {v(AUX,4)}, {v(CB+2,4)}, 0')
            if self.xdone and was[0] and qn[0] < 8: self.qkv_dma('q', qn[0], 'q'); qn[0] += 1
            was[0] = self.xdone
        self.pass2(XORD, [self.pl['k'], self.pl['v']], [ACC, ACC + 16], True, side, lambda i: 1 if i < o.statstep else o.fill2, loader=ld, extra=chk)
        side.flush()
        self.emit(self.corr_items('k', ACC, True)); self.emit(self.corr_items('v', ACC + 16, True))
        self.ts('p5a')

    def finish(self):
        em = self.em
        L = em.newlabel('Le')
        em(f's_or_b32 {sT}, s2, {sW}'); em(f's_cmp_lg_u32 {sT}, 0'); em(f's_cbranch_scc1 {L}')
        em.cond_begin()
        em('s_mov_b64 exec, 1'); em(f'v_mov_b32 v24, {sNonce}'); em(f'buffer_store_dword v24, off, {SWS}, 0 sc1'); em('s_mov_b64 exec, -1')
        em.cond_end()
        em.label(L)
        if self.o.pad:
            L = em.newlabel('Lpad')
            em('v_readlane_b32 s3, v39, 0')
            em.label(L)
            em('s_memrealtime s[0:1]'); em.force_wait(lg=0); em('s_sub_u32 s0, s0, s3'); em(f's_cmp_lt_u32 s0, {self.o.pad}'); em(f's_cbranch_scc1 {L}')
        if self.o.ts:
            self.ts('end')
            em('s_memrealtime s[86:87]'); em.force_wait(lg=0); em('v_writelane_b32 v39, s86, 63')
            em(f's_lshl_b32 {sT}, s2, 2'); em(f's_add_u32 {sT}, {sT}, {sW}'); em(f's_lshl_b32 {sT}, {sT}, 8'); em(f's_add_u32 {sT}, {sT}, {WS_DBG}')
            em(f'v_lshlrev_b32 v24, 2, {vLane}')
            em(f'buffer_store_dword v39, v24, {SWS}, {sT} offen')
            if self.o.dbg:
                L = em.newlabel('Ld')
                em(f's_or_b32 {sT}, s2, {sW}'); em(f's_cmp_lg_u32 {sT}, 0'); em(f's_cbranch_scc1 {L}')
                em('s_memrealtime s[0:1]'); em.force_wait(lg=0); em('s_sub_u32 s0, s0, s3')
                em('v_readlane_b32 s1, v39, 0'); em('s_nop 3'); em('v_subrev_u32 v39, s1, v39'); em('v_writelane_b32 v39, s0, 0')
                em('v_mul_u32_u24 v25, 3, v0'); em('v_lshlrev_b32 v25, 2, v25'); em('ds_bpermute_b32 v26, v25, v39'); em.force_wait(lg=0)
                em('s_mov_b64 exec, 0xffff')
                em('global_store_dword v24, v26, s[100:101]')
                em.label(L)
        em('s_endpgm')
        em.out.extend(self.fixes); self.fixes = []

    def body(self, sc):
        self.ncnt = 0; self.ldidx = {}; self.fixes = []; self.sc = sc; self.swin = None; self.lin = True; self.S = S_ADDR
        seq = [lambda: self.p1_rest(0), lambda: self.p2(0), lambda: self.p3(0), lambda: self.p4(0),
               lambda: (self.p5_start(), self.p1_rest(1)), lambda: self.p2(1), lambda: self.p3(1), lambda: self.p4(1)]
        for i, f in enumerate(seq):
            self.em.comment(f'---------------- phase {i+1} ({"slow" if sc else "fast"}) ----------------')
            f()
            if self.o.stop == i + 1: break
        self.finish()

    def build(self):
        em = self.em
        self.sc = ''
        self.prologue()
        self.p1_start()
        if self.o.force_slow: em('s_branch L_slow_tramp')
        em('s_cbranch_vccz L_fast')
        em.label('L_slow_tramp')
        em('s_getpc_b64 s[86:87]'); em.label('L_pc0')
        em('s_add_u32 s86, s86, L_slow-L_pc0'); em('s_addc_u32 s87, s87, 0'); em('s_setpc_b64 s[86:87]')
        em.label('L_end'); em('s_endpgm')
        em.label('L_fast')
        snap = (list(em.vmq), list(em.lgq), self.nts, list(em.hist))
        self.body('')
        em.label('L_slow')
        em.vmq, em.lgq, self.nts, em.hist = list(snap[0]), list(snap[1]), snap[2], list(snap[3])
        self.body(' sc1')
        em.label('L_codeend')
        hdr = open('cdna_kernels/' + NAME + '.s.ref').read().split('; Override launch')[0]
        s = hdr + '; @launch grid=(256,1,1) block=(256,1,1) lds=163840\n'
        s += '.amdgcn_target "amdgcn-amd-amdhsa--gfx950"\n.text\n'
        s += f'.globl {NAME}_kernel\n.p2align 8\n.type {NAME}_kernel,@function\n{NAME}_kernel:\n'
        s += em.text().replace('    ', ' ').replace(' offset:0 ', ' ').replace(', ', ',')
        s += f""".section .rodata,"a"
.p2align 6
.amdhsa_kernel {NAME}_kernel
  .amdhsa_next_free_vgpr 512
  .amdhsa_next_free_sgpr 102
  .amdhsa_accum_offset 256
  .amdhsa_group_segment_fixed_size 0
  .amdhsa_kernarg_size 72
  .amdhsa_user_sgpr_count 2
  .amdhsa_user_sgpr_kernarg_segment_ptr 1
  .amdhsa_system_sgpr_workgroup_id_x 1
  .amdhsa_float_denorm_mode_32 3
.end_amdhsa_kernel
"""
        return s

def main():
    ap = argparse.ArgumentParser()
    ap.add_argument('-o', default='k.s')
    ap.add_argument('--ts', action='store_true')
    ap.add_argument('--dbg', action='store_true')
    ap.add_argument('--pad', type=int, default=0)
    ap.add_argument('--ts2', action='store_true')
    ap.add_argument('--sync', default='A')
    ap.add_argument('--pk2', type=int, default=0)
    ap.add_argument('--tlb', type=int, default=0)
    ap.add_argument('--par', type=int, default=1)
    ap.add_argument('--pk4', type=int, default=0)
    ap.add_argument('--chkpos', type=int, default=0)
    ap.add_argument('--rstpos', type=int, default=1)
    ap.add_argument('--nochk', type=int, default=0)
    ap.add_argument('--xord', type=int, default=1)
    ap.add_argument('--retouch', type=int, default=0)
    ap.add_argument('--statstep', type=int, default=19)
    ap.add_argument('--tw2', type=int, default=0)
    ap.add_argument('--thr2', type=int, default=2)
    ap.add_argument('--kdual', type=int, default=0)
    ap.add_argument('--fill2', type=int, default=2)
    ap.add_argument('--rst1', default='xh')
    ap.add_argument('--qsched', default='66667777')
    ap.add_argument('--tq', type=int, default=0)
    ap.add_argument('--cgap', type=int, default=2)
    ap.add_argument('--ownpos', type=int, default=2)
    ap.add_argument('--mfB', type=int, default=3)
    ap.add_argument('--pf0', type=int, default=0)
    ap.add_argument('--pf1', type=int, default=0)
    ap.add_argument('--fixmode', type=int, default=1)
    ap.add_argument('--w2b1b', type=int, default=4)
    ap.add_argument('--p2late', type=int, default=16)
    ap.add_argument('--share', type=int, default=1)
    ap.add_argument('--share2', type=int, default=2)
    ap.add_argument('--span', action='store_true')
    ap.add_argument('--cpf2', type=int, default=3)
    ap.add_argument('--wb', type=int, default=2)
    ap.add_argument('--wbstep', type=int, default=40)
    ap.add_argument('--c1a', type=int, default=3)
    ap.add_argument('--tqc', type=int, default=2)
    ap.add_argument('--rep8', type=int, default=0)
    ap.add_argument('--xc', type=int, default=0)
    ap.add_argument('--gfirst', type=int, default=-1)
    ap.add_argument('--xorder', type=int, default=0)
    ap.add_argument('--ts3', action='store_true')
    ap.add_argument('--rste', type=int, default=0)
    ap.add_argument('--tpos', type=int, default=1)
    ap.add_argument('--tpl', default='n,n,n,n')
    ap.add_argument('--qpw', type=int, default=0)
    ap.add_argument('--ts2l1', type=int, default=0)
    ap.add_argument('--p2pipe', type=int, default=0)
    ap.add_argument('--p2a', type=int, default=6)
    ap.add_argument('--zpl', type=int, default=1)
    ap.add_argument('--n3', type=int, default=0)
    ap.add_argument('--hpf3', type=int, default=10)
    ap.add_argument('--hper', type=int, default=1)
    ap.add_argument('--fill3', type=int, default=6)
    ap.add_argument('--pad0', type=int, default=0)
    ap.add_argument('--abl', default='')
    ap.add_argument('--rsc', default='')
    ap.add_argument('--wb1', type=int, default=0)
    ap.add_argument('--kpos', type=int, default=0)
    ap.add_argument('--kpos0', type=int, default=0)
    ap.add_argument('--qlate', type=int, default=0)
    ap.add_argument('--qearly', type=int, default=0)
    ap.add_argument('--sp1', type=int, default=2)
    ap.add_argument('--sp2', type=int, default=2)
    ap.add_argument('--cq', type=int, default=0)
    ap.add_argument('--dgap', type=int, default=5)
    ap.add_argument('--sp0', type=int, default=2)
    ap.add_argument('--sp6', type=int, default=0)
    ap.add_argument('--t4', type=int, default=0)
    ap.add_argument('--pre5', type=int, default=10)
    ap.add_argument('--stop', type=int, default=0)
    ap.add_argument('--spin', type=int, default=200000)
    ap.add_argument('--pre', type=int, default=11)
    ap.add_argument('--pre4', type=int, default=10)
    ap.add_argument('--pre2', type=int, default=16)
    ap.add_argument('--gap2', type=int, default=12)
    ap.add_argument('--gap4', type=int, default=24)
    ap.add_argument('--tail4', type=int, default=4)
    ap.add_argument('--rot2', type=int, default=1)
    ap.add_argument('--prewrite', type=int, default=1)
    ap.add_argument('--tw', type=int, default=5)
    ap.add_argument('--gstep', type=int, default=24)
    ap.add_argument('--att2', type=int, default=1)
    ap.add_argument('--burst', type=int, default=0)
    ap.add_argument('--hstr', type=int, default=1)
    ap.add_argument('--thr', type=int, default=6)
    ap.add_argument('--w1_solo', type=int, default=2)
    ap.add_argument('--fill_p1', type=int, default=2)
    ap.add_argument('--fill_p2', type=int, default=3)
    ap.add_argument('--fill_p3', type=int, default=3)
    ap.add_argument('--fill_p4', type=int, default=3)
    ap.add_argument('--w1_early', type=int, default=4)
    ap.add_argument('--b4start', type=int, default=4)
    ap.add_argument('--w2b1', type=int, default=4)
    ap.add_argument('--w2b2', type=int, default=4)
    ap.add_argument('--w2b3', type=int, default=4)
    ap.add_argument('--w2b3b', type=int, default=0)
    ap.add_argument('--w1_gap', type=int, default=0)
    ap.add_argument('--b1gap', type=int, default=1)
    ap.add_argument('--bgpad', type=int, default=3)
    ap.add_argument('--p2early', type=int, default=0)
    ap.add_argument('--rot', type=int, default=1)
    ap.add_argument('--kv_early', type=int, default=4)
    ap.add_argument('--nt_stage', action='store_true')
    ap.add_argument('--nt_w1', action='store_true')
    ap.add_argument('--codepf', type=int, default=1)
    ap.add_argument('--outsc', default='sc1')
    ap.add_argument('--kfirst', type=int, default=1)
    ap.add_argument('--early1', type=int, default=0)
    ap.add_argument('--gap2b', type=int, default=40)
    ap.add_argument('--tail4n', type=int, default=16)
    ap.add_argument('--hpf', type=int, default=20)
    ap.add_argument('--force_slow', action='store_true')
    o = ap.parse_args()
    if o.span: o.ts = True
    if o.outsc: o.outsc = ' ' + o.outsc
    if not o.xord: XORD[:] = list(range(32))
    g = Gen(o)
    s = g.build()
    open(o.o, 'w').write(s)
    if o.ts:
        import json; json.dump(g.tsnames, open(o.o + '.ts.json', 'w'))
    print(f'wrote {o.o}: {g.em.ninstr} instrs, {g.em.nops} nop states, {len(s)} bytes')
if __name__ == '__main__': main()
```

```python
import sys, struct, argparse
from emit import Em

NAME = "interleave_layers__linear_attn_block__dense_activation_relu__prompt"
def f2u(x): return struct.unpack('<I', struct.pack('<f', x))[0]

WS_EPOCH = 0
WS_HELLO = 1024
WS_FLAG = 4096
WS_MSG = 0x10000
WS_KT = 0x150000
WS_KTG = 0x1100000
WS_KT8 = 0x1000000
KC = 0x5000
WS_CS = 0x160000
WS_ST = 0x170000
WS_X = 0x200000
X2OFF = 0
WS_Q = 0x400000
WS_H = 0x600000
WS_DBG = 0x2000000
WS_SIZE = 0x4000000
MSG_B = 2560; KT_B = 17408; ACT_B = 131072; H_T = 86 * 1024; H_B = 4 * H_T
NONCE_K = 0x9E3779B1

sW, sG, sJ, sNonce = 's4', 's5', 's6', 's7'
SX, SQKV, SWO, SW1, SW2, SOUT, SWS = 's[8:11]', 's[12:15]', 's[16:19]', 's[20:23]', 's[24:27]', 's[28:31]', 's[32:35]'
sT, sT2, sWl, sSpin = 's52', 's53', 's54', 's55'
sGX, sGH, sG8K, sGKT, sG128 = 's56', 's57', 's58', 's59', 's60'
sQcol, sW1c0, sW1c2, sHks = 's61', 's62', 's63', 's64'
sC128, sHR, sStR = 's66', 's68', 's69'
sQR, sInv, sEps, s1em6, sLog2e = 's71', 's74', 's75', 's76', 's73'
sXrow, sJmsg, sMaskInv, sOutRow, sHello = 's77', 's78', 's85', 's80', 's81'
sEx = 's[82:83]'; sFx = 's84'
sTS = 86
sDelta, sDelta2 = 's88', 's[88:89]'
sLn2, sLn22 = 's90', 's[90:91]'
sXst, sStst, sQst = 's67', 's79', 's94'
sStM, sGXw = 's72', 's56'
sW1d = 's60'
sRot, sR, sFlag, sG256 = 's95', 's96', 's97', 's98'
sRot2, sLim4 = 's59', 's70'
sRed, sLine, sKTo, sFac = 's49', 's50', 's51', 's3'
sX0, sX1 = 's[100:101]', 's[0:1]'
sCsp = 's65'
sXm = [f's{36+i}' for i in range(8)]
sXl = ['s8', 's9', 's10', 's11', 's57', 's77', 's81', 's99']
sTab = ['s44', 's45', 's46', 's47']
sLo = 's[92:93]'
sTx, sTxn, sTh, sThn = 0, 1, 0, 1
sM0, sM1, sM3, sM4 = 's[36:37]', 's[38:39]', 's[40:41]', 's[44:45]'

vLane, vL16, vAX, vP = 'v0', 'v1', 'v2', 'v3'
vRR, vRW = 'v15', 'v18'
vTr = ['v4', 'v5', 'v6']
vDq, vD1, vDs, vS0, vS1, vS0w, vS1w = 'v7', 'v8', 'v9', 'v10', 'v11', 'v12', 'v14'
vStT, vPoll, vRl, vHi, vTid = 'v13', 'v15', 'v16', 'v17', 'v18'
CS = {'q': 'v19', 'k': 'v20', 'v': 'v21', 0: 'v22', 1: 'v23', 2: 'v34'}
AUX = 24
CB = 28
TMP = 35
BB = 40
MR = 56
ACC = 88
AF = 136
def v(i, n=1): return f'v{i}' if n == 1 else f'v[{i}:{i+n-1}]'
def a(i, n=1): return f'a{i}' if n == 1 else f'a[{i}:{i+n-1}]'
def Afrag(ks): return v(AF + 4 * ks, 4) if ks < 30 else a(248 + 4 * (ks - 30), 4)
RES = 240
W2A = 0; WOA = 176
vKT = 253
FW, FR, FO, FS, FB = 7, 11, 12, 14, 19
MF = 'v_mfma_f32_32x32x16_bf16'
DPPM = 'row_mask:0xf bank_mask:0xf'

QS = 32
S_ADDR = QS * 4096

def _ord4(c):
    pl = lambda nt: (0, 2, 1)[nt % 3] if nt < 33 else (nt - 33) % 2
    ms = sorted(range(21), key=lambda m: pl(2 * m + c))
    return ms + [21]
ORD4 = [_ord4(0), _ord4(1)]
XORD = [4 * m + k for m in range(8) for k in (0, 1)] + [4 * m + k for m in range(8) for k in (2, 3)]

DOC = """;
; One persistent launch, one workgroup (4 waves, 512 registers each) per CU.  Workgroup id -> group g (128 tokens) and column j.
; Phases per layer: LN+QKV (128x96 tile) | kv/z all-reduce | attention + wo (64x64, K split over waves) | LN + w1 + relu (128x96)
; | w2 (64x64, K split).  LayerNorm is applied as a rank-1 correction (mean x column sums, through the matrix pipe) and a per-row scale.
; wo / w2 stay in AGPRs, the k / v weight planes stay in LDS; activations move between workgroups in MFMA fragment order through d_ws.
; Hand-offs: per-launch nonce (from the epoch word in d_ws) on flags and messages; cleared tag bits validated on every fragment read.
; If the 16 workgroups of a group do not all report the same XCC id, the write-through (sc1) copy of the code is taken instead.
"""

class Side:
    def __init__(self, em): self.q = []; self.em = em
    def add(self, *items): self.q.extend(items)
    def run(self, k):
        while k > 0 and self.q:
            it = self.q.pop(0)
            if callable(it): it()
            else: self.em(it)
            k -= 1
    def flush(self): self.run(1 << 30); self.credit = 0
    credit = 0
    def clk(self, budget):
        self.credit = min(self.credit + budget, budget)
        while self.q and self.credit > 0:
            it = self.q.pop(0)
            if callable(it):
                it(); self.credit -= getattr(it, 'cost', 24)
            else:
                self.em(it)
                self.credit -= 56 if it.startswith('ds_write_b128') else 8 if it.startswith(('v_exp', 'v_rcp', 'v_rsq', 'v_mfma')) else 4

class Gen:
    def __init__(self, opt):
        self.o = opt; self.em = Em(); self.nts = 0; self.ncnt = 0; self.swin = None; self.lin = False
    def emit(self, items):
        for t in items: t() if callable(t) else self.em(t)

    def ts(self, name):
        if not self.o.ts or (self.o.span and name not in ('start', 'end')): return
        em = self.em
        i = self.nts; self.nts += 1
        assert i < 50
        em.force_wait(lg=0)
        em(f's_mov_b32 m0, s87'); em(f's_memtime s[{sTS}:{sTS+1}]'); em.force_wait(lg=0)
        em(f'v_writelane_b32 v39, s{sTS}, {i}'); em('s_mov_b32 s87, m0')
        self.tsnames[i] = name
        if name in ('kt', 'p3a', 'p4loop', 'p5a'):
            if name == 'kt' and self.ncnt == 0: em('s_mov_b32 s87, 0')
            em(f'v_writelane_b32 v39, s87, {50 + self.ncnt}'); self.ncnt += 1
    def dma(self, srd, voff, sbase, imm, quad, tag, nt=False, slot=None):
        em = self.em
        if slot is None: em(f's_add_u32 m0, {sWl}, {quad*4096}')
        else: em(f's_mov_b32 m0, {quad*4096 + slot*1024}')
        em(f's_add_u32 {sT}, {sbase}, {imm}')
        em(f'buffer_load_dwordx4 {voff}, {srd}, {sT} offen' + (' nt' if nt else '') + ' lds', tag=tag)
    def tr(self, dst, quad, slot, base=None):
        addr = quad * 4096 + slot * 1024
        b = (base or vTr)[addr >> 16]; off = addr & 0xFFFF
        return [f'ds_read_b64_tr_b16 {v(dst,2)}, {b} offset:{off}', f'ds_read_b64_tr_b16 {v(dst+2,2)}, {b} offset:{off+(256 if self.lin else 512)}']
    def wsload(self, dst, voff, sbase, imm, width=4, tag=None, off=0):
        em = self.em
        em(f's_add_u32 {sT}, {sbase}, {imm}')
        sfx = {1: 'dword', 2: 'dwordx2', 4: 'dwordx4'}[width]
        em(f'buffer_load_{sfx} {dst}, {voff}, {SWS}, {sT} offen' + (f' offset:{off}' if off else '') + ' sc1', tag=tag)
    def wsstore(self, src, voff, sbase, imm, width=4, tag='st', off=0, sc=None):
        em = self.em
        em(f's_add_u32 {sT}, {sbase}, {imm}')
        sfx = {1: 'dword', 2: 'dwordx2', 4: 'dwordx4'}[width]
        sc = self.sc if sc is None else sc
        em(f'buffer_store_{sfx} {src}, {voff}, {SWS}, {sT} offen' + (f' offset:{off}' if off else '') + sc, tag=tag)
    def barrier(self):
        self.em.wait_lg(0); self.em('s_barrier')
    def only_wave(self, w, f, invert=False):
        em = self.em
        L = em.newlabel('Lw')
        em(f's_cmp_{"eq" if invert else "lg"}_u32 {sW}, {w}'); em(f's_cbranch_scc1 {L}')
        em.cond_begin(); f(); em.cond_end()
        em.label(L)
    def spin_tail(self, L):
        em = self.em
        em(f's_sub_u32 {sSpin}, {sSpin}, 1'); em(f's_cbranch_scc0 {L}'); em(f's_mov_b32 {sSpin}, 0')
    def group_sync(self, p, pre=None, mid=None, tags=('st',), bar=True, skipif=None, modeB=False):
        em = self.em
        vt = v(TMP)
        mode = 'B' if (skipif or modeB) else self.o.sync
        if pre: pre()
        def drain():
            if tags is None: em.force_wait(vm=0)
            else: em.wait_vm_tag(tags)
            self.ts(f'drain{p}')
        def sig(wait=True):
            em(f'v_mov_b32 {vt}, {sNonce}')
            em(f's_add_u32 {sT2}, {sFlag}, {p*4096}')
            if wait: drain()
            em(f's_mov_b64 {sEx}, exec'); em('s_mov_b64 exec, 1')
            em(f'buffer_store_dword {vt}, off, {SWS}, {sT2}' + self.sc, tag='flag')
            em(f's_mov_b64 exec, {sEx}')
        def poll():
            L = em.newlabel('Lpoll'); D = em.newlabel('Lpd')
            em(f's_add_u32 {sT2}, {sG256}, {WS_FLAG + p*4096}')
            if mode == 'B': em(f'v_lshlrev_b32 {v(TMP+1)}, 2, {vLane}')
            else: em(f'v_lshlrev_b32 {v(TMP+1)}, 2, {vPoll}')
            em.label(L)
            em(f'buffer_load_dword {vt}, {v(TMP+1)}, {SWS}, {sT2} offen sc1')
            em.force_wait(vm=0)
            em(f'v_cmp_ne_u32 vcc, {sNonce}, {vt}')
            em(f's_cbranch_vccz {D}')
            self.spin_tail(L)
            em.label(D)
        if mode == 'B':
            if skipif:
                L = em.newlabel('Lsk')
                em(f's_cmp_eq_u32 {skipif}, 0'); em(f's_cbranch_scc1 {L}')
                em.cond_begin(); sig(); em.cond_end()
                em.label(L)
            else: sig()
            if mid: mid()
            if bar: self.barrier()
            poll()
        else:
            drain(); self.barrier()
            self.only_wave(0, lambda: sig(False))
            if mid: mid()
            if mode == 'A':
                self.only_wave(0, poll); self.barrier()
            else:
                if bar and mid: self.barrier()
                poll()
        self.ts(f'sync{p}')
    def rot(self, m, stride, base):
        em = self.em
        em(f's_add_u32 {sR}, {sRot}, {m}'); em(f's_and_b32 {sR}, {sR}, 7'); em(f's_mul_i32 {sR}, {sR}, {stride}'); em(f's_add_u32 {sR}, {sR}, {base}')
    def qkv_dma(self, planes, m, tag):
        self.rot(m, 64 * 3072, sQcol)
        for p in planes: self.dma(SQKV, vDq, sR, {'q': 0, 'k': 1024, 'v': 2048}[p], self.pl[p][m], tag)

    def prologue(self):
        em = self.em; o = self.o
        if o.pad and o.pad0: em('s_memrealtime s[86:87]')
        em('s_cmp_ge_u32 s2, 256'); em('s_cbranch_scc1 L_end')
        em('s_load_dwordx4 s[36:39], s[0:1], 0'); em('s_load_dwordx2 s[40:41], s[0:1], 16')
        em('s_load_dwordx4 s[44:47], s[0:1], 32'); em('s_load_dwordx2 s[48:49], s[0:1], 48'); em('s_load_dwordx2 s[50:51], s[0:1], 64')
        if o.ts:
            self.tsnames = {}
            em('v_mov_b32 v39, 0')
        em(f'v_mov_b32 {vTid}, v0')
        em(f'v_lshrrev_b32 v24, 6, v0'); em(f'v_and_b32 {vLane}, 63, v0')
        em(f'v_readfirstlane_b32 {sW}, v24')
        em(f's_and_b32 {sG}, s2, 7'); em(f's_lshl_b32 {sG}, {sG}, 1'); em(f's_lshr_b32 {sT}, s2, 7'); em(f's_add_u32 {sG}, {sG}, {sT}')
        em(f's_lshr_b32 {sJ}, s2, 3'); em(f's_and_b32 {sJ}, {sJ}, 15')
        em(f's_lshl_b32 {sWl}, {sW}, 10')
        em(f's_lshl_b32 {sXrow}, {sG}, 17')
        em(f's_lshl_b32 {sQcol}, {sJ}, 6')
        em(f's_and_b32 {sRot}, {sG}, 1'); em(f's_lshl_b32 {sRot}, {sRot}, 1'); em(f's_and_b32 {sT}, {sJ}, 1'); em(f's_add_u32 {sRot}, {sRot}, {sT}'); em(f's_lshl_b32 {sRot}, {sRot}, 1')
        if o.rot == 1: em(f's_lshr_b32 {sT}, {sJ}, 1'); em(f's_add_u32 {sRot}, {sRot}, {sT}')
        if o.rot in (1, 3): em(f's_add_u32 {sRot}, {sRot}, s2')
        if not o.rot: em(f's_mov_b32 {sRot}, 0')
        self.pl = {'k': list(range(0, 8)), 'v': list(range(8, 16)), 'q': list(range(16, 24))}
        em(f'v_lshlrev_b32 {vL16}, 4, {vLane}')
        em(f'v_lshrrev_b32 v27, 3, {vLane}'); em(f'v_and_b32 v28, 7, {vLane}')
        em(f'v_lshrrev_b32 v29, 1, v27'); em('v_xor_b32 v28, v28, v29'); em('v_lshlrev_b32 v28, 4, v28')
        em(f's_lshl_b32 {sT}, {sW}, 5'); em(f'v_add_u32 v27, {sT}, v27'); em('v_lshlrev_b32 v27, 10, v27')
        em('v_add_u32 v25, v27, v28'); em('v_xor_b32 v26, 64, v25')
        em(f'v_lshrrev_b32 v27, 2, {vLane}'); em(f's_lshl_b32 {sT}, {sW}, 4'); em(f'v_add_u32 v27, {sT}, v27')
        em(f'v_and_b32 v28, 3, {vLane}'); em('v_lshlrev_b32 v28, 4, v28')
        em(f'v_mul_u32_u24 {vDq}, 3072, v27'); em(f'v_add_u32 {vDq}, {vDq}, v28')
        em(f'v_mul_u32_u24 {vD1}, 2752, v27'); em(f'v_add_u32 {vD1}, {vD1}, v28')
        em.force_wait(lg=0)
        if o.pad and o.pad0: em('v_writelane_b32 v39, s86, 0')
        if o.ts:
            em('s_memrealtime s[86:87]'); em.force_wait(lg=0); em('v_writelane_b32 v39, s86, 62')
        if o.pad and not o.pad0:
            em('s_memrealtime s[86:87]'); em.force_wait(lg=0); em('v_writelane_b32 v39, s86, 0')
        self.ts('start')
        def srd(s, lo, nb):
            em(f's_mov_b32 s{s}, s{lo}'); em(f's_mov_b32 s{s+1}, s{lo+1}'); em(f's_mov_b32 s{s+2}, {nb}'); em(f's_mov_b32 s{s+3}, 0x00020000')
        srd(8, 36, 2048 * 1024); srd(32, 50, WS_SIZE); srd(12, 38, 512 * 3072)
        if o.tlb:
            em(f's_lshr_b32 {sT}, s2, 3'); em(f's_lshl_b32 {sT}, {sT}, 2'); em(f's_add_u32 {sT}, {sT}, {sW}'); em(f's_and_b32 {sT}, {sT}, 15')
            em('s_mov_b64 s[86:87], s[50:51]'); em(f's_lshl_b32 {sT2}, {sT}, 21')
            for k, pr in ((8, 's[40:41]'), (9, 's[44:45]'), (10, 's[46:47]'), (11, 's[48:49]'), (12, 's[36:37]'), (13, 's[38:39]')):
                em(f's_cmp_eq_u32 {sT}, {k}'); em(f's_cselect_b64 s[86:87], {pr}, s[86:87]')
            em(f's_cmp_ge_u32 {sT}, 6'); em(f's_cselect_b32 {sT2}, 0, {sT2}')
            em(f's_load_dword s88, s[86:87], {sT2}')
        L0 = em.newlabel('Lo'); L1 = em.newlabel('Lo')
        if o.par:
            em(f's_bitcmp1_b32 {sJ}, 0'); em(f's_cbranch_scc1 {L0}')
            it = self.chunk_items(0)
            snap = list(em.vmq)
            self.emit(it); em(f's_branch {L1}')
            em.label(L0)
            em.vmq = snap
            it = self.chunk_items(0)
            self.emit(it[4:] + it[:4])
            em.label(L1)
        else: self.chunk_dma(0)
        if o.tq:
            em(f'v_lshlrev_b32 v30, 7, {vLane}'); em(f's_lshl_b32 {sT2}, s2, 2'); em(f's_add_u32 {sT2}, {sT2}, {sW}'); em(f's_mul_i32 {sT2}, {sT2}, {12*128}')
            em('s_mov_b64 exec, 0xfff')
            em(f'buffer_load_dword a100, v30, {SQKV}, {sT2} offen', tag='touch')
            if o.tq > 1:
                em(f's_lshl_b32 {sT2}, {sJ}, 2'); em(f's_add_u32 {sT2}, {sT2}, {sW}'); em(f's_lshl_b32 {sT2}, {sT2}, 11'); em(f's_add_u32 {sT2}, {sT2}, {sXrow}')
                em('s_mov_b64 exec, 0xffff')
                em(f'buffer_load_dword a101, v30, {SX}, {sT2} offen', tag='touch')
            em('s_mov_b64 exec, -1')
        em(f'buffer_load_dword v24, off, {SWS}, 0 sc1', tag='epoch')
        if o.ts2: self.ts('iss0')
        c1 = self.chunk_items(1)
        self.emit(c1[:o.c1a]); self.c1rest = c1[o.c1a:]
        if o.ts2: self.ts('iss1')
        if o.codepf:
            em('s_getpc_b64 s[42:43]'); em.label('L_pcx')
            em(f's_lshr_b32 {sT}, s2, 3'); em(f's_lshl_b32 {sT}, {sT}, 2'); em(f's_add_u32 {sT}, {sT}, {sW}'); em(f's_lshl_b32 {sT}, {sT}, 10')
            em(f's_min_u32 {sT}, {sT}, L_slow-L_pcx-1024')
            em(f'v_add_u32 v30, {sT}, {vL16}')
            em(f'global_load_dwordx4 a[96:99], v30, s[42:43]', tag='codepf')
        srd(16, 40, 512 * 1024); srd(20, 44, 512 * 2752); srd(24, 46, 1376 * 1024); srd(28, 48, 2048 * 1024)
        em(f's_mov_b32 {sSpin}, {o.spin}')
        em(f's_mul_i32 {sGH}, {sG}, {H_B}'); em(f's_add_u32 {sGH}, {sGH}, {WS_H}')
        em(f's_lshl_b32 {sG8K}, {sG}, 13'); em(f's_add_u32 {sG8K}, {sG8K}, {WS_ST}')
        em(f's_lshl_b32 {sG128}, {sG}, 7'); em(f's_lshl_b32 {sG256}, {sG}, 8')
        em(f's_lshl_b32 {sFlag}, {sJ}, 2'); em(f's_add_u32 {sFlag}, {sFlag}, {sW}'); em(f's_lshl_b32 {sFlag}, {sFlag}, 2'); em(f's_add_u32 {sFlag}, {sFlag}, {sG256}'); em(f's_add_u32 {sFlag}, {sFlag}, {WS_FLAG}')
        em(f's_mul_i32 {sT}, {sJ}, 3'); em(f's_lshl_b32 {sT2}, {sJ}, 1'); em(f's_add_u32 {sT2}, {sT2}, 11')
        em(f's_cmp_lt_u32 {sJ}, 11'); em(f's_cselect_b32 {sT}, {sT}, {sT2}');
        em(f's_cselect_b32 {sT2}, 128, 64')
        em(f's_lshl_b32 {sW1c0}, {sT}, 6'); em(f's_add_u32 {sW1c2}, {sW1c0}, {sT2}')
        em(f's_lshl_b32 {sHks}, {sT}, 11'); em(f's_add_u32 {sHks}, {sHks}, {sGH}')
        em(f's_mul_i32 {sT}, {sW}, {H_T}'); em(f's_add_u32 {sHks}, {sHks}, {sT}')
        em(f's_and_b32 {sC128}, {sJ}, 7'); em(f's_lshl_b32 {sC128}, {sC128}, 7')
        em(f's_lshr_b32 {sT}, {sJ}, 3')
        em(f's_lshl_b32 {sT2}, {sT}, 16'); em(f's_add_u32 {sT2}, {sT2}, {sXrow}')
        em(f's_add_u32 {sOutRow}, {sT2}, {sC128}')
        em(f's_add_u32 {sQR}, {sT2}, {sWl}'); em(f's_add_u32 {sQR}, {sQR}, {WS_Q}')
        em(f's_lshl_b32 {sXst}, {sC128}, 5'); em(f's_add_u32 {sXst}, {sXst}, {sT2}'); em(f's_add_u32 {sXst}, {sXst}, {WS_X}')
        em(f's_mul_i32 {sHR}, {sT}, {2*H_T}'); em(f's_add_u32 {sHR}, {sHR}, {sGH}'); em(f's_add_u32 {sHR}, {sHR}, {sWl}')
        em(f's_lshl_b32 {sStR}, {sT}, 12'); em(f's_add_u32 {sStR}, {sStR}, {sG8K}')
        em(f's_lshr_b32 {sT}, {sW}, 1'); em(f's_and_b32 {sT2}, {sW}, 1'); em(f's_lshl_b32 {sT2}, {sT2}, 8')
        em(f's_lshl_b32 {sR}, {sT}, 15'); em(f's_add_u32 {sXst}, {sXst}, {sR}'); em(f's_add_u32 {sXst}, {sXst}, {sT2}')
        em(f's_lshl_b32 {sR}, {sT}, 11'); em(f's_add_u32 {sStM}, {sStR}, {sR}'); em(f's_add_u32 {sStM}, {sStM}, {sT2}')
        em(f's_and_b32 {sT}, {sJ}, 4'); em(f's_lshl_b32 {sT}, {sT}, 7'); em(f's_and_b32 {sT2}, {sJ}, 3'); em(f's_lshl_b32 {sT2}, {sT2}, 2')
        em(f's_add_u32 {sStst}, {sT}, {sT2}'); em(f's_add_u32 {sStst}, {sStst}, {sStM}')
        em(f's_lshl_b32 {sT}, {sW}, 15'); em(f's_add_u32 {sT}, {sT}, {sXrow}'); em(f's_add_u32 {sGXw}, {sT}, {WS_X}')
        em(f's_lshl_b32 {sQst}, {sJ}, 11'); em(f's_add_u32 {sQst}, {sQst}, {sT}'); em(f's_add_u32 {sQst}, {sQst}, {WS_Q}')
        em('s_mov_b32 s92, -1'); em('s_mov_b32 s93, 0')
        em(f's_cmp_ge_u32 {sW}, 2'); em(f's_cselect_b32 {sLim4}, 20, 21'); em(f's_lshl_b32 {sLim4}, {sLim4}, 12')
        em(f's_lshr_b32 {sT}, {sJ}, 3'); em(f's_and_b32 {sT2}, {sG}, 1'); em(f's_lshl_b32 {sT2}, {sT2}, 1'); em(f's_add_u32 {sT}, {sT}, {sT2}')
        em(f's_and_b32 {sT2}, s2, 7')
        em(f's_lshl_b32 {sRot2}, {sT}, 1'); em(f's_add_u32 {sRot2}, {sRot2}, {sT2}')
        if not o.rot2: em(f's_mov_b32 {sRot2}, 0')
        em(f's_mul_i32 {sJmsg}, {sJ}, {16*MSG_B}'); em(f's_add_u32 {sJmsg}, {sJmsg}, {WS_MSG}')
        if o.tlb: em.force_wait(lg=0)
        em(f's_mov_b32 {sDelta}, {f2u(1e-6*1.4426950408889634):#x}'); em(f's_mov_b32 {sLn2}, {f2u(0.6931471805599453):#x}')
        em('s_mov_b32 s89, s88'); em('s_mov_b32 s91, s90')
        em(f's_mov_b32 {sLog2e}, {f2u(1.4426950408889634):#x}'); em(f's_mov_b32 {sInv}, {f2u(1/512):#x}')
        em(f's_mov_b32 {sEps}, {f2u(1e-5):#x}'); em(f's_mov_b32 {s1em6}, {f2u(1e-6):#x}')
        em(f's_mov_b32 {sMaskInv}, 0xffffff00')
        em(f'v_lshrrev_b32 {vHi}, 5, {vLane}')
        em(f'v_lshrrev_b32 v27, 4, {vLane}'); em('v_lshlrev_b32 v27, 9, v27'); em(f'v_and_b32 v28, 15, {vLane}'); em(f'v_lshl_add_u32 {vP}, v28, 4, v27')
        em(f'v_bfe_u32 v27, {vLane}, 2, 2'); em(f'v_lshl_add_u32 v27, {vHi}, 2, v27')
        em(f'v_bfe_u32 v28, {vLane}, 4, 1'); em('v_lshlrev_b32 v28, 5, v28')
        em(f'v_and_b32 v29, 3, {vLane}'); em('v_lshl_add_u32 v28, v29, 3, v28')
        em(f'v_lshl_add_u32 {vTr[0]}, v27, 6, v28')
        em(f'v_lshl_add_u32 {vTr[0]}, {vHi}, 8, {vTr[0]}')
        em(f'v_add_u32 {vTr[1]}, 0x10000, {vTr[0]}'); em(f'v_add_u32 {vTr[2]}, 0x20000, {vTr[0]}')
        em(f'v_bfe_u32 v29, {vLane}, 3, 1'); em('v_lshl_add_u32 v28, v29, 6, v28')
        em(f'v_lshl_add_u32 {vS0}, v27, 7, v28'); em(f'v_add_u32 {vS0}, {sWl}, {vS0}'); em(f'v_xor_b32 {vS1}, 64, {vS0}')
        em(f'v_lshrrev_b32 v27, 3, {vLane}'); em(f'v_and_b32 v28, 7, {vLane}')
        em(f'v_bfe_u32 v29, {vLane}, 4, 1'); em('v_lshlrev_b32 v29, 2, v29'); em('v_xor_b32 v28, v28, v29'); em('v_lshlrev_b32 v28, 4, v28')
        em(f'v_lshl_add_u32 {vDs}, v27, 10, v28'); em(f's_lshl_b32 {sT}, {sW}, 14'); em(f'v_add_u32 {vDs}, {sT}, {vDs}')
        em(f'v_lshl_add_u32 v27, {vHi}, 9, {vL16}'); em(f's_lshl_b32 {sT}, {sW}, 11'); em(f'v_add_u32 {vStT}, {sT}, v27')
        em(f'v_and_b32 {vPoll}, 15, {vLane}'); em(f'v_lshlrev_b32 {vPoll}, 2, {vPoll}')

    def nonce_hello(self):
        em = self.em; o = self.o
        if o.ts2: self.ts('setup')
        em(f'v_readfirstlane_b32 {sNonce}, v24')
        if o.ts2: self.ts('epoch')
        em(f's_add_u32 {sNonce}, {sNonce}, {NONCE_K:#x}')
        em(f's_getreg_b32 {sHello}, hwreg(HW_REG_XCC_ID)'); em(f's_and_b32 {sHello}, {sHello}, 15')
        em(f's_add_u32 {sHello}, {sHello}, {sNonce}'); em(f's_add_u32 {sHello}, {sHello}, 1')
        def hello():
            em(f's_mov_b64 {sEx}, exec'); em('s_mov_b64 exec, 1')
            em(f'v_mov_b32 v24, {sHello}')
            em(f's_lshl_b32 {sT2}, {sJ}, 2'); em(f's_add_u32 {sT2}, {sT2}, {sG128}'); em(f's_add_u32 {sT2}, {sT2}, {WS_HELLO}')
            em(f'buffer_store_dword v24, off, {SWS}, {sT2} sc1')
            em(f's_mov_b64 exec, {sEx}')
        self.only_wave(0, hello)

    def chunk_items(self, c):
        it = []
        def x(rb8):
            if rb8 == 0: self.rot(c, 128, sXrow); self.em(f's_mov_b32 s99, {sR}')
            self.dma(SX, 'v25' if rb8 % 2 == 0 else 'v26', 's99', rb8 * 8192, 24 + 4 * (c % self.o.ring) + rb8, f'c{c}')
        for rb8 in range(4): it.append(lambda rb8=rb8: x(rb8))
        def w(p):
            if p == 'k': self.rot(c, 64 * 3072, sQcol); self.em(f's_mov_b32 s84, {sR}')
            self.dma(SQKV, vDq, 's84', {'k': 1024, 'v': 2048}[p], self.pl[p][c], f'c{c}')
        it += [lambda: w('k'), lambda: w('v')]
        return it
    def chunk_dma(self, c): self.emit(self.chunk_items(c))

    def touch_q(self, vt, dst):
        em = self.em
        em(f'v_lshlrev_b32 {vt}, 7, {vLane}')
        em(f's_mov_b64 {sEx}, exec')
        if self.o.qpw:
            for k in range(2): em(f'buffer_store_dwordx4 {v(MR+8,4)}, {vL16}, {SWS}, {sQst} offen offset:{k*1024}' + ('' if self.o.qpw == 2 else ' sc1'), tag='rst')
        else:
            em('s_mov_b64 exec, 0xffff')
            em(f'buffer_load_dword {v(dst)}, {vt}, {SWS}, {sQst} offen sc1', tag='touch')
        em(f'v_lshlrev_b32 {vt}, 12, {vLane}')
        em('s_mov_b64 exec, 0x11')
        em(f'buffer_load_dword {v(dst+1)}, {vt}, {SWS}, {sFlag} offen sc1', tag='touch')
        em(f's_mov_b64 exec, {sEx}')
    def touch_w(self, vt, dst):
        em = self.em
        sh = 7 + self.o.twsh; n = -(-11008 * 128 // (1024 << sh)); n0 = max(1, 4 >> self.o.twsh)
        em(f'v_lshlrev_b32 {vt}, {sh}, {vLane}')
        em(f's_lshl_b32 {sT2}, s2, 2'); em(f's_add_u32 {sT2}, {sT2}, {sW}'); em(f's_mul_i32 {sT2}, {sT2}, {n << sh}')
        em(f's_mov_b64 {sEx}, exec'); em(f's_mov_b64 exec, {(1 << n) - 1:#x}')
        em(f'buffer_load_dword {v(dst)}, {vt}, {SW1}, {sT2} offen', tag='touch')
        em(f'buffer_load_dword {v(dst+1)}, {vt}, {SW2}, {sT2} offen', tag='touch')
        em(f's_lshl_b32 {sT2}, s2, 2'); em(f's_add_u32 {sT2}, {sT2}, {sW}'); em(f's_lshl_b32 {sT2}, {sT2}, 9')
        em(f's_mov_b64 exec, {(1 << n0) - 1}')
        em(f'buffer_load_dword {v(dst+2)}, {vt}, {SWO}, {sT2} offen', tag='touch')
        em(f's_mov_b64 exec, {sEx}')
    def reducer_setup(self):
        em = self.em
        em(f's_lshr_b32 {sT}, {sG}, 3'); em(f's_cmp_eq_u32 {sT}, {sW}'); em(f's_cselect_b32 {sRed}, 1, 0')
        em(f's_lshl_b32 {sLine}, {sG}, 7')
        em(f's_mul_i32 {sKTo}, {sT}, 544'); em(f's_and_b32 {sT2}, {sG}, 7'); em(f's_lshl_b32 {sT2}, {sT2}, 6'); em(f's_add_u32 {sKTo}, {sKTo}, {sT2}')
        em(f's_mov_b32 {sFac}, {sLn2}')
        L = em.newlabel('Lz')
        em(f's_cmp_lg_u32 {sW}, 2'); em(f's_cbranch_scc1 {L}')
        em(f's_cmp_eq_u32 {sG}, {sJ}'); em(f's_cselect_b32 {sRed}, 1, 0')
        em(f's_mov_b32 {sLine}, 2048'); em(f's_mov_b32 {sKTo}, 512'); em(f's_mov_b32 {sFac}, 1.0')
        em.label(L)
        em(f's_sub_u32 {sCsp}, {sG}, {sJ}'); em(f's_sub_u32 {sCsp}, {sCsp}, 1'); em(f's_and_b32 {sCsp}, {sCsp}, 15')
        em(f's_cmp_eq_u32 {sW}, 3'); em(f's_cselect_b32 {sCsp}, {sCsp}, 15')
        em(f's_mul_i32 {sT2}, {sJ}, 1088'); em(f's_add_u32 {sKTo}, {sKTo}, {sT2}'); em(f's_add_u32 {sKTo}, {sKTo}, {WS_KT8 if self.o.rep8 else WS_KT}')
        em(f's_add_u32 {sLine}, {sLine}, {sJmsg}')
        em(f's_and_b32 {sT2}, {sG}, 7'); em(f's_lshl_b32 {sT2}, {sT2}, 3'); em(f's_mov_b64 {sX0}, 0xff'); em(f's_lshl_b64 {sX0}, {sX0}, {sT2}'); em(f's_not_b64 {sX0}, {sX0}')
        em(f's_cmp_eq_u32 {sT}, 0'); em(f's_cselect_b64 {sX1}, -1, {sX0}'); em(f's_cselect_b64 {sX0}, {sX0}, -1')
    def reducer_setup_c(self):
        em = self.em
        em(f's_mul_i32 {sRed}, {sG}, {KT_B}'); em(f's_add_u32 {sRed}, {sRed}, {WS_KTG}')
        em(f's_mul_i32 {sKTo}, {sJ}, 1088'); em(f's_add_u32 {sLine}, {sKTo}, {sRed}')
        em(f's_lshr_b32 {sT}, {sW}, 1'); em(f's_mul_i32 {sT}, {sT}, 544'); em(f's_and_b32 {sT2}, {sW}, 1'); em(f's_lshl_b32 {sT2}, {sT2}, 8')
        em(f's_add_u32 {sKTo}, {sLine}, {sT}'); em(f's_add_u32 {sKTo}, {sKTo}, {sT2}')
        em(f's_and_b32 {sT2}, {sG}, 3'); em(f's_lshl_b32 {sT2}, {sT2}, 4'); em(f's_mov_b64 {sX0}, 0xffff'); em(f's_lshl_b64 {sX0}, {sX0}, {sT2}'); em(f's_not_b64 {sX0}, {sX0}')
        em(f's_and_b32 {sT2}, {sG}, 7'); em(f's_lshl_b32 {sT2}, {sT2}, 3'); em(f's_mov_b64 {sX1}, 0xff'); em(f's_lshl_b64 {sX1}, {sX1}, {sT2}'); em(f's_not_b64 {sX1}, {sX1}')
        em(f's_sub_u32 {sCsp}, {sG}, {sJ}'); em(f's_sub_u32 {sCsp}, {sCsp}, 1'); em(f's_and_b32 {sCsp}, {sCsp}, 15')
        em(f's_cmp_eq_u32 {sW}, 2'); em(f's_cselect_b32 {sCsp}, {sCsp}, 15')
    def kt_voff(self, d, t):
        em = self.em
        em(f'v_and_b32 {d}, 7, {vLane}'); em(f'v_lshlrev_b32 {d}, 3, {d}'); em(f'v_lshl_add_u32 {d}, {vHi}, 2, {d}')
        em(f's_cmp_eq_u32 {sW}, {3 if self.o.xc else 2}'); em(f's_cselect_b32 {sT2}, 128, 0'); em(f'v_and_b32 {t}, 4, {vLane}'); em(f'v_mad_u32_u24 {d}, {t}, {sT2}, {d}')
        if self.o.rep8:
            em(f'v_bfe_u32 {t}, {vLane}, 3, 2'); em(f's_movk_i32 {sT2}, {KC:#x}'); em(f'v_mad_u32_u24 {d}, {t}, {sT2}, {d}')
    def resets(self):
        em = self.em
        t0, D = v(MR + 24), MR + 28
        L = em.newlabel('Lrs')
        if self.o.xc: em(f's_branch {L}')
        em(f's_cmp_eq_u32 {sRed}, 0'); em(f's_cbranch_scc1 {L}')
        em.cond_begin()
        self.kt_voff(t0, v(D)); em(f'v_mov_b32 {v(D)}, -1')
        if self.o.rep8:
            for k in range(4): self.wsstore(v(D), t0, sKTo, k * 4 * KC, width=1, sc=' sc1', tag='rst')
        else:
            em('s_mov_b32 exec_lo, 0xff'); em('s_mov_b32 exec_hi, 0xff')
            for l in range(2): self.wsstore(v(D), t0, sKTo, l * 0x8000, width=1, sc=' sc1', tag='rst')
        em('s_mov_b64 exec, -1')
        em.cond_end()
        em.label(L)
        L = em.newlabel('Lrc')
        em(f's_cmp_ge_u32 {sCsp}, 3'); em(f's_cbranch_scc1 {L}')
        em.cond_begin()
        em(f'v_lshlrev_b32 {t0}, 2, {vLane}'); em(f'v_mov_b32 {v(D)}, -1')
        em(f's_mul_i32 {sT2}, {sJ}, 384'); em(f's_lshl_b32 {sR}, {sCsp}, 7'); em(f's_add_u32 {sT2}, {sT2}, {sR}')
        em('s_mov_b32 exec_hi, 0')
        self.wsstore(v(D), t0, sT2, WS_CS, width=1, sc=' sc1', tag='rst')
        em('s_mov_b64 exec, -1')
        em.cond_end()
        em.label(L)
        def msg():
            em(f'v_lshlrev_b32 {t0}, 4, {vTid}'); em(f's_not_b32 {sT2}, {sNonce}')
            for r in range(4): em(f'v_mov_b32 {v(D+r)}, {sT2}')
            em(f'v_cmp_gt_u32 vcc, 136, {vTid}'); em(f's_and_saveexec_b64 {sEx}, vcc')
            em(f's_mul_i32 {sT2}, {sG}, {MSG_B}'); em(f's_add_u32 {sT2}, {sT2}, {sJmsg}')
            for l in range(2): self.wsstore(v(D, 4), t0, sT2, l * 256 * MSG_B, sc=' sc1', tag='rst')
            em(f's_mov_b64 exec, {sEx}')
        if self.o.prewrite: self.only_wave(3, msg, invert=True)
    def reset_items(self, D, which):
        em = self.em
        it = [f'v_mov_b32 {v(D+r)}, 0' for r in range(4)]
        if 'rst' in self.o.abl: which = 'x'
        rsc = {'x': ' sc1' if 'x' in self.o.rsc else None, 'h': ' sc1' if 'h' in self.o.rsc else None}
        def x():
            em(f's_and_b32 {sT2}, {sW}, 1'); em(f's_mul_i32 {sT2}, {sT2}, 1792'); em(f's_add_u32 {sT2}, {sT2}, {sXst}')
            self.wsstore(v(D, 4), vL16, sT2, 0, tag='rst', sc=rsc['x']); self.wsstore(v(D, 4), vL16, sT2, 0, tag='rst', off=1024, sc=rsc['x'])
        if 'x' in which: it.append(x)
        def h(p):
            self.wsstore(v(D, 4), vL16, sHks, p * 2048, tag='rst', sc=rsc['h']); self.wsstore(v(D, 4), vL16, sHks, p * 2048, tag='rst', off=1024, sc=rsc['h'])
        if 'h' in which: it += [lambda: h(0), lambda: h(1)]
        def h2():
            L = em.newlabel('Lr3')
            em(f's_cmp_ge_u32 {sJ}, 11'); em(f's_cbranch_scc1 {L}')
            em.cond_begin(); h(2); em.cond_end()
            em.label(L)
        if 'h' in which: it.append(h2)
        def st():
            em(f'v_and_b32 {v(D+4)}, 512, {vP}'); em(f'v_add_u32 {v(D+4)}, {v(D+4)}, {vP}')
            em('s_mov_b32 exec_hi, 0')
            for i in range(3): self.wsstore(v(D), v(D + 4), sStst, i * 16 * 8192, width=1, tag='rst')
            em('s_mov_b64 exec, -1')
        if 'x' in which: it.append(st)
        return it

    def check(self, regs, reload, tmp=None, split=False, kind='sent', tag=None, again=None):
        em = self.em
        if self.o.nochk and split and kind != 'h': return lambda: None
        F = em.newlabel('Lfix'); R = em.newlabel('Lret'); G_ = em.newlabel('Lok')
        dst = 'vcc' if split else sEx
        def test(e):
            r = regs[0]
            if r.startswith('a'): e(f'v_accvgpr_read_b32 {tmp}, {r}'); r = tmp
            if kind == 'sent':
                rest = list(regs)
                e(f'v_max_u32 {tmp}, {rest[0]}, {rest[1]}'); rest = rest[2:]
                while rest:
                    e(f'v_max3_u32 {tmp}, {rest[0]}, {rest[1]}, {tmp}'); rest = rest[2:]
                e(f'v_cmp_eq_u32 {dst}, -1, {tmp}')
            elif kind == 'n6':
                e(f'v_xor_b32 {tmp}, {regs[0]}, {tag}')
                for q in regs[1:]: e(f'v_bitop3_b32 {tmp}, {q}, {tag}, {tmp} bitop3:0xbe')
                e(f'v_and_b32 {tmp}, 63, {tmp}'); e(f'v_cmp_ne_u32 {dst}, 0, {tmp}')
            elif kind == 'h':
                if tag:
                    for q in regs: e(f'v_xor_b32 {q}, 0x80000000, {q}')
                if len(regs) == 2: e(f'v_or_b32 {tmp}, {regs[0]}, {regs[1]}'); r = tmp
                e(f'v_cmp_gt_i32 {dst}, 0, {r}')
            elif len(regs) <= 2:
                r1 = regs[-1]
                if r1.startswith('a'):
                    e(f'v_lshlrev_b32 {tmp}, 31, {tmp}'); e(f'v_cmp_{"eq" if tag else "ne"}_u32 {sEx}, 0, {tmp}')
                    e(f'v_accvgpr_read_b32 {tmp}, {r1}'); e(f'v_lshlrev_b32 {tmp}, 31, {tmp}'); e(f'v_cmp_{"eq" if tag else "ne"}_u32 {dst}, 0, {tmp}')
                    e('s_nop 1'); e(f's_or_b64 vcc, vcc, {sEx}')
                else:
                    e(f'v_bitop3_b32 {tmp}, {r}, {r1}, 1 bitop3:{0x80 if tag else 0xa8:#x}'); e(f'v_cmp_{"eq" if tag else "ne"}_u32 {dst}, 0, {tmp}')
            else:
                assert tag == 1
                rest = list(regs)
                e(f'v_and_b32 {tmp}, {rest[0]}, {rest[1]}'); rest = rest[2:]
                while rest:
                    e(f'v_bitop3_b32 {tmp}, {rest[0]}, {rest[1]}, {tmp} bitop3:0x80'); rest = rest[2:]
                e(f'v_and_b32 {tmp}, 1, {tmp}'); e(f'v_cmp_eq_u32 {dst}, 0, {tmp}')
        test(em)
        def branch():
            if split: em(f's_cbranch_vccnz {F}')
            else: em(f's_cmp_lg_u64 {sEx}, 0'); em(f's_cbranch_scc1 {F}')
            em.label(R)
            out = [F + ':']
            e = lambda t, tag=None: out.append('    ' + t)
            if self.o.ts and not self.o.span: e('s_add_u32 s87, s87, 1')
            def rep():
                for p in em.vmq:
                    if p.tag == 'A': again(e, p)
                    else: e(f's_add_u32 {sFx}, {sFlag}, {8 * 4096}'); e(f'buffer_store_dword {tmp}, off, {SWS}, {sFx}')
            reload(e)
            if again and self.o.fixmode: rep(); e(f's_waitcnt vmcnt({len(em.vmq)})')
            else: e('s_waitcnt vmcnt(0)')
            test(e)
            if split: e(f's_cbranch_vccz {G_}')
            else: e('s_nop 0'); e(f's_cmp_eq_u64 {sEx}, 0'); e(f's_cbranch_scc1 {G_}')
            e(f's_sub_u32 {sSpin}, {sSpin}, 1'); e(f's_cbranch_scc0 {F}'); e(f's_mov_b32 {sSpin}, 0')
            out.append(G_ + ':')
            if again and not self.o.fixmode: rep()
            e(f's_branch {R}')
            self.fixes += out
        if split: return branch
        branch()

    def colsum_items(self, quads, acc, tmp, own, ones, first):
        items = []
        rds = [self.tr(tmp + 4 * (n % 2), q, 0, own) for n, q in enumerate(quads)]
        items += rds[0]
        for n in range(len(quads)):
            if n + 1 < len(quads): items += rds[n + 1]
            items.append(f'{MF} {acc}, {ones}, {v(tmp + 4*(n%2), 4)}, ' + ('0' if first and n == 0 else acc))
        return items
    def cs_write_items(self, srcs, lds, tmp):
        ad = v(tmp)
        it = [f'v_and_b32 {ad}, 31, {vLane}', f'v_lshlrev_b32 {ad}, 4, {ad}', f'v_add_u32 {ad}, {lds:#x}, {ad}',
              f's_lshl_b32 {sT2}, {sW}, 2', f'v_add_u32 {v(tmp+1)}, {sT2}, {ad}']
        return it + [f'ds_write_b32 {v(tmp+1)}, {s} offset:{p*512}' for p, s in enumerate(srcs)]
    def cs_read_items(self, keys, tmp):
        ad = v(tmp); R = tmp + 2
        it = [f'ds_read_b128 {v(R+4*p,4)}, {ad} offset:{p*512}' for p in range(len(keys))]
        for p, k in enumerate(keys):
            r = R + 4 * p
            it += [f'v_add_f32 {v(r)}, {v(r)}, {v(r+1)}', f'v_add_f32 {v(r+2)}, {v(r+2)}, {v(r+3)}', f'v_add_f32 {v(r)}, {v(r)}, {v(r+2)}',
                   f'v_cvt_pk_bf16_f32 {v(r+1)}, {v(r)}, {v(r)}', f'v_lshlrev_b32 {v(r+1)}, 16, {v(r+1)}', f'v_sub_f32 {v(r+1)}, {v(r)}, {v(r+1)}',
                   f'v_cvt_pk_bf16_f32 {CS[k]}, {v(r)}, {v(r+1)}']
        return it
    def colsum_exchange(self, srcs, keys, lds, tmp):
        self.emit(self.cs_write_items(srcs, lds, tmp)); self.barrier(); self.emit(self.cs_read_items(keys, tmp))

    def stage_dma(self, srd, m, qa, qb, tag):
        if 'w2' in self.o.abl and srd == SW2: return
        if 'wo' in self.o.abl and srd == SWO: return
        em = self.em
        if srd == SWO:
            em(f's_add_u32 {sR}, {sRot2}, {m}'); em(f's_and_b32 {sR}, {sR}, 7'); em(f's_lshl_b32 {sR}, {sR}, 16')
        else:
            self.tab4(m, sR, 16)
        em(f's_add_u32 {sR}, {sR}, {sC128}')
        self.dma(srd, vDs, sR, 0, qa, tag, nt=self.o.nt_stage); self.dma(srd, vDs, sR, 8192, qb, tag, nt=self.o.nt_stage)
    def tab4(self, st, dst, sh, em=None):
        em = em or self.em
        em(f's_bfe_u32 {dst}, {sTab[st // 6]}, {(5 * (st % 6)) | (5 << 16):#x}'); em(f's_lshl_b32 {dst}, {dst}, {sh}')
    def stage_read_items(self, abase, m, qa, qb):
        items = []
        for h, q in enumerate((qa, qb)):
            addr = q * 4096; win = addr >> 16; off = addr & 0xFFFF
            def f(win=win, off=off, h=h):
                if win == 0: b0, b1 = vS0, vS1
                else:
                    if self.swin != win:
                        self.em(f'v_add_u32 {vS0w}, {win*65536:#x}, {vS0}'); self.em(f'v_add_u32 {vS1w}, {win*65536:#x}, {vS1}'); self.swin = win
                    b0, b1 = vS0w, vS1w
                self.em(f'ds_read_b64_tr_b16 {a(abase + m*8 + 2*h, 2)}, {b0} offset:{off}')
                self.em(f'ds_read_b64_tr_b16 {a(abase + m*8 + 4 + 2*h, 2)}, {b1} offset:{off}')
            items.append(f)
        return items

    def aux_items(self, S, Q, t0, need_r=True):
        it = [f'v_mul_f32 {S}, {sInv}, {S}']
        if need_r:
            it += [f'v_mul_f32 {Q}, {sInv}, {Q}', f'v_fma_f32 {Q}, -{S}, {S}, {Q}', f'v_max_f32 {Q}, 0, {Q}', f'v_add_f32 {Q}, {sEps}, {Q}',
                   f'v_rsq_f32 {Q}, {Q}', f'v_mul_f32 {vRl}, {sLog2e}, {Q}']
        it += [f'v_cndmask_b32_e64 {S}, 0, -{S}, {sLo}',
               f'v_cvt_pk_bf16_f32 {v(AUX)}, {S}, {S}', f'v_lshlrev_b32 {t0}, 16, {v(AUX)}', f'v_sub_f32 {S}, {S}, {t0}', f'v_cvt_pk_bf16_f32 {v(AUX+1)}, {S}, {S}']
        if need_r:
            it += [f'v_cndmask_b32 {Q}, 0, {vRl}, {sLo}', f'v_cvt_pk_bf16_f32 {t0}, {Q}, {Q}', f'v_lshlrev_b32 {t0}, 16, {t0}', f'v_sub_f32 {t0}, {Q}, {t0}',
                   f'v_cvt_pk_bf16_f32 {v(AUX+2)}, {Q}, {t0}']
        return it
    def aux_const_items(self):
        return [f'v_mov_b32 {v(AUX+2)}, 0', f'v_mov_b32 {v(AUX+3)}, 0', f'v_mov_b32 {v(CB+2)}, 0', f'v_mov_b32 {v(CB+3)}, 0', f'v_mov_b32 {v(CB+4)}, 0x3f803f80', f'v_mov_b32 {v(CB+5)}, 0x3f803f80']
    def corr_items(self, key, acc, swapAB):
        c = v(acc, 16)
        return [f'v_mov_b32 {v(CB)}, {CS[key]}', f'v_mov_b32 {v(CB+1)}, {CS[key]}',
                f'{MF} {c}, {v(AUX,4)}, {v(CB,4)}, {c}' if swapAB else f'{MF} {c}, {v(CB,4)}, {v(AUX,4)}, {c}']
    def stats_T_loads(self, i, e=None):
        e = e or self.em
        t = MR + 16
        e(f's_add_u32 {sFx}, {sG8K}, {i * 16 * 8192}')
        e(f'buffer_load_dwordx4 {v(t,4)}, {vStT}, {SWS}, {sFx} offen sc1', tag='stat'); e(f'buffer_load_dwordx4 {v(t+4,4)}, {vStT}, {SWS}, {sFx} offen offset:512 sc1', tag='stat')
    def stats_T_items(self, need_r, sti):
        t = MR + 16
        it = [lambda: self.check([v(t + r) for r in range(8)], lambda e: self.stats_T_loads(sti, e), v(38), kind='x', tag=sTxn)]
        it += [f'v_add_f32 {v(t)}, {v(t)}, {v(t+1)}', f'v_add_f32 {v(t+2)}, {v(t+2)}, {v(t+3)}', f'v_add_f32 {v(t+4)}, {v(t+4)}, {v(t+5)}',
              f'v_add_f32 {v(t+6)}, {v(t+6)}, {v(t+7)}', f'v_add_f32 {v(t)}, {v(t)}, {v(t+2)}', f'v_add_f32 {v(t+4)}, {v(t+4)}, {v(t+6)}',
              f'v_add_f32 {v(t)}, {v(t)}, {v(t+4)}', f'v_mov_b32 {v(t+1)}, {v(t)}', f'v_permlane32_swap_b32 {v(t)}, {v(t+1)}']
        return it + self.aux_items(v(t), v(t + 1), v(t + 2), need_r)

    def pass2(self, steps, planes, accs, swapAB, side, fill, loader=None, first=True, extra=None, third=None):
        em = self.em
        steps = list(steps)
        n3 = third[2] if third else 0
        def rd3(i):
            ks = steps[i]
            for t in self.tr(MR + 24 + (i % 2) * 4, third[0][ks >> 2], ks & 3): em(t, tag=('B', i))
        def rd(i, p):
            ks = steps[i]
            for t in self.tr(BB + (i % 2) * 8 + 4 * p, planes[p][ks >> 2], ks & 3): em(t, tag=('B', i))
        for i in range(2):
            for p in range(2): rd(i, p)
            if i < n3: rd3(i)
        br = extra(0)
        for i, ks in enumerate(steps):
            if br: br(); br = None
            if self.o.ts2 and (self.S == 0) != bool(self.o.ts2l1) and i == 0: self.ts('first')
            lg = [k for k, p in enumerate(em.lgq) if p.tag == ('B', i)]
            need = [XORD[k] for k in (i + 1, i + 2) if k < len(steps)] if i % 2 else []
            vm = [k for k, p in enumerate(em.vmq) if p.tag == 'A' and XORD[self.ldidx[id(p)]] in need]
            em.force_wait(vm=len(em.vmq) - 1 - max(vm) if vm else None, lg=len(em.lgq) - 1 - max(lg) if lg else None)
            for p in range(2):
                w = v(BB + (i % 2) * 8 + 4 * p, 4); x = Afrag(ks); c = v(accs[p], 16)
                src = '0' if (first and i == 0) else c
                em(f'{MF} {c}, {x}, {w}, {src}' if swapAB else f'{MF} {c}, {w}, {x}, {src}')
                if i + 2 < len(steps): rd(i + 2, p)
                if p == 0: loader(i)
                if p == 0 and i + 1 < len(steps): br = extra(i + 1)
                if not (p == 0 and br): side.run(fill(i) if callable(fill) else fill)
                if p == 1 and i < n3:
                    c3 = v(third[1], 16)
                    em(f'{MF} {c3}, {v(MR + 24 + (i % 2) * 4, 4)}, {x}, ' + ('0' if i == 0 else c3))
                    if i + 2 < n3: rd3(i + 2)
                    side.run(fill(i))
                if self.o.ts2 and (self.S == 0) != bool(self.o.ts2l1) and p == 1 and i in (0, 3, 7, 11, 15, 19, 23, 27, 31): self.ts(f's{i}')
    def pass1(self, plane, acc, side, fill, steps=None):
        em = self.em
        NB = 4
        first = steps is None
        steps = list(range(32)) if steps is None else list(steps)
        def rd(i):
            for t in self.tr(BB + (i % NB) * 4, plane[steps[i] >> 2], steps[i] & 3): em(t)
        for i in range(NB - 1): rd(i)
        for i, ks in enumerate(steps):
            w = v(BB + (i % NB) * 4, 4); c = v(acc, 16)
            if i + NB - 1 < len(steps): rd(i + NB - 1)
            em(f'{MF} {c}, {w}, {Afrag(ks)}, ' + ('0' if first and i == 0 else c))
            side.run(fill(i) if callable(fill) else fill)
    def xld(self, i, e=None):
        ks = XORD[i]
        r = (e or self.em)(f'buffer_load_dwordx4 {Afrag(ks)}, {vAX}, {SWS}, {(sXl if ks & 2 else sXm)[ks >> 2]} offen offset:{(ks & 1) * 1024} sc1', tag='A')
        if e is None: self.ldidx[id(r)] = i
    def x_prefetch(self, off, n0, n1):
        if n0 == 0:
            self.em(f's_add_u32 {sT}, {sGXw}, {off}'); self.em(f'v_add_u32 {vAX}, {sT}, {vL16}')
        for i in range(n0, n1): self.xld(i)
    def a_loader(self, pre, sti, xtag):
        nxt = [pre]
        def step(i):
            if i == self.o.statstep - 10: self.stats_T_loads(sti)
            for _ in range(2 if i < self.o.burst else 1):
                if nxt[0] < 32: self.xld(nxt[0]); nxt[0] += 1
            self.xdone = nxt[0] >= 32
        def chk(i):
            if i % 2: return None
            f0 = lambda k: (lambda r: r[0] + r[2:].split(':')[0])(Afrag(XORD[k]))
            return self.check([f0(i), f0(i + 1)], lambda e: (self.xld(i, e), self.xld(i + 1, e)), v(38), split=True, kind='x', tag=xtag,
                              again=lambda e, p: self.xld(self.ldidx[id(p)], e))
        return step, chk

    def phi_items(self, acc, rl, lanes_t, E):
        out = []
        for g in range(2):
            b = acc + 8 * g
            for k in range(4):
                x = v(b + 2 * k, 2)
                if lanes_t:
                    out += [f'v_fma_f32 {v(b+2*k)}, {v(b+2*k)}, {rl}, {sDelta}', f'v_fma_f32 {v(b+2*k+1)}, {v(b+2*k+1)}, {rl}, {sDelta}']
                else: out.append(f'v_pk_fma_f32 {x}, {x}, {v(rl + 8*g + 2*k, 2)}, {sDelta2}')
            for k in range(8): out.append(f'v_exp_f32_e64 {v(E+k)}, {v(b+k)} clamp')
            for k in range(8): out.append(f'v_max_f32 {v(b+k)}, {sDelta}, {v(b+k)}')
            for k in range(4): out.append(f'v_pk_fma_f32 {v(b+2*k,2)}, {v(b+2*k,2)}, {sLn22}, {v(E+2*k,2)}')
            for k in range(4): out.append(f'v_cvt_pk_bf16_f32 {v(acc+4*g+k)}, {v(b+2*k)}, {v(b+2*k+1)}')
        return out

    def p1_start(self):
        em = self.em; o = self.o
        self.lin = True
        X = MR; OWN = [v(MR + 4), v(MR + 5), v(MR + 6)]; H = v(MR + 7); ONE = v(MR + 8, 4); CT = MR + 12
        self.OWN, self.ONE = OWN, ONE
        aS, aCk, aCv = a(0, 16), a(32, 16), a(48, 16); QA = ACC + 32
        em(f'v_and_b32 v27, 7, {vLane}'); em('v_lshlrev_b32 v27, 7, v27')
        em(f'v_bfe_u32 v28, {vLane}, 3, 2'); em('v_lshl_add_u32 v27, v28, 12, v27')
        em(f's_add_u32 {sT}, {sWl}, {24*4096}'); em(f'v_add_u32 v27, {sT}, v27')
        em(f'v_bfe_u32 v28, {vLane}, 1, 3'); em(f'v_xor_b32 v28, v28, {vHi}')
        for kk in range(4):
            em(f'v_xor_b32 v29, {2*kk}, v28'); em(f'v_lshl_add_u32 {v(X+kk)}, v29, 4, v27')
        for i in range(3): em(f'v_add_u32 {OWN[i]}, {sWl}, {vTr[i]}')
        for i in range(4): em(f'v_mov_b32 {v(MR+8+i)}, 0x3f803f80')
        for sm, bit in ((sM0, 1), (sM1, 2), (sM3, 8), (sM4, 16)):
            em(f'v_and_b32 v29, {bit}, {vLane}'); em(f'v_cmp_ne_u32 {sm}, 0, v29')
        em(f'v_bfe_u32 v29, {vLane}, 2, 1'); em(f'v_cmp_eq_u32 s[46:47], v29, {vHi}')
        if o.tw == 0: self.touch_w('v29', MR + 20)
        self.reducer_setup_c() if o.xc else self.reducer_setup()
        self.emit(self.c1rest)
        pre2 = self.chunk_items(2) if o.ring == 4 else []
        def own_reads(c):
            em.wait_vm_tag(f'c{c}')
            for kk in range(4): em(f'ds_read_b128 {Afrag(4*c+kk)}, {v(X+kk)} offset:{(c % o.ring) * 16384}')
            for p, pl in enumerate('kv'): self.emit(self.tr(CT + 4 * p, self.pl[pl][c], 0, OWN))
        def diag(S, Q, T):
            tail = [f'v_accvgpr_read_b32 {S}, a0']
            for r in range(8): tail.append(f'v_cndmask_b32 {v(QA+r)}, {v(QA+2*r)}, {v(QA+2*r+1)}, {sM0}')
            for r in range(4): tail.append(f'v_cndmask_b32 {v(QA+r)}, {v(QA+2*r)}, {v(QA+2*r+1)}, {sM1}')
            for r in range(2): tail.append(f'v_cndmask_b32 {v(QA+r)}, {v(QA+2*r)}, {v(QA+2*r+1)}, {sM3}')
            tail += [f'v_cndmask_b32 {Q}, {Q}, {v(QA+1)}, {sM4}', f'v_cndmask_b32 {Q}, 0, {Q}, s[46:47]',
                     f'v_mov_b32 {T}, {Q}', f'v_permlane32_swap_b32 {Q}, {T}', f'v_add_f32 {Q}, {Q}, {T}']
            return tail
        def sld(e):
            e(f's_add_u32 {sEx[2:4].join(["s", ""])}, {sG8K}, {3 * 16 * 8192}')
            for k in range(2): e(f'buffer_load_dwordx4 {v(QA + 8 + 4 * k, 4)}, {vStT}, {SWS}, s82 offen offset:{k * 512} sc1', tag='stat')
        def spub():
            S, Q = v(QA + 1), v(QA)
            em(f'v_cndmask_b32 {S}, {Q}, {v(MR+20)}, {sLo}')
            em(f's_and_b32 {sT2}, {sNonce}, 63'); em(f'v_mov_b32 {v(QA+2)}, {sT2}'); em(f'v_and_b32 {S}, 0xffffffc0, {S}'); em(f'v_or_b32 {S}, {S}, {v(QA+2)}')
            em(f's_and_b32 {sT}, {sRot}, 4'); em(f's_lshl_b32 {sT}, {sT}, 7'); em(f's_and_b32 {sT2}, {sRot}, 3'); em(f's_lshl_b32 {sT2}, {sT2}, 2')
            em(f's_add_u32 {sT2}, {sT2}, {sT}'); em(f's_add_u32 {sT2}, {sT2}, {sG8K}')
            self.wsstore(S, vStT, sT2, 3 * 16 * 8192, width=1, sc=' sc1', tag='rst')
        side = Side(em)
        self.stq = list(range(24, 32)) + [34, 35, 32, 33, 36, 37, 38, 39]
        if o.ts2: self.ts('pre0')
        self.emit(pre2[:o.c2a])
        own_reads(0)
        side.add(*pre2[o.c2a:])
        self.ts('c0')
        for c in range(8):
            em('s_barrier')
            if c + o.ring - 1 < 8: side.add(*self.chunk_items(c + o.ring - 1))
            if c == o.hc: side.add(self.nonce_hello)
            if c == o.rc: side.add(self.resets)
            if o.sst and c == 1: side.add(*diag(v(MR + 20), v(QA), v(MR + 22))); side.add(spub)
            if o.sst and c == o.sldc: side.add(lambda: sld(em))
            self.touch_at(f'c{c}', side, 'v27')
            if o.rste and c == o.rste:
                def early_resets():
                    keep = self.sc; self.sc = ' sc1'
                    self.emit(self.reset_items(MR + 24, 'xh')); self.sc = keep
                side.add(early_resets)
            if c == o.tqc: side.add(lambda: self.touch_q('v27', MR + 24))
            if c == o.tw - 1: side.add(lambda: self.touch_w('v27', MR + 20))
            if c == o.pc:
                def w1p():
                    em(f's_lshl_b32 {sT2}, {sW}, 6'); em(f's_add_u32 {sT2}, {sT2}, {sW1c0}'); em(f's_cmp_lt_u32 {sW}, 2'); em(f's_cselect_b32 {sT2}, {sT2}, {sW1c2}')
                    em(f's_lshl_b32 {sR}, {sG}, 1'); em(f's_sub_u32 {sR}, {sR}, {sW}'); em(f's_mul_i32 {sR}, {sR}, {16*2752}')
                    em(f'v_add_u32 v28, {sR}, {vD1}')
                    if o.pz: em(f's_cmp_eq_u32 {sW}, 3'); em(f's_cselect_b32 {sT2}, 0x10000000, {sT2}')
                    pq = (34, 35) if o.plate else (22, 23)
                    self.dma(SW1, 'v28', sT2, 0, pq[0], 'w1p'); self.dma(SW1, 'v28', sT2, 16 * 2752, pq[1], 'w1p')
                side.add(w1p)
            if c == max(5, o.pc + 2) and not o.plate:
                aW = a(80, 16); W = MR + 24
                side.add(lambda: em.wait_vm_tag('w1p'))
                side.add(*self.tr(W, 22, 0, OWN)); side.add(*self.tr(W + 4, 23, 0, OWN))
                side.add(f'{MF} {aW}, {ONE}, {v(W,4)}, 0', f'{MF} {aW}, {ONE}, {v(W+4,4)}, {aW}')
            if c == max(5, o.pc + 2) + 1 or (c == 7 and o.pc + 2 >= 7):
                def w1s(W=MR + 24):
                    em(f'v_accvgpr_read_b32 {v(W)}, a80'); em(f's_and_b32 {sT2}, {sNonce}, 0xff'); em(f'v_mov_b32 {v(W+1)}, {sT2}')
                    em(f'v_and_or_b32 {v(W)}, {v(W)}, {sMaskInv}, {v(W+1)}'); em(f'v_lshlrev_b32 {v(W+1)}, 2, {vLane}')
                    em(f's_min_u32 {sR}, {sW}, 2'); em(f's_lshl_b32 {sR}, {sR}, 7')
                    em(f's_mul_i32 {sT2}, {sG}, {MSG_B}'); em(f's_add_u32 {sT2}, {sT2}, {sJmsg}'); em(f's_add_u32 {sT2}, {sT2}, {sR}')
                    def st_():
                        em('s_mov_b32 exec_hi, 0')
                        self.wsstore(v(W), v(W + 1), sT2, 2176, width=1, sc=' sc1', tag='rst')
                        em('s_mov_b64 exec, -1')
                    self.only_wave(3, st_, invert=True) if o.pz else st_()
                self.w1s = w1s
                if not o.plate: side.add(w1s)
            if c == max(5, o.hc + 2):
                def hello():
                    em(f's_add_u32 {sT2}, {sG128}, {WS_HELLO}')
                    em(f'buffer_load_dword {H}, {vPoll}, {SWS}, {sT2} offen sc1', tag='hello')
                side.add(hello)
            if c >= 4:
                for m in range(8):
                    assert o.plate or m < 6 or int(o.qsched[m]) > max(5, o.pc + 2)
                    if o.qsched[m] == str(c): side.add(lambda m=m: self.qkv_dma('q', m, 'q'))
            def rd(kk, p):
                self.emit(self.tr(BB + (kk % 2) * 8 + 4 * p, self.pl['kv'[p]][c], kk))
            for kk in range(2):
                for p in range(2): rd(kk, p)
            cnt = [0]
            def tick():
                cnt[0] += 1
                if c < 7 and cnt[0] % o.cgap == o.cgap - 1: side.run(o.crun if (o.sst and c) else 1)
            for p, acc in enumerate((aCk, aCv)):
                em(f'{MF} {acc}, {ONE}, {v(CT+4*p,4)}, ' + ('0' if c == 0 else acc)); tick()
            for kk in range(4 if (c == 0 or not o.sst) else 0):
                ks = 4 * c + kk
                em(f'{MF} {aS}, {ONE}, {Afrag(ks)}, ' + ('0' if ks == 0 else aS)); tick()
                em(f'{MF} {v(QA,16)}, {Afrag(ks)}, {Afrag(ks)}, ' + ('0' if ks == 0 else v(QA, 16))); tick()
            if c == 7:
                S, Q, T = v(MR + 20), v(QA), v(MR + 22)
                tail = [f'v_accvgpr_read_b32 {v(MR+20)}, a32', f'v_accvgpr_read_b32 {v(MR+21)}, a48']
                tail += self.cs_write_items([v(MR + 20), v(MR + 21)], 32 * 4096, MR + 22) + [self.barrier] + self.cs_read_items(['k', 'v'], MR + 22)
                if o.sst:
                    P_ = QA + 8
                    tail += [lambda: self.check([v(P_ + r) for r in range(8)], sld, v(QA + 1), kind='n6', tag=v(QA + 2))]
                    tail += [f'v_add_f32 {v(P_)}, {v(P_)}, {v(P_+1)}', f'v_add_f32 {v(P_+2)}, {v(P_+2)}, {v(P_+3)}', f'v_add_f32 {v(P_+4)}, {v(P_+4)}, {v(P_+5)}',
                             f'v_add_f32 {v(P_+6)}, {v(P_+6)}, {v(P_+7)}', f'v_add_f32 {v(P_)}, {v(P_)}, {v(P_+2)}', f'v_add_f32 {v(P_+4)}, {v(P_+4)}, {v(P_+6)}',
                             f'v_add_f32 {S}, {v(P_)}, {v(P_+4)}', f'v_mov_b32 {Q}, {S}', f'v_permlane32_swap_b32 {S}, {Q}']
                else:
                    tail += diag(S, Q, T)
                tail += self.aux_const_items() + self.aux_items(S, Q, T)
                side.q = tail + side.q
            for kk in range(4):
                ks = 4 * c + kk
                for p in range(2):
                    cc = v(ACC + 16 * p, 16)
                    em(f'{MF} {cc}, {Afrag(ks)}, {v(BB + (kk % 2) * 8 + 4 * p, 4)}, ' + ('0' if ks == 0 else cc))
                    if kk + 2 < 4: rd(kk + 2, p)
                    if c < 7: tick()
                    else: side.run(7)
                if kk == o.ownpos and c + 1 < 8: own_reads(c + 1)
            if c < 7: side.flush()
            if c in (1, 3, 5) and not o.ts2: self.ts(f'c{c}e')
        side.flush()
        self.ts('kvpass')
        self.emit(self.corr_items('k', ACC, True)); self.emit(self.corr_items('v', ACC + 16, True))
        L = em.newlabel('Lhp'); D = em.newlabel('Lhd')
        em.wait_vm_tag('hello')
        em.label(L)
        em(f'v_subrev_u32 {v(TMP)}, {sNonce}, {H}'); em(f'v_add_u32 {v(TMP)}, -1, {v(TMP)}')
        em(f'v_cmp_le_u32 vcc, 16, {v(TMP)}')
        em(f's_cbranch_vccz {D}')
        em.cond_begin()
        em(f's_add_u32 {sT2}, {sG128}, {WS_HELLO}')
        em(f'buffer_load_dword {H}, {vPoll}, {SWS}, {sT2} offen sc1'); em.force_wait(vm=0)
        em.cond_end()
        self.spin_tail(L)
        em.label(D)
        em(f'v_cmp_ne_u32 vcc, {sHello}, {H}')
        for i in range(3): em(f'v_mov_b32 {v(TMP+i)}, {OWN[i]}')
        self.OWN = [v(TMP), v(TMP + 1), v(TMP + 2)]
        em(f'{MF} {v(MR,16)}, {v(AUX,4)}, {v(CB+2,4)}, 0')
        self.ts('decide')

    def p1_rest(self, l):
        em = self.em; o = self.o
        K, V, Q = ACC, ACC + 16, ACC + 32
        RL = MR; E = MR + 16
        sq = self.pl['k'][:4]
        sa = 36 * 4096
        mw, mr, fac, t16, tg = v(V + 8), v(V + 9), v(V + 10), v(V + 11), v(V + 12)
        u, x1, x2 = v(V + 13), v(V + 14), v(V + 15)
        self.emit(self.phi_items(K, RL, False, E))
        D0, D1 = MR, MR + 16
        rest = []
        for hh in range(2):
            rest += [f'v_pk_mul_f32 {v(V+2*r,2)}, {v(V+2*r,2)}, {v(RL+2*r,2)}' for r in range(4 * hh, 4 * hh + 4)]
            rest += [f'v_cvt_pk_bf16_f32 {v(V+r)}, {v(V+2*r)}, {v(V+2*r+1)}' for r in range(4 * hh, 4 * hh + 4)]
        W_ = E
        rest = rest[:8] + [f'v_mov_b32 {v(K+8+r)}, {v(CB+4)}' for r in range(8)] + [f'v_permlane16_swap_b32 {v(V+r)}, {v(K+8+r)}' for r in range(4)] + rest[8:]
        rest += [f'{MF} {v(D1,16)}, {v(K,4)}, {v(K+8,4)}, 0']
        rest += [f'v_permlane16_swap_b32 {v(V+r)}, {v(K+8+r)}' for r in range(4, 8)]
        rest += [f'{MF} {v(D0,16)}, {v(K,4)}, {v(V,4)}, 0', f'{MF} {v(D1,16)}, {v(K+4,4)}, {v(K+12,4)}, {v(D1,16)}',
                 f'{MF} {v(D0,16)}, {v(K+4,4)}, {v(V+4,4)}, {v(D0,16)}']
        if l == 0 and not o.qlate:
            for r in range(4): em(f'v_mov_b32 {v(BB+8+r)}, {v(CB+4)}')
            cs = [lambda: em.wait_vm_tag('q')] + self.colsum_items(self.pl['q'], v(Q, 16), BB, self.OWN, v(BB + 8, 4), True)
            mixed = []
            while rest or cs:
                mixed += rest[:1] + cs[:1]; rest = rest[1:]; cs = cs[1:]
            rest = mixed
        self.emit(rest)
        self.emit([f's_lshl_b32 {sT2}, {sW}, 12', f's_add_u32 {sT2}, {sT2}, {sa}', f'v_add_u32 {mw}, {sT2}, {vL16}',
                   f'v_bfe_u32 {x1}, {vLane}, 1, 4', f'v_lshl_add_u32 {x1}, {vHi}, 5, {x1}', f'v_lshlrev_b32 {x1}, 4, {x1}',
                   f's_lshl_b32 {sT2}, {sW}, 11', f'v_add_u32 {x1}, {sT2}, {x1}',
                   f'v_bfe_u32 {x2}, {vLane}, 1, 2', f'v_lshlrev_b32 {x2}, 9, {x2}', f'v_bfe_u32 {u}, {vLane}, 2, 1', f'v_lshl_add_u32 {x2}, {u}, 10, {x2}', f'v_add_u32 {x2}, 256, {x2}',
                   f's_cmp_eq_u32 {sW}, 2', f's_cselect_b64 vcc, -1, 0', f'v_cndmask_b32 {mr}, {x1}, {x2}, vcc',
                   f'v_and_b32 {x1}, 1, {vLane}', f'v_lshl_add_u32 {mr}, {x1}, 10, {mr}', f'v_add_u32 {mr}, {sa:#x}, {mr}',
                   f'v_add_u32 {t16}, {sWl}, {vL16}', f's_and_b32 {sT2}, {sNonce}, 0xff', f'v_mov_b32 {tg}, {sT2}',
                   f'v_lshrrev_b32 {x1}, 3, {vLane}', f'v_mul_u32_u24 {x1}, {MSG_B}, {x1}', f'v_and_b32 {x2}, 7, {vLane}', f'v_lshl_add_u32 {fac}, {x2}, 4, {x1}'])
        self.kt_voff(u, x1)
        for i, r in ((2, D1 + 8), (3, D1 + 12), (0, D0), (1, D0 + 4)): em(f'ds_write_b128 {mw}, {v(r,4)} offset:{i*1024}')
        if l == 0 and not o.qlate: self.emit(self.cs_write_items([v(Q)], 33 * 4096, V))
        if not o.qlate: em.wait_vm_tag('q')
        self.barrier()
        if not o.ts2: self.ts('kvbar')
        M = MR
        if o.xc: return self.exchange_c(l, mw, mr, fac, t16, tg, u, x1, x2)
        ga = fac; G = MR + 4; A0 = x1; sOK = 's48'
        def msg_out():
            for i in range(4): em(f'ds_read_b128 {v(M+4*i,4)}, {mr} offset:{i*4096}')
            for r in (0, 2): em(f'v_pk_add_f32 {v(M+r,2)}, {v(M+r,2)}, {v(M+4+r,2)}')
            for r in (0, 2): em(f'v_pk_add_f32 {v(M+8+r,2)}, {v(M+8+r,2)}, {v(M+12+r,2)}')
            for r in (0, 2): em(f'v_pk_add_f32 {v(M+r,2)}, {v(M+r,2)}, {v(M+8+r,2)}')
            em(f'v_cmp_gt_u32 vcc, 2176, {t16}')
            for r in range(4): em(f'v_and_or_b32 {v(M+r)}, {v(M+r)}, {sMaskInv}, {tg}')
            em(f's_mul_i32 {sT2}, {sG}, {MSG_B}'); em(f's_add_u32 {sT2}, {sT2}, {sJmsg}')
            em('s_mov_b64 exec, vcc')
            self.wsstore(v(M, 4), t16, sT2, l * 256 * MSG_B, sc=' sc1', tag='msg')
            em('s_mov_b64 exec, -1')
        self.only_wave(3, msg_out, invert=True)
        def if_pending(f):
            L = em.newlabel('Lp')
            em(f's_cmp_lg_u32 {sOK}, 0'); em(f's_cbranch_scc1 {L}')
            em.cond_begin(); f(); em.vmq = [p for p in em.vmq if p.tag != 'g']; em.cond_end()
            em.label(L)
            self.gmark = set(id(p) for p in em.vmq)
        def g_loads():
            em(f's_mov_b64 exec, {sX0}'); self.wsload(v(G, 4), ga, sLine, l * 256 * MSG_B, tag='g')
            em(f's_mov_b64 exec, {sX1}'); self.wsload(v(G + 4, 4), ga, sLine, l * 256 * MSG_B + 8 * MSG_B, tag='g')
            em('s_mov_b64 exec, -1')
        def g_check():
            em(f'v_xor_b32 {A0}, {v(G)}, {tg}')
            for r in (3, 4, 7): em(f'v_bitop3_b32 {A0}, {v(G+r)}, {tg}, {A0} bitop3:0xbe')
            em(f'v_and_b32 {A0}, 0xff, {A0}'); em(f'v_cmp_ne_u32 vcc, 0, {A0}')
        def g_finish():
            for r in (0, 2): em(f'v_pk_add_f32 {v(G+r,2)}, {v(G+r,2)}, {v(G+4+r,2)}')
            for r in range(4): em(f'v_add_f32_dpp {v(G+r)}, {v(G+r)}, {v(G+r)} row_ror:8 {DPPM}')
            em(f'v_permlane16_swap_b32 {v(G)}, {v(G+1)}'); em(f'v_permlane16_swap_b32 {v(G+2)}, {v(G+3)}')
            em(f'v_add_f32 {v(G)}, {v(G)}, {v(G+1)}'); em(f'v_add_f32 {v(G+2)}, {v(G+2)}, {v(G+3)}')
            em(f'v_permlane32_swap_b32 {v(G)}, {v(G+2)}'); em(f'v_add_f32 {v(G)}, {v(G)}, {v(G+2)}')
            em(f'v_mul_f32 {v(G)}, {sFac}, {v(G)}'); em(f'v_mov_b32 {v(G+1)}, {v(G)}')
            em(f'v_permlane16_swap_b32 {v(G)}, {v(G+1)}'); em(f'v_cvt_pk_bf16_f32 {v(G)}, {v(G)}, {v(G+1)}')
            if o.rep8:
                for k in range(2): self.wsstore(v(G), u, sKTo, (l * 8 + k * 4) * KC, width=1, sc=' sc1', tag='kt')
            else:
                em('s_mov_b32 exec_lo, 0xff'); em('s_mov_b32 exec_hi, 0xff')
                self.wsstore(v(G), u, sKTo, l * 0x8000, width=1, sc=' sc1', tag='kt')
            em('s_mov_b64 exec, -1')
            em(f's_mov_b32 {sOK}, 1')
        def first():
            for r in range(4): em(f'v_mov_b32 {v(G+r)}, {v(M+r)}'); em(f'v_mov_b32 {v(G+4+r)}, {v(M+r)}')
            g_loads()
        def attempt():
            em.force_wait(vm=len([p for p in em.vmq if id(p) not in self.gmark]))
            g_check()
            L = em.newlabel('La'); E2 = em.newlabel('Lb')
            em(f's_cbranch_vccnz {L}')
            em.cond_begin(); g_finish(); em.cond_end()
            em(f's_branch {E2}')
            em.label(L)
            g_loads()
            em.label(E2)
        em(f's_xor_b32 {sOK}, {sRed}, 1')
        if_pending(first)
        self.ts('msg')
        side = Side(em)
        if o.qlate:
            base = len(em.vmq) - 1 - max(i_ for i_, p in enumerate(em.vmq) if p.tag == 'q')
            La = em.newlabel('Lq'); Lb = em.newlabel('Lq'); Lc = em.newlabel('Lq')
            em(f's_cmp_eq_u32 {sOK}, 0'); em(f's_cbranch_scc1 {La}')
            em(f's_cmp_eq_u32 {sW}, 3'); em(f's_cbranch_scc0 {Lb}')
            em(f's_waitcnt vmcnt({base})'); em(f's_branch {Lc}')
            em.label(La); em(f's_waitcnt vmcnt({base + 3})'); em(f's_branch {Lc}')
            em.label(Lb); em(f's_waitcnt vmcnt({base + 1})')
            em.label(Lc)
            del em.vmq[:len(em.vmq) - base]
            self.gmark = set(id(p) for p in em.vmq)
            self.barrier()
            if l == 0:
                side.add(*[f'v_mov_b32 {v(MR+12+r)}, {v(CB+4)}' for r in range(4)])
                side.add(*self.colsum_items(self.pl['q'], v(K, 16), V, self.OWN, v(MR + 12, 4), True))
                side.add('s_nop 7', 's_nop 3')
                side.add(*self.cs_write_items([v(K)], 33 * 4096, V)); side.add(self.barrier)
        if l == 0: side.add(*self.cs_read_items(['q'], V))
        self.p1_bg(l, side)
        def fillq(ks):
            if ks == o.gstep: if_pending(attempt)
            return o.fill_p1
        self.pass1(self.pl['q'], Q, side, fillq)
        self.emit(self.corr_items('q', Q, False))
        side.flush()
        if self.lin:
            self.lin = False
            em(f'v_lshlrev_b32 {v(TMP)}, 8, {vHi}')
            for i in range(3): em(f'v_sub_u32 {vTr[i]}, {vTr[i]}, {v(TMP)}')
        self.barrier()
        self.ts('qpass')
        if o.gstep >= 32 or o.att2: if_pending(attempt)
        self.p1_after_q(l)
        self.emit(self.phi_items(Q, vRl, True, E))
        self.wsstore(v(Q, 4), vL16, sQst, 0); self.wsstore(v(Q + 4, 4), vL16, sQst, 0, off=1024)
        if o.rstpos == 1 and l == 0 and not o.rste: self.emit(self.reset_items(ACC + 8, o.rst1))
        self.kt_addr()
        if not o.ts2: self.ts('qst')
        def loop():
            L = em.newlabel('Lg'); D = em.newlabel('Lgd')
            em.force_wait(vm=len([p for p in em.vmq if id(p) not in self.gmark]))
            em.label(L)
            g_check()
            em(f's_cbranch_vccz {D}')
            em.cond_begin(); g_loads(); em.force_wait(vm=0); em.cond_end()
            self.spin_tail(L)
            em.label(D)
            g_finish()
            em.force_wait(vm=2 if o.rep8 else 1)
            em('s_mov_b64 exec, 1')
            em(f'v_mov_b32 {A0}, {sNonce}'); em(f's_add_u32 {sT2}, {sFlag}, {4*l*4096}')
            em(f'buffer_store_dword {A0}, off, {SWS}, {sT2}' + self.sc)
            em('s_mov_b64 exec, -1')
            em(f's_mov_b32 {sOK}, 0')
        if_pending(loop)
        if not o.ts2: self.ts('kvpoll')
        def cs_reduce():
            L0 = em.newlabel('Lc'); L = em.newlabel('Lc'); D = em.newlabel('Lc')
            em(f's_cmp_ge_u32 {sCsp}, 3'); em(f's_cbranch_scc1 {L0}')
            em.cond_begin()
            em(f's_lshl_b32 {sR}, {sCsp}, 7'); em(f's_add_u32 {sR}, {sR}, {sJmsg}')
            em.label(L)
            self.wsload(v(G, 4), ga, sR, 2176); self.wsload(v(G + 4, 4), ga, sR, 2176 + 8 * MSG_B)
            em(f'v_xor_b32 {A0}, {v(G)}, {tg}')
            for r in range(1, 8): em(f'v_bitop3_b32 {A0}, {v(G+r)}, {tg}, {A0} bitop3:0xbe')
            em(f'v_and_b32 {A0}, 0xff, {A0}'); em(f'v_cmp_ne_u32 vcc, 0, {A0}')
            em(f's_cbranch_vccz {D}')
            self.spin_tail(L)
            em.label(D)
            for r in (0, 2): em(f'v_pk_add_f32 {v(G+r,2)}, {v(G+r,2)}, {v(G+4+r,2)}')
            for r in range(4): em(f'v_add_f32_dpp {v(G+r)}, {v(G+r)}, {v(G+r)} row_ror:8 {DPPM}')
            em(f'v_permlane16_swap_b32 {v(G)}, {v(G+1)}'); em(f'v_permlane16_swap_b32 {v(G+2)}, {v(G+3)}')
            em(f'v_add_f32 {v(G)}, {v(G)}, {v(G+1)}'); em(f'v_add_f32 {v(G+2)}, {v(G+2)}, {v(G+3)}')
            em(f'v_permlane32_swap_b32 {v(G)}, {v(G+2)}'); em(f'v_add_f32 {v(G)}, {v(G)}, {v(G+2)}')
            em(f'v_cvt_pk_bf16_f32 {v(G+1)}, {v(G)}, {v(G)}'); em(f'v_lshlrev_b32 {v(G+1)}, 16, {v(G+1)}'); em(f'v_sub_f32 {v(G+1)}, {v(G)}, {v(G+1)}')
            em(f'v_cvt_pk_bf16_f32 {v(G)}, {v(G)}, {v(G+1)}')
            em(f'v_and_b32 {v(G+1)}, 7, {vLane}'); em(f'v_lshlrev_b32 {v(G+1)}, 4, {v(G+1)}'); em(f'v_lshrrev_b32 {v(G+2)}, 4, {vLane}'); em(f'v_lshl_add_u32 {v(G+1)}, {v(G+2)}, 2, {v(G+1)}')
            em(f's_mul_i32 {sT2}, {sJ}, 384'); em(f's_lshl_b32 {sR}, {sCsp}, 7'); em(f's_add_u32 {sT2}, {sT2}, {sR}')
            em('s_mov_b32 exec_lo, 0x00ff00ff'); em('s_mov_b32 exec_hi, 0x00ff00ff')
            self.wsstore(v(G), v(G + 1), sT2, WS_CS, width=1, sc=' sc1', tag='kt')
            em('s_mov_b64 exec, -1')
            em.cond_end()
            em.label(L0)
        def touches():
            t = v(ACC + 8)
            self.retouch(0, t, v(ACC + 9))
            em('s_mov_b32 exec_hi, 0xffff')
            em(f'buffer_load_dword {v(ACC+10)}, {t}, {SWS}, {sHks} offen sc1', tag='touch')
            em(f'v_lshlrev_b32 {t}, 17, {vLane}')
            em(f's_lshl_b32 {sT2}, {sJ}, 2'); em(f's_add_u32 {sT2}, {sT2}, {sW}'); em(f's_lshl_b32 {sT2}, {sT2}, 7'); em(f's_add_u32 {sT2}, {sT2}, {sG8K}')
            em('s_mov_b64 exec, 7')
            em(f'buffer_load_dword {v(ACC+11)}, {t}, {SWS}, {sT2} offen sc1', tag='touch')
            em('s_mov_b64 exec, -1')
        def streams():
            self.p1_gap(l)
            n = o.share if l == 0 else o.share2
            for m in range(n): self.w1dma(0, m, 'w1a'); self.w1dma(1, m, 'w1a')
            self.w1_todo = list(range(n, 4)) + [m for m in self.w1_todo if m >= 4]
            if l == 0 and o.rste and o.tpos == 1: touches()
        if o.xorder & (1 << l):
            self.p2_hook = streams
            def mid():
                if l == 0: cs_reduce()
                if l == 0 and o.rste and o.tpos == 0: touches()
            return self.group_sync(4 * l + 0, mid=mid, bar=False, skipif=sOK, tags=None)
        self.p2_hook = None
        def mid():
            if l == 0: self.touch_at('g', None, v(ACC + 8))
            if l == 0: cs_reduce()
            if l == 0 and o.rste: touches()
            def l2w2():
                em(f'v_lshlrev_b32 {v(G)}, 7, {vLane}'); em(f's_lshr_b32 {sT2}, s2, 3'); em(f's_mul_i32 {sT2}, {sT2}, {344*128}')
                for k in range(6):
                    if k == 5: em('s_mov_b64 exec, 0xffffff')
                    em(f's_add_u32 {sT}, {sT2}, {k*8192}')
                    em(f'buffer_load_dword {v(G+1+k)}, {v(G)}, {SW2}, {sT} offen', tag='l2')
                    if o.thr2 and k >= o.thr2 - 1: em.force_wait(vm=o.thr2 - 1)
                em('s_mov_b64 exec, -1')
                em.vmq = [p for p in em.vmq if p.tag != 'l2']
            if l == 0 and o.tw2 == 1: self.only_wave(3, l2w2)
            self.p1_gap(l)
            if o.share >= 0:
                n = o.share if l == 0 else o.share2
                for m in range(n): self.w1dma(0, m, 'w1a'); self.w1dma(1, m, 'w1a')
                self.w1_todo = list(range(n, 4)) + [m for m in self.w1_todo if m >= 4]
            else: self.only_wave(3, lambda: self.p1_loader(l, 3))
            if l == 0 and o.tw2 == 2: self.only_wave(3, l2w2)
        self.group_sync(4 * l + 0, mid=mid, bar=False, skipif=sOK, tags=None)

    def exchange_c(self, l, mw, mr, gz, t16, tg, uz, x1, x2):
        em = self.em; o = self.o
        K, V, Q = ACC, ACC + 16, ACC + 32
        M = MR; G = MR; Z = K + 8; A0 = x1; A1 = x2; sOK = 's48'; IMG = 32 * 4096
        ga, uk, im = mw, mr, v(TMP + 3)
        moff = l * 256 * MSG_B; koff = l * 16 * KT_B
        def msg_out():
            for i in range(4): em(f'ds_read_b128 {v(M+4*i,4)}, {mr} offset:{i*4096}')
            em(f'v_lshrrev_b32 {A0}, 9, {t16}'); em(f'v_and_b32 {A1}, 511, {t16}'); em(f'v_lshl_add_u32 {A0}, {A0}, 10, {A1}')
            em(f's_cmp_eq_u32 {sW}, 2'); em(f's_cselect_b32 {sT2}, 512, 0'); em(f's_sub_u32 {sT2}, {IMG}, {sT2}'); em(f'v_add_u32 {A0}, {sT2}, {A0}')
            for r in (0, 2): em(f'v_pk_add_f32 {v(M+r,2)}, {v(M+r,2)}, {v(M+4+r,2)}')
            for r in (0, 2): em(f'v_pk_add_f32 {v(M+8+r,2)}, {v(M+8+r,2)}, {v(M+12+r,2)}')
            for r in (0, 2): em(f'v_pk_add_f32 {v(M+r,2)}, {v(M+r,2)}, {v(M+8+r,2)}')
            em(f'v_cmp_gt_u32 vcc, 2176, {t16}')
            for r in range(4): em(f'v_and_or_b32 {v(M+r)}, {v(M+r)}, {sMaskInv}, {tg}')
            em(f's_mul_i32 {sT2}, {sG}, {MSG_B}'); em(f's_add_u32 {sT2}, {sT2}, {sJmsg}')
            em('s_mov_b64 exec, vcc')
            self.wsstore(v(M, 4), t16, sT2, moff, sc=' sc1', tag='msg')
            em(f'ds_write_b128 {A0}, {v(M,4)}')
            em('s_mov_b64 exec, -1')
            em.wait_lg(0)
        self.only_wave(3, msg_out, invert=True)
        em(f'v_lshrrev_b32 {A0}, 4, {vLane}'); em(f'v_mul_u32_u24 {A0}, {MSG_B}, {A0}'); em(f'v_and_b32 {A1}, 15, {vLane}')
        em(f'v_lshl_add_u32 {ga}, {A1}, 4, {A0}'); em(f's_lshl_b32 {sT2}, {sW}, 9'); em(f'v_add_u32 {ga}, {sT2}, {ga}')
        em(f'v_lshlrev_b32 {uk}, 3, {A1}'); em(f'v_lshl_add_u32 {uk}, {vHi}, 2, {uk}')
        em(f'v_lshlrev_b32 {im}, 4, {A1}'); em(f's_add_u32 {sT2}, {sWl}, {IMG}'); em(f'v_add_u32 {im}, {sT2}, {im}')
        def w3(f): self.only_wave(3, f)
        def drop(): em.vmq = [p for p in em.vmq if p.tag != 'g']
        def g_loads():
            for s_ in range(4):
                em(f's_lshr_b32 {sR}, {sG}, 2'); em(f's_add_u32 {sR}, {sR}, {s_}'); em(f's_and_b32 {sR}, {sR}, 3'); em(f's_mul_i32 {sR}, {sR}, {4*MSG_B}')
                em(f's_add_u32 {sR}, {sR}, {sJmsg}'); em(f's_add_u32 {sR}, {sR}, {moff}')
                if s_ == 0: em(f's_mov_b64 exec, {sX0}')
                for k in range(2): em(f'buffer_load_dwordx4 {v(G+16*k+4*s_,4)}, {ga}, {SWS}, {sR} offen offset:{k*256} sc1', tag='g')
                if s_ == 0: em('s_mov_b64 exec, -1')
            def z():
                for s_ in range(2):
                    em(f's_lshr_b32 {sR}, {sG}, 3'); em(f's_xor_b32 {sR}, {sR}, {s_}'); em(f's_mul_i32 {sR}, {sR}, {8*MSG_B}'); em(f's_add_u32 {sR}, {sR}, {sJmsg}')
                    if s_ == 0: em(f's_mov_b64 exec, {sX1}')
                    self.wsload(v(Z + 4 * s_, 4), gz, sR, moff + 2048, tag='g')
                    if s_ == 0: em('s_mov_b64 exec, -1')
                drop()
            drop(); w3(z)
            self.gmark = set(id(p) for p in em.vmq)
        def own_fill():
            em(f's_not_b64 exec, {sX0}')
            for k in range(2): em(f'ds_read_b128 {v(G+16*k,4)}, {im} offset:{k*256}')
            em('s_mov_b64 exec, -1')
            def z():
                em(f'v_and_b32 {A0}, 7, {vLane}'); em(f'v_lshlrev_b32 {A0}, 4, {A0}'); em(f'v_add_u32 {A0}, {IMG + 3584:#x}, {A0}')
                em(f's_not_b64 exec, {sX1}')
                em(f'ds_read_b128 {v(Z,4)}, {A0}')
                em('s_mov_b64 exec, -1')
                em.wait_lg(0)
            w3(z)
        def g_check():
            em(f'v_xor_b32 {A0}, {v(G)}, {tg}'); em(f'v_xor_b32 {A1}, {v(G+3)}, {tg}')
            for q in range(1, 8):
                em(f'v_bitop3_b32 {A0}, {v(G+4*q)}, {tg}, {A0} bitop3:0xbe'); em(f'v_bitop3_b32 {A1}, {v(G+4*q+3)}, {tg}, {A1} bitop3:0xbe')
            def z():
                for r in (0, 4): em(f'v_bitop3_b32 {A0}, {v(Z+r)}, {tg}, {A0} bitop3:0xbe'); em(f'v_bitop3_b32 {A1}, {v(Z+r+3)}, {tg}, {A1} bitop3:0xbe')
            w3(z)
            em(f'v_or_b32 {A0}, {A0}, {A1}'); em(f'v_and_b32 {A0}, 0xff, {A0}'); em(f'v_cmp_ne_u32 vcc, 0, {A0}')
        def rows(B, scale):
            em(f'v_permlane16_swap_b32 {v(B)}, {v(B+1)}'); em(f'v_permlane16_swap_b32 {v(B+2)}, {v(B+3)}')
            em(f'v_add_f32 {v(B)}, {v(B)}, {v(B+1)}'); em(f'v_add_f32 {v(B+2)}, {v(B+2)}, {v(B+3)}')
            em(f'v_permlane32_swap_b32 {v(B)}, {v(B+2)}'); em(f'v_add_f32 {v(B)}, {v(B)}, {v(B+2)}')
            if scale: em(f'v_mul_f32 {v(B)}, {sLn2}, {v(B)}')
            em(f'v_mov_b32 {v(B+1)}, {v(B)}')
            em(f'v_permlane16_swap_b32 {v(B)}, {v(B+1)}'); em(f'v_cvt_pk_bf16_f32 {v(B)}, {v(B)}, {v(B+1)}')
        def g_finish():
            for k in range(2):
                B = G + 16 * k
                for r in (0, 2): em(f'v_pk_add_f32 {v(B+r,2)}, {v(B+r,2)}, {v(B+4+r,2)}')
                for r in (0, 2): em(f'v_pk_add_f32 {v(B+8+r,2)}, {v(B+8+r,2)}, {v(B+12+r,2)}')
            for k in range(2):
                B = G + 16 * k
                for r in (0, 2): em(f'v_pk_add_f32 {v(B+r,2)}, {v(B+r,2)}, {v(B+8+r,2)}')
            rows(G, True); rows(G + 16, True)
            em('s_mov_b32 exec_lo, 0xffff'); em('s_mov_b32 exec_hi, 0xffff')
            for k in range(2): self.wsstore(v(G + 16 * k), uk, sKTo, koff, width=1, off=k * 128, tag='kt')
            em('s_mov_b64 exec, -1')
            def z():
                for r in (0, 2): em(f'v_pk_add_f32 {v(Z+r,2)}, {v(Z+r,2)}, {v(Z+4+r,2)}')
                for r in range(4): em(f'v_add_f32_dpp {v(Z+r)}, {v(Z+r)}, {v(Z+r)} row_ror:8 {DPPM}')
                rows(Z, False)
                em('s_mov_b32 exec_lo, 0xff'); em('s_mov_b32 exec_hi, 0xff')
                self.wsstore(v(Z), uz, sLine, koff + 512, width=1, tag='kt')
                em('s_mov_b64 exec, -1')
            w3(z)
            em(f's_mov_b32 {sOK}, 1')
        def if_pending(f):
            L = em.newlabel('Lp')
            em(f's_cmp_lg_u32 {sOK}, 0'); em(f's_cbranch_scc1 {L}')
            em.cond_begin(); f(); drop(); em.cond_end()
            em.label(L)
            self.gmark = set(id(p) for p in em.vmq)
        def attempt():
            em.force_wait(vm=len([p for p in em.vmq if id(p) not in self.gmark]), lg=0)
            g_check()
            L = em.newlabel('La'); E2 = em.newlabel('Lb')
            em(f's_cbranch_vccnz {L}')
            em.cond_begin(); g_finish(); em.cond_end()
            em(f's_branch {E2}')
            em.label(L)
            g_loads()
            em.label(E2)
        def loop():
            L = em.newlabel('Lg'); D = em.newlabel('Lgd')
            em.force_wait(vm=len([p for p in em.vmq if id(p) not in self.gmark]))
            em.label(L)
            g_check()
            em(f's_cbranch_vccz {D}')
            em.cond_begin(); g_loads(); em.force_wait(vm=0); em.cond_end()
            self.spin_tail(L)
            em.label(D)
            g_finish()
        def kt_resets():
            em(f'v_mov_b32 {A0}, -1')
            em('s_mov_b32 exec_lo, 0xffff'); em('s_mov_b32 exec_hi, 0xffff')
            for ll in range(2):
                for k in range(2): self.wsstore(A0, uk, sKTo, ll * 16 * KT_B, width=1, off=k * 128, tag='rst')
            em('s_mov_b64 exec, -1')
            def z():
                em('s_mov_b32 exec_lo, 0xff'); em('s_mov_b32 exec_hi, 0xff')
                for ll in range(2): self.wsstore(A0, uz, sLine, ll * 16 * KT_B + 512, width=1, tag='rst')
                em('s_mov_b64 exec, -1')
            w3(z)
        em(f's_mov_b32 {sOK}, 0')
        if l == 0: kt_resets()
        if o.gfirst < 0: g_loads()
        self.ts('msg')
        side = Side(em)
        if l == 0: side.add(*self.cs_read_items(['q'], V))
        side.add(self.barrier, own_fill)
        self.p1_bg(l, side)
        def fillq(ks):
            if ks == o.gfirst: g_loads()
            if ks == o.gstep: if_pending(attempt)
            return o.fill_p1
        self.pass1(self.pl['q'], Q, side, fillq)
        self.emit(self.corr_items('q', Q, False))
        side.flush()
        if self.lin:
            self.lin = False
            em(f'v_lshlrev_b32 {v(TMP)}, 8, {vHi}')
            for i in range(3): em(f'v_sub_u32 {vTr[i]}, {vTr[i]}, {v(TMP)}')
        self.barrier()
        self.ts('qpass')
        if o.gstep >= 32 or o.att2: if_pending(attempt)
        self.p1_after_q(l)
        self.emit(self.phi_items(Q, vRl, True, BB))
        self.wsstore(v(Q, 4), vL16, sQst, 0); self.wsstore(v(Q + 4, 4), vL16, sQst, 0, off=1024)
        if l == 0: self.emit(self.reset_items(V, o.rst1))
        self.kt_addr()
        if not o.ts2: self.ts('qst')
        def cs_reduce():
            C = BB
            L0 = em.newlabel('Lc'); L = em.newlabel('Lc'); D = em.newlabel('Lc')
            em(f's_cmp_ge_u32 {sCsp}, 3'); em(f's_cbranch_scc1 {L0}')
            em.cond_begin()
            em(f's_lshl_b32 {sR}, {sCsp}, 7'); em(f's_add_u32 {sR}, {sR}, {sJmsg}')
            em.label(L)
            self.wsload(v(C, 4), gz, sR, 2176); self.wsload(v(C + 4, 4), gz, sR, 2176 + 8 * MSG_B)
            em(f'v_xor_b32 {A0}, {v(C)}, {tg}')
            for r in range(1, 8): em(f'v_bitop3_b32 {A0}, {v(C+r)}, {tg}, {A0} bitop3:0xbe')
            em(f'v_and_b32 {A0}, 0xff, {A0}'); em(f'v_cmp_ne_u32 vcc, 0, {A0}')
            em(f's_cbranch_vccz {D}')
            self.spin_tail(L)
            em.label(D)
            for r in (0, 2): em(f'v_pk_add_f32 {v(C+r,2)}, {v(C+r,2)}, {v(C+4+r,2)}')
            for r in range(4): em(f'v_add_f32_dpp {v(C+r)}, {v(C+r)}, {v(C+r)} row_ror:8 {DPPM}')
            em(f'v_permlane16_swap_b32 {v(C)}, {v(C+1)}'); em(f'v_permlane16_swap_b32 {v(C+2)}, {v(C+3)}')
            em(f'v_add_f32 {v(C)}, {v(C)}, {v(C+1)}'); em(f'v_add_f32 {v(C+2)}, {v(C+2)}, {v(C+3)}')
            em(f'v_permlane32_swap_b32 {v(C)}, {v(C+2)}'); em(f'v_add_f32 {v(C)}, {v(C)}, {v(C+2)}')
            em(f'v_cvt_pk_bf16_f32 {v(C+1)}, {v(C)}, {v(C)}'); em(f'v_lshlrev_b32 {v(C+1)}, 16, {v(C+1)}'); em(f'v_sub_f32 {v(C+1)}, {v(C)}, {v(C+1)}')
            em(f'v_cvt_pk_bf16_f32 {v(C)}, {v(C)}, {v(C+1)}')
            em(f'v_and_b32 {v(C+1)}, 7, {vLane}'); em(f'v_lshlrev_b32 {v(C+1)}, 4, {v(C+1)}'); em(f'v_lshrrev_b32 {v(C+2)}, 4, {vLane}'); em(f'v_lshl_add_u32 {v(C+1)}, {v(C+2)}, 2, {v(C+1)}')
            em(f's_mul_i32 {sT2}, {sJ}, 384'); em(f's_lshl_b32 {sR}, {sCsp}, 7'); em(f's_add_u32 {sT2}, {sT2}, {sR}')
            em('s_mov_b32 exec_lo, 0x00ff00ff'); em('s_mov_b32 exec_hi, 0x00ff00ff')
            self.wsstore(v(C), v(C + 1), sT2, WS_CS, width=1, sc=' sc1', tag='kt')
            em('s_mov_b64 exec, -1')
            em.cond_end()
            em.label(L0)
        def streams():
            self.p1_gap(l)
            n = o.share if l == 0 else o.share2
            for m in range(n): self.w1dma(0, m, 'w1a'); self.w1dma(1, m, 'w1a')
            self.w1_todo = list(range(n, 4)) + [m for m in self.w1_todo if m >= 4]
        def mid():
            self.gmark = set()
            if_pending(attempt)
            if not o.ts2: self.ts('kvpoll')
            if l == 0: cs_reduce()
            if o.xorder == 0: streams()
        self.group_sync(4 * l + 0, mid=mid, bar=False, tags=None, modeB=True)
        def after_q_loads():
            if_pending(loop)
            self.ts('gdone')
            if o.xorder == 1: streams()
        self.p2_hook = after_q_loads

    def w1dma(self, p, m, tag):
        if 'w1' in self.o.abl and self.S: return
        if p != 1: self.rot(m, 64 * 2752, sW1c2 if p == 2 else sW1c0)
        if p == 1: self.em(f's_add_u32 {sR}, {sR}, {sW1d}')
        self.dma(SW1, vD1, sR, 0, self.w1pl[p][m], tag)

    def p1_bg(self, l, side):
        em = self.em; o = self.o
        self.w1pl = [[16, 17, 18, 19, 24, 25, 26, 27], [20, 21, 22, 23, 28, 29, 30, 31], list(range(32, 40))]
        pad = ['s_nop 0'] * o.bgpad
        if l == 0:
            def res():
                t = v(ACC + 22)
                em(f'v_lshrrev_b32 {t}, 2, {vLane}'); em(f's_lshl_b32 {sT2}, {sW}, 4'); em(f'v_add_u32 {t}, {sT2}, {t}'); em(f'v_lshlrev_b32 {t}, 10, {t}')
                em(f'v_and_b32 {v(ACC+23)}, 3, {vLane}'); em(f'v_lshl_add_u32 {t}, {v(ACC+23)}, 4, {t}')
                em(f'buffer_load_dwordx4 {a(RES,4)}, {t}, {SX}, {sOutRow} offen', tag='res')
                em(f'buffer_load_dwordx4 {a(RES+4,4)}, {t}, {SX}, {sOutRow} offen offset:64', tag='res')
            if o.plate:
                V_ = ACC + 16; aW = a(80, 16)
                side.add(*[f'v_mov_b32 {v(MR+12+r)}, {v(CB+4)}' for r in range(4)])
                side.add(lambda: em.wait_vm_tag('w1p'))
                side.add(*self.tr(V_, 34, 0, self.OWN)); side.add(*self.tr(V_ + 4, 35, 0, self.OWN))
                side.add(f'{MF} {aW}, {v(MR+12,4)}, {v(V_,4)}, 0', f'{MF} {aW}, {v(MR+12,4)}, {v(V_+4,4)}, {aW}')
            side.add(res)
            if o.plate: side.add(lambda: self.w1s(ACC + 16))
            self.touch_at('q', side, v(ACC + 22))
            side.add(self.late_setup)
            for i in range(5): side.add(lambda i=i: self.stage_dma(SWO, i, self.stq[2 * i], self.stq[2 * i + 1], 'wo'), *pad)
            if o.rstpos == 0: side.add(*self.reset_items(ACC + 8, o.rst1))
            self.w1_todo = [4, 5, 6, 7]
        else:
            m0 = 4 + self.w1_pre; m1 = max(m0, min(8, 4 + o.w1_early))
            for m in range(m0, m1): side.add(lambda m=m: (self.w1dma(0, m, 'w1a'), self.w1dma(1, m, 'w1a')), *pad)
            self.w1_todo = list(range(m1, 8))
            if o.t4: side.q = self.img_m3(S_ADDR, v(TMP), v(TMP + 1)) + self.img_io('r', v(TMP), 64) + side.q
            for m in range(o.cq): side.add(lambda m=m: self.w1dma(2, m, 'w1a'), *pad)

    def late_setup(self):
        em = self.em
        em(f's_sub_u32 {sW1d}, {sW1c2}, {sW1c0}')
        em(f's_add_u32 {sW1c2}, {sW1c0}, 64')
        if self.o.zpl: em(f's_cmp_lt_u32 {sJ}, 11'); em(f's_cselect_b32 {sW1c2}, {sW1c2}, 0x10000000')
        em(f's_lshl_b32 {sT2}, {sW}, 13'); em(f's_add_u32 {sT2}, {sT2}, {S_ADDR}'); em(f'v_add_u32 {vRW}, {sT2}, {vL16}')
        em(f's_lshr_b32 {sT}, {sW}, 1'); em(f's_lshl_b32 {sT2}, {sT}, 12'); em(f's_and_b32 {sR}, {sW}, 1'); em(f's_lshl_b32 {sR}, {sR}, 8')
        em(f's_add_u32 {sT2}, {sT2}, {sR}'); em(f's_add_u32 {sT2}, {sT2}, {S_ADDR}')
        em(f'v_lshl_add_u32 {vRR}, {vHi}, 10, {vP}'); em(f'v_add_u32 {vRR}, {sT2}, {vRR}')
        for m in range(8):
            em(f's_add_u32 {sXm[m]}, {sRot}, {m}'); em(f's_and_b32 {sXm[m]}, {sXm[m]}, 7'); em(f's_and_b32 {sR}, {sXm[m]}, 1')
            em(f's_lshl_b32 {sXm[m]}, {sXm[m]}, 1'); em(f's_add_u32 {sXm[m]}, {sXm[m]}, {sR}'); em(f's_lshl_b32 {sXm[m]}, {sXm[m]}, 11'); em(f's_xor_b32 {sXl[m]}, {sXm[m]}, 2048')
        for k in range(4):
            w0, w1_ = [sum(m << (5 * i) for i, m in enumerate(ORD4[c][6 * k:6 * k + 6])) for c in range(2)]
            em(f's_mov_b32 {sTab[k]}, {w0:#x}'); em(f's_cmp_eq_u32 {sT}, 0'); em(f's_cselect_b32 {sTab[k]}, {sTab[k]}, {w1_:#x}')

    def p1_after_q(self, l):
        if l == 0:
            for i in range(5, 8): self.stage_dma(SWO, i, self.stq[2 * i], self.stq[2 * i + 1], 'wo')

    def p1_gap(self, l):
        em = self.em; o = self.o
        if l == 0:
            em.wait_vm_tag('wo')
            for i in range(8): self.emit(self.stage_read_items(WOA, i, self.stq[2 * i], self.stq[2 * i + 1]))
            em.wait_lg(0)
            self.res_first()
            self.w2next = 0
            self.b1 = self.w2_batch(list(range(32, 40))[:2 * o.w2b1], 'w2a')
            for m in range(4, 4 + o.w1_gap): self.w1dma(0, m, 'w1a'); self.w1dma(1, m, 'w1a')
            self.w1_todo = list(range(4 + o.w1_gap, 8))
            if o.b1gap: self.emit(self.b1[0])

    def p1_loader(self, l, w):
        em = self.em; o = self.o
        vo = v(TMP)
        em(f'v_subrev_u32 {vo}, {w*16*2752}, {vD1}')
        for m in range(o.w1_solo):
            self.rot(m, 64 * 2752, sW1c0)
            for s in range(4):
                if s == 0: em(f's_add_u32 {sFx}, {sR}, {sW1d}')
                for p in range(2): self.dma(SW1, vo, sFx if p else sR, s * 16 * 2752, self.w1pl[p][m], 'solo', slot=s)
                if o.thr: em.force_wait(vm=o.thr)
        self.w1_todo = list(range(o.w1_solo, 4)) + [m for m in self.w1_todo if m >= 4]

    def w2_batch(self, quads, tag):
        steps = list(range(self.w2next, min(22, self.w2next + len(quads) // 2)))
        self.w2next += len(steps)
        issue = [lambda k=k, m=m: self.stage_dma(SW2, m, quads[2 * k], quads[2 * k + 1], tag) for k, m in enumerate(steps)]
        read = [lambda: self.em.wait_vm_tag(tag)] if steps else []
        for k, m in enumerate(steps): read += self.stage_read_items(W2A, m, quads[2 * k], quads[2 * k + 1])
        return issue, read

    def res_first(self):
        em = self.em
        t0, t1, t2 = v(TMP), v(TMP + 1), v(TMP + 2)
        em(f's_add_u32 {sT2}, {sWl}, {self.S}')
        em(f'v_add_u32 {t0}, {sT2}, {vL16}')
        em(f'v_and_b32 {t1}, 15, {vLane}'); em(f'v_lshlrev_b32 {t1}, 6, {t1}'); em(f'v_lshl_add_u32 {t1}, {vHi}, 5, {t1}')
        em(f'v_bfe_u32 {t2}, {vLane}, 4, 1'); em(f'v_lshl_add_u32 {t1}, {t2}, 3, {t1}'); em(f'v_add_u32 {t1}, {sT2}, {t1}')
        for h in range(2): em(f'ds_write_b128 {t0}, {a(RES+4*h,4)} offset:{h*4096}')
        em.wait_lg(0)
        for h in range(2):
            em(f'ds_read_b64 {a(RES+4*h,2)}, {t1} offset:{h*4096}'); em(f'ds_read_b64 {a(RES+4*h+2,2)}, {t1} offset:{h*4096+16}')
        em.wait_lg(0)
    def res_last_items(self, lds):
        t0, t1, t2 = v(TMP), v(TMP + 1), v(TMP + 2)
        it = [f'v_and_b32 {t0}, 15, {vLane}', f'v_mul_u32_u24 {t0}, 144, {t0}', f'v_lshl_add_u32 {t0}, {vHi}, 5, {t0}',
              f'v_bfe_u32 {t1}, {vLane}, 4, 1', f'v_lshl_add_u32 {t0}, {t1}, 3, {t0}',
              f's_mul_i32 {sT2}, {sW}, {16*144}', f's_add_u32 {sT2}, {sT2}, {lds}', f'v_add_u32 {t0}, {sT2}, {t0}',
              f'v_lshrrev_b32 {t1}, 3, {vLane}', f'v_mul_u32_u24 {t1}, 144, {t1}', f'v_and_b32 {t2}, 7, {vLane}', f'v_lshl_add_u32 {t1}, {t2}, 4, {t1}',
              f's_mul_i32 {sT2}, {sW}, {8*144}', f's_add_u32 {sT2}, {sT2}, {lds}', f'v_add_u32 {t1}, {sT2}, {t1}']
        for c in range(2):
            it += [f'ds_write_b64 {t0}, {a(RES+4*c,2)} offset:{c*64}', f'ds_write_b64 {t0}, {a(RES+4*c+2,2)} offset:{c*64+16}']
        it2 = [f'ds_read_b128 {a(RES+4*h,4)}, {t1} offset:{h*32*144}' for h in range(2)]
        return it, it2
    def img_m3(self, lds, t0, t1):
        return [f'v_and_b32 {t0}, 15, {vLane}', f'v_mul_u32_u24 {t0}, 144, {t0}', f'v_lshl_add_u32 {t0}, {vHi}, 5, {t0}',
                f'v_bfe_u32 {t1}, {vLane}, 4, 1', f'v_lshl_add_u32 {t0}, {t1}, 3, {t0}',
                f's_mul_i32 {sT2}, {sW}, {16*144}', f's_add_u32 {sT2}, {sT2}, {lds}', f'v_add_u32 {t0}, {sT2}, {t0}']
    def img_m1(self, lds, t0, t1):
        return [f'v_and_b32 {t0}, 7, {vLane}', f'v_mul_u32_u24 {t0}, 144, {t0}', f'v_lshrrev_b32 {t1}, 4, {vLane}', f'v_lshl_add_u32 {t0}, {t1}, 5, {t0}',
                f'v_bfe_u32 {t1}, {vLane}, 3, 1', f'v_lshl_add_u32 {t0}, {t1}, 3, {t0}',
                f's_mul_i32 {sT2}, {sW}, {8*144}', f's_add_u32 {sT2}, {sT2}, {lds}', f'v_add_u32 {t0}, {sT2}, {t0}']
    def img_io(self, op, t0, step):
        it = []
        for c in range(2):
            for k in range(2):
                r = a(RES + 4 * c + 2 * k, 2); off = c * step + k * 16
                it.append(f'ds_write_b64 {t0}, {r} offset:{off}' if op == 'w' else f'ds_read_b64 {r}, {t0} offset:{off}')
        return it
    def m1_addr_items(self):
        W_, R_, O_, SS, SM = (v(BB + i) for i in range(5)); t0, t1, t2 = v(BB + 5), v(BB + 6), v(BB + 7)
        return [f'v_lshlrev_b32 {t1}, 7, {vHi}', f'v_xor_b32 {W_}, {t1}, {vRW}',
                f'v_and_b32 {t0}, 7, {vLane}', f's_lshl_b32 {sT2}, {sW}, 3', f'v_add_u32 {t0}, {sT2}, {t0}',
                f'v_lshrrev_b32 {t1}, 3, {vLane}', f'v_lshlrev_b32 {t1}, 9, {t1}', f'v_lshl_add_u32 {SM}, {t0}, 4, {t1}',
                f's_and_b32 {sT2}, {sJ}, 1', f's_lshl_b32 {sT2}, {sT2}, 11', f'v_xor_b32 {O_}, {sT2}, {SM}',
                f'v_bfe_u32 {t1}, {vLane}, 3, 1', f'v_lshrrev_b32 {t2}, 4, {vLane}',
                f'v_lshlrev_b32 {SS}, 4, {t0}', f'v_lshl_add_u32 {SS}, {t2}, 10, {SS}',
                f'v_lshlrev_b32 {R_}, 3, {t1}', f'v_xor_b32 {R_}, {R_}, {t0}', f'v_lshlrev_b32 {R_}, 4, {R_}',
                f'v_lshl_add_u32 {R_}, {t1}, 9, {R_}', f'v_lshl_add_u32 {R_}, {t2}, 11, {R_}', f'v_add_u32 {R_}, {self.S:#x}, {R_}']
    def reduce_m1(self, half, acc0, acc1, R, U, rs, unpack):
        em = self.em
        it = [f'ds_write_b128 {v(BB)}, {v((acc0 if c < 4 else acc1) + 4 * (c & 3), 4)} offset:{c*1024}' for c in range(8)]
        it.append(self.barrier)
        for w in range(4):
            it.append(f'ds_read_b128 {v(R+8*w,4)}, {v(BB+1)} offset:{w*8192}'); it.append(f'ds_read_b128 {v(R+8*w+4,4)}, {v(BB+1)} offset:{w*8192+1024}')
        if unpack: it += self.unpack_items(half, U)
        add = lambda d, s_: [f'v_pk_add_f32 {v(d+r,2)}, {v(d+r,2)}, {v(s_+r,2)}' for r in range(0, 8, 2)]
        it += add(R, R + 8) + add(R + 16, R + 24) + add(R, R + 16)
        it += [f'v_pk_fma_f32 {v(R+r,2)}, {v(R+r,2)}, {v(rs,2)}, {v(U+r,2)} op_sel_hi:[1,0,1]' for r in range(0, 8, 2)]
        P = R + 8
        for r in range(4): it.append(f'v_cvt_pk_bf16_f32 {v(P+r)}, {v(R+2*r)}, {v(R+2*r+1)}')
        it += [f'v_accvgpr_write_b32 {a(RES+4*half)}, {v(P)}', f'v_and_b32 {v(P)}, -2, {v(P)}']
        def stx():
            em(f's_lshr_b32 {sT}, {sW}, 1'); em(f's_lshl_b32 {sT}, {sT}, 15'); em(f's_sub_u32 {sT}, {sXst}, {sT}')
            em(f's_and_b32 {sT2}, {sW}, 1'); em(f's_lshl_b32 {sT2}, {sT2}, 8'); em(f's_sub_u32 {sT}, {sT}, {sT2}')
            em(f's_add_u32 {sT}, {sT}, {half*32768}')
            em(f'buffer_store_dwordx4 {v(P,4)}, {v(BB+2)}, {SWS}, {sT} offen' + self.sc, tag='st')
        it.append(stx)
        S, Q, T = R + 16, R + 18, v(R + 20)
        it += [f'v_pk_add_f32 {v(S,2)}, {v(R,2)}, {v(R+2,2)}', f'v_pk_mul_f32 {v(Q,2)}, {v(R,2)}, {v(R,2)}', f'v_pk_fma_f32 {v(Q,2)}, {v(R+2,2)}, {v(R+2,2)}, {v(Q,2)}']
        for r in (4, 6): it += [f'v_pk_add_f32 {v(S,2)}, {v(S,2)}, {v(R+r,2)}', f'v_pk_fma_f32 {v(Q,2)}, {v(R+r,2)}, {v(R+r,2)}, {v(Q,2)}']
        it += [f'v_add_f32 {v(S)}, {v(S)}, {v(S+1)}', f'v_add_f32 {v(Q)}, {v(Q)}, {v(Q+1)}', f'v_accvgpr_write_b32 {a(RES+4*half+1)}, {v(P+1)}',
               f'v_add_f32_dpp {v(S)}, {v(S)}, {v(S)} row_ror:8 {DPPM}', f'v_add_f32_dpp {v(Q)}, {v(Q)}, {v(Q)} row_ror:8 {DPPM}',
               f'v_accvgpr_write_b32 {a(RES+4*half+2)}, {v(P+2)}', f'v_accvgpr_write_b32 {a(RES+4*half+3)}, {v(P+3)}',
               f'v_permlane16_swap_b32 {v(S)}, {v(Q)}', f'v_add_f32 {v(S)}, {v(S)}, {v(Q)}', f'v_mov_b32 {T}, {v(S)}', f'v_permlane32_swap_b32 {v(S)}, {T}',
               f'v_add_f32 {v(S)}, {v(S)}, {T}', f'v_or_b32 {v(S)}, 1, {v(S)}']
        def st2():
            em(f's_sub_u32 {sT}, {sStst}, {sStM}'); em(f's_add_u32 {sT}, {sT}, {sStR}'); em(f's_add_u32 {sT}, {sT}, {16*8192 + half*2048}')
            em('s_mov_b32 exec_lo, 0x00ff00ff'); em('s_mov_b32 exec_hi, 0')
            em(f'buffer_store_dword {v(S)}, {v(BB+3)}, {SWS}, {sT} offen' + self.sc, tag='st')
            em('s_mov_b64 exec, -1')
        it.append(st2)
        return it
    def kt_addr(self):
        em = self.em
        t0, t1, t2 = v(TMP + 1), v(TMP + 2), v(TMP + 3)
        em(f'v_and_b32 {t0}, 15, {vLane}'); em(f'v_lshlrev_b32 {t0}, 4, {t0}'); em(f'v_lshl_add_u32 {t0}, {vHi}, 8, {t0}')
        em(f'v_lshlrev_b32 {t1}, 4, {vHi}'); em(f'v_add_u32 {t1}, 512, {t1}'); em(f'v_and_b32 {t2}, 16, {vLane}'); em(f'v_cmp_ne_u32 vcc, 0, {t2}')
        em(f'v_cndmask_b32 {t0}, {t0}, {t1}, vcc'); em(f's_mul_i32 {sT2}, {sW}, 544'); em(f'v_add_u32 {v(vKT)}, {sT2}, {t0}')
        if self.o.rep8: em(f's_and_b32 {sT2}, s2, 7'); em(f's_mul_i32 {sT2}, {sT2}, {KC}'); em(f'v_add_u32 {v(vKT)}, {sT2}, {v(vKT)}')
    def final_addr_items(self):
        t0, t1, t2 = v(20), v(21), v(MR)
        it = [f's_lshl_b32 {sT2}, {sW}, 13', f's_add_u32 {sT2}, {sT2}, {self.S}', f'v_add_u32 {v(FW)}, {sT2}, {vL16}']
        it += [f'v_xor_b32 {v(FW+i)}, {64*i}, {v(FW)}' for i in range(1, 4)]
        it += [f'v_and_b32 {t1}, 7, {vLane}', f's_lshl_b32 {sT2}, {sW}, 3', f'v_add_u32 {t0}, {sT2}, {t1}',
               f'v_lshrrev_b32 {t2}, 3, {vLane}', f'v_lshlrev_b32 {v(FB)}, 2, {t2}', f'v_lshlrev_b32 {v(FS)}, 9, {t2}', f'v_lshl_add_u32 {v(FS)}, {t0}, 4, {v(FS)}',
               f's_lshl_b32 {sT2}, {sW}, 3', f'v_add_u32 {t0}, {sT2}, {t2}',
               f'v_lshlrev_b32 {v(FO)}, 10, {t0}', f'v_lshl_add_u32 {v(FO)}, {t1}, 4, {v(FO)}',
               f'v_and_b32 {t2}, 3, {vLane}', f'v_lshlrev_b32 {t2}, 2, {t2}', f'v_xor_b32 {t2}, {t2}, {t0}', f'v_lshlrev_b32 {t2}, 4, {t2}',
               f'v_lshl_add_u32 {v(FR)}, {t1}, 10, {t2}', f'v_add_u32 {v(FR)}, {self.S:#x}, {v(FR)}']
        return it

    def unpack_items(self, half, U):
        it = [f'v_accvgpr_read_b32 {v(U+2*r+1)}, {a(RES+4*half+r)}' for r in range(4)]
        for r in range(4):
            it += [f'v_lshlrev_b32 {v(U+2*r)}, 16, {v(U+2*r+1)}', f'v_and_b32 {v(U+2*r+1)}, 0xffff0000, {v(U+2*r+1)}']
        return it
    def reduce_items(self, half, acc0, acc1, R, U, rs, xoff, sti, final, unpack, after_store=()):
        em = self.em
        it = []
        for c in range(8):
            src = v((acc0 if c < 4 else acc1) + 4 * (c & 3), 4)
            it.append(f'ds_write_b128 {v(FW + (c & 3)) if final else vRW}, {src} offset:{c*1024}')
        it.append(self.barrier)
        o2 = 512 if final else 1024; rd = v(FR) if final else vRR
        for w in range(4):
            it.append(f'ds_read_b128 {v(R+8*w,4)}, {rd} offset:{w*8192}'); it.append(f'ds_read_b128 {v(R+8*w+4,4)}, {rd} offset:{w*8192+o2}')
        if unpack: it += self.unpack_items(half, U)
        add = lambda d, s_: [f'v_pk_add_f32 {v(d+r,2)}, {v(d+r,2)}, {v(s_+r,2)}' for r in range(0, 8, 2)]
        if rs is None: it += add(R, U)
        it += add(R, R + 8) + add(R + 16, R + 24) + add(R, R + 16)
        if rs is not None: it += [f'v_pk_fma_f32 {v(R+r,2)}, {v(R+r,2)}, {v(rs,2)}, {v(U+r,2)} op_sel_hi:[1,0,1]' for r in range(0, 8, 2)]
        P = R + 8
        for r in range(4): it.append(f'v_cvt_pk_bf16_f32 {v(P+r)}, {v(R+2*r)}, {v(R+2*r+1)}')
        if final:
            def st():
                em(f's_add_u32 {sT}, {sOutRow}, {half*32768}')
                em(f'buffer_store_dwordx4 {v(P,4)}, {v(FO)}, {SOUT}, {sT} offen' + self.o.outsc, tag='st')
            it.append(st)
            return it
        it += [f'v_accvgpr_write_b32 {a(RES+4*half)}, {v(P)}', f'v_and_b32 {v(P)}, -2, {v(P)}' if sti == 1 else f'v_or_b32 {v(P)}, 1, {v(P)}']
        def stx():
            em(f's_and_b32 {sT}, {sJ}, 1'); em(f's_xor_b32 {sT}, {sT}, {half}'); em(f's_lshl_b32 {sT}, {sT}, 11'); em(f's_add_u32 {sT}, {sT}, {sXst}')
            em(f'buffer_store_dwordx4 {v(P,4)}, {vP}, {SWS}, {sT} offen' + self.sc, tag='st')
        it.append(stx)
        it += list(after_store)
        S, Q = AUX, AUX + 2
        if half == 0:
            it += [f'v_pk_add_f32 {v(S,2)}, {v(R,2)}, {v(R+2,2)}', f'v_pk_mul_f32 {v(Q,2)}, {v(R,2)}, {v(R,2)}', f'v_pk_fma_f32 {v(Q,2)}, {v(R+2,2)}, {v(R+2,2)}, {v(Q,2)}']
        for r in ((4, 6) if half == 0 else (0, 2, 4, 6)):
            it += [f'v_pk_add_f32 {v(S,2)}, {v(S,2)}, {v(R+r,2)}', f'v_pk_fma_f32 {v(Q,2)}, {v(R+r,2)}, {v(R+r,2)}, {v(Q,2)}']
        it += [f'v_accvgpr_write_b32 {a(RES+4*half+r)}, {v(P+r)}' for r in range(1, 4)]
        if half == 1:
            T = v(S + 1)
            it += [f'v_add_f32 {v(S)}, {v(S)}, {v(S+1)}', f'v_add_f32 {v(Q)}, {v(Q)}, {v(Q+1)}', f'v_and_b32 {v(Q+1)}, 512, {vP}', f'v_add_u32 {v(Q+1)}, {v(Q+1)}, {vP}',
                   f'v_permlane16_swap_b32 {v(S)}, {v(Q)}', f'v_add_f32 {v(S)}, {v(S)}, {v(Q)}', f'v_mov_b32 {T}, {v(S)}', f'v_permlane32_swap_b32 {v(S)}, {T}', f'v_add_f32 {v(S)}, {v(S)}, {T}',
                   f'v_or_b32 {v(S)}, 1, {v(S)}']
            def st2():
                em('s_mov_b32 exec_hi, 0')
                self.wsstore(v(S), v(Q + 1), sStst, sti * 16 * 8192, width=1)
                em('s_mov_b64 exec, -1')
            it.append(st2)
        return it

    def two_halves(self, mfs, A, rs, xoff, sti, pre_wait=None, dmas=(), dmas2=()):
        em = self.em; o = self.o
        r0 = self.reduce_items(0, A[0][0], A[1][0], MR, BB, rs, xoff, sti, False, False)
        r1 = self.reduce_items(1, A[0][1], A[1][1], MR, BB + 8, rs, xoff, sti, False, False)
        W0, RD0, V0 = r0[:8], r0[9:17], r0[17:]
        W1, RD1, V1 = r1[:8], r1[9:17], r1[17:]
        fill = self.unpack_items(0, BB) + self.unpack_items(1, BB + 8)
        mfs = list(mfs)
        nA = len(mfs) - o.mfB
        wq = list(W0)
        for k in range(nA):
            mfs.pop(0)()
            if wq and (k * 8 >= (8 - len(wq)) * nA - 4): em(wq.pop(0))
            for t in fill[:3]: em(t)
            fill = fill[3:]
            if dmas and k % o.dgap == o.dgap - 1: dmas.pop(0)()
        self.emit(wq + fill + list(dmas))
        self.barrier()
        for k, t in enumerate(RD0):
            em(t)
            if k % 3 == 1 and mfs: mfs.pop(0)()
        self.emit(mfs)
        na = 12 if rs is None else 8
        self.emit(V0[:na]); V0 = V0[na:]
        if pre_wait: pre_wait()
        self.barrier()
        self.ts('h0')
        pf = [lambda: self.x_prefetch(xoff, 0, 0)] + [lambda i=i: self.xld(i) for i in range(o.pre)]
        n0 = o.pf0
        for k, t in enumerate(W1):
            em(t)
            self.emit(V0[:4]); V0 = V0[4:]
            if dmas2 and k % 3 == 0: dmas2.pop(0)()
            if k >= 8 - n0: self.emit(pf[:2 if len(pf) == o.pre + 1 else 1]); pf = pf[2 if len(pf) == o.pre + 1 else 1:]
        self.emit(V0)
        self.barrier()
        self.emit(RD1)
        self.emit(pf[:o.pf1 + (1 if len(pf) == o.pre + 1 else 0)]); pf = pf[o.pf1 + (1 if len(pf) == o.pre + 1 else 0):]
        ks = [k for k, t in enumerate(V1) if callable(t)][0]
        self.emit(V1[:ks + 1]); V1 = V1[ks + 1:]
        while pf or V1:
            self.emit(V1[:3]); V1 = V1[3:]
            self.emit(pf[:1]); pf = pf[1:]

    def p2(self, l):
        em = self.em; o = self.o
        KT, QF = AF, AF + 32
        A = [[ACC, ACC + 32], [ACC + 16, 232]]
        DB = [MR, MR + 16, BB]
        def rot2(i, stride, base):
            if not o.rot2:
                em(f's_add_u32 {sR}, {base}, {i * stride}' if base else f's_movk_i32 {sR}, {i * stride}'); return
            em(f's_add_u32 {sR}, {sRot2}, {i}'); em(f's_and_b32 {sR}, {sR}, 7'); em(f's_mul_i32 {sR}, {sR}, {stride}')
            if base: em(f's_add_u32 {sR}, {sR}, {base}')
        KB = lambda i: (ACC + 32 + 4 * i) if i < 4 else (232 + 4 * (i - 4))
        KA = lambda i: KT + 4 * i
        def ldk(i, B=KA):
            rot2(i, 2176, sRed if o.xc else None)
            self.wsload(v(B(i), 4), v(vKT), sR, l * 16 * KT_B if o.xc else (WS_KT8 + l * 8 * KC if o.rep8 else WS_KT + l * 0x8000), tag='K')
        def ldq(n): rot2(n % 8, 4096, sQR); self.wsload(v(QF + 4 * n, 4), vL16, sR, (n // 8) * 32768, tag='A')
        ck = v(TMP + 2)
        def kchk(B):
            em(f'v_max_u32 {ck}, {v(B(0))}, {v(B(0)+1)}')
            for i in range(1, 16): em(f'v_max3_u32 {ck}, {v(B(i//2)+2*(i%2))}, {v(B(i//2)+2*(i%2)+1)}, {ck}')
            em(f'v_cmp_eq_u32 vcc, -1, {ck}')
        L = em.newlabel('Lk'); D = em.newlabel('Lkd'); C = em.newlabel('Lkc')
        if o.kdual:
            for i in range(8): ldk(i)
            for n in range(16): ldq(n)
            for i in range(8): ldk(i, KB)
            em.wait_vm(8)
            em.vmq = []
            em.label(L)
            kchk(KA); em(f's_cbranch_vccz {D}')
            for i in range(8): ldk(i)
            em.force_wait(vm=8); em.vmq = []
            kchk(KB); em(f's_cbranch_vccz {C}')
            for i in range(8): ldk(i, KB)
            em.force_wait(vm=8); em.vmq = []
            self.spin_tail(L)
            em.label(C)
            for r in range(0, 32, 2): em(f'v_pk_mov_b32 {v(KT+r,2)}, {v(KB(r//4)+r%4,2)}, {v(KB(r//4)+r%4,2)} op_sel:[0,1]')
            em.label(D)
        else:
            kp = o.kpos if l else o.kpos0
            for n in range(kp): ldq(n)
            if o.kfirst and not o.xc:
                for i in range(8): ldk(i)
            for n in range(kp, 16): ldq(n)
            if self.p2_hook: self.p2_hook()
            if not o.kfirst or o.xc:
                for i in range(8): ldk(i)
            if l == 0: self.touch_at('p', None, v(254))
            if l == 0 and o.w2b1b:
                assert not (o.xorder & 1)
                self.emit(self.b1[1])
                self.b1 = self.w2_batch(list(range(32, 40))[:2 * o.w2b1b], 'w2f')
            em.label(L)
            kchk(KA)
            em(f's_cbranch_vccz {D}')
            em.cond_begin()
            for i in range(8): ldk(i)
            em.force_wait(vm=0)
            em.cond_end()
            self.spin_tail(L)
            em.label(D)
        self.ts('kt')
        if l == 0 and o.wb1:
            L = em.newlabel('Lwb')
            em(f's_lshr_b32 {sT}, s2, 3'); em(f's_or_b32 {sT}, {sT}, {sW}'); em(f's_cmp_lg_u32 {sT}, 0'); em(f's_cbranch_scc1 {L}')
            em.out.append(' buffer_wbl2 sc1')
            em.label(L)
        side = Side(em)
        def attn(n): em(f'{MF} {v(DB[n%3],16)}, {v(KT+4*(n%8),4)}, {v(QF+4*n,4)}, 0')
        def post(n):
            D = DB[n % 3]; O = QF + 4 * n; rc = v(D + 8)
            it = [f'v_add_f32 {rc}, {s1em6}, {rc}', f'v_rcp_f32 {rc}, {rc}']
            it += [f'v_mul_f32 {v(D+r)}, {v(D+r)}, {rc}' for r in range(8)]
            it += [f'v_cvt_pk_bf16_f32 {v(O+r)}, {v(D+2*r)}, {v(D+2*r+1)}' for r in range(4)]
            return it
        def wo(n, c):
            h, i = divmod(n, 8)
            cc = v(A[h][c], 16)
            em(f'{MF} {cc}, {a(WOA + i*8 + c*4, 4)}, {v(QF+4*n,4)}, ' + ('0' if i == 0 else cc))
        attn(0); attn(1)
        self.p2_bg(l, side)
        side.run(2)
        E1 = o.early1
        if o.p2pipe:
            self.emit(post(0)[:2] + post(1)[:2] + post(0)[2:])
            for n in range(16):
                nxt = post(n + 1)[2:] if n + 1 < 16 else []
                if n + 2 < 16: attn(n + 2)
                for t in nxt[:o.p2a]: em(t)
                wo(n, 0)
                for t in nxt[o.p2a:]: em(t)
                side.clk(o.gap2)
                if n + 2 < 16: self.emit(post(n + 2)[:2])
        else:
            self.emit(post(0))
            for n in range(16):
                nxt = post(n + 1) if n + 1 < 16 else []
                if n + 2 < 16: attn(n + 2)
                if nxt: em(nxt[0]); em(nxt[1])
                side.clk(o.gap2)
                for t in nxt[2:8]: em(t)
                wo(n, 0)
                for t in nxt[8:11]: em(t)
                if n < E1: wo(n, 1)
                for t in nxt[11:]: em(t)
        side.flush()
        if o.kdual:
            assert E1 == 0
            em.force_wait(vm=len(em.vmq))
        self.ts('p2loop')
        xoff = 0; sti = 2 * l
        pre = (self.b1[1] + [self.barrier]) if l == 0 else []
        self.emit(pre)
        pw = (lambda: em.force_wait(vm=0)) if (l == 0 and 'h' not in o.rst1) else None
        d0 = [lambda m=m: (self.w1dma(0, m, 'w1a'), self.w1dma(1, m, 'w1a')) for m in self.w1_tail]
        self.two_halves([lambda n=n: wo(n, 1) for n in range(E1, 16)], A, None, xoff, sti, pw, dmas=d0)
        self.p2_tail(l)

    def p2_bg(self, l, side):
        em = self.em
        if self.o.cpf2 & (1 if l == 0 else 4): side.add(lambda: self.code_pf(v(248, 4), v(252)))
        if self.o.retouch: side.add(lambda: self.retouch(0, v(254), v(254)))
        if l == 0:
            if 'h' not in self.o.rst1: side.add(*self.reset_items(248, 'h'))
            side.add(lambda: self.cs_loads(em))
            if self.o.w2b1b: side.add(lambda: em.wait_lg(0)); side.add(*self.b1[0])
        n0 = (self.o.sp0 if l == 0 else self.o.sp6)
        todo = self.w1_todo[:len(self.w1_todo) - n0]; self.w1_tail = self.w1_todo[len(self.w1_todo) - n0:]
        for m in todo: side.add(lambda m=m: (self.w1dma(0, m, 'w1a'), self.w1dma(1, m, 'w1a')))
        if l == 0: self.touch_at('s', side, v(254))
        if l == 1:
            for m in range(self.o.cq, 8): side.add(lambda m=m: self.w1dma(2, m, 'w1a'))
    def retouch(self, off, vt, dst):
        em = self.em
        em(f'v_lshlrev_b32 {vt}, 7, {vLane}')
        em(f's_and_b32 {sT2}, {sW}, 1'); em(f's_mul_i32 {sT2}, {sT2}, 1792'); em(f's_add_u32 {sT2}, {sT2}, {sXst}'); em(f's_add_u32 {sT2}, {sT2}, {off}')
        em('s_mov_b64 exec, 0xffff')
        em(f'buffer_load_dword {dst}, {vt}, {SWS}, {sT2} offen sc1', tag='touch')
        em('s_mov_b64 exec, -1')
    def touch_xh(self, which, vt, dst):
        em = self.em
        if which == 'x':
            self.retouch(0, vt, dst[0])
            em(f'v_lshlrev_b32 {vt}, 17, {vLane}')
            em(f's_lshl_b32 {sT2}, {sJ}, 2'); em(f's_add_u32 {sT2}, {sT2}, {sW}'); em(f's_lshl_b32 {sT2}, {sT2}, 7'); em(f's_add_u32 {sT2}, {sT2}, {sG8K}')
            em('s_mov_b64 exec, 7')
            em(f'buffer_load_dword {dst[1]}, {vt}, {SWS}, {sT2} offen sc1', tag='touch')
        else:
            em(f'v_lshlrev_b32 {vt}, 7, {vLane}')
            em('s_mov_b64 exec, 0xffff')
            em(f's_add_u32 {sT2}, {sHks}, {int(which) * 2048}')
            em(f'buffer_load_dword {dst[0]}, {vt}, {SWS}, {sT2} offen sc1', tag='touch')
        em('s_mov_b64 exec, -1')
    def touch_at(self, pos, side, vt):
        for k, which in enumerate(('x', '0', '1', '2')):
            if self.o.tpl.split(',')[k] == pos:
                f = lambda which=which, k=k: self.touch_xh(which, vt, [a(104 + 2 * k), a(105 + 2 * k)])
                side.add(f) if side is not None else f()
    def code_pf(self, dst, vt):
        em = self.em
        L = em.newlabel('Lpc')
        end = 'L_slow' if not self.sc else 'L_codeend'
        em(f's_getpc_b64 {sEx}'); em.label(L)
        em(f's_lshr_b32 {sT}, s2, 3'); em(f's_lshl_b32 {sT}, {sT}, 2'); em(f's_add_u32 {sT}, {sT}, {sW}'); em(f's_lshl_b32 {sT}, {sT}, 10')
        em(f's_min_u32 {sT}, {sT}, {end}-{L}-1024')
        em(f'v_add_u32 {vt}, {sT}, {vL16}')
        em(f'global_load_dwordx4 {dst}, {vt}, {sEx}', tag='touch')
    def cs_loads(self, e):
        e(f'v_and_b32 {v(255)}, 31, {vLane}'); e(f'v_lshlrev_b32 {v(255)}, 2, {v(255)}'); e(f's_mul_i32 {sFx}, {sJ}, 384'); e(f's_add_u32 {sFx}, {sFx}, {WS_CS}')
        for p in range(3): e(f'buffer_load_dword {CS[p]}, {v(255)}, {SWS}, {sFx} offen offset:{(0, 256, 128)[p]} sc1', tag='cs')

    def p2_tail(self, l):
        em = self.em; o = self.o
        if l == 0: self.check([CS[0], CS[1], CS[2], CS[2]], self.cs_loads, v(TMP))
        em.wait_vm_tag('w1a')
        self.barrier()
        if l == 0 and not o.p2late:
            for m in range(8): self.w1dma(2, m, 'w1c')
        self.ts(f'end{4*l+1}')

    def hld(self, n, final, e=None):
        e = e or self.em
        st, h = (n % 22, n // 22) if (final or self.o.t4) else (n // 2, n % 2)
        if st == 21: so = sLim4
        else: self.tab4(st, sFx, 12, e); so = sFx
        r = e(f'buffer_load_dwordx4 {v(AF + 4 * (n % 24), 4)}, {v(32 + h)}, {SWS}, {so} offen sc1', tag='A')
        if r is not None: self.ldidx[id(r)] = n
    def p3(self, l):
        em = self.em; o = self.o
        ld, chk = self.a_loader(o.pre, 2 * l, sTxn)
        side = Side(em)
        side.add(*self.aux_const_items())
        if l == 0 and o.t4:
            side.add(*(self.img_m3(S_ADDR, v(TMP), v(TMP + 1)) + self.img_io('w', v(TMP), 64) + self.img_m1(S_ADDR, v(TMP), v(TMP + 1))))
            side.add(self.barrier); side.add(*self.img_io('r', v(TMP), 32 * 144)); side.add(self.barrier)
        if l == 1: rl_w, rl_r = self.res_last_items(8 * 4096); side.add(*rl_w)
        def ld2(i):
            ld(i)
            if i == o.statstep: side.add(*self.stats_T_items(False, 2 * l))
            if l == 0 and o.t4 and i == o.p2late: side.flush()
            if l == 0 and o.p2late and o.p2late <= i < o.p2late + 8: self.w1dma(2, i - o.p2late, 'w1c')
            if l == 0 and i == 26:
                side.add(self.barrier)
                self.b2 = self.w2_batch(list(range(16, 24))[:2 * o.w2b2], 'w2b')
                side.add(*self.b2[0])
        self.pass2(XORD, self.w1pl[:2], [ACC, ACC + 16], False, side, lambda i: 1 if i < o.statstep else o.fill2, loader=ld2, extra=chk,
                   third=(self.w1pl[2], ACC + 32, o.n3) if (l == 1 and o.n3) else None)
        side.flush()
        self.emit(self.corr_items(0, ACC, False)); self.emit(self.corr_items(1, ACC + 16, False))
        if l == 0: em.wait_vm_tag('w1c')
        self.barrier()
        if l == 1: self.emit(rl_r)
        self.ts('p3a')
        def epi(p):
            A = ACC + 16 * p
            it = [f'v_cvt_pk_bf16_f32 {v(A+r)}, {v(A+2*r)}, {v(A+2*r+1)}' for r in range(8)]
            it += [f'v_pk_max_i16 {v(A+r)}, {v(A+r)}, 0' for r in range(8)]
            if l == 0: it += [f'v_or_b32 {v(A+r)}, 0x80000000, {v(A+r)}' for r in (0, 4)]
            return it
        def st(p):
            A = ACC + 16 * p
            if p == 1:
                em(f's_lshl_b32 {sT2}, {sW1d}, 5'); em(f's_add_u32 {sT2}, {sT2}, {sHks}')
                self.wsstore(v(A, 4), vL16, sT2, 0); self.wsstore(v(A + 4, 4), vL16, sT2, 0, off=1024)
            else: self.wsstore(v(A, 4), vL16, sHks, p * 1024); self.wsstore(v(A + 4, 4), vL16, sHks, p * 1024, off=1024)
        side.add(*(epi(0) + [lambda: st(0)] + epi(1) + [lambda: st(1)]))
        side.add(f'v_add_u32 {v(32)}, {sHR}, {vL16}', f'v_add_u32 {v(33)}, {H_T}, {v(32)}')
        if l == 0:
            self.b3 = self.w2_batch(list(range(24, 32))[:2 * o.w2b3], 'w2c')
            side.add(*self.b3[0])
            side.add(*self.b2[1]); side.add(lambda: em.wait_lg(0))
            self.b3b = self.w2_batch(list(range(16, 24))[:2 * o.w2b3b], 'w2e')
            side.add(*self.b3b[0])
        else: side.add(*self.final_addr_items())
        if l == 1 and o.n3:
            rest = XORD[o.n3:]
            hn = [0]
            def fill(i):
                if i >= o.hpf3:
                    if i == o.hpf3: side.flush()
                    while hn[0] < o.pre4 and hn[0] < (i - o.hpf3 + 1) * o.hper and (hn[0] not in rest[i + 1:]): self.hld(hn[0], True); hn[0] += 1
                return o.fill3 if i >= 1 else 0
            self.pass1(self.w1pl[2], ACC + 32, side, fill, rest)
            while hn[0] < o.pre4: self.hld(hn[0], True); hn[0] += 1
        else:
            def fill(ks):
                if ks == o.hpf: side.flush()
                if ks >= o.hpf and (ks - o.hpf) % o.hstr == 0 and (ks - o.hpf) // o.hstr < o.pre4: self.hld((ks - o.hpf) // o.hstr, l == 1)
                return o.fill_p3 if ks >= 2 else 0
            assert o.hpf >= o.pre4 and o.hpf + (o.pre4 - 1) * o.hstr < 32
            self.pass1(self.w1pl[2], ACC + 32, side, fill)
        self.emit(self.corr_items(2, ACC + 32, False))
        side.flush()
        self.ts('p3b')
        if l == 0:
            self.barrier()
            self.b4 = self.w2_batch(list(range(32, 40)) + list(range(24, 32)) + list(range(16, 24)), 'w2d')
            self.emit(self.b4[0][:4])
        self.emit(epi(2))
        L = em.newlabel('Lh3')
        em(f's_cmp_ge_u32 {sJ}, 11'); em(f's_cbranch_scc1 {L}')
        em.cond_begin(); st(2); em.cond_end()
        em.label(L)
        if l == 0:
            self.emit(self.b3[1]); self.emit(self.b3b[1])
            if len(self.b4[0]) > 4: em.wait_lg(0); self.emit(self.b4[0][4:])
            assert self.w2next == 22
        self.ts(f'end{4*l+2}')

    def p4(self, l):
        em = self.em; o = self.o
        final = l == 1
        ts_ = final or o.t4
        A = [[ACC, ACC + 16], [ACC + 32, 232]] if ts_ else [[ACC, ACC + 32], [ACC + 16, 232]]
        side = Side(em)
        S, Q = v(AUX), v(AUX + 1); RS = [TMP, CB]
        def stl(e):
            e(f's_add_u32 {sFx}, {sStR if ts_ else sStM}, {2 * l * 16 * 8192}')
            e(f'buffer_load_dwordx4 {v(AUX,4)}, {v(FS) if final else v(BB + 4) if ts_ else vP}, {SWS}, {sFx} offen sc1', tag='stat')
        if ts_ and not final:
            side.add(*self.m1_addr_items()); side.add(lambda: stl(em), *(['s_nop 0'] * 24))
        else: stl(em)
        if o.cpf2 & 2 and not final: self.code_pf(v(248, 4), v(252))
        if o.retouch and not final: self.retouch(X2OFF, v(254), v(254))
        side.add(lambda: self.check([v(AUX + r) for r in range(4)], stl, v(CB + 2), kind='x', tag=sTxn))
        side.add(f'v_add_f32 {S}, {S}, {v(AUX+1)}', f'v_add_f32 {v(AUX+2)}, {v(AUX+2)}, {v(AUX+3)}', f'v_add_f32 {S}, {S}, {v(AUX+2)}')
        if ts_:
            side.add(f'v_add_f32_dpp {S}, {S}, {S} row_ror:8 {DPPM}', f'v_mov_b32 {Q}, {S}', f'v_permlane16_swap_b32 {S}, {Q}')
        else:
            side.add(f'v_mov_b32 {Q}, {S}', f'v_permlane16_swap_b32 {S}, {Q}', f'v_add_f32 {S}, {S}, {Q}', f'v_mov_b32 {Q}, {S}', f'v_permlane32_swap_b32 {S}, {Q}')
        side.add(f'v_mul_f32 {S}, {sInv}, {S}', f'v_mul_f32 {Q}, {sInv}, {Q}', f'v_fma_f32 {Q}, -{S}, {S}, {Q}', f'v_max_f32 {Q}, 0, {Q}',
                 f'v_add_f32 {Q}, {sEps}, {Q}', f'v_rsq_f32 {v(RS[1])}, {Q}')
        if ts_:
            side.add(f'v_mov_b32 {v(CB+2)}, {v(RS[1])}', f'v_permlane32_swap_b32 {v(CB+2)}, {v(RS[1])}')
            if final: side.add(f'ds_bpermute_b32 {v(CB+2)}, {v(FB)}, {v(CB+2)}', f'ds_bpermute_b32 {v(RS[1])}, {v(FB)}, {v(RS[1])}')
            RS = [CB + 2, CB]
        else: RS = [CB, CB]
        b4 = list(self.b4[1]) if l == 0 else []
        first4 = ((1 if ts_ else 2) * (22 - (len(b4) - 1) // 2)) if b4 else 99
        if l == 0: side.add(self.barrier)
        dec = (lambda n: (n % 22, n // 22)) if ts_ else (lambda n: (n // 2, n % 2))
        def mf(n, c):
            st, h = dec(n)
            cc = v(A[h][c], 16)
            em(f'{MF} {cc}, {a(W2A + st*8 + c*4, 4)}, {v(AF + 4 * (n % 24), 4)}, ' + ('0' if st == 0 else cc))
        def chk(n):
            if n % 2: return None
            return self.check([v(AF + 4 * (n % 24)), v(AF + 4 * ((n + 1) % 24))], lambda e: (self.hld(n, final, e), self.hld(n + 1, final, e)), v(38), split=True,
                              kind='h', tag=sTh if final else sThn, again=lambda e, p: self.hld(self.ldidx[id(p)], final, e))
        T4 = o.tail4 if ts_ else o.tail4n
        br = chk(0)
        for n in range(44):
            assert n < first4 or not b4
            if br: br()
            both = n < 44 - T4
            mf(n, 0)
            if n + o.pre4 < 44: self.hld(n + o.pre4, final)
            if n + 1 < 44: br = chk(n + 1)
            if b4 and n >= o.b4start: self.emit([b4.pop(0)] + ([b4.pop(0)] if ts_ and len(b4) > 1 else []))
            elif n >= 8: side.clk(4 if both else o.gap4)
            if both:
                mf(n, 1)
                if n >= 8 and not b4: side.clk(o.gap4)
            if final and o.wb and n == o.wbstep:
                L = em.newlabel('Lwb')
                if o.wb == 1: em(f's_cmp_lg_u32 {sW}, 3')
                else: em(f's_lshr_b32 {sT}, s2, 3'); em(f's_or_b32 {sT}, {sT}, {sW}'); em(f's_cmp_lg_u32 {sT}, 0')
                em(f's_cbranch_scc1 {L}')
                em.out.append(' buffer_wbl2 sc1')
                em.label(L)
            if o.ts3 and final and n in (0, 7, 15, 21, 29, 37): self.ts(f'q{n}')
            if ts_ and n == 22:
                side.add(*(self.reduce_items(0, A[0][0], A[0][1], MR, ACC, RS[0], 0, 0, True, True) if final else self.reduce_m1(0, A[0][0], A[0][1], MR, ACC, RS[0], True)))
                side.add(*self.unpack_items(1, ACC + 16)); side.add(self.barrier)
        side.flush()
        self.ts('p4loop')
        if ts_:
            tail = self.reduce_items(1, A[1][0], A[1][1], MR, ACC + 16, RS[1], 0, 0, True, False) if final else self.reduce_m1(1, A[1][0], A[1][1], MR, ACC + 16, RS[1], False)
            for k, n in enumerate(range(44 - T4, 44)):
                mf(n, 1)
                if k >= 1: em(tail.pop(0))
            self.emit(tail)
            if final: return
            self.w1_pre = 0
            self.x_prefetch(0, 0, o.pre5)
            self.ts('end3')
            return
        qd = [lambda m=m: self.qkv_dma('q', m, 'q') for m in range(8)] if o.qearly else []
        pair = lambda m: (lambda: (self.w1dma(0, m, 'w1a'), self.w1dma(1, m, 'w1a')))
        d1 = [pair(m) for m in range(4, 4 + o.sp1)]; d2 = [pair(m) for m in range(4 + o.sp1, 4 + o.sp1 + o.sp2)]
        self.w1_pre = o.sp1 + o.sp2
        self.two_halves([lambda n=n: mf(n, 1) for n in range(44 - T4, 44)], A, RS[0], X2OFF, 1, dmas=qd + d1, dmas2=d2)
        self.ts('end3')

    def p5_start(self):
        em = self.em; o = self.o
        ld0, chk = self.a_loader(o.pre5 if o.t4 else o.pre, 1, sTx)
        side = Side(em)
        side.add(*self.aux_const_items())
        side.add(f'v_subrev_u32 {vRW}, {S_ADDR:#x}, {vRW}', f'v_subrev_u32 {vRR}, {S_ADDR:#x}, {vRR}')
        self.S = 0
        qn = [8 if o.qearly else 0]; was = [False]
        def ld(i):
            ld0(i)
            if i == 12:
                side.add(self.barrier)
                if o.t4: side.add(*(self.img_m1(S_ADDR, v(TMP), v(TMP + 1)) + self.img_io('w', v(TMP), 32 * 144)))
            if i == o.statstep:
                side.add(*self.stats_T_items(True, 1))
                side.add(f'{MF} {v(MR,16)}, {v(AUX,4)}, {v(CB+2,4)}, 0')
            if self.xdone and was[0] and qn[0] < 8: self.qkv_dma('q', qn[0], 'q'); qn[0] += 1
            was[0] = self.xdone
        self.pass2(XORD, [self.pl['k'], self.pl['v']], [ACC, ACC + 16], True, side, lambda i: 1 if i < o.statstep else o.fill2, loader=ld, extra=chk)
        side.flush()
        self.emit(self.corr_items('k', ACC, True)); self.emit(self.corr_items('v', ACC + 16, True))
        self.ts('p5a')

    def finish(self):
        em = self.em
        L = em.newlabel('Le')
        em(f's_or_b32 {sT}, s2, {sW}'); em(f's_cmp_lg_u32 {sT}, 0'); em(f's_cbranch_scc1 {L}')
        em.cond_begin()
        em('s_mov_b64 exec, 1'); em(f'v_mov_b32 v24, {sNonce}'); em(f'buffer_store_dword v24, off, {SWS}, 0 sc1'); em('s_mov_b64 exec, -1')
        em.cond_end()
        em.label(L)
        if self.o.pad:
            L = em.newlabel('Lpad')
            em('v_readlane_b32 s3, v39, 0')
            em.label(L)
            em('s_memrealtime s[0:1]'); em.force_wait(lg=0); em('s_sub_u32 s0, s0, s3'); em(f's_cmp_lt_u32 s0, {self.o.pad}'); em(f's_cbranch_scc1 {L}')
        if self.o.ts:
            self.ts('end')
            em('s_memrealtime s[86:87]'); em.force_wait(lg=0); em('v_writelane_b32 v39, s86, 63')
            em(f's_lshl_b32 {sT}, s2, 2'); em(f's_add_u32 {sT}, {sT}, {sW}'); em(f's_lshl_b32 {sT}, {sT}, 8'); em(f's_add_u32 {sT}, {sT}, {WS_DBG}')
            em(f'v_lshlrev_b32 v24, 2, {vLane}')
            em(f'buffer_store_dword v39, v24, {SWS}, {sT} offen')
            if self.o.dbg:
                L = em.newlabel('Ld')
                em(f's_or_b32 {sT}, s2, {sW}'); em(f's_cmp_lg_u32 {sT}, 0'); em(f's_cbranch_scc1 {L}')
                em('s_memrealtime s[0:1]'); em.force_wait(lg=0); em('s_sub_u32 s0, s0, s3')
                em('v_readlane_b32 s1, v39, 0'); em('s_nop 3'); em('v_subrev_u32 v39, s1, v39'); em('v_writelane_b32 v39, s0, 0')
                em('v_mul_u32_u24 v25, 3, v0'); em('v_lshlrev_b32 v25, 2, v25'); em('ds_bpermute_b32 v26, v25, v39'); em.force_wait(lg=0)
                em('s_mov_b64 exec, 0xffff')
                em('global_store_dword v24, v26, s[100:101]')
                em.label(L)
        em('s_endpgm')
        em.out.extend(self.fixes); self.fixes = []

    def body(self, sc):
        self.ncnt = 0; self.ldidx = {}; self.fixes = []; self.sc = sc; self.swin = None; self.lin = True; self.S = S_ADDR
        seq = [lambda: self.p1_rest(0), lambda: self.p2(0), lambda: self.p3(0), lambda: self.p4(0),
               lambda: (self.p5_start(), self.p1_rest(1)), lambda: self.p2(1), lambda: self.p3(1), lambda: self.p4(1)]
        for i, f in enumerate(seq):
            self.em.comment(f'---------------- phase {i+1} ({"slow" if sc else "fast"}) ----------------')
            f()
            if self.o.stop == i + 1: break
        self.finish()

    def build(self):
        em = self.em
        self.sc = ''
        self.fixes = []
        self.prologue()
        self.p1_start()
        if self.o.force_slow: em('s_branch L_slow_tramp')
        em('s_cbranch_vccz L_fast')
        em.label('L_slow_tramp')
        em('s_getpc_b64 s[86:87]'); em.label('L_pc0')
        em('s_add_u32 s86, s86, L_slow-L_pc0'); em('s_addc_u32 s87, s87, 0'); em('s_setpc_b64 s[86:87]')
        em.label('L_end'); em('s_endpgm')
        em.out.extend(self.fixes)
        em.label('L_fast')
        snap = (list(em.vmq), list(em.lgq), self.nts, list(em.hist))
        self.body('')
        em.label('L_slow')
        em.vmq, em.lgq, self.nts, em.hist = list(snap[0]), list(snap[1]), snap[2], list(snap[3])
        self.body(' sc1')
        em.label('L_codeend')
        hdr = open('cdna_kernels/' + NAME + '.s.ref').read().split('; Override launch')[0]
        s = hdr + '; @launch grid=(256,1,1) block=(256,1,1) lds=163840\n'
        s += DOC
        s += '.amdgcn_target "amdgcn-amd-amdhsa--gfx950"\n.text\n'
        s += f'.globl {NAME}_kernel\n.p2align 8\n.type {NAME}_kernel,@function\n{NAME}_kernel:\n'
        s += em.text().replace('    ', ' ').replace(' offset:0 ', ' ').replace(', ', ',')
        s += f""".section .rodata,"a"
.p2align 6
.amdhsa_kernel {NAME}_kernel
  .amdhsa_next_free_vgpr 512
  .amdhsa_next_free_sgpr 102
  .amdhsa_accum_offset 256
  .amdhsa_group_segment_fixed_size 0
  .amdhsa_kernarg_size 72
  .amdhsa_user_sgpr_count 2
  .amdhsa_user_sgpr_kernarg_segment_ptr 1
  .amdhsa_system_sgpr_workgroup_id_x 1
  .amdhsa_float_denorm_mode_32 3
.end_amdhsa_kernel
"""
        return s

def main():
    ap = argparse.ArgumentParser()
    ap.add_argument('-o', default='k.s')
    ap.add_argument('--ts', action='store_true')
    ap.add_argument('--dbg', action='store_true')
    ap.add_argument('--pad', type=int, default=0)
    ap.add_argument('--ts2', action='store_true')
    ap.add_argument('--sync', default='A')
    ap.add_argument('--pk2', type=int, default=0)
    ap.add_argument('--tlb', type=int, default=0)
    ap.add_argument('--par', type=int, default=1)
    ap.add_argument('--pk4', type=int, default=0)
    ap.add_argument('--chkpos', type=int, default=0)
    ap.add_argument('--rstpos', type=int, default=1)
    ap.add_argument('--nochk', type=int, default=0)
    ap.add_argument('--xord', type=int, default=1)
    ap.add_argument('--retouch', type=int, default=0)
    ap.add_argument('--statstep', type=int, default=19)
    ap.add_argument('--tw2', type=int, default=0)
    ap.add_argument('--thr2', type=int, default=2)
    ap.add_argument('--kdual', type=int, default=0)
    ap.add_argument('--fill2', type=int, default=2)
    ap.add_argument('--rst1', default='xh')
    ap.add_argument('--qsched', default='66667777')
    ap.add_argument('--tq', type=int, default=0)
    ap.add_argument('--cgap', type=int, default=2)
    ap.add_argument('--ownpos', type=int, default=2)
    ap.add_argument('--mfB', type=int, default=3)
    ap.add_argument('--pf0', type=int, default=0)
    ap.add_argument('--pf1', type=int, default=0)
    ap.add_argument('--fixmode', type=int, default=1)
    ap.add_argument('--w2b1b', type=int, default=4)
    ap.add_argument('--p2late', type=int, default=16)
    ap.add_argument('--share', type=int, default=1)
    ap.add_argument('--share2', type=int, default=2)
    ap.add_argument('--span', action='store_true')
    ap.add_argument('--cpf2', type=int, default=3)
    ap.add_argument('--wb', type=int, default=2)
    ap.add_argument('--wbstep', type=int, default=36)
    ap.add_argument('--c1a', type=int, default=3)
    ap.add_argument('--tqc', type=int, default=2)
    ap.add_argument('--rep8', type=int, default=0)
    ap.add_argument('--xc', type=int, default=0)
    ap.add_argument('--gfirst', type=int, default=-1)
    ap.add_argument('--xorder', type=int, default=0)
    ap.add_argument('--ts3', action='store_true')
    ap.add_argument('--rste', type=int, default=0)
    ap.add_argument('--tpos', type=int, default=1)
    ap.add_argument('--tpl', default='n,n,n,n')
    ap.add_argument('--qpw', type=int, default=0)
    ap.add_argument('--ts2l1', type=int, default=0)
    ap.add_argument('--p2pipe', type=int, default=0)
    ap.add_argument('--p2a', type=int, default=6)
    ap.add_argument('--zpl', type=int, default=1)
    ap.add_argument('--n3', type=int, default=0)
    ap.add_argument('--hpf3', type=int, default=10)
    ap.add_argument('--hper', type=int, default=1)
    ap.add_argument('--fill3', type=int, default=6)
    ap.add_argument('--pad0', type=int, default=0)
    ap.add_argument('--abl', default='')
    ap.add_argument('--rsc', default='')
    ap.add_argument('--wb1', type=int, default=0)
    ap.add_argument('--kpos', type=int, default=0)
    ap.add_argument('--kpos0', type=int, default=0)
    ap.add_argument('--qlate', type=int, default=0)
    ap.add_argument('--qearly', type=int, default=0)
    ap.add_argument('--sp1', type=int, default=2)
    ap.add_argument('--sp2', type=int, default=2)
    ap.add_argument('--cq', type=int, default=0)
    ap.add_argument('--dgap', type=int, default=5)
    ap.add_argument('--sp0', type=int, default=2)
    ap.add_argument('--sp6', type=int, default=0)
    ap.add_argument('--t4', type=int, default=0)
    ap.add_argument('--pre5', type=int, default=10)
    ap.add_argument('--ring', type=int, default=3)
    ap.add_argument('--c2a', type=int, default=0)
    ap.add_argument('--hc', type=int, default=0)
    ap.add_argument('--rc', type=int, default=1)
    ap.add_argument('--pc', type=int, default=1)
    ap.add_argument('--sst', type=int, default=0)
    ap.add_argument('--sldc', type=int, default=5)
    ap.add_argument('--crun', type=int, default=1)
    ap.add_argument('--twsh', type=int, default=0)
    ap.add_argument('--plate', type=int, default=0)
    ap.add_argument('--pz', type=int, default=1)
    ap.add_argument('--stop', type=int, default=0)
    ap.add_argument('--spin', type=int, default=200000)
    ap.add_argument('--pre', type=int, default=11)
    ap.add_argument('--pre4', type=int, default=10)
    ap.add_argument('--pre2', type=int, default=16)
    ap.add_argument('--gap2', type=int, default=12)
    ap.add_argument('--gap4', type=int, default=24)
    ap.add_argument('--tail4', type=int, default=4)
    ap.add_argument('--rot2', type=int, default=1)
    ap.add_argument('--prewrite', type=int, default=1)
    ap.add_argument('--tw', type=int, default=5)
    ap.add_argument('--gstep', type=int, default=24)
    ap.add_argument('--att2', type=int, default=1)
    ap.add_argument('--burst', type=int, default=0)
    ap.add_argument('--hstr', type=int, default=1)
    ap.add_argument('--thr', type=int, default=6)
    ap.add_argument('--w1_solo', type=int, default=2)
    ap.add_argument('--fill_p1', type=int, default=2)
    ap.add_argument('--fill_p2', type=int, default=3)
    ap.add_argument('--fill_p3', type=int, default=3)
    ap.add_argument('--fill_p4', type=int, default=3)
    ap.add_argument('--w1_early', type=int, default=4)
    ap.add_argument('--b4start', type=int, default=4)
    ap.add_argument('--w2b1', type=int, default=4)
    ap.add_argument('--w2b2', type=int, default=4)
    ap.add_argument('--w2b3', type=int, default=4)
    ap.add_argument('--w2b3b', type=int, default=0)
    ap.add_argument('--w1_gap', type=int, default=0)
    ap.add_argument('--b1gap', type=int, default=1)
    ap.add_argument('--bgpad', type=int, default=3)
    ap.add_argument('--p2early', type=int, default=0)
    ap.add_argument('--rot', type=int, default=1)
    ap.add_argument('--kv_early', type=int, default=4)
    ap.add_argument('--nt_stage', action='store_true')
    ap.add_argument('--nt_w1', action='store_true')
    ap.add_argument('--codepf', type=int, default=1)
    ap.add_argument('--outsc', default='sc1')
    ap.add_argument('--kfirst', type=int, default=1)
    ap.add_argument('--early1', type=int, default=0)
    ap.add_argument('--gap2b', type=int, default=40)
    ap.add_argument('--tail4n', type=int, default=16)
    ap.add_argument('--hpf', type=int, default=20)
    ap.add_argument('--force_slow', action='store_true')
    o = ap.parse_args()
    if o.span: o.ts = True
    if o.outsc: o.outsc = ' ' + o.outsc
    if not o.xord: XORD[:] = list(range(32))
    g = Gen(o)
    s = g.build()
    open(o.o, 'w').write(s)
    if o.ts:
        import json; json.dump(g.tsnames, open(o.o + '.ts.json', 'w'))
    print(f'wrote {o.o}: {g.em.ninstr} instrs, {g.em.nops} nop states, {len(s)} bytes')
if __name__ == '__main__': main()
```

```python
import sys, struct, argparse
from emit import Em

NAME = "interleave_layers__linear_attn_block__dense_activation_relu__prompt"
def f2u(x): return struct.unpack('<I', struct.pack('<f', x))[0]

WS_EPOCH = 0
WS_HELLO = 1024
WS_FLAG = 4096
WS_MSG = 0x10000
WS_KT = 0x150000
WS_W1R = 0xC00000
WS_KTG = 0x1100000
WS_KT8 = 0x1000000
KC = 0x5000
WS_CS = 0x160000
WS_ST = 0x170000
WS_X = 0x200000
X2OFF = 0
WS_Q = 0x400000
WS_H = 0x600000
WS_DBG = 0x2000000
WS_SIZE = 0x4000000
MSG_B = 2560; KT_B = 17408; ACT_B = 131072; H_T = 86 * 1024; H_B = 4 * H_T
NONCE_K = 0x9E3779B1

sW, sG, sJ, sNonce = 's4', 's5', 's6', 's7'
SX, SQKV, SWO, SW1, SW2, SOUT, SWS = 's[8:11]', 's[12:15]', 's[16:19]', 's[20:23]', 's[24:27]', 's[28:31]', 's[32:35]'
sT, sT2, sWl, sSpin = 's52', 's53', 's54', 's55'
sGX, sGH, sG8K, sGKT, sG128 = 's56', 's57', 's58', 's59', 's60'
sQcol, sW1c0, sW1c2, sHks = 's61', 's62', 's63', 's64'
sC128, sHR, sStR = 's66', 's68', 's69'
sQR, sInv, sEps, s1em6, sLog2e = 's71', 's74', 's75', 's76', 's73'
sXrow, sJmsg, sMaskInv, sOutRow, sHello = 's77', 's78', 's85', 's80', 's81'
sEx = 's[82:83]'; sFx = 's84'
sTS = 86
sDelta, sDelta2 = 's88', 's[88:89]'
sLn2, sLn22 = 's90', 's[90:91]'
sXst, sStst, sQst = 's67', 's79', 's94'
sStM, sGXw = 's72', 's56'
sW1d = 's60'
sRot, sR, sFlag, sG256 = 's95', 's96', 's97', 's98'
sRot2, sLim4 = 's59', 's70'
sRed, sLine, sKTo, sFac = 's49', 's50', 's51', 's3'
sX0, sX1 = 's[100:101]', 's[0:1]'
sCsp = 's65'
sXm = [f's{36+i}' for i in range(8)]
sXl = ['s8', 's9', 's10', 's11', 's57', 's77', 's81', 's99']
sTab = ['s44', 's45', 's46', 's47']
sLo = 's[92:93]'
sTx, sTxn, sTh, sThn = 0, 1, 0, 1
sM0, sM1, sM3, sM4 = 's[36:37]', 's[38:39]', 's[40:41]', 's[44:45]'

vLane, vL16, vAX, vP = 'v0', 'v1', 'v2', 'v3'
vRR, vRW = 'v15', 'v18'
vTr = ['v4', 'v5', 'v6']
vDq, vD1, vDs, vS0, vS1, vS0w, vS1w = 'v7', 'v8', 'v9', 'v10', 'v11', 'v12', 'v14'
vStT, vPoll, vRl, vHi, vTid = 'v13', 'v15', 'v16', 'v17', 'v18'
CS = {'q': 'v19', 'k': 'v20', 'v': 'v21', 0: 'v22', 1: 'v23', 2: 'v34'}
AUX = 24
CB = 28
TMP = 35
BB = 40
MR = 56
ACC = 88
AF = 136
def v(i, n=1): return f'v{i}' if n == 1 else f'v[{i}:{i+n-1}]'
def a(i, n=1): return f'a{i}' if n == 1 else f'a[{i}:{i+n-1}]'
def Afrag(ks): return v(AF + 4 * ks, 4) if ks < 30 else a(248 + 4 * (ks - 30), 4)
RES = 240
W2A = 0; WOA = 176
vKT = 253
FW, FR, FO, FS, FB = 7, 11, 12, 14, 19
MF = 'v_mfma_f32_32x32x16_bf16'
DPPM = 'row_mask:0xf bank_mask:0xf'

QS = 32
S_ADDR = QS * 4096

def _ord4(c):
    pl = lambda nt: (0, 2, 1)[nt % 3] if nt < 33 else (nt - 33) % 2
    ms = sorted(range(21), key=lambda m: pl(2 * m + c))
    return ms + [21]
ORD4 = [_ord4(0), _ord4(1)]
XORD = [4 * m + k for m in range(8) for k in (0, 1)] + [4 * m + k for m in range(8) for k in (2, 3)]

DOC = """;
; One persistent launch, one workgroup (4 waves, 512 registers each) per CU.  Workgroup id -> group g (128 tokens) and column j.
; Phases per layer: LN+QKV (128x96 tile) | kv/z all-reduce | attention + wo (64x64, K split over waves) | LN + w1 + relu (128x96)
; | w2 (64x64, K split).  LayerNorm is applied as a rank-1 correction (mean x column sums, through the matrix pipe) and a per-row scale.
; wo / w2 stay in AGPRs, the k / v weight planes stay in LDS; activations move between workgroups in MFMA fragment order through d_ws.
; Hand-offs: per-launch nonce (from the epoch word in d_ws) on flags and messages; cleared tag bits validated on every fragment read.
; If the 16 workgroups of a group do not all report the same XCC id, the write-through (sc1) copy of the code is taken instead.
"""

class Side:
    def __init__(self, em): self.q = []; self.em = em
    def add(self, *items): self.q.extend(items)
    def run(self, k):
        while k > 0 and self.q:
            it = self.q.pop(0)
            if callable(it): it()
            else: self.em(it)
            k -= 1
    def flush(self): self.run(1 << 30); self.credit = 0
    credit = 0
    def clk(self, budget):
        self.credit = min(self.credit + budget, budget)
        while self.q and self.credit > 0:
            it = self.q.pop(0)
            if callable(it):
                it(); self.credit -= getattr(it, 'cost', 24)
            else:
                self.em(it)
                self.credit -= 56 if it.startswith('ds_write_b128') else 8 if it.startswith(('v_exp', 'v_rcp', 'v_rsq', 'v_mfma')) else 4

class Gen:
    def __init__(self, opt):
        self.o = opt; self.em = Em(); self.nts = 0; self.ncnt = 0; self.swin = None; self.lin = False
    def emit(self, items):
        for t in items: t() if callable(t) else self.em(t)

    def ts(self, name):
        if not self.o.ts or (self.o.span and name not in ('start', 'end')): return
        em = self.em
        i = self.nts; self.nts += 1
        assert i < 50
        em.force_wait(lg=0)
        em(f's_mov_b32 m0, s87'); em(f's_memtime s[{sTS}:{sTS+1}]'); em.force_wait(lg=0)
        em(f'v_writelane_b32 v39, s{sTS}, {i}'); em('s_mov_b32 s87, m0')
        self.tsnames[i] = name
        if name in ('kt', 'p3a', 'p4loop', 'p5a'):
            if name == 'kt' and self.ncnt == 0: em('s_mov_b32 s87, 0')
            em(f'v_writelane_b32 v39, s87, {50 + self.ncnt}'); self.ncnt += 1
    def dma(self, srd, voff, sbase, imm, quad, tag, nt=False, slot=None):
        em = self.em
        if slot is None: em(f's_add_u32 m0, {sWl}, {quad*4096}')
        else: em(f's_mov_b32 m0, {quad*4096 + slot*1024}')
        em(f's_add_u32 {sT}, {sbase}, {imm}')
        em(f'buffer_load_dwordx4 {voff}, {srd}, {sT} offen' + (' nt' if nt else '') + ' lds', tag=tag)
    def tr(self, dst, quad, slot, base=None):
        addr = quad * 4096 + slot * 1024
        b = (base or vTr)[addr >> 16]; off = addr & 0xFFFF
        return [f'ds_read_b64_tr_b16 {v(dst,2)}, {b} offset:{off}', f'ds_read_b64_tr_b16 {v(dst+2,2)}, {b} offset:{off+(256 if self.lin else 512)}']
    def wsload(self, dst, voff, sbase, imm, width=4, tag=None, off=0):
        em = self.em
        em(f's_add_u32 {sT}, {sbase}, {imm}')
        sfx = {1: 'dword', 2: 'dwordx2', 4: 'dwordx4'}[width]
        em(f'buffer_load_{sfx} {dst}, {voff}, {SWS}, {sT} offen' + (f' offset:{off}' if off else '') + ' sc1', tag=tag)
    def wsstore(self, src, voff, sbase, imm, width=4, tag='st', off=0, sc=None):
        em = self.em
        em(f's_add_u32 {sT}, {sbase}, {imm}')
        sfx = {1: 'dword', 2: 'dwordx2', 4: 'dwordx4'}[width]
        sc = self.sc if sc is None else sc
        em(f'buffer_store_{sfx} {src}, {voff}, {SWS}, {sT} offen' + (f' offset:{off}' if off else '') + sc, tag=tag)
    def barrier(self):
        self.em.wait_lg(0); self.em('s_barrier')
    def only_wave(self, w, f, invert=False):
        em = self.em
        L = em.newlabel('Lw')
        em(f's_cmp_{"eq" if invert else "lg"}_u32 {sW}, {w}'); em(f's_cbranch_scc1 {L}')
        em.cond_begin(); f(); em.cond_end()
        em.label(L)
    def spin_tail(self, L):
        em = self.em
        em(f's_sub_u32 {sSpin}, {sSpin}, 1'); em(f's_cbranch_scc0 {L}'); em(f's_mov_b32 {sSpin}, 0')
    def group_sync(self, p, pre=None, mid=None, tags=('st',), bar=True, skipif=None, modeB=False):
        em = self.em
        vt = v(TMP)
        mode = 'B' if (skipif or modeB) else self.o.sync
        if pre: pre()
        def drain():
            if tags is None: em.force_wait(vm=0)
            else: em.wait_vm_tag(tags)
            self.ts(f'drain{p}')
        def sig(wait=True):
            em(f'v_mov_b32 {vt}, {sNonce}')
            em(f's_add_u32 {sT2}, {sFlag}, {p*4096}')
            if wait: drain()
            em(f's_mov_b64 {sEx}, exec'); em('s_mov_b64 exec, 1')
            em(f'buffer_store_dword {vt}, off, {SWS}, {sT2}' + self.sc, tag='flag')
            em(f's_mov_b64 exec, {sEx}')
        def poll():
            L = em.newlabel('Lpoll'); D = em.newlabel('Lpd')
            em(f's_add_u32 {sT2}, {sG256}, {WS_FLAG + p*4096}')
            if mode == 'B': em(f'v_lshlrev_b32 {v(TMP+1)}, 2, {vLane}')
            else: em(f'v_lshlrev_b32 {v(TMP+1)}, 2, {vPoll}')
            em.label(L)
            em(f'buffer_load_dword {vt}, {v(TMP+1)}, {SWS}, {sT2} offen sc1')
            em.force_wait(vm=0)
            em(f'v_cmp_ne_u32 vcc, {sNonce}, {vt}')
            em(f's_cbranch_vccz {D}')
            self.spin_tail(L)
            em.label(D)
        if mode == 'B':
            if skipif:
                L = em.newlabel('Lsk')
                em(f's_cmp_eq_u32 {skipif}, 0'); em(f's_cbranch_scc1 {L}')
                em.cond_begin(); sig(); em.cond_end()
                em.label(L)
            else: sig()
            if mid: mid()
            if bar: self.barrier()
            poll()
        else:
            drain(); self.barrier()
            self.only_wave(0, lambda: sig(False))
            if mid: mid()
            if mode == 'A':
                self.only_wave(0, poll); self.barrier()
            else:
                if bar and mid: self.barrier()
                poll()
        self.ts(f'sync{p}')
    def rot(self, m, stride, base):
        em = self.em
        em(f's_add_u32 {sR}, {sRot}, {m}'); em(f's_and_b32 {sR}, {sR}, 7'); em(f's_mul_i32 {sR}, {sR}, {stride}'); em(f's_add_u32 {sR}, {sR}, {base}')
    def qkv_dma(self, planes, m, tag):
        self.rot(m, 64 * 3072, sQcol)
        for p in planes: self.dma(SQKV, vDq, sR, {'q': 0, 'k': 1024, 'v': 2048}[p], self.pl[p][m], tag)

    def prologue(self):
        em = self.em; o = self.o
        if o.pad and o.pad0: em('s_memrealtime s[86:87]')
        em('s_cmp_ge_u32 s2, 256'); em('s_cbranch_scc1 L_end')
        em('s_load_dwordx4 s[36:39], s[0:1], 0'); em('s_load_dwordx2 s[40:41], s[0:1], 16')
        em('s_load_dwordx4 s[44:47], s[0:1], 32'); em('s_load_dwordx2 s[48:49], s[0:1], 48'); em('s_load_dwordx2 s[50:51], s[0:1], 64')
        if o.ts:
            self.tsnames = {}
            em('v_mov_b32 v39, 0')
        em(f'v_mov_b32 {vTid}, v0')
        em(f'v_lshrrev_b32 v24, 6, v0'); em(f'v_and_b32 {vLane}, 63, v0')
        em(f'v_readfirstlane_b32 {sW}, v24')
        em(f's_and_b32 {sG}, s2, 7'); em(f's_lshl_b32 {sG}, {sG}, 1'); em(f's_lshr_b32 {sT}, s2, 7'); em(f's_add_u32 {sG}, {sG}, {sT}')
        em(f's_lshr_b32 {sJ}, s2, 3'); em(f's_and_b32 {sJ}, {sJ}, 15')
        em(f's_lshl_b32 {sWl}, {sW}, 10')
        em(f's_lshl_b32 {sXrow}, {sG}, 17')
        em(f's_lshl_b32 {sQcol}, {sJ}, 6')
        em(f's_and_b32 {sRot}, {sG}, 1'); em(f's_lshl_b32 {sRot}, {sRot}, 1'); em(f's_and_b32 {sT}, {sJ}, 1'); em(f's_add_u32 {sRot}, {sRot}, {sT}'); em(f's_lshl_b32 {sRot}, {sRot}, 1')
        if o.rot == 1: em(f's_lshr_b32 {sT}, {sJ}, 1'); em(f's_add_u32 {sRot}, {sRot}, {sT}')
        if o.rot in (1, 3): em(f's_add_u32 {sRot}, {sRot}, s2')
        if not o.rot: em(f's_mov_b32 {sRot}, 0')
        self.pl = {'k': list(range(0, 8)), 'v': list(range(8, 16)), 'q': list(range(16, 24))}
        em(f'v_lshlrev_b32 {vL16}, 4, {vLane}')
        em(f'v_lshrrev_b32 v27, 3, {vLane}'); em(f'v_and_b32 v28, 7, {vLane}')
        em(f'v_lshrrev_b32 v29, 1, v27'); em('v_xor_b32 v28, v28, v29'); em('v_lshlrev_b32 v28, 4, v28')
        em(f's_lshl_b32 {sT}, {sW}, 5'); em(f'v_add_u32 v27, {sT}, v27'); em('v_lshlrev_b32 v27, 10, v27')
        em('v_add_u32 v25, v27, v28'); em('v_xor_b32 v26, 64, v25')
        em(f'v_lshrrev_b32 v27, 2, {vLane}'); em(f's_lshl_b32 {sT}, {sW}, 4'); em(f'v_add_u32 v27, {sT}, v27')
        em(f'v_and_b32 v28, 3, {vLane}'); em('v_lshlrev_b32 v28, 4, v28')
        em(f'v_mul_u32_u24 {vDq}, 3072, v27'); em(f'v_add_u32 {vDq}, {vDq}, v28')
        em(f'v_mul_u32_u24 {vD1}, 2752, v27'); em(f'v_add_u32 {vD1}, {vD1}, v28')
        em.force_wait(lg=0)
        if o.pad and o.pad0: em('v_writelane_b32 v39, s86, 0')
        if o.ts:
            em('s_memrealtime s[86:87]'); em.force_wait(lg=0); em('v_writelane_b32 v39, s86, 62')
        if o.pad and not o.pad0:
            em('s_memrealtime s[86:87]'); em.force_wait(lg=0); em('v_writelane_b32 v39, s86, 0')
        self.ts('start')
        def srd(s, lo, nb):
            em(f's_mov_b32 s{s}, s{lo}'); em(f's_mov_b32 s{s+1}, s{lo+1}'); em(f's_mov_b32 s{s+2}, {nb}'); em(f's_mov_b32 s{s+3}, 0x00020000')
        srd(8, 36, 2048 * 1024); srd(32, 50, WS_SIZE); srd(12, 38, 512 * 3072)
        if o.tlb:
            em(f's_lshr_b32 {sT}, s2, 3'); em(f's_lshl_b32 {sT}, {sT}, 2'); em(f's_add_u32 {sT}, {sT}, {sW}'); em(f's_and_b32 {sT}, {sT}, 15')
            em('s_mov_b64 s[86:87], s[50:51]'); em(f's_lshl_b32 {sT2}, {sT}, 21')
            for k, pr in ((8, 's[40:41]'), (9, 's[44:45]'), (10, 's[46:47]'), (11, 's[48:49]'), (12, 's[36:37]'), (13, 's[38:39]')):
                em(f's_cmp_eq_u32 {sT}, {k}'); em(f's_cselect_b64 s[86:87], {pr}, s[86:87]')
            em(f's_cmp_ge_u32 {sT}, 6'); em(f's_cselect_b32 {sT2}, 0, {sT2}')
            em(f's_load_dword s88, s[86:87], {sT2}')
        L0 = em.newlabel('Lo'); L1 = em.newlabel('Lo')
        if o.par:
            em(f's_bitcmp1_b32 {sJ}, 0'); em(f's_cbranch_scc1 {L0}')
            it = self.chunk_items(0)
            snap = list(em.vmq)
            self.emit(it); em(f's_branch {L1}')
            em.label(L0)
            em.vmq = snap
            it = self.chunk_items(0)
            self.emit(it[4:] + it[:4])
            em.label(L1)
        else: self.chunk_dma(0)
        if o.tq:
            em(f'v_lshlrev_b32 v30, 7, {vLane}'); em(f's_lshl_b32 {sT2}, s2, 2'); em(f's_add_u32 {sT2}, {sT2}, {sW}'); em(f's_mul_i32 {sT2}, {sT2}, {12*128}')
            em('s_mov_b64 exec, 0xfff')
            em(f'buffer_load_dword a100, v30, {SQKV}, {sT2} offen', tag='touch')
            if o.tq > 1:
                em(f's_lshl_b32 {sT2}, {sJ}, 2'); em(f's_add_u32 {sT2}, {sT2}, {sW}'); em(f's_lshl_b32 {sT2}, {sT2}, 11'); em(f's_add_u32 {sT2}, {sT2}, {sXrow}')
                em('s_mov_b64 exec, 0xffff')
                em(f'buffer_load_dword a101, v30, {SX}, {sT2} offen', tag='touch')
            em('s_mov_b64 exec, -1')
        em(f'buffer_load_dword v24, off, {SWS}, 0 sc1', tag='epoch')
        if o.ts2: self.ts('iss0')
        c1 = self.chunk_items(1)
        self.emit(c1[:o.c1a]); self.c1rest = c1[o.c1a:]
        if o.ts2: self.ts('iss1')
        if o.codepf:
            em('s_getpc_b64 s[42:43]'); em.label('L_pcx')
            em(f's_lshr_b32 {sT}, s2, 3'); em(f's_lshl_b32 {sT}, {sT}, 2'); em(f's_add_u32 {sT}, {sT}, {sW}'); em(f's_lshl_b32 {sT}, {sT}, 10')
            em(f's_min_u32 {sT}, {sT}, L_slow-L_pcx-1024')
            em(f'v_add_u32 v30, {sT}, {vL16}')
            em(f'global_load_dwordx4 a[96:99], v30, s[42:43]', tag='codepf')
        srd(16, 40, 512 * 1024); srd(20, 44, 512 * 2752); srd(24, 46, 1376 * 1024); srd(28, 48, 2048 * 1024)
        em(f's_mov_b32 {sSpin}, {o.spin}')
        em(f's_mul_i32 {sGH}, {sG}, {H_B}'); em(f's_add_u32 {sGH}, {sGH}, {WS_H}')
        em(f's_lshl_b32 {sG8K}, {sG}, 13'); em(f's_add_u32 {sG8K}, {sG8K}, {WS_ST}')
        em(f's_lshl_b32 {sG128}, {sG}, 7'); em(f's_lshl_b32 {sG256}, {sG}, 8')
        em(f's_lshl_b32 {sFlag}, {sJ}, 2'); em(f's_add_u32 {sFlag}, {sFlag}, {sW}'); em(f's_lshl_b32 {sFlag}, {sFlag}, 2'); em(f's_add_u32 {sFlag}, {sFlag}, {sG256}'); em(f's_add_u32 {sFlag}, {sFlag}, {WS_FLAG}')
        em(f's_mul_i32 {sT}, {sJ}, 3'); em(f's_lshl_b32 {sT2}, {sJ}, 1'); em(f's_add_u32 {sT2}, {sT2}, 11')
        em(f's_cmp_lt_u32 {sJ}, 11'); em(f's_cselect_b32 {sT}, {sT}, {sT2}');
        em(f's_cselect_b32 {sT2}, 128, 64')
        em(f's_lshl_b32 {sW1c0}, {sT}, 6'); em(f's_add_u32 {sW1c2}, {sW1c0}, {sT2}')
        em(f's_lshl_b32 {sHks}, {sT}, 11'); em(f's_add_u32 {sHks}, {sHks}, {sGH}')
        em(f's_mul_i32 {sT}, {sW}, {H_T}'); em(f's_add_u32 {sHks}, {sHks}, {sT}')
        em(f's_and_b32 {sC128}, {sJ}, 7'); em(f's_lshl_b32 {sC128}, {sC128}, 7')
        em(f's_lshr_b32 {sT}, {sJ}, 3')
        em(f's_lshl_b32 {sT2}, {sT}, 16'); em(f's_add_u32 {sT2}, {sT2}, {sXrow}')
        em(f's_add_u32 {sOutRow}, {sT2}, {sC128}')
        em(f's_add_u32 {sQR}, {sT2}, {sWl}'); em(f's_add_u32 {sQR}, {sQR}, {WS_Q}')
        em(f's_lshl_b32 {sXst}, {sC128}, 5'); em(f's_add_u32 {sXst}, {sXst}, {sT2}'); em(f's_add_u32 {sXst}, {sXst}, {WS_X}')
        em(f's_mul_i32 {sHR}, {sT}, {2*H_T}'); em(f's_add_u32 {sHR}, {sHR}, {sGH}'); em(f's_add_u32 {sHR}, {sHR}, {sWl}')
        em(f's_lshl_b32 {sStR}, {sT}, 12'); em(f's_add_u32 {sStR}, {sStR}, {sG8K}')
        em(f's_lshr_b32 {sT}, {sW}, 1'); em(f's_and_b32 {sT2}, {sW}, 1'); em(f's_lshl_b32 {sT2}, {sT2}, 8')
        em(f's_lshl_b32 {sR}, {sT}, 15'); em(f's_add_u32 {sXst}, {sXst}, {sR}'); em(f's_add_u32 {sXst}, {sXst}, {sT2}')
        em(f's_lshl_b32 {sR}, {sT}, 11'); em(f's_add_u32 {sStM}, {sStR}, {sR}'); em(f's_add_u32 {sStM}, {sStM}, {sT2}')
        em(f's_and_b32 {sT}, {sJ}, 4'); em(f's_lshl_b32 {sT}, {sT}, 7'); em(f's_and_b32 {sT2}, {sJ}, 3'); em(f's_lshl_b32 {sT2}, {sT2}, 2')
        em(f's_add_u32 {sStst}, {sT}, {sT2}'); em(f's_add_u32 {sStst}, {sStst}, {sStM}')
        em(f's_lshl_b32 {sT}, {sW}, 15'); em(f's_add_u32 {sT}, {sT}, {sXrow}'); em(f's_add_u32 {sGXw}, {sT}, {WS_X}')
        em(f's_lshl_b32 {sQst}, {sJ}, 11'); em(f's_add_u32 {sQst}, {sQst}, {sT}'); em(f's_add_u32 {sQst}, {sQst}, {WS_Q}')
        em('s_mov_b32 s92, -1'); em('s_mov_b32 s93, 0')
        em(f's_cmp_ge_u32 {sW}, 2'); em(f's_cselect_b32 {sLim4}, 20, 21'); em(f's_lshl_b32 {sLim4}, {sLim4}, 12')
        em(f's_lshr_b32 {sT}, {sJ}, 3'); em(f's_and_b32 {sT2}, {sG}, 1'); em(f's_lshl_b32 {sT2}, {sT2}, 1'); em(f's_add_u32 {sT}, {sT}, {sT2}')
        em(f's_and_b32 {sT2}, s2, 7')
        em(f's_lshl_b32 {sRot2}, {sT}, 1'); em(f's_add_u32 {sRot2}, {sRot2}, {sT2}')
        if not o.rot2: em(f's_mov_b32 {sRot2}, 0')
        em(f's_mul_i32 {sJmsg}, {sJ}, {16*MSG_B}'); em(f's_add_u32 {sJmsg}, {sJmsg}, {WS_MSG}')
        if o.tlb: em.force_wait(lg=0)
        em(f's_mov_b32 {sDelta}, {f2u(1e-6*1.4426950408889634):#x}'); em(f's_mov_b32 {sLn2}, {f2u(0.6931471805599453):#x}')
        em('s_mov_b32 s89, s88'); em('s_mov_b32 s91, s90')
        em(f's_mov_b32 {sLog2e}, {f2u(1.4426950408889634):#x}'); em(f's_mov_b32 {sInv}, {f2u(1/512):#x}')
        em(f's_mov_b32 {sEps}, {f2u(1e-5):#x}'); em(f's_mov_b32 {s1em6}, {f2u(1e-6):#x}')
        em(f's_mov_b32 {sMaskInv}, 0xffffff00')
        em(f'v_lshrrev_b32 {vHi}, 5, {vLane}')
        em(f'v_lshrrev_b32 v27, 4, {vLane}'); em('v_lshlrev_b32 v27, 9, v27'); em(f'v_and_b32 v28, 15, {vLane}'); em(f'v_lshl_add_u32 {vP}, v28, 4, v27')
        em(f'v_bfe_u32 v27, {vLane}, 2, 2'); em(f'v_lshl_add_u32 v27, {vHi}, 2, v27')
        em(f'v_bfe_u32 v28, {vLane}, 4, 1'); em('v_lshlrev_b32 v28, 5, v28')
        em(f'v_and_b32 v29, 3, {vLane}'); em('v_lshl_add_u32 v28, v29, 3, v28')
        em(f'v_lshl_add_u32 {vTr[0]}, v27, 6, v28')
        em(f'v_lshl_add_u32 {vTr[0]}, {vHi}, 8, {vTr[0]}')
        em(f'v_add_u32 {vTr[1]}, 0x10000, {vTr[0]}'); em(f'v_add_u32 {vTr[2]}, 0x20000, {vTr[0]}')
        em(f'v_bfe_u32 v29, {vLane}, 3, 1'); em('v_lshl_add_u32 v28, v29, 6, v28')
        em(f'v_lshl_add_u32 {vS0}, v27, 7, v28'); em(f'v_add_u32 {vS0}, {sWl}, {vS0}'); em(f'v_xor_b32 {vS1}, 64, {vS0}')
        em(f'v_lshrrev_b32 v27, 3, {vLane}'); em(f'v_and_b32 v28, 7, {vLane}')
        em(f'v_bfe_u32 v29, {vLane}, 4, 1'); em('v_lshlrev_b32 v29, 2, v29'); em('v_xor_b32 v28, v28, v29'); em('v_lshlrev_b32 v28, 4, v28')
        em(f'v_lshl_add_u32 {vDs}, v27, 10, v28'); em(f's_lshl_b32 {sT}, {sW}, 14'); em(f'v_add_u32 {vDs}, {sT}, {vDs}')
        em(f'v_lshl_add_u32 v27, {vHi}, 9, {vL16}'); em(f's_lshl_b32 {sT}, {sW}, 11'); em(f'v_add_u32 {vStT}, {sT}, v27')
        em(f'v_and_b32 {vPoll}, 15, {vLane}'); em(f'v_lshlrev_b32 {vPoll}, 2, {vPoll}')

    def nonce_hello(self):
        em = self.em; o = self.o
        if o.ts2: self.ts('setup')
        em(f'v_readfirstlane_b32 {sNonce}, v24')
        if o.ts2: self.ts('epoch')
        em(f's_add_u32 {sNonce}, {sNonce}, {NONCE_K:#x}')
        em(f's_getreg_b32 {sHello}, hwreg(HW_REG_XCC_ID)'); em(f's_and_b32 {sHello}, {sHello}, 15')
        em(f's_add_u32 {sHello}, {sHello}, {sNonce}'); em(f's_add_u32 {sHello}, {sHello}, 1')
        def hello():
            em(f's_mov_b64 {sEx}, exec'); em('s_mov_b64 exec, 1')
            em(f'v_mov_b32 v24, {sHello}')
            em(f's_lshl_b32 {sT2}, {sJ}, 2'); em(f's_add_u32 {sT2}, {sT2}, {sG128}'); em(f's_add_u32 {sT2}, {sT2}, {WS_HELLO}')
            em(f'buffer_store_dword v24, off, {SWS}, {sT2} sc1')
            em(f's_mov_b64 exec, {sEx}')
        self.only_wave(0, hello)

    def chunk_items(self, c):
        it = []
        def x(rb8):
            if rb8 == 0: self.rot(c, 128, sXrow); self.em(f's_mov_b32 s99, {sR}')
            self.dma(SX, 'v25' if rb8 % 2 == 0 else 'v26', 's99', rb8 * 8192, 24 + 4 * (c % self.o.ring) + rb8, f'c{c}')
        for rb8 in range(4): it.append(lambda rb8=rb8: x(rb8))
        def w(p):
            if p == 'k': self.rot(c, 64 * 3072, sQcol); self.em(f's_mov_b32 s84, {sR}')
            self.dma(SQKV, vDq, 's84', {'k': 1024, 'v': 2048}[p], self.pl[p][c], f'c{c}')
        it += [lambda: w('k'), lambda: w('v')]
        return it
    def chunk_dma(self, c): self.emit(self.chunk_items(c))

    def touch_q(self, vt, dst):
        em = self.em
        em(f'v_lshlrev_b32 {vt}, 7, {vLane}')
        em(f's_mov_b64 {sEx}, exec')
        if self.o.qpw:
            for k in range(2): em(f'buffer_store_dwordx4 {v(MR+8,4)}, {vL16}, {SWS}, {sQst} offen offset:{k*1024}' + ('' if self.o.qpw == 2 else ' sc1'), tag='rst')
        else:
            em('s_mov_b64 exec, 0xffff')
            em(f'buffer_load_dword {v(dst)}, {vt}, {SWS}, {sQst} offen sc1', tag='touch')
        em(f'v_lshlrev_b32 {vt}, 12, {vLane}')
        em('s_mov_b64 exec, 0x11')
        em(f'buffer_load_dword {v(dst+1)}, {vt}, {SWS}, {sFlag} offen sc1', tag='touch')
        em(f's_mov_b64 exec, {sEx}')
    def touch_w(self, vt, dst):
        em = self.em
        sh = 7 + self.o.twsh; n = -(-11008 * 128 // (1024 << sh)); n0 = max(1, 4 >> self.o.twsh)
        em(f'v_lshlrev_b32 {vt}, {sh}, {vLane}')
        em(f's_lshl_b32 {sT2}, s2, 2'); em(f's_add_u32 {sT2}, {sT2}, {sW}'); em(f's_mul_i32 {sT2}, {sT2}, {n << sh}')
        em(f's_mov_b64 {sEx}, exec'); em(f's_mov_b64 exec, {(1 << n) - 1:#x}')
        if not self.o.w1r: em(f'buffer_load_dword {v(dst)}, {vt}, {SW1}, {sT2} offen', tag='touch')
        em(f'buffer_load_dword {v(dst+1)}, {vt}, {SW2}, {sT2} offen', tag='touch')
        em(f's_lshl_b32 {sT2}, s2, 2'); em(f's_add_u32 {sT2}, {sT2}, {sW}'); em(f's_lshl_b32 {sT2}, {sT2}, 9')
        em(f's_mov_b64 exec, {(1 << n0) - 1}')
        em(f'buffer_load_dword {v(dst+2)}, {vt}, {SWO}, {sT2} offen', tag='touch')
        em(f's_mov_b64 exec, {sEx}')
    def reducer_setup(self):
        em = self.em
        em(f's_lshr_b32 {sT}, {sG}, 3'); em(f's_cmp_eq_u32 {sT}, {sW}'); em(f's_cselect_b32 {sRed}, 1, 0')
        em(f's_lshl_b32 {sLine}, {sG}, 7')
        em(f's_mul_i32 {sKTo}, {sT}, 544'); em(f's_and_b32 {sT2}, {sG}, 7'); em(f's_lshl_b32 {sT2}, {sT2}, 6'); em(f's_add_u32 {sKTo}, {sKTo}, {sT2}')
        em(f's_mov_b32 {sFac}, {sLn2}')
        L = em.newlabel('Lz')
        em(f's_cmp_lg_u32 {sW}, 2'); em(f's_cbranch_scc1 {L}')
        em(f's_cmp_eq_u32 {sG}, {sJ}'); em(f's_cselect_b32 {sRed}, 1, 0')
        em(f's_mov_b32 {sLine}, 2048'); em(f's_mov_b32 {sKTo}, 512'); em(f's_mov_b32 {sFac}, 1.0')
        em.label(L)
        em(f's_sub_u32 {sCsp}, {sG}, {sJ}'); em(f's_sub_u32 {sCsp}, {sCsp}, 1'); em(f's_and_b32 {sCsp}, {sCsp}, 15')
        em(f's_cmp_eq_u32 {sW}, 3'); em(f's_cselect_b32 {sCsp}, {sCsp}, 15')
        em(f's_mul_i32 {sT2}, {sJ}, 1088'); em(f's_add_u32 {sKTo}, {sKTo}, {sT2}'); em(f's_add_u32 {sKTo}, {sKTo}, {WS_KT8 if self.o.rep8 else WS_KT}')
        em(f's_add_u32 {sLine}, {sLine}, {sJmsg}')
        em(f's_and_b32 {sT2}, {sG}, 7'); em(f's_lshl_b32 {sT2}, {sT2}, 3'); em(f's_mov_b64 {sX0}, 0xff'); em(f's_lshl_b64 {sX0}, {sX0}, {sT2}'); em(f's_not_b64 {sX0}, {sX0}')
        em(f's_cmp_eq_u32 {sT}, 0'); em(f's_cselect_b64 {sX1}, -1, {sX0}'); em(f's_cselect_b64 {sX0}, {sX0}, -1')
    def reducer_setup_c(self):
        em = self.em
        em(f's_mul_i32 {sRed}, {sG}, {KT_B}'); em(f's_add_u32 {sRed}, {sRed}, {WS_KTG}')
        em(f's_mul_i32 {sKTo}, {sJ}, 1088'); em(f's_add_u32 {sLine}, {sKTo}, {sRed}')
        em(f's_lshr_b32 {sT}, {sW}, 1'); em(f's_mul_i32 {sT}, {sT}, 544'); em(f's_and_b32 {sT2}, {sW}, 1'); em(f's_lshl_b32 {sT2}, {sT2}, 8')
        em(f's_add_u32 {sKTo}, {sLine}, {sT}'); em(f's_add_u32 {sKTo}, {sKTo}, {sT2}')
        em(f's_and_b32 {sT2}, {sG}, 3'); em(f's_lshl_b32 {sT2}, {sT2}, 4'); em(f's_mov_b64 {sX0}, 0xffff'); em(f's_lshl_b64 {sX0}, {sX0}, {sT2}'); em(f's_not_b64 {sX0}, {sX0}')
        em(f's_and_b32 {sT2}, {sG}, 7'); em(f's_lshl_b32 {sT2}, {sT2}, 3'); em(f's_mov_b64 {sX1}, 0xff'); em(f's_lshl_b64 {sX1}, {sX1}, {sT2}'); em(f's_not_b64 {sX1}, {sX1}')
        em(f's_sub_u32 {sCsp}, {sG}, {sJ}'); em(f's_sub_u32 {sCsp}, {sCsp}, 1'); em(f's_and_b32 {sCsp}, {sCsp}, 15')
        em(f's_cmp_eq_u32 {sW}, 2'); em(f's_cselect_b32 {sCsp}, {sCsp}, 15')
    def kt_voff(self, d, t):
        em = self.em
        em(f'v_and_b32 {d}, 7, {vLane}'); em(f'v_lshlrev_b32 {d}, 3, {d}'); em(f'v_lshl_add_u32 {d}, {vHi}, 2, {d}')
        em(f's_cmp_eq_u32 {sW}, {3 if self.o.xc else 2}'); em(f's_cselect_b32 {sT2}, 128, 0'); em(f'v_and_b32 {t}, 4, {vLane}'); em(f'v_mad_u32_u24 {d}, {t}, {sT2}, {d}')
        if self.o.rep8:
            em(f'v_bfe_u32 {t}, {vLane}, 3, 2'); em(f's_movk_i32 {sT2}, {KC:#x}'); em(f'v_mad_u32_u24 {d}, {t}, {sT2}, {d}')
    def resets(self):
        em = self.em
        t0, D = v(MR + 24), MR + 28
        L = em.newlabel('Lrs')
        if self.o.xc: em(f's_branch {L}')
        em(f's_cmp_eq_u32 {sRed}, 0'); em(f's_cbranch_scc1 {L}')
        em.cond_begin()
        self.kt_voff(t0, v(D)); em(f'v_mov_b32 {v(D)}, -1')
        if self.o.rep8:
            for k in range(4): self.wsstore(v(D), t0, sKTo, k * 4 * KC, width=1, sc=' sc1', tag='rst')
        else:
            em('s_mov_b32 exec_lo, 0xff'); em('s_mov_b32 exec_hi, 0xff')
            for l in range(2): self.wsstore(v(D), t0, sKTo, l * 0x8000, width=1, sc=' sc1', tag='rst')
        em('s_mov_b64 exec, -1')
        em.cond_end()
        em.label(L)
        L = em.newlabel('Lrc')
        em(f's_cmp_ge_u32 {sCsp}, 3'); em(f's_cbranch_scc1 {L}')
        em.cond_begin()
        em(f'v_lshlrev_b32 {t0}, 2, {vLane}'); em(f'v_mov_b32 {v(D)}, -1')
        em(f's_mul_i32 {sT2}, {sJ}, 384'); em(f's_lshl_b32 {sR}, {sCsp}, 7'); em(f's_add_u32 {sT2}, {sT2}, {sR}')
        em('s_mov_b32 exec_hi, 0')
        self.wsstore(v(D), t0, sT2, WS_CS, width=1, sc=' sc1', tag='rst')
        em('s_mov_b64 exec, -1')
        em.cond_end()
        em.label(L)
        def msg():
            em(f'v_lshlrev_b32 {t0}, 4, {vTid}'); em(f's_not_b32 {sT2}, {sNonce}')
            for r in range(4): em(f'v_mov_b32 {v(D+r)}, {sT2}')
            em(f'v_cmp_gt_u32 vcc, 136, {vTid}'); em(f's_and_saveexec_b64 {sEx}, vcc')
            em(f's_mul_i32 {sT2}, {sG}, {MSG_B}'); em(f's_add_u32 {sT2}, {sT2}, {sJmsg}')
            for l in range(2): self.wsstore(v(D, 4), t0, sT2, l * 256 * MSG_B, sc=' sc1', tag='rst')
            em(f's_mov_b64 exec, {sEx}')
        if self.o.prewrite: self.only_wave(3, msg, invert=True)
    def reset_items(self, D, which):
        em = self.em
        it = [f'v_mov_b32 {v(D+r)}, 0' for r in range(4)]
        if 'rst' in self.o.abl: which = 'x'
        rsc = {'x': ' sc1' if 'x' in self.o.rsc else None, 'h': ' sc1' if 'h' in self.o.rsc else None}
        def x():
            em(f's_and_b32 {sT2}, {sW}, 1'); em(f's_mul_i32 {sT2}, {sT2}, 1792'); em(f's_add_u32 {sT2}, {sT2}, {sXst}')
            self.wsstore(v(D, 4), vL16, sT2, 0, tag='rst', sc=rsc['x']); self.wsstore(v(D, 4), vL16, sT2, 0, tag='rst', off=1024, sc=rsc['x'])
        if 'x' in which: it.append(x)
        def h(p):
            self.wsstore(v(D, 4), vL16, sHks, p * 2048, tag='rst', sc=rsc['h']); self.wsstore(v(D, 4), vL16, sHks, p * 2048, tag='rst', off=1024, sc=rsc['h'])
        if 'h' in which: it += [lambda: h(0), lambda: h(1)]
        def h2():
            L = em.newlabel('Lr3')
            em(f's_cmp_ge_u32 {sJ}, 11'); em(f's_cbranch_scc1 {L}')
            em.cond_begin(); h(2); em.cond_end()
            em.label(L)
        if 'h' in which: it.append(h2)
        def st():
            em(f'v_and_b32 {v(D+4)}, 512, {vP}'); em(f'v_add_u32 {v(D+4)}, {v(D+4)}, {vP}')
            em('s_mov_b32 exec_hi, 0')
            for i in range(3): self.wsstore(v(D), v(D + 4), sStst, i * 16 * 8192, width=1, tag='rst')
            em('s_mov_b64 exec, -1')
        if 'x' in which: it.append(st)
        return it

    def check(self, regs, reload, tmp=None, split=False, kind='sent', tag=None, again=None):
        em = self.em
        if self.o.nochk and split and kind != 'h': return lambda: None
        F = em.newlabel('Lfix'); R = em.newlabel('Lret'); G_ = em.newlabel('Lok')
        dst = 'vcc' if split else sEx
        def test(e):
            r = regs[0]
            if r.startswith('a'): e(f'v_accvgpr_read_b32 {tmp}, {r}'); r = tmp
            if kind == 'sent':
                rest = list(regs)
                e(f'v_max_u32 {tmp}, {rest[0]}, {rest[1]}'); rest = rest[2:]
                while rest:
                    e(f'v_max3_u32 {tmp}, {rest[0]}, {rest[1]}, {tmp}'); rest = rest[2:]
                e(f'v_cmp_eq_u32 {dst}, -1, {tmp}')
            elif kind == 'n6':
                e(f'v_xor_b32 {tmp}, {regs[0]}, {tag}')
                for q in regs[1:]: e(f'v_bitop3_b32 {tmp}, {q}, {tag}, {tmp} bitop3:0xbe')
                e(f'v_and_b32 {tmp}, 63, {tmp}'); e(f'v_cmp_ne_u32 {dst}, 0, {tmp}')
            elif kind == 'h':
                if tag:
                    for q in regs: e(f'v_xor_b32 {q}, 0x80000000, {q}')
                if len(regs) == 2: e(f'v_or_b32 {tmp}, {regs[0]}, {regs[1]}'); r = tmp
                e(f'v_cmp_gt_i32 {dst}, 0, {r}')
            elif len(regs) <= 2:
                r1 = regs[-1]
                if r1.startswith('a'):
                    e(f'v_lshlrev_b32 {tmp}, 31, {tmp}'); e(f'v_cmp_{"eq" if tag else "ne"}_u32 {sEx}, 0, {tmp}')
                    e(f'v_accvgpr_read_b32 {tmp}, {r1}'); e(f'v_lshlrev_b32 {tmp}, 31, {tmp}'); e(f'v_cmp_{"eq" if tag else "ne"}_u32 {dst}, 0, {tmp}')
                    e('s_nop 1'); e(f's_or_b64 vcc, vcc, {sEx}')
                else:
                    e(f'v_bitop3_b32 {tmp}, {r}, {r1}, 1 bitop3:{0x80 if tag else 0xa8:#x}'); e(f'v_cmp_{"eq" if tag else "ne"}_u32 {dst}, 0, {tmp}')
            else:
                assert tag == 1
                rest = list(regs)
                e(f'v_and_b32 {tmp}, {rest[0]}, {rest[1]}'); rest = rest[2:]
                while rest:
                    e(f'v_bitop3_b32 {tmp}, {rest[0]}, {rest[1]}, {tmp} bitop3:0x80'); rest = rest[2:]
                e(f'v_and_b32 {tmp}, 1, {tmp}'); e(f'v_cmp_eq_u32 {dst}, 0, {tmp}')
        test(em)
        def branch():
            if split: em(f's_cbranch_vccnz {F}')
            else: em(f's_cmp_lg_u64 {sEx}, 0'); em(f's_cbranch_scc1 {F}')
            em.label(R)
            out = [F + ':']
            e = lambda t, tag=None: out.append('    ' + t)
            if self.o.ts and not self.o.span: e('s_add_u32 s87, s87, 1')
            def rep():
                for p in em.vmq:
                    if p.tag == 'A': again(e, p)
                    else: e(f's_add_u32 {sFx}, {sFlag}, {8 * 4096}'); e(f'buffer_store_dword {tmp}, off, {SWS}, {sFx}')
            reload(e)
            if again and self.o.fixmode: rep(); e(f's_waitcnt vmcnt({len(em.vmq)})')
            else: e('s_waitcnt vmcnt(0)')
            test(e)
            if split: e(f's_cbranch_vccz {G_}')
            else: e('s_nop 0'); e(f's_cmp_eq_u64 {sEx}, 0'); e(f's_cbranch_scc1 {G_}')
            e(f's_sub_u32 {sSpin}, {sSpin}, 1'); e(f's_cbranch_scc0 {F}'); e(f's_mov_b32 {sSpin}, 0')
            out.append(G_ + ':')
            if again and not self.o.fixmode: rep()
            e(f's_branch {R}')
            self.fixes += out
        if split: return branch
        branch()

    def colsum_items(self, quads, acc, tmp, own, ones, first):
        items = []
        rds = [self.tr(tmp + 4 * (n % 2), q, 0, own) for n, q in enumerate(quads)]
        items += rds[0]
        for n in range(len(quads)):
            if n + 1 < len(quads): items += rds[n + 1]
            items.append(f'{MF} {acc}, {ones}, {v(tmp + 4*(n%2), 4)}, ' + ('0' if first and n == 0 else acc))
        return items
    def cs_write_items(self, srcs, lds, tmp):
        ad = v(tmp)
        it = [f'v_and_b32 {ad}, 31, {vLane}', f'v_lshlrev_b32 {ad}, 4, {ad}', f'v_add_u32 {ad}, {lds:#x}, {ad}',
              f's_lshl_b32 {sT2}, {sW}, 2', f'v_add_u32 {v(tmp+1)}, {sT2}, {ad}']
        return it + [f'ds_write_b32 {v(tmp+1)}, {s} offset:{p*512}' for p, s in enumerate(srcs)]
    def cs_read_items(self, keys, tmp):
        ad = v(tmp); R = tmp + 2
        it = [f'ds_read_b128 {v(R+4*p,4)}, {ad} offset:{p*512}' for p in range(len(keys))]
        for p, k in enumerate(keys):
            r = R + 4 * p
            it += [f'v_add_f32 {v(r)}, {v(r)}, {v(r+1)}', f'v_add_f32 {v(r+2)}, {v(r+2)}, {v(r+3)}', f'v_add_f32 {v(r)}, {v(r)}, {v(r+2)}',
                   f'v_cvt_pk_bf16_f32 {v(r+1)}, {v(r)}, {v(r)}', f'v_lshlrev_b32 {v(r+1)}, 16, {v(r+1)}', f'v_sub_f32 {v(r+1)}, {v(r)}, {v(r+1)}',
                   f'v_cvt_pk_bf16_f32 {CS[k]}, {v(r)}, {v(r+1)}']
        return it
    def colsum_exchange(self, srcs, keys, lds, tmp):
        self.emit(self.cs_write_items(srcs, lds, tmp)); self.barrier(); self.emit(self.cs_read_items(keys, tmp))

    def stage_dma(self, srd, m, qa, qb, tag):
        if 'w2' in self.o.abl and srd == SW2: return
        if 'wo' in self.o.abl and srd == SWO: return
        em = self.em
        if srd == SWO:
            em(f's_add_u32 {sR}, {sRot2}, {m}'); em(f's_and_b32 {sR}, {sR}, 7'); em(f's_lshl_b32 {sR}, {sR}, 16')
        else:
            self.tab4(m, sR, 16)
        em(f's_add_u32 {sR}, {sR}, {sC128}')
        self.dma(srd, vDs, sR, 0, qa, tag, nt=self.o.nt_stage); self.dma(srd, vDs, sR, 8192, qb, tag, nt=self.o.nt_stage)
    def tab4(self, st, dst, sh, em=None):
        em = em or self.em
        em(f's_bfe_u32 {dst}, {sTab[st // 6]}, {(5 * (st % 6)) | (5 << 16):#x}'); em(f's_lshl_b32 {dst}, {dst}, {sh}')
    def stage_read_items(self, abase, m, qa, qb):
        items = []
        for h, q in enumerate((qa, qb)):
            addr = q * 4096; win = addr >> 16; off = addr & 0xFFFF
            def f(win=win, off=off, h=h):
                if win == 0: b0, b1 = vS0, vS1
                else:
                    if self.swin != win:
                        self.em(f'v_add_u32 {vS0w}, {win*65536:#x}, {vS0}'); self.em(f'v_add_u32 {vS1w}, {win*65536:#x}, {vS1}'); self.swin = win
                    b0, b1 = vS0w, vS1w
                self.em(f'ds_read_b64_tr_b16 {a(abase + m*8 + 2*h, 2)}, {b0} offset:{off}')
                self.em(f'ds_read_b64_tr_b16 {a(abase + m*8 + 4 + 2*h, 2)}, {b1} offset:{off}')
            items.append(f)
        return items

    def aux_items(self, S, Q, t0, need_r=True):
        it = [f'v_mul_f32 {S}, {sInv}, {S}']
        if need_r:
            it += [f'v_mul_f32 {Q}, {sInv}, {Q}', f'v_fma_f32 {Q}, -{S}, {S}, {Q}', f'v_max_f32 {Q}, 0, {Q}', f'v_add_f32 {Q}, {sEps}, {Q}',
                   f'v_rsq_f32 {Q}, {Q}', f'v_mul_f32 {vRl}, {sLog2e}, {Q}']
        it += [f'v_cndmask_b32_e64 {S}, 0, -{S}, {sLo}',
               f'v_cvt_pk_bf16_f32 {v(AUX)}, {S}, {S}', f'v_lshlrev_b32 {t0}, 16, {v(AUX)}', f'v_sub_f32 {S}, {S}, {t0}', f'v_cvt_pk_bf16_f32 {v(AUX+1)}, {S}, {S}']
        if need_r:
            it += [f'v_cndmask_b32 {Q}, 0, {vRl}, {sLo}', f'v_cvt_pk_bf16_f32 {t0}, {Q}, {Q}', f'v_lshlrev_b32 {t0}, 16, {t0}', f'v_sub_f32 {t0}, {Q}, {t0}',
                   f'v_cvt_pk_bf16_f32 {v(AUX+2)}, {Q}, {t0}']
        return it
    def aux_const_items(self):
        return [f'v_mov_b32 {v(AUX+2)}, 0', f'v_mov_b32 {v(AUX+3)}, 0', f'v_mov_b32 {v(CB+2)}, 0', f'v_mov_b32 {v(CB+3)}, 0', f'v_mov_b32 {v(CB+4)}, 0x3f803f80', f'v_mov_b32 {v(CB+5)}, 0x3f803f80']
    def corr_items(self, key, acc, swapAB):
        c = v(acc, 16)
        return [f'v_mov_b32 {v(CB)}, {CS[key]}', f'v_mov_b32 {v(CB+1)}, {CS[key]}',
                f'{MF} {c}, {v(AUX,4)}, {v(CB,4)}, {c}' if swapAB else f'{MF} {c}, {v(CB,4)}, {v(AUX,4)}, {c}']
    def stats_T_loads(self, i, e=None):
        e = e or self.em
        t = MR + 16
        e(f's_add_u32 {sFx}, {sG8K}, {i * 16 * 8192}')
        e(f'buffer_load_dwordx4 {v(t,4)}, {vStT}, {SWS}, {sFx} offen sc1', tag='stat'); e(f'buffer_load_dwordx4 {v(t+4,4)}, {vStT}, {SWS}, {sFx} offen offset:512 sc1', tag='stat')
    def stats_T_items(self, need_r, sti):
        t = MR + 16
        it = [lambda: self.check([v(t + r) for r in range(8)], lambda e: self.stats_T_loads(sti, e), v(38), kind='x', tag=sTxn)]
        it += [f'v_add_f32 {v(t)}, {v(t)}, {v(t+1)}', f'v_add_f32 {v(t+2)}, {v(t+2)}, {v(t+3)}', f'v_add_f32 {v(t+4)}, {v(t+4)}, {v(t+5)}',
              f'v_add_f32 {v(t+6)}, {v(t+6)}, {v(t+7)}', f'v_add_f32 {v(t)}, {v(t)}, {v(t+2)}', f'v_add_f32 {v(t+4)}, {v(t+4)}, {v(t+6)}',
              f'v_add_f32 {v(t)}, {v(t)}, {v(t+4)}', f'v_mov_b32 {v(t+1)}, {v(t)}', f'v_permlane32_swap_b32 {v(t)}, {v(t+1)}']
        return it + self.aux_items(v(t), v(t + 1), v(t + 2), need_r)

    def pass2(self, steps, planes, accs, swapAB, side, fill, loader=None, first=True, extra=None, third=None):
        em = self.em
        steps = list(steps)
        n3 = third[2] if third else 0
        def rd3(i):
            ks = steps[i]
            for t in self.tr(MR + 24 + (i % 2) * 4, third[0][ks >> 2], ks & 3): em(t, tag=('B', i))
        def rd(i, p):
            ks = steps[i]
            for t in self.tr(BB + (i % 2) * 8 + 4 * p, planes[p][ks >> 2], ks & 3): em(t, tag=('B', i))
        for i in range(2):
            for p in range(2): rd(i, p)
            if i < n3: rd3(i)
        br = extra(0)
        for i, ks in enumerate(steps):
            if br: br(); br = None
            if self.o.ts2 and (self.S == 0) != bool(self.o.ts2l1) and i == 0: self.ts('first')
            lg = [k for k, p in enumerate(em.lgq) if p.tag == ('B', i)]
            need = [XORD[k] for k in (i + 1, i + 2) if k < len(steps)] if i % 2 else []
            vm = [k for k, p in enumerate(em.vmq) if p.tag == 'A' and XORD[self.ldidx[id(p)]] in need]
            em.force_wait(vm=len(em.vmq) - 1 - max(vm) if vm else None, lg=len(em.lgq) - 1 - max(lg) if lg else None)
            for p in range(2):
                w = v(BB + (i % 2) * 8 + 4 * p, 4); x = Afrag(ks); c = v(accs[p], 16)
                src = '0' if (first and i == 0) else c
                em(f'{MF} {c}, {x}, {w}, {src}' if swapAB else f'{MF} {c}, {w}, {x}, {src}')
                if i + 2 < len(steps): rd(i + 2, p)
                if p == 0: loader(i)
                if p == 0 and i + 1 < len(steps): br = extra(i + 1)
                if not (p == 0 and br): side.run(fill(i) if callable(fill) else fill)
                if p == 1 and i < n3:
                    c3 = v(third[1], 16)
                    em(f'{MF} {c3}, {v(MR + 24 + (i % 2) * 4, 4)}, {x}, ' + ('0' if i == 0 else c3))
                    if i + 2 < n3: rd3(i + 2)
                    side.run(fill(i))
                if self.o.ts2 and (self.S == 0) != bool(self.o.ts2l1) and p == 1 and i in (0, 3, 7, 11, 15, 19, 23, 27, 31): self.ts(f's{i}')
    def pass1(self, plane, acc, side, fill, steps=None):
        em = self.em
        NB = 4
        first = steps is None
        steps = list(range(32)) if steps is None else list(steps)
        def rd(i):
            for t in self.tr(BB + (i % NB) * 4, plane[steps[i] >> 2], steps[i] & 3): em(t)
        for i in range(NB - 1): rd(i)
        for i, ks in enumerate(steps):
            w = v(BB + (i % NB) * 4, 4); c = v(acc, 16)
            if i + NB - 1 < len(steps): rd(i + NB - 1)
            em(f'{MF} {c}, {w}, {Afrag(ks)}, ' + ('0' if first and i == 0 else c))
            side.run(fill(i) if callable(fill) else fill)
    def xld(self, i, e=None):
        ks = XORD[i]
        r = (e or self.em)(f'buffer_load_dwordx4 {Afrag(ks)}, {vAX}, {SWS}, {(sXl if ks & 2 else sXm)[ks >> 2]} offen offset:{(ks & 1) * 1024} sc1', tag='A')
        if e is None: self.ldidx[id(r)] = i
    def x_prefetch(self, off, n0, n1):
        if n0 == 0:
            self.em(f's_add_u32 {sT}, {sGXw}, {off}'); self.em(f'v_add_u32 {vAX}, {sT}, {vL16}')
        for i in range(n0, n1): self.xld(i)
    def a_loader(self, pre, sti, xtag):
        nxt = [pre]
        def step(i):
            if i == self.o.statstep - 10: self.stats_T_loads(sti)
            for _ in range(2 if i < self.o.burst else 1):
                if nxt[0] < 32: self.xld(nxt[0]); nxt[0] += 1
            self.xdone = nxt[0] >= 32
        def chk(i):
            if i % 2: return None
            f0 = lambda k: (lambda r: r[0] + r[2:].split(':')[0])(Afrag(XORD[k]))
            return self.check([f0(i), f0(i + 1)], lambda e: (self.xld(i, e), self.xld(i + 1, e)), v(38), split=True, kind='x', tag=xtag,
                              again=lambda e, p: self.xld(self.ldidx[id(p)], e))
        return step, chk

    def phi_items(self, acc, rl, lanes_t, E):
        out = []
        for g in range(2):
            b = acc + 8 * g
            for k in range(4):
                x = v(b + 2 * k, 2)
                if lanes_t:
                    out += [f'v_fma_f32 {v(b+2*k)}, {v(b+2*k)}, {rl}, {sDelta}', f'v_fma_f32 {v(b+2*k+1)}, {v(b+2*k+1)}, {rl}, {sDelta}']
                else: out.append(f'v_pk_fma_f32 {x}, {x}, {v(rl + 8*g + 2*k, 2)}, {sDelta2}')
            for k in range(8): out.append(f'v_exp_f32_e64 {v(E+k)}, {v(b+k)} clamp')
            for k in range(8): out.append(f'v_max_f32 {v(b+k)}, {sDelta}, {v(b+k)}')
            for k in range(4): out.append(f'v_pk_fma_f32 {v(b+2*k,2)}, {v(b+2*k,2)}, {sLn22}, {v(E+2*k,2)}')
            for k in range(4): out.append(f'v_cvt_pk_bf16_f32 {v(acc+4*g+k)}, {v(b+2*k)}, {v(b+2*k+1)}')
        return out

    def p1_start(self):
        em = self.em; o = self.o
        self.lin = True
        X = MR; OWN = [v(MR + 4), v(MR + 5), v(MR + 6)]; H = v(MR + 7); ONE = v(MR + 8, 4); CT = MR + 12
        self.OWN, self.ONE = OWN, ONE
        aS, aCk, aCv = a(0, 16), a(32, 16), a(48, 16); QA = ACC + 32
        em(f'v_and_b32 v27, 7, {vLane}'); em('v_lshlrev_b32 v27, 7, v27')
        em(f'v_bfe_u32 v28, {vLane}, 3, 2'); em('v_lshl_add_u32 v27, v28, 12, v27')
        em(f's_add_u32 {sT}, {sWl}, {24*4096}'); em(f'v_add_u32 v27, {sT}, v27')
        em(f'v_bfe_u32 v28, {vLane}, 1, 3'); em(f'v_xor_b32 v28, v28, {vHi}')
        for kk in range(4):
            em(f'v_xor_b32 v29, {2*kk}, v28'); em(f'v_lshl_add_u32 {v(X+kk)}, v29, 4, v27')
        for i in range(3): em(f'v_add_u32 {OWN[i]}, {sWl}, {vTr[i]}')
        for i in range(4): em(f'v_mov_b32 {v(MR+8+i)}, 0x3f803f80')
        for sm, bit in ((sM0, 1), (sM1, 2), (sM3, 8), (sM4, 16)):
            em(f'v_and_b32 v29, {bit}, {vLane}'); em(f'v_cmp_ne_u32 {sm}, 0, v29')
        em(f'v_bfe_u32 v29, {vLane}, 2, 1'); em(f'v_cmp_eq_u32 s[46:47], v29, {vHi}')
        if o.tw == 0: self.touch_w('v29', MR + 20)
        self.reducer_setup_c() if o.xc else self.reducer_setup()
        self.emit(self.c1rest)
        pre2 = self.chunk_items(2) if o.ring == 4 else []
        def own_reads(c):
            em.wait_vm_tag(f'c{c}')
            for kk in range(4): em(f'ds_read_b128 {Afrag(4*c+kk)}, {v(X+kk)} offset:{(c % o.ring) * 16384}')
            for p, pl in enumerate('kv'): self.emit(self.tr(CT + 4 * p, self.pl[pl][c], 0, OWN))
        def diag(S, Q, T):
            tail = [f'v_accvgpr_read_b32 {S}, a0']
            for r in range(8): tail.append(f'v_cndmask_b32 {v(QA+r)}, {v(QA+2*r)}, {v(QA+2*r+1)}, {sM0}')
            for r in range(4): tail.append(f'v_cndmask_b32 {v(QA+r)}, {v(QA+2*r)}, {v(QA+2*r+1)}, {sM1}')
            for r in range(2): tail.append(f'v_cndmask_b32 {v(QA+r)}, {v(QA+2*r)}, {v(QA+2*r+1)}, {sM3}')
            tail += [f'v_cndmask_b32 {Q}, {Q}, {v(QA+1)}, {sM4}', f'v_cndmask_b32 {Q}, 0, {Q}, s[46:47]',
                     f'v_mov_b32 {T}, {Q}', f'v_permlane32_swap_b32 {Q}, {T}', f'v_add_f32 {Q}, {Q}, {T}']
            return tail
        def sld(e):
            e(f's_add_u32 {sEx[2:4].join(["s", ""])}, {sG8K}, {3 * 16 * 8192}')
            for k in range(2): e(f'buffer_load_dwordx4 {v(QA + 8 + 4 * k, 4)}, {vStT}, {SWS}, s82 offen offset:{k * 512} sc1', tag='stat')
        def spub():
            S, Q = v(QA + 1), v(QA)
            em(f'v_cndmask_b32 {S}, {Q}, {v(MR+20)}, {sLo}')
            em(f's_and_b32 {sT2}, {sNonce}, 63'); em(f'v_mov_b32 {v(QA+2)}, {sT2}'); em(f'v_and_b32 {S}, 0xffffffc0, {S}'); em(f'v_or_b32 {S}, {S}, {v(QA+2)}')
            em(f's_and_b32 {sT}, {sRot}, 4'); em(f's_lshl_b32 {sT}, {sT}, 7'); em(f's_and_b32 {sT2}, {sRot}, 3'); em(f's_lshl_b32 {sT2}, {sT2}, 2')
            em(f's_add_u32 {sT2}, {sT2}, {sT}'); em(f's_add_u32 {sT2}, {sT2}, {sG8K}')
            self.wsstore(S, vStT, sT2, 3 * 16 * 8192, width=1, sc=' sc1', tag='rst')
        side = Side(em)
        self.stq = list(range(24, 32)) + [34, 35, 32, 33, 36, 37, 38, 39]
        if o.ts2: self.ts('pre0')
        self.emit(pre2[:o.c2a])
        own_reads(0)
        side.add(*pre2[o.c2a:])
        self.ts('c0')
        for c in range(8):
            em('s_barrier')
            if c + o.ring - 1 < 8: side.add(*self.chunk_items(c + o.ring - 1))
            if c == o.hc: side.add(self.nonce_hello)
            if c == o.rc: side.add(self.resets)
            if o.sst and c == 1: side.add(*diag(v(MR + 20), v(QA), v(MR + 22))); side.add(spub)
            if o.sst and c == o.sldc: side.add(lambda: sld(em))
            self.touch_at(f'c{c}', side, 'v27')
            if o.rste and c == o.rste:
                def early_resets():
                    keep = self.sc; self.sc = ' sc1'
                    self.emit(self.reset_items(MR + 24, 'xh')); self.sc = keep
                side.add(early_resets)
            if c == o.tqc: side.add(lambda: self.touch_q('v27', MR + 24))
            if c == o.tw - 1: side.add(lambda: self.touch_w('v27', MR + 20))
            if c == o.pc:
                def w1p():
                    em(f's_lshl_b32 {sT2}, {sW}, 6'); em(f's_add_u32 {sT2}, {sT2}, {sW1c0}'); em(f's_cmp_lt_u32 {sW}, 2'); em(f's_cselect_b32 {sT2}, {sT2}, {sW1c2}')
                    em(f's_lshl_b32 {sR}, {sG}, 1'); em(f's_sub_u32 {sR}, {sR}, {sW}'); em(f's_mul_i32 {sR}, {sR}, {16*2752}')
                    em(f'v_add_u32 v28, {sR}, {vD1}')
                    if o.pz: em(f's_cmp_eq_u32 {sW}, 3'); em(f's_cselect_b32 {sT2}, 0x10000000, {sT2}')
                    pq = (34, 35) if o.plate else (22, 23)
                    self.dma(SW1, 'v28', sT2, 0, pq[0], 'w1p'); self.dma(SW1, 'v28', sT2, 16 * 2752, pq[1], 'w1p')
                side.add(w1p)
            if c == max(5, o.pc + 2) and not o.plate:
                aW = a(80, 16); W = MR + 24
                side.add(lambda: em.wait_vm_tag('w1p'))
                side.add(*self.tr(W, 22, 0, OWN)); side.add(*self.tr(W + 4, 23, 0, OWN))
                side.add(f'{MF} {aW}, {ONE}, {v(W,4)}, 0', f'{MF} {aW}, {ONE}, {v(W+4,4)}, {aW}')
            if c == max(5, o.pc + 2) + 1 or (c == 7 and o.pc + 2 >= 7):
                def w1s(W=MR + 24):
                    em(f'v_accvgpr_read_b32 {v(W)}, a80'); em(f's_and_b32 {sT2}, {sNonce}, 0xff'); em(f'v_mov_b32 {v(W+1)}, {sT2}')
                    em(f'v_and_or_b32 {v(W)}, {v(W)}, {sMaskInv}, {v(W+1)}'); em(f'v_lshlrev_b32 {v(W+1)}, 2, {vLane}')
                    em(f's_min_u32 {sR}, {sW}, 2'); em(f's_lshl_b32 {sR}, {sR}, 7')
                    em(f's_mul_i32 {sT2}, {sG}, {MSG_B}'); em(f's_add_u32 {sT2}, {sT2}, {sJmsg}'); em(f's_add_u32 {sT2}, {sT2}, {sR}')
                    def st_():
                        em('s_mov_b32 exec_hi, 0')
                        self.wsstore(v(W), v(W + 1), sT2, 2176, width=1, sc=' sc1', tag='rst')
                        em('s_mov_b64 exec, -1')
                    self.only_wave(3, st_, invert=True) if o.pz else st_()
                self.w1s = w1s
                if not o.plate: side.add(w1s)
            if o.w1r and c == o.w1rc:
                def pub():
                    W = MR + 24
                    em(f's_add_u32 {sT2}, {sWl}, {22 * 4096}'); em(f'v_add_u32 v27, {sT2}, {vL16}')
                    em(f'ds_read_b128 {v(W,4)}, v27'); em(f'ds_read_b128 {v(W+4,4)}, v27 offset:4096')
                    em(f's_mul_i32 {sT2}, {sJ}, 98304'); em(f's_lshl_b32 {sR}, {sW}, 15'); em(f's_add_u32 {sT2}, {sT2}, {sR}')
                    em(f's_lshl_b32 {sR}, {sG}, 11'); em(f's_add_u32 {sT2}, {sT2}, {sR}')
                    self.wsstore(v(W, 4), vL16, sT2, WS_W1R, sc=' sc1', tag='rst'); self.wsstore(v(W + 4, 4), vL16, sT2, WS_W1R, sc=' sc1', tag='rst', off=1024)
                side.q.insert(0, lambda: self.only_wave(3, pub, invert=True))
            if c == max(5, o.hc + 2):
                def hello():
                    em(f's_add_u32 {sT2}, {sG128}, {WS_HELLO}')
                    em(f'buffer_load_dword {H}, {vPoll}, {SWS}, {sT2} offen sc1', tag='hello')
                side.add(hello)
            if c >= 4:
                for m in range(8):
                    assert o.plate or m < 6 or int(o.qsched[m]) > max(5, o.pc + 2)
                    if o.qsched[m] == str(c): side.add(lambda m=m: self.qkv_dma('q', m, 'q'))
            def rd(kk, p):
                self.emit(self.tr(BB + (kk % 2) * 8 + 4 * p, self.pl['kv'[p]][c], kk))
            for kk in range(2):
                for p in range(2): rd(kk, p)
            cnt = [0]
            def tick():
                cnt[0] += 1
                if c < 7 and cnt[0] % o.cgap == o.cgap - 1: side.run(o.crun if (o.sst and c) else 1)
            for p, acc in enumerate((aCk, aCv)):
                em(f'{MF} {acc}, {ONE}, {v(CT+4*p,4)}, ' + ('0' if c == 0 else acc)); tick()
            for kk in range(4 if (c == 0 or not o.sst) else 0):
                ks = 4 * c + kk
                em(f'{MF} {aS}, {ONE}, {Afrag(ks)}, ' + ('0' if ks == 0 else aS)); tick()
                em(f'{MF} {v(QA,16)}, {Afrag(ks)}, {Afrag(ks)}, ' + ('0' if ks == 0 else v(QA, 16))); tick()
            if c == 7:
                S, Q, T = v(MR + 20), v(QA), v(MR + 22)
                tail = [f'v_accvgpr_read_b32 {v(MR+20)}, a32', f'v_accvgpr_read_b32 {v(MR+21)}, a48']
                tail += self.cs_write_items([v(MR + 20), v(MR + 21)], 32 * 4096, MR + 22) + [self.barrier] + self.cs_read_items(['k', 'v'], MR + 22)
                if o.sst:
                    P_ = QA + 8
                    tail += [lambda: self.check([v(P_ + r) for r in range(8)], sld, v(QA + 1), kind='n6', tag=v(QA + 2))]
                    tail += [f'v_add_f32 {v(P_)}, {v(P_)}, {v(P_+1)}', f'v_add_f32 {v(P_+2)}, {v(P_+2)}, {v(P_+3)}', f'v_add_f32 {v(P_+4)}, {v(P_+4)}, {v(P_+5)}',
                             f'v_add_f32 {v(P_+6)}, {v(P_+6)}, {v(P_+7)}', f'v_add_f32 {v(P_)}, {v(P_)}, {v(P_+2)}', f'v_add_f32 {v(P_+4)}, {v(P_+4)}, {v(P_+6)}',
                             f'v_add_f32 {S}, {v(P_)}, {v(P_+4)}', f'v_mov_b32 {Q}, {S}', f'v_permlane32_swap_b32 {S}, {Q}']
                else:
                    tail += diag(S, Q, T)
                tail += self.aux_const_items() + self.aux_items(S, Q, T)
                side.q = tail + side.q
            for kk in range(4):
                ks = 4 * c + kk
                for p in range(2):
                    cc = v(ACC + 16 * p, 16)
                    em(f'{MF} {cc}, {Afrag(ks)}, {v(BB + (kk % 2) * 8 + 4 * p, 4)}, ' + ('0' if ks == 0 else cc))
                    if kk + 2 < 4: rd(kk + 2, p)
                    if c < 7: tick()
                    else: side.run(7)
                if kk == o.ownpos and c + 1 < 8: own_reads(c + 1)
            if c < 7: side.flush()
            if c in (1, 3, 5) and not o.ts2: self.ts(f'c{c}e')
        side.flush()
        self.ts('kvpass')
        self.emit(self.corr_items('k', ACC, True)); self.emit(self.corr_items('v', ACC + 16, True))
        L = em.newlabel('Lhp'); D = em.newlabel('Lhd')
        em.wait_vm_tag('hello')
        em.label(L)
        em(f'v_subrev_u32 {v(TMP)}, {sNonce}, {H}'); em(f'v_add_u32 {v(TMP)}, -1, {v(TMP)}')
        em(f'v_cmp_le_u32 vcc, 16, {v(TMP)}')
        em(f's_cbranch_vccz {D}')
        em.cond_begin()
        em(f's_add_u32 {sT2}, {sG128}, {WS_HELLO}')
        em(f'buffer_load_dword {H}, {vPoll}, {SWS}, {sT2} offen sc1'); em.force_wait(vm=0)
        em.cond_end()
        self.spin_tail(L)
        em.label(D)
        em(f'v_cmp_ne_u32 vcc, {sHello}, {H}')
        for i in range(3): em(f'v_mov_b32 {v(TMP+i)}, {OWN[i]}')
        self.OWN = [v(TMP), v(TMP + 1), v(TMP + 2)]
        em(f'{MF} {v(MR,16)}, {v(AUX,4)}, {v(CB+2,4)}, 0')
        self.ts('decide')

    def p1_rest(self, l):
        em = self.em; o = self.o
        K, V, Q = ACC, ACC + 16, ACC + 32
        RL = MR; E = MR + 16
        sq = self.pl['k'][:4]
        sa = 36 * 4096
        mw, mr, fac, t16, tg = v(V + 8), v(V + 9), v(V + 10), v(V + 11), v(V + 12)
        u, x1, x2 = v(V + 13), v(V + 14), v(V + 15)
        self.emit(self.phi_items(K, RL, False, E))
        D0, D1 = MR, MR + 16
        rest = []
        for hh in range(2):
            rest += [f'v_pk_mul_f32 {v(V+2*r,2)}, {v(V+2*r,2)}, {v(RL+2*r,2)}' for r in range(4 * hh, 4 * hh + 4)]
            rest += [f'v_cvt_pk_bf16_f32 {v(V+r)}, {v(V+2*r)}, {v(V+2*r+1)}' for r in range(4 * hh, 4 * hh + 4)]
        W_ = E
        rest = rest[:8] + [f'v_mov_b32 {v(K+8+r)}, {v(CB+4)}' for r in range(8)] + [f'v_permlane16_swap_b32 {v(V+r)}, {v(K+8+r)}' for r in range(4)] + rest[8:]
        rest += [f'{MF} {v(D1,16)}, {v(K,4)}, {v(K+8,4)}, 0']
        rest += [f'v_permlane16_swap_b32 {v(V+r)}, {v(K+8+r)}' for r in range(4, 8)]
        rest += [f'{MF} {v(D0,16)}, {v(K,4)}, {v(V,4)}, 0', f'{MF} {v(D1,16)}, {v(K+4,4)}, {v(K+12,4)}, {v(D1,16)}',
                 f'{MF} {v(D0,16)}, {v(K+4,4)}, {v(V+4,4)}, {v(D0,16)}']
        if l == 0 and not o.qlate:
            for r in range(4): em(f'v_mov_b32 {v(BB+8+r)}, {v(CB+4)}')
            cs = [lambda: em.wait_vm_tag('q')] + self.colsum_items(self.pl['q'], v(Q, 16), BB, self.OWN, v(BB + 8, 4), True)
            mixed = []
            while rest or cs:
                mixed += rest[:1] + cs[:1]; rest = rest[1:]; cs = cs[1:]
            rest = mixed
        self.emit(rest)
        self.emit([f's_lshl_b32 {sT2}, {sW}, 12', f's_add_u32 {sT2}, {sT2}, {sa}', f'v_add_u32 {mw}, {sT2}, {vL16}',
                   f'v_bfe_u32 {x1}, {vLane}, 1, 4', f'v_lshl_add_u32 {x1}, {vHi}, 5, {x1}', f'v_lshlrev_b32 {x1}, 4, {x1}',
                   f's_lshl_b32 {sT2}, {sW}, 11', f'v_add_u32 {x1}, {sT2}, {x1}',
                   f'v_bfe_u32 {x2}, {vLane}, 1, 2', f'v_lshlrev_b32 {x2}, 9, {x2}', f'v_bfe_u32 {u}, {vLane}, 2, 1', f'v_lshl_add_u32 {x2}, {u}, 10, {x2}', f'v_add_u32 {x2}, 256, {x2}',
                   f's_cmp_eq_u32 {sW}, 2', f's_cselect_b64 vcc, -1, 0', f'v_cndmask_b32 {mr}, {x1}, {x2}, vcc',
                   f'v_and_b32 {x1}, 1, {vLane}', f'v_lshl_add_u32 {mr}, {x1}, 10, {mr}', f'v_add_u32 {mr}, {sa:#x}, {mr}',
                   f'v_add_u32 {t16}, {sWl}, {vL16}', f's_and_b32 {sT2}, {sNonce}, 0xff', f'v_mov_b32 {tg}, {sT2}',
                   f'v_lshrrev_b32 {x1}, 3, {vLane}', f'v_mul_u32_u24 {x1}, {MSG_B}, {x1}', f'v_and_b32 {x2}, 7, {vLane}', f'v_lshl_add_u32 {fac}, {x2}, 4, {x1}'])
        self.kt_voff(u, x1)
        for i, r in ((2, D1 + 8), (3, D1 + 12), (0, D0), (1, D0 + 4)): em(f'ds_write_b128 {mw}, {v(r,4)} offset:{i*1024}')
        if l == 0 and not o.qlate: self.emit(self.cs_write_items([v(Q)], 33 * 4096, V))
        if not o.qlate: em.wait_vm_tag('q')
        self.barrier()
        if not o.ts2: self.ts('kvbar')
        M = MR
        if o.xc: return self.exchange_c(l, mw, mr, fac, t16, tg, u, x1, x2)
        ga = fac; G = MR + 4; A0 = x1; sOK = 's48'
        def msg_out():
            for i in range(4): em(f'ds_read_b128 {v(M+4*i,4)}, {mr} offset:{i*4096}')
            for r in (0, 2): em(f'v_pk_add_f32 {v(M+r,2)}, {v(M+r,2)}, {v(M+4+r,2)}')
            for r in (0, 2): em(f'v_pk_add_f32 {v(M+8+r,2)}, {v(M+8+r,2)}, {v(M+12+r,2)}')
            for r in (0, 2): em(f'v_pk_add_f32 {v(M+r,2)}, {v(M+r,2)}, {v(M+8+r,2)}')
            em(f'v_cmp_gt_u32 vcc, 2176, {t16}')
            for r in range(4): em(f'v_and_or_b32 {v(M+r)}, {v(M+r)}, {sMaskInv}, {tg}')
            em(f's_mul_i32 {sT2}, {sG}, {MSG_B}'); em(f's_add_u32 {sT2}, {sT2}, {sJmsg}')
            em('s_mov_b64 exec, vcc')
            self.wsstore(v(M, 4), t16, sT2, l * 256 * MSG_B, sc=' sc1', tag='msg')
            em('s_mov_b64 exec, -1')
        self.only_wave(3, msg_out, invert=True)
        def if_pending(f):
            L = em.newlabel('Lp')
            em(f's_cmp_lg_u32 {sOK}, 0'); em(f's_cbranch_scc1 {L}')
            em.cond_begin(); f(); em.vmq = [p for p in em.vmq if p.tag != 'g']; em.cond_end()
            em.label(L)
            self.gmark = set(id(p) for p in em.vmq)
        def g_loads(G=G):
            em(f's_mov_b64 exec, {sX0}'); self.wsload(v(G, 4), ga, sLine, l * 256 * MSG_B, tag='g')
            em(f's_mov_b64 exec, {sX1}'); self.wsload(v(G + 4, 4), ga, sLine, l * 256 * MSG_B + 8 * MSG_B, tag='g')
            em('s_mov_b64 exec, -1')
        def g_check(G=G):
            em(f'v_xor_b32 {A0}, {v(G)}, {tg}')
            for r in (3, 4, 7): em(f'v_bitop3_b32 {A0}, {v(G+r)}, {tg}, {A0} bitop3:0xbe')
            em(f'v_and_b32 {A0}, 0xff, {A0}'); em(f'v_cmp_ne_u32 vcc, 0, {A0}')
        def g_finish(G=G):
            for r in (0, 2): em(f'v_pk_add_f32 {v(G+r,2)}, {v(G+r,2)}, {v(G+4+r,2)}')
            for r in range(4): em(f'v_add_f32_dpp {v(G+r)}, {v(G+r)}, {v(G+r)} row_ror:8 {DPPM}')
            em(f'v_permlane16_swap_b32 {v(G)}, {v(G+1)}'); em(f'v_permlane16_swap_b32 {v(G+2)}, {v(G+3)}')
            em(f'v_add_f32 {v(G)}, {v(G)}, {v(G+1)}'); em(f'v_add_f32 {v(G+2)}, {v(G+2)}, {v(G+3)}')
            em(f'v_permlane32_swap_b32 {v(G)}, {v(G+2)}'); em(f'v_add_f32 {v(G)}, {v(G)}, {v(G+2)}')
            em(f'v_mul_f32 {v(G)}, {sFac}, {v(G)}'); em(f'v_mov_b32 {v(G+1)}, {v(G)}')
            em(f'v_permlane16_swap_b32 {v(G)}, {v(G+1)}'); em(f'v_cvt_pk_bf16_f32 {v(G)}, {v(G)}, {v(G+1)}')
            if o.rep8:
                for k in range(2): self.wsstore(v(G), u, sKTo, (l * 8 + k * 4) * KC, width=1, sc=' sc1', tag='kt')
            else:
                em('s_mov_b32 exec_lo, 0xff'); em('s_mov_b32 exec_hi, 0xff')
                self.wsstore(v(G), u, sKTo, l * 0x8000, width=1, sc=' sc1', tag='kt')
            em('s_mov_b64 exec, -1')
            em(f's_mov_b32 {sOK}, 1')
        def first():
            for r in range(4): em(f'v_mov_b32 {v(G+r)}, {v(M+r)}'); em(f'v_mov_b32 {v(G+4+r)}, {v(M+r)}')
            g_loads()
        def attempt():
            em.force_wait(vm=len([p for p in em.vmq if id(p) not in self.gmark]))
            g_check()
            L = em.newlabel('La'); E2 = em.newlabel('Lb')
            em(f's_cbranch_vccnz {L}')
            em.cond_begin(); g_finish(); em.cond_end()
            em(f's_branch {E2}')
            em.label(L)
            g_loads()
            em.label(E2)
        em(f's_xor_b32 {sOK}, {sRed}, 1')
        if_pending(first)
        self.ts('msg')
        side = Side(em)
        if o.qlate:
            base = len(em.vmq) - 1 - max(i_ for i_, p in enumerate(em.vmq) if p.tag == 'q')
            La = em.newlabel('Lq'); Lb = em.newlabel('Lq'); Lc = em.newlabel('Lq')
            em(f's_cmp_eq_u32 {sOK}, 0'); em(f's_cbranch_scc1 {La}')
            em(f's_cmp_eq_u32 {sW}, 3'); em(f's_cbranch_scc0 {Lb}')
            em(f's_waitcnt vmcnt({base})'); em(f's_branch {Lc}')
            em.label(La); em(f's_waitcnt vmcnt({base + 3})'); em(f's_branch {Lc}')
            em.label(Lb); em(f's_waitcnt vmcnt({base + 1})')
            em.label(Lc)
            del em.vmq[:len(em.vmq) - base]
            self.gmark = set(id(p) for p in em.vmq)
            self.barrier()
            if l == 0:
                side.add(*[f'v_mov_b32 {v(MR+12+r)}, {v(CB+4)}' for r in range(4)])
                side.add(*self.colsum_items(self.pl['q'], v(K, 16), V, self.OWN, v(MR + 12, 4), True))
                side.add('s_nop 7', 's_nop 3')
                side.add(*self.cs_write_items([v(K)], 33 * 4096, V)); side.add(self.barrier)
        if l == 0: side.add(*self.cs_read_items(['q'], V))
        self.p1_bg(l, side)
        def fillq(ks):
            if ks == o.gstep: if_pending(attempt)
            return o.fill_p1
        self.pass1(self.pl['q'], Q, side, fillq)
        self.emit(self.corr_items('q', Q, False))
        side.flush()
        if self.lin:
            self.lin = False
            em(f'v_lshlrev_b32 {v(TMP)}, 8, {vHi}')
            for i in range(3): em(f'v_sub_u32 {vTr[i]}, {vTr[i]}, {v(TMP)}')
        self.barrier()
        self.ts('qpass')
        if o.gstep >= 32 or o.att2: if_pending(attempt)
        self.p1_after_q(l)
        self.emit(self.phi_items(Q, vRl, True, E))
        self.wsstore(v(Q, 4), vL16, sQst, 0); self.wsstore(v(Q + 4, 4), vL16, sQst, 0, off=1024)
        if o.rstpos == 1 and l == 0 and not o.rste: self.emit(self.reset_items(ACC + 8, o.rst1))
        self.kt_addr()
        if not o.ts2: self.ts('qst')
        def loop2():
            G2 = BB
            L = em.newlabel('Lg'); D = em.newlabel('Lgd'); D2 = em.newlabel('Lgd'); E_ = em.newlabel('Lge')
            for r in range(4): em(f'v_mov_b32 {v(G2+r)}, {v(M+r)}'); em(f'v_mov_b32 {v(G2+4+r)}, {v(M+r)}')
            g_loads(G2)
            em.force_wait(vm=2); em.vmq = []
            em.label(L)
            g_check(); em(f's_cbranch_vccz {D}')
            g_loads(); em.force_wait(vm=2); em.vmq = []
            g_check(G2); em(f's_cbranch_vccz {D2}')
            g_loads(G2); em.force_wait(vm=2); em.vmq = []
            self.spin_tail(L)
            em.label(D)
            g_finish(); em(f's_branch {E_}')
            em.label(D2)
            g_finish(G2)
            em.label(E_)
        def loop():
            if o.gdual: loop2()
            else:
                L = em.newlabel('Lg'); D = em.newlabel('Lgd')
                em.force_wait(vm=len([p for p in em.vmq if id(p) not in self.gmark]))
                em.label(L)
                g_check()
                em(f's_cbranch_vccz {D}')
                em.cond_begin(); g_loads(); em.force_wait(vm=0); em.cond_end()
                self.spin_tail(L)
                em.label(D)
                g_finish()
                em.force_wait(vm=2 if o.rep8 else 1)
            em('s_mov_b64 exec, 1')
            em(f'v_mov_b32 {A0}, {sNonce}'); em(f's_add_u32 {sT2}, {sFlag}, {4*l*4096}')
            em(f'buffer_store_dword {A0}, off, {SWS}, {sT2}' + self.sc)
            em('s_mov_b64 exec, -1')
            em(f's_mov_b32 {sOK}, 0')
        if_pending(loop)
        if not o.ts2: self.ts('kvpoll')
        def cs_reduce():
            L0 = em.newlabel('Lc'); L = em.newlabel('Lc'); D = em.newlabel('Lc')
            em(f's_cmp_ge_u32 {sCsp}, 3'); em(f's_cbranch_scc1 {L0}')
            em.cond_begin()
            em(f's_lshl_b32 {sR}, {sCsp}, 7'); em(f's_add_u32 {sR}, {sR}, {sJmsg}')
            em.label(L)
            self.wsload(v(G, 4), ga, sR, 2176); self.wsload(v(G + 4, 4), ga, sR, 2176 + 8 * MSG_B)
            em(f'v_xor_b32 {A0}, {v(G)}, {tg}')
            for r in range(1, 8): em(f'v_bitop3_b32 {A0}, {v(G+r)}, {tg}, {A0} bitop3:0xbe')
            em(f'v_and_b32 {A0}, 0xff, {A0}'); em(f'v_cmp_ne_u32 vcc, 0, {A0}')
            em(f's_cbranch_vccz {D}')
            self.spin_tail(L)
            em.label(D)
            for r in (0, 2): em(f'v_pk_add_f32 {v(G+r,2)}, {v(G+r,2)}, {v(G+4+r,2)}')
            for r in range(4): em(f'v_add_f32_dpp {v(G+r)}, {v(G+r)}, {v(G+r)} row_ror:8 {DPPM}')
            em(f'v_permlane16_swap_b32 {v(G)}, {v(G+1)}'); em(f'v_permlane16_swap_b32 {v(G+2)}, {v(G+3)}')
            em(f'v_add_f32 {v(G)}, {v(G)}, {v(G+1)}'); em(f'v_add_f32 {v(G+2)}, {v(G+2)}, {v(G+3)}')
            em(f'v_permlane32_swap_b32 {v(G)}, {v(G+2)}'); em(f'v_add_f32 {v(G)}, {v(G)}, {v(G+2)}')
            em(f'v_cvt_pk_bf16_f32 {v(G+1)}, {v(G)}, {v(G)}'); em(f'v_lshlrev_b32 {v(G+1)}, 16, {v(G+1)}'); em(f'v_sub_f32 {v(G+1)}, {v(G)}, {v(G+1)}')
            em(f'v_cvt_pk_bf16_f32 {v(G)}, {v(G)}, {v(G+1)}')
            em(f'v_and_b32 {v(G+1)}, 7, {vLane}'); em(f'v_lshlrev_b32 {v(G+1)}, 4, {v(G+1)}'); em(f'v_lshrrev_b32 {v(G+2)}, 4, {vLane}'); em(f'v_lshl_add_u32 {v(G+1)}, {v(G+2)}, 2, {v(G+1)}')
            em(f's_mul_i32 {sT2}, {sJ}, 384'); em(f's_lshl_b32 {sR}, {sCsp}, 7'); em(f's_add_u32 {sT2}, {sT2}, {sR}')
            em('s_mov_b32 exec_lo, 0x00ff00ff'); em('s_mov_b32 exec_hi, 0x00ff00ff')
            self.wsstore(v(G), v(G + 1), sT2, WS_CS, width=1, sc=' sc1', tag='kt')
            em('s_mov_b64 exec, -1')
            em.cond_end()
            em.label(L0)
        def touches():
            t = v(ACC + 8)
            self.retouch(0, t, v(ACC + 9))
            em('s_mov_b32 exec_hi, 0xffff')
            em(f'buffer_load_dword {v(ACC+10)}, {t}, {SWS}, {sHks} offen sc1', tag='touch')
            em(f'v_lshlrev_b32 {t}, 17, {vLane}')
            em(f's_lshl_b32 {sT2}, {sJ}, 2'); em(f's_add_u32 {sT2}, {sT2}, {sW}'); em(f's_lshl_b32 {sT2}, {sT2}, 7'); em(f's_add_u32 {sT2}, {sT2}, {sG8K}')
            em('s_mov_b64 exec, 7')
            em(f'buffer_load_dword {v(ACC+11)}, {t}, {SWS}, {sT2} offen sc1', tag='touch')
            em('s_mov_b64 exec, -1')
        def streams():
            self.p1_gap(l)
            n = o.share if l == 0 else o.share2
            for m in range(n): self.w1dma(0, m, 'w1a'); self.w1dma(1, m, 'w1a')
            self.w1_todo = list(range(n, 4)) + [m for m in self.w1_todo if m >= 4]
            if l == 0 and o.rste and o.tpos == 1: touches()
        if o.xorder & (1 << l):
            self.p2_hook = streams
            def mid():
                if l == 0: cs_reduce()
                if l == 0 and o.rste and o.tpos == 0: touches()
            return self.group_sync(4 * l + 0, mid=mid, bar=False, skipif=sOK, tags=None)
        self.p2_hook = None
        def mid():
            if l == 0: self.touch_at('g', None, v(ACC + 8))
            if l == 0: cs_reduce()
            if l == 0 and o.rste: touches()
            def l2w2():
                em(f'v_lshlrev_b32 {v(G)}, 7, {vLane}'); em(f's_lshr_b32 {sT2}, s2, 3'); em(f's_mul_i32 {sT2}, {sT2}, {344*128}')
                for k in range(6):
                    if k == 5: em('s_mov_b64 exec, 0xffffff')
                    em(f's_add_u32 {sT}, {sT2}, {k*8192}')
                    em(f'buffer_load_dword {v(G+1+k)}, {v(G)}, {SW2}, {sT} offen', tag='l2')
                    if o.thr2 and k >= o.thr2 - 1: em.force_wait(vm=o.thr2 - 1)
                em('s_mov_b64 exec, -1')
                em.vmq = [p for p in em.vmq if p.tag != 'l2']
            if l == 0 and o.tw2 == 1: self.only_wave(3, l2w2)
            self.p1_gap(l)
            if o.share >= 0:
                n = o.share if l == 0 else o.share2
                assert not (o.w1r and l == 0 and (n or o.w1_gap))
                for m in range(n): self.w1dma(0, m, 'w1a'); self.w1dma(1, m, 'w1a')
                self.w1_todo = list(range(n, 4)) + [m for m in self.w1_todo if m >= 4]
            else: self.only_wave(3, lambda: self.p1_loader(l, 3))
            if l == 0 and o.tw2 == 2: self.only_wave(3, l2w2)
        self.group_sync(4 * l + 0, mid=mid, bar=False, skipif=sOK, tags=None)

    def exchange_c(self, l, mw, mr, gz, t16, tg, uz, x1, x2):
        em = self.em; o = self.o
        K, V, Q = ACC, ACC + 16, ACC + 32
        M = MR; G = MR; Z = K + 8; A0 = x1; A1 = x2; sOK = 's48'; IMG = 32 * 4096
        ga, uk, im = mw, mr, v(TMP + 3)
        moff = l * 256 * MSG_B; koff = l * 16 * KT_B
        def msg_out():
            for i in range(4): em(f'ds_read_b128 {v(M+4*i,4)}, {mr} offset:{i*4096}')
            em(f'v_lshrrev_b32 {A0}, 9, {t16}'); em(f'v_and_b32 {A1}, 511, {t16}'); em(f'v_lshl_add_u32 {A0}, {A0}, 10, {A1}')
            em(f's_cmp_eq_u32 {sW}, 2'); em(f's_cselect_b32 {sT2}, 512, 0'); em(f's_sub_u32 {sT2}, {IMG}, {sT2}'); em(f'v_add_u32 {A0}, {sT2}, {A0}')
            for r in (0, 2): em(f'v_pk_add_f32 {v(M+r,2)}, {v(M+r,2)}, {v(M+4+r,2)}')
            for r in (0, 2): em(f'v_pk_add_f32 {v(M+8+r,2)}, {v(M+8+r,2)}, {v(M+12+r,2)}')
            for r in (0, 2): em(f'v_pk_add_f32 {v(M+r,2)}, {v(M+r,2)}, {v(M+8+r,2)}')
            em(f'v_cmp_gt_u32 vcc, 2176, {t16}')
            for r in range(4): em(f'v_and_or_b32 {v(M+r)}, {v(M+r)}, {sMaskInv}, {tg}')
            em(f's_mul_i32 {sT2}, {sG}, {MSG_B}'); em(f's_add_u32 {sT2}, {sT2}, {sJmsg}')
            em('s_mov_b64 exec, vcc')
            self.wsstore(v(M, 4), t16, sT2, moff, sc=' sc1', tag='msg')
            em(f'ds_write_b128 {A0}, {v(M,4)}')
            em('s_mov_b64 exec, -1')
            em.wait_lg(0)
        self.only_wave(3, msg_out, invert=True)
        em(f'v_lshrrev_b32 {A0}, 4, {vLane}'); em(f'v_mul_u32_u24 {A0}, {MSG_B}, {A0}'); em(f'v_and_b32 {A1}, 15, {vLane}')
        em(f'v_lshl_add_u32 {ga}, {A1}, 4, {A0}'); em(f's_lshl_b32 {sT2}, {sW}, 9'); em(f'v_add_u32 {ga}, {sT2}, {ga}')
        em(f'v_lshlrev_b32 {uk}, 3, {A1}'); em(f'v_lshl_add_u32 {uk}, {vHi}, 2, {uk}')
        em(f'v_lshlrev_b32 {im}, 4, {A1}'); em(f's_add_u32 {sT2}, {sWl}, {IMG}'); em(f'v_add_u32 {im}, {sT2}, {im}')
        def w3(f): self.only_wave(3, f)
        def drop(): em.vmq = [p for p in em.vmq if p.tag != 'g']
        def g_loads():
            for s_ in range(4):
                em(f's_lshr_b32 {sR}, {sG}, 2'); em(f's_add_u32 {sR}, {sR}, {s_}'); em(f's_and_b32 {sR}, {sR}, 3'); em(f's_mul_i32 {sR}, {sR}, {4*MSG_B}')
                em(f's_add_u32 {sR}, {sR}, {sJmsg}'); em(f's_add_u32 {sR}, {sR}, {moff}')
                if s_ == 0: em(f's_mov_b64 exec, {sX0}')
                for k in range(2): em(f'buffer_load_dwordx4 {v(G+16*k+4*s_,4)}, {ga}, {SWS}, {sR} offen offset:{k*256} sc1', tag='g')
                if s_ == 0: em('s_mov_b64 exec, -1')
            def z():
                for s_ in range(2):
                    em(f's_lshr_b32 {sR}, {sG}, 3'); em(f's_xor_b32 {sR}, {sR}, {s_}'); em(f's_mul_i32 {sR}, {sR}, {8*MSG_B}'); em(f's_add_u32 {sR}, {sR}, {sJmsg}')
                    if s_ == 0: em(f's_mov_b64 exec, {sX1}')
                    self.wsload(v(Z + 4 * s_, 4), gz, sR, moff + 2048, tag='g')
                    if s_ == 0: em('s_mov_b64 exec, -1')
                drop()
            drop(); w3(z)
            self.gmark = set(id(p) for p in em.vmq)
        def own_fill():
            em(f's_not_b64 exec, {sX0}')
            for k in range(2): em(f'ds_read_b128 {v(G+16*k,4)}, {im} offset:{k*256}')
            em('s_mov_b64 exec, -1')
            def z():
                em(f'v_and_b32 {A0}, 7, {vLane}'); em(f'v_lshlrev_b32 {A0}, 4, {A0}'); em(f'v_add_u32 {A0}, {IMG + 3584:#x}, {A0}')
                em(f's_not_b64 exec, {sX1}')
                em(f'ds_read_b128 {v(Z,4)}, {A0}')
                em('s_mov_b64 exec, -1')
                em.wait_lg(0)
            w3(z)
        def g_check():
            em(f'v_xor_b32 {A0}, {v(G)}, {tg}'); em(f'v_xor_b32 {A1}, {v(G+3)}, {tg}')
            for q in range(1, 8):
                em(f'v_bitop3_b32 {A0}, {v(G+4*q)}, {tg}, {A0} bitop3:0xbe'); em(f'v_bitop3_b32 {A1}, {v(G+4*q+3)}, {tg}, {A1} bitop3:0xbe')
            def z():
                for r in (0, 4): em(f'v_bitop3_b32 {A0}, {v(Z+r)}, {tg}, {A0} bitop3:0xbe'); em(f'v_bitop3_b32 {A1}, {v(Z+r+3)}, {tg}, {A1} bitop3:0xbe')
            w3(z)
            em(f'v_or_b32 {A0}, {A0}, {A1}'); em(f'v_and_b32 {A0}, 0xff, {A0}'); em(f'v_cmp_ne_u32 vcc, 0, {A0}')
        def rows(B, scale):
            em(f'v_permlane16_swap_b32 {v(B)}, {v(B+1)}'); em(f'v_permlane16_swap_b32 {v(B+2)}, {v(B+3)}')
            em(f'v_add_f32 {v(B)}, {v(B)}, {v(B+1)}'); em(f'v_add_f32 {v(B+2)}, {v(B+2)}, {v(B+3)}')
            em(f'v_permlane32_swap_b32 {v(B)}, {v(B+2)}'); em(f'v_add_f32 {v(B)}, {v(B)}, {v(B+2)}')
            if scale: em(f'v_mul_f32 {v(B)}, {sLn2}, {v(B)}')
            em(f'v_mov_b32 {v(B+1)}, {v(B)}')
            em(f'v_permlane16_swap_b32 {v(B)}, {v(B+1)}'); em(f'v_cvt_pk_bf16_f32 {v(B)}, {v(B)}, {v(B+1)}')
        def g_finish():
            for k in range(2):
                B = G + 16 * k
                for r in (0, 2): em(f'v_pk_add_f32 {v(B+r,2)}, {v(B+r,2)}, {v(B+4+r,2)}')
                for r in (0, 2): em(f'v_pk_add_f32 {v(B+8+r,2)}, {v(B+8+r,2)}, {v(B+12+r,2)}')
            for k in range(2):
                B = G + 16 * k
                for r in (0, 2): em(f'v_pk_add_f32 {v(B+r,2)}, {v(B+r,2)}, {v(B+8+r,2)}')
            rows(G, True); rows(G + 16, True)
            em('s_mov_b32 exec_lo, 0xffff'); em('s_mov_b32 exec_hi, 0xffff')
            for k in range(2): self.wsstore(v(G + 16 * k), uk, sKTo, koff, width=1, off=k * 128, tag='kt')
            em('s_mov_b64 exec, -1')
            def z():
                for r in (0, 2): em(f'v_pk_add_f32 {v(Z+r,2)}, {v(Z+r,2)}, {v(Z+4+r,2)}')
                for r in range(4): em(f'v_add_f32_dpp {v(Z+r)}, {v(Z+r)}, {v(Z+r)} row_ror:8 {DPPM}')
                rows(Z, False)
                em('s_mov_b32 exec_lo, 0xff'); em('s_mov_b32 exec_hi, 0xff')
                self.wsstore(v(Z), uz, sLine, koff + 512, width=1, tag='kt')
                em('s_mov_b64 exec, -1')
            w3(z)
            em(f's_mov_b32 {sOK}, 1')
        def if_pending(f):
            L = em.newlabel('Lp')
            em(f's_cmp_lg_u32 {sOK}, 0'); em(f's_cbranch_scc1 {L}')
            em.cond_begin(); f(); drop(); em.cond_end()
            em.label(L)
            self.gmark = set(id(p) for p in em.vmq)
        def attempt():
            em.force_wait(vm=len([p for p in em.vmq if id(p) not in self.gmark]), lg=0)
            g_check()
            L = em.newlabel('La'); E2 = em.newlabel('Lb')
            em(f's_cbranch_vccnz {L}')
            em.cond_begin(); g_finish(); em.cond_end()
            em(f's_branch {E2}')
            em.label(L)
            g_loads()
            em.label(E2)
        def loop():
            L = em.newlabel('Lg'); D = em.newlabel('Lgd')
            em.force_wait(vm=len([p for p in em.vmq if id(p) not in self.gmark]))
            em.label(L)
            g_check()
            em(f's_cbranch_vccz {D}')
            em.cond_begin(); g_loads(); em.force_wait(vm=0); em.cond_end()
            self.spin_tail(L)
            em.label(D)
            g_finish()
        def kt_resets():
            em(f'v_mov_b32 {A0}, -1')
            em('s_mov_b32 exec_lo, 0xffff'); em('s_mov_b32 exec_hi, 0xffff')
            for ll in range(2):
                for k in range(2): self.wsstore(A0, uk, sKTo, ll * 16 * KT_B, width=1, off=k * 128, tag='rst')
            em('s_mov_b64 exec, -1')
            def z():
                em('s_mov_b32 exec_lo, 0xff'); em('s_mov_b32 exec_hi, 0xff')
                for ll in range(2): self.wsstore(A0, uz, sLine, ll * 16 * KT_B + 512, width=1, tag='rst')
                em('s_mov_b64 exec, -1')
            w3(z)
        em(f's_mov_b32 {sOK}, 0')
        if l == 0: kt_resets()
        if o.gfirst < 0: g_loads()
        self.ts('msg')
        side = Side(em)
        if l == 0: side.add(*self.cs_read_items(['q'], V))
        side.add(self.barrier, own_fill)
        self.p1_bg(l, side)
        def fillq(ks):
            if ks == o.gfirst: g_loads()
            if ks == o.gstep: if_pending(attempt)
            return o.fill_p1
        self.pass1(self.pl['q'], Q, side, fillq)
        self.emit(self.corr_items('q', Q, False))
        side.flush()
        if self.lin:
            self.lin = False
            em(f'v_lshlrev_b32 {v(TMP)}, 8, {vHi}')
            for i in range(3): em(f'v_sub_u32 {vTr[i]}, {vTr[i]}, {v(TMP)}')
        self.barrier()
        self.ts('qpass')
        if o.gstep >= 32 or o.att2: if_pending(attempt)
        self.p1_after_q(l)
        self.emit(self.phi_items(Q, vRl, True, BB))
        self.wsstore(v(Q, 4), vL16, sQst, 0); self.wsstore(v(Q + 4, 4), vL16, sQst, 0, off=1024)
        if l == 0: self.emit(self.reset_items(V, o.rst1))
        self.kt_addr()
        if not o.ts2: self.ts('qst')
        def cs_reduce():
            C = BB
            L0 = em.newlabel('Lc'); L = em.newlabel('Lc'); D = em.newlabel('Lc')
            em(f's_cmp_ge_u32 {sCsp}, 3'); em(f's_cbranch_scc1 {L0}')
            em.cond_begin()
            em(f's_lshl_b32 {sR}, {sCsp}, 7'); em(f's_add_u32 {sR}, {sR}, {sJmsg}')
            em.label(L)
            self.wsload(v(C, 4), gz, sR, 2176); self.wsload(v(C + 4, 4), gz, sR, 2176 + 8 * MSG_B)
            em(f'v_xor_b32 {A0}, {v(C)}, {tg}')
            for r in range(1, 8): em(f'v_bitop3_b32 {A0}, {v(C+r)}, {tg}, {A0} bitop3:0xbe')
            em(f'v_and_b32 {A0}, 0xff, {A0}'); em(f'v_cmp_ne_u32 vcc, 0, {A0}')
            em(f's_cbranch_vccz {D}')
            self.spin_tail(L)
            em.label(D)
            for r in (0, 2): em(f'v_pk_add_f32 {v(C+r,2)}, {v(C+r,2)}, {v(C+4+r,2)}')
            for r in range(4): em(f'v_add_f32_dpp {v(C+r)}, {v(C+r)}, {v(C+r)} row_ror:8 {DPPM}')
            em(f'v_permlane16_swap_b32 {v(C)}, {v(C+1)}'); em(f'v_permlane16_swap_b32 {v(C+2)}, {v(C+3)}')
            em(f'v_add_f32 {v(C)}, {v(C)}, {v(C+1)}'); em(f'v_add_f32 {v(C+2)}, {v(C+2)}, {v(C+3)}')
            em(f'v_permlane32_swap_b32 {v(C)}, {v(C+2)}'); em(f'v_add_f32 {v(C)}, {v(C)}, {v(C+2)}')
            em(f'v_cvt_pk_bf16_f32 {v(C+1)}, {v(C)}, {v(C)}'); em(f'v_lshlrev_b32 {v(C+1)}, 16, {v(C+1)}'); em(f'v_sub_f32 {v(C+1)}, {v(C)}, {v(C+1)}')
            em(f'v_cvt_pk_bf16_f32 {v(C)}, {v(C)}, {v(C+1)}')
            em(f'v_and_b32 {v(C+1)}, 7, {vLane}'); em(f'v_lshlrev_b32 {v(C+1)}, 4, {v(C+1)}'); em(f'v_lshrrev_b32 {v(C+2)}, 4, {vLane}'); em(f'v_lshl_add_u32 {v(C+1)}, {v(C+2)}, 2, {v(C+1)}')
            em(f's_mul_i32 {sT2}, {sJ}, 384'); em(f's_lshl_b32 {sR}, {sCsp}, 7'); em(f's_add_u32 {sT2}, {sT2}, {sR}')
            em('s_mov_b32 exec_lo, 0x00ff00ff'); em('s_mov_b32 exec_hi, 0x00ff00ff')
            self.wsstore(v(C), v(C + 1), sT2, WS_CS, width=1, sc=' sc1', tag='kt')
            em('s_mov_b64 exec, -1')
            em.cond_end()
            em.label(L0)
        def streams():
            self.p1_gap(l)
            n = o.share if l == 0 else o.share2
            for m in range(n): self.w1dma(0, m, 'w1a'); self.w1dma(1, m, 'w1a')
            self.w1_todo = list(range(n, 4)) + [m for m in self.w1_todo if m >= 4]
        def mid():
            self.gmark = set()
            if_pending(attempt)
            if not o.ts2: self.ts('kvpoll')
            if l == 0: cs_reduce()
            if o.xorder == 0: streams()
        self.group_sync(4 * l + 0, mid=mid, bar=False, tags=None, modeB=True)
        def after_q_loads():
            if_pending(loop)
            self.ts('gdone')
            if o.xorder == 1: streams()
        self.p2_hook = after_q_loads

    def w1dma(self, p, m, tag):
        if 'w1' in self.o.abl and self.S: return
        if self.o.w1r:
            if p != 1: self.em(f's_and_b32 {sR}, {sXm[m]}, 0x7000'); self.em(f's_add_u32 {sR}, {sR}, {sW1c2 if p == 2 else sW1c0}')
            return self.dma(SWS, vL16, sR, 65536 if p == 1 else 0, self.w1pl[p][m], tag)
        if p != 1: self.rot(m, 64 * 2752, sW1c2 if p == 2 else sW1c0)
        if p == 1: self.em(f's_add_u32 {sR}, {sR}, {sW1d}')
        self.dma(SW1, vD1, sR, 0, self.w1pl[p][m], tag)

    def p1_bg(self, l, side):
        em = self.em; o = self.o
        self.w1pl = [[16, 17, 18, 19, 24, 25, 26, 27], [20, 21, 22, 23, 28, 29, 30, 31], list(range(32, 40))]
        pad = [lambda: None] * o.bgpad
        if l == 0:
            def res():
                t = v(ACC + 22)
                em(f'v_lshrrev_b32 {t}, 2, {vLane}'); em(f's_lshl_b32 {sT2}, {sW}, 4'); em(f'v_add_u32 {t}, {sT2}, {t}'); em(f'v_lshlrev_b32 {t}, 10, {t}')
                em(f'v_and_b32 {v(ACC+23)}, 3, {vLane}'); em(f'v_lshl_add_u32 {t}, {v(ACC+23)}, 4, {t}')
                em(f'buffer_load_dwordx4 {a(RES,4)}, {t}, {SX}, {sOutRow} offen', tag='res')
                em(f'buffer_load_dwordx4 {a(RES+4,4)}, {t}, {SX}, {sOutRow} offen offset:64', tag='res')
            if o.plate:
                V_ = ACC + 16; aW = a(80, 16)
                side.add(*[f'v_mov_b32 {v(MR+12+r)}, {v(CB+4)}' for r in range(4)])
                side.add(lambda: em.wait_vm_tag('w1p'))
                side.add(*self.tr(V_, 34, 0, self.OWN)); side.add(*self.tr(V_ + 4, 35, 0, self.OWN))
                side.add(f'{MF} {aW}, {v(MR+12,4)}, {v(V_,4)}, 0', f'{MF} {aW}, {v(MR+12,4)}, {v(V_+4,4)}, {aW}')
            side.add(res)
            if o.plate: side.add(lambda: self.w1s(ACC + 16))
            self.touch_at('q', side, v(ACC + 22))
            side.add(self.late_setup)
            for i in range(5): side.add(lambda i=i: self.stage_dma(SWO, i, self.stq[2 * i], self.stq[2 * i + 1], 'wo'), *pad)
            if o.rstpos == 0: side.add(*self.reset_items(ACC + 8, o.rst1))
            self.w1_todo = [4, 5, 6, 7]
        else:
            m0 = 4 + self.w1_pre; m1 = max(m0, min(8, 4 + o.w1_early))
            for m in range(m0, m1): side.add(lambda m=m: (self.w1dma(0, m, 'w1a'), self.w1dma(1, m, 'w1a')), *pad)
            self.w1_todo = list(range(m1, 8))
            if o.t4: side.q = self.img_m3(S_ADDR, v(TMP), v(TMP + 1)) + self.img_io('r', v(TMP), 64) + side.q
            for m in range(o.cq): side.add(lambda m=m: self.w1dma(2, m, 'w1a'), *pad)

    def late_setup(self):
        em = self.em
        em(f's_sub_u32 {sW1d}, {sW1c2}, {sW1c0}')
        if self.o.w1r:
            em(f's_mul_i32 {sW1c0}, {sJ}, 98304'); em(f's_add_u32 {sW1c0}, {sW1c0}, {sWl}'); em(f's_add_u32 {sW1c0}, {sW1c0}, {WS_W1R}')
        em(f's_add_u32 {sW1c2}, {sW1c0}, {32768 if self.o.w1r else 64}')
        if self.o.zpl: em(f's_cmp_lt_u32 {sJ}, 11'); em(f's_cselect_b32 {sW1c2}, {sW1c2}, 0x10000000')
        em(f's_lshl_b32 {sT2}, {sW}, 13'); em(f's_add_u32 {sT2}, {sT2}, {S_ADDR}'); em(f'v_add_u32 {vRW}, {sT2}, {vL16}')
        em(f's_lshr_b32 {sT}, {sW}, 1'); em(f's_lshl_b32 {sT2}, {sT}, 12'); em(f's_and_b32 {sR}, {sW}, 1'); em(f's_lshl_b32 {sR}, {sR}, 8')
        em(f's_add_u32 {sT2}, {sT2}, {sR}'); em(f's_add_u32 {sT2}, {sT2}, {S_ADDR}')
        em(f'v_lshl_add_u32 {vRR}, {vHi}, 10, {vP}'); em(f'v_add_u32 {vRR}, {sT2}, {vRR}')
        for m in range(8):
            em(f's_add_u32 {sXm[m]}, {sRot}, {m}'); em(f's_and_b32 {sXm[m]}, {sXm[m]}, 7'); em(f's_and_b32 {sR}, {sXm[m]}, 1')
            em(f's_lshl_b32 {sXm[m]}, {sXm[m]}, 1'); em(f's_add_u32 {sXm[m]}, {sXm[m]}, {sR}'); em(f's_lshl_b32 {sXm[m]}, {sXm[m]}, 11'); em(f's_xor_b32 {sXl[m]}, {sXm[m]}, 2048')
        for k in range(4):
            w0, w1_ = [sum(m << (5 * i) for i, m in enumerate(ORD4[c][6 * k:6 * k + 6])) for c in range(2)]
            em(f's_mov_b32 {sTab[k]}, {w0:#x}'); em(f's_cmp_eq_u32 {sT}, 0'); em(f's_cselect_b32 {sTab[k]}, {sTab[k]}, {w1_:#x}')

    def p1_after_q(self, l):
        if l == 0:
            for i in range(5, 8): self.stage_dma(SWO, i, self.stq[2 * i], self.stq[2 * i + 1], 'wo')

    def p1_gap(self, l):
        em = self.em; o = self.o
        if l == 0:
            em.wait_vm_tag('wo')
            for i in range(8): self.emit(self.stage_read_items(WOA, i, self.stq[2 * i], self.stq[2 * i + 1]))
            em.wait_lg(0)
            self.res_first()
            self.w2next = 0
            self.b1 = self.w2_batch(list(range(32, 40))[:2 * o.w2b1], 'w2a')
            for m in range(4, 4 + o.w1_gap): self.w1dma(0, m, 'w1a'); self.w1dma(1, m, 'w1a')
            self.w1_todo = list(range(4 + o.w1_gap, 8))
            if o.b1gap: self.emit(self.b1[0])

    def p1_loader(self, l, w):
        em = self.em; o = self.o
        vo = v(TMP)
        em(f'v_subrev_u32 {vo}, {w*16*2752}, {vD1}')
        for m in range(o.w1_solo):
            self.rot(m, 64 * 2752, sW1c0)
            for s in range(4):
                if s == 0: em(f's_add_u32 {sFx}, {sR}, {sW1d}')
                for p in range(2): self.dma(SW1, vo, sFx if p else sR, s * 16 * 2752, self.w1pl[p][m], 'solo', slot=s)
                if o.thr: em.force_wait(vm=o.thr)
        self.w1_todo = list(range(o.w1_solo, 4)) + [m for m in self.w1_todo if m >= 4]

    def w2_batch(self, quads, tag):
        steps = list(range(self.w2next, min(22, self.w2next + len(quads) // 2)))
        self.w2next += len(steps)
        issue = [lambda k=k, m=m: self.stage_dma(SW2, m, quads[2 * k], quads[2 * k + 1], tag) for k, m in enumerate(steps)]
        read = [lambda: self.em.wait_vm_tag(tag)] if steps else []
        for k, m in enumerate(steps): read += self.stage_read_items(W2A, m, quads[2 * k], quads[2 * k + 1])
        return issue, read

    def res_first(self):
        em = self.em
        t0, t1, t2 = v(TMP), v(TMP + 1), v(TMP + 2)
        em(f's_add_u32 {sT2}, {sWl}, {self.S}')
        em(f'v_add_u32 {t0}, {sT2}, {vL16}')
        em(f'v_and_b32 {t1}, 15, {vLane}'); em(f'v_lshlrev_b32 {t1}, 6, {t1}'); em(f'v_lshl_add_u32 {t1}, {vHi}, 5, {t1}')
        em(f'v_bfe_u32 {t2}, {vLane}, 4, 1'); em(f'v_lshl_add_u32 {t1}, {t2}, 3, {t1}'); em(f'v_add_u32 {t1}, {sT2}, {t1}')
        for h in range(2): em(f'ds_write_b128 {t0}, {a(RES+4*h,4)} offset:{h*4096}')
        em.wait_lg(0)
        for h in range(2):
            em(f'ds_read_b64 {a(RES+4*h,2)}, {t1} offset:{h*4096}'); em(f'ds_read_b64 {a(RES+4*h+2,2)}, {t1} offset:{h*4096+16}')
        em.wait_lg(0)
    def res_last_items(self, lds):
        t0, t1, t2 = v(TMP), v(TMP + 1), v(TMP + 2)
        it = [f'v_and_b32 {t0}, 15, {vLane}', f'v_mul_u32_u24 {t0}, 144, {t0}', f'v_lshl_add_u32 {t0}, {vHi}, 5, {t0}',
              f'v_bfe_u32 {t1}, {vLane}, 4, 1', f'v_lshl_add_u32 {t0}, {t1}, 3, {t0}',
              f's_mul_i32 {sT2}, {sW}, {16*144}', f's_add_u32 {sT2}, {sT2}, {lds}', f'v_add_u32 {t0}, {sT2}, {t0}',
              f'v_lshrrev_b32 {t1}, 3, {vLane}', f'v_mul_u32_u24 {t1}, 144, {t1}', f'v_and_b32 {t2}, 7, {vLane}', f'v_lshl_add_u32 {t1}, {t2}, 4, {t1}',
              f's_mul_i32 {sT2}, {sW}, {8*144}', f's_add_u32 {sT2}, {sT2}, {lds}', f'v_add_u32 {t1}, {sT2}, {t1}']
        for c in range(2):
            it += [f'ds_write_b64 {t0}, {a(RES+4*c,2)} offset:{c*64}', f'ds_write_b64 {t0}, {a(RES+4*c+2,2)} offset:{c*64+16}']
        it2 = [f'ds_read_b128 {a(RES+4*h,4)}, {t1} offset:{h*32*144}' for h in range(2)]
        return it, it2
    def img_m3(self, lds, t0, t1):
        return [f'v_and_b32 {t0}, 15, {vLane}', f'v_mul_u32_u24 {t0}, 144, {t0}', f'v_lshl_add_u32 {t0}, {vHi}, 5, {t0}',
                f'v_bfe_u32 {t1}, {vLane}, 4, 1', f'v_lshl_add_u32 {t0}, {t1}, 3, {t0}',
                f's_mul_i32 {sT2}, {sW}, {16*144}', f's_add_u32 {sT2}, {sT2}, {lds}', f'v_add_u32 {t0}, {sT2}, {t0}']
    def img_m1(self, lds, t0, t1):
        return [f'v_and_b32 {t0}, 7, {vLane}', f'v_mul_u32_u24 {t0}, 144, {t0}', f'v_lshrrev_b32 {t1}, 4, {vLane}', f'v_lshl_add_u32 {t0}, {t1}, 5, {t0}',
                f'v_bfe_u32 {t1}, {vLane}, 3, 1', f'v_lshl_add_u32 {t0}, {t1}, 3, {t0}',
                f's_mul_i32 {sT2}, {sW}, {8*144}', f's_add_u32 {sT2}, {sT2}, {lds}', f'v_add_u32 {t0}, {sT2}, {t0}']
    def img_io(self, op, t0, step):
        it = []
        for c in range(2):
            for k in range(2):
                r = a(RES + 4 * c + 2 * k, 2); off = c * step + k * 16
                it.append(f'ds_write_b64 {t0}, {r} offset:{off}' if op == 'w' else f'ds_read_b64 {r}, {t0} offset:{off}')
        return it
    def m1_addr_items(self):
        W_, R_, O_, SS, SM = (v(BB + i) for i in range(5)); t0, t1, t2 = v(BB + 5), v(BB + 6), v(BB + 7)
        return [f'v_lshlrev_b32 {t1}, 7, {vHi}', f'v_xor_b32 {W_}, {t1}, {vRW}',
                f'v_and_b32 {t0}, 7, {vLane}', f's_lshl_b32 {sT2}, {sW}, 3', f'v_add_u32 {t0}, {sT2}, {t0}',
                f'v_lshrrev_b32 {t1}, 3, {vLane}', f'v_lshlrev_b32 {t1}, 9, {t1}', f'v_lshl_add_u32 {SM}, {t0}, 4, {t1}',
                f's_and_b32 {sT2}, {sJ}, 1', f's_lshl_b32 {sT2}, {sT2}, 11', f'v_xor_b32 {O_}, {sT2}, {SM}',
                f'v_bfe_u32 {t1}, {vLane}, 3, 1', f'v_lshrrev_b32 {t2}, 4, {vLane}',
                f'v_lshlrev_b32 {SS}, 4, {t0}', f'v_lshl_add_u32 {SS}, {t2}, 10, {SS}',
                f'v_lshlrev_b32 {R_}, 3, {t1}', f'v_xor_b32 {R_}, {R_}, {t0}', f'v_lshlrev_b32 {R_}, 4, {R_}',
                f'v_lshl_add_u32 {R_}, {t1}, 9, {R_}', f'v_lshl_add_u32 {R_}, {t2}, 11, {R_}', f'v_add_u32 {R_}, {self.S:#x}, {R_}']
    def reduce_m1(self, half, acc0, acc1, R, U, rs, unpack):
        em = self.em
        it = [f'ds_write_b128 {v(BB)}, {v((acc0 if c < 4 else acc1) + 4 * (c & 3), 4)} offset:{c*1024}' for c in range(8)]
        it.append(self.barrier)
        for w in range(4):
            it.append(f'ds_read_b128 {v(R+8*w,4)}, {v(BB+1)} offset:{w*8192}'); it.append(f'ds_read_b128 {v(R+8*w+4,4)}, {v(BB+1)} offset:{w*8192+1024}')
        if unpack: it += self.unpack_items(half, U)
        add = lambda d, s_: [f'v_pk_add_f32 {v(d+r,2)}, {v(d+r,2)}, {v(s_+r,2)}' for r in range(0, 8, 2)]
        it += add(R, R + 8) + add(R + 16, R + 24) + add(R, R + 16)
        it += [f'v_pk_fma_f32 {v(R+r,2)}, {v(R+r,2)}, {v(rs,2)}, {v(U+r,2)} op_sel_hi:[1,0,1]' for r in range(0, 8, 2)]
        P = R + 8
        for r in range(4): it.append(f'v_cvt_pk_bf16_f32 {v(P+r)}, {v(R+2*r)}, {v(R+2*r+1)}')
        it += [f'v_accvgpr_write_b32 {a(RES+4*half)}, {v(P)}', f'v_and_b32 {v(P)}, -2, {v(P)}']
        def stx():
            em(f's_lshr_b32 {sT}, {sW}, 1'); em(f's_lshl_b32 {sT}, {sT}, 15'); em(f's_sub_u32 {sT}, {sXst}, {sT}')
            em(f's_and_b32 {sT2}, {sW}, 1'); em(f's_lshl_b32 {sT2}, {sT2}, 8'); em(f's_sub_u32 {sT}, {sT}, {sT2}')
            em(f's_add_u32 {sT}, {sT}, {half*32768}')
            em(f'buffer_store_dwordx4 {v(P,4)}, {v(BB+2)}, {SWS}, {sT} offen' + self.sc, tag='st')
        it.append(stx)
        S, Q, T = R + 16, R + 18, v(R + 20)
        it += [f'v_pk_add_f32 {v(S,2)}, {v(R,2)}, {v(R+2,2)}', f'v_pk_mul_f32 {v(Q,2)}, {v(R,2)}, {v(R,2)}', f'v_pk_fma_f32 {v(Q,2)}, {v(R+2,2)}, {v(R+2,2)}, {v(Q,2)}']
        for r in (4, 6): it += [f'v_pk_add_f32 {v(S,2)}, {v(S,2)}, {v(R+r,2)}', f'v_pk_fma_f32 {v(Q,2)}, {v(R+r,2)}, {v(R+r,2)}, {v(Q,2)}']
        it += [f'v_add_f32 {v(S)}, {v(S)}, {v(S+1)}', f'v_add_f32 {v(Q)}, {v(Q)}, {v(Q+1)}', f'v_accvgpr_write_b32 {a(RES+4*half+1)}, {v(P+1)}',
               f'v_add_f32_dpp {v(S)}, {v(S)}, {v(S)} row_ror:8 {DPPM}', f'v_add_f32_dpp {v(Q)}, {v(Q)}, {v(Q)} row_ror:8 {DPPM}',
               f'v_accvgpr_write_b32 {a(RES+4*half+2)}, {v(P+2)}', f'v_accvgpr_write_b32 {a(RES+4*half+3)}, {v(P+3)}',
               f'v_permlane16_swap_b32 {v(S)}, {v(Q)}', f'v_add_f32 {v(S)}, {v(S)}, {v(Q)}', f'v_mov_b32 {T}, {v(S)}', f'v_permlane32_swap_b32 {v(S)}, {T}',
               f'v_add_f32 {v(S)}, {v(S)}, {T}', f'v_or_b32 {v(S)}, 1, {v(S)}']
        def st2():
            em(f's_sub_u32 {sT}, {sStst}, {sStM}'); em(f's_add_u32 {sT}, {sT}, {sStR}'); em(f's_add_u32 {sT}, {sT}, {16*8192 + half*2048}')
            em('s_mov_b32 exec_lo, 0x00ff00ff'); em('s_mov_b32 exec_hi, 0')
            em(f'buffer_store_dword {v(S)}, {v(BB+3)}, {SWS}, {sT} offen' + self.sc, tag='st')
            em('s_mov_b64 exec, -1')
        it.append(st2)
        return it
    def kt_addr(self):
        em = self.em
        t0, t1, t2 = v(TMP + 1), v(TMP + 2), v(TMP + 3)
        em(f'v_and_b32 {t0}, 15, {vLane}'); em(f'v_lshlrev_b32 {t0}, 4, {t0}'); em(f'v_lshl_add_u32 {t0}, {vHi}, 8, {t0}')
        em(f'v_lshlrev_b32 {t1}, 4, {vHi}'); em(f'v_add_u32 {t1}, 512, {t1}'); em(f'v_and_b32 {t2}, 16, {vLane}'); em(f'v_cmp_ne_u32 vcc, 0, {t2}')
        em(f'v_cndmask_b32 {t0}, {t0}, {t1}, vcc'); em(f's_mul_i32 {sT2}, {sW}, 544'); em(f'v_add_u32 {v(vKT)}, {sT2}, {t0}')
        if self.o.rep8: em(f's_and_b32 {sT2}, s2, 7'); em(f's_mul_i32 {sT2}, {sT2}, {KC}'); em(f'v_add_u32 {v(vKT)}, {sT2}, {v(vKT)}')
    def final_addr_items(self):
        t0, t1, t2 = v(20), v(21), v(MR)
        it = [f's_lshl_b32 {sT2}, {sW}, 13', f's_add_u32 {sT2}, {sT2}, {self.S}', f'v_add_u32 {v(FW)}, {sT2}, {vL16}']
        it += [f'v_xor_b32 {v(FW+i)}, {64*i}, {v(FW)}' for i in range(1, 4)]
        it += [f'v_and_b32 {t1}, 7, {vLane}', f's_lshl_b32 {sT2}, {sW}, 3', f'v_add_u32 {t0}, {sT2}, {t1}',
               f'v_lshrrev_b32 {t2}, 3, {vLane}', f'v_lshlrev_b32 {v(FB)}, 2, {t2}', f'v_lshlrev_b32 {v(FS)}, 9, {t2}', f'v_lshl_add_u32 {v(FS)}, {t0}, 4, {v(FS)}',
               f's_lshl_b32 {sT2}, {sW}, 3', f'v_add_u32 {t0}, {sT2}, {t2}',
               f'v_lshlrev_b32 {v(FO)}, 10, {t0}', f'v_lshl_add_u32 {v(FO)}, {t1}, 4, {v(FO)}',
               f'v_and_b32 {t2}, 3, {vLane}', f'v_lshlrev_b32 {t2}, 2, {t2}', f'v_xor_b32 {t2}, {t2}, {t0}', f'v_lshlrev_b32 {t2}, 4, {t2}',
               f'v_lshl_add_u32 {v(FR)}, {t1}, 10, {t2}', f'v_add_u32 {v(FR)}, {self.S:#x}, {v(FR)}']
        return it

    def unpack_items(self, half, U):
        it = [f'v_accvgpr_read_b32 {v(U+2*r+1)}, {a(RES+4*half+r)}' for r in range(4)]
        for r in range(4):
            it += [f'v_lshlrev_b32 {v(U+2*r)}, 16, {v(U+2*r+1)}', f'v_and_b32 {v(U+2*r+1)}, 0xffff0000, {v(U+2*r+1)}']
        return it
    def reduce_items(self, half, acc0, acc1, R, U, rs, xoff, sti, final, unpack, after_store=()):
        em = self.em
        it = []
        for c in range(8):
            src = v((acc0 if c < 4 else acc1) + 4 * (c & 3), 4)
            it.append(f'ds_write_b128 {v(FW + (c & 3)) if final else vRW}, {src} offset:{c*1024}')
        it.append(self.barrier)
        o2 = 512 if final else 1024; rd = v(FR) if final else vRR
        for w in range(4):
            it.append(f'ds_read_b128 {v(R+8*w,4)}, {rd} offset:{w*8192}'); it.append(f'ds_read_b128 {v(R+8*w+4,4)}, {rd} offset:{w*8192+o2}')
        if unpack: it += self.unpack_items(half, U)
        add = lambda d, s_: [f'v_pk_add_f32 {v(d+r,2)}, {v(d+r,2)}, {v(s_+r,2)}' for r in range(0, 8, 2)]
        if rs is None: it += add(R, U)
        it += add(R, R + 8) + add(R + 16, R + 24) + add(R, R + 16)
        if rs is not None: it += [f'v_pk_fma_f32 {v(R+r,2)}, {v(R+r,2)}, {v(rs,2)}, {v(U+r,2)} op_sel_hi:[1,0,1]' for r in range(0, 8, 2)]
        P = R + 8
        for r in range(4): it.append(f'v_cvt_pk_bf16_f32 {v(P+r)}, {v(R+2*r)}, {v(R+2*r+1)}')
        if final:
            def st():
                em(f's_add_u32 {sT}, {sOutRow}, {half*32768}')
                em(f'buffer_store_dwordx4 {v(P,4)}, {v(FO)}, {SOUT}, {sT} offen' + self.o.outsc, tag='st')
            it.append(st)
            return it
        it += [f'v_accvgpr_write_b32 {a(RES+4*half)}, {v(P)}', f'v_and_b32 {v(P)}, -2, {v(P)}' if sti == 1 else f'v_or_b32 {v(P)}, 1, {v(P)}']
        def stx():
            em(f's_and_b32 {sT}, {sJ}, 1'); em(f's_xor_b32 {sT}, {sT}, {half}'); em(f's_lshl_b32 {sT}, {sT}, 11'); em(f's_add_u32 {sT}, {sT}, {sXst}')
            em(f'buffer_store_dwordx4 {v(P,4)}, {vP}, {SWS}, {sT} offen' + self.sc, tag='st')
        it.append(stx)
        it += list(after_store)
        S, Q = AUX, AUX + 2
        if half == 0:
            it += [f'v_pk_add_f32 {v(S,2)}, {v(R,2)}, {v(R+2,2)}', f'v_pk_mul_f32 {v(Q,2)}, {v(R,2)}, {v(R,2)}', f'v_pk_fma_f32 {v(Q,2)}, {v(R+2,2)}, {v(R+2,2)}, {v(Q,2)}']
        for r in ((4, 6) if half == 0 else (0, 2, 4, 6)):
            it += [f'v_pk_add_f32 {v(S,2)}, {v(S,2)}, {v(R+r,2)}', f'v_pk_fma_f32 {v(Q,2)}, {v(R+r,2)}, {v(R+r,2)}, {v(Q,2)}']
        it += [f'v_accvgpr_write_b32 {a(RES+4*half+r)}, {v(P+r)}' for r in range(1, 4)]
        if half == 1:
            T = v(S + 1)
            it += [f'v_add_f32 {v(S)}, {v(S)}, {v(S+1)}', f'v_add_f32 {v(Q)}, {v(Q)}, {v(Q+1)}', f'v_and_b32 {v(Q+1)}, 512, {vP}', f'v_add_u32 {v(Q+1)}, {v(Q+1)}, {vP}',
                   f'v_permlane16_swap_b32 {v(S)}, {v(Q)}', f'v_add_f32 {v(S)}, {v(S)}, {v(Q)}', f'v_mov_b32 {T}, {v(S)}', f'v_permlane32_swap_b32 {v(S)}, {T}', f'v_add_f32 {v(S)}, {v(S)}, {T}',
                   f'v_or_b32 {v(S)}, 1, {v(S)}']
            def st2():
                em('s_mov_b32 exec_hi, 0')
                self.wsstore(v(S), v(Q + 1), sStst, sti * 16 * 8192, width=1)
                em('s_mov_b64 exec, -1')
            it.append(st2)
        return it

    def two_halves(self, mfs, A, rs, xoff, sti, pre_wait=None, dmas=(), dmas2=()):
        em = self.em; o = self.o
        r0 = self.reduce_items(0, A[0][0], A[1][0], MR, BB, rs, xoff, sti, False, False)
        r1 = self.reduce_items(1, A[0][1], A[1][1], MR, BB + 8, rs, xoff, sti, False, False)
        W0, RD0, V0 = r0[:8], r0[9:17], r0[17:]
        W1, RD1, V1 = r1[:8], r1[9:17], r1[17:]
        fill = self.unpack_items(0, BB) + self.unpack_items(1, BB + 8)
        mfs = list(mfs)
        nA = len(mfs) - o.mfB
        wq = list(W0)
        for k in range(nA):
            mfs.pop(0)()
            if wq and (k * 8 >= (8 - len(wq)) * nA - 4): em(wq.pop(0))
            for t in fill[:3]: em(t)
            fill = fill[3:]
            if dmas and k % o.dgap == o.dgap - 1: dmas.pop(0)()
        self.emit(wq + fill + list(dmas))
        self.barrier()
        for k, t in enumerate(RD0):
            em(t)
            if k % 3 == 1 and mfs: mfs.pop(0)()
        self.emit(mfs)
        na = 12 if rs is None else 8
        self.emit(V0[:na]); V0 = V0[na:]
        if pre_wait: pre_wait()
        self.barrier()
        self.ts('h0')
        pf = [lambda: self.x_prefetch(xoff, 0, 0)] + [lambda i=i: self.xld(i) for i in range(o.pre)]
        n0 = o.pf0
        for k, t in enumerate(W1):
            em(t)
            self.emit(V0[:4]); V0 = V0[4:]
            if dmas2 and k % 3 == 0: dmas2.pop(0)()
            if k >= 8 - n0: self.emit(pf[:2 if len(pf) == o.pre + 1 else 1]); pf = pf[2 if len(pf) == o.pre + 1 else 1:]
        self.emit(V0)
        self.barrier()
        self.emit(RD1)
        self.emit(pf[:o.pf1 + (1 if len(pf) == o.pre + 1 else 0)]); pf = pf[o.pf1 + (1 if len(pf) == o.pre + 1 else 0):]
        ks = [k for k, t in enumerate(V1) if callable(t)][0]
        self.emit(V1[:ks + 1]); V1 = V1[ks + 1:]
        while pf or V1:
            self.emit(V1[:3]); V1 = V1[3:]
            self.emit(pf[:1]); pf = pf[1:]

    def p2(self, l):
        em = self.em; o = self.o
        KT, QF = AF, AF + 32
        A = [[ACC, ACC + 32], [ACC + 16, 232]]
        DB = [MR, MR + 16, BB]
        def rot2(i, stride, base):
            if not o.rot2:
                em(f's_add_u32 {sR}, {base}, {i * stride}' if base else f's_movk_i32 {sR}, {i * stride}'); return
            em(f's_add_u32 {sR}, {sRot2}, {i}'); em(f's_and_b32 {sR}, {sR}, 7'); em(f's_mul_i32 {sR}, {sR}, {stride}')
            if base: em(f's_add_u32 {sR}, {sR}, {base}')
        KB = lambda i: (ACC + 32 + 4 * i) if i < 4 else (232 + 4 * (i - 4))
        KA = lambda i: KT + 4 * i
        def ldk(i, B=KA):
            rot2(i, 2176, sRed if o.xc else None)
            self.wsload(v(B(i), 4), v(vKT), sR, l * 16 * KT_B if o.xc else (WS_KT8 + l * 8 * KC if o.rep8 else WS_KT + l * 0x8000), tag='K')
        def ldq(n): rot2(n % 8, 4096, sQR); self.wsload(v(QF + 4 * n, 4), vL16, sR, (n // 8) * 32768, tag='A')
        ck = v(TMP + 2)
        def kchk(B):
            em(f'v_max_u32 {ck}, {v(B(0))}, {v(B(0)+1)}')
            for i in range(1, 16): em(f'v_max3_u32 {ck}, {v(B(i//2)+2*(i%2))}, {v(B(i//2)+2*(i%2)+1)}, {ck}')
            em(f'v_cmp_eq_u32 vcc, -1, {ck}')
        L = em.newlabel('Lk'); D = em.newlabel('Lkd'); C = em.newlabel('Lkc')
        if o.kdual:
            for i in range(8): ldk(i)
            for n in range(16): ldq(n)
            for i in range(8): ldk(i, KB)
            em.wait_vm(8)
            em.vmq = []
            em.label(L)
            kchk(KA); em(f's_cbranch_vccz {D}')
            for i in range(8): ldk(i)
            em.force_wait(vm=8); em.vmq = []
            kchk(KB); em(f's_cbranch_vccz {C}')
            for i in range(8): ldk(i, KB)
            em.force_wait(vm=8); em.vmq = []
            self.spin_tail(L)
            em.label(C)
            for r in range(0, 32, 2): em(f'v_pk_mov_b32 {v(KT+r,2)}, {v(KB(r//4)+r%4,2)}, {v(KB(r//4)+r%4,2)} op_sel:[0,1]')
            em.label(D)
        else:
            kp = o.kpos if l else o.kpos0
            for n in range(kp): ldq(n)
            if o.kfirst and not o.xc:
                for i in range(8): ldk(i)
            for n in range(kp, 16): ldq(n)
            if self.p2_hook: self.p2_hook()
            if not o.kfirst or o.xc:
                for i in range(8): ldk(i)
            if l == 0: self.touch_at('p', None, v(254))
            if l == 0 and o.w2b1b:
                assert not (o.xorder & 1)
                self.emit(self.b1[1])
                self.b1 = self.w2_batch(list(range(32, 40))[:2 * o.w2b1b], 'w2f')
            em.label(L)
            kchk(KA)
            em(f's_cbranch_vccz {D}')
            em.cond_begin()
            for i in range(8): ldk(i)
            em.force_wait(vm=0)
            em.cond_end()
            self.spin_tail(L)
            em.label(D)
        self.ts('kt')
        if l == 0 and o.wb1:
            L = em.newlabel('Lwb')
            em(f's_lshr_b32 {sT}, s2, 3'); em(f's_or_b32 {sT}, {sT}, {sW}'); em(f's_cmp_lg_u32 {sT}, 0'); em(f's_cbranch_scc1 {L}')
            em.out.append(' buffer_wbl2 sc1')
            em.label(L)
        side = Side(em)
        def attn(n): em(f'{MF} {v(DB[n%3],16)}, {v(KT+4*(n%8),4)}, {v(QF+4*n,4)}, 0')
        def post(n):
            D = DB[n % 3]; O = QF + 4 * n; rc = v(D + 8)
            it = [f'v_add_f32 {rc}, {s1em6}, {rc}', f'v_rcp_f32 {rc}, {rc}']
            it += [f'v_mul_f32 {v(D+r)}, {v(D+r)}, {rc}' for r in range(8)]
            it += [f'v_cvt_pk_bf16_f32 {v(O+r)}, {v(D+2*r)}, {v(D+2*r+1)}' for r in range(4)]
            return it
        def wo(n, c):
            h, i = divmod(n, 8)
            cc = v(A[h][c], 16)
            em(f'{MF} {cc}, {a(WOA + i*8 + c*4, 4)}, {v(QF+4*n,4)}, ' + ('0' if i == 0 else cc))
        attn(0); attn(1)
        self.p2_bg(l, side)
        side.run(2)
        E1 = o.early1
        if o.p2pipe:
            self.emit(post(0)[:2] + post(1)[:2] + post(0)[2:])
            for n in range(16):
                nxt = post(n + 1)[2:] if n + 1 < 16 else []
                if n + 2 < 16: attn(n + 2)
                for t in nxt[:o.p2a]: em(t)
                wo(n, 0)
                for t in nxt[o.p2a:]: em(t)
                side.clk(o.gap2)
                if n + 2 < 16: self.emit(post(n + 2)[:2])
        else:
            self.emit(post(0))
            for n in range(16):
                nxt = post(n + 1) if n + 1 < 16 else []
                if n + 2 < 16: attn(n + 2)
                if nxt: em(nxt[0]); em(nxt[1])
                side.clk(o.gap2)
                for t in nxt[2:8]: em(t)
                wo(n, 0)
                for t in nxt[8:11]: em(t)
                if n < E1: wo(n, 1)
                for t in nxt[11:]: em(t)
        side.flush()
        if o.kdual:
            assert E1 == 0
            em.force_wait(vm=len(em.vmq))
        self.ts('p2loop')
        xoff = 0; sti = 2 * l
        pre = (self.b1[1] + [self.barrier]) if l == 0 else []
        self.emit(pre)
        pw = (lambda: em.force_wait(vm=0)) if (l == 0 and 'h' not in o.rst1) else None
        d0 = [lambda m=m: (self.w1dma(0, m, 'w1a'), self.w1dma(1, m, 'w1a')) for m in self.w1_tail]
        self.two_halves([lambda n=n: wo(n, 1) for n in range(E1, 16)], A, None, xoff, sti, pw, dmas=d0)
        self.p2_tail(l)

    def p2_bg(self, l, side):
        em = self.em
        if self.o.cpf2 & (1 if l == 0 else 4): side.add(lambda: self.code_pf(v(248, 4), v(252)))
        if self.o.retouch: side.add(lambda: self.retouch(0, v(254), v(254)))
        if l == 0:
            if 'h' not in self.o.rst1: side.add(*self.reset_items(248, 'h'))
            side.add(lambda: self.cs_loads(em))
            if self.o.w2b1b: side.add(lambda: em.wait_lg(0)); side.add(*self.b1[0])
        n0 = (self.o.sp0 if l == 0 else self.o.sp6)
        todo = self.w1_todo[:len(self.w1_todo) - n0]; self.w1_tail = self.w1_todo[len(self.w1_todo) - n0:]
        for m in todo: side.add(lambda m=m: (self.w1dma(0, m, 'w1a'), self.w1dma(1, m, 'w1a')))
        if l == 0: self.touch_at('s', side, v(254))
        if l == 1:
            for m in range(self.o.cq, 8): side.add(lambda m=m: self.w1dma(2, m, 'w1a'))
    def retouch(self, off, vt, dst):
        em = self.em
        em(f'v_lshlrev_b32 {vt}, 7, {vLane}')
        em(f's_and_b32 {sT2}, {sW}, 1'); em(f's_mul_i32 {sT2}, {sT2}, 1792'); em(f's_add_u32 {sT2}, {sT2}, {sXst}'); em(f's_add_u32 {sT2}, {sT2}, {off}')
        em('s_mov_b64 exec, 0xffff')
        em(f'buffer_load_dword {dst}, {vt}, {SWS}, {sT2} offen sc1', tag='touch')
        em('s_mov_b64 exec, -1')
    def touch_xh(self, which, vt, dst):
        em = self.em
        if which == 'x':
            self.retouch(0, vt, dst[0])
            em(f'v_lshlrev_b32 {vt}, 17, {vLane}')
            em(f's_lshl_b32 {sT2}, {sJ}, 2'); em(f's_add_u32 {sT2}, {sT2}, {sW}'); em(f's_lshl_b32 {sT2}, {sT2}, 7'); em(f's_add_u32 {sT2}, {sT2}, {sG8K}')
            em('s_mov_b64 exec, 7')
            em(f'buffer_load_dword {dst[1]}, {vt}, {SWS}, {sT2} offen sc1', tag='touch')
        else:
            em(f'v_lshlrev_b32 {vt}, 7, {vLane}')
            em('s_mov_b64 exec, 0xffff')
            em(f's_add_u32 {sT2}, {sHks}, {int(which) * 2048}')
            em(f'buffer_load_dword {dst[0]}, {vt}, {SWS}, {sT2} offen sc1', tag='touch')
        em('s_mov_b64 exec, -1')
    def touch_at(self, pos, side, vt):
        for k, which in enumerate(('x', '0', '1', '2')):
            if self.o.tpl.split(',')[k] == pos:
                f = lambda which=which, k=k: self.touch_xh(which, vt, [a(104 + 2 * k), a(105 + 2 * k)])
                side.add(f) if side is not None else f()
    def code_pf(self, dst, vt):
        em = self.em
        L = em.newlabel('Lpc')
        end = 'L_slow' if not self.sc else 'L_codeend'
        em(f's_getpc_b64 {sEx}'); em.label(L)
        em(f's_lshr_b32 {sT}, s2, 3'); em(f's_lshl_b32 {sT}, {sT}, 2'); em(f's_add_u32 {sT}, {sT}, {sW}'); em(f's_lshl_b32 {sT}, {sT}, 10')
        em(f's_min_u32 {sT}, {sT}, {end}-{L}-1024')
        em(f'v_add_u32 {vt}, {sT}, {vL16}')
        em(f'global_load_dwordx4 {dst}, {vt}, {sEx}', tag='touch')
    def cs_loads(self, e):
        e(f'v_and_b32 {v(255)}, 31, {vLane}'); e(f'v_lshlrev_b32 {v(255)}, 2, {v(255)}'); e(f's_mul_i32 {sFx}, {sJ}, 384'); e(f's_add_u32 {sFx}, {sFx}, {WS_CS}')
        for p in range(3): e(f'buffer_load_dword {CS[p]}, {v(255)}, {SWS}, {sFx} offen offset:{(0, 256, 128)[p]} sc1', tag='cs')

    def p2_tail(self, l):
        em = self.em; o = self.o
        if l == 0: self.check([CS[0], CS[1], CS[2], CS[2]], self.cs_loads, v(TMP))
        em.wait_vm_tag('w1a')
        self.barrier()
        if l == 0 and not o.p2late:
            for m in range(8): self.w1dma(2, m, 'w1c')
        self.ts(f'end{4*l+1}')

    def hld(self, n, final, e=None):
        e = e or self.em
        st, h = (n % 22, n // 22) if (final or self.o.t4) else (n // 2, n % 2)
        if st == 21: so = sLim4
        else: self.tab4(st, sFx, 12, e); so = sFx
        r = e(f'buffer_load_dwordx4 {v(AF + 4 * (n % 24), 4)}, {v(32 + h)}, {SWS}, {so} offen sc1', tag='A')
        if r is not None: self.ldidx[id(r)] = n
    def p3(self, l):
        em = self.em; o = self.o
        ld, chk = self.a_loader(o.pre, 2 * l, sTxn)
        side = Side(em)
        side.add(*self.aux_const_items())
        if l == 0 and o.t4:
            side.add(*(self.img_m3(S_ADDR, v(TMP), v(TMP + 1)) + self.img_io('w', v(TMP), 64) + self.img_m1(S_ADDR, v(TMP), v(TMP + 1))))
            side.add(self.barrier); side.add(*self.img_io('r', v(TMP), 32 * 144)); side.add(self.barrier)
        if l == 1: rl_w, rl_r = self.res_last_items(8 * 4096); side.add(*rl_w)
        def ld2(i):
            ld(i)
            if i == o.statstep: side.add(*self.stats_T_items(False, 2 * l))
            if l == 0 and o.t4 and i == o.p2late: side.flush()
            if l == 0 and o.p2late and o.p2late <= i < o.p2late + 8: self.w1dma(2, i - o.p2late, 'w1c')
            if l == 0 and i == 26:
                side.add(self.barrier)
                self.b2 = self.w2_batch(list(range(16, 24))[:2 * o.w2b2], 'w2b')
                side.add(*self.b2[0])
        self.pass2(XORD, self.w1pl[:2], [ACC, ACC + 16], False, side, lambda i: 1 if i < o.statstep else o.fill2, loader=ld2, extra=chk,
                   third=(self.w1pl[2], ACC + 32, o.n3) if (l == 1 and o.n3) else None)
        side.flush()
        self.emit(self.corr_items(0, ACC, False)); self.emit(self.corr_items(1, ACC + 16, False))
        if l == 0: em.wait_vm_tag('w1c')
        self.barrier()
        if l == 1: self.emit(rl_r)
        self.ts('p3a')
        def epi(p):
            A = ACC + 16 * p
            it = [f'v_cvt_pk_bf16_f32 {v(A+r)}, {v(A+2*r)}, {v(A+2*r+1)}' for r in range(8)]
            it += [f'v_pk_max_i16 {v(A+r)}, {v(A+r)}, 0' for r in range(8)]
            if l == 0: it += [f'v_or_b32 {v(A+r)}, 0x80000000, {v(A+r)}' for r in (0, 4)]
            return it
        def st(p):
            A = ACC + 16 * p
            if p == 1:
                em(f's_lshl_b32 {sT2}, {sW1d}, 5'); em(f's_add_u32 {sT2}, {sT2}, {sHks}')
                self.wsstore(v(A, 4), vL16, sT2, 0); self.wsstore(v(A + 4, 4), vL16, sT2, 0, off=1024)
            else: self.wsstore(v(A, 4), vL16, sHks, p * 1024); self.wsstore(v(A + 4, 4), vL16, sHks, p * 1024, off=1024)
        side.add(*(epi(0) + [lambda: st(0)] + epi(1) + [lambda: st(1)]))
        side.add(f'v_add_u32 {v(32)}, {sHR}, {vL16}', f'v_add_u32 {v(33)}, {H_T}, {v(32)}')
        if l == 0:
            self.b3 = self.w2_batch(list(range(24, 32))[:2 * o.w2b3], 'w2c')
            side.add(*self.b3[0])
            side.add(*self.b2[1]); side.add(lambda: em.wait_lg(0))
            self.b3b = self.w2_batch(list(range(16, 24))[:2 * o.w2b3b], 'w2e')
            side.add(*self.b3b[0])
        else: side.add(*self.final_addr_items())
        if l == 1 and o.n3:
            rest = XORD[o.n3:]
            hn = [0]
            def fill(i):
                if i >= o.hpf3:
                    if i == o.hpf3: side.flush()
                    while hn[0] < o.pre4 and hn[0] < (i - o.hpf3 + 1) * o.hper and (hn[0] not in rest[i + 1:]): self.hld(hn[0], True); hn[0] += 1
                return o.fill3 if i >= 1 else 0
            self.pass1(self.w1pl[2], ACC + 32, side, fill, rest)
            while hn[0] < o.pre4: self.hld(hn[0], True); hn[0] += 1
        else:
            def fill(ks):
                if ks == o.hpf: side.flush()
                if ks >= o.hpf and (ks - o.hpf) % o.hstr == 0 and (ks - o.hpf) // o.hstr < o.pre4: self.hld((ks - o.hpf) // o.hstr, l == 1)
                return o.fill_p3 if ks >= 2 else 0
            assert o.hpf >= o.pre4 and o.hpf + (o.pre4 - 1) * o.hstr < 32
            self.pass1(self.w1pl[2], ACC + 32, side, fill)
        self.emit(self.corr_items(2, ACC + 32, False))
        side.flush()
        self.ts('p3b')
        if l == 0:
            self.barrier()
            self.b4 = self.w2_batch(list(range(32, 40)) + list(range(24, 32)) + list(range(16, 24)), 'w2d')
            self.emit(self.b4[0][:4])
        self.emit(epi(2))
        L = em.newlabel('Lh3')
        em(f's_cmp_ge_u32 {sJ}, 11'); em(f's_cbranch_scc1 {L}')
        em.cond_begin(); st(2); em.cond_end()
        em.label(L)
        if l == 0:
            self.emit(self.b3[1]); self.emit(self.b3b[1])
            if len(self.b4[0]) > 4: em.wait_lg(0); self.emit(self.b4[0][4:])
            assert self.w2next == 22
        self.ts(f'end{4*l+2}')

    def p4(self, l):
        em = self.em; o = self.o
        final = l == 1
        ts_ = final or o.t4
        A = [[ACC, ACC + 16], [ACC + 32, 232]] if ts_ else [[ACC, ACC + 32], [ACC + 16, 232]]
        side = Side(em)
        S, Q = v(AUX), v(AUX + 1); RS = [TMP, CB]
        def stl(e):
            e(f's_add_u32 {sFx}, {sStR if ts_ else sStM}, {2 * l * 16 * 8192}')
            e(f'buffer_load_dwordx4 {v(AUX,4)}, {v(FS) if final else v(BB + 4) if ts_ else vP}, {SWS}, {sFx} offen sc1', tag='stat')
        if ts_ and not final:
            side.add(*self.m1_addr_items()); side.add(lambda: stl(em), *(['s_nop 0'] * 24))
        else: stl(em)
        if o.cpf2 & 2 and not final: self.code_pf(v(248, 4), v(252))
        if o.retouch and not final: self.retouch(X2OFF, v(254), v(254))
        side.add(lambda: self.check([v(AUX + r) for r in range(4)], stl, v(CB + 2), kind='x', tag=sTxn))
        side.add(f'v_add_f32 {S}, {S}, {v(AUX+1)}', f'v_add_f32 {v(AUX+2)}, {v(AUX+2)}, {v(AUX+3)}', f'v_add_f32 {S}, {S}, {v(AUX+2)}')
        if ts_:
            side.add(f'v_add_f32_dpp {S}, {S}, {S} row_ror:8 {DPPM}', f'v_mov_b32 {Q}, {S}', f'v_permlane16_swap_b32 {S}, {Q}')
        else:
            side.add(f'v_mov_b32 {Q}, {S}', f'v_permlane16_swap_b32 {S}, {Q}', f'v_add_f32 {S}, {S}, {Q}', f'v_mov_b32 {Q}, {S}', f'v_permlane32_swap_b32 {S}, {Q}')
        side.add(f'v_mul_f32 {S}, {sInv}, {S}', f'v_mul_f32 {Q}, {sInv}, {Q}', f'v_fma_f32 {Q}, -{S}, {S}, {Q}', f'v_max_f32 {Q}, 0, {Q}',
                 f'v_add_f32 {Q}, {sEps}, {Q}', f'v_rsq_f32 {v(RS[1])}, {Q}')
        if ts_:
            side.add(f'v_mov_b32 {v(CB+2)}, {v(RS[1])}', f'v_permlane32_swap_b32 {v(CB+2)}, {v(RS[1])}')
            if final: side.add(f'ds_bpermute_b32 {v(CB+2)}, {v(FB)}, {v(CB+2)}', f'ds_bpermute_b32 {v(RS[1])}, {v(FB)}, {v(RS[1])}')
            RS = [CB + 2, CB]
        else: RS = [CB, CB]
        b4 = list(self.b4[1]) if l == 0 else []
        first4 = ((1 if ts_ else 2) * (22 - (len(b4) - 1) // 2)) if b4 else 99
        if l == 0: side.add(self.barrier)
        dec = (lambda n: (n % 22, n // 22)) if ts_ else (lambda n: (n // 2, n % 2))
        def mf(n, c):
            st, h = dec(n)
            cc = v(A[h][c], 16)
            em(f'{MF} {cc}, {a(W2A + st*8 + c*4, 4)}, {v(AF + 4 * (n % 24), 4)}, ' + ('0' if st == 0 else cc))
        def chk(n):
            if n % 2: return None
            return self.check([v(AF + 4 * (n % 24)), v(AF + 4 * ((n + 1) % 24))], lambda e: (self.hld(n, final, e), self.hld(n + 1, final, e)), v(38), split=True,
                              kind='h', tag=sTh if final else sThn, again=lambda e, p: self.hld(self.ldidx[id(p)], final, e))
        T4 = o.tail4 if ts_ else o.tail4n
        br = chk(0)
        for n in range(44):
            assert n < first4 or not b4
            if br: br()
            both = n < 44 - T4
            mf(n, 0)
            if n + o.pre4 < 44: self.hld(n + o.pre4, final)
            if n + 1 < 44: br = chk(n + 1)
            if b4 and n >= o.b4start: self.emit([b4.pop(0)] + ([b4.pop(0)] if ts_ and len(b4) > 1 else []))
            elif n >= 8: side.clk(4 if both else o.gap4)
            if both:
                mf(n, 1)
                if n >= 8 and not b4: side.clk(o.gap4)
            if final and o.wb and n == o.wbstep:
                L = em.newlabel('Lwb')
                if o.wb == 1: em(f's_cmp_lg_u32 {sW}, 3')
                else: em(f's_lshr_b32 {sT}, s2, 3'); em(f's_or_b32 {sT}, {sT}, {sW}'); em(f's_cmp_lg_u32 {sT}, 0')
                em(f's_cbranch_scc1 {L}')
                em.out.append(' buffer_wbl2 sc1')
                em.label(L)
            if o.ts3 and final and n in (0, 7, 15, 21, 29, 37): self.ts(f'q{n}')
            if ts_ and n == 22:
                side.add(*(self.reduce_items(0, A[0][0], A[0][1], MR, ACC, RS[0], 0, 0, True, True) if final else self.reduce_m1(0, A[0][0], A[0][1], MR, ACC, RS[0], True)))
                side.add(*self.unpack_items(1, ACC + 16)); side.add(self.barrier)
        side.flush()
        self.ts('p4loop')
        if ts_:
            tail = self.reduce_items(1, A[1][0], A[1][1], MR, ACC + 16, RS[1], 0, 0, True, False) if final else self.reduce_m1(1, A[1][0], A[1][1], MR, ACC + 16, RS[1], False)
            for k, n in enumerate(range(44 - T4, 44)):
                mf(n, 1)
                if k >= 1: em(tail.pop(0))
            self.emit(tail)
            if final: return
            self.w1_pre = 0
            self.x_prefetch(0, 0, o.pre5)
            self.ts('end3')
            return
        qd = [lambda m=m: self.qkv_dma('q', m, 'q') for m in range(8)] if o.qearly else []
        pair = lambda m: (lambda: (self.w1dma(0, m, 'w1a'), self.w1dma(1, m, 'w1a')))
        d1 = [pair(m) for m in range(4, 4 + o.sp1)]; d2 = [pair(m) for m in range(4 + o.sp1, 4 + o.sp1 + o.sp2)]
        self.w1_pre = o.sp1 + o.sp2
        self.two_halves([lambda n=n: mf(n, 1) for n in range(44 - T4, 44)], A, RS[0], X2OFF, 1, dmas=qd + d1, dmas2=d2)
        self.ts('end3')

    def p5_start(self):
        em = self.em; o = self.o
        ld0, chk = self.a_loader(o.pre5 if o.t4 else o.pre, 1, sTx)
        side = Side(em)
        side.add(*self.aux_const_items())
        side.add(f'v_subrev_u32 {vRW}, {S_ADDR:#x}, {vRW}', f'v_subrev_u32 {vRR}, {S_ADDR:#x}, {vRR}')
        self.S = 0
        qn = [8 if o.qearly else 0]; was = [False]
        def ld(i):
            ld0(i)
            if i == 12:
                side.add(self.barrier)
                if o.t4: side.add(*(self.img_m1(S_ADDR, v(TMP), v(TMP + 1)) + self.img_io('w', v(TMP), 32 * 144)))
            if i == o.statstep:
                side.add(*self.stats_T_items(True, 1))
                side.add(f'{MF} {v(MR,16)}, {v(AUX,4)}, {v(CB+2,4)}, 0')
            if self.xdone and was[0] and qn[0] < 8: self.qkv_dma('q', qn[0], 'q'); qn[0] += 1
            was[0] = self.xdone
        self.pass2(XORD, [self.pl['k'], self.pl['v']], [ACC, ACC + 16], True, side, lambda i: 1 if i < o.statstep else o.fill2, loader=ld, extra=chk)
        side.flush()
        self.emit(self.corr_items('k', ACC, True)); self.emit(self.corr_items('v', ACC + 16, True))
        self.ts('p5a')

    def finish(self):
        em = self.em
        L = em.newlabel('Le')
        em(f's_or_b32 {sT}, s2, {sW}'); em(f's_cmp_lg_u32 {sT}, 0'); em(f's_cbranch_scc1 {L}')
        em.cond_begin()
        em('s_mov_b64 exec, 1'); em(f'v_mov_b32 v24, {sNonce}'); em(f'buffer_store_dword v24, off, {SWS}, 0 sc1'); em('s_mov_b64 exec, -1')
        em.cond_end()
        em.label(L)
        if self.o.pad:
            L = em.newlabel('Lpad')
            em('v_readlane_b32 s3, v39, 0')
            em.label(L)
            em('s_memrealtime s[0:1]'); em.force_wait(lg=0); em('s_sub_u32 s0, s0, s3'); em(f's_cmp_lt_u32 s0, {self.o.pad}'); em(f's_cbranch_scc1 {L}')
        if self.o.ts:
            self.ts('end')
            em('s_memrealtime s[86:87]'); em.force_wait(lg=0); em('v_writelane_b32 v39, s86, 63')
            em(f's_lshl_b32 {sT}, s2, 2'); em(f's_add_u32 {sT}, {sT}, {sW}'); em(f's_lshl_b32 {sT}, {sT}, 8'); em(f's_add_u32 {sT}, {sT}, {WS_DBG}')
            em(f'v_lshlrev_b32 v24, 2, {vLane}')
            em(f'buffer_store_dword v39, v24, {SWS}, {sT} offen')
            if self.o.dbg:
                L = em.newlabel('Ld')
                em(f's_or_b32 {sT}, s2, {sW}'); em(f's_cmp_lg_u32 {sT}, 0'); em(f's_cbranch_scc1 {L}')
                em('s_memrealtime s[0:1]'); em.force_wait(lg=0); em('s_sub_u32 s0, s0, s3')
                em('v_readlane_b32 s1, v39, 0'); em('s_nop 3'); em('v_subrev_u32 v39, s1, v39'); em('v_writelane_b32 v39, s0, 0')
                em('v_mul_u32_u24 v25, 3, v0'); em('v_lshlrev_b32 v25, 2, v25'); em('ds_bpermute_b32 v26, v25, v39'); em.force_wait(lg=0)
                em('s_mov_b64 exec, 0xffff')
                em('global_store_dword v24, v26, s[100:101]')
                em.label(L)
        em('s_endpgm')
        em.out.extend(self.fixes); self.fixes = []

    def body(self, sc):
        self.ncnt = 0; self.ldidx = {}; self.fixes = []; self.sc = sc; self.swin = None; self.lin = True; self.S = S_ADDR
        seq = [lambda: self.p1_rest(0), lambda: self.p2(0), lambda: self.p3(0), lambda: self.p4(0),
               lambda: (self.p5_start(), self.p1_rest(1)), lambda: self.p2(1), lambda: self.p3(1), lambda: self.p4(1)]
        for i, f in enumerate(seq):
            self.em.comment(f'---------------- phase {i+1} ({"slow" if sc else "fast"}) ----------------')
            f()
            if self.o.stop == i + 1: break
        self.finish()

    def build(self):
        em = self.em
        self.sc = ''
        self.fixes = []
        self.prologue()
        self.p1_start()
        if self.o.force_slow: em('s_branch L_slow_tramp')
        em('s_cbranch_vccz L_fast')
        em.label('L_slow_tramp')
        em('s_getpc_b64 s[86:87]'); em.label('L_pc0')
        em('s_add_u32 s86, s86, L_slow-L_pc0'); em('s_addc_u32 s87, s87, 0'); em('s_setpc_b64 s[86:87]')
        em.label('L_end'); em('s_endpgm')
        em.out.extend(self.fixes)
        em.label('L_fast')
        snap = (list(em.vmq), list(em.lgq), self.nts, list(em.hist))
        self.body('')
        em.label('L_slow')
        em.vmq, em.lgq, self.nts, em.hist = list(snap[0]), list(snap[1]), snap[2], list(snap[3])
        self.body(' sc1')
        em.label('L_codeend')
        hdr = open('cdna_kernels/' + NAME + '.s.ref').read().split('; Override launch')[0]
        s = hdr + '; @launch grid=(256,1,1) block=(256,1,1) lds=163840\n'
        s += DOC
        s += '.amdgcn_target "amdgcn-amd-amdhsa--gfx950"\n.text\n'
        s += f'.globl {NAME}_kernel\n.p2align 8\n.type {NAME}_kernel,@function\n{NAME}_kernel:\n'
        s += em.text().replace('    ', ' ').replace(' offset:0 ', ' ').replace(', ', ',')
        s += f""".section .rodata,"a"
.p2align 6
.amdhsa_kernel {NAME}_kernel
  .amdhsa_next_free_vgpr 512
  .amdhsa_next_free_sgpr 102
  .amdhsa_accum_offset 256
  .amdhsa_group_segment_fixed_size 0
  .amdhsa_kernarg_size 72
  .amdhsa_user_sgpr_count 2
  .amdhsa_user_sgpr_kernarg_segment_ptr 1
  .amdhsa_system_sgpr_workgroup_id_x 1
  .amdhsa_float_denorm_mode_32 3
.end_amdhsa_kernel
"""
        return s

def main():
    ap = argparse.ArgumentParser()
    ap.add_argument('-o', default='k.s')
    ap.add_argument('--ts', action='store_true')
    ap.add_argument('--dbg', action='store_true')
    ap.add_argument('--pad', type=int, default=0)
    ap.add_argument('--ts2', action='store_true')
    ap.add_argument('--sync', default='A')
    ap.add_argument('--pk2', type=int, default=0)
    ap.add_argument('--tlb', type=int, default=0)
    ap.add_argument('--par', type=int, default=1)
    ap.add_argument('--pk4', type=int, default=0)
    ap.add_argument('--chkpos', type=int, default=0)
    ap.add_argument('--rstpos', type=int, default=1)
    ap.add_argument('--nochk', type=int, default=0)
    ap.add_argument('--xord', type=int, default=1)
    ap.add_argument('--retouch', type=int, default=0)
    ap.add_argument('--statstep', type=int, default=19)
    ap.add_argument('--tw2', type=int, default=0)
    ap.add_argument('--thr2', type=int, default=2)
    ap.add_argument('--kdual', type=int, default=0)
    ap.add_argument('--fill2', type=int, default=2)
    ap.add_argument('--rst1', default='xh')
    ap.add_argument('--qsched', default='66667777')
    ap.add_argument('--tq', type=int, default=0)
    ap.add_argument('--cgap', type=int, default=1)
    ap.add_argument('--ownpos', type=int, default=2)
    ap.add_argument('--mfB', type=int, default=3)
    ap.add_argument('--pf0', type=int, default=0)
    ap.add_argument('--pf1', type=int, default=0)
    ap.add_argument('--fixmode', type=int, default=1)
    ap.add_argument('--w2b1b', type=int, default=4)
    ap.add_argument('--p2late', type=int, default=16)
    ap.add_argument('--share', type=int, default=1)
    ap.add_argument('--share2', type=int, default=2)
    ap.add_argument('--span', action='store_true')
    ap.add_argument('--cpf2', type=int, default=3)
    ap.add_argument('--wb', type=int, default=2)
    ap.add_argument('--wbstep', type=int, default=36)
    ap.add_argument('--c1a', type=int, default=3)
    ap.add_argument('--tqc', type=int, default=1)
    ap.add_argument('--rep8', type=int, default=0)
    ap.add_argument('--xc', type=int, default=0)
    ap.add_argument('--gfirst', type=int, default=-1)
    ap.add_argument('--xorder', type=int, default=0)
    ap.add_argument('--ts3', action='store_true')
    ap.add_argument('--rste', type=int, default=0)
    ap.add_argument('--tpos', type=int, default=1)
    ap.add_argument('--tpl', default='n,n,n,n')
    ap.add_argument('--qpw', type=int, default=0)
    ap.add_argument('--ts2l1', type=int, default=0)
    ap.add_argument('--p2pipe', type=int, default=0)
    ap.add_argument('--p2a', type=int, default=6)
    ap.add_argument('--zpl', type=int, default=1)
    ap.add_argument('--n3', type=int, default=0)
    ap.add_argument('--hpf3', type=int, default=10)
    ap.add_argument('--hper', type=int, default=1)
    ap.add_argument('--fill3', type=int, default=6)
    ap.add_argument('--pad0', type=int, default=0)
    ap.add_argument('--abl', default='')
    ap.add_argument('--rsc', default='')
    ap.add_argument('--wb1', type=int, default=0)
    ap.add_argument('--kpos', type=int, default=0)
    ap.add_argument('--kpos0', type=int, default=0)
    ap.add_argument('--qlate', type=int, default=0)
    ap.add_argument('--qearly', type=int, default=0)
    ap.add_argument('--sp1', type=int, default=2)
    ap.add_argument('--sp2', type=int, default=2)
    ap.add_argument('--cq', type=int, default=0)
    ap.add_argument('--dgap', type=int, default=5)
    ap.add_argument('--sp0', type=int, default=2)
    ap.add_argument('--sp6', type=int, default=0)
    ap.add_argument('--t4', type=int, default=0)
    ap.add_argument('--pre5', type=int, default=10)
    ap.add_argument('--ring', type=int, default=3)
    ap.add_argument('--c2a', type=int, default=0)
    ap.add_argument('--hc', type=int, default=0)
    ap.add_argument('--rc', type=int, default=1)
    ap.add_argument('--pc', type=int, default=6)
    ap.add_argument('--sst', type=int, default=1)
    ap.add_argument('--sldc', type=int, default=5)
    ap.add_argument('--crun', type=int, default=1)
    ap.add_argument('--twsh', type=int, default=0)
    ap.add_argument('--plate', type=int, default=1)
    ap.add_argument('--pz', type=int, default=1)
    ap.add_argument('--w1r', type=int, default=0)
    ap.add_argument('--w1rc', type=int, default=5)
    ap.add_argument('--gdual', type=int, default=0)
    ap.add_argument('--stop', type=int, default=0)
    ap.add_argument('--spin', type=int, default=200000)
    ap.add_argument('--pre', type=int, default=11)
    ap.add_argument('--pre4', type=int, default=10)
    ap.add_argument('--pre2', type=int, default=16)
    ap.add_argument('--gap2', type=int, default=12)
    ap.add_argument('--gap4', type=int, default=24)
    ap.add_argument('--tail4', type=int, default=4)
    ap.add_argument('--rot2', type=int, default=1)
    ap.add_argument('--prewrite', type=int, default=1)
    ap.add_argument('--tw', type=int, default=4)
    ap.add_argument('--gstep', type=int, default=24)
    ap.add_argument('--att2', type=int, default=1)
    ap.add_argument('--burst', type=int, default=0)
    ap.add_argument('--hstr', type=int, default=1)
    ap.add_argument('--thr', type=int, default=6)
    ap.add_argument('--w1_solo', type=int, default=2)
    ap.add_argument('--fill_p1', type=int, default=2)
    ap.add_argument('--fill_p2', type=int, default=3)
    ap.add_argument('--fill_p3', type=int, default=3)
    ap.add_argument('--fill_p4', type=int, default=3)
    ap.add_argument('--w1_early', type=int, default=4)
    ap.add_argument('--b4start', type=int, default=4)
    ap.add_argument('--w2b1', type=int, default=4)
    ap.add_argument('--w2b2', type=int, default=4)
    ap.add_argument('--w2b3', type=int, default=4)
    ap.add_argument('--w2b3b', type=int, default=0)
    ap.add_argument('--w1_gap', type=int, default=0)
    ap.add_argument('--b1gap', type=int, default=1)
    ap.add_argument('--bgpad', type=int, default=3)
    ap.add_argument('--p2early', type=int, default=0)
    ap.add_argument('--rot', type=int, default=1)
    ap.add_argument('--kv_early', type=int, default=4)
    ap.add_argument('--nt_stage', action='store_true')
    ap.add_argument('--nt_w1', action='store_true')
    ap.add_argument('--codepf', type=int, default=1)
    ap.add_argument('--outsc', default='sc1')
    ap.add_argument('--kfirst', type=int, default=1)
    ap.add_argument('--early1', type=int, default=0)
    ap.add_argument('--gap2b', type=int, default=40)
    ap.add_argument('--tail4n', type=int, default=16)
    ap.add_argument('--hpf', type=int, default=20)
    ap.add_argument('--force_slow', action='store_true')
    o = ap.parse_args()
    if o.span: o.ts = True
    if o.outsc: o.outsc = ' ' + o.outsc
    if not o.xord: XORD[:] = list(range(32))
    g = Gen(o)
    s = g.build()
    open(o.o, 'w').write(s)
    if o.ts:
        import json; json.dump(g.tsnames, open(o.o + '.ts.json', 'w'))
    print(f'wrote {o.o}: {g.em.ninstr} instrs, {g.em.nops} nop states, {len(s)} bytes')
if __name__ == '__main__': main()
```

```python
import sys, struct, argparse
from emit import Em

NAME = "interleave_layers__linear_attn_block__dense_activation_relu__prompt"
def f2u(x): return struct.unpack('<I', struct.pack('<f', x))[0]

WS_EPOCH = 0
WS_HELLO = 1024
WS_FLAG = 4096
WS_MSG = 0x10000
WS_KT = 0x150000
WS_W1R = 0xC00000
WS_KTG = 0x1100000
WS_KT8 = 0x1000000
KC = 0x5000
WS_CS = 0x160000
WS_ST = 0x170000
WS_X = 0x200000
X2OFF = 0
WS_Q = 0x400000
WS_H = 0x600000
WS_DBG = 0x2000000
WS_SIZE = 0x4000000
MSG_B = 2560; KT_B = 17408; ACT_B = 131072; H_T = 86 * 1024; H_B = 4 * H_T
NONCE_K = 0x9E3779B1

sW, sG, sJ, sNonce = 's4', 's5', 's6', 's7'
SX, SQKV, SWO, SW1, SW2, SOUT, SWS = 's[8:11]', 's[12:15]', 's[16:19]', 's[20:23]', 's[24:27]', 's[28:31]', 's[32:35]'
sT, sT2, sWl, sSpin = 's52', 's53', 's54', 's55'
sGX, sGH, sG8K, sGKT, sG128 = 's56', 's57', 's58', 's59', 's60'
sQcol, sW1c0, sW1c2, sHks = 's61', 's62', 's63', 's64'
sC128, sHR, sStR = 's66', 's68', 's69'
sQR, sInv, sEps, s1em6, sLog2e = 's71', 's74', 's75', 's76', 's73'
sXrow, sJmsg, sMaskInv, sOutRow, sHello = 's77', 's78', 's85', 's80', 's81'
sEx = 's[82:83]'; sFx = 's84'
sTS = 86
sDelta, sDelta2 = 's88', 's[88:89]'
sLn2, sLn22 = 's90', 's[90:91]'
sXst, sStst, sQst = 's67', 's79', 's94'
sStM, sGXw = 's72', 's56'
sW1d = 's60'
sRot, sR, sFlag, sG256 = 's95', 's96', 's97', 's98'
sRot2, sLim4 = 's59', 's70'
sRed, sLine, sKTo, sFac = 's49', 's50', 's51', 's3'
sX0, sX1 = 's[100:101]', 's[0:1]'
sCsp = 's65'
sXm = [f's{36+i}' for i in range(8)]
sXl = ['s8', 's9', 's10', 's11', 's57', 's77', 's81', 's99']
sTab = ['s44', 's45', 's46', 's47']
sLo = 's[92:93]'
sTx, sTxn, sTh, sThn = 0, 1, 0, 1
sM0, sM1, sM3, sM4 = 's[36:37]', 's[38:39]', 's[40:41]', 's[44:45]'

vLane, vL16, vAX, vP = 'v0', 'v1', 'v2', 'v3'
vRR, vRW = 'v15', 'v18'
vTr = ['v4', 'v5', 'v6']
vDq, vD1, vDs, vS0, vS1, vS0w, vS1w = 'v7', 'v8', 'v9', 'v10', 'v11', 'v12', 'v14'
vStT, vPoll, vRl, vHi, vTid = 'v13', 'v15', 'v16', 'v17', 'v18'
CS = {'q': 'v19', 'k': 'v20', 'v': 'v21', 0: 'v22', 1: 'v23', 2: 'v34'}
AUX = 24
CB = 28
TMP = 35
BB = 40
MR = 56
ACC = 88
AF = 136
def v(i, n=1): return f'v{i}' if n == 1 else f'v[{i}:{i+n-1}]'
def a(i, n=1): return f'a{i}' if n == 1 else f'a[{i}:{i+n-1}]'
def Afrag(ks): return v(AF + 4 * ks, 4) if ks < 30 else a(248 + 4 * (ks - 30), 4)
RES = 240
W2A = 0; WOA = 176
vKT = 253
FW, FR, FO, FS, FB = 7, 11, 12, 14, 19
MF = 'v_mfma_f32_32x32x16_bf16'
DPPM = 'row_mask:0xf bank_mask:0xf'

QS = 32
S_ADDR = QS * 4096

def _ord4(c):
    pl = lambda nt: (0, 2, 1)[nt % 3] if nt < 33 else (nt - 33) % 2
    ms = sorted(range(21), key=lambda m: pl(2 * m + c))
    return ms + [21]
ORD4 = [_ord4(0), _ord4(1)]
XORD = [4 * m + k for m in range(8) for k in (0, 1)] + [4 * m + k for m in range(8) for k in (2, 3)]

DOC = """;
; One persistent launch, one workgroup (4 waves, 512 registers each) per CU.  Workgroup id -> group g (128 tokens) and column j.
; Phases per layer: LN+QKV (128x96 tile) | kv/z all-reduce | attention + wo (64x64, K split over waves) | LN + w1 + relu (128x96)
; | w2 (64x64, K split).  LayerNorm is applied as a rank-1 correction (mean x column sums, through the matrix pipe) and a per-row scale.
; wo / w2 stay in AGPRs, the k / v weight planes stay in LDS; activations move between workgroups in MFMA fragment order through d_ws.
; Hand-offs: per-launch nonce (from the epoch word in d_ws) on flags and messages; cleared tag bits validated on every fragment read.
; If the 16 workgroups of a group do not all report the same XCC id, the write-through (sc1) copy of the code is taken instead.
"""

class Side:
    def __init__(self, em): self.q = []; self.em = em
    def add(self, *items): self.q.extend(items)
    def run(self, k):
        while k > 0 and self.q:
            it = self.q.pop(0)
            if callable(it): it()
            else: self.em(it)
            k -= 1
    def flush(self): self.run(1 << 30); self.credit = 0
    credit = 0
    def clk(self, budget):
        self.credit = min(self.credit + budget, budget)
        while self.q and self.credit > 0:
            it = self.q.pop(0)
            if callable(it):
                it(); self.credit -= getattr(it, 'cost', 24)
            else:
                self.em(it)
                self.credit -= 56 if it.startswith('ds_write_b128') else 8 if it.startswith(('v_exp', 'v_rcp', 'v_rsq', 'v_mfma')) else 4

class Gen:
    def __init__(self, opt):
        self.o = opt; self.em = Em(); self.nts = 0; self.ncnt = 0; self.swin = None; self.lin = False
    def emit(self, items):
        for t in items: t() if callable(t) else self.em(t)

    def ts(self, name):
        if not self.o.ts or (self.o.span and name not in ('start', 'end')): return
        em = self.em
        i = self.nts; self.nts += 1
        assert i < 50
        em.force_wait(lg=0)
        em(f's_mov_b32 m0, s87'); em(f's_memtime s[{sTS}:{sTS+1}]'); em.force_wait(lg=0)
        em(f'v_writelane_b32 v39, s{sTS}, {i}'); em('s_mov_b32 s87, m0')
        self.tsnames[i] = name
        if name in ('kt', 'p3a', 'p4loop', 'p5a'):
            if name == 'kt' and self.ncnt == 0: em('s_mov_b32 s87, 0')
            em(f'v_writelane_b32 v39, s87, {50 + self.ncnt}'); self.ncnt += 1
    def dma(self, srd, voff, sbase, imm, quad, tag, nt=False, slot=None):
        em = self.em
        if slot is None: em(f's_add_u32 m0, {sWl}, {quad*4096}')
        else: em(f's_mov_b32 m0, {quad*4096 + slot*1024}')
        em(f's_add_u32 {sT}, {sbase}, {imm}')
        em(f'buffer_load_dwordx4 {voff}, {srd}, {sT} offen' + (' nt' if nt else '') + ' lds', tag=tag)
    def tr(self, dst, quad, slot, base=None):
        addr = quad * 4096 + slot * 1024
        b = (base or vTr)[addr >> 16]; off = addr & 0xFFFF
        return [f'ds_read_b64_tr_b16 {v(dst,2)}, {b} offset:{off}', f'ds_read_b64_tr_b16 {v(dst+2,2)}, {b} offset:{off+(256 if self.lin else 512)}']
    def wsload(self, dst, voff, sbase, imm, width=4, tag=None, off=0):
        em = self.em
        em(f's_add_u32 {sT}, {sbase}, {imm}')
        sfx = {1: 'dword', 2: 'dwordx2', 4: 'dwordx4'}[width]
        em(f'buffer_load_{sfx} {dst}, {voff}, {SWS}, {sT} offen' + (f' offset:{off}' if off else '') + ' sc1', tag=tag)
    def wsstore(self, src, voff, sbase, imm, width=4, tag='st', off=0, sc=None):
        em = self.em
        em(f's_add_u32 {sT}, {sbase}, {imm}')
        sfx = {1: 'dword', 2: 'dwordx2', 4: 'dwordx4'}[width]
        sc = self.sc if sc is None else sc
        em(f'buffer_store_{sfx} {src}, {voff}, {SWS}, {sT} offen' + (f' offset:{off}' if off else '') + sc, tag=tag)
    def barrier(self):
        self.em.wait_lg(0); self.em('s_barrier')
    def only_wave(self, w, f, invert=False):
        em = self.em
        L = em.newlabel('Lw')
        em(f's_cmp_{"eq" if invert else "lg"}_u32 {sW}, {w}'); em(f's_cbranch_scc1 {L}')
        em.cond_begin(); f(); em.cond_end()
        em.label(L)
    def spin_tail(self, L):
        em = self.em
        em(f's_sub_u32 {sSpin}, {sSpin}, 1'); em(f's_cbranch_scc0 {L}'); em(f's_mov_b32 {sSpin}, 0')
    def group_sync(self, p, pre=None, mid=None, tags=('st',), bar=True, skipif=None, modeB=False):
        em = self.em
        vt = v(TMP)
        mode = 'B' if (skipif or modeB) else self.o.sync
        if pre: pre()
        def drain():
            if tags is None: em.force_wait(vm=0)
            else: em.wait_vm_tag(tags)
            self.ts(f'drain{p}')
        def sig(wait=True):
            em(f'v_mov_b32 {vt}, {sNonce}')
            em(f's_add_u32 {sT2}, {sFlag}, {p*4096}')
            if wait: drain()
            em(f's_mov_b64 {sEx}, exec'); em('s_mov_b64 exec, 1')
            em(f'buffer_store_dword {vt}, off, {SWS}, {sT2}' + self.sc, tag='flag')
            em(f's_mov_b64 exec, {sEx}')
        def poll():
            L = em.newlabel('Lpoll'); D = em.newlabel('Lpd')
            em(f's_add_u32 {sT2}, {sG256}, {WS_FLAG + p*4096}')
            if mode == 'B': em(f'v_lshlrev_b32 {v(TMP+1)}, 2, {vLane}')
            else: em(f'v_lshlrev_b32 {v(TMP+1)}, 2, {vPoll}')
            em.label(L)
            em(f'buffer_load_dword {vt}, {v(TMP+1)}, {SWS}, {sT2} offen sc1')
            em.force_wait(vm=0)
            em(f'v_cmp_ne_u32 vcc, {sNonce}, {vt}')
            em(f's_cbranch_vccz {D}')
            self.spin_tail(L)
            em.label(D)
        if mode == 'B':
            if skipif:
                L = em.newlabel('Lsk')
                em(f's_cmp_eq_u32 {skipif}, 0'); em(f's_cbranch_scc1 {L}')
                em.cond_begin(); sig(); em.cond_end()
                em.label(L)
            else: sig()
            if mid: mid()
            if bar: self.barrier()
            poll()
        else:
            drain(); self.barrier()
            self.only_wave(0, lambda: sig(False))
            if mid: mid()
            if mode == 'A':
                self.only_wave(0, poll); self.barrier()
            else:
                if bar and mid: self.barrier()
                poll()
        self.ts(f'sync{p}')
    def rot(self, m, stride, base):
        em = self.em
        em(f's_add_u32 {sR}, {sRot}, {m}'); em(f's_and_b32 {sR}, {sR}, 7'); em(f's_mul_i32 {sR}, {sR}, {stride}'); em(f's_add_u32 {sR}, {sR}, {base}')
    def qkv_dma(self, planes, m, tag):
        self.rot(m, 64 * 3072, sQcol)
        for p in planes: self.dma(SQKV, vDq, sR, {'q': 0, 'k': 1024, 'v': 2048}[p], self.pl[p][m], tag)

    def prologue(self):
        em = self.em; o = self.o
        if o.pad and o.pad0: em('s_memrealtime s[86:87]')
        em('s_cmp_ge_u32 s2, 256'); em('s_cbranch_scc1 L_end')
        em('s_load_dwordx4 s[36:39], s[0:1], 0'); em('s_load_dwordx2 s[40:41], s[0:1], 16')
        em('s_load_dwordx4 s[44:47], s[0:1], 32'); em('s_load_dwordx2 s[48:49], s[0:1], 48'); em('s_load_dwordx2 s[50:51], s[0:1], 64')
        if o.ts:
            self.tsnames = {}
            em('v_mov_b32 v39, 0')
        em(f'v_mov_b32 {vTid}, v0')
        em(f'v_lshrrev_b32 v24, 6, v0'); em(f'v_and_b32 {vLane}, 63, v0')
        em(f'v_readfirstlane_b32 {sW}, v24')
        em(f's_and_b32 {sG}, s2, 7'); em(f's_lshl_b32 {sG}, {sG}, 1'); em(f's_lshr_b32 {sT}, s2, 7'); em(f's_add_u32 {sG}, {sG}, {sT}')
        em(f's_lshr_b32 {sJ}, s2, 3'); em(f's_and_b32 {sJ}, {sJ}, 15')
        em(f's_lshl_b32 {sWl}, {sW}, 10')
        em(f's_lshl_b32 {sXrow}, {sG}, 17')
        em(f's_lshl_b32 {sQcol}, {sJ}, 6')
        em(f's_and_b32 {sRot}, {sG}, 1'); em(f's_lshl_b32 {sRot}, {sRot}, 1'); em(f's_and_b32 {sT}, {sJ}, 1'); em(f's_add_u32 {sRot}, {sRot}, {sT}'); em(f's_lshl_b32 {sRot}, {sRot}, 1')
        if o.rot == 1: em(f's_lshr_b32 {sT}, {sJ}, 1'); em(f's_add_u32 {sRot}, {sRot}, {sT}')
        if o.rot in (1, 3): em(f's_add_u32 {sRot}, {sRot}, s2')
        if not o.rot: em(f's_mov_b32 {sRot}, 0')
        self.pl = {'k': list(range(0, 8)), 'v': list(range(8, 16)), 'q': list(range(16, 24))}
        em(f'v_lshlrev_b32 {vL16}, 4, {vLane}')
        em(f'v_lshrrev_b32 v27, 3, {vLane}'); em(f'v_and_b32 v28, 7, {vLane}')
        em(f'v_lshrrev_b32 v29, 1, v27'); em('v_xor_b32 v28, v28, v29'); em('v_lshlrev_b32 v28, 4, v28')
        em(f's_lshl_b32 {sT}, {sW}, 5'); em(f'v_add_u32 v27, {sT}, v27'); em('v_lshlrev_b32 v27, 10, v27')
        em('v_add_u32 v25, v27, v28'); em('v_xor_b32 v26, 64, v25')
        em(f'v_lshrrev_b32 v27, 2, {vLane}'); em(f's_lshl_b32 {sT}, {sW}, 4'); em(f'v_add_u32 v27, {sT}, v27')
        em(f'v_and_b32 v28, 3, {vLane}'); em('v_lshlrev_b32 v28, 4, v28')
        em(f'v_mul_u32_u24 {vDq}, 3072, v27'); em(f'v_add_u32 {vDq}, {vDq}, v28')
        em(f'v_mul_u32_u24 {vD1}, 2752, v27'); em(f'v_add_u32 {vD1}, {vD1}, v28')
        em.force_wait(lg=0)
        if o.pad and o.pad0: em('v_writelane_b32 v39, s86, 0')
        if o.ts:
            em('s_memrealtime s[86:87]'); em.force_wait(lg=0); em('v_writelane_b32 v39, s86, 62')
        if o.pad and not o.pad0:
            em('s_memrealtime s[86:87]'); em.force_wait(lg=0); em('v_writelane_b32 v39, s86, 0')
        self.ts('start')
        def srd(s, lo, nb):
            em(f's_mov_b32 s{s}, s{lo}'); em(f's_mov_b32 s{s+1}, s{lo+1}'); em(f's_mov_b32 s{s+2}, {nb}'); em(f's_mov_b32 s{s+3}, 0x00020000')
        srd(8, 36, 2048 * 1024); srd(32, 50, WS_SIZE); srd(12, 38, 512 * 3072)
        if o.tlb:
            em(f's_lshr_b32 {sT}, s2, 3'); em(f's_lshl_b32 {sT}, {sT}, 2'); em(f's_add_u32 {sT}, {sT}, {sW}'); em(f's_and_b32 {sT}, {sT}, 15')
            em('s_mov_b64 s[86:87], s[50:51]'); em(f's_lshl_b32 {sT2}, {sT}, 21')
            for k, pr in ((8, 's[40:41]'), (9, 's[44:45]'), (10, 's[46:47]'), (11, 's[48:49]'), (12, 's[36:37]'), (13, 's[38:39]')):
                em(f's_cmp_eq_u32 {sT}, {k}'); em(f's_cselect_b64 s[86:87], {pr}, s[86:87]')
            em(f's_cmp_ge_u32 {sT}, 6'); em(f's_cselect_b32 {sT2}, 0, {sT2}')
            em(f's_load_dword s88, s[86:87], {sT2}')
        L0 = em.newlabel('Lo'); L1 = em.newlabel('Lo')
        if o.par:
            em(f's_bitcmp1_b32 {sJ}, 0'); em(f's_cbranch_scc1 {L0}')
            it = self.chunk_items(0)
            snap = list(em.vmq)
            self.emit(it); em(f's_branch {L1}')
            em.label(L0)
            em.vmq = snap
            it = self.chunk_items(0)
            self.emit(it[4:] + it[:4])
            em.label(L1)
        else: self.chunk_dma(0)
        if o.tq:
            em(f'v_lshlrev_b32 v30, 7, {vLane}'); em(f's_lshl_b32 {sT2}, s2, 2'); em(f's_add_u32 {sT2}, {sT2}, {sW}'); em(f's_mul_i32 {sT2}, {sT2}, {12*128}')
            em('s_mov_b64 exec, 0xfff')
            em(f'buffer_load_dword a100, v30, {SQKV}, {sT2} offen', tag='touch')
            if o.tq > 1:
                em(f's_lshl_b32 {sT2}, {sJ}, 2'); em(f's_add_u32 {sT2}, {sT2}, {sW}'); em(f's_lshl_b32 {sT2}, {sT2}, 11'); em(f's_add_u32 {sT2}, {sT2}, {sXrow}')
                em('s_mov_b64 exec, 0xffff')
                em(f'buffer_load_dword a101, v30, {SX}, {sT2} offen', tag='touch')
            em('s_mov_b64 exec, -1')
        em(f'buffer_load_dword v24, off, {SWS}, 0 sc1', tag='epoch')
        if o.ts2: self.ts('iss0')
        c1 = self.chunk_items(1)
        self.emit(c1[:o.c1a]); self.c1rest = c1[o.c1a:]
        if o.ts2: self.ts('iss1')
        if o.codepf:
            em('s_getpc_b64 s[42:43]'); em.label('L_pcx')
            em(f's_lshr_b32 {sT}, s2, 3'); em(f's_lshl_b32 {sT}, {sT}, 2'); em(f's_add_u32 {sT}, {sT}, {sW}'); em(f's_lshl_b32 {sT}, {sT}, 10')
            em(f's_min_u32 {sT}, {sT}, L_slow-L_pcx-1024')
            em(f'v_add_u32 v30, {sT}, {vL16}')
            em(f'global_load_dwordx4 a[96:99], v30, s[42:43]', tag='codepf')
        srd(16, 40, 512 * 1024); srd(20, 44, 512 * 2752); srd(24, 46, 1376 * 1024); srd(28, 48, 2048 * 1024)
        em(f's_mov_b32 {sSpin}, {o.spin}')
        em(f's_mul_i32 {sGH}, {sG}, {H_B}'); em(f's_add_u32 {sGH}, {sGH}, {WS_H}')
        em(f's_lshl_b32 {sG8K}, {sG}, 13'); em(f's_add_u32 {sG8K}, {sG8K}, {WS_ST}')
        em(f's_lshl_b32 {sG128}, {sG}, 7'); em(f's_lshl_b32 {sG256}, {sG}, 8')
        em(f's_lshl_b32 {sFlag}, {sJ}, 2'); em(f's_add_u32 {sFlag}, {sFlag}, {sW}'); em(f's_lshl_b32 {sFlag}, {sFlag}, 2'); em(f's_add_u32 {sFlag}, {sFlag}, {sG256}'); em(f's_add_u32 {sFlag}, {sFlag}, {WS_FLAG}')
        em(f's_mul_i32 {sT}, {sJ}, 3'); em(f's_lshl_b32 {sT2}, {sJ}, 1'); em(f's_add_u32 {sT2}, {sT2}, 11')
        em(f's_cmp_lt_u32 {sJ}, 11'); em(f's_cselect_b32 {sT}, {sT}, {sT2}');
        em(f's_cselect_b32 {sT2}, 128, 64')
        em(f's_lshl_b32 {sW1c0}, {sT}, 6'); em(f's_add_u32 {sW1c2}, {sW1c0}, {sT2}')
        em(f's_lshl_b32 {sHks}, {sT}, 11'); em(f's_add_u32 {sHks}, {sHks}, {sGH}')
        em(f's_mul_i32 {sT}, {sW}, {H_T}'); em(f's_add_u32 {sHks}, {sHks}, {sT}')
        em(f's_and_b32 {sC128}, {sJ}, 7'); em(f's_lshl_b32 {sC128}, {sC128}, 7')
        em(f's_lshr_b32 {sT}, {sJ}, 3')
        em(f's_lshl_b32 {sT2}, {sT}, 16'); em(f's_add_u32 {sT2}, {sT2}, {sXrow}')
        em(f's_add_u32 {sOutRow}, {sT2}, {sC128}')
        em(f's_add_u32 {sQR}, {sT2}, {sWl}'); em(f's_add_u32 {sQR}, {sQR}, {WS_Q}')
        em(f's_lshl_b32 {sXst}, {sC128}, 5'); em(f's_add_u32 {sXst}, {sXst}, {sT2}'); em(f's_add_u32 {sXst}, {sXst}, {WS_X}')
        em(f's_mul_i32 {sHR}, {sT}, {2*H_T}'); em(f's_add_u32 {sHR}, {sHR}, {sGH}'); em(f's_add_u32 {sHR}, {sHR}, {sWl}')
        em(f's_lshl_b32 {sStR}, {sT}, 12'); em(f's_add_u32 {sStR}, {sStR}, {sG8K}')
        em(f's_lshr_b32 {sT}, {sW}, 1'); em(f's_and_b32 {sT2}, {sW}, 1'); em(f's_lshl_b32 {sT2}, {sT2}, 8')
        em(f's_lshl_b32 {sR}, {sT}, 15'); em(f's_add_u32 {sXst}, {sXst}, {sR}'); em(f's_add_u32 {sXst}, {sXst}, {sT2}')
        em(f's_lshl_b32 {sR}, {sT}, 11'); em(f's_add_u32 {sStM}, {sStR}, {sR}'); em(f's_add_u32 {sStM}, {sStM}, {sT2}')
        em(f's_and_b32 {sT}, {sJ}, 4'); em(f's_lshl_b32 {sT}, {sT}, 7'); em(f's_and_b32 {sT2}, {sJ}, 3'); em(f's_lshl_b32 {sT2}, {sT2}, 2')
        em(f's_add_u32 {sStst}, {sT}, {sT2}'); em(f's_add_u32 {sStst}, {sStst}, {sStM}')
        em(f's_lshl_b32 {sT}, {sW}, 15'); em(f's_add_u32 {sT}, {sT}, {sXrow}'); em(f's_add_u32 {sGXw}, {sT}, {WS_X}')
        em(f's_lshl_b32 {sQst}, {sJ}, 11'); em(f's_add_u32 {sQst}, {sQst}, {sT}'); em(f's_add_u32 {sQst}, {sQst}, {WS_Q}')
        em('s_mov_b32 s92, -1'); em('s_mov_b32 s93, 0')
        em(f's_cmp_ge_u32 {sW}, 2'); em(f's_cselect_b32 {sLim4}, 20, 21'); em(f's_lshl_b32 {sLim4}, {sLim4}, 12')
        em(f's_lshr_b32 {sT}, {sJ}, 3'); em(f's_and_b32 {sT2}, {sG}, 1'); em(f's_lshl_b32 {sT2}, {sT2}, 1'); em(f's_add_u32 {sT}, {sT}, {sT2}')
        em(f's_and_b32 {sT2}, s2, 7')
        em(f's_lshl_b32 {sRot2}, {sT}, 1'); em(f's_add_u32 {sRot2}, {sRot2}, {sT2}')
        if not o.rot2: em(f's_mov_b32 {sRot2}, 0')
        em(f's_mul_i32 {sJmsg}, {sJ}, {16*MSG_B}'); em(f's_add_u32 {sJmsg}, {sJmsg}, {WS_MSG}')
        if o.tlb: em.force_wait(lg=0)
        em(f's_mov_b32 {sDelta}, {f2u(1e-6*1.4426950408889634):#x}'); em(f's_mov_b32 {sLn2}, {f2u(0.6931471805599453):#x}')
        em('s_mov_b32 s89, s88'); em('s_mov_b32 s91, s90')
        em(f's_mov_b32 {sLog2e}, {f2u(1.4426950408889634):#x}'); em(f's_mov_b32 {sInv}, {f2u(1/512):#x}')
        em(f's_mov_b32 {sEps}, {f2u(1e-5):#x}'); em(f's_mov_b32 {s1em6}, {f2u(1e-6):#x}')
        em(f's_mov_b32 {sMaskInv}, 0xffffff00')
        em(f'v_lshrrev_b32 {vHi}, 5, {vLane}')
        em(f'v_lshrrev_b32 v27, 4, {vLane}'); em('v_lshlrev_b32 v27, 9, v27'); em(f'v_and_b32 v28, 15, {vLane}'); em(f'v_lshl_add_u32 {vP}, v28, 4, v27')
        em(f'v_bfe_u32 v27, {vLane}, 2, 2'); em(f'v_lshl_add_u32 v27, {vHi}, 2, v27')
        em(f'v_bfe_u32 v28, {vLane}, 4, 1'); em('v_lshlrev_b32 v28, 5, v28')
        em(f'v_and_b32 v29, 3, {vLane}'); em('v_lshl_add_u32 v28, v29, 3, v28')
        em(f'v_lshl_add_u32 {vTr[0]}, v27, 6, v28')
        em(f'v_lshl_add_u32 {vTr[0]}, {vHi}, 8, {vTr[0]}')
        em(f'v_add_u32 {vTr[1]}, 0x10000, {vTr[0]}'); em(f'v_add_u32 {vTr[2]}, 0x20000, {vTr[0]}')
        em(f'v_bfe_u32 v29, {vLane}, 3, 1'); em('v_lshl_add_u32 v28, v29, 6, v28')
        em(f'v_lshl_add_u32 {vS0}, v27, 7, v28'); em(f'v_add_u32 {vS0}, {sWl}, {vS0}'); em(f'v_xor_b32 {vS1}, 64, {vS0}')
        em(f'v_lshrrev_b32 v27, 3, {vLane}'); em(f'v_and_b32 v28, 7, {vLane}')
        em(f'v_bfe_u32 v29, {vLane}, 4, 1'); em('v_lshlrev_b32 v29, 2, v29'); em('v_xor_b32 v28, v28, v29'); em('v_lshlrev_b32 v28, 4, v28')
        em(f'v_lshl_add_u32 {vDs}, v27, 10, v28'); em(f's_lshl_b32 {sT}, {sW}, 14'); em(f'v_add_u32 {vDs}, {sT}, {vDs}')
        em(f'v_lshl_add_u32 v27, {vHi}, 9, {vL16}'); em(f's_lshl_b32 {sT}, {sW}, 11'); em(f'v_add_u32 {vStT}, {sT}, v27')
        em(f'v_and_b32 {vPoll}, 15, {vLane}'); em(f'v_lshlrev_b32 {vPoll}, 2, {vPoll}')

    def nonce_hello(self):
        em = self.em; o = self.o
        if o.ts2: self.ts('setup')
        em(f'v_readfirstlane_b32 {sNonce}, v24')
        if o.ts2: self.ts('epoch')
        em(f's_add_u32 {sNonce}, {sNonce}, {NONCE_K:#x}')
        em(f's_getreg_b32 {sHello}, hwreg(HW_REG_XCC_ID)'); em(f's_and_b32 {sHello}, {sHello}, 15')
        em(f's_add_u32 {sHello}, {sHello}, {sNonce}'); em(f's_add_u32 {sHello}, {sHello}, 1')
        def hello():
            em(f's_mov_b64 {sEx}, exec'); em('s_mov_b64 exec, 1')
            em(f'v_mov_b32 v24, {sHello}')
            em(f's_lshl_b32 {sT2}, {sJ}, 2'); em(f's_add_u32 {sT2}, {sT2}, {sG128}'); em(f's_add_u32 {sT2}, {sT2}, {WS_HELLO}')
            em(f'buffer_store_dword v24, off, {SWS}, {sT2} sc1')
            em(f's_mov_b64 exec, {sEx}')
        self.only_wave(0, hello)

    def chunk_items(self, c):
        it = []
        def x(rb8):
            if rb8 == 0: self.rot(c, 128, sXrow); self.em(f's_mov_b32 s99, {sR}')
            self.dma(SX, 'v25' if rb8 % 2 == 0 else 'v26', 's99', rb8 * 8192, 24 + 4 * (c % self.o.ring) + rb8, f'c{c}')
        for rb8 in range(4): it.append(lambda rb8=rb8: x(rb8))
        def w(p):
            if p == 'k': self.rot(c, 64 * 3072, sQcol); self.em(f's_mov_b32 s84, {sR}')
            self.dma(SQKV, vDq, 's84', {'k': 1024, 'v': 2048}[p], self.pl[p][c], f'c{c}')
        it += [lambda: w('k'), lambda: w('v')]
        return it
    def chunk_dma(self, c): self.emit(self.chunk_items(c))

    def touch_q(self, vt, dst):
        em = self.em
        em(f'v_lshlrev_b32 {vt}, 7, {vLane}')
        em(f's_mov_b64 {sEx}, exec')
        if self.o.qpw:
            for k in range(2): em(f'buffer_store_dwordx4 {v(MR+8,4)}, {vL16}, {SWS}, {sQst} offen offset:{k*1024}' + ('' if self.o.qpw == 2 else ' sc1'), tag='rst')
        else:
            em('s_mov_b64 exec, 0xffff')
            em(f'buffer_load_dword {v(dst)}, {vt}, {SWS}, {sQst} offen sc1', tag='touch')
        em(f'v_lshlrev_b32 {vt}, 12, {vLane}')
        em('s_mov_b64 exec, 0x11')
        em(f'buffer_load_dword {v(dst+1)}, {vt}, {SWS}, {sFlag} offen sc1', tag='touch')
        em(f's_mov_b64 exec, {sEx}')
    def touch_w(self, vt, dst):
        em = self.em
        sh = 7 + self.o.twsh; n = -(-11008 * 128 // (1024 << sh)); n0 = max(1, 4 >> self.o.twsh)
        em(f'v_lshlrev_b32 {vt}, {sh}, {vLane}')
        em(f's_lshl_b32 {sT2}, s2, 2'); em(f's_add_u32 {sT2}, {sT2}, {sW}'); em(f's_mul_i32 {sT2}, {sT2}, {n << sh}')
        em(f's_mov_b64 {sEx}, exec'); em(f's_mov_b64 exec, {(1 << n) - 1:#x}')
        if not self.o.w1r: em(f'buffer_load_dword {v(dst)}, {vt}, {SW1}, {sT2} offen', tag='touch')
        em(f'buffer_load_dword {v(dst+1)}, {vt}, {SW2}, {sT2} offen', tag='touch')
        em(f's_lshl_b32 {sT2}, s2, 2'); em(f's_add_u32 {sT2}, {sT2}, {sW}'); em(f's_lshl_b32 {sT2}, {sT2}, 9')
        em(f's_mov_b64 exec, {(1 << n0) - 1}')
        em(f'buffer_load_dword {v(dst+2)}, {vt}, {SWO}, {sT2} offen', tag='touch')
        em(f's_mov_b64 exec, {sEx}')
    def reducer_setup(self):
        em = self.em
        em(f's_lshr_b32 {sT}, {sG}, 3'); em(f's_cmp_eq_u32 {sT}, {sW}'); em(f's_cselect_b32 {sRed}, 1, 0')
        em(f's_lshl_b32 {sLine}, {sG}, 7')
        em(f's_mul_i32 {sKTo}, {sT}, 544'); em(f's_and_b32 {sT2}, {sG}, 7'); em(f's_lshl_b32 {sT2}, {sT2}, 6'); em(f's_add_u32 {sKTo}, {sKTo}, {sT2}')
        em(f's_mov_b32 {sFac}, {sLn2}')
        L = em.newlabel('Lz')
        em(f's_cmp_lg_u32 {sW}, 2'); em(f's_cbranch_scc1 {L}')
        em(f's_cmp_eq_u32 {sG}, {sJ}'); em(f's_cselect_b32 {sRed}, 1, 0')
        em(f's_mov_b32 {sLine}, 2048'); em(f's_mov_b32 {sKTo}, 512'); em(f's_mov_b32 {sFac}, 1.0')
        em.label(L)
        em(f's_sub_u32 {sCsp}, {sG}, {sJ}'); em(f's_sub_u32 {sCsp}, {sCsp}, 1'); em(f's_and_b32 {sCsp}, {sCsp}, 15')
        em(f's_cmp_eq_u32 {sW}, 3'); em(f's_cselect_b32 {sCsp}, {sCsp}, 15')
        em(f's_mul_i32 {sT2}, {sJ}, 1088'); em(f's_add_u32 {sKTo}, {sKTo}, {sT2}'); em(f's_add_u32 {sKTo}, {sKTo}, {WS_KT8 if self.o.rep8 else WS_KT}')
        em(f's_add_u32 {sLine}, {sLine}, {sJmsg}')
        em(f's_and_b32 {sT2}, {sG}, 7'); em(f's_lshl_b32 {sT2}, {sT2}, 3'); em(f's_mov_b64 {sX0}, 0xff'); em(f's_lshl_b64 {sX0}, {sX0}, {sT2}'); em(f's_not_b64 {sX0}, {sX0}')
        em(f's_cmp_eq_u32 {sT}, 0'); em(f's_cselect_b64 {sX1}, -1, {sX0}'); em(f's_cselect_b64 {sX0}, {sX0}, -1')
    def reducer_setup_c(self):
        em = self.em
        em(f's_mul_i32 {sRed}, {sG}, {KT_B}'); em(f's_add_u32 {sRed}, {sRed}, {WS_KTG}')
        em(f's_mul_i32 {sKTo}, {sJ}, 1088'); em(f's_add_u32 {sLine}, {sKTo}, {sRed}')
        em(f's_lshr_b32 {sT}, {sW}, 1'); em(f's_mul_i32 {sT}, {sT}, 544'); em(f's_and_b32 {sT2}, {sW}, 1'); em(f's_lshl_b32 {sT2}, {sT2}, 8')
        em(f's_add_u32 {sKTo}, {sLine}, {sT}'); em(f's_add_u32 {sKTo}, {sKTo}, {sT2}')
        em(f's_and_b32 {sT2}, {sG}, 3'); em(f's_lshl_b32 {sT2}, {sT2}, 4'); em(f's_mov_b64 {sX0}, 0xffff'); em(f's_lshl_b64 {sX0}, {sX0}, {sT2}'); em(f's_not_b64 {sX0}, {sX0}')
        em(f's_and_b32 {sT2}, {sG}, 7'); em(f's_lshl_b32 {sT2}, {sT2}, 3'); em(f's_mov_b64 {sX1}, 0xff'); em(f's_lshl_b64 {sX1}, {sX1}, {sT2}'); em(f's_not_b64 {sX1}, {sX1}')
        em(f's_sub_u32 {sCsp}, {sG}, {sJ}'); em(f's_sub_u32 {sCsp}, {sCsp}, 1'); em(f's_and_b32 {sCsp}, {sCsp}, 15')
        em(f's_cmp_eq_u32 {sW}, 2'); em(f's_cselect_b32 {sCsp}, {sCsp}, 15')
    def kt_voff(self, d, t):
        em = self.em
        em(f'v_and_b32 {d}, 7, {vLane}'); em(f'v_lshlrev_b32 {d}, 3, {d}'); em(f'v_lshl_add_u32 {d}, {vHi}, 2, {d}')
        em(f's_cmp_eq_u32 {sW}, {3 if self.o.xc else 2}'); em(f's_cselect_b32 {sT2}, 128, 0'); em(f'v_and_b32 {t}, 4, {vLane}'); em(f'v_mad_u32_u24 {d}, {t}, {sT2}, {d}')
        if self.o.rep8:
            em(f'v_bfe_u32 {t}, {vLane}, 3, 2'); em(f's_movk_i32 {sT2}, {KC:#x}'); em(f'v_mad_u32_u24 {d}, {t}, {sT2}, {d}')
    def resets(self):
        em = self.em
        t0, D = v(MR + 24), MR + 28
        L = em.newlabel('Lrs')
        if self.o.xc: em(f's_branch {L}')
        em(f's_cmp_eq_u32 {sRed}, 0'); em(f's_cbranch_scc1 {L}')
        em.cond_begin()
        self.kt_voff(t0, v(D)); em(f'v_mov_b32 {v(D)}, -1')
        if self.o.rep8:
            for k in range(4): self.wsstore(v(D), t0, sKTo, k * 4 * KC, width=1, sc=' sc1', tag='rst')
        else:
            em('s_mov_b32 exec_lo, 0xff'); em('s_mov_b32 exec_hi, 0xff')
            for l in range(2): self.wsstore(v(D), t0, sKTo, l * 0x8000, width=1, sc=' sc1', tag='rst')
        em('s_mov_b64 exec, -1')
        em.cond_end()
        em.label(L)
        L = em.newlabel('Lrc')
        em(f's_cmp_ge_u32 {sCsp}, 3'); em(f's_cbranch_scc1 {L}')
        em.cond_begin()
        em(f'v_lshlrev_b32 {t0}, 2, {vLane}'); em(f'v_mov_b32 {v(D)}, -1')
        em(f's_mul_i32 {sT2}, {sJ}, 384'); em(f's_lshl_b32 {sR}, {sCsp}, 7'); em(f's_add_u32 {sT2}, {sT2}, {sR}')
        em('s_mov_b32 exec_hi, 0')
        self.wsstore(v(D), t0, sT2, WS_CS, width=1, sc=' sc1', tag='rst')
        em('s_mov_b64 exec, -1')
        em.cond_end()
        em.label(L)
        def msg():
            em(f'v_lshlrev_b32 {t0}, 4, {vTid}'); em(f's_not_b32 {sT2}, {sNonce}')
            for r in range(4): em(f'v_mov_b32 {v(D+r)}, {sT2}')
            em(f'v_cmp_gt_u32 vcc, 136, {vTid}'); em(f's_and_saveexec_b64 {sEx}, vcc')
            em(f's_mul_i32 {sT2}, {sG}, {MSG_B}'); em(f's_add_u32 {sT2}, {sT2}, {sJmsg}')
            for l in range(2): self.wsstore(v(D, 4), t0, sT2, l * 256 * MSG_B, sc=' sc1', tag='rst')
            em(f's_mov_b64 exec, {sEx}')
        if self.o.prewrite: self.only_wave(3, msg, invert=True)
    def reset_items(self, D, which):
        em = self.em
        it = [f'v_mov_b32 {v(D+r)}, 0' for r in range(4)]
        if 'rst' in self.o.abl: which = 'x'
        rsc = {'x': ' sc1' if 'x' in self.o.rsc else None, 'h': ' sc1' if 'h' in self.o.rsc else None}
        def x():
            em(f's_and_b32 {sT2}, {sW}, 1'); em(f's_mul_i32 {sT2}, {sT2}, 1792'); em(f's_add_u32 {sT2}, {sT2}, {sXst}')
            self.wsstore(v(D, 4), vL16, sT2, 0, tag='rst', sc=rsc['x']); self.wsstore(v(D, 4), vL16, sT2, 0, tag='rst', off=1024, sc=rsc['x'])
        if 'x' in which: it.append(x)
        def h(p):
            self.wsstore(v(D, 4), vL16, sHks, p * 2048, tag='rst', sc=rsc['h']); self.wsstore(v(D, 4), vL16, sHks, p * 2048, tag='rst', off=1024, sc=rsc['h'])
        if 'h' in which: it += [lambda: h(0), lambda: h(1)]
        def h2():
            L = em.newlabel('Lr3')
            em(f's_cmp_ge_u32 {sJ}, 11'); em(f's_cbranch_scc1 {L}')
            em.cond_begin(); h(2); em.cond_end()
            em.label(L)
        if 'h' in which: it.append(h2)
        def st():
            em(f'v_and_b32 {v(D+4)}, 512, {vP}'); em(f'v_add_u32 {v(D+4)}, {v(D+4)}, {vP}')
            em('s_mov_b32 exec_hi, 0')
            for i in range(3): self.wsstore(v(D), v(D + 4), sStst, i * 16 * 8192, width=1, tag='rst')
            em('s_mov_b64 exec, -1')
        if 'x' in which: it.append(st)
        return it

    def check(self, regs, reload, tmp=None, split=False, kind='sent', tag=None, again=None):
        em = self.em
        if self.o.nochk and split and kind != 'h': return lambda: None
        F = em.newlabel('Lfix'); R = em.newlabel('Lret'); G_ = em.newlabel('Lok')
        dst = 'vcc' if split else sEx
        def test(e):
            r = regs[0]
            if r.startswith('a'): e(f'v_accvgpr_read_b32 {tmp}, {r}'); r = tmp
            if kind == 'sent':
                rest = list(regs)
                e(f'v_max_u32 {tmp}, {rest[0]}, {rest[1]}'); rest = rest[2:]
                while rest:
                    e(f'v_max3_u32 {tmp}, {rest[0]}, {rest[1]}, {tmp}'); rest = rest[2:]
                e(f'v_cmp_eq_u32 {dst}, -1, {tmp}')
            elif kind == 'n6':
                e(f'v_xor_b32 {tmp}, {regs[0]}, {tag}')
                for q in regs[1:]: e(f'v_bitop3_b32 {tmp}, {q}, {tag}, {tmp} bitop3:0xbe')
                e(f'v_and_b32 {tmp}, 63, {tmp}'); e(f'v_cmp_ne_u32 {dst}, 0, {tmp}')
            elif kind == 'h':
                if tag:
                    for q in regs: e(f'v_xor_b32 {q}, 0x80000000, {q}')
                if len(regs) == 2: e(f'v_or_b32 {tmp}, {regs[0]}, {regs[1]}'); r = tmp
                e(f'v_cmp_gt_i32 {dst}, 0, {r}')
            elif len(regs) <= 2:
                r1 = regs[-1]
                if r1.startswith('a'):
                    e(f'v_lshlrev_b32 {tmp}, 31, {tmp}'); e(f'v_cmp_{"eq" if tag else "ne"}_u32 {sEx}, 0, {tmp}')
                    e(f'v_accvgpr_read_b32 {tmp}, {r1}'); e(f'v_lshlrev_b32 {tmp}, 31, {tmp}'); e(f'v_cmp_{"eq" if tag else "ne"}_u32 {dst}, 0, {tmp}')
                    e('s_nop 1'); e(f's_or_b64 vcc, vcc, {sEx}')
                else:
                    e(f'v_bitop3_b32 {tmp}, {r}, {r1}, 1 bitop3:{0x80 if tag else 0xa8:#x}'); e(f'v_cmp_{"eq" if tag else "ne"}_u32 {dst}, 0, {tmp}')
            else:
                assert tag == 1
                rest = list(regs)
                e(f'v_and_b32 {tmp}, {rest[0]}, {rest[1]}'); rest = rest[2:]
                while rest:
                    e(f'v_bitop3_b32 {tmp}, {rest[0]}, {rest[1]}, {tmp} bitop3:0x80'); rest = rest[2:]
                e(f'v_and_b32 {tmp}, 1, {tmp}'); e(f'v_cmp_eq_u32 {dst}, 0, {tmp}')
        test(em)
        def branch():
            if split: em(f's_cbranch_vccnz {F}')
            else: em(f's_cmp_lg_u64 {sEx}, 0'); em(f's_cbranch_scc1 {F}')
            em.label(R)
            out = [F + ':']
            e = lambda t, tag=None: out.append('    ' + t)
            if self.o.ts and not self.o.span: e('s_add_u32 s87, s87, 1')
            def rep():
                for p in em.vmq:
                    if p.tag == 'A': again(e, p)
                    else: e(f's_add_u32 {sFx}, {sFlag}, {8 * 4096}'); e(f'buffer_store_dword {tmp}, off, {SWS}, {sFx}')
            reload(e)
            if again and self.o.fixmode: rep(); e(f's_waitcnt vmcnt({len(em.vmq)})')
            else: e('s_waitcnt vmcnt(0)')
            test(e)
            if split: e(f's_cbranch_vccz {G_}')
            else: e('s_nop 0'); e(f's_cmp_eq_u64 {sEx}, 0'); e(f's_cbranch_scc1 {G_}')
            e(f's_sub_u32 {sSpin}, {sSpin}, 1'); e(f's_cbranch_scc0 {F}'); e(f's_mov_b32 {sSpin}, 0')
            out.append(G_ + ':')
            if again and not self.o.fixmode: rep()
            e(f's_branch {R}')
            self.fixes += out
        if split: return branch
        branch()

    def colsum_items(self, quads, acc, tmp, own, ones, first):
        items = []
        rds = [self.tr(tmp + 4 * (n % 2), q, 0, own) for n, q in enumerate(quads)]
        items += rds[0]
        for n in range(len(quads)):
            if n + 1 < len(quads): items += rds[n + 1]
            items.append(f'{MF} {acc}, {ones}, {v(tmp + 4*(n%2), 4)}, ' + ('0' if first and n == 0 else acc))
        return items
    def cs_write_items(self, srcs, lds, tmp):
        ad = v(tmp)
        it = [f'v_and_b32 {ad}, 31, {vLane}', f'v_lshlrev_b32 {ad}, 4, {ad}', f'v_add_u32 {ad}, {lds:#x}, {ad}',
              f's_lshl_b32 {sT2}, {sW}, 2', f'v_add_u32 {v(tmp+1)}, {sT2}, {ad}']
        return it + [f'ds_write_b32 {v(tmp+1)}, {s} offset:{p*512}' for p, s in enumerate(srcs)]
    def cs_read_items(self, keys, tmp):
        ad = v(tmp); R = tmp + 2
        it = [f'ds_read_b128 {v(R+4*p,4)}, {ad} offset:{p*512}' for p in range(len(keys))]
        for p, k in enumerate(keys):
            r = R + 4 * p
            it += [f'v_add_f32 {v(r)}, {v(r)}, {v(r+1)}', f'v_add_f32 {v(r+2)}, {v(r+2)}, {v(r+3)}', f'v_add_f32 {v(r)}, {v(r)}, {v(r+2)}',
                   f'v_cvt_pk_bf16_f32 {v(r+1)}, {v(r)}, {v(r)}', f'v_lshlrev_b32 {v(r+1)}, 16, {v(r+1)}', f'v_sub_f32 {v(r+1)}, {v(r)}, {v(r+1)}',
                   f'v_cvt_pk_bf16_f32 {CS[k]}, {v(r)}, {v(r+1)}']
        return it
    def colsum_exchange(self, srcs, keys, lds, tmp):
        self.emit(self.cs_write_items(srcs, lds, tmp)); self.barrier(); self.emit(self.cs_read_items(keys, tmp))

    def stage_dma(self, srd, m, qa, qb, tag):
        if 'w2' in self.o.abl and srd == SW2: return
        if 'wo' in self.o.abl and srd == SWO: return
        em = self.em
        if srd == SWO:
            em(f's_add_u32 {sR}, {sRot2}, {m}'); em(f's_and_b32 {sR}, {sR}, 7'); em(f's_lshl_b32 {sR}, {sR}, 16')
        else:
            self.tab4(m, sR, 16)
        em(f's_add_u32 {sR}, {sR}, {sC128}')
        self.dma(srd, vDs, sR, 0, qa, tag, nt=self.o.nt_stage); self.dma(srd, vDs, sR, 8192, qb, tag, nt=self.o.nt_stage)
    def tab4(self, st, dst, sh, em=None):
        em = em or self.em
        em(f's_bfe_u32 {dst}, {sTab[st // 6]}, {(5 * (st % 6)) | (5 << 16):#x}'); em(f's_lshl_b32 {dst}, {dst}, {sh}')
    def stage_read_items(self, abase, m, qa, qb):
        items = []
        for h, q in enumerate((qa, qb)):
            addr = q * 4096; win = addr >> 16; off = addr & 0xFFFF
            def f(win=win, off=off, h=h):
                if win == 0: b0, b1 = vS0, vS1
                else:
                    if self.swin != win:
                        self.em(f'v_add_u32 {vS0w}, {win*65536:#x}, {vS0}'); self.em(f'v_add_u32 {vS1w}, {win*65536:#x}, {vS1}'); self.swin = win
                    b0, b1 = vS0w, vS1w
                self.em(f'ds_read_b64_tr_b16 {a(abase + m*8 + 2*h, 2)}, {b0} offset:{off}')
                self.em(f'ds_read_b64_tr_b16 {a(abase + m*8 + 4 + 2*h, 2)}, {b1} offset:{off}')
            items.append(f)
        return items

    def aux_items(self, S, Q, t0, need_r=True):
        it = [f'v_mul_f32 {S}, {sInv}, {S}']
        if need_r:
            it += [f'v_mul_f32 {Q}, {sInv}, {Q}', f'v_fma_f32 {Q}, -{S}, {S}, {Q}', f'v_max_f32 {Q}, 0, {Q}', f'v_add_f32 {Q}, {sEps}, {Q}',
                   f'v_rsq_f32 {Q}, {Q}', f'v_mul_f32 {vRl}, {sLog2e}, {Q}']
        it += [f'v_cndmask_b32_e64 {S}, 0, -{S}, {sLo}',
               f'v_cvt_pk_bf16_f32 {v(AUX)}, {S}, {S}', f'v_lshlrev_b32 {t0}, 16, {v(AUX)}', f'v_sub_f32 {S}, {S}, {t0}', f'v_cvt_pk_bf16_f32 {v(AUX+1)}, {S}, {S}']
        if need_r:
            it += [f'v_cndmask_b32 {Q}, 0, {vRl}, {sLo}', f'v_cvt_pk_bf16_f32 {t0}, {Q}, {Q}', f'v_lshlrev_b32 {t0}, 16, {t0}', f'v_sub_f32 {t0}, {Q}, {t0}',
                   f'v_cvt_pk_bf16_f32 {v(AUX+2)}, {Q}, {t0}']
        return it
    def aux_const_items(self):
        return [f'v_mov_b32 {v(AUX+2)}, 0', f'v_mov_b32 {v(AUX+3)}, 0', f'v_mov_b32 {v(CB+2)}, 0', f'v_mov_b32 {v(CB+3)}, 0', f'v_mov_b32 {v(CB+4)}, 0x3f803f80', f'v_mov_b32 {v(CB+5)}, 0x3f803f80']
    def corr_items(self, key, acc, swapAB):
        c = v(acc, 16)
        return [f'v_mov_b32 {v(CB)}, {CS[key]}', f'v_mov_b32 {v(CB+1)}, {CS[key]}',
                f'{MF} {c}, {v(AUX,4)}, {v(CB,4)}, {c}' if swapAB else f'{MF} {c}, {v(CB,4)}, {v(AUX,4)}, {c}']
    def stats_T_loads(self, i, e=None):
        e = e or self.em
        t = MR + 16
        e(f's_add_u32 {sFx}, {sG8K}, {i * 16 * 8192}')
        e(f'buffer_load_dwordx4 {v(t,4)}, {vStT}, {SWS}, {sFx} offen sc1', tag='stat'); e(f'buffer_load_dwordx4 {v(t+4,4)}, {vStT}, {SWS}, {sFx} offen offset:512 sc1', tag='stat')
    def stats_T_items(self, need_r, sti):
        t = MR + 16
        it = [lambda: self.check([v(t + r) for r in range(8)], lambda e: self.stats_T_loads(sti, e), v(38), kind='x', tag=sTxn)]
        it += [f'v_add_f32 {v(t)}, {v(t)}, {v(t+1)}', f'v_add_f32 {v(t+2)}, {v(t+2)}, {v(t+3)}', f'v_add_f32 {v(t+4)}, {v(t+4)}, {v(t+5)}',
              f'v_add_f32 {v(t+6)}, {v(t+6)}, {v(t+7)}', f'v_add_f32 {v(t)}, {v(t)}, {v(t+2)}', f'v_add_f32 {v(t+4)}, {v(t+4)}, {v(t+6)}',
              f'v_add_f32 {v(t)}, {v(t)}, {v(t+4)}', f'v_mov_b32 {v(t+1)}, {v(t)}', f'v_permlane32_swap_b32 {v(t)}, {v(t+1)}']
        return it + self.aux_items(v(t), v(t + 1), v(t + 2), need_r)

    def pass2(self, steps, planes, accs, swapAB, side, fill, loader=None, first=True, extra=None, third=None):
        em = self.em
        steps = list(steps)
        n3 = third[2] if third else 0
        def rd3(i):
            ks = steps[i]
            for t in self.tr(MR + 24 + (i % 2) * 4, third[0][ks >> 2], ks & 3): em(t, tag=('B', i))
        def rd(i, p):
            ks = steps[i]
            for t in self.tr(BB + (i % 2) * 8 + 4 * p, planes[p][ks >> 2], ks & 3): em(t, tag=('B', i))
        for i in range(2):
            for p in range(2): rd(i, p)
            if i < n3: rd3(i)
        br = extra(0)
        for i, ks in enumerate(steps):
            if br: br(); br = None
            if self.o.ts2 and (self.S == 0) != bool(self.o.ts2l1) and i == 0: self.ts('first')
            lg = [k for k, p in enumerate(em.lgq) if p.tag == ('B', i)]
            need = [XORD[k] for k in (i + 1, i + 2) if k < len(steps)] if i % 2 else []
            vm = [k for k, p in enumerate(em.vmq) if p.tag == 'A' and XORD[self.ldidx[id(p)]] in need]
            em.force_wait(vm=len(em.vmq) - 1 - max(vm) if vm else None, lg=len(em.lgq) - 1 - max(lg) if lg else None)
            for p in range(2):
                w = v(BB + (i % 2) * 8 + 4 * p, 4); x = Afrag(ks); c = v(accs[p], 16)
                src = '0' if (first and i == 0) else c
                em(f'{MF} {c}, {x}, {w}, {src}' if swapAB else f'{MF} {c}, {w}, {x}, {src}')
                if i + 2 < len(steps): rd(i + 2, p)
                if p == 0: loader(i)
                if p == 0 and i + 1 < len(steps): br = extra(i + 1)
                if not (p == 0 and br): side.run(fill(i) if callable(fill) else fill)
                if p == 1 and i < n3:
                    c3 = v(third[1], 16)
                    em(f'{MF} {c3}, {v(MR + 24 + (i % 2) * 4, 4)}, {x}, ' + ('0' if i == 0 else c3))
                    if i + 2 < n3: rd3(i + 2)
                    side.run(fill(i))
                if self.o.ts2 and (self.S == 0) != bool(self.o.ts2l1) and p == 1 and i in (0, 3, 7, 11, 15, 19, 23, 27, 31): self.ts(f's{i}')
    def pass1(self, plane, acc, side, fill, steps=None):
        em = self.em
        NB = 4
        first = steps is None
        steps = list(range(32)) if steps is None else list(steps)
        def rd(i):
            for t in self.tr(BB + (i % NB) * 4, plane[steps[i] >> 2], steps[i] & 3): em(t)
        for i in range(NB - 1): rd(i)
        for i, ks in enumerate(steps):
            w = v(BB + (i % NB) * 4, 4); c = v(acc, 16)
            if i + NB - 1 < len(steps): rd(i + NB - 1)
            em(f'{MF} {c}, {w}, {Afrag(ks)}, ' + ('0' if first and i == 0 else c))
            side.run(fill(i) if callable(fill) else fill)
    def xld(self, i, e=None):
        ks = XORD[i]
        r = (e or self.em)(f'buffer_load_dwordx4 {Afrag(ks)}, {vAX}, {SWS}, {(sXl if ks & 2 else sXm)[ks >> 2]} offen offset:{(ks & 1) * 1024} sc1', tag='A')
        if e is None: self.ldidx[id(r)] = i
    def x_prefetch(self, off, n0, n1):
        if n0 == 0:
            self.em(f's_add_u32 {sT}, {sGXw}, {off}'); self.em(f'v_add_u32 {vAX}, {sT}, {vL16}')
        for i in range(n0, n1): self.xld(i)
    def a_loader(self, pre, sti, xtag):
        nxt = [pre]
        def step(i):
            if i == self.o.statstep - 10: self.stats_T_loads(sti)
            for _ in range(2 if i < self.o.burst else 1):
                if nxt[0] < 32: self.xld(nxt[0]); nxt[0] += 1
            self.xdone = nxt[0] >= 32
        def chk(i):
            if i % 2: return None
            f0 = lambda k: (lambda r: r[0] + r[2:].split(':')[0])(Afrag(XORD[k]))
            return self.check([f0(i), f0(i + 1)], lambda e: (self.xld(i, e), self.xld(i + 1, e)), v(38), split=True, kind='x', tag=xtag,
                              again=lambda e, p: self.xld(self.ldidx[id(p)], e))
        return step, chk

    def phi_items(self, acc, rl, lanes_t, E):
        out = []
        for g in range(2):
            b = acc + 8 * g
            for k in range(4):
                x = v(b + 2 * k, 2)
                if lanes_t:
                    out += [f'v_fma_f32 {v(b+2*k)}, {v(b+2*k)}, {rl}, {sDelta}', f'v_fma_f32 {v(b+2*k+1)}, {v(b+2*k+1)}, {rl}, {sDelta}']
                else: out.append(f'v_pk_fma_f32 {x}, {x}, {v(rl + 8*g + 2*k, 2)}, {sDelta2}')
            for k in range(8): out.append(f'v_exp_f32_e64 {v(E+k)}, {v(b+k)} clamp')
            for k in range(8): out.append(f'v_max_f32 {v(b+k)}, {sDelta}, {v(b+k)}')
            for k in range(4): out.append(f'v_pk_fma_f32 {v(b+2*k,2)}, {v(b+2*k,2)}, {sLn22}, {v(E+2*k,2)}')
            for k in range(4): out.append(f'v_cvt_pk_bf16_f32 {v(acc+4*g+k)}, {v(b+2*k)}, {v(b+2*k+1)}')
        return out

    def p1_start(self):
        em = self.em; o = self.o
        self.lin = True
        X = MR; OWN = [v(MR + 4), v(MR + 5), v(MR + 6)]; H = v(MR + 7); ONE = v(MR + 8, 4); CT = MR + 12
        self.OWN, self.ONE = OWN, ONE
        aS, aCk, aCv = a(0, 16), a(32, 16), a(48, 16); QA = ACC + 32
        em(f'v_and_b32 v27, 7, {vLane}'); em('v_lshlrev_b32 v27, 7, v27')
        em(f'v_bfe_u32 v28, {vLane}, 3, 2'); em('v_lshl_add_u32 v27, v28, 12, v27')
        em(f's_add_u32 {sT}, {sWl}, {24*4096}'); em(f'v_add_u32 v27, {sT}, v27')
        em(f'v_bfe_u32 v28, {vLane}, 1, 3'); em(f'v_xor_b32 v28, v28, {vHi}')
        for kk in range(4):
            em(f'v_xor_b32 v29, {2*kk}, v28'); em(f'v_lshl_add_u32 {v(X+kk)}, v29, 4, v27')
        for i in range(3): em(f'v_add_u32 {OWN[i]}, {sWl}, {vTr[i]}')
        for i in range(4): em(f'v_mov_b32 {v(MR+8+i)}, 0x3f803f80')
        for sm, bit in ((sM0, 1), (sM1, 2), (sM3, 8), (sM4, 16)):
            em(f'v_and_b32 v29, {bit}, {vLane}'); em(f'v_cmp_ne_u32 {sm}, 0, v29')
        em(f'v_bfe_u32 v29, {vLane}, 2, 1'); em(f'v_cmp_eq_u32 s[46:47], v29, {vHi}')
        if o.tw == 0: self.touch_w('v29', MR + 20)
        self.reducer_setup_c() if o.xc else self.reducer_setup()
        self.emit(self.c1rest)
        pre2 = self.chunk_items(2) if o.ring == 4 else []
        def own_reads(c):
            em.wait_vm_tag(f'c{c}')
            for kk in range(4): em(f'ds_read_b128 {Afrag(4*c+kk)}, {v(X+kk)} offset:{(c % o.ring) * 16384}')
            for p, pl in enumerate('kv'): self.emit(self.tr(CT + 4 * p, self.pl[pl][c], 0, OWN))
        def diag(S, Q, T):
            tail = [f'v_accvgpr_read_b32 {S}, a0']
            for r in range(8): tail.append(f'v_cndmask_b32 {v(QA+r)}, {v(QA+2*r)}, {v(QA+2*r+1)}, {sM0}')
            for r in range(4): tail.append(f'v_cndmask_b32 {v(QA+r)}, {v(QA+2*r)}, {v(QA+2*r+1)}, {sM1}')
            for r in range(2): tail.append(f'v_cndmask_b32 {v(QA+r)}, {v(QA+2*r)}, {v(QA+2*r+1)}, {sM3}')
            tail += [f'v_cndmask_b32 {Q}, {Q}, {v(QA+1)}, {sM4}', f'v_cndmask_b32 {Q}, 0, {Q}, s[46:47]',
                     f'v_mov_b32 {T}, {Q}', f'v_permlane32_swap_b32 {Q}, {T}', f'v_add_f32 {Q}, {Q}, {T}']
            return tail
        def sld(e):
            e(f's_add_u32 {sEx[2:4].join(["s", ""])}, {sG8K}, {3 * 16 * 8192}')
            for k in range(2): e(f'buffer_load_dwordx4 {v(QA + 8 + 4 * k, 4)}, {vStT}, {SWS}, s82 offen offset:{k * 512} sc1', tag='stat')
        def spub():
            S, Q = v(QA + 1), v(QA)
            em(f'v_cndmask_b32 {S}, {Q}, {v(MR+20)}, {sLo}')
            em(f's_and_b32 {sT2}, {sNonce}, 63'); em(f'v_mov_b32 {v(QA+2)}, {sT2}'); em(f'v_and_b32 {S}, 0xffffffc0, {S}'); em(f'v_or_b32 {S}, {S}, {v(QA+2)}')
            em(f's_and_b32 {sT}, {sRot}, 4'); em(f's_lshl_b32 {sT}, {sT}, 7'); em(f's_and_b32 {sT2}, {sRot}, 3'); em(f's_lshl_b32 {sT2}, {sT2}, 2')
            em(f's_add_u32 {sT2}, {sT2}, {sT}'); em(f's_add_u32 {sT2}, {sT2}, {sG8K}')
            self.wsstore(S, vStT, sT2, 3 * 16 * 8192, width=1, sc=' sc1', tag='rst')
        side = Side(em)
        self.stq = list(range(24, 32)) + [34, 35, 32, 33, 36, 37, 38, 39]
        if o.ts2: self.ts('pre0')
        self.emit(pre2[:o.c2a])
        own_reads(0)
        side.add(*pre2[o.c2a:])
        self.ts('c0')
        for c in range(8):
            em('s_barrier')
            if c + o.ring - 1 < 8: side.add(*self.chunk_items(c + o.ring - 1))
            if c == o.hc: side.add(self.nonce_hello)
            if c == o.rc: side.add(self.resets)
            if o.sst and c == 1: side.add(*diag(v(MR + 20), v(QA), v(MR + 22))); side.add(spub)
            if o.sst and c == o.sldc: side.add(lambda: sld(em))
            self.touch_at(f'c{c}', side, 'v27')
            if o.rste and c == o.rste:
                def early_resets():
                    keep = self.sc; self.sc = ' sc1'
                    self.emit(self.reset_items(MR + 24, 'xh')); self.sc = keep
                side.add(early_resets)
            if c == o.tqc: side.add(lambda: self.touch_q('v27', MR + 24))
            if c == o.tw - 1: side.add(lambda: self.touch_w('v27', MR + 20))
            if c == o.pc:
                def w1p():
                    em(f's_lshl_b32 {sT2}, {sW}, 6'); em(f's_add_u32 {sT2}, {sT2}, {sW1c0}'); em(f's_cmp_lt_u32 {sW}, 2'); em(f's_cselect_b32 {sT2}, {sT2}, {sW1c2}')
                    em(f's_lshl_b32 {sR}, {sG}, 1'); em(f's_sub_u32 {sR}, {sR}, {sW}'); em(f's_mul_i32 {sR}, {sR}, {16*2752}')
                    em(f'v_add_u32 v28, {sR}, {vD1}')
                    if o.pz: em(f's_cmp_eq_u32 {sW}, 3'); em(f's_cselect_b32 {sT2}, 0x10000000, {sT2}')
                    pq = (34, 35) if o.plate else (22, 23)
                    self.dma(SW1, 'v28', sT2, 0, pq[0], 'w1p'); self.dma(SW1, 'v28', sT2, 16 * 2752, pq[1], 'w1p')
                side.add(w1p)
            if c == max(5, o.pc + 2) and not o.plate:
                aW = a(80, 16); W = MR + 24
                side.add(lambda: em.wait_vm_tag('w1p'))
                side.add(*self.tr(W, 22, 0, OWN)); side.add(*self.tr(W + 4, 23, 0, OWN))
                side.add(f'{MF} {aW}, {ONE}, {v(W,4)}, 0', f'{MF} {aW}, {ONE}, {v(W+4,4)}, {aW}')
            if c == max(5, o.pc + 2) + 1 or (c == 7 and o.pc + 2 >= 7):
                def w1s(W=MR + 24):
                    em(f'v_accvgpr_read_b32 {v(W)}, a80'); em(f's_and_b32 {sT2}, {sNonce}, 0xff'); em(f'v_mov_b32 {v(W+1)}, {sT2}')
                    em(f'v_and_or_b32 {v(W)}, {v(W)}, {sMaskInv}, {v(W+1)}'); em(f'v_lshlrev_b32 {v(W+1)}, 2, {vLane}')
                    em(f's_min_u32 {sR}, {sW}, 2'); em(f's_lshl_b32 {sR}, {sR}, 7')
                    em(f's_mul_i32 {sT2}, {sG}, {MSG_B}'); em(f's_add_u32 {sT2}, {sT2}, {sJmsg}'); em(f's_add_u32 {sT2}, {sT2}, {sR}')
                    def st_():
                        em('s_mov_b32 exec_hi, 0')
                        self.wsstore(v(W), v(W + 1), sT2, 2176, width=1, sc=' sc1', tag='rst')
                        em('s_mov_b64 exec, -1')
                    self.only_wave(3, st_, invert=True) if o.pz else st_()
                self.w1s = w1s
                if not o.plate: side.add(w1s)
            if o.w1r and c == o.w1rc:
                def pub():
                    W = MR + 24
                    em(f's_add_u32 {sT2}, {sWl}, {22 * 4096}'); em(f'v_add_u32 v27, {sT2}, {vL16}')
                    em(f'ds_read_b128 {v(W,4)}, v27'); em(f'ds_read_b128 {v(W+4,4)}, v27 offset:4096')
                    em(f's_mul_i32 {sT2}, {sJ}, 98304'); em(f's_lshl_b32 {sR}, {sW}, 15'); em(f's_add_u32 {sT2}, {sT2}, {sR}')
                    em(f's_lshl_b32 {sR}, {sG}, 11'); em(f's_add_u32 {sT2}, {sT2}, {sR}')
                    self.wsstore(v(W, 4), vL16, sT2, WS_W1R, sc=' sc1', tag='rst'); self.wsstore(v(W + 4, 4), vL16, sT2, WS_W1R, sc=' sc1', tag='rst', off=1024)
                side.q.insert(0, lambda: self.only_wave(3, pub, invert=True))
            if c == max(5, o.hc + 2):
                def hello():
                    em(f's_add_u32 {sT2}, {sG128}, {WS_HELLO}')
                    em(f'buffer_load_dword {H}, {vPoll}, {SWS}, {sT2} offen sc1', tag='hello')
                side.add(hello)
            if c >= 4:
                for m in range(8):
                    assert o.plate or m < 6 or int(o.qsched[m]) > max(5, o.pc + 2)
                    if o.qsched[m] == str(c): side.add(lambda m=m: self.qkv_dma('q', m, 'q'))
            def rd(kk, p):
                self.emit(self.tr(BB + (kk % 2) * 8 + 4 * p, self.pl['kv'[p]][c], kk))
            for kk in range(2):
                for p in range(2): rd(kk, p)
            cnt = [0]
            def tick():
                cnt[0] += 1
                if c < 7 and cnt[0] % o.cgap == o.cgap - 1: side.run(o.crun if (o.sst and c) else 1)
            for p, acc in enumerate((aCk, aCv)):
                em(f'{MF} {acc}, {ONE}, {v(CT+4*p,4)}, ' + ('0' if c == 0 else acc)); tick()
            for kk in range(4 if (c == 0 or not o.sst) else 0):
                ks = 4 * c + kk
                em(f'{MF} {aS}, {ONE}, {Afrag(ks)}, ' + ('0' if ks == 0 else aS)); tick()
                em(f'{MF} {v(QA,16)}, {Afrag(ks)}, {Afrag(ks)}, ' + ('0' if ks == 0 else v(QA, 16))); tick()
            if c == 7:
                S, Q, T = v(MR + 20), v(QA), v(MR + 22)
                tail = [f'v_accvgpr_read_b32 {v(MR+20)}, a32', f'v_accvgpr_read_b32 {v(MR+21)}, a48']
                tail += self.cs_write_items([v(MR + 20), v(MR + 21)], 32 * 4096, MR + 22) + [self.barrier] + self.cs_read_items(['k', 'v'], MR + 22)
                if o.sst:
                    P_ = QA + 8
                    tail += [lambda: self.check([v(P_ + r) for r in range(8)], sld, v(QA + 1), kind='n6', tag=v(QA + 2))]
                    tail += [f'v_add_f32 {v(P_)}, {v(P_)}, {v(P_+1)}', f'v_add_f32 {v(P_+2)}, {v(P_+2)}, {v(P_+3)}', f'v_add_f32 {v(P_+4)}, {v(P_+4)}, {v(P_+5)}',
                             f'v_add_f32 {v(P_+6)}, {v(P_+6)}, {v(P_+7)}', f'v_add_f32 {v(P_)}, {v(P_)}, {v(P_+2)}', f'v_add_f32 {v(P_+4)}, {v(P_+4)}, {v(P_+6)}',
                             f'v_add_f32 {S}, {v(P_)}, {v(P_+4)}', f'v_mov_b32 {Q}, {S}', f'v_permlane32_swap_b32 {S}, {Q}']
                else:
                    tail += diag(S, Q, T)
                tail += self.aux_const_items() + self.aux_items(S, Q, T)
                side.q = tail + side.q
            for kk in range(4):
                ks = 4 * c + kk
                for p in range(2):
                    cc = v(ACC + 16 * p, 16)
                    em(f'{MF} {cc}, {Afrag(ks)}, {v(BB + (kk % 2) * 8 + 4 * p, 4)}, ' + ('0' if ks == 0 else cc))
                    if kk + 2 < 4: rd(kk + 2, p)
                    if c < 7: tick()
                    else: side.run(7)
                if kk == o.ownpos and c + 1 < 8: own_reads(c + 1)
            if c < 7: side.flush()
            if c in (1, 3, 5) and not o.ts2: self.ts(f'c{c}e')
        side.flush()
        self.ts('kvpass')
        self.emit(self.corr_items('k', ACC, True)); self.emit(self.corr_items('v', ACC + 16, True))
        L = em.newlabel('Lhp'); D = em.newlabel('Lhd')
        em.wait_vm_tag('hello')
        em.label(L)
        em(f'v_subrev_u32 {v(TMP)}, {sNonce}, {H}'); em(f'v_add_u32 {v(TMP)}, -1, {v(TMP)}')
        em(f'v_cmp_le_u32 vcc, 16, {v(TMP)}')
        em(f's_cbranch_vccz {D}')
        em.cond_begin()
        em(f's_add_u32 {sT2}, {sG128}, {WS_HELLO}')
        em(f'buffer_load_dword {H}, {vPoll}, {SWS}, {sT2} offen sc1'); em.force_wait(vm=0)
        em.cond_end()
        self.spin_tail(L)
        em.label(D)
        em(f'v_cmp_ne_u32 vcc, {sHello}, {H}')
        for i in range(3): em(f'v_mov_b32 {v(TMP+i)}, {OWN[i]}')
        self.OWN = [v(TMP), v(TMP + 1), v(TMP + 2)]
        em(f'{MF} {v(MR,16)}, {v(AUX,4)}, {v(CB+2,4)}, 0')
        self.ts('decide')

    def p1_rest(self, l):
        em = self.em; o = self.o
        K, V, Q = ACC, ACC + 16, ACC + 32
        RL = MR; E = MR + 16
        sq = self.pl['k'][:4]
        sa = 36 * 4096
        mw, mr, fac, t16, tg = v(V + 8), v(V + 9), v(V + 10), v(V + 11), v(V + 12)
        u, x1, x2 = v(V + 13), v(V + 14), v(V + 15)
        self.emit(self.phi_items(K, RL, False, E))
        D0, D1 = MR, MR + 16
        rest = []
        for hh in range(2):
            rest += [f'v_pk_mul_f32 {v(V+2*r,2)}, {v(V+2*r,2)}, {v(RL+2*r,2)}' for r in range(4 * hh, 4 * hh + 4)]
            rest += [f'v_cvt_pk_bf16_f32 {v(V+r)}, {v(V+2*r)}, {v(V+2*r+1)}' for r in range(4 * hh, 4 * hh + 4)]
        W_ = E
        rest = rest[:8] + [f'v_mov_b32 {v(K+8+r)}, {v(CB+4)}' for r in range(8)] + [f'v_permlane16_swap_b32 {v(V+r)}, {v(K+8+r)}' for r in range(4)] + rest[8:]
        rest += [f'{MF} {v(D1,16)}, {v(K,4)}, {v(K+8,4)}, 0']
        rest += [f'v_permlane16_swap_b32 {v(V+r)}, {v(K+8+r)}' for r in range(4, 8)]
        rest += [f'{MF} {v(D0,16)}, {v(K,4)}, {v(V,4)}, 0', f'{MF} {v(D1,16)}, {v(K+4,4)}, {v(K+12,4)}, {v(D1,16)}',
                 f'{MF} {v(D0,16)}, {v(K+4,4)}, {v(V+4,4)}, {v(D0,16)}']
        if l == 0 and not o.qlate:
            for r in range(4): em(f'v_mov_b32 {v(BB+8+r)}, {v(CB+4)}')
            cs = [lambda: em.wait_vm_tag('q')] + self.colsum_items(self.pl['q'], v(Q, 16), BB, self.OWN, v(BB + 8, 4), True)
            mixed = []
            while rest or cs:
                mixed += rest[:1] + cs[:1]; rest = rest[1:]; cs = cs[1:]
            rest = mixed
        self.emit(rest)
        self.emit([f's_lshl_b32 {sT2}, {sW}, 12', f's_add_u32 {sT2}, {sT2}, {sa}', f'v_add_u32 {mw}, {sT2}, {vL16}',
                   f'v_bfe_u32 {x1}, {vLane}, 1, 4', f'v_lshl_add_u32 {x1}, {vHi}, 5, {x1}', f'v_lshlrev_b32 {x1}, 4, {x1}',
                   f's_lshl_b32 {sT2}, {sW}, 11', f'v_add_u32 {x1}, {sT2}, {x1}',
                   f'v_bfe_u32 {x2}, {vLane}, 1, 2', f'v_lshlrev_b32 {x2}, 9, {x2}', f'v_bfe_u32 {u}, {vLane}, 2, 1', f'v_lshl_add_u32 {x2}, {u}, 10, {x2}', f'v_add_u32 {x2}, 256, {x2}',
                   f's_cmp_eq_u32 {sW}, 2', f's_cselect_b64 vcc, -1, 0', f'v_cndmask_b32 {mr}, {x1}, {x2}, vcc',
                   f'v_and_b32 {x1}, 1, {vLane}', f'v_lshl_add_u32 {mr}, {x1}, 10, {mr}', f'v_add_u32 {mr}, {sa:#x}, {mr}',
                   f'v_add_u32 {t16}, {sWl}, {vL16}', f's_and_b32 {sT2}, {sNonce}, 0xff', f'v_mov_b32 {tg}, {sT2}',
                   f'v_lshrrev_b32 {x1}, 3, {vLane}', f'v_mul_u32_u24 {x1}, {MSG_B}, {x1}', f'v_and_b32 {x2}, 7, {vLane}', f'v_lshl_add_u32 {fac}, {x2}, 4, {x1}'])
        self.kt_voff(u, x1)
        for i, r in ((2, D1 + 8), (3, D1 + 12), (0, D0), (1, D0 + 4)): em(f'ds_write_b128 {mw}, {v(r,4)} offset:{i*1024}')
        if l == 0 and not o.qlate: self.emit(self.cs_write_items([v(Q)], 33 * 4096, V))
        if not o.qlate: em.wait_vm_tag('q')
        self.barrier()
        if not o.ts2: self.ts('kvbar')
        M = MR
        if o.xc: return self.exchange_c(l, mw, mr, fac, t16, tg, u, x1, x2)
        ga = fac; G = MR + 4; A0 = x1; sOK = 's48'
        def msg_out():
            for i in range(4): em(f'ds_read_b128 {v(M+4*i,4)}, {mr} offset:{i*4096}')
            for r in (0, 2): em(f'v_pk_add_f32 {v(M+r,2)}, {v(M+r,2)}, {v(M+4+r,2)}')
            for r in (0, 2): em(f'v_pk_add_f32 {v(M+8+r,2)}, {v(M+8+r,2)}, {v(M+12+r,2)}')
            for r in (0, 2): em(f'v_pk_add_f32 {v(M+r,2)}, {v(M+r,2)}, {v(M+8+r,2)}')
            em(f'v_cmp_gt_u32 vcc, 2176, {t16}')
            for r in range(4): em(f'v_and_or_b32 {v(M+r)}, {v(M+r)}, {sMaskInv}, {tg}')
            em(f's_mul_i32 {sT2}, {sG}, {MSG_B}'); em(f's_add_u32 {sT2}, {sT2}, {sJmsg}')
            em('s_mov_b64 exec, vcc')
            self.wsstore(v(M, 4), t16, sT2, l * 256 * MSG_B, sc=' sc1', tag='msg')
            em('s_mov_b64 exec, -1')
        self.only_wave(3, msg_out, invert=True)
        def if_pending(f):
            L = em.newlabel('Lp')
            em(f's_cmp_lg_u32 {sOK}, 0'); em(f's_cbranch_scc1 {L}')
            em.cond_begin(); f(); em.vmq = [p for p in em.vmq if p.tag != 'g']; em.cond_end()
            em.label(L)
            self.gmark = set(id(p) for p in em.vmq)
        def g_loads():
            em(f's_mov_b64 exec, {sX0}'); self.wsload(v(G, 4), ga, sLine, l * 256 * MSG_B, tag='g')
            em(f's_mov_b64 exec, {sX1}'); self.wsload(v(G + 4, 4), ga, sLine, l * 256 * MSG_B + 8 * MSG_B, tag='g')
            em('s_mov_b64 exec, -1')
        def g_check():
            em(f'v_xor_b32 {A0}, {v(G)}, {tg}')
            for r in (3, 4, 7): em(f'v_bitop3_b32 {A0}, {v(G+r)}, {tg}, {A0} bitop3:0xbe')
            em(f'v_and_b32 {A0}, 0xff, {A0}'); em(f'v_cmp_ne_u32 vcc, 0, {A0}')
        def g_finish():
            for r in (0, 2): em(f'v_pk_add_f32 {v(G+r,2)}, {v(G+r,2)}, {v(G+4+r,2)}')
            for r in range(4): em(f'v_add_f32_dpp {v(G+r)}, {v(G+r)}, {v(G+r)} row_ror:8 {DPPM}')
            em(f'v_permlane16_swap_b32 {v(G)}, {v(G+1)}'); em(f'v_permlane16_swap_b32 {v(G+2)}, {v(G+3)}')
            em(f'v_add_f32 {v(G)}, {v(G)}, {v(G+1)}'); em(f'v_add_f32 {v(G+2)}, {v(G+2)}, {v(G+3)}')
            em(f'v_permlane32_swap_b32 {v(G)}, {v(G+2)}'); em(f'v_add_f32 {v(G)}, {v(G)}, {v(G+2)}')
            em(f'v_mul_f32 {v(G)}, {sFac}, {v(G)}'); em(f'v_mov_b32 {v(G+1)}, {v(G)}')
            em(f'v_permlane16_swap_b32 {v(G)}, {v(G+1)}'); em(f'v_cvt_pk_bf16_f32 {v(G)}, {v(G)}, {v(G+1)}')
            if o.rep8:
                for k in range(2): self.wsstore(v(G), u, sKTo, (l * 8 + k * 4) * KC, width=1, sc=' sc1', tag='kt')
            else:
                em('s_mov_b32 exec_lo, 0xff'); em('s_mov_b32 exec_hi, 0xff')
                self.wsstore(v(G), u, sKTo, l * 0x8000, width=1, sc=' sc1', tag='kt')
            em('s_mov_b64 exec, -1')
            em(f's_mov_b32 {sOK}, 1')
        def first():
            for r in range(4): em(f'v_mov_b32 {v(G+r)}, {v(M+r)}'); em(f'v_mov_b32 {v(G+4+r)}, {v(M+r)}')
            g_loads()
        def attempt():
            em.force_wait(vm=len([p for p in em.vmq if id(p) not in self.gmark]))
            g_check()
            L = em.newlabel('La'); E2 = em.newlabel('Lb')
            em(f's_cbranch_vccnz {L}')
            em.cond_begin(); g_finish(); em.cond_end()
            em(f's_branch {E2}')
            em.label(L)
            g_loads()
            em.label(E2)
        em(f's_xor_b32 {sOK}, {sRed}, 1')
        if_pending(first)
        self.ts('msg')
        side = Side(em)
        if o.qlate:
            base = len(em.vmq) - 1 - max(i_ for i_, p in enumerate(em.vmq) if p.tag == 'q')
            La = em.newlabel('Lq'); Lb = em.newlabel('Lq'); Lc = em.newlabel('Lq')
            em(f's_cmp_eq_u32 {sOK}, 0'); em(f's_cbranch_scc1 {La}')
            em(f's_cmp_eq_u32 {sW}, 3'); em(f's_cbranch_scc0 {Lb}')
            em(f's_waitcnt vmcnt({base})'); em(f's_branch {Lc}')
            em.label(La); em(f's_waitcnt vmcnt({base + 3})'); em(f's_branch {Lc}')
            em.label(Lb); em(f's_waitcnt vmcnt({base + 1})')
            em.label(Lc)
            del em.vmq[:len(em.vmq) - base]
            self.gmark = set(id(p) for p in em.vmq)
            self.barrier()
            if l == 0:
                side.add(*[f'v_mov_b32 {v(MR+12+r)}, {v(CB+4)}' for r in range(4)])
                side.add(*self.colsum_items(self.pl['q'], v(K, 16), V, self.OWN, v(MR + 12, 4), True))
                side.add('s_nop 7', 's_nop 3')
                side.add(*self.cs_write_items([v(K)], 33 * 4096, V)); side.add(self.barrier)
        if l == 0: side.add(*self.cs_read_items(['q'], V))
        self.p1_bg(l, side)
        def fillq(ks):
            if ks == o.gstep: if_pending(attempt)
            return o.fill_p1
        self.pass1(self.pl['q'], Q, side, fillq)
        self.emit(self.corr_items('q', Q, False))
        side.flush()
        if self.lin:
            self.lin = False
            em(f'v_lshlrev_b32 {v(TMP)}, 8, {vHi}')
            for i in range(3): em(f'v_sub_u32 {vTr[i]}, {vTr[i]}, {v(TMP)}')
        self.barrier()
        self.ts('qpass')
        if o.gstep >= 32 or o.att2: if_pending(attempt)
        self.p1_after_q(l)
        self.emit(self.phi_items(Q, vRl, True, E))
        self.wsstore(v(Q, 4), vL16, sQst, 0); self.wsstore(v(Q + 4, 4), vL16, sQst, 0, off=1024)
        if o.rstpos == 1 and l == 0 and not o.rste: self.emit(self.reset_items(ACC + 8, o.rst1))
        self.kt_addr()
        if not o.ts2: self.ts('qst')
        def loop():
            L = em.newlabel('Lg'); D = em.newlabel('Lgd')
            em.force_wait(vm=len([p for p in em.vmq if id(p) not in self.gmark]))
            em.label(L)
            g_check()
            em(f's_cbranch_vccz {D}')
            em.cond_begin(); g_loads(); em.force_wait(vm=0); em.cond_end()
            self.spin_tail(L)
            em.label(D)
            g_finish()
            em.force_wait(vm=2 if o.rep8 else 1)
            em('s_mov_b64 exec, 1')
            em(f'v_mov_b32 {A0}, {sNonce}'); em(f's_add_u32 {sT2}, {sFlag}, {4*l*4096}')
            em(f'buffer_store_dword {A0}, off, {SWS}, {sT2}' + self.sc)
            em('s_mov_b64 exec, -1')
            em(f's_mov_b32 {sOK}, 0')
        if_pending(loop)
        if not o.ts2: self.ts('kvpoll')
        def cs_reduce():
            L0 = em.newlabel('Lc'); L = em.newlabel('Lc'); D = em.newlabel('Lc')
            em(f's_cmp_ge_u32 {sCsp}, 3'); em(f's_cbranch_scc1 {L0}')
            em.cond_begin()
            em(f's_lshl_b32 {sR}, {sCsp}, 7'); em(f's_add_u32 {sR}, {sR}, {sJmsg}')
            em.label(L)
            self.wsload(v(G, 4), ga, sR, 2176); self.wsload(v(G + 4, 4), ga, sR, 2176 + 8 * MSG_B)
            em(f'v_xor_b32 {A0}, {v(G)}, {tg}')
            for r in range(1, 8): em(f'v_bitop3_b32 {A0}, {v(G+r)}, {tg}, {A0} bitop3:0xbe')
            em(f'v_and_b32 {A0}, 0xff, {A0}'); em(f'v_cmp_ne_u32 vcc, 0, {A0}')
            em(f's_cbranch_vccz {D}')
            self.spin_tail(L)
            em.label(D)
            for r in (0, 2): em(f'v_pk_add_f32 {v(G+r,2)}, {v(G+r,2)}, {v(G+4+r,2)}')
            for r in range(4): em(f'v_add_f32_dpp {v(G+r)}, {v(G+r)}, {v(G+r)} row_ror:8 {DPPM}')
            em(f'v_permlane16_swap_b32 {v(G)}, {v(G+1)}'); em(f'v_permlane16_swap_b32 {v(G+2)}, {v(G+3)}')
            em(f'v_add_f32 {v(G)}, {v(G)}, {v(G+1)}'); em(f'v_add_f32 {v(G+2)}, {v(G+2)}, {v(G+3)}')
            em(f'v_permlane32_swap_b32 {v(G)}, {v(G+2)}'); em(f'v_add_f32 {v(G)}, {v(G)}, {v(G+2)}')
            em(f'v_cvt_pk_bf16_f32 {v(G+1)}, {v(G)}, {v(G)}'); em(f'v_lshlrev_b32 {v(G+1)}, 16, {v(G+1)}'); em(f'v_sub_f32 {v(G+1)}, {v(G)}, {v(G+1)}')
            em(f'v_cvt_pk_bf16_f32 {v(G)}, {v(G)}, {v(G+1)}')
            em(f'v_and_b32 {v(G+1)}, 7, {vLane}'); em(f'v_lshlrev_b32 {v(G+1)}, 4, {v(G+1)}'); em(f'v_lshrrev_b32 {v(G+2)}, 4, {vLane}'); em(f'v_lshl_add_u32 {v(G+1)}, {v(G+2)}, 2, {v(G+1)}')
            em(f's_mul_i32 {sT2}, {sJ}, 384'); em(f's_lshl_b32 {sR}, {sCsp}, 7'); em(f's_add_u32 {sT2}, {sT2}, {sR}')
            em('s_mov_b32 exec_lo, 0x00ff00ff'); em('s_mov_b32 exec_hi, 0x00ff00ff')
            self.wsstore(v(G), v(G + 1), sT2, WS_CS, width=1, sc=' sc1', tag='kt')
            em('s_mov_b64 exec, -1')
            em.cond_end()
            em.label(L0)
        def touches():
            t = v(ACC + 8)
            self.retouch(0, t, v(ACC + 9))
            em('s_mov_b32 exec_hi, 0xffff')
            em(f'buffer_load_dword {v(ACC+10)}, {t}, {SWS}, {sHks} offen sc1', tag='touch')
            em(f'v_lshlrev_b32 {t}, 17, {vLane}')
            em(f's_lshl_b32 {sT2}, {sJ}, 2'); em(f's_add_u32 {sT2}, {sT2}, {sW}'); em(f's_lshl_b32 {sT2}, {sT2}, 7'); em(f's_add_u32 {sT2}, {sT2}, {sG8K}')
            em('s_mov_b64 exec, 7')
            em(f'buffer_load_dword {v(ACC+11)}, {t}, {SWS}, {sT2} offen sc1', tag='touch')
            em('s_mov_b64 exec, -1')
        def streams():
            self.p1_gap(l)
            n = o.share if l == 0 else o.share2
            for m in range(n): self.w1dma(0, m, 'w1a'); self.w1dma(1, m, 'w1a')
            self.w1_todo = list(range(n, 4)) + [m for m in self.w1_todo if m >= 4]
            if l == 0 and o.rste and o.tpos == 1: touches()
        if o.xorder & (1 << l):
            self.p2_hook = streams
            def mid():
                if l == 0: cs_reduce()
                if l == 0 and o.rste and o.tpos == 0: touches()
            return self.group_sync(4 * l + 0, mid=mid, bar=False, skipif=sOK, tags=None)
        self.p2_hook = None
        def mid():
            if l == 0: self.touch_at('g', None, v(ACC + 8))
            if l == 0: cs_reduce()
            if l == 0 and o.rste: touches()
            def l2w2():
                em(f'v_lshlrev_b32 {v(G)}, 7, {vLane}'); em(f's_lshr_b32 {sT2}, s2, 3'); em(f's_mul_i32 {sT2}, {sT2}, {344*128}')
                for k in range(6):
                    if k == 5: em('s_mov_b64 exec, 0xffffff')
                    em(f's_add_u32 {sT}, {sT2}, {k*8192}')
                    em(f'buffer_load_dword {v(G+1+k)}, {v(G)}, {SW2}, {sT} offen', tag='l2')
                    if o.thr2 and k >= o.thr2 - 1: em.force_wait(vm=o.thr2 - 1)
                em('s_mov_b64 exec, -1')
                em.vmq = [p for p in em.vmq if p.tag != 'l2']
            if l == 0 and o.tw2 == 1: self.only_wave(3, l2w2)
            self.p1_gap(l)
            if o.share >= 0:
                n = o.share if l == 0 else o.share2
                assert not (o.w1r and l == 0 and (n or o.w1_gap))
                for m in range(n): self.w1dma(0, m, 'w1a'); self.w1dma(1, m, 'w1a')
                self.w1_todo = list(range(n, 4)) + [m for m in self.w1_todo if m >= 4]
            else: self.only_wave(3, lambda: self.p1_loader(l, 3))
            if l == 0 and o.tw2 == 2: self.only_wave(3, l2w2)
        self.group_sync(4 * l + 0, mid=mid, bar=False, skipif=sOK, tags=None)

    def exchange_c(self, l, mw, mr, gz, t16, tg, uz, x1, x2):
        em = self.em; o = self.o
        K, V, Q = ACC, ACC + 16, ACC + 32
        M = MR; G = MR; Z = K + 8; A0 = x1; A1 = x2; sOK = 's48'; IMG = 32 * 4096
        ga, uk, im = mw, mr, v(TMP + 3)
        moff = l * 256 * MSG_B; koff = l * 16 * KT_B
        def msg_out():
            for i in range(4): em(f'ds_read_b128 {v(M+4*i,4)}, {mr} offset:{i*4096}')
            em(f'v_lshrrev_b32 {A0}, 9, {t16}'); em(f'v_and_b32 {A1}, 511, {t16}'); em(f'v_lshl_add_u32 {A0}, {A0}, 10, {A1}')
            em(f's_cmp_eq_u32 {sW}, 2'); em(f's_cselect_b32 {sT2}, 512, 0'); em(f's_sub_u32 {sT2}, {IMG}, {sT2}'); em(f'v_add_u32 {A0}, {sT2}, {A0}')
            for r in (0, 2): em(f'v_pk_add_f32 {v(M+r,2)}, {v(M+r,2)}, {v(M+4+r,2)}')
            for r in (0, 2): em(f'v_pk_add_f32 {v(M+8+r,2)}, {v(M+8+r,2)}, {v(M+12+r,2)}')
            for r in (0, 2): em(f'v_pk_add_f32 {v(M+r,2)}, {v(M+r,2)}, {v(M+8+r,2)}')
            em(f'v_cmp_gt_u32 vcc, 2176, {t16}')
            for r in range(4): em(f'v_and_or_b32 {v(M+r)}, {v(M+r)}, {sMaskInv}, {tg}')
            em(f's_mul_i32 {sT2}, {sG}, {MSG_B}'); em(f's_add_u32 {sT2}, {sT2}, {sJmsg}')
            em('s_mov_b64 exec, vcc')
            self.wsstore(v(M, 4), t16, sT2, moff, sc=' sc1', tag='msg')
            em(f'ds_write_b128 {A0}, {v(M,4)}')
            em('s_mov_b64 exec, -1')
            em.wait_lg(0)
        self.only_wave(3, msg_out, invert=True)
        em(f'v_lshrrev_b32 {A0}, 4, {vLane}'); em(f'v_mul_u32_u24 {A0}, {MSG_B}, {A0}'); em(f'v_and_b32 {A1}, 15, {vLane}')
        em(f'v_lshl_add_u32 {ga}, {A1}, 4, {A0}'); em(f's_lshl_b32 {sT2}, {sW}, 9'); em(f'v_add_u32 {ga}, {sT2}, {ga}')
        em(f'v_lshlrev_b32 {uk}, 3, {A1}'); em(f'v_lshl_add_u32 {uk}, {vHi}, 2, {uk}')
        em(f'v_lshlrev_b32 {im}, 4, {A1}'); em(f's_add_u32 {sT2}, {sWl}, {IMG}'); em(f'v_add_u32 {im}, {sT2}, {im}')
        def w3(f): self.only_wave(3, f)
        def drop(): em.vmq = [p for p in em.vmq if p.tag != 'g']
        def g_loads():
            for s_ in range(4):
                em(f's_lshr_b32 {sR}, {sG}, 2'); em(f's_add_u32 {sR}, {sR}, {s_}'); em(f's_and_b32 {sR}, {sR}, 3'); em(f's_mul_i32 {sR}, {sR}, {4*MSG_B}')
                em(f's_add_u32 {sR}, {sR}, {sJmsg}'); em(f's_add_u32 {sR}, {sR}, {moff}')
                if s_ == 0: em(f's_mov_b64 exec, {sX0}')
                for k in range(2): em(f'buffer_load_dwordx4 {v(G+16*k+4*s_,4)}, {ga}, {SWS}, {sR} offen offset:{k*256} sc1', tag='g')
                if s_ == 0: em('s_mov_b64 exec, -1')
            def z():
                for s_ in range(2):
                    em(f's_lshr_b32 {sR}, {sG}, 3'); em(f's_xor_b32 {sR}, {sR}, {s_}'); em(f's_mul_i32 {sR}, {sR}, {8*MSG_B}'); em(f's_add_u32 {sR}, {sR}, {sJmsg}')
                    if s_ == 0: em(f's_mov_b64 exec, {sX1}')
                    self.wsload(v(Z + 4 * s_, 4), gz, sR, moff + 2048, tag='g')
                    if s_ == 0: em('s_mov_b64 exec, -1')
                drop()
            drop(); w3(z)
            self.gmark = set(id(p) for p in em.vmq)
        def own_fill():
            em(f's_not_b64 exec, {sX0}')
            for k in range(2): em(f'ds_read_b128 {v(G+16*k,4)}, {im} offset:{k*256}')
            em('s_mov_b64 exec, -1')
            def z():
                em(f'v_and_b32 {A0}, 7, {vLane}'); em(f'v_lshlrev_b32 {A0}, 4, {A0}'); em(f'v_add_u32 {A0}, {IMG + 3584:#x}, {A0}')
                em(f's_not_b64 exec, {sX1}')
                em(f'ds_read_b128 {v(Z,4)}, {A0}')
                em('s_mov_b64 exec, -1')
                em.wait_lg(0)
            w3(z)
        def g_check():
            em(f'v_xor_b32 {A0}, {v(G)}, {tg}'); em(f'v_xor_b32 {A1}, {v(G+3)}, {tg}')
            for q in range(1, 8):
                em(f'v_bitop3_b32 {A0}, {v(G+4*q)}, {tg}, {A0} bitop3:0xbe'); em(f'v_bitop3_b32 {A1}, {v(G+4*q+3)}, {tg}, {A1} bitop3:0xbe')
            def z():
                for r in (0, 4): em(f'v_bitop3_b32 {A0}, {v(Z+r)}, {tg}, {A0} bitop3:0xbe'); em(f'v_bitop3_b32 {A1}, {v(Z+r+3)}, {tg}, {A1} bitop3:0xbe')
            w3(z)
            em(f'v_or_b32 {A0}, {A0}, {A1}'); em(f'v_and_b32 {A0}, 0xff, {A0}'); em(f'v_cmp_ne_u32 vcc, 0, {A0}')
        def rows(B, scale):
            em(f'v_permlane16_swap_b32 {v(B)}, {v(B+1)}'); em(f'v_permlane16_swap_b32 {v(B+2)}, {v(B+3)}')
            em(f'v_add_f32 {v(B)}, {v(B)}, {v(B+1)}'); em(f'v_add_f32 {v(B+2)}, {v(B+2)}, {v(B+3)}')
            em(f'v_permlane32_swap_b32 {v(B)}, {v(B+2)}'); em(f'v_add_f32 {v(B)}, {v(B)}, {v(B+2)}')
            if scale: em(f'v_mul_f32 {v(B)}, {sLn2}, {v(B)}')
            em(f'v_mov_b32 {v(B+1)}, {v(B)}')
            em(f'v_permlane16_swap_b32 {v(B)}, {v(B+1)}'); em(f'v_cvt_pk_bf16_f32 {v(B)}, {v(B)}, {v(B+1)}')
        def g_finish():
            for k in range(2):
                B = G + 16 * k
                for r in (0, 2): em(f'v_pk_add_f32 {v(B+r,2)}, {v(B+r,2)}, {v(B+4+r,2)}')
                for r in (0, 2): em(f'v_pk_add_f32 {v(B+8+r,2)}, {v(B+8+r,2)}, {v(B+12+r,2)}')
            for k in range(2):
                B = G + 16 * k
                for r in (0, 2): em(f'v_pk_add_f32 {v(B+r,2)}, {v(B+r,2)}, {v(B+8+r,2)}')
            rows(G, True); rows(G + 16, True)
            em('s_mov_b32 exec_lo, 0xffff'); em('s_mov_b32 exec_hi, 0xffff')
            for k in range(2): self.wsstore(v(G + 16 * k), uk, sKTo, koff, width=1, off=k * 128, tag='kt')
            em('s_mov_b64 exec, -1')
            def z():
                for r in (0, 2): em(f'v_pk_add_f32 {v(Z+r,2)}, {v(Z+r,2)}, {v(Z+4+r,2)}')
                for r in range(4): em(f'v_add_f32_dpp {v(Z+r)}, {v(Z+r)}, {v(Z+r)} row_ror:8 {DPPM}')
                rows(Z, False)
                em('s_mov_b32 exec_lo, 0xff'); em('s_mov_b32 exec_hi, 0xff')
                self.wsstore(v(Z), uz, sLine, koff + 512, width=1, tag='kt')
                em('s_mov_b64 exec, -1')
            w3(z)
            em(f's_mov_b32 {sOK}, 1')
        def if_pending(f):
            L = em.newlabel('Lp')
            em(f's_cmp_lg_u32 {sOK}, 0'); em(f's_cbranch_scc1 {L}')
            em.cond_begin(); f(); drop(); em.cond_end()
            em.label(L)
            self.gmark = set(id(p) for p in em.vmq)
        def attempt():
            em.force_wait(vm=len([p for p in em.vmq if id(p) not in self.gmark]), lg=0)
            g_check()
            L = em.newlabel('La'); E2 = em.newlabel('Lb')
            em(f's_cbranch_vccnz {L}')
            em.cond_begin(); g_finish(); em.cond_end()
            em(f's_branch {E2}')
            em.label(L)
            g_loads()
            em.label(E2)
        def loop():
            L = em.newlabel('Lg'); D = em.newlabel('Lgd')
            em.force_wait(vm=len([p for p in em.vmq if id(p) not in self.gmark]))
            em.label(L)
            g_check()
            em(f's_cbranch_vccz {D}')
            em.cond_begin(); g_loads(); em.force_wait(vm=0); em.cond_end()
            self.spin_tail(L)
            em.label(D)
            g_finish()
        def kt_resets():
            em(f'v_mov_b32 {A0}, -1')
            em('s_mov_b32 exec_lo, 0xffff'); em('s_mov_b32 exec_hi, 0xffff')
            for ll in range(2):
                for k in range(2): self.wsstore(A0, uk, sKTo, ll * 16 * KT_B, width=1, off=k * 128, tag='rst')
            em('s_mov_b64 exec, -1')
            def z():
                em('s_mov_b32 exec_lo, 0xff'); em('s_mov_b32 exec_hi, 0xff')
                for ll in range(2): self.wsstore(A0, uz, sLine, ll * 16 * KT_B + 512, width=1, tag='rst')
                em('s_mov_b64 exec, -1')
            w3(z)
        em(f's_mov_b32 {sOK}, 0')
        if l == 0: kt_resets()
        if o.gfirst < 0: g_loads()
        self.ts('msg')
        side = Side(em)
        if l == 0: side.add(*self.cs_read_items(['q'], V))
        side.add(self.barrier, own_fill)
        self.p1_bg(l, side)
        def fillq(ks):
            if ks == o.gfirst: g_loads()
            if ks == o.gstep: if_pending(attempt)
            return o.fill_p1
        self.pass1(self.pl['q'], Q, side, fillq)
        self.emit(self.corr_items('q', Q, False))
        side.flush()
        if self.lin:
            self.lin = False
            em(f'v_lshlrev_b32 {v(TMP)}, 8, {vHi}')
            for i in range(3): em(f'v_sub_u32 {vTr[i]}, {vTr[i]}, {v(TMP)}')
        self.barrier()
        self.ts('qpass')
        if o.gstep >= 32 or o.att2: if_pending(attempt)
        self.p1_after_q(l)
        self.emit(self.phi_items(Q, vRl, True, BB))
        self.wsstore(v(Q, 4), vL16, sQst, 0); self.wsstore(v(Q + 4, 4), vL16, sQst, 0, off=1024)
        if l == 0: self.emit(self.reset_items(V, o.rst1))
        self.kt_addr()
        if not o.ts2: self.ts('qst')
        def cs_reduce():
            C = BB
            L0 = em.newlabel('Lc'); L = em.newlabel('Lc'); D = em.newlabel('Lc')
            em(f's_cmp_ge_u32 {sCsp}, 3'); em(f's_cbranch_scc1 {L0}')
            em.cond_begin()
            em(f's_lshl_b32 {sR}, {sCsp}, 7'); em(f's_add_u32 {sR}, {sR}, {sJmsg}')
            em.label(L)
            self.wsload(v(C, 4), gz, sR, 2176); self.wsload(v(C + 4, 4), gz, sR, 2176 + 8 * MSG_B)
            em(f'v_xor_b32 {A0}, {v(C)}, {tg}')
            for r in range(1, 8): em(f'v_bitop3_b32 {A0}, {v(C+r)}, {tg}, {A0} bitop3:0xbe')
            em(f'v_and_b32 {A0}, 0xff, {A0}'); em(f'v_cmp_ne_u32 vcc, 0, {A0}')
            em(f's_cbranch_vccz {D}')
            self.spin_tail(L)
            em.label(D)
            for r in (0, 2): em(f'v_pk_add_f32 {v(C+r,2)}, {v(C+r,2)}, {v(C+4+r,2)}')
            for r in range(4): em(f'v_add_f32_dpp {v(C+r)}, {v(C+r)}, {v(C+r)} row_ror:8 {DPPM}')
            em(f'v_permlane16_swap_b32 {v(C)}, {v(C+1)}'); em(f'v_permlane16_swap_b32 {v(C+2)}, {v(C+3)}')
            em(f'v_add_f32 {v(C)}, {v(C)}, {v(C+1)}'); em(f'v_add_f32 {v(C+2)}, {v(C+2)}, {v(C+3)}')
            em(f'v_permlane32_swap_b32 {v(C)}, {v(C+2)}'); em(f'v_add_f32 {v(C)}, {v(C)}, {v(C+2)}')
            em(f'v_cvt_pk_bf16_f32 {v(C+1)}, {v(C)}, {v(C)}'); em(f'v_lshlrev_b32 {v(C+1)}, 16, {v(C+1)}'); em(f'v_sub_f32 {v(C+1)}, {v(C)}, {v(C+1)}')
            em(f'v_cvt_pk_bf16_f32 {v(C)}, {v(C)}, {v(C+1)}')
            em(f'v_and_b32 {v(C+1)}, 7, {vLane}'); em(f'v_lshlrev_b32 {v(C+1)}, 4, {v(C+1)}'); em(f'v_lshrrev_b32 {v(C+2)}, 4, {vLane}'); em(f'v_lshl_add_u32 {v(C+1)}, {v(C+2)}, 2, {v(C+1)}')
            em(f's_mul_i32 {sT2}, {sJ}, 384'); em(f's_lshl_b32 {sR}, {sCsp}, 7'); em(f's_add_u32 {sT2}, {sT2}, {sR}')
            em('s_mov_b32 exec_lo, 0x00ff00ff'); em('s_mov_b32 exec_hi, 0x00ff00ff')
            self.wsstore(v(C), v(C + 1), sT2, WS_CS, width=1, sc=' sc1', tag='kt')
            em('s_mov_b64 exec, -1')
            em.cond_end()
            em.label(L0)
        def streams():
            self.p1_gap(l)
            n = o.share if l == 0 else o.share2
            for m in range(n): self.w1dma(0, m, 'w1a'); self.w1dma(1, m, 'w1a')
            self.w1_todo = list(range(n, 4)) + [m for m in self.w1_todo if m >= 4]
        def mid():
            self.gmark = set()
            if_pending(attempt)
            if not o.ts2: self.ts('kvpoll')
            if l == 0: cs_reduce()
            if o.xorder == 0: streams()
        self.group_sync(4 * l + 0, mid=mid, bar=False, tags=None, modeB=True)
        def after_q_loads():
            if_pending(loop)
            self.ts('gdone')
            if o.xorder == 1: streams()
        self.p2_hook = after_q_loads

    def w1dma(self, p, m, tag):
        if 'w1' in self.o.abl and self.S: return
        if self.o.w1r:
            if p != 1: self.em(f's_and_b32 {sR}, {sXm[m]}, 0x7000'); self.em(f's_add_u32 {sR}, {sR}, {sW1c2 if p == 2 else sW1c0}')
            return self.dma(SWS, vL16, sR, 65536 if p == 1 else 0, self.w1pl[p][m], tag)
        if p != 1: self.rot(m, 64 * 2752, sW1c2 if p == 2 else sW1c0)
        if p == 1: self.em(f's_add_u32 {sR}, {sR}, {sW1d}')
        self.dma(SW1, vD1, sR, 0, self.w1pl[p][m], tag)

    def p1_bg(self, l, side):
        em = self.em; o = self.o
        self.w1pl = [[16, 17, 18, 19, 24, 25, 26, 27], [20, 21, 22, 23, 28, 29, 30, 31], list(range(32, 40))]
        pad = [lambda: None] * o.bgpad
        if l == 0:
            def res():
                t = v(ACC + 22)
                em(f'v_lshrrev_b32 {t}, 2, {vLane}'); em(f's_lshl_b32 {sT2}, {sW}, 4'); em(f'v_add_u32 {t}, {sT2}, {t}'); em(f'v_lshlrev_b32 {t}, 10, {t}')
                em(f'v_and_b32 {v(ACC+23)}, 3, {vLane}'); em(f'v_lshl_add_u32 {t}, {v(ACC+23)}, 4, {t}')
                em(f'buffer_load_dwordx4 {a(RES,4)}, {t}, {SX}, {sOutRow} offen', tag='res')
                em(f'buffer_load_dwordx4 {a(RES+4,4)}, {t}, {SX}, {sOutRow} offen offset:64', tag='res')
            if o.plate:
                V_ = ACC + 16; aW = a(80, 16)
                side.add(*[f'v_mov_b32 {v(MR+12+r)}, {v(CB+4)}' for r in range(4)])
                side.add(lambda: em.wait_vm_tag('w1p'))
                side.add(*self.tr(V_, 34, 0, self.OWN)); side.add(*self.tr(V_ + 4, 35, 0, self.OWN))
                side.add(f'{MF} {aW}, {v(MR+12,4)}, {v(V_,4)}, 0', f'{MF} {aW}, {v(MR+12,4)}, {v(V_+4,4)}, {aW}')
            side.add(res)
            if o.plate: side.add(lambda: self.w1s(ACC + 16))
            self.touch_at('q', side, v(ACC + 22))
            side.add(self.late_setup)
            for i in range(5): side.add(lambda i=i: self.stage_dma(SWO, i, self.stq[2 * i], self.stq[2 * i + 1], 'wo'), *pad)
            if o.rstpos == 0: side.add(*self.reset_items(ACC + 8, o.rst1))
            self.w1_todo = [4, 5, 6, 7]
        else:
            m0 = 4 + self.w1_pre; m1 = max(m0, min(8, 4 + o.w1_early))
            for m in range(m0, m1): side.add(lambda m=m: (self.w1dma(0, m, 'w1a'), self.w1dma(1, m, 'w1a')), *pad)
            self.w1_todo = list(range(m1, 8))
            if o.t4: side.q = self.img_m3(S_ADDR, v(TMP), v(TMP + 1)) + self.img_io('r', v(TMP), 64) + side.q
            for m in range(o.cq): side.add(lambda m=m: self.w1dma(2, m, 'w1a'), *pad)

    def late_setup(self):
        em = self.em
        em(f's_sub_u32 {sW1d}, {sW1c2}, {sW1c0}')
        if self.o.w1r:
            em(f's_mul_i32 {sW1c0}, {sJ}, 98304'); em(f's_add_u32 {sW1c0}, {sW1c0}, {sWl}'); em(f's_add_u32 {sW1c0}, {sW1c0}, {WS_W1R}')
        em(f's_add_u32 {sW1c2}, {sW1c0}, {32768 if self.o.w1r else 64}')
        if self.o.zpl: em(f's_cmp_lt_u32 {sJ}, 11'); em(f's_cselect_b32 {sW1c2}, {sW1c2}, 0x10000000')
        em(f's_lshl_b32 {sT2}, {sW}, 13'); em(f's_add_u32 {sT2}, {sT2}, {S_ADDR}'); em(f'v_add_u32 {vRW}, {sT2}, {vL16}')
        em(f's_lshr_b32 {sT}, {sW}, 1'); em(f's_lshl_b32 {sT2}, {sT}, 12'); em(f's_and_b32 {sR}, {sW}, 1'); em(f's_lshl_b32 {sR}, {sR}, 8')
        em(f's_add_u32 {sT2}, {sT2}, {sR}'); em(f's_add_u32 {sT2}, {sT2}, {S_ADDR}')
        em(f'v_lshl_add_u32 {vRR}, {vHi}, 10, {vP}'); em(f'v_add_u32 {vRR}, {sT2}, {vRR}')
        for m in range(8):
            em(f's_add_u32 {sXm[m]}, {sRot}, {m}'); em(f's_and_b32 {sXm[m]}, {sXm[m]}, 7'); em(f's_and_b32 {sR}, {sXm[m]}, 1')
            em(f's_lshl_b32 {sXm[m]}, {sXm[m]}, 1'); em(f's_add_u32 {sXm[m]}, {sXm[m]}, {sR}'); em(f's_lshl_b32 {sXm[m]}, {sXm[m]}, 11'); em(f's_xor_b32 {sXl[m]}, {sXm[m]}, 2048')
        for k in range(4):
            w0, w1_ = [sum(m << (5 * i) for i, m in enumerate(ORD4[c][6 * k:6 * k + 6])) for c in range(2)]
            em(f's_mov_b32 {sTab[k]}, {w0:#x}'); em(f's_cmp_eq_u32 {sT}, 0'); em(f's_cselect_b32 {sTab[k]}, {sTab[k]}, {w1_:#x}')

    def p1_after_q(self, l):
        if l == 0:
            for i in range(5, 8): self.stage_dma(SWO, i, self.stq[2 * i], self.stq[2 * i + 1], 'wo')

    def p1_gap(self, l):
        em = self.em; o = self.o
        if l == 0:
            em.wait_vm_tag('wo')
            for i in range(8): self.emit(self.stage_read_items(WOA, i, self.stq[2 * i], self.stq[2 * i + 1]))
            em.wait_lg(0)
            self.res_first()
            self.w2next = 0
            self.b1 = self.w2_batch(list(range(32, 40))[:2 * o.w2b1], 'w2a')
            for m in range(4, 4 + o.w1_gap): self.w1dma(0, m, 'w1a'); self.w1dma(1, m, 'w1a')
            self.w1_todo = list(range(4 + o.w1_gap, 8))
            if o.b1gap: self.emit(self.b1[0])

    def p1_loader(self, l, w):
        em = self.em; o = self.o
        vo = v(TMP)
        em(f'v_subrev_u32 {vo}, {w*16*2752}, {vD1}')
        for m in range(o.w1_solo):
            self.rot(m, 64 * 2752, sW1c0)
            for s in range(4):
                if s == 0: em(f's_add_u32 {sFx}, {sR}, {sW1d}')
                for p in range(2): self.dma(SW1, vo, sFx if p else sR, s * 16 * 2752, self.w1pl[p][m], 'solo', slot=s)
                if o.thr: em.force_wait(vm=o.thr)
        self.w1_todo = list(range(o.w1_solo, 4)) + [m for m in self.w1_todo if m >= 4]

    def w2_batch(self, quads, tag):
        steps = list(range(self.w2next, min(22, self.w2next + len(quads) // 2)))
        self.w2next += len(steps)
        issue = [lambda k=k, m=m: self.stage_dma(SW2, m, quads[2 * k], quads[2 * k + 1], tag) for k, m in enumerate(steps)]
        read = [lambda: self.em.wait_vm_tag(tag)] if steps else []
        for k, m in enumerate(steps): read += self.stage_read_items(W2A, m, quads[2 * k], quads[2 * k + 1])
        return issue, read

    def res_first(self):
        em = self.em
        t0, t1, t2 = v(TMP), v(TMP + 1), v(TMP + 2)
        em(f's_add_u32 {sT2}, {sWl}, {self.S}')
        em(f'v_add_u32 {t0}, {sT2}, {vL16}')
        em(f'v_and_b32 {t1}, 15, {vLane}'); em(f'v_lshlrev_b32 {t1}, 6, {t1}'); em(f'v_lshl_add_u32 {t1}, {vHi}, 5, {t1}')
        em(f'v_bfe_u32 {t2}, {vLane}, 4, 1'); em(f'v_lshl_add_u32 {t1}, {t2}, 3, {t1}'); em(f'v_add_u32 {t1}, {sT2}, {t1}')
        for h in range(2): em(f'ds_write_b128 {t0}, {a(RES+4*h,4)} offset:{h*4096}')
        em.wait_lg(0)
        for h in range(2):
            em(f'ds_read_b64 {a(RES+4*h,2)}, {t1} offset:{h*4096}'); em(f'ds_read_b64 {a(RES+4*h+2,2)}, {t1} offset:{h*4096+16}')
        em.wait_lg(0)
    def res_last_items(self, lds):
        t0, t1, t2 = v(TMP), v(TMP + 1), v(TMP + 2)
        it = [f'v_and_b32 {t0}, 15, {vLane}', f'v_mul_u32_u24 {t0}, 144, {t0}', f'v_lshl_add_u32 {t0}, {vHi}, 5, {t0}',
              f'v_bfe_u32 {t1}, {vLane}, 4, 1', f'v_lshl_add_u32 {t0}, {t1}, 3, {t0}',
              f's_mul_i32 {sT2}, {sW}, {16*144}', f's_add_u32 {sT2}, {sT2}, {lds}', f'v_add_u32 {t0}, {sT2}, {t0}',
              f'v_lshrrev_b32 {t1}, 3, {vLane}', f'v_mul_u32_u24 {t1}, 144, {t1}', f'v_and_b32 {t2}, 7, {vLane}', f'v_lshl_add_u32 {t1}, {t2}, 4, {t1}',
              f's_mul_i32 {sT2}, {sW}, {8*144}', f's_add_u32 {sT2}, {sT2}, {lds}', f'v_add_u32 {t1}, {sT2}, {t1}']
        for c in range(2):
            it += [f'ds_write_b64 {t0}, {a(RES+4*c,2)} offset:{c*64}', f'ds_write_b64 {t0}, {a(RES+4*c+2,2)} offset:{c*64+16}']
        it2 = [f'ds_read_b128 {a(RES+4*h,4)}, {t1} offset:{h*32*144}' for h in range(2)]
        return it, it2
    def img_m3(self, lds, t0, t1):
        return [f'v_and_b32 {t0}, 15, {vLane}', f'v_mul_u32_u24 {t0}, 144, {t0}', f'v_lshl_add_u32 {t0}, {vHi}, 5, {t0}',
                f'v_bfe_u32 {t1}, {vLane}, 4, 1', f'v_lshl_add_u32 {t0}, {t1}, 3, {t0}',
                f's_mul_i32 {sT2}, {sW}, {16*144}', f's_add_u32 {sT2}, {sT2}, {lds}', f'v_add_u32 {t0}, {sT2}, {t0}']
    def img_m1(self, lds, t0, t1):
        return [f'v_and_b32 {t0}, 7, {vLane}', f'v_mul_u32_u24 {t0}, 144, {t0}', f'v_lshrrev_b32 {t1}, 4, {vLane}', f'v_lshl_add_u32 {t0}, {t1}, 5, {t0}',
                f'v_bfe_u32 {t1}, {vLane}, 3, 1', f'v_lshl_add_u32 {t0}, {t1}, 3, {t0}',
                f's_mul_i32 {sT2}, {sW}, {8*144}', f's_add_u32 {sT2}, {sT2}, {lds}', f'v_add_u32 {t0}, {sT2}, {t0}']
    def img_io(self, op, t0, step):
        it = []
        for c in range(2):
            for k in range(2):
                r = a(RES + 4 * c + 2 * k, 2); off = c * step + k * 16
                it.append(f'ds_write_b64 {t0}, {r} offset:{off}' if op == 'w' else f'ds_read_b64 {r}, {t0} offset:{off}')
        return it
    def m1_addr_items(self):
        W_, R_, O_, SS, SM = (v(BB + i) for i in range(5)); t0, t1, t2 = v(BB + 5), v(BB + 6), v(BB + 7)
        return [f'v_lshlrev_b32 {t1}, 7, {vHi}', f'v_xor_b32 {W_}, {t1}, {vRW}',
                f'v_and_b32 {t0}, 7, {vLane}', f's_lshl_b32 {sT2}, {sW}, 3', f'v_add_u32 {t0}, {sT2}, {t0}',
                f'v_lshrrev_b32 {t1}, 3, {vLane}', f'v_lshlrev_b32 {t1}, 9, {t1}', f'v_lshl_add_u32 {SM}, {t0}, 4, {t1}',
                f's_and_b32 {sT2}, {sJ}, 1', f's_lshl_b32 {sT2}, {sT2}, 11', f'v_xor_b32 {O_}, {sT2}, {SM}',
                f'v_bfe_u32 {t1}, {vLane}, 3, 1', f'v_lshrrev_b32 {t2}, 4, {vLane}',
                f'v_lshlrev_b32 {SS}, 4, {t0}', f'v_lshl_add_u32 {SS}, {t2}, 10, {SS}',
                f'v_lshlrev_b32 {R_}, 3, {t1}', f'v_xor_b32 {R_}, {R_}, {t0}', f'v_lshlrev_b32 {R_}, 4, {R_}',
                f'v_lshl_add_u32 {R_}, {t1}, 9, {R_}', f'v_lshl_add_u32 {R_}, {t2}, 11, {R_}', f'v_add_u32 {R_}, {self.S:#x}, {R_}']
    def reduce_m1(self, half, acc0, acc1, R, U, rs, unpack):
        em = self.em
        it = [f'ds_write_b128 {v(BB)}, {v((acc0 if c < 4 else acc1) + 4 * (c & 3), 4)} offset:{c*1024}' for c in range(8)]
        it.append(self.barrier)
        for w in range(4):
            it.append(f'ds_read_b128 {v(R+8*w,4)}, {v(BB+1)} offset:{w*8192}'); it.append(f'ds_read_b128 {v(R+8*w+4,4)}, {v(BB+1)} offset:{w*8192+1024}')
        if unpack: it += self.unpack_items(half, U)
        add = lambda d, s_: [f'v_pk_add_f32 {v(d+r,2)}, {v(d+r,2)}, {v(s_+r,2)}' for r in range(0, 8, 2)]
        it += add(R, R + 8) + add(R + 16, R + 24) + add(R, R + 16)
        it += [f'v_pk_fma_f32 {v(R+r,2)}, {v(R+r,2)}, {v(rs,2)}, {v(U+r,2)} op_sel_hi:[1,0,1]' for r in range(0, 8, 2)]
        P = R + 8
        for r in range(4): it.append(f'v_cvt_pk_bf16_f32 {v(P+r)}, {v(R+2*r)}, {v(R+2*r+1)}')
        it += [f'v_accvgpr_write_b32 {a(RES+4*half)}, {v(P)}', f'v_and_b32 {v(P)}, -2, {v(P)}']
        def stx():
            em(f's_lshr_b32 {sT}, {sW}, 1'); em(f's_lshl_b32 {sT}, {sT}, 15'); em(f's_sub_u32 {sT}, {sXst}, {sT}')
            em(f's_and_b32 {sT2}, {sW}, 1'); em(f's_lshl_b32 {sT2}, {sT2}, 8'); em(f's_sub_u32 {sT}, {sT}, {sT2}')
            em(f's_add_u32 {sT}, {sT}, {half*32768}')
            em(f'buffer_store_dwordx4 {v(P,4)}, {v(BB+2)}, {SWS}, {sT} offen' + self.sc, tag='st')
        it.append(stx)
        S, Q, T = R + 16, R + 18, v(R + 20)
        it += [f'v_pk_add_f32 {v(S,2)}, {v(R,2)}, {v(R+2,2)}', f'v_pk_mul_f32 {v(Q,2)}, {v(R,2)}, {v(R,2)}', f'v_pk_fma_f32 {v(Q,2)}, {v(R+2,2)}, {v(R+2,2)}, {v(Q,2)}']
        for r in (4, 6): it += [f'v_pk_add_f32 {v(S,2)}, {v(S,2)}, {v(R+r,2)}', f'v_pk_fma_f32 {v(Q,2)}, {v(R+r,2)}, {v(R+r,2)}, {v(Q,2)}']
        it += [f'v_add_f32 {v(S)}, {v(S)}, {v(S+1)}', f'v_add_f32 {v(Q)}, {v(Q)}, {v(Q+1)}', f'v_accvgpr_write_b32 {a(RES+4*half+1)}, {v(P+1)}',
               f'v_add_f32_dpp {v(S)}, {v(S)}, {v(S)} row_ror:8 {DPPM}', f'v_add_f32_dpp {v(Q)}, {v(Q)}, {v(Q)} row_ror:8 {DPPM}',
               f'v_accvgpr_write_b32 {a(RES+4*half+2)}, {v(P+2)}', f'v_accvgpr_write_b32 {a(RES+4*half+3)}, {v(P+3)}',
               f'v_permlane16_swap_b32 {v(S)}, {v(Q)}', f'v_add_f32 {v(S)}, {v(S)}, {v(Q)}', f'v_mov_b32 {T}, {v(S)}', f'v_permlane32_swap_b32 {v(S)}, {T}',
               f'v_add_f32 {v(S)}, {v(S)}, {T}', f'v_or_b32 {v(S)}, 1, {v(S)}']
        def st2():
            em(f's_sub_u32 {sT}, {sStst}, {sStM}'); em(f's_add_u32 {sT}, {sT}, {sStR}'); em(f's_add_u32 {sT}, {sT}, {16*8192 + half*2048}')
            em('s_mov_b32 exec_lo, 0x00ff00ff'); em('s_mov_b32 exec_hi, 0')
            em(f'buffer_store_dword {v(S)}, {v(BB+3)}, {SWS}, {sT} offen' + self.sc, tag='st')
            em('s_mov_b64 exec, -1')
        it.append(st2)
        return it
    def kt_addr(self):
        em = self.em
        t0, t1, t2 = v(TMP + 1), v(TMP + 2), v(TMP + 3)
        em(f'v_and_b32 {t0}, 15, {vLane}'); em(f'v_lshlrev_b32 {t0}, 4, {t0}'); em(f'v_lshl_add_u32 {t0}, {vHi}, 8, {t0}')
        em(f'v_lshlrev_b32 {t1}, 4, {vHi}'); em(f'v_add_u32 {t1}, 512, {t1}'); em(f'v_and_b32 {t2}, 16, {vLane}'); em(f'v_cmp_ne_u32 vcc, 0, {t2}')
        em(f'v_cndmask_b32 {t0}, {t0}, {t1}, vcc'); em(f's_mul_i32 {sT2}, {sW}, 544'); em(f'v_add_u32 {v(vKT)}, {sT2}, {t0}')
        if self.o.rep8: em(f's_and_b32 {sT2}, s2, 7'); em(f's_mul_i32 {sT2}, {sT2}, {KC}'); em(f'v_add_u32 {v(vKT)}, {sT2}, {v(vKT)}')
    def final_addr_items(self):
        t0, t1, t2 = v(20), v(21), v(MR)
        it = [f's_lshl_b32 {sT2}, {sW}, 13', f's_add_u32 {sT2}, {sT2}, {self.S}', f'v_add_u32 {v(FW)}, {sT2}, {vL16}']
        it += [f'v_xor_b32 {v(FW+i)}, {64*i}, {v(FW)}' for i in range(1, 4)]
        it += [f'v_and_b32 {t1}, 7, {vLane}', f's_lshl_b32 {sT2}, {sW}, 3', f'v_add_u32 {t0}, {sT2}, {t1}',
               f'v_lshrrev_b32 {t2}, 3, {vLane}', f'v_lshlrev_b32 {v(FB)}, 2, {t2}', f'v_lshlrev_b32 {v(FS)}, 9, {t2}', f'v_lshl_add_u32 {v(FS)}, {t0}, 4, {v(FS)}',
               f's_lshl_b32 {sT2}, {sW}, 3', f'v_add_u32 {t0}, {sT2}, {t2}',
               f'v_lshlrev_b32 {v(FO)}, 10, {t0}', f'v_lshl_add_u32 {v(FO)}, {t1}, 4, {v(FO)}',
               f'v_and_b32 {t2}, 3, {vLane}', f'v_lshlrev_b32 {t2}, 2, {t2}', f'v_xor_b32 {t2}, {t2}, {t0}', f'v_lshlrev_b32 {t2}, 4, {t2}',
               f'v_lshl_add_u32 {v(FR)}, {t1}, 10, {t2}', f'v_add_u32 {v(FR)}, {self.S:#x}, {v(FR)}']
        return it

    def unpack_items(self, half, U):
        it = [f'v_accvgpr_read_b32 {v(U+2*r+1)}, {a(RES+4*half+r)}' for r in range(4)]
        for r in range(4):
            it += [f'v_lshlrev_b32 {v(U+2*r)}, 16, {v(U+2*r+1)}', f'v_and_b32 {v(U+2*r+1)}, 0xffff0000, {v(U+2*r+1)}']
        return it
    def reduce_items(self, half, acc0, acc1, R, U, rs, xoff, sti, final, unpack, after_store=()):
        em = self.em
        it = []
        for c in range(8):
            src = v((acc0 if c < 4 else acc1) + 4 * (c & 3), 4)
            it.append(f'ds_write_b128 {v(FW + (c & 3)) if final else vRW}, {src} offset:{c*1024}')
        it.append(self.barrier)
        o2 = 512 if final else 1024; rd = v(FR) if final else vRR
        for w in range(4):
            it.append(f'ds_read_b128 {v(R+8*w,4)}, {rd} offset:{w*8192}'); it.append(f'ds_read_b128 {v(R+8*w+4,4)}, {rd} offset:{w*8192+o2}')
        if unpack: it += self.unpack_items(half, U)
        add = lambda d, s_: [f'v_pk_add_f32 {v(d+r,2)}, {v(d+r,2)}, {v(s_+r,2)}' for r in range(0, 8, 2)]
        if rs is None: it += add(R, U)
        it += add(R, R + 8) + add(R + 16, R + 24) + add(R, R + 16)
        if rs is not None: it += [f'v_pk_fma_f32 {v(R+r,2)}, {v(R+r,2)}, {v(rs,2)}, {v(U+r,2)} op_sel_hi:[1,0,1]' for r in range(0, 8, 2)]
        P = R + 8
        for r in range(4): it.append(f'v_cvt_pk_bf16_f32 {v(P+r)}, {v(R+2*r)}, {v(R+2*r+1)}')
        if final:
            def st():
                em(f's_add_u32 {sT}, {sOutRow}, {half*32768}')
                em(f'buffer_store_dwordx4 {v(P,4)}, {v(FO)}, {SOUT}, {sT} offen' + self.o.outsc, tag='st')
            it.append(st)
            return it
        it += [f'v_accvgpr_write_b32 {a(RES+4*half)}, {v(P)}', f'v_and_b32 {v(P)}, -2, {v(P)}' if sti == 1 else f'v_or_b32 {v(P)}, 1, {v(P)}']
        def stx():
            em(f's_and_b32 {sT}, {sJ}, 1'); em(f's_xor_b32 {sT}, {sT}, {half}'); em(f's_lshl_b32 {sT}, {sT}, 11'); em(f's_add_u32 {sT}, {sT}, {sXst}')
            em(f'buffer_store_dwordx4 {v(P,4)}, {vP}, {SWS}, {sT} offen' + self.sc, tag='st')
        it.append(stx)
        it += list(after_store)
        S, Q = AUX, AUX + 2
        if half == 0:
            it += [f'v_pk_add_f32 {v(S,2)}, {v(R,2)}, {v(R+2,2)}', f'v_pk_mul_f32 {v(Q,2)}, {v(R,2)}, {v(R,2)}', f'v_pk_fma_f32 {v(Q,2)}, {v(R+2,2)}, {v(R+2,2)}, {v(Q,2)}']
        for r in ((4, 6) if half == 0 else (0, 2, 4, 6)):
            it += [f'v_pk_add_f32 {v(S,2)}, {v(S,2)}, {v(R+r,2)}', f'v_pk_fma_f32 {v(Q,2)}, {v(R+r,2)}, {v(R+r,2)}, {v(Q,2)}']
        it += [f'v_accvgpr_write_b32 {a(RES+4*half+r)}, {v(P+r)}' for r in range(1, 4)]
        if half == 1:
            T = v(S + 1)
            it += [f'v_add_f32 {v(S)}, {v(S)}, {v(S+1)}', f'v_add_f32 {v(Q)}, {v(Q)}, {v(Q+1)}', f'v_and_b32 {v(Q+1)}, 512, {vP}', f'v_add_u32 {v(Q+1)}, {v(Q+1)}, {vP}',
                   f'v_permlane16_swap_b32 {v(S)}, {v(Q)}', f'v_add_f32 {v(S)}, {v(S)}, {v(Q)}', f'v_mov_b32 {T}, {v(S)}', f'v_permlane32_swap_b32 {v(S)}, {T}', f'v_add_f32 {v(S)}, {v(S)}, {T}',
                   f'v_or_b32 {v(S)}, 1, {v(S)}']
            def st2():
                em('s_mov_b32 exec_hi, 0')
                self.wsstore(v(S), v(Q + 1), sStst, sti * 16 * 8192, width=1)
                em('s_mov_b64 exec, -1')
            it.append(st2)
        return it

    def two_halves(self, mfs, A, rs, xoff, sti, pre_wait=None, dmas=(), dmas2=()):
        em = self.em; o = self.o
        r0 = self.reduce_items(0, A[0][0], A[1][0], MR, BB, rs, xoff, sti, False, False)
        r1 = self.reduce_items(1, A[0][1], A[1][1], MR, BB + 8, rs, xoff, sti, False, False)
        W0, RD0, V0 = r0[:8], r0[9:17], r0[17:]
        W1, RD1, V1 = r1[:8], r1[9:17], r1[17:]
        fill = self.unpack_items(0, BB) + self.unpack_items(1, BB + 8)
        mfs = list(mfs)
        nA = len(mfs) - o.mfB
        wq = list(W0)
        for k in range(nA):
            mfs.pop(0)()
            if wq and (k * 8 >= (8 - len(wq)) * nA - 4): em(wq.pop(0))
            for t in fill[:3]: em(t)
            fill = fill[3:]
            if dmas and k % o.dgap == o.dgap - 1: dmas.pop(0)()
        self.emit(wq + fill + list(dmas))
        self.barrier()
        for k, t in enumerate(RD0):
            em(t)
            if k % 3 == 1 and mfs: mfs.pop(0)()
        self.emit(mfs)
        na = 12 if rs is None else 8
        self.emit(V0[:na]); V0 = V0[na:]
        if pre_wait: pre_wait()
        self.barrier()
        self.ts('h0')
        pf = [lambda: self.x_prefetch(xoff, 0, 0)] + [lambda i=i: self.xld(i) for i in range(o.pre)]
        n0 = o.pf0
        for k, t in enumerate(W1):
            em(t)
            self.emit(V0[:4]); V0 = V0[4:]
            if dmas2 and k % 3 == 0: dmas2.pop(0)()
            if k >= 8 - n0: self.emit(pf[:2 if len(pf) == o.pre + 1 else 1]); pf = pf[2 if len(pf) == o.pre + 1 else 1:]
        self.emit(V0)
        self.barrier()
        self.emit(RD1)
        self.emit(pf[:o.pf1 + (1 if len(pf) == o.pre + 1 else 0)]); pf = pf[o.pf1 + (1 if len(pf) == o.pre + 1 else 0):]
        ks = [k for k, t in enumerate(V1) if callable(t)][0]
        self.emit(V1[:ks + 1]); V1 = V1[ks + 1:]
        while pf or V1:
            self.emit(V1[:3]); V1 = V1[3:]
            self.emit(pf[:1]); pf = pf[1:]

    def p2(self, l):
        em = self.em; o = self.o
        KT, QF = AF, AF + 32
        A = [[ACC, ACC + 32], [ACC + 16, 232]]
        DB = [MR, MR + 16, BB]
        def rot2(i, stride, base):
            if not o.rot2:
                em(f's_add_u32 {sR}, {base}, {i * stride}' if base else f's_movk_i32 {sR}, {i * stride}'); return
            em(f's_add_u32 {sR}, {sRot2}, {i}'); em(f's_and_b32 {sR}, {sR}, 7'); em(f's_mul_i32 {sR}, {sR}, {stride}')
            if base: em(f's_add_u32 {sR}, {sR}, {base}')
        KB = lambda i: (ACC + 32 + 4 * i) if i < 4 else (232 + 4 * (i - 4))
        KA = lambda i: KT + 4 * i
        def ldk(i, B=KA):
            rot2(i, 2176, sRed if o.xc else None)
            self.wsload(v(B(i), 4), v(vKT), sR, l * 16 * KT_B if o.xc else (WS_KT8 + l * 8 * KC if o.rep8 else WS_KT + l * 0x8000), tag='K')
        def ldq(n): rot2(n % 8, 4096, sQR); self.wsload(v(QF + 4 * n, 4), vL16, sR, (n // 8) * 32768, tag='A')
        ck = v(TMP + 2)
        def kchk(B):
            em(f'v_max_u32 {ck}, {v(B(0))}, {v(B(0)+1)}')
            for i in range(1, 16): em(f'v_max3_u32 {ck}, {v(B(i//2)+2*(i%2))}, {v(B(i//2)+2*(i%2)+1)}, {ck}')
            em(f'v_cmp_eq_u32 vcc, -1, {ck}')
        L = em.newlabel('Lk'); D = em.newlabel('Lkd'); C = em.newlabel('Lkc')
        if o.kdual:
            for i in range(8): ldk(i)
            for n in range(16): ldq(n)
            for i in range(8): ldk(i, KB)
            em.wait_vm(8)
            em.vmq = []
            em.label(L)
            kchk(KA); em(f's_cbranch_vccz {D}')
            for i in range(8): ldk(i)
            em.force_wait(vm=8); em.vmq = []
            kchk(KB); em(f's_cbranch_vccz {C}')
            for i in range(8): ldk(i, KB)
            em.force_wait(vm=8); em.vmq = []
            self.spin_tail(L)
            em.label(C)
            for r in range(0, 32, 2): em(f'v_pk_mov_b32 {v(KT+r,2)}, {v(KB(r//4)+r%4,2)}, {v(KB(r//4)+r%4,2)} op_sel:[0,1]')
            em.label(D)
        else:
            kp = o.kpos if l else o.kpos0
            for n in range(kp): ldq(n)
            if o.kfirst and not o.xc:
                for i in range(8): ldk(i)
            for n in range(kp, 16): ldq(n)
            if self.p2_hook: self.p2_hook()
            if not o.kfirst or o.xc:
                for i in range(8): ldk(i)
            if l == 0: self.touch_at('p', None, v(254))
            if l == 0 and o.w2b1b:
                assert not (o.xorder & 1)
                self.emit(self.b1[1])
                self.b1 = self.w2_batch(list(range(32, 40))[:2 * o.w2b1b], 'w2f')
            em.label(L)
            kchk(KA)
            em(f's_cbranch_vccz {D}')
            em.cond_begin()
            for i in range(8): ldk(i)
            em.force_wait(vm=0)
            em.cond_end()
            self.spin_tail(L)
            em.label(D)
        self.ts('kt')
        if l == 0 and o.wb1:
            L = em.newlabel('Lwb')
            em(f's_lshr_b32 {sT}, s2, 3'); em(f's_or_b32 {sT}, {sT}, {sW}'); em(f's_cmp_lg_u32 {sT}, 0'); em(f's_cbranch_scc1 {L}')
            em.out.append(' buffer_wbl2 sc1')
            em.label(L)
        side = Side(em)
        def attn(n): em(f'{MF} {v(DB[n%3],16)}, {v(KT+4*(n%8),4)}, {v(QF+4*n,4)}, 0')
        def post(n):
            D = DB[n % 3]; O = QF + 4 * n; rc = v(D + 8)
            it = [f'v_add_f32 {rc}, {s1em6}, {rc}', f'v_rcp_f32 {rc}, {rc}']
            it += [f'v_mul_f32 {v(D+r)}, {v(D+r)}, {rc}' for r in range(8)]
            it += [f'v_cvt_pk_bf16_f32 {v(O+r)}, {v(D+2*r)}, {v(D+2*r+1)}' for r in range(4)]
            return it
        def wo(n, c):
            h, i = divmod(n, 8)
            cc = v(A[h][c], 16)
            em(f'{MF} {cc}, {a(WOA + i*8 + c*4, 4)}, {v(QF+4*n,4)}, ' + ('0' if i == 0 else cc))
        attn(0); attn(1)
        self.p2_bg(l, side)
        side.run(2)
        E1 = o.early1
        if o.p2pipe:
            self.emit(post(0)[:2] + post(1)[:2] + post(0)[2:])
            for n in range(16):
                nxt = post(n + 1)[2:] if n + 1 < 16 else []
                if n + 2 < 16: attn(n + 2)
                for t in nxt[:o.p2a]: em(t)
                wo(n, 0)
                for t in nxt[o.p2a:]: em(t)
                side.clk(o.gap2)
                if n + 2 < 16: self.emit(post(n + 2)[:2])
        else:
            self.emit(post(0))
            for n in range(16):
                nxt = post(n + 1) if n + 1 < 16 else []
                if n + 2 < 16: attn(n + 2)
                if nxt: em(nxt[0]); em(nxt[1])
                side.clk(o.gap2)
                for t in nxt[2:8]: em(t)
                wo(n, 0)
                for t in nxt[8:11]: em(t)
                if n < E1: wo(n, 1)
                for t in nxt[11:]: em(t)
        side.flush()
        if o.kdual:
            assert E1 == 0
            em.force_wait(vm=len(em.vmq))
        self.ts('p2loop')
        xoff = 0; sti = 2 * l
        pre = (self.b1[1] + [self.barrier]) if l == 0 else []
        self.emit(pre)
        pw = (lambda: em.force_wait(vm=0)) if (l == 0 and 'h' not in o.rst1) else None
        d0 = [lambda m=m: (self.w1dma(0, m, 'w1a'), self.w1dma(1, m, 'w1a')) for m in self.w1_tail]
        self.two_halves([lambda n=n: wo(n, 1) for n in range(E1, 16)], A, None, xoff, sti, pw, dmas=d0)
        self.p2_tail(l)

    def p2_bg(self, l, side):
        em = self.em
        if self.o.cpf2 & (1 if l == 0 else 4): side.add(lambda: self.code_pf(v(248, 4), v(252)))
        if self.o.retouch: side.add(lambda: self.retouch(0, v(254), v(254)))
        if l == 0:
            if 'h' not in self.o.rst1: side.add(*self.reset_items(248, 'h'))
            side.add(lambda: self.cs_loads(em))
            if self.o.w2b1b: side.add(lambda: em.wait_lg(0)); side.add(*self.b1[0])
        n0 = (self.o.sp0 if l == 0 else self.o.sp6)
        todo = self.w1_todo[:len(self.w1_todo) - n0]; self.w1_tail = self.w1_todo[len(self.w1_todo) - n0:]
        for m in todo: side.add(lambda m=m: (self.w1dma(0, m, 'w1a'), self.w1dma(1, m, 'w1a')))
        if l == 0: self.touch_at('s', side, v(254))
        if l == 1:
            for m in range(self.o.cq, 8): side.add(lambda m=m: self.w1dma(2, m, 'w1a'))
    def retouch(self, off, vt, dst):
        em = self.em
        em(f'v_lshlrev_b32 {vt}, 7, {vLane}')
        em(f's_and_b32 {sT2}, {sW}, 1'); em(f's_mul_i32 {sT2}, {sT2}, 1792'); em(f's_add_u32 {sT2}, {sT2}, {sXst}'); em(f's_add_u32 {sT2}, {sT2}, {off}')
        em('s_mov_b64 exec, 0xffff')
        em(f'buffer_load_dword {dst}, {vt}, {SWS}, {sT2} offen sc1', tag='touch')
        em('s_mov_b64 exec, -1')
    def touch_xh(self, which, vt, dst):
        em = self.em
        if which == 'x':
            self.retouch(0, vt, dst[0])
            em(f'v_lshlrev_b32 {vt}, 17, {vLane}')
            em(f's_lshl_b32 {sT2}, {sJ}, 2'); em(f's_add_u32 {sT2}, {sT2}, {sW}'); em(f's_lshl_b32 {sT2}, {sT2}, 7'); em(f's_add_u32 {sT2}, {sT2}, {sG8K}')
            em('s_mov_b64 exec, 7')
            em(f'buffer_load_dword {dst[1]}, {vt}, {SWS}, {sT2} offen sc1', tag='touch')
        else:
            em(f'v_lshlrev_b32 {vt}, 7, {vLane}')
            em('s_mov_b64 exec, 0xffff')
            em(f's_add_u32 {sT2}, {sHks}, {int(which) * 2048}')
            em(f'buffer_load_dword {dst[0]}, {vt}, {SWS}, {sT2} offen sc1', tag='touch')
        em('s_mov_b64 exec, -1')
    def touch_at(self, pos, side, vt):
        for k, which in enumerate(('x', '0', '1', '2')):
            if self.o.tpl.split(',')[k] == pos:
                f = lambda which=which, k=k: self.touch_xh(which, vt, [a(104 + 2 * k), a(105 + 2 * k)])
                side.add(f) if side is not None else f()
    def code_pf(self, dst, vt):
        em = self.em
        L = em.newlabel('Lpc')
        end = 'L_slow' if not self.sc else 'L_codeend'
        em(f's_getpc_b64 {sEx}'); em.label(L)
        em(f's_lshr_b32 {sT}, s2, 3'); em(f's_lshl_b32 {sT}, {sT}, 2'); em(f's_add_u32 {sT}, {sT}, {sW}'); em(f's_lshl_b32 {sT}, {sT}, 10')
        em(f's_min_u32 {sT}, {sT}, {end}-{L}-1024')
        em(f'v_add_u32 {vt}, {sT}, {vL16}')
        em(f'global_load_dwordx4 {dst}, {vt}, {sEx}', tag='touch')
    def cs_loads(self, e):
        e(f'v_and_b32 {v(255)}, 31, {vLane}'); e(f'v_lshlrev_b32 {v(255)}, 2, {v(255)}'); e(f's_mul_i32 {sFx}, {sJ}, 384'); e(f's_add_u32 {sFx}, {sFx}, {WS_CS}')
        for p in range(3): e(f'buffer_load_dword {CS[p]}, {v(255)}, {SWS}, {sFx} offen offset:{(0, 256, 128)[p]} sc1', tag='cs')

    def p2_tail(self, l):
        em = self.em; o = self.o
        if l == 0: self.check([CS[0], CS[1], CS[2], CS[2]], self.cs_loads, v(TMP))
        em.wait_vm_tag('w1a')
        self.barrier()
        if l == 0 and not o.p2late:
            for m in range(8): self.w1dma(2, m, 'w1c')
        self.ts(f'end{4*l+1}')

    def hld(self, n, final, e=None):
        e = e or self.em
        st, h = (n % 22, n // 22) if (final or self.o.t4) else (n // 2, n % 2)
        if st == 21: so = sLim4
        else: self.tab4(st, sFx, 12, e); so = sFx
        r = e(f'buffer_load_dwordx4 {v(AF + 4 * (n % 24), 4)}, {v(32 + h)}, {SWS}, {so} offen sc1', tag='A')
        if r is not None: self.ldidx[id(r)] = n
    def p3(self, l):
        em = self.em; o = self.o
        ld, chk = self.a_loader(o.pre, 2 * l, sTxn)
        side = Side(em)
        side.add(*self.aux_const_items())
        if l == 0 and o.t4:
            side.add(*(self.img_m3(S_ADDR, v(TMP), v(TMP + 1)) + self.img_io('w', v(TMP), 64) + self.img_m1(S_ADDR, v(TMP), v(TMP + 1))))
            side.add(self.barrier); side.add(*self.img_io('r', v(TMP), 32 * 144)); side.add(self.barrier)
        if l == 1: rl_w, rl_r = self.res_last_items(8 * 4096); side.add(*rl_w)
        def ld2(i):
            ld(i)
            if i == o.statstep: side.add(*self.stats_T_items(False, 2 * l))
            if l == 0 and o.t4 and i == o.p2late: side.flush()
            if l == 0 and o.p2late and o.p2late <= i < o.p2late + 8: self.w1dma(2, i - o.p2late, 'w1c')
            if l == 0 and i == 26:
                side.add(self.barrier)
                self.b2 = self.w2_batch(list(range(16, 24))[:2 * o.w2b2], 'w2b')
                side.add(*self.b2[0])
        self.pass2(XORD, self.w1pl[:2], [ACC, ACC + 16], False, side, lambda i: 1 if i < o.statstep else o.fill2, loader=ld2, extra=chk,
                   third=(self.w1pl[2], ACC + 32, o.n3) if (l == 1 and o.n3) else None)
        side.flush()
        self.emit(self.corr_items(0, ACC, False)); self.emit(self.corr_items(1, ACC + 16, False))
        if l == 0: em.wait_vm_tag('w1c')
        self.barrier()
        if l == 1: self.emit(rl_r)
        self.ts('p3a')
        def epi(p):
            A = ACC + 16 * p
            it = [f'v_cvt_pk_bf16_f32 {v(A+r)}, {v(A+2*r)}, {v(A+2*r+1)}' for r in range(8)]
            it += [f'v_pk_max_i16 {v(A+r)}, {v(A+r)}, 0' for r in range(8)]
            if l == 0: it += [f'v_or_b32 {v(A+r)}, 0x80000000, {v(A+r)}' for r in (0, 4)]
            return it
        def st(p):
            A = ACC + 16 * p
            if p == 1:
                em(f's_lshl_b32 {sT2}, {sW1d}, 5'); em(f's_add_u32 {sT2}, {sT2}, {sHks}')
                self.wsstore(v(A, 4), vL16, sT2, 0); self.wsstore(v(A + 4, 4), vL16, sT2, 0, off=1024)
            else: self.wsstore(v(A, 4), vL16, sHks, p * 1024); self.wsstore(v(A + 4, 4), vL16, sHks, p * 1024, off=1024)
        side.add(*(epi(0) + [lambda: st(0)] + epi(1) + [lambda: st(1)]))
        side.add(f'v_add_u32 {v(32)}, {sHR}, {vL16}', f'v_add_u32 {v(33)}, {H_T}, {v(32)}')
        if l == 0:
            self.b3 = self.w2_batch(list(range(24, 32))[:2 * o.w2b3], 'w2c')
            side.add(*self.b3[0])
            side.add(*self.b2[1]); side.add(lambda: em.wait_lg(0))
            self.b3b = self.w2_batch(list(range(16, 24))[:2 * o.w2b3b], 'w2e')
            side.add(*self.b3b[0])
        else: side.add(*self.final_addr_items())
        if l == 1 and o.n3:
            rest = XORD[o.n3:]
            hn = [0]
            def fill(i):
                if i >= o.hpf3:
                    if i == o.hpf3: side.flush()
                    while hn[0] < o.pre4 and hn[0] < (i - o.hpf3 + 1) * o.hper and (hn[0] not in rest[i + 1:]): self.hld(hn[0], True); hn[0] += 1
                return o.fill3 if i >= 1 else 0
            self.pass1(self.w1pl[2], ACC + 32, side, fill, rest)
            while hn[0] < o.pre4: self.hld(hn[0], True); hn[0] += 1
        else:
            def fill(ks):
                if ks == o.hpf: side.flush()
                if ks >= o.hpf and (ks - o.hpf) % o.hstr == 0 and (ks - o.hpf) // o.hstr < o.pre4: self.hld((ks - o.hpf) // o.hstr, l == 1)
                return o.fill_p3 if ks >= 2 else 0
            assert o.hpf >= o.pre4 and o.hpf + (o.pre4 - 1) * o.hstr < 32
            self.pass1(self.w1pl[2], ACC + 32, side, fill)
        self.emit(self.corr_items(2, ACC + 32, False))
        side.flush()
        self.ts('p3b')
        if l == 0:
            self.barrier()
            self.b4 = self.w2_batch(list(range(32, 40)) + list(range(24, 32)) + list(range(16, 24)), 'w2d')
            self.emit(self.b4[0][:4])
        self.emit(epi(2))
        L = em.newlabel('Lh3')
        em(f's_cmp_ge_u32 {sJ}, 11'); em(f's_cbranch_scc1 {L}')
        em.cond_begin(); st(2); em.cond_end()
        em.label(L)
        if l == 0:
            self.emit(self.b3[1]); self.emit(self.b3b[1])
            if len(self.b4[0]) > 4: em.wait_lg(0); self.emit(self.b4[0][4:])
            assert self.w2next == 22
        self.ts(f'end{4*l+2}')

    def p4(self, l):
        em = self.em; o = self.o
        final = l == 1
        ts_ = final or o.t4
        A = [[ACC, ACC + 16], [ACC + 32, 232]] if ts_ else [[ACC, ACC + 32], [ACC + 16, 232]]
        side = Side(em)
        S, Q = v(AUX), v(AUX + 1); RS = [TMP, CB]
        def stl(e):
            e(f's_add_u32 {sFx}, {sStR if ts_ else sStM}, {2 * l * 16 * 8192}')
            e(f'buffer_load_dwordx4 {v(AUX,4)}, {v(FS) if final else v(BB + 4) if ts_ else vP}, {SWS}, {sFx} offen sc1', tag='stat')
        if ts_ and not final:
            side.add(*self.m1_addr_items()); side.add(lambda: stl(em), *(['s_nop 0'] * 24))
        else: stl(em)
        if o.cpf2 & 2 and not final: self.code_pf(v(248, 4), v(252))
        if o.retouch and not final: self.retouch(X2OFF, v(254), v(254))
        side.add(lambda: self.check([v(AUX + r) for r in range(4)], stl, v(CB + 2), kind='x', tag=sTxn))
        side.add(f'v_add_f32 {S}, {S}, {v(AUX+1)}', f'v_add_f32 {v(AUX+2)}, {v(AUX+2)}, {v(AUX+3)}', f'v_add_f32 {S}, {S}, {v(AUX+2)}')
        if ts_:
            side.add(f'v_add_f32_dpp {S}, {S}, {S} row_ror:8 {DPPM}', f'v_mov_b32 {Q}, {S}', f'v_permlane16_swap_b32 {S}, {Q}')
        else:
            side.add(f'v_mov_b32 {Q}, {S}', f'v_permlane16_swap_b32 {S}, {Q}', f'v_add_f32 {S}, {S}, {Q}', f'v_mov_b32 {Q}, {S}', f'v_permlane32_swap_b32 {S}, {Q}')
        side.add(f'v_mul_f32 {S}, {sInv}, {S}', f'v_mul_f32 {Q}, {sInv}, {Q}', f'v_fma_f32 {Q}, -{S}, {S}, {Q}', f'v_max_f32 {Q}, 0, {Q}',
                 f'v_add_f32 {Q}, {sEps}, {Q}', f'v_rsq_f32 {v(RS[1])}, {Q}')
        if ts_:
            side.add(f'v_mov_b32 {v(CB+2)}, {v(RS[1])}', f'v_permlane32_swap_b32 {v(CB+2)}, {v(RS[1])}')
            if final: side.add(f'ds_bpermute_b32 {v(CB+2)}, {v(FB)}, {v(CB+2)}', f'ds_bpermute_b32 {v(RS[1])}, {v(FB)}, {v(RS[1])}')
            RS = [CB + 2, CB]
        else: RS = [CB, CB]
        b4 = list(self.b4[1]) if l == 0 else []
        first4 = ((1 if ts_ else 2) * (22 - (len(b4) - 1) // 2)) if b4 else 99
        if l == 0: side.add(self.barrier)
        dec = (lambda n: (n % 22, n // 22)) if ts_ else (lambda n: (n // 2, n % 2))
        def mf(n, c):
            st, h = dec(n)
            cc = v(A[h][c], 16)
            em(f'{MF} {cc}, {a(W2A + st*8 + c*4, 4)}, {v(AF + 4 * (n % 24), 4)}, ' + ('0' if st == 0 else cc))
        def chk(n):
            if n % 2: return None
            return self.check([v(AF + 4 * (n % 24)), v(AF + 4 * ((n + 1) % 24))], lambda e: (self.hld(n, final, e), self.hld(n + 1, final, e)), v(38), split=True,
                              kind='h', tag=sTh if final else sThn, again=lambda e, p: self.hld(self.ldidx[id(p)], final, e))
        T4 = o.tail4 if ts_ else o.tail4n
        br = chk(0)
        for n in range(44):
            assert n < first4 or not b4
            if br: br()
            both = n < 44 - T4
            mf(n, 0)
            if n + o.pre4 < 44: self.hld(n + o.pre4, final)
            if n + 1 < 44: br = chk(n + 1)
            if b4 and n >= o.b4start: self.emit([b4.pop(0)] + ([b4.pop(0)] if ts_ and len(b4) > 1 else []))
            elif n >= 8: side.clk(4 if both else o.gap4)
            if both:
                mf(n, 1)
                if n >= 8 and not b4: side.clk(o.gap4)
            if final and o.wb and n == o.wbstep:
                L = em.newlabel('Lwb')
                if o.wb == 1: em(f's_cmp_lg_u32 {sW}, 3')
                else: em(f's_lshr_b32 {sT}, s2, 3'); em(f's_or_b32 {sT}, {sT}, {sW}'); em(f's_cmp_lg_u32 {sT}, 0')
                em(f's_cbranch_scc1 {L}')
                em.out.append(' buffer_wbl2 sc1')
                em.label(L)
            if o.ts3 and final and n in (0, 7, 15, 21, 29, 37): self.ts(f'q{n}')
            if ts_ and n == 22:
                side.add(*(self.reduce_items(0, A[0][0], A[0][1], MR, ACC, RS[0], 0, 0, True, True) if final else self.reduce_m1(0, A[0][0], A[0][1], MR, ACC, RS[0], True)))
                side.add(*self.unpack_items(1, ACC + 16)); side.add(self.barrier)
        side.flush()
        self.ts('p4loop')
        if ts_:
            tail = self.reduce_items(1, A[1][0], A[1][1], MR, ACC + 16, RS[1], 0, 0, True, False) if final else self.reduce_m1(1, A[1][0], A[1][1], MR, ACC + 16, RS[1], False)
            for k, n in enumerate(range(44 - T4, 44)):
                mf(n, 1)
                if k >= 1: em(tail.pop(0))
            self.emit(tail)
            if final: return
            self.w1_pre = 0
            self.x_prefetch(0, 0, o.pre5)
            self.ts('end3')
            return
        qd = [lambda m=m: self.qkv_dma('q', m, 'q') for m in range(8)] if o.qearly else []
        pair = lambda m: (lambda: (self.w1dma(0, m, 'w1a'), self.w1dma(1, m, 'w1a')))
        d1 = [pair(m) for m in range(4, 4 + o.sp1)]; d2 = [pair(m) for m in range(4 + o.sp1, 4 + o.sp1 + o.sp2)]
        self.w1_pre = o.sp1 + o.sp2
        self.two_halves([lambda n=n: mf(n, 1) for n in range(44 - T4, 44)], A, RS[0], X2OFF, 1, dmas=qd + d1, dmas2=d2)
        self.ts('end3')

    def p5_start(self):
        em = self.em; o = self.o
        ld0, chk = self.a_loader(o.pre5 if o.t4 else o.pre, 1, sTx)
        side = Side(em)
        side.add(*self.aux_const_items())
        side.add(f'v_subrev_u32 {vRW}, {S_ADDR:#x}, {vRW}', f'v_subrev_u32 {vRR}, {S_ADDR:#x}, {vRR}')
        self.S = 0
        qn = [8 if o.qearly else 0]; was = [False]
        def ld(i):
            ld0(i)
            if i == 12:
                side.add(self.barrier)
                if o.t4: side.add(*(self.img_m1(S_ADDR, v(TMP), v(TMP + 1)) + self.img_io('w', v(TMP), 32 * 144)))
            if i == o.statstep:
                side.add(*self.stats_T_items(True, 1))
                side.add(f'{MF} {v(MR,16)}, {v(AUX,4)}, {v(CB+2,4)}, 0')
            if self.xdone and was[0] and qn[0] < 8: self.qkv_dma('q', qn[0], 'q'); qn[0] += 1
            was[0] = self.xdone
        self.pass2(XORD, [self.pl['k'], self.pl['v']], [ACC, ACC + 16], True, side, lambda i: 1 if i < o.statstep else o.fill2, loader=ld, extra=chk)
        side.flush()
        self.emit(self.corr_items('k', ACC, True)); self.emit(self.corr_items('v', ACC + 16, True))
        self.ts('p5a')

    def finish(self):
        em = self.em
        L = em.newlabel('Le')
        em(f's_or_b32 {sT}, s2, {sW}'); em(f's_cmp_lg_u32 {sT}, 0'); em(f's_cbranch_scc1 {L}')
        em.cond_begin()
        em('s_mov_b64 exec, 1'); em(f'v_mov_b32 v24, {sNonce}'); em(f'buffer_store_dword v24, off, {SWS}, 0 sc1'); em('s_mov_b64 exec, -1')
        em.cond_end()
        em.label(L)
        if self.o.pad:
            L = em.newlabel('Lpad')
            em('v_readlane_b32 s3, v39, 0')
            em.label(L)
            em('s_memrealtime s[0:1]'); em.force_wait(lg=0); em('s_sub_u32 s0, s0, s3'); em(f's_cmp_lt_u32 s0, {self.o.pad}'); em(f's_cbranch_scc1 {L}')
        if self.o.ts:
            self.ts('end')
            em('s_memrealtime s[86:87]'); em.force_wait(lg=0); em('v_writelane_b32 v39, s86, 63')
            em(f's_lshl_b32 {sT}, s2, 2'); em(f's_add_u32 {sT}, {sT}, {sW}'); em(f's_lshl_b32 {sT}, {sT}, 8'); em(f's_add_u32 {sT}, {sT}, {WS_DBG}')
            em(f'v_lshlrev_b32 v24, 2, {vLane}')
            em(f'buffer_store_dword v39, v24, {SWS}, {sT} offen')
            if self.o.dbg:
                L = em.newlabel('Ld')
                em(f's_or_b32 {sT}, s2, {sW}'); em(f's_cmp_lg_u32 {sT}, 0'); em(f's_cbranch_scc1 {L}')
                em('s_memrealtime s[0:1]'); em.force_wait(lg=0); em('s_sub_u32 s0, s0, s3')
                em('v_readlane_b32 s1, v39, 0'); em('s_nop 3'); em('v_subrev_u32 v39, s1, v39'); em('v_writelane_b32 v39, s0, 0')
                em('v_mul_u32_u24 v25, 3, v0'); em('v_lshlrev_b32 v25, 2, v25'); em('ds_bpermute_b32 v26, v25, v39'); em.force_wait(lg=0)
                em('s_mov_b64 exec, 0xffff')
                em('global_store_dword v24, v26, s[100:101]')
                em.label(L)
        em('s_endpgm')
        em.out.extend(self.fixes); self.fixes = []

    def body(self, sc):
        self.ncnt = 0; self.ldidx = {}; self.fixes = []; self.sc = sc; self.swin = None; self.lin = True; self.S = S_ADDR
        seq = [lambda: self.p1_rest(0), lambda: self.p2(0), lambda: self.p3(0), lambda: self.p4(0),
               lambda: (self.p5_start(), self.p1_rest(1)), lambda: self.p2(1), lambda: self.p3(1), lambda: self.p4(1)]
        for i, f in enumerate(seq):
            self.em.comment(f'---------------- phase {i+1} ({"slow" if sc else "fast"}) ----------------')
            f()
            if self.o.stop == i + 1: break
        self.finish()

    def build(self):
        em = self.em
        self.sc = ''
        self.fixes = []
        self.prologue()
        self.p1_start()
        if self.o.force_slow: em('s_branch L_slow_tramp')
        em('s_cbranch_vccz L_fast')
        em.label('L_slow_tramp')
        em('s_getpc_b64 s[86:87]'); em.label('L_pc0')
        em('s_add_u32 s86, s86, L_slow-L_pc0'); em('s_addc_u32 s87, s87, 0'); em('s_setpc_b64 s[86:87]')
        em.label('L_end'); em('s_endpgm')
        em.out.extend(self.fixes)
        em.label('L_fast')
        snap = (list(em.vmq), list(em.lgq), self.nts, list(em.hist))
        self.body('')
        em.label('L_slow')
        em.vmq, em.lgq, self.nts, em.hist = list(snap[0]), list(snap[1]), snap[2], list(snap[3])
        self.body(' sc1')
        em.label('L_codeend')
        hdr = open('cdna_kernels/' + NAME + '.s.ref').read().split('; Override launch')[0]
        s = hdr + '; @launch grid=(256,1,1) block=(256,1,1) lds=163840\n'
        s += DOC
        s += '.amdgcn_target "amdgcn-amd-amdhsa--gfx950"\n.text\n'
        s += f'.globl {NAME}_kernel\n.p2align 8\n.type {NAME}_kernel,@function\n{NAME}_kernel:\n'
        s += em.text().replace('    ', ' ').replace(' offset:0 ', ' ').replace(', ', ',')
        s += f""".section .rodata,"a"
.p2align 6
.amdhsa_kernel {NAME}_kernel
  .amdhsa_next_free_vgpr 512
  .amdhsa_next_free_sgpr 102
  .amdhsa_accum_offset 256
  .amdhsa_group_segment_fixed_size 0
  .amdhsa_kernarg_size 72
  .amdhsa_user_sgpr_count 2
  .amdhsa_user_sgpr_kernarg_segment_ptr 1
  .amdhsa_system_sgpr_workgroup_id_x 1
  .amdhsa_float_denorm_mode_32 3
.end_amdhsa_kernel
"""
        return s

def main():
    ap = argparse.ArgumentParser()
    ap.add_argument('-o', default='k.s')
    ap.add_argument('--ts', action='store_true')
    ap.add_argument('--dbg', action='store_true')
    ap.add_argument('--pad', type=int, default=0)
    ap.add_argument('--ts2', action='store_true')
    ap.add_argument('--sync', default='A')
    ap.add_argument('--pk2', type=int, default=0)
    ap.add_argument('--tlb', type=int, default=0)
    ap.add_argument('--par', type=int, default=1)
    ap.add_argument('--pk4', type=int, default=0)
    ap.add_argument('--chkpos', type=int, default=0)
    ap.add_argument('--rstpos', type=int, default=1)
    ap.add_argument('--nochk', type=int, default=0)
    ap.add_argument('--xord', type=int, default=1)
    ap.add_argument('--retouch', type=int, default=0)
    ap.add_argument('--statstep', type=int, default=19)
    ap.add_argument('--tw2', type=int, default=0)
    ap.add_argument('--thr2', type=int, default=2)
    ap.add_argument('--kdual', type=int, default=0)
    ap.add_argument('--fill2', type=int, default=2)
    ap.add_argument('--rst1', default='xh')
    ap.add_argument('--qsched', default='66667777')
    ap.add_argument('--tq', type=int, default=0)
    ap.add_argument('--cgap', type=int, default=2)
    ap.add_argument('--ownpos', type=int, default=2)
    ap.add_argument('--mfB', type=int, default=3)
    ap.add_argument('--pf0', type=int, default=0)
    ap.add_argument('--pf1', type=int, default=0)
    ap.add_argument('--fixmode', type=int, default=1)
    ap.add_argument('--w2b1b', type=int, default=4)
    ap.add_argument('--p2late', type=int, default=16)
    ap.add_argument('--share', type=int, default=1)
    ap.add_argument('--share2', type=int, default=2)
    ap.add_argument('--span', action='store_true')
    ap.add_argument('--cpf2', type=int, default=3)
    ap.add_argument('--wb', type=int, default=2)
    ap.add_argument('--wbstep', type=int, default=36)
    ap.add_argument('--c1a', type=int, default=3)
    ap.add_argument('--tqc', type=int, default=2)
    ap.add_argument('--rep8', type=int, default=0)
    ap.add_argument('--xc', type=int, default=0)
    ap.add_argument('--gfirst', type=int, default=-1)
    ap.add_argument('--xorder', type=int, default=0)
    ap.add_argument('--ts3', action='store_true')
    ap.add_argument('--rste', type=int, default=0)
    ap.add_argument('--tpos', type=int, default=1)
    ap.add_argument('--tpl', default='n,n,n,n')
    ap.add_argument('--qpw', type=int, default=0)
    ap.add_argument('--ts2l1', type=int, default=0)
    ap.add_argument('--p2pipe', type=int, default=0)
    ap.add_argument('--p2a', type=int, default=6)
    ap.add_argument('--zpl', type=int, default=1)
    ap.add_argument('--n3', type=int, default=0)
    ap.add_argument('--hpf3', type=int, default=10)
    ap.add_argument('--hper', type=int, default=1)
    ap.add_argument('--fill3', type=int, default=6)
    ap.add_argument('--pad0', type=int, default=0)
    ap.add_argument('--abl', default='')
    ap.add_argument('--rsc', default='')
    ap.add_argument('--wb1', type=int, default=0)
    ap.add_argument('--kpos', type=int, default=0)
    ap.add_argument('--kpos0', type=int, default=0)
    ap.add_argument('--qlate', type=int, default=0)
    ap.add_argument('--qearly', type=int, default=0)
    ap.add_argument('--sp1', type=int, default=2)
    ap.add_argument('--sp2', type=int, default=2)
    ap.add_argument('--cq', type=int, default=0)
    ap.add_argument('--dgap', type=int, default=5)
    ap.add_argument('--sp0', type=int, default=2)
    ap.add_argument('--sp6', type=int, default=0)
    ap.add_argument('--t4', type=int, default=0)
    ap.add_argument('--pre5', type=int, default=10)
    ap.add_argument('--ring', type=int, default=3)
    ap.add_argument('--c2a', type=int, default=0)
    ap.add_argument('--hc', type=int, default=0)
    ap.add_argument('--rc', type=int, default=1)
    ap.add_argument('--pc', type=int, default=1)
    ap.add_argument('--sst', type=int, default=0)
    ap.add_argument('--sldc', type=int, default=5)
    ap.add_argument('--crun', type=int, default=1)
    ap.add_argument('--twsh', type=int, default=0)
    ap.add_argument('--plate', type=int, default=0)
    ap.add_argument('--pz', type=int, default=1)
    ap.add_argument('--w1r', type=int, default=0)
    ap.add_argument('--w1rc', type=int, default=5)
    ap.add_argument('--stop', type=int, default=0)
    ap.add_argument('--spin', type=int, default=200000)
    ap.add_argument('--pre', type=int, default=11)
    ap.add_argument('--pre4', type=int, default=10)
    ap.add_argument('--pre2', type=int, default=16)
    ap.add_argument('--gap2', type=int, default=12)
    ap.add_argument('--gap4', type=int, default=24)
    ap.add_argument('--tail4', type=int, default=4)
    ap.add_argument('--rot2', type=int, default=1)
    ap.add_argument('--prewrite', type=int, default=1)
    ap.add_argument('--tw', type=int, default=5)
    ap.add_argument('--gstep', type=int, default=24)
    ap.add_argument('--att2', type=int, default=1)
    ap.add_argument('--burst', type=int, default=0)
    ap.add_argument('--hstr', type=int, default=1)
    ap.add_argument('--thr', type=int, default=6)
    ap.add_argument('--w1_solo', type=int, default=2)
    ap.add_argument('--fill_p1', type=int, default=2)
    ap.add_argument('--fill_p2', type=int, default=3)
    ap.add_argument('--fill_p3', type=int, default=3)
    ap.add_argument('--fill_p4', type=int, default=3)
    ap.add_argument('--w1_early', type=int, default=4)
    ap.add_argument('--b4start', type=int, default=4)
    ap.add_argument('--w2b1', type=int, default=4)
    ap.add_argument('--w2b2', type=int, default=4)
    ap.add_argument('--w2b3', type=int, default=4)
    ap.add_argument('--w2b3b', type=int, default=0)
    ap.add_argument('--w1_gap', type=int, default=0)
    ap.add_argument('--b1gap', type=int, default=1)
    ap.add_argument('--bgpad', type=int, default=3)
    ap.add_argument('--p2early', type=int, default=0)
    ap.add_argument('--rot', type=int, default=1)
    ap.add_argument('--kv_early', type=int, default=4)
    ap.add_argument('--nt_stage', action='store_true')
    ap.add_argument('--nt_w1', action='store_true')
    ap.add_argument('--codepf', type=int, default=1)
    ap.add_argument('--outsc', default='sc1')
    ap.add_argument('--kfirst', type=int, default=1)
    ap.add_argument('--early1', type=int, default=0)
    ap.add_argument('--gap2b', type=int, default=40)
    ap.add_argument('--tail4n', type=int, default=16)
    ap.add_argument('--hpf', type=int, default=20)
    ap.add_argument('--force_slow', action='store_true')
    o = ap.parse_args()
    if o.span: o.ts = True
    if o.outsc: o.outsc = ' ' + o.outsc
    if not o.xord: XORD[:] = list(range(32))
    g = Gen(o)
    s = g.build()
    open(o.o, 'w').write(s)
    if o.ts:
        import json; json.dump(g.tsnames, open(o.o + '.ts.json', 'w'))
    print(f'wrote {o.o}: {g.em.ninstr} instrs, {g.em.nops} nop states, {len(s)} bytes')
if __name__ == '__main__': main()
```
